```python
import torch

def _softmax(x, axis=-1):
    return torch.softmax(x, dim=axis)
def _gelu(x):
    return torch.nn.functional.gelu(x, approximate="tanh")
def _silu(x):
    return torch.nn.functional.silu(x)
def _sigmoid(x):
    return torch.sigmoid(x)
def _layernorm(x, axis=-1, eps=1e-5):
    m = x.mean(dim=axis, keepdim=True)
    v = x.var(dim=axis, keepdim=True, unbiased=False)
    return (x - m) / torch.sqrt(v + eps)
def _scatter_add(tgt, idx, src, axis=0):
    return tgt.clone().index_add_(axis, idx, src)
def _segment_sum(src, seg, n):
    out = torch.zeros((n,) + src.shape[1:], dtype=src.dtype)
    return out.index_add_(0, seg, src)
def _pad(x, pw):
    flat = tuple(v for pair in reversed(pw) for v in pair)
    return torch.nn.functional.pad(x, flat)

kernel_name = 'sequential_preLN__softmax_full_mha__dense_activation_relu__prompt'

def setup_inputs():

    _w = (lambda a: (lambda t: t.to(torch.bfloat16) if t.is_floating_point() else t)(torch.as_tensor(a)))
    def _A_setup():
        B, S, D = 1, 2048, 640
        return {
            "x": _w((lambda *s: torch.randn(*s, dtype=torch.bfloat16) * 0.05)(B, S, D)),
            "wqkv": _w((lambda *s: torch.randn(*s, dtype=torch.bfloat16) * 0.05)(D, 3 * D)),
            "wo": _w((lambda *s: torch.randn(*s, dtype=torch.bfloat16) * 0.05)(D, D)),
        }
    _A_in = _A_setup()

    def _B_setup():
        B, S, D, Dff = 1, 2048, 640, 1728
        return {
            "x": _w((lambda *s: torch.randn(*s, dtype=torch.bfloat16) * 0.05)(B, S, D)),
            "w1": _w((lambda *s: torch.randn(*s, dtype=torch.bfloat16) * 0.05)(D, Dff)),
            "w2": _w((lambda *s: torch.randn(*s, dtype=torch.bfloat16) * 0.05)(Dff, D)),
        }
    _B_in = _B_setup()

    return {
        "A_x": _A_in["x"],
        "A_wqkv": _A_in["wqkv"],
        "A_wo": _A_in["wo"],
        "B_x": _B_in["x"],
        "B_w1": _B_in["w1"],
        "B_w2": _B_in["w2"],
    }

def reference(A_x, A_wqkv, A_wo, B_x, B_w1, B_w2):
    def _A_ref(x, wqkv, wo):
        B, S, D = x.shape
        H = 32; Dh = D // H
        qkv = (lambda x, *d: x.permute(*d))((x @ wqkv).reshape(B, S, 3, H, Dh), 2, 0, 3, 1, 4)
        q, k, v = qkv[0], qkv[1], qkv[2]
        scale = Dh ** -0.5
        scores = torch.einsum("bhqd,bhkd->bhqk", q, k) * scale
        p = _softmax(scores, axis=-1)
        o = torch.einsum("bhqk,bhkd->bhqd", p, v)
        return (lambda x, *d: x.permute(*d))(o, 0, 2, 1, 3).reshape(B, S, D) @ wo

    def _B_ref(x, w1, w2):
        h = torch.einsum("bsd,df->bsf", x, w1)
        zero = torch.zeros_like(h)
        h = torch.maximum(h, zero)
        return torch.einsum("bsf,fd->bsd", h, w2)

    x = A_x
    h = x + _A_ref(_layernorm(x, axis=-1), A_wqkv, A_wo)
    h2 = h + _B_ref(_layernorm(h, axis=-1), B_w1, B_w2)
    return h2
```

```python
class Asm:
    def __init__(self):
        self.lines = []
        self.uid = 0
    def __call__(self, s):
        for l in s.split("\n"):
            l = l.strip()
            if l:
                self.lines.append(("" if l.endswith(":") else "    ") + l)
    def label(self, name):
        self.lines.append(name + ":")
    def newlabel(self, base):
        self.uid += 1
        return f"L_{base}_{self.uid}"
    def text(self):
        return "\n".join(self.lines) + "\n"

def vr(a, n=1):
    return f"v{a}" if n == 1 else f"v[{a}:{a+n-1}]"
def ar(a, n=1):
    return f"a{a}" if n == 1 else f"a[{a}:{a+n-1}]"
def sr(a, n=1):
    return f"s{a}" if n == 1 else f"s[{a}:{a+n-1}]"

def kernel_header(name):
    return f""".text
.globl {name}
.p2align 8
.type {name},@function
{name}:
"""
def kernel_desc(name, vgpr, accum, sgpr=96):
    return f""".section .rodata,"a"
.p2align 6
.amdhsa_kernel {name}
  .amdhsa_next_free_vgpr {vgpr}
  .amdhsa_next_free_sgpr {sgpr}
  .amdhsa_accum_offset {accum}
  .amdhsa_group_segment_fixed_size 0
  .amdhsa_kernarg_size 72
  .amdhsa_user_sgpr_count 2
  .amdhsa_user_sgpr_kernarg_segment_ptr 1
  .amdhsa_system_sgpr_workgroup_id_x 1
  .amdhsa_float_denorm_mode_32 3
  .amdhsa_float_denorm_mode_16_64 3
.end_amdhsa_kernel
"""
```

```python
from common import *

SLOT = 26624
NSLOT = 5
FLAG = NSLOT * SLOT
LDS_ATTN = FLAG + 64

def gen_attn(name):
    a = Asm()
    sK, sV, sQ, sO = 8, 12, 16, 20
    sWave, sHead, sQt, sT0, sT1, sT2 = 24, 25, 26, 27, 28, 29
    sChunk, sSlotN, sPass, sKoff, sVoff, sDslot = 30, 31, 32, 33, 34, 35
    sVmask = 38
    sSlotW = 40
    vL16, vVoff = 2, 3
    vKc, vKrc, vKn, vKrn = 4, 5, 6, 7
    vQ, vQr = 8, 12
    vNC = 16
    vS = 32
    vP = 64
    vKb = 72
    vKr = 80
    vV = 84
    vO = 100
    vT = 116
    NV = 128
    a(f"""
    s_cmp_ge_u32 s2, 256
    s_cbranch_scc1 L_{name}_exit
    s_load_dwordx2 s[4:5], s[0:1], {KA_WS}
    s_and_b32 s{sT0}, s2, 7
    s_lshr_b32 s{sT1}, s2, 3
    s_and_b32 s{sT2}, s{sT1}, 3
    s_lshl_b32 s{sHead}, s{sT0}, 2
    s_add_u32 s{sHead}, s{sHead}, s{sT2}
    s_lshr_b32 s{sT1}, s{sT1}, 2
    v_lshrrev_b32 v1, 6, v0
    v_and_b32 v0, 63, v0
    s_nop 0
    v_readfirstlane_b32 s{sWave}, v1
    s_lshl_b32 s{sQt}, s{sT1}, 3
    s_mov_b32 s{sVmask}, 0x000fffff
    s_mov_b32 s{sVmask+1}, 0x000fffff
    s_mov_b32 s{sPass}, 0
    s_add_u32 s{sQt}, s{sQt}, s{sWave}
    s_waitcnt lgkmcnt(0)
    """)
    make_srd(a, sK, 4, 5, WS_K, SZ_QKV)
    make_srd(a, sV, 4, 5, WS_V, SZ_QKV)
    make_srd(a, sQ, 4, 5, WS_Q, SZ_QKV)
    make_srd(a, sO, 4, 5, WS_O, SZ_ACT)
    a(f"""
    v_lshlrev_b32 v{vL16}, 4, v0
    v_and_b32 v{vT}, 31, v0
    v_lshrrev_b32 v{vT+1}, 5, v0
    v_mul_u32_u24 v{vVoff}, 320, v{vT+1}
    v_lshlrev_b32 v{vT+2}, 4, v{vT}
    v_add_u32 v{vVoff}, v{vVoff}, v{vT+2}
    """)
    a(f"""
    s_mul_i32 s{sT0}, s{sHead}, 81920
    s_mul_i32 s{sT1}, s{sQt}, 1280
    s_add_u32 s{sT1}, s{sT1}, s{sT0}
    v_lshlrev_b32 v{vT+2}, 3, v{vT}
    v_add_u32 v{vT+2}, 1024, v{vT+2}
    v_mov_b32 v{vT+3}, 0x7fffff00
    v_cmp_gt_u32 vcc, 32, v0
    s_nop 1
    v_cndmask_b32 v{vT+2}, v{vT+3}, v{vT+2}, vcc
    buffer_load_dwordx4 {vr(vQ,4)}, v{vL16}, s[{sQ}:{sQ+3}], s{sT1} offen
    buffer_load_dwordx2 {vr(vQr,2)}, v{vT+2}, s[{sQ}:{sQ+3}], s{sT1} offen
    """)
    a(f"""
    v_mov_b32 v{vT+4}, 0
    v_mov_b32 v{vT+3}, 0x3f803f80
    v_cmp_eq_u32 vcc, 20, v{vT}
    s_nop 1
    v_cndmask_b32 v{vT+4}, v{vT+4}, v{vT+3}, vcc
    v_mov_b32 v{vT+5}, v{vT+4}
    v_mov_b32 v{vT+6}, v{vT+4}
    v_mov_b32 v{vT+7}, v{vT+4}
    s_lshl_b32 s{sT0}, s{sWave}, 11
    s_add_u32 s{sT0}, s{sT0}, 10240
    v_add_u32 v{vT+3}, s{sT0}, v{vL16}
    s_not_b64 exec, s[{sVmask}:{sVmask+1}]
    """)
    for sl in range(NSLOT):
        for j in range(2):
            off = sl * SLOT + j * 1024
            if off < 65536:
                a(f"ds_write_b128 v{vT+3}, {vr(vT+4,4)} offset:{off}")
            else:
                if j == 0 and (sl * SLOT >= 65536) and sl == (65536 + SLOT - 1) // SLOT:
                    a(f"v_add_u32 v{vT+3}, {sl*SLOT}, v{vT+3}")
                    base = sl * SLOT
                a(f"ds_write_b128 v{vT+3}, {vr(vT+4,4)} offset:{off - base}")
    a(f"""
    s_mov_b64 exec, -1
    v_mov_b32 v{vT+3}, {FLAG}
    v_mov_b32 v{vT+4}, 0
    ds_write_b32 v{vT+3}, v{vT+4}
    """)
    def dma_chunk():
        a(f"""
        s_mul_i32 s{sT0}, s{sWave}, 1280
        s_add_u32 m0, s{sSlotW}, s{sT0}
        s_lshl_b32 s{sT1}, s{sWave}, 11
        buffer_load_dwordx4 v{vL16}, s[{sK}:{sK+3}], s{sKoff} offen lds
        s_mov_b64 exec, 0xffff
        buffer_load_dwordx4 v{vL16}, s[{sK}:{sK+3}], s{sKoff} offen offset:1024 lds
        s_add_u32 s{sT1}, s{sT1}, s{sSlotW}
        s_add_u32 m0, s{sT1}, 10240
        s_mov_b64 exec, s[{sVmask}:{sVmask+1}]
        buffer_load_dwordx4 v{vVoff}, s[{sV}:{sV+3}], s{sVoff} offen lds
        s_add_u32 m0, m0, 1024
        s_add_u32 s{sT1}, s{sVoff}, 640
        buffer_load_dwordx4 v{vVoff}, s[{sV}:{sV+3}], s{sT1} offen lds
        s_mov_b64 exec, -1
        s_add_u32 s{sKoff}, s{sKoff}, 10240
        s_add_u32 s{sVoff}, s{sVoff}, 10240
        s_add_u32 s{sSlotW}, s{sSlotW}, {SLOT}
        s_cmp_ge_u32 s{sSlotW}, {NSLOT*SLOT}
        s_cselect_b32 s{sSlotW}, 0, s{sSlotW}
        """)
    a.label(f"L_{name}_restart")
    a(f"""
    s_mul_i32 s{sT0}, s{sHead}, 81920
    s_mul_i32 s{sT1}, s{sWave}, 1280
    s_add_u32 s{sKoff}, s{sT0}, s{sT1}
    s_add_u32 s{sVoff}, s{sT0}, s{sT1}
    s_mov_b32 s{sSlotW}, 0
    """)
    for c in range(3):
        dma_chunk()
    a(f"""
    s_waitcnt vmcnt(8) lgkmcnt(0)
    s_barrier
    """)
    dma_chunk()
    a(f"""
    v_mov_b32 v{vKc}, v{vL16}
    v_and_b32 v{vT}, 31, v0
    v_lshlrev_b32 v{vKrc}, 3, v{vT}
    v_add_u32 v{vKrc}, 1024, v{vKrc}
    v_add_u32 v{vKn}, {SLOT}, v{vKc}
    v_add_u32 v{vKrn}, {SLOT}, v{vKrc}
    s_mov_b32 s{sSlotN}, {SLOT}
    ds_read_b128 {vr(vKb,4)}, v{vKc}
    ds_read_b64 {vr(vKr,2)}, v{vKrc}
    """)
    for i in range(16):
        a(f"v_mov_b32 v{vO+i}, 0")
    a(f"""
    s_cmp_eq_u32 s{sPass}, 0
    s_cbranch_scc0 L_{name}_haveC
    s_waitcnt lgkmcnt(0)
    v_mfma_f32_32x32x16_bf16 {vr(vS,16)}, {vr(vKb,4)}, {vr(vQ,4)}, 0
    v_mfma_f32_32x32x8_bf16 {vr(vS,16)}, {vr(vKr,2)}, {vr(vQr,2)}, {vr(vS,16)}
    s_nop 15
    """)
    a(f"v_max3_f32 v{vT}, v{vS}, v{vS+1}, v{vS+2}")
    for i in range(3, 15, 2):
        a(f"v_max3_f32 v{vT}, v{vT}, v{vS+i}, v{vS+i+1}")
    a(f"""
    v_max_f32 v{vT}, v{vT}, v{vS+15}
    v_mov_b32 v{vT+1}, v{vT}
    s_nop 1
    v_permlane32_swap_b32 v{vT}, v{vT+1}
    s_nop 1
    v_max_f32 v{vT}, v{vT}, v{vT+1}
    v_sub_f32 v{vNC}, 0, v{vT}
    """)
    for i in range(1, 16):
        a(f"v_mov_b32 v{vNC+i}, v{vNC}")
    a.label(f"L_{name}_haveC")
    a(f"""
    s_waitcnt lgkmcnt(0)
    ds_read_b128 {vr(vKb+4,4)}, v{vKc} offset:1280
    ds_read_b64 {vr(vKr+2,2)}, v{vKrc} offset:1280
    ds_read_b128 {vr(vV,4)}, v{vKc} offset:10240
    ds_read_b128 {vr(vV+4,4)}, v{vKc} offset:{10240+1024}
    v_mfma_f32_32x32x16_bf16 {vr(vS,16)}, {vr(vKb,4)}, {vr(vQ,4)}, {vr(vNC,16)}
    v_mfma_f32_32x32x8_bf16 {vr(vS,16)}, {vr(vKr,2)}, {vr(vQr,2)}, {vr(vS,16)}
    s_mov_b32 s{sChunk}, 0
    s_nop 7
    """)
    a(".p2align 6")
    a.label(f"L_{name}_loop")
    for j in range(8):
        p = j & 1
        if j == 6:
            a(f"""
            s_cmp_lt_u32 s{sChunk}, 4
            s_cbranch_scc0 L_{name}_nodma
            s_waitcnt vmcnt(8)
            s_barrier
            """)
            dma_chunk()
            a(f"""
            s_branch L_{name}_dmadone
            L_{name}_nodma:
            s_waitcnt vmcnt(0)
            s_barrier
            L_{name}_dmadone:
            """)
        jk = j + 2
        kb, krb = (vKc, vKrc) if jk < 8 else (vKn, vKrn)
        a(f"ds_read_b128 {vr(vKb + 4*p,4)}, v{kb} offset:{(jk%8)*1280}")
        a(f"ds_read_b64 {vr(vKr + 2*p,2)}, v{krb} offset:{(jk%8)*1280}")
        jv = j + 1
        vb = vKc if jv < 8 else vKn
        a(f"ds_read_b128 {vr(vV + 8*(p^1),4)}, v{vb} offset:{10240 + (jv%8)*2048}")
        a(f"ds_read_b128 {vr(vV + 8*(p^1) + 4,4)}, v{vb} offset:{10240 + (jv%8)*2048 + 1024}")
        a("s_waitcnt lgkmcnt(4)")
        Sc, Sn = vS + 16*p, vS + 16*(p^1)
        a(f"v_mfma_f32_32x32x16_bf16 {vr(Sn,16)}, {vr(vKb + 4*(p^1),4)}, {vr(vQ,4)}, {vr(vNC,16)}")
        for r in range(4):
            a(f"v_exp_f32 v{Sc+r}, v{Sc+r}")
        a(f"v_mfma_f32_32x32x8_bf16 {vr(Sn,16)}, {vr(vKr + 2*(p^1),2)}, {vr(vQr,2)}, {vr(Sn,16)}")
        for r in range(4, 8):
            a(f"v_exp_f32 v{Sc+r}, v{Sc+r}")
        a(f"v_exp_f32 v{Sc+8}, v{Sc+8}")
        for r in range(4):
            a(f"v_cvt_pk_bf16_f32 v{vP+r}, v{Sc+2*r}, v{Sc+2*r+1}")
        a(f"v_exp_f32 v{Sc+9}, v{Sc+9}")
        a(f"v_exp_f32 v{Sc+10}, v{Sc+10}")
        a(f"v_mfma_f32_32x32x16_bf16 {vr(vO,16)}, {vr(vV + 8*p,4)}, {vr(vP,4)}, {vr(vO,16)}")
        for r in range(11, 16):
            a(f"v_exp_f32 v{Sc+r}, v{Sc+r}")
        a("s_nop 0")
        for r in range(4, 8):
            a(f"v_cvt_pk_bf16_f32 v{vP+r}, v{Sc+2*r}, v{Sc+2*r+1}")
        if j == 7:
            a(f"""
            v_mov_b32 v{vKc}, v{vKn}
            v_mov_b32 v{vKrc}, v{vKrn}
            """)
        else:
            a("s_nop 1")
        a(f"v_mfma_f32_32x32x16_bf16 {vr(vO,16)}, {vr(vV + 8*p + 4,4)}, {vr(vP+4,4)}, {vr(vO,16)}")
    a(f"""
    s_add_u32 s{sT0}, s{sSlotN}, {SLOT}
    s_cmp_ge_u32 s{sT0}, {NSLOT*SLOT}
    s_cselect_b32 s{sT0}, 0, s{sT0}
    s_sub_u32 s{sT1}, s{sT0}, s{sSlotN}
    s_mov_b32 s{sSlotN}, s{sT0}
    v_add_u32 v{vKn}, s{sT1}, v{vKn}
    v_add_u32 v{vKrn}, s{sT1}, v{vKrn}
    s_add_u32 s{sChunk}, s{sChunk}, 1
    s_cmp_lt_u32 s{sChunk}, 8
    s_cbranch_scc1 L_{name}_loop
    """)
    a(f"""
    s_waitcnt lgkmcnt(0)
    s_nop 15
    v_mov_b32 v{vT}, 0
    """)
    for r in range(12):
        a(f"v_fma_f32 v{vT}, v{vO+r}, 0, v{vT}")
    a(f"""
    s_cmp_eq_u32 s{sPass}, 0
    s_cbranch_scc0 L_{name}_store
    v_cmp_u_f32 vcc, v{vT}, v{vT}
    s_nop 4
    s_cmp_eq_u64 vcc, 0
    s_cbranch_scc1 L_{name}_novote
    v_mov_b32 v{vT+1}, {FLAG}
    v_mov_b32 v{vT+2}, 1
    ds_write_b32 v{vT+1}, v{vT+2}
    L_{name}_novote:
    s_waitcnt lgkmcnt(0)
    s_barrier
    v_mov_b32 v{vT+1}, {FLAG}
    ds_read_b32 v{vT+2}, v{vT+1}
    s_waitcnt lgkmcnt(0)
    v_readfirstlane_b32 s{sT0}, v{vT+2}
    s_cmp_eq_u32 s{sT0}, 0
    s_cbranch_scc1 L_{name}_store
    """)
    a(f"""
    s_mov_b32 s{sPass}, 1
    v_mov_b32 v{vT}, 0xff800000
    s_mul_i32 s{sT0}, s{sHead}, 81920
    s_mov_b32 s{sT1}, 0
    v_and_b32 v{vT+1}, 31, v0
    v_lshlrev_b32 v{vT+1}, 3, v{vT+1}
    v_add_u32 v{vT+1}, 1024, v{vT+1}
    L_{name}_maxloop:
    buffer_load_dwordx4 {vr(vKb,4)}, v{vL16}, s[{sK}:{sK+3}], s{sT0} offen
    buffer_load_dwordx2 {vr(vKr,2)}, v{vT+1}, s[{sK}:{sK+3}], s{sT0} offen
    s_waitcnt vmcnt(0)
    v_mfma_f32_32x32x16_bf16 {vr(vS,16)}, {vr(vKb,4)}, {vr(vQ,4)}, 0
    v_mfma_f32_32x32x8_bf16 {vr(vS,16)}, {vr(vKr,2)}, {vr(vQr,2)}, {vr(vS,16)}
    s_nop 15
    """)
    for i in range(0, 16, 2):
        a(f"v_max3_f32 v{vT}, v{vT}, v{vS+i}, v{vS+i+1}")
    a(f"""
    s_add_u32 s{sT0}, s{sT0}, 1280
    s_add_u32 s{sT1}, s{sT1}, 1
    s_cmp_lt_u32 s{sT1}, 64
    s_cbranch_scc1 L_{name}_maxloop
    v_mov_b32 v{vT+1}, v{vT}
    s_nop 1
    v_permlane32_swap_b32 v{vT}, v{vT+1}
    s_nop 1
    v_max_f32 v{vT}, v{vT}, v{vT+1}
    v_sub_f32 v{vNC}, 0, v{vT}
    """)
    for i in range(1, 16):
        a(f"v_mov_b32 v{vNC+i}, v{vNC}")
    a(f"s_branch L_{name}_restart")
    a.label(f"L_{name}_store")
    a(f"""
    v_mov_b32 v{vT}, v{vO+8}
    v_mov_b32 v{vT+1}, v{vO+8}
    s_nop 1
    v_permlane32_swap_b32 v{vT}, v{vT+1}
    s_nop 1
    v_rcp_f32 v{vT+1}, v{vT+1}
    v_lshrrev_b32 v{vT+2}, 5, v0
    v_and_b32 v{vT+3}, 31, v0
    s_lshl_b32 s{sT0}, s{sQt}, 5
    v_add_u32 v{vT+3}, s{sT0}, v{vT+3}
    v_lshlrev_b32 v{vT+3}, 4, v{vT+3}
    s_mul_i32 s{sT0}, s{sHead}, 5
    v_add_u32 v{vT+2}, s{sT0}, v{vT+2}
    """)
    for r in range(12):
        a(f"v_mul_f32 v{vO+r}, v{vO+r}, v{vT+1}")
    for q in range(3):
        a(f"""
        v_add_u32 v{vT+4}, {2*q}, v{vT+2}
        v_lshrrev_b32 v{vT+5}, 1, v{vT+4}
        v_lshlrev_b32 v{vT+5}, 15, v{vT+5}
        v_and_b32 v{vT+4}, 1, v{vT+4}
        v_lshlrev_b32 v{vT+4}, 3, v{vT+4}
        v_add3_u32 v{vT+4}, v{vT+4}, v{vT+5}, v{vT+3}
        v_cvt_pk_bf16_f32 v{vT+6}, v{vO+4*q}, v{vO+4*q+1}
        v_cvt_pk_bf16_f32 v{vT+7}, v{vO+4*q+2}, v{vO+4*q+3}
        """)
        if q == 2:
            a("s_mov_b32 exec_hi, 0")
        a(f"buffer_store_dwordx2 {vr(vT+6,2)}, v{vT+4}, s[{sO}:{sO+3}], 0 offen")
    a.label(f"L_{name}_exit")
    a("s_endpgm")
    return kernel_header(name) + a.text() + kernel_desc(name, NV, NV)
```

```python
from asmlib import *
KA_X, KA_WQKV, KA_WO, KA_BX, KA_W1, KA_W2, KA_OUT, KA_DBG, KA_WS = 0, 8, 16, 24, 32, 40, 48, 56, 64
S_TOK, D, DFF, H, DH = 2048, 640, 1728, 32, 20
SZ_QKV = 32 * 64 * 1280
WS_Q = 0
WS_K = WS_Q + SZ_QKV
WS_V = WS_K + SZ_QKV
SZ_ACT = 80 * 2048 * 16
WS_O = WS_V + SZ_QKV
WS_H = WS_O + SZ_ACT
SZ_F = 216 * 2048 * 16
WS_F = WS_H + SZ_ACT
WS_END = WS_F + SZ_F
LOG2E = 1.4426950408889634
QSCALE = (DH ** -0.5) * LOG2E

import struct
def f32bits(x):
    return struct.unpack("<I", struct.pack("<f", x))[0]

def make_srd(a, s, base_lo, base_hi, off, size):
    if off:
        a(f"s_add_u32 s{s}, s{base_lo}, {off:#x}")
        a(f"s_addc_u32 s{s+1}, s{base_hi}, 0")
    else:
        a(f"s_mov_b32 s{s}, s{base_lo}")
        a(f"s_mov_b32 s{s+1}, s{base_hi}")
    a(f"s_and_b32 s{s+1}, s{s+1}, 0xffff")
    a(f"s_mov_b32 s{s+2}, {size:#x}")
    a(f"s_mov_b32 s{s+3}, 0x20000")
```

```python
from common import *

def gen_core_l(name, mode):
    a = Asm()
    qkv = mode == 'qkv'
    LDW = 3840 if qkv else 3456
    WSZ = 640 * LDW
    NT_PER = 8 if qkv else 7
    NT_TOT = 15 if qkv else 14
    NST = 10
    STAT = 131072
    sA, sW, sO = 8, 12, 16
    sWave, sM0, sN0, sT0, sT1, sT2, sT3 = 20, 21, 22, 23, 24, 25, 26
    sCnt, sSlot, sAoff, sWoff, sLds = 27, 28, 29, 30, 31
    sWm, sWn = 32, 33
    sNt = 34
    a(f"""
    s_cmp_ge_u32 s2, 256
    s_cbranch_scc1 L_{name}_exit
    s_and_b32 s{sT0}, s2, 7
    s_lshr_b32 s{sT1}, s2, 3
    s_lshr_b32 s{sT2}, s{sT0}, 1
    s_lshl_b32 s{sT2}, s{sT2}, 2
    s_and_b32 s{sT3}, s{sT1}, 3
    s_add_u32 s{sM0}, s{sT2}, s{sT3}
    s_lshl_b32 s{sM0}, s{sM0}, 7
    s_and_b32 s{sT0}, s{sT0}, 1
    s_mul_i32 s{sT0}, s{sT0}, {NT_PER}
    s_lshr_b32 s{sT1}, s{sT1}, 2
    s_cmp_ge_u32 s{sT1}, {NT_PER}
    s_cbranch_scc1 L_{name}_exit
    s_add_u32 s{sNt}, s{sT0}, s{sT1}
    s_cmp_ge_u32 s{sNt}, {NT_TOT}
    s_cbranch_scc1 L_{name}_exit
    s_lshl_b32 s{sN0}, s{sNt}, 7
    s_load_dwordx2 s[4:5], s[0:1], {KA_X if qkv else KA_WS}
    s_load_dwordx2 s[6:7], s[0:1], {KA_WQKV if qkv else KA_W1}
    s_load_dwordx2 s[36:37], s[0:1], {KA_WS}
    v_lshrrev_b32 v2, 6, v0
    v_and_b32 v1, 63, v0
    s_nop 0
    v_readfirstlane_b32 s{sWave}, v2
    s_waitcnt lgkmcnt(0)
    """)
    if qkv:
        make_srd(a, sA, 4, 5, 0, 2048 * 1280)
    else:
        make_srd(a, sA, 4, 5, WS_H, SZ_ACT)
    make_srd(a, sW, 6, 7, 0, WSZ)
    a(f"""
    s_cmp_ge_u32 s{sWave}, 4
    s_cbranch_scc0 L_{name}_compute
    """)
    vAe, vAo, vWo = 4, 5, 6
    a(f"s_sub_u32 s{sWave}, s{sWave}, 4")
    if qkv:
        a(f"""
        v_lshrrev_b32 v2, 3, v1
        v_mul_u32_u24 v2, 1280, v2
        v_lshrrev_b32 v3, 4, v1
        v_and_b32 v7, 7, v1
        v_xor_b32 v3, v3, v7
        v_lshlrev_b32 v3, 4, v3
        v_add_u32 v{vAe}, v2, v3
        v_xor_b32 v{vAo}, 64, v{vAe}
        s_lshl_b32 s{sT0}, s{sWave}, 5
        s_add_u32 s{sT0}, s{sT0}, s{sM0}
        s_mul_i32 s{sAoff}, s{sT0}, 1280
        """)
        A_ISTEP, A_SSTEP = 8 * 1280, 128
    else:
        a(f"""
        v_lshlrev_b32 v{vAe}, 4, v1
        v_add_u32 v{vAo}, 1024, v{vAe}
        s_lshl_b32 s{sT0}, s{sWave}, 1
        s_lshl_b32 s{sT0}, s{sT0}, 15
        s_lshl_b32 s{sT1}, s{sM0}, 4
        s_add_u32 s{sAoff}, s{sT0}, s{sT1}
        """)
        A_SSTEP = 8 * 32768
    a(f"""
    v_lshrrev_b32 v2, 4, v1
    v_mul_u32_u24 v3, {LDW}, v2
    v_lshlrev_b32 v2, 2, v2
    v_and_b32 v7, 15, v1
    v_xor_b32 v2, v2, v7
    v_lshlrev_b32 v2, 4, v2
    v_add_u32 v{vWo}, v2, v3
    s_lshl_b32 s{sT0}, s{sWave}, 4
    s_mul_i32 s{sT0}, s{sT0}, {LDW}
    s_lshl_b32 s{sT1}, s{sN0}, 1
    s_add_u32 s{sWoff}, s{sT0}, s{sT1}
    s_lshl_b32 s{sLds}, s{sWave}, 12
    """)
    def issue_stage():
        for j in range(4):
            a(f"s_add_u32 m0, s{sSlot}, s{sLds}" if j == 0 else f"s_add_u32 m0, m0, 1024")
            if qkv:
                if j == 0:
                    a(f"s_mov_b32 s{sT0}, s{sAoff}")
                else:
                    a(f"s_add_u32 s{sT0}, s{sT0}, {A_ISTEP}")
                a(f"buffer_load_dwordx4 v{vAe if j % 2 == 0 else vAo}, s[{sA}:{sA+3}], s{sT0} offen lds")
            else:
                if j == 0:
                    a(f"s_mov_b32 s{sT0}, s{sAoff}")
                elif j == 2:
                    a(f"s_add_u32 s{sT0}, s{sT0}, 32768")
                else:
                    a("s_nop 0")
                a(f"buffer_load_dwordx4 v{vAe if j % 2 == 0 else vAo}, s[{sA}:{sA+3}], s{sT0} offen lds")
        for j in range(4):
            a(f"s_add_u32 m0, m0, {16384 - 3072}" if j == 0 else f"s_add_u32 m0, m0, 1024")
            if j == 0:
                a(f"s_mov_b32 s{sT0}, s{sWoff}")
            else:
                a(f"s_add_u32 s{sT0}, s{sT0}, {4 * LDW}")
            a(f"buffer_load_dwordx4 v{vWo}, s[{sW}:{sW+3}], s{sT0} offen lds")
        a(f"""
        s_add_u32 s{sAoff}, s{sAoff}, {A_SSTEP}
        s_add_u32 s{sWoff}, s{sWoff}, {64 * LDW}
        s_add_u32 s{sSlot}, s{sSlot}, 32768
        s_and_b32 s{sSlot}, s{sSlot}, 0x1ffff
        """)
    a(f"s_mov_b32 s{sSlot}, 0")
    for st in range(3):
        issue_stage()
    a(f"s_mov_b32 s{sCnt}, 0")
    a.label(f"L_{name}_ldloop")
    a(f"""
    s_waitcnt vmcnt(16)
    s_barrier
    """)
    issue_stage()
    a(f"""
    s_add_u32 s{sCnt}, s{sCnt}, 1
    s_cmp_lt_u32 s{sCnt}, {NST - 3}
    s_cbranch_scc1 L_{name}_ldloop
    s_waitcnt vmcnt(16)
    s_barrier
    s_waitcnt vmcnt(8)
    s_barrier
    s_waitcnt vmcnt(0)
    s_barrier
    s_endpgm
    """)
    a.label(f"L_{name}_compute")
    NXA = 8 if qkv else 2
    vXb = 4
    vWb = vXb + NXA
    vXa = vWb + 2
    vWa = vXa + NXA
    vX = 28
    vW = 44
    vSx, vSq, vCs, vOnes = 60, 62, 64, 66
    assert vWa + 2 <= vX
    a(f"""
    s_lshr_b32 s{sWm}, s{sWave}, 1
    s_and_b32 s{sWn}, s{sWave}, 1
    v_and_b32 v2, 31, v1
    v_lshrrev_b32 v3, 5, v1
    """)
    if qkv:
        a(f"""
        v_lshrrev_b32 v69, 1, v1
        v_and_b32 v69, 7, v69
        v_xor_b32 v69, v69, v3
        v_lshlrev_b32 v69, 4, v69
        v_lshlrev_b32 v68, 7, v2
        v_add_u32 v69, v69, v68
        s_lshl_b32 s{sT0}, s{sWm}, 13
        s_lshl_b32 s{sT1}, s{sWn}, 12
        s_add_u32 s{sT0}, s{sT0}, s{sT1}
        v_add_u32 v69, s{sT0}, v69
        """)
        for s in range(4):
            a(f"v_xor_b32 v{vXb + s}, {32 * s}, v69")
            a(f"v_xor_b32 v{vXb + 4 + s}, 4096, v{vXb + s}")
    else:
        a(f"""
        v_lshlrev_b32 v69, 11, v3
        v_lshlrev_b32 v68, 4, v2
        v_add_u32 v69, v69, v68
        s_lshl_b32 s{sT0}, s{sWm}, 10
        s_lshl_b32 s{sT1}, s{sWn}, 9
        s_add_u32 s{sT0}, s{sT0}, s{sT1}
        v_add_u32 v{vXb}, s{sT0}, v69
        v_xor_b32 v{vXb + 1}, 512, v{vXb}
        """)
    a(f"""
    v_lshrrev_b32 v69, 2, v1
    v_and_b32 v69, 3, v69
    v_lshlrev_b32 v68, 3, v3
    v_add_u32 v68, v68, v69
    v_lshlrev_b32 v68, 8, v68
    v_lshlrev_b32 v69, 6, v69
    v_add_u32 v68, v68, v69
    v_lshrrev_b32 v69, 4, v1
    v_and_b32 v69, 1, v69
    v_lshlrev_b32 v69, 5, v69
    v_add_u32 v68, v68, v69
    v_lshrrev_b32 v69, 1, v1
    v_and_b32 v69, 1, v69
    v_lshlrev_b32 v69, 4, v69
    v_add_u32 v68, v68, v69
    v_and_b32 v69, 1, v1
    v_lshlrev_b32 v69, 3, v69
    v_add_u32 v68, v68, v69
    v_add_u32 v68, 16384, v68
    s_lshl_b32 s{sT0}, s{sWn}, 1
    s_add_u32 s{sT0}, s{sT0}, s{sWm}
    s_lshl_b32 s{sT0}, s{sT0}, 6
    v_xor_b32 v{vWb}, s{sT0}, v68
    v_xor_b32 v{vWb + 1}, 64, v{vWb}
    """)
    for i in range(64):
        a(f"v_accvgpr_write_b32 a{i}, 0")
    for i in range(8):
        a(f"v_mov_b32 v{vX + 8 + i}, 0")
        a(f"v_mov_b32 v{vW + 8 + i}, 0")
    for i in range(6):
        a(f"v_mov_b32 v{vSx + i}, 0")
    a(f"v_mov_b32 v{vOnes}, 0x3f803f80")
    a(f"s_mov_b32 s{sSlot}, 0")
    a(f"s_mov_b32 s{sCnt}, 0")

    def reads(step, buf):
        for lt in range(2):
            if qkv:
                a(f"ds_read_b128 {vr(vX + buf*8 + lt*4, 4)}, v{vXa + lt*4 + step}")
            else:
                a(f"ds_read_b128 {vr(vX + buf*8 + lt*4, 4)}, v{vXa + lt} offset:{step*4096}")
        for lf in range(2):
            for h2 in range(2):
                a(f"ds_read_b64_tr_b16 {vr(vW + buf*8 + lf*4 + h2*2, 2)}, v{vWa + lf} offset:{step*4096 + h2*1024}")
    def group(buf, orientY):
        dots = []
        for j in range(4):
            dots.append(f"v_dot2_f32_bf16 v{vSx + (j&1)}, v{vX + buf*8 + j}, v{vOnes}, v{vSx + (j&1)}")
            dots.append(f"v_dot2_f32_bf16 v{vSq + (j&1)}, v{vX + buf*8 + j}, v{vX + buf*8 + j}, v{vSq + (j&1)}")
            dots.append(f"v_dot2_f32_bf16 v{vCs + (j&1)}, v{vW + buf*8 + j}, v{vOnes}, v{vCs + (j&1)}")
        k = 0
        for lf in range(2):
            for lt in range(2):
                acc = (lf*2 + lt) * 16
                xa, wa = vr(vX + buf*8 + lt*4, 4), vr(vW + buf*8 + lf*4, 4)
                if orientY:
                    a(f"v_mfma_f32_32x32x16_bf16 {ar(acc,16)}, {wa}, {xa}, {ar(acc,16)}")
                else:
                    a(f"v_mfma_f32_32x32x16_bf16 {ar(acc,16)}, {xa}, {wa}, {ar(acc,16)}")
                for d in dots[k*3:(k+1)*3]:
                    a(d)
                k += 1
    def mainloop(tag, orientY):
        a.label(f"L_{name}_loop{tag}")
        a("s_barrier")
        for i in range(NXA):
            a(f"v_add_u32 v{vXa + i}, s{sSlot}, v{vXb + i}")
        for i in range(2):
            a(f"v_add_u32 v{vWa + i}, s{sSlot}, v{vWb + i}")
        reads(0, 0)
        group(1, orientY)
        reads(1, 1)
        a("s_waitcnt lgkmcnt(6)")
        group(0, orientY)
        reads(2, 0)
        a("s_waitcnt lgkmcnt(6)")
        group(1, orientY)
        reads(3, 1)
        a("s_waitcnt lgkmcnt(6)")
        group(0, orientY)
        a(f"""
        s_add_u32 s{sSlot}, s{sSlot}, 32768
        s_and_b32 s{sSlot}, s{sSlot}, 0x1ffff
        s_add_u32 s{sCnt}, s{sCnt}, 1
        s_cmp_lt_u32 s{sCnt}, {NST}
        s_waitcnt lgkmcnt(0)
        s_cbranch_scc1 L_{name}_loop{tag}
        """)
        group(1, orientY)

    def stats():
        a(f"""
        s_nop 3
        v_add_f32 v{vSx}, v{vSx}, v{vSx+1}
        v_add_f32 v{vSq}, v{vSq}, v{vSq+1}
        v_add_f32 v{vCs}, v{vCs}, v{vCs+1}
        s_nop 1
        v_mov_b32 v{vSx+1}, v{vSx}
        v_mov_b32 v{vSq+1}, v{vSq}
        v_mov_b32 v{vCs+1}, v{vCs}
        s_nop 1
        v_permlane32_swap_b32 v{vSx}, v{vSx+1}
        v_permlane32_swap_b32 v{vSq}, v{vSq+1}
        v_permlane32_swap_b32 v{vCs}, v{vCs+1}
        s_nop 1
        v_add_f32 v{vSx}, v{vSx}, v{vSx+1}
        v_add_f32 v{vSq}, v{vSq}, v{vSq+1}
        v_add_f32 v{vCs}, v{vCs}, v{vCs+1}
        v_mul_f32 v{vSx}, {f32bits(1.0/640):#x}, v{vSx}
        v_mul_f32 v{vSq}, {f32bits(1.0/640):#x}, v{vSq}
        v_fma_f32 v{vSq}, -v{vSx}, v{vSx}, v{vSq}
        v_max_f32 v{vSq}, 0, v{vSq}
        v_add_f32 v{vSq}, {f32bits(1e-5):#x}, v{vSq}
        v_rsq_f32 v{vSq}, v{vSq}
        """)
        a(f"""
        s_lshl_b32 s{sT0}, s{sWm}, 8
        s_lshl_b32 s{sT1}, s{sWn}, 7
        s_add_u32 s{sT0}, s{sT0}, s{sT1}
        s_add_u32 s{sT0}, s{sT0}, {STAT}
        v_lshlrev_b32 v69, 2, v2
        v_add_u32 v68, s{sT0}, v69
        ds_write_b32 v68, v{vSx}
        ds_write_b32 v68, v{vSq} offset:512
        s_lshl_b32 s{sT0}, s{sWn}, 8
        s_lshl_b32 s{sT1}, s{sWm}, 7
        s_add_u32 s{sT0}, s{sT0}, s{sT1}
        s_add_u32 s{sT0}, s{sT0}, {STAT + 1024}
        v_add_u32 v68, s{sT0}, v69
        ds_write_b32 v68, v{vCs}
        s_waitcnt lgkmcnt(0)
        s_barrier
        """)

    vT = 70
    def epilogue_Y(kind):
        tag = kind
        for lt in range(2):
            a(f"""
            s_xor_b32 s{sT0}, s{sWn}, {lt}
            s_lshl_b32 s{sT0}, s{sT0}, 7
            s_lshl_b32 s{sT1}, s{sWm}, 8
            s_add_u32 s{sT0}, s{sT0}, s{sT1}
            s_add_u32 s{sT0}, s{sT0}, {STAT}
            v_lshlrev_b32 v69, 2, v2
            v_add_u32 v68, s{sT0}, v69
            ds_read_b32 v{vT + lt}, v68
            ds_read_b32 v{vT + 2 + lt}, v68 offset:512
            """)
        vC = 28
        for lf in range(2):
            a(f"""
            s_xor_b32 s{sT0}, s{sWm}, {lf}
            s_lshl_b32 s{sT0}, s{sT0}, 7
            s_lshl_b32 s{sT1}, s{sWn}, 8
            s_add_u32 s{sT0}, s{sT0}, s{sT1}
            s_add_u32 s{sT0}, s{sT0}, {STAT + 1024}
            v_lshlrev_b32 v69, 4, v3
            v_add_u32 v68, s{sT0}, v69
            """)
            for q in range(4):
                a(f"ds_read_b128 {vr(vC + lf*16 + q*4, 4)}, v68 offset:{q*32}")
        a("s_waitcnt lgkmcnt(0)")
        if kind == 'qk':
            a(f"""
            s_cmp_lt_u32 s{sNt}, 5
            s_cselect_b32 s{sT0}, {f32bits(QSCALE):#x}, 1.0
            v_mul_f32 v{vT+2}, s{sT0}, v{vT+2}
            v_mul_f32 v{vT+3}, s{sT0}, v{vT+3}
            """)
            a(f"""
            s_cmp_lt_u32 s{sNt}, 5
            s_cselect_b32 s{sT0}, {WS_Q}, {WS_K}
            s_add_u32 s{sO}, s36, s{sT0}
            s_addc_u32 s{sO+1}, s37, 0
            s_and_b32 s{sO+1}, s{sO+1}, 0xffff
            s_mov_b32 s{sO+2}, {SZ_QKV}
            s_mov_b32 s{sO+3}, 0x20000
            """)
            a(f"""
            s_cmp_lt_u32 s{sNt}, 5
            s_cselect_b32 s{sT0}, 0, 640
            s_sub_u32 s{sT2}, s{sN0}, s{sT0}
            """)
            for lt in range(2):
                a(f"""
                s_lshr_b32 s{sT0}, s{sM0}, 5
                s_lshl_b32 s{sT1}, s{sWm}, 1
                s_add_u32 s{sT0}, s{sT0}, s{sT1}
                s_xor_b32 s{sT1}, s{sWn}, {lt}
                s_add_u32 s{sT0}, s{sT0}, s{sT1}
                s_mul_i32 s{40 + lt}, s{sT0}, 1280
                """)
        else:
            make_srd(a, sO, 36, 37, WS_F, SZ_F)
            for lt in range(2):
                a(f"""
                s_lshl_b32 s{sT1}, s{sWm}, 6
                s_add_u32 s{sT0}, s{sM0}, s{sT1}
                s_xor_b32 s{sT1}, s{sWn}, {lt}
                s_lshl_b32 s{sT1}, s{sT1}, 5
                s_add_u32 s{sT0}, s{sT0}, s{sT1}
                s_lshl_b32 s{40 + lt}, s{sT0}, 4
                """)
        vAd, vP = vT + 4, vT + 8
        vV = vT + 10
        for lf in range(2):
            for q in range(4):
                if kind == 'qk':
                    a(f"""
                    s_xor_b32 s{sT0}, s{sWm}, {lf}
                    s_lshl_b32 s{sT0}, s{sT0}, 5
                    s_lshl_b32 s{sT1}, s{sWn}, 6
                    s_add_u32 s{sT0}, s{sT0}, s{sT1}
                    s_add_u32 s{sT0}, s{sT0}, s{sT2}
                    s_lshr_b32 s{sT0}, s{sT0}, 2
                    s_add_u32 s{sT0}, s{sT0}, {2*q}
                    v_add_u32 v{vAd}, s{sT0}, v3
                    v_mul_u32_u24 v{vAd+1}, 0xcccd, v{vAd}
                    v_lshrrev_b32 v{vAd+1}, 18, v{vAd+1}
                    v_mul_u32_u24 v{vAd+2}, 5, v{vAd+1}
                    v_sub_u32 v{vAd+2}, v{vAd}, v{vAd+2}
                    v_lshrrev_b32 v{vAd}, 1, v{vAd+2}
                    v_lshlrev_b32 v{vAd}, 9, v{vAd}
                    v_and_b32 v{vAd+3}, 1, v{vAd+2}
                    v_lshlrev_b32 v{vAd+3}, 3, v{vAd+3}
                    v_add_u32 v{vAd}, v{vAd}, v{vAd+3}
                    v_cmp_eq_u32 vcc, 4, v{vAd+2}
                    v_lshlrev_b32 v{vAd+3}, 4, v2
                    v_lshlrev_b32 v{vAd+2}, 3, v2
                    v_cndmask_b32 v{vAd+3}, v{vAd+3}, v{vAd+2}, vcc
                    v_add_u32 v{vAd}, v{vAd}, v{vAd+3}
                    v_mul_u32_u24 v{vAd+1}, 0x14000, v{vAd+1}
                    v_add_u32 v{vAd}, v{vAd}, v{vAd+1}
                    """)
                else:
                    a(f"""
                    s_xor_b32 s{sT0}, s{sWm}, {lf}
                    s_lshl_b32 s{sT0}, s{sT0}, 5
                    s_lshl_b32 s{sT1}, s{sWn}, 6
                    s_add_u32 s{sT0}, s{sT0}, s{sT1}
                    s_add_u32 s{sT0}, s{sT0}, s{sN0}
                    s_lshr_b32 s{sT0}, s{sT0}, 3
                    s_add_u32 s{sT0}, s{sT0}, {q}
                    s_lshl_b32 s{sT0}, s{sT0}, 15
                    v_lshlrev_b32 v{vAd}, 4, v2
                    v_lshlrev_b32 v{vAd+1}, 3, v3
                    v_add_u32 v{vAd}, v{vAd}, v{vAd+1}
                    v_add_u32 v{vAd}, s{sT0}, v{vAd}
                    """)
                for lt in range(2):
                    acc = (lf*2 + lt) * 16 + q*4
                    for r in range(4):
                        a(f"v_accvgpr_read_b32 v{vV + r}, a{acc + r}")
                    for r in range(4):
                        a(f"v_fma_f32 v{vV + r}, -v{vT + lt}, v{vC + lf*16 + q*4 + r}, v{vV + r}")
                    for r in range(4):
                        a(f"v_mul_f32 v{vV + r}, v{vV + r}, v{vT + 2 + lt}")
                    if kind == 'ffn1':
                        for r in range(4):
                            a(f"v_max_f32 v{vV + r}, 0, v{vV + r}")
                    pp = vP + 6 + lt*2
                    a(f"v_cvt_pk_bf16_f32 v{pp}, v{vV}, v{vV+1}")
                    a(f"v_cvt_pk_bf16_f32 v{pp+1}, v{vV+2}, v{vV+3}")
                    a(f"buffer_store_dwordx2 {vr(pp,2)}, v{vAd}, s[{sO}:{sO+3}], s{40 + lt} offen")
        a("s_endpgm")

    def epilogue_X():
        vC, vM, vR = vT, 28, 44
        for lf in range(2):
            a(f"""
            s_xor_b32 s{sT0}, s{sWm}, {lf}
            s_lshl_b32 s{sT0}, s{sT0}, 7
            s_lshl_b32 s{sT1}, s{sWn}, 8
            s_add_u32 s{sT0}, s{sT0}, s{sT1}
            s_add_u32 s{sT0}, s{sT0}, {STAT + 1024}
            v_lshlrev_b32 v69, 2, v2
            v_add_u32 v68, s{sT0}, v69
            ds_read_b32 v{vC + lf}, v68
            """)
        make_srd(a, sO, 36, 37, WS_V, SZ_QKV)
        vAd = vT + 4
        for lf in range(2):
            a(f"""
            s_xor_b32 s{sT0}, s{sWm}, {lf}
            s_lshl_b32 s{sT0}, s{sT0}, 5
            s_lshl_b32 s{sT1}, s{sWn}, 6
            s_add_u32 s{sT0}, s{sT0}, s{sT1}
            s_add_u32 s{sT0}, s{sT0}, s{sN0}
            s_sub_u32 s{sT0}, s{sT0}, 1280
            v_add_u32 v{vAd+2}, s{sT0}, v2
            v_mul_u32_u24 v{vAd+3}, 0xcccd, v{vAd+2}
            v_lshrrev_b32 v{vAd+3}, 20, v{vAd+3}
            v_mul_u32_u24 v{vAd+4}, 20, v{vAd+3}
            v_sub_u32 v{vAd+2}, v{vAd+2}, v{vAd+4}
            v_lshlrev_b32 v{vAd+2}, 4, v{vAd+2}
            v_mul_u32_u24 v{vAd+3}, 0x14000, v{vAd+3}
            v_add_u32 v{vAd+2}, v{vAd+2}, v{vAd+3}
            v_mul_u32_u24 v{vAd+3}, 320, v3
            v_add_u32 v{vAd+lf}, v{vAd+2}, v{vAd+3}
            """)
        vV, vP = vT + 10, vT + 20
        for lt in range(2):
            a(f"""
            s_xor_b32 s{sT0}, s{sWn}, {lt}
            s_lshl_b32 s{sT0}, s{sT0}, 7
            s_lshl_b32 s{sT1}, s{sWm}, 8
            s_add_u32 s{sT0}, s{sT0}, s{sT1}
            s_add_u32 s{sT0}, s{sT0}, {STAT}
            v_lshlrev_b32 v69, 4, v3
            v_add_u32 v68, s{sT0}, v69
            """)
            for q in range(4):
                a(f"ds_read_b128 {vr(vM + q*4, 4)}, v68 offset:{q*32}")
                a(f"ds_read_b128 {vr(vR + q*4, 4)}, v68 offset:{512 + q*32}")
            a(f"""
            s_lshl_b32 s{sT1}, s{sWm}, 6
            s_add_u32 s{sT0}, s{sM0}, s{sT1}
            s_xor_b32 s{sT1}, s{sWn}, {lt}
            s_lshl_b32 s{sT1}, s{sT1}, 5
            s_add_u32 s{sT0}, s{sT0}, s{sT1}
            s_lshr_b32 s{sT0}, s{sT0}, 4
            s_mul_i32 s40, s{sT0}, 640
            s_add_u32 s41, s40, 640
            s_waitcnt lgkmcnt(0)
            """)
            for lf in range(2):
                acc = (lf*2 + lt) * 16
                for g in range(2):
                    for r in range(8):
                        a(f"v_accvgpr_read_b32 v{vV + r}, a{acc + g*8 + r}")
                    for r in range(8):
                        a(f"v_fma_f32 v{vV + r}, -v{vM + g*8 + r}, v{vC + lf}, v{vV + r}")
                    for r in range(8):
                        a(f"v_mul_f32 v{vV + r}, v{vV + r}, v{vR + g*8 + r}")
                    pp = vP + g*4
                    for r in range(4):
                        a(f"v_cvt_pk_bf16_f32 v{pp + r}, v{vV + 2*r}, v{vV + 2*r + 1}")
                    a(f"buffer_store_dwordx4 {vr(pp,4)}, v{vAd + lf}, s[{sO}:{sO+3}], s{40 + g} offen")
                    a("s_nop 1")
        a("s_endpgm")

    if qkv:
        a(f"""
        s_cmp_ge_u32 s{sNt}, 10
        s_cbranch_scc1 L_{name}_vpath
        """)
        mainloop("Y", True)
        stats()
        epilogue_Y('qk')
        a.label(f"L_{name}_vpath")
        mainloop("X", False)
        stats()
        epilogue_X()
    else:
        mainloop("Y", True)
        stats()
        epilogue_Y('ffn1')
    a.label(f"L_{name}_exit")
    a("s_endpgm")
    return kernel_header(name) + a.text() + kernel_desc(name, 104 + 64, 104)
```

```python
from common import *
STG = 36864
LDS_S = 4 * STG

def gen_core_s(name, mode):
    a = Asm()
    op = mode == 'oproj'
    NST = 5 if op else 14
    LDW = 1280
    WSZ = (640 if op else 1728) * LDW
    sA, sW, sO, sR = 8, 12, 16, 40
    sWave, sM0, sN0, sT0, sT1, sT2 = 20, 21, 22, 23, 24, 25
    sCnt, sSlot, sAoff, sWoff, sLdsA, sLdsW = 27, 28, 29, 30, 31, 32
    a(f"""
    s_cmp_ge_u32 s2, 256
    s_cbranch_scc1 L_{name}_exit
    s_load_dwordx2 s[4:5], s[0:1], {KA_WS}
    s_load_dwordx2 s[6:7], s[0:1], {KA_WO if op else KA_W2}
    s_load_dwordx2 s[36:37], s[0:1], {KA_X if op else KA_OUT}
    s_and_b32 s{sT0}, s2, 7
    s_lshr_b32 s{sT1}, s2, 3
    s_lshr_b32 s{sT2}, s{sT0}, 1
    s_lshl_b32 s{sT2}, s{sT2}, 3
    s_and_b32 s{sM0}, s{sT1}, 7
    s_add_u32 s{sM0}, s{sM0}, s{sT2}
    s_lshl_b32 s{sM0}, s{sM0}, 6
    s_and_b32 s{sT0}, s{sT0}, 1
    s_lshl_b32 s{sT0}, s{sT0}, 2
    s_lshr_b32 s{sT1}, s{sT1}, 3
    s_add_u32 s{sT0}, s{sT0}, s{sT1}
    s_mul_i32 s{sN0}, s{sT0}, 80
    v_lshrrev_b32 v2, 6, v0
    v_and_b32 v1, 63, v0
    s_nop 0
    v_readfirstlane_b32 s{sWave}, v2
    s_waitcnt lgkmcnt(0)
    """)
    if op:
        make_srd(a, sA, 4, 5, WS_O, SZ_ACT)
    else:
        make_srd(a, sA, 4, 5, WS_F, SZ_F)
    make_srd(a, sW, 6, 7, 0, WSZ)
    a(f"""
    s_cmp_ge_u32 s{sWave}, 4
    s_cbranch_scc0 L_{name}_compute
    s_sub_u32 s{sWave}, s{sWave}, 4
    """)
    vA, vWo = 4, 5
    a(f"v_lshlrev_b32 v{vA}, 4, v1")
    for j in range(5):
        a(f"""
        v_add_u32 v10, {j*64}, v1
        v_mul_u32_u24 v11, 0xcccd, v10
        v_lshrrev_b32 v11, 19, v11
        v_mul_u32_u24 v12, 10, v11
        v_sub_u32 v12, v10, v12
        v_and_b32 v13, 0x13, v11
        v_and_b32 v14, 4, v11
        v_lshlrev_b32 v14, 1, v14
        v_or_b32 v13, v13, v14
        v_and_b32 v14, 8, v11
        v_lshrrev_b32 v14, 1, v14
        v_or_b32 v13, v13, v14
        v_mul_u32_u24 v13, {LDW}, v13
        v_lshlrev_b32 v12, 4, v12
        v_add_u32 v{vWo + j}, v13, v12
        """)
    a(f"""
    s_lshl_b32 s{sT0}, s{sWave}, 17
    s_lshl_b32 s{sT1}, s{sM0}, 4
    s_add_u32 s{sAoff}, s{sT0}, s{sT1}
    s_mul_i32 s{sT0}, s{sWave}, {32 * LDW}
    s_lshl_b32 s{sT1}, s{sN0}, 1
    s_add_u32 s{sWoff}, s{sT0}, s{sT1}
    s_lshl_b32 s{sLdsA}, s{sWave}, 12
    s_mul_i32 s{sLdsW}, s{sWave}, 5120
    s_add_u32 s{sLdsW}, s{sLdsW}, 16384
    s_mov_b32 s{sSlot}, 0
    """)
    def issue_stage():
        for j in range(4):
            a(f"s_add_u32 m0, s{sSlot}, s{sLdsA}" if j == 0 else "s_add_u32 m0, m0, 1024")
            a(f"s_mov_b32 s{sT0}, s{sAoff}" if j == 0 else f"s_add_u32 s{sT0}, s{sT0}, 32768")
            a(f"buffer_load_dwordx4 v{vA}, s[{sA}:{sA+3}], s{sT0} offen lds")
        for j in range(5):
            a(f"s_add_u32 m0, s{sSlot}, s{sLdsW}" if j == 0 else "s_add_u32 m0, m0, 1024")
            a("s_nop 0")
            a(f"buffer_load_dwordx4 v{vWo + j}, s[{sW}:{sW+3}], s{sWoff} offen lds")
        a(f"""
        s_add_u32 s{sAoff}, s{sAoff}, {16 * 32768}
        s_add_u32 s{sWoff}, s{sWoff}, {128 * LDW}
        s_add_u32 s{sSlot}, s{sSlot}, {STG}
        s_cmp_ge_u32 s{sSlot}, {4 * STG}
        s_cselect_b32 s{sSlot}, 0, s{sSlot}
        """)
    for st in range(3):
        issue_stage()
    a(f"s_mov_b32 s{sCnt}, 0")
    a.label(f"L_{name}_ldloop")
    a(f"""
    s_waitcnt vmcnt(18)
    s_barrier
    """)
    issue_stage()
    a(f"""
    s_add_u32 s{sCnt}, s{sCnt}, 1
    s_cmp_lt_u32 s{sCnt}, {NST - 3}
    s_cbranch_scc1 L_{name}_ldloop
    s_waitcnt vmcnt(18)
    s_barrier
    s_waitcnt vmcnt(9)
    s_barrier
    s_waitcnt vmcnt(0)
    s_barrier
    s_endpgm
    """)
    a.label(f"L_{name}_compute")
    vXb, vWb, vXa, vWa = 4, 5, 6, 7
    vX = 8
    vW = 40
    vRes = 80
    vT = 90
    a(f"""
    v_and_b32 v2, 15, v1
    v_lshrrev_b32 v3, 4, v1
    s_lshl_b32 s{sT0}, s{sWave}, 4
    s_add_u32 s{sT0}, s{sT0}, s{sM0}
    v_add_u32 v{vT}, s{sT0}, v2
    """)
    a(f"""
    v_mul_u32_u24 v{vT+1}, 1280, v{vT}
    v_lshlrev_b32 v{vT+3}, 3, v3
    v_add_u32 v{vT+1}, v{vT+1}, v{vT+3}
    s_lshl_b32 s{sT0}, s{sN0}, 1
    v_add_u32 v{vT+1}, s{sT0}, v{vT+1}
    v_lshrrev_b32 v{vT+3}, 1, v3
    v_lshlrev_b32 v{vT+3}, 15, v{vT+3}
    v_lshlrev_b32 v{vT+2}, 4, v{vT}
    v_add_u32 v{vT+2}, v{vT+2}, v{vT+3}
    v_and_b32 v{vT+3}, 1, v3
    v_lshlrev_b32 v{vT+3}, 3, v{vT+3}
    v_add_u32 v{vT+2}, v{vT+2}, v{vT+3}
    s_lshl_b32 s{sT0}, s{sN0}, 12
    v_add_u32 v{vT+2}, s{sT0}, v{vT+2}
    """)
    if op:
        make_srd(a, sR, 36, 37, 0, 2048 * 1280)
        make_srd(a, sO, 4, 5, WS_H, SZ_ACT)
        for T in range(5):
            a(f"buffer_load_dwordx2 {vr(vRes + 2*T, 2)}, v{vT+1}, s[{sR}:{sR+3}], 0 offen offset:{32*T}")
    else:
        make_srd(a, sR, 4, 5, WS_H, SZ_ACT)
        make_srd(a, sO, 36, 37, 0, 2048 * 1280)
        for T in range(5):
            a(f"s_mov_b32 s{sT0}, {T * 65536}")
            a(f"buffer_load_dwordx2 {vr(vRes + 2*T, 2)}, v{vT+2}, s[{sR}:{sR+3}], s{sT0} offen")
    a(f"""
    s_lshl_b32 s{sT0}, s{sWave}, 12
    v_lshlrev_b32 v{vXb}, 10, v3
    v_lshlrev_b32 v{vT+3}, 4, v2
    v_add_u32 v{vXb}, v{vXb}, v{vT+3}
    v_add_u32 v{vXb}, s{sT0}, v{vXb}
    v_lshrrev_b32 v{vT+3}, 1, v3
    v_lshlrev_b32 v{vT+3}, 4, v{vT+3}
    v_and_b32 v{vT+4}, 1, v3
    v_lshlrev_b32 v{vT+4}, 2, v{vT+4}
    v_add_u32 v{vT+3}, v{vT+3}, v{vT+4}
    v_lshrrev_b32 v{vT+4}, 2, v2
    v_add_u32 v{vT+3}, v{vT+3}, v{vT+4}
    v_mul_u32_u24 v{vT+3}, 160, v{vT+3}
    v_and_b32 v{vT+4}, 3, v1
    v_lshlrev_b32 v{vT+4}, 3, v{vT+4}
    v_add_u32 v{vT+3}, v{vT+3}, v{vT+4}
    s_mul_i32 s{sT0}, s{sWave}, 5120
    s_add_u32 s{sT0}, s{sT0}, 16384
    v_add_u32 v{vWb}, s{sT0}, v{vT+3}
    """)
    for i in range(80):
        a(f"v_accvgpr_write_b32 a{i}, 0")
    def reads(buf):
        for tt in range(4):
            a(f"ds_read_b128 {vr(vX + buf*16 + tt*4, 4)}, v{vXa} offset:{tt*256}")
        for T in range(5):
            for h2 in range(2):
                a(f"ds_read_b64_tr_b16 {vr(vW + buf*20 + T*4 + h2*2, 2)}, v{vWa} offset:{h2*1280 + T*32}")
    def group(buf):
        for T in range(5):
            for tt in range(4):
                acc = (T*4 + tt) * 4
                a(f"v_mfma_f32_16x16x32_bf16 {ar(acc,4)}, {vr(vW + buf*20 + T*4, 4)}, {vr(vX + buf*16 + tt*4, 4)}, {ar(acc,4)}")
    for st in range(NST):
        slot = (st % 4) * STG
        a("s_barrier")
        a(f"v_add_u32 v{vXa}, {slot}, v{vXb}")
        a(f"v_add_u32 v{vWa}, {slot}, v{vWb}")
        reads(st & 1)
        if st > 0:
            group((st - 1) & 1)
        a("s_waitcnt lgkmcnt(0)")
    group((NST - 1) & 1)
    a(f"""
    s_barrier
    s_mul_i32 s{sT0}, s{sWave}, 20480
    v_lshlrev_b32 v{vT+3}, 4, v1
    v_add_u32 v{vT+4}, s{sT0}, v{vT+3}
    s_nop 4
    """)
    for t in range(20):
        a(f"ds_write_b128 v{vT+4}, {ar(t*4,4)} offset:{t*1024}")
    a(f"""
    s_waitcnt lgkmcnt(0)
    s_barrier
    s_lshl_b32 s{sT0}, s{sWave}, 10
    v_add_u32 v{vT+4}, s{sT0}, v{vT+3}
    v_add_u32 v{vT+5}, 40960, v{vT+4}
    """)
    vP = 8
    for sw in range(4):
        for T in range(5):
            base = vT + 4 if sw < 2 else vT + 5
            dst = 96 + (sw*5 + T) * 4
            a(f"ds_read_b128 {vr(dst,4)}, v{base} offset:{(sw%2)*20480 + T*4096}")
    a("s_waitcnt lgkmcnt(0) vmcnt(0)")
    for T in range(5):
        for r in range(4):
            d = 96 + T*4 + r
            a(f"v_add_f32 v{d}, v{d}, v{d+20}")
            a(f"v_add_f32 v{d+40}, v{d+40}, v{d+60}")
        for r in range(4):
            d = 96 + T*4 + r
            a(f"v_add_f32 v{d}, v{d}, v{d+40}")
        rr = vRes + 2*T
        a(f"""
        v_lshlrev_b32 v8, 16, v{rr}
        v_and_b32 v9, 0xffff0000, v{rr}
        v_lshlrev_b32 v10, 16, v{rr+1}
        v_and_b32 v11, 0xffff0000, v{rr+1}
        """)
        for r in range(4):
            d = 96 + T*4 + r
            a(f"v_add_f32 v{d}, v{d}, v{8+r}")
        d = 96 + T*4
        a(f"v_cvt_pk_bf16_f32 v{12 + 2*T}, v{d}, v{d+1}")
        a(f"v_cvt_pk_bf16_f32 v{13 + 2*T}, v{d+2}, v{d+3}")
        if op:
            a(f"s_mov_b32 s{sT0}, {T * 65536}")
            a(f"buffer_store_dwordx2 {vr(12 + 2*T, 2)}, v{vT+2}, s[{sO}:{sO+3}], s{sT0} offen")
        else:
            a(f"buffer_store_dwordx2 {vr(12 + 2*T, 2)}, v{vT+1}, s[{sO}:{sO+3}], 0 offen offset:{32*T}")
    a.label(f"L_{name}_exit")
    a("s_endpgm")
    return kernel_header(name) + a.text() + kernel_desc(name, 256, 176)
```

```python
import sys
sys.path.insert(0, "gen")
from build import *
from core_l import gen_core_l
from core_s import gen_core_s, LDS_S
from attn import gen_attn, LDS_ATTN
out = sys.argv[1] if len(sys.argv) > 1 else "dev.s"
launches = [("k_qkv_kernel", 256, 512, 131072 + 2048), ("k_attn_kernel", 256, 512, LDS_ATTN),
            ("k_oproj_kernel", 256, 512, LDS_S), ("k_ffn1_kernel", 256, 512, 131072 + 2048), ("k_ffn2_kernel", 256, 512, LDS_S)]
body = gen_core_l("k_qkv_kernel", "qkv") + gen_attn("k_attn_kernel") + gen_core_s("k_oproj_kernel", "oproj") + gen_core_l("k_ffn1_kernel", "ffn1") + gen_core_s("k_ffn2_kernel", "ffn2")
write_s(out, launches, body)
assemble(out, out.replace(".s", ".co"))
```

```python
import sys
sys.path.insert(0, "gen")
from build import *
from asmlib import *
from core_l import gen_core_l
from core_s import gen_core_s, LDS_S
from attn import gen_attn, LDS_ATTN
nempty = int(sys.argv[2])
out = sys.argv[1]
launches = [("k_qkv_kernel", 256, 512, 131072 + 2048), ("k_attn_kernel", 256, 512, LDS_ATTN),
            ("k_oproj_kernel", 256, 512, LDS_S), ("k_ffn1_kernel", 256, 512, 131072 + 2048), ("k_ffn2_kernel", 256, 512, LDS_S)]
launches += [("k_empty_kernel", 256, 512, 0)] * nempty
body = gen_core_l("k_qkv_kernel", "qkv") + gen_attn("k_attn_kernel") + gen_core_s("k_oproj_kernel", "oproj") + gen_core_l("k_ffn1_kernel", "ffn1") + gen_core_s("k_ffn2_kernel", "ffn2")
body += kernel_header("k_empty_kernel") + "    s_endpgm\n" + kernel_desc("k_empty_kernel", 32, 32)
write_s(out, launches, body)
assemble(out, out.replace(".s", ".co"))
```

```python
from asmlib import *
KA_X, KA_WQKV, KA_WO, KA_BX, KA_W1, KA_W2, KA_OUT, KA_DBG, KA_WS = 0, 8, 16, 24, 32, 40, 48, 56, 64
S_TOK, D, DFF, H, DH = 2048, 640, 1728, 32, 20
SZ_QKV = 32 * 64 * 1280
WS_Q = 0
WS_K = WS_Q + SZ_QKV
WS_V = WS_K + SZ_QKV
SZ_ACT = 80 * 2048 * 16
WS_O = WS_V + SZ_QKV
WS_H = WS_O + SZ_ACT
SZ_F = 216 * 2048 * 16
WS_F = WS_H + SZ_ACT
WS_END = WS_F + SZ_F
SZ_QK = 16 * 64 * 2560
WS_Q = 0
WS_K = WS_Q + SZ_QK
WS_V = WS_K + SZ_QK
WS_O = WS_V + SZ_QKV
WS_H = WS_O + SZ_ACT
WS_F = WS_H + SZ_ACT
WS_ST1 = WS_F + SZ_F
SZ_ST1 = 2048 * 8
WS_CS1 = WS_ST1 + SZ_ST1
SZ_CS1 = 8 * 1920 * 4
WS_CS2 = WS_CS1 + SZ_CS1
SZ_CS2 = 8 * 1792 * 4
WS_ST2 = WS_CS2 + SZ_CS2
SZ_ST2 = 8 * 2048 * 8
WS_WOP = WS_ST2 + SZ_ST2
SZ_WOP = 8 * 5 * 20480
WS_W2P = WS_WOP + SZ_WOP
SZ_W2P = 8 * 14 * 20480
WS_CNT = (WS_W2P + SZ_W2P + 4095) // 4096 * 4096
SZ_CNT = 16384
C_RK, C_RP, C_QKV, C_ATT, C_OP, C_F1, C_ST, C_CS1, C_CS2 = 0, 8, 9, 24, 32, 48, 64, 80, 96
C_P0, C_W1 = 0, 0
WS_END = WS_CNT + SZ_CNT
LOG2E = 1.4426950408889634
QSCALE = (DH ** -0.5) * LOG2E

import struct
def f32bits(x):
    return struct.unpack("<I", struct.pack("<f", x))[0]

def make_srd(a, s, base_lo, base_hi, off, size):
    if off:
        a(f"s_add_u32 s{s}, s{base_lo}, {off:#x}")
        a(f"s_addc_u32 s{s+1}, s{base_hi}, 0")
    else:
        a(f"s_mov_b32 s{s}, s{base_lo}")
        a(f"s_mov_b32 s{s+1}, s{base_hi}")
    a(f"s_and_b32 s{s+1}, s{s+1}, 0xffff")
    a(f"s_mov_b32 s{s+2}, {size:#x}")
    a(f"s_mov_b32 s{s+3}, 0x20000")

WS_STAMP = 32 << 20
STAMPS = False
def stamp(a, idx, base=64):
    if not STAMPS: return
    a(f"s_memtime s[{base+16}:{base+17}]")
    a("s_waitcnt lgkmcnt(0)")
    a(f"s_mov_b32 s{base+idx}, s{base+16}")
def stamp_rt(a, idx, base=64):
    if not STAMPS: return
    a(f"s_memrealtime s[{base+16}:{base+17}]")
    a("s_waitcnt lgkmcnt(0)")
    a(f"s_mov_b32 s{base+idx}, s{base+16}")
def stamp_flush(a, kidx, wave_sgpr, n=16, base=64, vt=120):
    if not STAMPS: return
    b = base
    a(f"s_load_dwordx2 s[{b+16}:{b+17}], s[0:1], {KA_WS}")
    a("s_waitcnt lgkmcnt(0)")
    a(f"s_add_u32 s{b+20}, s{b+16}, {WS_STAMP + kidx*0x40000}")
    a(f"s_addc_u32 s{b+21}, s{b+17}, 0")
    a(f"s_and_b32 s{b+21}, s{b+21}, 0xffff")
    a(f"s_mov_b32 s{b+22}, 0x40000")
    a(f"s_mov_b32 s{b+23}, 0x20000")
    a(f"s_lshl_b32 s{b+16}, s2, 3")
    a(f"s_add_u32 s{b+16}, s{b+16}, s{wave_sgpr}")
    a(f"s_lshl_b32 s{b+16}, s{b+16}, 6")
    a("s_mov_b64 exec, 1")
    for i in range(n):
        a(f"v_mov_b32 v{vt}, s{b+i}")
        a(f"v_mov_b32 v{vt+1}, s{b+16}")
        a(f"buffer_store_dword v{vt}, v{vt+1}, s[{b+20}:{b+23}], 0 offen offset:{4*i}")
    a("s_waitcnt vmcnt(0)")

class VmQ:
    def __init__(self): self.q = []
    def push(self, tag, n=1): self.q += [tag] * n
    def need(self, *tags):
        last = -1
        for i, t in enumerate(self.q):
            if t in tags: last = i
        return len(self.q) - 1 - last
```

```python
from common import *
import common, os
E = os.environ.get

NAME = "sequential_preLN__softmax_full_mha__dense_activation_relu__prompt_kernel"
pX, pWQ, pWO, pW1, pW2, pOUT, pDBG, pWS = 84, 86, 88, 92, 94, 96, 98, 78
sWS = 80
sWV = 100
sPoll = 101
SB = 48
STAT = 131072
LDS_TOTAL = 149504
SC = "sc1"
POLL_MAX = 1 << 22

def st(a, i): stamp(a, i, base=SB)
def st_rt(a, i): stamp_rt(a, i, base=SB)

def lane_id(a, v):
    a(f"v_mbcnt_lo_u32_b32 v{v}, -1, 0")
    a(f"v_mbcnt_hi_u32_b32 v{v}, -1, v{v}")

def arrive(a, sIdx, vt):
    a(f"""
    s_lshl_b32 s{sPoll}, s{sIdx}, 7
    s_add_u32 s{sPoll}, s{sPoll}, {WS_CNT}
    v_mov_b32 v{vt}, s{sPoll}
    v_mov_b32 v{vt+1}, 1
    s_mov_b64 exec, 1
    buffer_atomic_add v{vt+1}, v{vt}, s[{sWS}:{sWS+3}], 0 offen sc1
    s_mov_b64 exec, -1
    """)

def poll(a, vOff, vTgt, nl, vt):
    l0, l1 = a.newlabel("poll"), a.newlabel("pollok")
    a(f"s_mov_b64 exec, {(1 << nl) - 1:#x}")
    a(f"s_mov_b32 s{sPoll}, 0")
    a.label(l0)
    a(f"""
    buffer_load_dword v{vt}, v{vOff}, s[{sWS}:{sWS+3}], 0 offen sc1
    s_waitcnt vmcnt(0)
    v_cmp_gt_u32 vcc, v{vTgt}, v{vt}
    s_nop 4
    s_cmp_eq_u64 vcc, 0
    s_cbranch_scc1 {l1}
    s_add_u32 s{sPoll}, s{sPoll}, 1
    s_cmp_gt_u32 s{sPoll}, {POLL_MAX}
    s_cbranch_scc1 {l1}
    s_sleep 1
    s_branch {l0}
    """)
    a.label(l1)
    a("s_mov_b64 exec, -1")

def poll1(a, sIdx, target, vt):
    a(f"""
    s_lshl_b32 s{sPoll}, s{sIdx}, 7
    s_add_u32 s{sPoll}, s{sPoll}, {WS_CNT}
    v_mov_b32 v{vt+1}, s{sPoll}
    v_mov_b32 v{vt+2}, {target}
    """)
    poll(a, vt + 1, vt + 2, 1, vt)

def wave_sum(a, v):
    for sh in (1, 2, 4, 8):
        a(f"v_add_f32_dpp v{v}, v{v}, v{v} row_shr:{sh} row_mask:0xf bank_mask:0xf bound_ctrl:0")
        a("s_nop 1")
    a(f"v_add_f32_dpp v{v}, v{v}, v{v} row_bcast:15 row_mask:0xa bank_mask:0xf")
    a("s_nop 1")
    a(f"v_add_f32_dpp v{v}, v{v}, v{v} row_bcast:31 row_mask:0xc bank_mask:0xf")
    a("s_nop 1")

def emit_p0(a):
    sX, sWq, sW1 = 8, 12, 16
    s0 = 40
    vL = 1
    T = 4
    vR, vC, vD, vA = T, T + 10, T + 20, T + 30
    make_srd(a, sX, pX, pX+1, 0, 2048*1280)
    make_srd(a, sWq, pWQ, pWQ+1, 0, 640*3840)
    make_srd(a, sW1, pW1, pW1+1, 0, 640*3456)
    a(f"""
    s_lshl_b32 s{s0}, s2, 3
    s_lshl_b32 s{s0+1}, s{sWV}, 1
    s_add_u32 s{s0}, s{s0}, s{s0+1}
    s_mul_i32 s{s0+2}, s{s0}, 1280
    v_lshlrev_b32 v{vA}, 4, v{vL}
    v_lshlrev_b32 v{vA+1}, 2, v{vL}
    s_add_u32 s{s0+3}, s{s0+2}, 1280
    buffer_load_dwordx4 {vr(vR,4)}, v{vA}, s[{sX}:{sX+3}], s{s0+2} offen
    buffer_load_dword v{vR+4}, v{vA+1}, s[{sX}:{sX+3}], s{s0+2} offen offset:1024
    buffer_load_dwordx4 {vr(vR+6,4)}, v{vA}, s[{sX}:{sX+3}], s{s0+3} offen
    buffer_load_dword v{vR+5}, v{vA+1}, s[{sX}:{sX+3}], s{s0+3} offen offset:1024
    s_and_b32 s{s0+1}, s2, 7
    s_lshr_b32 s{s0+2}, s2, 3
    s_lshr_b32 s{s0+3}, s{s0+1}, 1
    s_lshl_b32 s{s0+3}, s{s0+3}, 5
    s_add_u32 s{s0+2}, s{s0+2}, s{s0+3}
    s_and_b32 s{s0+1}, s{s0+1}, 1
    s_and_b32 s{s0+3}, s{s0+2}, 15
    s_lshr_b32 s{s0+2}, s{s0+2}, 4
    v_lshrrev_b32 v{vA}, 3, v{vL}
    v_and_b32 v{vA+1}, 7, v{vL}
    v_lshlrev_b32 v{vA+1}, 2, v{vA+1}
    v_mul_u32_u24 v{vA+2}, 3840, v{vA}
    v_add_u32 v{vA+2}, v{vA+2}, v{vA+1}
    v_mul_u32_u24 v{vA+3}, 3456, v{vA}
    v_add_u32 v{vA+3}, v{vA+3}, v{vA+1}
    s_lshl_b32 s{s0+4}, s{s0+3}, 6
    s_lshl_b32 s{s0+7}, s{sWV}, 4
    s_add_u32 s{s0+4}, s{s0+4}, s{s0+7}
    s_lshl_b32 s{s0+5}, s{s0+1}, 10
    s_add_u32 s{s0+5}, s{s0+5}, s{s0+4}
    s_mul_i32 s{s0+6}, s{s0+1}, 896
    s_add_u32 s{s0+6}, s{s0+6}, s{s0+4}
    """)
    a(f"""
    s_mul_i32 s{s0+7}, s{s0+2}, {80*3840}
    s_lshl_b32 s{s0+4}, s{s0+5}, 1
    s_add_u32 s{s0+7}, s{s0+7}, s{s0+4}
    """)
    for j in range(10):
        a(f"buffer_load_dword v{vC+j}, v{vA+2}, s[{sWq}:{sWq+3}], s{s0+7} offen")
        a(f"s_add_u32 s{s0+7}, s{s0+7}, {8*3840}")
    a(f"""
    s_mul_i32 s{s0+7}, s{s0+2}, {80*3456}
    s_lshl_b32 s{s0+4}, s{s0+6}, 1
    s_add_u32 s{s0+7}, s{s0+7}, s{s0+4}
    """)
    for j in range(10):
        a(f"buffer_load_dword v{vD+j}, v{vA+3}, s[{sW1}:{sW1+3}], s{s0+7} offen")
        a(f"s_add_u32 s{s0+7}, s{s0+7}, {8*3456}")
    a("s_waitcnt vmcnt(20)")
    for rr in range(2):
        regs = [vR + 6*rr + i for i in range(4)] + [vR + 4 + rr]
        S, Q, U = vA + 4, vA + 5, vA + 6
        for n, r in enumerate(regs):
            a(f"v_lshlrev_b32 v{U}, 16, v{r}")
            a(f"v_and_b32 v{U+1}, 0xffff0000, v{r}")
            if n == 0:
                a(f"v_add_f32 v{S}, v{U}, v{U+1}")
                a(f"v_mul_f32 v{Q}, v{U}, v{U}")
            else:
                a(f"v_add_f32 v{S}, v{S}, v{U}")
                a(f"v_add_f32 v{S}, v{S}, v{U+1}")
                a(f"v_fmac_f32 v{Q}, v{U}, v{U}")
            a(f"v_fmac_f32 v{Q}, v{U+1}, v{U+1}")
        a("s_nop 1")
        wave_sum(a, S)
        wave_sum(a, Q)
        a(f"""
        v_mul_f32 v{S}, {f32bits(1.0/640):#x}, v{S}
        v_mul_f32 v{Q}, {f32bits(1.0/640):#x}, v{Q}
        v_fma_f32 v{Q}, -v{S}, v{S}, v{Q}
        v_max_f32 v{Q}, 0, v{Q}
        v_add_f32 v{Q}, {f32bits(1e-5):#x}, v{Q}
        v_rsq_f32 v{Q}, v{Q}
        s_nop 0
        v_mov_b32 v{vA+8+2*rr}, v{S}
        v_mov_b32 v{vA+9+2*rr}, v{Q}
        """)
    a(f"""
    s_lshl_b32 s{s0+4}, s{s0}, 3
    s_add_u32 s{s0+4}, s{s0+4}, {WS_ST1}
    v_mov_b32 v{vA+4}, 0
    s_mov_b32 exec_lo, 0
    s_mov_b32 exec_hi, 0x80000000
    buffer_store_dwordx4 {vr(vA+8,4)}, v{vA+4}, s[{sWS}:{sWS+3}], s{s0+4} offen {SC}
    s_mov_b64 exec, -1
    """)
    for n, (regs, cnt, col, base, ncol) in enumerate(((vC, 10, s0+5, WS_CS1, 1920), (vD, 0, s0+6, WS_CS2, 1792))):
        a(f"s_waitcnt vmcnt({cnt + 1})")
        A0, A1, U = vA + 4, vA + 5, vA + 6
        for j in range(10):
            if j == 0:
                a(f"v_lshlrev_b32 v{A0}, 16, v{regs}")
                a(f"v_and_b32 v{A1}, 0xffff0000, v{regs}")
            else:
                a(f"v_lshlrev_b32 v{U}, 16, v{regs+j}")
                a(f"v_and_b32 v{U+1}, 0xffff0000, v{regs+j}")
                a(f"v_add_f32 v{A0}, v{A0}, v{U}")
                a(f"v_add_f32 v{A1}, v{A1}, v{U+1}")
        a(f"""
        s_nop 1
        v_add_f32_dpp v{A0}, v{A0}, v{A0} row_ror:8 row_mask:0xf bank_mask:0xf
        v_add_f32_dpp v{A1}, v{A1}, v{A1} row_ror:8 row_mask:0xf bank_mask:0xf
        s_nop 1
        v_mov_b32 v{U}, v{A0}
        v_mov_b32 v{U+1}, v{A1}
        s_nop 1
        v_permlane16_swap_b32 v{A0}, v{U}
        v_permlane16_swap_b32 v{A1}, v{U+1}
        s_nop 1
        v_add_f32 v{A0}, v{A0}, v{U}
        v_add_f32 v{A1}, v{A1}, v{U+1}
        s_nop 0
        v_mov_b32 v{U}, v{A0}
        v_mov_b32 v{U+1}, v{A1}
        s_nop 1
        v_permlane32_swap_b32 v{A0}, v{U}
        v_permlane32_swap_b32 v{A1}, v{U+1}
        s_nop 1
        v_add_f32 v{vA+12}, v{A0}, v{U}
        v_add_f32 v{vA+13}, v{A1}, v{U+1}
        v_lshlrev_b32 v{U}, 3, v{vL}
        s_mul_i32 s{s0+4}, s{s0+2}, {ncol*4}
        s_lshl_b32 s{s0+7}, s{col}, 2
        s_add_u32 s{s0+4}, s{s0+4}, s{s0+7}
        s_add_u32 s{s0+4}, s{s0+4}, {base}
        """)
        lab = a.newlabel("p0skip")
        if ncol == 1920:
            a(f"s_cmp_ge_u32 s{col}, 1920")
        else:
            a(f"s_sub_u32 s{s0+7}, 14, s{s0+1}")
            a(f"s_cmp_ge_u32 s{s0+3}, s{s0+7}")
        a(f"s_cbranch_scc1 {lab}")
        a("s_mov_b64 exec, 0xff")
        a(f"buffer_store_dwordx2 {vr(vA+12,2)}, v{U}, s[{sWS}:{sWS+3}], s{s0+4} offen {SC}")
        a("s_mov_b64 exec, -1")
        a.label(lab)
        a("s_nop 1")
    sD = 8
    make_srd(a, sD, pDBG, pDBG+1, 0, 256)
    l0, l1 = a.newlabel("dbgp"), a.newlabel("dbgok")
    a(f"v_mov_b32 v{vA}, 0")
    a(f"s_mov_b32 s{sPoll}, 0")
    a.label(l0)
    a(f"""
    buffer_load_dword v{vA+1}, v{vA}, s[{sD}:{sD+3}], 0 offen sc1
    s_waitcnt vmcnt(0)
    v_readfirstlane_b32 s{s0}, v{vA+1}
    s_cmp_lg_u32 s{s0}, 0
    s_cbranch_scc1 {l1}
    s_add_u32 s{sPoll}, s{sPoll}, 1
    s_cmp_gt_u32 s{sPoll}, {POLL_MAX}
    s_cbranch_scc1 {l1}
    s_sleep 1
    s_branch {l0}
    """)
    a.label(l1)
    a(f"s_and_b32 s{s0}, s2, 7")
    arrive(a, s0, vA)

def emit_repack(a, sRi):
    sWo, sW2 = 8, 12
    make_srd(a, sWo, pWO, pWO+1, 0, 640*1280)
    make_srd(a, sW2, pW2, pW2+1, 0, 1728*1280)
    a(f"""
    s_lshl_b32 s20, s{sWV}, 6
    v_add_u32 v2, s20, v1
    """)
    vS, vDst = 4, 8
    for r in range(3):
        a(f"""
        v_add_u32 v12, {512*r}, v2
        v_mul_u32_u24 v13, 0xcccd, v12
        v_lshrrev_b32 v13, 19, v13
        v_mul_u32_u24 v14, 10, v13
        v_sub_u32 v14, v12, v14
        v_and_b32 v15, 0x73, v13
        v_and_b32 v16, 4, v13
        v_lshlrev_b32 v16, 1, v16
        v_or_b32 v15, v15, v16
        v_and_b32 v16, 8, v13
        v_lshrrev_b32 v16, 1, v16
        v_or_b32 v15, v15, v16
        v_mul_u32_u24 v15, 1280, v15
        v_lshlrev_b32 v14, 4, v14
        v_add_u32 v{vS+r}, v15, v14
        v_lshlrev_b32 v{vDst+r}, 4, v12
        """)
    a(f"""
    v_mov_b32 v12, 0x7fffff00
    v_cmp_gt_u32 vcc, 256, v2
    s_nop 1
    v_cndmask_b32 v{vS+2}, v12, v{vS+2}, vcc
    v_cndmask_b32 v{vDst+2}, v12, v{vDst+2}, vcc
    """)
    vB = 20
    items = [("wo", n) for n in range(3)] + [("w2", n) for n in range(7)]
    for k, (w, n) in enumerate(items):
        nst = 5 if w == "wo" else 14
        magic, sh = (0xcccd, 18) if w == "wo" else (0x4925, 18)
        srd = sWo if w == "wo" else sW2
        a(f"""
        s_add_u32 s20, s{sRi}, {16*n}
        s_mul_i32 s21, s20, {magic}
        s_lshr_b32 s21, s21, {sh}
        s_mul_i32 s22, s21, {nst}
        s_sub_u32 s22, s20, s22
        s_mul_i32 s22, s22, {128*1280}
        s_mul_i32 s21, s21, 160
        s_add_u32 s22, s22, s21
        s_mul_i32 s{24+k}, s20, 20480
        s_add_u32 s{24+k}, s{24+k}, {WS_WOP if w == 'wo' else WS_W2P}
        """)
        if w == "wo" and n == 2:
            a(f"""
            s_cmp_ge_u32 s20, 40
            s_cselect_b32 s{24+k}, 0x7f000000, s{24+k}
            """)
        for r in range(3):
            a(f"buffer_load_dwordx4 {vr(vB + (k*3 + r)*4, 4)}, v{vS+r}, s[{srd}:{srd+3}], s22 offen")
    for k in range(len(items)):
        a(f"s_waitcnt vmcnt({(len(items) - 1 - k) * 3 + k * 3})" if False else f"s_waitcnt vmcnt({3*(len(items)-1)})")
        for r in range(3):
            a(f"buffer_store_dwordx4 {vr(vB + (k*3 + r)*4, 4)}, v{vDst+r}, s[{sWS}:{sWS+3}], s{24+k} offen {SC}")
    a("s_waitcnt vmcnt(0)")
    a("s_barrier")
    l = a.newlabel("rp")
    a(f"s_cmp_eq_u32 s{sWV}, 0")
    a(f"s_cbranch_scc0 {l}")
    a(f"s_mov_b32 s20, {C_RP}")
    arrive(a, 20, 12)
    a.label(l)

class CoreL:
    sA, sW, sO = 8, 12, 16
    sM0, sN0, sT0, sT1, sT2, sT3 = 21, 22, 23, 24, 25, 26
    sLw, sSlot, sAoff, sWoff, sLds = 20, 28, 29, 30, 31
    sWm, sWn, sNt, sSeq, sSeqW = 32, 33, 34, 35, 36
    vAe, vAo, vWo = 4, 5, 6
    NST = 10
    def __init__(self, a, mode, tag):
        self.a, self.mode, self.tag = a, mode, tag
        self.qkv = mode == 'qkv'
        self.LDW = 3840 if self.qkv else 3456
    def map_tiles(self, idle_label):
        a, c = self.a, self
        NT_PER = 8 if c.qkv else 7
        NT_TOT = 15 if c.qkv else 14
        a(f"""
        s_and_b32 s{c.sT0}, s2, 7
        s_lshr_b32 s{c.sT1}, s2, 3
        s_lshr_b32 s{c.sT2}, s{c.sT0}, 1
        s_lshl_b32 s{c.sT2}, s{c.sT2}, 2
        s_and_b32 s{c.sT3}, s{c.sT1}, 3
        s_add_u32 s{c.sM0}, s{c.sT2}, s{c.sT3}
        s_lshl_b32 s{c.sM0}, s{c.sM0}, 7
        s_and_b32 s{c.sT0}, s{c.sT0}, 1
        s_mul_i32 s{c.sT0}, s{c.sT0}, {NT_PER}
        s_lshr_b32 s{c.sT1}, s{c.sT1}, 2
        s_add_u32 s{c.sNt}, s{c.sT0}, s{c.sT1}
        s_cmp_ge_u32 s{c.sT1}, {NT_PER}
        s_cbranch_scc1 {idle_label}
        s_cmp_ge_u32 s{c.sNt}, {NT_TOT}
        s_cbranch_scc1 {idle_label}
        s_lshl_b32 s{c.sN0}, s{c.sNt}, 7
        s_mul_i32 s{c.sSeq}, s{c.sT3}, 3
        s_add_u32 s{c.sSeq}, s{c.sSeq}, s{c.sT1}
        s_cmp_ge_u32 s{c.sSeq}, 10
        s_cselect_b32 s{c.sT0}, 10, 0
        s_sub_u32 s{c.sSeq}, s{c.sSeq}, s{c.sT0}
        """)
        if not E('ROTL'): a(f"s_mov_b32 s{c.sSeq}, 0")
    def loader_setup(self):
        a, c = self.a, self
        a(f"s_sub_u32 s{c.sLw}, s{sWV}, 4")
        if c.qkv:
            make_srd(a, c.sA, pX, pX+1, 0, 2048*1280)
            a(f"""
            v_lshrrev_b32 v2, 3, v1
            v_mul_u32_u24 v2, 1280, v2
            v_lshrrev_b32 v3, 4, v1
            v_and_b32 v7, 7, v1
            v_xor_b32 v3, v3, v7
            v_lshlrev_b32 v3, 4, v3
            v_add_u32 v{c.vAe}, v2, v3
            v_xor_b32 v{c.vAo}, 64, v{c.vAe}
            s_lshl_b32 s{c.sT0}, s{c.sLw}, 5
            s_add_u32 s{c.sT0}, s{c.sT0}, s{c.sM0}
            s_mul_i32 s{c.sAoff}, s{c.sT0}, 1280
            """)
            c.A_SSTEP = 128
        else:
            make_srd(a, c.sA, pWS, pWS+1, WS_H, SZ_ACT)
            a(f"""
            v_lshlrev_b32 v{c.vAe}, 4, v1
            v_add_u32 v{c.vAo}, 1024, v{c.vAe}
            s_lshl_b32 s{c.sT0}, s{c.sLw}, 16
            s_lshl_b32 s{c.sT1}, s{c.sM0}, 4
            s_add_u32 s{c.sAoff}, s{c.sT0}, s{c.sT1}
            """)
            c.A_SSTEP = 8 * 32768
        pw = pWQ if c.qkv else pW1
        make_srd(a, c.sW, pw, pw+1, 0, 640 * c.LDW)
        a(f"""
        v_lshrrev_b32 v2, 4, v1
        v_mul_u32_u24 v3, {c.LDW}, v2
        v_lshlrev_b32 v2, 2, v2
        v_and_b32 v7, 15, v1
        v_xor_b32 v2, v2, v7
        v_lshlrev_b32 v2, 4, v2
        v_add_u32 v{c.vWo}, v2, v3
        s_lshl_b32 s{c.sT0}, s{c.sLw}, 4
        s_mul_i32 s{c.sT0}, s{c.sT0}, {c.LDW}
        s_lshl_b32 s{c.sT1}, s{c.sN0}, 1
        s_add_u32 s{c.sWoff}, s{c.sT0}, s{c.sT1}
        s_lshl_b32 s{c.sLds}, s{c.sLw}, 12
        s_mul_i32 s{c.sT0}, s{c.sSeq}, {c.A_SSTEP}
        s_add_u32 s{c.sAoff}, s{c.sAoff}, s{c.sT0}
        s_mul_i32 s{c.sT0}, s{c.sSeq}, {64 * c.LDW}
        s_add_u32 s{c.sWoff}, s{c.sWoff}, s{c.sT0}
        s_mov_b32 s{c.sSeqW}, s{c.sSeq}
        """)
    def issue_A(self, seq):
        a, c = self.a, self
        slot = (seq % 4) * 32768
        for j in range(4):
            a(f"s_add_u32 m0, s{c.sLds}, {slot}" if j == 0 else "s_add_u32 m0, m0, 1024")
            if c.qkv:
                a(f"s_mov_b32 s{c.sT0}, s{c.sAoff}" if j == 0 else f"s_add_u32 s{c.sT0}, s{c.sT0}, {8*1280}")
            else:
                if j == 0: a(f"s_mov_b32 s{c.sT0}, s{c.sAoff}")
                elif j == 2: a(f"s_add_u32 s{c.sT0}, s{c.sT0}, 32768")
                else: a("s_nop 0")
            a(f"buffer_load_dwordx4 v{c.vAe if j % 2 == 0 else c.vAo}, s[{c.sA}:{c.sA+3}], s{c.sT0} offen lds")
        a(f"""
        s_add_u32 s{c.sSeq}, s{c.sSeq}, 1
        s_cmp_eq_u32 s{c.sSeq}, {c.NST}
        s_cselect_b32 s{c.sT0}, {c.NST * c.A_SSTEP}, 0
        s_cselect_b32 s{c.sSeq}, 0, s{c.sSeq}
        s_add_u32 s{c.sAoff}, s{c.sAoff}, {c.A_SSTEP}
        s_sub_u32 s{c.sAoff}, s{c.sAoff}, s{c.sT0}
        """)
    def issue_W(self, seq):
        a, c = self.a, self
        slot = (seq % 4) * 32768 + 16384
        for j in range(4):
            a(f"s_add_u32 m0, s{c.sLds}, {slot}" if j == 0 else "s_add_u32 m0, m0, 1024")
            a(f"s_mov_b32 s{c.sT0}, s{c.sWoff}" if j == 0 else f"s_add_u32 s{c.sT0}, s{c.sT0}, {4 * c.LDW}")
            a(f"buffer_load_dwordx4 v{c.vWo}, s[{c.sW}:{c.sW+3}], s{c.sT0} offen lds")
        a(f"""
        s_add_u32 s{c.sSeqW}, s{c.sSeqW}, 1
        s_cmp_eq_u32 s{c.sSeqW}, {c.NST}
        s_cselect_b32 s{c.sT0}, {c.NST * 64 * c.LDW}, 0
        s_cselect_b32 s{c.sSeqW}, 0, s{c.sSeqW}
        s_add_u32 s{c.sWoff}, s{c.sWoff}, {64 * c.LDW}
        s_sub_u32 s{c.sWoff}, s{c.sWoff}, s{c.sT0}
        """)
    def loader_main(self, q):
        a, c = self.a, self
        for s_ in range(c.NST):
            a(f"s_waitcnt vmcnt({q.need(f'A{s_}', f'W{s_}')})")
            a("s_barrier")
            if s_ + 3 < c.NST:
                c.issue_A(s_ + 3); q.push(f"A{s_+3}", 4)
                c.issue_W(s_ + 3); q.push(f"W{s_+3}", 4)

    vAd, vX, vW, vAcc, vT, vSt = 24, 32, 48, 64, 128, 144
    def compute_setup(self):
        a, c = self.a, self
        NXA = 8 if c.qkv else 2
        c.NXA = NXA
        c.vXa = 4
        c.vWa = c.vXa + 2 * NXA
        vXa, vWa, vT = c.vXa, c.vWa, c.vT
        t0, t1 = vT, vT + 1
        a(f"""
        s_lshr_b32 s{c.sWm}, s{sWV}, 1
        s_and_b32 s{c.sWn}, s{sWV}, 1
        v_and_b32 v2, 31, v1
        v_lshrrev_b32 v3, 5, v1
        """)
        if c.qkv:
            a(f"""
            v_lshrrev_b32 v{t0}, 1, v1
            v_and_b32 v{t0}, 7, v{t0}
            v_xor_b32 v{t0}, v{t0}, v3
            v_lshlrev_b32 v{t0}, 4, v{t0}
            v_lshlrev_b32 v{t1}, 7, v2
            v_add_u32 v{t0}, v{t0}, v{t1}
            s_lshl_b32 s{c.sT0}, s{c.sWm}, 13
            v_add_u32 v{t0}, s{c.sT0}, v{t0}
            """)
            for s in range(4):
                a(f"v_xor_b32 v{vXa + s}, {32 * s}, v{t0}")
                a(f"v_add_u32 v{vXa + 4 + s}, 4096, v{vXa + s}")
        else:
            a(f"""
            v_lshlrev_b32 v{t0}, 11, v3
            v_lshlrev_b32 v{t1}, 4, v2
            v_add_u32 v{t0}, v{t0}, v{t1}
            s_lshl_b32 s{c.sT0}, s{c.sWm}, 10
            v_add_u32 v{vXa}, s{c.sT0}, v{t0}
            v_add_u32 v{vXa + 1}, 512, v{vXa}
            """)
        for i in range(NXA):
            a(f"v_add_u32 v{vXa + NXA + i}, 65536, v{vXa + i}")
        a(f"""
        v_lshrrev_b32 v{t0}, 2, v1
        v_and_b32 v{t0}, 3, v{t0}
        v_lshlrev_b32 v{t1}, 3, v3
        v_add_u32 v{t1}, v{t1}, v{t0}
        v_lshlrev_b32 v{t1}, 8, v{t1}
        v_lshlrev_b32 v{t0}, 6, v{t0}
        v_add_u32 v{t1}, v{t1}, v{t0}
        v_lshrrev_b32 v{t0}, 4, v1
        v_and_b32 v{t0}, 1, v{t0}
        v_lshlrev_b32 v{t0}, 5, v{t0}
        v_add_u32 v{t1}, v{t1}, v{t0}
        v_lshrrev_b32 v{t0}, 1, v1
        v_and_b32 v{t0}, 1, v{t0}
        v_lshlrev_b32 v{t0}, 4, v{t0}
        v_add_u32 v{t1}, v{t1}, v{t0}
        v_and_b32 v{t0}, 1, v1
        v_lshlrev_b32 v{t0}, 3, v{t0}
        v_add_u32 v{t1}, v{t1}, v{t0}
        v_add_u32 v{t1}, 16384, v{t1}
        s_lshl_b32 s{c.sT0}, s{c.sWn}, 7
        v_xor_b32 v{vWa}, s{c.sT0}, v{t1}
        v_xor_b32 v{vWa + 1}, 64, v{vWa}
        v_add_u32 v{vWa + 2}, 65536, v{vWa}
        v_add_u32 v{vWa + 3}, 65536, v{vWa + 1}
        """)
    def addr_qk(self):
        a, c = self.a, self
        vT, vAd = c.vT, c.vAd
        t0, t1 = vT, vT + 1
        a(f"""
        s_cmp_lt_u32 s{c.sNt}, 5
        s_cselect_b32 s{c.sT0}, 0, 640
        s_sub_u32 s{c.sT2}, s{c.sN0}, s{c.sT0}
        s_lshl_b32 s{c.sT1}, s{c.sWn}, 6
        s_add_u32 s{c.sT2}, s{c.sT2}, s{c.sT1}
        s_lshr_b32 s{c.sT2}, s{c.sT2}, 3
        v_add_u32 v{t0}, s{c.sT2}, v3
        v_lshlrev_b32 v{vT+4}, 4, v2
        """)
        for ft in range(2):
            for j in range(2):
                d = vAd + ft*2 + j
                a(f"""
                v_add_u32 v{t1}, {ft*4 + 2*j}, v{t0}
                v_mul_u32_u24 v{vT+2}, 0xcccd, v{t1}
                v_lshrrev_b32 v{vT+2}, 18, v{vT+2}
                v_mul_u32_u24 v{vT+3}, 5, v{vT+2}
                v_sub_u32 v{vT+3}, v{t1}, v{vT+3}
                v_lshlrev_b32 v{vT+3}, 9, v{vT+3}
                v_mul_u32_u24 v{vT+2}, 0x28000, v{vT+2}
                v_add3_u32 v{d}, v{vT+2}, v{vT+3}, v{vT+4}
                """)
        a(f"""
        s_lshr_b32 s{c.sT0}, s{c.sM0}, 5
        s_lshl_b32 s{c.sT1}, s{c.sWm}, 1
        s_add_u32 s{c.sT0}, s{c.sT0}, s{c.sT1}
        s_mul_i32 s40, s{c.sT0}, 2560
        s_add_u32 s41, s40, 2560
        s_cmp_lt_u32 s{c.sNt}, 5
        s_cselect_b32 s{c.sT0}, {WS_Q}, {WS_K}
        s_add_u32 s{c.sO}, s{pWS}, s{c.sT0}
        s_addc_u32 s{c.sO+1}, s{pWS+1}, 0
        s_and_b32 s{c.sO+1}, s{c.sO+1}, 0xffff
        s_mov_b32 s{c.sO+2}, {SZ_QK}
        s_mov_b32 s{c.sO+3}, 0x20000
        """)
    def addr_f(self):
        a, c = self.a, self
        vT, vAd = c.vT, c.vAd
        t0, t1 = vT, vT + 1
        a(f"""
        s_lshl_b32 s{c.sT1}, s{c.sWn}, 6
        s_add_u32 s{c.sT2}, s{c.sN0}, s{c.sT1}
        s_lshr_b32 s{c.sT2}, s{c.sT2}, 3
        v_add_u32 v{t0}, s{c.sT2}, v3
        v_lshlrev_b32 v{t0}, 15, v{t0}
        v_lshlrev_b32 v{t1}, 4, v2
        v_add_u32 v{t0}, v{t0}, v{t1}
        """)
        for ft in range(2):
            for j in range(2):
                a(f"v_add_u32 v{vAd + ft*2 + j}, {(ft*4 + 2*j) * 32768}, v{t0}")
        a(f"""
        s_lshl_b32 s{c.sT1}, s{c.sWm}, 6
        s_add_u32 s{c.sT0}, s{c.sM0}, s{c.sT1}
        s_lshl_b32 s40, s{c.sT0}, 4
        s_add_u32 s41, s40, 512
        """)
        make_srd(a, c.sO, pWS, pWS+1, WS_F, SZ_F)
    def addr_v(self):
        a, c = self.a, self
        vT, vAd = c.vT, c.vAd
        t0, t1 = vT, vT + 1
        for ft in range(2):
            a(f"""
            s_lshl_b32 s{c.sT1}, s{c.sWn}, 6
            s_add_u32 s{c.sT0}, s{c.sN0}, s{c.sT1}
            s_sub_u32 s{c.sT0}, s{c.sT0}, {1280 - ft*32}
            v_add_u32 v{t0}, s{c.sT0}, v2
            v_mul_u32_u24 v{t1}, 0xcccd, v{t0}
            v_lshrrev_b32 v{t1}, 20, v{t1}
            v_mul_u32_u24 v{vT+2}, 20, v{t1}
            v_sub_u32 v{t0}, v{t0}, v{vT+2}
            v_lshlrev_b32 v{t0}, 4, v{t0}
            v_mul_u32_u24 v{t1}, 0x14000, v{t1}
            v_add_u32 v{t0}, v{t0}, v{t1}
            v_mul_u32_u24 v{t1}, 320, v3
            v_add_u32 v{vAd+ft}, v{t0}, v{t1}
            """)
        a(f"""
        s_lshl_b32 s{c.sT1}, s{c.sWm}, 6
        s_add_u32 s{c.sT0}, s{c.sM0}, s{c.sT1}
        s_lshr_b32 s{c.sT0}, s{c.sT0}, 4
        s_mul_i32 s40, s{c.sT0}, 640
        s_add_u32 s41, s40, 640
        s_add_u32 s42, s40, 1280
        s_add_u32 s43, s40, 1920
        """)
        make_srd(a, c.sO, pWS, pWS+1, WS_V, SZ_QKV)
    def stats_poll_issue(self):
        a, c = self.a, self
        vS = c.vSt
        a(f"""
        v_lshlrev_b32 v{vS+30}, 7, v1
        v_add_u32 v{vS+30}, {WS_CNT + C_P0*128}, v{vS+30}
        s_mov_b64 exec, 0xff
        buffer_load_dword v{vS+29}, v{vS+30}, s[{sWS}:{sWS+3}], 0 offen sc1
        s_mov_b64 exec, -1
        """)
    def stats_poll_check(self):
        a, c = self.a, self
        vS = c.vSt
        ok = a.newlabel("stok")
        a(f"""
        s_waitcnt vmcnt(0)
        s_mov_b64 exec, 0xff
        v_cmp_gt_u32 vcc, 128, v{vS+29}
        s_nop 4
        s_cmp_eq_u64 vcc, 0
        s_cbranch_scc1 {ok}
        v_mov_b32 v{vS+28}, 128
        """)
        poll(a, vS + 30, vS + 28, 8, vS + 29)
        a.label(ok)
        a("s_mov_b64 exec, -1")
        a("s_nop 3")
    def stats_issue(self):
        a, c = self.a, self
        vS = c.vSt
        ncol = 1920 if c.qkv else 1792
        a(f"""
        v_lshlrev_b32 v{vS+31}, 2, v2
        v_lshlrev_b32 v{vS+30}, 3, v2
        s_lshl_b32 s{c.sT0}, s{sWV}, 5
        s_add_u32 s{c.sT1}, s{c.sT0}, s{c.sN0}
        s_lshl_b32 s{c.sT1}, s{c.sT1}, 2
        s_add_u32 s{c.sT1}, s{c.sT1}, {WS_CS1 if c.qkv else WS_CS2}
        s_mov_b32 exec_hi, 0
        """)
        for j in range(8):
            a(f"buffer_load_dword v{vS+j}, v{vS+31}, s[{sWS}:{sWS+3}], s{c.sT1} offen")
            if j < 7: a(f"s_add_u32 s{c.sT1}, s{c.sT1}, {ncol*4}")
        a(f"""
        s_mov_b32 exec_lo, 0
        s_mov_b32 exec_hi, -1
        s_add_u32 s{c.sT1}, s{c.sT0}, s{c.sM0}
        s_lshl_b32 s{c.sT1}, s{c.sT1}, 3
        s_add_u32 s{c.sT1}, s{c.sT1}, {WS_ST1 if c.qkv else WS_ST2}
        """)
        npart = 1 if c.qkv else 8
        for j in range(npart):
            a(f"buffer_load_dwordx2 {vr(vS+8+2*j,2)}, v{vS+30}, s[{sWS}:{sWS+3}], s{c.sT1} offen")
            if j < npart - 1: a(f"s_add_u32 s{c.sT1}, s{c.sT1}, {2048*8}")
        a("s_mov_b64 exec, -1")
        a("s_nop 3")
    def stats_finish(self):
        a, c = self.a, self
        vS = c.vSt
        a("s_waitcnt vmcnt(0)")
        for j in range(1, 8):
            a(f"v_add_f32 v{vS}, v{vS}, v{vS+j}")
        S, Q = vS + 8, vS + 9
        if not c.qkv:
            for j in range(1, 8):
                a(f"v_add_f32 v{S}, v{S}, v{S+2*j}")
                a(f"v_add_f32 v{Q}, v{Q}, v{Q+2*j}")
            a(f"""
            v_mul_f32 v{S}, {f32bits(1.0/640):#x}, v{S}
            v_mul_f32 v{Q}, {f32bits(1.0/640):#x}, v{Q}
            v_fma_f32 v{Q}, -v{S}, v{S}, v{Q}
            v_max_f32 v{Q}, 0, v{Q}
            v_add_f32 v{Q}, {f32bits(1e-5):#x}, v{Q}
            v_rsq_f32 v{Q}, v{Q}
            """)
        a(f"""
        s_lshl_b32 s{c.sT0}, s{sWV}, 7
        s_add_u32 s{c.sT0}, s{c.sT0}, {STAT}
        v_add_u32 v{vS+31}, s{c.sT0}, v{vS+31}
        s_mov_b32 exec_hi, 0
        ds_write_b32 v{vS+31}, v{vS} offset:1024
        s_mov_b32 exec_lo, 0
        s_mov_b32 exec_hi, -1
        ds_write_b32 v{vS+31}, v{S}
        ds_write_b32 v{vS+31}, v{Q} offset:512
        s_mov_b64 exec, -1
        s_nop 3
        """)
    def reads(self, i):
        a, c = self.a, self
        st_, step, buf = i // 4, i % 4, i & 1
        slot = st_ % 4
        win, base = slot >> 1, (slot & 1) * 32768
        for lt in range(2):
            if c.qkv:
                a(f"ds_read_b128 {vr(c.vX + buf*8 + lt*4, 4)}, v{c.vXa + win*8 + lt*4 + step} offset:{base}")
            else:
                a(f"ds_read_b128 {vr(c.vX + buf*8 + lt*4, 4)}, v{c.vXa + win*2 + lt} offset:{base + step*4096}")
        for lf in range(2):
            for h2 in range(2):
                a(f"ds_read_b64_tr_b16 {vr(c.vW + buf*8 + lf*4 + h2*2, 2)}, v{c.vWa + win*2 + lf} offset:{base + step*4096 + h2*1024}")
    def mfma(self, i, k, orientY):
        a, c = self.a, self
        buf = i & 1
        lf, lt = k >> 1, k & 1
        acc = c.vAcc + (lf*2 + lt) * 16
        xa, wa = vr(c.vX + buf*8 + lt*4, 4), vr(c.vW + buf*8 + lf*4, 4)
        cc = "0" if i == 0 else vr(acc, 16)
        if orientY: a(f"v_mfma_f32_32x32x16_bf16 {vr(acc,16)}, {wa}, {xa}, {cc}")
        else: a(f"v_mfma_f32_32x32x16_bf16 {vr(acc,16)}, {xa}, {wa}, {cc}")
    def mainloop(self, orientY, stamp0=None):
        a, c = self.a, self
        if not c.qkv: c.stats_issue()
        a("s_barrier")
        if stamp0 is not None: st(a, stamp0)
        c.reads(0)
        for i in range(40):
            a("s_waitcnt lgkmcnt(0)")
            c.mfma(i, 0, orientY)
            if i + 1 < 40:
                if (i + 1) % 4 == 0: a("s_barrier")
                c.reads(i + 1)
            c.mfma(i, 1, orientY)
            if c.qkv:
                if i == 10: c.stats_poll_issue()
                if i == 16:
                    c.stats_poll_check(); c.stats_issue()
            if i == 29: c.stats_finish()
            c.mfma(i, 2, orientY)
            c.mfma(i, 3, orientY)
    def epilogue_Y(self, kind):
        a, c = self.a, self
        vT, vAcc, vAd = c.vT, c.vAcc, c.vAd
        vM, vR, vC = vT, vT + 2, 32
        for lt in range(2):
            a(f"""
            s_lshl_b32 s{c.sT1}, s{c.sWm}, 8
            s_add_u32 s{c.sT0}, s{c.sT1}, {STAT + lt*128}
            v_lshlrev_b32 v{vT+4}, 2, v2
            v_add_u32 v{vT+4}, s{c.sT0}, v{vT+4}
            ds_read_b32 v{vM + lt}, v{vT+4}
            ds_read_b32 v{vR + lt}, v{vT+4} offset:512
            """)
        a(f"""
        s_lshl_b32 s{c.sT1}, s{c.sWn}, 8
        s_add_u32 s{c.sT0}, s{c.sT1}, {STAT + 1024}
        v_lshlrev_b32 v{vT+4}, 4, v3
        v_add_u32 v{vT+4}, s{c.sT0}, v{vT+4}
        """)
        for lf in range(2):
            for q in range(4):
                a(f"ds_read_b128 {vr(vC + lf*16 + q*4, 4)}, v{vT+4} offset:{lf*128 + q*32}")
        a("s_waitcnt lgkmcnt(0)")
        if kind == 'qk':
            a(f"""
            s_cmp_lt_u32 s{c.sNt}, 5
            s_cselect_b32 s{c.sT0}, {f32bits(QSCALE):#x}, 1.0
            v_mul_f32 v{vR}, s{c.sT0}, v{vR}
            v_mul_f32 v{vR+1}, s{c.sT0}, v{vR+1}
            """)
        vP = vT + 8
        n = 0
        for lf in range(2):
            for lt in range(2):
                acc = vAcc + (lf*2 + lt) * 16
                for r in range(16):
                    a(f"v_fma_f32 v{acc + r}, -v{vM + lt}, v{vC + lf*16 + r}, v{acc + r}")
                for r in range(16):
                    a(f"v_mul_f32 v{acc + r}, v{acc + r}, v{vR + lt}")
                if kind == 'ffn1':
                    for r in range(16):
                        a(f"v_max_f32 v{acc + r}, 0, v{acc + r}")
                for j in range(2):
                    p = vP + (n & 1) * 4
                    n += 1
                    q0 = acc + j*8
                    a(f"v_cvt_pk_bf16_f32 v{p}, v{q0}, v{q0+1}")
                    a(f"v_cvt_pk_bf16_f32 v{p+1}, v{q0+2}, v{q0+3}")
                    a(f"v_cvt_pk_bf16_f32 v{p+2}, v{q0+4}, v{q0+5}")
                    a(f"v_cvt_pk_bf16_f32 v{p+3}, v{q0+6}, v{q0+7}")
                    a("s_nop 1")
                    a(f"v_permlane32_swap_b32 v{p}, v{p+2}")
                    a(f"v_permlane32_swap_b32 v{p+1}, v{p+3}")
                    a(f"buffer_store_dwordx4 {vr(p,4)}, v{vAd + lf*2 + j}, s[{c.sO}:{c.sO+3}], s{40 + lt} offen {SC}")
    def epilogue_X(self):
        a, c = self.a, self
        vT, vAcc, vAd = c.vT, c.vAcc, c.vAd
        vC, vM, vR = vT, 32, 48
        for lf in range(2):
            a(f"""
            s_lshl_b32 s{c.sT1}, s{c.sWn}, 8
            s_add_u32 s{c.sT0}, s{c.sT1}, {STAT + 1024 + lf*128}
            v_lshlrev_b32 v{vT+4}, 2, v2
            v_add_u32 v{vT+4}, s{c.sT0}, v{vT+4}
            ds_read_b32 v{vC + lf}, v{vT+4}
            """)
        vP = vT + 8
        n = 0
        for lt in range(2):
            a(f"""
            s_lshl_b32 s{c.sT1}, s{c.sWm}, 8
            s_add_u32 s{c.sT0}, s{c.sT1}, {STAT + lt*128}
            v_lshlrev_b32 v{vT+4}, 4, v3
            v_add_u32 v{vT+4}, s{c.sT0}, v{vT+4}
            """)
            for q in range(4):
                a(f"ds_read_b128 {vr(vM + q*4, 4)}, v{vT+4} offset:{q*32}")
                a(f"ds_read_b128 {vr(vR + q*4, 4)}, v{vT+4} offset:{512 + q*32}")
            a("s_waitcnt lgkmcnt(0)")
            for lf in range(2):
                acc = vAcc + (lf*2 + lt) * 16
                for r in range(16):
                    a(f"v_fma_f32 v{acc + r}, -v{vM + r}, v{vC + lf}, v{acc + r}")
                for r in range(16):
                    a(f"v_mul_f32 v{acc + r}, v{acc + r}, v{vR + r}")
                for g in range(2):
                    p = vP + (n & 1) * 4
                    n += 1
                    for r in range(4):
                        a(f"v_cvt_pk_bf16_f32 v{p + r}, v{acc + g*8 + 2*r}, v{acc + g*8 + 2*r + 1}")
                    a(f"buffer_store_dwordx4 {vr(p,4)}, v{vAd + lf}, s[{c.sO}:{c.sO+3}], s{40 + lt*2 + g} offen {SC}")

STG = 36864
class CoreS:
    sA, sO, sR = 8, 16, 40
    sM0, sN0, sT0, sT1, sT2, sNt = 21, 22, 23, 24, 25, 26
    sLw, sAoff, sWoff, sLdsA, sLdsW, sSeq, sSeqW = 20, 29, 30, 31, 32, 33, 34
    vA = 4
    def __init__(self, a, mode):
        self.a, self.mode = a, mode
        self.op = mode == 'oproj'
        self.NST = 5 if self.op else 14
    def map_tiles(self):
        a, c = self.a, self
        NST = c.NST
        a(f"""
        s_and_b32 s{c.sT0}, s2, 7
        s_lshr_b32 s{c.sT1}, s2, 3
        s_lshr_b32 s{c.sT2}, s{c.sT0}, 1
        s_lshl_b32 s{c.sT2}, s{c.sT2}, 3
        s_and_b32 s{c.sM0}, s{c.sT1}, 7
        s_mov_b32 s{c.sSeq}, s{c.sM0}
        s_add_u32 s{c.sM0}, s{c.sM0}, s{c.sT2}
        s_lshl_b32 s{c.sM0}, s{c.sM0}, 6
        s_and_b32 s{c.sT0}, s{c.sT0}, 1
        s_lshl_b32 s{c.sT0}, s{c.sT0}, 2
        s_lshr_b32 s{c.sT1}, s{c.sT1}, 3
        s_add_u32 s{c.sNt}, s{c.sT0}, s{c.sT1}
        s_mul_i32 s{c.sN0}, s{c.sNt}, 80
        s_mul_i32 s{c.sSeq}, s{c.sSeq}, {1 if c.op else 2}
        s_mul_i32 s{c.sT1}, s{c.sT1}, {3 if c.op else 7}
        s_lshr_b32 s{c.sT1}, s{c.sT1}, 1
        s_add_u32 s{c.sSeq}, s{c.sSeq}, s{c.sT1}
        s_cmp_ge_u32 s{c.sSeq}, {NST}
        s_cselect_b32 s{c.sT1}, {NST}, 0
        s_sub_u32 s{c.sSeq}, s{c.sSeq}, s{c.sT1}
        s_cmp_ge_u32 s{c.sSeq}, {NST}
        s_cselect_b32 s{c.sT1}, {NST}, 0
        s_sub_u32 s{c.sSeq}, s{c.sSeq}, s{c.sT1}
        """)
        if not E('ROTS'): a(f"s_mov_b32 s{c.sSeq}, 0")
    def loader_setup(self):
        a, c = self.a, self
        if c.op: make_srd(a, c.sA, pWS, pWS+1, WS_O, SZ_ACT)
        else: make_srd(a, c.sA, pWS, pWS+1, WS_F, SZ_F)
        a(f"""
        s_sub_u32 s{c.sLw}, s{sWV}, 4
        v_lshlrev_b32 v{c.vA}, 4, v1
        s_lshl_b32 s{c.sT0}, s{c.sLw}, 17
        s_lshl_b32 s{c.sT1}, s{c.sM0}, 4
        s_add_u32 s{c.sAoff}, s{c.sT0}, s{c.sT1}
        s_mul_i32 s{c.sT0}, s{c.sLw}, 5120
        s_mul_i32 s{c.sT1}, s{c.sNt}, {c.NST * 20480}
        s_add_u32 s{c.sWoff}, s{c.sT0}, s{c.sT1}
        s_add_u32 s{c.sWoff}, s{c.sWoff}, {WS_WOP if c.op else WS_W2P}
        s_lshl_b32 s{c.sLdsA}, s{c.sLw}, 12
        s_add_u32 s{c.sLdsW}, s{c.sT0}, 16384
        s_mul_i32 s{c.sT0}, s{c.sSeq}, {16 * 32768}
        s_add_u32 s{c.sAoff}, s{c.sAoff}, s{c.sT0}
        s_mul_i32 s{c.sT0}, s{c.sSeq}, 20480
        s_add_u32 s{c.sWoff}, s{c.sWoff}, s{c.sT0}
        s_mov_b32 s{c.sSeqW}, s{c.sSeq}
        """)
    def issue_A(self, seq):
        a, c = self.a, self
        slot = (seq % 4) * STG
        for j in range(4):
            a(f"s_add_u32 m0, s{c.sLdsA}, {slot}" if j == 0 else "s_add_u32 m0, m0, 1024")
            a(f"s_mov_b32 s{c.sT0}, s{c.sAoff}" if j == 0 else f"s_add_u32 s{c.sT0}, s{c.sT0}, 32768")
            a(f"buffer_load_dwordx4 v{c.vA}, s[{c.sA}:{c.sA+3}], s{c.sT0} offen lds")
        a(f"""
        s_add_u32 s{c.sSeq}, s{c.sSeq}, 1
        s_cmp_eq_u32 s{c.sSeq}, {c.NST}
        s_cselect_b32 s{c.sT0}, {c.NST * 16 * 32768}, 0
        s_cselect_b32 s{c.sSeq}, 0, s{c.sSeq}
        s_add_u32 s{c.sAoff}, s{c.sAoff}, {16 * 32768}
        s_sub_u32 s{c.sAoff}, s{c.sAoff}, s{c.sT0}
        """)
    def issue_W(self, seq):
        a, c = self.a, self
        slot = (seq % 4) * STG
        a(f"s_add_u32 m0, s{c.sLdsW}, {slot}")
        a(f"s_add_u32 s{c.sT0}, s{c.sWoff}, 4096")
        for j in range(4):
            a(f"buffer_load_dwordx4 v{c.vA}, s[{sWS}:{sWS+3}], s{c.sWoff} offen offset:{j*1024} lds")
        a("s_add_u32 m0, m0, 4096")
        a(f"s_add_u32 s{c.sSeqW}, s{c.sSeqW}, 1")
        a(f"buffer_load_dwordx4 v{c.vA}, s[{sWS}:{sWS+3}], s{c.sT0} offen lds")
        a(f"""
        s_cmp_eq_u32 s{c.sSeqW}, {c.NST}
        s_cselect_b32 s{c.sT0}, {c.NST * 20480}, 0
        s_cselect_b32 s{c.sSeqW}, 0, s{c.sSeqW}
        s_add_u32 s{c.sWoff}, s{c.sWoff}, 20480
        s_sub_u32 s{c.sWoff}, s{c.sWoff}, s{c.sT0}
        """)
    def loader_main(self, q):
        a, c = self.a, self
        for s_ in range(c.NST):
            a(f"s_waitcnt vmcnt({q.need(f'A{s_}', f'W{s_}')})")
            a("s_barrier")
            if s_ + 3 < c.NST:
                c.issue_A(s_ + 3); q.push(f"A{s_+3}", 4)
                c.issue_W(s_ + 3); q.push(f"W{s_+3}", 5)
    vXb, vWb, vXa, vWa, vX, vW, vRes, vT = 4, 5, 6, 7, 8, 40, 80, 90
    def compute_setup(self):
        a, c = self.a, self
        vT = c.vT
        a(f"""
        v_and_b32 v2, 15, v1
        v_lshrrev_b32 v3, 4, v1
        s_lshl_b32 s{c.sT0}, s{sWV}, 4
        s_add_u32 s{c.sT0}, s{c.sT0}, s{c.sM0}
        v_add_u32 v{vT}, s{c.sT0}, v2
        v_mul_u32_u24 v{vT+1}, 1280, v{vT}
        v_lshlrev_b32 v{vT+3}, 3, v3
        v_add_u32 v{vT+1}, v{vT+1}, v{vT+3}
        s_lshl_b32 s{c.sT0}, s{c.sN0}, 1
        v_add_u32 v{vT+1}, s{c.sT0}, v{vT+1}
        v_lshrrev_b32 v{vT+3}, 1, v3
        v_lshlrev_b32 v{vT+3}, 15, v{vT+3}
        v_lshlrev_b32 v{vT+2}, 4, v{vT}
        v_add_u32 v{vT+2}, v{vT+2}, v{vT+3}
        v_and_b32 v{vT+3}, 1, v3
        v_lshlrev_b32 v{vT+3}, 3, v{vT+3}
        v_add_u32 v{vT+2}, v{vT+2}, v{vT+3}
        s_lshl_b32 s{c.sT0}, s{c.sN0}, 12
        v_add_u32 v{vT+2}, s{c.sT0}, v{vT+2}
        s_lshl_b32 s{c.sT0}, s{sWV}, 12
        v_lshlrev_b32 v{c.vXb}, 10, v3
        v_lshlrev_b32 v{vT+3}, 4, v2
        v_add_u32 v{c.vXb}, v{c.vXb}, v{vT+3}
        v_add_u32 v{c.vXb}, s{c.sT0}, v{c.vXb}
        v_lshrrev_b32 v{vT+3}, 1, v3
        v_lshlrev_b32 v{vT+3}, 4, v{vT+3}
        v_and_b32 v{vT+4}, 1, v3
        v_lshlrev_b32 v{vT+4}, 2, v{vT+4}
        v_add_u32 v{vT+3}, v{vT+3}, v{vT+4}
        v_lshrrev_b32 v{vT+4}, 2, v2
        v_add_u32 v{vT+3}, v{vT+3}, v{vT+4}
        v_mul_u32_u24 v{vT+3}, 160, v{vT+3}
        v_and_b32 v{vT+4}, 3, v1
        v_lshlrev_b32 v{vT+4}, 3, v{vT+4}
        v_add_u32 v{vT+3}, v{vT+3}, v{vT+4}
        s_mul_i32 s{c.sT0}, s{sWV}, 5120
        s_add_u32 s{c.sT0}, s{c.sT0}, 16384
        v_add_u32 v{c.vWb}, s{c.sT0}, v{vT+3}
        """)
        if c.op:
            make_srd(a, c.sR, pX, pX+1, 0, 2048 * 1280)
            make_srd(a, c.sO, pWS, pWS+1, WS_H, SZ_ACT)
        else:
            make_srd(a, c.sR, pWS, pWS+1, WS_H, SZ_ACT)
            make_srd(a, c.sO, pOUT, pOUT+1, 0, 2048 * 1280)
    def residual_loads(self):
        a, c = self.a, self
        vT = c.vT
        for T in range(5):
            if c.op:
                a(f"buffer_load_dwordx2 {vr(c.vRes + 2*T, 2)}, v{vT+1}, s[{c.sR}:{c.sR+3}], 0 offen offset:{32*T}")
            else:
                a(f"s_mov_b32 s{c.sT0}, {T * 65536}")
                a(f"buffer_load_dwordx2 {vr(c.vRes + 2*T, 2)}, v{vT+2}, s[{c.sR}:{c.sR+3}], s{c.sT0} offen")
    def mainloop(self, stamp0=None):
        a, c = self.a, self
        def reads(buf):
            for tt in range(4):
                a(f"ds_read_b128 {vr(c.vX + buf*16 + tt*4, 4)}, v{c.vXa} offset:{tt*256}")
            for T in range(5):
                for h2 in range(2):
                    a(f"ds_read_b64_tr_b16 {vr(c.vW + buf*20 + T*4 + h2*2, 2)}, v{c.vWa} offset:{h2*1280 + T*32}")
        def group(buf, first):
            for T in range(5):
                for tt in range(4):
                    acc = (T*4 + tt) * 4
                    cc = "0" if first else ar(acc, 4)
                    a(f"v_mfma_f32_16x16x32_bf16 {ar(acc,4)}, {vr(c.vW + buf*20 + T*4, 4)}, {vr(c.vX + buf*16 + tt*4, 4)}, {cc}")
        for s_ in range(c.NST):
            slot = (s_ % 4) * STG
            a("s_barrier")
            if s_ == 0 and stamp0 is not None: st(a, stamp0)
            a(f"v_add_u32 v{c.vXa}, {slot}, v{c.vXb}")
            a(f"v_add_u32 v{c.vWa}, {slot}, v{c.vWb}")
            reads(s_ & 1)
            if s_ > 0: group((s_ - 1) & 1, s_ == 1)
            a("s_waitcnt lgkmcnt(0)")
        group((c.NST - 1) & 1, False)
    def reduce(self):
        a, c = self.a, self
        vT = c.vT
        a(f"""
        s_barrier
        s_mul_i32 s{c.sT0}, s{sWV}, 20480
        v_lshlrev_b32 v{vT+3}, 4, v1
        v_add_u32 v{vT+4}, s{c.sT0}, v{vT+3}
        s_nop 4
        """)
        for t in range(20):
            a(f"ds_write_b128 v{vT+4}, {ar(t*4,4)} offset:{t*1024}")
        a(f"""
        s_waitcnt lgkmcnt(0)
        s_barrier
        s_lshl_b32 s{c.sT0}, s{sWV}, 10
        v_add_u32 v{vT+4}, s{c.sT0}, v{vT+3}
        v_add_u32 v{vT+5}, 40960, v{vT+4}
        """)
        for sw in range(4):
            for T in range(5):
                base = vT + 4 if sw < 2 else vT + 5
                dst = 96 + (sw*5 + T) * 4
                a(f"ds_read_b128 {vr(dst,4)}, v{base} offset:{(sw%2)*20480 + T*4096}")
        a("s_waitcnt lgkmcnt(0)")
    def epilogue(self):
        a, c = self.a, self
        vT, vRes = c.vT, c.vRes
        a("s_waitcnt vmcnt(0)")
        for T in range(5):
            for r in range(4):
                d = 96 + T*4 + r
                a(f"v_add_f32 v{d}, v{d}, v{d+20}")
                a(f"v_add_f32 v{d+40}, v{d+40}, v{d+60}")
            for r in range(4):
                d = 96 + T*4 + r
                a(f"v_add_f32 v{d}, v{d}, v{d+40}")
            rr = vRes + 2*T
            a(f"""
            v_lshlrev_b32 v8, 16, v{rr}
            v_and_b32 v9, 0xffff0000, v{rr}
            v_lshlrev_b32 v10, 16, v{rr+1}
            v_and_b32 v11, 0xffff0000, v{rr+1}
            """)
            for r in range(4):
                d = 96 + T*4 + r
                a(f"v_add_f32 v{d}, v{d}, v{8+r}")
            d = 96 + T*4
            a(f"v_cvt_pk_bf16_f32 v{12 + 2*T}, v{d}, v{d+1}")
            a(f"v_cvt_pk_bf16_f32 v{13 + 2*T}, v{d+2}, v{d+3}")
            if c.op:
                a(f"s_mov_b32 s{c.sT0}, {T * 65536}")
                a(f"buffer_store_dwordx2 {vr(12 + 2*T, 2)}, v{vT+2}, s[{c.sO}:{c.sO+3}], s{c.sT0} offen {SC}")
            else:
                a(f"buffer_store_dwordx2 {vr(12 + 2*T, 2)}, v{vT+1}, s[{c.sO}:{c.sO+3}], 0 offen offset:{32*T}")
        if c.op:
            for T in range(5):
                for d in range(2):
                    r = 12 + 2*T + d
                    a(f"v_lshlrev_b32 v8, 16, v{r}")
                    a(f"v_and_b32 v9, 0xffff0000, v{r}")
                    if T == 0 and d == 0:
                        a("v_add_f32 v30, v8, v9")
                        a("v_mul_f32 v31, v8, v8")
                    else:
                        a("v_add_f32 v30, v30, v8")
                        a("v_add_f32 v30, v30, v9")
                        a("v_fmac_f32 v31, v8, v8")
                    a("v_fmac_f32 v31, v9, v9")
            a(f"""
            v_mov_b32 v32, v30
            v_mov_b32 v33, v31
            s_nop 1
            v_permlane32_swap_b32 v30, v32
            v_permlane32_swap_b32 v31, v33
            s_nop 1
            v_add_f32 v30, v30, v32
            v_add_f32 v31, v31, v33
            s_nop 0
            v_mov_b32 v32, v30
            v_mov_b32 v33, v31
            s_nop 1
            v_permlane16_swap_b32 v30, v32
            v_permlane16_swap_b32 v31, v33
            s_nop 1
            v_add_f32 v30, v30, v32
            v_add_f32 v31, v31, v33
            s_lshl_b32 s{c.sT0}, s{c.sNt}, 14
            s_add_u32 s{c.sT0}, s{c.sT0}, {WS_ST2}
            v_lshlrev_b32 v32, 3, v{vT}
            s_mov_b64 exec, 0xffff
            buffer_store_dwordx2 v[30:31], v32, s[{sWS}:{sWS+3}], s{c.sT0} offen {SC}
            s_mov_b64 exec, -1
            """)

KT = 1536
SLOT = 8 * KT + 16384
VOFF = 8 * KT
NSLOT = 5
FLAG = NSLOT * SLOT

def emit_attention(a, after_stores):
    name = "att"
    sK, sV, sQ, sO = 8, 12, 16, 20
    sHead, sQt, sT0, sT1, sT2 = 25, 26, 27, 28, 29
    sChunk, sSlotN, sPass, sKoff, sVoff, sKh = 30, 31, 32, 33, 34, 35
    sVmask = 38
    sSlotW, sE, sQg, sQb = 40, 41, 42, 43
    vL16, vVoff = 2, 3
    vKc, vKrc, vVc, vKn, vKrn, vVn = 4, 5, 6, 7, 8, 9
    vQ, vQr, vNC, vS, vP, vKb, vKr, vV, vO, vT = 10, 18, 22, 54, 86, 94, 102, 110, 126, 158
    lane_id(a, 0)
    a(f"""
    s_and_b32 s{sT0}, s2, 7
    s_lshr_b32 s{sT1}, s2, 3
    s_and_b32 s{sT2}, s{sT1}, 3
    s_lshl_b32 s{sHead}, s{sT0}, 2
    s_add_u32 s{sHead}, s{sHead}, s{sT2}
    s_lshr_b32 s{sQb}, s{sT1}, 2
    s_lshl_b32 s{sQt}, s{sQb}, 3
    s_mov_b32 s{sVmask}, 0x000fffff
    s_mov_b32 s{sVmask+1}, 0x000fffff
    s_mov_b32 s{sPass}, 0
    s_and_b32 s{sE}, s{sHead}, 1
    s_lshr_b32 s{sKh}, s{sWV}, 2
    s_and_b32 s{sQg}, s{sWV}, 3
    v_lshlrev_b32 v{vL16}, 4, v0
    v_and_b32 v{vT}, 31, v0
    v_lshrrev_b32 v{vT+1}, 5, v0
    v_mul_u32_u24 v{vVoff}, 320, v{vT+1}
    v_lshlrev_b32 v{vT+2}, 4, v{vT}
    v_add_u32 v{vVoff}, v{vVoff}, v{vT+2}
    """)
    make_srd(a, sK, pWS, pWS+1, WS_K, SZ_QK)
    make_srd(a, sV, pWS, pWS+1, WS_V, SZ_QKV)
    make_srd(a, sQ, pWS, pWS+1, WS_Q, SZ_QK)
    make_srd(a, sO, pWS, pWS+1, WS_O, SZ_ACT)
    a(f"""
    v_mov_b32 v{vT+4}, 0
    v_mov_b32 v{vT+3}, 0x3f803f80
    v_cmp_eq_u32 vcc, 20, v{vT}
    s_lshl_b32 s{sT0}, s{sWV}, 11
    s_add_u32 s{sT0}, s{sT0}, {VOFF}
    v_cndmask_b32 v{vT+4}, v{vT+4}, v{vT+3}, vcc
    v_add_u32 v{vT+3}, s{sT0}, v{vL16}
    v_mov_b32 v{vT+5}, v{vT+4}
    v_mov_b32 v{vT+6}, v{vT+4}
    v_mov_b32 v{vT+7}, v{vT+4}
    s_not_b64 exec, s[{sVmask}:{sVmask+1}]
    """)
    base = 0
    for sl in range(NSLOT):
        for j in range(2):
            off = sl * SLOT + j * 1024
            if off - base >= 65536 - 1024:
                a(f"v_add_u32 v{vT+3}, {sl*SLOT - base}, v{vT+3}")
                base = sl * SLOT
            a(f"ds_write_b128 v{vT+3}, {vr(vT+4,4)} offset:{off - base}")
    a(f"""
    s_mov_b64 exec, -1
    v_mov_b32 v{vT+3}, {FLAG}
    v_mov_b32 v{vT+4}, 0
    ds_write_b32 v{vT+3}, v{vT+4}
    """)
    lw = a.newlabel("attw")
    a(f"""
    s_cmp_eq_u32 s{sWV}, 0
    s_cbranch_scc0 {lw}
    s_mul_i32 s{sT0}, s{sHead}, 20
    s_lshr_b32 s{sT1}, s{sT0}, 7
    s_add_u32 s{sT0}, s{sT0}, 19
    s_lshr_b32 s{sT0}, s{sT0}, 7
    v_and_b32 v{vT+3}, 1, v0
    v_mov_b32 v{vT+4}, s{sT1}
    v_mov_b32 v{vT+5}, s{sT0}
    v_cmp_eq_u32 vcc, 1, v{vT+3}
    v_lshrrev_b32 v{vT+6}, 1, v0
    v_mul_u32_u24 v{vT+6}, 5, v{vT+6}
    v_cndmask_b32 v{vT+4}, v{vT+4}, v{vT+5}, vcc
    v_add_u32 v{vT+4}, v{vT+4}, v{vT+6}
    v_add_u32 v{vT+4}, {C_QKV}, v{vT+4}
    v_mov_b32 v{vT+5}, {C_RP}
    v_cmp_eq_u32 vcc, 6, v0
    s_nop 1
    v_cndmask_b32 v{vT+4}, v{vT+4}, v{vT+5}, vcc
    v_lshlrev_b32 v{vT+4}, 7, v{vT+4}
    v_add_u32 v{vT+4}, {WS_CNT}, v{vT+4}
    v_mov_b32 v{vT+5}, 16
    """)
    poll(a, vT + 4, vT + 5, 7, vT + 6)
    a.label(lw)
    a("s_barrier")
    st(a, 5)
    def dma_k():
        a(f"""
        s_mul_i32 s{sT0}, s{sWV}, {KT}
        s_add_u32 m0, s{sSlotW}, s{sT0}
        s_nop 0
        buffer_load_dwordx4 v{vL16}, s[{sK}:{sK+3}], s{sKoff} offen lds
        s_mov_b32 exec_hi, 0
        buffer_load_dwordx4 v{vL16}, s[{sK}:{sK+3}], s{sKoff} offen offset:1024 lds
        s_mov_b32 exec_hi, -1
        s_add_u32 s{sKoff}, s{sKoff}, {8*2560}
        """)
    def dma_v():
        a(f"""
        s_lshl_b32 s{sT1}, s{sWV}, 11
        s_add_u32 s{sT1}, s{sT1}, s{sSlotW}
        s_add_u32 m0, s{sT1}, {VOFF}
        s_mov_b64 exec, s[{sVmask}:{sVmask+1}]
        buffer_load_dwordx4 v{vVoff}, s[{sV}:{sV+3}], s{sVoff} offen lds
        s_add_u32 m0, m0, 1024
        s_add_u32 s{sT1}, s{sVoff}, 640
        buffer_load_dwordx4 v{vVoff}, s[{sV}:{sV+3}], s{sT1} offen lds
        s_mov_b64 exec, -1
        s_add_u32 s{sVoff}, s{sVoff}, 10240
        s_add_u32 s{sSlotW}, s{sSlotW}, {SLOT}
        s_cmp_ge_u32 s{sSlotW}, {NSLOT*SLOT}
        s_cselect_b32 s{sSlotW}, 0, s{sSlotW}
        """)
    def dma_init():
        a(f"""
        s_lshr_b32 s{sT0}, s{sHead}, 1
        s_mul_i32 s{sT0}, s{sT0}, 163840
        s_mul_i32 s{sT1}, s{sWV}, 2560
        s_add_u32 s{sKoff}, s{sT0}, s{sT1}
        s_lshl_b32 s{sT1}, s{sE}, 10
        s_add_u32 s{sKoff}, s{sKoff}, s{sT1}
        s_mul_i32 s{sT0}, s{sHead}, 81920
        s_mul_i32 s{sT1}, s{sWV}, 1280
        s_add_u32 s{sVoff}, s{sT0}, s{sT1}
        s_mov_b32 s{sSlotW}, 0
        """)
        dma_k(); dma_v()
    dma_init()
    a(f"""
    s_lshl_b32 s{sT0}, s{sQg}, 1
    s_add_u32 s{sQt}, s{sQt}, s{sT0}
    s_lshr_b32 s{sT0}, s{sHead}, 1
    s_mul_i32 s{sT0}, s{sT0}, 163840
    v_lshlrev_b32 v{vT+2}, 4, v{vT}
    s_lshl_b32 s{sT1}, s{sE}, 3
    s_add_u32 s{sT1}, s{sT1}, 1024
    v_add_u32 v{vT+2}, s{sT1}, v{vT+2}
    v_mov_b32 v{vT+3}, 0x7fffff00
    v_cmp_gt_u32 vcc, 32, v0
    s_mul_i32 s{sT1}, s{sE}, 1536
    v_cndmask_b32 v{vT+2}, v{vT+3}, v{vT+2}, vcc
    v_add_u32 v{vT+3}, s{sT1}, v{vL16}
    """)
    for s in range(2):
        a(f"""
        s_xor_b32 s{sT1}, s{sKh}, {s}
        s_add_u32 s{sT1}, s{sT1}, s{sQt}
        s_mul_i32 s{sT1}, s{sT1}, 2560
        s_add_u32 s{sT1}, s{sT1}, s{sT0}
        buffer_load_dwordx4 {vr(vQ+4*s,4)}, v{vT+3}, s[{sQ}:{sQ+3}], s{sT1} offen
        buffer_load_dwordx2 {vr(vQr+2*s,2)}, v{vT+2}, s[{sQ}:{sQ+3}], s{sT1} offen
        """)
    dma_k(); dma_v(); dma_k(); dma_v(); dma_k(); dma_v()
    a(f"s_branch L_{name}_start")
    a.label(f"L_{name}_restart")
    dma_init()
    dma_k(); dma_v(); dma_k(); dma_v(); dma_k(); dma_v()
    a.label(f"L_{name}_start")
    a(f"""
    s_waitcnt vmcnt(8) lgkmcnt(0)
    s_barrier
    s_lshl_b32 s{sT0}, s{sE}, 9
    s_mul_i32 s{sT1}, s{sKh}, {4*KT}
    s_add_u32 s{sT0}, s{sT0}, s{sT1}
    v_add_u32 v{vKc}, s{sT0}, v{vL16}
    s_sub_u32 s{sT0}, 1, s{sE}
    s_lshl_b32 s{sT0}, s{sT0}, 10
    s_lshl_b32 s{sT2}, s{sE}, 3
    s_add_u32 s{sT0}, s{sT0}, s{sT2}
    s_add_u32 s{sT0}, s{sT0}, s{sT1}
    v_and_b32 v{vT}, 31, v0
    v_lshlrev_b32 v{vKrc}, 4, v{vT}
    v_add_u32 v{vKrc}, s{sT0}, v{vKrc}
    s_lshl_b32 s{sT0}, s{sKh}, 13
    s_add_u32 s{sT0}, s{sT0}, {VOFF}
    v_add_u32 v{vVc}, s{sT0}, v{vL16}
    v_add_u32 v{vKn}, {SLOT}, v{vKc}
    v_add_u32 v{vKrn}, {SLOT}, v{vKrc}
    v_add_u32 v{vVn}, {SLOT}, v{vVc}
    s_mov_b32 s{sSlotN}, {SLOT}
    """)
    for i in range(32):
        a(f"v_mov_b32 v{vO+i}, 0")
    for i in range(4):
        a(f"v_mov_b32 v{vP+4+i}, 0")
        a(f"v_mov_b32 v{vV+12+i}, 0")
    a(f"""
    s_cmp_eq_u32 s{sPass}, 0
    s_cbranch_scc0 L_{name}_haveC
    s_mul_i32 s{sT1}, s{sKh}, {4*KT}
    v_subrev_u32 v{vT+1}, s{sT1}, v{vKc}
    v_subrev_u32 v{vT+2}, s{sT1}, v{vKrc}
    ds_read_b128 {vr(vKb,4)}, v{vT+1}
    ds_read_b64 {vr(vKr,2)}, v{vT+2}
    s_waitcnt lgkmcnt(0)
    """)
    for s in range(2):
        S = vS + 16*s
        a(f"v_mfma_f32_32x32x16_bf16 {vr(S,16)}, {vr(vKb,4)}, {vr(vQ+4*s,4)}, 0")
        a(f"v_mfma_f32_32x32x8_bf16 {vr(S,16)}, {vr(vKr,2)}, {vr(vQr+2*s,2)}, {vr(S,16)}")
    a("s_nop 15")
    for s in range(2):
        S = vS + 16*s
        a(f"v_max3_f32 v{vT}, v{S}, v{S+1}, v{S+2}")
        for i in range(3, 15, 2):
            a(f"v_max3_f32 v{vT}, v{vT}, v{S+i}, v{S+i+1}")
        a(f"""
        v_max_f32 v{vT}, v{vT}, v{S+15}
        v_mov_b32 v{vT+1}, v{vT}
        s_nop 1
        v_permlane32_swap_b32 v{vT}, v{vT+1}
        s_nop 1
        v_max_f32 v{vT}, v{vT}, v{vT+1}
        v_sub_f32 v{vNC+16*s}, 0, v{vT}
        """)
        for i in range(1, 16):
            a(f"v_mov_b32 v{vNC+16*s+i}, v{vNC+16*s}")
    a.label(f"L_{name}_haveC")
    a(f"""
    ds_read_b128 {vr(vKb,4)}, v{vKc}
    ds_read2st64_b64 {vr(vKr,4)}, v{vKrc} offset0:0 offset1:3
    ds_read_b128 {vr(vV,4)}, v{vVc}
    ds_read_b128 {vr(vV+4,4)}, v{vVc} offset:1024
    s_waitcnt lgkmcnt(0)
    v_mfma_f32_32x32x16_bf16 {vr(vS,16)}, {vr(vKb,4)}, {vr(vQ,4)}, {vr(vNC,16)}
    v_mfma_f32_32x32x8_bf16 {vr(vS,16)}, {vr(vKr,2)}, {vr(vQr,2)}, {vr(vS,16)}
    s_mov_b32 s{sChunk}, 0
    s_nop 7
    """)
    st(a, 6)
    a(".p2align 6")
    a.label(f"L_{name}_loop")
    def cond(mask, fn, tag):
        l = a.newlabel(tag)
        a(f"s_bitcmp1_b32 {mask:#x}, s{sChunk}")
        a(f"s_cbranch_scc0 {l}")
        fn()
        a.label(l)
    for u in range(8):
        p = u & 1
        t = u >> 1
        if u == 6:
            cond(0b00101010, lambda: (a("s_waitcnt vmcnt(0)"), a("s_barrier")), "bar")
            cond(0b00001010, dma_k, "dk")
        if u == 7: cond(0b00001010, dma_v, "dv")
        if u == 0: cond(0b00010100, dma_k, "dk")
        if u == 1: cond(0b00010100, dma_v, "dv")
        tn = t + 1
        if p == 0:
            kb = vKc if tn < 4 else vKn
            a(f"ds_read_b128 {vr(vKb + 4*(tn&1),4)}, v{kb} offset:{(tn%4)*KT}")
            if tn % 2 == 0:
                krb = vKrc if tn < 4 else vKrn
                pb = (tn // 2) & 1
                a(f"ds_read2st64_b64 {vr(vKr + 4*pb,4)}, v{krb} offset0:{(tn%4)*3} offset1:{(tn%4)*3+3}")
            vb = vVc if tn < 4 else vVn
            a(f"ds_read_b128 {vr(vV + 8*(tn&1),4)}, v{vb} offset:{(tn%4)*2048}")
        else:
            a("s_waitcnt lgkmcnt(0)")
        un = u + 1
        tq = un >> 1
        qs = un & 1
        Sc, Sn = vS + 16*p, vS + 16*(p^1)
        kbuf = vKb + 4*(tq & 1)
        krbuf = vKr + 4*((tq // 2) & 1) + 2*(tq & 1)
        ex = lambda r: a(f"v_exp_f32 v{Sc+r}, v{Sc+r}")
        cv = lambda r: a(f"v_cvt_pk_bf16_f32 v{vP+r}, v{Sc+2*r}, v{Sc+2*r+1}")
        a(f"v_mfma_f32_32x32x16_bf16 {vr(Sn,16)}, {vr(kbuf,4)}, {vr(vQ+4*qs,4)}, {vr(vNC+16*qs,16)}")
        for r in range(4): ex(r)
        tp = (u - 1) >> 1 if u > 0 else -1
        Op = vO + 16*((u - 1) & 1)
        a(f"v_mfma_f32_32x32x16_bf16 {vr(Op,16)}, {vr(vV + 8*(tp & 1) + 4,4)}, {vr(vP+4,4)}, {vr(Op,16)}")
        if p == 0:
            a(f"ds_read_b128 {vr(vV + 8*(tn&1) + 4,4)}, v{vb} offset:{(tn%4)*2048 + 1024}")
        for r in range(4, 8): ex(r)
        cv(0); cv(1)
        a(f"v_mfma_f32_32x32x8_bf16 {vr(Sn,16)}, {vr(krbuf,2)}, {vr(vQr+2*qs,2)}, {vr(Sn,16)}")
        cv(2); cv(3)
        for r in range(8, 12): ex(r)
        Oc = vO + 16*p
        a(f"v_mfma_f32_32x32x16_bf16 {vr(Oc,16)}, {vr(vV + 8*(t & 1),4)}, {vr(vP,4)}, {vr(Oc,16)}")
        for r in range(12, 16): ex(r)
        if u == 7:
            a(f"v_mov_b32 v{vKc}, v{vKn}")
            a(f"v_mov_b32 v{vKrc}, v{vKrn}")
            a(f"v_mov_b32 v{vVc}, v{vVn}")
        for r in range(4, 8): cv(r)
    a(f"""
    s_add_u32 s{sT0}, s{sSlotN}, {SLOT}
    s_cmp_ge_u32 s{sT0}, {NSLOT*SLOT}
    s_cselect_b32 s{sT0}, 0, s{sT0}
    s_sub_u32 s{sT1}, s{sT0}, s{sSlotN}
    s_mov_b32 s{sSlotN}, s{sT0}
    v_add_u32 v{vKn}, s{sT1}, v{vKn}
    v_add_u32 v{vKrn}, s{sT1}, v{vKrn}
    v_add_u32 v{vVn}, s{sT1}, v{vVn}
    s_add_u32 s{sChunk}, s{sChunk}, 1
    s_cmp_lt_u32 s{sChunk}, 8
    s_cbranch_scc1 L_{name}_loop
    s_waitcnt lgkmcnt(0)
    """)
    a(f"v_mfma_f32_32x32x16_bf16 {vr(vO+16,16)}, {vr(vV + 8 + 4,4)}, {vr(vP+4,4)}, {vr(vO+16,16)}")
    st(a, 7)
    a(f"""
    s_barrier
    s_lshl_b32 s{sT0}, s{sQg}, 1
    s_add_u32 s{sT1}, s{sT0}, s{sKh}
    s_lshr_b32 s{sT2}, s{sT1}, 2
    s_mul_i32 s{sT2}, s{sT2}, {SLOT}
    s_and_b32 s{sT1}, s{sT1}, 3
    s_mul_i32 s{sT1}, s{sT1}, 3072
    s_add_u32 s{sT1}, s{sT1}, s{sT2}
    v_add_u32 v{vT}, s{sT1}, v{vL16}
    s_xor_b32 s{sT1}, s{sKh}, 1
    s_add_u32 s{sT1}, s{sT1}, s{sT0}
    s_lshr_b32 s{sT2}, s{sT1}, 2
    s_mul_i32 s{sT2}, s{sT2}, {SLOT}
    s_and_b32 s{sT1}, s{sT1}, 3
    s_mul_i32 s{sT1}, s{sT1}, 3072
    s_add_u32 s{sT1}, s{sT1}, s{sT2}
    v_add_u32 v{vT+1}, s{sT1}, v{vL16}
    s_nop 7
    """)
    for i in range(3):
        a(f"ds_write_b128 v{vT}, {vr(vO+16+4*i,4)} offset:{i*1024}")
    a("s_waitcnt lgkmcnt(0)")
    a("s_barrier")
    for i in range(3):
        a(f"ds_read_b128 {vr(vS+4*i,4)}, v{vT+1} offset:{i*1024}")
    a("s_waitcnt lgkmcnt(0)")
    for r in range(12):
        a(f"v_add_f32 v{vO+r}, v{vO+r}, v{vS+r}")
    a(f"v_mov_b32 v{vT}, 0")
    for r in range(12):
        a(f"v_fma_f32 v{vT}, v{vO+r}, 0, v{vT}")
    a(f"""
    s_cmp_eq_u32 s{sPass}, 0
    s_cbranch_scc0 L_{name}_store
    v_cmp_u_f32 vcc, v{vT}, v{vT}
    s_nop 4
    s_cmp_eq_u64 vcc, 0
    s_cbranch_scc1 L_{name}_novote
    v_mov_b32 v{vT+1}, {FLAG}
    v_mov_b32 v{vT+2}, 1
    ds_write_b32 v{vT+1}, v{vT+2}
    L_{name}_novote:
    s_waitcnt lgkmcnt(0)
    s_barrier
    v_mov_b32 v{vT+1}, {FLAG}
    ds_read_b32 v{vT+2}, v{vT+1}
    s_waitcnt lgkmcnt(0)
    v_readfirstlane_b32 s{sT0}, v{vT+2}
    s_cmp_eq_u32 s{sT0}, 0
    s_cbranch_scc1 L_{name}_store2
    s_mov_b32 s{sPass}, 1
    v_mov_b32 v{vT}, 0xff800000
    v_mov_b32 v{vT+1}, 0xff800000
    s_lshr_b32 s{sT0}, s{sHead}, 1
    s_mul_i32 s{sT0}, s{sT0}, 163840
    s_mov_b32 s{sT1}, 0
    v_and_b32 v{vT+2}, 31, v0
    v_lshlrev_b32 v{vT+2}, 4, v{vT+2}
    s_lshl_b32 s{sT2}, s{sE}, 3
    s_add_u32 s{sT2}, s{sT2}, 1024
    v_add_u32 v{vT+2}, s{sT2}, v{vT+2}
    s_mul_i32 s{sT2}, s{sE}, 1536
    v_add_u32 v{vT+3}, s{sT2}, v{vL16}
    L_{name}_maxloop:
    buffer_load_dwordx4 {vr(vKb,4)}, v{vT+3}, s[{sK}:{sK+3}], s{sT0} offen
    buffer_load_dwordx2 {vr(vKr,2)}, v{vT+2}, s[{sK}:{sK+3}], s{sT0} offen
    s_waitcnt vmcnt(0)
    """)
    for s in range(2):
        S = vS + 16*s
        a(f"v_mfma_f32_32x32x16_bf16 {vr(S,16)}, {vr(vKb,4)}, {vr(vQ+4*s,4)}, 0")
        a(f"v_mfma_f32_32x32x8_bf16 {vr(S,16)}, {vr(vKr,2)}, {vr(vQr+2*s,2)}, {vr(S,16)}")
    a("s_nop 15")
    for s in range(2):
        for i in range(0, 16, 2):
            a(f"v_max3_f32 v{vT+s}, v{vT+s}, v{vS+16*s+i}, v{vS+16*s+i+1}")
    a(f"""
    s_add_u32 s{sT0}, s{sT0}, 2560
    s_add_u32 s{sT1}, s{sT1}, 1
    s_cmp_lt_u32 s{sT1}, 64
    s_cbranch_scc1 L_{name}_maxloop
    """)
    for s in range(2):
        a(f"""
        v_mov_b32 v{vT+2}, v{vT+s}
        s_nop 1
        v_permlane32_swap_b32 v{vT+s}, v{vT+2}
        s_nop 1
        v_max_f32 v{vT+2}, v{vT+s}, v{vT+2}
        v_sub_f32 v{vNC+16*s}, 0, v{vT+2}
        """)
        for i in range(1, 16):
            a(f"v_mov_b32 v{vNC+16*s+i}, v{vNC+16*s}")
    a("s_barrier")
    a(f"s_branch L_{name}_restart")
    a.label(f"L_{name}_store")
    a("s_barrier")
    a.label(f"L_{name}_store2")
    a(f"""
    v_mov_b32 v{vT}, v{vO+8}
    v_mov_b32 v{vT+1}, v{vO+8}
    s_nop 1
    v_permlane32_swap_b32 v{vT}, v{vT+1}
    s_nop 1
    v_rcp_f32 v{vT+1}, v{vT+1}
    v_lshrrev_b32 v{vT+2}, 5, v0
    v_and_b32 v{vT+3}, 31, v0
    s_add_u32 s{sT0}, s{sQt}, s{sKh}
    s_lshl_b32 s{sT0}, s{sT0}, 5
    v_add_u32 v{vT+3}, s{sT0}, v{vT+3}
    v_lshlrev_b32 v{vT+3}, 4, v{vT+3}
    s_mul_i32 s{sT0}, s{sHead}, 5
    v_add_u32 v{vT+2}, s{sT0}, v{vT+2}
    """)
    for r in range(12):
        a(f"v_mul_f32 v{vO+r}, v{vO+r}, v{vT+1}")
    for q in range(3):
        a(f"""
        v_add_u32 v{vT+4}, {2*q}, v{vT+2}
        v_lshrrev_b32 v{vT+5}, 1, v{vT+4}
        v_lshlrev_b32 v{vT+5}, 15, v{vT+5}
        v_and_b32 v{vT+4}, 1, v{vT+4}
        v_lshlrev_b32 v{vT+4}, 3, v{vT+4}
        v_add3_u32 v{vT+4}, v{vT+4}, v{vT+5}, v{vT+3}
        v_cvt_pk_bf16_f32 v{vT+6}, v{vO+4*q}, v{vO+4*q+1}
        v_cvt_pk_bf16_f32 v{vT+7}, v{vO+4*q+2}, v{vO+4*q+3}
        """)
        if q == 2: a("s_mov_b32 exec_hi, 0")
        a(f"buffer_store_dwordx2 {vr(vT+6,2)}, v{vT+4}, s[{sO}:{sO+3}], 0 offen {SC}")
    a("s_mov_b64 exec, -1")
    a(f"s_add_u32 s47, s{sQb}, {C_ATT}")

def gemm_phase_prologue_loader(a, core, q, dep_idx_sgpr, dep_target, nW, pre_issued):
    pass

def gen_mega():
    a = Asm()
    a(f"""
    s_cmp_ge_u32 s2, 256
    s_cbranch_scc1 L_exit
    s_load_dwordx8 s[84:91], s[0:1], 0
    s_load_dwordx8 s[92:99], s[0:1], 32
    s_load_dwordx2 s[78:79], s[0:1], 64
    """)
    st_rt(a, 0); st(a, 1)
    a(f"""
    v_lshrrev_b32 v2, 6, v0
    s_nop 0
    v_readfirstlane_b32 s{sWV}, v2
    """)
    lane_id(a, 1)
    a("s_waitcnt lgkmcnt(0)")
    make_srd(a, sWS, pWS, pWS+1, 0, WS_END)
    L = CoreL(a, 'qkv', 'q')
    L.map_tiles("L_repack")
    a(f"""
    s_cmp_ge_u32 s{sWV}, 4
    s_cbranch_scc0 L_q_compute
    """)
    L.loader_setup()
    q = VmQ()
    for s_ in range(3):
        L.issue_A(s_); q.push(f"A{s_}", 4)
        L.issue_W(s_); q.push(f"W{s_}", 4)
    L.loader_main(q)
    a("s_barrier")
    a("s_barrier")
    a("s_branch L_attn")
    a.label("L_q_compute")
    def zero_counters():
        l = a.newlabel("zc")
        a(f"""
        s_or_b32 s40, s2, s{sWV}
        s_cmp_eq_u32 s40, 0
        s_cbranch_scc0 {l}
        v_mov_b32 v4, 0
        v_mov_b32 v5, 0
        v_mov_b32 v6, 0
        v_mov_b32 v7, 0
        v_lshlrev_b32 v8, 4, v1
        s_mov_b32 s40, {WS_CNT}
        """)
        for j in range(8):
            a(f"buffer_store_dwordx4 v[4:7], v8, s[{sWS}:{sWS+3}], s40 offen {SC}")
            a("s_add_u32 s40, s40, 1024")
        make_srd(a, 8, pDBG, pDBG+1, 0, 256)
        a(f"""
        s_waitcnt vmcnt(0)
        v_mov_b32 v4, 1
        v_mov_b32 v5, 0
        s_mov_b64 exec, 1
        buffer_store_dword v4, v5, s[8:11], 0 offen sc1
        s_mov_b64 exec, -1
        """)
        a.label(l)
    zero_counters()
    emit_p0(a)
    L.compute_setup()
    a(f"""
    s_cmp_ge_u32 s{L.sNt}, 10
    s_cbranch_scc1 L_q_vpath
    """)
    L.addr_qk()
    L.mainloop(True, 2)
    st(a, 3)
    a("s_barrier")
    L.epilogue_Y('qk')
    a("s_branch L_q_done")
    a.label("L_q_vpath")
    L.addr_v()
    L.mainloop(False, 2)
    st(a, 3)
    a("s_barrier")
    L.epilogue_X()
    a.label("L_q_done")
    a("s_waitcnt vmcnt(0)")
    a("s_barrier")
    a(f"s_cmp_eq_u32 s{sWV}, 0")
    a("s_cbranch_scc0 L_attn")
    a(f"s_add_u32 s40, s{L.sNt}, {C_QKV}")
    arrive(a, 40, 4)
    st(a, 4)
    a("s_branch L_attn")
    a.label("L_repack")
    a(f"""
    s_cmp_ge_u32 s{sWV}, 4
    s_cbranch_scc1 L_repack2
    """)
    emit_p0(a)
    lane_id(a, 1)
    a.label("L_repack2")
    a(f"""
    s_and_b32 s46, s2, 7
    s_lshr_b32 s46, s46, 1
    s_lshl_b32 s46, s46, 2
    s_lshr_b32 s45, s2, 3
    s_and_b32 s45, s45, 3
    s_add_u32 s46, s46, s45
    """)
    emit_repack(a, 46)
    a.label("L_attn")
    emit_attention(a, None)
    S = CoreS(a, 'oproj')
    lane_id(a, 1)
    S.map_tiles()
    a(f"""
    s_cmp_ge_u32 s{sWV}, 4
    s_cbranch_scc0 L_o_compute
    """)
    S.loader_setup()
    q = VmQ()
    for s_ in range(3):
        S.issue_W(s_); q.push(f"W{s_}", 5)
    a("s_waitcnt vmcnt(15)")
    a("s_barrier")
    lw = a.newlabel("ow")
    a(f"s_cmp_eq_u32 s{sWV}, 4")
    a(f"s_cbranch_scc0 {lw}")
    a(f"s_lshr_b32 s40, s{S.sM0}, 8")
    a(f"s_add_u32 s40, s40, {C_ATT}")
    poll1(a, 40, 32, 8)
    a.label(lw)
    a("s_barrier")
    for s_ in range(3):
        S.issue_A(s_); q.push(f"A{s_}", 4)
    S.loader_main(q)
    a("s_barrier"); a("s_barrier")
    a("s_barrier")
    F1 = CoreL(a, 'ffn1', 'f')
    F1.map_tiles("L_o_ld_idle")
    F1.loader_setup()
    q = VmQ()
    for s_ in range(3):
        F1.issue_W(s_); q.push(f"W{s_}", 4)
    a("s_barrier")
    a("s_branch L_f1_loader")
    a.label("L_o_ld_idle")
    a("s_barrier")
    a("s_branch L_f2_loader0")
    a.label("L_o_compute")
    a("s_waitcnt vmcnt(0)")
    a("s_barrier")
    lw = a.newlabel("oa")
    a(f"s_cmp_eq_u32 s{sWV}, 0")
    a(f"s_cbranch_scc0 {lw}")
    arrive(a, 47, 4)
    st(a, 8)
    a.label(lw)
    S.compute_setup()
    S.residual_loads()
    a("s_barrier")
    st(a, 9)
    S.mainloop()
    S.reduce()
    a("s_barrier")
    S.epilogue()
    a("s_waitcnt vmcnt(0)")
    a("s_barrier")
    lw = a.newlabel("oa2")
    a(f"s_cmp_eq_u32 s{sWV}, 0")
    a(f"s_cbranch_scc0 {lw}")
    a(f"s_lshr_b32 s40, s{S.sM0}, 7")
    a(f"s_add_u32 s40, s40, {C_OP}")
    arrive(a, 40, 4)
    st(a, 10)
    a.label(lw)
    lane_id(a, 1)
    F1.map_tiles("L_f2_compute0")
    a("s_branch L_f1_compute")
    a.label("L_f1_loader")
    lw = a.newlabel("fw")
    a(f"s_cmp_eq_u32 s{sWV}, 4")
    a(f"s_cbranch_scc0 {lw}")
    a(f"s_lshr_b32 s40, s{F1.sM0}, 7")
    a(f"s_add_u32 s40, s40, {C_OP}")
    poll1(a, 40, 16, 8)
    a.label(lw)
    a("s_barrier")
    for s_ in range(3):
        F1.issue_A(s_); q.push(f"A{s_}", 4)
    F1.loader_main(q)
    a("s_barrier")
    S2 = CoreS(a, 'ffn2')
    S2.map_tiles()
    S2.loader_setup()
    q = VmQ()
    for s_ in range(3):
        S2.issue_W(s_); q.push(f"W{s_}", 5)
    a("s_barrier")
    a("s_branch L_f2_loader")
    a.label("L_f2_loader0")
    S2.map_tiles()
    S2.loader_setup()
    for s_ in range(3):
        S2.issue_W(s_)
    a.label("L_f2_loader")
    lw = a.newlabel("gw")
    a(f"s_cmp_eq_u32 s{sWV}, 4")
    a(f"s_cbranch_scc0 {lw}")
    a(f"s_lshr_b32 s40, s{S2.sM0}, 7")
    a(f"s_add_u32 s40, s40, {C_F1}")
    poll1(a, 40, 14, 8)
    a.label(lw)
    a("s_barrier")
    for s_ in range(3):
        S2.issue_A(s_); q.push(f"A{s_}", 4)
    S2.loader_main(q)
    a("s_barrier"); a("s_barrier")
    a("s_endpgm")
    a.label("L_f1_compute")
    F1.compute_setup()
    F1.addr_f()
    a("s_barrier")
    st(a, 11)
    F1.mainloop(True)
    a("s_barrier")
    F1.epilogue_Y('ffn1')
    a("s_waitcnt vmcnt(0)")
    a("s_barrier")
    lw = a.newlabel("fa")
    a(f"s_cmp_eq_u32 s{sWV}, 0")
    a(f"s_cbranch_scc0 {lw}")
    a(f"s_lshr_b32 s40, s{F1.sM0}, 7")
    a(f"s_add_u32 s40, s40, {C_F1}")
    arrive(a, 40, 4)
    st(a, 12)
    a.label(lw)
    lane_id(a, 1)
    a.label("L_f2_compute0")
    S2.map_tiles()
    S2.compute_setup()
    a("s_barrier")
    st(a, 13)
    S2.residual_loads()
    S2.mainloop()
    S2.reduce()
    S2.epilogue()
    if common.STAMPS:
        a("s_waitcnt vmcnt(0)")
        st(a, 14); st_rt(a, 15)
        stamp_flush(a, 0, sWV, base=SB, vt=90)
    a.label("L_exit")
    a("s_endpgm")
    return kernel_header(NAME) + a.text() + kernel_desc(NAME, 256, 176, sgpr=102)
```

```python
import sys, os
sys.path.insert(0, "gen")
from build import *
import common
common.STAMPS = bool(os.environ.get('STAMPS'))
from mega import gen_mega, LDS_TOTAL, NAME as KNAME
out = sys.argv[1] if len(sys.argv) > 1 else "dev.s"
NOTES = """;
"""
txt = HEADER + f"; @launch grid=(256,1,1) block=(512,1,1) lds={LDS_TOTAL}\n" + NOTES + '.amdgcn_target "amdgcn-amd-amdhsa--gfx950"\n' + gen_mega()
open(out, "w").write(txt)
assemble(out, out.replace(".s", ".co"))
```

```python
from common import *
import common, os
E = os.environ.get

NAME = "sequential_preLN__softmax_full_mha__dense_activation_relu__prompt_kernel"
pX, pWQ, pWO, pW1, pW2, pOUT, pDBG, pWS = 84, 86, 88, 92, 94, 96, 98, 78
sWS = 80
sWV = 100
sPoll = 101
SB = 48
STAT = 131072
LDS_TOTAL = 149504
SC = "sc1"
sX, sRk, sLoc = 72, 73, 74
ROLE = LDS_TOTAL - 64
POLL_MAX = 1 << 22

FS = E('FS', '').split(',') if E('FS') else []
def st(a, i):
    if FS and i >= 9: return
    stamp(a, i, base=SB)
def st2(a, i): pass
def stx(a, tag):
    if tag in FS: stamp(a, 9 + FS.index(tag), base=SB)
def st_rt(a, i): stamp_rt(a, i, base=SB)

def lane_id(a, v):
    a(f"v_mbcnt_lo_u32_b32 v{v}, -1, 0")
    a(f"v_mbcnt_hi_u32_b32 v{v}, -1, v{v}")

def arrive(a, sIdx, vt):
    a(f"""
    s_lshl_b32 s{sPoll}, s{sIdx}, 7
    s_add_u32 s{sPoll}, s{sPoll}, {WS_CNT}
    v_mov_b32 v{vt}, s{sPoll}
    v_mov_b32 v{vt+1}, 1
    s_mov_b64 exec, 1
    buffer_atomic_add v{vt+1}, v{vt}, s[{sWS}:{sWS+3}], 0 offen sc1
    s_mov_b64 exec, -1
    """)

def dual(a, instrs):
    l0, l1 = a.newlabel("slow"), a.newlabel("dd")
    a(f"s_cmp_eq_u32 s{sLoc}, 0")
    a(f"s_cbranch_scc1 {l0}")
    for i in instrs: a(i.replace("@SC", ""))
    a(f"s_branch {l1}")
    a.label(l0)
    for i in instrs: a(i.replace("@SC", "sc1"))
    a.label(l1)

def arrive_l(a, sIdx, vt):
    a(f"""
    s_lshl_b32 s{sPoll}, s{sIdx}, 7
    s_add_u32 s{sPoll}, s{sPoll}, {WS_CNT}
    v_mov_b32 v{vt}, s{sPoll}
    v_mov_b32 v{vt+1}, 1
    s_mov_b64 exec, 1
    """)
    dual(a, [f"buffer_atomic_add v{vt+1}, v{vt}, s[{sWS}:{sWS+3}], 0 offen @SC"])
    a("s_mov_b64 exec, -1")

def poll(a, vOff, vTgt, nl, vt):
    l0, l1 = a.newlabel("poll"), a.newlabel("pollok")
    a(f"s_mov_b64 exec, {(1 << nl) - 1:#x}")
    a(f"s_mov_b32 s{sPoll}, 0")
    a.label(l0)
    a(f"""
    buffer_load_dword v{vt}, v{vOff}, s[{sWS}:{sWS+3}], 0 offen sc1
    s_waitcnt vmcnt(0)
    v_cmp_gt_u32 vcc, v{vTgt}, v{vt}
    s_nop 4
    s_cmp_eq_u64 vcc, 0
    s_cbranch_scc1 {l1}
    s_add_u32 s{sPoll}, s{sPoll}, 1
    s_cmp_gt_u32 s{sPoll}, {POLL_MAX}
    s_cbranch_scc1 {l1}
    s_sleep 1
    s_branch {l0}
    """)
    a.label(l1)
    a("s_mov_b64 exec, -1")

def poll1(a, sIdx, target, vt):
    a(f"""
    s_lshl_b32 s{sPoll}, s{sIdx}, 7
    s_add_u32 s{sPoll}, s{sPoll}, {WS_CNT}
    v_mov_b32 v{vt+1}, s{sPoll}
    v_mov_b32 v{vt+2}, {target}
    """)
    poll(a, vt + 1, vt + 2, 1, vt)

def wave_sum(a, v):
    for sh in (1, 2, 4, 8):
        a(f"v_add_f32_dpp v{v}, v{v}, v{v} row_shr:{sh} row_mask:0xf bank_mask:0xf bound_ctrl:0")
        a("s_nop 1")
    a(f"v_add_f32_dpp v{v}, v{v}, v{v} row_bcast:15 row_mask:0xa bank_mask:0xf")
    a("s_nop 1")
    a(f"v_add_f32_dpp v{v}, v{v}, v{v} row_bcast:31 row_mask:0xc bank_mask:0xf")
    a("s_nop 1")

def p0_rows_issue(a, sXs, s0, vR, vA):
    a(f"""
    s_lshl_b32 s{s0}, s2, 3
    s_lshl_b32 s{s0+1}, s{sWV}, 1
    s_add_u32 s{s0}, s{s0}, s{s0+1}
    s_mul_i32 s{s0+2}, s{s0}, 1280
    v_lshlrev_b32 v{vA}, 4, v1
    v_lshlrev_b32 v{vA+1}, 2, v1
    s_add_u32 s{s0+3}, s{s0+2}, 1280
    buffer_load_dwordx4 {vr(vR,4)}, v{vA}, s[{sXs}:{sXs+3}], s{s0+2} offen
    buffer_load_dword v{vR+4}, v{vA+1}, s[{sXs}:{sXs+3}], s{s0+2} offen offset:1024
    buffer_load_dwordx4 {vr(vR+6,4)}, v{vA}, s[{sXs}:{sXs+3}], s{s0+3} offen
    buffer_load_dword v{vR+5}, v{vA+1}, s[{sXs}:{sXs+3}], s{s0+3} offen offset:1024
    """)
def p0_rows_finish(a, s0, vR, vA):
    for rr in range(2):
        regs = [vR + 6*rr + i for i in range(4)] + [vR + 4 + rr]
        S, Q, U = vA + 4, vA + 5, vA + 6
        for n, r in enumerate(regs):
            a(f"v_lshlrev_b32 v{U}, 16, v{r}")
            a(f"v_and_b32 v{U+1}, 0xffff0000, v{r}")
            if n == 0:
                a(f"v_add_f32 v{S}, v{U}, v{U+1}")
                a(f"v_mul_f32 v{Q}, v{U}, v{U}")
            else:
                a(f"v_add_f32 v{S}, v{S}, v{U}")
                a(f"v_add_f32 v{S}, v{S}, v{U+1}")
                a(f"v_fmac_f32 v{Q}, v{U}, v{U}")
            a(f"v_fmac_f32 v{Q}, v{U+1}, v{U+1}")
        a("s_nop 1")
        for sh in (1, 2, 4, 8):
            a(f"v_add_f32_dpp v{S}, v{S}, v{S} row_shr:{sh} row_mask:0xf bank_mask:0xf bound_ctrl:0")
            a(f"v_add_f32_dpp v{Q}, v{Q}, v{Q} row_shr:{sh} row_mask:0xf bank_mask:0xf bound_ctrl:0")
            a("s_nop 0")
        a(f"v_add_f32_dpp v{S}, v{S}, v{S} row_bcast:15 row_mask:0xa bank_mask:0xf")
        a(f"v_add_f32_dpp v{Q}, v{Q}, v{Q} row_bcast:15 row_mask:0xa bank_mask:0xf")
        a("s_nop 0")
        a(f"v_add_f32_dpp v{S}, v{S}, v{S} row_bcast:31 row_mask:0xc bank_mask:0xf")
        a(f"v_add_f32_dpp v{Q}, v{Q}, v{Q} row_bcast:31 row_mask:0xc bank_mask:0xf")
        a(f"""
        s_nop 0
        v_mul_f32 v{S}, {f32bits(1.0/640):#x}, v{S}
        v_mul_f32 v{Q}, {f32bits(1.0/640):#x}, v{Q}
        v_fma_f32 v{Q}, -v{S}, v{S}, v{Q}
        v_max_f32 v{Q}, 0, v{Q}
        v_add_f32 v{Q}, {f32bits(1e-5):#x}, v{Q}
        v_rsq_f32 v{Q}, v{Q}
        s_nop 0
        v_mov_b32 v{vA+8+2*rr}, v{S}
        v_mov_b32 v{vA+9+2*rr}, v{Q}
        """)
    a(f"""
    s_lshl_b32 s{s0+4}, s{s0}, 3
    s_add_u32 s{s0+4}, s{s0+4}, {WS_ST1}
    v_mov_b32 v{vA+4}, 0
    s_mov_b32 exec_lo, 0
    s_mov_b32 exec_hi, 0x80000000
    buffer_store_dwordx4 {vr(vA+8,4)}, v{vA+4}, s[{sWS}:{sWS+3}], s{s0+4} offen {SC}
    s_mov_b64 exec, -1
    """)
def colsum_issue(a, which, srd, sW4, s0, vC, vA):
    ld = 3840 if which == 'wq' else 3456
    a(f"""
    s_and_b32 s{s0+1}, s2, 7
    s_lshr_b32 s{s0+2}, s2, 3
    s_lshr_b32 s{s0+3}, s{s0+1}, 1
    s_lshl_b32 s{s0+3}, s{s0+3}, 5
    s_add_u32 s{s0+2}, s{s0+2}, s{s0+3}
    s_and_b32 s{s0+1}, s{s0+1}, 1
    s_and_b32 s{s0+3}, s{s0+2}, 15
    s_lshr_b32 s{s0+2}, s{s0+2}, 4
    v_lshrrev_b32 v{vA}, 3, v1
    v_and_b32 v{vA+1}, 7, v1
    v_lshlrev_b32 v{vA+1}, 2, v{vA+1}
    v_mul_u32_u24 v{vA+2}, {ld}, v{vA}
    v_add_u32 v{vA+2}, v{vA+2}, v{vA+1}
    s_lshl_b32 s{s0+4}, s{s0+3}, 6
    s_lshl_b32 s{s0+7}, s{sW4}, 4
    s_add_u32 s{s0+4}, s{s0+4}, s{s0+7}
    s_mul_i32 s{s0+5}, s{s0+1}, {1024 if which == 'wq' else 896}
    s_add_u32 s{s0+5}, s{s0+5}, s{s0+4}
    s_mul_i32 s{s0+7}, s{s0+2}, {80*ld}
    s_lshl_b32 s{s0+4}, s{s0+5}, 1
    s_add_u32 s{s0+7}, s{s0+7}, s{s0+4}
    """)
    for j in range(10):
        a(f"buffer_load_dword v{vC+j}, v{vA+2}, s[{srd}:{srd+3}], s{s0+7} offen")
        if j < 9: a(f"s_add_u32 s{s0+7}, s{s0+7}, {8*ld}")
def colsum_finish(a, which, s0, vC, vA):
    base, ncol = (WS_CS1, 1920) if which == 'wq' else (WS_CS2, 1792)
    A0, A1, U = vA + 4, vA + 5, vA + 6
    for j in range(10):
        if j == 0:
            a(f"v_lshlrev_b32 v{A0}, 16, v{vC}")
            a(f"v_and_b32 v{A1}, 0xffff0000, v{vC}")
        else:
            a(f"v_lshlrev_b32 v{U}, 16, v{vC+j}")
            a(f"v_and_b32 v{U+1}, 0xffff0000, v{vC+j}")
            a(f"v_add_f32 v{A0}, v{A0}, v{U}")
            a(f"v_add_f32 v{A1}, v{A1}, v{U+1}")
    a(f"""
    s_nop 1
    v_add_f32_dpp v{A0}, v{A0}, v{A0} row_ror:8 row_mask:0xf bank_mask:0xf
    v_add_f32_dpp v{A1}, v{A1}, v{A1} row_ror:8 row_mask:0xf bank_mask:0xf
    s_nop 1
    v_mov_b32 v{U}, v{A0}
    v_mov_b32 v{U+1}, v{A1}
    s_nop 1
    v_permlane16_swap_b32 v{A0}, v{U}
    v_permlane16_swap_b32 v{A1}, v{U+1}
    s_nop 1
    v_add_f32 v{A0}, v{A0}, v{U}
    v_add_f32 v{A1}, v{A1}, v{U+1}
    s_nop 0
    v_mov_b32 v{U}, v{A0}
    v_mov_b32 v{U+1}, v{A1}
    s_nop 1
    v_permlane32_swap_b32 v{A0}, v{U}
    v_permlane32_swap_b32 v{A1}, v{U+1}
    s_nop 1
    v_add_f32 v{vA+12}, v{A0}, v{U}
    v_add_f32 v{vA+13}, v{A1}, v{U+1}
    v_lshlrev_b32 v{U}, 3, v1
    s_mul_i32 s{s0+4}, s{s0+2}, {ncol*4}
    s_lshl_b32 s{s0+7}, s{s0+5}, 2
    s_add_u32 s{s0+4}, s{s0+4}, s{s0+7}
    s_add_u32 s{s0+4}, s{s0+4}, {base}
    """)
    lab = a.newlabel("p0skip")
    if which == 'wq':
        a(f"s_cmp_ge_u32 s{s0+5}, 1920")
    else:
        a(f"s_sub_u32 s{s0+7}, 14, s{s0+1}")
        a(f"s_cmp_ge_u32 s{s0+3}, s{s0+7}")
    a(f"s_cbranch_scc1 {lab}")
    a("s_mov_b64 exec, 0xff")
    a(f"buffer_store_dwordx2 {vr(vA+12,2)}, v{U}, s[{sWS}:{sWS+3}], s{s0+4} offen {SC}")
    a("s_mov_b64 exec, -1")
    a.label(lab)
def emit_p0(a):
    sXs, sWq, s0 = 8, 12, 40
    vR, vC, vA = 4, 14, 34
    make_srd(a, sXs, pX, pX+1, 0, 2048*1280)
    make_srd(a, sWq, pWQ, pWQ+1, 0, 640*3840)
    p0_rows_issue(a, sXs, s0, vR, vA)
    a(f"s_mov_b32 s39, s{s0}")
    colsum_issue(a, 'wq', sWq, sWV, s0, vC, vA + 12)
    a("s_waitcnt vmcnt(10)")
    a(f"s_mov_b32 s38, s{s0+4}")
    p0_rows_finish(a, 39, vR, vA) if False else None
    p0_rows_finish_b(a, 39, 38, vR, vA)
    a("s_waitcnt vmcnt(1)")
    colsum_finish(a, 'wq', s0, vC, vA + 12)
def p0_rows_finish_b(a, sRow, sTmp, vR, vA):
    import io
    class Tmp: pass
    for rr in range(2):
        regs = [vR + 6*rr + i for i in range(4)] + [vR + 4 + rr]
        S, Q, U = vA + 4, vA + 5, vA + 6
        for n, r in enumerate(regs):
            a(f"v_lshlrev_b32 v{U}, 16, v{r}")
            a(f"v_and_b32 v{U+1}, 0xffff0000, v{r}")
            if n == 0:
                a(f"v_add_f32 v{S}, v{U}, v{U+1}")
                a(f"v_mul_f32 v{Q}, v{U}, v{U}")
            else:
                a(f"v_add_f32 v{S}, v{S}, v{U}")
                a(f"v_add_f32 v{S}, v{S}, v{U+1}")
                a(f"v_fmac_f32 v{Q}, v{U}, v{U}")
            a(f"v_fmac_f32 v{Q}, v{U+1}, v{U+1}")
        a("s_nop 1")
        for sh in (1, 2, 4, 8):
            a(f"v_add_f32_dpp v{S}, v{S}, v{S} row_shr:{sh} row_mask:0xf bank_mask:0xf bound_ctrl:0")
            a(f"v_add_f32_dpp v{Q}, v{Q}, v{Q} row_shr:{sh} row_mask:0xf bank_mask:0xf bound_ctrl:0")
            a("s_nop 0")
        a(f"v_add_f32_dpp v{S}, v{S}, v{S} row_bcast:15 row_mask:0xa bank_mask:0xf")
        a(f"v_add_f32_dpp v{Q}, v{Q}, v{Q} row_bcast:15 row_mask:0xa bank_mask:0xf")
        a("s_nop 0")
        a(f"v_add_f32_dpp v{S}, v{S}, v{S} row_bcast:31 row_mask:0xc bank_mask:0xf")
        a(f"v_add_f32_dpp v{Q}, v{Q}, v{Q} row_bcast:31 row_mask:0xc bank_mask:0xf")
        a(f"""
        s_nop 0
        v_mul_f32 v{S}, {f32bits(1.0/640):#x}, v{S}
        v_mul_f32 v{Q}, {f32bits(1.0/640):#x}, v{Q}
        v_fma_f32 v{Q}, -v{S}, v{S}, v{Q}
        v_max_f32 v{Q}, 0, v{Q}
        v_add_f32 v{Q}, {f32bits(1e-5):#x}, v{Q}
        v_rsq_f32 v{Q}, v{Q}
        s_nop 0
        v_mov_b32 v{vA+8+2*rr}, v{S}
        v_mov_b32 v{vA+9+2*rr}, v{Q}
        """)
    a(f"""
    s_lshl_b32 s{sTmp}, s{sRow}, 3
    s_add_u32 s{sTmp}, s{sTmp}, {WS_ST1}
    v_mov_b32 v{vA+4}, 0
    s_mov_b32 exec_lo, 0
    s_mov_b32 exec_hi, 0x80000000
    buffer_store_dwordx4 {vr(vA+8,4)}, v{vA+4}, s[{sWS}:{sWS+3}], s{sTmp} offen {SC}
    s_mov_b64 exec, -1
    """)
def dbg_flag_issue(a, vt):
    make_srd(a, 44, pDBG, pDBG+1, 0, 256)
    a(f"v_mov_b32 v{vt+1}, 0")
    a(f"buffer_load_dword v{vt}, v{vt+1}, s[44:47], 0 offen sc1")
def dbg_flag_issue_b(a, vt):
    make_srd(a, 16, pDBG, pDBG+1, 0, 256)
    a(f"v_mov_b32 v{vt+1}, 0")
    a(f"buffer_load_dword v{vt}, v{vt+1}, s[16:19], 0 offen sc1")
def dbg_flag_wait(a, vt, srd=44):
    l0, l1 = a.newlabel("dbgp"), a.newlabel("dbgok")
    a(f"s_mov_b32 s{sPoll}, 0")
    a.label(l0)
    a(f"""
    s_waitcnt vmcnt(0)
    v_readfirstlane_b32 s75, v{vt}
    s_cmp_lg_u32 s75, 0
    s_cbranch_scc1 {l1}
    s_add_u32 s{sPoll}, s{sPoll}, 1
    s_cmp_gt_u32 s{sPoll}, {POLL_MAX}
    s_cbranch_scc1 {l1}
    s_sleep 1
    buffer_load_dword v{vt}, v{vt+1}, s[{srd}:{srd+3}], 0 offen sc1
    s_branch {l0}
    """)
    a.label(l1)
def dbg_flag_wait_arrive_b(a, cbase, vt):
    dbg_flag_wait_arrive(a, cbase, vt, 16)
def dbg_flag_wait_arrive(a, cbase, vt, srd=44):
    l0, l1 = a.newlabel("dbgp"), a.newlabel("dbgok")
    a(f"s_mov_b32 s{sPoll}, 0")
    a.label(l0)
    a(f"""
    s_waitcnt vmcnt(0)
    v_readfirstlane_b32 s75, v{vt}
    s_cmp_lg_u32 s75, 0
    s_cbranch_scc1 {l1}
    s_add_u32 s{sPoll}, s{sPoll}, 1
    s_cmp_gt_u32 s{sPoll}, {POLL_MAX}
    s_cbranch_scc1 {l1}
    s_sleep 1
    buffer_load_dword v{vt}, v{vt+1}, s[{srd}:{srd+3}], 0 offen sc1
    s_branch {l0}
    """)
    a.label(l1)
    a(f"s_and_b32 s75, s2, 7")
    a(f"s_add_u32 s75, s75, {cbase}")
    arrive(a, 75, vt)

def emit_repack(a, sRi):
    sWo, sW2 = 8, 12
    make_srd(a, sWo, pWO, pWO+1, 0, 640*1280)
    make_srd(a, sW2, pW2, pW2+1, 0, 1728*1280)
    a(f"""
    s_lshl_b32 s20, s{sWV}, 6
    v_add_u32 v2, s20, v1
    """)
    vS, vDst = 4, 8
    for r in range(3):
        a(f"""
        v_add_u32 v12, {512*r}, v2
        v_mul_u32_u24 v13, 0xcccd, v12
        v_lshrrev_b32 v13, 19, v13
        v_mul_u32_u24 v14, 10, v13
        v_sub_u32 v14, v12, v14
        v_and_b32 v15, 0x73, v13
        v_and_b32 v16, 4, v13
        v_lshlrev_b32 v16, 1, v16
        v_or_b32 v15, v15, v16
        v_and_b32 v16, 8, v13
        v_lshrrev_b32 v16, 1, v16
        v_or_b32 v15, v15, v16
        v_mul_u32_u24 v15, 1280, v15
        v_lshlrev_b32 v14, 4, v14
        v_add_u32 v{vS+r}, v15, v14
        v_lshlrev_b32 v{vDst+r}, 4, v12
        """)
    a(f"""
    v_mov_b32 v12, 0x7fffff00
    v_cmp_gt_u32 vcc, 256, v2
    s_nop 1
    v_cndmask_b32 v{vS+2}, v12, v{vS+2}, vcc
    v_cndmask_b32 v{vDst+2}, v12, v{vDst+2}, vcc
    """)
    vB = 20
    items = [("wo", n) for n in range(3)] + [("w2", n) for n in range(7)]
    for k, (w, n) in enumerate(items):
        nst = 5 if w == "wo" else 14
        magic, sh = (0xcccd, 18) if w == "wo" else (0x4925, 18)
        srd = sWo if w == "wo" else sW2
        a(f"""
        s_add_u32 s20, s{sRi}, {16*n}
        s_mul_i32 s21, s20, {magic}
        s_lshr_b32 s21, s21, {sh}
        s_mul_i32 s22, s21, {nst}
        s_sub_u32 s22, s20, s22
        s_mul_i32 s22, s22, {128*1280}
        s_mul_i32 s21, s21, 160
        s_add_u32 s22, s22, s21
        s_mul_i32 s{24+k}, s20, 20480
        s_add_u32 s{24+k}, s{24+k}, {WS_WOP if w == 'wo' else WS_W2P}
        """)
        if w == "wo" and n == 2:
            a(f"""
            s_cmp_ge_u32 s20, 40
            s_cselect_b32 s{24+k}, 0x7f000000, s{24+k}
            """)
        for r in range(3):
            a(f"buffer_load_dwordx4 {vr(vB + (k*3 + r)*4, 4)}, v{vS+r}, s[{srd}:{srd+3}], s22 offen")
    for k in range(len(items)):
        a(f"s_waitcnt vmcnt({(len(items) - 1 - k) * 3 + k * 3})" if False else f"s_waitcnt vmcnt({3*(len(items)-1)})")
        for r in range(3):
            a(f"buffer_store_dwordx4 {vr(vB + (k*3 + r)*4, 4)}, v{vDst+r}, s[{sWS}:{sWS+3}], s{24+k} offen {SC}")
    a("s_waitcnt vmcnt(0)")
    a("s_barrier")
    l = a.newlabel("rp")
    a(f"s_cmp_eq_u32 s{sWV}, 0")
    a(f"s_cbranch_scc0 {l}")
    dbg_flag_issue(a, 14)
    dbg_flag_wait(a, 14)
    a(f"s_mov_b32 s20, {C_RP}")
    arrive(a, 20, 12)
    a.label(l)

class CoreL:
    sA, sW, sO = 8, 12, 16
    sM0, sN0, sT0, sT1, sT2, sT3 = 21, 22, 23, 24, 25, 26
    sLw, sSlot, sAoff, sWoff, sLds = 20, 28, 29, 30, 31
    sWm, sWn, sNt, sSeq, sSeqW = 32, 33, 34, 35, 36
    vAe, vAo, vWo = 4, 5, 6
    NST = 10
    def __init__(self, a, mode, tag):
        self.a, self.mode, self.tag = a, mode, tag
        self.qkv = mode == 'qkv'
        self.LDW = 3840 if self.qkv else 3456
    def map_tiles(self, idle_label):
        a, c = self.a, self
        if not c.qkv:
            a(f"""
            s_and_b32 s{c.sT3}, s{sRk}, 1
            s_lshl_b32 s{c.sM0}, s{sX}, 1
            s_add_u32 s{c.sM0}, s{c.sM0}, s{c.sT3}
            s_lshl_b32 s{c.sM0}, s{c.sM0}, 7
            s_lshr_b32 s{c.sNt}, s{sRk}, 1
            s_cmp_ge_u32 s{c.sNt}, 14
            s_cbranch_scc1 {idle_label}
            s_lshl_b32 s{c.sN0}, s{c.sNt}, 7
            s_mul_i32 s{c.sSeq}, s{c.sNt}, 3
            s_mul_i32 s{c.sT0}, s{c.sT3}, 5
            s_add_u32 s{c.sSeq}, s{c.sSeq}, s{c.sT0}
            s_mul_i32 s{c.sT0}, s{c.sSeq}, 0xcccd
            s_lshr_b32 s{c.sT0}, s{c.sT0}, 19
            s_mul_i32 s{c.sT0}, s{c.sT0}, 10
            s_sub_u32 s{c.sSeq}, s{c.sSeq}, s{c.sT0}
            """)
            if not E('ROTL'): a(f"s_mov_b32 s{c.sSeq}, 0")
            return
        NT_PER = 8 if c.qkv else 7
        NT_TOT = 15 if c.qkv else 14
        a(f"""
        s_and_b32 s{c.sT0}, s2, 7
        s_lshr_b32 s{c.sT1}, s2, 3
        s_lshr_b32 s{c.sT2}, s{c.sT0}, 1
        s_lshl_b32 s{c.sT2}, s{c.sT2}, 2
        s_and_b32 s{c.sT3}, s{c.sT1}, 3
        s_add_u32 s{c.sM0}, s{c.sT2}, s{c.sT3}
        s_lshl_b32 s{c.sM0}, s{c.sM0}, 7
        s_and_b32 s{c.sT0}, s{c.sT0}, 1
        s_mul_i32 s{c.sT0}, s{c.sT0}, {NT_PER}
        s_lshr_b32 s{c.sT1}, s{c.sT1}, 2
        s_add_u32 s{c.sNt}, s{c.sT0}, s{c.sT1}
        s_cmp_ge_u32 s{c.sT1}, {NT_PER}
        s_cbranch_scc1 {idle_label}
        s_cmp_ge_u32 s{c.sNt}, {NT_TOT}
        s_cbranch_scc1 {idle_label}
        s_lshl_b32 s{c.sN0}, s{c.sNt}, 7
        s_mul_i32 s{c.sSeq}, s{c.sT3}, 3
        s_add_u32 s{c.sSeq}, s{c.sSeq}, s{c.sT1}
        s_cmp_ge_u32 s{c.sSeq}, 10
        s_cselect_b32 s{c.sT0}, 10, 0
        s_sub_u32 s{c.sSeq}, s{c.sSeq}, s{c.sT0}
        """)
        if not E('ROTL'): a(f"s_mov_b32 s{c.sSeq}, 0")
    def loader_setup(self):
        a, c = self.a, self
        a(f"s_sub_u32 s{c.sLw}, s{sWV}, 4")
        if c.qkv:
            make_srd(a, c.sA, pX, pX+1, 0, 2048*1280)
            a(f"""
            v_lshrrev_b32 v2, 3, v1
            v_mul_u32_u24 v2, 1280, v2
            v_lshrrev_b32 v3, 4, v1
            v_and_b32 v7, 7, v1
            v_xor_b32 v3, v3, v7
            v_lshlrev_b32 v3, 4, v3
            v_add_u32 v{c.vAe}, v2, v3
            v_xor_b32 v{c.vAo}, 64, v{c.vAe}
            s_lshl_b32 s{c.sT0}, s{c.sLw}, 5
            s_add_u32 s{c.sT0}, s{c.sT0}, s{c.sM0}
            s_mul_i32 s{c.sAoff}, s{c.sT0}, 1280
            """)
            c.A_SSTEP = 128
        else:
            make_srd(a, c.sA, pWS, pWS+1, WS_H, SZ_ACT)
            a(f"""
            v_lshlrev_b32 v{c.vAe}, 4, v1
            v_add_u32 v{c.vAo}, 1024, v{c.vAe}
            s_lshl_b32 s{c.sT0}, s{c.sLw}, 16
            s_lshl_b32 s{c.sT1}, s{c.sM0}, 4
            s_add_u32 s{c.sAoff}, s{c.sT0}, s{c.sT1}
            """)
            c.A_SSTEP = 8 * 32768
        pw = pWQ if c.qkv else pW1
        make_srd(a, c.sW, pw, pw+1, 0, 640 * c.LDW)
        a(f"""
        v_lshrrev_b32 v2, 4, v1
        v_mul_u32_u24 v3, {c.LDW}, v2
        v_lshlrev_b32 v2, 2, v2
        v_and_b32 v7, 15, v1
        v_xor_b32 v2, v2, v7
        v_lshlrev_b32 v2, 4, v2
        v_add_u32 v{c.vWo}, v2, v3
        s_lshl_b32 s{c.sT0}, s{c.sLw}, 4
        s_mul_i32 s{c.sT0}, s{c.sT0}, {c.LDW}
        s_lshl_b32 s{c.sT1}, s{c.sN0}, 1
        s_add_u32 s{c.sWoff}, s{c.sT0}, s{c.sT1}
        s_lshl_b32 s{c.sLds}, s{c.sLw}, 12
        s_mul_i32 s{c.sT0}, s{c.sSeq}, {c.A_SSTEP}
        s_add_u32 s{c.sAoff}, s{c.sAoff}, s{c.sT0}
        s_mul_i32 s{c.sT0}, s{c.sSeq}, {64 * c.LDW}
        s_add_u32 s{c.sWoff}, s{c.sWoff}, s{c.sT0}
        s_mov_b32 s{c.sSeqW}, s{c.sSeq}
        """)
    def issue_A(self, seq):
        a, c = self.a, self
        slot = (seq % 4) * 32768
        for j in range(4):
            a(f"s_add_u32 m0, s{c.sLds}, {slot}" if j == 0 else "s_add_u32 m0, m0, 1024")
            if c.qkv:
                a(f"s_mov_b32 s{c.sT0}, s{c.sAoff}" if j == 0 else f"s_add_u32 s{c.sT0}, s{c.sT0}, {8*1280}")
            else:
                if j == 0: a(f"s_mov_b32 s{c.sT0}, s{c.sAoff}")
                elif j == 2: a(f"s_add_u32 s{c.sT0}, s{c.sT0}, 32768")
                else: a("s_nop 0")
            a(f"buffer_load_dwordx4 v{c.vAe if j % 2 == 0 else c.vAo}, s[{c.sA}:{c.sA+3}], s{c.sT0} offen lds")
        a(f"""
        s_add_u32 s{c.sSeq}, s{c.sSeq}, 1
        s_cmp_eq_u32 s{c.sSeq}, {c.NST}
        s_cselect_b32 s{c.sT0}, {c.NST * c.A_SSTEP}, 0
        s_cselect_b32 s{c.sSeq}, 0, s{c.sSeq}
        s_add_u32 s{c.sAoff}, s{c.sAoff}, {c.A_SSTEP}
        s_sub_u32 s{c.sAoff}, s{c.sAoff}, s{c.sT0}
        """)
    def issue_W(self, seq):
        a, c = self.a, self
        slot = (seq % 4) * 32768 + 16384
        for j in range(4):
            a(f"s_add_u32 m0, s{c.sLds}, {slot}" if j == 0 else "s_add_u32 m0, m0, 1024")
            a(f"s_mov_b32 s{c.sT0}, s{c.sWoff}" if j == 0 else f"s_add_u32 s{c.sT0}, s{c.sT0}, {4 * c.LDW}")
            a(f"buffer_load_dwordx4 v{c.vWo}, s[{c.sW}:{c.sW+3}], s{c.sT0} offen lds")
        a(f"""
        s_add_u32 s{c.sSeqW}, s{c.sSeqW}, 1
        s_cmp_eq_u32 s{c.sSeqW}, {c.NST}
        s_cselect_b32 s{c.sT0}, {c.NST * 64 * c.LDW}, 0
        s_cselect_b32 s{c.sSeqW}, 0, s{c.sSeqW}
        s_add_u32 s{c.sWoff}, s{c.sWoff}, {64 * c.LDW}
        s_sub_u32 s{c.sWoff}, s{c.sWoff}, s{c.sT0}
        """)
    vLs = 16
    vSx, vSq, vCs, vU = 48, 56, 64, 72
    def lstats_init(self):
        a, c = self.a, self
        if not c.qkv: return
        for i in range(16): a(f"v_mov_b32 v{c.vSx + i}, 0")
        a(f"""
        v_lshlrev_b32 v8, 4, v1
        v_add_u32 v8, s{c.sLds}, v8
        v_add_u32 v9, 65536, v8
        """)
    def lstats_stage(self, seq):
        a, c = self.a, self
        if not c.qkv: return
        slot = seq % 4
        base = 8 if slot < 2 else 9
        off = (slot & 1) * 32768
        A, U = c.vLs, c.vU
        for j in range(4): a(f"ds_read_b128 {vr(A + 4*j, 4)}, v{base} offset:{off + j*1024}")
        for j in range(4):
            a(f"s_waitcnt lgkmcnt({3 - j})")
            S, Q = c.vSx + 2*j, c.vSq + 2*j
            for r in range(4):
                x = A + 4*j + r
                u = U + 2*(r & 1)
                a(f"v_lshlrev_b32 v{u}, 16, v{x}")
                a(f"v_and_b32 v{u+1}, 0xffff0000, v{x}")
                a(f"v_add_f32 v{S}, v{S}, v{u}")
                a(f"v_fmac_f32 v{Q}, v{u}, v{u}")
                a(f"v_add_f32 v{S+1}, v{S+1}, v{u+1}")
                a(f"v_fmac_f32 v{Q+1}, v{u+1}, v{u+1}")
    def lstats_finish(self):
        a, c = self.a, self
        if not c.qkv: return
        U = c.vU
        for j in range(4):
            S, Q = c.vSx + 2*j, c.vSq + 2*j
            a(f"v_add_f32 v{S}, v{S}, v{S+1}")
            a(f"v_add_f32 v{Q}, v{Q}, v{Q+1}")
        a("s_nop 1")
        for mod in ("quad_perm:[1,0,3,2]", "quad_perm:[2,3,0,1]", "row_half_mirror"):
            for j in range(4):
                S, Q = c.vSx + 2*j, c.vSq + 2*j
                a(f"v_add_f32_dpp v{S}, v{S}, v{S} {mod} row_mask:0xf bank_mask:0xf")
                a(f"v_add_f32_dpp v{Q}, v{Q}, v{Q} {mod} row_mask:0xf bank_mask:0xf")
        a("s_nop 1")
        a(f"""
        v_lshrrev_b32 v{U}, 3, v1
        v_lshlrev_b32 v{U}, 2, v{U}
        s_lshl_b32 s{c.sT0}, s{c.sLw}, 7
        s_add_u32 s{c.sT0}, s{c.sT0}, {STAT}
        v_add_u32 v{U}, s{c.sT0}, v{U}
        """)
        for j in range(4):
            S, Q = c.vSx + 2*j, c.vSq + 2*j
            a(f"""
            v_mul_f32 v{S}, {f32bits(1.0/640):#x}, v{S}
            v_mul_f32 v{Q}, {f32bits(1.0/640):#x}, v{Q}
            v_fma_f32 v{Q}, -v{S}, v{S}, v{Q}
            v_max_f32 v{Q}, 0, v{Q}
            v_add_f32 v{Q}, {f32bits(1e-5):#x}, v{Q}
            v_rsq_f32 v{Q}, v{Q}
            """)
        a("s_mov_b32 exec_lo, 0x01010101")
        a("s_mov_b32 exec_hi, 0x01010101")
        for j in range(4):
            S, Q = c.vSx + 2*j, c.vSq + 2*j
            a(f"ds_write_b32 v{U}, v{S} offset:{j*32}")
            a(f"ds_write_b32 v{U}, v{Q} offset:{512 + j*32}")
        a("s_mov_b64 exec, -1")
        a("s_waitcnt lgkmcnt(0)")
    def loader_main(self, q):
        a, c = self.a, self
        for s_ in range(c.NST):
            a(f"s_waitcnt vmcnt({q.need(f'A{s_}', f'W{s_}')}) lgkmcnt(0)")
            if getattr(c, 'ldstamps', False) and s_ in (0, 1, 2): st(a, 4 + s_)
            a("s_barrier")
            if getattr(c, 'ldstamps', False) and s_ == 0: st(a, 7)
            if s_ + PD < c.NST:
                c.issue_A(s_ + PD); q.push(f"A{s_+PD}", 4)
                c.issue_W(s_ + PD); q.push(f"W{s_+PD}", 4)
            if not E('NOLST'): c.lstats_stage(s_)
        c.lstats_finish()

    vAd, vX, vW, vAcc, vT, vSt = 24, 32, 48, 64, 128, 144
    def compute_setup(self):
        a, c = self.a, self
        NXA = 8 if c.qkv else 2
        c.NXA = NXA
        c.vXa = 4
        c.vWa = c.vXa + 2 * NXA
        vXa, vWa, vT = c.vXa, c.vWa, c.vT
        t0, t1 = vT, vT + 1
        a(f"""
        s_lshr_b32 s{c.sWm}, s{sWV}, 1
        s_and_b32 s{c.sWn}, s{sWV}, 1
        v_and_b32 v2, 31, v1
        v_lshrrev_b32 v3, 5, v1
        """)
        if c.qkv:
            a(f"""
            v_lshrrev_b32 v{t0}, 1, v1
            v_and_b32 v{t0}, 7, v{t0}
            v_xor_b32 v{t0}, v{t0}, v3
            v_lshlrev_b32 v{t0}, 4, v{t0}
            v_lshlrev_b32 v{t1}, 7, v2
            v_add_u32 v{t0}, v{t0}, v{t1}
            s_lshl_b32 s{c.sT0}, s{c.sWm}, 13
            v_add_u32 v{t0}, s{c.sT0}, v{t0}
            """)
            for s in range(4):
                a(f"v_xor_b32 v{vXa + s}, {32 * s}, v{t0}")
                a(f"v_add_u32 v{vXa + 4 + s}, 4096, v{vXa + s}")
        else:
            a(f"""
            v_lshlrev_b32 v{t0}, 11, v3
            v_lshlrev_b32 v{t1}, 4, v2
            v_add_u32 v{t0}, v{t0}, v{t1}
            s_lshl_b32 s{c.sT0}, s{c.sWm}, 10
            v_add_u32 v{vXa}, s{c.sT0}, v{t0}
            v_add_u32 v{vXa + 1}, 512, v{vXa}
            """)
        for i in range(NXA):
            a(f"v_add_u32 v{vXa + NXA + i}, 65536, v{vXa + i}")
        a(f"""
        v_lshrrev_b32 v{t0}, 2, v1
        v_and_b32 v{t0}, 3, v{t0}
        v_lshlrev_b32 v{t1}, 3, v3
        v_add_u32 v{t1}, v{t1}, v{t0}
        v_lshlrev_b32 v{t1}, 8, v{t1}
        v_lshlrev_b32 v{t0}, 6, v{t0}
        v_add_u32 v{t1}, v{t1}, v{t0}
        v_lshrrev_b32 v{t0}, 4, v1
        v_and_b32 v{t0}, 1, v{t0}
        v_lshlrev_b32 v{t0}, 5, v{t0}
        v_add_u32 v{t1}, v{t1}, v{t0}
        v_lshrrev_b32 v{t0}, 1, v1
        v_and_b32 v{t0}, 1, v{t0}
        v_lshlrev_b32 v{t0}, 4, v{t0}
        v_add_u32 v{t1}, v{t1}, v{t0}
        v_and_b32 v{t0}, 1, v1
        v_lshlrev_b32 v{t0}, 3, v{t0}
        v_add_u32 v{t1}, v{t1}, v{t0}
        v_add_u32 v{t1}, 16384, v{t1}
        s_lshl_b32 s{c.sT0}, s{c.sWn}, 7
        s_lshl_b32 s{c.sT1}, s{c.sWm}, 6
        s_add_u32 s{c.sT0}, s{c.sT0}, s{c.sT1}
        v_xor_b32 v{vWa}, s{c.sT0}, v{t1}
        v_xor_b32 v{vWa + 1}, 64, v{vWa}
        v_add_u32 v{vWa + 2}, 65536, v{vWa}
        v_add_u32 v{vWa + 3}, 65536, v{vWa + 1}
        """)
    def addr_qk(self):
        a, c = self.a, self
        vT, vAd = c.vT, c.vAd
        t0, t1 = vT, vT + 1
        a(f"""
        s_cmp_lt_u32 s{c.sNt}, 5
        s_cselect_b32 s{c.sT0}, 0, 640
        s_sub_u32 s{c.sT2}, s{c.sN0}, s{c.sT0}
        s_lshl_b32 s{c.sT1}, s{c.sWn}, 6
        s_add_u32 s{c.sT2}, s{c.sT2}, s{c.sT1}
        s_lshr_b32 s{c.sT2}, s{c.sT2}, 3
        v_add_u32 v{t0}, s{c.sT2}, v3
        v_lshlrev_b32 v{vT+4}, 4, v2
        """)
        for ft in range(2):
            for j in range(2):
                d = vAd + ft*2 + j
                a(f"""
                s_xor_b32 s{c.sT3}, s{c.sWm}, {ft}
                s_lshl_b32 s{c.sT3}, s{c.sT3}, 2
                s_add_u32 s{c.sT3}, s{c.sT3}, {2*j}
                v_add_u32 v{t1}, s{c.sT3}, v{t0}
                v_mul_u32_u24 v{vT+2}, 0xcccd, v{t1}
                v_lshrrev_b32 v{vT+2}, 18, v{vT+2}
                v_mul_u32_u24 v{vT+3}, 5, v{vT+2}
                v_sub_u32 v{vT+3}, v{t1}, v{vT+3}
                v_lshlrev_b32 v{vT+3}, 9, v{vT+3}
                v_mul_u32_u24 v{vT+2}, 0x28000, v{vT+2}
                v_add3_u32 v{d}, v{vT+2}, v{vT+3}, v{vT+4}
                """)
        a(f"""
        s_lshr_b32 s{c.sT0}, s{c.sM0}, 5
        s_lshl_b32 s{c.sT1}, s{c.sWm}, 1
        s_add_u32 s{c.sT0}, s{c.sT0}, s{c.sT1}
        s_mul_i32 s40, s{c.sT0}, 2560
        s_add_u32 s41, s40, 2560
        s_cmp_lt_u32 s{c.sNt}, 5
        s_cselect_b32 s{c.sT0}, {WS_Q}, {WS_K}
        s_add_u32 s{c.sO}, s{pWS}, s{c.sT0}
        s_addc_u32 s{c.sO+1}, s{pWS+1}, 0
        s_and_b32 s{c.sO+1}, s{c.sO+1}, 0xffff
        s_mov_b32 s{c.sO+2}, {SZ_QK}
        s_mov_b32 s{c.sO+3}, 0x20000
        """)
    def addr_f(self):
        a, c = self.a, self
        vT, vAd = c.vT, c.vAd
        t0, t1 = vT, vT + 1
        a(f"""
        s_lshl_b32 s{c.sT1}, s{c.sWn}, 6
        s_add_u32 s{c.sT2}, s{c.sN0}, s{c.sT1}
        s_lshr_b32 s{c.sT2}, s{c.sT2}, 3
        v_add_u32 v{t0}, s{c.sT2}, v3
        v_lshlrev_b32 v{t0}, 15, v{t0}
        v_lshlrev_b32 v{t1}, 4, v2
        v_add_u32 v{t0}, v{t0}, v{t1}
        """)
        for ft in range(2):
            for j in range(2):
                a(f"s_xor_b32 s{c.sT3}, s{c.sWm}, {ft}")
                a(f"s_lshl_b32 s{c.sT3}, s{c.sT3}, 2")
                a(f"s_add_u32 s{c.sT3}, s{c.sT3}, {2*j}")
                a(f"s_lshl_b32 s{c.sT3}, s{c.sT3}, 15")
                a(f"v_add_u32 v{vAd + ft*2 + j}, s{c.sT3}, v{t0}")
        a(f"""
        s_lshl_b32 s{c.sT1}, s{c.sWm}, 6
        s_add_u32 s{c.sT0}, s{c.sM0}, s{c.sT1}
        s_lshl_b32 s40, s{c.sT0}, 4
        s_add_u32 s41, s40, 512
        """)
        make_srd(a, c.sO, pWS, pWS+1, WS_F, SZ_F)
    def addr_v(self):
        a, c = self.a, self
        vT, vAd = c.vT, c.vAd
        t0, t1 = vT, vT + 1
        for ft in range(2):
            a(f"""
            s_lshl_b32 s{c.sT1}, s{c.sWn}, 6
            s_add_u32 s{c.sT0}, s{c.sN0}, s{c.sT1}
            s_xor_b32 s{c.sT1}, s{c.sWm}, {ft}
            s_lshl_b32 s{c.sT1}, s{c.sT1}, 5
            s_add_u32 s{c.sT0}, s{c.sT0}, s{c.sT1}
            s_sub_u32 s{c.sT0}, s{c.sT0}, 1280
            v_add_u32 v{t0}, s{c.sT0}, v2
            v_mul_u32_u24 v{t1}, 0xcccd, v{t0}
            v_lshrrev_b32 v{t1}, 20, v{t1}
            v_mul_u32_u24 v{vT+2}, 20, v{t1}
            v_sub_u32 v{t0}, v{t0}, v{vT+2}
            v_lshlrev_b32 v{t0}, 4, v{t0}
            v_mul_u32_u24 v{t1}, 0x14000, v{t1}
            v_add_u32 v{t0}, v{t0}, v{t1}
            v_mul_u32_u24 v{t1}, 320, v3
            v_add_u32 v{vAd+ft}, v{t0}, v{t1}
            """)
        a(f"""
        s_lshl_b32 s{c.sT1}, s{c.sWm}, 6
        s_add_u32 s{c.sT0}, s{c.sM0}, s{c.sT1}
        s_lshr_b32 s{c.sT0}, s{c.sT0}, 4
        s_mul_i32 s40, s{c.sT0}, 640
        s_add_u32 s41, s40, 640
        s_add_u32 s42, s40, 1280
        s_add_u32 s43, s40, 1920
        """)
        make_srd(a, c.sO, pWS, pWS+1, WS_V, SZ_QKV)
    def stats_poll_issue(self):
        a, c = self.a, self
        vS = c.vSt
        a(f"""
        v_lshlrev_b32 v{vS+30}, 7, v1
        v_add_u32 v{vS+30}, {WS_CNT + (C_P0 if c.qkv else C_W1)*128}, v{vS+30}
        s_mov_b64 exec, 0xff
        buffer_load_dword v{vS+29}, v{vS+30}, s[{sWS}:{sWS+3}], 0 offen sc1
        s_mov_b64 exec, -1
        """)
    def stats_poll_check(self):
        a, c = self.a, self
        vS = c.vSt
        ok = a.newlabel("stok")
        a(f"""
        s_waitcnt vmcnt(0)
        s_mov_b64 exec, 0xff
        v_cmp_gt_u32 vcc, 128, v{vS+29}
        s_nop 4
        s_cmp_eq_u64 vcc, 0
        s_cbranch_scc1 {ok}
        v_mov_b32 v{vS+28}, 128
        """)
        poll(a, vS + 30, vS + 28, 8, vS + 29)
        a.label(ok)
        a("s_mov_b64 exec, -1")
        a("s_nop 3")
    def stats_issue(self):
        a, c = self.a, self
        vS = c.vSt
        a(f"""
        v_lshlrev_b32 v{vS+31}, 2, v2
        v_lshlrev_b32 v{vS+30}, 3, v2
        s_lshl_b32 s{c.sT0}, s{sWV}, 5
        s_add_u32 s{c.sT1}, s{c.sT0}, s{c.sM0}
        s_lshl_b32 s{c.sT1}, s{c.sT1}, 3
        s_add_u32 s{c.sT1}, s{c.sT1}, {WS_ST2}
        """)
        for j in range(8):
            a(f"buffer_load_dwordx2 {vr(vS+8+2*j,2)}, v{vS+30}, s[{sWS}:{sWS+3}], s{c.sT1} offen")
            if j < 7: a(f"s_add_u32 s{c.sT1}, s{c.sT1}, {2048*8}")
    def stats_finish(self):
        a, c = self.a, self
        vS = c.vSt
        a("s_waitcnt vmcnt(0)")
        S, Q = vS + 8, vS + 9
        for j in range(1, 8):
            a(f"v_add_f32 v{S}, v{S}, v{S+2*j}")
            a(f"v_add_f32 v{Q}, v{Q}, v{Q+2*j}")
        a(f"""
        v_mul_f32 v{S}, {f32bits(1.0/640):#x}, v{S}
        v_mul_f32 v{Q}, {f32bits(1.0/640):#x}, v{Q}
        v_fma_f32 v{Q}, -v{S}, v{S}, v{Q}
        v_max_f32 v{Q}, 0, v{Q}
        v_add_f32 v{Q}, {f32bits(1e-5):#x}, v{Q}
        v_rsq_f32 v{Q}, v{Q}
        s_lshl_b32 s{c.sT0}, s{sWV}, 7
        s_add_u32 s{c.sT0}, s{c.sT0}, {STAT}
        v_add_u32 v{vS+31}, s{c.sT0}, v{vS+31}
        ds_write_b32 v{vS+31}, v{S}
        ds_write_b32 v{vS+31}, v{Q} offset:512
        """)
    def reads(self, i):
        a, c = self.a, self
        st_, step, buf = i // 4, i % 4, i & 1
        slot = st_ % 4
        win, base = slot >> 1, (slot & 1) * 32768
        for lt in range(2):
            if c.qkv:
                a(f"ds_read_b128 {vr(c.vX + buf*8 + lt*4, 4)}, v{c.vXa + win*8 + lt*4 + step} offset:{base}")
            else:
                a(f"ds_read_b128 {vr(c.vX + buf*8 + lt*4, 4)}, v{c.vXa + win*2 + lt} offset:{base + step*4096}")
        for lf in range(2):
            for h2 in range(2):
                a(f"ds_read_b64_tr_b16 {vr(c.vW + buf*8 + lf*4 + h2*2, 2)}, v{c.vWa + win*2 + lf} offset:{base + step*4096 + h2*1024}")
    def mfma(self, i, k, orientY):
        a, c = self.a, self
        buf = i & 1
        lf, lt = k >> 1, k & 1
        acc = c.vAcc + (lf*2 + lt) * 16
        xa, wa = vr(c.vX + buf*8 + lt*4, 4), vr(c.vW + buf*8 + lf*4, 4)
        cc = "0" if i == 0 else vr(acc, 16)
        if orientY: a(f"v_mfma_f32_32x32x16_bf16 {vr(acc,16)}, {wa}, {xa}, {cc}")
        else: a(f"v_mfma_f32_32x32x16_bf16 {vr(acc,16)}, {xa}, {wa}, {cc}")
    def mainloop(self, orientY, stamp0=None, tag='q'):
        a, c = self.a, self
        vS = c.vSt
        C0, C1, U = vS, vS + 1, vS + 2
        a(f"v_mov_b32 v{C0}, 0")
        a(f"v_mov_b32 v{C1}, 0")
        a("s_barrier")
        if stamp0 is not None: st(a, stamp0)
        stx(a, tag + '_s0')
        c.reads(0)
        for i in range(40):
            if i == 4: stx(a, tag + '_s1')
            if i == 20: stx(a, tag + '_s5')
            buf = i & 1
            ops = []
            for r in range(4):
                x = c.vW + buf*8 + r
                u = U + 2*(r & 1)
                ops += [f"v_lshlrev_b32 v{u}, 16, v{x}", f"v_and_b32 v{u+1}, 0xffff0000, v{x}",
                        f"v_add_f32 v{C0}, v{C0}, v{u}", f"v_add_f32 v{C1}, v{C1}, v{u+1}"]
            a("s_waitcnt lgkmcnt(0)")
            c.mfma(i, 0, orientY)
            if i + 1 < 40:
                if (i + 1) % 4 == 0: a("s_barrier")
                c.reads(i + 1)
            c.mfma(i, 1, orientY)
            if c.qkv:
                if i == 4: wave_only(a, 2, lambda: reg_step1(a, c.vSt + 26))
                if i == 8: wave_only(a, 2, lambda: reg_step2(a, c.vSt + 26))
                if i == 16: wave_only(a, 2, lambda: reg_step3(a, c.vSt + 26))
                if i == 20: wave_only(a, 0, lambda: a(f"buffer_load_dword v{c.vSt+26}, v{c.vSt+27}, s[44:47], 0 offen sc1"))
            else:
                if i == 0: c.stats_issue()
                if i == 20: c.stats_finish()
            if E('NOCS'): ops = []
            for o in ops[0:5]: a(o)
            c.mfma(i, 2, orientY)
            for o in ops[5:10]: a(o)
            c.mfma(i, 3, orientY)
            for o in ops[10:16]: a(o)
        a(f"""
        v_add_f32 v{C0}, v{C0}, v{C1}
        s_nop 0
        v_mov_b32 v{C1}, v{C0}
        s_nop 1
        v_permlane32_swap_b32 v{C0}, v{C1}
        s_nop 1
        v_add_f32 v{C0}, v{C0}, v{C1}
        s_lshl_b32 s{c.sT0}, s{c.sWn}, 8
        s_lshl_b32 s{c.sT1}, s{c.sWm}, 7
        s_add_u32 s{c.sT0}, s{c.sT0}, s{c.sT1}
        s_add_u32 s{c.sT0}, s{c.sT0}, {STAT + 1024}
        v_lshlrev_b32 v{U}, 2, v2
        v_add_u32 v{U}, s{c.sT0}, v{U}
        ds_write_b32 v{U}, v{C0}
        s_waitcnt lgkmcnt(0)
        """)
    def dbg_issue(self):
        a, c = self.a, self
        make_srd(a, 44, pDBG, pDBG+1, 0, 256)
        a(f"v_lshlrev_b32 v{c.vSt+27}, 2, v1")
        a("s_mov_b64 exec, 0x1ff")
        a(f"buffer_load_dword v{c.vSt+26}, v{c.vSt+27}, s[44:47], 0 offen sc1")
        a("s_mov_b64 exec, -1")
        a("s_nop 1")
    def epilogue_Y(self, kind):
        a, c = self.a, self
        vT, vAcc, vAd = c.vT, c.vAcc, c.vAd
        vM, vR, vC = vT, vT + 2, 32
        for lt in range(2):
            a(f"""
            s_lshl_b32 s{c.sT1}, s{c.sWm}, 8
            s_add_u32 s{c.sT0}, s{c.sT1}, {STAT + lt*128}
            v_lshlrev_b32 v{vT+4}, 2, v2
            v_add_u32 v{vT+4}, s{c.sT0}, v{vT+4}
            ds_read_b32 v{vM + lt}, v{vT+4}
            ds_read_b32 v{vR + lt}, v{vT+4} offset:512
            """)
        for lf in range(2):
            a(f"""
            s_lshl_b32 s{c.sT1}, s{c.sWn}, 8
            s_add_u32 s{c.sT0}, s{c.sT1}, {STAT + 1024}
            s_xor_b32 s{c.sT1}, s{c.sWm}, {lf}
            s_lshl_b32 s{c.sT1}, s{c.sT1}, 7
            s_add_u32 s{c.sT0}, s{c.sT0}, s{c.sT1}
            v_lshlrev_b32 v{vT+4}, 4, v3
            v_add_u32 v{vT+4}, s{c.sT0}, v{vT+4}
            """)
            for q in range(4):
                a(f"ds_read_b128 {vr(vC + lf*16 + q*4, 4)}, v{vT+4} offset:{q*32}")
        a("s_waitcnt lgkmcnt(0)")
        if kind == 'qk':
            a(f"""
            s_cmp_lt_u32 s{c.sNt}, 5
            s_cselect_b32 s{c.sT0}, {f32bits(QSCALE):#x}, 1.0
            v_mul_f32 v{vR}, s{c.sT0}, v{vR}
            v_mul_f32 v{vR+1}, s{c.sT0}, v{vR+1}
            """)
        vP = vT + 8
        n = 0
        for lf in range(2):
            for lt in range(2):
                acc = vAcc + (lf*2 + lt) * 16
                for r in range(16):
                    a(f"v_fma_f32 v{acc + r}, -v{vM + lt}, v{vC + lf*16 + r}, v{acc + r}")
                for r in range(16):
                    a(f"v_mul_f32 v{acc + r}, v{acc + r}, v{vR + lt}")
                if kind == 'ffn1':
                    for r in range(16):
                        a(f"v_max_f32 v{acc + r}, 0, v{acc + r}")
                for j in range(2):
                    p = vP + (n & 1) * 4
                    n += 1
                    q0 = acc + j*8
                    a(f"v_cvt_pk_bf16_f32 v{p}, v{q0}, v{q0+1}")
                    a(f"v_cvt_pk_bf16_f32 v{p+1}, v{q0+2}, v{q0+3}")
                    a(f"v_cvt_pk_bf16_f32 v{p+2}, v{q0+4}, v{q0+5}")
                    a(f"v_cvt_pk_bf16_f32 v{p+3}, v{q0+6}, v{q0+7}")
                    a("s_nop 1")
                    a(f"v_permlane32_swap_b32 v{p}, v{p+2}")
                    a(f"v_permlane32_swap_b32 v{p+1}, v{p+3}")
                    ins = f"buffer_store_dwordx4 {vr(p,4)}, v{vAd + lf*2 + j}, s[{c.sO}:{c.sO+3}], s{40 + lt} offen @SC"
                    if kind == 'ffn1': dual(a, [ins])
                    else: a(ins.replace("@SC", SC))
    def epilogue_X(self):
        a, c = self.a, self
        vT, vAcc, vAd = c.vT, c.vAcc, c.vAd
        vC, vM, vR = vT, 32, 48
        for lf in range(2):
            a(f"""
            s_lshl_b32 s{c.sT1}, s{c.sWn}, 8
            s_add_u32 s{c.sT0}, s{c.sT1}, {STAT + 1024}
            s_xor_b32 s{c.sT1}, s{c.sWm}, {lf}
            s_lshl_b32 s{c.sT1}, s{c.sT1}, 7
            s_add_u32 s{c.sT0}, s{c.sT0}, s{c.sT1}
            v_lshlrev_b32 v{vT+4}, 2, v2
            v_add_u32 v{vT+4}, s{c.sT0}, v{vT+4}
            ds_read_b32 v{vC + lf}, v{vT+4}
            """)
        vP = vT + 8
        n = 0
        for lt in range(2):
            a(f"""
            s_lshl_b32 s{c.sT1}, s{c.sWm}, 8
            s_add_u32 s{c.sT0}, s{c.sT1}, {STAT + lt*128}
            v_lshlrev_b32 v{vT+4}, 4, v3
            v_add_u32 v{vT+4}, s{c.sT0}, v{vT+4}
            """)
            for q in range(4):
                a(f"ds_read_b128 {vr(vM + q*4, 4)}, v{vT+4} offset:{q*32}")
                a(f"ds_read_b128 {vr(vR + q*4, 4)}, v{vT+4} offset:{512 + q*32}")
            a("s_waitcnt lgkmcnt(0)")
            for lf in range(2):
                acc = vAcc + (lf*2 + lt) * 16
                for r in range(16):
                    a(f"v_fma_f32 v{acc + r}, -v{vM + r}, v{vC + lf}, v{acc + r}")
                for r in range(16):
                    a(f"v_mul_f32 v{acc + r}, v{acc + r}, v{vR + r}")
                for g in range(2):
                    p = vP + (n & 1) * 4
                    n += 1
                    for r in range(4):
                        a(f"v_cvt_pk_bf16_f32 v{p + r}, v{acc + g*8 + 2*r}, v{acc + g*8 + 2*r + 1}")
                    a(f"buffer_store_dwordx4 {vr(p,4)}, v{vAd + lf}, s[{c.sO}:{c.sO+3}], s{40 + lt*2 + g} offen {SC}")

STG = 36864
class CoreS:
    sA, sO, sR = 8, 16, 40
    sM0, sN0, sT0, sT1, sT2, sNt = 21, 22, 23, 24, 25, 26
    sLw, sAoff, sWoff, sLdsA, sLdsW, sSeq, sSeqW = 20, 29, 30, 31, 32, 33, 34
    vA = 4
    def __init__(self, a, mode):
        self.a, self.mode = a, mode
        self.op = mode == 'oproj'
        self.NST = 5 if self.op else 14
    def map_tiles(self):
        a, c = self.a, self
        NST = c.NST
        a(f"""
        s_and_b32 s{c.sT0}, s{sRk}, 3
        s_lshl_b32 s{c.sM0}, s{sX}, 2
        s_add_u32 s{c.sM0}, s{c.sM0}, s{c.sT0}
        s_lshl_b32 s{c.sM0}, s{c.sM0}, 6
        s_lshr_b32 s{c.sNt}, s{sRk}, 2
        s_mul_i32 s{c.sN0}, s{c.sNt}, 80
        s_mul_i32 s{c.sSeq}, s{c.sT0}, {1 if c.op else 3}
        s_mul_i32 s{c.sT1}, s{c.sNt}, {1 if c.op else 2}
        s_add_u32 s{c.sSeq}, s{c.sSeq}, s{c.sT1}
        s_cmp_ge_u32 s{c.sSeq}, {NST}
        s_cselect_b32 s{c.sT1}, {NST}, 0
        s_sub_u32 s{c.sSeq}, s{c.sSeq}, s{c.sT1}
        s_cmp_ge_u32 s{c.sSeq}, {NST}
        s_cselect_b32 s{c.sT1}, {NST}, 0
        s_sub_u32 s{c.sSeq}, s{c.sSeq}, s{c.sT1}
        """)
        if not E('ROTS'): a(f"s_mov_b32 s{c.sSeq}, 0")
    def loader_setup(self):
        a, c = self.a, self
        if c.op: make_srd(a, c.sA, pWS, pWS+1, WS_O, SZ_ACT)
        else: make_srd(a, c.sA, pWS, pWS+1, WS_F, SZ_F)
        a(f"""
        s_sub_u32 s{c.sLw}, s{sWV}, 4
        v_lshlrev_b32 v{c.vA}, 4, v1
        s_lshl_b32 s{c.sT0}, s{c.sLw}, 17
        s_lshl_b32 s{c.sT1}, s{c.sM0}, 4
        s_add_u32 s{c.sAoff}, s{c.sT0}, s{c.sT1}
        s_mul_i32 s{c.sT0}, s{c.sLw}, 5120
        s_mul_i32 s{c.sT1}, s{c.sNt}, {c.NST * 20480}
        s_add_u32 s{c.sWoff}, s{c.sT0}, s{c.sT1}
        s_add_u32 s{c.sWoff}, s{c.sWoff}, {WS_WOP if c.op else WS_W2P}
        s_lshl_b32 s{c.sLdsA}, s{c.sLw}, 12
        s_add_u32 s{c.sLdsW}, s{c.sT0}, 16384
        s_mul_i32 s{c.sT0}, s{c.sSeq}, {16 * 32768}
        s_add_u32 s{c.sAoff}, s{c.sAoff}, s{c.sT0}
        s_mul_i32 s{c.sT0}, s{c.sSeq}, 20480
        s_add_u32 s{c.sWoff}, s{c.sWoff}, s{c.sT0}
        s_mov_b32 s{c.sSeqW}, s{c.sSeq}
        """)
    def issue_A(self, seq):
        a, c = self.a, self
        slot = (seq % 4) * STG
        for j in range(4):
            a(f"s_add_u32 m0, s{c.sLdsA}, {slot}" if j == 0 else "s_add_u32 m0, m0, 1024")
            a(f"s_mov_b32 s{c.sT0}, s{c.sAoff}" if j == 0 else f"s_add_u32 s{c.sT0}, s{c.sT0}, 32768")
            a(f"buffer_load_dwordx4 v{c.vA}, s[{c.sA}:{c.sA+3}], s{c.sT0} offen lds")
        a(f"""
        s_add_u32 s{c.sSeq}, s{c.sSeq}, 1
        s_cmp_eq_u32 s{c.sSeq}, {c.NST}
        s_cselect_b32 s{c.sT0}, {c.NST * 16 * 32768}, 0
        s_cselect_b32 s{c.sSeq}, 0, s{c.sSeq}
        s_add_u32 s{c.sAoff}, s{c.sAoff}, {16 * 32768}
        s_sub_u32 s{c.sAoff}, s{c.sAoff}, s{c.sT0}
        """)
    def issue_W(self, seq):
        a, c = self.a, self
        slot = (seq % 4) * STG
        a(f"s_add_u32 m0, s{c.sLdsW}, {slot}")
        a(f"s_add_u32 s{c.sT0}, s{c.sWoff}, 4096")
        for j in range(4):
            a(f"buffer_load_dwordx4 v{c.vA}, s[{sWS}:{sWS+3}], s{c.sWoff} offen offset:{j*1024} lds")
        a("s_add_u32 m0, m0, 4096")
        a(f"s_add_u32 s{c.sSeqW}, s{c.sSeqW}, 1")
        a(f"buffer_load_dwordx4 v{c.vA}, s[{sWS}:{sWS+3}], s{c.sT0} offen lds")
        a(f"""
        s_cmp_eq_u32 s{c.sSeqW}, {c.NST}
        s_cselect_b32 s{c.sT0}, {c.NST * 20480}, 0
        s_cselect_b32 s{c.sSeqW}, 0, s{c.sSeqW}
        s_add_u32 s{c.sWoff}, s{c.sWoff}, 20480
        s_sub_u32 s{c.sWoff}, s{c.sWoff}, s{c.sT0}
        """)
    def loader_main(self, q):
        a, c = self.a, self
        for s_ in range(c.NST):
            a(f"s_waitcnt vmcnt({q.need(f'A{s_}', f'W{s_}')})")
            a("s_barrier")
            if s_ + PD < c.NST:
                c.issue_A(s_ + PD); q.push(f"A{s_+PD}", 4)
                c.issue_W(s_ + PD); q.push(f"W{s_+PD}", 5)
    vXb, vWb, vXa, vWa, vX, vW, vRes, vT = 4, 5, 6, 7, 8, 40, 80, 90
    def compute_setup(self):
        a, c = self.a, self
        vT = c.vT
        a(f"""
        v_and_b32 v2, 15, v1
        v_lshrrev_b32 v3, 4, v1
        s_lshl_b32 s{c.sT0}, s{sWV}, 4
        s_add_u32 s{c.sT0}, s{c.sT0}, s{c.sM0}
        v_add_u32 v{vT}, s{c.sT0}, v2
        v_mul_u32_u24 v{vT+1}, 1280, v{vT}
        v_lshlrev_b32 v{vT+3}, 3, v3
        v_add_u32 v{vT+1}, v{vT+1}, v{vT+3}
        s_lshl_b32 s{c.sT0}, s{c.sN0}, 1
        v_add_u32 v{vT+1}, s{c.sT0}, v{vT+1}
        v_lshrrev_b32 v{vT+3}, 1, v3
        v_lshlrev_b32 v{vT+3}, 15, v{vT+3}
        v_lshlrev_b32 v{vT+2}, 4, v{vT}
        v_add_u32 v{vT+2}, v{vT+2}, v{vT+3}
        v_and_b32 v{vT+3}, 1, v3
        v_lshlrev_b32 v{vT+3}, 3, v{vT+3}
        v_add_u32 v{vT+2}, v{vT+2}, v{vT+3}
        s_lshl_b32 s{c.sT0}, s{c.sN0}, 12
        v_add_u32 v{vT+2}, s{c.sT0}, v{vT+2}
        s_lshl_b32 s{c.sT0}, s{sWV}, 8
        v_lshlrev_b32 v{c.vXb}, 10, v3
        v_lshlrev_b32 v{vT+3}, 4, v2
        v_add_u32 v{c.vXb}, v{c.vXb}, v{vT+3}
        v_add_u32 v{c.vXb}, s{c.sT0}, v{c.vXb}
        v_lshrrev_b32 v{vT+3}, 1, v3
        v_lshlrev_b32 v{vT+3}, 4, v{vT+3}
        v_and_b32 v{vT+4}, 1, v3
        v_lshlrev_b32 v{vT+4}, 2, v{vT+4}
        v_add_u32 v{vT+3}, v{vT+3}, v{vT+4}
        v_lshrrev_b32 v{vT+4}, 2, v2
        v_add_u32 v{vT+3}, v{vT+3}, v{vT+4}
        v_mul_u32_u24 v{vT+3}, 160, v{vT+3}
        v_and_b32 v{vT+4}, 3, v1
        v_lshlrev_b32 v{vT+4}, 3, v{vT+4}
        v_add_u32 v{vT+3}, v{vT+3}, v{vT+4}
        v_add_u32 v{c.vWb}, 16384, v{vT+3}
        """)
        if c.op:
            make_srd(a, c.sR, pX, pX+1, 0, 2048 * 1280)
            make_srd(a, c.sO, pWS, pWS+1, WS_H, SZ_ACT)
        else:
            make_srd(a, c.sR, pWS, pWS+1, WS_H, SZ_ACT)
            make_srd(a, c.sO, pOUT, pOUT+1, 0, 2048 * 1280)
    def pretouch(self):
        a, c = self.a, self
        vT = c.vT
        if not c.op or not E('PRET'): return
        for T in range(5):
            a(f"s_mov_b32 s{c.sT0}, {T * 65536}")
            a(f"buffer_load_dword v{vT+5}, v{vT+2}, s[{c.sO}:{c.sO+3}], s{c.sT0} offen sc1")
        a(f"""
        s_lshl_b32 s{c.sT0}, s{c.sNt}, 14
        s_add_u32 s{c.sT0}, s{c.sT0}, {WS_ST2}
        v_lshlrev_b32 v{vT+4}, 3, v{vT}
        buffer_load_dword v{vT+5}, v{vT+4}, s[{sWS}:{sWS+3}], s{c.sT0} offen sc1
        """)
    def residual_loads(self):
        a, c = self.a, self
        vT = c.vT
        for T in range(5):
            if c.op:
                a(f"buffer_load_dwordx2 {vr(c.vRes + 2*T, 2)}, v{vT+1}, s[{c.sR}:{c.sR+3}], 0 offen offset:{32*T}")
            else:
                a(f"s_mov_b32 s{c.sT0}, {T * 65536}")
                a(f"buffer_load_dwordx2 {vr(c.vRes + 2*T, 2)}, v{vT+2}, s[{c.sR}:{c.sR+3}], s{c.sT0} offen")
    def mainloop(self, stamp0=None, tag=''):
        a, c = self.a, self
        N = c.NST * 4
        def reads(i):
            st_, k, buf = i // 4, i % 4, i & 1
            a(f"ds_read_b128 {vr(c.vX + buf*4, 4)}, v{c.vXa} offset:{k*4096}")
            for T in range(5):
                for h2 in range(2):
                    a(f"ds_read_b64_tr_b16 {vr(c.vW + buf*20 + T*4 + h2*2, 2)}, v{c.vWa} offset:{k*5120 + h2*1280 + T*32}")
        def setaddr(st_):
            slot = (st_ % 4) * STG
            a(f"v_add_u32 v{c.vXa}, {slot}, v{c.vXb}")
            a(f"v_add_u32 v{c.vWa}, {slot}, v{c.vWb}")
        a("s_barrier")
        stx(a, tag + '_s0')
        setaddr(0)
        reads(0)
        for i in range(N):
            buf = i & 1
            a("s_waitcnt lgkmcnt(0)")
            for T in range(5):
                acc = 96 + T*4
                cc = "0" if i == 0 else vr(acc, 4)
                a(f"v_mfma_f32_16x16x32_bf16 {vr(acc,4)}, {vr(c.vW + buf*20 + T*4, 4)}, {vr(c.vX + buf*4, 4)}, {cc}")
                if T == 0 and i + 1 < N:
                    if (i + 1) % 4 == 0:
                        a("s_barrier")
                        if (i + 1) // 4 == 1: stx(a, tag + '_s1')
                        if (i + 1) // 4 == 4: stx(a, tag + '_s4')
                        setaddr((i + 1) // 4)
                    reads(i + 1)
        a("s_nop 7")
    def reduce(self):
        pass
    def epilogue(self):
        a, c = self.a, self
        vT, vRes = c.vT, c.vRes
        a("s_waitcnt vmcnt(0)")
        for T in range(5):
            rr = vRes + 2*T
            a(f"""
            v_lshlrev_b32 v8, 16, v{rr}
            v_and_b32 v9, 0xffff0000, v{rr}
            v_lshlrev_b32 v10, 16, v{rr+1}
            v_and_b32 v11, 0xffff0000, v{rr+1}
            """)
            for r in range(4):
                d = 96 + T*4 + r
                a(f"v_add_f32 v{d}, v{d}, v{8+r}")
            d = 96 + T*4
            a(f"v_cvt_pk_bf16_f32 v{12 + 2*T}, v{d}, v{d+1}")
            a(f"v_cvt_pk_bf16_f32 v{13 + 2*T}, v{d+2}, v{d+3}")
            if c.op:
                a(f"s_mov_b32 s{c.sT0}, {T * 65536}")
                dual(a, [f"buffer_store_dwordx2 {vr(12 + 2*T, 2)}, v{vT+2}, s[{c.sO}:{c.sO+3}], s{c.sT0} offen @SC"])
            else:
                a(f"buffer_store_dwordx2 {vr(12 + 2*T, 2)}, v{vT+1}, s[{c.sO}:{c.sO+3}], 0 offen offset:{32*T}")
        if c.op:
            for T in range(5):
                for d in range(2):
                    r = 12 + 2*T + d
                    a(f"v_lshlrev_b32 v8, 16, v{r}")
                    a(f"v_and_b32 v9, 0xffff0000, v{r}")
                    if T == 0 and d == 0:
                        a("v_add_f32 v30, v8, v9")
                        a("v_mul_f32 v31, v8, v8")
                    else:
                        a("v_add_f32 v30, v30, v8")
                        a("v_add_f32 v30, v30, v9")
                        a("v_fmac_f32 v31, v8, v8")
                    a("v_fmac_f32 v31, v9, v9")
            a(f"""
            v_mov_b32 v32, v30
            v_mov_b32 v33, v31
            s_nop 1
            v_permlane32_swap_b32 v30, v32
            v_permlane32_swap_b32 v31, v33
            s_nop 1
            v_add_f32 v30, v30, v32
            v_add_f32 v31, v31, v33
            s_nop 0
            v_mov_b32 v32, v30
            v_mov_b32 v33, v31
            s_nop 1
            v_permlane16_swap_b32 v30, v32
            v_permlane16_swap_b32 v31, v33
            s_nop 1
            v_add_f32 v30, v30, v32
            v_add_f32 v31, v31, v33
            s_lshl_b32 s{c.sT0}, s{c.sNt}, 14
            s_add_u32 s{c.sT0}, s{c.sT0}, {WS_ST2}
            v_lshlrev_b32 v32, 3, v{vT}
            s_mov_b64 exec, 0xffff
            """)
            if not E('NOST2'): dual(a, [f"buffer_store_dwordx2 v[30:31], v32, s[{sWS}:{sWS+3}], s{c.sT0} offen @SC"])
            a("s_mov_b64 exec, -1")

KT = 1536
SLOT = 8 * KT + 16384
VOFF = 8 * KT
NSLOT = 5
FLAG = NSLOT * SLOT

def emit_attention(a, after_stores):
    name = "att"
    sK, sV, sQ, sO = 8, 12, 16, 20
    sHead, sQt, sT0, sT1, sT2 = 25, 26, 27, 28, 29
    sChunk, sSlotN, sPass, sKoff, sVoff, sKh = 30, 31, 32, 33, 34, 35
    sVmask = 38
    sSlotW, sE, sQg, sQb = 40, 41, 42, 43
    vL16, vVoff = 2, 3
    vA3 = [[4, 5, 6], [7, 8, 9], [172, 173, 174]]
    vQ, vQr, vNC, vS, vP, vKb, vKr, vV, vO, vT = 10, 18, 22, 54, 86, 94, 102, 110, 126, 158
    lane_id(a, 0)
    lane_id(a, 1)
    a(f"""
    v_mov_b32 v4, {ROLE}
    ds_read_b96 v[6:8], v4
    s_waitcnt lgkmcnt(0)
    v_readfirstlane_b32 s{sX}, v6
    v_readfirstlane_b32 s{sRk}, v7
    v_readfirstlane_b32 s{sLoc}, v8
    s_and_b32 s{sT0}, s2, 7
    s_lshr_b32 s{sT1}, s2, 3
    s_cmp_eq_u32 s{sLoc}, 0
    s_cselect_b32 s{sX}, s{sT0}, s{sX}
    s_cselect_b32 s{sRk}, s{sT1}, s{sRk}
    """)
    a(f"""
    s_mov_b32 s{sHead}, s{sRk}
    s_mov_b32 s{sQb}, s{sX}
    s_lshl_b32 s{sQt}, s{sQb}, 3
    s_mov_b32 s{sVmask}, 0x000fffff
    s_mov_b32 s{sVmask+1}, 0x000fffff
    s_mov_b32 s{sPass}, 0
    s_and_b32 s{sE}, s{sHead}, 1
    s_lshr_b32 s{sKh}, s{sWV}, 2
    s_and_b32 s{sQg}, s{sWV}, 3
    v_lshlrev_b32 v{vL16}, 4, v0
    v_and_b32 v{vT}, 31, v0
    v_lshrrev_b32 v{vT+1}, 5, v0
    v_mul_u32_u24 v{vVoff}, 320, v{vT+1}
    v_lshlrev_b32 v{vT+2}, 4, v{vT}
    v_add_u32 v{vVoff}, v{vVoff}, v{vT+2}
    """)
    make_srd(a, sK, pWS, pWS+1, WS_K, SZ_QK)
    make_srd(a, sV, pWS, pWS+1, WS_V, SZ_QKV)
    make_srd(a, sQ, pWS, pWS+1, WS_Q, SZ_QK)
    make_srd(a, sO, pWS, pWS+1, WS_O, SZ_ACT)
    a(f"""
    v_mov_b32 v{vT+4}, 0
    v_mov_b32 v{vT+3}, 0x3f803f80
    v_cmp_eq_u32 vcc, 20, v{vT}
    s_lshl_b32 s{sT0}, s{sWV}, 11
    s_add_u32 s{sT0}, s{sT0}, {VOFF}
    v_cndmask_b32 v{vT+4}, v{vT+4}, v{vT+3}, vcc
    v_add_u32 v{vT+3}, s{sT0}, v{vL16}
    v_mov_b32 v{vT+5}, v{vT+4}
    v_mov_b32 v{vT+6}, v{vT+4}
    v_mov_b32 v{vT+7}, v{vT+4}
    s_not_b64 exec, s[{sVmask}:{sVmask+1}]
    """)
    base = 0
    for sl in range(NSLOT):
        for j in range(2):
            off = sl * SLOT + j * 1024
            if off - base >= 65536 - 1024:
                a(f"v_add_u32 v{vT+3}, {sl*SLOT - base}, v{vT+3}")
                base = sl * SLOT
            a(f"ds_write_b128 v{vT+3}, {vr(vT+4,4)} offset:{off - base}")
    a(f"""
    s_mov_b64 exec, -1
    v_mov_b32 v{vT+3}, {FLAG}
    v_mov_b32 v{vT+4}, 0
    ds_write_b32 v{vT+3}, v{vT+4}
    """)
    lw = a.newlabel("attw")
    a(f"""
    s_cmp_eq_u32 s{sWV}, 0
    s_cbranch_scc0 {lw}
    s_mul_i32 s{sT0}, s{sHead}, 20
    s_lshr_b32 s{sT1}, s{sT0}, 7
    s_add_u32 s{sT0}, s{sT0}, 19
    s_lshr_b32 s{sT0}, s{sT0}, 7
    v_and_b32 v{vT+3}, 1, v0
    v_mov_b32 v{vT+4}, s{sT1}
    v_mov_b32 v{vT+5}, s{sT0}
    v_cmp_eq_u32 vcc, 1, v{vT+3}
    v_lshrrev_b32 v{vT+6}, 1, v0
    v_mul_u32_u24 v{vT+6}, 5, v{vT+6}
    v_cndmask_b32 v{vT+4}, v{vT+4}, v{vT+5}, vcc
    v_add_u32 v{vT+4}, v{vT+4}, v{vT+6}
    v_add_u32 v{vT+4}, {C_QKV}, v{vT+4}
    v_lshlrev_b32 v{vT+4}, 7, v{vT+4}
    v_add_u32 v{vT+4}, {WS_CNT}, v{vT+4}
    v_mov_b32 v{vT+5}, 16
    """)
    poll(a, vT + 4, vT + 5, 6, vT + 6)
    a.label(lw)
    a("s_barrier")
    st(a, 5)
    def dma_k():
        a(f"""
        s_mul_i32 s{sT0}, s{sWV}, {KT}
        s_add_u32 m0, s{sSlotW}, s{sT0}
        s_nop 0
        buffer_load_dwordx4 v{vL16}, s[{sK}:{sK+3}], s{sKoff} offen lds
        s_mov_b32 exec_hi, 0
        buffer_load_dwordx4 v{vL16}, s[{sK}:{sK+3}], s{sKoff} offen offset:1024 lds
        s_mov_b32 exec_hi, -1
        s_add_u32 s{sKoff}, s{sKoff}, {8*2560}
        """)
    def dma_v():
        a(f"""
        s_lshl_b32 s{sT1}, s{sWV}, 11
        s_add_u32 s{sT1}, s{sT1}, s{sSlotW}
        s_add_u32 m0, s{sT1}, {VOFF}
        s_mov_b64 exec, s[{sVmask}:{sVmask+1}]
        buffer_load_dwordx4 v{vVoff}, s[{sV}:{sV+3}], s{sVoff} offen lds
        s_add_u32 m0, m0, 1024
        s_add_u32 s{sT1}, s{sVoff}, 640
        buffer_load_dwordx4 v{vVoff}, s[{sV}:{sV+3}], s{sT1} offen lds
        s_mov_b64 exec, -1
        s_add_u32 s{sVoff}, s{sVoff}, 10240
        s_add_u32 s{sSlotW}, s{sSlotW}, {SLOT}
        s_cmp_ge_u32 s{sSlotW}, {NSLOT*SLOT}
        s_cselect_b32 s{sSlotW}, 0, s{sSlotW}
        """)
    def dma_init():
        a(f"""
        s_lshr_b32 s{sT0}, s{sHead}, 1
        s_mul_i32 s{sT0}, s{sT0}, 163840
        s_mul_i32 s{sT1}, s{sWV}, 2560
        s_add_u32 s{sKoff}, s{sT0}, s{sT1}
        s_lshl_b32 s{sT1}, s{sE}, 10
        s_add_u32 s{sKoff}, s{sKoff}, s{sT1}
        s_mul_i32 s{sT0}, s{sHead}, 81920
        s_mul_i32 s{sT1}, s{sWV}, 1280
        s_add_u32 s{sVoff}, s{sT0}, s{sT1}
        s_mov_b32 s{sSlotW}, 0
        """)
        dma_k(); dma_v()
    dma_init()
    a(f"""
    s_lshl_b32 s{sT0}, s{sQg}, 1
    s_add_u32 s{sQt}, s{sQt}, s{sT0}
    s_lshr_b32 s{sT0}, s{sHead}, 1
    s_mul_i32 s{sT0}, s{sT0}, 163840
    v_lshlrev_b32 v{vT+2}, 4, v{vT}
    s_lshl_b32 s{sT1}, s{sE}, 3
    s_add_u32 s{sT1}, s{sT1}, 1024
    v_add_u32 v{vT+2}, s{sT1}, v{vT+2}
    v_mov_b32 v{vT+3}, 0x7fffff00
    v_cmp_gt_u32 vcc, 32, v0
    s_mul_i32 s{sT1}, s{sE}, 1536
    v_cndmask_b32 v{vT+2}, v{vT+3}, v{vT+2}, vcc
    v_add_u32 v{vT+3}, s{sT1}, v{vL16}
    """)
    for s in range(2):
        a(f"""
        s_xor_b32 s{sT1}, s{sKh}, {s}
        s_add_u32 s{sT1}, s{sT1}, s{sQt}
        s_mul_i32 s{sT1}, s{sT1}, 2560
        s_add_u32 s{sT1}, s{sT1}, s{sT0}
        buffer_load_dwordx4 {vr(vQ+4*s,4)}, v{vT+3}, s[{sQ}:{sQ+3}], s{sT1} offen
        buffer_load_dwordx2 {vr(vQr+2*s,2)}, v{vT+2}, s[{sQ}:{sQ+3}], s{sT1} offen
        """)
    dma_k(); dma_v()
    a(f"s_branch L_{name}_start")
    a.label(f"L_{name}_restart")
    dma_init()
    dma_k(); dma_v()
    a.label(f"L_{name}_start")
    a(f"""
    s_waitcnt vmcnt(0) lgkmcnt(0)
    s_barrier
    s_lshl_b32 s{sT0}, s{sE}, 9
    s_mul_i32 s{sT1}, s{sKh}, {4*KT}
    s_add_u32 s{sT0}, s{sT0}, s{sT1}
    v_add_u32 v{vA3[0][0]}, s{sT0}, v{vL16}
    s_sub_u32 s{sT0}, 1, s{sE}
    s_lshl_b32 s{sT0}, s{sT0}, 10
    s_lshl_b32 s{sT2}, s{sE}, 3
    s_add_u32 s{sT0}, s{sT0}, s{sT2}
    s_add_u32 s{sT0}, s{sT0}, s{sT1}
    v_and_b32 v{vT}, 31, v0
    v_lshlrev_b32 v{vA3[0][1]}, 4, v{vT}
    v_add_u32 v{vA3[0][1]}, s{sT0}, v{vA3[0][1]}
    s_lshl_b32 s{sT0}, s{sKh}, 13
    s_add_u32 s{sT0}, s{sT0}, {VOFF}
    v_add_u32 v{vA3[0][2]}, s{sT0}, v{vL16}
    s_mov_b32 s{sSlotN}, {2*SLOT}
    """)
    for k in range(3):
        a(f"v_add_u32 v{vA3[1][k]}, {SLOT}, v{vA3[0][k]}")
        a(f"v_add_u32 v{vA3[2][k]}, {2*SLOT}, v{vA3[0][k]}")
    vKc, vKrc, vVc = vA3[0]
    for i in range(32):
        a(f"v_mov_b32 v{vO+i}, 0")
    for i in range(4):
        a(f"v_mov_b32 v{vP+4+i}, 0")
        a(f"v_mov_b32 v{vV+12+i}, 0")
    a(f"""
    s_cmp_eq_u32 s{sPass}, 0
    s_cbranch_scc0 L_{name}_haveC
    s_mul_i32 s{sT1}, s{sKh}, {4*KT}
    v_subrev_u32 v{vT+1}, s{sT1}, v{vKc}
    v_subrev_u32 v{vT+2}, s{sT1}, v{vKrc}
    ds_read_b128 {vr(vKb,4)}, v{vT+1}
    ds_read_b64 {vr(vKr,2)}, v{vT+2}
    s_waitcnt lgkmcnt(0)
    """)
    for s in range(2):
        S = vS + 16*s
        a(f"v_mfma_f32_32x32x16_bf16 {vr(S,16)}, {vr(vKb,4)}, {vr(vQ+4*s,4)}, 0")
        a(f"v_mfma_f32_32x32x8_bf16 {vr(S,16)}, {vr(vKr,2)}, {vr(vQr+2*s,2)}, {vr(S,16)}")
    a("s_nop 15")
    for s in range(2):
        S = vS + 16*s
        a(f"v_max3_f32 v{vT}, v{S}, v{S+1}, v{S+2}")
        for i in range(3, 15, 2):
            a(f"v_max3_f32 v{vT}, v{vT}, v{S+i}, v{S+i+1}")
        a(f"""
        v_max_f32 v{vT}, v{vT}, v{S+15}
        v_mov_b32 v{vT+1}, v{vT}
        s_nop 1
        v_permlane32_swap_b32 v{vT}, v{vT+1}
        s_nop 1
        v_max_f32 v{vT}, v{vT}, v{vT+1}
        v_sub_f32 v{vNC+16*s}, 0, v{vT}
        """)
        for i in range(1, 16):
            a(f"v_mov_b32 v{vNC+16*s+i}, v{vNC+16*s}")
    a.label(f"L_{name}_haveC")
    a(f"""
    ds_read_b128 {vr(vKb,4)}, v{vKc}
    ds_read2st64_b64 {vr(vKr,4)}, v{vKrc} offset0:0 offset1:3
    ds_read_b128 {vr(vV,4)}, v{vVc}
    ds_read_b128 {vr(vV+4,4)}, v{vVc} offset:1024
    s_waitcnt lgkmcnt(0)
    v_mfma_f32_32x32x16_bf16 {vr(vS,16)}, {vr(vKb,4)}, {vr(vQ,4)}, {vr(vNC,16)}
    v_mfma_f32_32x32x8_bf16 {vr(vS,16)}, {vr(vKr,2)}, {vr(vQr,2)}, {vr(vS,16)}
    s_mov_b32 s{sChunk}, 0
    s_nop 7
    """)
    a(f"v_mov_b32 v{vT+11}, {WS_CNT + C_RP*128}")
    a(f"v_mov_b32 v{vT+10}, 0")
    sW1s = 16
    make_srd(a, sW1s, pW1, pW1+1, 0, 640*3456)
    a(f"""
    v_lshlrev_b32 v{vT+12}, 7, v0
    s_mul_i32 s45, s{sRk}, 69120
    s_lshl_b32 s{sT1}, s{sWV}, 13
    s_add_u32 s45, s45, s{sT1}
    s_mul_i32 s46, s{sRk}, {SZ_WOP // 32}
    s_add_u32 s46, s46, s{sT1}
    s_add_u32 s46, s46, {WS_WOP}
    s_sub_u32 s{sT1}, s{sWV}, 5
    s_lshl_b32 s{sT1}, s{sT1}, 5
    s_mul_i32 s{sT0}, s{sRk}, 80
    s_add_u32 s{sT0}, s{sT0}, s{sT1}
    v_and_b32 v{vT+8}, 31, v0
    v_add_u32 v{vT+8}, s{sT0}, v{vT+8}
    v_lshrrev_b32 v{vT+9}, 5, v{vT+8}
    v_lshlrev_b32 v{vT+9}, 15, v{vT+9}
    v_and_b32 v{vT+8}, 31, v{vT+8}
    v_lshlrev_b32 v{vT+8}, 7, v{vT+8}
    v_add_u32 v{vT+8}, v{vT+8}, v{vT+9}
    s_lshl_b32 s{sT0}, s{sX}, 12
    s_add_u32 s{sT0}, s{sT0}, {WS_O}
    s_cmp_ge_u32 s{sWV}, 5
    s_cselect_b32 s46, s{sT0}, s46
    s_cselect_b64 vcc, -1, 0
    v_cndmask_b32 v{vT+17}, v{vT+12}, v{vT+8}, vcc
    s_cmp_eq_u32 s{sWV}, 4
    s_cselect_b32 s46, 0x7f000000, s46
    """)
    st(a, 6)
    a(".p2align 6")
    a.label(f"L_{name}_loop")
    def cond(mask, fn, tag):
        l = a.newlabel(tag)
        a(f"s_bitcmp1_b32 {mask:#x}, s{sChunk}")
        a(f"s_cbranch_scc0 {l}")
        fn()
        a.label(l)
    sKe, sVe, sPf, sPfA, sPfB, sMk = 36, 37, 44, 45, 46, 24
    OOB = 0x7f000000
    def iter_setup():
        a(f"""
        s_bitcmp1_b32 0x7, s{sChunk}
        s_cselect_b32 s{sKe}, s{sKoff}, {OOB}
        s_cselect_b32 s{sVe}, s{sVoff}, {OOB}
        s_cmp_eq_u32 s{sChunk}, 3
        s_cselect_b32 s{sPf}, s{sWV}, 99
        """)
    def dma_piece(k):
        pc = k & 3
        if pc == 0:
            a(f"""
            s_mul_i32 s{sT0}, s{sWV}, {KT}
            s_add_u32 m0, s{sSlotW}, s{sT0}
            s_nop 0
            buffer_load_dwordx4 v{vL16}, s[{sK}:{sK+3}], s{sKe} offen lds
            """)
        elif pc == 1:
            a(f"""
            s_mov_b32 exec_hi, 0
            buffer_load_dwordx4 v{vL16}, s[{sK}:{sK+3}], s{sKe} offen offset:1024 lds
            s_mov_b32 exec_hi, -1
            """)
        elif pc == 2:
            a(f"""
            s_lshl_b32 s{sT1}, s{sWV}, 11
            s_add_u32 s{sT1}, s{sT1}, s{sSlotW}
            s_add_u32 m0, s{sT1}, {VOFF}
            s_mov_b64 exec, s[{sVmask}:{sVmask+1}]
            buffer_load_dwordx4 v{vVoff}, s[{sV}:{sV+3}], s{sVe} offen lds
            s_mov_b64 exec, -1
            """)
        else:
            a(f"""
            s_add_u32 m0, m0, 1024
            s_add_u32 s{sT1}, s{sVe}, 640
            s_mov_b64 exec, s[{sVmask}:{sVmask+1}]
            buffer_load_dwordx4 v{vVoff}, s[{sV}:{sV+3}], s{sT1} offen lds
            s_mov_b64 exec, -1
            s_bitcmp1_b32 0x7, s{sChunk}
            s_cselect_b32 s{sT0}, {8*2560}, 0
            s_cselect_b32 s{sT1}, 10240, 0
            s_add_u32 s{sKoff}, s{sKoff}, s{sT0}
            s_add_u32 s{sVoff}, s{sVoff}, s{sT1}
            s_cselect_b32 s{sKe}, s{sKoff}, {OOB}
            s_bitcmp1_b32 0x7, s{sChunk}
            s_cselect_b32 s{sKe}, s{sKoff}, {OOB}
            s_cselect_b32 s{sVe}, s{sVoff}, {OOB}
            s_cselect_b32 s{sT0}, {SLOT}, 0
            s_add_u32 s{sSlotW}, s{sSlotW}, s{sT0}
            s_cmp_ge_u32 s{sSlotW}, {NSLOT*SLOT}
            s_cselect_b32 s{sT0}, {NSLOT*SLOT}, 0
            s_sub_u32 s{sSlotW}, s{sSlotW}, s{sT0}
            """)
    def pf_piece(kind, w):
        a(f"s_cmp_eq_u32 s{sPf}, {w}")
        if kind == 'A':
            a(f"s_cselect_b32 s{sT0}, s{sPfA}, {OOB}")
            a(f"buffer_load_dword v{vT+13}, v{vT+12}, s[{sW1s}:{sW1s+3}], s{sT0} offen sc1")
        else:
            a(f"s_cselect_b32 s{sT0}, s{sPfB}, {OOB}")
            a(f"buffer_load_dword v{vT+13}, v{vT+17}, s[{sWS}:{sWS+3}], s{sT0} offen sc1")
    def rp_issue():
        a(f"buffer_load_dword v{vT+10}, v{vT+11}, s[{sWS}:{sWS+3}], 0 offen sc1")
    def rp_check():
        ok = a.newlabel("rpok")
        a(f"v_readfirstlane_b32 s{sT0}, v{vT+10}")
        a(f"s_cmp_ge_u32 s{sT0}, 16")
        a(f"s_cbranch_scc1 {ok}")
        a(f"v_mov_b32 v{vT+9}, 16")
        poll(a, vT + 11, vT + 9, 1, vT + 10)
        a.label(ok)
    for u in range(16):
        p = u & 1
        t = u >> 1
        if u == 0: iter_setup()
        if u == 14:
            cond(0b0010, rp_issue, "rpi")
            a("s_waitcnt vmcnt(0)")
            a("s_barrier")
            cond(0b0010, lambda: (rp_check()), "rpc")
        if u < 8: dma_piece(u)
        if not E('NOPF2'):
            if u < 8: pf_piece('A', u)
            elif u < 14:
                pf_piece('B', [0, 1, 2, 3, 5, 6][u - 8])
            elif u == 15: pf_piece('B', 7)
        tn = t + 1
        A = vA3[tn // 4]
        if p == 0:
            a(f"ds_read_b128 {vr(vKb + 4*(tn&1),4)}, v{A[0]} offset:{(tn%4)*KT}")
            if tn % 2 == 0:
                pb = (tn // 2) & 1
                a(f"ds_read2st64_b64 {vr(vKr + 4*pb,4)}, v{A[1]} offset0:{(tn%4)*3} offset1:{(tn%4)*3+3}")
            a(f"ds_read_b128 {vr(vV + 8*(tn&1),4)}, v{A[2]} offset:{(tn%4)*2048}")
        else:
            a("s_waitcnt lgkmcnt(0)")
        un = u + 1
        tq = un >> 1
        qs = un & 1
        Sc, Sn = vS + 16*p, vS + 16*(p^1)
        kbuf = vKb + 4*(tq & 1)
        krbuf = vKr + 4*((tq // 2) & 1) + 2*(tq & 1)
        ex = lambda r: a(f"v_exp_f32 v{Sc+r}, v{Sc+r}")
        cv = lambda r: a(f"v_cvt_pk_bf16_f32 v{vP+r}, v{Sc+2*r}, v{Sc+2*r+1}")
        a(f"v_mfma_f32_32x32x16_bf16 {vr(Sn,16)}, {vr(kbuf,4)}, {vr(vQ+4*qs,4)}, {vr(vNC+16*qs,16)}")
        for r in range(4): ex(r)
        tp = (u - 1) >> 1 if u > 0 else -1
        Op = vO + 16*((u - 1) & 1)
        a(f"v_mfma_f32_32x32x16_bf16 {vr(Op,16)}, {vr(vV + 8*(tp & 1) + 4,4)}, {vr(vP+4,4)}, {vr(Op,16)}")
        if p == 0:
            a(f"ds_read_b128 {vr(vV + 8*(tn&1) + 4,4)}, v{A[2]} offset:{(tn%4)*2048 + 1024}")
        for r in range(4, 8): ex(r)
        cv(0); cv(1)
        a(f"v_mfma_f32_32x32x8_bf16 {vr(Sn,16)}, {vr(krbuf,2)}, {vr(vQr+2*qs,2)}, {vr(Sn,16)}")
        cv(2); cv(3)
        for r in range(8, 12): ex(r)
        Oc = vO + 16*p
        a(f"v_mfma_f32_32x32x16_bf16 {vr(Oc,16)}, {vr(vV + 8*(t & 1),4)}, {vr(vP,4)}, {vr(Oc,16)}")
        for r in range(12, 16): ex(r)
        if u == 15:
            a(f"""
            s_add_u32 s{sT0}, s{sSlotN}, {SLOT}
            s_cmp_ge_u32 s{sT0}, {NSLOT*SLOT}
            s_cselect_b32 s{sT1}, {NSLOT*SLOT}, 0
            s_sub_u32 s{sT0}, s{sT0}, s{sT1}
            s_sub_u32 s{sT1}, s{sT0}, s{sSlotN}
            s_add_u32 s{sT2}, s{sT0}, {SLOT}
            s_cmp_ge_u32 s{sT2}, {NSLOT*SLOT}
            s_cselect_b32 s{sT0}, {NSLOT*SLOT}, 0
            s_sub_u32 s{sT2}, s{sT2}, s{sT0}
            s_sub_u32 s{sT0}, s{sT2}, s{sSlotN}
            s_mov_b32 s{sSlotN}, s{sT2}
            """)
            for k in range(3):
                a(f"v_mov_b32 v{vA3[0][k]}, v{vA3[2][k]}")
                a(f"v_add_u32 v{vA3[1][k]}, s{sT1}, v{vA3[2][k]}")
                a(f"v_add_u32 v{vA3[2][k]}, s{sT0}, v{vA3[2][k]}")
        for r in range(4, 8): cv(r)
    a(f"""
    s_add_u32 s{sChunk}, s{sChunk}, 1
    s_cmp_lt_u32 s{sChunk}, 4
    s_cbranch_scc1 L_{name}_loop
    s_waitcnt lgkmcnt(0)
    """)
    a(f"v_mfma_f32_32x32x16_bf16 {vr(vO+16,16)}, {vr(vV + 8 + 4,4)}, {vr(vP+4,4)}, {vr(vO+16,16)}")
    st(a, 7)
    a(f"""
    s_waitcnt vmcnt(0)
    s_barrier
    s_lshl_b32 s{sT0}, s{sQg}, 1
    s_add_u32 s{sT1}, s{sT0}, s{sKh}
    s_lshr_b32 s{sT2}, s{sT1}, 2
    s_mul_i32 s{sT2}, s{sT2}, {SLOT}
    s_and_b32 s{sT1}, s{sT1}, 3
    s_mul_i32 s{sT1}, s{sT1}, 3072
    s_add_u32 s{sT1}, s{sT1}, s{sT2}
    v_add_u32 v{vT}, s{sT1}, v{vL16}
    s_xor_b32 s{sT1}, s{sKh}, 1
    s_add_u32 s{sT1}, s{sT1}, s{sT0}
    s_lshr_b32 s{sT2}, s{sT1}, 2
    s_mul_i32 s{sT2}, s{sT2}, {SLOT}
    s_and_b32 s{sT1}, s{sT1}, 3
    s_mul_i32 s{sT1}, s{sT1}, 3072
    s_add_u32 s{sT1}, s{sT1}, s{sT2}
    v_add_u32 v{vT+1}, s{sT1}, v{vL16}
    s_nop 7
    """)
    stx(a, 'a_bar1')
    for i in range(3):
        a(f"ds_write_b128 v{vT}, {vr(vO+16+4*i,4)} offset:{i*1024}")
    a("s_waitcnt lgkmcnt(0)")
    a("s_barrier")
    stx(a, 'a_bar2')
    for i in range(3):
        a(f"ds_read_b128 {vr(vS+4*i,4)}, v{vT+1} offset:{i*1024}")
    a("s_waitcnt lgkmcnt(0)")
    for r in range(12):
        a(f"v_add_f32 v{vO+r}, v{vO+r}, v{vS+r}")
    a(f"v_mov_b32 v{vT}, 0")
    for r in range(12):
        a(f"v_fma_f32 v{vT}, v{vO+r}, 0, v{vT}")
    a(f"""
    s_cmp_eq_u32 s{sPass}, 0
    s_cbranch_scc0 L_{name}_store
    v_cmp_u_f32 vcc, v{vT}, v{vT}
    s_nop 4
    s_cmp_eq_u64 vcc, 0
    s_cbranch_scc1 L_{name}_novote
    v_mov_b32 v{vT+1}, {FLAG}
    v_mov_b32 v{vT+2}, 1
    ds_write_b32 v{vT+1}, v{vT+2}
    L_{name}_novote:
    s_waitcnt lgkmcnt(0)
    s_barrier
    v_mov_b32 v{vT+1}, {FLAG}
    ds_read_b32 v{vT+2}, v{vT+1}
    s_waitcnt lgkmcnt(0)
    v_readfirstlane_b32 s{sT0}, v{vT+2}
    s_cmp_eq_u32 s{sT0}, 0
    s_cbranch_scc1 L_{name}_store2
    s_mov_b32 s{sPass}, 1
    v_mov_b32 v{vT}, 0xff800000
    v_mov_b32 v{vT+1}, 0xff800000
    s_lshr_b32 s{sT0}, s{sHead}, 1
    s_mul_i32 s{sT0}, s{sT0}, 163840
    s_mov_b32 s{sT1}, 0
    v_and_b32 v{vT+2}, 31, v0
    v_lshlrev_b32 v{vT+2}, 4, v{vT+2}
    s_lshl_b32 s{sT2}, s{sE}, 3
    s_add_u32 s{sT2}, s{sT2}, 1024
    v_add_u32 v{vT+2}, s{sT2}, v{vT+2}
    s_mul_i32 s{sT2}, s{sE}, 1536
    v_add_u32 v{vT+3}, s{sT2}, v{vL16}
    L_{name}_maxloop:
    buffer_load_dwordx4 {vr(vKb,4)}, v{vT+3}, s[{sK}:{sK+3}], s{sT0} offen
    buffer_load_dwordx2 {vr(vKr,2)}, v{vT+2}, s[{sK}:{sK+3}], s{sT0} offen
    s_waitcnt vmcnt(0)
    """)
    for s in range(2):
        S = vS + 16*s
        a(f"v_mfma_f32_32x32x16_bf16 {vr(S,16)}, {vr(vKb,4)}, {vr(vQ+4*s,4)}, 0")
        a(f"v_mfma_f32_32x32x8_bf16 {vr(S,16)}, {vr(vKr,2)}, {vr(vQr+2*s,2)}, {vr(S,16)}")
    a("s_nop 15")
    for s in range(2):
        for i in range(0, 16, 2):
            a(f"v_max3_f32 v{vT+s}, v{vT+s}, v{vS+16*s+i}, v{vS+16*s+i+1}")
    a(f"""
    s_add_u32 s{sT0}, s{sT0}, 2560
    s_add_u32 s{sT1}, s{sT1}, 1
    s_cmp_lt_u32 s{sT1}, 64
    s_cbranch_scc1 L_{name}_maxloop
    """)
    for s in range(2):
        a(f"""
        v_mov_b32 v{vT+2}, v{vT+s}
        s_nop 1
        v_permlane32_swap_b32 v{vT+s}, v{vT+2}
        s_nop 1
        v_max_f32 v{vT+2}, v{vT+s}, v{vT+2}
        v_sub_f32 v{vNC+16*s}, 0, v{vT+2}
        """)
        for i in range(1, 16):
            a(f"v_mov_b32 v{vNC+16*s+i}, v{vNC+16*s}")
    a("s_barrier")
    a(f"s_branch L_{name}_restart")
    a.label(f"L_{name}_store")
    a("s_barrier")
    a.label(f"L_{name}_store2")
    stx(a, 'a_vote')
    a(f"""
    v_mov_b32 v{vT}, v{vO+8}
    v_mov_b32 v{vT+1}, v{vO+8}
    s_nop 1
    v_permlane32_swap_b32 v{vT}, v{vT+1}
    s_nop 1
    v_rcp_f32 v{vT+1}, v{vT+1}
    v_lshrrev_b32 v{vT+2}, 5, v0
    v_and_b32 v{vT+3}, 31, v0
    s_add_u32 s{sT0}, s{sQt}, s{sKh}
    s_lshl_b32 s{sT0}, s{sT0}, 5
    v_add_u32 v{vT+3}, s{sT0}, v{vT+3}
    v_lshlrev_b32 v{vT+3}, 4, v{vT+3}
    s_mul_i32 s{sT0}, s{sHead}, 5
    v_add_u32 v{vT+2}, s{sT0}, v{vT+2}
    """)
    for r in range(12):
        a(f"v_mul_f32 v{vO+r}, v{vO+r}, v{vT+1}")
    for q in range(3):
        a(f"""
        v_add_u32 v{vT+4}, {2*q}, v{vT+2}
        v_lshrrev_b32 v{vT+5}, 1, v{vT+4}
        v_lshlrev_b32 v{vT+5}, 15, v{vT+5}
        v_and_b32 v{vT+4}, 1, v{vT+4}
        v_lshlrev_b32 v{vT+4}, 3, v{vT+4}
        v_add3_u32 v{vT+4}, v{vT+4}, v{vT+5}, v{vT+3}
        v_cvt_pk_bf16_f32 v{vT+6}, v{vO+4*q}, v{vO+4*q+1}
        v_cvt_pk_bf16_f32 v{vT+7}, v{vO+4*q+2}, v{vO+4*q+3}
        """)
        if q == 2: a("s_mov_b32 exec_hi, 0")
        dual(a, [f"buffer_store_dwordx2 {vr(vT+6,2)}, v{vT+4}, s[{sO}:{sO+3}], 0 offen @SC"])
    a("s_mov_b64 exec, -1")
    stx(a, 'a_stores')
    a(f"s_add_u32 s47, s{sQb}, {C_ATT}")

def gemm_phase_prologue_loader(a, core, q, dep_idx_sgpr, dep_target, nW, pre_issued):
    pass

def reg_step1(a, vd):
    a("s_mov_b64 exec, 7")
    a(f"buffer_load_dword v{vd}, v{vd+1}, s[44:47], 0 offen sc1")
    a("s_mov_b64 exec, -1")
def reg_step2(a, vd):
    dbg_flag_wait(a, vd)
    a(f"""
    s_getreg_b32 s{sX}, hwreg(HW_REG_XCC_ID)
    s_and_b32 s{sX}, s{sX}, 7
    s_add_u32 s76, s{sX}, {C_RK}
    s_lshl_b32 s76, s76, 7
    s_add_u32 s76, s76, {WS_CNT}
    v_mov_b32 v{vd-1}, s76
    v_accvgpr_write_b32 a0, 1
    s_mov_b64 exec, 1
    s_nop 1
    buffer_atomic_add a0, v{vd-1}, s[{sWS}:{sWS+3}], 0 offen sc0
    s_mov_b64 exec, -1
    """)
def reg_step3(a, vd):
    l1, l2 = a.newlabel("r3a"), a.newlabel("r3b")
    a(f"""
    s_waitcnt vmcnt(0)
    v_accvgpr_read_b32 v{vd-1}, a0
    s_nop 1
    v_readfirstlane_b32 s{sRk}, v{vd-1}
    s_cmp_eq_u32 s{sRk}, 31
    s_cbranch_scc0 {l1}
    v_mov_b32 v{vd-1}, 4
    v_mov_b32 v{vd-2}, 1
    s_mov_b64 exec, 1
    buffer_atomic_add v{vd-2}, v{vd-1}, s[44:47], 0 offen sc1
    s_mov_b64 exec, -1
    """)
    a.label(l1)
    a(f"""
    s_cmp_ge_u32 s{sRk}, 32
    s_cbranch_scc0 {l2}
    v_mov_b32 v{vd-1}, 8
    v_mov_b32 v{vd-2}, 1
    s_mov_b64 exec, 1
    buffer_store_dword v{vd-2}, v{vd-1}, s[44:47], 0 offen sc1
    s_mov_b64 exec, -1
    """)
    a.label(l2)
    a("s_mov_b64 exec, 7")
    a(f"buffer_load_dword v{vd}, v{vd+1}, s[44:47], 0 offen sc1")
    a("s_mov_b64 exec, -1")
def register_publish(a, vd):
    l0, l1 = a.newlabel("rp"), a.newlabel("rpok")
    a(f"s_mov_b32 s{sPoll}, 0")
    a.label(l0)
    a(f"""
    s_waitcnt vmcnt(0)
    v_readlane_b32 s39, v{vd}, 1
    v_readlane_b32 s40, v{vd}, 2
    s_cmp_eq_u32 s39, 8
    s_cselect_b32 s38, 1, 0
    s_cmp_lg_u32 s40, 0
    s_cselect_b32 s38, 0, s38
    s_cbranch_scc1 {l1}
    s_cmp_eq_u32 s38, 1
    s_cbranch_scc1 {l1}
    s_add_u32 s{sPoll}, s{sPoll}, 1
    s_cmp_gt_u32 s{sPoll}, {POLL_MAX}
    s_cbranch_scc1 {l1}
    s_sleep 1
    s_mov_b64 exec, 7
    buffer_load_dword v{vd}, v{vd+1}, s[44:47], 0 offen sc1
    s_mov_b64 exec, -1
    s_branch {l0}
    """)
    a.label(l1)
    if E('FORCE_SLOW'): a("s_mov_b32 s38, 0")
    a(f"""
    v_mov_b32 v{vd-6}, s{sX}
    v_mov_b32 v{vd-4}, s38
    v_mov_b32 v{vd-5}, s{sRk}
    v_mov_b32 v{vd-7}, {ROLE}
    ds_write_b96 v{vd-7}, v[{vd-6}:{vd-4}]
    s_waitcnt lgkmcnt(0)
    """)
def wave_only(a, w, fn):
    l = a.newlabel("wo")
    a(f"s_cmp_eq_u32 s{sWV}, {w}")
    a(f"s_cbranch_scc0 {l}")
    fn()
    a.label(l)
def code_prefetch(a):
    a(f"""
    s_getpc_b64 s[40:41]
    s_and_b32 s40, s40, 0xffffff00
    s_lshr_b32 s42, s2, 3
    s_lshl_b32 s42, s42, 11
    v_lshlrev_b32 v150, 7, v1
    v_add_u32 v150, s42, v150
    s_mov_b64 exec, 0xffff
    global_load_dword v152, v150, s[40:41]
    s_mov_b64 exec, -1
    """)

def tlb_warm(a):
    G = int(E('TLBG', '16'))
    a(f"""
    s_lshr_b32 s42, s2, 3
    v_lshlrev_b32 v150, 5, v1
    v_add_u32 v150, s42, v150
    v_lshlrev_b32 v150, {G}, v150
    """)
    n_ws = -(-WS_END >> G)
    a(f"s_mov_b64 exec, {(1 << min(64, -(-n_ws // 32))) - 1:#x}")
    a(f"buffer_load_dword v151, v150, s[{sWS}:{sWS+3}], 0 offen sc1")
    a("s_mov_b64 exec, 3")
    for k, (pp, size) in enumerate(((pW1, 640*3456), (pW2, 1728*1280), (pWO, 640*1280), (pOUT, 2048*1280), (pX, 2048*1280), (pWQ, 640*3840))):
        make_srd(a, 44, pp, pp+1, 0, size)
        a(f"buffer_load_dword v{152+k}, v150, s[44:47], 0 offen sc1")
    a("s_mov_b64 exec, -1")

CODE_KB = 64
def gen_mega():
    a = Asm()
    a(f"""
    s_cmp_ge_u32 s2, 256
    s_cbranch_scc1 L_exit
    s_load_dwordx8 s[84:91], s[0:1], 0
    s_load_dwordx8 s[92:99], s[0:1], 32
    s_load_dwordx2 s[78:79], s[0:1], 64
    """)
    st_rt(a, 0); st(a, 1)
    a(f"""
    v_lshrrev_b32 v2, 6, v0
    s_nop 0
    v_readfirstlane_b32 s{sWV}, v2
    """)
    lane_id(a, 1)
    if not E('NOPF'):
        l = a.newlabel("pf")
        a(f"s_cmp_eq_u32 s{sWV}, 1")
        a(f"s_cbranch_scc0 {l}")
        code_prefetch(a)
        a.label(l)
    a("s_waitcnt lgkmcnt(0)")
    make_srd(a, sWS, pWS, pWS+1, 0, WS_END)
    if not E('NOTLB'):
        l = a.newlabel("tlb")
        a(f"s_cmp_eq_u32 s{sWV}, 3")
        a(f"s_cbranch_scc0 {l}")
        tlb_warm(a)
        a.label(l)
    L = CoreL(a, 'qkv', 'q')
    L.map_tiles("L_repack")
    a(f"""
    s_cmp_ge_u32 s{sWV}, 4
    s_cbranch_scc0 L_q_compute
    """)
    L.loader_setup()
    st(a, 2)
    q = VmQ()
    for s_ in range(PD):
        L.issue_A(s_); q.push(f"A{s_}", 4)
        stamp(a, 9 + 2*s_, base=SB)
        L.issue_W(s_); q.push(f"W{s_}", 4)
        stamp(a, 10 + 2*s_, base=SB)
    st(a, 3)
    L.lstats_init()
    L.ldstamps = True
    L.loader_main(q)
    st(a, 8)
    a("s_barrier")
    a("s_barrier")
    a("s_branch L_attn")
    a.label("L_q_compute")
    l = a.newlabel("zc")
    a(f"""
    s_or_b32 s40, s2, s{sWV}
    s_cmp_eq_u32 s40, 0
    s_cbranch_scc0 {l}
    v_mov_b32 v4, 0
    v_mov_b32 v5, 0
    v_mov_b32 v6, 0
    v_mov_b32 v7, 0
    v_lshlrev_b32 v8, 4, v1
    s_mov_b32 s40, {WS_CNT}
    """)
    for j in range(SZ_CNT // 1024):
        a(f"buffer_store_dwordx4 v[4:7], v8, s[{sWS}:{sWS+3}], s40 offen {SC}")
        a("s_add_u32 s40, s40, 1024")
    make_srd(a, 8, pDBG, pDBG+1, 0, 256)
    a(f"""
    s_waitcnt vmcnt(0)
    v_mov_b32 v4, 1
    v_mov_b32 v5, 0
    s_mov_b64 exec, 1
    buffer_store_dword v4, v5, s[8:11], 0 offen sc1
    s_mov_b64 exec, -1
    """)
    a.label(l)
    L.compute_setup()
    make_srd(a, 44, pDBG, pDBG+1, 0, 256)
    a(f"v_lshlrev_b32 v{L.vSt+27}, 2, v1")
    a(f"v_mov_b32 v{L.vSt+26}, 0")
    a(f"""
    s_cmp_ge_u32 s{L.sNt}, 10
    s_cbranch_scc1 L_q_vpath
    """)
    L.addr_qk()
    L.mainloop(True, 2)
    st(a, 3)
    a("s_barrier")
    L.epilogue_Y('qk')
    a("s_branch L_q_done")
    a.label("L_q_vpath")
    L.addr_v()
    L.mainloop(False, 2)
    st(a, 3)
    a("s_barrier")
    L.epilogue_X()
    a.label("L_q_done")
    a("s_waitcnt vmcnt(0)")
    l = a.newlabel("regp")
    a(f"s_cmp_eq_u32 s{sWV}, 2")
    a(f"s_cbranch_scc0 {l}")
    register_publish(a, L.vSt + 26)
    a.label(l)
    a("s_barrier")
    a(f"s_cmp_eq_u32 s{sWV}, 0")
    a("s_cbranch_scc0 L_attn")
    dbg_flag_wait(a, L.vSt + 26)
    a(f"s_add_u32 s40, s{L.sNt}, {C_QKV}")
    arrive(a, 40, 4)
    st(a, 4)
    a("s_branch L_attn")
    a.label("L_repack")
    make_srd(a, 44, pDBG, pDBG+1, 0, 256)
    a(f"v_lshlrev_b32 v{L.vSt+27}, 2, v1")
    a(f"v_mov_b32 v{L.vSt+26}, 0")
    def regall():
        reg_step1(a, L.vSt + 26); reg_step2(a, L.vSt + 26); reg_step3(a, L.vSt + 26); register_publish(a, L.vSt + 26)
    wave_only(a, 2, regall)
    a.label("L_repack2")
    a(f"""
    s_and_b32 s46, s2, 7
    s_lshr_b32 s46, s46, 1
    s_lshl_b32 s46, s46, 2
    s_lshr_b32 s45, s2, 3
    s_and_b32 s45, s45, 3
    s_add_u32 s46, s46, s45
    """)
    emit_repack(a, 46)
    a("s_barrier")
    a.label("L_attn")
    emit_attention(a, None)
    S = CoreS(a, 'oproj')
    lane_id(a, 1)
    S.map_tiles()
    a(f"""
    s_cmp_ge_u32 s{sWV}, 4
    s_cbranch_scc0 L_o_compute
    """)
    S.loader_setup()
    q = VmQ()
    a("s_waitcnt vmcnt(0)")
    stx(a, 'a_drain')
    a("s_barrier")
    stx(a, 'a_bar3')
    for s_ in range(PD):
        S.issue_W(s_); q.push(f"W{s_}", 5)
    lw = a.newlabel("ow")
    a(f"s_cmp_eq_u32 s{sWV}, 4")
    a(f"s_cbranch_scc0 {lw}")
    a(f"s_add_u32 s40, s{sX}, {C_ATT}")
    poll1(a, 40, 32, 8)
    a.label(lw)
    stx(a, 'o_poll')
    a("s_barrier")
    for s_ in range(PD):
        S.issue_A(s_); q.push(f"A{s_}", 4)
    S.loader_main(q)
    a("s_barrier")
    F1 = CoreL(a, 'ffn1', 'f')
    F1.map_tiles("L_o_ld_idle")
    F1.loader_setup()
    q = VmQ()
    a("s_barrier")
    for s_ in range(PD):
        F1.issue_W(s_); q.push(f"W{s_}", 4)
    a("s_branch L_f1_loader")
    a.label("L_o_ld_idle")
    a("s_barrier")
    a("s_branch L_f2_loader0")
    a.label("L_o_compute")
    a("s_waitcnt vmcnt(0)")
    stx(a, 'a_drain')
    a("s_barrier")
    stx(a, 'a_bar3')
    lw = a.newlabel("oa")
    a(f"s_cmp_eq_u32 s{sWV}, 0")
    a(f"s_cbranch_scc0 {lw}")
    arrive_l(a, 47, 4)
    st(a, 8)
    a.label(lw)
    S.compute_setup()
    S.pretouch()
    S.residual_loads()
    a("s_barrier")
    st(a, 9)
    stx(a, 'o_X')
    S.mainloop(tag='o')
    stx(a, 'o_loop')
    S.reduce()
    stx(a, 'o_red')
    a("s_barrier")
    S.epilogue()
    stx(a, 'o_epi')
    a("s_waitcnt vmcnt(0)")
    stx(a, 'o_drain')
    a("s_barrier")
    lw = a.newlabel("oa2")
    a(f"s_cmp_eq_u32 s{sWV}, 0")
    a(f"s_cbranch_scc0 {lw}")
    a(f"s_lshr_b32 s40, s{S.sM0}, 7")
    a(f"s_add_u32 s40, s40, {C_OP}")
    arrive_l(a, 40, 4)
    st(a, 10)
    a.label(lw)
    lane_id(a, 1)
    F1.map_tiles("L_f2_compute0")
    a("s_branch L_f1_compute")
    a.label("L_f1_loader")
    lw = a.newlabel("fw")
    a(f"s_cmp_eq_u32 s{sWV}, 4")
    a(f"s_cbranch_scc0 {lw}")
    a(f"s_lshr_b32 s40, s{F1.sM0}, 7")
    a(f"s_add_u32 s40, s40, {C_OP}")
    poll1(a, 40, 16, 8)
    a.label(lw)
    a("s_barrier")
    for s_ in range(PD):
        F1.issue_A(s_); q.push(f"A{s_}", 4)
    F1.lstats_init()
    F1.loader_main(q)
    a("s_barrier")
    S2 = CoreS(a, 'ffn2')
    S2.map_tiles()
    S2.loader_setup()
    q = VmQ()
    a("s_barrier")
    for s_ in range(PD):
        S2.issue_W(s_); q.push(f"W{s_}", 5)
    a("s_branch L_f2_loader")
    a.label("L_f2_loader0")
    S2.map_tiles()
    S2.loader_setup()
    for s_ in range(PD):
        S2.issue_W(s_)
    a.label("L_f2_loader")
    lw = a.newlabel("gw")
    a(f"s_cmp_eq_u32 s{sWV}, 4")
    a(f"s_cbranch_scc0 {lw}")
    a(f"s_lshr_b32 s40, s{S2.sM0}, 7")
    a(f"s_add_u32 s40, s40, {C_F1}")
    poll1(a, 40, 14, 8)
    a.label(lw)
    a("s_barrier")
    for s_ in range(PD):
        S2.issue_A(s_); q.push(f"A{s_}", 4)
    S2.loader_main(q)
    if common.STAMPS:
        stamp_flush(a, 0, sWV, base=SB, vt=90)
    a("s_endpgm")
    a.label("L_f1_compute")
    F1.compute_setup()
    F1.addr_f()
    a("s_barrier")
    st(a, 11)
    stx(a, 'f_X')
    F1.mainloop(True, tag='f')
    stx(a, 'f_loop')
    a("s_barrier")
    F1.epilogue_Y('ffn1')
    stx(a, 'f_epi')
    a("s_waitcnt vmcnt(0)")
    stx(a, 'f_drain')
    a("s_barrier")
    lw = a.newlabel("fa")
    a(f"s_cmp_eq_u32 s{sWV}, 0")
    a(f"s_cbranch_scc0 {lw}")
    a(f"s_lshr_b32 s40, s{F1.sM0}, 7")
    a(f"s_add_u32 s40, s40, {C_F1}")
    arrive_l(a, 40, 4)
    st(a, 12)
    a.label(lw)
    lane_id(a, 1)
    a.label("L_f2_compute0")
    S2.map_tiles()
    S2.compute_setup()
    a("s_barrier")
    st(a, 13)
    stx(a, 'g_X')
    S2.residual_loads()
    S2.mainloop(tag='g')
    stx(a, 'g_loop')
    S2.reduce()
    stx(a, 'g_red')
    S2.epilogue()
    stx(a, 'g_epi')
    if common.STAMPS:
        a("s_waitcnt vmcnt(0)")
        st(a, 14); st_rt(a, 15)
        stamp_flush(a, 0, sWV, base=SB, vt=90)
    a.label("L_exit")
    a("s_endpgm")
    return kernel_header(NAME) + a.text() + kernel_desc(NAME, 256, 176, sgpr=102)
```

```python
from asmlib import *
KA_X, KA_WQKV, KA_WO, KA_BX, KA_W1, KA_W2, KA_OUT, KA_DBG, KA_WS = 0, 8, 16, 24, 32, 40, 48, 56, 64
S_TOK, D, DFF, H, DH = 2048, 640, 1728, 32, 20
SZ_QKV = 32 * 64 * 1280
WS_Q = 0
WS_K = WS_Q + SZ_QKV
WS_V = WS_K + SZ_QKV
SZ_ACT = 80 * 2048 * 16
WS_O = WS_V + SZ_QKV
WS_H = WS_O + SZ_ACT
SZ_F = 216 * 2048 * 16
WS_F = WS_H + SZ_ACT
WS_END = WS_F + SZ_F
SZ_QK = 16 * 64 * 2560
WS_Q = 0
WS_K = WS_Q + SZ_QK
WS_V = WS_K + SZ_QK
WS_O = WS_V + SZ_QKV
WS_H = WS_O + SZ_ACT
WS_F = WS_H + SZ_ACT
WS_ST1 = WS_F + SZ_F
SZ_ST1 = 2048 * 8
WS_CS1 = WS_ST1 + SZ_ST1
SZ_CS1 = 16 * 1920 * 4
WS_CS2 = WS_CS1 + SZ_CS1
SZ_CS2 = 16 * 1792 * 4
WS_ST2 = WS_CS2 + SZ_CS2
SZ_ST2 = 16 * 2048 * 8
WS_WOP = WS_ST2 + SZ_ST2
SZ_WOP = 8 * 5 * 20480
WS_W2P = WS_WOP + SZ_WOP
SZ_W2P = 8 * 14 * 20480
WS_CNT = (WS_W2P + SZ_W2P + 4095) // 4096 * 4096
SZ_CNT = 16384
C_RK, C_RP, C_QKV, C_ATT, C_OP, C_F1, C_ST, C_CS1, C_CS2 = 0, 8, 9, 24, 32, 48, 64, 80, 96
C_P0, C_W1 = 0, 0
C_RPS = 112
assert WS_W2P == WS_WOP + SZ_WOP
WS_END = WS_CNT + SZ_CNT
LOG2E = 1.4426950408889634
QSCALE = (DH ** -0.5) * LOG2E

import struct
def f32bits(x):
    return struct.unpack("<I", struct.pack("<f", x))[0]

def make_srd(a, s, base_lo, base_hi, off, size):
    if off:
        a(f"s_add_u32 s{s}, s{base_lo}, {off:#x}")
        a(f"s_addc_u32 s{s+1}, s{base_hi}, 0")
    else:
        a(f"s_mov_b32 s{s}, s{base_lo}")
        a(f"s_mov_b32 s{s+1}, s{base_hi}")
    a(f"s_and_b32 s{s+1}, s{s+1}, 0xffff")
    a(f"s_mov_b32 s{s+2}, {size:#x}")
    a(f"s_mov_b32 s{s+3}, 0x20000")

WS_STAMP = 32 << 20
STAMPS = False
def stamp(a, idx, base=64):
    if not STAMPS: return
    a(f"s_memtime s[{base+16}:{base+17}]")
    a("s_waitcnt lgkmcnt(0)")
    a(f"s_mov_b32 s{base+idx}, s{base+16}")
def stamp_rt(a, idx, base=64):
    if not STAMPS: return
    a(f"s_memrealtime s[{base+16}:{base+17}]")
    a("s_waitcnt lgkmcnt(0)")
    a(f"s_mov_b32 s{base+idx}, s{base+16}")
def stamp_flush(a, kidx, wave_sgpr, n=16, base=64, vt=120):
    if not STAMPS: return
    b = base
    a(f"s_load_dwordx2 s[{b+16}:{b+17}], s[0:1], {KA_WS}")
    a("s_waitcnt lgkmcnt(0)")
    a(f"s_add_u32 s{b+20}, s{b+16}, {WS_STAMP + kidx*0x40000}")
    a(f"s_addc_u32 s{b+21}, s{b+17}, 0")
    a(f"s_and_b32 s{b+21}, s{b+21}, 0xffff")
    a(f"s_mov_b32 s{b+22}, 0x40000")
    a(f"s_mov_b32 s{b+23}, 0x20000")
    a(f"s_lshl_b32 s{b+16}, s2, 3")
    a(f"s_add_u32 s{b+16}, s{b+16}, s{wave_sgpr}")
    a(f"s_lshl_b32 s{b+16}, s{b+16}, 6")
    a("s_mov_b64 exec, 1")
    for i in range(n):
        a(f"v_mov_b32 v{vt}, s{b+i}")
        a(f"v_mov_b32 v{vt+1}, s{b+16}")
        a(f"buffer_store_dword v{vt}, v{vt+1}, s[{b+20}:{b+23}], 0 offen offset:{4*i}")
    a("s_waitcnt vmcnt(0)")

class VmQ:
    def __init__(self): self.q = []
    def push(self, tag, n=1): self.q += [tag] * n
    def need(self, *tags):
        last = -1
        for i, t in enumerate(self.q):
            if t in tags: last = i
        return len(self.q) - 1 - last if last >= 0 else min(len(self.q), 63)
```

```python
from common import *
import common, os
E = os.environ.get

NAME = "sequential_preLN__softmax_full_mha__dense_activation_relu__prompt_kernel"
pX, pWQ, pWO, pW1, pW2, pOUT, pDBG, pWS = 84, 86, 88, 92, 94, 96, 98, 78
sWS = 80
sWV = 100
sPoll = 101
SB = 48
STAT = 131072
LDS_TOTAL = 149504
SC = "sc1"
sX, sRk, sLoc = 72, 73, 74
ROLE = LDS_TOTAL - 64
POLL_MAX = 1 << 22

FS = E('FS', '').split(',') if E('FS') else []
FS0 = int(E('FS0', '9'))
def st(a, i):
    if FS and (i >= FS0) and i != 15: return
    stamp(a, i, base=SB)
def st2(a, i): pass
def stx(a, tag):
    if tag in FS: stamp(a, FS0 + FS.index(tag), base=SB)
def st_rt(a, i): stamp_rt(a, i, base=SB)

def lane_id(a, v):
    a(f"v_mbcnt_lo_u32_b32 v{v}, -1, 0")
    a(f"v_mbcnt_hi_u32_b32 v{v}, -1, v{v}")

def arrive(a, sIdx, vt):
    a(f"""
    s_lshl_b32 s{sPoll}, s{sIdx}, 7
    s_add_u32 s{sPoll}, s{sPoll}, {WS_CNT}
    v_mov_b32 v{vt}, s{sPoll}
    v_mov_b32 v{vt+1}, 1
    s_mov_b64 exec, 1
    buffer_atomic_add v{vt+1}, v{vt}, s[{sWS}:{sWS+3}], 0 offen sc1
    s_mov_b64 exec, -1
    """)

def dual(a, instrs):
    l0, l1 = a.newlabel("slow"), a.newlabel("dd")
    a(f"s_cmp_eq_u32 s{sLoc}, 0")
    a(f"s_cbranch_scc1 {l0}")
    for i in instrs: a(i.replace("@SC", ""))
    a(f"s_branch {l1}")
    a.label(l0)
    for i in instrs: a(i.replace("@SC", "sc1"))
    a.label(l1)

def arrive_l(a, sIdx, vt):
    a(f"""
    s_lshl_b32 s{sPoll}, s{sIdx}, 7
    s_add_u32 s{sPoll}, s{sPoll}, {WS_CNT}
    v_mov_b32 v{vt}, s{sPoll}
    v_mov_b32 v{vt+1}, 1
    s_mov_b64 exec, 1
    """)
    dual(a, [f"buffer_atomic_add v{vt+1}, v{vt}, s[{sWS}:{sWS+3}], 0 offen @SC"])
    a("s_mov_b64 exec, -1")

def poll(a, vOff, vTgt, nl, vt):
    l0, l1 = a.newlabel("poll"), a.newlabel("pollok")
    a(f"s_mov_b64 exec, {(1 << nl) - 1:#x}")
    a(f"s_mov_b32 s{sPoll}, 0")
    a.label(l0)
    a(f"""
    buffer_load_dword v{vt}, v{vOff}, s[{sWS}:{sWS+3}], 0 offen sc1
    s_waitcnt vmcnt(0)
    v_cmp_gt_u32 vcc, v{vTgt}, v{vt}
    s_nop 4
    s_cmp_eq_u64 vcc, 0
    s_cbranch_scc1 {l1}
    s_add_u32 s{sPoll}, s{sPoll}, 1
    s_cmp_gt_u32 s{sPoll}, {POLL_MAX}
    s_cbranch_scc1 {l1}
    s_sleep 1
    s_branch {l0}
    """)
    a.label(l1)
    a("s_mov_b64 exec, -1")

def poll1(a, sIdx, target, vt):
    a(f"""
    s_lshl_b32 s{sPoll}, s{sIdx}, 7
    s_add_u32 s{sPoll}, s{sPoll}, {WS_CNT}
    v_mov_b32 v{vt+1}, s{sPoll}
    v_mov_b32 v{vt+2}, {target}
    """)
    poll(a, vt + 1, vt + 2, 1, vt)

def wave_sum(a, v):
    for sh in (1, 2, 4, 8):
        a(f"v_add_f32_dpp v{v}, v{v}, v{v} row_shr:{sh} row_mask:0xf bank_mask:0xf bound_ctrl:0")
        a("s_nop 1")
    a(f"v_add_f32_dpp v{v}, v{v}, v{v} row_bcast:15 row_mask:0xa bank_mask:0xf")
    a("s_nop 1")
    a(f"v_add_f32_dpp v{v}, v{v}, v{v} row_bcast:31 row_mask:0xc bank_mask:0xf")
    a("s_nop 1")

def p0_rows_issue(a, sXs, s0, vR, vA):
    a(f"""
    s_lshl_b32 s{s0}, s2, 3
    s_lshl_b32 s{s0+1}, s{sWV}, 1
    s_add_u32 s{s0}, s{s0}, s{s0+1}
    s_mul_i32 s{s0+2}, s{s0}, 1280
    v_lshlrev_b32 v{vA}, 4, v1
    v_lshlrev_b32 v{vA+1}, 2, v1
    s_add_u32 s{s0+3}, s{s0+2}, 1280
    buffer_load_dwordx4 {vr(vR,4)}, v{vA}, s[{sXs}:{sXs+3}], s{s0+2} offen
    buffer_load_dword v{vR+4}, v{vA+1}, s[{sXs}:{sXs+3}], s{s0+2} offen offset:1024
    buffer_load_dwordx4 {vr(vR+6,4)}, v{vA}, s[{sXs}:{sXs+3}], s{s0+3} offen
    buffer_load_dword v{vR+5}, v{vA+1}, s[{sXs}:{sXs+3}], s{s0+3} offen offset:1024
    """)
def p0_rows_finish(a, s0, vR, vA):
    for rr in range(2):
        regs = [vR + 6*rr + i for i in range(4)] + [vR + 4 + rr]
        S, Q, U = vA + 4, vA + 5, vA + 6
        for n, r in enumerate(regs):
            a(f"v_lshlrev_b32 v{U}, 16, v{r}")
            a(f"v_and_b32 v{U+1}, 0xffff0000, v{r}")
            if n == 0:
                a(f"v_add_f32 v{S}, v{U}, v{U+1}")
                a(f"v_mul_f32 v{Q}, v{U}, v{U}")
            else:
                a(f"v_add_f32 v{S}, v{S}, v{U}")
                a(f"v_add_f32 v{S}, v{S}, v{U+1}")
                a(f"v_fmac_f32 v{Q}, v{U}, v{U}")
            a(f"v_fmac_f32 v{Q}, v{U+1}, v{U+1}")
        a("s_nop 1")
        for sh in (1, 2, 4, 8):
            a(f"v_add_f32_dpp v{S}, v{S}, v{S} row_shr:{sh} row_mask:0xf bank_mask:0xf bound_ctrl:0")
            a(f"v_add_f32_dpp v{Q}, v{Q}, v{Q} row_shr:{sh} row_mask:0xf bank_mask:0xf bound_ctrl:0")
            a("s_nop 0")
        a(f"v_add_f32_dpp v{S}, v{S}, v{S} row_bcast:15 row_mask:0xa bank_mask:0xf")
        a(f"v_add_f32_dpp v{Q}, v{Q}, v{Q} row_bcast:15 row_mask:0xa bank_mask:0xf")
        a("s_nop 0")
        a(f"v_add_f32_dpp v{S}, v{S}, v{S} row_bcast:31 row_mask:0xc bank_mask:0xf")
        a(f"v_add_f32_dpp v{Q}, v{Q}, v{Q} row_bcast:31 row_mask:0xc bank_mask:0xf")
        a(f"""
        s_nop 0
        v_mul_f32 v{S}, {f32bits(1.0/640):#x}, v{S}
        v_mul_f32 v{Q}, {f32bits(1.0/640):#x}, v{Q}
        v_fma_f32 v{Q}, -v{S}, v{S}, v{Q}
        v_max_f32 v{Q}, 0, v{Q}
        v_add_f32 v{Q}, {f32bits(1e-5):#x}, v{Q}
        v_rsq_f32 v{Q}, v{Q}
        s_nop 0
        v_mov_b32 v{vA+8+2*rr}, v{S}
        v_mov_b32 v{vA+9+2*rr}, v{Q}
        """)
    a(f"""
    s_lshl_b32 s{s0+4}, s{s0}, 3
    s_add_u32 s{s0+4}, s{s0+4}, {WS_ST1}
    v_mov_b32 v{vA+4}, 0
    s_mov_b32 exec_lo, 0
    s_mov_b32 exec_hi, 0x80000000
    buffer_store_dwordx4 {vr(vA+8,4)}, v{vA+4}, s[{sWS}:{sWS+3}], s{s0+4} offen {SC}
    s_mov_b64 exec, -1
    """)
def colsum_issue(a, which, srd, sW4, s0, vC, vA):
    ld = 3840 if which == 'wq' else 3456
    a(f"""
    s_and_b32 s{s0+1}, s2, 7
    s_lshr_b32 s{s0+2}, s2, 3
    s_lshr_b32 s{s0+3}, s{s0+1}, 1
    s_lshl_b32 s{s0+3}, s{s0+3}, 5
    s_add_u32 s{s0+2}, s{s0+2}, s{s0+3}
    s_and_b32 s{s0+1}, s{s0+1}, 1
    s_and_b32 s{s0+3}, s{s0+2}, 15
    s_lshr_b32 s{s0+2}, s{s0+2}, 4
    v_lshrrev_b32 v{vA}, 3, v1
    v_and_b32 v{vA+1}, 7, v1
    v_lshlrev_b32 v{vA+1}, 2, v{vA+1}
    v_mul_u32_u24 v{vA+2}, {ld}, v{vA}
    v_add_u32 v{vA+2}, v{vA+2}, v{vA+1}
    s_lshl_b32 s{s0+4}, s{s0+3}, 6
    s_lshl_b32 s{s0+7}, s{sW4}, 4
    s_add_u32 s{s0+4}, s{s0+4}, s{s0+7}
    s_mul_i32 s{s0+5}, s{s0+1}, {1024 if which == 'wq' else 896}
    s_add_u32 s{s0+5}, s{s0+5}, s{s0+4}
    s_mul_i32 s{s0+7}, s{s0+2}, {80*ld}
    s_lshl_b32 s{s0+4}, s{s0+5}, 1
    s_add_u32 s{s0+7}, s{s0+7}, s{s0+4}
    """)
    for j in range(10):
        a(f"buffer_load_dword v{vC+j}, v{vA+2}, s[{srd}:{srd+3}], s{s0+7} offen")
        if j < 9: a(f"s_add_u32 s{s0+7}, s{s0+7}, {8*ld}")
def colsum_finish(a, which, s0, vC, vA):
    base, ncol = (WS_CS1, 1920) if which == 'wq' else (WS_CS2, 1792)
    A0, A1, U = vA + 4, vA + 5, vA + 6
    for j in range(10):
        if j == 0:
            a(f"v_lshlrev_b32 v{A0}, 16, v{vC}")
            a(f"v_and_b32 v{A1}, 0xffff0000, v{vC}")
        else:
            a(f"v_lshlrev_b32 v{U}, 16, v{vC+j}")
            a(f"v_and_b32 v{U+1}, 0xffff0000, v{vC+j}")
            a(f"v_add_f32 v{A0}, v{A0}, v{U}")
            a(f"v_add_f32 v{A1}, v{A1}, v{U+1}")
    a(f"""
    s_nop 1
    v_add_f32_dpp v{A0}, v{A0}, v{A0} row_ror:8 row_mask:0xf bank_mask:0xf
    v_add_f32_dpp v{A1}, v{A1}, v{A1} row_ror:8 row_mask:0xf bank_mask:0xf
    s_nop 1
    v_mov_b32 v{U}, v{A0}
    v_mov_b32 v{U+1}, v{A1}
    s_nop 1
    v_permlane16_swap_b32 v{A0}, v{U}
    v_permlane16_swap_b32 v{A1}, v{U+1}
    s_nop 1
    v_add_f32 v{A0}, v{A0}, v{U}
    v_add_f32 v{A1}, v{A1}, v{U+1}
    s_nop 0
    v_mov_b32 v{U}, v{A0}
    v_mov_b32 v{U+1}, v{A1}
    s_nop 1
    v_permlane32_swap_b32 v{A0}, v{U}
    v_permlane32_swap_b32 v{A1}, v{U+1}
    s_nop 1
    v_add_f32 v{vA+12}, v{A0}, v{U}
    v_add_f32 v{vA+13}, v{A1}, v{U+1}
    v_lshlrev_b32 v{U}, 3, v1
    s_mul_i32 s{s0+4}, s{s0+2}, {ncol*4}
    s_lshl_b32 s{s0+7}, s{s0+5}, 2
    s_add_u32 s{s0+4}, s{s0+4}, s{s0+7}
    s_add_u32 s{s0+4}, s{s0+4}, {base}
    """)
    lab = a.newlabel("p0skip")
    if which == 'wq':
        a(f"s_cmp_ge_u32 s{s0+5}, 1920")
    else:
        a(f"s_sub_u32 s{s0+7}, 14, s{s0+1}")
        a(f"s_cmp_ge_u32 s{s0+3}, s{s0+7}")
    a(f"s_cbranch_scc1 {lab}")
    a("s_mov_b64 exec, 0xff")
    a(f"buffer_store_dwordx2 {vr(vA+12,2)}, v{U}, s[{sWS}:{sWS+3}], s{s0+4} offen {SC}")
    a("s_mov_b64 exec, -1")
    a.label(lab)
def emit_p0(a):
    sXs, sWq, s0 = 8, 12, 40
    vR, vC, vA = 4, 14, 34
    make_srd(a, sXs, pX, pX+1, 0, 2048*1280)
    make_srd(a, sWq, pWQ, pWQ+1, 0, 640*3840)
    p0_rows_issue(a, sXs, s0, vR, vA)
    a(f"s_mov_b32 s39, s{s0}")
    colsum_issue(a, 'wq', sWq, sWV, s0, vC, vA + 12)
    a("s_waitcnt vmcnt(10)")
    a(f"s_mov_b32 s38, s{s0+4}")
    p0_rows_finish(a, 39, vR, vA) if False else None
    p0_rows_finish_b(a, 39, 38, vR, vA)
    a("s_waitcnt vmcnt(1)")
    colsum_finish(a, 'wq', s0, vC, vA + 12)
def p0_rows_finish_b(a, sRow, sTmp, vR, vA):
    import io
    class Tmp: pass
    for rr in range(2):
        regs = [vR + 6*rr + i for i in range(4)] + [vR + 4 + rr]
        S, Q, U = vA + 4, vA + 5, vA + 6
        for n, r in enumerate(regs):
            a(f"v_lshlrev_b32 v{U}, 16, v{r}")
            a(f"v_and_b32 v{U+1}, 0xffff0000, v{r}")
            if n == 0:
                a(f"v_add_f32 v{S}, v{U}, v{U+1}")
                a(f"v_mul_f32 v{Q}, v{U}, v{U}")
            else:
                a(f"v_add_f32 v{S}, v{S}, v{U}")
                a(f"v_add_f32 v{S}, v{S}, v{U+1}")
                a(f"v_fmac_f32 v{Q}, v{U}, v{U}")
            a(f"v_fmac_f32 v{Q}, v{U+1}, v{U+1}")
        a("s_nop 1")
        for sh in (1, 2, 4, 8):
            a(f"v_add_f32_dpp v{S}, v{S}, v{S} row_shr:{sh} row_mask:0xf bank_mask:0xf bound_ctrl:0")
            a(f"v_add_f32_dpp v{Q}, v{Q}, v{Q} row_shr:{sh} row_mask:0xf bank_mask:0xf bound_ctrl:0")
            a("s_nop 0")
        a(f"v_add_f32_dpp v{S}, v{S}, v{S} row_bcast:15 row_mask:0xa bank_mask:0xf")
        a(f"v_add_f32_dpp v{Q}, v{Q}, v{Q} row_bcast:15 row_mask:0xa bank_mask:0xf")
        a("s_nop 0")
        a(f"v_add_f32_dpp v{S}, v{S}, v{S} row_bcast:31 row_mask:0xc bank_mask:0xf")
        a(f"v_add_f32_dpp v{Q}, v{Q}, v{Q} row_bcast:31 row_mask:0xc bank_mask:0xf")
        a(f"""
        s_nop 0
        v_mul_f32 v{S}, {f32bits(1.0/640):#x}, v{S}
        v_mul_f32 v{Q}, {f32bits(1.0/640):#x}, v{Q}
        v_fma_f32 v{Q}, -v{S}, v{S}, v{Q}
        v_max_f32 v{Q}, 0, v{Q}
        v_add_f32 v{Q}, {f32bits(1e-5):#x}, v{Q}
        v_rsq_f32 v{Q}, v{Q}
        s_nop 0
        v_mov_b32 v{vA+8+2*rr}, v{S}
        v_mov_b32 v{vA+9+2*rr}, v{Q}
        """)
    a(f"""
    s_lshl_b32 s{sTmp}, s{sRow}, 3
    s_add_u32 s{sTmp}, s{sTmp}, {WS_ST1}
    v_mov_b32 v{vA+4}, 0
    s_mov_b32 exec_lo, 0
    s_mov_b32 exec_hi, 0x80000000
    buffer_store_dwordx4 {vr(vA+8,4)}, v{vA+4}, s[{sWS}:{sWS+3}], s{sTmp} offen {SC}
    s_mov_b64 exec, -1
    """)
def dbg_flag_issue(a, vt):
    make_srd(a, 44, pDBG, pDBG+1, 0, 256)
    a(f"v_mov_b32 v{vt+1}, 0")
    a(f"buffer_load_dword v{vt}, v{vt+1}, s[44:47], 0 offen sc1")
def dbg_flag_issue_b(a, vt):
    make_srd(a, 16, pDBG, pDBG+1, 0, 256)
    a(f"v_mov_b32 v{vt+1}, 0")
    a(f"buffer_load_dword v{vt}, v{vt+1}, s[16:19], 0 offen sc1")
def dbg_flag_wait(a, vt, srd=44, landed=False):
    l0, l1, l2 = a.newlabel("dbgp"), a.newlabel("dbgok"), a.newlabel("dbgc")
    a(f"s_mov_b32 s{sPoll}, 0")
    if landed: a(f"s_branch {l2}")
    a.label(l0)
    a("s_waitcnt vmcnt(0)")
    a.label(l2)
    a(f"""
    v_readfirstlane_b32 s75, v{vt}
    s_cmp_lg_u32 s75, 0
    s_cbranch_scc1 {l1}
    s_add_u32 s{sPoll}, s{sPoll}, 1
    s_cmp_gt_u32 s{sPoll}, {POLL_MAX}
    s_cbranch_scc1 {l1}
    s_sleep 1
    buffer_load_dword v{vt}, v{vt+1}, s[{srd}:{srd+3}], 0 offen sc1
    s_branch {l0}
    """)
    a.label(l1)
def dbg_flag_wait_arrive_b(a, cbase, vt):
    dbg_flag_wait_arrive(a, cbase, vt, 16)
def dbg_flag_wait_arrive(a, cbase, vt, srd=44):
    l0, l1 = a.newlabel("dbgp"), a.newlabel("dbgok")
    a(f"s_mov_b32 s{sPoll}, 0")
    a.label(l0)
    a(f"""
    s_waitcnt vmcnt(0)
    v_readfirstlane_b32 s75, v{vt}
    s_cmp_lg_u32 s75, 0
    s_cbranch_scc1 {l1}
    s_add_u32 s{sPoll}, s{sPoll}, 1
    s_cmp_gt_u32 s{sPoll}, {POLL_MAX}
    s_cbranch_scc1 {l1}
    s_sleep 1
    buffer_load_dword v{vt}, v{vt+1}, s[{srd}:{srd+3}], 0 offen sc1
    s_branch {l0}
    """)
    a.label(l1)
    a(f"s_and_b32 s75, s2, 7")
    a(f"s_add_u32 s75, s75, {cbase}")
    arrive(a, 75, vt)

class P0Q:
    vR, vC, vD, vA = 64, 84, 94, 104
    def __init__(self, a, L):
        self.a, self.L = a, L
    def issue(self):
        a, L = self.a, self.L
        vR, vC, vD, vA = self.vR, self.vC, self.vD, self.vA
        sXs, sWq = L.sA, L.sW
        sW1 = 16
        make_srd(a, sW1, pW1, pW1+1, 0, 640*3456)
        a(f"""
        v_lshrrev_b32 v2, 4, v1
        v_and_b32 v3, 15, v1
        s_lshl_b32 s40, s{L.sNt}, 4
        s_add_u32 s40, s40, s{L.sM0}
        s_lshl_b32 s41, s{L.sLw}, 2
        s_add_u32 s40, s40, s41
        s_cmp_lt_u32 s{L.sNt}, 8
        s_cselect_b32 s40, s40, 4096
        v_add_u32 v{vA}, s40, v2
        v_mul_u32_u24 v{vA+1}, 1280, v{vA}
        v_lshlrev_b32 v{vA+2}, 4, v3
        v_add_u32 v{vA+1}, v{vA+1}, v{vA+2}
        """)
        for j in range(5):
            a(f"buffer_load_dwordx4 {vr(vR+4*j,4)}, v{vA+1}, s[{sXs}:{sXs+3}], 0 offen offset:{256*j}")
        a(f"""
        s_lshr_b32 s41, s{L.sM0}, 7
        s_mul_i32 s42, s41, {40*3840}
        s_lshl_b32 s43, s{L.sLw}, 5
        s_add_u32 s43, s43, s{L.sN0}
        s_lshl_b32 s40, s43, 1
        s_add_u32 s42, s42, s40
        v_mul_u32_u24 v{vA+2}, 3840, v2
        v_lshlrev_b32 v{vA+3}, 2, v3
        v_add_u32 v{vA+2}, v{vA+2}, v{vA+3}
        """)
        for j in range(10):
            a(f"buffer_load_dword v{vC+j}, v{vA+2}, s[{sWq}:{sWq+3}], s42 offen")
            if j < 9: a(f"s_add_u32 s42, s42, {4*3840}")
        a(f"""
        s_mul_i32 s42, s41, {40*3456}
        s_add_u32 s42, s42, s40
        s_cmp_lt_u32 s{L.sNt}, 14
        s_cselect_b32 s42, s42, 0x7f000000
        v_mul_u32_u24 v{vA+4}, 3456, v2
        v_add_u32 v{vA+4}, v{vA+4}, v{vA+3}
        """)
        for j in range(10):
            a(f"buffer_load_dword v{vD+j}, v{vA+4}, s[{sW1}:{sW1+3}], s42 offen")
            if j < 9: a(f"s_add_u32 s42, s42, {4*3456}")
    def rows(self):
        a, L = self.a, self.L
        vR, vA = self.vR, self.vA
        S, Q, U = vA + 5, vA + 6, vA + 8
        for n in range(20):
            r = vR + n
            u = U + 2*(n & 1)
            a(f"v_lshlrev_b32 v{u}, 16, v{r}")
            a(f"v_and_b32 v{u+1}, 0xffff0000, v{r}")
            if n == 0:
                a(f"v_add_f32 v{S}, v{u}, v{u+1}")
                a(f"v_mul_f32 v{Q}, v{u}, v{u}")
            else:
                a(f"v_add_f32 v{S}, v{S}, v{u}")
                a(f"v_fmac_f32 v{Q}, v{u}, v{u}")
                a(f"v_add_f32 v{S}, v{S}, v{u+1}")
            a(f"v_fmac_f32 v{Q}, v{u+1}, v{u+1}")
        a("s_nop 1")
        for sh in (1, 2, 4, 8):
            a(f"v_add_f32_dpp v{S}, v{S}, v{S} row_shr:{sh} row_mask:0xf bank_mask:0xf bound_ctrl:0")
            a(f"v_add_f32_dpp v{Q}, v{Q}, v{Q} row_shr:{sh} row_mask:0xf bank_mask:0xf bound_ctrl:0")
            a("s_nop 0")
        a(f"""
        v_mul_f32 v{S}, {f32bits(1.0/640):#x}, v{S}
        v_mul_f32 v{Q}, {f32bits(1.0/640):#x}, v{Q}
        v_fma_f32 v{Q}, -v{S}, v{S}, v{Q}
        v_max_f32 v{Q}, 0, v{Q}
        v_add_f32 v{Q}, {f32bits(1e-5):#x}, v{Q}
        v_rsq_f32 v{Q}, v{Q}
        v_mov_b32 v{U}, v{S}
        v_lshlrev_b32 v{U+2}, 3, v{vA}
        v_mov_b32 v{U+3}, 0x7fffff00
        v_cmp_gt_u32 vcc, 2048, v{vA}
        v_mov_b32 v{U+1}, v{Q}
        v_cndmask_b32 v{U+2}, v{U+3}, v{U+2}, vcc
        s_mov_b32 s40, {WS_ST1}
        s_mov_b32 exec_lo, 0x80008000
        s_mov_b32 exec_hi, 0x80008000
        buffer_store_dwordx2 {vr(U,2)}, v{U+2}, s[{sWS}:{sWS+3}], s40 offen {SC}
        s_mov_b64 exec, -1
        """)
    def cols(self, which):
        a, L = self.a, self.L
        vA = self.vA
        regs, base, ncol, lim = (self.vC, WS_CS1, 1920, 15) if which == 0 else (self.vD, WS_CS2, 1792, 14)
        U = vA + 8
        A0, A1 = vA + 5, vA + 6
        for j in range(10):
            u = U + 2*(j & 1)
            if j == 0:
                a(f"v_lshlrev_b32 v{A0}, 16, v{regs}")
                a(f"v_and_b32 v{A1}, 0xffff0000, v{regs}")
            else:
                a(f"v_lshlrev_b32 v{u}, 16, v{regs+j}")
                a(f"v_and_b32 v{u+1}, 0xffff0000, v{regs+j}")
                a(f"v_add_f32 v{A0}, v{A0}, v{u}")
                a(f"v_add_f32 v{A1}, v{A1}, v{u+1}")
        a(f"""
        s_nop 0
        v_mov_b32 v{U}, v{A0}
        v_mov_b32 v{U+1}, v{A1}
        s_nop 1
        v_permlane16_swap_b32 v{A0}, v{U}
        v_permlane16_swap_b32 v{A1}, v{U+1}
        s_nop 1
        v_add_f32 v{A0}, v{A0}, v{U}
        v_add_f32 v{A1}, v{A1}, v{U+1}
        s_nop 0
        v_mov_b32 v{U}, v{A0}
        v_mov_b32 v{U+1}, v{A1}
        s_nop 1
        v_permlane32_swap_b32 v{A0}, v{U}
        v_permlane32_swap_b32 v{A1}, v{U+1}
        s_nop 1
        v_add_f32 v{U+4}, v{A0}, v{U}
        v_add_f32 v{U+5}, v{A1}, v{U+1}
        v_lshlrev_b32 v{U}, 3, v3
        s_mul_i32 s42, s41, {ncol*4}
        s_lshl_b32 s40, s43, 2
        s_add_u32 s42, s42, s40
        s_add_u32 s42, s42, {base}
        s_cmp_lt_u32 s{L.sNt}, {lim}
        s_cselect_b32 s42, s42, 0x7f000000
        s_mov_b64 exec, 0xffff
        buffer_store_dwordx2 {vr(U+4,2)}, v{U}, s[{sWS}:{sWS+3}], s42 offen {SC}
        s_mov_b64 exec, -1
        s_nop 1
        """)
def emit_p0r(a, L):
    sXs, vR, vA = 8, 32, 52
    make_srd(a, sXs, pX, pX+1, 0, 2048*1280)
    a(f"""
    v_lshrrev_b32 v2, 4, v1
    v_and_b32 v3, 15, v1
    s_lshl_b32 s40, s{L.sNt}, 4
    s_add_u32 s40, s40, s{L.sM0}
    s_lshl_b32 s41, s{sWV}, 2
    s_add_u32 s40, s40, s41
    s_cmp_lt_u32 s{L.sNt}, 8
    s_cselect_b32 s40, s40, 4096
    v_add_u32 v{vA}, s40, v2
    v_mul_u32_u24 v{vA+1}, 1280, v{vA}
    v_lshlrev_b32 v{vA+2}, 4, v3
    v_add_u32 v{vA+1}, v{vA+1}, v{vA+2}
    """)
    for j in range(5):
        a(f"buffer_load_dwordx4 {vr(vR+4*j,4)}, v{vA+1}, s[{sXs}:{sXs+3}], 0 offen offset:{256*j}")
def emit_p0r_finish(a, L, extra=0):
    vR, vA = 32, 52
    S, Q, S2, Q2, U = vA + 4, vA + 5, vA + 6, vA + 7, vA + 8
    for j in range(5):
        a(f"s_waitcnt vmcnt({4 - j + extra})")
        for n in range(4):
            r = vR + 4*j + n
            u = U + 2*(n & 1)
            a(f"v_lshlrev_b32 v{u}, 16, v{r}")
            a(f"v_and_b32 v{u+1}, 0xffff0000, v{r}")
            if j == 0 and n == 0:
                a(f"v_mov_b32 v{S}, v{u}")
                a(f"v_mul_f32 v{Q}, v{u}, v{u}")
                a(f"v_mov_b32 v{S2}, v{u+1}")
                a(f"v_mul_f32 v{Q2}, v{u+1}, v{u+1}")
            else:
                a(f"v_add_f32 v{S}, v{S}, v{u}")
                a(f"v_fmac_f32 v{Q}, v{u}, v{u}")
                a(f"v_add_f32 v{S2}, v{S2}, v{u+1}")
                a(f"v_fmac_f32 v{Q2}, v{u+1}, v{u+1}")
    a(f"v_add_f32 v{S}, v{S}, v{S2}")
    a(f"v_add_f32 v{Q}, v{Q}, v{Q2}")
    a("s_nop 1")
    for sh in (1, 2, 4, 8):
        a(f"v_add_f32_dpp v{S}, v{S}, v{S} row_shr:{sh} row_mask:0xf bank_mask:0xf bound_ctrl:0")
        a(f"v_add_f32_dpp v{Q}, v{Q}, v{Q} row_shr:{sh} row_mask:0xf bank_mask:0xf bound_ctrl:0")
        a("s_nop 0")
    a(f"""
    v_mul_f32 v{S}, {f32bits(1.0/640):#x}, v{S}
    v_mul_f32 v{Q}, {f32bits(1.0/640):#x}, v{Q}
    v_fma_f32 v{Q}, -v{S}, v{S}, v{Q}
    v_max_f32 v{Q}, 0, v{Q}
    v_add_f32 v{Q}, {f32bits(1e-5):#x}, v{Q}
    v_rsq_f32 v{Q}, v{Q}
    v_mov_b32 v{U}, v{S}
    v_lshlrev_b32 v{U+2}, 3, v{vA}
    v_mov_b32 v{U+3}, 0x7fffff00
    v_cmp_gt_u32 vcc, 2048, v{vA}
    v_mov_b32 v{U+1}, v{Q}
    v_cndmask_b32 v{U+2}, v{U+3}, v{U+2}, vcc
    s_mov_b32 s75, {WS_ST1}
    s_mov_b32 exec_lo, 0x80008000
    s_mov_b32 exec_hi, 0x80008000
    buffer_store_dwordx2 {vr(U,2)}, v{U+2}, s[{sWS}:{sWS+3}], s75 offen {SC}
    s_mov_b64 exec, -1
    """)
def p0r_arrive(a, L, vt):
    ok, skip = a.newlabel("fok"), a.newlabel("fsk")
    dbg_flag_wait(a, vt, landed=True)
    a(f"s_cmp_lt_u32 s{L.sNt}, 8")
    a(f"s_cbranch_scc0 {skip}")
    a(f"s_lshr_b32 s76, s{L.sM0}, 7")
    a(f"s_add_u32 s76, s76, {C_ST}")
    arrive(a, 76, vt - 2)
    a.label(skip)

def qkv_prefetch(a, L):
    make_srd(a, 12, pWQ, pWQ+1, 0, 640*3840)
    make_srd(a, 8, pX, pX+1, 0, 2048*1280)
    fl = E('QPF_FL', 'sc1')
    a(f"""
    s_lshr_b32 s40, s2, 3
    s_and_b32 s41, s2, 1
    v_and_b32 v2, 15, v1
    v_lshrrev_b32 v3, 4, v1
    v_lshlrev_b32 v2, 7, v2
    v_mul_u32_u24 v3, 3840, v3
    v_add_u32 v4, v2, v3
    s_mul_i32 s42, s40, {20*3840}
    s_lshl_b32 s43, s41, 11
    s_add_u32 s42, s42, s43
    s_mul_i32 s43, s{sWV}, {4*3840}
    s_add_u32 s42, s42, s43
    buffer_load_dword v162, v4, s[12:15], s42 offen {fl}
    """)
    l = a.newlabel("qpf")
    a(f"""
    s_cmp_eq_u32 s{sWV}, 0
    s_cbranch_scc0 {l}
    s_add_u32 s42, s42, {16*3840}
    buffer_load_dword v162, v4, s[12:15], s42 offen {fl}
    """)
    a.label(l)
    l = a.newlabel("qpf")
    a(f"""
    s_cmp_eq_u32 s{sWV}, 0
    s_cbranch_scc1 {l}
    s_and_b32 s41, s2, 7
    s_lshr_b32 s41, s41, 1
    s_lshl_b32 s41, s41, 5
    s_add_u32 s41, s41, s40
    s_mul_i32 s42, s41, 20480
    s_sub_u32 s43, s{sWV}, 1
    s_lshl_b32 s43, s43, 13
    s_add_u32 s42, s42, s43
    v_lshlrev_b32 v4, 7, v1
    buffer_load_dword v162, v4, s[8:11], s42 offen {fl}
    """)
    a.label(l)

def p0q_arrive(a, L, vt):
    ok = a.newlabel("fok")
    a(f"v_readfirstlane_b32 s75, v{vt}")
    a("s_cmp_lg_u32 s75, 0")
    a(f"s_cbranch_scc1 {ok}")
    dbg_flag_wait(a, vt)
    a.label(ok)
    a(f"""
    s_lshr_b32 s75, s{L.sM0}, 7
    s_add_u32 s75, s75, {C_ST}
    s_add_u32 s76, s{L.sNt}, {C_CS1}
    s_add_u32 s77, s{L.sNt}, {C_CS2}
    v_mov_b32 v{vt-1}, s75
    v_writelane_b32 v{vt-1}, s76, 1
    v_writelane_b32 v{vt-1}, s77, 2
    s_nop 0
    v_lshlrev_b32 v{vt-1}, 7, v{vt-1}
    v_add_u32 v{vt-1}, {WS_CNT}, v{vt-1}
    v_mov_b32 v{vt-2}, 1
    s_cmp_lt_u32 s{L.sNt}, 8
    s_cselect_b32 s75, 1, 0
    s_or_b32 s75, s75, 2
    s_cmp_lt_u32 s{L.sNt}, 14
    s_cselect_b32 s76, 4, 0
    s_or_b32 s75, s75, s76
    s_mov_b32 exec_lo, s75
    s_mov_b32 exec_hi, 0
    buffer_atomic_add v{vt-2}, v{vt-1}, s[{sWS}:{sWS+3}], 0 offen sc1
    s_mov_b64 exec, -1
    """)

class Repack:
    aB, vD, vT = 28, 28, 88
    sWo, sW2, sW1 = 12, 16, 40
    def __init__(self, a): self.a = a
    def issue(self):
        a = self.a
        aB, vD, T = self.aB, self.vD, self.vT
        make_srd(a, self.sWo, pWO, pWO+1, 0, 640*1280)
        make_srd(a, self.sW2, pW2, pW2+1, 0, 1728*1280)
        make_srd(a, self.sW1, pW1, pW1+1, 0, 640*3456)
        a(f"""
        s_mul_i32 s75, s2, 768
        s_lshl_b32 s76, s{sWV}, 6
        s_add_u32 s75, s75, s76
        v_add_u32 v{T}, s75, v1
        """)
        for r in range(3):
            g, it, sg, rho, c, row, nt, st_, x = T+1, T+2, T+3, T+4, T+5, T+6, T+7, T+8, T+9
            a(f"""
            v_add_u32 v{g}, {256*r}, v{T}
            s_mov_b32 s75, {(1 << 32) // 1280 + 1:#x}
            v_mul_hi_u32 v{it}, v{g}, s75
            v_mul_u32_u24 v{sg}, 1280, v{it}
            v_sub_u32 v{sg}, v{g}, v{sg}
            v_mul_u32_u24 v{rho}, 0xcccd, v{sg}
            v_lshrrev_b32 v{rho}, 19, v{rho}
            v_mul_u32_u24 v{c}, 10, v{rho}
            v_sub_u32 v{c}, v{sg}, v{c}
            v_and_b32 v{row}, 0x73, v{rho}
            v_and_b32 v{x}, 4, v{rho}
            v_lshlrev_b32 v{x}, 1, v{x}
            v_or_b32 v{row}, v{row}, v{x}
            v_and_b32 v{x}, 8, v{rho}
            v_lshrrev_b32 v{x}, 1, v{x}
            v_or_b32 v{row}, v{row}, v{x}
            v_lshlrev_b32 v{vD+r}, 4, v{g}
            v_cmp_gt_u32 vcc, 40, v{it}
            v_subrev_u32 v{x}, 40, v{it}
            s_nop 0
            v_cndmask_b32 v{x}, v{x}, v{it}, vcc
            v_mul_u32_u24 v{nt}, 0x4925, v{x}
            v_mul_u32_u24 v{st_}, 0xcccd, v{x}
            v_cndmask_b32 v{nt}, v{nt}, v{st_}, vcc
            v_lshrrev_b32 v{nt}, 18, v{nt}
            v_mov_b32 v{st_}, 14
            v_cndmask_b32 v{st_}, v{st_}, 5, vcc
            v_mul_u32_u24 v{st_}, v{st_}, v{nt}
            v_sub_u32 v{st_}, v{x}, v{st_}
            v_lshlrev_b32 v{st_}, 7, v{st_}
            v_add_u32 v{row}, v{row}, v{st_}
            v_mul_u32_u24 v{row}, 1280, v{row}
            v_mul_u32_u24 v{nt}, 160, v{nt}
            v_lshlrev_b32 v{c}, 4, v{c}
            v_add3_u32 v{row}, v{row}, v{nt}, v{c}
            v_mov_b32 v{x}, 0x7fffff00
            v_cndmask_b32 v{nt}, v{x}, v{row}, vcc
            v_cndmask_b32 v{row}, v{row}, v{x}, vcc
            v_cmp_gt_u32 vcc, 152, v{it}
            s_nop 1
            v_cndmask_b32 v{vD+r}, v{x}, v{vD+r}, vcc
            """)
            la, lb = a.newlabel("rpa"), a.newlabel("rpb")
            a(f"""
            v_cmp_gt_u32 vcc, 40, v{it}
            s_nop 4
            s_mov_b64 s[76:77], vcc
            s_mov_b64 exec, vcc
            s_cbranch_execz {la}
            buffer_load_dwordx4 {ar(aB+4*r,4)}, v{nt}, s[{self.sWo}:{self.sWo+3}], 0 offen
            {la}:
            s_not_b64 exec, s[76:77]
            s_cbranch_execz {lb}
            buffer_load_dwordx4 {ar(aB+4*r,4)}, v{row}, s[{self.sW2}:{self.sW2+3}], 0 offen
            {lb}:
            s_mov_b64 exec, -1
            """)
        a(f"""
        s_mul_i32 s75, s2, 8640
        s_mul_i32 s76, s{sWV}, 2176
        s_add_u32 s75, s75, s76
        v_lshlrev_b32 v{T}, 7, v1
        s_mov_b64 exec, 0x1ffff
        buffer_load_dword v31, v{T}, s[{self.sW1}:{self.sW1+3}], s75 offen sc1
        s_mov_b64 exec, -1
        """)
    def store(self, wait_after=True, pre="s_waitcnt vmcnt(0)"):
        a = self.a
        a(pre)
        a(f"s_mov_b32 s75, {WS_WOP}")
        for r in range(3):
            a(f"buffer_store_dwordx4 {ar(self.aB+4*r,4)}, v{self.vD+r}, s[{sWS}:{sWS+3}], s75 offen {SC}")
        if wait_after: a("s_waitcnt vmcnt(0)")
        else: a("s_nop 1")

class CoreL:
    sA, sW, sO = 8, 12, 16
    sM0, sN0, sT0, sT1, sT2, sT3 = 21, 22, 23, 24, 25, 26
    sLw, sSlot, sAoff, sWoff, sLds = 20, 28, 29, 30, 31
    sWm, sWn, sNt, sSeq, sSeqW = 32, 33, 34, 35, 36
    vAe, vAo, vWo = 4, 5, 6
    NST = 10
    def __init__(self, a, mode, tag):
        self.a, self.mode, self.tag = a, mode, tag
        self.qkv = mode == 'qkv'
        self.LDW = 3840 if self.qkv else 3456
    def map_tiles(self, idle_label):
        a, c = self.a, self
        if not c.qkv:
            a(f"""
            s_and_b32 s{c.sT3}, s{sRk}, 1
            s_lshl_b32 s{c.sM0}, s{sX}, 1
            s_add_u32 s{c.sM0}, s{c.sM0}, s{c.sT3}
            s_lshl_b32 s{c.sM0}, s{c.sM0}, 7
            s_lshr_b32 s{c.sNt}, s{sRk}, 1
            s_cmp_ge_u32 s{c.sNt}, 14
            s_cbranch_scc1 {idle_label}
            s_lshl_b32 s{c.sN0}, s{c.sNt}, 7
            s_mul_i32 s{c.sSeq}, s{c.sNt}, 3
            s_mul_i32 s{c.sT0}, s{c.sT3}, 5
            s_add_u32 s{c.sSeq}, s{c.sSeq}, s{c.sT0}
            s_mul_i32 s{c.sT0}, s{c.sSeq}, 0xcccd
            s_lshr_b32 s{c.sT0}, s{c.sT0}, 19
            s_mul_i32 s{c.sT0}, s{c.sT0}, 10
            s_sub_u32 s{c.sSeq}, s{c.sSeq}, s{c.sT0}
            """)
            if E('NOROTL'): a(f"s_mov_b32 s{c.sSeq}, 0")
            return
        NT_PER = 8 if c.qkv else 7
        NT_TOT = 15 if c.qkv else 14
        a(f"""
        s_and_b32 s{c.sT0}, s2, 7
        s_lshr_b32 s{c.sT1}, s2, 3
        s_lshr_b32 s{c.sT2}, s{c.sT0}, 1
        s_lshl_b32 s{c.sT2}, s{c.sT2}, 2
        s_and_b32 s{c.sT3}, s{c.sT1}, 3
        s_add_u32 s{c.sM0}, s{c.sT2}, s{c.sT3}
        s_lshl_b32 s{c.sM0}, s{c.sM0}, 7
        s_and_b32 s{c.sT0}, s{c.sT0}, 1
        s_mul_i32 s{c.sT0}, s{c.sT0}, {NT_PER}
        s_lshr_b32 s{c.sT1}, s{c.sT1}, 2
        s_add_u32 s{c.sNt}, s{c.sT0}, s{c.sT1}
        s_cmp_ge_u32 s{c.sT1}, {NT_PER}
        s_cbranch_scc1 {idle_label}
        s_cmp_ge_u32 s{c.sNt}, {NT_TOT}
        s_cbranch_scc1 {idle_label}
        s_lshl_b32 s{c.sN0}, s{c.sNt}, 7
        s_mul_i32 s{c.sSeq}, s{c.sT3}, 3
        s_add_u32 s{c.sSeq}, s{c.sSeq}, s{c.sT1}
        s_cmp_ge_u32 s{c.sSeq}, 10
        s_cselect_b32 s{c.sT0}, 10, 0
        s_sub_u32 s{c.sSeq}, s{c.sSeq}, s{c.sT0}
        """)
        if E('NOROTL'): a(f"s_mov_b32 s{c.sSeq}, 0")
    def loader_setup(self):
        a, c = self.a, self
        a(f"s_sub_u32 s{c.sLw}, s{sWV}, 4")
        if c.qkv:
            make_srd(a, c.sA, pX, pX+1, 0, 2048*1280)
            a(f"""
            v_lshrrev_b32 v2, 3, v1
            v_mul_u32_u24 v2, 1280, v2
            v_lshrrev_b32 v3, 4, v1
            v_and_b32 v7, 7, v1
            v_xor_b32 v3, v3, v7
            v_lshlrev_b32 v3, 4, v3
            v_add_u32 v{c.vAe}, v2, v3
            v_xor_b32 v{c.vAo}, 64, v{c.vAe}
            s_lshl_b32 s{c.sT0}, s{c.sLw}, 5
            s_add_u32 s{c.sT0}, s{c.sT0}, s{c.sM0}
            s_mul_i32 s{c.sAoff}, s{c.sT0}, 1280
            """)
            c.A_SSTEP = 128
        else:
            make_srd(a, c.sA, pWS, pWS+1, WS_H, SZ_ACT)
            a(f"""
            v_lshlrev_b32 v{c.vAe}, 4, v1
            v_add_u32 v{c.vAo}, 1024, v{c.vAe}
            s_lshl_b32 s{c.sT0}, s{c.sLw}, 16
            s_lshl_b32 s{c.sT1}, s{c.sM0}, 4
            s_add_u32 s{c.sAoff}, s{c.sT0}, s{c.sT1}
            """)
            c.A_SSTEP = 8 * 32768
        pw = pWQ if c.qkv else pW1
        make_srd(a, c.sW, pw, pw+1, 0, 640 * c.LDW)
        a(f"""
        v_lshrrev_b32 v2, 4, v1
        v_mul_u32_u24 v3, {c.LDW}, v2
        v_lshlrev_b32 v2, 2, v2
        v_and_b32 v7, 15, v1
        v_xor_b32 v2, v2, v7
        v_lshlrev_b32 v2, 4, v2
        v_add_u32 v{c.vWo}, v2, v3
        s_lshl_b32 s{c.sT0}, s{c.sLw}, 4
        s_mul_i32 s{c.sT0}, s{c.sT0}, {c.LDW}
        s_lshl_b32 s{c.sT1}, s{c.sN0}, 1
        s_add_u32 s{c.sWoff}, s{c.sT0}, s{c.sT1}
        s_lshl_b32 s{c.sLds}, s{c.sLw}, 12
        s_mul_i32 s{c.sT0}, s{c.sSeq}, {c.A_SSTEP}
        s_add_u32 s{c.sAoff}, s{c.sAoff}, s{c.sT0}
        s_mul_i32 s{c.sT0}, s{c.sSeq}, {64 * c.LDW}
        s_add_u32 s{c.sWoff}, s{c.sWoff}, s{c.sT0}
        s_mov_b32 s{c.sSeqW}, s{c.sSeq}
        """)
    def issue_A(self, seq):
        a, c = self.a, self
        slot = (seq % 4) * 32768
        for j in range(4):
            a(f"s_add_u32 m0, s{c.sLds}, {slot}" if j == 0 else "s_add_u32 m0, m0, 1024")
            if c.qkv:
                a(f"s_mov_b32 s{c.sT0}, s{c.sAoff}" if j == 0 else f"s_add_u32 s{c.sT0}, s{c.sT0}, {8*1280}")
            else:
                if j == 0: a(f"s_mov_b32 s{c.sT0}, s{c.sAoff}")
                elif j == 2: a(f"s_add_u32 s{c.sT0}, s{c.sT0}, 32768")
                else: a("s_nop 0")
            a(f"buffer_load_dwordx4 v{c.vAe if j % 2 == 0 else c.vAo}, s[{c.sA}:{c.sA+3}], s{c.sT0} offen {E('QNT_A','') if c.qkv else ''} lds")
        a(f"""
        s_add_u32 s{c.sSeq}, s{c.sSeq}, 1
        s_cmp_eq_u32 s{c.sSeq}, {c.NST}
        s_cselect_b32 s{c.sT0}, {c.NST * c.A_SSTEP}, 0
        s_cselect_b32 s{c.sSeq}, 0, s{c.sSeq}
        s_add_u32 s{c.sAoff}, s{c.sAoff}, {c.A_SSTEP}
        s_sub_u32 s{c.sAoff}, s{c.sAoff}, s{c.sT0}
        """)
    def issue_W(self, seq):
        a, c = self.a, self
        slot = (seq % 4) * 32768 + 16384
        for j in range(4):
            a(f"s_add_u32 m0, s{c.sLds}, {slot}" if j == 0 else "s_add_u32 m0, m0, 1024")
            a(f"s_mov_b32 s{c.sT0}, s{c.sWoff}" if j == 0 else f"s_add_u32 s{c.sT0}, s{c.sT0}, {4 * c.LDW}")
            a(f"buffer_load_dwordx4 v{c.vWo}, s[{c.sW}:{c.sW+3}], s{c.sT0} offen {E('QNT_W','') if c.qkv else ''} lds")
        a(f"""
        s_add_u32 s{c.sSeqW}, s{c.sSeqW}, 1
        s_cmp_eq_u32 s{c.sSeqW}, {c.NST}
        s_cselect_b32 s{c.sT0}, {c.NST * 64 * c.LDW}, 0
        s_cselect_b32 s{c.sSeqW}, 0, s{c.sSeqW}
        s_add_u32 s{c.sWoff}, s{c.sWoff}, {64 * c.LDW}
        s_sub_u32 s{c.sWoff}, s{c.sWoff}, s{c.sT0}
        """)
    vLs = 16
    vSx, vSq, vCs, vU = 48, 56, 64, 72
    vLs = 16
    def lstats_init(self): pass
    def lst_poll_issue(self):
        a, c = self.a, self
        v = c.vLs
        a(f"""
        s_add_u32 s{c.sT0}, s{c.sNt}, {C_CS1 if c.qkv else C_CS2}
        s_lshr_b32 s{c.sT1}, s{c.sM0}, 7
        s_add_u32 s{c.sT1}, s{c.sT1}, {C_ST}
        v_mov_b32 v{v}, s{c.sT0}
        v_writelane_b32 v{v}, s{c.sT1}, 1
        v_mov_b32 v{v+1}, 16
        v_writelane_b32 v{v+1}, {8 if c.qkv else 0}, 1
        v_lshlrev_b32 v{v}, 7, v{v}
        v_add_u32 v{v}, {WS_CNT}, v{v}
        s_mov_b64 exec, 3
        buffer_load_dword v{v+2}, v{v}, s[{sWS}:{sWS+3}], 0 offen sc1
        s_mov_b64 exec, -1
        """)
    def lst_check_issue(self, q):
        a, c = self.a, self
        v = c.vLs
        ok = a.newlabel("lok")
        a(f"""
        s_waitcnt vmcnt({q.need('poll')})
        s_mov_b64 exec, 3
        v_cmp_gt_u32 vcc, v{v+1}, v{v+2}
        s_nop 4
        s_cmp_eq_u64 vcc, 0
        s_cbranch_scc1 {ok}
        """)
        poll(a, v, v + 1, 2, v + 2)
        a.label(ok)
        a("s_mov_b64 exec, -1")
        ncol = 1920 if c.qkv else 1792
        d = v + 8
        a(f"""
        v_and_b32 v{v+4}, 31, v1
        v_lshlrev_b32 v{v+5}, 2, v{v+4}
        v_lshlrev_b32 v{v+4}, 3, v{v+4}
        s_lshl_b32 s{c.sT0}, s{c.sLw}, 5
        s_add_u32 s{c.sT1}, s{c.sT0}, s{c.sN0}
        s_lshl_b32 s{c.sT1}, s{c.sT1}, 2
        s_add_u32 s{c.sT1}, s{c.sT1}, {WS_CS1 if c.qkv else WS_CS2}
        s_mov_b32 exec_hi, 0
        """)
        for j in range(16):
            a(f"buffer_load_dword v{d+j}, v{v+5}, s[{sWS}:{sWS+3}], s{c.sT1} offen")
            if j < 15: a(f"s_add_u32 s{c.sT1}, s{c.sT1}, {ncol*4}")
        a(f"""
        s_mov_b32 exec_lo, 0
        s_mov_b32 exec_hi, -1
        s_add_u32 s{c.sT1}, s{c.sT0}, s{c.sM0}
        s_lshl_b32 s{c.sT1}, s{c.sT1}, 3
        s_add_u32 s{c.sT1}, s{c.sT1}, {WS_ST1 if c.qkv else WS_ST2}
        """)
        npart = 1 if c.qkv else 8
        for j in range(npart):
            a(f"buffer_load_dwordx2 {vr(d+16+2*j,2)}, v{v+4}, s[{sWS}:{sWS+3}], s{c.sT1} offen")
            if j < npart - 1: a(f"s_add_u32 s{c.sT1}, s{c.sT1}, {2048*8}")
        a("s_mov_b64 exec, -1")
        q.push("stats", 16 + npart)
    def lst_finish(self, q):
        a, c = self.a, self
        v = c.vLs
        d = v + 8
        a(f"s_waitcnt vmcnt({q.need('stats')})")
        for j in range(1, 16):
            a(f"v_add_f32 v{d}, v{d}, v{d+j}")
        S, Q = d + 16, d + 17
        if not c.qkv:
            for j in range(1, 8):
                a(f"v_add_f32 v{S}, v{S}, v{S+2*j}")
                a(f"v_add_f32 v{Q}, v{Q}, v{Q+2*j}")
            a(f"""
            v_mul_f32 v{S}, {f32bits(1.0/640):#x}, v{S}
            v_mul_f32 v{Q}, {f32bits(1.0/640):#x}, v{Q}
            v_fma_f32 v{Q}, -v{S}, v{S}, v{Q}
            v_max_f32 v{Q}, 0, v{Q}
            v_add_f32 v{Q}, {f32bits(1e-5):#x}, v{Q}
            v_rsq_f32 v{Q}, v{Q}
            """)
        a(f"""
        s_lshl_b32 s{c.sT0}, s{c.sLw}, 7
        s_add_u32 s{c.sT0}, s{c.sT0}, {STAT}
        v_add_u32 v{v+5}, s{c.sT0}, v{v+5}
        s_mov_b32 exec_hi, 0
        ds_write_b32 v{v+5}, v{d} offset:1024
        s_mov_b32 exec_lo, 0
        s_mov_b32 exec_hi, -1
        ds_write_b32 v{v+5}, v{S}
        ds_write_b32 v{v+5}, v{Q} offset:512
        s_mov_b64 exec, -1
        s_waitcnt lgkmcnt(0)
        """)
    def tq_poll_issue(self):
        a, c = self.a, self
        v = c.vLs
        a(f"""
        s_lshr_b32 s{c.sT1}, s{c.sM0}, 7
        s_add_u32 s{c.sT1}, s{c.sT1}, {C_ST}
        s_lshl_b32 s{c.sT1}, s{c.sT1}, 7
        s_add_u32 s{c.sT1}, s{c.sT1}, {WS_CNT}
        v_mov_b32 v{v}, s{c.sT1}
        v_mov_b32 v{v+1}, 8
        s_mov_b64 exec, 1
        buffer_load_dword v{v+2}, v{v}, s[{sWS}:{sWS+3}], 0 offen sc1
        s_mov_b64 exec, -1
        """)
    def tq_check_issue(self, q):
        a, c = self.a, self
        v = c.vLs
        ok = a.newlabel("lok")
        a(f"""
        s_waitcnt vmcnt({q.need('poll')})
        v_readfirstlane_b32 s{c.sT0}, v{v+2}
        s_cmp_ge_u32 s{c.sT0}, 8
        s_cbranch_scc1 {ok}
        """)
        poll(a, v, v + 1, 1, v + 2)
        a.label(ok)
        a(f"""
        v_and_b32 v{v+4}, 31, v1
        v_lshlrev_b32 v{v+5}, 2, v{v+4}
        v_lshlrev_b32 v{v+4}, 3, v{v+4}
        s_lshl_b32 s{c.sT0}, s{c.sLw}, 5
        s_add_u32 s{c.sT1}, s{c.sT0}, s{c.sM0}
        s_lshl_b32 s{c.sT1}, s{c.sT1}, 3
        s_add_u32 s{c.sT1}, s{c.sT1}, {WS_ST1}
        buffer_load_dwordx2 {vr(v+8,2)}, v{v+4}, s[{sWS}:{sWS+3}], s{c.sT1} offen
        """)
        q.push("stats", 1)
    def tq_finish(self, q):
        a, c = self.a, self
        v = c.vLs
        a(f"""
        s_waitcnt vmcnt({q.need('stats')})
        s_lshl_b32 s{c.sT0}, s{c.sLw}, 7
        s_add_u32 s{c.sT0}, s{c.sT0}, {STAT}
        v_add_u32 v{v+5}, s{c.sT0}, v{v+5}
        ds_write_b32 v{v+5}, v{v+8}
        ds_write_b32 v{v+5}, v{v+9} offset:512
        """)
    def tok_issue(self, q):
        a, c = self.a, self
        v = c.vLs
        d = v + 8
        a(f"""
        v_and_b32 v{v+4}, 31, v1
        v_lshlrev_b32 v{v+5}, 2, v{v+4}
        v_lshlrev_b32 v{v+4}, 3, v{v+4}
        s_lshl_b32 s{c.sT0}, s{c.sLw}, 5
        s_add_u32 s{c.sT1}, s{c.sT0}, s{c.sM0}
        s_lshl_b32 s{c.sT1}, s{c.sT1}, 3
        s_add_u32 s{c.sT1}, s{c.sT1}, {WS_ST2}
        s_mov_b32 exec_hi, 0
        """)
        for j in range(8):
            a(f"buffer_load_dwordx2 {vr(d+2*j,2)}, v{v+4}, s[{sWS}:{sWS+3}], s{c.sT1} offen")
            if j < 7: a(f"s_add_u32 s{c.sT1}, s{c.sT1}, {2048*8}")
        a("s_mov_b32 exec_hi, -1")
        q.push("stats", 8)
    def tok_finish(self, q):
        a, c = self.a, self
        v = c.vLs
        S, Q = v + 8, v + 9
        a(f"s_waitcnt vmcnt({q.need('stats')})")
        for j in range(1, 8):
            a(f"v_add_f32 v{S}, v{S}, v{S+2*j}")
            a(f"v_add_f32 v{Q}, v{Q}, v{Q+2*j}")
        a(f"""
        v_mul_f32 v{S}, {f32bits(1.0/640):#x}, v{S}
        v_mul_f32 v{Q}, {f32bits(1.0/640):#x}, v{Q}
        v_fma_f32 v{Q}, -v{S}, v{S}, v{Q}
        v_max_f32 v{Q}, 0, v{Q}
        v_add_f32 v{Q}, {f32bits(1e-5):#x}, v{Q}
        v_rsq_f32 v{Q}, v{Q}
        s_lshl_b32 s{c.sT0}, s{c.sLw}, 7
        s_add_u32 s{c.sT0}, s{c.sT0}, {STAT}
        v_add_u32 v{v+5}, s{c.sT0}, v{v+5}
        s_mov_b32 exec_hi, 0
        ds_write_b32 v{v+5}, v{S}
        ds_write_b32 v{v+5}, v{Q} offset:512
        s_mov_b32 exec_hi, -1
        """)
    def loader_main(self, q, p0=None):
        a, c = self.a, self
        for s_ in range(c.NST):
            tags = [f'A{s_}', f'W{s_}']
            a(f"s_waitcnt vmcnt({q.need(*tags)}) lgkmcnt(0)")
            if getattr(c, 'ldstamps', False) and s_ in (0, 1, 2): st(a, 4 + s_)
            a("s_barrier")
            stx(a, f"{c.tag}l{s_}")
            if c.qkv:
                vd = 70
                if s_ == 1: wave_only(a, 4, lambda: a(f"buffer_load_dword v{vd}, v{vd+1}, s[44:47], 0 offen sc1"))
                if s_ == 4: wave_only(a, 4, lambda: p0r_arrive(a, c, vd))
                def rpa():
                    a("s_and_b32 s76, s2, 7")
                    a(f"s_add_u32 s76, s76, {C_RPS}")
                    arrive(a, 76, vd - 2)
                if s_ == 8: wave_only(a, 4, rpa)
                if s_ == 3: wave_only(a, 7, lambda: reg_step1(a, vd))
                if s_ == 5: wave_only(a, 7, lambda: reg_step2(a, vd))
                if s_ == 7: wave_only(a, 7, lambda: reg_step3(a, vd))
            if s_ + PD < c.NST and not (E('X_NODMA') and c.qkv):
                c.issue_A(s_ + PD); q.push(f"A{s_+PD}", 4)
                c.issue_W(s_ + PD); q.push(f"W{s_+PD}", 4)
            if not c.qkv:
                if s_ == 2: c.tok_issue(q)
                if s_ == 5: c.tok_finish(q)
            else:
                if s_ == 8 and getattr(c, 'hook7', None): c.hook7()
                if s_ == 6:
                    c.tq_poll_issue(); q.push("poll", 1)
                if s_ == 7: c.tq_check_issue(q)
                if s_ == 9: c.tq_finish(q)

    vAd, vX, vW, vAcc, vT, vSt = 24, 32, 32, 64, 128, 144
    def compute_setup(self):
        a, c = self.a, self
        NXA = 8 if c.qkv else 2
        c.NXA = NXA
        c.vXa = 4
        c.vWa = c.vXa + 2 * NXA
        vXa, vWa, vT = c.vXa, c.vWa, c.vT
        t0, t1 = vT, vT + 1
        a(f"""
        s_lshr_b32 s{c.sWm}, s{sWV}, 1
        s_and_b32 s{c.sWn}, s{sWV}, 1
        v_and_b32 v2, 31, v1
        v_lshrrev_b32 v3, 5, v1
        """)
        if c.qkv:
            a(f"""
            v_lshrrev_b32 v{t0}, 1, v1
            v_and_b32 v{t0}, 7, v{t0}
            v_xor_b32 v{t0}, v{t0}, v3
            v_lshlrev_b32 v{t0}, 4, v{t0}
            v_lshlrev_b32 v{t1}, 7, v2
            v_add_u32 v{t0}, v{t0}, v{t1}
            s_lshl_b32 s{c.sT0}, s{c.sWm}, 13
            s_lshl_b32 s{c.sT1}, s{c.sWn}, 12
            s_add_u32 s{c.sT0}, s{c.sT0}, s{c.sT1}
            v_add_u32 v{t0}, s{c.sT0}, v{t0}
            """)
            for s in range(4):
                a(f"v_xor_b32 v{vXa + s}, {32 * s}, v{t0}")
                a(f"v_xor_b32 v{vXa + 4 + s}, 4096, v{vXa + s}")
        else:
            a(f"""
            v_lshlrev_b32 v{t0}, 11, v3
            v_lshlrev_b32 v{t1}, 4, v2
            v_add_u32 v{t0}, v{t0}, v{t1}
            s_lshl_b32 s{c.sT0}, s{c.sWm}, 10
            v_add_u32 v{vXa}, s{c.sT0}, v{t0}
            v_add_u32 v{vXa + 1}, 512, v{vXa}
            """)
        for i in range(NXA):
            a(f"v_add_u32 v{vXa + NXA + i}, 65536, v{vXa + i}")
        a(f"""
        v_lshrrev_b32 v{t0}, 2, v1
        v_and_b32 v{t0}, 3, v{t0}
        v_lshlrev_b32 v{t1}, 3, v3
        v_add_u32 v{t1}, v{t1}, v{t0}
        v_lshlrev_b32 v{t1}, 8, v{t1}
        v_lshlrev_b32 v{t0}, 6, v{t0}
        v_add_u32 v{t1}, v{t1}, v{t0}
        v_lshrrev_b32 v{t0}, 4, v1
        v_and_b32 v{t0}, 1, v{t0}
        v_lshlrev_b32 v{t0}, 5, v{t0}
        v_add_u32 v{t1}, v{t1}, v{t0}
        v_lshrrev_b32 v{t0}, 1, v1
        v_and_b32 v{t0}, 1, v{t0}
        v_lshlrev_b32 v{t0}, 4, v{t0}
        v_add_u32 v{t1}, v{t1}, v{t0}
        v_and_b32 v{t0}, 1, v1
        v_lshlrev_b32 v{t0}, 3, v{t0}
        v_add_u32 v{t1}, v{t1}, v{t0}
        v_add_u32 v{t1}, 16384, v{t1}
        s_lshl_b32 s{c.sT0}, s{c.sWn}, 7
        s_lshl_b32 s{c.sT1}, s{c.sWm}, 6
        s_add_u32 s{c.sT0}, s{c.sT0}, s{c.sT1}
        v_xor_b32 v{vWa}, s{c.sT0}, v{t1}
        v_xor_b32 v{vWa + 1}, 64, v{vWa}
        v_add_u32 v{vWa + 2}, 65536, v{vWa}
        v_add_u32 v{vWa + 3}, 65536, v{vWa + 1}
        """)
    def addr_qk(self):
        a, c = self.a, self
        vT, vAd = c.vT, c.vAd
        t0, t1 = vT, vT + 1
        a(f"""
        s_cmp_lt_u32 s{c.sNt}, 5
        s_cselect_b32 s{c.sT0}, 0, 640
        s_sub_u32 s{c.sT2}, s{c.sN0}, s{c.sT0}
        s_lshl_b32 s{c.sT1}, s{c.sWn}, 6
        s_add_u32 s{c.sT2}, s{c.sT2}, s{c.sT1}
        s_lshr_b32 s{c.sT2}, s{c.sT2}, 3
        v_add_u32 v{t0}, s{c.sT2}, v3
        v_lshlrev_b32 v{vT+4}, 4, v2
        """)
        for ft in range(2):
            for j in range(2):
                d = vAd + ft*2 + j
                a(f"""
                s_xor_b32 s{c.sT3}, s{c.sWm}, {ft}
                s_lshl_b32 s{c.sT3}, s{c.sT3}, 2
                s_add_u32 s{c.sT3}, s{c.sT3}, {2*j}
                v_add_u32 v{t1}, s{c.sT3}, v{t0}
                v_mul_u32_u24 v{vT+2}, 0xcccd, v{t1}
                v_lshrrev_b32 v{vT+2}, 18, v{vT+2}
                v_mul_u32_u24 v{vT+3}, 5, v{vT+2}
                v_sub_u32 v{vT+3}, v{t1}, v{vT+3}
                v_lshlrev_b32 v{vT+3}, 9, v{vT+3}
                v_mul_u32_u24 v{vT+2}, 0x28000, v{vT+2}
                v_add3_u32 v{d}, v{vT+2}, v{vT+3}, v{vT+4}
                """)
        a(f"""
        s_lshr_b32 s{c.sT0}, s{c.sM0}, 5
        s_lshl_b32 s{c.sT1}, s{c.sWm}, 1
        s_add_u32 s{c.sT0}, s{c.sT0}, s{c.sT1}
        s_add_u32 s{c.sT1}, s{c.sT0}, s{c.sWn}
        s_mul_i32 s40, s{c.sT1}, 2560
        s_xor_b32 s{c.sT1}, s{c.sWn}, 1
        s_add_u32 s{c.sT1}, s{c.sT0}, s{c.sT1}
        s_mul_i32 s41, s{c.sT1}, 2560
        s_cmp_lt_u32 s{c.sNt}, 5
        s_cselect_b32 s{c.sT0}, {WS_Q}, {WS_K}
        s_add_u32 s{c.sO}, s{pWS}, s{c.sT0}
        s_addc_u32 s{c.sO+1}, s{pWS+1}, 0
        s_and_b32 s{c.sO+1}, s{c.sO+1}, 0xffff
        s_mov_b32 s{c.sO+2}, {SZ_QK}
        s_mov_b32 s{c.sO+3}, 0x20000
        """)
    def addr_f(self):
        a, c = self.a, self
        vT, vAd = c.vT, c.vAd
        t0, t1 = vT, vT + 1
        a(f"""
        s_lshl_b32 s{c.sT1}, s{c.sWn}, 6
        s_add_u32 s{c.sT2}, s{c.sN0}, s{c.sT1}
        s_lshr_b32 s{c.sT2}, s{c.sT2}, 3
        v_add_u32 v{t0}, s{c.sT2}, v3
        v_lshlrev_b32 v{t0}, 15, v{t0}
        v_lshlrev_b32 v{t1}, 4, v2
        v_add_u32 v{t0}, v{t0}, v{t1}
        """)
        for ft in range(2):
            for j in range(2):
                a(f"s_xor_b32 s{c.sT3}, s{c.sWm}, {ft}")
                a(f"s_lshl_b32 s{c.sT3}, s{c.sT3}, 2")
                a(f"s_add_u32 s{c.sT3}, s{c.sT3}, {2*j}")
                a(f"s_lshl_b32 s{c.sT3}, s{c.sT3}, 15")
                a(f"v_add_u32 v{vAd + ft*2 + j}, s{c.sT3}, v{t0}")
        a(f"""
        s_lshl_b32 s{c.sT1}, s{c.sWm}, 6
        s_add_u32 s{c.sT0}, s{c.sM0}, s{c.sT1}
        s_lshl_b32 s40, s{c.sT0}, 4
        s_add_u32 s41, s40, 512
        """)
        make_srd(a, c.sO, pWS, pWS+1, WS_F, SZ_F)
    def addr_v(self):
        a, c = self.a, self
        vT, vAd = c.vT, c.vAd
        t0, t1 = vT, vT + 1
        for ft in range(2):
            a(f"""
            s_lshl_b32 s{c.sT1}, s{c.sWn}, 6
            s_add_u32 s{c.sT0}, s{c.sN0}, s{c.sT1}
            s_xor_b32 s{c.sT1}, s{c.sWm}, {ft}
            s_lshl_b32 s{c.sT1}, s{c.sT1}, 5
            s_add_u32 s{c.sT0}, s{c.sT0}, s{c.sT1}
            s_sub_u32 s{c.sT0}, s{c.sT0}, 1280
            v_add_u32 v{t0}, s{c.sT0}, v2
            v_mul_u32_u24 v{t1}, 0xcccd, v{t0}
            v_lshrrev_b32 v{t1}, 20, v{t1}
            v_mul_u32_u24 v{vT+2}, 20, v{t1}
            v_sub_u32 v{t0}, v{t0}, v{vT+2}
            v_lshlrev_b32 v{t0}, 4, v{t0}
            v_mul_u32_u24 v{t1}, 0x14000, v{t1}
            v_add_u32 v{t0}, v{t0}, v{t1}
            v_mul_u32_u24 v{t1}, 320, v3
            v_add_u32 v{vAd+ft}, v{t0}, v{t1}
            """)
        a(f"""
        s_lshl_b32 s{c.sT1}, s{c.sWm}, 6
        s_add_u32 s{c.sT0}, s{c.sM0}, s{c.sT1}
        s_lshr_b32 s{c.sT0}, s{c.sT0}, 4
        s_lshl_b32 s{c.sT1}, s{c.sWn}, 1
        s_add_u32 s{c.sT1}, s{c.sT1}, s{c.sT0}
        s_mul_i32 s40, s{c.sT1}, 640
        s_add_u32 s41, s40, 640
        s_xor_b32 s{c.sT1}, s{c.sWn}, 1
        s_lshl_b32 s{c.sT1}, s{c.sT1}, 1
        s_add_u32 s{c.sT1}, s{c.sT1}, s{c.sT0}
        s_mul_i32 s42, s{c.sT1}, 640
        s_add_u32 s43, s42, 640
        """)
        make_srd(a, c.sO, pWS, pWS+1, WS_V, SZ_QKV)
    def stats_poll_issue(self):
        a, c = self.a, self
        vS = c.vSt
        a(f"""
        v_lshlrev_b32 v{vS+30}, 7, v1
        v_add_u32 v{vS+30}, {WS_CNT + (C_P0 if c.qkv else C_W1)*128}, v{vS+30}
        s_mov_b64 exec, 0xff
        buffer_load_dword v{vS+29}, v{vS+30}, s[{sWS}:{sWS+3}], 0 offen sc1
        s_mov_b64 exec, -1
        """)
    def stats_poll_check(self):
        a, c = self.a, self
        vS = c.vSt
        ok = a.newlabel("stok")
        a(f"""
        s_waitcnt vmcnt(0)
        s_mov_b64 exec, 0xff
        v_cmp_gt_u32 vcc, 128, v{vS+29}
        s_nop 4
        s_cmp_eq_u64 vcc, 0
        s_cbranch_scc1 {ok}
        v_mov_b32 v{vS+28}, 128
        """)
        poll(a, vS + 30, vS + 28, 8, vS + 29)
        a.label(ok)
        a("s_mov_b64 exec, -1")
        a("s_nop 3")
    def stats_issue(self):
        a, c = self.a, self
        vS = c.vSt
        a(f"""
        v_lshlrev_b32 v{vS+31}, 2, v2
        v_lshlrev_b32 v{vS+30}, 3, v2
        s_lshl_b32 s{c.sT0}, s{sWV}, 5
        s_add_u32 s{c.sT1}, s{c.sT0}, s{c.sM0}
        s_lshl_b32 s{c.sT1}, s{c.sT1}, 3
        s_add_u32 s{c.sT1}, s{c.sT1}, {WS_ST2}
        """)
        for j in range(8):
            a(f"buffer_load_dwordx2 {vr(vS+8+2*j,2)}, v{vS+30}, s[{sWS}:{sWS+3}], s{c.sT1} offen")
            if j < 7: a(f"s_add_u32 s{c.sT1}, s{c.sT1}, {2048*8}")
    def stats_finish(self):
        a, c = self.a, self
        vS = c.vSt
        a("s_waitcnt vmcnt(0)")
        S, Q = vS + 8, vS + 9
        for j in range(1, 8):
            a(f"v_add_f32 v{S}, v{S}, v{S+2*j}")
            a(f"v_add_f32 v{Q}, v{Q}, v{Q+2*j}")
        a(f"""
        v_mul_f32 v{S}, {f32bits(1.0/640):#x}, v{S}
        v_mul_f32 v{Q}, {f32bits(1.0/640):#x}, v{Q}
        v_fma_f32 v{Q}, -v{S}, v{S}, v{Q}
        v_max_f32 v{Q}, 0, v{Q}
        v_add_f32 v{Q}, {f32bits(1e-5):#x}, v{Q}
        v_rsq_f32 v{Q}, v{Q}
        s_lshl_b32 s{c.sT0}, s{sWV}, 7
        s_add_u32 s{c.sT0}, s{c.sT0}, {STAT}
        v_add_u32 v{vS+31}, s{c.sT0}, v{vS+31}
        ds_write_b32 v{vS+31}, v{S}
        ds_write_b32 v{vS+31}, v{Q} offset:512
        """)
    aX = 4
    def read_list(self, i):
        c = self
        st_, step, buf = i // 4, i % 4, i % 3
        slot = st_ % 4
        win, base = slot >> 1, (slot & 1) * 32768
        L = []
        for lt in range(2):
            if c.qkv:
                L.append(f"ds_read_b128 {ar(c.aX + buf*8 + lt*4, 4)}, v{c.vXa + win*8 + lt*4 + step} offset:{base}")
            else:
                L.append(f"ds_read_b128 {ar(c.aX + buf*8 + lt*4, 4)}, v{c.vXa + win*2 + lt} offset:{base + step*4096}")
        for lf in range(2):
            for h2 in range(2):
                L.append(f"ds_read_b64_tr_b16 {vr(c.vW + buf*8 + lf*4 + h2*2, 2)}, v{c.vWa + win*2 + lf} offset:{base + step*4096 + h2*1024}")
        return L
    def reads(self, i):
        for r in self.read_list(i): self.a(r)
    def mfma(self, i, k, orientY):
        a, c = self.a, self
        buf = i % 3
        lf, lt = k >> 1, k & 1
        acc = c.vAcc + (lf*2 + lt) * 16
        xa, wa = ar(c.aX + buf*8 + lt*4, 4), vr(c.vW + buf*8 + lf*4, 4)
        cc = "0" if i == 0 else vr(acc, 16)
        if orientY: a(f"v_mfma_f32_32x32x16_bf16 {vr(acc,16)}, {wa}, {xa}, {cc}")
        else: a(f"v_mfma_f32_32x32x16_bf16 {vr(acc,16)}, {xa}, {wa}, {cc}")
    def mainloop(self, orientY, stamp0=None, tag='q'):
        a, c = self.a, self
        vS = c.vSt
        CS = vS
        UU = c.vT
        a(f"v_mov_b32 v{CS}, 0")
        a(f"v_mov_b32 v{CS+1}, 0")
        a("s_barrier")
        if stamp0 is not None: st(a, stamp0)
        stx(a, tag + '_s0')
        c.reads(0)
        c.reads(1)
        for i in range(40):
            buf = i % 3
            Wl = c.vW + buf*8
            ops = []
            for r in range(4):
                u = UU + 2*(r & 1)
                ops += [f"v_lshlrev_b32 v{u}, 16, v{Wl+r}", f"v_and_b32 v{u+1}, 0xffff0000, v{Wl+r}",
                        f"v_add_f32 v{CS}, v{CS}, v{u}", f"v_add_f32 v{CS+1}, v{CS+1}, v{u+1}"]
            if E('X_NOVALU'): ops = []
            rl = c.read_list(i + 2) if i + 2 < 40 else []
            if i == 4: stx(a, tag + '_s1')
            if i == 20: stx(a, tag + '_s5')
            a(f"s_waitcnt lgkmcnt({6 if i + 1 < 40 else 0})")
            c.mfma(i, 0, orientY)
            if i + 2 < 40 and (i + 2) % 4 == 0:
                if c.qkv and i == 6: c.rp.store(wait_after=False, pre="s_waitcnt vmcnt(1)")
                if c.qkv and i == 14: a("s_waitcnt vmcnt(3)")
                if c.qkv and i == 30: a("s_waitcnt vmcnt(0)")
                a("s_barrier")
            for o in rl[0:2] + ops[0:3]: a(o)
            c.mfma(i, 1, orientY)
            for o in rl[2:4] + ops[3:6]: a(o)
            c.mfma(i, 2, orientY)
            for o in rl[4:6] + ops[6:10]: a(o)
            c.mfma(i, 3, orientY)
            for o in ops[10:16]: a(o)
        U = vS + 14
        a(f"""
        v_add_f32 v{CS}, v{CS}, v{CS+1}
        s_nop 0
        v_mov_b32 v{CS+1}, v{CS}
        s_nop 1
        v_permlane32_swap_b32 v{CS}, v{CS+1}
        s_nop 1
        v_add_f32 v{CS}, v{CS}, v{CS+1}
        """)
        a(f"""
        s_lshl_b32 s{c.sT0}, s{c.sWn}, 8
        s_lshl_b32 s{c.sT1}, s{c.sWm}, 7
        s_add_u32 s{c.sT0}, s{c.sT0}, s{c.sT1}
        s_add_u32 s{c.sT0}, s{c.sT0}, {STAT + 1024}
        v_lshlrev_b32 v{U}, 2, v2
        v_add_u32 v{U+1}, s{c.sT0}, v{U}
        ds_write_b32 v{U+1}, v{CS}
        """)
        a("s_waitcnt lgkmcnt(0)")
    def dbg_issue(self):
        a, c = self.a, self
        make_srd(a, 44, pDBG, pDBG+1, 0, 256)
        a(f"v_lshlrev_b32 v{c.vSt+27}, 2, v1")
        a("s_mov_b64 exec, 0x1ff")
        a(f"buffer_load_dword v{c.vSt+26}, v{c.vSt+27}, s[44:47], 0 offen sc1")
        a("s_mov_b64 exec, -1")
        a("s_nop 1")
    def epilogue_Y(self, kind):
        a, c = self.a, self
        vT, vAcc, vAd = c.vT, c.vAcc, c.vAd
        vM, vR, vC = vT, vT + 2, 32
        for lt in range(2):
            a(f"""
            s_lshl_b32 s{c.sT1}, s{c.sWm}, 8
            s_add_u32 s{c.sT0}, s{c.sT1}, {STAT + (0 if c.qkv else lt*128)}
            s_xor_b32 s{c.sT1}, s{c.sWn}, {lt}
            s_lshl_b32 s{c.sT1}, s{c.sT1}, {7 if c.qkv else 31}
            s_add_u32 s{c.sT0}, s{c.sT0}, {'s%d' % c.sT1 if c.qkv else 0}
            v_lshlrev_b32 v{vT+4}, 2, v2
            v_add_u32 v{vT+4}, s{c.sT0}, v{vT+4}
            ds_read_b32 v{vM + lt}, v{vT+4}
            ds_read_b32 v{vR + lt}, v{vT+4} offset:512
            """)
        for lf in range(2):
            a(f"""
            s_lshl_b32 s{c.sT1}, s{c.sWn}, 8
            s_add_u32 s{c.sT0}, s{c.sT1}, {STAT + 1024}
            s_xor_b32 s{c.sT1}, s{c.sWm}, {lf}
            s_lshl_b32 s{c.sT1}, s{c.sT1}, 7
            s_add_u32 s{c.sT0}, s{c.sT0}, s{c.sT1}
            v_lshlrev_b32 v{vT+4}, 4, v3
            v_add_u32 v{vT+4}, s{c.sT0}, v{vT+4}
            """)
            for q in range(4):
                a(f"ds_read_b128 {vr(vC + lf*16 + q*4, 4)}, v{vT+4} offset:{q*32}")
        a("s_waitcnt lgkmcnt(0)")
        if kind == 'qk':
            a(f"""
            s_cmp_lt_u32 s{c.sNt}, 5
            s_cselect_b32 s{c.sT0}, {f32bits(QSCALE):#x}, 1.0
            v_mul_f32 v{vR}, s{c.sT0}, v{vR}
            v_mul_f32 v{vR+1}, s{c.sT0}, v{vR+1}
            """)
        vP = vT + 8
        n = 0
        for lf in range(2):
            for lt in range(2):
                acc = vAcc + (lf*2 + lt) * 16
                for r in range(16):
                    a(f"v_fma_f32 v{acc + r}, -v{vM + lt}, v{vC + lf*16 + r}, v{acc + r}")
                for r in range(16):
                    a(f"v_mul_f32 v{acc + r}, v{acc + r}, v{vR + lt}")
                if kind == 'ffn1':
                    for r in range(16):
                        a(f"v_max_f32 v{acc + r}, 0, v{acc + r}")
                for j in range(2):
                    p = vP + (n & 1) * 4
                    n += 1
                    q0 = acc + j*8
                    a(f"v_cvt_pk_bf16_f32 v{p}, v{q0}, v{q0+1}")
                    a(f"v_cvt_pk_bf16_f32 v{p+1}, v{q0+2}, v{q0+3}")
                    a(f"v_cvt_pk_bf16_f32 v{p+2}, v{q0+4}, v{q0+5}")
                    a(f"v_cvt_pk_bf16_f32 v{p+3}, v{q0+6}, v{q0+7}")
                    a("s_nop 1")
                    a(f"v_permlane32_swap_b32 v{p}, v{p+2}")
                    a(f"v_permlane32_swap_b32 v{p+1}, v{p+3}")
                    ins = f"buffer_store_dwordx4 {vr(p,4)}, v{vAd + lf*2 + j}, s[{c.sO}:{c.sO+3}], s{40 + lt} offen @SC"
                    if kind == 'ffn1': dual(a, [ins])
                    else: a(ins.replace("@SC", SC))
    def epilogue_X(self):
        a, c = self.a, self
        vT, vAcc, vAd = c.vT, c.vAcc, c.vAd
        vC, vM, vR = vT, 32, 48
        for lf in range(2):
            a(f"""
            s_lshl_b32 s{c.sT1}, s{c.sWn}, 8
            s_add_u32 s{c.sT0}, s{c.sT1}, {STAT + 1024}
            s_xor_b32 s{c.sT1}, s{c.sWm}, {lf}
            s_lshl_b32 s{c.sT1}, s{c.sT1}, 7
            s_add_u32 s{c.sT0}, s{c.sT0}, s{c.sT1}
            v_lshlrev_b32 v{vT+4}, 2, v2
            v_add_u32 v{vT+4}, s{c.sT0}, v{vT+4}
            ds_read_b32 v{vC + lf}, v{vT+4}
            """)
        vP = vT + 8
        n = 0
        for lt in range(2):
            a(f"""
            s_lshl_b32 s{c.sT1}, s{c.sWm}, 8
            s_add_u32 s{c.sT0}, s{c.sT1}, {STAT}
            s_xor_b32 s{c.sT1}, s{c.sWn}, {lt}
            s_lshl_b32 s{c.sT1}, s{c.sT1}, 7
            s_add_u32 s{c.sT0}, s{c.sT0}, s{c.sT1}
            v_lshlrev_b32 v{vT+4}, 4, v3
            v_add_u32 v{vT+4}, s{c.sT0}, v{vT+4}
            """)
            for q in range(4):
                a(f"ds_read_b128 {vr(vM + q*4, 4)}, v{vT+4} offset:{q*32}")
                a(f"ds_read_b128 {vr(vR + q*4, 4)}, v{vT+4} offset:{512 + q*32}")
            a("s_waitcnt lgkmcnt(0)")
            for lf in range(2):
                acc = vAcc + (lf*2 + lt) * 16
                for r in range(16):
                    a(f"v_fma_f32 v{acc + r}, -v{vM + r}, v{vC + lf}, v{acc + r}")
                for r in range(16):
                    a(f"v_mul_f32 v{acc + r}, v{acc + r}, v{vR + r}")
                for g in range(2):
                    p = vP + (n & 1) * 4
                    n += 1
                    for r in range(4):
                        a(f"v_cvt_pk_bf16_f32 v{p + r}, v{acc + g*8 + 2*r}, v{acc + g*8 + 2*r + 1}")
                    a(f"buffer_store_dwordx4 {vr(p,4)}, v{vAd + lf}, s[{c.sO}:{c.sO+3}], s{40 + lt*2 + g} offen {SC}")

STG = 36864
class CoreS:
    sA, sO, sR = 8, 16, 40
    sM0, sN0, sT0, sT1, sT2, sNt = 21, 22, 23, 24, 25, 26
    sLw, sAoff, sWoff, sLdsA, sLdsW, sSeq, sSeqW = 20, 29, 30, 31, 32, 33, 34
    vA = 4
    vXa2, vWa2 = 116, 117
    def __init__(self, a, mode):
        self.a, self.mode = a, mode
        self.op = mode == 'oproj'
        self.NST = 5 if self.op else 14
    def map_tiles(self):
        a, c = self.a, self
        NST = c.NST
        a(f"""
        s_and_b32 s{c.sT0}, s{sRk}, 3
        s_lshl_b32 s{c.sM0}, s{sX}, 2
        s_add_u32 s{c.sM0}, s{c.sM0}, s{c.sT0}
        s_lshl_b32 s{c.sM0}, s{c.sM0}, 6
        s_lshr_b32 s{c.sNt}, s{sRk}, 2
        s_mul_i32 s{c.sN0}, s{c.sNt}, 80
        s_mul_i32 s{c.sSeq}, s{c.sT0}, {1 if c.op else 3}
        s_mul_i32 s{c.sT1}, s{c.sNt}, {1 if c.op else 2}
        s_add_u32 s{c.sSeq}, s{c.sSeq}, s{c.sT1}
        s_cmp_ge_u32 s{c.sSeq}, {NST}
        s_cselect_b32 s{c.sT1}, {NST}, 0
        s_sub_u32 s{c.sSeq}, s{c.sSeq}, s{c.sT1}
        s_cmp_ge_u32 s{c.sSeq}, {NST}
        s_cselect_b32 s{c.sT1}, {NST}, 0
        s_sub_u32 s{c.sSeq}, s{c.sSeq}, s{c.sT1}
        """)
        if E('NOROTS'): a(f"s_mov_b32 s{c.sSeq}, 0")
    def loader_setup(self):
        a, c = self.a, self
        if c.op: make_srd(a, c.sA, pWS, pWS+1, WS_O, SZ_ACT)
        else: make_srd(a, c.sA, pWS, pWS+1, WS_F, SZ_F)
        a(f"""
        s_sub_u32 s{c.sLw}, s{sWV}, 4
        v_lshlrev_b32 v{c.vA}, 4, v1
        s_lshl_b32 s{c.sT0}, s{c.sLw}, 17
        s_lshl_b32 s{c.sT1}, s{c.sM0}, 4
        s_add_u32 s{c.sAoff}, s{c.sT0}, s{c.sT1}
        s_mul_i32 s{c.sT0}, s{c.sLw}, 5120
        s_mul_i32 s{c.sT1}, s{c.sNt}, {c.NST * 20480}
        s_add_u32 s{c.sWoff}, s{c.sT0}, s{c.sT1}
        s_add_u32 s{c.sWoff}, s{c.sWoff}, {WS_WOP if c.op else WS_W2P}
        s_lshl_b32 s{c.sLdsA}, s{c.sLw}, 12
        s_add_u32 s{c.sLdsW}, s{c.sT0}, 16384
        s_mul_i32 s{c.sT0}, s{c.sSeq}, {16 * 32768}
        s_add_u32 s{c.sAoff}, s{c.sAoff}, s{c.sT0}
        s_mul_i32 s{c.sT0}, s{c.sSeq}, 20480
        s_add_u32 s{c.sWoff}, s{c.sWoff}, s{c.sT0}
        s_mov_b32 s{c.sSeqW}, s{c.sSeq}
        """)
    def issue_A(self, seq):
        a, c = self.a, self
        slot = (seq % 4) * STG
        for j in range(4):
            a(f"s_add_u32 m0, s{c.sLdsA}, {slot}" if j == 0 else "s_add_u32 m0, m0, 1024")
            a(f"s_mov_b32 s{c.sT0}, s{c.sAoff}" if j == 0 else f"s_add_u32 s{c.sT0}, s{c.sT0}, 32768")
            a(f"buffer_load_dwordx4 v{c.vA}, s[{c.sA}:{c.sA+3}], s{c.sT0} offen lds")
        a(f"""
        s_add_u32 s{c.sSeq}, s{c.sSeq}, 1
        s_cmp_eq_u32 s{c.sSeq}, {c.NST}
        s_cselect_b32 s{c.sT0}, {c.NST * 16 * 32768}, 0
        s_cselect_b32 s{c.sSeq}, 0, s{c.sSeq}
        s_add_u32 s{c.sAoff}, s{c.sAoff}, {16 * 32768}
        s_sub_u32 s{c.sAoff}, s{c.sAoff}, s{c.sT0}
        """)
    def issue_W(self, seq):
        a, c = self.a, self
        slot = (seq % 4) * STG
        a(f"s_add_u32 m0, s{c.sLdsW}, {slot}")
        a(f"s_add_u32 s{c.sT0}, s{c.sWoff}, 4096")
        for j in range(4):
            a(f"buffer_load_dwordx4 v{c.vA}, s[{sWS}:{sWS+3}], s{c.sWoff} offen offset:{j*1024} lds")
        a("s_add_u32 m0, m0, 4096")
        a(f"s_add_u32 s{c.sSeqW}, s{c.sSeqW}, 1")
        a(f"buffer_load_dwordx4 v{c.vA}, s[{sWS}:{sWS+3}], s{c.sT0} offen lds")
        a(f"""
        s_cmp_eq_u32 s{c.sSeqW}, {c.NST}
        s_cselect_b32 s{c.sT0}, {c.NST * 20480}, 0
        s_cselect_b32 s{c.sSeqW}, 0, s{c.sSeqW}
        s_add_u32 s{c.sWoff}, s{c.sWoff}, 20480
        s_sub_u32 s{c.sWoff}, s{c.sWoff}, s{c.sT0}
        """)
    def loader_main(self, q):
        a, c = self.a, self
        for s_ in range(c.NST):
            a(f"s_waitcnt vmcnt({q.need(f'A{s_}', f'W{s_}')})")
            a("s_barrier")
            if s_ + PD < c.NST:
                c.issue_A(s_ + PD); q.push(f"A{s_+PD}", 4)
                c.issue_W(s_ + PD); q.push(f"W{s_+PD}", 5)
    vXb, vWb, vXa, vWa, vX, vW, vRes, vT = 4, 5, 6, 7, 8, 20, 80, 90
    def compute_setup(self):
        a, c = self.a, self
        vT = c.vT
        a(f"""
        v_and_b32 v2, 15, v1
        v_lshrrev_b32 v3, 4, v1
        s_lshl_b32 s{c.sT0}, s{sWV}, 4
        s_add_u32 s{c.sT0}, s{c.sT0}, s{c.sM0}
        v_add_u32 v{vT}, s{c.sT0}, v2
        v_mul_u32_u24 v{vT+1}, 1280, v{vT}
        v_lshlrev_b32 v{vT+3}, 3, v3
        v_add_u32 v{vT+1}, v{vT+1}, v{vT+3}
        s_lshl_b32 s{c.sT0}, s{c.sN0}, 1
        v_add_u32 v{vT+1}, s{c.sT0}, v{vT+1}
        v_lshrrev_b32 v{vT+3}, 1, v3
        v_lshlrev_b32 v{vT+3}, 15, v{vT+3}
        v_lshlrev_b32 v{vT+2}, 4, v{vT}
        v_add_u32 v{vT+2}, v{vT+2}, v{vT+3}
        v_and_b32 v{vT+3}, 1, v3
        v_lshlrev_b32 v{vT+3}, 3, v{vT+3}
        v_add_u32 v{vT+2}, v{vT+2}, v{vT+3}
        s_lshl_b32 s{c.sT0}, s{c.sN0}, 12
        v_add_u32 v{vT+2}, s{c.sT0}, v{vT+2}
        s_lshl_b32 s{c.sT0}, s{sWV}, 8
        v_lshlrev_b32 v{c.vXb}, 10, v3
        v_lshlrev_b32 v{vT+3}, 4, v2
        v_add_u32 v{c.vXb}, v{c.vXb}, v{vT+3}
        v_add_u32 v{c.vXb}, s{c.sT0}, v{c.vXb}
        v_lshrrev_b32 v{vT+3}, 1, v3
        v_lshlrev_b32 v{vT+3}, 4, v{vT+3}
        v_and_b32 v{vT+4}, 1, v3
        v_lshlrev_b32 v{vT+4}, 2, v{vT+4}
        v_add_u32 v{vT+3}, v{vT+3}, v{vT+4}
        v_lshrrev_b32 v{vT+4}, 2, v2
        v_add_u32 v{vT+3}, v{vT+3}, v{vT+4}
        v_mul_u32_u24 v{vT+3}, 160, v{vT+3}
        v_and_b32 v{vT+4}, 3, v1
        v_lshlrev_b32 v{vT+4}, 3, v{vT+4}
        v_add_u32 v{vT+3}, v{vT+3}, v{vT+4}
        v_add_u32 v{c.vWb}, 16384, v{vT+3}
        """)
        if c.op:
            make_srd(a, c.sR, pX, pX+1, 0, 2048 * 1280)
            make_srd(a, c.sO, pWS, pWS+1, WS_H, SZ_ACT)
        else:
            make_srd(a, c.sR, pWS, pWS+1, WS_H, SZ_ACT)
            make_srd(a, c.sO, pOUT, pOUT+1, 0, 2048 * 1280)
    def pretouch(self):
        a, c = self.a, self
        vT = c.vT
        if not c.op or not E('PRET'): return
        for T in range(5):
            a(f"s_mov_b32 s{c.sT0}, {T * 65536}")
            a(f"buffer_load_dword v{vT+5}, v{vT+2}, s[{c.sO}:{c.sO+3}], s{c.sT0} offen sc1")
        a(f"""
        s_lshl_b32 s{c.sT0}, s{c.sNt}, 14
        s_add_u32 s{c.sT0}, s{c.sT0}, {WS_ST2}
        v_lshlrev_b32 v{vT+4}, 3, v{vT}
        buffer_load_dword v{vT+5}, v{vT+4}, s[{sWS}:{sWS+3}], s{c.sT0} offen sc1
        """)
    def residual_loads(self):
        a, c = self.a, self
        vT = c.vT
        for T in range(5):
            if c.op:
                a(f"buffer_load_dwordx2 {vr(c.vRes + 2*T, 2)}, v{vT+1}, s[{c.sR}:{c.sR+3}], 0 offen offset:{32*T}")
            else:
                a(f"s_mov_b32 s{c.sT0}, {T * 65536}")
                a(f"buffer_load_dwordx2 {vr(c.vRes + 2*T, 2)}, v{vT+2}, s[{c.sR}:{c.sR+3}], s{c.sT0} offen")
    def mainloop(self, stamp0=None, tag=''):
        a, c = self.a, self
        N = c.NST * 4
        def reads(i):
            st_, k, buf = i // 4, i % 4, i % 3
            xa, wa = (c.vXa, c.vWa) if st_ % 2 == 0 else (c.vXa2, c.vWa2)
            a(f"ds_read_b128 {vr(c.vX + buf*4, 4)}, v{xa} offset:{k*4096}")
            for T in range(5):
                for h2 in range(2):
                    a(f"ds_read_b64_tr_b16 {vr(c.vW + buf*20 + T*4 + h2*2, 2)}, v{wa} offset:{k*5120 + h2*1280 + T*32}")
        def setaddr(st_):
            slot = (st_ % 4) * STG
            xa, wa = (c.vXa, c.vWa) if st_ % 2 == 0 else (c.vXa2, c.vWa2)
            a(f"v_add_u32 v{xa}, {slot}, v{c.vXb}")
            a(f"v_add_u32 v{wa}, {slot}, v{c.vWb}")
        a("s_barrier")
        stx(a, tag + '_s0')
        setaddr(0)
        reads(0)
        reads(1)
        for i in range(N):
            buf = i % 3
            a(f"s_waitcnt lgkmcnt({11 if i + 1 < N else 0})")
            for T in range(5):
                acc = 96 + T*4
                cc = "0" if i == 0 else vr(acc, 4)
                a(f"v_mfma_f32_16x16x32_bf16 {vr(acc,4)}, {vr(c.vW + buf*20 + T*4, 4)}, {vr(c.vX + buf*4, 4)}, {cc}")
                if T == 0 and i + 2 < N:
                    if (i + 2) % 4 == 0:
                        a("s_barrier")
                        if (i + 2) // 4 == 1: stx(a, tag + '_s1')
                        if (i + 2) // 4 == 4: stx(a, tag + '_s4')
                        setaddr((i + 2) // 4)
                    reads(i + 2)
        a("s_nop 7")
    def reduce(self):
        pass
    def epilogue(self):
        a, c = self.a, self
        vT, vRes = c.vT, c.vRes
        a("s_waitcnt vmcnt(0)")
        for T in range(5):
            rr = vRes + 2*T
            a(f"""
            v_lshlrev_b32 v8, 16, v{rr}
            v_and_b32 v9, 0xffff0000, v{rr}
            v_lshlrev_b32 v10, 16, v{rr+1}
            v_and_b32 v11, 0xffff0000, v{rr+1}
            """)
            for r in range(4):
                d = 96 + T*4 + r
                a(f"v_add_f32 v{d}, v{d}, v{8+r}")
            d = 96 + T*4
            a(f"v_cvt_pk_bf16_f32 v{12 + 2*T}, v{d}, v{d+1}")
            a(f"v_cvt_pk_bf16_f32 v{13 + 2*T}, v{d+2}, v{d+3}")
            if c.op:
                a(f"s_mov_b32 s{c.sT0}, {T * 65536}")
                dual(a, [f"buffer_store_dwordx2 {vr(12 + 2*T, 2)}, v{vT+2}, s[{c.sO}:{c.sO+3}], s{c.sT0} offen @SC"])
            else:
                a(f"buffer_store_dwordx2 {vr(12 + 2*T, 2)}, v{vT+1}, s[{c.sO}:{c.sO+3}], 0 offen offset:{32*T}")
        if c.op:
            for T in range(5):
                for d in range(2):
                    r = 12 + 2*T + d
                    a(f"v_lshlrev_b32 v8, 16, v{r}")
                    a(f"v_and_b32 v9, 0xffff0000, v{r}")
                    if T == 0 and d == 0:
                        a("v_add_f32 v30, v8, v9")
                        a("v_mul_f32 v31, v8, v8")
                    else:
                        a("v_add_f32 v30, v30, v8")
                        a("v_add_f32 v30, v30, v9")
                        a("v_fmac_f32 v31, v8, v8")
                    a("v_fmac_f32 v31, v9, v9")
            a(f"""
            v_mov_b32 v32, v30
            v_mov_b32 v33, v31
            s_nop 1
            v_permlane32_swap_b32 v30, v32
            v_permlane32_swap_b32 v31, v33
            s_nop 1
            v_add_f32 v30, v30, v32
            v_add_f32 v31, v31, v33
            s_nop 0
            v_mov_b32 v32, v30
            v_mov_b32 v33, v31
            s_nop 1
            v_permlane16_swap_b32 v30, v32
            v_permlane16_swap_b32 v31, v33
            s_nop 1
            v_add_f32 v30, v30, v32
            v_add_f32 v31, v31, v33
            s_lshl_b32 s{c.sT0}, s{c.sNt}, 14
            s_add_u32 s{c.sT0}, s{c.sT0}, {WS_ST2}
            v_lshlrev_b32 v32, 3, v{vT}
            s_mov_b64 exec, 0xffff
            """)
            if not E('NOST2'): dual(a, [f"buffer_store_dwordx2 v[30:31], v32, s[{sWS}:{sWS+3}], s{c.sT0} offen @SC"])
            a("s_mov_b64 exec, -1")

KT = 1536
SLOT = 8 * KT + 16384
VOFF = 8 * KT
NSLOT = 5
FLAG = NSLOT * SLOT

def emit_attention(a, after_stores):
    name = "att"
    sK, sV, sQ, sO = 8, 12, 16, 20
    sHead, sQt, sT0, sT1, sT2 = 25, 26, 27, 28, 29
    sChunk, sSlotN, sPass, sKoff, sVoff, sKh = 30, 31, 32, 33, 34, 35
    sVmask = 38
    sSlotW, sE, sQg, sQb = 40, 41, 42, 43
    sW1s = 44
    vL16, vVoff = 2, 3
    vA3 = [[4, 5, 6], [7, 8, 9], [172, 173, 174]]
    vQ, vQr, vNC, vS, vP, vKb, vKr, vV, vO, vT = 10, 18, 22, 54, 86, 94, 102, 110, 126, 158
    lane_id(a, 0)
    lane_id(a, 1)
    a(f"""
    v_mov_b32 v4, {ROLE}
    ds_read_b96 v[6:8], v4
    s_waitcnt lgkmcnt(0)
    v_readfirstlane_b32 s{sX}, v6
    v_readfirstlane_b32 s{sRk}, v7
    v_readfirstlane_b32 s{sLoc}, v8
    s_and_b32 s{sT0}, s2, 7
    s_lshr_b32 s{sT1}, s2, 3
    s_cmp_eq_u32 s{sLoc}, 0
    s_cselect_b32 s{sX}, s{sT0}, s{sX}
    s_cselect_b32 s{sRk}, s{sT1}, s{sRk}
    s_mov_b32 s{sHead}, s{sRk}
    s_mov_b32 s{sQb}, s{sX}
    s_lshl_b32 s{sQt}, s{sQb}, 3
    s_mov_b32 s{sVmask}, 0x000fffff
    s_mov_b32 s{sVmask+1}, 0x000fffff
    s_mov_b32 s{sPass}, 0
    s_and_b32 s{sE}, s{sHead}, 1
    s_lshr_b32 s{sKh}, s{sWV}, 2
    s_and_b32 s{sQg}, s{sWV}, 3
    """)
    a(f"""
    v_lshlrev_b32 v{vL16}, 4, v0
    v_and_b32 v{vT}, 31, v0
    v_lshrrev_b32 v{vT+1}, 5, v0
    v_mul_u32_u24 v{vVoff}, 320, v{vT+1}
    v_lshlrev_b32 v{vT+2}, 4, v{vT}
    v_add_u32 v{vVoff}, v{vVoff}, v{vT+2}
    """)
    make_srd(a, sK, pWS, pWS+1, WS_K, SZ_QK)
    make_srd(a, sV, pWS, pWS+1, WS_V, SZ_QKV)
    make_srd(a, sQ, pWS, pWS+1, WS_Q, SZ_QK)
    make_srd(a, sO, pWS, pWS+1, WS_O, SZ_ACT)
    make_srd(a, sW1s, pW1, pW1+1, 0, 640*3456)
    a(f"""
    v_mov_b32 v{vT+4}, 0
    v_mov_b32 v{vT+3}, 0x3f803f80
    v_cmp_eq_u32 vcc, 20, v{vT}
    s_lshl_b32 s{sT0}, s{sWV}, 11
    s_add_u32 s{sT0}, s{sT0}, {VOFF}
    v_cndmask_b32 v{vT+4}, v{vT+4}, v{vT+3}, vcc
    v_add_u32 v{vT+3}, s{sT0}, v{vL16}
    v_mov_b32 v{vT+5}, v{vT+4}
    v_mov_b32 v{vT+6}, v{vT+4}
    v_mov_b32 v{vT+7}, v{vT+4}
    s_not_b64 exec, s[{sVmask}:{sVmask+1}]
    """)
    base = 0
    for sl in range(NSLOT):
        for j in range(2):
            off = sl * SLOT + j * 1024
            if off - base >= 65536 - 1024:
                a(f"v_add_u32 v{vT+3}, {sl*SLOT - base}, v{vT+3}")
                base = sl * SLOT
            a(f"ds_write_b128 v{vT+3}, {vr(vT+4,4)} offset:{off - base}")
    a(f"""
    s_mov_b64 exec, -1
    v_mov_b32 v{vT+3}, {FLAG}
    v_mov_b32 v{vT+4}, 0
    ds_write_b32 v{vT+3}, v{vT+4}
    """)
    def reinit():
        a(f"""
        s_lshl_b32 s{sT0}, s{sE}, 9
        s_mul_i32 s{sT1}, s{sKh}, {4*KT}
        s_add_u32 s{sT0}, s{sT0}, s{sT1}
        v_add_u32 v{vA3[0][0]}, s{sT0}, v{vL16}
        s_sub_u32 s{sT0}, 1, s{sE}
        s_lshl_b32 s{sT0}, s{sT0}, 10
        s_lshl_b32 s{sT2}, s{sE}, 3
        s_add_u32 s{sT0}, s{sT0}, s{sT2}
        s_add_u32 s{sT0}, s{sT0}, s{sT1}
        v_and_b32 v{vT}, 31, v0
        v_lshlrev_b32 v{vA3[0][1]}, 4, v{vT}
        v_add_u32 v{vA3[0][1]}, s{sT0}, v{vA3[0][1]}
        s_lshl_b32 s{sT0}, s{sKh}, 13
        s_add_u32 s{sT0}, s{sT0}, {VOFF}
        v_add_u32 v{vA3[0][2]}, s{sT0}, v{vL16}
        s_mov_b32 s{sSlotN}, {2*SLOT}
        s_lshr_b32 s{sT0}, s{sHead}, 1
        s_mul_i32 s{sT0}, s{sT0}, 163840
        s_mul_i32 s{sT1}, s{sWV}, 2560
        s_add_u32 s{sKoff}, s{sT0}, s{sT1}
        s_lshl_b32 s{sT1}, s{sE}, 10
        s_add_u32 s{sKoff}, s{sKoff}, s{sT1}
        s_mul_i32 s{sT0}, s{sHead}, 81920
        s_mul_i32 s{sT1}, s{sWV}, 1280
        s_add_u32 s{sVoff}, s{sT0}, s{sT1}
        s_mov_b32 s{sSlotW}, 0
        """)
        for k in range(3):
            a(f"v_add_u32 v{vA3[1][k]}, {SLOT}, v{vA3[0][k]}")
            a(f"v_add_u32 v{vA3[2][k]}, {2*SLOT}, v{vA3[0][k]}")
        for i in range(32): a(f"v_mov_b32 v{vO+i}, 0")
        for i in range(4):
            a(f"v_mov_b32 v{vP+4+i}, 0")
            a(f"v_mov_b32 v{vV+12+i}, 0")
    reinit()
    a(f"v_and_b32 v{vT+11}, 7, v0")
    a(f"v_lshlrev_b32 v{vT+11}, 7, v{vT+11}")
    a(f"v_add_u32 v{vT+11}, {WS_CNT + C_RPS*128}, v{vT+11}")
    a(f"v_mov_b32 v{vT+10}, 0")
    a(f"""
    s_lshl_b32 s{sT0}, s{sQg}, 1
    s_add_u32 s{sQt}, s{sQt}, s{sT0}
    v_lshlrev_b32 v{vT+13}, 4, v{vT}
    s_lshl_b32 s{sT1}, s{sE}, 3
    s_add_u32 s{sT1}, s{sT1}, 1024
    v_add_u32 v{vT+13}, s{sT1}, v{vT+13}
    v_mov_b32 v{vT+9}, 0x7fffff00
    """)
    a(f"""
    v_cmp_gt_u32 vcc, 32, v0
    s_mul_i32 s{sT1}, s{sE}, 1536
    v_cndmask_b32 v{vT+13}, v{vT+9}, v{vT+13}, vcc
    v_add_u32 v{vT+12}, s{sT1}, v{vL16}
    """)
    lw = a.newlabel("attw")
    a(f"""
    s_cmp_eq_u32 s{sWV}, 0
    s_cbranch_scc0 {lw}
    s_mul_i32 s{sT0}, s{sHead}, 20
    s_lshr_b32 s{sT1}, s{sT0}, 7
    s_add_u32 s{sT0}, s{sT0}, 19
    s_lshr_b32 s{sT0}, s{sT0}, 7
    v_and_b32 v{vT+3}, 1, v0
    v_mov_b32 v{vT+4}, s{sT1}
    v_mov_b32 v{vT+5}, s{sT0}
    v_cmp_eq_u32 vcc, 1, v{vT+3}
    v_lshrrev_b32 v{vT+6}, 1, v0
    v_mul_u32_u24 v{vT+6}, 5, v{vT+6}
    v_cndmask_b32 v{vT+4}, v{vT+4}, v{vT+5}, vcc
    v_add_u32 v{vT+4}, v{vT+4}, v{vT+6}
    v_add_u32 v{vT+4}, {C_QKV}, v{vT+4}
    v_lshlrev_b32 v{vT+4}, 7, v{vT+4}
    v_add_u32 v{vT+4}, {WS_CNT}, v{vT+4}
    v_mov_b32 v{vT+5}, 16
    """)
    poll(a, vT + 4, vT + 5, 6, vT + 6)
    a.label(lw)
    a("s_waitcnt lgkmcnt(0)")
    a("s_barrier")
    st(a, 5)
    def dma_chunk():
        a(f"""
        s_mul_i32 s{sT0}, s{sWV}, {KT}
        s_add_u32 m0, s{sSlotW}, s{sT0}
        s_lshl_b32 s{sT1}, s{sWV}, 11
        buffer_load_dwordx4 v{vL16}, s[{sK}:{sK+3}], s{sKoff} offen lds
        s_mov_b32 exec_hi, 0
        buffer_load_dwordx4 v{vL16}, s[{sK}:{sK+3}], s{sKoff} offen offset:1024 lds
        s_add_u32 s{sT1}, s{sT1}, s{sSlotW}
        s_add_u32 m0, s{sT1}, {VOFF}
        s_mov_b64 exec, s[{sVmask}:{sVmask+1}]
        buffer_load_dwordx4 v{vVoff}, s[{sV}:{sV+3}], s{sVoff} offen lds
        s_add_u32 m0, m0, 1024
        s_add_u32 s{sT1}, s{sVoff}, 640
        buffer_load_dwordx4 v{vVoff}, s[{sV}:{sV+3}], s{sT1} offen lds
        s_mov_b64 exec, -1
        s_add_u32 s{sKoff}, s{sKoff}, {8*2560}
        s_add_u32 s{sVoff}, s{sVoff}, 10240
        s_add_u32 s{sSlotW}, s{sSlotW}, {SLOT}
        s_cmp_ge_u32 s{sSlotW}, {NSLOT*SLOT}
        s_cselect_b32 s{sSlotW}, 0, s{sSlotW}
        """)
    dma_chunk()
    a(f"s_lshr_b32 s{sT0}, s{sHead}, 1")
    a(f"s_mul_i32 s{sT0}, s{sT0}, 163840")
    for s in range(2):
        a(f"""
        s_xor_b32 s{sT1}, s{sKh}, {s}
        s_add_u32 s{sT1}, s{sT1}, s{sQt}
        s_mul_i32 s{sT1}, s{sT1}, 2560
        s_add_u32 s{sT1}, s{sT1}, s{sT0}
        buffer_load_dwordx4 {vr(vQ+4*s,4)}, v{vT+12}, s[{sQ}:{sQ+3}], s{sT1} offen
        buffer_load_dwordx2 {vr(vQr+2*s,2)}, v{vT+13}, s[{sQ}:{sQ+3}], s{sT1} offen
        """)
    dma_chunk()
    a(f"s_branch L_{name}_start")
    a.label(f"L_{name}_restart")
    reinit()
    dma_chunk(); dma_chunk()
    a.label(f"L_{name}_start")
    vKc, vKrc, vVc = vA3[0]
    a(f"""
    s_waitcnt vmcnt(4)
    s_barrier
    s_cmp_eq_u32 s{sPass}, 0
    s_cbranch_scc0 L_{name}_haveC
    s_mul_i32 s{sT1}, s{sKh}, {4*KT}
    v_subrev_u32 v{vT+1}, s{sT1}, v{vKc}
    v_subrev_u32 v{vT+2}, s{sT1}, v{vKrc}
    ds_read_b128 {vr(vKb,4)}, v{vT+1}
    ds_read_b64 {vr(vKr,2)}, v{vT+2}
    s_waitcnt lgkmcnt(0)
    """)
    for s in range(2):
        S = vS + 16*s
        a(f"v_mfma_f32_32x32x16_bf16 {vr(S,16)}, {vr(vKb,4)}, {vr(vQ+4*s,4)}, 0")
    for s in range(2):
        S = vS + 16*s
        a(f"v_mfma_f32_32x32x8_bf16 {vr(S,16)}, {vr(vKr,2)}, {vr(vQr+2*s,2)}, {vr(S,16)}")
    a(f"""
    ds_read_b128 {vr(vKb,4)}, v{vKc}
    ds_read2st64_b64 {vr(vKr,4)}, v{vKrc} offset0:0 offset1:3
    ds_read_b128 {vr(vV,4)}, v{vVc}
    ds_read_b128 {vr(vV+4,4)}, v{vVc} offset:1024
    s_nop 11
    """)
    for s in range(2):
        S = vS + 16*s
        T_ = vT + 2*s
        a(f"v_max3_f32 v{T_}, v{S}, v{S+1}, v{S+2}")
        for i in range(3, 15, 2):
            a(f"v_max3_f32 v{T_}, v{T_}, v{S+i}, v{S+i+1}")
        a(f"v_max_f32 v{T_}, v{T_}, v{S+15}")
    a(f"""
    v_mov_b32 v{vT+1}, v{vT}
    v_mov_b32 v{vT+3}, v{vT+2}
    s_nop 1
    v_permlane32_swap_b32 v{vT}, v{vT+1}
    v_permlane32_swap_b32 v{vT+2}, v{vT+3}
    s_nop 1
    v_max_f32 v{vT}, v{vT}, v{vT+1}
    v_max_f32 v{vT+2}, v{vT+2}, v{vT+3}
    v_sub_f32 v{vNC}, 0, v{vT}
    v_sub_f32 v{vNC+16}, 0, v{vT+2}
    """)
    for i in range(1, 16):
        a(f"v_mov_b32 v{vNC+i}, v{vNC}")
        a(f"v_mov_b32 v{vNC+16+i}, v{vNC+16}")
    a(f"s_branch L_{name}_haveC2")
    a.label(f"L_{name}_haveC")
    a(f"""
    ds_read_b128 {vr(vKb,4)}, v{vKc}
    ds_read2st64_b64 {vr(vKr,4)}, v{vKrc} offset0:0 offset1:3
    ds_read_b128 {vr(vV,4)}, v{vVc}
    ds_read_b128 {vr(vV+4,4)}, v{vVc} offset:1024
    """)
    a.label(f"L_{name}_haveC2")
    a(f"""
    s_waitcnt lgkmcnt(0)
    v_mfma_f32_32x32x16_bf16 {vr(vS,16)}, {vr(vKb,4)}, {vr(vQ,4)}, {vr(vNC,16)}
    v_mfma_f32_32x32x8_bf16 {vr(vS,16)}, {vr(vKr,2)}, {vr(vQr,2)}, {vr(vS,16)}
    s_mov_b32 s{sChunk}, 0
    s_nop 7
    """)
    st(a, 6)
    a(f"""
    s_cmp_eq_u32 s{sKh}, 0
    s_cselect_b32 s36, 7, 0
    s_cselect_b32 s37, 0, 7
    """)
    ool = []
    def rare(mask, fn, tag):
        l, b = a.newlabel(tag), a.newlabel(tag + "b")
        a(f"s_bitcmp1_b32 {mask:#x}, s{sChunk}")
        a(f"s_cbranch_scc1 {l}")
        a.label(b)
        ool.append((l, b, fn))
    def common_(mask, fn, tag):
        l = a.newlabel(tag)
        a(f"s_bitcmp1_b32 {mask if isinstance(mask, str) else hex(mask)}, s{sChunk}")
        a(f"s_cbranch_scc0 {l}")
        fn()
        a.label(l)
    def pf_A(half):
        a(f"""
        v_lshlrev_b32 v{vT+12}, 7, v0
        s_mul_i32 s{sT0}, s{sRk}, 69120
        s_lshl_b32 s{sT1}, s{sWV}, 13
        s_add_u32 s{sT0}, s{sT0}, s{sT1}
        s_mov_b32 exec_lo, {-1 if half == 0 else 0}
        s_mov_b32 exec_hi, {0 if half == 0 else -1}
        buffer_load_dword v{vT+13}, v{vT+12}, s[{sW1s}:{sW1s+3}], s{sT0} offen sc1
        s_mov_b64 exec, -1
        """)
    def pf_B():
        l5, l4, le = a.newlabel("pf5"), a.newlabel("pf4"), a.newlabel("pfe")
        a(f"""
        v_lshlrev_b32 v{vT+12}, 7, v0
        s_cmp_ge_u32 s{sWV}, 5
        s_cbranch_scc1 {l5}
        s_cmp_eq_u32 s{sWV}, 4
        s_cbranch_scc1 {l4}
        s_mul_i32 s{sT0}, s{sRk}, {SZ_WOP // 32}
        s_lshl_b32 s{sT1}, s{sWV}, 13
        s_add_u32 s{sT0}, s{sT0}, s{sT1}
        s_add_u32 s{sT0}, s{sT0}, {WS_WOP}
        buffer_load_dword v{vT+13}, v{vT+12}, s[{sWS}:{sWS+3}], s{sT0} offen sc1
        s_branch {le}
        """)
        a.label(l4)
        a(f"""
        s_mul_i32 s{sT0}, s{sRk}, 69120
        s_add_u32 s{sT0}, s{sT0}, 65536
        s_mov_b32 exec_hi, 0
        buffer_load_dword v{vT+13}, v{vT+12}, s[{sW1s}:{sW1s+3}], s{sT0} offen sc1
        s_mov_b32 exec_hi, -1
        s_branch {le}
        """)
        a.label(l5)
        a(f"""
        s_sub_u32 s{sT1}, s{sWV}, 5
        s_lshl_b32 s{sT1}, s{sT1}, 5
        s_mul_i32 s{sT0}, s{sRk}, 80
        s_add_u32 s{sT0}, s{sT0}, s{sT1}
        v_and_b32 v{vT+8}, 31, v0
        v_add_u32 v{vT+8}, s{sT0}, v{vT+8}
        v_lshrrev_b32 v{vT+9}, 5, v{vT+8}
        v_lshlrev_b32 v{vT+9}, 15, v{vT+9}
        v_and_b32 v{vT+8}, 31, v{vT+8}
        v_lshlrev_b32 v{vT+8}, 7, v{vT+8}
        v_add_u32 v{vT+8}, v{vT+8}, v{vT+9}
        s_lshl_b32 s{sT0}, s{sX}, 12
        s_mov_b32 exec_hi, 0
        buffer_load_dword v{vT+13}, v{vT+8}, s[{sO}:{sO+3}], s{sT0} offen sc1
        s_mov_b32 exec_hi, -1
        """)
        a.label(le)
    def rp_issue():
        a("s_mov_b64 exec, 0xff")
        a(f"buffer_load_dword v{vT+10}, v{vT+11}, s[{sWS}:{sWS+3}], 0 offen sc1")
        a("s_mov_b64 exec, -1")
    def rp_check():
        ok = a.newlabel("rpok")
        a("s_mov_b64 exec, 0xff")
        a(f"v_cmp_gt_u32 vcc, 32, v{vT+10}")
        a("s_nop 4")
        a("s_cmp_eq_u64 vcc, 0")
        a(f"s_cbranch_scc1 {ok}")
        a(f"v_mov_b32 v{vT+9}, 32")
        poll(a, vT + 11, vT + 9, 8, vT + 10)
        a.label(ok)
        a("s_mov_b64 exec, -1")
    if E('A_PRIO'):
        l = a.newlabel("prio")
        a(f"s_cmp_ge_u32 s{sWV}, 4")
        a(f"s_cbranch_scc0 {l}")
        a(f"s_setprio {E('A_PRIO')}")
        a.label(l)
    a(".p2align 6")
    a.label(f"L_{name}_loop")
    rd = (lambda x: None) if E('A_NORD') else a
    for u in range(16):
        p = u & 1
        t = u >> 1
        D1 = int(E('A_D1', '6'))
        if u == 0:
            if not E('A_NODMA'): common_(0b0111, dma_chunk, "d0")
            if not E('NOPF2'): rare(0b1000, lambda: pf_A(0), "pa")
        if u == 4 and not E('NOPF2'): rare(0b1000, lambda: pf_A(1), "pb")
        if u == 6 and not E('A_NOBAR'):
            rare(0b0001, lambda: (a(f"s_waitcnt vmcnt({8 if D1 < 6 else 4})"), a("s_barrier")), "c1")
        if u == D1 and not E('A_NODMA'): common_(0b0111, dma_chunk, "d1")
        if u == 8 and not E('NOPF2'): rare(0b1000, pf_B, "pc")
        if u == 14:
            rare(0b0010, rp_issue, "rpi")
            a("s_waitcnt vmcnt(0)")
            if not E('A_NOBAR'): a("s_barrier")
            rare(0b0010, rp_check, "rpc")
        tn = t + 1
        A = vA3[tn // 4]
        if p == 0:
            rd(f"ds_read_b128 {vr(vKb + 4*(tn&1),4)}, v{A[0]} offset:{(tn%4)*KT}")
            if tn % 2 == 0:
                pb = (tn // 2) & 1
                rd(f"ds_read2st64_b64 {vr(vKr + 4*pb,4)}, v{A[1]} offset0:{(tn%4)*3} offset1:{(tn%4)*3+3}")
            rd(f"ds_read_b128 {vr(vV + 8*(tn&1),4)}, v{A[2]} offset:{(tn%4)*2048}")
        else:
            rd("s_waitcnt lgkmcnt(0)")
        un = u + 1
        tq = un >> 1
        qs = un & 1
        Sc, Sn = vS + 16*p, vS + 16*(p^1)
        kbuf = vKb + 4*(tq & 1)
        krbuf = vKr + 4*((tq // 2) & 1) + 2*(tq & 1)
        ex = lambda r: a(f"v_exp_f32 v{Sc+r}, v{Sc+r}")
        cv = lambda r: a(f"v_cvt_pk_bf16_f32 v{vP+r}, v{Sc+2*r}, v{Sc+2*r+1}")
        a(f"v_mfma_f32_32x32x16_bf16 {vr(Sn,16)}, {vr(kbuf,4)}, {vr(vQ+4*qs,4)}, {vr(vNC+16*qs,16)}")
        for r in range(4): ex(r)
        tp = (u - 1) >> 1 if u > 0 else -1
        Op = vO + 16*((u - 1) & 1)
        a(f"v_mfma_f32_32x32x16_bf16 {vr(Op,16)}, {vr(vV + 8*(tp & 1) + 4,4)}, {vr(vP+4,4)}, {vr(Op,16)}")
        if p == 0:
            rd(f"ds_read_b128 {vr(vV + 8*(tn&1) + 4,4)}, v{A[2]} offset:{(tn%4)*2048 + 1024}")
        for r in range(4, 8): ex(r)
        cv(0); cv(1)
        a(f"v_mfma_f32_32x32x8_bf16 {vr(Sn,16)}, {vr(krbuf,2)}, {vr(vQr+2*qs,2)}, {vr(Sn,16)}")
        cv(2); cv(3)
        for r in range(8, 12): ex(r)
        Oc = vO + 16*p
        a(f"v_mfma_f32_32x32x16_bf16 {vr(Oc,16)}, {vr(vV + 8*(t & 1),4)}, {vr(vP,4)}, {vr(Oc,16)}")
        for r in range(12, 16): ex(r)
        if u == 15:
            a(f"""
            s_add_u32 s{sT0}, s{sSlotN}, {SLOT}
            s_cmp_ge_u32 s{sT0}, {NSLOT*SLOT}
            s_cselect_b32 s{sT1}, {NSLOT*SLOT}, 0
            s_sub_u32 s{sT0}, s{sT0}, s{sT1}
            s_sub_u32 s{sT1}, s{sT0}, s{sSlotN}
            s_add_u32 s{sT2}, s{sT0}, {SLOT}
            s_cmp_ge_u32 s{sT2}, {NSLOT*SLOT}
            s_cselect_b32 s{sT0}, {NSLOT*SLOT}, 0
            s_sub_u32 s{sT2}, s{sT2}, s{sT0}
            s_sub_u32 s{sT0}, s{sT2}, s{sSlotN}
            s_mov_b32 s{sSlotN}, s{sT2}
            """)
            for k in range(3):
                a(f"v_mov_b32 v{vA3[0][k]}, v{vA3[2][k]}")
                a(f"v_add_u32 v{vA3[1][k]}, s{sT1}, v{vA3[2][k]}")
                a(f"v_add_u32 v{vA3[2][k]}, s{sT0}, v{vA3[2][k]}")
        for r in range(4, 8): cv(r)
    a(f"""
    s_add_u32 s{sChunk}, s{sChunk}, 1
    s_cmp_lt_u32 s{sChunk}, 4
    s_cbranch_scc1 L_{name}_loop
    s_waitcnt lgkmcnt(0)
    """)
    a(f"v_mfma_f32_32x32x16_bf16 {vr(vO+16,16)}, {vr(vV + 8 + 4,4)}, {vr(vP+4,4)}, {vr(vO+16,16)}")
    st(a, 7)
    a(f"s_branch L_{name}_post")
    for l, b, fn in ool:
        a.label(l)
        fn()
        a(f"s_branch {b}")
    a.label(f"L_{name}_post")
    a(f"""
    s_barrier
    s_lshl_b32 s{sT0}, s{sQg}, 1
    s_add_u32 s{sT1}, s{sT0}, s{sKh}
    s_lshr_b32 s{sT2}, s{sT1}, 2
    s_mul_i32 s{sT2}, s{sT2}, {SLOT}
    s_and_b32 s{sT1}, s{sT1}, 3
    s_mul_i32 s{sT1}, s{sT1}, 3072
    s_add_u32 s{sT1}, s{sT1}, s{sT2}
    v_add_u32 v{vT}, s{sT1}, v{vL16}
    s_xor_b32 s{sT1}, s{sKh}, 1
    s_add_u32 s{sT1}, s{sT1}, s{sT0}
    s_lshr_b32 s{sT2}, s{sT1}, 2
    s_mul_i32 s{sT2}, s{sT2}, {SLOT}
    s_and_b32 s{sT1}, s{sT1}, 3
    s_mul_i32 s{sT1}, s{sT1}, 3072
    s_add_u32 s{sT1}, s{sT1}, s{sT2}
    v_add_u32 v{vT+1}, s{sT1}, v{vL16}
    s_nop 7
    """)
    stx(a, 'a_bar1')
    for i in range(3):
        a(f"ds_write_b128 v{vT}, {vr(vO+16+4*i,4)} offset:{i*1024}")
    a("s_waitcnt lgkmcnt(0)")
    a("s_barrier")
    stx(a, 'a_bar2')
    for i in range(3):
        a(f"ds_read_b128 {vr(vS+4*i,4)}, v{vT+1} offset:{i*1024}")
    a("s_waitcnt lgkmcnt(0)")
    for r in range(12):
        a(f"v_add_f32 v{vO+r}, v{vO+r}, v{vS+r}")
    a(f"v_mov_b32 v{vT}, 0")
    for r in range(12):
        a(f"v_fma_f32 v{vT}, v{vO+r}, 0, v{vT}")
    a(f"""
    s_cmp_eq_u32 s{sPass}, 0
    s_cbranch_scc0 L_{name}_store
    v_cmp_u_f32 vcc, v{vT}, v{vT}
    s_nop 4
    s_cmp_eq_u64 vcc, 0
    s_cbranch_scc1 L_{name}_novote
    v_mov_b32 v{vT+1}, {FLAG}
    v_mov_b32 v{vT+2}, 1
    ds_write_b32 v{vT+1}, v{vT+2}
    L_{name}_novote:
    s_waitcnt lgkmcnt(0)
    s_barrier
    v_mov_b32 v{vT+1}, {FLAG}
    ds_read_b32 v{vT+2}, v{vT+1}
    s_waitcnt lgkmcnt(0)
    v_readfirstlane_b32 s{sT0}, v{vT+2}
    s_cmp_eq_u32 s{sT0}, 0
    s_cbranch_scc1 L_{name}_store2
    s_mov_b32 s{sPass}, 1
    v_mov_b32 v{vT}, 0xff800000
    v_mov_b32 v{vT+1}, 0xff800000
    s_lshr_b32 s{sT0}, s{sHead}, 1
    s_mul_i32 s{sT0}, s{sT0}, 163840
    s_mov_b32 s{sT1}, 0
    v_and_b32 v{vT+2}, 31, v0
    v_lshlrev_b32 v{vT+2}, 4, v{vT+2}
    s_lshl_b32 s{sT2}, s{sE}, 3
    s_add_u32 s{sT2}, s{sT2}, 1024
    v_add_u32 v{vT+2}, s{sT2}, v{vT+2}
    s_mul_i32 s{sT2}, s{sE}, 1536
    v_add_u32 v{vT+3}, s{sT2}, v{vL16}
    L_{name}_maxloop:
    buffer_load_dwordx4 {vr(vKb,4)}, v{vT+3}, s[{sK}:{sK+3}], s{sT0} offen
    buffer_load_dwordx2 {vr(vKr,2)}, v{vT+2}, s[{sK}:{sK+3}], s{sT0} offen
    s_waitcnt vmcnt(0)
    """)
    for s in range(2):
        S = vS + 16*s
        a(f"v_mfma_f32_32x32x16_bf16 {vr(S,16)}, {vr(vKb,4)}, {vr(vQ+4*s,4)}, 0")
        a(f"v_mfma_f32_32x32x8_bf16 {vr(S,16)}, {vr(vKr,2)}, {vr(vQr+2*s,2)}, {vr(S,16)}")
    a("s_nop 15")
    for s in range(2):
        for i in range(0, 16, 2):
            a(f"v_max3_f32 v{vT+s}, v{vT+s}, v{vS+16*s+i}, v{vS+16*s+i+1}")
    a(f"""
    s_add_u32 s{sT0}, s{sT0}, 2560
    s_add_u32 s{sT1}, s{sT1}, 1
    s_cmp_lt_u32 s{sT1}, 64
    s_cbranch_scc1 L_{name}_maxloop
    """)
    for s in range(2):
        a(f"""
        v_mov_b32 v{vT+2}, v{vT+s}
        s_nop 1
        v_permlane32_swap_b32 v{vT+s}, v{vT+2}
        s_nop 1
        v_max_f32 v{vT+2}, v{vT+s}, v{vT+2}
        v_sub_f32 v{vNC+16*s}, 0, v{vT+2}
        """)
        for i in range(1, 16):
            a(f"v_mov_b32 v{vNC+16*s+i}, v{vNC+16*s}")
    a("s_barrier")
    a(f"s_branch L_{name}_restart")
    a.label(f"L_{name}_store")
    a("s_barrier")
    a.label(f"L_{name}_store2")
    stx(a, 'a_vote')
    a(f"""
    v_mov_b32 v{vT}, v{vO+8}
    v_mov_b32 v{vT+1}, v{vO+8}
    s_nop 1
    v_permlane32_swap_b32 v{vT}, v{vT+1}
    s_nop 1
    v_rcp_f32 v{vT+1}, v{vT+1}
    v_lshrrev_b32 v{vT+2}, 5, v0
    v_and_b32 v{vT+3}, 31, v0
    s_add_u32 s{sT0}, s{sQt}, s{sKh}
    s_lshl_b32 s{sT0}, s{sT0}, 5
    v_add_u32 v{vT+3}, s{sT0}, v{vT+3}
    v_lshlrev_b32 v{vT+3}, 4, v{vT+3}
    s_mul_i32 s{sT0}, s{sHead}, 5
    v_add_u32 v{vT+2}, s{sT0}, v{vT+2}
    """)
    for r in range(12):
        a(f"v_mul_f32 v{vO+r}, v{vO+r}, v{vT+1}")
    for q in range(3):
        a(f"""
        v_add_u32 v{vT+4}, {2*q}, v{vT+2}
        v_lshrrev_b32 v{vT+5}, 1, v{vT+4}
        v_lshlrev_b32 v{vT+5}, 15, v{vT+5}
        v_and_b32 v{vT+4}, 1, v{vT+4}
        v_lshlrev_b32 v{vT+4}, 3, v{vT+4}
        v_add3_u32 v{vT+4}, v{vT+4}, v{vT+5}, v{vT+3}
        v_cvt_pk_bf16_f32 v{vT+6}, v{vO+4*q}, v{vO+4*q+1}
        v_cvt_pk_bf16_f32 v{vT+7}, v{vO+4*q+2}, v{vO+4*q+3}
        """)
        if q == 2: a("s_mov_b32 exec_hi, 0")
        dual(a, [f"buffer_store_dwordx2 {vr(vT+6,2)}, v{vT+4}, s[{sO}:{sO+3}], 0 offen @SC"])
    a("s_mov_b64 exec, -1")
    stx(a, 'a_stores')
    a(f"s_add_u32 s76, s{sQb}, {C_ATT}")

def gemm_phase_prologue_loader(a, core, q, dep_idx_sgpr, dep_target, nW, pre_issued):
    pass

LANDED = [True]
def reg_step1(a, vd):
    a("s_mov_b64 exec, 7")
    a(f"buffer_load_dword v{vd}, v{vd+1}, s[44:47], 0 offen sc1")
    a("s_mov_b64 exec, -1")
def reg_step2(a, vd):
    dbg_flag_wait(a, vd, landed=LANDED[0])
    a(f"""
    s_getreg_b32 s{sX}, hwreg(HW_REG_XCC_ID)
    s_and_b32 s{sX}, s{sX}, 7
    s_add_u32 s76, s{sX}, {C_RK}
    s_lshl_b32 s76, s76, 7
    s_add_u32 s76, s76, {WS_CNT}
    v_mov_b32 v{vd-1}, s76
    v_accvgpr_write_b32 a0, 1
    s_mov_b64 exec, 1
    s_nop 1
    buffer_atomic_add a0, v{vd-1}, s[{sWS}:{sWS+3}], 0 offen sc0
    s_mov_b64 exec, -1
    """)
def reg_step3(a, vd):
    l1, l2 = a.newlabel("r3a"), a.newlabel("r3b")
    if not LANDED[0]: a("s_waitcnt vmcnt(0)")
    a(f"""
    v_accvgpr_read_b32 v{vd-1}, a0
    s_nop 1
    v_readfirstlane_b32 s{sRk}, v{vd-1}
    s_cmp_eq_u32 s{sRk}, 31
    s_cbranch_scc0 {l1}
    v_mov_b32 v{vd-1}, 4
    v_mov_b32 v{vd-2}, 1
    s_mov_b64 exec, 1
    buffer_atomic_add v{vd-2}, v{vd-1}, s[44:47], 0 offen sc1
    s_mov_b64 exec, -1
    """)
    a.label(l1)
    a(f"""
    s_cmp_ge_u32 s{sRk}, 32
    s_cbranch_scc0 {l2}
    v_mov_b32 v{vd-1}, 8
    v_mov_b32 v{vd-2}, 1
    s_mov_b64 exec, 1
    buffer_store_dword v{vd-2}, v{vd-1}, s[44:47], 0 offen sc1
    s_mov_b64 exec, -1
    """)
    a.label(l2)
    a("s_mov_b64 exec, 7")
    a(f"buffer_load_dword v{vd}, v{vd+1}, s[44:47], 0 offen sc1")
    a("s_mov_b64 exec, -1")
def register_publish(a, vd):
    l0, l1 = a.newlabel("rp"), a.newlabel("rpok")
    a(f"s_mov_b32 s{sPoll}, 0")
    a.label(l0)
    a(f"""
    s_waitcnt vmcnt(0)
    v_readlane_b32 s39, v{vd}, 1
    v_readlane_b32 s40, v{vd}, 2
    s_cmp_eq_u32 s39, 8
    s_cselect_b32 s38, 1, 0
    s_cmp_lg_u32 s40, 0
    s_cselect_b32 s38, 0, s38
    s_cbranch_scc1 {l1}
    s_cmp_eq_u32 s38, 1
    s_cbranch_scc1 {l1}
    s_add_u32 s{sPoll}, s{sPoll}, 1
    s_cmp_gt_u32 s{sPoll}, {POLL_MAX}
    s_cbranch_scc1 {l1}
    s_sleep 1
    s_mov_b64 exec, 7
    buffer_load_dword v{vd}, v{vd+1}, s[44:47], 0 offen sc1
    s_mov_b64 exec, -1
    s_branch {l0}
    """)
    a.label(l1)
    if E('FORCE_SLOW'): a("s_mov_b32 s38, 0")
    a(f"""
    v_mov_b32 v{vd-6}, s{sX}
    v_mov_b32 v{vd-4}, s38
    v_mov_b32 v{vd-5}, s{sRk}
    v_mov_b32 v{vd-7}, {ROLE}
    ds_write_b96 v{vd-7}, v[{vd-6}:{vd-4}]
    s_waitcnt lgkmcnt(0)
    """)
def wave_only(a, w, fn):
    l = a.newlabel("wo")
    a(f"s_cmp_eq_u32 s{sWV}, {w}")
    a(f"s_cbranch_scc0 {l}")
    fn()
    a.label(l)
def code_prefetch(a):
    a(f"""
    s_getpc_b64 s[40:41]
    s_and_b32 s40, s40, 0xffffff00
    s_lshr_b32 s42, s2, 3
    s_lshl_b32 s42, s42, 11
    v_lshlrev_b32 v160, 7, v1
    v_add_u32 v160, s42, v160
    s_mov_b64 exec, 0xffff
    global_load_dword v161, v160, s[40:41]
    s_mov_b64 exec, -1
    """)

def tlb_warm(a):
    G = int(E('TLBG', '16'))
    a(f"""
    s_lshr_b32 s42, s2, 3
    v_lshlrev_b32 v160, 5, v1
    v_add_u32 v160, s42, v160
    v_lshlrev_b32 v160, {G}, v160
    """)
    n_ws = -(-WS_END >> G)
    a(f"s_mov_b64 exec, {(1 << min(64, -(-n_ws // 32))) - 1:#x}")
    a(f"buffer_load_dword v161, v160, s[{sWS}:{sWS+3}], 0 offen sc1")
    a("s_mov_b64 exec, 3")
    for k, (pp, size) in enumerate(((pW1, 640*3456), (pW2, 1728*1280), (pWO, 640*1280), (pOUT, 2048*1280), (pX, 2048*1280), (pWQ, 640*3840))):
        make_srd(a, 44, pp, pp+1, 0, size)
        a(f"buffer_load_dword v{162+k}, v160, s[44:47], 0 offen sc1")
    a("s_mov_b64 exec, -1")
    make_srd(a, 44, pW1, pW1+1, 0, 640*3456)
    a(f"""
    s_mul_i32 s42, s2, 8640
    v_lshlrev_b32 v160, 7, v1
    buffer_load_dword v161, v160, s[44:47], s42 offen sc1
    s_add_u32 s42, s42, 8192
    s_mov_b64 exec, 15
    buffer_load_dword v161, v160, s[44:47], s42 offen sc1
    s_mov_b64 exec, -1
    """)

CODE_KB = 64
def gen_mega():
    a = Asm()
    a(f"""
    s_cmp_ge_u32 s2, 256
    s_cbranch_scc1 L_exit
    s_load_dwordx8 s[84:91], s[0:1], 0
    s_load_dwordx8 s[92:99], s[0:1], 32
    s_load_dwordx2 s[78:79], s[0:1], 64
    """)
    st_rt(a, 0); st(a, 1)
    a(f"""
    v_lshrrev_b32 v2, 6, v0
    s_nop 0
    v_readfirstlane_b32 s{sWV}, v2
    """)
    lane_id(a, 1)
    if not E('NOPF'):
        l = a.newlabel("pf")
        a(f"s_cmp_eq_u32 s{sWV}, 1")
        a(f"s_cbranch_scc0 {l}")
        code_prefetch(a)
        a.label(l)
    a("s_waitcnt lgkmcnt(0)")
    make_srd(a, sWS, pWS, pWS+1, 0, WS_END)
    if E('TLB'):
        l = a.newlabel("tlb")
        a(f"s_cmp_eq_u32 s{sWV}, 3")
        a(f"s_cbranch_scc0 {l}")
        tlb_warm(a)
        a.label(l)
    L = CoreL(a, 'qkv', 'q')
    L.map_tiles("L_repack")
    a(f"""
    s_cmp_ge_u32 s{sWV}, 4
    s_cbranch_scc0 L_q_compute
    """)
    L.loader_setup()
    st(a, 2)
    q = VmQ()
    for s_ in range(PD):
        L.issue_A(s_); q.push(f"A{s_}", 4)
        if not FS: stamp(a, 9 + 2*s_, base=SB)
        L.issue_W(s_); q.push(f"W{s_}", 4)
        if not FS: stamp(a, 10 + 2*s_, base=SB)
    st(a, 3)
    make_srd(a, 44, pDBG, pDBG+1, 0, 256)
    a("v_lshlrev_b32 v71, 2, v1")
    a("v_mov_b32 v70, 0")
    L.ldstamps = True
    L.loader_main(q)
    st(a, 8)
    a("s_waitcnt lgkmcnt(0)")
    a("s_barrier")
    wave_only(a, 7, lambda: register_publish(a, 70))
    a("s_barrier")
    a("s_branch L_attn")
    a.label("L_q_compute")
    l = a.newlabel("zc")
    a(f"""
    s_or_b32 s40, s2, s{sWV}
    s_cmp_eq_u32 s40, 0
    s_cbranch_scc0 {l}
    v_mov_b32 v4, 0
    v_mov_b32 v5, 0
    v_mov_b32 v6, 0
    v_mov_b32 v7, 0
    v_lshlrev_b32 v8, 4, v1
    s_mov_b32 s40, {WS_CNT}
    """)
    for j in range(SZ_CNT // 1024):
        a(f"buffer_store_dwordx4 v[4:7], v8, s[{sWS}:{sWS+3}], s40 offen {SC}")
        a("s_add_u32 s40, s40, 1024")
    make_srd(a, 8, pDBG, pDBG+1, 0, 256)
    a(f"""
    s_waitcnt vmcnt(0)
    v_mov_b32 v4, 1
    v_mov_b32 v5, 0
    s_mov_b64 exec, 1
    buffer_store_dword v4, v5, s[8:11], 0 offen sc1
    s_mov_b64 exec, -1
    """)
    a.label(l)
    emit_p0r(a, L)
    RP = Repack(a)
    RP.issue()
    L.rp = RP
    L.compute_setup()
    make_srd(a, 44, pDBG, pDBG+1, 0, 256)
    a(f"v_lshlrev_b32 v{L.vSt+27}, 2, v1")
    a(f"v_mov_b32 v{L.vSt+26}, 0")
    a(f"""
    s_cmp_ge_u32 s{L.sNt}, 10
    s_cbranch_scc1 L_q_vpath
    """)
    L.addr_qk()
    emit_p0r_finish(a, L, extra=4)
    L.mainloop(True, 2)
    st(a, 3)
    a("s_barrier")
    L.epilogue_Y('qk')
    a("s_branch L_q_done")
    a.label("L_q_vpath")
    L.addr_v()
    emit_p0r_finish(a, L, extra=4)
    L.mainloop(False, 2)
    st(a, 3)
    a("s_barrier")
    L.epilogue_X()
    a.label("L_q_done")
    a(f"buffer_load_dword v{L.vSt+26}, v{L.vSt+27}, s[44:47], 0 offen sc1")
    a("s_waitcnt vmcnt(0)")
    a("s_barrier")
    a(f"s_cmp_eq_u32 s{sWV}, 0")
    a("s_cbranch_scc0 L_attn")
    dbg_flag_wait(a, L.vSt + 26, landed=True)
    a(f"s_add_u32 s40, s{L.sNt}, {C_QKV}")
    arrive(a, 40, 4)
    st(a, 4)
    a("s_branch L_attn")
    a.label("L_repack")
    make_srd(a, 44, pDBG, pDBG+1, 0, 256)
    a(f"v_lshlrev_b32 v71, 2, v1")
    a(f"v_mov_b32 v70, 0")
    def regall():
        LANDED[0] = False
        reg_step1(a, 70); reg_step2(a, 70); reg_step3(a, 70); register_publish(a, 70)
    wave_only(a, 6, regall)
    l = a.newlabel("rpl")
    a(f"s_cmp_ge_u32 s{sWV}, 4")
    a(f"s_cbranch_scc1 {l}")
    RP2 = Repack(a)
    RP2.issue()
    RP2.store()
    a.label(l)
    a("s_barrier")
    def rp_arr2():
        a(f"buffer_load_dword v70, v71, s[44:47], 0 offen sc1")
        dbg_flag_wait(a, 70)
        a("s_and_b32 s76, s2, 7")
        a(f"s_add_u32 s76, s76, {C_RPS}")
        arrive(a, 76, 64)
    wave_only(a, 4, rp_arr2)
    a.label("L_attn")
    emit_attention(a, None)
    S = CoreS(a, 'oproj')
    lane_id(a, 1)
    S.map_tiles()
    a(f"""
    s_cmp_ge_u32 s{sWV}, 4
    s_cbranch_scc0 L_o_compute
    """)
    S.loader_setup()
    q = VmQ()
    a("s_waitcnt vmcnt(0)")
    stx(a, 'a_drain')
    a("s_barrier")
    stx(a, 'a_bar3')
    for s_ in range(PD):
        S.issue_W(s_); q.push(f"W{s_}", 5)
    lw = a.newlabel("ow")
    a(f"s_cmp_eq_u32 s{sWV}, 4")
    a(f"s_cbranch_scc0 {lw}")
    a(f"s_add_u32 s40, s{sX}, {C_ATT}")
    poll1(a, 40, 32, 8)
    a.label(lw)
    stx(a, 'o_poll')
    a("s_barrier")
    for s_ in range(PD):
        S.issue_A(s_); q.push(f"A{s_}", 4)
    S.loader_main(q)
    a("s_barrier")
    F1 = CoreL(a, 'ffn1', 'f')
    F1.map_tiles("L_o_ld_idle")
    F1.loader_setup()
    q = VmQ()
    a("s_barrier")
    for s_ in range(PD):
        F1.issue_W(s_); q.push(f"W{s_}", 4)
    a("s_branch L_f1_loader")
    a.label("L_o_ld_idle")
    a("s_barrier")
    a("s_branch L_f2_loader0")
    a.label("L_o_compute")
    a("s_waitcnt vmcnt(0)")
    stx(a, 'a_drain')
    a("s_barrier")
    stx(a, 'a_bar3')
    lw = a.newlabel("oa")
    a(f"s_cmp_eq_u32 s{sWV}, 0")
    a(f"s_cbranch_scc0 {lw}")
    arrive_l(a, 76, 4)
    st(a, 8)
    a.label(lw)
    S.compute_setup()
    S.pretouch()
    S.residual_loads()
    a("s_barrier")
    st(a, 9)
    stx(a, 'o_X')
    S.mainloop(tag='o')
    stx(a, 'o_loop')
    S.reduce()
    stx(a, 'o_red')
    a("s_barrier")
    S.epilogue()
    stx(a, 'o_epi')
    a("s_waitcnt vmcnt(0)")
    stx(a, 'o_drain')
    a("s_barrier")
    lw = a.newlabel("oa2")
    a(f"s_cmp_eq_u32 s{sWV}, 0")
    a(f"s_cbranch_scc0 {lw}")
    a(f"s_lshr_b32 s40, s{S.sM0}, 7")
    a(f"s_add_u32 s40, s40, {C_OP}")
    arrive_l(a, 40, 4)
    st(a, 10)
    a.label(lw)
    lane_id(a, 1)
    F1.map_tiles("L_f2_compute0")
    a("s_branch L_f1_compute")
    a.label("L_f1_loader")
    lw = a.newlabel("fw")
    a(f"s_cmp_eq_u32 s{sWV}, 4")
    a(f"s_cbranch_scc0 {lw}")
    a(f"s_lshr_b32 s40, s{F1.sM0}, 7")
    a(f"s_add_u32 s40, s40, {C_OP}")
    poll1(a, 40, 16, 8)
    a.label(lw)
    a("s_barrier")
    for s_ in range(PD):
        F1.issue_A(s_); q.push(f"A{s_}", 4)
    F1.lstats_init()
    F1.loader_main(q)
    a("s_barrier")
    S2 = CoreS(a, 'ffn2')
    S2.map_tiles()
    S2.loader_setup()
    q = VmQ()
    a("s_barrier")
    for s_ in range(PD):
        S2.issue_W(s_); q.push(f"W{s_}", 5)
    a("s_branch L_f2_loader")
    a.label("L_f2_loader0")
    S2.map_tiles()
    S2.loader_setup()
    for s_ in range(PD):
        S2.issue_W(s_)
    a.label("L_f2_loader")
    lw = a.newlabel("gw")
    a(f"s_cmp_eq_u32 s{sWV}, 4")
    a(f"s_cbranch_scc0 {lw}")
    a(f"s_lshr_b32 s40, s{S2.sM0}, 7")
    a(f"s_add_u32 s40, s40, {C_F1}")
    poll1(a, 40, 14, 8)
    a.label(lw)
    a("s_barrier")
    for s_ in range(PD):
        S2.issue_A(s_); q.push(f"A{s_}", 4)
    S2.loader_main(q)
    if common.STAMPS:
        stamp_flush(a, 0, sWV, base=SB, vt=90)
    a("s_endpgm")
    a.label("L_f1_compute")
    F1.compute_setup()
    F1.addr_f()
    a("s_barrier")
    st(a, 11)
    stx(a, 'f_X')
    F1.mainloop(True, tag='f')
    stx(a, 'f_loop')
    a("s_barrier")
    F1.epilogue_Y('ffn1')
    stx(a, 'f_epi')
    a("s_waitcnt vmcnt(0)")
    stx(a, 'f_drain')
    a("s_barrier")
    lw = a.newlabel("fa")
    a(f"s_cmp_eq_u32 s{sWV}, 0")
    a(f"s_cbranch_scc0 {lw}")
    a(f"s_lshr_b32 s40, s{F1.sM0}, 7")
    a(f"s_add_u32 s40, s40, {C_F1}")
    arrive_l(a, 40, 4)
    st(a, 12)
    a.label(lw)
    lane_id(a, 1)
    a.label("L_f2_compute0")
    S2.map_tiles()
    S2.compute_setup()
    a("s_barrier")
    st(a, 13)
    stx(a, 'g_X')
    S2.residual_loads()
    S2.mainloop(tag='g')
    stx(a, 'g_loop')
    S2.reduce()
    stx(a, 'g_red')
    S2.epilogue()
    stx(a, 'g_epi')
    if common.STAMPS:
        a("s_waitcnt vmcnt(0)")
        st(a, 14); st_rt(a, 15)
        stamp_flush(a, 0, sWV, base=SB, vt=90)
    a.label("L_exit")
    a("s_endpgm")
    return kernel_header(NAME) + a.text() + kernel_desc(NAME, 256, 176, sgpr=102)
```

```python
from common import *
import common, os
E = os.environ.get

NAME = "sequential_preLN__softmax_full_mha__dense_activation_relu__prompt_kernel"
pX, pWQ, pWO, pW1, pW2, pOUT, pDBG, pWS = 84, 86, 88, 92, 94, 96, 98, 78
sWS = 80
sWV = 100
sPoll = 101
SB = 48
STAT = 131072
LDS_TOTAL = 149504
SC = "sc1"
sX, sRk, sLoc = 72, 73, 74
ROLE = LDS_TOTAL - 64
POLL_MAX = 1 << 22

FS = E('FS', '').split(',') if E('FS') else []
FS0 = int(E('FS0', '9'))
def st(a, i):
    if FS and (i >= FS0) and i != 15: return
    stamp(a, i, base=SB)
def st2(a, i): pass
def stx(a, tag):
    if tag in FS: stamp(a, FS0 + FS.index(tag), base=SB)
def st_rt(a, i): stamp_rt(a, i, base=SB)

def lane_id(a, v):
    a(f"v_mbcnt_lo_u32_b32 v{v}, -1, 0")
    a(f"v_mbcnt_hi_u32_b32 v{v}, -1, v{v}")

def arrive(a, sIdx, vt):
    a(f"""
    s_lshl_b32 s{sPoll}, s{sIdx}, 7
    s_add_u32 s{sPoll}, s{sPoll}, {WS_CNT}
    v_mov_b32 v{vt}, s{sPoll}
    v_mov_b32 v{vt+1}, 1
    s_mov_b64 exec, 1
    buffer_atomic_add v{vt+1}, v{vt}, s[{sWS}:{sWS+3}], 0 offen sc1
    s_mov_b64 exec, -1
    """)

def dual(a, instrs):
    l0, l1 = a.newlabel("slow"), a.newlabel("dd")
    a(f"s_cmp_eq_u32 s{sLoc}, 0")
    a(f"s_cbranch_scc1 {l0}")
    for i in instrs: a(i.replace("@SC", E('LOCFL', '') if 'store' in i else ''))
    a(f"s_branch {l1}")
    a.label(l0)
    for i in instrs: a(i.replace("@SC", "sc1"))
    a.label(l1)

def arrive_l(a, sIdx, vt):
    a(f"""
    s_lshl_b32 s{sPoll}, s{sIdx}, 7
    s_add_u32 s{sPoll}, s{sPoll}, {WS_CNT}
    v_mov_b32 v{vt}, s{sPoll}
    v_mov_b32 v{vt+1}, 1
    s_mov_b64 exec, 1
    """)
    dual(a, [f"buffer_atomic_add v{vt+1}, v{vt}, s[{sWS}:{sWS+3}], 0 offen @SC"])
    a("s_mov_b64 exec, -1")

def poll(a, vOff, vTgt, nl, vt):
    l0, l1 = a.newlabel("poll"), a.newlabel("pollok")
    a(f"s_mov_b64 exec, {(1 << nl) - 1:#x}")
    a(f"s_mov_b32 s{sPoll}, 0")
    a.label(l0)
    a(f"""
    buffer_load_dword v{vt}, v{vOff}, s[{sWS}:{sWS+3}], 0 offen sc1
    s_waitcnt vmcnt(0)
    v_cmp_gt_u32 vcc, v{vTgt}, v{vt}
    s_nop 4
    s_cmp_eq_u64 vcc, 0
    s_cbranch_scc1 {l1}
    s_add_u32 s{sPoll}, s{sPoll}, 1
    s_cmp_gt_u32 s{sPoll}, {POLL_MAX}
    s_cbranch_scc1 {l1}
    s_sleep 1
    s_branch {l0}
    """)
    a.label(l1)
    a("s_mov_b64 exec, -1")

def poll1(a, sIdx, target, vt):
    a(f"""
    s_lshl_b32 s{sPoll}, s{sIdx}, 7
    s_add_u32 s{sPoll}, s{sPoll}, {WS_CNT}
    v_mov_b32 v{vt+1}, s{sPoll}
    v_mov_b32 v{vt+2}, {target}
    """)
    poll(a, vt + 1, vt + 2, 1, vt)

def wave_sum(a, v):
    for sh in (1, 2, 4, 8):
        a(f"v_add_f32_dpp v{v}, v{v}, v{v} row_shr:{sh} row_mask:0xf bank_mask:0xf bound_ctrl:0")
        a("s_nop 1")
    a(f"v_add_f32_dpp v{v}, v{v}, v{v} row_bcast:15 row_mask:0xa bank_mask:0xf")
    a("s_nop 1")
    a(f"v_add_f32_dpp v{v}, v{v}, v{v} row_bcast:31 row_mask:0xc bank_mask:0xf")
    a("s_nop 1")

def p0_rows_issue(a, sXs, s0, vR, vA):
    a(f"""
    s_lshl_b32 s{s0}, s2, 3
    s_lshl_b32 s{s0+1}, s{sWV}, 1
    s_add_u32 s{s0}, s{s0}, s{s0+1}
    s_mul_i32 s{s0+2}, s{s0}, 1280
    v_lshlrev_b32 v{vA}, 4, v1
    v_lshlrev_b32 v{vA+1}, 2, v1
    s_add_u32 s{s0+3}, s{s0+2}, 1280
    buffer_load_dwordx4 {vr(vR,4)}, v{vA}, s[{sXs}:{sXs+3}], s{s0+2} offen
    buffer_load_dword v{vR+4}, v{vA+1}, s[{sXs}:{sXs+3}], s{s0+2} offen offset:1024
    buffer_load_dwordx4 {vr(vR+6,4)}, v{vA}, s[{sXs}:{sXs+3}], s{s0+3} offen
    buffer_load_dword v{vR+5}, v{vA+1}, s[{sXs}:{sXs+3}], s{s0+3} offen offset:1024
    """)
def p0_rows_finish(a, s0, vR, vA):
    for rr in range(2):
        regs = [vR + 6*rr + i for i in range(4)] + [vR + 4 + rr]
        S, Q, U = vA + 4, vA + 5, vA + 6
        for n, r in enumerate(regs):
            a(f"v_lshlrev_b32 v{U}, 16, v{r}")
            a(f"v_and_b32 v{U+1}, 0xffff0000, v{r}")
            if n == 0:
                a(f"v_add_f32 v{S}, v{U}, v{U+1}")
                a(f"v_mul_f32 v{Q}, v{U}, v{U}")
            else:
                a(f"v_add_f32 v{S}, v{S}, v{U}")
                a(f"v_add_f32 v{S}, v{S}, v{U+1}")
                a(f"v_fmac_f32 v{Q}, v{U}, v{U}")
            a(f"v_fmac_f32 v{Q}, v{U+1}, v{U+1}")
        a("s_nop 1")
        for sh in (1, 2, 4, 8):
            a(f"v_add_f32_dpp v{S}, v{S}, v{S} row_shr:{sh} row_mask:0xf bank_mask:0xf bound_ctrl:0")
            a(f"v_add_f32_dpp v{Q}, v{Q}, v{Q} row_shr:{sh} row_mask:0xf bank_mask:0xf bound_ctrl:0")
            a("s_nop 0")
        a(f"v_add_f32_dpp v{S}, v{S}, v{S} row_bcast:15 row_mask:0xa bank_mask:0xf")
        a(f"v_add_f32_dpp v{Q}, v{Q}, v{Q} row_bcast:15 row_mask:0xa bank_mask:0xf")
        a("s_nop 0")
        a(f"v_add_f32_dpp v{S}, v{S}, v{S} row_bcast:31 row_mask:0xc bank_mask:0xf")
        a(f"v_add_f32_dpp v{Q}, v{Q}, v{Q} row_bcast:31 row_mask:0xc bank_mask:0xf")
        a(f"""
        s_nop 0
        v_mul_f32 v{S}, {f32bits(1.0/640):#x}, v{S}
        v_mul_f32 v{Q}, {f32bits(1.0/640):#x}, v{Q}
        v_fma_f32 v{Q}, -v{S}, v{S}, v{Q}
        v_max_f32 v{Q}, 0, v{Q}
        v_add_f32 v{Q}, {f32bits(1e-5):#x}, v{Q}
        v_rsq_f32 v{Q}, v{Q}
        s_nop 0
        v_mov_b32 v{vA+8+2*rr}, v{S}
        v_mov_b32 v{vA+9+2*rr}, v{Q}
        """)
    a(f"""
    s_lshl_b32 s{s0+4}, s{s0}, 3
    s_add_u32 s{s0+4}, s{s0+4}, {WS_ST1}
    v_mov_b32 v{vA+4}, 0
    s_mov_b32 exec_lo, 0
    s_mov_b32 exec_hi, 0x80000000
    buffer_store_dwordx4 {vr(vA+8,4)}, v{vA+4}, s[{sWS}:{sWS+3}], s{s0+4} offen {SC}
    s_mov_b64 exec, -1
    """)
def colsum_issue(a, which, srd, sW4, s0, vC, vA):
    ld = 3840 if which == 'wq' else 3456
    a(f"""
    s_and_b32 s{s0+1}, s2, 7
    s_lshr_b32 s{s0+2}, s2, 3
    s_lshr_b32 s{s0+3}, s{s0+1}, 1
    s_lshl_b32 s{s0+3}, s{s0+3}, 5
    s_add_u32 s{s0+2}, s{s0+2}, s{s0+3}
    s_and_b32 s{s0+1}, s{s0+1}, 1
    s_and_b32 s{s0+3}, s{s0+2}, 15
    s_lshr_b32 s{s0+2}, s{s0+2}, 4
    v_lshrrev_b32 v{vA}, 3, v1
    v_and_b32 v{vA+1}, 7, v1
    v_lshlrev_b32 v{vA+1}, 2, v{vA+1}
    v_mul_u32_u24 v{vA+2}, {ld}, v{vA}
    v_add_u32 v{vA+2}, v{vA+2}, v{vA+1}
    s_lshl_b32 s{s0+4}, s{s0+3}, 6
    s_lshl_b32 s{s0+7}, s{sW4}, 4
    s_add_u32 s{s0+4}, s{s0+4}, s{s0+7}
    s_mul_i32 s{s0+5}, s{s0+1}, {1024 if which == 'wq' else 896}
    s_add_u32 s{s0+5}, s{s0+5}, s{s0+4}
    s_mul_i32 s{s0+7}, s{s0+2}, {80*ld}
    s_lshl_b32 s{s0+4}, s{s0+5}, 1
    s_add_u32 s{s0+7}, s{s0+7}, s{s0+4}
    """)
    for j in range(10):
        a(f"buffer_load_dword v{vC+j}, v{vA+2}, s[{srd}:{srd+3}], s{s0+7} offen")
        if j < 9: a(f"s_add_u32 s{s0+7}, s{s0+7}, {8*ld}")
def colsum_finish(a, which, s0, vC, vA):
    base, ncol = (WS_CS1, 1920) if which == 'wq' else (WS_CS2, 1792)
    A0, A1, U = vA + 4, vA + 5, vA + 6
    for j in range(10):
        if j == 0:
            a(f"v_lshlrev_b32 v{A0}, 16, v{vC}")
            a(f"v_and_b32 v{A1}, 0xffff0000, v{vC}")
        else:
            a(f"v_lshlrev_b32 v{U}, 16, v{vC+j}")
            a(f"v_and_b32 v{U+1}, 0xffff0000, v{vC+j}")
            a(f"v_add_f32 v{A0}, v{A0}, v{U}")
            a(f"v_add_f32 v{A1}, v{A1}, v{U+1}")
    a(f"""
    s_nop 1
    v_add_f32_dpp v{A0}, v{A0}, v{A0} row_ror:8 row_mask:0xf bank_mask:0xf
    v_add_f32_dpp v{A1}, v{A1}, v{A1} row_ror:8 row_mask:0xf bank_mask:0xf
    s_nop 1
    v_mov_b32 v{U}, v{A0}
    v_mov_b32 v{U+1}, v{A1}
    s_nop 1
    v_permlane16_swap_b32 v{A0}, v{U}
    v_permlane16_swap_b32 v{A1}, v{U+1}
    s_nop 1
    v_add_f32 v{A0}, v{A0}, v{U}
    v_add_f32 v{A1}, v{A1}, v{U+1}
    s_nop 0
    v_mov_b32 v{U}, v{A0}
    v_mov_b32 v{U+1}, v{A1}
    s_nop 1
    v_permlane32_swap_b32 v{A0}, v{U}
    v_permlane32_swap_b32 v{A1}, v{U+1}
    s_nop 1
    v_add_f32 v{vA+12}, v{A0}, v{U}
    v_add_f32 v{vA+13}, v{A1}, v{U+1}
    v_lshlrev_b32 v{U}, 3, v1
    s_mul_i32 s{s0+4}, s{s0+2}, {ncol*4}
    s_lshl_b32 s{s0+7}, s{s0+5}, 2
    s_add_u32 s{s0+4}, s{s0+4}, s{s0+7}
    s_add_u32 s{s0+4}, s{s0+4}, {base}
    """)
    lab = a.newlabel("p0skip")
    if which == 'wq':
        a(f"s_cmp_ge_u32 s{s0+5}, 1920")
    else:
        a(f"s_sub_u32 s{s0+7}, 14, s{s0+1}")
        a(f"s_cmp_ge_u32 s{s0+3}, s{s0+7}")
    a(f"s_cbranch_scc1 {lab}")
    a("s_mov_b64 exec, 0xff")
    a(f"buffer_store_dwordx2 {vr(vA+12,2)}, v{U}, s[{sWS}:{sWS+3}], s{s0+4} offen {SC}")
    a("s_mov_b64 exec, -1")
    a.label(lab)
def emit_p0(a):
    sXs, sWq, s0 = 8, 12, 40
    vR, vC, vA = 4, 14, 34
    make_srd(a, sXs, pX, pX+1, 0, 2048*1280)
    make_srd(a, sWq, pWQ, pWQ+1, 0, 640*3840)
    p0_rows_issue(a, sXs, s0, vR, vA)
    a(f"s_mov_b32 s39, s{s0}")
    colsum_issue(a, 'wq', sWq, sWV, s0, vC, vA + 12)
    a("s_waitcnt vmcnt(10)")
    a(f"s_mov_b32 s38, s{s0+4}")
    p0_rows_finish(a, 39, vR, vA) if False else None
    p0_rows_finish_b(a, 39, 38, vR, vA)
    a("s_waitcnt vmcnt(1)")
    colsum_finish(a, 'wq', s0, vC, vA + 12)
def p0_rows_finish_b(a, sRow, sTmp, vR, vA):
    import io
    class Tmp: pass
    for rr in range(2):
        regs = [vR + 6*rr + i for i in range(4)] + [vR + 4 + rr]
        S, Q, U = vA + 4, vA + 5, vA + 6
        for n, r in enumerate(regs):
            a(f"v_lshlrev_b32 v{U}, 16, v{r}")
            a(f"v_and_b32 v{U+1}, 0xffff0000, v{r}")
            if n == 0:
                a(f"v_add_f32 v{S}, v{U}, v{U+1}")
                a(f"v_mul_f32 v{Q}, v{U}, v{U}")
            else:
                a(f"v_add_f32 v{S}, v{S}, v{U}")
                a(f"v_add_f32 v{S}, v{S}, v{U+1}")
                a(f"v_fmac_f32 v{Q}, v{U}, v{U}")
            a(f"v_fmac_f32 v{Q}, v{U+1}, v{U+1}")
        a("s_nop 1")
        for sh in (1, 2, 4, 8):
            a(f"v_add_f32_dpp v{S}, v{S}, v{S} row_shr:{sh} row_mask:0xf bank_mask:0xf bound_ctrl:0")
            a(f"v_add_f32_dpp v{Q}, v{Q}, v{Q} row_shr:{sh} row_mask:0xf bank_mask:0xf bound_ctrl:0")
            a("s_nop 0")
        a(f"v_add_f32_dpp v{S}, v{S}, v{S} row_bcast:15 row_mask:0xa bank_mask:0xf")
        a(f"v_add_f32_dpp v{Q}, v{Q}, v{Q} row_bcast:15 row_mask:0xa bank_mask:0xf")
        a("s_nop 0")
        a(f"v_add_f32_dpp v{S}, v{S}, v{S} row_bcast:31 row_mask:0xc bank_mask:0xf")
        a(f"v_add_f32_dpp v{Q}, v{Q}, v{Q} row_bcast:31 row_mask:0xc bank_mask:0xf")
        a(f"""
        s_nop 0
        v_mul_f32 v{S}, {f32bits(1.0/640):#x}, v{S}
        v_mul_f32 v{Q}, {f32bits(1.0/640):#x}, v{Q}
        v_fma_f32 v{Q}, -v{S}, v{S}, v{Q}
        v_max_f32 v{Q}, 0, v{Q}
        v_add_f32 v{Q}, {f32bits(1e-5):#x}, v{Q}
        v_rsq_f32 v{Q}, v{Q}
        s_nop 0
        v_mov_b32 v{vA+8+2*rr}, v{S}
        v_mov_b32 v{vA+9+2*rr}, v{Q}
        """)
    a(f"""
    s_lshl_b32 s{sTmp}, s{sRow}, 3
    s_add_u32 s{sTmp}, s{sTmp}, {WS_ST1}
    v_mov_b32 v{vA+4}, 0
    s_mov_b32 exec_lo, 0
    s_mov_b32 exec_hi, 0x80000000
    buffer_store_dwordx4 {vr(vA+8,4)}, v{vA+4}, s[{sWS}:{sWS+3}], s{sTmp} offen {SC}
    s_mov_b64 exec, -1
    """)
def dbg_flag_issue(a, vt):
    make_srd(a, 44, pDBG, pDBG+1, 0, 256)
    a(f"v_mov_b32 v{vt+1}, 0")
    a(f"buffer_load_dword v{vt}, v{vt+1}, s[44:47], 0 offen sc1")
def dbg_flag_issue_b(a, vt):
    make_srd(a, 16, pDBG, pDBG+1, 0, 256)
    a(f"v_mov_b32 v{vt+1}, 0")
    a(f"buffer_load_dword v{vt}, v{vt+1}, s[16:19], 0 offen sc1")
def dbg_flag_wait(a, vt, srd=44, landed=False):
    l0, l1, l2 = a.newlabel("dbgp"), a.newlabel("dbgok"), a.newlabel("dbgc")
    a(f"s_mov_b32 s{sPoll}, 0")
    if landed: a(f"s_branch {l2}")
    a.label(l0)
    a("s_waitcnt vmcnt(0)")
    a.label(l2)
    a(f"""
    v_readfirstlane_b32 s75, v{vt}
    s_cmp_lg_u32 s75, 0
    s_cbranch_scc1 {l1}
    s_add_u32 s{sPoll}, s{sPoll}, 1
    s_cmp_gt_u32 s{sPoll}, {POLL_MAX}
    s_cbranch_scc1 {l1}
    s_sleep 1
    buffer_load_dword v{vt}, v{vt+1}, s[{srd}:{srd+3}], 0 offen sc1
    s_branch {l0}
    """)
    a.label(l1)
def dbg_flag_wait_arrive_b(a, cbase, vt):
    dbg_flag_wait_arrive(a, cbase, vt, 16)
def dbg_flag_wait_arrive(a, cbase, vt, srd=44):
    l0, l1 = a.newlabel("dbgp"), a.newlabel("dbgok")
    a(f"s_mov_b32 s{sPoll}, 0")
    a.label(l0)
    a(f"""
    s_waitcnt vmcnt(0)
    v_readfirstlane_b32 s75, v{vt}
    s_cmp_lg_u32 s75, 0
    s_cbranch_scc1 {l1}
    s_add_u32 s{sPoll}, s{sPoll}, 1
    s_cmp_gt_u32 s{sPoll}, {POLL_MAX}
    s_cbranch_scc1 {l1}
    s_sleep 1
    buffer_load_dword v{vt}, v{vt+1}, s[{srd}:{srd+3}], 0 offen sc1
    s_branch {l0}
    """)
    a.label(l1)
    a(f"s_and_b32 s75, s2, 7")
    a(f"s_add_u32 s75, s75, {cbase}")
    arrive(a, 75, vt)

class P0Q:
    vR, vC, vD, vA = 64, 84, 94, 104
    def __init__(self, a, L):
        self.a, self.L = a, L
    def issue(self):
        a, L = self.a, self.L
        vR, vC, vD, vA = self.vR, self.vC, self.vD, self.vA
        sXs, sWq = L.sA, L.sW
        sW1 = 16
        make_srd(a, sW1, pW1, pW1+1, 0, 640*3456)
        a(f"""
        v_lshrrev_b32 v2, 4, v1
        v_and_b32 v3, 15, v1
        s_lshl_b32 s40, s{L.sNt}, 4
        s_add_u32 s40, s40, s{L.sM0}
        s_lshl_b32 s41, s{L.sLw}, 2
        s_add_u32 s40, s40, s41
        s_cmp_lt_u32 s{L.sNt}, 8
        s_cselect_b32 s40, s40, 4096
        v_add_u32 v{vA}, s40, v2
        v_mul_u32_u24 v{vA+1}, 1280, v{vA}
        v_lshlrev_b32 v{vA+2}, 4, v3
        v_add_u32 v{vA+1}, v{vA+1}, v{vA+2}
        """)
        for j in range(5):
            a(f"buffer_load_dwordx4 {vr(vR+4*j,4)}, v{vA+1}, s[{sXs}:{sXs+3}], 0 offen offset:{256*j}")
        a(f"""
        s_lshr_b32 s41, s{L.sM0}, 7
        s_mul_i32 s42, s41, {40*3840}
        s_lshl_b32 s43, s{L.sLw}, 5
        s_add_u32 s43, s43, s{L.sN0}
        s_lshl_b32 s40, s43, 1
        s_add_u32 s42, s42, s40
        v_mul_u32_u24 v{vA+2}, 3840, v2
        v_lshlrev_b32 v{vA+3}, 2, v3
        v_add_u32 v{vA+2}, v{vA+2}, v{vA+3}
        """)
        for j in range(10):
            a(f"buffer_load_dword v{vC+j}, v{vA+2}, s[{sWq}:{sWq+3}], s42 offen")
            if j < 9: a(f"s_add_u32 s42, s42, {4*3840}")
        a(f"""
        s_mul_i32 s42, s41, {40*3456}
        s_add_u32 s42, s42, s40
        s_cmp_lt_u32 s{L.sNt}, 14
        s_cselect_b32 s42, s42, 0x7f000000
        v_mul_u32_u24 v{vA+4}, 3456, v2
        v_add_u32 v{vA+4}, v{vA+4}, v{vA+3}
        """)
        for j in range(10):
            a(f"buffer_load_dword v{vD+j}, v{vA+4}, s[{sW1}:{sW1+3}], s42 offen")
            if j < 9: a(f"s_add_u32 s42, s42, {4*3456}")
    def rows(self):
        a, L = self.a, self.L
        vR, vA = self.vR, self.vA
        S, Q, U = vA + 5, vA + 6, vA + 8
        for n in range(20):
            r = vR + n
            u = U + 2*(n & 1)
            a(f"v_lshlrev_b32 v{u}, 16, v{r}")
            a(f"v_and_b32 v{u+1}, 0xffff0000, v{r}")
            if n == 0:
                a(f"v_add_f32 v{S}, v{u}, v{u+1}")
                a(f"v_mul_f32 v{Q}, v{u}, v{u}")
            else:
                a(f"v_add_f32 v{S}, v{S}, v{u}")
                a(f"v_fmac_f32 v{Q}, v{u}, v{u}")
                a(f"v_add_f32 v{S}, v{S}, v{u+1}")
            a(f"v_fmac_f32 v{Q}, v{u+1}, v{u+1}")
        a("s_nop 1")
        for sh in (1, 2, 4, 8):
            a(f"v_add_f32_dpp v{S}, v{S}, v{S} row_shr:{sh} row_mask:0xf bank_mask:0xf bound_ctrl:0")
            a(f"v_add_f32_dpp v{Q}, v{Q}, v{Q} row_shr:{sh} row_mask:0xf bank_mask:0xf bound_ctrl:0")
            a("s_nop 0")
        a(f"""
        v_mul_f32 v{S}, {f32bits(1.0/640):#x}, v{S}
        v_mul_f32 v{Q}, {f32bits(1.0/640):#x}, v{Q}
        v_fma_f32 v{Q}, -v{S}, v{S}, v{Q}
        v_max_f32 v{Q}, 0, v{Q}
        v_add_f32 v{Q}, {f32bits(1e-5):#x}, v{Q}
        v_rsq_f32 v{Q}, v{Q}
        v_mov_b32 v{U}, v{S}
        v_lshlrev_b32 v{U+2}, 3, v{vA}
        v_mov_b32 v{U+3}, 0x7fffff00
        v_cmp_gt_u32 vcc, 2048, v{vA}
        v_mov_b32 v{U+1}, v{Q}
        v_cndmask_b32 v{U+2}, v{U+3}, v{U+2}, vcc
        s_mov_b32 s40, {WS_ST1}
        s_mov_b32 exec_lo, 0x80008000
        s_mov_b32 exec_hi, 0x80008000
        buffer_store_dwordx2 {vr(U,2)}, v{U+2}, s[{sWS}:{sWS+3}], s40 offen {SC}
        s_mov_b64 exec, -1
        """)
    def cols(self, which):
        a, L = self.a, self.L
        vA = self.vA
        regs, base, ncol, lim = (self.vC, WS_CS1, 1920, 15) if which == 0 else (self.vD, WS_CS2, 1792, 14)
        U = vA + 8
        A0, A1 = vA + 5, vA + 6
        for j in range(10):
            u = U + 2*(j & 1)
            if j == 0:
                a(f"v_lshlrev_b32 v{A0}, 16, v{regs}")
                a(f"v_and_b32 v{A1}, 0xffff0000, v{regs}")
            else:
                a(f"v_lshlrev_b32 v{u}, 16, v{regs+j}")
                a(f"v_and_b32 v{u+1}, 0xffff0000, v{regs+j}")
                a(f"v_add_f32 v{A0}, v{A0}, v{u}")
                a(f"v_add_f32 v{A1}, v{A1}, v{u+1}")
        a(f"""
        s_nop 0
        v_mov_b32 v{U}, v{A0}
        v_mov_b32 v{U+1}, v{A1}
        s_nop 1
        v_permlane16_swap_b32 v{A0}, v{U}
        v_permlane16_swap_b32 v{A1}, v{U+1}
        s_nop 1
        v_add_f32 v{A0}, v{A0}, v{U}
        v_add_f32 v{A1}, v{A1}, v{U+1}
        s_nop 0
        v_mov_b32 v{U}, v{A0}
        v_mov_b32 v{U+1}, v{A1}
        s_nop 1
        v_permlane32_swap_b32 v{A0}, v{U}
        v_permlane32_swap_b32 v{A1}, v{U+1}
        s_nop 1
        v_add_f32 v{U+4}, v{A0}, v{U}
        v_add_f32 v{U+5}, v{A1}, v{U+1}
        v_lshlrev_b32 v{U}, 3, v3
        s_mul_i32 s42, s41, {ncol*4}
        s_lshl_b32 s40, s43, 2
        s_add_u32 s42, s42, s40
        s_add_u32 s42, s42, {base}
        s_cmp_lt_u32 s{L.sNt}, {lim}
        s_cselect_b32 s42, s42, 0x7f000000
        s_mov_b64 exec, 0xffff
        buffer_store_dwordx2 {vr(U+4,2)}, v{U}, s[{sWS}:{sWS+3}], s42 offen {SC}
        s_mov_b64 exec, -1
        s_nop 1
        """)
def emit_p0r(a, L):
    sXs, vR, vA = 8, 32, 52
    make_srd(a, sXs, pX, pX+1, 0, 2048*1280)
    a(f"""
    v_lshrrev_b32 v2, 4, v1
    v_and_b32 v3, 15, v1
    s_lshl_b32 s40, s{L.sNt}, 4
    s_add_u32 s40, s40, s{L.sM0}
    s_lshl_b32 s41, s{sWV}, 2
    s_add_u32 s40, s40, s41
    s_cmp_lt_u32 s{L.sNt}, 8
    s_cselect_b32 s40, s40, 4096
    v_add_u32 v{vA}, s40, v2
    v_mul_u32_u24 v{vA+1}, 1280, v{vA}
    v_lshlrev_b32 v{vA+2}, 4, v3
    v_add_u32 v{vA+1}, v{vA+1}, v{vA+2}
    """)
    for j in range(5):
        a(f"buffer_load_dwordx4 {vr(vR+4*j,4)}, v{vA+1}, s[{sXs}:{sXs+3}], 0 offen offset:{256*j}")
def emit_p0r_finish(a, L, extra=0):
    vR, vA = 32, 52
    S, Q, S2, Q2, U = vA + 4, vA + 5, vA + 6, vA + 7, vA + 8
    for j in range(5):
        a(f"s_waitcnt vmcnt({4 - j + extra})")
        for n in range(4):
            r = vR + 4*j + n
            u = U + 2*(n & 1)
            a(f"v_lshlrev_b32 v{u}, 16, v{r}")
            a(f"v_and_b32 v{u+1}, 0xffff0000, v{r}")
            if j == 0 and n == 0:
                a(f"v_mov_b32 v{S}, v{u}")
                a(f"v_mul_f32 v{Q}, v{u}, v{u}")
                a(f"v_mov_b32 v{S2}, v{u+1}")
                a(f"v_mul_f32 v{Q2}, v{u+1}, v{u+1}")
            else:
                a(f"v_add_f32 v{S}, v{S}, v{u}")
                a(f"v_fmac_f32 v{Q}, v{u}, v{u}")
                a(f"v_add_f32 v{S2}, v{S2}, v{u+1}")
                a(f"v_fmac_f32 v{Q2}, v{u+1}, v{u+1}")
    a(f"v_add_f32 v{S}, v{S}, v{S2}")
    a(f"v_add_f32 v{Q}, v{Q}, v{Q2}")
    a("s_nop 1")
    for sh in (1, 2, 4, 8):
        a(f"v_add_f32_dpp v{S}, v{S}, v{S} row_shr:{sh} row_mask:0xf bank_mask:0xf bound_ctrl:0")
        a(f"v_add_f32_dpp v{Q}, v{Q}, v{Q} row_shr:{sh} row_mask:0xf bank_mask:0xf bound_ctrl:0")
        a("s_nop 0")
    a(f"""
    v_mul_f32 v{S}, {f32bits(1.0/640):#x}, v{S}
    v_mul_f32 v{Q}, {f32bits(1.0/640):#x}, v{Q}
    v_fma_f32 v{Q}, -v{S}, v{S}, v{Q}
    v_max_f32 v{Q}, 0, v{Q}
    v_add_f32 v{Q}, {f32bits(1e-5):#x}, v{Q}
    v_rsq_f32 v{Q}, v{Q}
    v_mov_b32 v{U}, v{S}
    v_lshlrev_b32 v{U+2}, 3, v{vA}
    v_mov_b32 v{U+3}, 0x7fffff00
    v_cmp_gt_u32 vcc, 2048, v{vA}
    v_mov_b32 v{U+1}, v{Q}
    v_cndmask_b32 v{U+2}, v{U+3}, v{U+2}, vcc
    s_mov_b32 s75, {WS_ST1}
    s_mov_b32 exec_lo, 0x80008000
    s_mov_b32 exec_hi, 0x80008000
    buffer_store_dwordx2 {vr(U,2)}, v{U+2}, s[{sWS}:{sWS+3}], s75 offen {SC}
    s_mov_b64 exec, -1
    """)
def p0r_arrive(a, L, vt):
    ok, skip = a.newlabel("fok"), a.newlabel("fsk")
    dbg_flag_wait(a, vt, landed=True)
    a(f"s_cmp_lt_u32 s{L.sNt}, 8")
    a(f"s_cbranch_scc0 {skip}")
    a(f"s_lshr_b32 s76, s{L.sM0}, 7")
    a(f"s_add_u32 s76, s76, {C_ST}")
    arrive(a, 76, vt - 2)
    a.label(skip)

def qkv_prefetch(a, L):
    make_srd(a, 12, pWQ, pWQ+1, 0, 640*3840)
    make_srd(a, 8, pX, pX+1, 0, 2048*1280)
    fl = E('QPF_FL', 'sc1')
    a(f"""
    s_lshr_b32 s40, s2, 3
    s_and_b32 s41, s2, 1
    v_and_b32 v2, 15, v1
    v_lshrrev_b32 v3, 4, v1
    v_lshlrev_b32 v2, 7, v2
    v_mul_u32_u24 v3, 3840, v3
    v_add_u32 v4, v2, v3
    s_mul_i32 s42, s40, {20*3840}
    s_lshl_b32 s43, s41, 11
    s_add_u32 s42, s42, s43
    s_mul_i32 s43, s{sWV}, {4*3840}
    s_add_u32 s42, s42, s43
    buffer_load_dword v162, v4, s[12:15], s42 offen {fl}
    """)
    l = a.newlabel("qpf")
    a(f"""
    s_cmp_eq_u32 s{sWV}, 0
    s_cbranch_scc0 {l}
    s_add_u32 s42, s42, {16*3840}
    buffer_load_dword v162, v4, s[12:15], s42 offen {fl}
    """)
    a.label(l)
    l = a.newlabel("qpf")
    a(f"""
    s_cmp_eq_u32 s{sWV}, 0
    s_cbranch_scc1 {l}
    s_and_b32 s41, s2, 7
    s_lshr_b32 s41, s41, 1
    s_lshl_b32 s41, s41, 5
    s_add_u32 s41, s41, s40
    s_mul_i32 s42, s41, 20480
    s_sub_u32 s43, s{sWV}, 1
    s_lshl_b32 s43, s43, 13
    s_add_u32 s42, s42, s43
    v_lshlrev_b32 v4, 7, v1
    buffer_load_dword v162, v4, s[8:11], s42 offen {fl}
    """)
    a.label(l)

def p0q_arrive(a, L, vt):
    ok = a.newlabel("fok")
    a(f"v_readfirstlane_b32 s75, v{vt}")
    a("s_cmp_lg_u32 s75, 0")
    a(f"s_cbranch_scc1 {ok}")
    dbg_flag_wait(a, vt)
    a.label(ok)
    a(f"""
    s_lshr_b32 s75, s{L.sM0}, 7
    s_add_u32 s75, s75, {C_ST}
    s_add_u32 s76, s{L.sNt}, {C_CS1}
    s_add_u32 s77, s{L.sNt}, {C_CS2}
    v_mov_b32 v{vt-1}, s75
    v_writelane_b32 v{vt-1}, s76, 1
    v_writelane_b32 v{vt-1}, s77, 2
    s_nop 0
    v_lshlrev_b32 v{vt-1}, 7, v{vt-1}
    v_add_u32 v{vt-1}, {WS_CNT}, v{vt-1}
    v_mov_b32 v{vt-2}, 1
    s_cmp_lt_u32 s{L.sNt}, 8
    s_cselect_b32 s75, 1, 0
    s_or_b32 s75, s75, 2
    s_cmp_lt_u32 s{L.sNt}, 14
    s_cselect_b32 s76, 4, 0
    s_or_b32 s75, s75, s76
    s_mov_b32 exec_lo, s75
    s_mov_b32 exec_hi, 0
    buffer_atomic_add v{vt-2}, v{vt-1}, s[{sWS}:{sWS+3}], 0 offen sc1
    s_mov_b64 exec, -1
    """)

class Repack:
    aB, vD, vT = 28, 28, 88
    sWo, sW2, sW1 = 12, 16, 40
    def __init__(self, a): self.a = a
    def issue(self):
        a = self.a
        aB, vD, T = self.aB, self.vD, self.vT
        make_srd(a, self.sWo, pWO, pWO+1, 0, 640*1280)
        make_srd(a, self.sW2, pW2, pW2+1, 0, 1728*1280)
        make_srd(a, self.sW1, pW1, pW1+1, 0, 640*3456)
        a(f"""
        s_mul_i32 s75, s2, 768
        s_lshl_b32 s76, s{sWV}, 6
        s_add_u32 s75, s75, s76
        v_add_u32 v{T}, s75, v1
        """)
        for r in range(3):
            g, it, sg, rho, c, row, nt, st_, x = T+1, T+2, T+3, T+4, T+5, T+6, T+7, T+8, T+9
            a(f"""
            v_add_u32 v{g}, {256*r}, v{T}
            s_mov_b32 s75, {(1 << 32) // 1280 + 1:#x}
            v_mul_hi_u32 v{it}, v{g}, s75
            v_mul_u32_u24 v{sg}, 1280, v{it}
            v_sub_u32 v{sg}, v{g}, v{sg}
            v_mul_u32_u24 v{rho}, 0xcccd, v{sg}
            v_lshrrev_b32 v{rho}, 19, v{rho}
            v_mul_u32_u24 v{c}, 10, v{rho}
            v_sub_u32 v{c}, v{sg}, v{c}
            v_and_b32 v{row}, 0x73, v{rho}
            v_and_b32 v{x}, 4, v{rho}
            v_lshlrev_b32 v{x}, 1, v{x}
            v_or_b32 v{row}, v{row}, v{x}
            v_and_b32 v{x}, 8, v{rho}
            v_lshrrev_b32 v{x}, 1, v{x}
            v_or_b32 v{row}, v{row}, v{x}
            v_lshlrev_b32 v{vD+r}, 4, v{g}
            v_cmp_gt_u32 vcc, 40, v{it}
            v_subrev_u32 v{x}, 40, v{it}
            s_nop 0
            v_cndmask_b32 v{x}, v{x}, v{it}, vcc
            v_mul_u32_u24 v{nt}, 0x4925, v{x}
            v_mul_u32_u24 v{st_}, 0xcccd, v{x}
            v_cndmask_b32 v{nt}, v{nt}, v{st_}, vcc
            v_lshrrev_b32 v{nt}, 18, v{nt}
            v_mov_b32 v{st_}, 14
            v_cndmask_b32 v{st_}, v{st_}, 5, vcc
            v_mul_u32_u24 v{st_}, v{st_}, v{nt}
            v_sub_u32 v{st_}, v{x}, v{st_}
            v_lshlrev_b32 v{st_}, 7, v{st_}
            v_add_u32 v{row}, v{row}, v{st_}
            v_mul_u32_u24 v{row}, 1280, v{row}
            v_mul_u32_u24 v{nt}, 160, v{nt}
            v_lshlrev_b32 v{c}, 4, v{c}
            v_add3_u32 v{row}, v{row}, v{nt}, v{c}
            v_mov_b32 v{x}, 0x7fffff00
            v_cndmask_b32 v{nt}, v{x}, v{row}, vcc
            v_cndmask_b32 v{row}, v{row}, v{x}, vcc
            v_cmp_gt_u32 vcc, 152, v{it}
            s_nop 1
            v_cndmask_b32 v{vD+r}, v{x}, v{vD+r}, vcc
            """)
            la, lb = a.newlabel("rpa"), a.newlabel("rpb")
            a(f"""
            v_cmp_gt_u32 vcc, 40, v{it}
            s_nop 4
            s_mov_b64 s[76:77], vcc
            s_mov_b64 exec, vcc
            s_cbranch_execz {la}
            buffer_load_dwordx4 {ar(aB+4*r,4)}, v{nt}, s[{self.sWo}:{self.sWo+3}], 0 offen
            {la}:
            s_not_b64 exec, s[76:77]
            s_cbranch_execz {lb}
            buffer_load_dwordx4 {ar(aB+4*r,4)}, v{row}, s[{self.sW2}:{self.sW2+3}], 0 offen
            {lb}:
            s_mov_b64 exec, -1
            """)
        a(f"""
        s_mul_i32 s75, s2, 8640
        s_mul_i32 s76, s{sWV}, 2176
        s_add_u32 s75, s75, s76
        v_lshlrev_b32 v{T}, 7, v1
        s_mov_b64 exec, 0x1ffff
        buffer_load_dword v31, v{T}, s[{self.sW1}:{self.sW1+3}], s75 offen sc1
        s_mov_b64 exec, -1
        """)
    def store(self, wait_after=True, pre="s_waitcnt vmcnt(0)"):
        a = self.a
        a(pre)
        a(f"s_mov_b32 s75, {WS_WOP}")
        for r in range(3):
            a(f"buffer_store_dwordx4 {ar(self.aB+4*r,4)}, v{self.vD+r}, s[{sWS}:{sWS+3}], s75 offen {SC}")
        if wait_after: a("s_waitcnt vmcnt(0)")
        else: a("s_nop 1")

class CoreL:
    sA, sW, sO = 8, 12, 16
    sM0, sN0, sT0, sT1, sT2, sT3 = 21, 22, 23, 24, 25, 26
    sLw, sSlot, sAoff, sWoff, sLds = 20, 28, 29, 30, 31
    sWm, sWn, sNt, sSeq, sSeqW = 32, 33, 34, 35, 36
    vAe, vAo, vWo = 4, 5, 6
    NST = 10
    def __init__(self, a, mode, tag):
        self.a, self.mode, self.tag = a, mode, tag
        self.qkv = mode == 'qkv'
        self.LDW = 3840 if self.qkv else 3456
    def map_tiles(self, idle_label):
        a, c = self.a, self
        if not c.qkv:
            a(f"""
            s_and_b32 s{c.sT3}, s{sRk}, 1
            s_lshl_b32 s{c.sM0}, s{sX}, 1
            s_add_u32 s{c.sM0}, s{c.sM0}, s{c.sT3}
            s_lshl_b32 s{c.sM0}, s{c.sM0}, 7
            s_lshr_b32 s{c.sNt}, s{sRk}, 1
            s_cmp_ge_u32 s{c.sNt}, 14
            s_cbranch_scc1 {idle_label}
            s_lshl_b32 s{c.sN0}, s{c.sNt}, 7
            s_mul_i32 s{c.sSeq}, s{c.sNt}, 3
            s_mul_i32 s{c.sT0}, s{c.sT3}, 5
            s_add_u32 s{c.sSeq}, s{c.sSeq}, s{c.sT0}
            s_mul_i32 s{c.sT0}, s{c.sSeq}, 0xcccd
            s_lshr_b32 s{c.sT0}, s{c.sT0}, 19
            s_mul_i32 s{c.sT0}, s{c.sT0}, 10
            s_sub_u32 s{c.sSeq}, s{c.sSeq}, s{c.sT0}
            """)
            if E('NOROTL'): a(f"s_mov_b32 s{c.sSeq}, 0")
            return
        NT_PER = 8 if c.qkv else 7
        NT_TOT = 15 if c.qkv else 14
        a(f"""
        s_and_b32 s{c.sT0}, s2, 7
        s_lshr_b32 s{c.sT1}, s2, 3
        s_lshr_b32 s{c.sT2}, s{c.sT0}, 1
        s_lshl_b32 s{c.sT2}, s{c.sT2}, 2
        s_and_b32 s{c.sT3}, s{c.sT1}, 3
        s_add_u32 s{c.sM0}, s{c.sT2}, s{c.sT3}
        s_lshl_b32 s{c.sM0}, s{c.sM0}, 7
        s_and_b32 s{c.sT0}, s{c.sT0}, 1
        s_mul_i32 s{c.sT0}, s{c.sT0}, {NT_PER}
        s_lshr_b32 s{c.sT1}, s{c.sT1}, 2
        s_add_u32 s{c.sNt}, s{c.sT0}, s{c.sT1}
        s_cmp_ge_u32 s{c.sT1}, {NT_PER}
        s_cbranch_scc1 {idle_label}
        s_cmp_ge_u32 s{c.sNt}, {NT_TOT}
        s_cbranch_scc1 {idle_label}
        s_lshl_b32 s{c.sN0}, s{c.sNt}, 7
        s_mul_i32 s{c.sSeq}, s{c.sT3}, 3
        s_add_u32 s{c.sSeq}, s{c.sSeq}, s{c.sT1}
        s_cmp_ge_u32 s{c.sSeq}, 10
        s_cselect_b32 s{c.sT0}, 10, 0
        s_sub_u32 s{c.sSeq}, s{c.sSeq}, s{c.sT0}
        """)
        if E('NOROTL'): a(f"s_mov_b32 s{c.sSeq}, 0")
    def loader_setup(self):
        a, c = self.a, self
        a(f"s_sub_u32 s{c.sLw}, s{sWV}, 4")
        if c.qkv:
            make_srd(a, c.sA, pX, pX+1, 0, 2048*1280)
            a(f"""
            v_lshrrev_b32 v2, 3, v1
            v_mul_u32_u24 v2, 1280, v2
            v_lshrrev_b32 v3, 4, v1
            v_and_b32 v7, 7, v1
            v_xor_b32 v3, v3, v7
            v_lshlrev_b32 v3, 4, v3
            v_add_u32 v{c.vAe}, v2, v3
            v_xor_b32 v{c.vAo}, 64, v{c.vAe}
            s_lshl_b32 s{c.sT0}, s{c.sLw}, 5
            s_add_u32 s{c.sT0}, s{c.sT0}, s{c.sM0}
            s_mul_i32 s{c.sAoff}, s{c.sT0}, 1280
            """)
            c.A_SSTEP = 128
        else:
            make_srd(a, c.sA, pWS, pWS+1, WS_H, SZ_ACT)
            a(f"""
            v_lshlrev_b32 v{c.vAe}, 4, v1
            v_add_u32 v{c.vAo}, 1024, v{c.vAe}
            s_lshl_b32 s{c.sT0}, s{c.sLw}, 16
            s_lshl_b32 s{c.sT1}, s{c.sM0}, 4
            s_add_u32 s{c.sAoff}, s{c.sT0}, s{c.sT1}
            """)
            c.A_SSTEP = 8 * 32768
        pw = pWQ if c.qkv else pW1
        make_srd(a, c.sW, pw, pw+1, 0, 640 * c.LDW)
        a(f"""
        v_lshrrev_b32 v2, 4, v1
        v_mul_u32_u24 v3, {c.LDW}, v2
        v_lshlrev_b32 v2, 2, v2
        v_and_b32 v7, 15, v1
        v_xor_b32 v2, v2, v7
        v_lshlrev_b32 v2, 4, v2
        v_add_u32 v{c.vWo}, v2, v3
        s_lshl_b32 s{c.sT0}, s{c.sLw}, 4
        s_mul_i32 s{c.sT0}, s{c.sT0}, {c.LDW}
        s_lshl_b32 s{c.sT1}, s{c.sN0}, 1
        s_add_u32 s{c.sWoff}, s{c.sT0}, s{c.sT1}
        s_lshl_b32 s{c.sLds}, s{c.sLw}, 12
        s_mul_i32 s{c.sT0}, s{c.sSeq}, {c.A_SSTEP}
        s_add_u32 s{c.sAoff}, s{c.sAoff}, s{c.sT0}
        s_mul_i32 s{c.sT0}, s{c.sSeq}, {64 * c.LDW}
        s_add_u32 s{c.sWoff}, s{c.sWoff}, s{c.sT0}
        s_mov_b32 s{c.sSeqW}, s{c.sSeq}
        """)
    def issue_A(self, seq):
        a, c = self.a, self
        slot = (seq % 4) * 32768
        for j in range(4):
            a(f"s_add_u32 m0, s{c.sLds}, {slot}" if j == 0 else "s_add_u32 m0, m0, 1024")
            if c.qkv:
                a(f"s_mov_b32 s{c.sT0}, s{c.sAoff}" if j == 0 else f"s_add_u32 s{c.sT0}, s{c.sT0}, {8*1280}")
            else:
                if j == 0: a(f"s_mov_b32 s{c.sT0}, s{c.sAoff}")
                elif j == 2: a(f"s_add_u32 s{c.sT0}, s{c.sT0}, 32768")
                else: a("s_nop 0")
            a(f"buffer_load_dwordx4 v{c.vAe if j % 2 == 0 else c.vAo}, s[{c.sA}:{c.sA+3}], s{c.sT0} offen {E('QNT_A','') if c.qkv else ''} lds")
        a(f"""
        s_add_u32 s{c.sSeq}, s{c.sSeq}, 1
        s_cmp_eq_u32 s{c.sSeq}, {c.NST}
        s_cselect_b32 s{c.sT0}, {c.NST * c.A_SSTEP}, 0
        s_cselect_b32 s{c.sSeq}, 0, s{c.sSeq}
        s_add_u32 s{c.sAoff}, s{c.sAoff}, {c.A_SSTEP}
        s_sub_u32 s{c.sAoff}, s{c.sAoff}, s{c.sT0}
        """)
    def issue_W(self, seq):
        a, c = self.a, self
        slot = (seq % 4) * 32768 + 16384
        for j in range(4):
            a(f"s_add_u32 m0, s{c.sLds}, {slot}" if j == 0 else "s_add_u32 m0, m0, 1024")
            a(f"s_mov_b32 s{c.sT0}, s{c.sWoff}" if j == 0 else f"s_add_u32 s{c.sT0}, s{c.sT0}, {4 * c.LDW}")
            a(f"buffer_load_dwordx4 v{c.vWo}, s[{c.sW}:{c.sW+3}], s{c.sT0} offen {E('QNT_W','') if c.qkv else ''} lds")
        a(f"""
        s_add_u32 s{c.sSeqW}, s{c.sSeqW}, 1
        s_cmp_eq_u32 s{c.sSeqW}, {c.NST}
        s_cselect_b32 s{c.sT0}, {c.NST * 64 * c.LDW}, 0
        s_cselect_b32 s{c.sSeqW}, 0, s{c.sSeqW}
        s_add_u32 s{c.sWoff}, s{c.sWoff}, {64 * c.LDW}
        s_sub_u32 s{c.sWoff}, s{c.sWoff}, s{c.sT0}
        """)
    vLs = 16
    vSx, vSq, vCs, vU = 48, 56, 64, 72
    vLs = 16
    def lstats_init(self): pass
    def lst_poll_issue(self):
        a, c = self.a, self
        v = c.vLs
        a(f"""
        s_add_u32 s{c.sT0}, s{c.sNt}, {C_CS1 if c.qkv else C_CS2}
        s_lshr_b32 s{c.sT1}, s{c.sM0}, 7
        s_add_u32 s{c.sT1}, s{c.sT1}, {C_ST}
        v_mov_b32 v{v}, s{c.sT0}
        v_writelane_b32 v{v}, s{c.sT1}, 1
        v_mov_b32 v{v+1}, 16
        v_writelane_b32 v{v+1}, {8 if c.qkv else 0}, 1
        v_lshlrev_b32 v{v}, 7, v{v}
        v_add_u32 v{v}, {WS_CNT}, v{v}
        s_mov_b64 exec, 3
        buffer_load_dword v{v+2}, v{v}, s[{sWS}:{sWS+3}], 0 offen sc1
        s_mov_b64 exec, -1
        """)
    def lst_check_issue(self, q):
        a, c = self.a, self
        v = c.vLs
        ok = a.newlabel("lok")
        a(f"""
        s_waitcnt vmcnt({q.need('poll')})
        s_mov_b64 exec, 3
        v_cmp_gt_u32 vcc, v{v+1}, v{v+2}
        s_nop 4
        s_cmp_eq_u64 vcc, 0
        s_cbranch_scc1 {ok}
        """)
        poll(a, v, v + 1, 2, v + 2)
        a.label(ok)
        a("s_mov_b64 exec, -1")
        ncol = 1920 if c.qkv else 1792
        d = v + 8
        a(f"""
        v_and_b32 v{v+4}, 31, v1
        v_lshlrev_b32 v{v+5}, 2, v{v+4}
        v_lshlrev_b32 v{v+4}, 3, v{v+4}
        s_lshl_b32 s{c.sT0}, s{c.sLw}, 5
        s_add_u32 s{c.sT1}, s{c.sT0}, s{c.sN0}
        s_lshl_b32 s{c.sT1}, s{c.sT1}, 2
        s_add_u32 s{c.sT1}, s{c.sT1}, {WS_CS1 if c.qkv else WS_CS2}
        s_mov_b32 exec_hi, 0
        """)
        for j in range(16):
            a(f"buffer_load_dword v{d+j}, v{v+5}, s[{sWS}:{sWS+3}], s{c.sT1} offen")
            if j < 15: a(f"s_add_u32 s{c.sT1}, s{c.sT1}, {ncol*4}")
        a(f"""
        s_mov_b32 exec_lo, 0
        s_mov_b32 exec_hi, -1
        s_add_u32 s{c.sT1}, s{c.sT0}, s{c.sM0}
        s_lshl_b32 s{c.sT1}, s{c.sT1}, 3
        s_add_u32 s{c.sT1}, s{c.sT1}, {WS_ST1 if c.qkv else WS_ST2}
        """)
        npart = 1 if c.qkv else 8
        for j in range(npart):
            a(f"buffer_load_dwordx2 {vr(d+16+2*j,2)}, v{v+4}, s[{sWS}:{sWS+3}], s{c.sT1} offen")
            if j < npart - 1: a(f"s_add_u32 s{c.sT1}, s{c.sT1}, {2048*8}")
        a("s_mov_b64 exec, -1")
        q.push("stats", 16 + npart)
    def lst_finish(self, q):
        a, c = self.a, self
        v = c.vLs
        d = v + 8
        a(f"s_waitcnt vmcnt({q.need('stats')})")
        for j in range(1, 16):
            a(f"v_add_f32 v{d}, v{d}, v{d+j}")
        S, Q = d + 16, d + 17
        if not c.qkv:
            for j in range(1, 8):
                a(f"v_add_f32 v{S}, v{S}, v{S+2*j}")
                a(f"v_add_f32 v{Q}, v{Q}, v{Q+2*j}")
            a(f"""
            v_mul_f32 v{S}, {f32bits(1.0/640):#x}, v{S}
            v_mul_f32 v{Q}, {f32bits(1.0/640):#x}, v{Q}
            v_fma_f32 v{Q}, -v{S}, v{S}, v{Q}
            v_max_f32 v{Q}, 0, v{Q}
            v_add_f32 v{Q}, {f32bits(1e-5):#x}, v{Q}
            v_rsq_f32 v{Q}, v{Q}
            """)
        a(f"""
        s_lshl_b32 s{c.sT0}, s{c.sLw}, 7
        s_add_u32 s{c.sT0}, s{c.sT0}, {STAT}
        v_add_u32 v{v+5}, s{c.sT0}, v{v+5}
        s_mov_b32 exec_hi, 0
        ds_write_b32 v{v+5}, v{d} offset:1024
        s_mov_b32 exec_lo, 0
        s_mov_b32 exec_hi, -1
        ds_write_b32 v{v+5}, v{S}
        ds_write_b32 v{v+5}, v{Q} offset:512
        s_mov_b64 exec, -1
        s_waitcnt lgkmcnt(0)
        """)
    def tq_poll_issue(self):
        a, c = self.a, self
        v = c.vLs
        a(f"""
        s_lshr_b32 s{c.sT1}, s{c.sM0}, 7
        s_add_u32 s{c.sT1}, s{c.sT1}, {C_ST}
        s_lshl_b32 s{c.sT1}, s{c.sT1}, 7
        s_add_u32 s{c.sT1}, s{c.sT1}, {WS_CNT}
        v_mov_b32 v{v}, s{c.sT1}
        v_mov_b32 v{v+1}, 8
        s_mov_b64 exec, 1
        buffer_load_dword v{v+2}, v{v}, s[{sWS}:{sWS+3}], 0 offen sc1
        s_mov_b64 exec, -1
        """)
    def tq_check_issue(self, q):
        a, c = self.a, self
        v = c.vLs
        ok = a.newlabel("lok")
        a(f"""
        s_waitcnt vmcnt({q.need('poll')})
        v_readfirstlane_b32 s{c.sT0}, v{v+2}
        s_cmp_ge_u32 s{c.sT0}, 8
        s_cbranch_scc1 {ok}
        """)
        poll(a, v, v + 1, 1, v + 2)
        a.label(ok)
        a(f"""
        v_and_b32 v{v+4}, 31, v1
        v_lshlrev_b32 v{v+5}, 2, v{v+4}
        v_lshlrev_b32 v{v+4}, 3, v{v+4}
        s_lshl_b32 s{c.sT0}, s{c.sLw}, 5
        s_add_u32 s{c.sT1}, s{c.sT0}, s{c.sM0}
        s_lshl_b32 s{c.sT1}, s{c.sT1}, 3
        s_add_u32 s{c.sT1}, s{c.sT1}, {WS_ST1}
        buffer_load_dwordx2 {vr(v+8,2)}, v{v+4}, s[{sWS}:{sWS+3}], s{c.sT1} offen
        """)
        q.push("stats", 1)
    def tq_finish(self, q):
        a, c = self.a, self
        v = c.vLs
        a(f"""
        s_waitcnt vmcnt({q.need('stats')})
        s_lshl_b32 s{c.sT0}, s{c.sLw}, 7
        s_add_u32 s{c.sT0}, s{c.sT0}, {STAT}
        v_add_u32 v{v+5}, s{c.sT0}, v{v+5}
        ds_write_b32 v{v+5}, v{v+8}
        ds_write_b32 v{v+5}, v{v+9} offset:512
        """)
    def tok_issue(self, q):
        a, c = self.a, self
        v = c.vLs
        d = v + 8
        a(f"""
        v_and_b32 v{v+4}, 31, v1
        v_lshlrev_b32 v{v+5}, 2, v{v+4}
        v_lshlrev_b32 v{v+4}, 3, v{v+4}
        s_lshl_b32 s{c.sT0}, s{c.sLw}, 5
        s_add_u32 s{c.sT1}, s{c.sT0}, s{c.sM0}
        s_lshl_b32 s{c.sT1}, s{c.sT1}, 3
        s_add_u32 s{c.sT1}, s{c.sT1}, {WS_ST2}
        s_mov_b32 exec_hi, 0
        """)
        for j in range(8):
            a(f"buffer_load_dwordx2 {vr(d+2*j,2)}, v{v+4}, s[{sWS}:{sWS+3}], s{c.sT1} offen")
            if j < 7: a(f"s_add_u32 s{c.sT1}, s{c.sT1}, {2048*8}")
        a("s_mov_b32 exec_hi, -1")
        q.push("stats", 8)
    def tok_finish(self, q):
        a, c = self.a, self
        v = c.vLs
        S, Q = v + 8, v + 9
        a(f"s_waitcnt vmcnt({q.need('stats')})")
        for j in range(1, 8):
            a(f"v_add_f32 v{S}, v{S}, v{S+2*j}")
            a(f"v_add_f32 v{Q}, v{Q}, v{Q+2*j}")
        a(f"""
        v_mul_f32 v{S}, {f32bits(1.0/640):#x}, v{S}
        v_mul_f32 v{Q}, {f32bits(1.0/640):#x}, v{Q}
        v_fma_f32 v{Q}, -v{S}, v{S}, v{Q}
        v_max_f32 v{Q}, 0, v{Q}
        v_add_f32 v{Q}, {f32bits(1e-5):#x}, v{Q}
        v_rsq_f32 v{Q}, v{Q}
        s_lshl_b32 s{c.sT0}, s{c.sLw}, 7
        s_add_u32 s{c.sT0}, s{c.sT0}, {STAT}
        v_add_u32 v{v+5}, s{c.sT0}, v{v+5}
        s_mov_b32 exec_hi, 0
        ds_write_b32 v{v+5}, v{S}
        ds_write_b32 v{v+5}, v{Q} offset:512
        s_mov_b32 exec_hi, -1
        """)
    def loader_main(self, q, p0=None):
        a, c = self.a, self
        for s_ in range(c.NST):
            tags = [f'A{s_}', f'W{s_}']
            a(f"s_waitcnt vmcnt({q.need(*tags)}) lgkmcnt(0)")
            if getattr(c, 'ldstamps', False) and s_ in (0, 1, 2): st(a, 4 + s_)
            a("s_barrier")
            stx(a, f"{c.tag}l{s_}")
            if c.qkv:
                vd = 70
                if s_ == 1: wave_only(a, 4, lambda: a(f"buffer_load_dword v{vd}, v{vd+1}, s[44:47], 0 offen sc1"))
                if s_ == 4: wave_only(a, 4, lambda: p0r_arrive(a, c, vd))
                def rpa():
                    a("s_and_b32 s76, s2, 7")
                    a(f"s_add_u32 s76, s76, {C_RPS}")
                    arrive(a, 76, vd - 2)
                if s_ == 8: wave_only(a, 4, rpa)
                if s_ == 3: wave_only(a, 7, lambda: reg_step1(a, vd))
                if s_ == 5: wave_only(a, 7, lambda: reg_step2(a, vd))
                if s_ == 7: wave_only(a, 7, lambda: reg_step3(a, vd))
            if s_ + PD < c.NST and not (E('X_NODMA') and c.qkv):
                c.issue_A(s_ + PD); q.push(f"A{s_+PD}", 4)
                c.issue_W(s_ + PD); q.push(f"W{s_+PD}", 4)
            if not c.qkv:
                if s_ == 2: c.tok_issue(q)
                if s_ == 5: c.tok_finish(q)
            else:
                if s_ == 8 and getattr(c, 'hook7', None): c.hook7()
                if s_ == 6:
                    c.tq_poll_issue(); q.push("poll", 1)
                if s_ == 7: c.tq_check_issue(q)
                if s_ == 9: c.tq_finish(q)

    vAd, vX, vW, vAcc, vT, vSt = 24, 32, 32, 64, 128, 144
    def compute_setup(self):
        a, c = self.a, self
        NXA = 8 if c.qkv else 2
        c.NXA = NXA
        c.vXa = 4
        c.vWa = c.vXa + 2 * NXA
        vXa, vWa, vT = c.vXa, c.vWa, c.vT
        t0, t1 = vT, vT + 1
        a(f"""
        s_lshr_b32 s{c.sWm}, s{sWV}, 1
        s_and_b32 s{c.sWn}, s{sWV}, 1
        v_and_b32 v2, 31, v1
        v_lshrrev_b32 v3, 5, v1
        """)
        if c.qkv:
            a(f"""
            v_lshrrev_b32 v{t0}, 1, v1
            v_and_b32 v{t0}, 7, v{t0}
            v_xor_b32 v{t0}, v{t0}, v3
            v_lshlrev_b32 v{t0}, 4, v{t0}
            v_lshlrev_b32 v{t1}, 7, v2
            v_add_u32 v{t0}, v{t0}, v{t1}
            s_lshl_b32 s{c.sT0}, s{c.sWm}, 13
            s_lshl_b32 s{c.sT1}, s{c.sWn}, 12
            s_add_u32 s{c.sT0}, s{c.sT0}, s{c.sT1}
            v_add_u32 v{t0}, s{c.sT0}, v{t0}
            """)
            for s in range(4):
                a(f"v_xor_b32 v{vXa + s}, {32 * s}, v{t0}")
                a(f"v_xor_b32 v{vXa + 4 + s}, 4096, v{vXa + s}")
        else:
            a(f"""
            v_lshlrev_b32 v{t0}, 11, v3
            v_lshlrev_b32 v{t1}, 4, v2
            v_add_u32 v{t0}, v{t0}, v{t1}
            s_lshl_b32 s{c.sT0}, s{c.sWm}, 10
            v_add_u32 v{vXa}, s{c.sT0}, v{t0}
            v_add_u32 v{vXa + 1}, 512, v{vXa}
            """)
        for i in range(NXA):
            a(f"v_add_u32 v{vXa + NXA + i}, 65536, v{vXa + i}")
        a(f"""
        v_lshrrev_b32 v{t0}, 2, v1
        v_and_b32 v{t0}, 3, v{t0}
        v_lshlrev_b32 v{t1}, 3, v3
        v_add_u32 v{t1}, v{t1}, v{t0}
        v_lshlrev_b32 v{t1}, 8, v{t1}
        v_lshlrev_b32 v{t0}, 6, v{t0}
        v_add_u32 v{t1}, v{t1}, v{t0}
        v_lshrrev_b32 v{t0}, 4, v1
        v_and_b32 v{t0}, 1, v{t0}
        v_lshlrev_b32 v{t0}, 5, v{t0}
        v_add_u32 v{t1}, v{t1}, v{t0}
        v_lshrrev_b32 v{t0}, 1, v1
        v_and_b32 v{t0}, 1, v{t0}
        v_lshlrev_b32 v{t0}, 4, v{t0}
        v_add_u32 v{t1}, v{t1}, v{t0}
        v_and_b32 v{t0}, 1, v1
        v_lshlrev_b32 v{t0}, 3, v{t0}
        v_add_u32 v{t1}, v{t1}, v{t0}
        v_add_u32 v{t1}, 16384, v{t1}
        s_lshl_b32 s{c.sT0}, s{c.sWn}, 7
        s_lshl_b32 s{c.sT1}, s{c.sWm}, 6
        s_add_u32 s{c.sT0}, s{c.sT0}, s{c.sT1}
        v_xor_b32 v{vWa}, s{c.sT0}, v{t1}
        v_xor_b32 v{vWa + 1}, 64, v{vWa}
        v_add_u32 v{vWa + 2}, 65536, v{vWa}
        v_add_u32 v{vWa + 3}, 65536, v{vWa + 1}
        """)
    def addr_qk(self):
        a, c = self.a, self
        vT, vAd = c.vT, c.vAd
        t0, t1 = vT, vT + 1
        a(f"""
        s_cmp_lt_u32 s{c.sNt}, 5
        s_cselect_b32 s{c.sT0}, 0, 640
        s_sub_u32 s{c.sT2}, s{c.sN0}, s{c.sT0}
        s_lshl_b32 s{c.sT1}, s{c.sWn}, 6
        s_add_u32 s{c.sT2}, s{c.sT2}, s{c.sT1}
        s_lshr_b32 s{c.sT2}, s{c.sT2}, 3
        v_add_u32 v{t0}, s{c.sT2}, v3
        v_lshlrev_b32 v{vT+4}, 4, v2
        """)
        for ft in range(2):
            for j in range(2):
                d = vAd + ft*2 + j
                a(f"""
                s_xor_b32 s{c.sT3}, s{c.sWm}, {ft}
                s_lshl_b32 s{c.sT3}, s{c.sT3}, 2
                s_add_u32 s{c.sT3}, s{c.sT3}, {2*j}
                v_add_u32 v{t1}, s{c.sT3}, v{t0}
                v_mul_u32_u24 v{vT+2}, 0xcccd, v{t1}
                v_lshrrev_b32 v{vT+2}, 18, v{vT+2}
                v_mul_u32_u24 v{vT+3}, 5, v{vT+2}
                v_sub_u32 v{vT+3}, v{t1}, v{vT+3}
                v_lshlrev_b32 v{vT+3}, 9, v{vT+3}
                v_mul_u32_u24 v{vT+2}, 0x28000, v{vT+2}
                v_add3_u32 v{d}, v{vT+2}, v{vT+3}, v{vT+4}
                """)
        a(f"""
        s_lshr_b32 s{c.sT0}, s{c.sM0}, 5
        s_lshl_b32 s{c.sT1}, s{c.sWm}, 1
        s_add_u32 s{c.sT0}, s{c.sT0}, s{c.sT1}
        s_add_u32 s{c.sT1}, s{c.sT0}, s{c.sWn}
        s_mul_i32 s40, s{c.sT1}, 2560
        s_xor_b32 s{c.sT1}, s{c.sWn}, 1
        s_add_u32 s{c.sT1}, s{c.sT0}, s{c.sT1}
        s_mul_i32 s41, s{c.sT1}, 2560
        s_cmp_lt_u32 s{c.sNt}, 5
        s_cselect_b32 s{c.sT0}, {WS_Q}, {WS_K}
        s_add_u32 s{c.sO}, s{pWS}, s{c.sT0}
        s_addc_u32 s{c.sO+1}, s{pWS+1}, 0
        s_and_b32 s{c.sO+1}, s{c.sO+1}, 0xffff
        s_mov_b32 s{c.sO+2}, {SZ_QK}
        s_mov_b32 s{c.sO+3}, 0x20000
        """)
    def addr_f(self):
        a, c = self.a, self
        vT, vAd = c.vT, c.vAd
        t0, t1 = vT, vT + 1
        a(f"""
        s_lshl_b32 s{c.sT1}, s{c.sWn}, 6
        s_add_u32 s{c.sT2}, s{c.sN0}, s{c.sT1}
        s_lshr_b32 s{c.sT2}, s{c.sT2}, 3
        v_add_u32 v{t0}, s{c.sT2}, v3
        v_lshlrev_b32 v{t0}, 15, v{t0}
        v_lshlrev_b32 v{t1}, 4, v2
        v_add_u32 v{t0}, v{t0}, v{t1}
        """)
        for ft in range(2):
            for j in range(2):
                a(f"s_xor_b32 s{c.sT3}, s{c.sWm}, {ft}")
                a(f"s_lshl_b32 s{c.sT3}, s{c.sT3}, 2")
                a(f"s_add_u32 s{c.sT3}, s{c.sT3}, {2*j}")
                a(f"s_lshl_b32 s{c.sT3}, s{c.sT3}, 15")
                a(f"v_add_u32 v{vAd + ft*2 + j}, s{c.sT3}, v{t0}")
        a(f"""
        s_lshl_b32 s{c.sT1}, s{c.sWm}, 6
        s_add_u32 s{c.sT0}, s{c.sM0}, s{c.sT1}
        s_lshl_b32 s40, s{c.sT0}, 4
        s_add_u32 s41, s40, 512
        """)
        make_srd(a, c.sO, pWS, pWS+1, WS_F, SZ_F)
    def addr_v(self):
        a, c = self.a, self
        vT, vAd = c.vT, c.vAd
        t0, t1 = vT, vT + 1
        for ft in range(2):
            a(f"""
            s_lshl_b32 s{c.sT1}, s{c.sWn}, 6
            s_add_u32 s{c.sT0}, s{c.sN0}, s{c.sT1}
            s_xor_b32 s{c.sT1}, s{c.sWm}, {ft}
            s_lshl_b32 s{c.sT1}, s{c.sT1}, 5
            s_add_u32 s{c.sT0}, s{c.sT0}, s{c.sT1}
            s_sub_u32 s{c.sT0}, s{c.sT0}, 1280
            v_add_u32 v{t0}, s{c.sT0}, v2
            v_mul_u32_u24 v{t1}, 0xcccd, v{t0}
            v_lshrrev_b32 v{t1}, 20, v{t1}
            v_mul_u32_u24 v{vT+2}, 20, v{t1}
            v_sub_u32 v{t0}, v{t0}, v{vT+2}
            v_lshlrev_b32 v{t0}, 4, v{t0}
            v_mul_u32_u24 v{t1}, 0x14000, v{t1}
            v_add_u32 v{t0}, v{t0}, v{t1}
            v_mul_u32_u24 v{t1}, 320, v3
            v_add_u32 v{vAd+ft}, v{t0}, v{t1}
            """)
        a(f"""
        s_lshl_b32 s{c.sT1}, s{c.sWm}, 6
        s_add_u32 s{c.sT0}, s{c.sM0}, s{c.sT1}
        s_lshr_b32 s{c.sT0}, s{c.sT0}, 4
        s_lshl_b32 s{c.sT1}, s{c.sWn}, 1
        s_add_u32 s{c.sT1}, s{c.sT1}, s{c.sT0}
        s_mul_i32 s40, s{c.sT1}, 640
        s_add_u32 s41, s40, 640
        s_xor_b32 s{c.sT1}, s{c.sWn}, 1
        s_lshl_b32 s{c.sT1}, s{c.sT1}, 1
        s_add_u32 s{c.sT1}, s{c.sT1}, s{c.sT0}
        s_mul_i32 s42, s{c.sT1}, 640
        s_add_u32 s43, s42, 640
        """)
        make_srd(a, c.sO, pWS, pWS+1, WS_V, SZ_QKV)
    def stats_poll_issue(self):
        a, c = self.a, self
        vS = c.vSt
        a(f"""
        v_lshlrev_b32 v{vS+30}, 7, v1
        v_add_u32 v{vS+30}, {WS_CNT + (C_P0 if c.qkv else C_W1)*128}, v{vS+30}
        s_mov_b64 exec, 0xff
        buffer_load_dword v{vS+29}, v{vS+30}, s[{sWS}:{sWS+3}], 0 offen sc1
        s_mov_b64 exec, -1
        """)
    def stats_poll_check(self):
        a, c = self.a, self
        vS = c.vSt
        ok = a.newlabel("stok")
        a(f"""
        s_waitcnt vmcnt(0)
        s_mov_b64 exec, 0xff
        v_cmp_gt_u32 vcc, 128, v{vS+29}
        s_nop 4
        s_cmp_eq_u64 vcc, 0
        s_cbranch_scc1 {ok}
        v_mov_b32 v{vS+28}, 128
        """)
        poll(a, vS + 30, vS + 28, 8, vS + 29)
        a.label(ok)
        a("s_mov_b64 exec, -1")
        a("s_nop 3")
    def stats_issue(self):
        a, c = self.a, self
        vS = c.vSt
        a(f"""
        v_lshlrev_b32 v{vS+31}, 2, v2
        v_lshlrev_b32 v{vS+30}, 3, v2
        s_lshl_b32 s{c.sT0}, s{sWV}, 5
        s_add_u32 s{c.sT1}, s{c.sT0}, s{c.sM0}
        s_lshl_b32 s{c.sT1}, s{c.sT1}, 3
        s_add_u32 s{c.sT1}, s{c.sT1}, {WS_ST2}
        """)
        for j in range(8):
            a(f"buffer_load_dwordx2 {vr(vS+8+2*j,2)}, v{vS+30}, s[{sWS}:{sWS+3}], s{c.sT1} offen")
            if j < 7: a(f"s_add_u32 s{c.sT1}, s{c.sT1}, {2048*8}")
    def stats_finish(self):
        a, c = self.a, self
        vS = c.vSt
        a("s_waitcnt vmcnt(0)")
        S, Q = vS + 8, vS + 9
        for j in range(1, 8):
            a(f"v_add_f32 v{S}, v{S}, v{S+2*j}")
            a(f"v_add_f32 v{Q}, v{Q}, v{Q+2*j}")
        a(f"""
        v_mul_f32 v{S}, {f32bits(1.0/640):#x}, v{S}
        v_mul_f32 v{Q}, {f32bits(1.0/640):#x}, v{Q}
        v_fma_f32 v{Q}, -v{S}, v{S}, v{Q}
        v_max_f32 v{Q}, 0, v{Q}
        v_add_f32 v{Q}, {f32bits(1e-5):#x}, v{Q}
        v_rsq_f32 v{Q}, v{Q}
        s_lshl_b32 s{c.sT0}, s{sWV}, 7
        s_add_u32 s{c.sT0}, s{c.sT0}, {STAT}
        v_add_u32 v{vS+31}, s{c.sT0}, v{vS+31}
        ds_write_b32 v{vS+31}, v{S}
        ds_write_b32 v{vS+31}, v{Q} offset:512
        """)
    aX = 4
    def read_list(self, i):
        c = self
        st_, step, buf = i // 4, i % 4, i % 3
        slot = st_ % 4
        win, base = slot >> 1, (slot & 1) * 32768
        L = []
        for lt in range(2):
            if c.qkv:
                L.append(f"ds_read_b128 {ar(c.aX + buf*8 + lt*4, 4)}, v{c.vXa + win*8 + lt*4 + step} offset:{base}")
            else:
                L.append(f"ds_read_b128 {ar(c.aX + buf*8 + lt*4, 4)}, v{c.vXa + win*2 + lt} offset:{base + step*4096}")
        for lf in range(2):
            for h2 in range(2):
                L.append(f"ds_read_b64_tr_b16 {vr(c.vW + buf*8 + lf*4 + h2*2, 2)}, v{c.vWa + win*2 + lf} offset:{base + step*4096 + h2*1024}")
        return L
    def reads(self, i):
        for r in self.read_list(i): self.a(r)
    def mfma(self, i, k, orientY):
        a, c = self.a, self
        buf = i % 3
        lf, lt = k >> 1, k & 1
        acc = c.vAcc + (lf*2 + lt) * 16
        xa, wa = ar(c.aX + buf*8 + lt*4, 4), vr(c.vW + buf*8 + lf*4, 4)
        cc = "0" if i == 0 else vr(acc, 16)
        if orientY: a(f"v_mfma_f32_32x32x16_bf16 {vr(acc,16)}, {wa}, {xa}, {cc}")
        else: a(f"v_mfma_f32_32x32x16_bf16 {vr(acc,16)}, {xa}, {wa}, {cc}")
    def mainloop(self, orientY, stamp0=None, tag='q'):
        a, c = self.a, self
        vS = c.vSt
        CS = vS
        UU = c.vT
        a(f"v_mov_b32 v{CS}, 0")
        a(f"v_mov_b32 v{CS+1}, 0")
        a("s_barrier")
        if stamp0 is not None: st(a, stamp0)
        stx(a, tag + '_s0')
        c.reads(0)
        c.reads(1)
        for i in range(40):
            buf = i % 3
            Wl = c.vW + buf*8
            ops = []
            for r in range(4):
                u = UU + 2*(r & 1)
                ops += [f"v_lshlrev_b32 v{u}, 16, v{Wl+r}", f"v_and_b32 v{u+1}, 0xffff0000, v{Wl+r}",
                        f"v_add_f32 v{CS}, v{CS}, v{u}", f"v_add_f32 v{CS+1}, v{CS+1}, v{u+1}"]
            if E('X_NOVALU'): ops = []
            rl = c.read_list(i + 2) if i + 2 < 40 else []
            if i == 4: stx(a, tag + '_s1')
            if i == 20: stx(a, tag + '_s5')
            a(f"s_waitcnt lgkmcnt({6 if i + 1 < 40 else 0})")
            c.mfma(i, 0, orientY)
            if i + 2 < 40 and (i + 2) % 4 == 0:
                if c.qkv and i == 6: c.rp.store(wait_after=False, pre="s_waitcnt vmcnt(1)")
                if c.qkv and i == 14: a("s_waitcnt vmcnt(3)")
                if c.qkv and i == 30: a("s_waitcnt vmcnt(0)")
                a("s_barrier")
            for o in rl[0:2] + ops[0:3]: a(o)
            c.mfma(i, 1, orientY)
            for o in rl[2:4] + ops[3:6]: a(o)
            c.mfma(i, 2, orientY)
            for o in rl[4:6] + ops[6:10]: a(o)
            c.mfma(i, 3, orientY)
            for o in ops[10:16]: a(o)
        U = vS + 14
        a(f"""
        v_add_f32 v{CS}, v{CS}, v{CS+1}
        s_nop 0
        v_mov_b32 v{CS+1}, v{CS}
        s_nop 1
        v_permlane32_swap_b32 v{CS}, v{CS+1}
        s_nop 1
        v_add_f32 v{CS}, v{CS}, v{CS+1}
        """)
        a(f"""
        s_lshl_b32 s{c.sT0}, s{c.sWn}, 8
        s_lshl_b32 s{c.sT1}, s{c.sWm}, 7
        s_add_u32 s{c.sT0}, s{c.sT0}, s{c.sT1}
        s_add_u32 s{c.sT0}, s{c.sT0}, {STAT + 1024}
        v_lshlrev_b32 v{U}, 2, v2
        v_add_u32 v{U+1}, s{c.sT0}, v{U}
        ds_write_b32 v{U+1}, v{CS}
        """)
        a("s_waitcnt lgkmcnt(0)")
    def dbg_issue(self):
        a, c = self.a, self
        make_srd(a, 44, pDBG, pDBG+1, 0, 256)
        a(f"v_lshlrev_b32 v{c.vSt+27}, 2, v1")
        a("s_mov_b64 exec, 0x1ff")
        a(f"buffer_load_dword v{c.vSt+26}, v{c.vSt+27}, s[44:47], 0 offen sc1")
        a("s_mov_b64 exec, -1")
        a("s_nop 1")
    def epilogue_Y(self, kind):
        a, c = self.a, self
        vT, vAcc, vAd = c.vT, c.vAcc, c.vAd
        vM, vR, vC = vT, vT + 2, 32
        for lt in range(2):
            a(f"""
            s_lshl_b32 s{c.sT1}, s{c.sWm}, 8
            s_add_u32 s{c.sT0}, s{c.sT1}, {STAT + (0 if c.qkv else lt*128)}
            s_xor_b32 s{c.sT1}, s{c.sWn}, {lt}
            s_lshl_b32 s{c.sT1}, s{c.sT1}, {7 if c.qkv else 31}
            s_add_u32 s{c.sT0}, s{c.sT0}, {'s%d' % c.sT1 if c.qkv else 0}
            v_lshlrev_b32 v{vT+4}, 2, v2
            v_add_u32 v{vT+4}, s{c.sT0}, v{vT+4}
            ds_read_b32 v{vM + lt}, v{vT+4}
            ds_read_b32 v{vR + lt}, v{vT+4} offset:512
            """)
        for lf in range(2):
            a(f"""
            s_lshl_b32 s{c.sT1}, s{c.sWn}, 8
            s_add_u32 s{c.sT0}, s{c.sT1}, {STAT + 1024}
            s_xor_b32 s{c.sT1}, s{c.sWm}, {lf}
            s_lshl_b32 s{c.sT1}, s{c.sT1}, 7
            s_add_u32 s{c.sT0}, s{c.sT0}, s{c.sT1}
            v_lshlrev_b32 v{vT+4}, 4, v3
            v_add_u32 v{vT+4}, s{c.sT0}, v{vT+4}
            """)
            for q in range(4):
                a(f"ds_read_b128 {vr(vC + lf*16 + q*4, 4)}, v{vT+4} offset:{q*32}")
        a("s_waitcnt lgkmcnt(0)")
        if kind == 'qk':
            a(f"""
            s_cmp_lt_u32 s{c.sNt}, 5
            s_cselect_b32 s{c.sT0}, {f32bits(QSCALE):#x}, 1.0
            v_mul_f32 v{vR}, s{c.sT0}, v{vR}
            v_mul_f32 v{vR+1}, s{c.sT0}, v{vR+1}
            """)
        vP = vT + 8
        n = 0
        for lf in range(2):
            for lt in range(2):
                acc = vAcc + (lf*2 + lt) * 16
                for r in range(16):
                    a(f"v_fma_f32 v{acc + r}, -v{vM + lt}, v{vC + lf*16 + r}, v{acc + r}")
                for r in range(16):
                    a(f"v_mul_f32 v{acc + r}, v{acc + r}, v{vR + lt}")
                if kind == 'ffn1':
                    for r in range(16):
                        a(f"v_max_f32 v{acc + r}, 0, v{acc + r}")
                for j in range(2):
                    p = vP + (n & 1) * 4
                    n += 1
                    q0 = acc + j*8
                    a(f"v_cvt_pk_bf16_f32 v{p}, v{q0}, v{q0+1}")
                    a(f"v_cvt_pk_bf16_f32 v{p+1}, v{q0+2}, v{q0+3}")
                    a(f"v_cvt_pk_bf16_f32 v{p+2}, v{q0+4}, v{q0+5}")
                    a(f"v_cvt_pk_bf16_f32 v{p+3}, v{q0+6}, v{q0+7}")
                    a("s_nop 1")
                    a(f"v_permlane32_swap_b32 v{p}, v{p+2}")
                    a(f"v_permlane32_swap_b32 v{p+1}, v{p+3}")
                    ins = f"buffer_store_dwordx4 {vr(p,4)}, v{vAd + lf*2 + j}, s[{c.sO}:{c.sO+3}], s{40 + lt} offen @SC"
                    if kind == 'ffn1': dual(a, [ins])
                    else: a(ins.replace("@SC", SC))
    def epilogue_X(self):
        a, c = self.a, self
        vT, vAcc, vAd = c.vT, c.vAcc, c.vAd
        vC, vM, vR = vT, 32, 48
        for lf in range(2):
            a(f"""
            s_lshl_b32 s{c.sT1}, s{c.sWn}, 8
            s_add_u32 s{c.sT0}, s{c.sT1}, {STAT + 1024}
            s_xor_b32 s{c.sT1}, s{c.sWm}, {lf}
            s_lshl_b32 s{c.sT1}, s{c.sT1}, 7
            s_add_u32 s{c.sT0}, s{c.sT0}, s{c.sT1}
            v_lshlrev_b32 v{vT+4}, 2, v2
            v_add_u32 v{vT+4}, s{c.sT0}, v{vT+4}
            ds_read_b32 v{vC + lf}, v{vT+4}
            """)
        vP = vT + 8
        n = 0
        for lt in range(2):
            a(f"""
            s_lshl_b32 s{c.sT1}, s{c.sWm}, 8
            s_add_u32 s{c.sT0}, s{c.sT1}, {STAT}
            s_xor_b32 s{c.sT1}, s{c.sWn}, {lt}
            s_lshl_b32 s{c.sT1}, s{c.sT1}, 7
            s_add_u32 s{c.sT0}, s{c.sT0}, s{c.sT1}
            v_lshlrev_b32 v{vT+4}, 4, v3
            v_add_u32 v{vT+4}, s{c.sT0}, v{vT+4}
            """)
            for q in range(4):
                a(f"ds_read_b128 {vr(vM + q*4, 4)}, v{vT+4} offset:{q*32}")
                a(f"ds_read_b128 {vr(vR + q*4, 4)}, v{vT+4} offset:{512 + q*32}")
            a("s_waitcnt lgkmcnt(0)")
            for lf in range(2):
                acc = vAcc + (lf*2 + lt) * 16
                for r in range(16):
                    a(f"v_fma_f32 v{acc + r}, -v{vM + r}, v{vC + lf}, v{acc + r}")
                for r in range(16):
                    a(f"v_mul_f32 v{acc + r}, v{acc + r}, v{vR + r}")
                for g in range(2):
                    p = vP + (n & 1) * 4
                    n += 1
                    for r in range(4):
                        a(f"v_cvt_pk_bf16_f32 v{p + r}, v{acc + g*8 + 2*r}, v{acc + g*8 + 2*r + 1}")
                    a(f"buffer_store_dwordx4 {vr(p,4)}, v{vAd + lf}, s[{c.sO}:{c.sO+3}], s{40 + lt*2 + g} offen {SC}")

STG = 36864
class CoreS:
    sA, sO, sR = 8, 16, 40
    sM0, sN0, sT0, sT1, sT2, sNt = 21, 22, 23, 24, 25, 26
    sLw, sAoff, sWoff, sLdsA, sLdsW, sSeq, sSeqW = 20, 29, 30, 31, 32, 33, 34
    vA = 4
    vXa2, vWa2 = 116, 117
    def __init__(self, a, mode):
        self.a, self.mode = a, mode
        self.op = mode == 'oproj'
        self.NST = 5 if self.op else 14
    def map_tiles(self):
        a, c = self.a, self
        NST = c.NST
        a(f"""
        s_and_b32 s{c.sT0}, s{sRk}, 3
        s_lshl_b32 s{c.sM0}, s{sX}, 2
        s_add_u32 s{c.sM0}, s{c.sM0}, s{c.sT0}
        s_lshl_b32 s{c.sM0}, s{c.sM0}, 6
        s_lshr_b32 s{c.sNt}, s{sRk}, 2
        s_mul_i32 s{c.sN0}, s{c.sNt}, 80
        s_mul_i32 s{c.sSeq}, s{c.sT0}, {1 if c.op else 3}
        s_mul_i32 s{c.sT1}, s{c.sNt}, {1 if c.op else 2}
        s_add_u32 s{c.sSeq}, s{c.sSeq}, s{c.sT1}
        s_cmp_ge_u32 s{c.sSeq}, {NST}
        s_cselect_b32 s{c.sT1}, {NST}, 0
        s_sub_u32 s{c.sSeq}, s{c.sSeq}, s{c.sT1}
        s_cmp_ge_u32 s{c.sSeq}, {NST}
        s_cselect_b32 s{c.sT1}, {NST}, 0
        s_sub_u32 s{c.sSeq}, s{c.sSeq}, s{c.sT1}
        """)
        if E('NOROTS'): a(f"s_mov_b32 s{c.sSeq}, 0")
    def loader_setup(self):
        a, c = self.a, self
        if c.op: make_srd(a, c.sA, pWS, pWS+1, WS_O, SZ_ACT)
        else: make_srd(a, c.sA, pWS, pWS+1, WS_F, SZ_F)
        a(f"""
        s_sub_u32 s{c.sLw}, s{sWV}, 4
        v_lshlrev_b32 v{c.vA}, 4, v1
        s_lshl_b32 s{c.sT0}, s{c.sLw}, 17
        s_lshl_b32 s{c.sT1}, s{c.sM0}, 4
        s_add_u32 s{c.sAoff}, s{c.sT0}, s{c.sT1}
        s_mul_i32 s{c.sT0}, s{c.sLw}, 5120
        s_mul_i32 s{c.sT1}, s{c.sNt}, {c.NST * 20480}
        s_add_u32 s{c.sWoff}, s{c.sT0}, s{c.sT1}
        s_add_u32 s{c.sWoff}, s{c.sWoff}, {WS_WOP if c.op else WS_W2P}
        s_lshl_b32 s{c.sLdsA}, s{c.sLw}, 12
        s_add_u32 s{c.sLdsW}, s{c.sT0}, 16384
        s_mul_i32 s{c.sT0}, s{c.sSeq}, {16 * 32768}
        s_add_u32 s{c.sAoff}, s{c.sAoff}, s{c.sT0}
        s_mul_i32 s{c.sT0}, s{c.sSeq}, 20480
        s_add_u32 s{c.sWoff}, s{c.sWoff}, s{c.sT0}
        s_mov_b32 s{c.sSeqW}, s{c.sSeq}
        """)
    def issue_A(self, seq):
        a, c = self.a, self
        slot = (seq % 4) * STG
        for j in range(4):
            a(f"s_add_u32 m0, s{c.sLdsA}, {slot}" if j == 0 else "s_add_u32 m0, m0, 1024")
            a(f"s_mov_b32 s{c.sT0}, s{c.sAoff}" if j == 0 else f"s_add_u32 s{c.sT0}, s{c.sT0}, 32768")
            a(f"buffer_load_dwordx4 v{c.vA}, s[{c.sA}:{c.sA+3}], s{c.sT0} offen lds")
        a(f"""
        s_add_u32 s{c.sSeq}, s{c.sSeq}, 1
        s_cmp_eq_u32 s{c.sSeq}, {c.NST}
        s_cselect_b32 s{c.sT0}, {c.NST * 16 * 32768}, 0
        s_cselect_b32 s{c.sSeq}, 0, s{c.sSeq}
        s_add_u32 s{c.sAoff}, s{c.sAoff}, {16 * 32768}
        s_sub_u32 s{c.sAoff}, s{c.sAoff}, s{c.sT0}
        """)
    def issue_W(self, seq):
        a, c = self.a, self
        slot = (seq % 4) * STG
        a(f"s_add_u32 m0, s{c.sLdsW}, {slot}")
        a(f"s_add_u32 s{c.sT0}, s{c.sWoff}, 4096")
        for j in range(4):
            a(f"buffer_load_dwordx4 v{c.vA}, s[{sWS}:{sWS+3}], s{c.sWoff} offen offset:{j*1024} lds")
        a("s_add_u32 m0, m0, 4096")
        a(f"s_add_u32 s{c.sSeqW}, s{c.sSeqW}, 1")
        a(f"buffer_load_dwordx4 v{c.vA}, s[{sWS}:{sWS+3}], s{c.sT0} offen lds")
        a(f"""
        s_cmp_eq_u32 s{c.sSeqW}, {c.NST}
        s_cselect_b32 s{c.sT0}, {c.NST * 20480}, 0
        s_cselect_b32 s{c.sSeqW}, 0, s{c.sSeqW}
        s_add_u32 s{c.sWoff}, s{c.sWoff}, 20480
        s_sub_u32 s{c.sWoff}, s{c.sWoff}, s{c.sT0}
        """)
    def loader_main(self, q):
        a, c = self.a, self
        for s_ in range(c.NST):
            a(f"s_waitcnt vmcnt({q.need(f'A{s_}', f'W{s_}')})")
            a("s_barrier")
            if s_ + PD < c.NST:
                c.issue_A(s_ + PD); q.push(f"A{s_+PD}", 4)
                c.issue_W(s_ + PD); q.push(f"W{s_+PD}", 5)
    vXb, vWb, vXa, vWa, vX, vW, vRes, vT = 4, 5, 6, 7, 8, 20, 80, 90
    def compute_setup(self):
        a, c = self.a, self
        vT = c.vT
        a(f"""
        v_and_b32 v2, 15, v1
        v_lshrrev_b32 v3, 4, v1
        s_lshl_b32 s{c.sT0}, s{sWV}, 4
        s_add_u32 s{c.sT0}, s{c.sT0}, s{c.sM0}
        v_add_u32 v{vT}, s{c.sT0}, v2
        v_mul_u32_u24 v{vT+1}, 1280, v{vT}
        v_lshlrev_b32 v{vT+3}, 3, v3
        v_add_u32 v{vT+1}, v{vT+1}, v{vT+3}
        s_lshl_b32 s{c.sT0}, s{c.sN0}, 1
        v_add_u32 v{vT+1}, s{c.sT0}, v{vT+1}
        v_lshrrev_b32 v{vT+3}, 1, v3
        v_lshlrev_b32 v{vT+3}, 15, v{vT+3}
        v_lshlrev_b32 v{vT+2}, 4, v{vT}
        v_add_u32 v{vT+2}, v{vT+2}, v{vT+3}
        v_and_b32 v{vT+3}, 1, v3
        v_lshlrev_b32 v{vT+3}, 3, v{vT+3}
        v_add_u32 v{vT+2}, v{vT+2}, v{vT+3}
        s_lshl_b32 s{c.sT0}, s{c.sN0}, 12
        v_add_u32 v{vT+2}, s{c.sT0}, v{vT+2}
        s_lshl_b32 s{c.sT0}, s{sWV}, 8
        v_lshlrev_b32 v{c.vXb}, 10, v3
        v_lshlrev_b32 v{vT+3}, 4, v2
        v_add_u32 v{c.vXb}, v{c.vXb}, v{vT+3}
        v_add_u32 v{c.vXb}, s{c.sT0}, v{c.vXb}
        v_lshrrev_b32 v{vT+3}, 1, v3
        v_lshlrev_b32 v{vT+3}, 4, v{vT+3}
        v_and_b32 v{vT+4}, 1, v3
        v_lshlrev_b32 v{vT+4}, 2, v{vT+4}
        v_add_u32 v{vT+3}, v{vT+3}, v{vT+4}
        v_lshrrev_b32 v{vT+4}, 2, v2
        v_add_u32 v{vT+3}, v{vT+3}, v{vT+4}
        v_mul_u32_u24 v{vT+3}, 160, v{vT+3}
        v_and_b32 v{vT+4}, 3, v1
        v_lshlrev_b32 v{vT+4}, 3, v{vT+4}
        v_add_u32 v{vT+3}, v{vT+3}, v{vT+4}
        v_add_u32 v{c.vWb}, 16384, v{vT+3}
        """)
        if c.op:
            make_srd(a, c.sR, pX, pX+1, 0, 2048 * 1280)
            make_srd(a, c.sO, pWS, pWS+1, WS_H, SZ_ACT)
        else:
            make_srd(a, c.sR, pWS, pWS+1, WS_H, SZ_ACT)
            make_srd(a, c.sO, pOUT, pOUT+1, 0, 2048 * 1280)
    def pretouch(self):
        a, c = self.a, self
        vT = c.vT
        if not c.op or not E('PRET'): return
        for T in range(5):
            a(f"s_mov_b32 s{c.sT0}, {T * 65536}")
            a(f"buffer_load_dword v{vT+5}, v{vT+2}, s[{c.sO}:{c.sO+3}], s{c.sT0} offen sc1")
        a(f"""
        s_lshl_b32 s{c.sT0}, s{c.sNt}, 14
        s_add_u32 s{c.sT0}, s{c.sT0}, {WS_ST2}
        v_lshlrev_b32 v{vT+4}, 3, v{vT}
        buffer_load_dword v{vT+5}, v{vT+4}, s[{sWS}:{sWS+3}], s{c.sT0} offen sc1
        """)
    def residual_loads(self):
        a, c = self.a, self
        vT = c.vT
        for T in range(5):
            if c.op:
                a(f"buffer_load_dwordx2 {vr(c.vRes + 2*T, 2)}, v{vT+1}, s[{c.sR}:{c.sR+3}], 0 offen offset:{32*T}")
            else:
                a(f"s_mov_b32 s{c.sT0}, {T * 65536}")
                a(f"buffer_load_dwordx2 {vr(c.vRes + 2*T, 2)}, v{vT+2}, s[{c.sR}:{c.sR+3}], s{c.sT0} offen")
    def mainloop(self, stamp0=None, tag=''):
        a, c = self.a, self
        N = c.NST * 4
        def reads(i):
            st_, k, buf = i // 4, i % 4, i % 3
            xa, wa = (c.vXa, c.vWa) if st_ % 2 == 0 else (c.vXa2, c.vWa2)
            a(f"ds_read_b128 {vr(c.vX + buf*4, 4)}, v{xa} offset:{k*4096}")
            for T in range(5):
                for h2 in range(2):
                    a(f"ds_read_b64_tr_b16 {vr(c.vW + buf*20 + T*4 + h2*2, 2)}, v{wa} offset:{k*5120 + h2*1280 + T*32}")
        def setaddr(st_):
            slot = (st_ % 4) * STG
            xa, wa = (c.vXa, c.vWa) if st_ % 2 == 0 else (c.vXa2, c.vWa2)
            a(f"v_add_u32 v{xa}, {slot}, v{c.vXb}")
            a(f"v_add_u32 v{wa}, {slot}, v{c.vWb}")
        a("s_barrier")
        stx(a, tag + '_s0')
        setaddr(0)
        reads(0)
        reads(1)
        for i in range(N):
            buf = i % 3
            a(f"s_waitcnt lgkmcnt({11 if i + 1 < N else 0})")
            for T in range(5):
                acc = 96 + T*4
                cc = "0" if i == 0 else vr(acc, 4)
                a(f"v_mfma_f32_16x16x32_bf16 {vr(acc,4)}, {vr(c.vW + buf*20 + T*4, 4)}, {vr(c.vX + buf*4, 4)}, {cc}")
                if T == 0 and i + 2 < N:
                    if (i + 2) % 4 == 0:
                        a("s_barrier")
                        if (i + 2) // 4 == 1: stx(a, tag + '_s1')
                        if (i + 2) // 4 == 4: stx(a, tag + '_s4')
                        setaddr((i + 2) // 4)
                    reads(i + 2)
        a("s_nop 7")
    def reduce(self):
        pass
    def epilogue(self):
        a, c = self.a, self
        vT, vRes = c.vT, c.vRes
        a("s_waitcnt vmcnt(0)")
        for T in range(5):
            rr = vRes + 2*T
            a(f"""
            v_lshlrev_b32 v8, 16, v{rr}
            v_and_b32 v9, 0xffff0000, v{rr}
            v_lshlrev_b32 v10, 16, v{rr+1}
            v_and_b32 v11, 0xffff0000, v{rr+1}
            """)
            for r in range(4):
                d = 96 + T*4 + r
                a(f"v_add_f32 v{d}, v{d}, v{8+r}")
            d = 96 + T*4
            a(f"v_cvt_pk_bf16_f32 v{12 + 2*T}, v{d}, v{d+1}")
            a(f"v_cvt_pk_bf16_f32 v{13 + 2*T}, v{d+2}, v{d+3}")
            if c.op:
                a(f"s_mov_b32 s{c.sT0}, {T * 65536}")
                dual(a, [f"buffer_store_dwordx2 {vr(12 + 2*T, 2)}, v{vT+2}, s[{c.sO}:{c.sO+3}], s{c.sT0} offen @SC"])
            else:
                a(f"buffer_store_dwordx2 {vr(12 + 2*T, 2)}, v{vT+1}, s[{c.sO}:{c.sO+3}], 0 offen offset:{32*T} {E('OUTFL','')}")
        if c.op:
            for T in range(5):
                for d in range(2):
                    r = 12 + 2*T + d
                    a(f"v_lshlrev_b32 v8, 16, v{r}")
                    a(f"v_and_b32 v9, 0xffff0000, v{r}")
                    if T == 0 and d == 0:
                        a("v_add_f32 v30, v8, v9")
                        a("v_mul_f32 v31, v8, v8")
                    else:
                        a("v_add_f32 v30, v30, v8")
                        a("v_add_f32 v30, v30, v9")
                        a("v_fmac_f32 v31, v8, v8")
                    a("v_fmac_f32 v31, v9, v9")
            a(f"""
            v_mov_b32 v32, v30
            v_mov_b32 v33, v31
            s_nop 1
            v_permlane32_swap_b32 v30, v32
            v_permlane32_swap_b32 v31, v33
            s_nop 1
            v_add_f32 v30, v30, v32
            v_add_f32 v31, v31, v33
            s_nop 0
            v_mov_b32 v32, v30
            v_mov_b32 v33, v31
            s_nop 1
            v_permlane16_swap_b32 v30, v32
            v_permlane16_swap_b32 v31, v33
            s_nop 1
            v_add_f32 v30, v30, v32
            v_add_f32 v31, v31, v33
            s_lshl_b32 s{c.sT0}, s{c.sNt}, 14
            s_add_u32 s{c.sT0}, s{c.sT0}, {WS_ST2}
            v_lshlrev_b32 v32, 3, v{vT}
            s_mov_b64 exec, 0xffff
            """)
            if not E('NOST2'): dual(a, [f"buffer_store_dwordx2 v[30:31], v32, s[{sWS}:{sWS+3}], s{c.sT0} offen @SC"])
            a("s_mov_b64 exec, -1")

KT = 1536
SLOT = 8 * KT + 16384
VOFF = 8 * KT
NSLOT = 5
FLAG = NSLOT * SLOT

def emit_attention(a, after_stores):
    name = "att"
    sK, sV, sQ, sO = 8, 12, 16, 20
    sHead, sQt, sT0, sT1, sT2 = 25, 26, 27, 28, 29
    sChunk, sSlotN, sPass, sKoff, sVoff, sKh = 30, 31, 32, 33, 34, 35
    sVmask = 38
    sSlotW, sE, sQg, sQb = 40, 41, 42, 43
    sW1s = 44
    vL16, vVoff = 2, 3
    vA3 = [[4, 5, 6], [7, 8, 9], [172, 173, 174]]
    vQ, vQr, vNC, vS, vP, vKb, vKr, vV, vO, vT = 10, 18, 22, 54, 86, 94, 102, 110, 126, 158
    lane_id(a, 0)
    lane_id(a, 1)
    a(f"""
    v_mov_b32 v4, {ROLE}
    ds_read_b96 v[6:8], v4
    s_waitcnt lgkmcnt(0)
    v_readfirstlane_b32 s{sX}, v6
    v_readfirstlane_b32 s{sRk}, v7
    v_readfirstlane_b32 s{sLoc}, v8
    s_and_b32 s{sT0}, s2, 7
    s_lshr_b32 s{sT1}, s2, 3
    s_cmp_eq_u32 s{sLoc}, 0
    s_cselect_b32 s{sX}, s{sT0}, s{sX}
    s_cselect_b32 s{sRk}, s{sT1}, s{sRk}
    s_mov_b32 s{sHead}, s{sRk}
    s_mov_b32 s{sQb}, s{sX}
    s_lshl_b32 s{sQt}, s{sQb}, 3
    s_mov_b32 s{sVmask}, 0x000fffff
    s_mov_b32 s{sVmask+1}, 0x000fffff
    s_mov_b32 s{sPass}, 0
    s_and_b32 s{sE}, s{sHead}, 1
    s_lshr_b32 s{sKh}, s{sWV}, 2
    s_and_b32 s{sQg}, s{sWV}, 3
    """)
    a(f"""
    v_lshlrev_b32 v{vL16}, 4, v0
    v_and_b32 v{vT}, 31, v0
    v_lshrrev_b32 v{vT+1}, 5, v0
    v_mul_u32_u24 v{vVoff}, 320, v{vT+1}
    v_lshlrev_b32 v{vT+2}, 4, v{vT}
    v_add_u32 v{vVoff}, v{vVoff}, v{vT+2}
    """)
    make_srd(a, sK, pWS, pWS+1, WS_K, SZ_QK)
    make_srd(a, sV, pWS, pWS+1, WS_V, SZ_QKV)
    make_srd(a, sQ, pWS, pWS+1, WS_Q, SZ_QK)
    make_srd(a, sO, pWS, pWS+1, WS_O, SZ_ACT)
    make_srd(a, sW1s, pW1, pW1+1, 0, 640*3456)
    a(f"""
    v_mov_b32 v{vT+4}, 0
    v_mov_b32 v{vT+3}, 0x3f803f80
    v_cmp_eq_u32 vcc, 20, v{vT}
    s_lshl_b32 s{sT0}, s{sWV}, 11
    s_add_u32 s{sT0}, s{sT0}, {VOFF}
    v_cndmask_b32 v{vT+4}, v{vT+4}, v{vT+3}, vcc
    v_add_u32 v{vT+3}, s{sT0}, v{vL16}
    v_mov_b32 v{vT+5}, v{vT+4}
    v_mov_b32 v{vT+6}, v{vT+4}
    v_mov_b32 v{vT+7}, v{vT+4}
    s_not_b64 exec, s[{sVmask}:{sVmask+1}]
    """)
    base = 0
    for sl in range(NSLOT):
        for j in range(2):
            off = sl * SLOT + j * 1024
            if off - base >= 65536 - 1024:
                a(f"v_add_u32 v{vT+3}, {sl*SLOT - base}, v{vT+3}")
                base = sl * SLOT
            a(f"ds_write_b128 v{vT+3}, {vr(vT+4,4)} offset:{off - base}")
    a(f"""
    s_mov_b64 exec, -1
    v_mov_b32 v{vT+3}, {FLAG}
    v_mov_b32 v{vT+4}, 0
    ds_write_b32 v{vT+3}, v{vT+4}
    """)
    def reinit():
        a(f"""
        s_lshl_b32 s{sT0}, s{sE}, 9
        s_mul_i32 s{sT1}, s{sKh}, {4*KT}
        s_add_u32 s{sT0}, s{sT0}, s{sT1}
        v_add_u32 v{vA3[0][0]}, s{sT0}, v{vL16}
        s_sub_u32 s{sT0}, 1, s{sE}
        s_lshl_b32 s{sT0}, s{sT0}, 10
        s_lshl_b32 s{sT2}, s{sE}, 3
        s_add_u32 s{sT0}, s{sT0}, s{sT2}
        s_add_u32 s{sT0}, s{sT0}, s{sT1}
        v_and_b32 v{vT}, 31, v0
        v_lshlrev_b32 v{vA3[0][1]}, 4, v{vT}
        v_add_u32 v{vA3[0][1]}, s{sT0}, v{vA3[0][1]}
        s_lshl_b32 s{sT0}, s{sKh}, 13
        s_add_u32 s{sT0}, s{sT0}, {VOFF}
        v_add_u32 v{vA3[0][2]}, s{sT0}, v{vL16}
        s_mov_b32 s{sSlotN}, {2*SLOT}
        s_lshr_b32 s{sT0}, s{sHead}, 1
        s_mul_i32 s{sT0}, s{sT0}, 163840
        s_mul_i32 s{sT1}, s{sWV}, 2560
        s_add_u32 s{sKoff}, s{sT0}, s{sT1}
        s_lshl_b32 s{sT1}, s{sE}, 10
        s_add_u32 s{sKoff}, s{sKoff}, s{sT1}
        s_mul_i32 s{sT0}, s{sHead}, 81920
        s_mul_i32 s{sT1}, s{sWV}, 1280
        s_add_u32 s{sVoff}, s{sT0}, s{sT1}
        s_mov_b32 s{sSlotW}, 0
        """)
        for k in range(3):
            a(f"v_add_u32 v{vA3[1][k]}, {SLOT}, v{vA3[0][k]}")
            a(f"v_add_u32 v{vA3[2][k]}, {2*SLOT}, v{vA3[0][k]}")
        for i in range(32): a(f"v_mov_b32 v{vO+i}, 0")
        for i in range(4):
            a(f"v_mov_b32 v{vP+4+i}, 0")
            a(f"v_mov_b32 v{vV+12+i}, 0")
    reinit()
    a(f"v_and_b32 v{vT+11}, 7, v0")
    a(f"v_lshlrev_b32 v{vT+11}, 7, v{vT+11}")
    a(f"v_add_u32 v{vT+11}, {WS_CNT + C_RPS*128}, v{vT+11}")
    a(f"v_mov_b32 v{vT+10}, 0")
    a(f"""
    s_lshl_b32 s{sT0}, s{sQg}, 1
    s_add_u32 s{sQt}, s{sQt}, s{sT0}
    v_lshlrev_b32 v{vT+13}, 4, v{vT}
    s_lshl_b32 s{sT1}, s{sE}, 3
    s_add_u32 s{sT1}, s{sT1}, 1024
    v_add_u32 v{vT+13}, s{sT1}, v{vT+13}
    v_mov_b32 v{vT+9}, 0x7fffff00
    """)
    a(f"""
    v_cmp_gt_u32 vcc, 32, v0
    s_mul_i32 s{sT1}, s{sE}, 1536
    v_cndmask_b32 v{vT+13}, v{vT+9}, v{vT+13}, vcc
    v_add_u32 v{vT+12}, s{sT1}, v{vL16}
    """)
    lw = a.newlabel("attw")
    a(f"""
    s_cmp_eq_u32 s{sWV}, 0
    s_cbranch_scc0 {lw}
    s_mul_i32 s{sT0}, s{sHead}, 20
    s_lshr_b32 s{sT1}, s{sT0}, 7
    s_add_u32 s{sT0}, s{sT0}, 19
    s_lshr_b32 s{sT0}, s{sT0}, 7
    v_and_b32 v{vT+3}, 1, v0
    v_mov_b32 v{vT+4}, s{sT1}
    v_mov_b32 v{vT+5}, s{sT0}
    v_cmp_eq_u32 vcc, 1, v{vT+3}
    v_lshrrev_b32 v{vT+6}, 1, v0
    v_mul_u32_u24 v{vT+6}, 5, v{vT+6}
    v_cndmask_b32 v{vT+4}, v{vT+4}, v{vT+5}, vcc
    v_add_u32 v{vT+4}, v{vT+4}, v{vT+6}
    v_add_u32 v{vT+4}, {C_QKV}, v{vT+4}
    v_lshlrev_b32 v{vT+4}, 7, v{vT+4}
    v_add_u32 v{vT+4}, {WS_CNT}, v{vT+4}
    v_mov_b32 v{vT+5}, 16
    """)
    poll(a, vT + 4, vT + 5, 6, vT + 6)
    a.label(lw)
    a("s_waitcnt lgkmcnt(0)")
    a("s_barrier")
    st(a, 5)
    def dma_chunk():
        a(f"""
        s_mul_i32 s{sT0}, s{sWV}, {KT}
        s_add_u32 m0, s{sSlotW}, s{sT0}
        s_lshl_b32 s{sT1}, s{sWV}, 11
        buffer_load_dwordx4 v{vL16}, s[{sK}:{sK+3}], s{sKoff} offen lds
        s_mov_b32 exec_hi, 0
        buffer_load_dwordx4 v{vL16}, s[{sK}:{sK+3}], s{sKoff} offen offset:1024 lds
        s_add_u32 s{sT1}, s{sT1}, s{sSlotW}
        s_add_u32 m0, s{sT1}, {VOFF}
        s_mov_b64 exec, s[{sVmask}:{sVmask+1}]
        buffer_load_dwordx4 v{vVoff}, s[{sV}:{sV+3}], s{sVoff} offen lds
        s_add_u32 m0, m0, 1024
        s_add_u32 s{sT1}, s{sVoff}, 640
        buffer_load_dwordx4 v{vVoff}, s[{sV}:{sV+3}], s{sT1} offen lds
        s_mov_b64 exec, -1
        s_add_u32 s{sKoff}, s{sKoff}, {8*2560}
        s_add_u32 s{sVoff}, s{sVoff}, 10240
        s_add_u32 s{sSlotW}, s{sSlotW}, {SLOT}
        s_cmp_ge_u32 s{sSlotW}, {NSLOT*SLOT}
        s_cselect_b32 s{sSlotW}, 0, s{sSlotW}
        """)
    dma_chunk()
    a(f"s_lshr_b32 s{sT0}, s{sHead}, 1")
    a(f"s_mul_i32 s{sT0}, s{sT0}, 163840")
    for s in range(2):
        a(f"""
        s_xor_b32 s{sT1}, s{sKh}, {s}
        s_add_u32 s{sT1}, s{sT1}, s{sQt}
        s_mul_i32 s{sT1}, s{sT1}, 2560
        s_add_u32 s{sT1}, s{sT1}, s{sT0}
        buffer_load_dwordx4 {vr(vQ+4*s,4)}, v{vT+12}, s[{sQ}:{sQ+3}], s{sT1} offen
        buffer_load_dwordx2 {vr(vQr+2*s,2)}, v{vT+13}, s[{sQ}:{sQ+3}], s{sT1} offen
        """)
    dma_chunk()
    a(f"s_branch L_{name}_start")
    a.label(f"L_{name}_restart")
    reinit()
    dma_chunk(); dma_chunk()
    a.label(f"L_{name}_start")
    vKc, vKrc, vVc = vA3[0]
    a(f"""
    s_waitcnt vmcnt(4)
    s_barrier
    s_cmp_eq_u32 s{sPass}, 0
    s_cbranch_scc0 L_{name}_haveC
    s_mul_i32 s{sT1}, s{sKh}, {4*KT}
    v_subrev_u32 v{vT+1}, s{sT1}, v{vKc}
    v_subrev_u32 v{vT+2}, s{sT1}, v{vKrc}
    ds_read_b128 {vr(vKb,4)}, v{vT+1}
    ds_read_b64 {vr(vKr,2)}, v{vT+2}
    s_waitcnt lgkmcnt(0)
    """)
    for s in range(2):
        S = vS + 16*s
        a(f"v_mfma_f32_32x32x16_bf16 {vr(S,16)}, {vr(vKb,4)}, {vr(vQ+4*s,4)}, 0")
    for s in range(2):
        S = vS + 16*s
        a(f"v_mfma_f32_32x32x8_bf16 {vr(S,16)}, {vr(vKr,2)}, {vr(vQr+2*s,2)}, {vr(S,16)}")
    a(f"""
    ds_read_b128 {vr(vKb,4)}, v{vKc}
    ds_read2st64_b64 {vr(vKr,4)}, v{vKrc} offset0:0 offset1:3
    ds_read_b128 {vr(vV,4)}, v{vVc}
    ds_read_b128 {vr(vV+4,4)}, v{vVc} offset:1024
    s_nop 11
    """)
    for s in range(2):
        S = vS + 16*s
        T_ = vT + 2*s
        a(f"v_max3_f32 v{T_}, v{S}, v{S+1}, v{S+2}")
        for i in range(3, 15, 2):
            a(f"v_max3_f32 v{T_}, v{T_}, v{S+i}, v{S+i+1}")
        a(f"v_max_f32 v{T_}, v{T_}, v{S+15}")
    a(f"""
    v_mov_b32 v{vT+1}, v{vT}
    v_mov_b32 v{vT+3}, v{vT+2}
    s_nop 1
    v_permlane32_swap_b32 v{vT}, v{vT+1}
    v_permlane32_swap_b32 v{vT+2}, v{vT+3}
    s_nop 1
    v_max_f32 v{vT}, v{vT}, v{vT+1}
    v_max_f32 v{vT+2}, v{vT+2}, v{vT+3}
    v_sub_f32 v{vNC}, 0, v{vT}
    v_sub_f32 v{vNC+16}, 0, v{vT+2}
    """)
    for i in range(1, 16):
        a(f"v_mov_b32 v{vNC+i}, v{vNC}")
        a(f"v_mov_b32 v{vNC+16+i}, v{vNC+16}")
    a(f"s_branch L_{name}_haveC2")
    a.label(f"L_{name}_haveC")
    a(f"""
    ds_read_b128 {vr(vKb,4)}, v{vKc}
    ds_read2st64_b64 {vr(vKr,4)}, v{vKrc} offset0:0 offset1:3
    ds_read_b128 {vr(vV,4)}, v{vVc}
    ds_read_b128 {vr(vV+4,4)}, v{vVc} offset:1024
    """)
    a.label(f"L_{name}_haveC2")
    a(f"""
    s_waitcnt lgkmcnt(0)
    v_mfma_f32_32x32x16_bf16 {vr(vS,16)}, {vr(vKb,4)}, {vr(vQ,4)}, {vr(vNC,16)}
    v_mfma_f32_32x32x8_bf16 {vr(vS,16)}, {vr(vKr,2)}, {vr(vQr,2)}, {vr(vS,16)}
    s_mov_b32 s{sChunk}, 0
    s_nop 7
    """)
    st(a, 6)
    a(f"""
    s_cmp_eq_u32 s{sKh}, 0
    s_cselect_b32 s36, 7, 0
    s_cselect_b32 s37, 0, 7
    """)
    ool = []
    def rare(mask, fn, tag):
        l, b = a.newlabel(tag), a.newlabel(tag + "b")
        a(f"s_bitcmp1_b32 {mask:#x}, s{sChunk}")
        a(f"s_cbranch_scc1 {l}")
        a.label(b)
        ool.append((l, b, fn))
    def common_(mask, fn, tag):
        l = a.newlabel(tag)
        a(f"s_bitcmp1_b32 {mask if isinstance(mask, str) else hex(mask)}, s{sChunk}")
        a(f"s_cbranch_scc0 {l}")
        fn()
        a.label(l)
    def pf_A(half):
        a(f"""
        v_lshlrev_b32 v{vT+12}, 7, v0
        s_mul_i32 s{sT0}, s{sRk}, 69120
        s_lshl_b32 s{sT1}, s{sWV}, 13
        s_add_u32 s{sT0}, s{sT0}, s{sT1}
        s_mov_b32 exec_lo, {-1 if half == 0 else 0}
        s_mov_b32 exec_hi, {0 if half == 0 else -1}
        buffer_load_dword v{vT+13}, v{vT+12}, s[{sW1s}:{sW1s+3}], s{sT0} offen sc1
        s_mov_b64 exec, -1
        """)
    def pf_B():
        l5, l4, le = a.newlabel("pf5"), a.newlabel("pf4"), a.newlabel("pfe")
        a(f"""
        v_lshlrev_b32 v{vT+12}, 7, v0
        s_cmp_ge_u32 s{sWV}, 5
        s_cbranch_scc1 {l5}
        s_cmp_eq_u32 s{sWV}, 4
        s_cbranch_scc1 {l4}
        s_mul_i32 s{sT0}, s{sRk}, {SZ_WOP // 32}
        s_lshl_b32 s{sT1}, s{sWV}, 13
        s_add_u32 s{sT0}, s{sT0}, s{sT1}
        s_add_u32 s{sT0}, s{sT0}, {WS_WOP}
        buffer_load_dword v{vT+13}, v{vT+12}, s[{sWS}:{sWS+3}], s{sT0} offen sc1
        s_branch {le}
        """)
        a.label(l4)
        a(f"""
        s_mul_i32 s{sT0}, s{sRk}, 69120
        s_add_u32 s{sT0}, s{sT0}, 65536
        s_mov_b32 exec_hi, 0
        buffer_load_dword v{vT+13}, v{vT+12}, s[{sW1s}:{sW1s+3}], s{sT0} offen sc1
        s_mov_b32 exec_hi, -1
        s_branch {le}
        """)
        a.label(l5)
        a(f"""
        s_sub_u32 s{sT1}, s{sWV}, 5
        s_lshl_b32 s{sT1}, s{sT1}, 5
        s_mul_i32 s{sT0}, s{sRk}, 80
        s_add_u32 s{sT0}, s{sT0}, s{sT1}
        v_and_b32 v{vT+8}, 31, v0
        v_add_u32 v{vT+8}, s{sT0}, v{vT+8}
        v_lshrrev_b32 v{vT+9}, 5, v{vT+8}
        v_lshlrev_b32 v{vT+9}, 15, v{vT+9}
        v_and_b32 v{vT+8}, 31, v{vT+8}
        v_lshlrev_b32 v{vT+8}, 7, v{vT+8}
        v_add_u32 v{vT+8}, v{vT+8}, v{vT+9}
        s_lshl_b32 s{sT0}, s{sX}, 12
        s_mov_b32 exec_hi, 0
        buffer_load_dword v{vT+13}, v{vT+8}, s[{sO}:{sO+3}], s{sT0} offen sc1
        s_mov_b32 exec_hi, -1
        """)
        a.label(le)
    def rp_issue():
        a("s_mov_b64 exec, 0xff")
        a(f"buffer_load_dword v{vT+10}, v{vT+11}, s[{sWS}:{sWS+3}], 0 offen sc1")
        a("s_mov_b64 exec, -1")
    def rp_check():
        ok = a.newlabel("rpok")
        a("s_mov_b64 exec, 0xff")
        a(f"v_cmp_gt_u32 vcc, 32, v{vT+10}")
        a("s_nop 4")
        a("s_cmp_eq_u64 vcc, 0")
        a(f"s_cbranch_scc1 {ok}")
        a(f"v_mov_b32 v{vT+9}, 32")
        poll(a, vT + 11, vT + 9, 8, vT + 10)
        a.label(ok)
        a("s_mov_b64 exec, -1")
    if E('A_PRIO'):
        l = a.newlabel("prio")
        a(f"s_cmp_ge_u32 s{sWV}, 4")
        a(f"s_cbranch_scc0 {l}")
        a(f"s_setprio {E('A_PRIO')}")
        a.label(l)
    a(".p2align 6")
    a.label(f"L_{name}_loop")
    rd = (lambda x: None) if E('A_NORD') else a
    for u in range(16):
        p = u & 1
        t = u >> 1
        D1 = int(E('A_D1', '6'))
        if u == 0:
            if not E('A_NODMA'): common_(0b0111, dma_chunk, "d0")
            if not E('NOPF2'): rare(0b1000, lambda: pf_A(0), "pa")
        if u == 4 and not E('NOPF2'): rare(0b1000, lambda: pf_A(1), "pb")
        if u == 6 and not E('A_NOBAR'):
            rare(0b0001, lambda: (a(f"s_waitcnt vmcnt({8 if D1 < 6 else 4})"), a("s_barrier")), "c1")
        if u == D1 and not E('A_NODMA'): common_(0b0111, dma_chunk, "d1")
        if u == 8 and not E('NOPF2'): rare(0b1000, pf_B, "pc")
        if u == 14:
            rare(0b0010, rp_issue, "rpi")
            a("s_waitcnt vmcnt(0)")
            if not E('A_NOBAR'): a("s_barrier")
            rare(0b0010, rp_check, "rpc")
        tn = t + 1
        A = vA3[tn // 4]
        if p == 0:
            rd(f"ds_read_b128 {vr(vKb + 4*(tn&1),4)}, v{A[0]} offset:{(tn%4)*KT}")
            if tn % 2 == 0:
                pb = (tn // 2) & 1
                rd(f"ds_read2st64_b64 {vr(vKr + 4*pb,4)}, v{A[1]} offset0:{(tn%4)*3} offset1:{(tn%4)*3+3}")
            rd(f"ds_read_b128 {vr(vV + 8*(tn&1),4)}, v{A[2]} offset:{(tn%4)*2048}")
        else:
            rd("s_waitcnt lgkmcnt(0)")
        un = u + 1
        tq = un >> 1
        qs = un & 1
        Sc, Sn = vS + 16*p, vS + 16*(p^1)
        kbuf = vKb + 4*(tq & 1)
        krbuf = vKr + 4*((tq // 2) & 1) + 2*(tq & 1)
        ex = lambda r: a(f"v_exp_f32 v{Sc+r}, v{Sc+r}")
        cv = lambda r: a(f"v_cvt_pk_bf16_f32 v{vP+r}, v{Sc+2*r}, v{Sc+2*r+1}")
        a(f"v_mfma_f32_32x32x16_bf16 {vr(Sn,16)}, {vr(kbuf,4)}, {vr(vQ+4*qs,4)}, {vr(vNC+16*qs,16)}")
        for r in range(4): ex(r)
        tp = (u - 1) >> 1 if u > 0 else -1
        Op = vO + 16*((u - 1) & 1)
        a(f"v_mfma_f32_32x32x16_bf16 {vr(Op,16)}, {vr(vV + 8*(tp & 1) + 4,4)}, {vr(vP+4,4)}, {vr(Op,16)}")
        if p == 0:
            rd(f"ds_read_b128 {vr(vV + 8*(tn&1) + 4,4)}, v{A[2]} offset:{(tn%4)*2048 + 1024}")
        for r in range(4, 8): ex(r)
        cv(0); cv(1)
        a(f"v_mfma_f32_32x32x8_bf16 {vr(Sn,16)}, {vr(krbuf,2)}, {vr(vQr+2*qs,2)}, {vr(Sn,16)}")
        cv(2); cv(3)
        for r in range(8, 12): ex(r)
        Oc = vO + 16*p
        a(f"v_mfma_f32_32x32x16_bf16 {vr(Oc,16)}, {vr(vV + 8*(t & 1),4)}, {vr(vP,4)}, {vr(Oc,16)}")
        for r in range(12, 16): ex(r)
        if u == 15:
            a(f"""
            s_add_u32 s{sT0}, s{sSlotN}, {SLOT}
            s_cmp_ge_u32 s{sT0}, {NSLOT*SLOT}
            s_cselect_b32 s{sT1}, {NSLOT*SLOT}, 0
            s_sub_u32 s{sT0}, s{sT0}, s{sT1}
            s_sub_u32 s{sT1}, s{sT0}, s{sSlotN}
            s_add_u32 s{sT2}, s{sT0}, {SLOT}
            s_cmp_ge_u32 s{sT2}, {NSLOT*SLOT}
            s_cselect_b32 s{sT0}, {NSLOT*SLOT}, 0
            s_sub_u32 s{sT2}, s{sT2}, s{sT0}
            s_sub_u32 s{sT0}, s{sT2}, s{sSlotN}
            s_mov_b32 s{sSlotN}, s{sT2}
            """)
            for k in range(3):
                a(f"v_mov_b32 v{vA3[0][k]}, v{vA3[2][k]}")
                a(f"v_add_u32 v{vA3[1][k]}, s{sT1}, v{vA3[2][k]}")
                a(f"v_add_u32 v{vA3[2][k]}, s{sT0}, v{vA3[2][k]}")
        for r in range(4, 8): cv(r)
    a(f"""
    s_add_u32 s{sChunk}, s{sChunk}, 1
    s_cmp_lt_u32 s{sChunk}, 4
    s_cbranch_scc1 L_{name}_loop
    s_waitcnt lgkmcnt(0)
    """)
    a(f"v_mfma_f32_32x32x16_bf16 {vr(vO+16,16)}, {vr(vV + 8 + 4,4)}, {vr(vP+4,4)}, {vr(vO+16,16)}")
    st(a, 7)
    a(f"s_branch L_{name}_post")
    for l, b, fn in ool:
        a.label(l)
        fn()
        a(f"s_branch {b}")
    a.label(f"L_{name}_post")
    a(f"""
    s_barrier
    s_lshl_b32 s{sT0}, s{sQg}, 1
    s_add_u32 s{sT1}, s{sT0}, s{sKh}
    s_lshr_b32 s{sT2}, s{sT1}, 2
    s_mul_i32 s{sT2}, s{sT2}, {SLOT}
    s_and_b32 s{sT1}, s{sT1}, 3
    s_mul_i32 s{sT1}, s{sT1}, 3072
    s_add_u32 s{sT1}, s{sT1}, s{sT2}
    v_add_u32 v{vT}, s{sT1}, v{vL16}
    s_xor_b32 s{sT1}, s{sKh}, 1
    s_add_u32 s{sT1}, s{sT1}, s{sT0}
    s_lshr_b32 s{sT2}, s{sT1}, 2
    s_mul_i32 s{sT2}, s{sT2}, {SLOT}
    s_and_b32 s{sT1}, s{sT1}, 3
    s_mul_i32 s{sT1}, s{sT1}, 3072
    s_add_u32 s{sT1}, s{sT1}, s{sT2}
    v_add_u32 v{vT+1}, s{sT1}, v{vL16}
    s_nop 7
    """)
    stx(a, 'a_bar1')
    for i in range(3):
        a(f"ds_write_b128 v{vT}, {vr(vO+16+4*i,4)} offset:{i*1024}")
    a("s_waitcnt lgkmcnt(0)")
    a("s_barrier")
    stx(a, 'a_bar2')
    for i in range(3):
        a(f"ds_read_b128 {vr(vS+4*i,4)}, v{vT+1} offset:{i*1024}")
    a("s_waitcnt lgkmcnt(0)")
    for r in range(12):
        a(f"v_add_f32 v{vO+r}, v{vO+r}, v{vS+r}")
    a(f"v_mov_b32 v{vT}, 0")
    for r in range(12):
        a(f"v_fma_f32 v{vT}, v{vO+r}, 0, v{vT}")
    a(f"""
    s_cmp_eq_u32 s{sPass}, 0
    s_cbranch_scc0 L_{name}_store
    v_cmp_u_f32 vcc, v{vT}, v{vT}
    s_nop 4
    s_cmp_eq_u64 vcc, 0
    s_cbranch_scc1 L_{name}_novote
    v_mov_b32 v{vT+1}, {FLAG}
    v_mov_b32 v{vT+2}, 1
    ds_write_b32 v{vT+1}, v{vT+2}
    L_{name}_novote:
    s_waitcnt lgkmcnt(0)
    s_barrier
    v_mov_b32 v{vT+1}, {FLAG}
    ds_read_b32 v{vT+2}, v{vT+1}
    s_waitcnt lgkmcnt(0)
    v_readfirstlane_b32 s{sT0}, v{vT+2}
    s_cmp_eq_u32 s{sT0}, 0
    s_cbranch_scc1 L_{name}_store2
    s_mov_b32 s{sPass}, 1
    v_mov_b32 v{vT}, 0xff800000
    v_mov_b32 v{vT+1}, 0xff800000
    s_lshr_b32 s{sT0}, s{sHead}, 1
    s_mul_i32 s{sT0}, s{sT0}, 163840
    s_mov_b32 s{sT1}, 0
    v_and_b32 v{vT+2}, 31, v0
    v_lshlrev_b32 v{vT+2}, 4, v{vT+2}
    s_lshl_b32 s{sT2}, s{sE}, 3
    s_add_u32 s{sT2}, s{sT2}, 1024
    v_add_u32 v{vT+2}, s{sT2}, v{vT+2}
    s_mul_i32 s{sT2}, s{sE}, 1536
    v_add_u32 v{vT+3}, s{sT2}, v{vL16}
    L_{name}_maxloop:
    buffer_load_dwordx4 {vr(vKb,4)}, v{vT+3}, s[{sK}:{sK+3}], s{sT0} offen
    buffer_load_dwordx2 {vr(vKr,2)}, v{vT+2}, s[{sK}:{sK+3}], s{sT0} offen
    s_waitcnt vmcnt(0)
    """)
    for s in range(2):
        S = vS + 16*s
        a(f"v_mfma_f32_32x32x16_bf16 {vr(S,16)}, {vr(vKb,4)}, {vr(vQ+4*s,4)}, 0")
        a(f"v_mfma_f32_32x32x8_bf16 {vr(S,16)}, {vr(vKr,2)}, {vr(vQr+2*s,2)}, {vr(S,16)}")
    a("s_nop 15")
    for s in range(2):
        for i in range(0, 16, 2):
            a(f"v_max3_f32 v{vT+s}, v{vT+s}, v{vS+16*s+i}, v{vS+16*s+i+1}")
    a(f"""
    s_add_u32 s{sT0}, s{sT0}, 2560
    s_add_u32 s{sT1}, s{sT1}, 1
    s_cmp_lt_u32 s{sT1}, 64
    s_cbranch_scc1 L_{name}_maxloop
    """)
    for s in range(2):
        a(f"""
        v_mov_b32 v{vT+2}, v{vT+s}
        s_nop 1
        v_permlane32_swap_b32 v{vT+s}, v{vT+2}
        s_nop 1
        v_max_f32 v{vT+2}, v{vT+s}, v{vT+2}
        v_sub_f32 v{vNC+16*s}, 0, v{vT+2}
        """)
        for i in range(1, 16):
            a(f"v_mov_b32 v{vNC+16*s+i}, v{vNC+16*s}")
    a("s_barrier")
    a(f"s_branch L_{name}_restart")
    a.label(f"L_{name}_store")
    a("s_barrier")
    a.label(f"L_{name}_store2")
    stx(a, 'a_vote')
    a(f"""
    v_mov_b32 v{vT}, v{vO+8}
    v_mov_b32 v{vT+1}, v{vO+8}
    s_nop 1
    v_permlane32_swap_b32 v{vT}, v{vT+1}
    s_nop 1
    v_rcp_f32 v{vT+1}, v{vT+1}
    v_lshrrev_b32 v{vT+2}, 5, v0
    v_and_b32 v{vT+3}, 31, v0
    s_add_u32 s{sT0}, s{sQt}, s{sKh}
    s_lshl_b32 s{sT0}, s{sT0}, 5
    v_add_u32 v{vT+3}, s{sT0}, v{vT+3}
    v_lshlrev_b32 v{vT+3}, 4, v{vT+3}
    s_mul_i32 s{sT0}, s{sHead}, 5
    v_add_u32 v{vT+2}, s{sT0}, v{vT+2}
    """)
    for r in range(12):
        a(f"v_mul_f32 v{vO+r}, v{vO+r}, v{vT+1}")
    for q in range(3):
        a(f"""
        v_add_u32 v{vT+4}, {2*q}, v{vT+2}
        v_lshrrev_b32 v{vT+5}, 1, v{vT+4}
        v_lshlrev_b32 v{vT+5}, 15, v{vT+5}
        v_and_b32 v{vT+4}, 1, v{vT+4}
        v_lshlrev_b32 v{vT+4}, 3, v{vT+4}
        v_add3_u32 v{vT+4}, v{vT+4}, v{vT+5}, v{vT+3}
        v_cvt_pk_bf16_f32 v{vT+6}, v{vO+4*q}, v{vO+4*q+1}
        v_cvt_pk_bf16_f32 v{vT+7}, v{vO+4*q+2}, v{vO+4*q+3}
        """)
        if q == 2: a("s_mov_b32 exec_hi, 0")
        dual(a, [f"buffer_store_dwordx2 {vr(vT+6,2)}, v{vT+4}, s[{sO}:{sO+3}], 0 offen @SC"])
    a("s_mov_b64 exec, -1")
    stx(a, 'a_stores')
    a(f"s_add_u32 s76, s{sQb}, {C_ATT}")

def gemm_phase_prologue_loader(a, core, q, dep_idx_sgpr, dep_target, nW, pre_issued):
    pass

LANDED = [True]
def reg_step1(a, vd):
    a("s_mov_b64 exec, 7")
    a(f"buffer_load_dword v{vd}, v{vd+1}, s[44:47], 0 offen sc1")
    a("s_mov_b64 exec, -1")
def reg_step2(a, vd):
    dbg_flag_wait(a, vd, landed=LANDED[0])
    a(f"""
    s_getreg_b32 s{sX}, hwreg(HW_REG_XCC_ID)
    s_and_b32 s{sX}, s{sX}, 7
    s_add_u32 s76, s{sX}, {C_RK}
    s_lshl_b32 s76, s76, 7
    s_add_u32 s76, s76, {WS_CNT}
    v_mov_b32 v{vd-1}, s76
    v_accvgpr_write_b32 a0, 1
    s_mov_b64 exec, 1
    s_nop 1
    buffer_atomic_add a0, v{vd-1}, s[{sWS}:{sWS+3}], 0 offen sc0
    s_mov_b64 exec, -1
    """)
def reg_step3(a, vd):
    l1, l2 = a.newlabel("r3a"), a.newlabel("r3b")
    if not LANDED[0]: a("s_waitcnt vmcnt(0)")
    a(f"""
    v_accvgpr_read_b32 v{vd-1}, a0
    s_nop 1
    v_readfirstlane_b32 s{sRk}, v{vd-1}
    s_cmp_eq_u32 s{sRk}, 31
    s_cbranch_scc0 {l1}
    v_mov_b32 v{vd-1}, 4
    v_mov_b32 v{vd-2}, 1
    s_mov_b64 exec, 1
    buffer_atomic_add v{vd-2}, v{vd-1}, s[44:47], 0 offen sc1
    s_mov_b64 exec, -1
    """)
    a.label(l1)
    a(f"""
    s_cmp_ge_u32 s{sRk}, 32
    s_cbranch_scc0 {l2}
    v_mov_b32 v{vd-1}, 8
    v_mov_b32 v{vd-2}, 1
    s_mov_b64 exec, 1
    buffer_store_dword v{vd-2}, v{vd-1}, s[44:47], 0 offen sc1
    s_mov_b64 exec, -1
    """)
    a.label(l2)
    a("s_mov_b64 exec, 7")
    a(f"buffer_load_dword v{vd}, v{vd+1}, s[44:47], 0 offen sc1")
    a("s_mov_b64 exec, -1")
def register_publish(a, vd):
    l0, l1 = a.newlabel("rp"), a.newlabel("rpok")
    a(f"s_mov_b32 s{sPoll}, 0")
    a.label(l0)
    a(f"""
    s_waitcnt vmcnt(0)
    v_readlane_b32 s39, v{vd}, 1
    v_readlane_b32 s40, v{vd}, 2
    s_cmp_eq_u32 s39, 8
    s_cselect_b32 s38, 1, 0
    s_cmp_lg_u32 s40, 0
    s_cselect_b32 s38, 0, s38
    s_cbranch_scc1 {l1}
    s_cmp_eq_u32 s38, 1
    s_cbranch_scc1 {l1}
    s_add_u32 s{sPoll}, s{sPoll}, 1
    s_cmp_gt_u32 s{sPoll}, {POLL_MAX}
    s_cbranch_scc1 {l1}
    s_sleep 1
    s_mov_b64 exec, 7
    buffer_load_dword v{vd}, v{vd+1}, s[44:47], 0 offen sc1
    s_mov_b64 exec, -1
    s_branch {l0}
    """)
    a.label(l1)
    if E('FORCE_SLOW'): a("s_mov_b32 s38, 0")
    a(f"""
    v_mov_b32 v{vd-6}, s{sX}
    v_mov_b32 v{vd-4}, s38
    v_mov_b32 v{vd-5}, s{sRk}
    v_mov_b32 v{vd-7}, {ROLE}
    ds_write_b96 v{vd-7}, v[{vd-6}:{vd-4}]
    s_waitcnt lgkmcnt(0)
    """)
def wave_only(a, w, fn):
    l = a.newlabel("wo")
    a(f"s_cmp_eq_u32 s{sWV}, {w}")
    a(f"s_cbranch_scc0 {l}")
    fn()
    a.label(l)
def code_prefetch(a):
    a(f"""
    s_getpc_b64 s[40:41]
    s_and_b32 s40, s40, 0xffffff00
    s_lshr_b32 s42, s2, 3
    s_lshl_b32 s42, s42, 11
    v_lshlrev_b32 v160, 7, v1
    v_add_u32 v160, s42, v160
    s_mov_b64 exec, 0xffff
    global_load_dword v161, v160, s[40:41]
    s_mov_b64 exec, -1
    """)

def tlb_warm(a):
    G = int(E('TLBG', '16'))
    a(f"""
    s_lshr_b32 s42, s2, 3
    v_lshlrev_b32 v160, 5, v1
    v_add_u32 v160, s42, v160
    v_lshlrev_b32 v160, {G}, v160
    """)
    n_ws = -(-WS_END >> G)
    a(f"s_mov_b64 exec, {(1 << min(64, -(-n_ws // 32))) - 1:#x}")
    a(f"buffer_load_dword v161, v160, s[{sWS}:{sWS+3}], 0 offen sc1")
    a("s_mov_b64 exec, 3")
    for k, (pp, size) in enumerate(((pW1, 640*3456), (pW2, 1728*1280), (pWO, 640*1280), (pOUT, 2048*1280), (pX, 2048*1280), (pWQ, 640*3840))):
        make_srd(a, 44, pp, pp+1, 0, size)
        a(f"buffer_load_dword v{162+k}, v160, s[44:47], 0 offen sc1")
    a("s_mov_b64 exec, -1")
    make_srd(a, 44, pW1, pW1+1, 0, 640*3456)
    a(f"""
    s_mul_i32 s42, s2, 8640
    v_lshlrev_b32 v160, 7, v1
    buffer_load_dword v161, v160, s[44:47], s42 offen sc1
    s_add_u32 s42, s42, 8192
    s_mov_b64 exec, 15
    buffer_load_dword v161, v160, s[44:47], s42 offen sc1
    s_mov_b64 exec, -1
    """)

CODE_KB = 64
def gen_mega():
    a = Asm()
    a(f"""
    s_cmp_ge_u32 s2, 256
    s_cbranch_scc1 L_exit
    s_load_dwordx8 s[84:91], s[0:1], 0
    s_load_dwordx8 s[92:99], s[0:1], 32
    s_load_dwordx2 s[78:79], s[0:1], 64
    """)
    st_rt(a, 0); st(a, 1)
    a(f"""
    v_lshrrev_b32 v2, 6, v0
    s_nop 0
    v_readfirstlane_b32 s{sWV}, v2
    """)
    lane_id(a, 1)
    if not E('NOPF'):
        l = a.newlabel("pf")
        a(f"s_cmp_eq_u32 s{sWV}, 1")
        a(f"s_cbranch_scc0 {l}")
        code_prefetch(a)
        a.label(l)
    a("s_waitcnt lgkmcnt(0)")
    make_srd(a, sWS, pWS, pWS+1, 0, WS_END)
    if E('TLB'):
        l = a.newlabel("tlb")
        a(f"s_cmp_eq_u32 s{sWV}, 3")
        a(f"s_cbranch_scc0 {l}")
        tlb_warm(a)
        a.label(l)
    L = CoreL(a, 'qkv', 'q')
    L.map_tiles("L_repack")
    a(f"""
    s_cmp_ge_u32 s{sWV}, 4
    s_cbranch_scc0 L_q_compute
    """)
    L.loader_setup()
    st(a, 2)
    q = VmQ()
    for s_ in range(PD):
        L.issue_A(s_); q.push(f"A{s_}", 4)
        if not FS: stamp(a, 9 + 2*s_, base=SB)
        L.issue_W(s_); q.push(f"W{s_}", 4)
        if not FS: stamp(a, 10 + 2*s_, base=SB)
    st(a, 3)
    make_srd(a, 44, pDBG, pDBG+1, 0, 256)
    a("v_lshlrev_b32 v71, 2, v1")
    a("v_mov_b32 v70, 0")
    L.ldstamps = True
    L.loader_main(q)
    st(a, 8)
    a("s_waitcnt lgkmcnt(0)")
    a("s_barrier")
    wave_only(a, 7, lambda: register_publish(a, 70))
    a("s_barrier")
    a("s_branch L_attn")
    a.label("L_q_compute")
    l = a.newlabel("zc")
    a(f"""
    s_or_b32 s40, s2, s{sWV}
    s_cmp_eq_u32 s40, 0
    s_cbranch_scc0 {l}
    v_mov_b32 v4, 0
    v_mov_b32 v5, 0
    v_mov_b32 v6, 0
    v_mov_b32 v7, 0
    v_lshlrev_b32 v8, 4, v1
    s_mov_b32 s40, {WS_CNT}
    """)
    for j in range(SZ_CNT // 1024):
        a(f"buffer_store_dwordx4 v[4:7], v8, s[{sWS}:{sWS+3}], s40 offen {SC}")
        a("s_add_u32 s40, s40, 1024")
    make_srd(a, 8, pDBG, pDBG+1, 0, 256)
    a(f"""
    s_waitcnt vmcnt(0)
    v_mov_b32 v4, 1
    v_mov_b32 v5, 0
    s_mov_b64 exec, 1
    buffer_store_dword v4, v5, s[8:11], 0 offen sc1
    s_mov_b64 exec, -1
    """)
    a.label(l)
    emit_p0r(a, L)
    RP = Repack(a)
    RP.issue()
    L.rp = RP
    L.compute_setup()
    make_srd(a, 44, pDBG, pDBG+1, 0, 256)
    a(f"v_lshlrev_b32 v{L.vSt+27}, 2, v1")
    a(f"v_mov_b32 v{L.vSt+26}, 0")
    a(f"""
    s_cmp_ge_u32 s{L.sNt}, 10
    s_cbranch_scc1 L_q_vpath
    """)
    L.addr_qk()
    emit_p0r_finish(a, L, extra=4)
    L.mainloop(True, 2)
    st(a, 3)
    a("s_barrier")
    L.epilogue_Y('qk')
    a("s_branch L_q_done")
    a.label("L_q_vpath")
    L.addr_v()
    emit_p0r_finish(a, L, extra=4)
    L.mainloop(False, 2)
    st(a, 3)
    a("s_barrier")
    L.epilogue_X()
    a.label("L_q_done")
    a(f"buffer_load_dword v{L.vSt+26}, v{L.vSt+27}, s[44:47], 0 offen sc1")
    a("s_waitcnt vmcnt(0)")
    a("s_barrier")
    a(f"s_cmp_eq_u32 s{sWV}, 0")
    a("s_cbranch_scc0 L_attn")
    dbg_flag_wait(a, L.vSt + 26, landed=True)
    a(f"s_add_u32 s40, s{L.sNt}, {C_QKV}")
    arrive(a, 40, 4)
    st(a, 4)
    a("s_branch L_attn")
    a.label("L_repack")
    make_srd(a, 44, pDBG, pDBG+1, 0, 256)
    a(f"v_lshlrev_b32 v71, 2, v1")
    a(f"v_mov_b32 v70, 0")
    def regall():
        LANDED[0] = False
        reg_step1(a, 70); reg_step2(a, 70); reg_step3(a, 70); register_publish(a, 70)
    wave_only(a, 6, regall)
    l = a.newlabel("rpl")
    a(f"s_cmp_ge_u32 s{sWV}, 4")
    a(f"s_cbranch_scc1 {l}")
    RP2 = Repack(a)
    RP2.issue()
    RP2.store()
    a.label(l)
    a("s_barrier")
    def rp_arr2():
        a(f"buffer_load_dword v70, v71, s[44:47], 0 offen sc1")
        dbg_flag_wait(a, 70)
        a("s_and_b32 s76, s2, 7")
        a(f"s_add_u32 s76, s76, {C_RPS}")
        arrive(a, 76, 64)
    wave_only(a, 4, rp_arr2)
    a.label("L_attn")
    emit_attention(a, None)
    S = CoreS(a, 'oproj')
    lane_id(a, 1)
    S.map_tiles()
    a(f"""
    s_cmp_ge_u32 s{sWV}, 4
    s_cbranch_scc0 L_o_compute
    """)
    S.loader_setup()
    q = VmQ()
    a("s_waitcnt vmcnt(0)")
    stx(a, 'a_drain')
    a("s_barrier")
    stx(a, 'a_bar3')
    for s_ in range(PD):
        S.issue_W(s_); q.push(f"W{s_}", 5)
    lw = a.newlabel("ow")
    a(f"s_cmp_eq_u32 s{sWV}, 4")
    a(f"s_cbranch_scc0 {lw}")
    a(f"s_add_u32 s40, s{sX}, {C_ATT}")
    poll1(a, 40, 32, 8)
    a.label(lw)
    stx(a, 'o_poll')
    a("s_barrier")
    for s_ in range(PD):
        S.issue_A(s_); q.push(f"A{s_}", 4)
    S.loader_main(q)
    a("s_barrier")
    F1 = CoreL(a, 'ffn1', 'f')
    F1.map_tiles("L_o_ld_idle")
    F1.loader_setup()
    q = VmQ()
    a("s_barrier")
    for s_ in range(PD):
        F1.issue_W(s_); q.push(f"W{s_}", 4)
    a("s_branch L_f1_loader")
    a.label("L_o_ld_idle")
    a("s_barrier")
    a("s_branch L_f2_loader0")
    a.label("L_o_compute")
    a("s_waitcnt vmcnt(0)")
    stx(a, 'a_drain')
    a("s_barrier")
    stx(a, 'a_bar3')
    lw = a.newlabel("oa")
    a(f"s_cmp_eq_u32 s{sWV}, 0")
    a(f"s_cbranch_scc0 {lw}")
    arrive_l(a, 76, 4)
    st(a, 8)
    a.label(lw)
    S.compute_setup()
    S.pretouch()
    S.residual_loads()
    a("s_barrier")
    st(a, 9)
    stx(a, 'o_X')
    S.mainloop(tag='o')
    stx(a, 'o_loop')
    S.reduce()
    stx(a, 'o_red')
    a("s_barrier")
    S.epilogue()
    stx(a, 'o_epi')
    a("s_waitcnt vmcnt(0)")
    stx(a, 'o_drain')
    a("s_barrier")
    lw = a.newlabel("oa2")
    a(f"s_cmp_eq_u32 s{sWV}, 0")
    a(f"s_cbranch_scc0 {lw}")
    a(f"s_lshr_b32 s40, s{S.sM0}, 7")
    a(f"s_add_u32 s40, s40, {C_OP}")
    arrive_l(a, 40, 4)
    st(a, 10)
    a.label(lw)
    lane_id(a, 1)
    F1.map_tiles("L_f2_compute0")
    a("s_branch L_f1_compute")
    a.label("L_f1_loader")
    lw = a.newlabel("fw")
    a(f"s_cmp_eq_u32 s{sWV}, 4")
    a(f"s_cbranch_scc0 {lw}")
    a(f"s_lshr_b32 s40, s{F1.sM0}, 7")
    a(f"s_add_u32 s40, s40, {C_OP}")
    poll1(a, 40, 16, 8)
    a.label(lw)
    a("s_barrier")
    for s_ in range(PD):
        F1.issue_A(s_); q.push(f"A{s_}", 4)
    F1.lstats_init()
    F1.loader_main(q)
    a("s_barrier")
    S2 = CoreS(a, 'ffn2')
    S2.map_tiles()
    S2.loader_setup()
    q = VmQ()
    a("s_barrier")
    for s_ in range(PD):
        S2.issue_W(s_); q.push(f"W{s_}", 5)
    a("s_branch L_f2_loader")
    a.label("L_f2_loader0")
    S2.map_tiles()
    S2.loader_setup()
    for s_ in range(PD):
        S2.issue_W(s_)
    a.label("L_f2_loader")
    lw = a.newlabel("gw")
    a(f"s_cmp_eq_u32 s{sWV}, 4")
    a(f"s_cbranch_scc0 {lw}")
    a(f"s_lshr_b32 s40, s{S2.sM0}, 7")
    a(f"s_add_u32 s40, s40, {C_F1}")
    poll1(a, 40, 14, 8)
    a.label(lw)
    a("s_barrier")
    for s_ in range(PD):
        S2.issue_A(s_); q.push(f"A{s_}", 4)
    S2.loader_main(q)
    if common.STAMPS:
        stamp_flush(a, 0, sWV, base=SB, vt=90)
    a("s_endpgm")
    a.label("L_f1_compute")
    F1.compute_setup()
    F1.addr_f()
    a("s_barrier")
    st(a, 11)
    stx(a, 'f_X')
    F1.mainloop(True, tag='f')
    stx(a, 'f_loop')
    a("s_barrier")
    F1.epilogue_Y('ffn1')
    stx(a, 'f_epi')
    a("s_waitcnt vmcnt(0)")
    stx(a, 'f_drain')
    a("s_barrier")
    lw = a.newlabel("fa")
    a(f"s_cmp_eq_u32 s{sWV}, 0")
    a(f"s_cbranch_scc0 {lw}")
    a(f"s_lshr_b32 s40, s{F1.sM0}, 7")
    a(f"s_add_u32 s40, s40, {C_F1}")
    arrive_l(a, 40, 4)
    st(a, 12)
    a.label(lw)
    lane_id(a, 1)
    a.label("L_f2_compute0")
    S2.map_tiles()
    S2.compute_setup()
    a("s_barrier")
    st(a, 13)
    stx(a, 'g_X')
    S2.residual_loads()
    S2.mainloop(tag='g')
    stx(a, 'g_loop')
    S2.reduce()
    stx(a, 'g_red')
    S2.epilogue()
    stx(a, 'g_epi')
    if common.STAMPS:
        a("s_waitcnt vmcnt(0)")
        st(a, 14); st_rt(a, 15)
        stamp_flush(a, 0, sWV, base=SB, vt=90)
        if E('DBGOUT'):
            l = a.newlabel("dbo")
            a(f"s_cmp_eq_u32 s2, 9")
            a(f"s_cbranch_scc0 {l}")
            a(f"s_cmp_eq_u32 s{sWV}, 0")
            a(f"s_cbranch_scc0 {l}")
            make_srd(a, 8, pDBG, pDBG+1, 0, 256)
            a("s_mov_b64 exec, 1")
            pairs = [(15, 0), (14, 1), (2, 1), (3, 1), (4, 1), (5, 1), (6, 1), (7, 1), (9, 1), (11, 1), (13, 1)]
            for k, (x, y) in enumerate(pairs):
                a(f"s_sub_u32 s40, s{SB+x}, s{SB+y}")
                a(f"v_mov_b32 v4, s40")
                a(f"v_mov_b32 v5, {16 + 4*k}")
                a(f"buffer_store_dword v4, v5, s[8:11], 0 offen")
            a("s_waitcnt vmcnt(0)")
            a.label(l)
    a.label("L_exit")
    a("s_endpgm")
    return kernel_header(NAME) + a.text() + kernel_desc(NAME, 256, 176, sgpr=102)
```

```python
from common import *
import common, os
E = os.environ.get

NAME = "sequential_preLN__softmax_full_mha__dense_activation_relu__prompt_kernel"
pX, pWQ, pWO, pW1, pW2, pOUT, pDBG, pWS = 84, 86, 88, 92, 94, 96, 98, 78
sWS = 80
sWV = 100
sPoll = 101
SB = 48
STAT = 131072
LDS_TOTAL = 149504
SC = "sc1"
sX, sRk, sLoc = 72, 73, 74
ROLE = LDS_TOTAL - 64
POLL_MAX = 1 << 22

FS = E('FS', '').split(',') if E('FS') else []
FS0 = int(E('FS0', '9'))
def st(a, i):
    if FS and (i >= FS0) and i != 15: return
    stamp(a, i, base=SB)
def st2(a, i): pass
def stx(a, tag):
    if tag in FS: stamp(a, FS0 + FS.index(tag), base=SB)
def st_rt(a, i): stamp_rt(a, i, base=SB)

def lane_id(a, v):
    a(f"v_mbcnt_lo_u32_b32 v{v}, -1, 0")
    a(f"v_mbcnt_hi_u32_b32 v{v}, -1, v{v}")

def arrive(a, sIdx, vt):
    a(f"""
    s_lshl_b32 s{sPoll}, s{sIdx}, 7
    s_add_u32 s{sPoll}, s{sPoll}, {WS_CNT}
    v_mov_b32 v{vt}, s{sPoll}
    v_mov_b32 v{vt+1}, 1
    s_mov_b64 exec, 1
    buffer_atomic_add v{vt+1}, v{vt}, s[{sWS}:{sWS+3}], 0 offen sc1
    s_mov_b64 exec, -1
    """)

def dual(a, instrs):
    l0, l1 = a.newlabel("slow"), a.newlabel("dd")
    a(f"s_cmp_eq_u32 s{sLoc}, 0")
    a(f"s_cbranch_scc1 {l0}")
    for i in instrs: a(i.replace("@SC", E('LOCFL', '') if 'store' in i else ''))
    a(f"s_branch {l1}")
    a.label(l0)
    for i in instrs: a(i.replace("@SC", "sc1"))
    a.label(l1)

def arrive_l(a, sIdx, vt):
    a(f"""
    s_lshl_b32 s{sPoll}, s{sIdx}, 7
    s_add_u32 s{sPoll}, s{sPoll}, {WS_CNT}
    v_mov_b32 v{vt}, s{sPoll}
    v_mov_b32 v{vt+1}, 1
    s_mov_b64 exec, 1
    """)
    dual(a, [f"buffer_atomic_add v{vt+1}, v{vt}, s[{sWS}:{sWS+3}], 0 offen @SC"])
    a("s_mov_b64 exec, -1")

def arrive_f(a, sIdx, sSlot, vt):
    a(f"""
    s_lshl_b32 s{sPoll}, s{sIdx}, 7
    s_add_u32 s{sPoll}, s{sPoll}, {WS_CNT}
    s_lshl_b32 s75, s{sSlot}, 2
    s_add_u32 s{sPoll}, s{sPoll}, s75
    v_mov_b32 v{vt}, s{sPoll}
    v_mov_b32 v{vt+1}, 1
    s_mov_b64 exec, 1
    """)
    dual(a, [f"buffer_store_dword v{vt+1}, v{vt}, s[{sWS}:{sWS+3}], 0 offen @SC"])
    a("s_mov_b64 exec, -1")

def poll_f(a, sIdx, n, vt):
    a(f"""
    s_lshl_b32 s{sPoll}, s{sIdx}, 7
    s_add_u32 s{sPoll}, s{sPoll}, {WS_CNT}
    v_lshlrev_b32 v{vt+1}, 2, v1
    v_add_u32 v{vt+1}, s{sPoll}, v{vt+1}
    v_mov_b32 v{vt+2}, 1
    """)
    poll(a, vt + 1, vt + 2, n, vt)

def poll(a, vOff, vTgt, nl, vt):
    l0, l1 = a.newlabel("poll"), a.newlabel("pollok")
    a(f"s_mov_b64 exec, {(1 << nl) - 1:#x}")
    a(f"s_mov_b32 s{sPoll}, 0")
    a.label(l0)
    a(f"""
    buffer_load_dword v{vt}, v{vOff}, s[{sWS}:{sWS+3}], 0 offen sc1
    s_waitcnt vmcnt(0)
    v_cmp_gt_u32 vcc, v{vTgt}, v{vt}
    s_nop 4
    s_cmp_eq_u64 vcc, 0
    s_cbranch_scc1 {l1}
    s_add_u32 s{sPoll}, s{sPoll}, 1
    s_cmp_gt_u32 s{sPoll}, {POLL_MAX}
    s_cbranch_scc1 {l1}
    s_sleep 1
    s_branch {l0}
    """)
    a.label(l1)
    a("s_mov_b64 exec, -1")

def poll1(a, sIdx, target, vt):
    a(f"""
    s_lshl_b32 s{sPoll}, s{sIdx}, 7
    s_add_u32 s{sPoll}, s{sPoll}, {WS_CNT}
    v_mov_b32 v{vt+1}, s{sPoll}
    v_mov_b32 v{vt+2}, {target}
    """)
    poll(a, vt + 1, vt + 2, 1, vt)

def wave_sum(a, v):
    for sh in (1, 2, 4, 8):
        a(f"v_add_f32_dpp v{v}, v{v}, v{v} row_shr:{sh} row_mask:0xf bank_mask:0xf bound_ctrl:0")
        a("s_nop 1")
    a(f"v_add_f32_dpp v{v}, v{v}, v{v} row_bcast:15 row_mask:0xa bank_mask:0xf")
    a("s_nop 1")
    a(f"v_add_f32_dpp v{v}, v{v}, v{v} row_bcast:31 row_mask:0xc bank_mask:0xf")
    a("s_nop 1")

def p0_rows_issue(a, sXs, s0, vR, vA):
    a(f"""
    s_lshl_b32 s{s0}, s2, 3
    s_lshl_b32 s{s0+1}, s{sWV}, 1
    s_add_u32 s{s0}, s{s0}, s{s0+1}
    s_mul_i32 s{s0+2}, s{s0}, 1280
    v_lshlrev_b32 v{vA}, 4, v1
    v_lshlrev_b32 v{vA+1}, 2, v1
    s_add_u32 s{s0+3}, s{s0+2}, 1280
    buffer_load_dwordx4 {vr(vR,4)}, v{vA}, s[{sXs}:{sXs+3}], s{s0+2} offen
    buffer_load_dword v{vR+4}, v{vA+1}, s[{sXs}:{sXs+3}], s{s0+2} offen offset:1024
    buffer_load_dwordx4 {vr(vR+6,4)}, v{vA}, s[{sXs}:{sXs+3}], s{s0+3} offen
    buffer_load_dword v{vR+5}, v{vA+1}, s[{sXs}:{sXs+3}], s{s0+3} offen offset:1024
    """)
def p0_rows_finish(a, s0, vR, vA):
    for rr in range(2):
        regs = [vR + 6*rr + i for i in range(4)] + [vR + 4 + rr]
        S, Q, U = vA + 4, vA + 5, vA + 6
        for n, r in enumerate(regs):
            a(f"v_lshlrev_b32 v{U}, 16, v{r}")
            a(f"v_and_b32 v{U+1}, 0xffff0000, v{r}")
            if n == 0:
                a(f"v_add_f32 v{S}, v{U}, v{U+1}")
                a(f"v_mul_f32 v{Q}, v{U}, v{U}")
            else:
                a(f"v_add_f32 v{S}, v{S}, v{U}")
                a(f"v_add_f32 v{S}, v{S}, v{U+1}")
                a(f"v_fmac_f32 v{Q}, v{U}, v{U}")
            a(f"v_fmac_f32 v{Q}, v{U+1}, v{U+1}")
        a("s_nop 1")
        for sh in (1, 2, 4, 8):
            a(f"v_add_f32_dpp v{S}, v{S}, v{S} row_shr:{sh} row_mask:0xf bank_mask:0xf bound_ctrl:0")
            a(f"v_add_f32_dpp v{Q}, v{Q}, v{Q} row_shr:{sh} row_mask:0xf bank_mask:0xf bound_ctrl:0")
            a("s_nop 0")
        a(f"v_add_f32_dpp v{S}, v{S}, v{S} row_bcast:15 row_mask:0xa bank_mask:0xf")
        a(f"v_add_f32_dpp v{Q}, v{Q}, v{Q} row_bcast:15 row_mask:0xa bank_mask:0xf")
        a("s_nop 0")
        a(f"v_add_f32_dpp v{S}, v{S}, v{S} row_bcast:31 row_mask:0xc bank_mask:0xf")
        a(f"v_add_f32_dpp v{Q}, v{Q}, v{Q} row_bcast:31 row_mask:0xc bank_mask:0xf")
        a(f"""
        s_nop 0
        v_mul_f32 v{S}, {f32bits(1.0/640):#x}, v{S}
        v_mul_f32 v{Q}, {f32bits(1.0/640):#x}, v{Q}
        v_fma_f32 v{Q}, -v{S}, v{S}, v{Q}
        v_max_f32 v{Q}, 0, v{Q}
        v_add_f32 v{Q}, {f32bits(1e-5):#x}, v{Q}
        v_rsq_f32 v{Q}, v{Q}
        s_nop 0
        v_mov_b32 v{vA+8+2*rr}, v{S}
        v_mov_b32 v{vA+9+2*rr}, v{Q}
        """)
    a(f"""
    s_lshl_b32 s{s0+4}, s{s0}, 3
    s_add_u32 s{s0+4}, s{s0+4}, {WS_ST1}
    v_mov_b32 v{vA+4}, 0
    s_mov_b32 exec_lo, 0
    s_mov_b32 exec_hi, 0x80000000
    buffer_store_dwordx4 {vr(vA+8,4)}, v{vA+4}, s[{sWS}:{sWS+3}], s{s0+4} offen {SC}
    s_mov_b64 exec, -1
    """)
def colsum_issue(a, which, srd, sW4, s0, vC, vA):
    ld = 3840 if which == 'wq' else 3456
    a(f"""
    s_and_b32 s{s0+1}, s2, 7
    s_lshr_b32 s{s0+2}, s2, 3
    s_lshr_b32 s{s0+3}, s{s0+1}, 1
    s_lshl_b32 s{s0+3}, s{s0+3}, 5
    s_add_u32 s{s0+2}, s{s0+2}, s{s0+3}
    s_and_b32 s{s0+1}, s{s0+1}, 1
    s_and_b32 s{s0+3}, s{s0+2}, 15
    s_lshr_b32 s{s0+2}, s{s0+2}, 4
    v_lshrrev_b32 v{vA}, 3, v1
    v_and_b32 v{vA+1}, 7, v1
    v_lshlrev_b32 v{vA+1}, 2, v{vA+1}
    v_mul_u32_u24 v{vA+2}, {ld}, v{vA}
    v_add_u32 v{vA+2}, v{vA+2}, v{vA+1}
    s_lshl_b32 s{s0+4}, s{s0+3}, 6
    s_lshl_b32 s{s0+7}, s{sW4}, 4
    s_add_u32 s{s0+4}, s{s0+4}, s{s0+7}
    s_mul_i32 s{s0+5}, s{s0+1}, {1024 if which == 'wq' else 896}
    s_add_u32 s{s0+5}, s{s0+5}, s{s0+4}
    s_mul_i32 s{s0+7}, s{s0+2}, {80*ld}
    s_lshl_b32 s{s0+4}, s{s0+5}, 1
    s_add_u32 s{s0+7}, s{s0+7}, s{s0+4}
    """)
    for j in range(10):
        a(f"buffer_load_dword v{vC+j}, v{vA+2}, s[{srd}:{srd+3}], s{s0+7} offen")
        if j < 9: a(f"s_add_u32 s{s0+7}, s{s0+7}, {8*ld}")
def colsum_finish(a, which, s0, vC, vA):
    base, ncol = (WS_CS1, 1920) if which == 'wq' else (WS_CS2, 1792)
    A0, A1, U = vA + 4, vA + 5, vA + 6
    for j in range(10):
        if j == 0:
            a(f"v_lshlrev_b32 v{A0}, 16, v{vC}")
            a(f"v_and_b32 v{A1}, 0xffff0000, v{vC}")
        else:
            a(f"v_lshlrev_b32 v{U}, 16, v{vC+j}")
            a(f"v_and_b32 v{U+1}, 0xffff0000, v{vC+j}")
            a(f"v_add_f32 v{A0}, v{A0}, v{U}")
            a(f"v_add_f32 v{A1}, v{A1}, v{U+1}")
    a(f"""
    s_nop 1
    v_add_f32_dpp v{A0}, v{A0}, v{A0} row_ror:8 row_mask:0xf bank_mask:0xf
    v_add_f32_dpp v{A1}, v{A1}, v{A1} row_ror:8 row_mask:0xf bank_mask:0xf
    s_nop 1
    v_mov_b32 v{U}, v{A0}
    v_mov_b32 v{U+1}, v{A1}
    s_nop 1
    v_permlane16_swap_b32 v{A0}, v{U}
    v_permlane16_swap_b32 v{A1}, v{U+1}
    s_nop 1
    v_add_f32 v{A0}, v{A0}, v{U}
    v_add_f32 v{A1}, v{A1}, v{U+1}
    s_nop 0
    v_mov_b32 v{U}, v{A0}
    v_mov_b32 v{U+1}, v{A1}
    s_nop 1
    v_permlane32_swap_b32 v{A0}, v{U}
    v_permlane32_swap_b32 v{A1}, v{U+1}
    s_nop 1
    v_add_f32 v{vA+12}, v{A0}, v{U}
    v_add_f32 v{vA+13}, v{A1}, v{U+1}
    v_lshlrev_b32 v{U}, 3, v1
    s_mul_i32 s{s0+4}, s{s0+2}, {ncol*4}
    s_lshl_b32 s{s0+7}, s{s0+5}, 2
    s_add_u32 s{s0+4}, s{s0+4}, s{s0+7}
    s_add_u32 s{s0+4}, s{s0+4}, {base}
    """)
    lab = a.newlabel("p0skip")
    if which == 'wq':
        a(f"s_cmp_ge_u32 s{s0+5}, 1920")
    else:
        a(f"s_sub_u32 s{s0+7}, 14, s{s0+1}")
        a(f"s_cmp_ge_u32 s{s0+3}, s{s0+7}")
    a(f"s_cbranch_scc1 {lab}")
    a("s_mov_b64 exec, 0xff")
    a(f"buffer_store_dwordx2 {vr(vA+12,2)}, v{U}, s[{sWS}:{sWS+3}], s{s0+4} offen {SC}")
    a("s_mov_b64 exec, -1")
    a.label(lab)
def emit_p0(a):
    sXs, sWq, s0 = 8, 12, 40
    vR, vC, vA = 4, 14, 34
    make_srd(a, sXs, pX, pX+1, 0, 2048*1280)
    make_srd(a, sWq, pWQ, pWQ+1, 0, 640*3840)
    p0_rows_issue(a, sXs, s0, vR, vA)
    a(f"s_mov_b32 s39, s{s0}")
    colsum_issue(a, 'wq', sWq, sWV, s0, vC, vA + 12)
    a("s_waitcnt vmcnt(10)")
    a(f"s_mov_b32 s38, s{s0+4}")
    p0_rows_finish(a, 39, vR, vA) if False else None
    p0_rows_finish_b(a, 39, 38, vR, vA)
    a("s_waitcnt vmcnt(1)")
    colsum_finish(a, 'wq', s0, vC, vA + 12)
def p0_rows_finish_b(a, sRow, sTmp, vR, vA):
    import io
    class Tmp: pass
    for rr in range(2):
        regs = [vR + 6*rr + i for i in range(4)] + [vR + 4 + rr]
        S, Q, U = vA + 4, vA + 5, vA + 6
        for n, r in enumerate(regs):
            a(f"v_lshlrev_b32 v{U}, 16, v{r}")
            a(f"v_and_b32 v{U+1}, 0xffff0000, v{r}")
            if n == 0:
                a(f"v_add_f32 v{S}, v{U}, v{U+1}")
                a(f"v_mul_f32 v{Q}, v{U}, v{U}")
            else:
                a(f"v_add_f32 v{S}, v{S}, v{U}")
                a(f"v_add_f32 v{S}, v{S}, v{U+1}")
                a(f"v_fmac_f32 v{Q}, v{U}, v{U}")
            a(f"v_fmac_f32 v{Q}, v{U+1}, v{U+1}")
        a("s_nop 1")
        for sh in (1, 2, 4, 8):
            a(f"v_add_f32_dpp v{S}, v{S}, v{S} row_shr:{sh} row_mask:0xf bank_mask:0xf bound_ctrl:0")
            a(f"v_add_f32_dpp v{Q}, v{Q}, v{Q} row_shr:{sh} row_mask:0xf bank_mask:0xf bound_ctrl:0")
            a("s_nop 0")
        a(f"v_add_f32_dpp v{S}, v{S}, v{S} row_bcast:15 row_mask:0xa bank_mask:0xf")
        a(f"v_add_f32_dpp v{Q}, v{Q}, v{Q} row_bcast:15 row_mask:0xa bank_mask:0xf")
        a("s_nop 0")
        a(f"v_add_f32_dpp v{S}, v{S}, v{S} row_bcast:31 row_mask:0xc bank_mask:0xf")
        a(f"v_add_f32_dpp v{Q}, v{Q}, v{Q} row_bcast:31 row_mask:0xc bank_mask:0xf")
        a(f"""
        s_nop 0
        v_mul_f32 v{S}, {f32bits(1.0/640):#x}, v{S}
        v_mul_f32 v{Q}, {f32bits(1.0/640):#x}, v{Q}
        v_fma_f32 v{Q}, -v{S}, v{S}, v{Q}
        v_max_f32 v{Q}, 0, v{Q}
        v_add_f32 v{Q}, {f32bits(1e-5):#x}, v{Q}
        v_rsq_f32 v{Q}, v{Q}
        s_nop 0
        v_mov_b32 v{vA+8+2*rr}, v{S}
        v_mov_b32 v{vA+9+2*rr}, v{Q}
        """)
    a(f"""
    s_lshl_b32 s{sTmp}, s{sRow}, 3
    s_add_u32 s{sTmp}, s{sTmp}, {WS_ST1}
    v_mov_b32 v{vA+4}, 0
    s_mov_b32 exec_lo, 0
    s_mov_b32 exec_hi, 0x80000000
    buffer_store_dwordx4 {vr(vA+8,4)}, v{vA+4}, s[{sWS}:{sWS+3}], s{sTmp} offen {SC}
    s_mov_b64 exec, -1
    """)
def dbg_flag_issue(a, vt):
    make_srd(a, 44, pDBG, pDBG+1, 0, 256)
    a(f"v_mov_b32 v{vt+1}, 0")
    a(f"buffer_load_dword v{vt}, v{vt+1}, s[44:47], 0 offen sc1")
def dbg_flag_issue_b(a, vt):
    make_srd(a, 16, pDBG, pDBG+1, 0, 256)
    a(f"v_mov_b32 v{vt+1}, 0")
    a(f"buffer_load_dword v{vt}, v{vt+1}, s[16:19], 0 offen sc1")
def dbg_flag_wait(a, vt, srd=44, landed=False):
    l0, l1, l2 = a.newlabel("dbgp"), a.newlabel("dbgok"), a.newlabel("dbgc")
    a(f"s_mov_b32 s{sPoll}, 0")
    if landed: a(f"s_branch {l2}")
    a.label(l0)
    a("s_waitcnt vmcnt(0)")
    a.label(l2)
    a(f"""
    v_readfirstlane_b32 s75, v{vt}
    s_cmp_lg_u32 s75, 0
    s_cbranch_scc1 {l1}
    s_add_u32 s{sPoll}, s{sPoll}, 1
    s_cmp_gt_u32 s{sPoll}, {POLL_MAX}
    s_cbranch_scc1 {l1}
    s_sleep 1
    buffer_load_dword v{vt}, v{vt+1}, s[{srd}:{srd+3}], 0 offen sc1
    s_branch {l0}
    """)
    a.label(l1)
def dbg_flag_wait_arrive_b(a, cbase, vt):
    dbg_flag_wait_arrive(a, cbase, vt, 16)
def dbg_flag_wait_arrive(a, cbase, vt, srd=44):
    l0, l1 = a.newlabel("dbgp"), a.newlabel("dbgok")
    a(f"s_mov_b32 s{sPoll}, 0")
    a.label(l0)
    a(f"""
    s_waitcnt vmcnt(0)
    v_readfirstlane_b32 s75, v{vt}
    s_cmp_lg_u32 s75, 0
    s_cbranch_scc1 {l1}
    s_add_u32 s{sPoll}, s{sPoll}, 1
    s_cmp_gt_u32 s{sPoll}, {POLL_MAX}
    s_cbranch_scc1 {l1}
    s_sleep 1
    buffer_load_dword v{vt}, v{vt+1}, s[{srd}:{srd+3}], 0 offen sc1
    s_branch {l0}
    """)
    a.label(l1)
    a(f"s_and_b32 s75, s2, 7")
    a(f"s_add_u32 s75, s75, {cbase}")
    arrive(a, 75, vt)

class P0Q:
    vR, vC, vD, vA = 64, 84, 94, 104
    def __init__(self, a, L):
        self.a, self.L = a, L
    def issue(self):
        a, L = self.a, self.L
        vR, vC, vD, vA = self.vR, self.vC, self.vD, self.vA
        sXs, sWq = L.sA, L.sW
        sW1 = 16
        make_srd(a, sW1, pW1, pW1+1, 0, 640*3456)
        a(f"""
        v_lshrrev_b32 v2, 4, v1
        v_and_b32 v3, 15, v1
        s_lshl_b32 s40, s{L.sNt}, 4
        s_add_u32 s40, s40, s{L.sM0}
        s_lshl_b32 s41, s{L.sLw}, 2
        s_add_u32 s40, s40, s41
        s_cmp_lt_u32 s{L.sNt}, 8
        s_cselect_b32 s40, s40, 4096
        v_add_u32 v{vA}, s40, v2
        v_mul_u32_u24 v{vA+1}, 1280, v{vA}
        v_lshlrev_b32 v{vA+2}, 4, v3
        v_add_u32 v{vA+1}, v{vA+1}, v{vA+2}
        """)
        for j in range(5):
            a(f"buffer_load_dwordx4 {vr(vR+4*j,4)}, v{vA+1}, s[{sXs}:{sXs+3}], 0 offen offset:{256*j}")
        a(f"""
        s_lshr_b32 s41, s{L.sM0}, 7
        s_mul_i32 s42, s41, {40*3840}
        s_lshl_b32 s43, s{L.sLw}, 5
        s_add_u32 s43, s43, s{L.sN0}
        s_lshl_b32 s40, s43, 1
        s_add_u32 s42, s42, s40
        v_mul_u32_u24 v{vA+2}, 3840, v2
        v_lshlrev_b32 v{vA+3}, 2, v3
        v_add_u32 v{vA+2}, v{vA+2}, v{vA+3}
        """)
        for j in range(10):
            a(f"buffer_load_dword v{vC+j}, v{vA+2}, s[{sWq}:{sWq+3}], s42 offen")
            if j < 9: a(f"s_add_u32 s42, s42, {4*3840}")
        a(f"""
        s_mul_i32 s42, s41, {40*3456}
        s_add_u32 s42, s42, s40
        s_cmp_lt_u32 s{L.sNt}, 14
        s_cselect_b32 s42, s42, 0x7f000000
        v_mul_u32_u24 v{vA+4}, 3456, v2
        v_add_u32 v{vA+4}, v{vA+4}, v{vA+3}
        """)
        for j in range(10):
            a(f"buffer_load_dword v{vD+j}, v{vA+4}, s[{sW1}:{sW1+3}], s42 offen")
            if j < 9: a(f"s_add_u32 s42, s42, {4*3456}")
    def rows(self):
        a, L = self.a, self.L
        vR, vA = self.vR, self.vA
        S, Q, U = vA + 5, vA + 6, vA + 8
        for n in range(20):
            r = vR + n
            u = U + 2*(n & 1)
            a(f"v_lshlrev_b32 v{u}, 16, v{r}")
            a(f"v_and_b32 v{u+1}, 0xffff0000, v{r}")
            if n == 0:
                a(f"v_add_f32 v{S}, v{u}, v{u+1}")
                a(f"v_mul_f32 v{Q}, v{u}, v{u}")
            else:
                a(f"v_add_f32 v{S}, v{S}, v{u}")
                a(f"v_fmac_f32 v{Q}, v{u}, v{u}")
                a(f"v_add_f32 v{S}, v{S}, v{u+1}")
            a(f"v_fmac_f32 v{Q}, v{u+1}, v{u+1}")
        a("s_nop 1")
        for sh in (1, 2, 4, 8):
            a(f"v_add_f32_dpp v{S}, v{S}, v{S} row_shr:{sh} row_mask:0xf bank_mask:0xf bound_ctrl:0")
            a(f"v_add_f32_dpp v{Q}, v{Q}, v{Q} row_shr:{sh} row_mask:0xf bank_mask:0xf bound_ctrl:0")
            a("s_nop 0")
        a(f"""
        v_mul_f32 v{S}, {f32bits(1.0/640):#x}, v{S}
        v_mul_f32 v{Q}, {f32bits(1.0/640):#x}, v{Q}
        v_fma_f32 v{Q}, -v{S}, v{S}, v{Q}
        v_max_f32 v{Q}, 0, v{Q}
        v_add_f32 v{Q}, {f32bits(1e-5):#x}, v{Q}
        v_rsq_f32 v{Q}, v{Q}
        v_mov_b32 v{U}, v{S}
        v_lshlrev_b32 v{U+2}, 3, v{vA}
        v_mov_b32 v{U+3}, 0x7fffff00
        v_cmp_gt_u32 vcc, 2048, v{vA}
        v_mov_b32 v{U+1}, v{Q}
        v_cndmask_b32 v{U+2}, v{U+3}, v{U+2}, vcc
        s_mov_b32 s40, {WS_ST1}
        s_mov_b32 exec_lo, 0x80008000
        s_mov_b32 exec_hi, 0x80008000
        buffer_store_dwordx2 {vr(U,2)}, v{U+2}, s[{sWS}:{sWS+3}], s40 offen {SC}
        s_mov_b64 exec, -1
        """)
    def cols(self, which):
        a, L = self.a, self.L
        vA = self.vA
        regs, base, ncol, lim = (self.vC, WS_CS1, 1920, 15) if which == 0 else (self.vD, WS_CS2, 1792, 14)
        U = vA + 8
        A0, A1 = vA + 5, vA + 6
        for j in range(10):
            u = U + 2*(j & 1)
            if j == 0:
                a(f"v_lshlrev_b32 v{A0}, 16, v{regs}")
                a(f"v_and_b32 v{A1}, 0xffff0000, v{regs}")
            else:
                a(f"v_lshlrev_b32 v{u}, 16, v{regs+j}")
                a(f"v_and_b32 v{u+1}, 0xffff0000, v{regs+j}")
                a(f"v_add_f32 v{A0}, v{A0}, v{u}")
                a(f"v_add_f32 v{A1}, v{A1}, v{u+1}")
        a(f"""
        s_nop 0
        v_mov_b32 v{U}, v{A0}
        v_mov_b32 v{U+1}, v{A1}
        s_nop 1
        v_permlane16_swap_b32 v{A0}, v{U}
        v_permlane16_swap_b32 v{A1}, v{U+1}
        s_nop 1
        v_add_f32 v{A0}, v{A0}, v{U}
        v_add_f32 v{A1}, v{A1}, v{U+1}
        s_nop 0
        v_mov_b32 v{U}, v{A0}
        v_mov_b32 v{U+1}, v{A1}
        s_nop 1
        v_permlane32_swap_b32 v{A0}, v{U}
        v_permlane32_swap_b32 v{A1}, v{U+1}
        s_nop 1
        v_add_f32 v{U+4}, v{A0}, v{U}
        v_add_f32 v{U+5}, v{A1}, v{U+1}
        v_lshlrev_b32 v{U}, 3, v3
        s_mul_i32 s42, s41, {ncol*4}
        s_lshl_b32 s40, s43, 2
        s_add_u32 s42, s42, s40
        s_add_u32 s42, s42, {base}
        s_cmp_lt_u32 s{L.sNt}, {lim}
        s_cselect_b32 s42, s42, 0x7f000000
        s_mov_b64 exec, 0xffff
        buffer_store_dwordx2 {vr(U+4,2)}, v{U}, s[{sWS}:{sWS+3}], s42 offen {SC}
        s_mov_b64 exec, -1
        s_nop 1
        """)
def emit_p0r(a, L):
    sXs, vR, vA = 8, 32, 52
    make_srd(a, sXs, pX, pX+1, 0, 2048*1280)
    a(f"""
    v_lshrrev_b32 v2, 4, v1
    v_and_b32 v3, 15, v1
    s_lshl_b32 s40, s{L.sNt}, 4
    s_add_u32 s40, s40, s{L.sM0}
    s_lshl_b32 s41, s{sWV}, 2
    s_add_u32 s40, s40, s41
    s_cmp_lt_u32 s{L.sNt}, 8
    s_cselect_b32 s40, s40, 4096
    v_add_u32 v{vA}, s40, v2
    v_mul_u32_u24 v{vA+1}, 1280, v{vA}
    v_lshlrev_b32 v{vA+2}, 4, v3
    v_add_u32 v{vA+1}, v{vA+1}, v{vA+2}
    """)
    for j in range(5):
        a(f"buffer_load_dwordx4 {vr(vR+4*j,4)}, v{vA+1}, s[{sXs}:{sXs+3}], 0 offen offset:{256*j}")
def emit_p0r_finish(a, L, extra=0):
    vR, vA = 32, 52
    S, Q, S2, Q2, U = vA + 4, vA + 5, vA + 6, vA + 7, vA + 8
    for j in range(5):
        a(f"s_waitcnt vmcnt({4 - j + extra})")
        for n in range(4):
            r = vR + 4*j + n
            u = U + 2*(n & 1)
            a(f"v_lshlrev_b32 v{u}, 16, v{r}")
            a(f"v_and_b32 v{u+1}, 0xffff0000, v{r}")
            if j == 0 and n == 0:
                a(f"v_mov_b32 v{S}, v{u}")
                a(f"v_mul_f32 v{Q}, v{u}, v{u}")
                a(f"v_mov_b32 v{S2}, v{u+1}")
                a(f"v_mul_f32 v{Q2}, v{u+1}, v{u+1}")
            else:
                a(f"v_add_f32 v{S}, v{S}, v{u}")
                a(f"v_fmac_f32 v{Q}, v{u}, v{u}")
                a(f"v_add_f32 v{S2}, v{S2}, v{u+1}")
                a(f"v_fmac_f32 v{Q2}, v{u+1}, v{u+1}")
    a(f"v_add_f32 v{S}, v{S}, v{S2}")
    a(f"v_add_f32 v{Q}, v{Q}, v{Q2}")
    a("s_nop 1")
    for sh in (1, 2, 4, 8):
        a(f"v_add_f32_dpp v{S}, v{S}, v{S} row_shr:{sh} row_mask:0xf bank_mask:0xf bound_ctrl:0")
        a(f"v_add_f32_dpp v{Q}, v{Q}, v{Q} row_shr:{sh} row_mask:0xf bank_mask:0xf bound_ctrl:0")
        a("s_nop 0")
    a(f"""
    v_mul_f32 v{S}, {f32bits(1.0/640):#x}, v{S}
    v_mul_f32 v{Q}, {f32bits(1.0/640):#x}, v{Q}
    v_fma_f32 v{Q}, -v{S}, v{S}, v{Q}
    v_max_f32 v{Q}, 0, v{Q}
    v_add_f32 v{Q}, {f32bits(1e-5):#x}, v{Q}
    v_rsq_f32 v{Q}, v{Q}
    v_mov_b32 v{U}, v{S}
    v_lshlrev_b32 v{U+2}, 3, v{vA}
    v_mov_b32 v{U+3}, 0x7fffff00
    v_cmp_gt_u32 vcc, 2048, v{vA}
    v_mov_b32 v{U+1}, v{Q}
    v_cndmask_b32 v{U+2}, v{U+3}, v{U+2}, vcc
    s_mov_b32 s75, {WS_ST1}
    s_mov_b32 exec_lo, 0x80008000
    s_mov_b32 exec_hi, 0x80008000
    buffer_store_dwordx2 {vr(U,2)}, v{U+2}, s[{sWS}:{sWS+3}], s75 offen {SC}
    s_mov_b64 exec, -1
    """)
def p0r_arrive(a, L, vt):
    ok, skip = a.newlabel("fok"), a.newlabel("fsk")
    dbg_flag_wait(a, vt, landed=True)
    a(f"s_cmp_lt_u32 s{L.sNt}, 8")
    a(f"s_cbranch_scc0 {skip}")
    a(f"s_lshr_b32 s76, s{L.sM0}, 7")
    a(f"s_add_u32 s76, s76, {C_ST}")
    arrive(a, 76, vt - 2)
    a.label(skip)

def qkv_prefetch(a, L):
    make_srd(a, 12, pWQ, pWQ+1, 0, 640*3840)
    make_srd(a, 8, pX, pX+1, 0, 2048*1280)
    fl = E('QPF_FL', 'sc1')
    a(f"""
    s_lshr_b32 s40, s2, 3
    s_and_b32 s41, s2, 1
    v_and_b32 v2, 15, v1
    v_lshrrev_b32 v3, 4, v1
    v_lshlrev_b32 v2, 7, v2
    v_mul_u32_u24 v3, 3840, v3
    v_add_u32 v4, v2, v3
    s_mul_i32 s42, s40, {20*3840}
    s_lshl_b32 s43, s41, 11
    s_add_u32 s42, s42, s43
    s_mul_i32 s43, s{sWV}, {4*3840}
    s_add_u32 s42, s42, s43
    buffer_load_dword v162, v4, s[12:15], s42 offen {fl}
    """)
    l = a.newlabel("qpf")
    a(f"""
    s_cmp_eq_u32 s{sWV}, 0
    s_cbranch_scc0 {l}
    s_add_u32 s42, s42, {16*3840}
    buffer_load_dword v162, v4, s[12:15], s42 offen {fl}
    """)
    a.label(l)
    l = a.newlabel("qpf")
    a(f"""
    s_cmp_eq_u32 s{sWV}, 0
    s_cbranch_scc1 {l}
    s_and_b32 s41, s2, 7
    s_lshr_b32 s41, s41, 1
    s_lshl_b32 s41, s41, 5
    s_add_u32 s41, s41, s40
    s_mul_i32 s42, s41, 20480
    s_sub_u32 s43, s{sWV}, 1
    s_lshl_b32 s43, s43, 13
    s_add_u32 s42, s42, s43
    v_lshlrev_b32 v4, 7, v1
    buffer_load_dword v162, v4, s[8:11], s42 offen {fl}
    """)
    a.label(l)

def p0q_arrive(a, L, vt):
    ok = a.newlabel("fok")
    a(f"v_readfirstlane_b32 s75, v{vt}")
    a("s_cmp_lg_u32 s75, 0")
    a(f"s_cbranch_scc1 {ok}")
    dbg_flag_wait(a, vt)
    a.label(ok)
    a(f"""
    s_lshr_b32 s75, s{L.sM0}, 7
    s_add_u32 s75, s75, {C_ST}
    s_add_u32 s76, s{L.sNt}, {C_CS1}
    s_add_u32 s77, s{L.sNt}, {C_CS2}
    v_mov_b32 v{vt-1}, s75
    v_writelane_b32 v{vt-1}, s76, 1
    v_writelane_b32 v{vt-1}, s77, 2
    s_nop 0
    v_lshlrev_b32 v{vt-1}, 7, v{vt-1}
    v_add_u32 v{vt-1}, {WS_CNT}, v{vt-1}
    v_mov_b32 v{vt-2}, 1
    s_cmp_lt_u32 s{L.sNt}, 8
    s_cselect_b32 s75, 1, 0
    s_or_b32 s75, s75, 2
    s_cmp_lt_u32 s{L.sNt}, 14
    s_cselect_b32 s76, 4, 0
    s_or_b32 s75, s75, s76
    s_mov_b32 exec_lo, s75
    s_mov_b32 exec_hi, 0
    buffer_atomic_add v{vt-2}, v{vt-1}, s[{sWS}:{sWS+3}], 0 offen sc1
    s_mov_b64 exec, -1
    """)

def w2p_prefetch(a, j):
    a(f"""
    s_mul_i32 s75, s{sRk}, {SZ_W2P // 32}
    s_add_u32 s75, s75, {WS_W2P + j * 8192}
    v_lshlrev_b32 v61, 7, v1
    buffer_load_dword v60, v61, s[{sWS}:{sWS+3}], s75 offen sc1
    """)

class Repack:
    aB, vD, vT = 28, 28, 88
    sWo, sW2, sW1 = 12, 16, 40
    def __init__(self, a): self.a = a
    def issue(self):
        a = self.a
        aB, vD, T = self.aB, self.vD, self.vT
        make_srd(a, self.sWo, pWO, pWO+1, 0, 640*1280)
        make_srd(a, self.sW2, pW2, pW2+1, 0, 1728*1280)
        make_srd(a, self.sW1, pW1, pW1+1, 0, 640*3456)
        a(f"""
        s_mul_i32 s75, s2, 768
        s_lshl_b32 s76, s{sWV}, 6
        s_add_u32 s75, s75, s76
        v_add_u32 v{T}, s75, v1
        """)
        for r in range(3):
            g, it, sg, rho, c, row, nt, st_, x = T+1, T+2, T+3, T+4, T+5, T+6, T+7, T+8, T+9
            a(f"""
            v_add_u32 v{g}, {256*r}, v{T}
            s_mov_b32 s75, {(1 << 32) // 1280 + 1:#x}
            v_mul_hi_u32 v{it}, v{g}, s75
            v_mul_u32_u24 v{sg}, 1280, v{it}
            v_sub_u32 v{sg}, v{g}, v{sg}
            v_mul_u32_u24 v{rho}, 0xcccd, v{sg}
            v_lshrrev_b32 v{rho}, 19, v{rho}
            v_mul_u32_u24 v{c}, 10, v{rho}
            v_sub_u32 v{c}, v{sg}, v{c}
            v_and_b32 v{row}, 0x73, v{rho}
            v_and_b32 v{x}, 4, v{rho}
            v_lshlrev_b32 v{x}, 1, v{x}
            v_or_b32 v{row}, v{row}, v{x}
            v_and_b32 v{x}, 8, v{rho}
            v_lshrrev_b32 v{x}, 1, v{x}
            v_or_b32 v{row}, v{row}, v{x}
            v_lshlrev_b32 v{vD+r}, 4, v{g}
            v_cmp_gt_u32 vcc, 40, v{it}
            v_subrev_u32 v{x}, 40, v{it}
            s_nop 0
            v_cndmask_b32 v{x}, v{x}, v{it}, vcc
            v_mul_u32_u24 v{nt}, 0x4925, v{x}
            v_mul_u32_u24 v{st_}, 0xcccd, v{x}
            v_cndmask_b32 v{nt}, v{nt}, v{st_}, vcc
            v_lshrrev_b32 v{nt}, 18, v{nt}
            v_mov_b32 v{st_}, 14
            v_cndmask_b32 v{st_}, v{st_}, 5, vcc
            v_mul_u32_u24 v{st_}, v{st_}, v{nt}
            v_sub_u32 v{st_}, v{x}, v{st_}
            v_lshlrev_b32 v{st_}, 7, v{st_}
            v_add_u32 v{row}, v{row}, v{st_}
            v_mul_u32_u24 v{row}, 1280, v{row}
            v_mul_u32_u24 v{nt}, 160, v{nt}
            v_lshlrev_b32 v{c}, 4, v{c}
            v_add3_u32 v{row}, v{row}, v{nt}, v{c}
            v_mov_b32 v{x}, 0x7fffff00
            v_cndmask_b32 v{nt}, v{x}, v{row}, vcc
            v_cndmask_b32 v{row}, v{row}, v{x}, vcc
            v_cmp_gt_u32 vcc, 152, v{it}
            s_nop 1
            v_cndmask_b32 v{vD+r}, v{x}, v{vD+r}, vcc
            """)
            la, lb = a.newlabel("rpa"), a.newlabel("rpb")
            a(f"""
            v_cmp_gt_u32 vcc, 40, v{it}
            s_nop 4
            s_mov_b64 s[76:77], vcc
            s_mov_b64 exec, vcc
            s_cbranch_execz {la}
            buffer_load_dwordx4 {ar(aB+4*r,4)}, v{nt}, s[{self.sWo}:{self.sWo+3}], 0 offen
            {la}:
            s_not_b64 exec, s[76:77]
            s_cbranch_execz {lb}
            buffer_load_dwordx4 {ar(aB+4*r,4)}, v{row}, s[{self.sW2}:{self.sW2+3}], 0 offen
            {lb}:
            s_mov_b64 exec, -1
            """)
        a(f"""
        s_mul_i32 s75, s2, 8640
        s_mul_i32 s76, s{sWV}, 2176
        s_add_u32 s75, s75, s76
        v_lshlrev_b32 v{T}, 7, v1
        s_mov_b64 exec, 0x1ffff
        buffer_load_dword v31, v{T}, s[{self.sW1}:{self.sW1+3}], s75 offen sc1
        s_mov_b64 exec, -1
        """)
    def store(self, wait_after=True, pre="s_waitcnt vmcnt(0)"):
        a = self.a
        a(pre)
        a(f"s_mov_b32 s75, {WS_WOP}")
        for r in range(3):
            a(f"buffer_store_dwordx4 {ar(self.aB+4*r,4)}, v{self.vD+r}, s[{sWS}:{sWS+3}], s75 offen {SC}")
        if wait_after: a("s_waitcnt vmcnt(0)")
        else: a("s_nop 1")

class CoreL:
    sA, sW, sO = 8, 12, 16
    sM0, sN0, sT0, sT1, sT2, sT3 = 21, 22, 23, 24, 25, 26
    sLw, sSlot, sAoff, sWoff, sLds = 20, 28, 29, 30, 31
    sWm, sWn, sNt, sSeq, sSeqW = 32, 33, 34, 35, 36
    vAe, vAo, vWo = 4, 5, 6
    NST = 10
    def __init__(self, a, mode, tag):
        self.a, self.mode, self.tag = a, mode, tag
        self.qkv = mode == 'qkv'
        self.LDW = 3840 if self.qkv else 3456
    def map_tiles(self, idle_label):
        a, c = self.a, self
        if not c.qkv:
            a(f"""
            s_and_b32 s{c.sT3}, s{sRk}, 1
            s_lshl_b32 s{c.sM0}, s{sX}, 1
            s_add_u32 s{c.sM0}, s{c.sM0}, s{c.sT3}
            s_lshl_b32 s{c.sM0}, s{c.sM0}, 7
            s_lshr_b32 s{c.sNt}, s{sRk}, 1
            s_cmp_ge_u32 s{c.sNt}, 14
            s_cbranch_scc1 {idle_label}
            s_lshl_b32 s{c.sN0}, s{c.sNt}, 7
            s_mul_i32 s{c.sSeq}, s{c.sNt}, 3
            s_mul_i32 s{c.sT0}, s{c.sT3}, 5
            s_add_u32 s{c.sSeq}, s{c.sSeq}, s{c.sT0}
            s_mul_i32 s{c.sT0}, s{c.sSeq}, 0xcccd
            s_lshr_b32 s{c.sT0}, s{c.sT0}, 19
            s_mul_i32 s{c.sT0}, s{c.sT0}, 10
            s_sub_u32 s{c.sSeq}, s{c.sSeq}, s{c.sT0}
            """)
            if E('NOROTL'): a(f"s_mov_b32 s{c.sSeq}, 0")
            return
        NT_PER = 8 if c.qkv else 7
        NT_TOT = 15 if c.qkv else 14
        a(f"""
        s_and_b32 s{c.sT0}, s2, 7
        s_lshr_b32 s{c.sT1}, s2, 3
        s_lshr_b32 s{c.sT2}, s{c.sT0}, 1
        s_lshl_b32 s{c.sT2}, s{c.sT2}, 2
        s_and_b32 s{c.sT3}, s{c.sT1}, 3
        s_add_u32 s{c.sM0}, s{c.sT2}, s{c.sT3}
        s_lshl_b32 s{c.sM0}, s{c.sM0}, 7
        s_and_b32 s{c.sT0}, s{c.sT0}, 1
        s_mul_i32 s{c.sT0}, s{c.sT0}, {NT_PER}
        s_lshr_b32 s{c.sT1}, s{c.sT1}, 2
        s_add_u32 s{c.sNt}, s{c.sT0}, s{c.sT1}
        s_cmp_ge_u32 s{c.sT1}, {NT_PER}
        s_cbranch_scc1 {idle_label}
        s_cmp_ge_u32 s{c.sNt}, {NT_TOT}
        s_cbranch_scc1 {idle_label}
        s_lshl_b32 s{c.sN0}, s{c.sNt}, 7
        s_mul_i32 s{c.sSeq}, s{c.sT3}, 3
        s_add_u32 s{c.sSeq}, s{c.sSeq}, s{c.sT1}
        s_cmp_ge_u32 s{c.sSeq}, 10
        s_cselect_b32 s{c.sT0}, 10, 0
        s_sub_u32 s{c.sSeq}, s{c.sSeq}, s{c.sT0}
        """)
        if E('NOROTL'): a(f"s_mov_b32 s{c.sSeq}, 0")
    def loader_setup(self):
        a, c = self.a, self
        a(f"s_sub_u32 s{c.sLw}, s{sWV}, 4")
        if c.qkv:
            make_srd(a, c.sA, pX, pX+1, 0, 2048*1280)
            a(f"""
            v_lshrrev_b32 v2, 3, v1
            v_mul_u32_u24 v2, 1280, v2
            v_lshrrev_b32 v3, 4, v1
            v_and_b32 v7, 7, v1
            v_xor_b32 v3, v3, v7
            v_lshlrev_b32 v3, 4, v3
            v_add_u32 v{c.vAe}, v2, v3
            v_xor_b32 v{c.vAo}, 64, v{c.vAe}
            s_lshl_b32 s{c.sT0}, s{c.sLw}, 5
            s_add_u32 s{c.sT0}, s{c.sT0}, s{c.sM0}
            s_mul_i32 s{c.sAoff}, s{c.sT0}, 1280
            """)
            c.A_SSTEP = 128
        else:
            make_srd(a, c.sA, pWS, pWS+1, WS_H, SZ_ACT)
            a(f"""
            v_lshlrev_b32 v{c.vAe}, 4, v1
            v_add_u32 v{c.vAo}, 1024, v{c.vAe}
            s_lshl_b32 s{c.sT0}, s{c.sLw}, 16
            s_lshl_b32 s{c.sT1}, s{c.sM0}, 4
            s_add_u32 s{c.sAoff}, s{c.sT0}, s{c.sT1}
            """)
            c.A_SSTEP = 8 * 32768
        pw = pWQ if c.qkv else pW1
        make_srd(a, c.sW, pw, pw+1, 0, 640 * c.LDW)
        a(f"""
        v_lshrrev_b32 v2, 4, v1
        v_mul_u32_u24 v3, {c.LDW}, v2
        v_lshlrev_b32 v2, 2, v2
        v_and_b32 v7, 15, v1
        v_xor_b32 v2, v2, v7
        v_lshlrev_b32 v2, 4, v2
        v_add_u32 v{c.vWo}, v2, v3
        s_lshl_b32 s{c.sT0}, s{c.sLw}, 4
        s_mul_i32 s{c.sT0}, s{c.sT0}, {c.LDW}
        s_lshl_b32 s{c.sT1}, s{c.sN0}, 1
        s_add_u32 s{c.sWoff}, s{c.sT0}, s{c.sT1}
        s_lshl_b32 s{c.sLds}, s{c.sLw}, 12
        s_mul_i32 s{c.sT0}, s{c.sSeq}, {c.A_SSTEP}
        s_add_u32 s{c.sAoff}, s{c.sAoff}, s{c.sT0}
        s_mul_i32 s{c.sT0}, s{c.sSeq}, {64 * c.LDW}
        s_add_u32 s{c.sWoff}, s{c.sWoff}, s{c.sT0}
        s_mov_b32 s{c.sSeqW}, s{c.sSeq}
        """)
    def issue_A(self, seq):
        a, c = self.a, self
        slot = (seq % 4) * 32768
        for j in range(4):
            a(f"s_add_u32 m0, s{c.sLds}, {slot}" if j == 0 else "s_add_u32 m0, m0, 1024")
            if c.qkv:
                a(f"s_mov_b32 s{c.sT0}, s{c.sAoff}" if j == 0 else f"s_add_u32 s{c.sT0}, s{c.sT0}, {8*1280}")
            else:
                if j == 0: a(f"s_mov_b32 s{c.sT0}, s{c.sAoff}")
                elif j == 2: a(f"s_add_u32 s{c.sT0}, s{c.sT0}, 32768")
                else: a("s_nop 0")
            a(f"buffer_load_dwordx4 v{c.vAe if j % 2 == 0 else c.vAo}, s[{c.sA}:{c.sA+3}], s{c.sT0} offen {E('QNT_A','') if c.qkv else ''} lds")
        a(f"""
        s_add_u32 s{c.sSeq}, s{c.sSeq}, 1
        s_cmp_eq_u32 s{c.sSeq}, {c.NST}
        s_cselect_b32 s{c.sT0}, {c.NST * c.A_SSTEP}, 0
        s_cselect_b32 s{c.sSeq}, 0, s{c.sSeq}
        s_add_u32 s{c.sAoff}, s{c.sAoff}, {c.A_SSTEP}
        s_sub_u32 s{c.sAoff}, s{c.sAoff}, s{c.sT0}
        """)
    def issue_W(self, seq):
        a, c = self.a, self
        slot = (seq % 4) * 32768 + 16384
        for j in range(4):
            a(f"s_add_u32 m0, s{c.sLds}, {slot}" if j == 0 else "s_add_u32 m0, m0, 1024")
            a(f"s_mov_b32 s{c.sT0}, s{c.sWoff}" if j == 0 else f"s_add_u32 s{c.sT0}, s{c.sT0}, {4 * c.LDW}")
            a(f"buffer_load_dwordx4 v{c.vWo}, s[{c.sW}:{c.sW+3}], s{c.sT0} offen {E('QNT_W','') if c.qkv else ''} lds")
        a(f"""
        s_add_u32 s{c.sSeqW}, s{c.sSeqW}, 1
        s_cmp_eq_u32 s{c.sSeqW}, {c.NST}
        s_cselect_b32 s{c.sT0}, {c.NST * 64 * c.LDW}, 0
        s_cselect_b32 s{c.sSeqW}, 0, s{c.sSeqW}
        s_add_u32 s{c.sWoff}, s{c.sWoff}, {64 * c.LDW}
        s_sub_u32 s{c.sWoff}, s{c.sWoff}, s{c.sT0}
        """)
    vLs = 16
    vSx, vSq, vCs, vU = 48, 56, 64, 72
    vLs = 16
    def lstats_init(self): pass
    def lst_poll_issue(self):
        a, c = self.a, self
        v = c.vLs
        a(f"""
        s_add_u32 s{c.sT0}, s{c.sNt}, {C_CS1 if c.qkv else C_CS2}
        s_lshr_b32 s{c.sT1}, s{c.sM0}, 7
        s_add_u32 s{c.sT1}, s{c.sT1}, {C_ST}
        v_mov_b32 v{v}, s{c.sT0}
        v_writelane_b32 v{v}, s{c.sT1}, 1
        v_mov_b32 v{v+1}, 16
        v_writelane_b32 v{v+1}, {8 if c.qkv else 0}, 1
        v_lshlrev_b32 v{v}, 7, v{v}
        v_add_u32 v{v}, {WS_CNT}, v{v}
        s_mov_b64 exec, 3
        buffer_load_dword v{v+2}, v{v}, s[{sWS}:{sWS+3}], 0 offen sc1
        s_mov_b64 exec, -1
        """)
    def lst_check_issue(self, q):
        a, c = self.a, self
        v = c.vLs
        ok = a.newlabel("lok")
        a(f"""
        s_waitcnt vmcnt({q.need('poll')})
        s_mov_b64 exec, 3
        v_cmp_gt_u32 vcc, v{v+1}, v{v+2}
        s_nop 4
        s_cmp_eq_u64 vcc, 0
        s_cbranch_scc1 {ok}
        """)
        poll(a, v, v + 1, 2, v + 2)
        a.label(ok)
        a("s_mov_b64 exec, -1")
        ncol = 1920 if c.qkv else 1792
        d = v + 8
        a(f"""
        v_and_b32 v{v+4}, 31, v1
        v_lshlrev_b32 v{v+5}, 2, v{v+4}
        v_lshlrev_b32 v{v+4}, 3, v{v+4}
        s_lshl_b32 s{c.sT0}, s{c.sLw}, 5
        s_add_u32 s{c.sT1}, s{c.sT0}, s{c.sN0}
        s_lshl_b32 s{c.sT1}, s{c.sT1}, 2
        s_add_u32 s{c.sT1}, s{c.sT1}, {WS_CS1 if c.qkv else WS_CS2}
        s_mov_b32 exec_hi, 0
        """)
        for j in range(16):
            a(f"buffer_load_dword v{d+j}, v{v+5}, s[{sWS}:{sWS+3}], s{c.sT1} offen")
            if j < 15: a(f"s_add_u32 s{c.sT1}, s{c.sT1}, {ncol*4}")
        a(f"""
        s_mov_b32 exec_lo, 0
        s_mov_b32 exec_hi, -1
        s_add_u32 s{c.sT1}, s{c.sT0}, s{c.sM0}
        s_lshl_b32 s{c.sT1}, s{c.sT1}, 3
        s_add_u32 s{c.sT1}, s{c.sT1}, {WS_ST1 if c.qkv else WS_ST2}
        """)
        npart = 1 if c.qkv else 8
        for j in range(npart):
            a(f"buffer_load_dwordx2 {vr(d+16+2*j,2)}, v{v+4}, s[{sWS}:{sWS+3}], s{c.sT1} offen")
            if j < npart - 1: a(f"s_add_u32 s{c.sT1}, s{c.sT1}, {2048*8}")
        a("s_mov_b64 exec, -1")
        q.push("stats", 16 + npart)
    def lst_finish(self, q):
        a, c = self.a, self
        v = c.vLs
        d = v + 8
        a(f"s_waitcnt vmcnt({q.need('stats')})")
        for j in range(1, 16):
            a(f"v_add_f32 v{d}, v{d}, v{d+j}")
        S, Q = d + 16, d + 17
        if not c.qkv:
            for j in range(1, 8):
                a(f"v_add_f32 v{S}, v{S}, v{S+2*j}")
                a(f"v_add_f32 v{Q}, v{Q}, v{Q+2*j}")
            a(f"""
            v_mul_f32 v{S}, {f32bits(1.0/640):#x}, v{S}
            v_mul_f32 v{Q}, {f32bits(1.0/640):#x}, v{Q}
            v_fma_f32 v{Q}, -v{S}, v{S}, v{Q}
            v_max_f32 v{Q}, 0, v{Q}
            v_add_f32 v{Q}, {f32bits(1e-5):#x}, v{Q}
            v_rsq_f32 v{Q}, v{Q}
            """)
        a(f"""
        s_lshl_b32 s{c.sT0}, s{c.sLw}, 7
        s_add_u32 s{c.sT0}, s{c.sT0}, {STAT}
        v_add_u32 v{v+5}, s{c.sT0}, v{v+5}
        s_mov_b32 exec_hi, 0
        ds_write_b32 v{v+5}, v{d} offset:1024
        s_mov_b32 exec_lo, 0
        s_mov_b32 exec_hi, -1
        ds_write_b32 v{v+5}, v{S}
        ds_write_b32 v{v+5}, v{Q} offset:512
        s_mov_b64 exec, -1
        s_waitcnt lgkmcnt(0)
        """)
    def tq_poll_issue(self):
        a, c = self.a, self
        v = c.vLs
        a(f"""
        s_lshr_b32 s{c.sT1}, s{c.sM0}, 7
        s_add_u32 s{c.sT1}, s{c.sT1}, {C_ST}
        s_lshl_b32 s{c.sT1}, s{c.sT1}, 7
        s_add_u32 s{c.sT1}, s{c.sT1}, {WS_CNT}
        v_mov_b32 v{v}, s{c.sT1}
        v_mov_b32 v{v+1}, 8
        s_mov_b64 exec, 1
        buffer_load_dword v{v+2}, v{v}, s[{sWS}:{sWS+3}], 0 offen sc1
        s_mov_b64 exec, -1
        """)
    def tq_check_issue(self, q):
        a, c = self.a, self
        v = c.vLs
        ok = a.newlabel("lok")
        a(f"""
        s_waitcnt vmcnt({q.need('poll')})
        v_readfirstlane_b32 s{c.sT0}, v{v+2}
        s_cmp_ge_u32 s{c.sT0}, 8
        s_cbranch_scc1 {ok}
        """)
        poll(a, v, v + 1, 1, v + 2)
        a.label(ok)
        a(f"""
        v_and_b32 v{v+4}, 31, v1
        v_lshlrev_b32 v{v+5}, 2, v{v+4}
        v_lshlrev_b32 v{v+4}, 3, v{v+4}
        s_lshl_b32 s{c.sT0}, s{c.sLw}, 5
        s_add_u32 s{c.sT1}, s{c.sT0}, s{c.sM0}
        s_lshl_b32 s{c.sT1}, s{c.sT1}, 3
        s_add_u32 s{c.sT1}, s{c.sT1}, {WS_ST1}
        buffer_load_dwordx2 {vr(v+8,2)}, v{v+4}, s[{sWS}:{sWS+3}], s{c.sT1} offen
        """)
        q.push("stats", 1)
    def tq_finish(self, q):
        a, c = self.a, self
        v = c.vLs
        a(f"""
        s_waitcnt vmcnt({q.need('stats')})
        s_lshl_b32 s{c.sT0}, s{c.sLw}, 7
        s_add_u32 s{c.sT0}, s{c.sT0}, {STAT}
        v_add_u32 v{v+5}, s{c.sT0}, v{v+5}
        ds_write_b32 v{v+5}, v{v+8}
        ds_write_b32 v{v+5}, v{v+9} offset:512
        """)
    def tok_issue(self, q):
        a, c = self.a, self
        v = c.vLs
        d = v + 8
        a(f"""
        v_and_b32 v{v+4}, 31, v1
        v_lshlrev_b32 v{v+5}, 2, v{v+4}
        v_lshlrev_b32 v{v+4}, 3, v{v+4}
        s_lshl_b32 s{c.sT0}, s{c.sLw}, 5
        s_add_u32 s{c.sT1}, s{c.sT0}, s{c.sM0}
        s_lshl_b32 s{c.sT1}, s{c.sT1}, 3
        s_add_u32 s{c.sT1}, s{c.sT1}, {WS_ST2}
        s_mov_b32 exec_hi, 0
        """)
        for j in range(8):
            a(f"buffer_load_dwordx2 {vr(d+2*j,2)}, v{v+4}, s[{sWS}:{sWS+3}], s{c.sT1} offen")
            if j < 7: a(f"s_add_u32 s{c.sT1}, s{c.sT1}, {2048*8}")
        a("s_mov_b32 exec_hi, -1")
        q.push("stats", 8)
    def tok_finish(self, q):
        a, c = self.a, self
        v = c.vLs
        S, Q = v + 8, v + 9
        a(f"s_waitcnt vmcnt({q.need('stats')})")
        for j in range(1, 8):
            a(f"v_add_f32 v{S}, v{S}, v{S+2*j}")
            a(f"v_add_f32 v{Q}, v{Q}, v{Q+2*j}")
        a(f"""
        v_mul_f32 v{S}, {f32bits(1.0/640):#x}, v{S}
        v_mul_f32 v{Q}, {f32bits(1.0/640):#x}, v{Q}
        v_fma_f32 v{Q}, -v{S}, v{S}, v{Q}
        v_max_f32 v{Q}, 0, v{Q}
        v_add_f32 v{Q}, {f32bits(1e-5):#x}, v{Q}
        v_rsq_f32 v{Q}, v{Q}
        s_lshl_b32 s{c.sT0}, s{c.sLw}, 7
        s_add_u32 s{c.sT0}, s{c.sT0}, {STAT}
        v_add_u32 v{v+5}, s{c.sT0}, v{v+5}
        s_mov_b32 exec_hi, 0
        ds_write_b32 v{v+5}, v{S}
        ds_write_b32 v{v+5}, v{Q} offset:512
        s_mov_b32 exec_hi, -1
        """)
    def loader_main(self, q, p0=None):
        a, c = self.a, self
        for s_ in range(c.NST):
            tags = [f'A{s_}', f'W{s_}']
            a(f"s_waitcnt vmcnt({q.need(*tags)}) lgkmcnt(0)")
            if getattr(c, 'ldstamps', False) and s_ in (0, 1, 2): st(a, 4 + s_)
            a("s_barrier")
            stx(a, f"{c.tag}l{s_}")
            if c.qkv:
                vd = 70
                if s_ == 1: wave_only(a, 4, lambda: a(f"buffer_load_dword v{vd}, v{vd+1}, s[44:47], 0 offen sc1"))
                if s_ == 4: wave_only(a, 4, lambda: p0r_arrive(a, c, vd))
                def rpa():
                    a("s_and_b32 s76, s2, 7")
                    a(f"s_add_u32 s76, s76, {C_RPS}")
                    arrive(a, 76, vd - 2)
                if s_ == 8: wave_only(a, 4, rpa)
                if s_ == 3: wave_only(a, 7, lambda: reg_step1(a, vd))
                if s_ == 5: wave_only(a, 7, lambda: reg_step2(a, vd))
                if s_ == 7: wave_only(a, 7, lambda: reg_step3(a, vd))
            if s_ + PD < c.NST and not (E('X_NODMA') and c.qkv):
                c.issue_A(s_ + PD); q.push(f"A{s_+PD}", 4)
                c.issue_W(s_ + PD); q.push(f"W{s_+PD}", 4)
            if not c.qkv:
                if s_ == 2: c.tok_issue(q)
                if s_ == 5: c.tok_finish(q)
                if E('PFW2') and 0 <= s_ < 9:
                    wave_only(a, 4 + (s_ % 4), lambda: w2p_prefetch(a, s_))
            else:
                if s_ == 8 and getattr(c, 'hook7', None): c.hook7()
                if s_ == 6:
                    c.tq_poll_issue(); q.push("poll", 1)
                if s_ == 7: c.tq_check_issue(q)
                if s_ == 9: c.tq_finish(q)

    vAd, vX, vW, vAcc, vT, vSt = 24, 32, 32, 64, 128, 144
    def compute_setup(self):
        a, c = self.a, self
        NXA = 8 if c.qkv else 2
        c.NXA = NXA
        c.vXa = 4
        c.vWa = c.vXa + 2 * NXA
        vXa, vWa, vT = c.vXa, c.vWa, c.vT
        t0, t1 = vT, vT + 1
        a(f"""
        s_lshr_b32 s{c.sWm}, s{sWV}, 1
        s_and_b32 s{c.sWn}, s{sWV}, 1
        v_and_b32 v2, 31, v1
        v_lshrrev_b32 v3, 5, v1
        """)
        if c.qkv:
            a(f"""
            v_lshrrev_b32 v{t0}, 1, v1
            v_and_b32 v{t0}, 7, v{t0}
            v_xor_b32 v{t0}, v{t0}, v3
            v_lshlrev_b32 v{t0}, 4, v{t0}
            v_lshlrev_b32 v{t1}, 7, v2
            v_add_u32 v{t0}, v{t0}, v{t1}
            s_lshl_b32 s{c.sT0}, s{c.sWm}, 13
            s_lshl_b32 s{c.sT1}, s{c.sWn}, 12
            s_add_u32 s{c.sT0}, s{c.sT0}, s{c.sT1}
            v_add_u32 v{t0}, s{c.sT0}, v{t0}
            """)
            for s in range(4):
                a(f"v_xor_b32 v{vXa + s}, {32 * s}, v{t0}")
                a(f"v_xor_b32 v{vXa + 4 + s}, 4096, v{vXa + s}")
        else:
            a(f"""
            v_lshlrev_b32 v{t0}, 11, v3
            v_lshlrev_b32 v{t1}, 4, v2
            v_add_u32 v{t0}, v{t0}, v{t1}
            s_lshl_b32 s{c.sT0}, s{c.sWm}, 10
            v_add_u32 v{vXa}, s{c.sT0}, v{t0}
            v_add_u32 v{vXa + 1}, 512, v{vXa}
            """)
        for i in range(NXA):
            a(f"v_add_u32 v{vXa + NXA + i}, 65536, v{vXa + i}")
        a(f"""
        v_lshrrev_b32 v{t0}, 2, v1
        v_and_b32 v{t0}, 3, v{t0}
        v_lshlrev_b32 v{t1}, 3, v3
        v_add_u32 v{t1}, v{t1}, v{t0}
        v_lshlrev_b32 v{t1}, 8, v{t1}
        v_lshlrev_b32 v{t0}, 6, v{t0}
        v_add_u32 v{t1}, v{t1}, v{t0}
        v_lshrrev_b32 v{t0}, 4, v1
        v_and_b32 v{t0}, 1, v{t0}
        v_lshlrev_b32 v{t0}, 5, v{t0}
        v_add_u32 v{t1}, v{t1}, v{t0}
        v_lshrrev_b32 v{t0}, 1, v1
        v_and_b32 v{t0}, 1, v{t0}
        v_lshlrev_b32 v{t0}, 4, v{t0}
        v_add_u32 v{t1}, v{t1}, v{t0}
        v_and_b32 v{t0}, 1, v1
        v_lshlrev_b32 v{t0}, 3, v{t0}
        v_add_u32 v{t1}, v{t1}, v{t0}
        v_add_u32 v{t1}, 16384, v{t1}
        s_lshl_b32 s{c.sT0}, s{c.sWn}, 7
        s_lshl_b32 s{c.sT1}, s{c.sWm}, 6
        s_add_u32 s{c.sT0}, s{c.sT0}, s{c.sT1}
        v_xor_b32 v{vWa}, s{c.sT0}, v{t1}
        v_xor_b32 v{vWa + 1}, 64, v{vWa}
        v_add_u32 v{vWa + 2}, 65536, v{vWa}
        v_add_u32 v{vWa + 3}, 65536, v{vWa + 1}
        """)
    def addr_qk(self):
        a, c = self.a, self
        vT, vAd = c.vT, c.vAd
        t0, t1 = vT, vT + 1
        a(f"""
        s_cmp_lt_u32 s{c.sNt}, 5
        s_cselect_b32 s{c.sT0}, 0, 640
        s_sub_u32 s{c.sT2}, s{c.sN0}, s{c.sT0}
        s_lshl_b32 s{c.sT1}, s{c.sWn}, 6
        s_add_u32 s{c.sT2}, s{c.sT2}, s{c.sT1}
        s_lshr_b32 s{c.sT2}, s{c.sT2}, 3
        v_add_u32 v{t0}, s{c.sT2}, v3
        v_lshlrev_b32 v{vT+4}, 4, v2
        """)
        for ft in range(2):
            for j in range(2):
                d = vAd + ft*2 + j
                a(f"""
                s_xor_b32 s{c.sT3}, s{c.sWm}, {ft}
                s_lshl_b32 s{c.sT3}, s{c.sT3}, 2
                s_add_u32 s{c.sT3}, s{c.sT3}, {2*j}
                v_add_u32 v{t1}, s{c.sT3}, v{t0}
                v_mul_u32_u24 v{vT+2}, 0xcccd, v{t1}
                v_lshrrev_b32 v{vT+2}, 18, v{vT+2}
                v_mul_u32_u24 v{vT+3}, 5, v{vT+2}
                v_sub_u32 v{vT+3}, v{t1}, v{vT+3}
                v_lshlrev_b32 v{vT+3}, 9, v{vT+3}
                v_mul_u32_u24 v{vT+2}, 0x28000, v{vT+2}
                v_add3_u32 v{d}, v{vT+2}, v{vT+3}, v{vT+4}
                """)
        a(f"""
        s_lshr_b32 s{c.sT0}, s{c.sM0}, 5
        s_lshl_b32 s{c.sT1}, s{c.sWm}, 1
        s_add_u32 s{c.sT0}, s{c.sT0}, s{c.sT1}
        s_add_u32 s{c.sT1}, s{c.sT0}, s{c.sWn}
        s_mul_i32 s40, s{c.sT1}, 2560
        s_xor_b32 s{c.sT1}, s{c.sWn}, 1
        s_add_u32 s{c.sT1}, s{c.sT0}, s{c.sT1}
        s_mul_i32 s41, s{c.sT1}, 2560
        s_cmp_lt_u32 s{c.sNt}, 5
        s_cselect_b32 s{c.sT0}, {WS_Q}, {WS_K}
        s_add_u32 s{c.sO}, s{pWS}, s{c.sT0}
        s_addc_u32 s{c.sO+1}, s{pWS+1}, 0
        s_and_b32 s{c.sO+1}, s{c.sO+1}, 0xffff
        s_mov_b32 s{c.sO+2}, {SZ_QK}
        s_mov_b32 s{c.sO+3}, 0x20000
        """)
    def addr_f(self):
        a, c = self.a, self
        vT, vAd = c.vT, c.vAd
        t0, t1 = vT, vT + 1
        a(f"""
        s_lshl_b32 s{c.sT1}, s{c.sWn}, 6
        s_add_u32 s{c.sT2}, s{c.sN0}, s{c.sT1}
        s_lshr_b32 s{c.sT2}, s{c.sT2}, 3
        v_add_u32 v{t0}, s{c.sT2}, v3
        v_lshlrev_b32 v{t0}, 15, v{t0}
        v_lshlrev_b32 v{t1}, 4, v2
        v_add_u32 v{t0}, v{t0}, v{t1}
        """)
        for ft in range(2):
            for j in range(2):
                a(f"s_xor_b32 s{c.sT3}, s{c.sWm}, {ft}")
                a(f"s_lshl_b32 s{c.sT3}, s{c.sT3}, 2")
                a(f"s_add_u32 s{c.sT3}, s{c.sT3}, {2*j}")
                a(f"s_lshl_b32 s{c.sT3}, s{c.sT3}, 15")
                a(f"v_add_u32 v{vAd + ft*2 + j}, s{c.sT3}, v{t0}")
        a(f"""
        s_lshl_b32 s{c.sT1}, s{c.sWm}, 6
        s_add_u32 s{c.sT0}, s{c.sM0}, s{c.sT1}
        s_lshl_b32 s40, s{c.sT0}, 4
        s_add_u32 s41, s40, 512
        """)
        make_srd(a, c.sO, pWS, pWS+1, WS_F, SZ_F)
    def addr_v(self):
        a, c = self.a, self
        vT, vAd = c.vT, c.vAd
        t0, t1 = vT, vT + 1
        for ft in range(2):
            a(f"""
            s_lshl_b32 s{c.sT1}, s{c.sWn}, 6
            s_add_u32 s{c.sT0}, s{c.sN0}, s{c.sT1}
            s_xor_b32 s{c.sT1}, s{c.sWm}, {ft}
            s_lshl_b32 s{c.sT1}, s{c.sT1}, 5
            s_add_u32 s{c.sT0}, s{c.sT0}, s{c.sT1}
            s_sub_u32 s{c.sT0}, s{c.sT0}, 1280
            v_add_u32 v{t0}, s{c.sT0}, v2
            v_mul_u32_u24 v{t1}, 0xcccd, v{t0}
            v_lshrrev_b32 v{t1}, 20, v{t1}
            v_mul_u32_u24 v{vT+2}, 20, v{t1}
            v_sub_u32 v{t0}, v{t0}, v{vT+2}
            v_lshlrev_b32 v{t0}, 4, v{t0}
            v_mul_u32_u24 v{t1}, 0x14000, v{t1}
            v_add_u32 v{t0}, v{t0}, v{t1}
            v_mul_u32_u24 v{t1}, 320, v3
            v_add_u32 v{vAd+ft}, v{t0}, v{t1}
            """)
        a(f"""
        s_lshl_b32 s{c.sT1}, s{c.sWm}, 6
        s_add_u32 s{c.sT0}, s{c.sM0}, s{c.sT1}
        s_lshr_b32 s{c.sT0}, s{c.sT0}, 4
        s_lshl_b32 s{c.sT1}, s{c.sWn}, 1
        s_add_u32 s{c.sT1}, s{c.sT1}, s{c.sT0}
        s_mul_i32 s40, s{c.sT1}, 640
        s_add_u32 s41, s40, 640
        s_xor_b32 s{c.sT1}, s{c.sWn}, 1
        s_lshl_b32 s{c.sT1}, s{c.sT1}, 1
        s_add_u32 s{c.sT1}, s{c.sT1}, s{c.sT0}
        s_mul_i32 s42, s{c.sT1}, 640
        s_add_u32 s43, s42, 640
        """)
        make_srd(a, c.sO, pWS, pWS+1, WS_V, SZ_QKV)
    def stats_poll_issue(self):
        a, c = self.a, self
        vS = c.vSt
        a(f"""
        v_lshlrev_b32 v{vS+30}, 7, v1
        v_add_u32 v{vS+30}, {WS_CNT + (C_P0 if c.qkv else C_W1)*128}, v{vS+30}
        s_mov_b64 exec, 0xff
        buffer_load_dword v{vS+29}, v{vS+30}, s[{sWS}:{sWS+3}], 0 offen sc1
        s_mov_b64 exec, -1
        """)
    def stats_poll_check(self):
        a, c = self.a, self
        vS = c.vSt
        ok = a.newlabel("stok")
        a(f"""
        s_waitcnt vmcnt(0)
        s_mov_b64 exec, 0xff
        v_cmp_gt_u32 vcc, 128, v{vS+29}
        s_nop 4
        s_cmp_eq_u64 vcc, 0
        s_cbranch_scc1 {ok}
        v_mov_b32 v{vS+28}, 128
        """)
        poll(a, vS + 30, vS + 28, 8, vS + 29)
        a.label(ok)
        a("s_mov_b64 exec, -1")
        a("s_nop 3")
    def stats_issue(self):
        a, c = self.a, self
        vS = c.vSt
        a(f"""
        v_lshlrev_b32 v{vS+31}, 2, v2
        v_lshlrev_b32 v{vS+30}, 3, v2
        s_lshl_b32 s{c.sT0}, s{sWV}, 5
        s_add_u32 s{c.sT1}, s{c.sT0}, s{c.sM0}
        s_lshl_b32 s{c.sT1}, s{c.sT1}, 3
        s_add_u32 s{c.sT1}, s{c.sT1}, {WS_ST2}
        """)
        for j in range(8):
            a(f"buffer_load_dwordx2 {vr(vS+8+2*j,2)}, v{vS+30}, s[{sWS}:{sWS+3}], s{c.sT1} offen")
            if j < 7: a(f"s_add_u32 s{c.sT1}, s{c.sT1}, {2048*8}")
    def stats_finish(self):
        a, c = self.a, self
        vS = c.vSt
        a("s_waitcnt vmcnt(0)")
        S, Q = vS + 8, vS + 9
        for j in range(1, 8):
            a(f"v_add_f32 v{S}, v{S}, v{S+2*j}")
            a(f"v_add_f32 v{Q}, v{Q}, v{Q+2*j}")
        a(f"""
        v_mul_f32 v{S}, {f32bits(1.0/640):#x}, v{S}
        v_mul_f32 v{Q}, {f32bits(1.0/640):#x}, v{Q}
        v_fma_f32 v{Q}, -v{S}, v{S}, v{Q}
        v_max_f32 v{Q}, 0, v{Q}
        v_add_f32 v{Q}, {f32bits(1e-5):#x}, v{Q}
        v_rsq_f32 v{Q}, v{Q}
        s_lshl_b32 s{c.sT0}, s{sWV}, 7
        s_add_u32 s{c.sT0}, s{c.sT0}, {STAT}
        v_add_u32 v{vS+31}, s{c.sT0}, v{vS+31}
        ds_write_b32 v{vS+31}, v{S}
        ds_write_b32 v{vS+31}, v{Q} offset:512
        """)
    aX = 4
    def read_list(self, i):
        c = self
        st_, step, buf = i // 4, i % 4, i % 3
        slot = st_ % 4
        win, base = slot >> 1, (slot & 1) * 32768
        L = []
        for lt in range(2):
            if c.qkv:
                L.append(f"ds_read_b128 {ar(c.aX + buf*8 + lt*4, 4)}, v{c.vXa + win*8 + lt*4 + step} offset:{base}")
            else:
                L.append(f"ds_read_b128 {ar(c.aX + buf*8 + lt*4, 4)}, v{c.vXa + win*2 + lt} offset:{base + step*4096}")
        for lf in range(2):
            for h2 in range(2):
                L.append(f"ds_read_b64_tr_b16 {vr(c.vW + buf*8 + lf*4 + h2*2, 2)}, v{c.vWa + win*2 + lf} offset:{base + step*4096 + h2*1024}")
        return L
    def reads(self, i):
        for r in self.read_list(i): self.a(r)
    def mfma(self, i, k, orientY):
        a, c = self.a, self
        buf = i % 3
        lf, lt = k >> 1, k & 1
        acc = c.vAcc + (lf*2 + lt) * 16
        xa, wa = ar(c.aX + buf*8 + lt*4, 4), vr(c.vW + buf*8 + lf*4, 4)
        cc = "0" if i == 0 else vr(acc, 16)
        if orientY: a(f"v_mfma_f32_32x32x16_bf16 {vr(acc,16)}, {wa}, {xa}, {cc}")
        else: a(f"v_mfma_f32_32x32x16_bf16 {vr(acc,16)}, {xa}, {wa}, {cc}")
    def mainloop(self, orientY, stamp0=None, tag='q'):
        a, c = self.a, self
        vS = c.vSt
        CS = vS
        UU = c.vT
        a(f"v_mov_b32 v{CS}, 0")
        a(f"v_mov_b32 v{CS+1}, 0")
        a("s_barrier")
        if stamp0 is not None: st(a, stamp0)
        stx(a, tag + '_s0')
        c.reads(0)
        c.reads(1)
        for i in range(40):
            buf = i % 3
            Wl = c.vW + buf*8
            ops = []
            for r in range(4):
                u = UU + 2*(r & 1)
                ops += [f"v_lshlrev_b32 v{u}, 16, v{Wl+r}", f"v_and_b32 v{u+1}, 0xffff0000, v{Wl+r}",
                        f"v_add_f32 v{CS}, v{CS}, v{u}", f"v_add_f32 v{CS+1}, v{CS+1}, v{u+1}"]
            if E('X_NOVALU'): ops = []
            rl = c.read_list(i + 2) if i + 2 < 40 else []
            if i == 4: stx(a, tag + '_s1')
            if i == 20: stx(a, tag + '_s5')
            a(f"s_waitcnt lgkmcnt({6 if i + 1 < 40 else 0})")
            c.mfma(i, 0, orientY)
            if i + 2 < 40 and (i + 2) % 4 == 0:
                if c.qkv and i == 6: c.rp.store(wait_after=False, pre="s_waitcnt vmcnt(1)")
                if c.qkv and i == 14: a("s_waitcnt vmcnt(3)")
                if c.qkv and i == 30: a("s_waitcnt vmcnt(0)")
                a("s_barrier")
            for o in rl[0:2] + ops[0:3]: a(o)
            c.mfma(i, 1, orientY)
            for o in rl[2:4] + ops[3:6]: a(o)
            c.mfma(i, 2, orientY)
            for o in rl[4:6] + ops[6:10]: a(o)
            c.mfma(i, 3, orientY)
            for o in ops[10:16]: a(o)
        U = vS + 14
        a(f"""
        v_add_f32 v{CS}, v{CS}, v{CS+1}
        s_nop 0
        v_mov_b32 v{CS+1}, v{CS}
        s_nop 1
        v_permlane32_swap_b32 v{CS}, v{CS+1}
        s_nop 1
        v_add_f32 v{CS}, v{CS}, v{CS+1}
        """)
        a(f"""
        s_lshl_b32 s{c.sT0}, s{c.sWn}, 8
        s_lshl_b32 s{c.sT1}, s{c.sWm}, 7
        s_add_u32 s{c.sT0}, s{c.sT0}, s{c.sT1}
        s_add_u32 s{c.sT0}, s{c.sT0}, {STAT + 1024}
        v_lshlrev_b32 v{U}, 2, v2
        v_add_u32 v{U+1}, s{c.sT0}, v{U}
        ds_write_b32 v{U+1}, v{CS}
        """)
        a("s_waitcnt lgkmcnt(0)")
    def dbg_issue(self):
        a, c = self.a, self
        make_srd(a, 44, pDBG, pDBG+1, 0, 256)
        a(f"v_lshlrev_b32 v{c.vSt+27}, 2, v1")
        a("s_mov_b64 exec, 0x1ff")
        a(f"buffer_load_dword v{c.vSt+26}, v{c.vSt+27}, s[44:47], 0 offen sc1")
        a("s_mov_b64 exec, -1")
        a("s_nop 1")
    def epilogue_Y(self, kind):
        a, c = self.a, self
        vT, vAcc, vAd = c.vT, c.vAcc, c.vAd
        vM, vR, vC = vT, vT + 2, 32
        for lt in range(2):
            a(f"""
            s_lshl_b32 s{c.sT1}, s{c.sWm}, 8
            s_add_u32 s{c.sT0}, s{c.sT1}, {STAT + (0 if c.qkv else lt*128)}
            s_xor_b32 s{c.sT1}, s{c.sWn}, {lt}
            s_lshl_b32 s{c.sT1}, s{c.sT1}, {7 if c.qkv else 31}
            s_add_u32 s{c.sT0}, s{c.sT0}, {'s%d' % c.sT1 if c.qkv else 0}
            v_lshlrev_b32 v{vT+4}, 2, v2
            v_add_u32 v{vT+4}, s{c.sT0}, v{vT+4}
            ds_read_b32 v{vM + lt}, v{vT+4}
            ds_read_b32 v{vR + lt}, v{vT+4} offset:512
            """)
        for lf in range(2):
            a(f"""
            s_lshl_b32 s{c.sT1}, s{c.sWn}, 8
            s_add_u32 s{c.sT0}, s{c.sT1}, {STAT + 1024}
            s_xor_b32 s{c.sT1}, s{c.sWm}, {lf}
            s_lshl_b32 s{c.sT1}, s{c.sT1}, 7
            s_add_u32 s{c.sT0}, s{c.sT0}, s{c.sT1}
            v_lshlrev_b32 v{vT+4}, 4, v3
            v_add_u32 v{vT+4}, s{c.sT0}, v{vT+4}
            """)
            for q in range(4):
                a(f"ds_read_b128 {vr(vC + lf*16 + q*4, 4)}, v{vT+4} offset:{q*32}")
        a("s_waitcnt lgkmcnt(0)")
        if kind == 'qk':
            a(f"""
            s_cmp_lt_u32 s{c.sNt}, 5
            s_cselect_b32 s{c.sT0}, {f32bits(QSCALE):#x}, 1.0
            v_mul_f32 v{vR}, s{c.sT0}, v{vR}
            v_mul_f32 v{vR+1}, s{c.sT0}, v{vR+1}
            """)
        vP = vT + 8
        n = 0
        for lf in range(2):
            for lt in range(2):
                acc = vAcc + (lf*2 + lt) * 16
                for r in range(16):
                    a(f"v_fma_f32 v{acc + r}, -v{vM + lt}, v{vC + lf*16 + r}, v{acc + r}")
                for r in range(16):
                    a(f"v_mul_f32 v{acc + r}, v{acc + r}, v{vR + lt}")
                if kind == 'ffn1':
                    for r in range(16):
                        a(f"v_max_f32 v{acc + r}, 0, v{acc + r}")
                for j in range(2):
                    p = vP + (n & 1) * 4
                    n += 1
                    q0 = acc + j*8
                    a(f"v_cvt_pk_bf16_f32 v{p}, v{q0}, v{q0+1}")
                    a(f"v_cvt_pk_bf16_f32 v{p+1}, v{q0+2}, v{q0+3}")
                    a(f"v_cvt_pk_bf16_f32 v{p+2}, v{q0+4}, v{q0+5}")
                    a(f"v_cvt_pk_bf16_f32 v{p+3}, v{q0+6}, v{q0+7}")
                    a("s_nop 1")
                    a(f"v_permlane32_swap_b32 v{p}, v{p+2}")
                    a(f"v_permlane32_swap_b32 v{p+1}, v{p+3}")
                    ins = f"buffer_store_dwordx4 {vr(p,4)}, v{vAd + lf*2 + j}, s[{c.sO}:{c.sO+3}], s{40 + lt} offen @SC"
                    if kind == 'ffn1': dual(a, [ins])
                    else: a(ins.replace("@SC", SC))
    def epilogue_X(self):
        a, c = self.a, self
        vT, vAcc, vAd = c.vT, c.vAcc, c.vAd
        vC, vM, vR = vT, 32, 48
        for lf in range(2):
            a(f"""
            s_lshl_b32 s{c.sT1}, s{c.sWn}, 8
            s_add_u32 s{c.sT0}, s{c.sT1}, {STAT + 1024}
            s_xor_b32 s{c.sT1}, s{c.sWm}, {lf}
            s_lshl_b32 s{c.sT1}, s{c.sT1}, 7
            s_add_u32 s{c.sT0}, s{c.sT0}, s{c.sT1}
            v_lshlrev_b32 v{vT+4}, 2, v2
            v_add_u32 v{vT+4}, s{c.sT0}, v{vT+4}
            ds_read_b32 v{vC + lf}, v{vT+4}
            """)
        vP = vT + 8
        n = 0
        for lt in range(2):
            a(f"""
            s_lshl_b32 s{c.sT1}, s{c.sWm}, 8
            s_add_u32 s{c.sT0}, s{c.sT1}, {STAT}
            s_xor_b32 s{c.sT1}, s{c.sWn}, {lt}
            s_lshl_b32 s{c.sT1}, s{c.sT1}, 7
            s_add_u32 s{c.sT0}, s{c.sT0}, s{c.sT1}
            v_lshlrev_b32 v{vT+4}, 4, v3
            v_add_u32 v{vT+4}, s{c.sT0}, v{vT+4}
            """)
            for q in range(4):
                a(f"ds_read_b128 {vr(vM + q*4, 4)}, v{vT+4} offset:{q*32}")
                a(f"ds_read_b128 {vr(vR + q*4, 4)}, v{vT+4} offset:{512 + q*32}")
            a("s_waitcnt lgkmcnt(0)")
            for lf in range(2):
                acc = vAcc + (lf*2 + lt) * 16
                for r in range(16):
                    a(f"v_fma_f32 v{acc + r}, -v{vM + r}, v{vC + lf}, v{acc + r}")
                for r in range(16):
                    a(f"v_mul_f32 v{acc + r}, v{acc + r}, v{vR + r}")
                for g in range(2):
                    p = vP + (n & 1) * 4
                    n += 1
                    for r in range(4):
                        a(f"v_cvt_pk_bf16_f32 v{p + r}, v{acc + g*8 + 2*r}, v{acc + g*8 + 2*r + 1}")
                    a(f"buffer_store_dwordx4 {vr(p,4)}, v{vAd + lf}, s[{c.sO}:{c.sO+3}], s{40 + lt*2 + g} offen {SC}")

STG = 36864
class CoreS:
    sA, sO, sR = 8, 16, 40
    sM0, sN0, sT0, sT1, sT2, sNt = 21, 22, 23, 24, 25, 26
    sLw, sAoff, sWoff, sLdsA, sLdsW, sSeq, sSeqW = 20, 29, 30, 31, 32, 33, 34
    vA = 4
    vXa2, vWa2 = 116, 117
    def __init__(self, a, mode):
        self.a, self.mode = a, mode
        self.op = mode == 'oproj'
        self.NST = 5 if self.op else 14
    def map_tiles(self):
        a, c = self.a, self
        NST = c.NST
        a(f"""
        s_and_b32 s{c.sT0}, s{sRk}, 3
        s_lshl_b32 s{c.sM0}, s{sX}, 2
        s_add_u32 s{c.sM0}, s{c.sM0}, s{c.sT0}
        s_lshl_b32 s{c.sM0}, s{c.sM0}, 6
        s_lshr_b32 s{c.sNt}, s{sRk}, 2
        s_mul_i32 s{c.sN0}, s{c.sNt}, 80
        s_mul_i32 s{c.sSeq}, s{c.sT0}, {1 if c.op else 3}
        s_mul_i32 s{c.sT1}, s{c.sNt}, {1 if c.op else 2}
        s_add_u32 s{c.sSeq}, s{c.sSeq}, s{c.sT1}
        s_cmp_ge_u32 s{c.sSeq}, {NST}
        s_cselect_b32 s{c.sT1}, {NST}, 0
        s_sub_u32 s{c.sSeq}, s{c.sSeq}, s{c.sT1}
        s_cmp_ge_u32 s{c.sSeq}, {NST}
        s_cselect_b32 s{c.sT1}, {NST}, 0
        s_sub_u32 s{c.sSeq}, s{c.sSeq}, s{c.sT1}
        """)
        if E('NOROTS'): a(f"s_mov_b32 s{c.sSeq}, 0")
    def loader_setup(self):
        a, c = self.a, self
        if c.op: make_srd(a, c.sA, pWS, pWS+1, WS_O, SZ_ACT)
        else: make_srd(a, c.sA, pWS, pWS+1, WS_F, SZ_F)
        a(f"""
        s_sub_u32 s{c.sLw}, s{sWV}, 4
        v_lshlrev_b32 v{c.vA}, 4, v1
        s_lshl_b32 s{c.sT0}, s{c.sLw}, 17
        s_lshl_b32 s{c.sT1}, s{c.sM0}, 4
        s_add_u32 s{c.sAoff}, s{c.sT0}, s{c.sT1}
        s_mul_i32 s{c.sT0}, s{c.sLw}, 5120
        s_mul_i32 s{c.sT1}, s{c.sNt}, {c.NST * 20480}
        s_add_u32 s{c.sWoff}, s{c.sT0}, s{c.sT1}
        s_add_u32 s{c.sWoff}, s{c.sWoff}, {WS_WOP if c.op else WS_W2P}
        s_lshl_b32 s{c.sLdsA}, s{c.sLw}, 12
        s_add_u32 s{c.sLdsW}, s{c.sT0}, 16384
        s_mul_i32 s{c.sT0}, s{c.sSeq}, {16 * 32768}
        s_add_u32 s{c.sAoff}, s{c.sAoff}, s{c.sT0}
        s_mul_i32 s{c.sT0}, s{c.sSeq}, 20480
        s_add_u32 s{c.sWoff}, s{c.sWoff}, s{c.sT0}
        s_mov_b32 s{c.sSeqW}, s{c.sSeq}
        """)
    def issue_A(self, seq):
        a, c = self.a, self
        slot = (seq % 4) * STG
        for j in range(4):
            a(f"s_add_u32 m0, s{c.sLdsA}, {slot}" if j == 0 else "s_add_u32 m0, m0, 1024")
            a(f"s_mov_b32 s{c.sT0}, s{c.sAoff}" if j == 0 else f"s_add_u32 s{c.sT0}, s{c.sT0}, 32768")
            a(f"buffer_load_dwordx4 v{c.vA}, s[{c.sA}:{c.sA+3}], s{c.sT0} offen lds")
        a(f"""
        s_add_u32 s{c.sSeq}, s{c.sSeq}, 1
        s_cmp_eq_u32 s{c.sSeq}, {c.NST}
        s_cselect_b32 s{c.sT0}, {c.NST * 16 * 32768}, 0
        s_cselect_b32 s{c.sSeq}, 0, s{c.sSeq}
        s_add_u32 s{c.sAoff}, s{c.sAoff}, {16 * 32768}
        s_sub_u32 s{c.sAoff}, s{c.sAoff}, s{c.sT0}
        """)
    def issue_W(self, seq):
        a, c = self.a, self
        slot = (seq % 4) * STG
        a(f"s_add_u32 m0, s{c.sLdsW}, {slot}")
        a(f"s_add_u32 s{c.sT0}, s{c.sWoff}, 4096")
        for j in range(4):
            a(f"buffer_load_dwordx4 v{c.vA}, s[{sWS}:{sWS+3}], s{c.sWoff} offen offset:{j*1024} lds")
        a("s_add_u32 m0, m0, 4096")
        a(f"s_add_u32 s{c.sSeqW}, s{c.sSeqW}, 1")
        a(f"buffer_load_dwordx4 v{c.vA}, s[{sWS}:{sWS+3}], s{c.sT0} offen lds")
        a(f"""
        s_cmp_eq_u32 s{c.sSeqW}, {c.NST}
        s_cselect_b32 s{c.sT0}, {c.NST * 20480}, 0
        s_cselect_b32 s{c.sSeqW}, 0, s{c.sSeqW}
        s_add_u32 s{c.sWoff}, s{c.sWoff}, 20480
        s_sub_u32 s{c.sWoff}, s{c.sWoff}, s{c.sT0}
        """)
    def loader_main(self, q):
        a, c = self.a, self
        for s_ in range(c.NST):
            a(f"s_waitcnt vmcnt({q.need(f'A{s_}', f'W{s_}')})")
            a("s_barrier")
            if s_ + PD < c.NST:
                c.issue_A(s_ + PD); q.push(f"A{s_+PD}", 4)
                c.issue_W(s_ + PD); q.push(f"W{s_+PD}", 5)
    vXb, vWb, vXa, vWa, vX, vW, vRes, vT = 4, 5, 6, 7, 8, 20, 80, 90
    def compute_setup(self):
        a, c = self.a, self
        vT = c.vT
        a(f"""
        v_and_b32 v2, 15, v1
        v_lshrrev_b32 v3, 4, v1
        s_lshl_b32 s{c.sT0}, s{sWV}, 4
        s_add_u32 s{c.sT0}, s{c.sT0}, s{c.sM0}
        v_add_u32 v{vT}, s{c.sT0}, v2
        v_mul_u32_u24 v{vT+1}, 1280, v{vT}
        v_lshlrev_b32 v{vT+3}, 3, v3
        v_add_u32 v{vT+1}, v{vT+1}, v{vT+3}
        s_lshl_b32 s{c.sT0}, s{c.sN0}, 1
        v_add_u32 v{vT+1}, s{c.sT0}, v{vT+1}
        v_lshrrev_b32 v{vT+3}, 1, v3
        v_lshlrev_b32 v{vT+3}, 15, v{vT+3}
        v_lshlrev_b32 v{vT+2}, 4, v{vT}
        v_add_u32 v{vT+2}, v{vT+2}, v{vT+3}
        v_and_b32 v{vT+3}, 1, v3
        v_lshlrev_b32 v{vT+3}, 3, v{vT+3}
        v_add_u32 v{vT+2}, v{vT+2}, v{vT+3}
        s_lshl_b32 s{c.sT0}, s{c.sN0}, 12
        v_add_u32 v{vT+2}, s{c.sT0}, v{vT+2}
        s_lshl_b32 s{c.sT0}, s{sWV}, 8
        v_lshlrev_b32 v{c.vXb}, 10, v3
        v_lshlrev_b32 v{vT+3}, 4, v2
        v_add_u32 v{c.vXb}, v{c.vXb}, v{vT+3}
        v_add_u32 v{c.vXb}, s{c.sT0}, v{c.vXb}
        v_lshrrev_b32 v{vT+3}, 1, v3
        v_lshlrev_b32 v{vT+3}, 4, v{vT+3}
        v_and_b32 v{vT+4}, 1, v3
        v_lshlrev_b32 v{vT+4}, 2, v{vT+4}
        v_add_u32 v{vT+3}, v{vT+3}, v{vT+4}
        v_lshrrev_b32 v{vT+4}, 2, v2
        v_add_u32 v{vT+3}, v{vT+3}, v{vT+4}
        v_mul_u32_u24 v{vT+3}, 160, v{vT+3}
        v_and_b32 v{vT+4}, 3, v1
        v_lshlrev_b32 v{vT+4}, 3, v{vT+4}
        v_add_u32 v{vT+3}, v{vT+3}, v{vT+4}
        v_add_u32 v{c.vWb}, 16384, v{vT+3}
        """)
        if c.op:
            make_srd(a, c.sR, pX, pX+1, 0, 2048 * 1280)
            make_srd(a, c.sO, pWS, pWS+1, WS_H, SZ_ACT)
        else:
            make_srd(a, c.sR, pWS, pWS+1, WS_H, SZ_ACT)
            make_srd(a, c.sO, pOUT, pOUT+1, 0, 2048 * 1280)
    def pretouch(self):
        a, c = self.a, self
        vT = c.vT
        if not c.op or not E('PRET'): return
        for T in range(5):
            a(f"s_mov_b32 s{c.sT0}, {T * 65536}")
            a(f"buffer_load_dword v{vT+5}, v{vT+2}, s[{c.sO}:{c.sO+3}], s{c.sT0} offen sc1")
        a(f"""
        s_lshl_b32 s{c.sT0}, s{c.sNt}, 14
        s_add_u32 s{c.sT0}, s{c.sT0}, {WS_ST2}
        v_lshlrev_b32 v{vT+4}, 3, v{vT}
        buffer_load_dword v{vT+5}, v{vT+4}, s[{sWS}:{sWS+3}], s{c.sT0} offen sc1
        """)
    def residual_loads(self):
        a, c = self.a, self
        vT = c.vT
        for T in range(5):
            if c.op:
                a(f"buffer_load_dwordx2 {vr(c.vRes + 2*T, 2)}, v{vT+1}, s[{c.sR}:{c.sR+3}], 0 offen offset:{32*T}")
            else:
                a(f"s_mov_b32 s{c.sT0}, {T * 65536}")
                a(f"buffer_load_dwordx2 {vr(c.vRes + 2*T, 2)}, v{vT+2}, s[{c.sR}:{c.sR+3}], s{c.sT0} offen")
    def mainloop(self, stamp0=None, tag=''):
        a, c = self.a, self
        N = c.NST * 4
        def reads(i):
            st_, k, buf = i // 4, i % 4, i % 3
            xa, wa = (c.vXa, c.vWa) if st_ % 2 == 0 else (c.vXa2, c.vWa2)
            a(f"ds_read_b128 {vr(c.vX + buf*4, 4)}, v{xa} offset:{k*4096}")
            for T in range(5):
                for h2 in range(2):
                    a(f"ds_read_b64_tr_b16 {vr(c.vW + buf*20 + T*4 + h2*2, 2)}, v{wa} offset:{k*5120 + h2*1280 + T*32}")
        def setaddr(st_):
            slot = (st_ % 4) * STG
            xa, wa = (c.vXa, c.vWa) if st_ % 2 == 0 else (c.vXa2, c.vWa2)
            a(f"v_add_u32 v{xa}, {slot}, v{c.vXb}")
            a(f"v_add_u32 v{wa}, {slot}, v{c.vWb}")
        a("s_barrier")
        stx(a, tag + '_s0')
        setaddr(0)
        reads(0)
        reads(1)
        for i in range(N):
            buf = i % 3
            a(f"s_waitcnt lgkmcnt({11 if i + 1 < N else 0})")
            for T in range(5):
                acc = 96 + T*4
                cc = "0" if i == 0 else vr(acc, 4)
                a(f"v_mfma_f32_16x16x32_bf16 {vr(acc,4)}, {vr(c.vW + buf*20 + T*4, 4)}, {vr(c.vX + buf*4, 4)}, {cc}")
                if T == 0 and i + 2 < N:
                    if (i + 2) % 4 == 0:
                        a("s_barrier")
                        if (i + 2) // 4 == 1: stx(a, tag + '_s1')
                        if (i + 2) // 4 == 4: stx(a, tag + '_s4')
                        setaddr((i + 2) // 4)
                    reads(i + 2)
        a("s_nop 7")
    def reduce(self):
        pass
    def epilogue(self):
        a, c = self.a, self
        vT, vRes = c.vT, c.vRes
        a("s_waitcnt vmcnt(0)")
        for T in range(5):
            rr = vRes + 2*T
            a(f"""
            v_lshlrev_b32 v8, 16, v{rr}
            v_and_b32 v9, 0xffff0000, v{rr}
            v_lshlrev_b32 v10, 16, v{rr+1}
            v_and_b32 v11, 0xffff0000, v{rr+1}
            """)
            for r in range(4):
                d = 96 + T*4 + r
                a(f"v_add_f32 v{d}, v{d}, v{8+r}")
            d = 96 + T*4
            a(f"v_cvt_pk_bf16_f32 v{12 + 2*T}, v{d}, v{d+1}")
            a(f"v_cvt_pk_bf16_f32 v{13 + 2*T}, v{d+2}, v{d+3}")
            if c.op:
                a(f"s_mov_b32 s{c.sT0}, {T * 65536}")
                dual(a, [f"buffer_store_dwordx2 {vr(12 + 2*T, 2)}, v{vT+2}, s[{c.sO}:{c.sO+3}], s{c.sT0} offen @SC"])
            else:
                a(f"buffer_store_dwordx2 {vr(12 + 2*T, 2)}, v{vT+1}, s[{c.sO}:{c.sO+3}], 0 offen offset:{32*T} {E('OUTFL','')}")
        if c.op:
            for T in range(5):
                for d in range(2):
                    r = 12 + 2*T + d
                    a(f"v_lshlrev_b32 v8, 16, v{r}")
                    a(f"v_and_b32 v9, 0xffff0000, v{r}")
                    if T == 0 and d == 0:
                        a("v_add_f32 v30, v8, v9")
                        a("v_mul_f32 v31, v8, v8")
                    else:
                        a("v_add_f32 v30, v30, v8")
                        a("v_add_f32 v30, v30, v9")
                        a("v_fmac_f32 v31, v8, v8")
                    a("v_fmac_f32 v31, v9, v9")
            a(f"""
            v_mov_b32 v32, v30
            v_mov_b32 v33, v31
            s_nop 1
            v_permlane32_swap_b32 v30, v32
            v_permlane32_swap_b32 v31, v33
            s_nop 1
            v_add_f32 v30, v30, v32
            v_add_f32 v31, v31, v33
            s_nop 0
            v_mov_b32 v32, v30
            v_mov_b32 v33, v31
            s_nop 1
            v_permlane16_swap_b32 v30, v32
            v_permlane16_swap_b32 v31, v33
            s_nop 1
            v_add_f32 v30, v30, v32
            v_add_f32 v31, v31, v33
            s_lshl_b32 s{c.sT0}, s{c.sNt}, 14
            s_add_u32 s{c.sT0}, s{c.sT0}, {WS_ST2}
            v_lshlrev_b32 v32, 3, v{vT}
            s_mov_b64 exec, 0xffff
            """)
            if not E('NOST2'): dual(a, [f"buffer_store_dwordx2 v[30:31], v32, s[{sWS}:{sWS+3}], s{c.sT0} offen @SC"])
            a("s_mov_b64 exec, -1")

KT = 1536
SLOT = 8 * KT + 16384
VOFF = 8 * KT
NSLOT = 5
FLAG = NSLOT * SLOT

def emit_attention(a, after_stores):
    name = "att"
    sK, sV, sQ, sO = 8, 12, 16, 20
    sHead, sQt, sT0, sT1, sT2 = 25, 26, 27, 28, 29
    sChunk, sSlotN, sPass, sKoff, sVoff, sKh = 30, 31, 32, 33, 34, 35
    sVmask = 38
    sSlotW, sE, sQg, sQb = 40, 41, 42, 43
    sW1s = 44
    vL16, vVoff = 2, 3
    vA3 = [[4, 5, 6], [7, 8, 9], [172, 173, 174]]
    vQ, vQr, vNC, vS, vP, vKb, vKr, vV, vO, vT = 10, 18, 22, 54, 86, 94, 102, 110, 126, 158
    lane_id(a, 0)
    lane_id(a, 1)
    a(f"""
    v_mov_b32 v4, {ROLE}
    ds_read_b96 v[6:8], v4
    s_waitcnt lgkmcnt(0)
    v_readfirstlane_b32 s{sX}, v6
    v_readfirstlane_b32 s{sRk}, v7
    v_readfirstlane_b32 s{sLoc}, v8
    s_and_b32 s{sT0}, s2, 7
    s_lshr_b32 s{sT1}, s2, 3
    s_cmp_eq_u32 s{sLoc}, 0
    s_cselect_b32 s{sX}, s{sT0}, s{sX}
    s_cselect_b32 s{sRk}, s{sT1}, s{sRk}
    s_mov_b32 s{sHead}, s{sRk}
    s_mov_b32 s{sQb}, s{sX}
    s_lshl_b32 s{sQt}, s{sQb}, 3
    s_mov_b32 s{sVmask}, 0x000fffff
    s_mov_b32 s{sVmask+1}, 0x000fffff
    s_mov_b32 s{sPass}, 0
    s_and_b32 s{sE}, s{sHead}, 1
    s_lshr_b32 s{sKh}, s{sWV}, 2
    s_and_b32 s{sQg}, s{sWV}, 3
    """)
    a(f"""
    v_lshlrev_b32 v{vL16}, 4, v0
    v_and_b32 v{vT}, 31, v0
    v_lshrrev_b32 v{vT+1}, 5, v0
    v_mul_u32_u24 v{vVoff}, 320, v{vT+1}
    v_lshlrev_b32 v{vT+2}, 4, v{vT}
    v_add_u32 v{vVoff}, v{vVoff}, v{vT+2}
    """)
    make_srd(a, sK, pWS, pWS+1, WS_K, SZ_QK)
    make_srd(a, sV, pWS, pWS+1, WS_V, SZ_QKV)
    make_srd(a, sQ, pWS, pWS+1, WS_Q, SZ_QK)
    make_srd(a, sO, pWS, pWS+1, WS_O, SZ_ACT)
    make_srd(a, sW1s, pW1, pW1+1, 0, 640*3456)
    a(f"""
    v_mov_b32 v{vT+4}, 0
    v_mov_b32 v{vT+3}, 0x3f803f80
    v_cmp_eq_u32 vcc, 20, v{vT}
    s_lshl_b32 s{sT0}, s{sWV}, 11
    s_add_u32 s{sT0}, s{sT0}, {VOFF}
    v_cndmask_b32 v{vT+4}, v{vT+4}, v{vT+3}, vcc
    v_add_u32 v{vT+3}, s{sT0}, v{vL16}
    v_mov_b32 v{vT+5}, v{vT+4}
    v_mov_b32 v{vT+6}, v{vT+4}
    v_mov_b32 v{vT+7}, v{vT+4}
    s_not_b64 exec, s[{sVmask}:{sVmask+1}]
    """)
    base = 0
    for sl in range(NSLOT):
        for j in range(2):
            off = sl * SLOT + j * 1024
            if off - base >= 65536 - 1024:
                a(f"v_add_u32 v{vT+3}, {sl*SLOT - base}, v{vT+3}")
                base = sl * SLOT
            a(f"ds_write_b128 v{vT+3}, {vr(vT+4,4)} offset:{off - base}")
    a(f"""
    s_mov_b64 exec, -1
    v_mov_b32 v{vT+3}, {FLAG}
    v_mov_b32 v{vT+4}, 0
    ds_write_b32 v{vT+3}, v{vT+4}
    """)
    def reinit():
        a(f"""
        s_lshl_b32 s{sT0}, s{sE}, 9
        s_mul_i32 s{sT1}, s{sKh}, {4*KT}
        s_add_u32 s{sT0}, s{sT0}, s{sT1}
        v_add_u32 v{vA3[0][0]}, s{sT0}, v{vL16}
        s_sub_u32 s{sT0}, 1, s{sE}
        s_lshl_b32 s{sT0}, s{sT0}, 10
        s_lshl_b32 s{sT2}, s{sE}, 3
        s_add_u32 s{sT0}, s{sT0}, s{sT2}
        s_add_u32 s{sT0}, s{sT0}, s{sT1}
        v_and_b32 v{vT}, 31, v0
        v_lshlrev_b32 v{vA3[0][1]}, 4, v{vT}
        v_add_u32 v{vA3[0][1]}, s{sT0}, v{vA3[0][1]}
        s_lshl_b32 s{sT0}, s{sKh}, 13
        s_add_u32 s{sT0}, s{sT0}, {VOFF}
        v_add_u32 v{vA3[0][2]}, s{sT0}, v{vL16}
        s_mov_b32 s{sSlotN}, {2*SLOT}
        s_lshr_b32 s{sT0}, s{sHead}, 1
        s_mul_i32 s{sT0}, s{sT0}, 163840
        s_mul_i32 s{sT1}, s{sWV}, 2560
        s_add_u32 s{sKoff}, s{sT0}, s{sT1}
        s_lshl_b32 s{sT1}, s{sE}, 10
        s_add_u32 s{sKoff}, s{sKoff}, s{sT1}
        s_mul_i32 s{sT0}, s{sHead}, 81920
        s_mul_i32 s{sT1}, s{sWV}, 1280
        s_add_u32 s{sVoff}, s{sT0}, s{sT1}
        s_mov_b32 s{sSlotW}, 0
        """)
        for k in range(3):
            a(f"v_add_u32 v{vA3[1][k]}, {SLOT}, v{vA3[0][k]}")
            a(f"v_add_u32 v{vA3[2][k]}, {2*SLOT}, v{vA3[0][k]}")
        for i in range(32): a(f"v_mov_b32 v{vO+i}, 0")
        for i in range(4):
            a(f"v_mov_b32 v{vP+4+i}, 0")
            a(f"v_mov_b32 v{vV+12+i}, 0")
    reinit()
    a(f"v_and_b32 v{vT+11}, 7, v0")
    a(f"v_lshlrev_b32 v{vT+11}, 7, v{vT+11}")
    a(f"v_add_u32 v{vT+11}, {WS_CNT + C_RPS*128}, v{vT+11}")
    a(f"v_mov_b32 v{vT+10}, 0")
    a(f"""
    s_lshl_b32 s{sT0}, s{sQg}, 1
    s_add_u32 s{sQt}, s{sQt}, s{sT0}
    v_lshlrev_b32 v{vT+13}, 4, v{vT}
    s_lshl_b32 s{sT1}, s{sE}, 3
    s_add_u32 s{sT1}, s{sT1}, 1024
    v_add_u32 v{vT+13}, s{sT1}, v{vT+13}
    v_mov_b32 v{vT+9}, 0x7fffff00
    """)
    a(f"""
    v_cmp_gt_u32 vcc, 32, v0
    s_mul_i32 s{sT1}, s{sE}, 1536
    v_cndmask_b32 v{vT+13}, v{vT+9}, v{vT+13}, vcc
    v_add_u32 v{vT+12}, s{sT1}, v{vL16}
    """)
    lw = a.newlabel("attw")
    a(f"""
    s_cmp_eq_u32 s{sWV}, 0
    s_cbranch_scc0 {lw}
    s_mul_i32 s{sT0}, s{sHead}, 20
    s_lshr_b32 s{sT1}, s{sT0}, 7
    s_add_u32 s{sT0}, s{sT0}, 19
    s_lshr_b32 s{sT0}, s{sT0}, 7
    v_and_b32 v{vT+3}, 1, v0
    v_mov_b32 v{vT+4}, s{sT1}
    v_mov_b32 v{vT+5}, s{sT0}
    v_cmp_eq_u32 vcc, 1, v{vT+3}
    v_lshrrev_b32 v{vT+6}, 1, v0
    v_mul_u32_u24 v{vT+6}, 5, v{vT+6}
    v_cndmask_b32 v{vT+4}, v{vT+4}, v{vT+5}, vcc
    v_add_u32 v{vT+4}, v{vT+4}, v{vT+6}
    v_add_u32 v{vT+4}, {C_QKV}, v{vT+4}
    v_lshlrev_b32 v{vT+4}, 7, v{vT+4}
    v_add_u32 v{vT+4}, {WS_CNT}, v{vT+4}
    v_mov_b32 v{vT+5}, 16
    """)
    poll(a, vT + 4, vT + 5, 6, vT + 6)
    a.label(lw)
    a("s_waitcnt lgkmcnt(0)")
    a("s_barrier")
    st(a, 5)
    def dma_chunk():
        a(f"""
        s_mul_i32 s{sT0}, s{sWV}, {KT}
        s_add_u32 m0, s{sSlotW}, s{sT0}
        s_lshl_b32 s{sT1}, s{sWV}, 11
        buffer_load_dwordx4 v{vL16}, s[{sK}:{sK+3}], s{sKoff} offen lds
        s_mov_b32 exec_hi, 0
        buffer_load_dwordx4 v{vL16}, s[{sK}:{sK+3}], s{sKoff} offen offset:1024 lds
        s_add_u32 s{sT1}, s{sT1}, s{sSlotW}
        s_add_u32 m0, s{sT1}, {VOFF}
        s_mov_b64 exec, s[{sVmask}:{sVmask+1}]
        buffer_load_dwordx4 v{vVoff}, s[{sV}:{sV+3}], s{sVoff} offen lds
        s_add_u32 m0, m0, 1024
        s_add_u32 s{sT1}, s{sVoff}, 640
        buffer_load_dwordx4 v{vVoff}, s[{sV}:{sV+3}], s{sT1} offen lds
        s_mov_b64 exec, -1
        s_add_u32 s{sKoff}, s{sKoff}, {8*2560}
        s_add_u32 s{sVoff}, s{sVoff}, 10240
        s_add_u32 s{sSlotW}, s{sSlotW}, {SLOT}
        s_cmp_ge_u32 s{sSlotW}, {NSLOT*SLOT}
        s_cselect_b32 s{sSlotW}, 0, s{sSlotW}
        """)
    dma_chunk()
    a(f"s_lshr_b32 s{sT0}, s{sHead}, 1")
    a(f"s_mul_i32 s{sT0}, s{sT0}, 163840")
    for s in range(2):
        a(f"""
        s_xor_b32 s{sT1}, s{sKh}, {s}
        s_add_u32 s{sT1}, s{sT1}, s{sQt}
        s_mul_i32 s{sT1}, s{sT1}, 2560
        s_add_u32 s{sT1}, s{sT1}, s{sT0}
        buffer_load_dwordx4 {vr(vQ+4*s,4)}, v{vT+12}, s[{sQ}:{sQ+3}], s{sT1} offen
        buffer_load_dwordx2 {vr(vQr+2*s,2)}, v{vT+13}, s[{sQ}:{sQ+3}], s{sT1} offen
        """)
    dma_chunk()
    a(f"s_branch L_{name}_start")
    a.label(f"L_{name}_restart")
    reinit()
    dma_chunk(); dma_chunk()
    a.label(f"L_{name}_start")
    vKc, vKrc, vVc = vA3[0]
    a(f"""
    s_waitcnt vmcnt(4)
    s_barrier
    s_cmp_eq_u32 s{sPass}, 0
    s_cbranch_scc0 L_{name}_haveC
    s_mul_i32 s{sT1}, s{sKh}, {4*KT}
    v_subrev_u32 v{vT+1}, s{sT1}, v{vKc}
    v_subrev_u32 v{vT+2}, s{sT1}, v{vKrc}
    ds_read_b128 {vr(vKb,4)}, v{vT+1}
    ds_read_b64 {vr(vKr,2)}, v{vT+2}
    s_waitcnt lgkmcnt(0)
    """)
    for s in range(2):
        S = vS + 16*s
        a(f"v_mfma_f32_32x32x16_bf16 {vr(S,16)}, {vr(vKb,4)}, {vr(vQ+4*s,4)}, 0")
    for s in range(2):
        S = vS + 16*s
        a(f"v_mfma_f32_32x32x8_bf16 {vr(S,16)}, {vr(vKr,2)}, {vr(vQr+2*s,2)}, {vr(S,16)}")
    a(f"""
    ds_read_b128 {vr(vKb,4)}, v{vKc}
    ds_read2st64_b64 {vr(vKr,4)}, v{vKrc} offset0:0 offset1:3
    ds_read_b128 {vr(vV,4)}, v{vVc}
    ds_read_b128 {vr(vV+4,4)}, v{vVc} offset:1024
    s_nop 11
    """)
    for s in range(2):
        S = vS + 16*s
        T_ = vT + 2*s
        a(f"v_max3_f32 v{T_}, v{S}, v{S+1}, v{S+2}")
        for i in range(3, 15, 2):
            a(f"v_max3_f32 v{T_}, v{T_}, v{S+i}, v{S+i+1}")
        a(f"v_max_f32 v{T_}, v{T_}, v{S+15}")
    a(f"""
    v_mov_b32 v{vT+1}, v{vT}
    v_mov_b32 v{vT+3}, v{vT+2}
    s_nop 1
    v_permlane32_swap_b32 v{vT}, v{vT+1}
    v_permlane32_swap_b32 v{vT+2}, v{vT+3}
    s_nop 1
    v_max_f32 v{vT}, v{vT}, v{vT+1}
    v_max_f32 v{vT+2}, v{vT+2}, v{vT+3}
    v_sub_f32 v{vNC}, 0, v{vT}
    v_sub_f32 v{vNC+16}, 0, v{vT+2}
    """)
    for i in range(1, 16):
        a(f"v_mov_b32 v{vNC+i}, v{vNC}")
        a(f"v_mov_b32 v{vNC+16+i}, v{vNC+16}")
    a(f"s_branch L_{name}_haveC2")
    a.label(f"L_{name}_haveC")
    a(f"""
    ds_read_b128 {vr(vKb,4)}, v{vKc}
    ds_read2st64_b64 {vr(vKr,4)}, v{vKrc} offset0:0 offset1:3
    ds_read_b128 {vr(vV,4)}, v{vVc}
    ds_read_b128 {vr(vV+4,4)}, v{vVc} offset:1024
    """)
    a.label(f"L_{name}_haveC2")
    a(f"""
    s_waitcnt lgkmcnt(0)
    v_mfma_f32_32x32x16_bf16 {vr(vS,16)}, {vr(vKb,4)}, {vr(vQ,4)}, {vr(vNC,16)}
    v_mfma_f32_32x32x8_bf16 {vr(vS,16)}, {vr(vKr,2)}, {vr(vQr,2)}, {vr(vS,16)}
    s_mov_b32 s{sChunk}, 0
    s_nop 7
    """)
    st(a, 6)
    a(f"""
    s_cmp_eq_u32 s{sKh}, 0
    s_cselect_b32 s36, 7, 0
    s_cselect_b32 s37, 0, 7
    """)
    ool = []
    def rare(mask, fn, tag):
        l, b = a.newlabel(tag), a.newlabel(tag + "b")
        a(f"s_bitcmp1_b32 {mask:#x}, s{sChunk}")
        a(f"s_cbranch_scc1 {l}")
        a.label(b)
        ool.append((l, b, fn))
    def common_(mask, fn, tag):
        l = a.newlabel(tag)
        a(f"s_bitcmp1_b32 {mask if isinstance(mask, str) else hex(mask)}, s{sChunk}")
        a(f"s_cbranch_scc0 {l}")
        fn()
        a.label(l)
    def pf_A(half):
        a(f"""
        v_lshlrev_b32 v{vT+12}, 7, v0
        s_mul_i32 s{sT0}, s{sRk}, 69120
        s_lshl_b32 s{sT1}, s{sWV}, 13
        s_add_u32 s{sT0}, s{sT0}, s{sT1}
        s_mov_b32 exec_lo, {-1 if half == 0 else 0}
        s_mov_b32 exec_hi, {0 if half == 0 else -1}
        buffer_load_dword v{vT+13}, v{vT+12}, s[{sW1s}:{sW1s+3}], s{sT0} offen sc1
        s_mov_b64 exec, -1
        """)
    def pf_B():
        l5, l4, le = a.newlabel("pf5"), a.newlabel("pf4"), a.newlabel("pfe")
        a(f"""
        v_lshlrev_b32 v{vT+12}, 7, v0
        s_cmp_ge_u32 s{sWV}, 5
        s_cbranch_scc1 {l5}
        s_cmp_eq_u32 s{sWV}, 4
        s_cbranch_scc1 {l4}
        s_mul_i32 s{sT0}, s{sRk}, {SZ_WOP // 32}
        s_lshl_b32 s{sT1}, s{sWV}, 13
        s_add_u32 s{sT0}, s{sT0}, s{sT1}
        s_add_u32 s{sT0}, s{sT0}, {WS_WOP}
        buffer_load_dword v{vT+13}, v{vT+12}, s[{sWS}:{sWS+3}], s{sT0} offen sc1
        s_branch {le}
        """)
        a.label(l4)
        a(f"""
        s_mul_i32 s{sT0}, s{sRk}, 69120
        s_add_u32 s{sT0}, s{sT0}, 65536
        s_mov_b32 exec_hi, 0
        buffer_load_dword v{vT+13}, v{vT+12}, s[{sW1s}:{sW1s+3}], s{sT0} offen sc1
        s_mov_b32 exec_hi, -1
        s_branch {le}
        """)
        a.label(l5)
        a(f"""
        s_sub_u32 s{sT1}, s{sWV}, 5
        s_lshl_b32 s{sT1}, s{sT1}, 5
        s_mul_i32 s{sT0}, s{sRk}, 80
        s_add_u32 s{sT0}, s{sT0}, s{sT1}
        v_and_b32 v{vT+8}, 31, v0
        v_add_u32 v{vT+8}, s{sT0}, v{vT+8}
        v_lshrrev_b32 v{vT+9}, 5, v{vT+8}
        v_lshlrev_b32 v{vT+9}, 15, v{vT+9}
        v_and_b32 v{vT+8}, 31, v{vT+8}
        v_lshlrev_b32 v{vT+8}, 7, v{vT+8}
        v_add_u32 v{vT+8}, v{vT+8}, v{vT+9}
        s_lshl_b32 s{sT0}, s{sX}, 12
        s_mov_b32 exec_hi, 0
        buffer_load_dword v{vT+13}, v{vT+8}, s[{sO}:{sO+3}], s{sT0} offen sc1
        s_mov_b32 exec_hi, -1
        """)
        a.label(le)
    def rp_issue():
        a("s_mov_b64 exec, 0xff")
        a(f"buffer_load_dword v{vT+10}, v{vT+11}, s[{sWS}:{sWS+3}], 0 offen sc1")
        a("s_mov_b64 exec, -1")
    def rp_check():
        ok = a.newlabel("rpok")
        a("s_mov_b64 exec, 0xff")
        a(f"v_cmp_gt_u32 vcc, 32, v{vT+10}")
        a("s_nop 4")
        a("s_cmp_eq_u64 vcc, 0")
        a(f"s_cbranch_scc1 {ok}")
        a(f"v_mov_b32 v{vT+9}, 32")
        poll(a, vT + 11, vT + 9, 8, vT + 10)
        a.label(ok)
        a("s_mov_b64 exec, -1")
    if E('A_PRIO'):
        l = a.newlabel("prio")
        a(f"s_cmp_ge_u32 s{sWV}, 4")
        a(f"s_cbranch_scc0 {l}")
        a(f"s_setprio {E('A_PRIO')}")
        a.label(l)
    a(".p2align 6")
    a.label(f"L_{name}_loop")
    rd = (lambda x: None) if E('A_NORD') else a
    for u in range(16):
        p = u & 1
        t = u >> 1
        D1 = int(E('A_D1', '6'))
        if u == 0:
            if not E('A_NODMA'): common_(0b0111, dma_chunk, "d0")
            if not E('NOPF2'): rare(0b1000, lambda: pf_A(0), "pa")
        if u == 4 and not E('NOPF2'): rare(0b1000, lambda: pf_A(1), "pb")
        if u == 6 and not E('A_NOBAR'):
            rare(0b0001, lambda: (a(f"s_waitcnt vmcnt({8 if D1 < 6 else 4})"), a("s_barrier")), "c1")
        if u == D1 and not E('A_NODMA'): common_(0b0111, dma_chunk, "d1")
        if u == 8 and not E('NOPF2'): rare(0b1000, pf_B, "pc")
        if u == 14:
            rare(0b0010, rp_issue, "rpi")
            a("s_waitcnt vmcnt(0)")
            if not E('A_NOBAR'): a("s_barrier")
            rare(0b0010, rp_check, "rpc")
        tn = t + 1
        A = vA3[tn // 4]
        if p == 0:
            rd(f"ds_read_b128 {vr(vKb + 4*(tn&1),4)}, v{A[0]} offset:{(tn%4)*KT}")
            if tn % 2 == 0:
                pb = (tn // 2) & 1
                rd(f"ds_read2st64_b64 {vr(vKr + 4*pb,4)}, v{A[1]} offset0:{(tn%4)*3} offset1:{(tn%4)*3+3}")
            rd(f"ds_read_b128 {vr(vV + 8*(tn&1),4)}, v{A[2]} offset:{(tn%4)*2048}")
        else:
            rd("s_waitcnt lgkmcnt(0)")
        un = u + 1
        tq = un >> 1
        qs = un & 1
        Sc, Sn = vS + 16*p, vS + 16*(p^1)
        kbuf = vKb + 4*(tq & 1)
        krbuf = vKr + 4*((tq // 2) & 1) + 2*(tq & 1)
        ex = lambda r: a(f"v_exp_f32 v{Sc+r}, v{Sc+r}")
        cv = lambda r: a(f"v_cvt_pk_bf16_f32 v{vP+r}, v{Sc+2*r}, v{Sc+2*r+1}")
        a(f"v_mfma_f32_32x32x16_bf16 {vr(Sn,16)}, {vr(kbuf,4)}, {vr(vQ+4*qs,4)}, {vr(vNC+16*qs,16)}")
        for r in range(4): ex(r)
        tp = (u - 1) >> 1 if u > 0 else -1
        Op = vO + 16*((u - 1) & 1)
        a(f"v_mfma_f32_32x32x16_bf16 {vr(Op,16)}, {vr(vV + 8*(tp & 1) + 4,4)}, {vr(vP+4,4)}, {vr(Op,16)}")
        if p == 0:
            rd(f"ds_read_b128 {vr(vV + 8*(tn&1) + 4,4)}, v{A[2]} offset:{(tn%4)*2048 + 1024}")
        for r in range(4, 8): ex(r)
        cv(0); cv(1)
        a(f"v_mfma_f32_32x32x8_bf16 {vr(Sn,16)}, {vr(krbuf,2)}, {vr(vQr+2*qs,2)}, {vr(Sn,16)}")
        cv(2); cv(3)
        for r in range(8, 12): ex(r)
        Oc = vO + 16*p
        a(f"v_mfma_f32_32x32x16_bf16 {vr(Oc,16)}, {vr(vV + 8*(t & 1),4)}, {vr(vP,4)}, {vr(Oc,16)}")
        for r in range(12, 16): ex(r)
        if u == 15:
            a(f"""
            s_add_u32 s{sT0}, s{sSlotN}, {SLOT}
            s_cmp_ge_u32 s{sT0}, {NSLOT*SLOT}
            s_cselect_b32 s{sT1}, {NSLOT*SLOT}, 0
            s_sub_u32 s{sT0}, s{sT0}, s{sT1}
            s_sub_u32 s{sT1}, s{sT0}, s{sSlotN}
            s_add_u32 s{sT2}, s{sT0}, {SLOT}
            s_cmp_ge_u32 s{sT2}, {NSLOT*SLOT}
            s_cselect_b32 s{sT0}, {NSLOT*SLOT}, 0
            s_sub_u32 s{sT2}, s{sT2}, s{sT0}
            s_sub_u32 s{sT0}, s{sT2}, s{sSlotN}
            s_mov_b32 s{sSlotN}, s{sT2}
            """)
            for k in range(3):
                a(f"v_mov_b32 v{vA3[0][k]}, v{vA3[2][k]}")
                a(f"v_add_u32 v{vA3[1][k]}, s{sT1}, v{vA3[2][k]}")
                a(f"v_add_u32 v{vA3[2][k]}, s{sT0}, v{vA3[2][k]}")
        for r in range(4, 8): cv(r)
    a(f"""
    s_add_u32 s{sChunk}, s{sChunk}, 1
    s_cmp_lt_u32 s{sChunk}, 4
    s_cbranch_scc1 L_{name}_loop
    s_waitcnt lgkmcnt(0)
    """)
    a(f"v_mfma_f32_32x32x16_bf16 {vr(vO+16,16)}, {vr(vV + 8 + 4,4)}, {vr(vP+4,4)}, {vr(vO+16,16)}")
    st(a, 7)
    a(f"s_branch L_{name}_post")
    for l, b, fn in ool:
        a.label(l)
        fn()
        a(f"s_branch {b}")
    a.label(f"L_{name}_post")
    a(f"""
    s_barrier
    s_lshl_b32 s{sT0}, s{sQg}, 1
    s_add_u32 s{sT1}, s{sT0}, s{sKh}
    s_lshr_b32 s{sT2}, s{sT1}, 2
    s_mul_i32 s{sT2}, s{sT2}, {SLOT}
    s_and_b32 s{sT1}, s{sT1}, 3
    s_mul_i32 s{sT1}, s{sT1}, 3072
    s_add_u32 s{sT1}, s{sT1}, s{sT2}
    v_add_u32 v{vT}, s{sT1}, v{vL16}
    s_xor_b32 s{sT1}, s{sKh}, 1
    s_add_u32 s{sT1}, s{sT1}, s{sT0}
    s_lshr_b32 s{sT2}, s{sT1}, 2
    s_mul_i32 s{sT2}, s{sT2}, {SLOT}
    s_and_b32 s{sT1}, s{sT1}, 3
    s_mul_i32 s{sT1}, s{sT1}, 3072
    s_add_u32 s{sT1}, s{sT1}, s{sT2}
    v_add_u32 v{vT+1}, s{sT1}, v{vL16}
    s_nop 7
    """)
    stx(a, 'a_bar1')
    for i in range(3):
        a(f"ds_write_b128 v{vT}, {vr(vO+16+4*i,4)} offset:{i*1024}")
    a("s_waitcnt lgkmcnt(0)")
    a("s_barrier")
    stx(a, 'a_bar2')
    for i in range(3):
        a(f"ds_read_b128 {vr(vS+4*i,4)}, v{vT+1} offset:{i*1024}")
    a("s_waitcnt lgkmcnt(0)")
    for r in range(12):
        a(f"v_add_f32 v{vO+r}, v{vO+r}, v{vS+r}")
    a(f"v_mov_b32 v{vT}, 0")
    for r in range(12):
        a(f"v_fma_f32 v{vT}, v{vO+r}, 0, v{vT}")
    a(f"""
    s_cmp_eq_u32 s{sPass}, 0
    s_cbranch_scc0 L_{name}_store
    v_cmp_u_f32 vcc, v{vT}, v{vT}
    s_nop 4
    s_cmp_eq_u64 vcc, 0
    s_cbranch_scc1 L_{name}_novote
    v_mov_b32 v{vT+1}, {FLAG}
    v_mov_b32 v{vT+2}, 1
    ds_write_b32 v{vT+1}, v{vT+2}
    L_{name}_novote:
    s_waitcnt lgkmcnt(0)
    s_barrier
    v_mov_b32 v{vT+1}, {FLAG}
    ds_read_b32 v{vT+2}, v{vT+1}
    s_waitcnt lgkmcnt(0)
    v_readfirstlane_b32 s{sT0}, v{vT+2}
    s_cmp_eq_u32 s{sT0}, 0
    s_cbranch_scc1 L_{name}_store2
    s_mov_b32 s{sPass}, 1
    v_mov_b32 v{vT}, 0xff800000
    v_mov_b32 v{vT+1}, 0xff800000
    s_lshr_b32 s{sT0}, s{sHead}, 1
    s_mul_i32 s{sT0}, s{sT0}, 163840
    s_mov_b32 s{sT1}, 0
    v_and_b32 v{vT+2}, 31, v0
    v_lshlrev_b32 v{vT+2}, 4, v{vT+2}
    s_lshl_b32 s{sT2}, s{sE}, 3
    s_add_u32 s{sT2}, s{sT2}, 1024
    v_add_u32 v{vT+2}, s{sT2}, v{vT+2}
    s_mul_i32 s{sT2}, s{sE}, 1536
    v_add_u32 v{vT+3}, s{sT2}, v{vL16}
    L_{name}_maxloop:
    buffer_load_dwordx4 {vr(vKb,4)}, v{vT+3}, s[{sK}:{sK+3}], s{sT0} offen
    buffer_load_dwordx2 {vr(vKr,2)}, v{vT+2}, s[{sK}:{sK+3}], s{sT0} offen
    s_waitcnt vmcnt(0)
    """)
    for s in range(2):
        S = vS + 16*s
        a(f"v_mfma_f32_32x32x16_bf16 {vr(S,16)}, {vr(vKb,4)}, {vr(vQ+4*s,4)}, 0")
        a(f"v_mfma_f32_32x32x8_bf16 {vr(S,16)}, {vr(vKr,2)}, {vr(vQr+2*s,2)}, {vr(S,16)}")
    a("s_nop 15")
    for s in range(2):
        for i in range(0, 16, 2):
            a(f"v_max3_f32 v{vT+s}, v{vT+s}, v{vS+16*s+i}, v{vS+16*s+i+1}")
    a(f"""
    s_add_u32 s{sT0}, s{sT0}, 2560
    s_add_u32 s{sT1}, s{sT1}, 1
    s_cmp_lt_u32 s{sT1}, 64
    s_cbranch_scc1 L_{name}_maxloop
    """)
    for s in range(2):
        a(f"""
        v_mov_b32 v{vT+2}, v{vT+s}
        s_nop 1
        v_permlane32_swap_b32 v{vT+s}, v{vT+2}
        s_nop 1
        v_max_f32 v{vT+2}, v{vT+s}, v{vT+2}
        v_sub_f32 v{vNC+16*s}, 0, v{vT+2}
        """)
        for i in range(1, 16):
            a(f"v_mov_b32 v{vNC+16*s+i}, v{vNC+16*s}")
    a("s_barrier")
    a(f"s_branch L_{name}_restart")
    a.label(f"L_{name}_store")
    a("s_barrier")
    a.label(f"L_{name}_store2")
    stx(a, 'a_vote')
    a(f"""
    v_mov_b32 v{vT}, v{vO+8}
    v_mov_b32 v{vT+1}, v{vO+8}
    s_nop 1
    v_permlane32_swap_b32 v{vT}, v{vT+1}
    s_nop 1
    v_rcp_f32 v{vT+1}, v{vT+1}
    v_lshrrev_b32 v{vT+2}, 5, v0
    v_and_b32 v{vT+3}, 31, v0
    s_add_u32 s{sT0}, s{sQt}, s{sKh}
    s_lshl_b32 s{sT0}, s{sT0}, 5
    v_add_u32 v{vT+3}, s{sT0}, v{vT+3}
    v_lshlrev_b32 v{vT+3}, 4, v{vT+3}
    s_mul_i32 s{sT0}, s{sHead}, 5
    v_add_u32 v{vT+2}, s{sT0}, v{vT+2}
    """)
    for r in range(12):
        a(f"v_mul_f32 v{vO+r}, v{vO+r}, v{vT+1}")
    for q in range(3):
        a(f"""
        v_add_u32 v{vT+4}, {2*q}, v{vT+2}
        v_lshrrev_b32 v{vT+5}, 1, v{vT+4}
        v_lshlrev_b32 v{vT+5}, 15, v{vT+5}
        v_and_b32 v{vT+4}, 1, v{vT+4}
        v_lshlrev_b32 v{vT+4}, 3, v{vT+4}
        v_add3_u32 v{vT+4}, v{vT+4}, v{vT+5}, v{vT+3}
        v_cvt_pk_bf16_f32 v{vT+6}, v{vO+4*q}, v{vO+4*q+1}
        v_cvt_pk_bf16_f32 v{vT+7}, v{vO+4*q+2}, v{vO+4*q+3}
        """)
        if q == 2: a("s_mov_b32 exec_hi, 0")
        dual(a, [f"buffer_store_dwordx2 {vr(vT+6,2)}, v{vT+4}, s[{sO}:{sO+3}], 0 offen @SC"])
    a("s_mov_b64 exec, -1")
    stx(a, 'a_stores')
    a(f"s_add_u32 s76, s{sQb}, {C_ATT}")

def gemm_phase_prologue_loader(a, core, q, dep_idx_sgpr, dep_target, nW, pre_issued):
    pass

LANDED = [True]
def reg_step1(a, vd):
    a("s_mov_b64 exec, 7")
    a(f"buffer_load_dword v{vd}, v{vd+1}, s[44:47], 0 offen sc1")
    a("s_mov_b64 exec, -1")
def reg_step2(a, vd):
    dbg_flag_wait(a, vd, landed=LANDED[0])
    a(f"""
    s_getreg_b32 s{sX}, hwreg(HW_REG_XCC_ID)
    s_and_b32 s{sX}, s{sX}, 7
    s_add_u32 s76, s{sX}, {C_RK}
    s_lshl_b32 s76, s76, 7
    s_add_u32 s76, s76, {WS_CNT}
    v_mov_b32 v{vd-1}, s76
    v_accvgpr_write_b32 a0, 1
    s_mov_b64 exec, 1
    s_nop 1
    buffer_atomic_add a0, v{vd-1}, s[{sWS}:{sWS+3}], 0 offen sc0
    s_mov_b64 exec, -1
    """)
def reg_step3(a, vd):
    l1, l2 = a.newlabel("r3a"), a.newlabel("r3b")
    if not LANDED[0]: a("s_waitcnt vmcnt(0)")
    a(f"""
    v_accvgpr_read_b32 v{vd-1}, a0
    s_nop 1
    v_readfirstlane_b32 s{sRk}, v{vd-1}
    s_cmp_eq_u32 s{sRk}, 31
    s_cbranch_scc0 {l1}
    v_mov_b32 v{vd-1}, 4
    v_mov_b32 v{vd-2}, 1
    s_mov_b64 exec, 1
    buffer_atomic_add v{vd-2}, v{vd-1}, s[44:47], 0 offen sc1
    s_mov_b64 exec, -1
    """)
    a.label(l1)
    a(f"""
    s_cmp_ge_u32 s{sRk}, 32
    s_cbranch_scc0 {l2}
    v_mov_b32 v{vd-1}, 8
    v_mov_b32 v{vd-2}, 1
    s_mov_b64 exec, 1
    buffer_store_dword v{vd-2}, v{vd-1}, s[44:47], 0 offen sc1
    s_mov_b64 exec, -1
    """)
    a.label(l2)
    a("s_mov_b64 exec, 7")
    a(f"buffer_load_dword v{vd}, v{vd+1}, s[44:47], 0 offen sc1")
    a("s_mov_b64 exec, -1")
def register_publish(a, vd):
    l0, l1 = a.newlabel("rp"), a.newlabel("rpok")
    a(f"s_mov_b32 s{sPoll}, 0")
    a.label(l0)
    a(f"""
    s_waitcnt vmcnt(0)
    v_readlane_b32 s39, v{vd}, 1
    v_readlane_b32 s40, v{vd}, 2
    s_cmp_eq_u32 s39, 8
    s_cselect_b32 s38, 1, 0
    s_cmp_lg_u32 s40, 0
    s_cselect_b32 s38, 0, s38
    s_cbranch_scc1 {l1}
    s_cmp_eq_u32 s38, 1
    s_cbranch_scc1 {l1}
    s_add_u32 s{sPoll}, s{sPoll}, 1
    s_cmp_gt_u32 s{sPoll}, {POLL_MAX}
    s_cbranch_scc1 {l1}
    s_sleep 1
    s_mov_b64 exec, 7
    buffer_load_dword v{vd}, v{vd+1}, s[44:47], 0 offen sc1
    s_mov_b64 exec, -1
    s_branch {l0}
    """)
    a.label(l1)
    if E('FORCE_SLOW'): a("s_mov_b32 s38, 0")
    a(f"""
    v_mov_b32 v{vd-6}, s{sX}
    v_mov_b32 v{vd-4}, s38
    v_mov_b32 v{vd-5}, s{sRk}
    v_mov_b32 v{vd-7}, {ROLE}
    ds_write_b96 v{vd-7}, v[{vd-6}:{vd-4}]
    s_waitcnt lgkmcnt(0)
    """)
def wave_only(a, w, fn):
    l = a.newlabel("wo")
    a(f"s_cmp_eq_u32 s{sWV}, {w}")
    a(f"s_cbranch_scc0 {l}")
    fn()
    a.label(l)
def code_prefetch(a):
    a(f"""
    s_getpc_b64 s[40:41]
    s_and_b32 s40, s40, 0xffffff00
    s_lshr_b32 s42, s2, 3
    s_lshl_b32 s42, s42, 11
    v_lshlrev_b32 v160, 7, v1
    v_add_u32 v160, s42, v160
    s_mov_b64 exec, 0xffff
    global_load_dword v161, v160, s[40:41]
    s_mov_b64 exec, -1
    """)

def tlb_warm(a):
    G = int(E('TLBG', '16'))
    a(f"""
    s_lshr_b32 s42, s2, 3
    v_lshlrev_b32 v160, 5, v1
    v_add_u32 v160, s42, v160
    v_lshlrev_b32 v160, {G}, v160
    """)
    n_ws = -(-WS_END >> G)
    a(f"s_mov_b64 exec, {(1 << min(64, -(-n_ws // 32))) - 1:#x}")
    a(f"buffer_load_dword v161, v160, s[{sWS}:{sWS+3}], 0 offen sc1")
    a("s_mov_b64 exec, 3")
    for k, (pp, size) in enumerate(((pW1, 640*3456), (pW2, 1728*1280), (pWO, 640*1280), (pOUT, 2048*1280), (pX, 2048*1280), (pWQ, 640*3840))):
        make_srd(a, 44, pp, pp+1, 0, size)
        a(f"buffer_load_dword v{162+k}, v160, s[44:47], 0 offen sc1")
    a("s_mov_b64 exec, -1")
    make_srd(a, 44, pW1, pW1+1, 0, 640*3456)
    a(f"""
    s_mul_i32 s42, s2, 8640
    v_lshlrev_b32 v160, 7, v1
    buffer_load_dword v161, v160, s[44:47], s42 offen sc1
    s_add_u32 s42, s42, 8192
    s_mov_b64 exec, 15
    buffer_load_dword v161, v160, s[44:47], s42 offen sc1
    s_mov_b64 exec, -1
    """)

CODE_KB = 64
def gen_mega():
    a = Asm()
    a(f"""
    s_cmp_ge_u32 s2, 256
    s_cbranch_scc1 L_exit
    s_load_dwordx8 s[84:91], s[0:1], 0
    s_load_dwordx8 s[92:99], s[0:1], 32
    s_load_dwordx2 s[78:79], s[0:1], 64
    """)
    st_rt(a, 0); st(a, 1)
    a(f"""
    v_lshrrev_b32 v2, 6, v0
    s_nop 0
    v_readfirstlane_b32 s{sWV}, v2
    """)
    lane_id(a, 1)
    if not E('NOPF'):
        l = a.newlabel("pf")
        a(f"s_cmp_eq_u32 s{sWV}, 1")
        a(f"s_cbranch_scc0 {l}")
        code_prefetch(a)
        a.label(l)
    a("s_waitcnt lgkmcnt(0)")
    make_srd(a, sWS, pWS, pWS+1, 0, WS_END)
    if E('TLB'):
        l = a.newlabel("tlb")
        a(f"s_cmp_eq_u32 s{sWV}, 3")
        a(f"s_cbranch_scc0 {l}")
        tlb_warm(a)
        a.label(l)
    L = CoreL(a, 'qkv', 'q')
    L.map_tiles("L_repack")
    a(f"""
    s_cmp_ge_u32 s{sWV}, 4
    s_cbranch_scc0 L_q_compute
    """)
    L.loader_setup()
    st(a, 2)
    q = VmQ()
    for s_ in range(PD):
        L.issue_A(s_); q.push(f"A{s_}", 4)
        if not FS: stamp(a, 9 + 2*s_, base=SB)
        L.issue_W(s_); q.push(f"W{s_}", 4)
        if not FS: stamp(a, 10 + 2*s_, base=SB)
    st(a, 3)
    make_srd(a, 44, pDBG, pDBG+1, 0, 256)
    a("v_lshlrev_b32 v71, 2, v1")
    a("v_mov_b32 v70, 0")
    L.ldstamps = True
    L.loader_main(q)
    st(a, 8)
    a("s_waitcnt lgkmcnt(0)")
    a("s_barrier")
    wave_only(a, 7, lambda: register_publish(a, 70))
    a("s_barrier")
    a("s_branch L_attn")
    a.label("L_q_compute")
    l = a.newlabel("zc")
    a(f"""
    s_or_b32 s40, s2, s{sWV}
    s_cmp_eq_u32 s40, 0
    s_cbranch_scc0 {l}
    v_mov_b32 v4, 0
    v_mov_b32 v5, 0
    v_mov_b32 v6, 0
    v_mov_b32 v7, 0
    v_lshlrev_b32 v8, 4, v1
    s_mov_b32 s40, {WS_CNT}
    """)
    for j in range(SZ_CNT // 1024):
        a(f"buffer_store_dwordx4 v[4:7], v8, s[{sWS}:{sWS+3}], s40 offen {SC}")
        a("s_add_u32 s40, s40, 1024")
    make_srd(a, 8, pDBG, pDBG+1, 0, 256)
    a(f"""
    s_waitcnt vmcnt(0)
    v_mov_b32 v4, 1
    v_mov_b32 v5, 0
    s_mov_b64 exec, 1
    buffer_store_dword v4, v5, s[8:11], 0 offen sc1
    s_mov_b64 exec, -1
    """)
    a.label(l)
    emit_p0r(a, L)
    RP = Repack(a)
    RP.issue()
    L.rp = RP
    L.compute_setup()
    make_srd(a, 44, pDBG, pDBG+1, 0, 256)
    a(f"v_lshlrev_b32 v{L.vSt+27}, 2, v1")
    a(f"v_mov_b32 v{L.vSt+26}, 0")
    a(f"""
    s_cmp_ge_u32 s{L.sNt}, 10
    s_cbranch_scc1 L_q_vpath
    """)
    L.addr_qk()
    emit_p0r_finish(a, L, extra=4)
    L.mainloop(True, 2)
    st(a, 3)
    a("s_barrier")
    L.epilogue_Y('qk')
    a("s_branch L_q_done")
    a.label("L_q_vpath")
    L.addr_v()
    emit_p0r_finish(a, L, extra=4)
    L.mainloop(False, 2)
    st(a, 3)
    a("s_barrier")
    L.epilogue_X()
    a.label("L_q_done")
    a(f"buffer_load_dword v{L.vSt+26}, v{L.vSt+27}, s[44:47], 0 offen sc1")
    a("s_waitcnt vmcnt(0)")
    a("s_barrier")
    a(f"s_cmp_eq_u32 s{sWV}, 0")
    a("s_cbranch_scc0 L_attn")
    dbg_flag_wait(a, L.vSt + 26, landed=True)
    a(f"s_add_u32 s40, s{L.sNt}, {C_QKV}")
    arrive(a, 40, 4)
    st(a, 4)
    a("s_branch L_attn")
    a.label("L_repack")
    make_srd(a, 44, pDBG, pDBG+1, 0, 256)
    a(f"v_lshlrev_b32 v71, 2, v1")
    a(f"v_mov_b32 v70, 0")
    def regall():
        LANDED[0] = False
        reg_step1(a, 70); reg_step2(a, 70); reg_step3(a, 70); register_publish(a, 70)
    wave_only(a, 6, regall)
    l = a.newlabel("rpl")
    a(f"s_cmp_ge_u32 s{sWV}, 4")
    a(f"s_cbranch_scc1 {l}")
    RP2 = Repack(a)
    RP2.issue()
    RP2.store()
    a.label(l)
    a("s_barrier")
    def rp_arr2():
        a(f"buffer_load_dword v70, v71, s[44:47], 0 offen sc1")
        dbg_flag_wait(a, 70)
        a("s_and_b32 s76, s2, 7")
        a(f"s_add_u32 s76, s76, {C_RPS}")
        arrive(a, 76, 64)
    wave_only(a, 4, rp_arr2)
    a.label("L_attn")
    emit_attention(a, None)
    S = CoreS(a, 'oproj')
    lane_id(a, 1)
    S.map_tiles()
    a(f"""
    s_cmp_ge_u32 s{sWV}, 4
    s_cbranch_scc0 L_o_compute
    """)
    S.loader_setup()
    q = VmQ()
    a("s_waitcnt vmcnt(0)")
    stx(a, 'a_drain')
    a("s_barrier")
    stx(a, 'a_bar3')
    for s_ in range(PD):
        S.issue_W(s_); q.push(f"W{s_}", 5)
    lw = a.newlabel("ow")
    a(f"s_cmp_eq_u32 s{sWV}, 4")
    a(f"s_cbranch_scc0 {lw}")
    a(f"s_add_u32 s40, s{sX}, {C_ATT}")
    poll_f(a, 40, 32, 8)
    a.label(lw)
    stx(a, 'o_poll')
    a("s_barrier")
    for s_ in range(PD):
        S.issue_A(s_); q.push(f"A{s_}", 4)
    S.loader_main(q)
    a("s_barrier")
    F1 = CoreL(a, 'ffn1', 'f')
    F1.map_tiles("L_o_ld_idle")
    F1.loader_setup()
    q = VmQ()
    a("s_barrier")
    for s_ in range(PD):
        F1.issue_W(s_); q.push(f"W{s_}", 4)
    a("s_branch L_f1_loader")
    a.label("L_o_ld_idle")
    a("s_barrier")
    a("s_branch L_f2_loader0")
    a.label("L_o_compute")
    a("s_waitcnt vmcnt(0)")
    stx(a, 'a_drain')
    a("s_barrier")
    stx(a, 'a_bar3')
    lw = a.newlabel("oa")
    a(f"s_cmp_eq_u32 s{sWV}, 0")
    a(f"s_cbranch_scc0 {lw}")
    arrive_f(a, 76, sRk, 4)
    st(a, 8)
    a.label(lw)
    S.compute_setup()
    S.pretouch()
    S.residual_loads()
    a("s_barrier")
    st(a, 9)
    stx(a, 'o_X')
    S.mainloop(tag='o')
    stx(a, 'o_loop')
    S.reduce()
    stx(a, 'o_red')
    a("s_barrier")
    S.epilogue()
    stx(a, 'o_epi')
    a("s_waitcnt vmcnt(0)")
    stx(a, 'o_drain')
    a("s_barrier")
    stx(a, 'o_e2')
    lw = a.newlabel("oa2")
    a(f"s_cmp_eq_u32 s{sWV}, 0")
    a(f"s_cbranch_scc0 {lw}")
    a(f"s_lshr_b32 s40, s{S.sM0}, 7")
    a(f"s_add_u32 s40, s40, {C_OP}")
    a(f"s_lshr_b32 s41, s{S.sM0}, 6")
    a(f"s_and_b32 s41, s41, 1")
    a(f"s_lshl_b32 s41, s41, 3")
    a(f"s_add_u32 s41, s41, s{S.sNt}")
    arrive_f(a, 40, 41, 4)
    st(a, 10)
    a.label(lw)
    lane_id(a, 1)
    F1.map_tiles("L_f2_compute0")
    a("s_branch L_f1_compute")
    a.label("L_f1_loader")
    lw = a.newlabel("fw")
    a(f"s_cmp_eq_u32 s{sWV}, 4")
    a(f"s_cbranch_scc0 {lw}")
    a(f"s_lshr_b32 s40, s{F1.sM0}, 7")
    a(f"s_add_u32 s40, s40, {C_OP}")
    stx(a, 'f_p0')
    poll_f(a, 40, 16, 8)
    a.label(lw)
    stx(a, 'f_poll')
    a("s_barrier")
    for s_ in range(PD):
        F1.issue_A(s_); q.push(f"A{s_}", 4)
    F1.lstats_init()
    F1.loader_main(q)
    a("s_barrier")
    S2 = CoreS(a, 'ffn2')
    S2.map_tiles()
    S2.loader_setup()
    q = VmQ()
    a("s_barrier")
    for s_ in range(PD):
        S2.issue_W(s_); q.push(f"W{s_}", 5)
    a("s_branch L_f2_loader")
    a.label("L_f2_loader0")
    if E('PFW2'):
        for j in range(9):
            wave_only(a, 4 + (j % 4), lambda: w2p_prefetch(a, j))
    S2.map_tiles()
    S2.loader_setup()
    for s_ in range(PD):
        S2.issue_W(s_)
    a.label("L_f2_loader")
    lw = a.newlabel("gw")
    a(f"s_cmp_eq_u32 s{sWV}, 4")
    a(f"s_cbranch_scc0 {lw}")
    a(f"s_lshr_b32 s40, s{S2.sM0}, 7")
    a(f"s_add_u32 s40, s40, {C_F1}")
    poll_f(a, 40, 14, 8)
    a.label(lw)
    a("s_barrier")
    for s_ in range(PD):
        S2.issue_A(s_); q.push(f"A{s_}", 4)
    S2.loader_main(q)
    if common.STAMPS:
        stamp_flush(a, 0, sWV, base=SB, vt=90)
    a("s_endpgm")
    a.label("L_f1_compute")
    F1.compute_setup()
    F1.addr_f()
    a("s_barrier")
    st(a, 11)
    stx(a, 'f_X')
    F1.mainloop(True, tag='f')
    stx(a, 'f_loop')
    a("s_barrier")
    F1.epilogue_Y('ffn1')
    stx(a, 'f_epi')
    a("s_waitcnt vmcnt(0)")
    stx(a, 'f_drain')
    a("s_barrier")
    lw = a.newlabel("fa")
    a(f"s_cmp_eq_u32 s{sWV}, 0")
    a(f"s_cbranch_scc0 {lw}")
    a(f"s_lshr_b32 s40, s{F1.sM0}, 7")
    a(f"s_add_u32 s40, s40, {C_F1}")
    arrive_f(a, 40, F1.sNt, 4)
    st(a, 12)
    a.label(lw)
    lane_id(a, 1)
    a.label("L_f2_compute0")
    S2.map_tiles()
    S2.compute_setup()
    a("s_barrier")
    st(a, 13)
    stx(a, 'g_X')
    S2.residual_loads()
    S2.mainloop(tag='g')
    stx(a, 'g_loop')
    S2.reduce()
    stx(a, 'g_red')
    S2.epilogue()
    stx(a, 'g_epi')
    if common.STAMPS:
        a("s_waitcnt vmcnt(0)")
        st(a, 14); st_rt(a, 15)
        stamp_flush(a, 0, sWV, base=SB, vt=90)
        if E('DBGOUT'):
            l = a.newlabel("dbo")
            a(f"s_cmp_eq_u32 s2, 9")
            a(f"s_cbranch_scc0 {l}")
            a(f"s_cmp_eq_u32 s{sWV}, 0")
            a(f"s_cbranch_scc0 {l}")
            make_srd(a, 8, pDBG, pDBG+1, 0, 256)
            a("s_mov_b64 exec, 1")
            pairs = [(15, 0), (14, 1), (2, 1), (3, 1), (4, 1), (5, 1), (6, 1), (7, 1), (9, 1), (11, 1), (13, 1)]
            for k, (x, y) in enumerate(pairs):
                a(f"s_sub_u32 s40, s{SB+x}, s{SB+y}")
                a(f"v_mov_b32 v4, s40")
                a(f"v_mov_b32 v5, {16 + 4*k}")
                a(f"buffer_store_dword v4, v5, s[8:11], 0 offen")
            a("s_waitcnt vmcnt(0)")
            a.label(l)
    a.label("L_exit")
    a("s_endpgm")
    return kernel_header(NAME) + a.text() + kernel_desc(NAME, 256, 176, sgpr=102)
```

```python
from common import *
import common, os
E = os.environ.get

NAME = "sequential_preLN__softmax_full_mha__dense_activation_relu__prompt_kernel"
pX, pWQ, pWO, pW1, pW2, pOUT, pDBG, pWS = 84, 86, 88, 92, 94, 96, 98, 78
sWS = 80
sWV = 100
sPoll = 101
SB = 48
STAT = 131072
LDS_TOTAL = 149504
SC = "sc1"
sX, sRk, sLoc = 72, 73, 74
ROLE = LDS_TOTAL - 64
POLL_MAX = 1 << 22

FS = E('FS', '').split(',') if E('FS') else []
FS0 = int(E('FS0', '9'))
def st(a, i):
    if FS and (i >= FS0) and i != 15: return
    stamp(a, i, base=SB)
def st2(a, i): pass
def stx(a, tag):
    if tag in FS: stamp(a, FS0 + FS.index(tag), base=SB)
def st_rt(a, i): stamp_rt(a, i, base=SB)

def lane_id(a, v):
    a(f"v_mbcnt_lo_u32_b32 v{v}, -1, 0")
    a(f"v_mbcnt_hi_u32_b32 v{v}, -1, v{v}")

def arrive(a, sIdx, vt):
    a(f"""
    s_lshl_b32 s{sPoll}, s{sIdx}, 7
    s_add_u32 s{sPoll}, s{sPoll}, {WS_CNT}
    v_mov_b32 v{vt}, s{sPoll}
    v_mov_b32 v{vt+1}, 1
    s_mov_b64 exec, 1
    buffer_atomic_add v{vt+1}, v{vt}, s[{sWS}:{sWS+3}], 0 offen sc1
    s_mov_b64 exec, -1
    """)

def dual(a, instrs):
    l0, l1 = a.newlabel("slow"), a.newlabel("dd")
    a(f"s_cmp_eq_u32 s{sLoc}, 0")
    a(f"s_cbranch_scc1 {l0}")
    for i in instrs: a(i.replace("@SC", E('LOCFL', '') if 'store' in i else ''))
    a(f"s_branch {l1}")
    a.label(l0)
    for i in instrs: a(i.replace("@SC", "sc1"))
    a.label(l1)

def arrive_l(a, sIdx, vt):
    a(f"""
    s_lshl_b32 s{sPoll}, s{sIdx}, 7
    s_add_u32 s{sPoll}, s{sPoll}, {WS_CNT}
    v_mov_b32 v{vt}, s{sPoll}
    v_mov_b32 v{vt+1}, 1
    s_mov_b64 exec, 1
    """)
    dual(a, [f"buffer_atomic_add v{vt+1}, v{vt}, s[{sWS}:{sWS+3}], 0 offen @SC"])
    a("s_mov_b64 exec, -1")

def arrive_f(a, sIdx, sSlot, vt):
    a(f"""
    s_lshl_b32 s{sPoll}, s{sIdx}, 7
    s_add_u32 s{sPoll}, s{sPoll}, {WS_CNT}
    s_lshl_b32 s75, s{sSlot}, 2
    s_add_u32 s{sPoll}, s{sPoll}, s75
    v_mov_b32 v{vt}, s{sPoll}
    v_mov_b32 v{vt+1}, 1
    s_mov_b64 exec, 1
    """)
    dual(a, [f"buffer_store_dword v{vt+1}, v{vt}, s[{sWS}:{sWS+3}], 0 offen @SC"])
    a("s_mov_b64 exec, -1")

def poll_f(a, sIdx, n, vt):
    a(f"""
    s_lshl_b32 s{sPoll}, s{sIdx}, 7
    s_add_u32 s{sPoll}, s{sPoll}, {WS_CNT}
    v_lshlrev_b32 v{vt+1}, 2, v1
    v_add_u32 v{vt+1}, s{sPoll}, v{vt+1}
    v_mov_b32 v{vt+2}, 1
    """)
    poll(a, vt + 1, vt + 2, n, vt)

def poll(a, vOff, vTgt, nl, vt):
    l0, l1 = a.newlabel("poll"), a.newlabel("pollok")
    a(f"s_mov_b64 exec, {(1 << nl) - 1:#x}")
    a(f"s_mov_b32 s{sPoll}, 0")
    a.label(l0)
    a(f"""
    buffer_load_dword v{vt}, v{vOff}, s[{sWS}:{sWS+3}], 0 offen sc1
    s_waitcnt vmcnt(0)
    v_cmp_gt_u32 vcc, v{vTgt}, v{vt}
    s_nop 4
    s_cmp_eq_u64 vcc, 0
    s_cbranch_scc1 {l1}
    s_add_u32 s{sPoll}, s{sPoll}, 1
    s_cmp_gt_u32 s{sPoll}, {POLL_MAX}
    s_cbranch_scc1 {l1}
    s_sleep 1
    s_branch {l0}
    """)
    a.label(l1)
    a("s_mov_b64 exec, -1")

def poll1(a, sIdx, target, vt):
    a(f"""
    s_lshl_b32 s{sPoll}, s{sIdx}, 7
    s_add_u32 s{sPoll}, s{sPoll}, {WS_CNT}
    v_mov_b32 v{vt+1}, s{sPoll}
    v_mov_b32 v{vt+2}, {target}
    """)
    poll(a, vt + 1, vt + 2, 1, vt)

def wave_sum(a, v):
    for sh in (1, 2, 4, 8):
        a(f"v_add_f32_dpp v{v}, v{v}, v{v} row_shr:{sh} row_mask:0xf bank_mask:0xf bound_ctrl:0")
        a("s_nop 1")
    a(f"v_add_f32_dpp v{v}, v{v}, v{v} row_bcast:15 row_mask:0xa bank_mask:0xf")
    a("s_nop 1")
    a(f"v_add_f32_dpp v{v}, v{v}, v{v} row_bcast:31 row_mask:0xc bank_mask:0xf")
    a("s_nop 1")

def p0_rows_issue(a, sXs, s0, vR, vA):
    a(f"""
    s_lshl_b32 s{s0}, s2, 3
    s_lshl_b32 s{s0+1}, s{sWV}, 1
    s_add_u32 s{s0}, s{s0}, s{s0+1}
    s_mul_i32 s{s0+2}, s{s0}, 1280
    v_lshlrev_b32 v{vA}, 4, v1
    v_lshlrev_b32 v{vA+1}, 2, v1
    s_add_u32 s{s0+3}, s{s0+2}, 1280
    buffer_load_dwordx4 {vr(vR,4)}, v{vA}, s[{sXs}:{sXs+3}], s{s0+2} offen
    buffer_load_dword v{vR+4}, v{vA+1}, s[{sXs}:{sXs+3}], s{s0+2} offen offset:1024
    buffer_load_dwordx4 {vr(vR+6,4)}, v{vA}, s[{sXs}:{sXs+3}], s{s0+3} offen
    buffer_load_dword v{vR+5}, v{vA+1}, s[{sXs}:{sXs+3}], s{s0+3} offen offset:1024
    """)
def p0_rows_finish(a, s0, vR, vA):
    for rr in range(2):
        regs = [vR + 6*rr + i for i in range(4)] + [vR + 4 + rr]
        S, Q, U = vA + 4, vA + 5, vA + 6
        for n, r in enumerate(regs):
            a(f"v_lshlrev_b32 v{U}, 16, v{r}")
            a(f"v_and_b32 v{U+1}, 0xffff0000, v{r}")
            if n == 0:
                a(f"v_add_f32 v{S}, v{U}, v{U+1}")
                a(f"v_mul_f32 v{Q}, v{U}, v{U}")
            else:
                a(f"v_add_f32 v{S}, v{S}, v{U}")
                a(f"v_add_f32 v{S}, v{S}, v{U+1}")
                a(f"v_fmac_f32 v{Q}, v{U}, v{U}")
            a(f"v_fmac_f32 v{Q}, v{U+1}, v{U+1}")
        a("s_nop 1")
        for sh in (1, 2, 4, 8):
            a(f"v_add_f32_dpp v{S}, v{S}, v{S} row_shr:{sh} row_mask:0xf bank_mask:0xf bound_ctrl:0")
            a(f"v_add_f32_dpp v{Q}, v{Q}, v{Q} row_shr:{sh} row_mask:0xf bank_mask:0xf bound_ctrl:0")
            a("s_nop 0")
        a(f"v_add_f32_dpp v{S}, v{S}, v{S} row_bcast:15 row_mask:0xa bank_mask:0xf")
        a(f"v_add_f32_dpp v{Q}, v{Q}, v{Q} row_bcast:15 row_mask:0xa bank_mask:0xf")
        a("s_nop 0")
        a(f"v_add_f32_dpp v{S}, v{S}, v{S} row_bcast:31 row_mask:0xc bank_mask:0xf")
        a(f"v_add_f32_dpp v{Q}, v{Q}, v{Q} row_bcast:31 row_mask:0xc bank_mask:0xf")
        a(f"""
        s_nop 0
        v_mul_f32 v{S}, {f32bits(1.0/640):#x}, v{S}
        v_mul_f32 v{Q}, {f32bits(1.0/640):#x}, v{Q}
        v_fma_f32 v{Q}, -v{S}, v{S}, v{Q}
        v_max_f32 v{Q}, 0, v{Q}
        v_add_f32 v{Q}, {f32bits(1e-5):#x}, v{Q}
        v_rsq_f32 v{Q}, v{Q}
        s_nop 0
        v_mov_b32 v{vA+8+2*rr}, v{S}
        v_mov_b32 v{vA+9+2*rr}, v{Q}
        """)
    a(f"""
    s_lshl_b32 s{s0+4}, s{s0}, 3
    s_add_u32 s{s0+4}, s{s0+4}, {WS_ST1}
    v_mov_b32 v{vA+4}, 0
    s_mov_b32 exec_lo, 0
    s_mov_b32 exec_hi, 0x80000000
    buffer_store_dwordx4 {vr(vA+8,4)}, v{vA+4}, s[{sWS}:{sWS+3}], s{s0+4} offen {SC}
    s_mov_b64 exec, -1
    """)
def colsum_issue(a, which, srd, sW4, s0, vC, vA):
    ld = 3840 if which == 'wq' else 3456
    a(f"""
    s_and_b32 s{s0+1}, s2, 7
    s_lshr_b32 s{s0+2}, s2, 3
    s_lshr_b32 s{s0+3}, s{s0+1}, 1
    s_lshl_b32 s{s0+3}, s{s0+3}, 5
    s_add_u32 s{s0+2}, s{s0+2}, s{s0+3}
    s_and_b32 s{s0+1}, s{s0+1}, 1
    s_and_b32 s{s0+3}, s{s0+2}, 15
    s_lshr_b32 s{s0+2}, s{s0+2}, 4
    v_lshrrev_b32 v{vA}, 3, v1
    v_and_b32 v{vA+1}, 7, v1
    v_lshlrev_b32 v{vA+1}, 2, v{vA+1}
    v_mul_u32_u24 v{vA+2}, {ld}, v{vA}
    v_add_u32 v{vA+2}, v{vA+2}, v{vA+1}
    s_lshl_b32 s{s0+4}, s{s0+3}, 6
    s_lshl_b32 s{s0+7}, s{sW4}, 4
    s_add_u32 s{s0+4}, s{s0+4}, s{s0+7}
    s_mul_i32 s{s0+5}, s{s0+1}, {1024 if which == 'wq' else 896}
    s_add_u32 s{s0+5}, s{s0+5}, s{s0+4}
    s_mul_i32 s{s0+7}, s{s0+2}, {80*ld}
    s_lshl_b32 s{s0+4}, s{s0+5}, 1
    s_add_u32 s{s0+7}, s{s0+7}, s{s0+4}
    """)
    for j in range(10):
        a(f"buffer_load_dword v{vC+j}, v{vA+2}, s[{srd}:{srd+3}], s{s0+7} offen")
        if j < 9: a(f"s_add_u32 s{s0+7}, s{s0+7}, {8*ld}")
def colsum_finish(a, which, s0, vC, vA):
    base, ncol = (WS_CS1, 1920) if which == 'wq' else (WS_CS2, 1792)
    A0, A1, U = vA + 4, vA + 5, vA + 6
    for j in range(10):
        if j == 0:
            a(f"v_lshlrev_b32 v{A0}, 16, v{vC}")
            a(f"v_and_b32 v{A1}, 0xffff0000, v{vC}")
        else:
            a(f"v_lshlrev_b32 v{U}, 16, v{vC+j}")
            a(f"v_and_b32 v{U+1}, 0xffff0000, v{vC+j}")
            a(f"v_add_f32 v{A0}, v{A0}, v{U}")
            a(f"v_add_f32 v{A1}, v{A1}, v{U+1}")
    a(f"""
    s_nop 1
    v_add_f32_dpp v{A0}, v{A0}, v{A0} row_ror:8 row_mask:0xf bank_mask:0xf
    v_add_f32_dpp v{A1}, v{A1}, v{A1} row_ror:8 row_mask:0xf bank_mask:0xf
    s_nop 1
    v_mov_b32 v{U}, v{A0}
    v_mov_b32 v{U+1}, v{A1}
    s_nop 1
    v_permlane16_swap_b32 v{A0}, v{U}
    v_permlane16_swap_b32 v{A1}, v{U+1}
    s_nop 1
    v_add_f32 v{A0}, v{A0}, v{U}
    v_add_f32 v{A1}, v{A1}, v{U+1}
    s_nop 0
    v_mov_b32 v{U}, v{A0}
    v_mov_b32 v{U+1}, v{A1}
    s_nop 1
    v_permlane32_swap_b32 v{A0}, v{U}
    v_permlane32_swap_b32 v{A1}, v{U+1}
    s_nop 1
    v_add_f32 v{vA+12}, v{A0}, v{U}
    v_add_f32 v{vA+13}, v{A1}, v{U+1}
    v_lshlrev_b32 v{U}, 3, v1
    s_mul_i32 s{s0+4}, s{s0+2}, {ncol*4}
    s_lshl_b32 s{s0+7}, s{s0+5}, 2
    s_add_u32 s{s0+4}, s{s0+4}, s{s0+7}
    s_add_u32 s{s0+4}, s{s0+4}, {base}
    """)
    lab = a.newlabel("p0skip")
    if which == 'wq':
        a(f"s_cmp_ge_u32 s{s0+5}, 1920")
    else:
        a(f"s_sub_u32 s{s0+7}, 14, s{s0+1}")
        a(f"s_cmp_ge_u32 s{s0+3}, s{s0+7}")
    a(f"s_cbranch_scc1 {lab}")
    a("s_mov_b64 exec, 0xff")
    a(f"buffer_store_dwordx2 {vr(vA+12,2)}, v{U}, s[{sWS}:{sWS+3}], s{s0+4} offen {SC}")
    a("s_mov_b64 exec, -1")
    a.label(lab)
def emit_p0(a):
    sXs, sWq, s0 = 8, 12, 40
    vR, vC, vA = 4, 14, 34
    make_srd(a, sXs, pX, pX+1, 0, 2048*1280)
    make_srd(a, sWq, pWQ, pWQ+1, 0, 640*3840)
    p0_rows_issue(a, sXs, s0, vR, vA)
    a(f"s_mov_b32 s39, s{s0}")
    colsum_issue(a, 'wq', sWq, sWV, s0, vC, vA + 12)
    a("s_waitcnt vmcnt(10)")
    a(f"s_mov_b32 s38, s{s0+4}")
    p0_rows_finish(a, 39, vR, vA) if False else None
    p0_rows_finish_b(a, 39, 38, vR, vA)
    a("s_waitcnt vmcnt(1)")
    colsum_finish(a, 'wq', s0, vC, vA + 12)
def p0_rows_finish_b(a, sRow, sTmp, vR, vA):
    import io
    class Tmp: pass
    for rr in range(2):
        regs = [vR + 6*rr + i for i in range(4)] + [vR + 4 + rr]
        S, Q, U = vA + 4, vA + 5, vA + 6
        for n, r in enumerate(regs):
            a(f"v_lshlrev_b32 v{U}, 16, v{r}")
            a(f"v_and_b32 v{U+1}, 0xffff0000, v{r}")
            if n == 0:
                a(f"v_add_f32 v{S}, v{U}, v{U+1}")
                a(f"v_mul_f32 v{Q}, v{U}, v{U}")
            else:
                a(f"v_add_f32 v{S}, v{S}, v{U}")
                a(f"v_add_f32 v{S}, v{S}, v{U+1}")
                a(f"v_fmac_f32 v{Q}, v{U}, v{U}")
            a(f"v_fmac_f32 v{Q}, v{U+1}, v{U+1}")
        a("s_nop 1")
        for sh in (1, 2, 4, 8):
            a(f"v_add_f32_dpp v{S}, v{S}, v{S} row_shr:{sh} row_mask:0xf bank_mask:0xf bound_ctrl:0")
            a(f"v_add_f32_dpp v{Q}, v{Q}, v{Q} row_shr:{sh} row_mask:0xf bank_mask:0xf bound_ctrl:0")
            a("s_nop 0")
        a(f"v_add_f32_dpp v{S}, v{S}, v{S} row_bcast:15 row_mask:0xa bank_mask:0xf")
        a(f"v_add_f32_dpp v{Q}, v{Q}, v{Q} row_bcast:15 row_mask:0xa bank_mask:0xf")
        a("s_nop 0")
        a(f"v_add_f32_dpp v{S}, v{S}, v{S} row_bcast:31 row_mask:0xc bank_mask:0xf")
        a(f"v_add_f32_dpp v{Q}, v{Q}, v{Q} row_bcast:31 row_mask:0xc bank_mask:0xf")
        a(f"""
        s_nop 0
        v_mul_f32 v{S}, {f32bits(1.0/640):#x}, v{S}
        v_mul_f32 v{Q}, {f32bits(1.0/640):#x}, v{Q}
        v_fma_f32 v{Q}, -v{S}, v{S}, v{Q}
        v_max_f32 v{Q}, 0, v{Q}
        v_add_f32 v{Q}, {f32bits(1e-5):#x}, v{Q}
        v_rsq_f32 v{Q}, v{Q}
        s_nop 0
        v_mov_b32 v{vA+8+2*rr}, v{S}
        v_mov_b32 v{vA+9+2*rr}, v{Q}
        """)
    a(f"""
    s_lshl_b32 s{sTmp}, s{sRow}, 3
    s_add_u32 s{sTmp}, s{sTmp}, {WS_ST1}
    v_mov_b32 v{vA+4}, 0
    s_mov_b32 exec_lo, 0
    s_mov_b32 exec_hi, 0x80000000
    buffer_store_dwordx4 {vr(vA+8,4)}, v{vA+4}, s[{sWS}:{sWS+3}], s{sTmp} offen {SC}
    s_mov_b64 exec, -1
    """)
def dbg_flag_issue(a, vt):
    make_srd(a, 44, pDBG, pDBG+1, 0, 256)
    a(f"v_mov_b32 v{vt+1}, 0")
    a(f"buffer_load_dword v{vt}, v{vt+1}, s[44:47], 0 offen sc1")
def dbg_flag_issue_b(a, vt):
    make_srd(a, 16, pDBG, pDBG+1, 0, 256)
    a(f"v_mov_b32 v{vt+1}, 0")
    a(f"buffer_load_dword v{vt}, v{vt+1}, s[16:19], 0 offen sc1")
def dbg_flag_wait(a, vt, srd=44, landed=False):
    l0, l1, l2 = a.newlabel("dbgp"), a.newlabel("dbgok"), a.newlabel("dbgc")
    a(f"s_mov_b32 s{sPoll}, 0")
    if landed: a(f"s_branch {l2}")
    a.label(l0)
    a("s_waitcnt vmcnt(0)")
    a.label(l2)
    a(f"""
    v_readfirstlane_b32 s75, v{vt}
    s_cmp_lg_u32 s75, 0
    s_cbranch_scc1 {l1}
    s_add_u32 s{sPoll}, s{sPoll}, 1
    s_cmp_gt_u32 s{sPoll}, {POLL_MAX}
    s_cbranch_scc1 {l1}
    s_sleep 1
    buffer_load_dword v{vt}, v{vt+1}, s[{srd}:{srd+3}], 0 offen sc1
    s_branch {l0}
    """)
    a.label(l1)
def dbg_flag_wait_arrive_b(a, cbase, vt):
    dbg_flag_wait_arrive(a, cbase, vt, 16)
def dbg_flag_wait_arrive(a, cbase, vt, srd=44):
    l0, l1 = a.newlabel("dbgp"), a.newlabel("dbgok")
    a(f"s_mov_b32 s{sPoll}, 0")
    a.label(l0)
    a(f"""
    s_waitcnt vmcnt(0)
    v_readfirstlane_b32 s75, v{vt}
    s_cmp_lg_u32 s75, 0
    s_cbranch_scc1 {l1}
    s_add_u32 s{sPoll}, s{sPoll}, 1
    s_cmp_gt_u32 s{sPoll}, {POLL_MAX}
    s_cbranch_scc1 {l1}
    s_sleep 1
    buffer_load_dword v{vt}, v{vt+1}, s[{srd}:{srd+3}], 0 offen sc1
    s_branch {l0}
    """)
    a.label(l1)
    a(f"s_and_b32 s75, s2, 7")
    a(f"s_add_u32 s75, s75, {cbase}")
    arrive(a, 75, vt)

class P0Q:
    vR, vC, vD, vA = 64, 84, 94, 104
    def __init__(self, a, L):
        self.a, self.L = a, L
    def issue(self):
        a, L = self.a, self.L
        vR, vC, vD, vA = self.vR, self.vC, self.vD, self.vA
        sXs, sWq = L.sA, L.sW
        sW1 = 16
        make_srd(a, sW1, pW1, pW1+1, 0, 640*3456)
        a(f"""
        v_lshrrev_b32 v2, 4, v1
        v_and_b32 v3, 15, v1
        s_lshl_b32 s40, s{L.sNt}, 4
        s_add_u32 s40, s40, s{L.sM0}
        s_lshl_b32 s41, s{L.sLw}, 2
        s_add_u32 s40, s40, s41
        s_cmp_lt_u32 s{L.sNt}, 8
        s_cselect_b32 s40, s40, 4096
        v_add_u32 v{vA}, s40, v2
        v_mul_u32_u24 v{vA+1}, 1280, v{vA}
        v_lshlrev_b32 v{vA+2}, 4, v3
        v_add_u32 v{vA+1}, v{vA+1}, v{vA+2}
        """)
        for j in range(5):
            a(f"buffer_load_dwordx4 {vr(vR+4*j,4)}, v{vA+1}, s[{sXs}:{sXs+3}], 0 offen offset:{256*j}")
        a(f"""
        s_lshr_b32 s41, s{L.sM0}, 7
        s_mul_i32 s42, s41, {40*3840}
        s_lshl_b32 s43, s{L.sLw}, 5
        s_add_u32 s43, s43, s{L.sN0}
        s_lshl_b32 s40, s43, 1
        s_add_u32 s42, s42, s40
        v_mul_u32_u24 v{vA+2}, 3840, v2
        v_lshlrev_b32 v{vA+3}, 2, v3
        v_add_u32 v{vA+2}, v{vA+2}, v{vA+3}
        """)
        for j in range(10):
            a(f"buffer_load_dword v{vC+j}, v{vA+2}, s[{sWq}:{sWq+3}], s42 offen")
            if j < 9: a(f"s_add_u32 s42, s42, {4*3840}")
        a(f"""
        s_mul_i32 s42, s41, {40*3456}
        s_add_u32 s42, s42, s40
        s_cmp_lt_u32 s{L.sNt}, 14
        s_cselect_b32 s42, s42, 0x7f000000
        v_mul_u32_u24 v{vA+4}, 3456, v2
        v_add_u32 v{vA+4}, v{vA+4}, v{vA+3}
        """)
        for j in range(10):
            a(f"buffer_load_dword v{vD+j}, v{vA+4}, s[{sW1}:{sW1+3}], s42 offen")
            if j < 9: a(f"s_add_u32 s42, s42, {4*3456}")
    def rows(self):
        a, L = self.a, self.L
        vR, vA = self.vR, self.vA
        S, Q, U = vA + 5, vA + 6, vA + 8
        for n in range(20):
            r = vR + n
            u = U + 2*(n & 1)
            a(f"v_lshlrev_b32 v{u}, 16, v{r}")
            a(f"v_and_b32 v{u+1}, 0xffff0000, v{r}")
            if n == 0:
                a(f"v_add_f32 v{S}, v{u}, v{u+1}")
                a(f"v_mul_f32 v{Q}, v{u}, v{u}")
            else:
                a(f"v_add_f32 v{S}, v{S}, v{u}")
                a(f"v_fmac_f32 v{Q}, v{u}, v{u}")
                a(f"v_add_f32 v{S}, v{S}, v{u+1}")
            a(f"v_fmac_f32 v{Q}, v{u+1}, v{u+1}")
        a("s_nop 1")
        for sh in (1, 2, 4, 8):
            a(f"v_add_f32_dpp v{S}, v{S}, v{S} row_shr:{sh} row_mask:0xf bank_mask:0xf bound_ctrl:0")
            a(f"v_add_f32_dpp v{Q}, v{Q}, v{Q} row_shr:{sh} row_mask:0xf bank_mask:0xf bound_ctrl:0")
            a("s_nop 0")
        a(f"""
        v_mul_f32 v{S}, {f32bits(1.0/640):#x}, v{S}
        v_mul_f32 v{Q}, {f32bits(1.0/640):#x}, v{Q}
        v_fma_f32 v{Q}, -v{S}, v{S}, v{Q}
        v_max_f32 v{Q}, 0, v{Q}
        v_add_f32 v{Q}, {f32bits(1e-5):#x}, v{Q}
        v_rsq_f32 v{Q}, v{Q}
        v_mov_b32 v{U}, v{S}
        v_lshlrev_b32 v{U+2}, 3, v{vA}
        v_mov_b32 v{U+3}, 0x7fffff00
        v_cmp_gt_u32 vcc, 2048, v{vA}
        v_mov_b32 v{U+1}, v{Q}
        v_cndmask_b32 v{U+2}, v{U+3}, v{U+2}, vcc
        s_mov_b32 s40, {WS_ST1}
        s_mov_b32 exec_lo, 0x80008000
        s_mov_b32 exec_hi, 0x80008000
        buffer_store_dwordx2 {vr(U,2)}, v{U+2}, s[{sWS}:{sWS+3}], s40 offen {SC}
        s_mov_b64 exec, -1
        """)
    def cols(self, which):
        a, L = self.a, self.L
        vA = self.vA
        regs, base, ncol, lim = (self.vC, WS_CS1, 1920, 15) if which == 0 else (self.vD, WS_CS2, 1792, 14)
        U = vA + 8
        A0, A1 = vA + 5, vA + 6
        for j in range(10):
            u = U + 2*(j & 1)
            if j == 0:
                a(f"v_lshlrev_b32 v{A0}, 16, v{regs}")
                a(f"v_and_b32 v{A1}, 0xffff0000, v{regs}")
            else:
                a(f"v_lshlrev_b32 v{u}, 16, v{regs+j}")
                a(f"v_and_b32 v{u+1}, 0xffff0000, v{regs+j}")
                a(f"v_add_f32 v{A0}, v{A0}, v{u}")
                a(f"v_add_f32 v{A1}, v{A1}, v{u+1}")
        a(f"""
        s_nop 0
        v_mov_b32 v{U}, v{A0}
        v_mov_b32 v{U+1}, v{A1}
        s_nop 1
        v_permlane16_swap_b32 v{A0}, v{U}
        v_permlane16_swap_b32 v{A1}, v{U+1}
        s_nop 1
        v_add_f32 v{A0}, v{A0}, v{U}
        v_add_f32 v{A1}, v{A1}, v{U+1}
        s_nop 0
        v_mov_b32 v{U}, v{A0}
        v_mov_b32 v{U+1}, v{A1}
        s_nop 1
        v_permlane32_swap_b32 v{A0}, v{U}
        v_permlane32_swap_b32 v{A1}, v{U+1}
        s_nop 1
        v_add_f32 v{U+4}, v{A0}, v{U}
        v_add_f32 v{U+5}, v{A1}, v{U+1}
        v_lshlrev_b32 v{U}, 3, v3
        s_mul_i32 s42, s41, {ncol*4}
        s_lshl_b32 s40, s43, 2
        s_add_u32 s42, s42, s40
        s_add_u32 s42, s42, {base}
        s_cmp_lt_u32 s{L.sNt}, {lim}
        s_cselect_b32 s42, s42, 0x7f000000
        s_mov_b64 exec, 0xffff
        buffer_store_dwordx2 {vr(U+4,2)}, v{U}, s[{sWS}:{sWS+3}], s42 offen {SC}
        s_mov_b64 exec, -1
        s_nop 1
        """)
def emit_p0r(a, L):
    sXs, vR, vA = 8, 146, 132
    make_srd(a, sXs, pX, pX+1, 0, 2048*1280)
    a(f"""
    v_lshrrev_b32 v166, 4, v1
    v_and_b32 v167, 15, v1
    s_lshl_b32 s75, s{L.sNt}, 4
    s_add_u32 s75, s75, s{L.sM0}
    s_lshl_b32 s76, s{sWV}, 2
    s_add_u32 s75, s75, s76
    s_cmp_lt_u32 s{L.sNt}, 8
    s_cselect_b32 s75, s75, 4096
    v_add_u32 v{vA}, s75, v166
    v_mul_u32_u24 v{vA+1}, 1280, v{vA}
    v_lshlrev_b32 v{vA+2}, 4, v167
    v_add_u32 v{vA+1}, v{vA+1}, v{vA+2}
    """)
    for j in range(5):
        a(f"buffer_load_dwordx4 {vr(vR+4*j,4)}, v{vA+1}, s[{sXs}:{sXs+3}], 0 offen offset:{256*j}")
def emit_p0r_finish(a, L, extra=0):
    vR, vA = 146, 132
    S, Q, S2, Q2, U = vA + 4, vA + 5, vA + 6, vA + 7, vA + 8
    for j in range(5):
        a(f"s_waitcnt vmcnt({4 - j + extra})")
        for n in range(4):
            r = vR + 4*j + n
            u = U + 2*(n & 1)
            a(f"v_lshlrev_b32 v{u}, 16, v{r}")
            a(f"v_and_b32 v{u+1}, 0xffff0000, v{r}")
            if j == 0 and n == 0:
                a(f"v_mov_b32 v{S}, v{u}")
                a(f"v_mul_f32 v{Q}, v{u}, v{u}")
                a(f"v_mov_b32 v{S2}, v{u+1}")
                a(f"v_mul_f32 v{Q2}, v{u+1}, v{u+1}")
            else:
                a(f"v_add_f32 v{S}, v{S}, v{u}")
                a(f"v_fmac_f32 v{Q}, v{u}, v{u}")
                a(f"v_add_f32 v{S2}, v{S2}, v{u+1}")
                a(f"v_fmac_f32 v{Q2}, v{u+1}, v{u+1}")
    a(f"v_add_f32 v{S}, v{S}, v{S2}")
    a(f"v_add_f32 v{Q}, v{Q}, v{Q2}")
    a("s_nop 1")
    for sh in (1, 2, 4, 8):
        a(f"v_add_f32_dpp v{S}, v{S}, v{S} row_shr:{sh} row_mask:0xf bank_mask:0xf bound_ctrl:0")
        a(f"v_add_f32_dpp v{Q}, v{Q}, v{Q} row_shr:{sh} row_mask:0xf bank_mask:0xf bound_ctrl:0")
        a("s_nop 0")
    a(f"""
    v_mul_f32 v{S}, {f32bits(1.0/640):#x}, v{S}
    v_mul_f32 v{Q}, {f32bits(1.0/640):#x}, v{Q}
    v_fma_f32 v{Q}, -v{S}, v{S}, v{Q}
    v_max_f32 v{Q}, 0, v{Q}
    v_add_f32 v{Q}, {f32bits(1e-5):#x}, v{Q}
    v_rsq_f32 v{Q}, v{Q}
    v_mov_b32 v{U}, v{S}
    v_lshlrev_b32 v{U+2}, 3, v{vA}
    v_mov_b32 v{U+3}, 0x7fffff00
    v_cmp_gt_u32 vcc, 2048, v{vA}
    v_mov_b32 v{U+1}, v{Q}
    v_cndmask_b32 v{U+2}, v{U+3}, v{U+2}, vcc
    s_mov_b32 s75, {WS_ST1}
    s_mov_b32 exec_lo, 0x80008000
    s_mov_b32 exec_hi, 0x80008000
    buffer_store_dwordx2 {vr(U,2)}, v{U+2}, s[{sWS}:{sWS+3}], s75 offen {SC}
    s_mov_b64 exec, -1
    """)
def p0r_arrive(a, L, vt):
    ok, skip = a.newlabel("fok"), a.newlabel("fsk")
    dbg_flag_wait(a, vt, landed=True)
    a(f"s_cmp_lt_u32 s{L.sNt}, 8")
    a(f"s_cbranch_scc0 {skip}")
    a(f"s_lshr_b32 s76, s{L.sM0}, 7")
    a(f"s_add_u32 s76, s76, {C_ST}")
    arrive(a, 76, vt - 2)
    a.label(skip)

def qkv_prefetch(a, L):
    make_srd(a, 12, pWQ, pWQ+1, 0, 640*3840)
    make_srd(a, 8, pX, pX+1, 0, 2048*1280)
    fl = E('QPF_FL', 'sc1')
    a(f"""
    s_lshr_b32 s40, s2, 3
    s_and_b32 s41, s2, 1
    v_and_b32 v2, 15, v1
    v_lshrrev_b32 v3, 4, v1
    v_lshlrev_b32 v2, 7, v2
    v_mul_u32_u24 v3, 3840, v3
    v_add_u32 v4, v2, v3
    s_mul_i32 s42, s40, {20*3840}
    s_lshl_b32 s43, s41, 11
    s_add_u32 s42, s42, s43
    s_mul_i32 s43, s{sWV}, {4*3840}
    s_add_u32 s42, s42, s43
    buffer_load_dword v162, v4, s[12:15], s42 offen {fl}
    """)
    l = a.newlabel("qpf")
    a(f"""
    s_cmp_eq_u32 s{sWV}, 0
    s_cbranch_scc0 {l}
    s_add_u32 s42, s42, {16*3840}
    buffer_load_dword v162, v4, s[12:15], s42 offen {fl}
    """)
    a.label(l)
    l = a.newlabel("qpf")
    a(f"""
    s_cmp_eq_u32 s{sWV}, 0
    s_cbranch_scc1 {l}
    s_and_b32 s41, s2, 7
    s_lshr_b32 s41, s41, 1
    s_lshl_b32 s41, s41, 5
    s_add_u32 s41, s41, s40
    s_mul_i32 s42, s41, 20480
    s_sub_u32 s43, s{sWV}, 1
    s_lshl_b32 s43, s43, 13
    s_add_u32 s42, s42, s43
    v_lshlrev_b32 v4, 7, v1
    buffer_load_dword v162, v4, s[8:11], s42 offen {fl}
    """)
    a.label(l)

def p0q_arrive(a, L, vt):
    ok = a.newlabel("fok")
    a(f"v_readfirstlane_b32 s75, v{vt}")
    a("s_cmp_lg_u32 s75, 0")
    a(f"s_cbranch_scc1 {ok}")
    dbg_flag_wait(a, vt)
    a.label(ok)
    a(f"""
    s_lshr_b32 s75, s{L.sM0}, 7
    s_add_u32 s75, s75, {C_ST}
    s_add_u32 s76, s{L.sNt}, {C_CS1}
    s_add_u32 s77, s{L.sNt}, {C_CS2}
    v_mov_b32 v{vt-1}, s75
    v_writelane_b32 v{vt-1}, s76, 1
    v_writelane_b32 v{vt-1}, s77, 2
    s_nop 0
    v_lshlrev_b32 v{vt-1}, 7, v{vt-1}
    v_add_u32 v{vt-1}, {WS_CNT}, v{vt-1}
    v_mov_b32 v{vt-2}, 1
    s_cmp_lt_u32 s{L.sNt}, 8
    s_cselect_b32 s75, 1, 0
    s_or_b32 s75, s75, 2
    s_cmp_lt_u32 s{L.sNt}, 14
    s_cselect_b32 s76, 4, 0
    s_or_b32 s75, s75, s76
    s_mov_b32 exec_lo, s75
    s_mov_b32 exec_hi, 0
    buffer_atomic_add v{vt-2}, v{vt-1}, s[{sWS}:{sWS+3}], 0 offen sc1
    s_mov_b64 exec, -1
    """)

def w2p_prefetch(a, j):
    a(f"""
    s_mul_i32 s75, s{sRk}, {SZ_W2P // 32}
    s_add_u32 s75, s75, {WS_W2P + j * 8192}
    v_lshlrev_b32 v61, 7, v1
    buffer_load_dword v60, v61, s[{sWS}:{sWS+3}], s75 offen sc1
    """)

class Repack:
    aB, vD, vT = 28, 28, 88
    sWo, sW2, sW1 = 12, 16, 40
    def __init__(self, a): self.a = a
    def issue(self, defer=False):
        a = self.a
        aB, vD, T = self.aB, self.vD, self.vT
        a(f"""
        s_mul_i32 s75, s2, 768
        s_lshl_b32 s76, s{sWV}, 6
        s_add_u32 s75, s75, s76
        v_add_u32 v{T}, s75, v1
        """)
        for r in range(3):
            g, it, sg, rho, c, row, nt, st_, x = T+1, T+2, T+3, T+4, T+5, T+6, T+7, T+8, T+9
            a(f"""
            v_add_u32 v{g}, {256*r}, v{T}
            s_mov_b32 s75, {(1 << 32) // 1280 + 1:#x}
            v_mul_hi_u32 v{it}, v{g}, s75
            v_mul_u32_u24 v{sg}, 1280, v{it}
            v_sub_u32 v{sg}, v{g}, v{sg}
            v_mul_u32_u24 v{rho}, 0xcccd, v{sg}
            v_lshrrev_b32 v{rho}, 19, v{rho}
            v_mul_u32_u24 v{c}, 10, v{rho}
            v_sub_u32 v{c}, v{sg}, v{c}
            v_and_b32 v{row}, 0x73, v{rho}
            v_and_b32 v{x}, 4, v{rho}
            v_lshlrev_b32 v{x}, 1, v{x}
            v_or_b32 v{row}, v{row}, v{x}
            v_and_b32 v{x}, 8, v{rho}
            v_lshrrev_b32 v{x}, 1, v{x}
            v_or_b32 v{row}, v{row}, v{x}
            v_lshlrev_b32 v{vD+r}, 4, v{g}
            v_cmp_gt_u32 vcc, 40, v{it}
            v_subrev_u32 v{x}, 40, v{it}
            s_nop 0
            v_cndmask_b32 v{x}, v{x}, v{it}, vcc
            v_mul_u32_u24 v{nt}, 0x4925, v{x}
            v_mul_u32_u24 v{st_}, 0xcccd, v{x}
            v_cndmask_b32 v{nt}, v{nt}, v{st_}, vcc
            v_lshrrev_b32 v{nt}, 18, v{nt}
            v_mov_b32 v{st_}, 14
            v_cndmask_b32 v{st_}, v{st_}, 5, vcc
            v_mul_u32_u24 v{st_}, v{st_}, v{nt}
            v_sub_u32 v{st_}, v{x}, v{st_}
            v_lshlrev_b32 v{st_}, 7, v{st_}
            v_add_u32 v{row}, v{row}, v{st_}
            v_mul_u32_u24 v{row}, 1280, v{row}
            v_mul_u32_u24 v{nt}, 160, v{nt}
            v_lshlrev_b32 v{c}, 4, v{c}
            v_add3_u32 v{row}, v{row}, v{nt}, v{c}
            v_mov_b32 v{x}, 0x7fffff00
            v_cndmask_b32 v{nt}, v{x}, v{row}, vcc
            v_cndmask_b32 v{row}, v{row}, v{x}, vcc
            v_cmp_gt_u32 vcc, 152, v{it}
            s_nop 1
            v_cndmask_b32 v{vD+r}, v{x}, v{vD+r}, vcc
            """)
            a(f"v_mov_b32 v{100+2*r}, v{nt}")
            a(f"v_mov_b32 v{101+2*r}, v{row}")
            a(f"v_mov_b32 v{106+r}, v{it}")
        if defer:
            for k in range(9): a(f"v_accvgpr_write_b32 a{40+k}, v{100+k}")
            return
        self.loads()
    def loads(self, base=100, tmp=None):
        a = self.a
        aB, T = self.aB, (self.vT if tmp is None else tmp)
        if base != 100:
            for k in range(9): a(f"v_accvgpr_read_b32 v{base+k}, a{40+k}")
        self.sWo, self.sW2, self.sW1 = 8, 12, 36
        make_srd(a, self.sWo, pWO, pWO+1, 0, 640*1280)
        make_srd(a, self.sW2, pW2, pW2+1, 0, 1728*1280)
        make_srd(a, self.sW1, pW1, pW1+1, 0, 640*3456)
        for r in range(3):
            la, lb = a.newlabel("rpa"), a.newlabel("rpb")
            a(f"""
            v_cmp_gt_u32 vcc, 40, v{base+6+r}
            s_nop 4
            s_mov_b64 s[76:77], vcc
            s_mov_b64 exec, vcc
            s_cbranch_execz {la}
            buffer_load_dwordx4 {ar(aB+4*r,4)}, v{base+2*r}, s[{self.sWo}:{self.sWo+3}], 0 offen
            {la}:
            s_not_b64 exec, s[76:77]
            s_cbranch_execz {lb}
            buffer_load_dwordx4 {ar(aB+4*r,4)}, v{base+1+2*r}, s[{self.sW2}:{self.sW2+3}], 0 offen
            {lb}:
            s_mov_b64 exec, -1
            """)
        a(f"""
        s_mul_i32 s75, s2, 8640
        s_mul_i32 s76, s{sWV}, 2176
        s_add_u32 s75, s75, s76
        v_lshlrev_b32 v{T}, 7, v1
        s_mov_b64 exec, 0x1ffff
        buffer_load_dword v31, v{T}, s[{self.sW1}:{self.sW1+3}], s75 offen sc1
        s_mov_b64 exec, -1
        """)
    def store(self, wait_after=True, pre="s_waitcnt vmcnt(0)"):
        a = self.a
        a(pre)
        a(f"s_mov_b32 s75, {WS_WOP}")
        for r in range(3):
            a(f"buffer_store_dwordx4 {ar(self.aB+4*r,4)}, v{self.vD+r}, s[{sWS}:{sWS+3}], s75 offen {SC}")
        if wait_after: a("s_waitcnt vmcnt(0)")
        else: a("s_nop 1")

class CoreL:
    sA, sW, sO = 8, 12, 16
    sM0, sN0, sT0, sT1, sT2, sT3 = 21, 22, 23, 24, 25, 26
    sLw, sSlot, sAoff, sWoff, sLds = 20, 28, 29, 30, 31
    sWm, sWn, sNt, sSeq, sSeqW = 32, 33, 34, 35, 36
    vAe, vAo, vWo = 4, 5, 6
    NST = 10
    def __init__(self, a, mode, tag):
        self.a, self.mode, self.tag = a, mode, tag
        self.qkv = mode == 'qkv'
        self.LDW = 3840 if self.qkv else 3456
    def map_tiles(self, idle_label):
        a, c = self.a, self
        if not c.qkv:
            a(f"""
            s_and_b32 s{c.sT3}, s{sRk}, 1
            s_lshl_b32 s{c.sM0}, s{sX}, 1
            s_add_u32 s{c.sM0}, s{c.sM0}, s{c.sT3}
            s_lshl_b32 s{c.sM0}, s{c.sM0}, 7
            s_lshr_b32 s{c.sNt}, s{sRk}, 1
            s_cmp_ge_u32 s{c.sNt}, 14
            s_cbranch_scc1 {idle_label}
            s_lshl_b32 s{c.sN0}, s{c.sNt}, 7
            s_mul_i32 s{c.sSeq}, s{c.sNt}, 3
            s_mul_i32 s{c.sT0}, s{c.sT3}, 5
            s_add_u32 s{c.sSeq}, s{c.sSeq}, s{c.sT0}
            s_mul_i32 s{c.sT0}, s{c.sSeq}, 0xcccd
            s_lshr_b32 s{c.sT0}, s{c.sT0}, 19
            s_mul_i32 s{c.sT0}, s{c.sT0}, 10
            s_sub_u32 s{c.sSeq}, s{c.sSeq}, s{c.sT0}
            """)
            if E('NOROTL'): a(f"s_mov_b32 s{c.sSeq}, 0")
            return
        NT_PER = 8 if c.qkv else 7
        NT_TOT = 15 if c.qkv else 14
        a(f"""
        s_and_b32 s{c.sT0}, s2, 7
        s_lshr_b32 s{c.sT1}, s2, 3
        s_lshr_b32 s{c.sT2}, s{c.sT0}, 1
        s_lshl_b32 s{c.sT2}, s{c.sT2}, 2
        s_and_b32 s{c.sT3}, s{c.sT1}, 3
        s_add_u32 s{c.sM0}, s{c.sT2}, s{c.sT3}
        s_lshl_b32 s{c.sM0}, s{c.sM0}, 7
        s_and_b32 s{c.sT0}, s{c.sT0}, 1
        s_mul_i32 s{c.sT0}, s{c.sT0}, {NT_PER}
        s_lshr_b32 s{c.sT1}, s{c.sT1}, 2
        s_add_u32 s{c.sNt}, s{c.sT0}, s{c.sT1}
        s_cmp_ge_u32 s{c.sT1}, {NT_PER}
        s_cbranch_scc1 {idle_label}
        s_cmp_ge_u32 s{c.sNt}, {NT_TOT}
        s_cbranch_scc1 {idle_label}
        s_lshl_b32 s{c.sN0}, s{c.sNt}, 7
        s_mul_i32 s{c.sSeq}, s{c.sT3}, 3
        s_add_u32 s{c.sSeq}, s{c.sSeq}, s{c.sT1}
        s_cmp_ge_u32 s{c.sSeq}, 10
        s_cselect_b32 s{c.sT0}, 10, 0
        s_sub_u32 s{c.sSeq}, s{c.sSeq}, s{c.sT0}
        """)
        if E('NOROTL'): a(f"s_mov_b32 s{c.sSeq}, 0")
    def loader_setup(self):
        a, c = self.a, self
        a(f"s_sub_u32 s{c.sLw}, s{sWV}, 4")
        if c.qkv:
            make_srd(a, c.sA, pX, pX+1, 0, 2048*1280)
            a(f"""
            v_lshrrev_b32 v2, 3, v1
            v_mul_u32_u24 v2, 1280, v2
            v_lshrrev_b32 v3, 4, v1
            v_and_b32 v7, 7, v1
            v_xor_b32 v3, v3, v7
            v_lshlrev_b32 v3, 4, v3
            v_add_u32 v{c.vAe}, v2, v3
            v_xor_b32 v{c.vAo}, 64, v{c.vAe}
            s_lshl_b32 s{c.sT0}, s{c.sLw}, 5
            s_add_u32 s{c.sT0}, s{c.sT0}, s{c.sM0}
            s_mul_i32 s{c.sAoff}, s{c.sT0}, 1280
            """)
            c.A_SSTEP = 128
        else:
            make_srd(a, c.sA, pWS, pWS+1, WS_H, SZ_ACT)
            a(f"""
            v_lshlrev_b32 v{c.vAe}, 4, v1
            v_add_u32 v{c.vAo}, 1024, v{c.vAe}
            s_lshl_b32 s{c.sT0}, s{c.sLw}, 16
            s_lshl_b32 s{c.sT1}, s{c.sM0}, 4
            s_add_u32 s{c.sAoff}, s{c.sT0}, s{c.sT1}
            """)
            c.A_SSTEP = 8 * 32768
        pw = pWQ if c.qkv else pW1
        make_srd(a, c.sW, pw, pw+1, 0, 640 * c.LDW)
        a(f"""
        v_lshrrev_b32 v2, 4, v1
        v_mul_u32_u24 v3, {c.LDW}, v2
        v_lshlrev_b32 v2, 2, v2
        v_and_b32 v7, 15, v1
        v_xor_b32 v2, v2, v7
        v_lshlrev_b32 v2, 4, v2
        v_add_u32 v{c.vWo}, v2, v3
        s_lshl_b32 s{c.sT0}, s{c.sLw}, 4
        s_mul_i32 s{c.sT0}, s{c.sT0}, {c.LDW}
        s_lshl_b32 s{c.sT1}, s{c.sN0}, 1
        s_add_u32 s{c.sWoff}, s{c.sT0}, s{c.sT1}
        s_lshl_b32 s{c.sLds}, s{c.sLw}, 12
        s_mul_i32 s{c.sT0}, s{c.sSeq}, {c.A_SSTEP}
        s_add_u32 s{c.sAoff}, s{c.sAoff}, s{c.sT0}
        s_mul_i32 s{c.sT0}, s{c.sSeq}, {64 * c.LDW}
        s_add_u32 s{c.sWoff}, s{c.sWoff}, s{c.sT0}
        s_mov_b32 s{c.sSeqW}, s{c.sSeq}
        """)
    def issue_A(self, seq):
        a, c = self.a, self
        slot = (seq % 4) * 32768
        for j in range(4):
            a(f"s_add_u32 m0, s{c.sLds}, {slot}" if j == 0 else "s_add_u32 m0, m0, 1024")
            if c.qkv:
                a(f"s_mov_b32 s{c.sT0}, s{c.sAoff}" if j == 0 else f"s_add_u32 s{c.sT0}, s{c.sT0}, {8*1280}")
            else:
                if j == 0: a(f"s_mov_b32 s{c.sT0}, s{c.sAoff}")
                elif j == 2: a(f"s_add_u32 s{c.sT0}, s{c.sT0}, 32768")
                else: a("s_nop 0")
            a(f"buffer_load_dwordx4 v{c.vAe if j % 2 == 0 else c.vAo}, s[{c.sA}:{c.sA+3}], s{c.sT0} offen {E('QNT_A','') if c.qkv else ''} lds")
        a(f"""
        s_add_u32 s{c.sSeq}, s{c.sSeq}, 1
        s_cmp_eq_u32 s{c.sSeq}, {c.NST}
        s_cselect_b32 s{c.sT0}, {c.NST * c.A_SSTEP}, 0
        s_cselect_b32 s{c.sSeq}, 0, s{c.sSeq}
        s_add_u32 s{c.sAoff}, s{c.sAoff}, {c.A_SSTEP}
        s_sub_u32 s{c.sAoff}, s{c.sAoff}, s{c.sT0}
        """)
    def issue_W(self, seq):
        a, c = self.a, self
        slot = (seq % 4) * 32768 + 16384
        for j in range(4):
            a(f"s_add_u32 m0, s{c.sLds}, {slot}" if j == 0 else "s_add_u32 m0, m0, 1024")
            a(f"s_mov_b32 s{c.sT0}, s{c.sWoff}" if j == 0 else f"s_add_u32 s{c.sT0}, s{c.sT0}, {4 * c.LDW}")
            a(f"buffer_load_dwordx4 v{c.vWo}, s[{c.sW}:{c.sW+3}], s{c.sT0} offen {E('QNT_W','') if c.qkv else ''} lds")
        a(f"""
        s_add_u32 s{c.sSeqW}, s{c.sSeqW}, 1
        s_cmp_eq_u32 s{c.sSeqW}, {c.NST}
        s_cselect_b32 s{c.sT0}, {c.NST * 64 * c.LDW}, 0
        s_cselect_b32 s{c.sSeqW}, 0, s{c.sSeqW}
        s_add_u32 s{c.sWoff}, s{c.sWoff}, {64 * c.LDW}
        s_sub_u32 s{c.sWoff}, s{c.sWoff}, s{c.sT0}
        """)
    vLs = 16
    vSx, vSq, vCs, vU = 48, 56, 64, 72
    vLs = 16
    def lstats_init(self): pass
    def lst_poll_issue(self):
        a, c = self.a, self
        v = c.vLs
        a(f"""
        s_add_u32 s{c.sT0}, s{c.sNt}, {C_CS1 if c.qkv else C_CS2}
        s_lshr_b32 s{c.sT1}, s{c.sM0}, 7
        s_add_u32 s{c.sT1}, s{c.sT1}, {C_ST}
        v_mov_b32 v{v}, s{c.sT0}
        v_writelane_b32 v{v}, s{c.sT1}, 1
        v_mov_b32 v{v+1}, 16
        v_writelane_b32 v{v+1}, {8 if c.qkv else 0}, 1
        v_lshlrev_b32 v{v}, 7, v{v}
        v_add_u32 v{v}, {WS_CNT}, v{v}
        s_mov_b64 exec, 3
        buffer_load_dword v{v+2}, v{v}, s[{sWS}:{sWS+3}], 0 offen sc1
        s_mov_b64 exec, -1
        """)
    def lst_check_issue(self, q):
        a, c = self.a, self
        v = c.vLs
        ok = a.newlabel("lok")
        a(f"""
        s_waitcnt vmcnt({q.need('poll')})
        s_mov_b64 exec, 3
        v_cmp_gt_u32 vcc, v{v+1}, v{v+2}
        s_nop 4
        s_cmp_eq_u64 vcc, 0
        s_cbranch_scc1 {ok}
        """)
        poll(a, v, v + 1, 2, v + 2)
        a.label(ok)
        a("s_mov_b64 exec, -1")
        ncol = 1920 if c.qkv else 1792
        d = v + 8
        a(f"""
        v_and_b32 v{v+4}, 31, v1
        v_lshlrev_b32 v{v+5}, 2, v{v+4}
        v_lshlrev_b32 v{v+4}, 3, v{v+4}
        s_lshl_b32 s{c.sT0}, s{c.sLw}, 5
        s_add_u32 s{c.sT1}, s{c.sT0}, s{c.sN0}
        s_lshl_b32 s{c.sT1}, s{c.sT1}, 2
        s_add_u32 s{c.sT1}, s{c.sT1}, {WS_CS1 if c.qkv else WS_CS2}
        s_mov_b32 exec_hi, 0
        """)
        for j in range(16):
            a(f"buffer_load_dword v{d+j}, v{v+5}, s[{sWS}:{sWS+3}], s{c.sT1} offen")
            if j < 15: a(f"s_add_u32 s{c.sT1}, s{c.sT1}, {ncol*4}")
        a(f"""
        s_mov_b32 exec_lo, 0
        s_mov_b32 exec_hi, -1
        s_add_u32 s{c.sT1}, s{c.sT0}, s{c.sM0}
        s_lshl_b32 s{c.sT1}, s{c.sT1}, 3
        s_add_u32 s{c.sT1}, s{c.sT1}, {WS_ST1 if c.qkv else WS_ST2}
        """)
        npart = 1 if c.qkv else 8
        for j in range(npart):
            a(f"buffer_load_dwordx2 {vr(d+16+2*j,2)}, v{v+4}, s[{sWS}:{sWS+3}], s{c.sT1} offen")
            if j < npart - 1: a(f"s_add_u32 s{c.sT1}, s{c.sT1}, {2048*8}")
        a("s_mov_b64 exec, -1")
        q.push("stats", 16 + npart)
    def lst_finish(self, q):
        a, c = self.a, self
        v = c.vLs
        d = v + 8
        a(f"s_waitcnt vmcnt({q.need('stats')})")
        for j in range(1, 16):
            a(f"v_add_f32 v{d}, v{d}, v{d+j}")
        S, Q = d + 16, d + 17
        if not c.qkv:
            for j in range(1, 8):
                a(f"v_add_f32 v{S}, v{S}, v{S+2*j}")
                a(f"v_add_f32 v{Q}, v{Q}, v{Q+2*j}")
            a(f"""
            v_mul_f32 v{S}, {f32bits(1.0/640):#x}, v{S}
            v_mul_f32 v{Q}, {f32bits(1.0/640):#x}, v{Q}
            v_fma_f32 v{Q}, -v{S}, v{S}, v{Q}
            v_max_f32 v{Q}, 0, v{Q}
            v_add_f32 v{Q}, {f32bits(1e-5):#x}, v{Q}
            v_rsq_f32 v{Q}, v{Q}
            """)
        a(f"""
        s_lshl_b32 s{c.sT0}, s{c.sLw}, 7
        s_add_u32 s{c.sT0}, s{c.sT0}, {STAT}
        v_add_u32 v{v+5}, s{c.sT0}, v{v+5}
        s_mov_b32 exec_hi, 0
        ds_write_b32 v{v+5}, v{d} offset:1024
        s_mov_b32 exec_lo, 0
        s_mov_b32 exec_hi, -1
        ds_write_b32 v{v+5}, v{S}
        ds_write_b32 v{v+5}, v{Q} offset:512
        s_mov_b64 exec, -1
        s_waitcnt lgkmcnt(0)
        """)
    def tq_poll_issue(self):
        a, c = self.a, self
        v = c.vLs
        a(f"""
        s_lshr_b32 s{c.sT1}, s{c.sM0}, 7
        s_add_u32 s{c.sT1}, s{c.sT1}, {C_ST}
        s_lshl_b32 s{c.sT1}, s{c.sT1}, 7
        s_add_u32 s{c.sT1}, s{c.sT1}, {WS_CNT}
        v_mov_b32 v{v}, s{c.sT1}
        v_mov_b32 v{v+1}, 8
        s_mov_b64 exec, 1
        buffer_load_dword v{v+2}, v{v}, s[{sWS}:{sWS+3}], 0 offen sc1
        s_mov_b64 exec, -1
        """)
    def tq_check_issue(self, q):
        a, c = self.a, self
        v = c.vLs
        ok = a.newlabel("lok")
        a(f"""
        s_waitcnt vmcnt({q.need('poll')})
        v_readfirstlane_b32 s{c.sT0}, v{v+2}
        s_cmp_ge_u32 s{c.sT0}, 8
        s_cbranch_scc1 {ok}
        """)
        poll(a, v, v + 1, 1, v + 2)
        a.label(ok)
        a(f"""
        v_and_b32 v{v+4}, 31, v1
        v_lshlrev_b32 v{v+5}, 2, v{v+4}
        v_lshlrev_b32 v{v+4}, 3, v{v+4}
        s_lshl_b32 s{c.sT0}, s{c.sLw}, 5
        s_add_u32 s{c.sT1}, s{c.sT0}, s{c.sM0}
        s_lshl_b32 s{c.sT1}, s{c.sT1}, 3
        s_add_u32 s{c.sT1}, s{c.sT1}, {WS_ST1}
        buffer_load_dwordx2 {vr(v+8,2)}, v{v+4}, s[{sWS}:{sWS+3}], s{c.sT1} offen
        """)
        q.push("stats", 1)
    def tq_finish(self, q):
        a, c = self.a, self
        v = c.vLs
        a(f"""
        s_waitcnt vmcnt({q.need('stats')})
        s_lshl_b32 s{c.sT0}, s{c.sLw}, 7
        s_add_u32 s{c.sT0}, s{c.sT0}, {STAT}
        v_add_u32 v{v+5}, s{c.sT0}, v{v+5}
        ds_write_b32 v{v+5}, v{v+8}
        ds_write_b32 v{v+5}, v{v+9} offset:512
        """)
    def tok_issue(self, q):
        a, c = self.a, self
        v = c.vLs
        d = v + 8
        a(f"""
        v_and_b32 v{v+4}, 31, v1
        v_lshlrev_b32 v{v+5}, 2, v{v+4}
        v_lshlrev_b32 v{v+4}, 3, v{v+4}
        s_lshl_b32 s{c.sT0}, s{c.sLw}, 5
        s_add_u32 s{c.sT1}, s{c.sT0}, s{c.sM0}
        s_lshl_b32 s{c.sT1}, s{c.sT1}, 3
        s_add_u32 s{c.sT1}, s{c.sT1}, {WS_ST2}
        s_mov_b32 exec_hi, 0
        """)
        for j in range(16):
            a(f"buffer_load_dwordx2 {vr(d+2*j,2)}, v{v+4}, s[{sWS}:{sWS+3}], s{c.sT1} offen")
            if j < 15: a(f"s_add_u32 s{c.sT1}, s{c.sT1}, {2048*8}")
        a("s_mov_b32 exec_hi, -1")
        q.push("stats", 16)
    def tok_finish(self, q):
        a, c = self.a, self
        v = c.vLs
        S, Q = v + 8, v + 9
        a(f"s_waitcnt vmcnt({q.need('stats')})")
        for j in range(1, 16):
            a(f"v_add_f32 v{S}, v{S}, v{S+2*j}")
            a(f"v_add_f32 v{Q}, v{Q}, v{Q+2*j}")
        a(f"""
        v_mul_f32 v{S}, {f32bits(1.0/640):#x}, v{S}
        v_mul_f32 v{Q}, {f32bits(1.0/640):#x}, v{Q}
        v_fma_f32 v{Q}, -v{S}, v{S}, v{Q}
        v_max_f32 v{Q}, 0, v{Q}
        v_add_f32 v{Q}, {f32bits(1e-5):#x}, v{Q}
        v_rsq_f32 v{Q}, v{Q}
        s_lshl_b32 s{c.sT0}, s{c.sLw}, 7
        s_add_u32 s{c.sT0}, s{c.sT0}, {STAT}
        v_add_u32 v{v+5}, s{c.sT0}, v{v+5}
        s_mov_b32 exec_hi, 0
        ds_write_b32 v{v+5}, v{S}
        ds_write_b32 v{v+5}, v{Q} offset:512
        s_mov_b32 exec_hi, -1
        """)
    def loader_main(self, q, p0=None):
        a, c = self.a, self
        for s_ in range(c.NST):
            tags = [f'A{s_}', f'W{s_}']
            a(f"s_waitcnt vmcnt({q.need(*tags)}) lgkmcnt(0)")
            if getattr(c, 'ldstamps', False) and s_ in (0, 1, 2): st(a, 4 + s_)
            a("s_barrier")
            stx(a, f"{c.tag}l{s_}")
            if c.qkv:
                vd = 70
                if s_ == 1: wave_only(a, 4, lambda: a(f"buffer_load_dword v{vd}, v{vd+1}, s[44:47], 0 offen sc1"))
                if s_ == 3: wave_only(a, 4, lambda: p0r_arrive(a, c, vd))
                if s_ == 3: wave_only(a, 7, lambda: reg_step1(a, vd))
                if s_ == 5: wave_only(a, 7, lambda: reg_step2(a, vd))
                if s_ == 7: wave_only(a, 7, lambda: reg_step3(a, vd))
            if s_ + PD < c.NST and not (E('X_NODMA') and c.qkv):
                c.issue_A(s_ + PD); q.push(f"A{s_+PD}", 4)
                c.issue_W(s_ + PD); q.push(f"W{s_+PD}", 4)
            if not c.qkv:
                if s_ == 7: c.tok_issue(q)
                if s_ == 9: c.tok_finish(q)
                if E('PFW2') and 0 <= s_ < 9:
                    wave_only(a, 4 + (s_ % 4), lambda: w2p_prefetch(a, s_))
            else:
                if s_ == 8 and getattr(c, 'hook7', None): c.hook7()
                if s_ == 6:
                    c.tq_poll_issue(); q.push("poll", 1)
                if s_ == 7: c.tq_check_issue(q)
                if s_ == 9: c.tq_finish(q)

    vAd, vX, vW, vAcc, vT, vSt = 24, 32, 32, 64, 128, 144
    def compute_setup(self):
        a, c = self.a, self
        NXA = 8 if c.qkv else 2
        c.NXA = NXA
        c.vXa = 4
        c.vWa = c.vXa + 2 * NXA
        vXa, vWa, vT = c.vXa, c.vWa, c.vT
        t0, t1 = vT, vT + 1
        a(f"""
        s_lshr_b32 s{c.sWm}, s{sWV}, 1
        s_and_b32 s{c.sWn}, s{sWV}, 1
        v_and_b32 v2, 31, v1
        v_lshrrev_b32 v3, 5, v1
        """)
        if c.qkv:
            a(f"""
            v_lshrrev_b32 v{t0}, 1, v1
            v_and_b32 v{t0}, 7, v{t0}
            v_xor_b32 v{t0}, v{t0}, v3
            v_lshlrev_b32 v{t0}, 4, v{t0}
            v_lshlrev_b32 v{t1}, 7, v2
            v_add_u32 v{t0}, v{t0}, v{t1}
            s_lshl_b32 s{c.sT0}, s{c.sWm}, 13
            s_lshl_b32 s{c.sT1}, s{c.sWn}, 12
            s_add_u32 s{c.sT0}, s{c.sT0}, s{c.sT1}
            v_add_u32 v{t0}, s{c.sT0}, v{t0}
            """)
            for s in range(4):
                a(f"v_xor_b32 v{vXa + s}, {32 * s}, v{t0}")
                a(f"v_xor_b32 v{vXa + 4 + s}, 4096, v{vXa + s}")
        else:
            a(f"""
            v_lshlrev_b32 v{t0}, 11, v3
            v_lshlrev_b32 v{t1}, 4, v2
            v_add_u32 v{t0}, v{t0}, v{t1}
            s_lshl_b32 s{c.sT0}, s{c.sWm}, 10
            v_add_u32 v{vXa}, s{c.sT0}, v{t0}
            v_add_u32 v{vXa + 1}, 512, v{vXa}
            """)
        for i in range(NXA):
            a(f"v_add_u32 v{vXa + NXA + i}, 65536, v{vXa + i}")
        a(f"""
        v_lshrrev_b32 v{t0}, 2, v1
        v_and_b32 v{t0}, 3, v{t0}
        v_lshlrev_b32 v{t1}, 3, v3
        v_add_u32 v{t1}, v{t1}, v{t0}
        v_lshlrev_b32 v{t1}, 8, v{t1}
        v_lshlrev_b32 v{t0}, 6, v{t0}
        v_add_u32 v{t1}, v{t1}, v{t0}
        v_lshrrev_b32 v{t0}, 4, v1
        v_and_b32 v{t0}, 1, v{t0}
        v_lshlrev_b32 v{t0}, 5, v{t0}
        v_add_u32 v{t1}, v{t1}, v{t0}
        v_lshrrev_b32 v{t0}, 1, v1
        v_and_b32 v{t0}, 1, v{t0}
        v_lshlrev_b32 v{t0}, 4, v{t0}
        v_add_u32 v{t1}, v{t1}, v{t0}
        v_and_b32 v{t0}, 1, v1
        v_lshlrev_b32 v{t0}, 3, v{t0}
        v_add_u32 v{t1}, v{t1}, v{t0}
        v_add_u32 v{t1}, 16384, v{t1}
        s_lshl_b32 s{c.sT0}, s{c.sWn}, 7
        s_lshl_b32 s{c.sT1}, s{c.sWm}, 6
        s_add_u32 s{c.sT0}, s{c.sT0}, s{c.sT1}
        v_xor_b32 v{vWa}, s{c.sT0}, v{t1}
        v_xor_b32 v{vWa + 1}, 64, v{vWa}
        v_add_u32 v{vWa + 2}, 65536, v{vWa}
        v_add_u32 v{vWa + 3}, 65536, v{vWa + 1}
        """)
    def addr_qk(self):
        a, c = self.a, self
        vT, vAd = c.vT, c.vAd
        t0, t1 = vT, vT + 1
        a(f"""
        s_cmp_lt_u32 s{c.sNt}, 5
        s_cselect_b32 s{c.sT0}, 0, 640
        s_sub_u32 s{c.sT2}, s{c.sN0}, s{c.sT0}
        s_lshl_b32 s{c.sT1}, s{c.sWn}, 6
        s_add_u32 s{c.sT2}, s{c.sT2}, s{c.sT1}
        s_lshr_b32 s{c.sT2}, s{c.sT2}, 3
        v_add_u32 v{t0}, s{c.sT2}, v3
        v_lshlrev_b32 v{vT+4}, 4, v2
        """)
        for ft in range(2):
            for j in range(2):
                d = vAd + ft*2 + j
                a(f"""
                s_xor_b32 s{c.sT3}, s{c.sWm}, {ft}
                s_lshl_b32 s{c.sT3}, s{c.sT3}, 2
                s_add_u32 s{c.sT3}, s{c.sT3}, {2*j}
                v_add_u32 v{t1}, s{c.sT3}, v{t0}
                v_mul_u32_u24 v{vT+2}, 0xcccd, v{t1}
                v_lshrrev_b32 v{vT+2}, 18, v{vT+2}
                v_mul_u32_u24 v{vT+3}, 5, v{vT+2}
                v_sub_u32 v{vT+3}, v{t1}, v{vT+3}
                v_lshlrev_b32 v{vT+3}, 9, v{vT+3}
                v_mul_u32_u24 v{vT+2}, 0x28000, v{vT+2}
                v_add3_u32 v{d}, v{vT+2}, v{vT+3}, v{vT+4}
                """)
        a(f"""
        s_lshr_b32 s{c.sT0}, s{c.sM0}, 5
        s_lshl_b32 s{c.sT1}, s{c.sWm}, 1
        s_add_u32 s{c.sT0}, s{c.sT0}, s{c.sT1}
        s_add_u32 s{c.sT1}, s{c.sT0}, s{c.sWn}
        s_mul_i32 s40, s{c.sT1}, 2560
        s_xor_b32 s{c.sT1}, s{c.sWn}, 1
        s_add_u32 s{c.sT1}, s{c.sT0}, s{c.sT1}
        s_mul_i32 s41, s{c.sT1}, 2560
        s_cmp_lt_u32 s{c.sNt}, 5
        s_cselect_b32 s{c.sT0}, {WS_Q}, {WS_K}
        s_add_u32 s{c.sO}, s{pWS}, s{c.sT0}
        s_addc_u32 s{c.sO+1}, s{pWS+1}, 0
        s_and_b32 s{c.sO+1}, s{c.sO+1}, 0xffff
        s_mov_b32 s{c.sO+2}, {SZ_QK}
        s_mov_b32 s{c.sO+3}, 0x20000
        """)
    def addr_f(self):
        a, c = self.a, self
        vT, vAd = c.vT, c.vAd
        t0, t1 = vT, vT + 1
        a(f"""
        s_lshl_b32 s{c.sT1}, s{c.sWn}, 6
        s_add_u32 s{c.sT2}, s{c.sN0}, s{c.sT1}
        s_lshr_b32 s{c.sT2}, s{c.sT2}, 3
        v_add_u32 v{t0}, s{c.sT2}, v3
        v_lshlrev_b32 v{t0}, 15, v{t0}
        v_lshlrev_b32 v{t1}, 4, v2
        v_add_u32 v{t0}, v{t0}, v{t1}
        """)
        for ft in range(2):
            for j in range(2):
                a(f"s_xor_b32 s{c.sT3}, s{c.sWm}, {ft}")
                a(f"s_lshl_b32 s{c.sT3}, s{c.sT3}, 2")
                a(f"s_add_u32 s{c.sT3}, s{c.sT3}, {2*j}")
                a(f"s_lshl_b32 s{c.sT3}, s{c.sT3}, 15")
                a(f"v_add_u32 v{vAd + ft*2 + j}, s{c.sT3}, v{t0}")
        a(f"""
        s_lshl_b32 s{c.sT1}, s{c.sWm}, 6
        s_add_u32 s{c.sT0}, s{c.sM0}, s{c.sT1}
        s_lshl_b32 s40, s{c.sT0}, 4
        s_add_u32 s41, s40, 512
        """)
        make_srd(a, c.sO, pWS, pWS+1, WS_F, SZ_F)
    def addr_v(self):
        a, c = self.a, self
        vT, vAd = c.vT, c.vAd
        t0, t1 = vT, vT + 1
        for ft in range(2):
            a(f"""
            s_lshl_b32 s{c.sT1}, s{c.sWn}, 6
            s_add_u32 s{c.sT0}, s{c.sN0}, s{c.sT1}
            s_xor_b32 s{c.sT1}, s{c.sWm}, {ft}
            s_lshl_b32 s{c.sT1}, s{c.sT1}, 5
            s_add_u32 s{c.sT0}, s{c.sT0}, s{c.sT1}
            s_sub_u32 s{c.sT0}, s{c.sT0}, 1280
            v_add_u32 v{t0}, s{c.sT0}, v2
            v_mul_u32_u24 v{t1}, 0xcccd, v{t0}
            v_lshrrev_b32 v{t1}, 20, v{t1}
            v_mul_u32_u24 v{vT+2}, 20, v{t1}
            v_sub_u32 v{t0}, v{t0}, v{vT+2}
            v_lshlrev_b32 v{t0}, 4, v{t0}
            v_mul_u32_u24 v{t1}, 0x14000, v{t1}
            v_add_u32 v{t0}, v{t0}, v{t1}
            v_mul_u32_u24 v{t1}, 320, v3
            v_add_u32 v{vAd+ft}, v{t0}, v{t1}
            """)
        a(f"""
        s_lshl_b32 s{c.sT1}, s{c.sWm}, 6
        s_add_u32 s{c.sT0}, s{c.sM0}, s{c.sT1}
        s_lshr_b32 s{c.sT0}, s{c.sT0}, 4
        s_lshl_b32 s{c.sT1}, s{c.sWn}, 1
        s_add_u32 s{c.sT1}, s{c.sT1}, s{c.sT0}
        s_mul_i32 s40, s{c.sT1}, 640
        s_add_u32 s41, s40, 640
        s_xor_b32 s{c.sT1}, s{c.sWn}, 1
        s_lshl_b32 s{c.sT1}, s{c.sT1}, 1
        s_add_u32 s{c.sT1}, s{c.sT1}, s{c.sT0}
        s_mul_i32 s42, s{c.sT1}, 640
        s_add_u32 s43, s42, 640
        """)
        make_srd(a, c.sO, pWS, pWS+1, WS_V, SZ_QKV)
    def stats_poll_issue(self):
        a, c = self.a, self
        vS = c.vSt
        a(f"""
        v_lshlrev_b32 v{vS+30}, 7, v1
        v_add_u32 v{vS+30}, {WS_CNT + (C_P0 if c.qkv else C_W1)*128}, v{vS+30}
        s_mov_b64 exec, 0xff
        buffer_load_dword v{vS+29}, v{vS+30}, s[{sWS}:{sWS+3}], 0 offen sc1
        s_mov_b64 exec, -1
        """)
    def stats_poll_check(self):
        a, c = self.a, self
        vS = c.vSt
        ok = a.newlabel("stok")
        a(f"""
        s_waitcnt vmcnt(0)
        s_mov_b64 exec, 0xff
        v_cmp_gt_u32 vcc, 128, v{vS+29}
        s_nop 4
        s_cmp_eq_u64 vcc, 0
        s_cbranch_scc1 {ok}
        v_mov_b32 v{vS+28}, 128
        """)
        poll(a, vS + 30, vS + 28, 8, vS + 29)
        a.label(ok)
        a("s_mov_b64 exec, -1")
        a("s_nop 3")
    def stats_issue(self):
        a, c = self.a, self
        vS = c.vSt
        a(f"""
        v_lshlrev_b32 v{vS+31}, 2, v2
        v_lshlrev_b32 v{vS+30}, 3, v2
        s_lshl_b32 s{c.sT0}, s{sWV}, 5
        s_add_u32 s{c.sT1}, s{c.sT0}, s{c.sM0}
        s_lshl_b32 s{c.sT1}, s{c.sT1}, 3
        s_add_u32 s{c.sT1}, s{c.sT1}, {WS_ST2}
        """)
        for j in range(8):
            a(f"buffer_load_dwordx2 {vr(vS+8+2*j,2)}, v{vS+30}, s[{sWS}:{sWS+3}], s{c.sT1} offen")
            if j < 7: a(f"s_add_u32 s{c.sT1}, s{c.sT1}, {2048*8}")
    def stats_finish(self):
        a, c = self.a, self
        vS = c.vSt
        a("s_waitcnt vmcnt(0)")
        S, Q = vS + 8, vS + 9
        for j in range(1, 8):
            a(f"v_add_f32 v{S}, v{S}, v{S+2*j}")
            a(f"v_add_f32 v{Q}, v{Q}, v{Q+2*j}")
        a(f"""
        v_mul_f32 v{S}, {f32bits(1.0/640):#x}, v{S}
        v_mul_f32 v{Q}, {f32bits(1.0/640):#x}, v{Q}
        v_fma_f32 v{Q}, -v{S}, v{S}, v{Q}
        v_max_f32 v{Q}, 0, v{Q}
        v_add_f32 v{Q}, {f32bits(1e-5):#x}, v{Q}
        v_rsq_f32 v{Q}, v{Q}
        s_lshl_b32 s{c.sT0}, s{sWV}, 7
        s_add_u32 s{c.sT0}, s{c.sT0}, {STAT}
        v_add_u32 v{vS+31}, s{c.sT0}, v{vS+31}
        ds_write_b32 v{vS+31}, v{S}
        ds_write_b32 v{vS+31}, v{Q} offset:512
        """)
    aX = 4
    def read_list(self, i):
        c = self
        st_, step, buf = i // 4, i % 4, i % 3
        slot = st_ % 4
        win, base = slot >> 1, (slot & 1) * 32768
        L = []
        for lt in range(2):
            if c.qkv:
                L.append(f"ds_read_b128 {ar(c.aX + buf*8 + lt*4, 4)}, v{c.vXa + win*8 + lt*4 + step} offset:{base}")
            else:
                L.append(f"ds_read_b128 {ar(c.aX + buf*8 + lt*4, 4)}, v{c.vXa + win*2 + lt} offset:{base + step*4096}")
        for lf in range(2):
            for h2 in range(2):
                L.append(f"ds_read_b64_tr_b16 {vr(c.vW + buf*8 + lf*4 + h2*2, 2)}, v{c.vWa + win*2 + lf} offset:{base + step*4096 + h2*1024}")
        return L
    def reads(self, i):
        for r in self.read_list(i): self.a(r)
    def mfma(self, i, k, orientY):
        a, c = self.a, self
        buf = i % 3
        lf, lt = k >> 1, k & 1
        acc = c.vAcc + (lf*2 + lt) * 16
        xa, wa = ar(c.aX + buf*8 + lt*4, 4), vr(c.vW + buf*8 + lf*4, 4)
        cc = "0" if i == 0 else vr(acc, 16)
        if orientY: a(f"v_mfma_f32_32x32x16_bf16 {vr(acc,16)}, {wa}, {xa}, {cc}")
        else: a(f"v_mfma_f32_32x32x16_bf16 {vr(acc,16)}, {xa}, {wa}, {cc}")
    def mainloop(self, orientY, stamp0=None, tag='q'):
        a, c = self.a, self
        vS = c.vSt
        CS = vS
        UU = c.vT
        a(f"v_mov_b32 v{CS}, 0")
        a(f"v_mov_b32 v{CS+1}, 0")
        a("s_barrier")
        if stamp0 is not None: st(a, stamp0)
        stx(a, tag + '_s0')
        c.reads(0)
        c.reads(1)
        for i in range(40):
            buf = i % 3
            Wl = c.vW + buf*8
            ops = []
            for r in range(4):
                u = UU + 2*(r & 1)
                ops += [f"v_lshlrev_b32 v{u}, 16, v{Wl+r}", f"v_and_b32 v{u+1}, 0xffff0000, v{Wl+r}",
                        f"v_add_f32 v{CS}, v{CS}, v{u}", f"v_add_f32 v{CS+1}, v{CS+1}, v{u+1}"]
            if E('X_NOVALU'): ops = []
            rl = c.read_list(i + 2) if i + 2 < 40 else []
            if i == 4: stx(a, tag + '_s1')
            if i == 20: stx(a, tag + '_s5')
            a(f"s_waitcnt lgkmcnt({6 if i + 1 < 40 else 0})")
            c.mfma(i, 0, orientY)
            if i + 2 < 40 and (i + 2) % 4 == 0:
                if c.qkv and i == 10: a("s_waitcnt vmcnt(0)")
                a("s_barrier")
            for o in rl[0:2] + ops[0:3]: a(o)
            c.mfma(i, 1, orientY)
            for o in rl[2:4] + ops[3:6]: a(o)
            RPL, RPS = int(E('RPL', '12')), int(E('RPS', '28'))
            if c.qkv and i == 3: emit_p0r_finish(a, c, extra=0)
            if c.qkv and i == RPL: c.rp.loads(base=146, tmp=156)
            if c.qkv and i == RPS: c.rp.store(wait_after=False, pre="s_waitcnt vmcnt(0)")
            c.mfma(i, 2, orientY)
            for o in rl[4:6] + ops[6:10]: a(o)
            c.mfma(i, 3, orientY)
            for o in ops[10:16]: a(o)
        U = vS + 14
        a(f"""
        v_add_f32 v{CS}, v{CS}, v{CS+1}
        s_nop 0
        v_mov_b32 v{CS+1}, v{CS}
        s_nop 1
        v_permlane32_swap_b32 v{CS}, v{CS+1}
        s_nop 1
        v_add_f32 v{CS}, v{CS}, v{CS+1}
        """)
        a(f"""
        s_lshl_b32 s{c.sT0}, s{c.sWn}, 8
        s_lshl_b32 s{c.sT1}, s{c.sWm}, 7
        s_add_u32 s{c.sT0}, s{c.sT0}, s{c.sT1}
        s_add_u32 s{c.sT0}, s{c.sT0}, {STAT + 1024}
        v_lshlrev_b32 v{U}, 2, v2
        v_add_u32 v{U+1}, s{c.sT0}, v{U}
        ds_write_b32 v{U+1}, v{CS}
        """)
        a("s_waitcnt lgkmcnt(0)")
    def dbg_issue(self):
        a, c = self.a, self
        make_srd(a, 44, pDBG, pDBG+1, 0, 256)
        a(f"v_lshlrev_b32 v{c.vSt+27}, 2, v1")
        a("s_mov_b64 exec, 0x1ff")
        a(f"buffer_load_dword v{c.vSt+26}, v{c.vSt+27}, s[44:47], 0 offen sc1")
        a("s_mov_b64 exec, -1")
        a("s_nop 1")
    def epilogue_Y(self, kind):
        a, c = self.a, self
        vT, vAcc, vAd = c.vT, c.vAcc, c.vAd
        vM, vR, vC = vT, vT + 2, 32
        for lt in range(2):
            a(f"""
            s_lshl_b32 s{c.sT1}, s{c.sWm}, 8
            s_add_u32 s{c.sT0}, s{c.sT1}, {STAT + (0 if c.qkv else lt*128)}
            s_xor_b32 s{c.sT1}, s{c.sWn}, {lt}
            s_lshl_b32 s{c.sT1}, s{c.sT1}, {7 if c.qkv else 31}
            s_add_u32 s{c.sT0}, s{c.sT0}, {'s%d' % c.sT1 if c.qkv else 0}
            v_lshlrev_b32 v{vT+4}, 2, v2
            v_add_u32 v{vT+4}, s{c.sT0}, v{vT+4}
            ds_read_b32 v{vM + lt}, v{vT+4}
            ds_read_b32 v{vR + lt}, v{vT+4} offset:512
            """)
        for lf in range(2):
            a(f"""
            s_lshl_b32 s{c.sT1}, s{c.sWn}, 8
            s_add_u32 s{c.sT0}, s{c.sT1}, {STAT + 1024}
            s_xor_b32 s{c.sT1}, s{c.sWm}, {lf}
            s_lshl_b32 s{c.sT1}, s{c.sT1}, 7
            s_add_u32 s{c.sT0}, s{c.sT0}, s{c.sT1}
            v_lshlrev_b32 v{vT+4}, 4, v3
            v_add_u32 v{vT+4}, s{c.sT0}, v{vT+4}
            """)
            for q in range(4):
                a(f"ds_read_b128 {vr(vC + lf*16 + q*4, 4)}, v{vT+4} offset:{q*32}")
        a("s_waitcnt lgkmcnt(0)")
        if kind == 'qk':
            a(f"""
            s_cmp_lt_u32 s{c.sNt}, 5
            s_cselect_b32 s{c.sT0}, {f32bits(QSCALE):#x}, 1.0
            v_mul_f32 v{vR}, s{c.sT0}, v{vR}
            v_mul_f32 v{vR+1}, s{c.sT0}, v{vR+1}
            """)
        B = c.vSt + 2
        for lt in range(2):
            a(f"v_mov_b32 v{B + 2*lt}, v{vM + lt}")
            a(f"v_mov_b32 v{B + 2*lt + 1}, v{vM + lt}")
            a(f"v_mov_b32 v{B + 4 + 2*lt}, v{vR + lt}")
            a(f"v_mov_b32 v{B + 4 + 2*lt + 1}, v{vR + lt}")
        vP = vT + 8
        n = 0
        for lf in range(2):
            for lt in range(2):
                acc = vAcc + (lf*2 + lt) * 16
                for r in range(0, 16, 2):
                    a(f"v_pk_fma_f32 {vr(acc + r, 2)}, {vr(B + 2*lt, 2)}, {vr(vC + lf*16 + r, 2)}, {vr(acc + r, 2)} neg_lo:[1,0,0] neg_hi:[1,0,0]")
                for r in range(0, 16, 2):
                    a(f"v_pk_mul_f32 {vr(acc + r, 2)}, {vr(acc + r, 2)}, {vr(B + 4 + 2*lt, 2)}")
                for j in range(2):
                    p = vP + (n & 1) * 4
                    n += 1
                    q0 = acc + j*8
                    for k in range(4):
                        a(f"v_cvt_pk_bf16_f32 v{p+k}, v{q0+2*k}, v{q0+2*k+1}")
                    if kind == 'ffn1':
                        for k in range(4):
                            a(f"v_pk_max_i16 v{p+k}, v{p+k}, 0")
                    else:
                        a("s_nop 0")
                    a("s_nop 0")
                    if kind == 'ffn1': a("s_nop 0")
                    a(f"v_permlane32_swap_b32 v{p}, v{p+2}")
                    a(f"v_permlane32_swap_b32 v{p+1}, v{p+3}")
                    ins = f"buffer_store_dwordx4 {vr(p,4)}, v{vAd + lf*2 + j}, s[{c.sO}:{c.sO+3}], s{40 + lt} offen @SC"
                    if kind == 'ffn1': dual(a, [ins])
                    else: a(ins.replace("@SC", SC))
    def epilogue_X(self):
        a, c = self.a, self
        vT, vAcc, vAd = c.vT, c.vAcc, c.vAd
        vC, vM, vR = vT, 32, 48
        for lf in range(2):
            a(f"""
            s_lshl_b32 s{c.sT1}, s{c.sWn}, 8
            s_add_u32 s{c.sT0}, s{c.sT1}, {STAT + 1024}
            s_xor_b32 s{c.sT1}, s{c.sWm}, {lf}
            s_lshl_b32 s{c.sT1}, s{c.sT1}, 7
            s_add_u32 s{c.sT0}, s{c.sT0}, s{c.sT1}
            v_lshlrev_b32 v{vT+4}, 2, v2
            v_add_u32 v{vT+4}, s{c.sT0}, v{vT+4}
            ds_read_b32 v{vC + lf}, v{vT+4}
            """)
        vP = vT + 8
        n = 0
        for lt in range(2):
            a(f"""
            s_lshl_b32 s{c.sT1}, s{c.sWm}, 8
            s_add_u32 s{c.sT0}, s{c.sT1}, {STAT}
            s_xor_b32 s{c.sT1}, s{c.sWn}, {lt}
            s_lshl_b32 s{c.sT1}, s{c.sT1}, 7
            s_add_u32 s{c.sT0}, s{c.sT0}, s{c.sT1}
            v_lshlrev_b32 v{vT+4}, 4, v3
            v_add_u32 v{vT+4}, s{c.sT0}, v{vT+4}
            """)
            for q in range(4):
                a(f"ds_read_b128 {vr(vM + q*4, 4)}, v{vT+4} offset:{q*32}")
                a(f"ds_read_b128 {vr(vR + q*4, 4)}, v{vT+4} offset:{512 + q*32}")
            a("s_waitcnt lgkmcnt(0)")
            B = c.vSt + 2
            if lt == 0:
                for lf in range(2):
                    a(f"v_mov_b32 v{B + 2*lf}, v{vC + lf}")
                    a(f"v_mov_b32 v{B + 2*lf + 1}, v{vC + lf}")
            for lf in range(2):
                acc = vAcc + (lf*2 + lt) * 16
                for r in range(0, 16, 2):
                    a(f"v_pk_fma_f32 {vr(acc + r, 2)}, {vr(vM + r, 2)}, {vr(B + 2*lf, 2)}, {vr(acc + r, 2)} neg_lo:[1,0,0] neg_hi:[1,0,0]")
                for r in range(0, 16, 2):
                    a(f"v_pk_mul_f32 {vr(acc + r, 2)}, {vr(acc + r, 2)}, {vr(vR + r, 2)}")
                for g in range(2):
                    p = vP + (n & 1) * 4
                    n += 1
                    for r in range(4):
                        a(f"v_cvt_pk_bf16_f32 v{p + r}, v{acc + g*8 + 2*r}, v{acc + g*8 + 2*r + 1}")
                    a(f"buffer_store_dwordx4 {vr(p,4)}, v{vAd + lf}, s[{c.sO}:{c.sO+3}], s{40 + lt*2 + g} offen {SC}")

STG = 36864
class CoreS:
    sA, sO, sR = 8, 16, 40
    sM0, sN0, sT0, sT1, sT2, sNt = 21, 22, 23, 24, 25, 26
    sLw, sAoff, sWoff, sLdsA, sLdsW, sSeq, sSeqW = 20, 29, 30, 31, 32, 33, 34
    vA = 4
    vXa2, vWa2 = 116, 117
    def __init__(self, a, mode):
        self.a, self.mode = a, mode
        self.op = mode == 'oproj'
        self.NST = 5 if self.op else 14
    def map_tiles(self):
        a, c = self.a, self
        NST = c.NST
        a(f"""
        s_and_b32 s{c.sT0}, s{sRk}, 3
        s_lshl_b32 s{c.sM0}, s{sX}, 2
        s_add_u32 s{c.sM0}, s{c.sM0}, s{c.sT0}
        s_lshl_b32 s{c.sM0}, s{c.sM0}, 6
        s_lshr_b32 s{c.sNt}, s{sRk}, 2
        s_mul_i32 s{c.sN0}, s{c.sNt}, 80
        s_mul_i32 s{c.sSeq}, s{c.sT0}, {1 if c.op else 3}
        s_mul_i32 s{c.sT1}, s{c.sNt}, {1 if c.op else 2}
        s_add_u32 s{c.sSeq}, s{c.sSeq}, s{c.sT1}
        s_cmp_ge_u32 s{c.sSeq}, {NST}
        s_cselect_b32 s{c.sT1}, {NST}, 0
        s_sub_u32 s{c.sSeq}, s{c.sSeq}, s{c.sT1}
        s_cmp_ge_u32 s{c.sSeq}, {NST}
        s_cselect_b32 s{c.sT1}, {NST}, 0
        s_sub_u32 s{c.sSeq}, s{c.sSeq}, s{c.sT1}
        """)
        if E('NOROTS'): a(f"s_mov_b32 s{c.sSeq}, 0")
    def loader_setup(self):
        a, c = self.a, self
        if c.op: make_srd(a, c.sA, pWS, pWS+1, WS_O, SZ_ACT)
        else: make_srd(a, c.sA, pWS, pWS+1, WS_F, SZ_F)
        a(f"""
        s_sub_u32 s{c.sLw}, s{sWV}, 4
        v_lshlrev_b32 v{c.vA}, 4, v1
        s_lshl_b32 s{c.sT0}, s{c.sLw}, 17
        s_lshl_b32 s{c.sT1}, s{c.sM0}, 4
        s_add_u32 s{c.sAoff}, s{c.sT0}, s{c.sT1}
        s_mul_i32 s{c.sT0}, s{c.sLw}, 5120
        s_mul_i32 s{c.sT1}, s{c.sNt}, {c.NST * 20480}
        s_add_u32 s{c.sWoff}, s{c.sT0}, s{c.sT1}
        s_add_u32 s{c.sWoff}, s{c.sWoff}, {WS_WOP if c.op else WS_W2P}
        s_lshl_b32 s{c.sLdsA}, s{c.sLw}, 12
        s_add_u32 s{c.sLdsW}, s{c.sT0}, 16384
        s_mul_i32 s{c.sT0}, s{c.sSeq}, {16 * 32768}
        s_add_u32 s{c.sAoff}, s{c.sAoff}, s{c.sT0}
        s_mul_i32 s{c.sT0}, s{c.sSeq}, 20480
        s_add_u32 s{c.sWoff}, s{c.sWoff}, s{c.sT0}
        s_mov_b32 s{c.sSeqW}, s{c.sSeq}
        """)
    def issue_A(self, seq):
        a, c = self.a, self
        slot = (seq % 4) * STG
        for j in range(4):
            a(f"s_add_u32 m0, s{c.sLdsA}, {slot}" if j == 0 else "s_add_u32 m0, m0, 1024")
            a(f"s_mov_b32 s{c.sT0}, s{c.sAoff}" if j == 0 else f"s_add_u32 s{c.sT0}, s{c.sT0}, 32768")
            a(f"buffer_load_dwordx4 v{c.vA}, s[{c.sA}:{c.sA+3}], s{c.sT0} offen lds")
        a(f"""
        s_add_u32 s{c.sSeq}, s{c.sSeq}, 1
        s_cmp_eq_u32 s{c.sSeq}, {c.NST}
        s_cselect_b32 s{c.sT0}, {c.NST * 16 * 32768}, 0
        s_cselect_b32 s{c.sSeq}, 0, s{c.sSeq}
        s_add_u32 s{c.sAoff}, s{c.sAoff}, {16 * 32768}
        s_sub_u32 s{c.sAoff}, s{c.sAoff}, s{c.sT0}
        """)
    def issue_W(self, seq):
        a, c = self.a, self
        slot = (seq % 4) * STG
        a(f"s_add_u32 m0, s{c.sLdsW}, {slot}")
        a(f"s_add_u32 s{c.sT0}, s{c.sWoff}, 4096")
        for j in range(4):
            a(f"buffer_load_dwordx4 v{c.vA}, s[{sWS}:{sWS+3}], s{c.sWoff} offen offset:{j*1024} lds")
        a("s_add_u32 m0, m0, 4096")
        a(f"s_add_u32 s{c.sSeqW}, s{c.sSeqW}, 1")
        a(f"buffer_load_dwordx4 v{c.vA}, s[{sWS}:{sWS+3}], s{c.sT0} offen lds")
        a(f"""
        s_cmp_eq_u32 s{c.sSeqW}, {c.NST}
        s_cselect_b32 s{c.sT0}, {c.NST * 20480}, 0
        s_cselect_b32 s{c.sSeqW}, 0, s{c.sSeqW}
        s_add_u32 s{c.sWoff}, s{c.sWoff}, 20480
        s_sub_u32 s{c.sWoff}, s{c.sWoff}, s{c.sT0}
        """)
    def loader_main(self, q):
        a, c = self.a, self
        for s_ in range(c.NST):
            a(f"s_waitcnt vmcnt({q.need(f'A{s_}', f'W{s_}')})")
            a("s_barrier")
            stx(a, f"{'o' if c.op else 'g'}l{s_}")
            if s_ + PD < c.NST and not (E('S_NODMA') and not c.op):
                if not E('S_NOA'): c.issue_A(s_ + PD); q.push(f"A{s_+PD}", 4)
                if not E('S_NOW'): c.issue_W(s_ + PD); q.push(f"W{s_+PD}", 5)
    vXb, vWb, vXa, vWa, vX, vW, vRes, vT, vAcc = 4, 5, 6, 7, 8, 32, 70, 84, 96
    vXa2, vWa2 = 120, 121
    def compute_setup(self):
        a, c = self.a, self
        vT = c.vT
        a(f"""
        v_and_b32 v2, 15, v1
        v_lshrrev_b32 v3, 4, v1
        s_lshr_b32 s{c.sT1}, s{sWV}, 1
        s_and_b32 s{c.sT2}, s{sWV}, 1
        s_lshl_b32 s{c.sT0}, s{c.sT1}, 5
        s_add_u32 s{c.sT0}, s{c.sT0}, s{c.sM0}
        v_add_u32 v{vT}, s{c.sT0}, v2
        """)
        a(f"""
        s_mul_i32 s{c.sAoff}, s{c.sT2}, 48
        s_add_u32 s{c.sAoff}, s{c.sAoff}, s{c.sN0}
        v_mul_u32_u24 v{vT+1}, 1280, v{vT}
        v_lshlrev_b32 v{vT+3}, 3, v3
        v_add_u32 v{vT+1}, v{vT+1}, v{vT+3}
        s_lshl_b32 s{c.sT0}, s{c.sAoff}, 1
        v_add_u32 v{vT+1}, s{c.sT0}, v{vT+1}
        v_lshrrev_b32 v{vT+3}, 1, v3
        v_lshlrev_b32 v{vT+3}, 15, v{vT+3}
        v_lshlrev_b32 v{vT+2}, 4, v{vT}
        v_add_u32 v{vT+2}, v{vT+2}, v{vT+3}
        v_and_b32 v{vT+3}, 1, v3
        v_lshlrev_b32 v{vT+3}, 3, v{vT+3}
        v_add_u32 v{vT+2}, v{vT+2}, v{vT+3}
        s_lshl_b32 s{c.sT0}, s{c.sAoff}, 12
        v_add_u32 v{vT+2}, s{c.sT0}, v{vT+2}
        s_lshl_b32 s{c.sT0}, s{c.sT1}, 9
        v_lshlrev_b32 v{c.vXb}, 10, v3
        v_lshlrev_b32 v{vT+3}, 4, v2
        v_add_u32 v{c.vXb}, v{c.vXb}, v{vT+3}
        v_add_u32 v{c.vXb}, s{c.sT0}, v{c.vXb}
        v_lshrrev_b32 v{vT+3}, 1, v3
        v_lshlrev_b32 v{vT+3}, 4, v{vT+3}
        v_and_b32 v{vT+4}, 1, v3
        v_lshlrev_b32 v{vT+4}, 2, v{vT+4}
        v_add_u32 v{vT+3}, v{vT+3}, v{vT+4}
        v_lshrrev_b32 v{vT+4}, 2, v2
        v_add_u32 v{vT+3}, v{vT+3}, v{vT+4}
        v_mul_u32_u24 v{vT+3}, 160, v{vT+3}
        v_and_b32 v{vT+4}, 3, v1
        v_lshlrev_b32 v{vT+4}, 3, v{vT+4}
        v_add_u32 v{vT+3}, v{vT+3}, v{vT+4}
        s_mul_i32 s{c.sT0}, s{c.sT2}, 96
        s_add_u32 s{c.sT0}, s{c.sT0}, 16384
        v_add_u32 v{c.vWb}, s{c.sT0}, v{vT+3}
        s_mov_b32 s{c.sWoff}, s{c.sT2}
        """)
        if c.op:
            make_srd(a, c.sR, pX, pX+1, 0, 2048 * 1280)
            make_srd(a, c.sO, pWS, pWS+1, WS_H, SZ_ACT)
        else:
            make_srd(a, c.sR, pWS, pWS+1, WS_H, SZ_ACT)
            make_srd(a, c.sO, pOUT, pOUT+1, 0, 2048 * 1280)
        a(f"""
        s_cmp_eq_u32 s{c.sT2}, 1
        s_cselect_b32 s44, 0x7f000000, 0
        s_cselect_b64 s[46:47], -1, 0
        """)
    def pretouch(self): pass
    def tile_off(self, T, tt, rowmajor):
        a, c = self.a, self
        if rowmajor:
            base = T * 32 + tt * 16 * 1280
            val = base
        else:
            val = T * 65536 + tt * 256
        if T == 2:
            a(f"s_add_u32 s{c.sT0}, s44, {val}")
        else:
            a(f"s_mov_b32 s{c.sT0}, {val}")
        return (c.vT + 1 if rowmajor else c.vT + 2), c.sT0
    def residual_loads(self):
        a, c = self.a, self
        for T in range(3):
            for tt in range(2):
                va, so = c.tile_off(T, tt, c.op)
                a(f"buffer_load_dwordx2 {vr(c.vRes + 2*(T*2 + tt), 2)}, v{va}, s[{c.sR}:{c.sR+3}], s{so} offen")
    def mainloop(self, stamp0=None, tag=''):
        a, c = self.a, self
        N = c.NST * 4
        def rlist(i):
            st_, k, buf = i // 4, i % 4, i % 3
            xa, wa = (c.vXa, c.vWa) if st_ % 2 == 0 else (c.vXa2, c.vWa2)
            L = [f"ds_read_b128 {vr(c.vX + buf*8 + tt*4, 4)}, v{xa} offset:{k*4096 + tt*256}" for tt in range(2)]
            for T in range(3):
                for h2 in range(2):
                    L.append(f"ds_read_b64_tr_b16 {vr(c.vW + buf*12 + T*4 + h2*2, 2)}, v{wa} offset:{k*5120 + h2*1280 + T*32}")
            return L
        def setaddr(st_):
            slot = (st_ % 4) * STG
            xa, wa = (c.vXa, c.vWa) if st_ % 2 == 0 else (c.vXa2, c.vWa2)
            a(f"v_add_u32 v{xa}, {slot}, v{c.vXb}")
            a(f"v_add_u32 v{wa}, {slot}, v{c.vWb}")
        a("s_barrier")
        stx(a, tag + '_s0')
        setaddr(0)
        for r in rlist(0) + rlist(1): a(r)
        for i in range(N):
            buf = i % 3
            rl = rlist(i + 2) if i + 2 < N else []
            a(f"s_waitcnt lgkmcnt({8 if i + 1 < N else 0})")
            k = 0
            for T in range(3):
                for tt in range(2):
                    acc = c.vAcc + (T*2 + tt) * 4
                    cc = "0" if i == 0 else vr(acc, 4)
                    a(f"v_mfma_f32_16x16x32_bf16 {vr(acc,4)}, {vr(c.vW + buf*12 + T*4, 4)}, {vr(c.vX + buf*8 + tt*4, 4)}, {cc}")
                    if k == 0 and i + 2 < N and (i + 2) % 4 == 0:
                        a("s_barrier")
                        if (i + 2) // 4 == 1: stx(a, tag + '_s1')
                        if (i + 2) // 4 == 4: stx(a, tag + '_s4')
                        setaddr((i + 2) // 4)
                    for r in rl[[0, 2, 4, 5, 6, 7][k]:[2, 4, 5, 6, 7, 8][k]]: a(r)
                    k += 1
        a("s_nop 7")
    def reduce(self):
        pass
    def epilogue(self):
        a, c = self.a, self
        vT, vRes = c.vT, c.vRes
        a("s_waitcnt vmcnt(0)")
        P = 8
        for T in range(3):
            for tt in range(2):
                n = T*2 + tt
                acc = c.vAcc + n*4
                rr = vRes + 2*n
                a(f"""
                v_lshlrev_b32 v24, 16, v{rr}
                v_and_b32 v25, 0xffff0000, v{rr}
                v_lshlrev_b32 v26, 16, v{rr+1}
                v_and_b32 v27, 0xffff0000, v{rr+1}
                v_add_f32 v{acc}, v{acc}, v24
                v_add_f32 v{acc+1}, v{acc+1}, v25
                v_add_f32 v{acc+2}, v{acc+2}, v26
                v_add_f32 v{acc+3}, v{acc+3}, v27
                v_cvt_pk_bf16_f32 v{P+2*n}, v{acc}, v{acc+1}
                v_cvt_pk_bf16_f32 v{P+2*n+1}, v{acc+2}, v{acc+3}
                """)
                va, so = c.tile_off(T, tt, not c.op)
                ins = f"buffer_store_dwordx2 {vr(P+2*n, 2)}, v{va}, s[{c.sO}:{c.sO+3}], s{so} offen @SC"
                if c.op: dual(a, [ins])
                else: a(ins.replace("@SC", E('OUTFL', '')))
        if c.op:
            for tt in range(2):
                S, Q = 28 + 2*tt, 29 + 2*tt
                first = True
                for T in range(3):
                    n = T*2 + tt
                    for d in range(2):
                        r = P + 2*n + d
                        a(f"v_lshlrev_b32 v24, 16, v{r}")
                        a(f"v_and_b32 v25, 0xffff0000, v{r}")
                        if T == 2:
                            a(f"v_cndmask_b32 v24, v24, 0, s[46:47]")
                            a(f"v_cndmask_b32 v25, v25, 0, s[46:47]")
                        if first:
                            a(f"v_add_f32 v{S}, v24, v25")
                            a(f"v_mul_f32 v{Q}, v24, v24")
                            first = False
                        else:
                            a(f"v_add_f32 v{S}, v{S}, v24")
                            a(f"v_add_f32 v{S}, v{S}, v25")
                            a(f"v_fmac_f32 v{Q}, v24, v24")
                        a(f"v_fmac_f32 v{Q}, v25, v25")
            a(f"""
            v_mov_b32 v32, v28
            v_mov_b32 v33, v29
            v_mov_b32 v34, v30
            v_mov_b32 v35, v31
            s_nop 1
            v_permlane32_swap_b32 v28, v32
            v_permlane32_swap_b32 v29, v33
            v_permlane32_swap_b32 v30, v34
            v_permlane32_swap_b32 v31, v35
            s_nop 1
            v_add_f32 v28, v28, v32
            v_add_f32 v29, v29, v33
            v_add_f32 v30, v30, v34
            v_add_f32 v31, v31, v35
            s_nop 0
            v_mov_b32 v32, v28
            v_mov_b32 v33, v29
            v_mov_b32 v34, v30
            v_mov_b32 v35, v31
            s_nop 1
            v_permlane16_swap_b32 v28, v32
            v_permlane16_swap_b32 v29, v33
            v_permlane16_swap_b32 v30, v34
            v_permlane16_swap_b32 v31, v35
            s_nop 1
            v_add_f32 v28, v28, v32
            v_add_f32 v29, v29, v33
            v_add_f32 v30, v30, v34
            v_add_f32 v31, v31, v35
            s_lshl_b32 s{c.sT0}, s{c.sNt}, 1
            s_add_u32 s{c.sT0}, s{c.sT0}, s{c.sWoff}
            s_lshl_b32 s{c.sT0}, s{c.sT0}, 14
            s_add_u32 s{c.sT0}, s{c.sT0}, {WS_ST2}
            v_lshlrev_b32 v32, 3, v{vT}
            s_mov_b64 exec, 0xffff
            """)
            dual(a, [f"buffer_store_dwordx2 v[28:29], v32, s[{sWS}:{sWS+3}], s{c.sT0} offen @SC",
                     f"buffer_store_dwordx2 v[30:31], v32, s[{sWS}:{sWS+3}], s{c.sT0} offen offset:128 @SC"])
            a("s_mov_b64 exec, -1")

KT = 1536
SLOT = 8 * KT + 16384
VOFF = 8 * KT
NSLOT = 5
FLAG = NSLOT * SLOT

def emit_attention(a, after_stores):
    name = "att"
    sK, sV, sQ, sO = 8, 12, 16, 20
    sHead, sQt, sT0, sT1, sT2 = 25, 26, 27, 28, 29
    sChunk, sSlotN, sPass, sKoff, sVoff, sKh = 30, 31, 32, 33, 34, 35
    sVmask = 38
    sSlotW, sE, sQg, sQb = 40, 41, 42, 43
    sW1s = 44
    vL16, vVoff = 2, 3
    vA3 = [[4, 5, 6], [7, 8, 9], [172, 173, 174]]
    vQ, vQr, vNC, vS, vP, vKb, vKr, vV, vO, vT = 10, 18, 22, 54, 86, 94, 102, 110, 126, 158
    lane_id(a, 0)
    lane_id(a, 1)
    a(f"""
    v_mov_b32 v4, {ROLE}
    ds_read_b96 v[6:8], v4
    s_waitcnt lgkmcnt(0)
    v_readfirstlane_b32 s{sX}, v6
    v_readfirstlane_b32 s{sRk}, v7
    v_readfirstlane_b32 s{sLoc}, v8
    s_and_b32 s{sT0}, s2, 7
    s_lshr_b32 s{sT1}, s2, 3
    s_cmp_eq_u32 s{sLoc}, 0
    s_cselect_b32 s{sX}, s{sT0}, s{sX}
    s_cselect_b32 s{sRk}, s{sT1}, s{sRk}
    s_mov_b32 s{sHead}, s{sRk}
    s_mov_b32 s{sQb}, s{sX}
    s_lshl_b32 s{sQt}, s{sQb}, 3
    s_mov_b32 s{sVmask}, 0x000fffff
    s_mov_b32 s{sVmask+1}, 0x000fffff
    s_mov_b32 s{sPass}, 0
    s_and_b32 s{sE}, s{sHead}, 1
    s_lshr_b32 s{sKh}, s{sWV}, 2
    s_and_b32 s{sQg}, s{sWV}, 3
    """)
    a(f"""
    v_lshlrev_b32 v{vL16}, 4, v0
    v_and_b32 v{vT}, 31, v0
    v_lshrrev_b32 v{vT+1}, 5, v0
    v_mul_u32_u24 v{vVoff}, 320, v{vT+1}
    v_lshlrev_b32 v{vT+2}, 4, v{vT}
    v_add_u32 v{vVoff}, v{vVoff}, v{vT+2}
    """)
    make_srd(a, sK, pWS, pWS+1, WS_K, SZ_QK)
    make_srd(a, sV, pWS, pWS+1, WS_V, SZ_QKV)
    make_srd(a, sQ, pWS, pWS+1, WS_Q, SZ_QK)
    make_srd(a, sO, pWS, pWS+1, WS_O, SZ_ACT)
    make_srd(a, sW1s, pW1, pW1+1, 0, 640*3456)
    a(f"""
    v_mov_b32 v{vT+4}, 0
    v_mov_b32 v{vT+3}, 0x3f803f80
    v_cmp_eq_u32 vcc, 20, v{vT}
    s_lshl_b32 s{sT0}, s{sWV}, 11
    s_add_u32 s{sT0}, s{sT0}, {VOFF}
    v_cndmask_b32 v{vT+4}, v{vT+4}, v{vT+3}, vcc
    v_add_u32 v{vT+3}, s{sT0}, v{vL16}
    v_mov_b32 v{vT+5}, v{vT+4}
    v_mov_b32 v{vT+6}, v{vT+4}
    v_mov_b32 v{vT+7}, v{vT+4}
    s_not_b64 exec, s[{sVmask}:{sVmask+1}]
    """)
    base = 0
    for sl in range(NSLOT):
        for j in range(2):
            off = sl * SLOT + j * 1024
            if off - base >= 65536 - 1024:
                a(f"v_add_u32 v{vT+3}, {sl*SLOT - base}, v{vT+3}")
                base = sl * SLOT
            a(f"ds_write_b128 v{vT+3}, {vr(vT+4,4)} offset:{off - base}")
    a(f"""
    s_mov_b64 exec, -1
    v_mov_b32 v{vT+3}, {FLAG}
    v_mov_b32 v{vT+4}, 0
    ds_write_b32 v{vT+3}, v{vT+4}
    """)
    def reinit():
        a(f"""
        s_lshl_b32 s{sT0}, s{sE}, 9
        s_mul_i32 s{sT1}, s{sKh}, {4*KT}
        s_add_u32 s{sT0}, s{sT0}, s{sT1}
        v_add_u32 v{vA3[0][0]}, s{sT0}, v{vL16}
        s_sub_u32 s{sT0}, 1, s{sE}
        s_lshl_b32 s{sT0}, s{sT0}, 10
        s_lshl_b32 s{sT2}, s{sE}, 3
        s_add_u32 s{sT0}, s{sT0}, s{sT2}
        s_add_u32 s{sT0}, s{sT0}, s{sT1}
        v_and_b32 v{vT}, 31, v0
        v_lshlrev_b32 v{vA3[0][1]}, 4, v{vT}
        v_add_u32 v{vA3[0][1]}, s{sT0}, v{vA3[0][1]}
        s_lshl_b32 s{sT0}, s{sKh}, 13
        s_add_u32 s{sT0}, s{sT0}, {VOFF}
        v_add_u32 v{vA3[0][2]}, s{sT0}, v{vL16}
        s_mov_b32 s{sSlotN}, {2*SLOT}
        s_lshr_b32 s{sT0}, s{sHead}, 1
        s_mul_i32 s{sT0}, s{sT0}, 163840
        s_mul_i32 s{sT1}, s{sWV}, 2560
        s_add_u32 s{sKoff}, s{sT0}, s{sT1}
        s_lshl_b32 s{sT1}, s{sE}, 10
        s_add_u32 s{sKoff}, s{sKoff}, s{sT1}
        s_mul_i32 s{sT0}, s{sHead}, 81920
        s_mul_i32 s{sT1}, s{sWV}, 1280
        s_add_u32 s{sVoff}, s{sT0}, s{sT1}
        s_mov_b32 s{sSlotW}, 0
        """)
        for k in range(3):
            a(f"v_add_u32 v{vA3[1][k]}, {SLOT}, v{vA3[0][k]}")
            a(f"v_add_u32 v{vA3[2][k]}, {2*SLOT}, v{vA3[0][k]}")
        for i in range(32): a(f"v_mov_b32 v{vO+i}, 0")
        for i in range(4):
            a(f"v_mov_b32 v{vP+4+i}, 0")
            a(f"v_mov_b32 v{vV+12+i}, 0")
    reinit()
    a(f"v_and_b32 v{vT+11}, 7, v0")
    a(f"v_lshlrev_b32 v{vT+11}, 7, v{vT+11}")
    a(f"v_add_u32 v{vT+11}, {WS_CNT + C_RPS*128}, v{vT+11}")
    a(f"v_mov_b32 v{vT+10}, 0")
    a(f"""
    s_lshl_b32 s{sT0}, s{sQg}, 1
    s_add_u32 s{sQt}, s{sQt}, s{sT0}
    v_lshlrev_b32 v{vT+13}, 4, v{vT}
    s_lshl_b32 s{sT1}, s{sE}, 3
    s_add_u32 s{sT1}, s{sT1}, 1024
    v_add_u32 v{vT+13}, s{sT1}, v{vT+13}
    v_mov_b32 v{vT+9}, 0x7fffff00
    """)
    a(f"""
    v_cmp_gt_u32 vcc, 32, v0
    s_mul_i32 s{sT1}, s{sE}, 1536
    v_cndmask_b32 v{vT+13}, v{vT+9}, v{vT+13}, vcc
    v_add_u32 v{vT+12}, s{sT1}, v{vL16}
    """)
    lw = a.newlabel("attw")
    a(f"""
    s_cmp_eq_u32 s{sWV}, 0
    s_cbranch_scc0 {lw}
    s_mul_i32 s{sT0}, s{sHead}, 20
    s_lshr_b32 s{sT1}, s{sT0}, 7
    s_add_u32 s{sT0}, s{sT0}, 19
    s_lshr_b32 s{sT0}, s{sT0}, 7
    v_and_b32 v{vT+3}, 1, v0
    v_mov_b32 v{vT+4}, s{sT1}
    v_mov_b32 v{vT+5}, s{sT0}
    v_cmp_eq_u32 vcc, 1, v{vT+3}
    v_lshrrev_b32 v{vT+6}, 1, v0
    v_mul_u32_u24 v{vT+6}, 5, v{vT+6}
    v_cndmask_b32 v{vT+4}, v{vT+4}, v{vT+5}, vcc
    v_add_u32 v{vT+4}, v{vT+4}, v{vT+6}
    v_add_u32 v{vT+4}, {C_QKV}, v{vT+4}
    v_lshlrev_b32 v{vT+4}, 7, v{vT+4}
    v_add_u32 v{vT+4}, {WS_CNT}, v{vT+4}
    v_mov_b32 v{vT+5}, 16
    """)
    poll(a, vT + 4, vT + 5, 6, vT + 6)
    a.label(lw)
    a("s_waitcnt lgkmcnt(0)")
    a("s_barrier")
    st(a, 5)
    def dma_chunk():
        a(f"""
        s_mul_i32 s{sT0}, s{sWV}, {KT}
        s_add_u32 m0, s{sSlotW}, s{sT0}
        s_lshl_b32 s{sT1}, s{sWV}, 11
        buffer_load_dwordx4 v{vL16}, s[{sK}:{sK+3}], s{sKoff} offen lds
        s_mov_b32 exec_hi, 0
        buffer_load_dwordx4 v{vL16}, s[{sK}:{sK+3}], s{sKoff} offen offset:1024 lds
        s_add_u32 s{sT1}, s{sT1}, s{sSlotW}
        s_add_u32 m0, s{sT1}, {VOFF}
        s_mov_b64 exec, s[{sVmask}:{sVmask+1}]
        buffer_load_dwordx4 v{vVoff}, s[{sV}:{sV+3}], s{sVoff} offen lds
        s_add_u32 m0, m0, 1024
        s_add_u32 s{sT1}, s{sVoff}, 640
        buffer_load_dwordx4 v{vVoff}, s[{sV}:{sV+3}], s{sT1} offen lds
        s_mov_b64 exec, -1
        s_add_u32 s{sKoff}, s{sKoff}, {8*2560}
        s_add_u32 s{sVoff}, s{sVoff}, 10240
        s_add_u32 s{sSlotW}, s{sSlotW}, {SLOT}
        s_cmp_ge_u32 s{sSlotW}, {NSLOT*SLOT}
        s_cselect_b32 s{sSlotW}, 0, s{sSlotW}
        """)
    dma_chunk()
    a(f"s_lshr_b32 s{sT0}, s{sHead}, 1")
    a(f"s_mul_i32 s{sT0}, s{sT0}, 163840")
    for s in range(2):
        a(f"""
        s_xor_b32 s{sT1}, s{sKh}, {s}
        s_add_u32 s{sT1}, s{sT1}, s{sQt}
        s_mul_i32 s{sT1}, s{sT1}, 2560
        s_add_u32 s{sT1}, s{sT1}, s{sT0}
        buffer_load_dwordx4 {vr(vQ+4*s,4)}, v{vT+12}, s[{sQ}:{sQ+3}], s{sT1} offen
        buffer_load_dwordx2 {vr(vQr+2*s,2)}, v{vT+13}, s[{sQ}:{sQ+3}], s{sT1} offen
        """)
    dma_chunk()
    a(f"s_branch L_{name}_start")
    a.label(f"L_{name}_restart")
    reinit()
    dma_chunk(); dma_chunk()
    a.label(f"L_{name}_start")
    vKc, vKrc, vVc = vA3[0]
    a(f"""
    s_waitcnt vmcnt(4)
    s_barrier
    s_cmp_eq_u32 s{sPass}, 0
    s_cbranch_scc0 L_{name}_haveC
    s_mul_i32 s{sT1}, s{sKh}, {4*KT}
    v_subrev_u32 v{vT+1}, s{sT1}, v{vKc}
    v_subrev_u32 v{vT+2}, s{sT1}, v{vKrc}
    ds_read_b128 {vr(vKb,4)}, v{vT+1}
    ds_read_b64 {vr(vKr,2)}, v{vT+2}
    s_waitcnt lgkmcnt(0)
    """)
    for s in range(2):
        S = vS + 16*s
        a(f"v_mfma_f32_32x32x16_bf16 {vr(S,16)}, {vr(vKb,4)}, {vr(vQ+4*s,4)}, 0")
    for s in range(2):
        S = vS + 16*s
        a(f"v_mfma_f32_32x32x8_bf16 {vr(S,16)}, {vr(vKr,2)}, {vr(vQr+2*s,2)}, {vr(S,16)}")
    a(f"""
    ds_read_b128 {vr(vKb,4)}, v{vKc}
    ds_read2st64_b64 {vr(vKr,4)}, v{vKrc} offset0:0 offset1:3
    ds_read_b128 {vr(vV,4)}, v{vVc}
    ds_read_b128 {vr(vV+4,4)}, v{vVc} offset:1024
    s_nop 11
    """)
    for s in range(2):
        S = vS + 16*s
        T_ = vT + 2*s
        a(f"v_max3_f32 v{T_}, v{S}, v{S+1}, v{S+2}")
        for i in range(3, 15, 2):
            a(f"v_max3_f32 v{T_}, v{T_}, v{S+i}, v{S+i+1}")
        a(f"v_max_f32 v{T_}, v{T_}, v{S+15}")
    a(f"""
    v_mov_b32 v{vT+1}, v{vT}
    v_mov_b32 v{vT+3}, v{vT+2}
    s_nop 1
    v_permlane32_swap_b32 v{vT}, v{vT+1}
    v_permlane32_swap_b32 v{vT+2}, v{vT+3}
    s_nop 1
    v_max_f32 v{vT}, v{vT}, v{vT+1}
    v_max_f32 v{vT+2}, v{vT+2}, v{vT+3}
    v_sub_f32 v{vNC}, 0, v{vT}
    v_sub_f32 v{vNC+16}, 0, v{vT+2}
    """)
    for i in range(1, 16):
        a(f"v_mov_b32 v{vNC+i}, v{vNC}")
        a(f"v_mov_b32 v{vNC+16+i}, v{vNC+16}")
    a(f"s_branch L_{name}_haveC2")
    a.label(f"L_{name}_haveC")
    a(f"""
    ds_read_b128 {vr(vKb,4)}, v{vKc}
    ds_read2st64_b64 {vr(vKr,4)}, v{vKrc} offset0:0 offset1:3
    ds_read_b128 {vr(vV,4)}, v{vVc}
    ds_read_b128 {vr(vV+4,4)}, v{vVc} offset:1024
    """)
    a.label(f"L_{name}_haveC2")
    a(f"""
    s_waitcnt lgkmcnt(0)
    v_mfma_f32_32x32x16_bf16 {vr(vS,16)}, {vr(vKb,4)}, {vr(vQ,4)}, {vr(vNC,16)}
    v_mfma_f32_32x32x8_bf16 {vr(vS,16)}, {vr(vKr,2)}, {vr(vQr,2)}, {vr(vS,16)}
    s_mov_b32 s{sChunk}, 0
    s_nop 7
    """)
    st(a, 6)
    a(f"""
    s_cmp_eq_u32 s{sKh}, 0
    s_cselect_b32 s36, 7, 0
    s_cselect_b32 s37, 0, 7
    """)
    ool = []
    def rare(mask, fn, tag):
        l, b = a.newlabel(tag), a.newlabel(tag + "b")
        a(f"s_bitcmp1_b32 {mask:#x}, s{sChunk}")
        a(f"s_cbranch_scc1 {l}")
        a.label(b)
        ool.append((l, b, fn))
    def common_(mask, fn, tag):
        l = a.newlabel(tag)
        a(f"s_bitcmp1_b32 {mask if isinstance(mask, str) else hex(mask)}, s{sChunk}")
        a(f"s_cbranch_scc0 {l}")
        fn()
        a.label(l)
    def pf_A(half, which='w1'):
        if which == 'w1':
            a(f"""
            v_lshlrev_b32 v{vT+12}, 7, v0
            s_mul_i32 s{sT0}, s{sRk}, 69120
            s_lshl_b32 s{sT1}, s{sWV}, 13
            s_add_u32 s{sT0}, s{sT0}, s{sT1}
            s_mov_b32 exec_lo, {-1 if half == 0 else 0}
            s_mov_b32 exec_hi, {0 if half == 0 else -1}
            buffer_load_dword v{vT+13}, v{vT+12}, s[{sW1s}:{sW1s+3}], s{sT0} offen sc1
            s_mov_b64 exec, -1
            """)
        else:
            a(f"""
            v_lshlrev_b32 v{vT+12}, 7, v0
            s_mul_i32 s{sT0}, s{sRk}, {SZ_W2P // 32}
            s_lshl_b32 s{sT1}, s{sWV}, 13
            s_add_u32 s{sT0}, s{sT0}, s{sT1}
            s_add_u32 s{sT0}, s{sT0}, {WS_W2P}
            s_mov_b32 exec_lo, {-1 if half == 0 else 0}
            s_mov_b32 exec_hi, {0 if half == 0 else -1}
            buffer_load_dword v{vT+13}, v{vT+12}, s[{sWS}:{sWS+3}], s{sT0} offen sc1
            s_mov_b64 exec, -1
            """)
    def pf_B():
        l5, l4, le = a.newlabel("pf5"), a.newlabel("pf4"), a.newlabel("pfe")
        a(f"""
        v_lshlrev_b32 v{vT+12}, 7, v0
        s_cmp_ge_u32 s{sWV}, 5
        s_cbranch_scc1 {l5}
        s_cmp_eq_u32 s{sWV}, 4
        s_cbranch_scc1 {l4}
        s_mul_i32 s{sT0}, s{sRk}, {SZ_WOP // 32}
        s_lshl_b32 s{sT1}, s{sWV}, 13
        s_add_u32 s{sT0}, s{sT0}, s{sT1}
        s_add_u32 s{sT0}, s{sT0}, {WS_WOP}
        buffer_load_dword v{vT+13}, v{vT+12}, s[{sWS}:{sWS+3}], s{sT0} offen sc1
        s_branch {le}
        """)
        a.label(l4)
        a(f"""
        s_mul_i32 s{sT0}, s{sRk}, 69120
        s_add_u32 s{sT0}, s{sT0}, 65536
        s_mov_b32 exec_hi, 0
        buffer_load_dword v{vT+13}, v{vT+12}, s[{sW1s}:{sW1s+3}], s{sT0} offen sc1
        s_mov_b32 exec_hi, -1
        s_branch {le}
        """)
        a.label(l5)
        a(f"""
        s_sub_u32 s{sT1}, s{sWV}, 5
        s_lshl_b32 s{sT1}, s{sT1}, 5
        s_mul_i32 s{sT0}, s{sRk}, 80
        s_add_u32 s{sT0}, s{sT0}, s{sT1}
        v_and_b32 v{vT+8}, 31, v0
        v_add_u32 v{vT+8}, s{sT0}, v{vT+8}
        v_lshrrev_b32 v{vT+9}, 5, v{vT+8}
        v_lshlrev_b32 v{vT+9}, 15, v{vT+9}
        v_and_b32 v{vT+8}, 31, v{vT+8}
        v_lshlrev_b32 v{vT+8}, 7, v{vT+8}
        v_add_u32 v{vT+8}, v{vT+8}, v{vT+9}
        s_lshl_b32 s{sT0}, s{sX}, 12
        s_mov_b32 exec_hi, 0
        buffer_load_dword v{vT+13}, v{vT+8}, s[{sO}:{sO+3}], s{sT0} offen sc1
        s_mov_b32 exec_hi, -1
        """)
        a.label(le)
    def rp_issue():
        a("s_mov_b64 exec, 0xff")
        a(f"buffer_load_dword v{vT+10}, v{vT+11}, s[{sWS}:{sWS+3}], 0 offen sc1")
        a("s_mov_b64 exec, -1")
    def rp_check():
        ok = a.newlabel("rpok")
        a("s_mov_b64 exec, 0xff")
        a(f"v_cmp_gt_u32 vcc, 32, v{vT+10}")
        a("s_nop 4")
        a("s_cmp_eq_u64 vcc, 0")
        a(f"s_cbranch_scc1 {ok}")
        a(f"v_mov_b32 v{vT+9}, 32")
        poll(a, vT + 11, vT + 9, 8, vT + 10)
        a.label(ok)
        a("s_mov_b64 exec, -1")
    if E('A_PRIO'):
        l = a.newlabel("prio")
        a(f"s_cmp_ge_u32 s{sWV}, 4")
        a(f"s_cbranch_scc0 {l}")
        a(f"s_setprio {E('A_PRIO')}")
        a.label(l)
    a(".p2align 6")
    a.label(f"L_{name}_loop")
    rd = (lambda x: None) if E('A_NORD') else a
    for u in range(16):
        p = u & 1
        t = u >> 1
        D1 = int(E('A_D1', '6'))
        PS = E('PFSEL', 'w1')
        if u == 0:
            if not E('A_NODMA'): common_(0b0111, dma_chunk, "d0")
            if not E('NOPF2'): rare(0b1000, lambda: pf_A(0, 'w2' if PS == 'w2' else 'w1'), "pa")
        if u == 4 and not E('NOPF2'): rare(0b1000, lambda: pf_A(1, 'w2' if PS == 'w2' else 'w1'), "pb")
        if PS == 'both':
            if u == 10: rare(0b0100, lambda: pf_A(0, 'w2'), "pd")
            if u == 12: rare(0b0100, lambda: pf_A(1, 'w2'), "pe")
        if u == 6 and not E('A_NOBAR'):
            rare(0b0001, lambda: (a(f"s_waitcnt vmcnt({8 if D1 < 6 else 4})"), a("s_barrier")), "c1")
        if u == D1 and not E('A_NODMA'): common_(0b0111, dma_chunk, "d1")
        if u == 8 and not E('NOPF2'): rare(0b1000, pf_B, "pc")
        if u == 14:
            rare(0b0010, rp_issue, "rpi")
            a("s_waitcnt vmcnt(0)")
            if not E('A_NOBAR'): a("s_barrier")
            rare(0b0010, rp_check, "rpc")
        tn = t + 1
        A = vA3[tn // 4]
        if p == 0:
            rd(f"ds_read_b128 {vr(vKb + 4*(tn&1),4)}, v{A[0]} offset:{(tn%4)*KT}")
            if tn % 2 == 0:
                pb = (tn // 2) & 1
                rd(f"ds_read2st64_b64 {vr(vKr + 4*pb,4)}, v{A[1]} offset0:{(tn%4)*3} offset1:{(tn%4)*3+3}")
            rd(f"ds_read_b128 {vr(vV + 8*(tn&1),4)}, v{A[2]} offset:{(tn%4)*2048}")
        else:
            rd("s_waitcnt lgkmcnt(0)")
        un = u + 1
        tq = un >> 1
        qs = un & 1
        Sc, Sn = vS + 16*p, vS + 16*(p^1)
        kbuf = vKb + 4*(tq & 1)
        krbuf = vKr + 4*((tq // 2) & 1) + 2*(tq & 1)
        ex = lambda r: a(f"v_exp_f32 v{Sc+r}, v{Sc+r}")
        cv = lambda r: a(f"v_cvt_pk_bf16_f32 v{vP+r}, v{Sc+2*r}, v{Sc+2*r+1}")
        a(f"v_mfma_f32_32x32x16_bf16 {vr(Sn,16)}, {vr(kbuf,4)}, {vr(vQ+4*qs,4)}, {vr(vNC+16*qs,16)}")
        for r in range(4): ex(r)
        tp = (u - 1) >> 1 if u > 0 else -1
        Op = vO + 16*((u - 1) & 1)
        a(f"v_mfma_f32_32x32x16_bf16 {vr(Op,16)}, {vr(vV + 8*(tp & 1) + 4,4)}, {vr(vP+4,4)}, {vr(Op,16)}")
        if p == 0:
            rd(f"ds_read_b128 {vr(vV + 8*(tn&1) + 4,4)}, v{A[2]} offset:{(tn%4)*2048 + 1024}")
        for r in range(4, 8): ex(r)
        cv(0); cv(1)
        a(f"v_mfma_f32_32x32x8_bf16 {vr(Sn,16)}, {vr(krbuf,2)}, {vr(vQr+2*qs,2)}, {vr(Sn,16)}")
        cv(2); cv(3)
        for r in range(8, 12): ex(r)
        Oc = vO + 16*p
        a(f"v_mfma_f32_32x32x16_bf16 {vr(Oc,16)}, {vr(vV + 8*(t & 1),4)}, {vr(vP,4)}, {vr(Oc,16)}")
        for r in range(12, 16): ex(r)
        if u == 15:
            a(f"""
            s_add_u32 s{sT0}, s{sSlotN}, {SLOT}
            s_cmp_ge_u32 s{sT0}, {NSLOT*SLOT}
            s_cselect_b32 s{sT1}, {NSLOT*SLOT}, 0
            s_sub_u32 s{sT0}, s{sT0}, s{sT1}
            s_sub_u32 s{sT1}, s{sT0}, s{sSlotN}
            s_add_u32 s{sT2}, s{sT0}, {SLOT}
            s_cmp_ge_u32 s{sT2}, {NSLOT*SLOT}
            s_cselect_b32 s{sT0}, {NSLOT*SLOT}, 0
            s_sub_u32 s{sT2}, s{sT2}, s{sT0}
            s_sub_u32 s{sT0}, s{sT2}, s{sSlotN}
            s_mov_b32 s{sSlotN}, s{sT2}
            """)
            for k in range(3):
                a(f"v_mov_b32 v{vA3[0][k]}, v{vA3[2][k]}")
                a(f"v_add_u32 v{vA3[1][k]}, s{sT1}, v{vA3[2][k]}")
                a(f"v_add_u32 v{vA3[2][k]}, s{sT0}, v{vA3[2][k]}")
        for r in range(4, 8): cv(r)
    a(f"""
    s_add_u32 s{sChunk}, s{sChunk}, 1
    s_cmp_lt_u32 s{sChunk}, 4
    s_cbranch_scc1 L_{name}_loop
    s_waitcnt lgkmcnt(0)
    """)
    a(f"v_mfma_f32_32x32x16_bf16 {vr(vO+16,16)}, {vr(vV + 8 + 4,4)}, {vr(vP+4,4)}, {vr(vO+16,16)}")
    st(a, 7)
    a(f"s_branch L_{name}_post")
    for l, b, fn in ool:
        a.label(l)
        fn()
        a(f"s_branch {b}")
    a.label(f"L_{name}_post")
    a(f"""
    s_barrier
    s_lshl_b32 s{sT0}, s{sQg}, 1
    s_add_u32 s{sT1}, s{sT0}, s{sKh}
    s_lshr_b32 s{sT2}, s{sT1}, 2
    s_mul_i32 s{sT2}, s{sT2}, {SLOT}
    s_and_b32 s{sT1}, s{sT1}, 3
    s_mul_i32 s{sT1}, s{sT1}, 3072
    s_add_u32 s{sT1}, s{sT1}, s{sT2}
    v_add_u32 v{vT}, s{sT1}, v{vL16}
    s_xor_b32 s{sT1}, s{sKh}, 1
    s_add_u32 s{sT1}, s{sT1}, s{sT0}
    s_lshr_b32 s{sT2}, s{sT1}, 2
    s_mul_i32 s{sT2}, s{sT2}, {SLOT}
    s_and_b32 s{sT1}, s{sT1}, 3
    s_mul_i32 s{sT1}, s{sT1}, 3072
    s_add_u32 s{sT1}, s{sT1}, s{sT2}
    v_add_u32 v{vT+1}, s{sT1}, v{vL16}
    s_nop 7
    """)
    stx(a, 'a_bar1')
    for i in range(3):
        a(f"ds_write_b128 v{vT}, {vr(vO+16+4*i,4)} offset:{i*1024}")
    a("s_waitcnt lgkmcnt(0)")
    a("s_barrier")
    stx(a, 'a_bar2')
    for i in range(3):
        a(f"ds_read_b128 {vr(vS+4*i,4)}, v{vT+1} offset:{i*1024}")
    a("s_waitcnt lgkmcnt(0)")
    for r in range(12):
        a(f"v_add_f32 v{vO+r}, v{vO+r}, v{vS+r}")
    a(f"v_mov_b32 v{vT}, 0")
    for r in range(12):
        a(f"v_fma_f32 v{vT}, v{vO+r}, 0, v{vT}")
    a(f"""
    s_cmp_eq_u32 s{sPass}, 0
    s_cbranch_scc0 L_{name}_store2
    v_cmp_u_f32 vcc, v{vT}, v{vT}
    s_nop 4
    s_cmp_eq_u64 vcc, 0
    s_cbranch_scc1 L_{name}_store2
    v_mov_b32 v{vT+1}, {FLAG}
    v_mov_b32 v{vT+2}, 1
    ds_write_b32 v{vT+1}, v{vT+2}
    s_branch L_{name}_store2
    L_{name}_redo:
    s_mov_b32 s{sPass}, 1
    v_mov_b32 v{vT}, 0xff800000
    v_mov_b32 v{vT+1}, 0xff800000
    s_lshr_b32 s{sT0}, s{sHead}, 1
    s_mul_i32 s{sT0}, s{sT0}, 163840
    s_mov_b32 s{sT1}, 0
    v_and_b32 v{vT+2}, 31, v0
    v_lshlrev_b32 v{vT+2}, 4, v{vT+2}
    s_lshl_b32 s{sT2}, s{sE}, 3
    s_add_u32 s{sT2}, s{sT2}, 1024
    v_add_u32 v{vT+2}, s{sT2}, v{vT+2}
    s_mul_i32 s{sT2}, s{sE}, 1536
    v_add_u32 v{vT+3}, s{sT2}, v{vL16}
    L_{name}_maxloop:
    buffer_load_dwordx4 {vr(vKb,4)}, v{vT+3}, s[{sK}:{sK+3}], s{sT0} offen
    buffer_load_dwordx2 {vr(vKr,2)}, v{vT+2}, s[{sK}:{sK+3}], s{sT0} offen
    s_waitcnt vmcnt(0)
    """)
    for s in range(2):
        S = vS + 16*s
        a(f"v_mfma_f32_32x32x16_bf16 {vr(S,16)}, {vr(vKb,4)}, {vr(vQ+4*s,4)}, 0")
        a(f"v_mfma_f32_32x32x8_bf16 {vr(S,16)}, {vr(vKr,2)}, {vr(vQr+2*s,2)}, {vr(S,16)}")
    a("s_nop 15")
    for s in range(2):
        for i in range(0, 16, 2):
            a(f"v_max3_f32 v{vT+s}, v{vT+s}, v{vS+16*s+i}, v{vS+16*s+i+1}")
    a(f"""
    s_add_u32 s{sT0}, s{sT0}, 2560
    s_add_u32 s{sT1}, s{sT1}, 1
    s_cmp_lt_u32 s{sT1}, 64
    s_cbranch_scc1 L_{name}_maxloop
    """)
    for s in range(2):
        a(f"""
        v_mov_b32 v{vT+2}, v{vT+s}
        s_nop 1
        v_permlane32_swap_b32 v{vT+s}, v{vT+2}
        s_nop 1
        v_max_f32 v{vT+2}, v{vT+s}, v{vT+2}
        v_sub_f32 v{vNC+16*s}, 0, v{vT+2}
        """)
        for i in range(1, 16):
            a(f"v_mov_b32 v{vNC+16*s+i}, v{vNC+16*s}")
    a("s_barrier")
    a(f"s_branch L_{name}_restart")
    a.label(f"L_{name}_store2")
    stx(a, 'a_vote')
    a(f"""
    v_mov_b32 v{vT}, v{vO+8}
    v_mov_b32 v{vT+1}, v{vO+8}
    s_nop 1
    v_permlane32_swap_b32 v{vT}, v{vT+1}
    s_nop 1
    v_rcp_f32 v{vT+1}, v{vT+1}
    v_lshrrev_b32 v{vT+2}, 5, v0
    v_and_b32 v{vT+3}, 31, v0
    s_add_u32 s{sT0}, s{sQt}, s{sKh}
    s_lshl_b32 s{sT0}, s{sT0}, 5
    v_add_u32 v{vT+3}, s{sT0}, v{vT+3}
    v_lshlrev_b32 v{vT+3}, 4, v{vT+3}
    s_mul_i32 s{sT0}, s{sHead}, 5
    v_add_u32 v{vT+2}, s{sT0}, v{vT+2}
    """)
    for r in range(12):
        a(f"v_mul_f32 v{vO+r}, v{vO+r}, v{vT+1}")
    for q in range(3):
        a(f"""
        v_add_u32 v{vT+4}, {2*q}, v{vT+2}
        v_lshrrev_b32 v{vT+5}, 1, v{vT+4}
        v_lshlrev_b32 v{vT+5}, 15, v{vT+5}
        v_and_b32 v{vT+4}, 1, v{vT+4}
        v_lshlrev_b32 v{vT+4}, 3, v{vT+4}
        v_add3_u32 v{vT+4}, v{vT+4}, v{vT+5}, v{vT+3}
        v_cvt_pk_bf16_f32 v{vT+6}, v{vO+4*q}, v{vO+4*q+1}
        v_cvt_pk_bf16_f32 v{vT+7}, v{vO+4*q+2}, v{vO+4*q+3}
        """)
        if q == 2: a("s_mov_b32 exec_hi, 0")
        dual(a, [f"buffer_store_dwordx2 {vr(vT+6,2)}, v{vT+4}, s[{sO}:{sO+3}], 0 offen @SC"])
    a("s_mov_b64 exec, -1")
    stx(a, 'a_stores')
    a(f"""
    s_waitcnt vmcnt(0) lgkmcnt(0)
    s_barrier
    v_mov_b32 v{vT+1}, {FLAG}
    ds_read_b32 v{vT+2}, v{vT+1}
    s_waitcnt lgkmcnt(0)
    v_readfirstlane_b32 s{sT0}, v{vT+2}
    s_cmp_eq_u32 s{sPass}, 0
    s_cselect_b32 s{sT0}, s{sT0}, 0
    s_cmp_lg_u32 s{sT0}, 0
    s_cbranch_scc1 L_{name}_redo
    """)
    a(f"s_add_u32 s76, s{sQb}, {C_ATT}")

def gemm_phase_prologue_loader(a, core, q, dep_idx_sgpr, dep_target, nW, pre_issued):
    pass

LANDED = [True]
def reg_step1(a, vd):
    a("s_mov_b64 exec, 7")
    a(f"buffer_load_dword v{vd}, v{vd+1}, s[44:47], 0 offen sc1")
    a("s_mov_b64 exec, -1")
def reg_step2(a, vd):
    dbg_flag_wait(a, vd, landed=LANDED[0])
    a(f"""
    s_getreg_b32 s{sX}, hwreg(HW_REG_XCC_ID)
    s_and_b32 s{sX}, s{sX}, 7
    s_add_u32 s76, s{sX}, {C_RK}
    s_lshl_b32 s76, s76, 7
    s_add_u32 s76, s76, {WS_CNT}
    v_mov_b32 v{vd-1}, s76
    v_accvgpr_write_b32 a0, 1
    s_mov_b64 exec, 1
    s_nop 1
    buffer_atomic_add a0, v{vd-1}, s[{sWS}:{sWS+3}], 0 offen sc0
    s_mov_b64 exec, -1
    """)
def reg_step3(a, vd):
    l1, l2 = a.newlabel("r3a"), a.newlabel("r3b")
    if not LANDED[0]: a("s_waitcnt vmcnt(0)")
    a(f"""
    v_accvgpr_read_b32 v{vd-1}, a0
    s_nop 1
    v_readfirstlane_b32 s{sRk}, v{vd-1}
    s_cmp_eq_u32 s{sRk}, 31
    s_cbranch_scc0 {l1}
    v_mov_b32 v{vd-1}, 4
    v_mov_b32 v{vd-2}, 1
    s_mov_b64 exec, 1
    buffer_atomic_add v{vd-2}, v{vd-1}, s[44:47], 0 offen sc1
    s_mov_b64 exec, -1
    """)
    a.label(l1)
    a(f"""
    s_cmp_ge_u32 s{sRk}, 32
    s_cbranch_scc0 {l2}
    v_mov_b32 v{vd-1}, 8
    v_mov_b32 v{vd-2}, 1
    s_mov_b64 exec, 1
    buffer_store_dword v{vd-2}, v{vd-1}, s[44:47], 0 offen sc1
    s_mov_b64 exec, -1
    """)
    a.label(l2)
    a("s_mov_b64 exec, 7")
    a(f"buffer_load_dword v{vd}, v{vd+1}, s[44:47], 0 offen sc1")
    a("s_mov_b64 exec, -1")
def register_publish(a, vd):
    l0, l1 = a.newlabel("rp"), a.newlabel("rpok")
    a(f"s_mov_b32 s{sPoll}, 0")
    a.label(l0)
    a(f"""
    s_waitcnt vmcnt(0)
    v_readlane_b32 s39, v{vd}, 1
    v_readlane_b32 s40, v{vd}, 2
    s_cmp_eq_u32 s39, 8
    s_cselect_b32 s38, 1, 0
    s_cmp_lg_u32 s40, 0
    s_cselect_b32 s38, 0, s38
    s_cbranch_scc1 {l1}
    s_cmp_eq_u32 s38, 1
    s_cbranch_scc1 {l1}
    s_add_u32 s{sPoll}, s{sPoll}, 1
    s_cmp_gt_u32 s{sPoll}, {POLL_MAX}
    s_cbranch_scc1 {l1}
    s_sleep 1
    s_mov_b64 exec, 7
    buffer_load_dword v{vd}, v{vd+1}, s[44:47], 0 offen sc1
    s_mov_b64 exec, -1
    s_branch {l0}
    """)
    a.label(l1)
    if E('FORCE_SLOW'): a("s_mov_b32 s38, 0")
    a(f"""
    v_mov_b32 v{vd-6}, s{sX}
    v_mov_b32 v{vd-4}, s38
    v_mov_b32 v{vd-5}, s{sRk}
    v_mov_b32 v{vd-7}, {ROLE}
    ds_write_b96 v{vd-7}, v[{vd-6}:{vd-4}]
    s_waitcnt lgkmcnt(0)
    """)
def wave_only(a, w, fn):
    l = a.newlabel("wo")
    a(f"s_cmp_eq_u32 s{sWV}, {w}")
    a(f"s_cbranch_scc0 {l}")
    fn()
    a.label(l)
def code_prefetch(a):
    a(f"""
    s_getpc_b64 s[40:41]
    s_and_b32 s40, s40, 0xffffff00
    s_lshr_b32 s42, s2, 3
    s_lshl_b32 s42, s42, 11
    v_lshlrev_b32 v26, 7, v1
    v_add_u32 v26, s42, v26
    s_mov_b64 exec, 0xffff
    global_load_dword v31, v26, s[40:41]
    s_mov_b64 exec, -1
    """)

def tlb_warm(a):
    G = int(E('TLBG', '16'))
    a(f"""
    s_lshr_b32 s42, s2, 3
    v_lshlrev_b32 v160, 5, v1
    v_add_u32 v160, s42, v160
    v_lshlrev_b32 v160, {G}, v160
    """)
    n_ws = -(-WS_END >> G)
    a(f"s_mov_b64 exec, {(1 << min(64, -(-n_ws // 32))) - 1:#x}")
    a(f"buffer_load_dword v161, v160, s[{sWS}:{sWS+3}], 0 offen sc1")
    a("s_mov_b64 exec, 3")
    for k, (pp, size) in enumerate(((pW1, 640*3456), (pW2, 1728*1280), (pWO, 640*1280), (pOUT, 2048*1280), (pX, 2048*1280), (pWQ, 640*3840))):
        make_srd(a, 44, pp, pp+1, 0, size)
        a(f"buffer_load_dword v{162+k}, v160, s[44:47], 0 offen sc1")
    a("s_mov_b64 exec, -1")
    make_srd(a, 44, pW1, pW1+1, 0, 640*3456)
    a(f"""
    s_mul_i32 s42, s2, 8640
    v_lshlrev_b32 v160, 7, v1
    buffer_load_dword v161, v160, s[44:47], s42 offen sc1
    s_add_u32 s42, s42, 8192
    s_mov_b64 exec, 15
    buffer_load_dword v161, v160, s[44:47], s42 offen sc1
    s_mov_b64 exec, -1
    """)

CODE_KB = 64
def gen_mega():
    a = Asm()
    a(f"""
    s_cmp_ge_u32 s2, 256
    s_cbranch_scc1 L_exit
    s_load_dwordx8 s[84:91], s[0:1], 0
    s_load_dwordx8 s[92:99], s[0:1], 32
    s_load_dwordx2 s[78:79], s[0:1], 64
    """)
    st_rt(a, 0); st(a, 1)
    a(f"""
    v_lshrrev_b32 v2, 6, v0
    s_nop 0
    v_readfirstlane_b32 s{sWV}, v2
    """)
    lane_id(a, 1)
    if not E('NOPF'):
        l = a.newlabel("pf")
        a(f"s_cmp_eq_u32 s{sWV}, 1")
        a(f"s_cbranch_scc0 {l}")
        code_prefetch(a)
        a.label(l)
    a("s_waitcnt lgkmcnt(0)")
    make_srd(a, sWS, pWS, pWS+1, 0, WS_END)
    if E('TLB'):
        l = a.newlabel("tlb")
        a(f"s_cmp_eq_u32 s{sWV}, 3")
        a(f"s_cbranch_scc0 {l}")
        tlb_warm(a)
        a.label(l)
    L = CoreL(a, 'qkv', 'q')
    L.map_tiles("L_repack")
    a(f"""
    s_cmp_ge_u32 s{sWV}, 4
    s_cbranch_scc0 L_q_compute
    """)
    L.loader_setup()
    st(a, 2)
    q = VmQ()
    for s_ in range(PD):
        L.issue_A(s_); q.push(f"A{s_}", 4)
        if not FS: stamp(a, 9 + 2*s_, base=SB)
        L.issue_W(s_); q.push(f"W{s_}", 4)
        if not FS: stamp(a, 10 + 2*s_, base=SB)
    st(a, 3)
    make_srd(a, 44, pDBG, pDBG+1, 0, 256)
    a("v_lshlrev_b32 v71, 2, v1")
    a("v_mov_b32 v70, 0")
    L.ldstamps = True
    L.loader_main(q)
    st(a, 8)
    a("s_waitcnt lgkmcnt(0)")
    a("s_barrier")
    wave_only(a, 7, lambda: register_publish(a, 70))
    a("s_barrier")
    def rpa():
        a("s_and_b32 s76, s2, 7")
        a(f"s_add_u32 s76, s76, {C_RPS}")
        arrive(a, 76, 68)
    wave_only(a, 4, rpa)
    a("s_branch L_attn")
    a.label("L_q_compute")
    l = a.newlabel("zc")
    a(f"""
    s_or_b32 s40, s2, s{sWV}
    s_cmp_eq_u32 s40, 0
    s_cbranch_scc0 {l}
    v_mov_b32 v4, 0
    v_mov_b32 v5, 0
    v_mov_b32 v6, 0
    v_mov_b32 v7, 0
    v_lshlrev_b32 v8, 4, v1
    s_mov_b32 s40, {WS_CNT}
    """)
    for j in range(SZ_CNT // 1024):
        a(f"buffer_store_dwordx4 v[4:7], v8, s[{sWS}:{sWS+3}], s40 offen {SC}")
        a("s_add_u32 s40, s40, 1024")
    make_srd(a, 8, pDBG, pDBG+1, 0, 256)
    a(f"""
    s_waitcnt vmcnt(0)
    v_mov_b32 v4, 1
    v_mov_b32 v5, 0
    s_mov_b64 exec, 1
    buffer_store_dword v4, v5, s[8:11], 0 offen sc1
    s_mov_b64 exec, -1
    """)
    a.label(l)
    RP = Repack(a)
    RP.issue(defer=True)
    L.rp = RP
    L.compute_setup()
    a(f"v_lshlrev_b32 v{L.vSt+27}, 2, v1")
    a(f"v_mov_b32 v{L.vSt+26}, 0")
    def aux_loads():
        emit_p0r(a, L)
        make_srd(a, 44, pDBG, pDBG+1, 0, 256)
    a(f"""
    s_cmp_ge_u32 s{L.sNt}, 10
    s_cbranch_scc1 L_q_vpath
    """)
    L.addr_qk()
    aux_loads()
    L.mainloop(True, 2)
    st(a, 3)
    a("s_barrier")
    L.epilogue_Y('qk')
    a("s_branch L_q_done")
    a.label("L_q_vpath")
    L.addr_v()
    aux_loads()
    L.mainloop(False, 2)
    st(a, 3)
    a("s_barrier")
    L.epilogue_X()
    a.label("L_q_done")
    a(f"buffer_load_dword v{L.vSt+26}, v{L.vSt+27}, s[44:47], 0 offen sc1")
    a("s_waitcnt vmcnt(0)")
    a("s_barrier")
    a(f"s_cmp_eq_u32 s{sWV}, 0")
    a("s_cbranch_scc0 L_attn")
    dbg_flag_wait(a, L.vSt + 26, landed=True)
    a(f"s_add_u32 s40, s{L.sNt}, {C_QKV}")
    arrive(a, 40, 4)
    st(a, 4)
    a("s_branch L_attn")
    a.label("L_repack")
    make_srd(a, 44, pDBG, pDBG+1, 0, 256)
    a(f"v_lshlrev_b32 v71, 2, v1")
    a(f"v_mov_b32 v70, 0")
    def regall():
        LANDED[0] = False
        reg_step1(a, 70); reg_step2(a, 70); reg_step3(a, 70); register_publish(a, 70)
    wave_only(a, 6, regall)
    l = a.newlabel("rpl")
    a(f"s_cmp_ge_u32 s{sWV}, 4")
    a(f"s_cbranch_scc1 {l}")
    RP2 = Repack(a)
    RP2.issue()
    RP2.store()
    a.label(l)
    a("s_barrier")
    def rp_arr2():
        a(f"buffer_load_dword v70, v71, s[44:47], 0 offen sc1")
        dbg_flag_wait(a, 70)
        a("s_and_b32 s76, s2, 7")
        a(f"s_add_u32 s76, s76, {C_RPS}")
        arrive(a, 76, 64)
    wave_only(a, 4, rp_arr2)
    a.label("L_attn")
    emit_attention(a, None)
    S = CoreS(a, 'oproj')
    lane_id(a, 1)
    S.map_tiles()
    a(f"""
    s_cmp_ge_u32 s{sWV}, 4
    s_cbranch_scc0 L_o_compute
    """)
    S.loader_setup()
    q = VmQ()
    for s_ in range(PD):
        S.issue_W(s_); q.push(f"W{s_}", 5)
    lw = a.newlabel("ow")
    a(f"s_cmp_eq_u32 s{sWV}, 4")
    a(f"s_cbranch_scc0 {lw}")
    a(f"s_add_u32 s40, s{sX}, {C_ATT}")
    poll_f(a, 40, 32, 8)
    a.label(lw)
    stx(a, 'o_poll')
    a("s_barrier")
    for s_ in range(PD):
        S.issue_A(s_); q.push(f"A{s_}", 4)
    S.loader_main(q)
    a("s_barrier")
    F1 = CoreL(a, 'ffn1', 'f')
    F1.map_tiles("L_o_ld_idle")
    F1.loader_setup()
    q = VmQ()
    a("s_barrier")
    for s_ in range(PD):
        F1.issue_W(s_); q.push(f"W{s_}", 4)
    a("s_branch L_f1_loader")
    a.label("L_o_ld_idle")
    a("s_barrier")
    a("s_branch L_f2_loader0")
    a.label("L_o_compute")
    lw = a.newlabel("oa")
    a(f"s_cmp_eq_u32 s{sWV}, 0")
    a(f"s_cbranch_scc0 {lw}")
    arrive_f(a, 76, sRk, 4)
    st(a, 8)
    a.label(lw)
    S.compute_setup()
    S.pretouch()
    S.residual_loads()
    a("s_barrier")
    st(a, 9)
    stx(a, 'o_X')
    S.mainloop(tag='o')
    stx(a, 'o_loop')
    S.reduce()
    stx(a, 'o_red')
    a("s_barrier")
    S.epilogue()
    stx(a, 'o_epi')
    a("s_waitcnt vmcnt(0)")
    stx(a, 'o_drain')
    a("s_barrier")
    stx(a, 'o_e2')
    lw = a.newlabel("oa2")
    a(f"s_cmp_eq_u32 s{sWV}, 0")
    a(f"s_cbranch_scc0 {lw}")
    a(f"s_lshr_b32 s40, s{S.sM0}, 7")
    a(f"s_add_u32 s40, s40, {C_OP}")
    a(f"s_lshr_b32 s41, s{S.sM0}, 6")
    a(f"s_and_b32 s41, s41, 1")
    a(f"s_lshl_b32 s41, s41, 3")
    a(f"s_add_u32 s41, s41, s{S.sNt}")
    arrive_f(a, 40, 41, 4)
    st(a, 10)
    a.label(lw)
    lane_id(a, 1)
    F1.map_tiles("L_f2_compute0")
    a("s_branch L_f1_compute")
    a.label("L_f1_loader")
    lw = a.newlabel("fw")
    a(f"s_cmp_eq_u32 s{sWV}, 4")
    a(f"s_cbranch_scc0 {lw}")
    a(f"s_lshr_b32 s40, s{F1.sM0}, 7")
    a(f"s_add_u32 s40, s40, {C_OP}")
    stx(a, 'f_p0')
    poll_f(a, 40, 16, 8)
    a.label(lw)
    stx(a, 'f_poll')
    a("s_barrier")
    for s_ in range(PD):
        F1.issue_A(s_); q.push(f"A{s_}", 4)
    F1.lstats_init()
    F1.loader_main(q)
    a("s_waitcnt lgkmcnt(0)")
    a("s_barrier")
    S2 = CoreS(a, 'ffn2')
    S2.map_tiles()
    S2.loader_setup()
    q = VmQ()
    a("s_barrier")
    if E('PFW2B'):
        for j in range(9):
            wave_only(a, 4 + (j % 4), lambda: w2p_prefetch(a, j))
    for s_ in range(PD):
        S2.issue_W(s_); q.push(f"W{s_}", 5)
    a("s_branch L_f2_loader")
    a.label("L_f2_loader0")
    if E('PFW2') or E('PFW2B'):
        for j in range(9):
            wave_only(a, 4 + (j % 4), lambda: w2p_prefetch(a, j))
    S2.map_tiles()
    S2.loader_setup()
    for s_ in range(PD):
        S2.issue_W(s_)
    a.label("L_f2_loader")
    lw = a.newlabel("gw")
    a(f"s_cmp_eq_u32 s{sWV}, 4")
    a(f"s_cbranch_scc0 {lw}")
    a(f"s_lshr_b32 s40, s{S2.sM0}, 7")
    a(f"s_add_u32 s40, s40, {C_F1}")
    poll_f(a, 40, 14, 8)
    a.label(lw)
    a("s_barrier")
    for s_ in range(PD):
        S2.issue_A(s_); q.push(f"A{s_}", 4)
    S2.loader_main(q)
    if common.STAMPS:
        stamp_flush(a, 0, sWV, base=SB, vt=90)
    a("s_endpgm")
    a.label("L_f1_compute")
    F1.compute_setup()
    F1.addr_f()
    a("s_barrier")
    st(a, 11)
    stx(a, 'f_X')
    F1.mainloop(True, tag='f')
    stx(a, 'f_loop')
    a("s_barrier")
    F1.epilogue_Y('ffn1')
    stx(a, 'f_epi')
    a("s_waitcnt vmcnt(0)")
    stx(a, 'f_drain')
    a("s_barrier")
    lw = a.newlabel("fa")
    a(f"s_cmp_eq_u32 s{sWV}, 0")
    a(f"s_cbranch_scc0 {lw}")
    a(f"s_lshr_b32 s40, s{F1.sM0}, 7")
    a(f"s_add_u32 s40, s40, {C_F1}")
    arrive_f(a, 40, F1.sNt, 4)
    st(a, 12)
    a.label(lw)
    lane_id(a, 1)
    a.label("L_f2_compute0")
    S2.map_tiles()
    S2.compute_setup()
    a("s_barrier")
    st(a, 13)
    stx(a, 'g_X')
    S2.residual_loads()
    S2.mainloop(tag='g')
    stx(a, 'g_loop')
    S2.reduce()
    stx(a, 'g_red')
    S2.epilogue()
    stx(a, 'g_epi')
    if common.STAMPS:
        a("s_waitcnt vmcnt(0)")
        st(a, 14); st_rt(a, 15)
        stamp_flush(a, 0, sWV, base=SB, vt=90)
        if E('DBGOUT'):
            l = a.newlabel("dbo")
            a(f"s_cmp_eq_u32 s2, 9")
            a(f"s_cbranch_scc0 {l}")
            a(f"s_cmp_eq_u32 s{sWV}, 0")
            a(f"s_cbranch_scc0 {l}")
            make_srd(a, 8, pDBG, pDBG+1, 0, 256)
            a("s_mov_b64 exec, 1")
            pairs = [(15, 0), (14, 1), (2, 1), (3, 1), (4, 1), (5, 1), (6, 1), (7, 1), (9, 1), (11, 1), (13, 1)]
            for k, (x, y) in enumerate(pairs):
                a(f"s_sub_u32 s40, s{SB+x}, s{SB+y}")
                a(f"v_mov_b32 v4, s40")
                a(f"v_mov_b32 v5, {16 + 4*k}")
                a(f"buffer_store_dword v4, v5, s[8:11], 0 offen")
            a("s_waitcnt vmcnt(0)")
            a.label(l)
    a.label("L_exit")
    a("s_endpgm")
    return kernel_header(NAME) + a.text() + kernel_desc(NAME, 256, 176, sgpr=102)
```

```python
from common import *
import common, os
E = os.environ.get

NAME = "sequential_preLN__softmax_full_mha__dense_activation_relu__prompt_kernel"
pX, pWQ, pWO, pW1, pW2, pOUT, pDBG, pWS = 84, 86, 88, 92, 94, 96, 98, 78
sWS = 80
sWV = 100
sPoll = 101
SB = 48
STAT = 131072
LDS_TOTAL = 149504
SC = "sc1"
sX, sRk, sLoc = 72, 73, 74
ROLE = LDS_TOTAL - 64
POLL_MAX = 1 << 22

FS = E('FS', '').split(',') if E('FS') else []
FS0 = int(E('FS0', '9'))
def st(a, i):
    if FS and (i >= FS0) and i != 15: return
    stamp(a, i, base=SB)
def st2(a, i): pass
def stx(a, tag):
    if tag in FS: stamp(a, FS0 + FS.index(tag), base=SB)
def st_rt(a, i): stamp_rt(a, i, base=SB)

def lane_id(a, v):
    a(f"v_mbcnt_lo_u32_b32 v{v}, -1, 0")
    a(f"v_mbcnt_hi_u32_b32 v{v}, -1, v{v}")

def arrive(a, sIdx, vt):
    a(f"""
    s_lshl_b32 s{sPoll}, s{sIdx}, 7
    s_add_u32 s{sPoll}, s{sPoll}, {WS_CNT}
    v_mov_b32 v{vt}, s{sPoll}
    v_mov_b32 v{vt+1}, 1
    s_mov_b64 exec, 1
    buffer_atomic_add v{vt+1}, v{vt}, s[{sWS}:{sWS+3}], 0 offen sc1
    s_mov_b64 exec, -1
    """)

def dual(a, instrs):
    l0, l1 = a.newlabel("slow"), a.newlabel("dd")
    a(f"s_cmp_eq_u32 s{sLoc}, 0")
    a(f"s_cbranch_scc1 {l0}")
    for i in instrs: a(i.replace("@SC", E('LOCFL', '') if 'store' in i else ''))
    a(f"s_branch {l1}")
    a.label(l0)
    for i in instrs: a(i.replace("@SC", "sc1"))
    a.label(l1)

def arrive_l(a, sIdx, vt):
    a(f"""
    s_lshl_b32 s{sPoll}, s{sIdx}, 7
    s_add_u32 s{sPoll}, s{sPoll}, {WS_CNT}
    v_mov_b32 v{vt}, s{sPoll}
    v_mov_b32 v{vt+1}, 1
    s_mov_b64 exec, 1
    """)
    dual(a, [f"buffer_atomic_add v{vt+1}, v{vt}, s[{sWS}:{sWS+3}], 0 offen @SC"])
    a("s_mov_b64 exec, -1")

def arrive_f(a, sIdx, sSlot, vt):
    a(f"""
    s_lshl_b32 s{sPoll}, s{sIdx}, 7
    s_add_u32 s{sPoll}, s{sPoll}, {WS_CNT}
    s_lshl_b32 s75, s{sSlot}, 2
    s_add_u32 s{sPoll}, s{sPoll}, s75
    v_mov_b32 v{vt}, s{sPoll}
    v_mov_b32 v{vt+1}, 1
    s_mov_b64 exec, 1
    """)
    dual(a, [f"buffer_store_dword v{vt+1}, v{vt}, s[{sWS}:{sWS+3}], 0 offen @SC"])
    a("s_mov_b64 exec, -1")

def poll_f(a, sIdx, n, vt):
    a(f"""
    s_lshl_b32 s{sPoll}, s{sIdx}, 7
    s_add_u32 s{sPoll}, s{sPoll}, {WS_CNT}
    v_lshlrev_b32 v{vt+1}, 2, v1
    v_add_u32 v{vt+1}, s{sPoll}, v{vt+1}
    v_mov_b32 v{vt+2}, 1
    """)
    poll(a, vt + 1, vt + 2, n, vt)

def poll(a, vOff, vTgt, nl, vt):
    l0, l1 = a.newlabel("poll"), a.newlabel("pollok")
    a(f"s_mov_b64 exec, {(1 << nl) - 1:#x}")
    a(f"s_mov_b32 s{sPoll}, 0")
    a.label(l0)
    a(f"""
    buffer_load_dword v{vt}, v{vOff}, s[{sWS}:{sWS+3}], 0 offen sc1
    s_waitcnt vmcnt(0)
    v_cmp_gt_u32 vcc, v{vTgt}, v{vt}
    s_nop 4
    s_cmp_eq_u64 vcc, 0
    s_cbranch_scc1 {l1}
    s_add_u32 s{sPoll}, s{sPoll}, 1
    s_cmp_gt_u32 s{sPoll}, {POLL_MAX}
    s_cbranch_scc1 {l1}
    s_sleep 1
    s_branch {l0}
    """)
    a.label(l1)
    a("s_mov_b64 exec, -1")

def poll1(a, sIdx, target, vt):
    a(f"""
    s_lshl_b32 s{sPoll}, s{sIdx}, 7
    s_add_u32 s{sPoll}, s{sPoll}, {WS_CNT}
    v_mov_b32 v{vt+1}, s{sPoll}
    v_mov_b32 v{vt+2}, {target}
    """)
    poll(a, vt + 1, vt + 2, 1, vt)

def wave_sum(a, v):
    for sh in (1, 2, 4, 8):
        a(f"v_add_f32_dpp v{v}, v{v}, v{v} row_shr:{sh} row_mask:0xf bank_mask:0xf bound_ctrl:0")
        a("s_nop 1")
    a(f"v_add_f32_dpp v{v}, v{v}, v{v} row_bcast:15 row_mask:0xa bank_mask:0xf")
    a("s_nop 1")
    a(f"v_add_f32_dpp v{v}, v{v}, v{v} row_bcast:31 row_mask:0xc bank_mask:0xf")
    a("s_nop 1")

def p0_rows_issue(a, sXs, s0, vR, vA):
    a(f"""
    s_lshl_b32 s{s0}, s2, 3
    s_lshl_b32 s{s0+1}, s{sWV}, 1
    s_add_u32 s{s0}, s{s0}, s{s0+1}
    s_mul_i32 s{s0+2}, s{s0}, 1280
    v_lshlrev_b32 v{vA}, 4, v1
    v_lshlrev_b32 v{vA+1}, 2, v1
    s_add_u32 s{s0+3}, s{s0+2}, 1280
    buffer_load_dwordx4 {vr(vR,4)}, v{vA}, s[{sXs}:{sXs+3}], s{s0+2} offen
    buffer_load_dword v{vR+4}, v{vA+1}, s[{sXs}:{sXs+3}], s{s0+2} offen offset:1024
    buffer_load_dwordx4 {vr(vR+6,4)}, v{vA}, s[{sXs}:{sXs+3}], s{s0+3} offen
    buffer_load_dword v{vR+5}, v{vA+1}, s[{sXs}:{sXs+3}], s{s0+3} offen offset:1024
    """)
def p0_rows_finish(a, s0, vR, vA):
    for rr in range(2):
        regs = [vR + 6*rr + i for i in range(4)] + [vR + 4 + rr]
        S, Q, U = vA + 4, vA + 5, vA + 6
        for n, r in enumerate(regs):
            a(f"v_lshlrev_b32 v{U}, 16, v{r}")
            a(f"v_and_b32 v{U+1}, 0xffff0000, v{r}")
            if n == 0:
                a(f"v_add_f32 v{S}, v{U}, v{U+1}")
                a(f"v_mul_f32 v{Q}, v{U}, v{U}")
            else:
                a(f"v_add_f32 v{S}, v{S}, v{U}")
                a(f"v_add_f32 v{S}, v{S}, v{U+1}")
                a(f"v_fmac_f32 v{Q}, v{U}, v{U}")
            a(f"v_fmac_f32 v{Q}, v{U+1}, v{U+1}")
        a("s_nop 1")
        for sh in (1, 2, 4, 8):
            a(f"v_add_f32_dpp v{S}, v{S}, v{S} row_shr:{sh} row_mask:0xf bank_mask:0xf bound_ctrl:0")
            a(f"v_add_f32_dpp v{Q}, v{Q}, v{Q} row_shr:{sh} row_mask:0xf bank_mask:0xf bound_ctrl:0")
            a("s_nop 0")
        a(f"v_add_f32_dpp v{S}, v{S}, v{S} row_bcast:15 row_mask:0xa bank_mask:0xf")
        a(f"v_add_f32_dpp v{Q}, v{Q}, v{Q} row_bcast:15 row_mask:0xa bank_mask:0xf")
        a("s_nop 0")
        a(f"v_add_f32_dpp v{S}, v{S}, v{S} row_bcast:31 row_mask:0xc bank_mask:0xf")
        a(f"v_add_f32_dpp v{Q}, v{Q}, v{Q} row_bcast:31 row_mask:0xc bank_mask:0xf")
        a(f"""
        s_nop 0
        v_mul_f32 v{S}, {f32bits(1.0/640):#x}, v{S}
        v_mul_f32 v{Q}, {f32bits(1.0/640):#x}, v{Q}
        v_fma_f32 v{Q}, -v{S}, v{S}, v{Q}
        v_max_f32 v{Q}, 0, v{Q}
        v_add_f32 v{Q}, {f32bits(1e-5):#x}, v{Q}
        v_rsq_f32 v{Q}, v{Q}
        s_nop 0
        v_mov_b32 v{vA+8+2*rr}, v{S}
        v_mov_b32 v{vA+9+2*rr}, v{Q}
        """)
    a(f"""
    s_lshl_b32 s{s0+4}, s{s0}, 3
    s_add_u32 s{s0+4}, s{s0+4}, {WS_ST1}
    v_mov_b32 v{vA+4}, 0
    s_mov_b32 exec_lo, 0
    s_mov_b32 exec_hi, 0x80000000
    buffer_store_dwordx4 {vr(vA+8,4)}, v{vA+4}, s[{sWS}:{sWS+3}], s{s0+4} offen {SC}
    s_mov_b64 exec, -1
    """)
def colsum_issue(a, which, srd, sW4, s0, vC, vA):
    ld = 3840 if which == 'wq' else 3456
    a(f"""
    s_and_b32 s{s0+1}, s2, 7
    s_lshr_b32 s{s0+2}, s2, 3
    s_lshr_b32 s{s0+3}, s{s0+1}, 1
    s_lshl_b32 s{s0+3}, s{s0+3}, 5
    s_add_u32 s{s0+2}, s{s0+2}, s{s0+3}
    s_and_b32 s{s0+1}, s{s0+1}, 1
    s_and_b32 s{s0+3}, s{s0+2}, 15
    s_lshr_b32 s{s0+2}, s{s0+2}, 4
    v_lshrrev_b32 v{vA}, 3, v1
    v_and_b32 v{vA+1}, 7, v1
    v_lshlrev_b32 v{vA+1}, 2, v{vA+1}
    v_mul_u32_u24 v{vA+2}, {ld}, v{vA}
    v_add_u32 v{vA+2}, v{vA+2}, v{vA+1}
    s_lshl_b32 s{s0+4}, s{s0+3}, 6
    s_lshl_b32 s{s0+7}, s{sW4}, 4
    s_add_u32 s{s0+4}, s{s0+4}, s{s0+7}
    s_mul_i32 s{s0+5}, s{s0+1}, {1024 if which == 'wq' else 896}
    s_add_u32 s{s0+5}, s{s0+5}, s{s0+4}
    s_mul_i32 s{s0+7}, s{s0+2}, {80*ld}
    s_lshl_b32 s{s0+4}, s{s0+5}, 1
    s_add_u32 s{s0+7}, s{s0+7}, s{s0+4}
    """)
    for j in range(10):
        a(f"buffer_load_dword v{vC+j}, v{vA+2}, s[{srd}:{srd+3}], s{s0+7} offen")
        if j < 9: a(f"s_add_u32 s{s0+7}, s{s0+7}, {8*ld}")
def colsum_finish(a, which, s0, vC, vA):
    base, ncol = (WS_CS1, 1920) if which == 'wq' else (WS_CS2, 1792)
    A0, A1, U = vA + 4, vA + 5, vA + 6
    for j in range(10):
        if j == 0:
            a(f"v_lshlrev_b32 v{A0}, 16, v{vC}")
            a(f"v_and_b32 v{A1}, 0xffff0000, v{vC}")
        else:
            a(f"v_lshlrev_b32 v{U}, 16, v{vC+j}")
            a(f"v_and_b32 v{U+1}, 0xffff0000, v{vC+j}")
            a(f"v_add_f32 v{A0}, v{A0}, v{U}")
            a(f"v_add_f32 v{A1}, v{A1}, v{U+1}")
    a(f"""
    s_nop 1
    v_add_f32_dpp v{A0}, v{A0}, v{A0} row_ror:8 row_mask:0xf bank_mask:0xf
    v_add_f32_dpp v{A1}, v{A1}, v{A1} row_ror:8 row_mask:0xf bank_mask:0xf
    s_nop 1
    v_mov_b32 v{U}, v{A0}
    v_mov_b32 v{U+1}, v{A1}
    s_nop 1
    v_permlane16_swap_b32 v{A0}, v{U}
    v_permlane16_swap_b32 v{A1}, v{U+1}
    s_nop 1
    v_add_f32 v{A0}, v{A0}, v{U}
    v_add_f32 v{A1}, v{A1}, v{U+1}
    s_nop 0
    v_mov_b32 v{U}, v{A0}
    v_mov_b32 v{U+1}, v{A1}
    s_nop 1
    v_permlane32_swap_b32 v{A0}, v{U}
    v_permlane32_swap_b32 v{A1}, v{U+1}
    s_nop 1
    v_add_f32 v{vA+12}, v{A0}, v{U}
    v_add_f32 v{vA+13}, v{A1}, v{U+1}
    v_lshlrev_b32 v{U}, 3, v1
    s_mul_i32 s{s0+4}, s{s0+2}, {ncol*4}
    s_lshl_b32 s{s0+7}, s{s0+5}, 2
    s_add_u32 s{s0+4}, s{s0+4}, s{s0+7}
    s_add_u32 s{s0+4}, s{s0+4}, {base}
    """)
    lab = a.newlabel("p0skip")
    if which == 'wq':
        a(f"s_cmp_ge_u32 s{s0+5}, 1920")
    else:
        a(f"s_sub_u32 s{s0+7}, 14, s{s0+1}")
        a(f"s_cmp_ge_u32 s{s0+3}, s{s0+7}")
    a(f"s_cbranch_scc1 {lab}")
    a("s_mov_b64 exec, 0xff")
    a(f"buffer_store_dwordx2 {vr(vA+12,2)}, v{U}, s[{sWS}:{sWS+3}], s{s0+4} offen {SC}")
    a("s_mov_b64 exec, -1")
    a.label(lab)
def emit_p0(a):
    sXs, sWq, s0 = 8, 12, 40
    vR, vC, vA = 4, 14, 34
    make_srd(a, sXs, pX, pX+1, 0, 2048*1280)
    make_srd(a, sWq, pWQ, pWQ+1, 0, 640*3840)
    p0_rows_issue(a, sXs, s0, vR, vA)
    a(f"s_mov_b32 s39, s{s0}")
    colsum_issue(a, 'wq', sWq, sWV, s0, vC, vA + 12)
    a("s_waitcnt vmcnt(10)")
    a(f"s_mov_b32 s38, s{s0+4}")
    p0_rows_finish(a, 39, vR, vA) if False else None
    p0_rows_finish_b(a, 39, 38, vR, vA)
    a("s_waitcnt vmcnt(1)")
    colsum_finish(a, 'wq', s0, vC, vA + 12)
def p0_rows_finish_b(a, sRow, sTmp, vR, vA):
    import io
    class Tmp: pass
    for rr in range(2):
        regs = [vR + 6*rr + i for i in range(4)] + [vR + 4 + rr]
        S, Q, U = vA + 4, vA + 5, vA + 6
        for n, r in enumerate(regs):
            a(f"v_lshlrev_b32 v{U}, 16, v{r}")
            a(f"v_and_b32 v{U+1}, 0xffff0000, v{r}")
            if n == 0:
                a(f"v_add_f32 v{S}, v{U}, v{U+1}")
                a(f"v_mul_f32 v{Q}, v{U}, v{U}")
            else:
                a(f"v_add_f32 v{S}, v{S}, v{U}")
                a(f"v_add_f32 v{S}, v{S}, v{U+1}")
                a(f"v_fmac_f32 v{Q}, v{U}, v{U}")
            a(f"v_fmac_f32 v{Q}, v{U+1}, v{U+1}")
        a("s_nop 1")
        for sh in (1, 2, 4, 8):
            a(f"v_add_f32_dpp v{S}, v{S}, v{S} row_shr:{sh} row_mask:0xf bank_mask:0xf bound_ctrl:0")
            a(f"v_add_f32_dpp v{Q}, v{Q}, v{Q} row_shr:{sh} row_mask:0xf bank_mask:0xf bound_ctrl:0")
            a("s_nop 0")
        a(f"v_add_f32_dpp v{S}, v{S}, v{S} row_bcast:15 row_mask:0xa bank_mask:0xf")
        a(f"v_add_f32_dpp v{Q}, v{Q}, v{Q} row_bcast:15 row_mask:0xa bank_mask:0xf")
        a("s_nop 0")
        a(f"v_add_f32_dpp v{S}, v{S}, v{S} row_bcast:31 row_mask:0xc bank_mask:0xf")
        a(f"v_add_f32_dpp v{Q}, v{Q}, v{Q} row_bcast:31 row_mask:0xc bank_mask:0xf")
        a(f"""
        s_nop 0
        v_mul_f32 v{S}, {f32bits(1.0/640):#x}, v{S}
        v_mul_f32 v{Q}, {f32bits(1.0/640):#x}, v{Q}
        v_fma_f32 v{Q}, -v{S}, v{S}, v{Q}
        v_max_f32 v{Q}, 0, v{Q}
        v_add_f32 v{Q}, {f32bits(1e-5):#x}, v{Q}
        v_rsq_f32 v{Q}, v{Q}
        s_nop 0
        v_mov_b32 v{vA+8+2*rr}, v{S}
        v_mov_b32 v{vA+9+2*rr}, v{Q}
        """)
    a(f"""
    s_lshl_b32 s{sTmp}, s{sRow}, 3
    s_add_u32 s{sTmp}, s{sTmp}, {WS_ST1}
    v_mov_b32 v{vA+4}, 0
    s_mov_b32 exec_lo, 0
    s_mov_b32 exec_hi, 0x80000000
    buffer_store_dwordx4 {vr(vA+8,4)}, v{vA+4}, s[{sWS}:{sWS+3}], s{sTmp} offen {SC}
    s_mov_b64 exec, -1
    """)
def dbg_flag_issue(a, vt):
    make_srd(a, 44, pDBG, pDBG+1, 0, 256)
    a(f"v_mov_b32 v{vt+1}, 0")
    a(f"buffer_load_dword v{vt}, v{vt+1}, s[44:47], 0 offen sc1")
def dbg_flag_issue_b(a, vt):
    make_srd(a, 16, pDBG, pDBG+1, 0, 256)
    a(f"v_mov_b32 v{vt+1}, 0")
    a(f"buffer_load_dword v{vt}, v{vt+1}, s[16:19], 0 offen sc1")
def dbg_flag_wait(a, vt, srd=44, landed=False):
    l0, l1, l2 = a.newlabel("dbgp"), a.newlabel("dbgok"), a.newlabel("dbgc")
    a(f"s_mov_b32 s{sPoll}, 0")
    if landed: a(f"s_branch {l2}")
    a.label(l0)
    a("s_waitcnt vmcnt(0)")
    a.label(l2)
    a(f"""
    v_readfirstlane_b32 s75, v{vt}
    s_cmp_lg_u32 s75, 0
    s_cbranch_scc1 {l1}
    s_add_u32 s{sPoll}, s{sPoll}, 1
    s_cmp_gt_u32 s{sPoll}, {POLL_MAX}
    s_cbranch_scc1 {l1}
    s_sleep 1
    buffer_load_dword v{vt}, v{vt+1}, s[{srd}:{srd+3}], 0 offen sc1
    s_branch {l0}
    """)
    a.label(l1)
def dbg_flag_wait_arrive_b(a, cbase, vt):
    dbg_flag_wait_arrive(a, cbase, vt, 16)
def dbg_flag_wait_arrive(a, cbase, vt, srd=44):
    l0, l1 = a.newlabel("dbgp"), a.newlabel("dbgok")
    a(f"s_mov_b32 s{sPoll}, 0")
    a.label(l0)
    a(f"""
    s_waitcnt vmcnt(0)
    v_readfirstlane_b32 s75, v{vt}
    s_cmp_lg_u32 s75, 0
    s_cbranch_scc1 {l1}
    s_add_u32 s{sPoll}, s{sPoll}, 1
    s_cmp_gt_u32 s{sPoll}, {POLL_MAX}
    s_cbranch_scc1 {l1}
    s_sleep 1
    buffer_load_dword v{vt}, v{vt+1}, s[{srd}:{srd+3}], 0 offen sc1
    s_branch {l0}
    """)
    a.label(l1)
    a(f"s_and_b32 s75, s2, 7")
    a(f"s_add_u32 s75, s75, {cbase}")
    arrive(a, 75, vt)

class P0Q:
    vR, vC, vD, vA = 64, 84, 94, 104
    def __init__(self, a, L):
        self.a, self.L = a, L
    def issue(self):
        a, L = self.a, self.L
        vR, vC, vD, vA = self.vR, self.vC, self.vD, self.vA
        sXs, sWq = L.sA, L.sW
        sW1 = 16
        make_srd(a, sW1, pW1, pW1+1, 0, 640*3456)
        a(f"""
        v_lshrrev_b32 v2, 4, v1
        v_and_b32 v3, 15, v1
        s_lshl_b32 s40, s{L.sNt}, 4
        s_add_u32 s40, s40, s{L.sM0}
        s_lshl_b32 s41, s{L.sLw}, 2
        s_add_u32 s40, s40, s41
        s_cmp_lt_u32 s{L.sNt}, 8
        s_cselect_b32 s40, s40, 4096
        v_add_u32 v{vA}, s40, v2
        v_mul_u32_u24 v{vA+1}, 1280, v{vA}
        v_lshlrev_b32 v{vA+2}, 4, v3
        v_add_u32 v{vA+1}, v{vA+1}, v{vA+2}
        """)
        for j in range(5):
            a(f"buffer_load_dwordx4 {vr(vR+4*j,4)}, v{vA+1}, s[{sXs}:{sXs+3}], 0 offen offset:{256*j}")
        a(f"""
        s_lshr_b32 s41, s{L.sM0}, 7
        s_mul_i32 s42, s41, {40*3840}
        s_lshl_b32 s43, s{L.sLw}, 5
        s_add_u32 s43, s43, s{L.sN0}
        s_lshl_b32 s40, s43, 1
        s_add_u32 s42, s42, s40
        v_mul_u32_u24 v{vA+2}, 3840, v2
        v_lshlrev_b32 v{vA+3}, 2, v3
        v_add_u32 v{vA+2}, v{vA+2}, v{vA+3}
        """)
        for j in range(10):
            a(f"buffer_load_dword v{vC+j}, v{vA+2}, s[{sWq}:{sWq+3}], s42 offen")
            if j < 9: a(f"s_add_u32 s42, s42, {4*3840}")
        a(f"""
        s_mul_i32 s42, s41, {40*3456}
        s_add_u32 s42, s42, s40
        s_cmp_lt_u32 s{L.sNt}, 14
        s_cselect_b32 s42, s42, 0x7f000000
        v_mul_u32_u24 v{vA+4}, 3456, v2
        v_add_u32 v{vA+4}, v{vA+4}, v{vA+3}
        """)
        for j in range(10):
            a(f"buffer_load_dword v{vD+j}, v{vA+4}, s[{sW1}:{sW1+3}], s42 offen")
            if j < 9: a(f"s_add_u32 s42, s42, {4*3456}")
    def rows(self):
        a, L = self.a, self.L
        vR, vA = self.vR, self.vA
        S, Q, U = vA + 5, vA + 6, vA + 8
        for n in range(20):
            r = vR + n
            u = U + 2*(n & 1)
            a(f"v_lshlrev_b32 v{u}, 16, v{r}")
            a(f"v_and_b32 v{u+1}, 0xffff0000, v{r}")
            if n == 0:
                a(f"v_add_f32 v{S}, v{u}, v{u+1}")
                a(f"v_mul_f32 v{Q}, v{u}, v{u}")
            else:
                a(f"v_add_f32 v{S}, v{S}, v{u}")
                a(f"v_fmac_f32 v{Q}, v{u}, v{u}")
                a(f"v_add_f32 v{S}, v{S}, v{u+1}")
            a(f"v_fmac_f32 v{Q}, v{u+1}, v{u+1}")
        a("s_nop 1")
        for sh in (1, 2, 4, 8):
            a(f"v_add_f32_dpp v{S}, v{S}, v{S} row_shr:{sh} row_mask:0xf bank_mask:0xf bound_ctrl:0")
            a(f"v_add_f32_dpp v{Q}, v{Q}, v{Q} row_shr:{sh} row_mask:0xf bank_mask:0xf bound_ctrl:0")
            a("s_nop 0")
        a(f"""
        v_mul_f32 v{S}, {f32bits(1.0/640):#x}, v{S}
        v_mul_f32 v{Q}, {f32bits(1.0/640):#x}, v{Q}
        v_fma_f32 v{Q}, -v{S}, v{S}, v{Q}
        v_max_f32 v{Q}, 0, v{Q}
        v_add_f32 v{Q}, {f32bits(1e-5):#x}, v{Q}
        v_rsq_f32 v{Q}, v{Q}
        v_mov_b32 v{U}, v{S}
        v_lshlrev_b32 v{U+2}, 3, v{vA}
        v_mov_b32 v{U+3}, 0x7fffff00
        v_cmp_gt_u32 vcc, 2048, v{vA}
        v_mov_b32 v{U+1}, v{Q}
        v_cndmask_b32 v{U+2}, v{U+3}, v{U+2}, vcc
        s_mov_b32 s40, {WS_ST1}
        s_mov_b32 exec_lo, 0x80008000
        s_mov_b32 exec_hi, 0x80008000
        buffer_store_dwordx2 {vr(U,2)}, v{U+2}, s[{sWS}:{sWS+3}], s40 offen {SC}
        s_mov_b64 exec, -1
        """)
    def cols(self, which):
        a, L = self.a, self.L
        vA = self.vA
        regs, base, ncol, lim = (self.vC, WS_CS1, 1920, 15) if which == 0 else (self.vD, WS_CS2, 1792, 14)
        U = vA + 8
        A0, A1 = vA + 5, vA + 6
        for j in range(10):
            u = U + 2*(j & 1)
            if j == 0:
                a(f"v_lshlrev_b32 v{A0}, 16, v{regs}")
                a(f"v_and_b32 v{A1}, 0xffff0000, v{regs}")
            else:
                a(f"v_lshlrev_b32 v{u}, 16, v{regs+j}")
                a(f"v_and_b32 v{u+1}, 0xffff0000, v{regs+j}")
                a(f"v_add_f32 v{A0}, v{A0}, v{u}")
                a(f"v_add_f32 v{A1}, v{A1}, v{u+1}")
        a(f"""
        s_nop 0
        v_mov_b32 v{U}, v{A0}
        v_mov_b32 v{U+1}, v{A1}
        s_nop 1
        v_permlane16_swap_b32 v{A0}, v{U}
        v_permlane16_swap_b32 v{A1}, v{U+1}
        s_nop 1
        v_add_f32 v{A0}, v{A0}, v{U}
        v_add_f32 v{A1}, v{A1}, v{U+1}
        s_nop 0
        v_mov_b32 v{U}, v{A0}
        v_mov_b32 v{U+1}, v{A1}
        s_nop 1
        v_permlane32_swap_b32 v{A0}, v{U}
        v_permlane32_swap_b32 v{A1}, v{U+1}
        s_nop 1
        v_add_f32 v{U+4}, v{A0}, v{U}
        v_add_f32 v{U+5}, v{A1}, v{U+1}
        v_lshlrev_b32 v{U}, 3, v3
        s_mul_i32 s42, s41, {ncol*4}
        s_lshl_b32 s40, s43, 2
        s_add_u32 s42, s42, s40
        s_add_u32 s42, s42, {base}
        s_cmp_lt_u32 s{L.sNt}, {lim}
        s_cselect_b32 s42, s42, 0x7f000000
        s_mov_b64 exec, 0xffff
        buffer_store_dwordx2 {vr(U+4,2)}, v{U}, s[{sWS}:{sWS+3}], s42 offen {SC}
        s_mov_b64 exec, -1
        s_nop 1
        """)
def emit_p0r(a, L):
    sXs, vR, vA = 8, 146, 132
    make_srd(a, sXs, pX, pX+1, 0, 2048*1280)
    a(f"""
    v_lshrrev_b32 v166, 4, v1
    v_and_b32 v167, 15, v1
    s_lshl_b32 s75, s{L.sNt}, 4
    s_add_u32 s75, s75, s{L.sM0}
    s_lshl_b32 s76, s{sWV}, 2
    s_add_u32 s75, s75, s76
    s_cmp_lt_u32 s{L.sNt}, 8
    s_cselect_b32 s75, s75, 4096
    v_add_u32 v{vA}, s75, v166
    v_mul_u32_u24 v{vA+1}, 1280, v{vA}
    v_lshlrev_b32 v{vA+2}, 4, v167
    v_add_u32 v{vA+1}, v{vA+1}, v{vA+2}
    """)
    for j in range(5):
        a(f"buffer_load_dwordx4 {vr(vR+4*j,4)}, v{vA+1}, s[{sXs}:{sXs+3}], 0 offen offset:{256*j}")
def emit_p0r_finish(a, L, extra=0):
    vR, vA = 146, 132
    S, Q, S2, Q2, U = vA + 4, vA + 5, vA + 6, vA + 7, vA + 8
    for j in range(5):
        a(f"s_waitcnt vmcnt({4 - j + extra})")
        for n in range(4):
            r = vR + 4*j + n
            u = U + 2*(n & 1)
            a(f"v_lshlrev_b32 v{u}, 16, v{r}")
            a(f"v_and_b32 v{u+1}, 0xffff0000, v{r}")
            if j == 0 and n == 0:
                a(f"v_mov_b32 v{S}, v{u}")
                a(f"v_mul_f32 v{Q}, v{u}, v{u}")
                a(f"v_mov_b32 v{S2}, v{u+1}")
                a(f"v_mul_f32 v{Q2}, v{u+1}, v{u+1}")
            else:
                a(f"v_add_f32 v{S}, v{S}, v{u}")
                a(f"v_fmac_f32 v{Q}, v{u}, v{u}")
                a(f"v_add_f32 v{S2}, v{S2}, v{u+1}")
                a(f"v_fmac_f32 v{Q2}, v{u+1}, v{u+1}")
    a(f"v_add_f32 v{S}, v{S}, v{S2}")
    a(f"v_add_f32 v{Q}, v{Q}, v{Q2}")
    a("s_nop 1")
    for sh in (1, 2, 4, 8):
        a(f"v_add_f32_dpp v{S}, v{S}, v{S} row_shr:{sh} row_mask:0xf bank_mask:0xf bound_ctrl:0")
        a(f"v_add_f32_dpp v{Q}, v{Q}, v{Q} row_shr:{sh} row_mask:0xf bank_mask:0xf bound_ctrl:0")
        a("s_nop 0")
    a(f"""
    v_mul_f32 v{S}, {f32bits(1.0/640):#x}, v{S}
    v_mul_f32 v{Q}, {f32bits(1.0/640):#x}, v{Q}
    v_fma_f32 v{Q}, -v{S}, v{S}, v{Q}
    v_max_f32 v{Q}, 0, v{Q}
    v_add_f32 v{Q}, {f32bits(1e-5):#x}, v{Q}
    v_rsq_f32 v{Q}, v{Q}
    v_mov_b32 v{U}, v{S}
    v_lshlrev_b32 v{U+2}, 3, v{vA}
    v_mov_b32 v{U+3}, 0x7fffff00
    v_cmp_gt_u32 vcc, 2048, v{vA}
    v_mov_b32 v{U+1}, v{Q}
    v_cndmask_b32 v{U+2}, v{U+3}, v{U+2}, vcc
    s_mov_b32 s75, {WS_ST1}
    s_mov_b32 exec_lo, 0x80008000
    s_mov_b32 exec_hi, 0x80008000
    buffer_store_dwordx2 {vr(U,2)}, v{U+2}, s[{sWS}:{sWS+3}], s75 offen {SC}
    s_mov_b64 exec, -1
    """)
def idle_rows(a, sMt):
    sXs, vR, vA = 8, 72, 4
    NP = 2 if E('P0L') else 4
    make_srd(a, sXs, pX, pX+1, 0, 2048*1280)
    a(f"""
    v_lshrrev_b32 v2, 4, v1
    v_and_b32 v3, 15, v1
    s_lshl_b32 s40, s{sMt}, 7
    s_lshl_b32 s41, s{sWV}, {3 if E('P0L') else 4}
    s_add_u32 s40, s40, s41
    v_add_u32 v{vA}, s40, v2
    v_mul_u32_u24 v{vA+1}, 1280, v{vA}
    v_lshlrev_b32 v{vA+2}, 4, v3
    v_add_u32 v{vA+1}, v{vA+1}, v{vA+2}
    """)
    for p in range(NP):
        a(f"s_mov_b32 s41, {p * 4 * 1280}")
        for j in range(5):
            a(f"buffer_load_dwordx4 {vr(vR + 20*p + 4*j, 4)}, v{vA+1}, s[{sXs}:{sXs+3}], s41 offen offset:{256*j}")
    S, Q, S2, Q2, U = vA + 4, vA + 5, vA + 6, vA + 7, vA + 8
    for p in range(NP):
        a(f"s_waitcnt vmcnt({(NP - 1 - p) * 5 + p})")
        for n in range(20):
            r = vR + 20*p + n
            u = U + 2*(n & 1)
            a(f"v_lshlrev_b32 v{u}, 16, v{r}")
            a(f"v_and_b32 v{u+1}, 0xffff0000, v{r}")
            if n == 0:
                a(f"v_mov_b32 v{S}, v{u}")
                a(f"v_mul_f32 v{Q}, v{u}, v{u}")
                a(f"v_mov_b32 v{S2}, v{u+1}")
                a(f"v_mul_f32 v{Q2}, v{u+1}, v{u+1}")
            else:
                a(f"v_add_f32 v{S}, v{S}, v{u}")
                a(f"v_fmac_f32 v{Q}, v{u}, v{u}")
                a(f"v_add_f32 v{S2}, v{S2}, v{u+1}")
                a(f"v_fmac_f32 v{Q2}, v{u+1}, v{u+1}")
        a(f"v_add_f32 v{S}, v{S}, v{S2}")
        a(f"v_add_f32 v{Q}, v{Q}, v{Q2}")
        a("s_nop 1")
        for sh in (1, 2, 4, 8):
            a(f"v_add_f32_dpp v{S}, v{S}, v{S} row_shr:{sh} row_mask:0xf bank_mask:0xf bound_ctrl:0")
            a(f"v_add_f32_dpp v{Q}, v{Q}, v{Q} row_shr:{sh} row_mask:0xf bank_mask:0xf bound_ctrl:0")
            a("s_nop 0")
        a(f"""
        v_mul_f32 v{S}, {f32bits(1.0/640):#x}, v{S}
        v_mul_f32 v{Q}, {f32bits(1.0/640):#x}, v{Q}
        v_fma_f32 v{Q}, -v{S}, v{S}, v{Q}
        v_max_f32 v{Q}, 0, v{Q}
        v_add_f32 v{Q}, {f32bits(1e-5):#x}, v{Q}
        v_rsq_f32 v{Q}, v{Q}
        v_mov_b32 v{U+4}, v{S}
        v_add_u32 v{U+2}, {4*p}, v{vA}
        v_lshlrev_b32 v{U+2}, 3, v{U+2}
        v_mov_b32 v{U+5}, v{Q}
        s_mov_b32 s41, {WS_ST1}
        s_mov_b32 exec_lo, 0x80008000
        s_mov_b32 exec_hi, 0x80008000
        buffer_store_dwordx2 {vr(U+4,2)}, v{U+2}, s[{sWS}:{sWS+3}], s41 offen {SC}
        s_mov_b64 exec, -1
        s_nop 1
        """)

class P0L:
    vR, vA = 116, 136
    def __init__(self, a, L): self.a, self.L = a, L
    def issue(self):
        a, L = self.a, self.L
        vR, vA = self.vR, self.vA
        a(f"""
        v_lshrrev_b32 v{vA+2}, 4, v1
        v_and_b32 v{vA+3}, 15, v1
        s_lshl_b32 s75, s{L.sNt}, 4
        s_add_u32 s75, s75, s{L.sM0}
        s_add_u32 s75, s75, 64
        s_lshl_b32 s76, s{L.sLw}, 2
        s_add_u32 s75, s75, s76
        s_cmp_lt_u32 s{L.sNt}, 4
        s_cselect_b32 s75, s75, 4096
        v_add_u32 v{vA}, s75, v{vA+2}
        v_mul_u32_u24 v{vA+1}, 1280, v{vA}
        v_lshlrev_b32 v{vA+3}, 4, v{vA+3}
        v_add_u32 v{vA+1}, v{vA+1}, v{vA+3}
        """)
        for j in range(5):
            a(f"buffer_load_dwordx4 {vr(vR+4*j,4)}, v{vA+1}, s[{L.sA}:{L.sA+3}], 0 offen offset:{256*j}")
    def finish(self):
        a = self.a
        vR, vA = self.vR, self.vA
        S, Q, S2, Q2, U = vA + 4, vA + 5, vA + 6, vA + 7, vA + 8
        for n in range(20):
            r = vR + n
            u = U + 2*(n & 1)
            a(f"v_lshlrev_b32 v{u}, 16, v{r}")
            a(f"v_and_b32 v{u+1}, 0xffff0000, v{r}")
            if n == 0:
                a(f"v_mov_b32 v{S}, v{u}")
                a(f"v_mul_f32 v{Q}, v{u}, v{u}")
                a(f"v_mov_b32 v{S2}, v{u+1}")
                a(f"v_mul_f32 v{Q2}, v{u+1}, v{u+1}")
            else:
                a(f"v_add_f32 v{S}, v{S}, v{u}")
                a(f"v_fmac_f32 v{Q}, v{u}, v{u}")
                a(f"v_add_f32 v{S2}, v{S2}, v{u+1}")
                a(f"v_fmac_f32 v{Q2}, v{u+1}, v{u+1}")
        a(f"v_add_f32 v{S}, v{S}, v{S2}")
        a(f"v_add_f32 v{Q}, v{Q}, v{Q2}")
        a("s_nop 1")
        for sh in (1, 2, 4, 8):
            a(f"v_add_f32_dpp v{S}, v{S}, v{S} row_shr:{sh} row_mask:0xf bank_mask:0xf bound_ctrl:0")
            a(f"v_add_f32_dpp v{Q}, v{Q}, v{Q} row_shr:{sh} row_mask:0xf bank_mask:0xf bound_ctrl:0")
            a("s_nop 0")
        a(f"""
        v_mul_f32 v{S}, {f32bits(1.0/640):#x}, v{S}
        v_mul_f32 v{Q}, {f32bits(1.0/640):#x}, v{Q}
        v_fma_f32 v{Q}, -v{S}, v{S}, v{Q}
        v_max_f32 v{Q}, 0, v{Q}
        v_add_f32 v{Q}, {f32bits(1e-5):#x}, v{Q}
        v_rsq_f32 v{Q}, v{Q}
        v_mov_b32 v{U}, v{S}
        v_lshlrev_b32 v{U+2}, 3, v{vA}
        v_mov_b32 v{U+3}, 0x7fffff00
        v_cmp_gt_u32 vcc, 2048, v{vA}
        v_mov_b32 v{U+1}, v{Q}
        v_cndmask_b32 v{U+2}, v{U+3}, v{U+2}, vcc
        s_mov_b32 s75, {WS_ST1}
        s_mov_b32 exec_lo, 0x80008000
        s_mov_b32 exec_hi, 0x80008000
        buffer_store_dwordx2 {vr(U,2)}, v{U+2}, s[{sWS}:{sWS+3}], s75 offen {SC}
        s_mov_b64 exec, -1
        """)

def p0r_arrive(a, L, vt):
    ok, skip = a.newlabel("fok"), a.newlabel("fsk")
    dbg_flag_wait(a, vt, landed=True)
    a(f"s_cmp_lt_u32 s{L.sNt}, 4")
    a(f"s_cbranch_scc0 {skip}")
    a(f"s_lshr_b32 s76, s{L.sM0}, 7")
    a(f"s_add_u32 s76, s76, {C_ST}")
    arrive(a, 76, vt - 2)
    a.label(skip)

def qkv_prefetch(a, L):
    make_srd(a, 12, pWQ, pWQ+1, 0, 640*3840)
    make_srd(a, 8, pX, pX+1, 0, 2048*1280)
    fl = E('QPF_FL', 'sc1')
    a(f"""
    s_lshr_b32 s40, s2, 3
    s_and_b32 s41, s2, 1
    v_and_b32 v2, 15, v1
    v_lshrrev_b32 v3, 4, v1
    v_lshlrev_b32 v2, 7, v2
    v_mul_u32_u24 v3, 3840, v3
    v_add_u32 v4, v2, v3
    s_mul_i32 s42, s40, {20*3840}
    s_lshl_b32 s43, s41, 11
    s_add_u32 s42, s42, s43
    s_mul_i32 s43, s{sWV}, {4*3840}
    s_add_u32 s42, s42, s43
    buffer_load_dword v162, v4, s[12:15], s42 offen {fl}
    """)
    l = a.newlabel("qpf")
    a(f"""
    s_cmp_eq_u32 s{sWV}, 0
    s_cbranch_scc0 {l}
    s_add_u32 s42, s42, {16*3840}
    buffer_load_dword v162, v4, s[12:15], s42 offen {fl}
    """)
    a.label(l)
    l = a.newlabel("qpf")
    a(f"""
    s_cmp_eq_u32 s{sWV}, 0
    s_cbranch_scc1 {l}
    s_and_b32 s41, s2, 7
    s_lshr_b32 s41, s41, 1
    s_lshl_b32 s41, s41, 5
    s_add_u32 s41, s41, s40
    s_mul_i32 s42, s41, 20480
    s_sub_u32 s43, s{sWV}, 1
    s_lshl_b32 s43, s43, 13
    s_add_u32 s42, s42, s43
    v_lshlrev_b32 v4, 7, v1
    buffer_load_dword v162, v4, s[8:11], s42 offen {fl}
    """)
    a.label(l)

def p0q_arrive(a, L, vt):
    ok = a.newlabel("fok")
    a(f"v_readfirstlane_b32 s75, v{vt}")
    a("s_cmp_lg_u32 s75, 0")
    a(f"s_cbranch_scc1 {ok}")
    dbg_flag_wait(a, vt)
    a.label(ok)
    a(f"""
    s_lshr_b32 s75, s{L.sM0}, 7
    s_add_u32 s75, s75, {C_ST}
    s_add_u32 s76, s{L.sNt}, {C_CS1}
    s_add_u32 s77, s{L.sNt}, {C_CS2}
    v_mov_b32 v{vt-1}, s75
    v_writelane_b32 v{vt-1}, s76, 1
    v_writelane_b32 v{vt-1}, s77, 2
    s_nop 0
    v_lshlrev_b32 v{vt-1}, 7, v{vt-1}
    v_add_u32 v{vt-1}, {WS_CNT}, v{vt-1}
    v_mov_b32 v{vt-2}, 1
    s_cmp_lt_u32 s{L.sNt}, 8
    s_cselect_b32 s75, 1, 0
    s_or_b32 s75, s75, 2
    s_cmp_lt_u32 s{L.sNt}, 14
    s_cselect_b32 s76, 4, 0
    s_or_b32 s75, s75, s76
    s_mov_b32 exec_lo, s75
    s_mov_b32 exec_hi, 0
    buffer_atomic_add v{vt-2}, v{vt-1}, s[{sWS}:{sWS+3}], 0 offen sc1
    s_mov_b64 exec, -1
    """)

def w2p_prefetch(a, j):
    a(f"""
    s_mul_i32 s75, s{sRk}, {SZ_W2P // 32}
    s_add_u32 s75, s75, {WS_W2P + j * 8192}
    v_lshlrev_b32 v61, 7, v1
    buffer_load_dword v60, v61, s[{sWS}:{sWS+3}], s75 offen sc1
    """)

def w2_first_prefetch(a, c):
    NST = 14
    a(f"""
    s_and_b32 s75, s{sRk}, 3
    s_mul_i32 s75, s75, 3
    s_lshr_b32 s76, s{sRk}, 2
    s_lshl_b32 s77, s76, 1
    s_add_u32 s75, s75, s77
    s_cmp_ge_u32 s75, {NST}
    s_cselect_b32 s77, {NST}, 0
    s_sub_u32 s75, s75, s77
    s_cmp_ge_u32 s75, {NST}
    s_cselect_b32 s77, {NST}, 0
    s_sub_u32 s75, s75, s77
    s_mul_i32 s76, s76, {NST * 20480}
    s_add_u32 s76, s76, {WS_W2P}
    s_mul_i32 s77, s{c.sLw}, 5120
    s_add_u32 s76, s76, s77
    s_mul_i32 s77, s75, 20480
    s_add_u32 s77, s77, s76
    v_lshlrev_b32 v61, 7, v1
    s_mov_b32 exec_lo, -1
    s_mov_b32 exec_hi, 0xff
    buffer_load_dword v60, v61, s[{sWS}:{sWS+3}], s77 offen sc1
    s_add_u32 s75, s75, 1
    s_cmp_eq_u32 s75, {NST}
    s_cselect_b32 s75, 0, s75
    s_mul_i32 s77, s75, 20480
    s_add_u32 s77, s77, s76
    buffer_load_dword v60, v61, s[{sWS}:{sWS+3}], s77 offen sc1
    s_mov_b64 exec, -1
    """)

class Repack:
    aB, vD, vT = 28, 28, 88
    sWo, sW2, sW1 = 12, 16, 40
    def __init__(self, a): self.a = a
    def issue(self, defer=False):
        a = self.a
        aB, vD, T = self.aB, self.vD, self.vT
        a(f"""
        s_mul_i32 s75, s2, 768
        s_lshl_b32 s76, s{sWV}, 6
        s_add_u32 s75, s75, s76
        v_add_u32 v{T}, s75, v1
        """)
        for r in range(3):
            g, it, sg, rho, c, row, nt, st_, x = T+1, T+2, T+3, T+4, T+5, T+6, T+7, T+8, T+9
            a(f"""
            v_add_u32 v{g}, {256*r}, v{T}
            s_mov_b32 s75, {(1 << 32) // 1280 + 1:#x}
            v_mul_hi_u32 v{it}, v{g}, s75
            v_mul_u32_u24 v{sg}, 1280, v{it}
            v_sub_u32 v{sg}, v{g}, v{sg}
            v_mul_u32_u24 v{rho}, 0xcccd, v{sg}
            v_lshrrev_b32 v{rho}, 19, v{rho}
            v_mul_u32_u24 v{c}, 10, v{rho}
            v_sub_u32 v{c}, v{sg}, v{c}
            v_and_b32 v{row}, 0x73, v{rho}
            v_and_b32 v{x}, 4, v{rho}
            v_lshlrev_b32 v{x}, 1, v{x}
            v_or_b32 v{row}, v{row}, v{x}
            v_and_b32 v{x}, 8, v{rho}
            v_lshrrev_b32 v{x}, 1, v{x}
            v_or_b32 v{row}, v{row}, v{x}
            v_lshlrev_b32 v{vD+r}, 4, v{g}
            v_cmp_gt_u32 vcc, 40, v{it}
            v_subrev_u32 v{x}, 40, v{it}
            s_nop 0
            v_cndmask_b32 v{x}, v{x}, v{it}, vcc
            v_mul_u32_u24 v{nt}, 0x4925, v{x}
            v_mul_u32_u24 v{st_}, 0xcccd, v{x}
            v_cndmask_b32 v{nt}, v{nt}, v{st_}, vcc
            v_lshrrev_b32 v{nt}, 18, v{nt}
            v_mov_b32 v{st_}, 14
            v_cndmask_b32 v{st_}, v{st_}, 5, vcc
            v_mul_u32_u24 v{st_}, v{st_}, v{nt}
            v_sub_u32 v{st_}, v{x}, v{st_}
            v_lshlrev_b32 v{st_}, 7, v{st_}
            v_add_u32 v{row}, v{row}, v{st_}
            v_mul_u32_u24 v{row}, 1280, v{row}
            v_mul_u32_u24 v{nt}, 160, v{nt}
            v_lshlrev_b32 v{c}, 4, v{c}
            v_add3_u32 v{row}, v{row}, v{nt}, v{c}
            v_mov_b32 v{x}, 0x7fffff00
            v_cndmask_b32 v{nt}, v{x}, v{row}, vcc
            v_cndmask_b32 v{row}, v{row}, v{x}, vcc
            v_cmp_gt_u32 vcc, 152, v{it}
            s_nop 1
            v_cndmask_b32 v{vD+r}, v{x}, v{vD+r}, vcc
            """)
            a(f"v_mov_b32 v{100+2*r}, v{nt}")
            a(f"v_mov_b32 v{101+2*r}, v{row}")
            a(f"v_mov_b32 v{106+r}, v{it}")
        if defer:
            for k in range(9): a(f"v_accvgpr_write_b32 a{40+k}, v{100+k}")
            return
        self.loads()
    def loads(self, base=100, tmp=None):
        a = self.a
        aB, T = self.aB, (self.vT if tmp is None else tmp)
        if base != 100:
            for k in range(9): a(f"v_accvgpr_read_b32 v{base+k}, a{40+k}")
        self.sWo, self.sW2, self.sW1 = 8, 12, 8
        make_srd(a, self.sWo, pWO, pWO+1, 0, 640*1280)
        make_srd(a, self.sW2, pW2, pW2+1, 0, 1728*1280)
        for r in range(3):
            la, lb = a.newlabel("rpa"), a.newlabel("rpb")
            a(f"""
            v_cmp_gt_u32 vcc, 40, v{base+6+r}
            s_nop 4
            s_mov_b64 s[76:77], vcc
            s_mov_b64 exec, vcc
            s_cbranch_execz {la}
            buffer_load_dwordx4 {ar(aB+4*r,4)}, v{base+2*r}, s[{self.sWo}:{self.sWo+3}], 0 offen
            {la}:
            s_not_b64 exec, s[76:77]
            s_cbranch_execz {lb}
            buffer_load_dwordx4 {ar(aB+4*r,4)}, v{base+1+2*r}, s[{self.sW2}:{self.sW2+3}], 0 offen
            {lb}:
            s_mov_b64 exec, -1
            """)
        make_srd(a, self.sW1, pW1, pW1+1, 0, 640*3456)
        a(f"""
        s_mul_i32 s75, s2, 8640
        s_mul_i32 s76, s{sWV}, 2176
        s_add_u32 s75, s75, s76
        v_lshlrev_b32 v{T}, 7, v1
        s_mov_b64 exec, 0x1ffff
        buffer_load_dword v31, v{T}, s[{self.sW1}:{self.sW1+3}], s75 offen sc1
        s_mov_b64 exec, -1
        """)
    def store(self, wait_after=True, pre="s_waitcnt vmcnt(0)"):
        a = self.a
        a(pre)
        a(f"s_mov_b32 s75, {WS_WOP}")
        for r in range(3):
            a(f"buffer_store_dwordx4 {ar(self.aB+4*r,4)}, v{self.vD+r}, s[{sWS}:{sWS+3}], s75 offen {SC}")
        if wait_after: a("s_waitcnt vmcnt(0)")
        else: a("s_nop 1")

class CoreL:
    sA, sW, sO = 8, 12, 16
    sM0, sN0, sT0, sT1, sT2, sT3 = 21, 22, 23, 24, 25, 26
    sLw, sSlot, sAoff, sWoff, sLds = 20, 28, 29, 30, 31
    sWm, sWn, sNt, sSeq, sSeqW = 32, 33, 34, 35, 36
    vAe, vAo, vWo = 4, 5, 6
    NST = 10
    def __init__(self, a, mode, tag):
        self.a, self.mode, self.tag = a, mode, tag
        self.qkv = mode == 'qkv'
        self.LDW = 3840 if self.qkv else 3456
    def map_tiles(self, idle_label):
        a, c = self.a, self
        if not c.qkv:
            a(f"""
            s_and_b32 s{c.sT3}, s{sRk}, 1
            s_lshl_b32 s{c.sM0}, s{sX}, 1
            s_add_u32 s{c.sM0}, s{c.sM0}, s{c.sT3}
            s_lshl_b32 s{c.sM0}, s{c.sM0}, 7
            s_lshr_b32 s{c.sNt}, s{sRk}, 1
            s_cmp_ge_u32 s{c.sNt}, 14
            s_cbranch_scc1 {idle_label}
            s_lshl_b32 s{c.sN0}, s{c.sNt}, 7
            s_mul_i32 s{c.sSeq}, s{c.sNt}, 3
            s_mul_i32 s{c.sT0}, s{c.sT3}, 5
            s_add_u32 s{c.sSeq}, s{c.sSeq}, s{c.sT0}
            s_mul_i32 s{c.sT0}, s{c.sSeq}, 0xcccd
            s_lshr_b32 s{c.sT0}, s{c.sT0}, 19
            s_mul_i32 s{c.sT0}, s{c.sT0}, 10
            s_sub_u32 s{c.sSeq}, s{c.sSeq}, s{c.sT0}
            """)
            if E('NOROTL'): a(f"s_mov_b32 s{c.sSeq}, 0")
            return
        NT_PER = 8 if c.qkv else 7
        NT_TOT = 15 if c.qkv else 14
        a(f"""
        s_and_b32 s{c.sT0}, s2, 7
        s_lshr_b32 s{c.sT1}, s2, 3
        s_lshr_b32 s{c.sT2}, s{c.sT0}, 1
        s_lshl_b32 s{c.sT2}, s{c.sT2}, 2
        s_and_b32 s{c.sT3}, s{c.sT1}, 3
        s_add_u32 s{c.sM0}, s{c.sT2}, s{c.sT3}
        s_lshl_b32 s{c.sM0}, s{c.sM0}, 7
        s_and_b32 s{c.sT0}, s{c.sT0}, 1
        s_mul_i32 s{c.sT0}, s{c.sT0}, {NT_PER}
        s_lshr_b32 s{c.sT1}, s{c.sT1}, 2
        s_add_u32 s{c.sNt}, s{c.sT0}, s{c.sT1}
        s_cmp_ge_u32 s{c.sT1}, {NT_PER}
        s_cbranch_scc1 {idle_label}
        s_cmp_ge_u32 s{c.sNt}, {NT_TOT}
        s_cbranch_scc1 {idle_label}
        s_lshl_b32 s{c.sN0}, s{c.sNt}, 7
        s_mul_i32 s{c.sSeq}, s{c.sT3}, 3
        s_add_u32 s{c.sSeq}, s{c.sSeq}, s{c.sT1}
        s_cmp_ge_u32 s{c.sSeq}, 10
        s_cselect_b32 s{c.sT0}, 10, 0
        s_sub_u32 s{c.sSeq}, s{c.sSeq}, s{c.sT0}
        """)
        if E('NOROTL'): a(f"s_mov_b32 s{c.sSeq}, 0")
    def loader_setup(self):
        a, c = self.a, self
        a(f"s_sub_u32 s{c.sLw}, s{sWV}, 4")
        if c.qkv:
            make_srd(a, c.sA, pX, pX+1, 0, 2048*1280)
            a(f"""
            v_lshrrev_b32 v2, 3, v1
            v_mul_u32_u24 v2, 1280, v2
            v_lshrrev_b32 v3, 4, v1
            v_and_b32 v7, 7, v1
            v_xor_b32 v3, v3, v7
            v_lshlrev_b32 v3, 4, v3
            v_add_u32 v{c.vAe}, v2, v3
            v_xor_b32 v{c.vAo}, 64, v{c.vAe}
            s_lshl_b32 s{c.sT0}, s{c.sLw}, 5
            s_add_u32 s{c.sT0}, s{c.sT0}, s{c.sM0}
            s_mul_i32 s{c.sAoff}, s{c.sT0}, 1280
            """)
            c.A_SSTEP = 128
        else:
            make_srd(a, c.sA, pWS, pWS+1, WS_H, SZ_ACT)
            a(f"""
            v_lshlrev_b32 v{c.vAe}, 4, v1
            v_add_u32 v{c.vAo}, 1024, v{c.vAe}
            s_lshl_b32 s{c.sT0}, s{c.sLw}, 16
            s_lshl_b32 s{c.sT1}, s{c.sM0}, 4
            s_add_u32 s{c.sAoff}, s{c.sT0}, s{c.sT1}
            """)
            c.A_SSTEP = 8 * 32768
        pw = pWQ if c.qkv else pW1
        make_srd(a, c.sW, pw, pw+1, 0, 640 * c.LDW)
        a(f"""
        v_lshrrev_b32 v2, 4, v1
        v_mul_u32_u24 v3, {c.LDW}, v2
        v_lshlrev_b32 v2, 2, v2
        v_and_b32 v7, 15, v1
        v_xor_b32 v2, v2, v7
        v_lshlrev_b32 v2, 4, v2
        v_add_u32 v{c.vWo}, v2, v3
        s_lshl_b32 s{c.sT0}, s{c.sLw}, 4
        s_mul_i32 s{c.sT0}, s{c.sT0}, {c.LDW}
        s_lshl_b32 s{c.sT1}, s{c.sN0}, 1
        s_add_u32 s{c.sWoff}, s{c.sT0}, s{c.sT1}
        s_lshl_b32 s{c.sLds}, s{c.sLw}, 12
        s_mul_i32 s{c.sT0}, s{c.sSeq}, {c.A_SSTEP}
        s_add_u32 s{c.sAoff}, s{c.sAoff}, s{c.sT0}
        s_mul_i32 s{c.sT0}, s{c.sSeq}, {64 * c.LDW}
        s_add_u32 s{c.sWoff}, s{c.sWoff}, s{c.sT0}
        s_mov_b32 s{c.sSeqW}, s{c.sSeq}
        """)
    def issue_A(self, seq):
        a, c = self.a, self
        slot = (seq % 4) * 32768
        for j in range(4):
            a(f"s_add_u32 m0, s{c.sLds}, {slot}" if j == 0 else "s_add_u32 m0, m0, 1024")
            if c.qkv:
                a(f"s_mov_b32 s{c.sT0}, s{c.sAoff}" if j == 0 else f"s_add_u32 s{c.sT0}, s{c.sT0}, {8*1280}")
            else:
                if j == 0: a(f"s_mov_b32 s{c.sT0}, s{c.sAoff}")
                elif j == 2: a(f"s_add_u32 s{c.sT0}, s{c.sT0}, 32768")
                else: a("s_nop 0")
            a(f"buffer_load_dwordx4 v{c.vAe if j % 2 == 0 else c.vAo}, s[{c.sA}:{c.sA+3}], s{c.sT0} offen {E('QNT_A','') if c.qkv else ''} lds")
        a(f"""
        s_add_u32 s{c.sSeq}, s{c.sSeq}, 1
        s_cmp_eq_u32 s{c.sSeq}, {c.NST}
        s_cselect_b32 s{c.sT0}, {c.NST * c.A_SSTEP}, 0
        s_cselect_b32 s{c.sSeq}, 0, s{c.sSeq}
        s_add_u32 s{c.sAoff}, s{c.sAoff}, {c.A_SSTEP}
        s_sub_u32 s{c.sAoff}, s{c.sAoff}, s{c.sT0}
        """)
    def issue_W(self, seq):
        a, c = self.a, self
        slot = (seq % 4) * 32768 + 16384
        for j in range(4):
            a(f"s_add_u32 m0, s{c.sLds}, {slot}" if j == 0 else "s_add_u32 m0, m0, 1024")
            a(f"s_mov_b32 s{c.sT0}, s{c.sWoff}" if j == 0 else f"s_add_u32 s{c.sT0}, s{c.sT0}, {4 * c.LDW}")
            a(f"buffer_load_dwordx4 v{c.vWo}, s[{c.sW}:{c.sW+3}], s{c.sT0} offen {E('QNT_W','') if c.qkv else ''} lds")
        a(f"""
        s_add_u32 s{c.sSeqW}, s{c.sSeqW}, 1
        s_cmp_eq_u32 s{c.sSeqW}, {c.NST}
        s_cselect_b32 s{c.sT0}, {c.NST * 64 * c.LDW}, 0
        s_cselect_b32 s{c.sSeqW}, 0, s{c.sSeqW}
        s_add_u32 s{c.sWoff}, s{c.sWoff}, {64 * c.LDW}
        s_sub_u32 s{c.sWoff}, s{c.sWoff}, s{c.sT0}
        """)
    vLs = 16
    vSx, vSq, vCs, vU = 48, 56, 64, 72
    vLs = 16
    def lstats_init(self): pass
    def lst_poll_issue(self):
        a, c = self.a, self
        v = c.vLs
        a(f"""
        s_add_u32 s{c.sT0}, s{c.sNt}, {C_CS1 if c.qkv else C_CS2}
        s_lshr_b32 s{c.sT1}, s{c.sM0}, 7
        s_add_u32 s{c.sT1}, s{c.sT1}, {C_ST}
        v_mov_b32 v{v}, s{c.sT0}
        v_writelane_b32 v{v}, s{c.sT1}, 1
        v_mov_b32 v{v+1}, 16
        v_writelane_b32 v{v+1}, {8 if c.qkv else 0}, 1
        v_lshlrev_b32 v{v}, 7, v{v}
        v_add_u32 v{v}, {WS_CNT}, v{v}
        s_mov_b64 exec, 3
        buffer_load_dword v{v+2}, v{v}, s[{sWS}:{sWS+3}], 0 offen sc1
        s_mov_b64 exec, -1
        """)
    def lst_check_issue(self, q):
        a, c = self.a, self
        v = c.vLs
        ok = a.newlabel("lok")
        a(f"""
        s_waitcnt vmcnt({q.need('poll')})
        s_mov_b64 exec, 3
        v_cmp_gt_u32 vcc, v{v+1}, v{v+2}
        s_nop 4
        s_cmp_eq_u64 vcc, 0
        s_cbranch_scc1 {ok}
        """)
        poll(a, v, v + 1, 2, v + 2)
        a.label(ok)
        a("s_mov_b64 exec, -1")
        ncol = 1920 if c.qkv else 1792
        d = v + 8
        a(f"""
        v_and_b32 v{v+4}, 31, v1
        v_lshlrev_b32 v{v+5}, 2, v{v+4}
        v_lshlrev_b32 v{v+4}, 3, v{v+4}
        s_lshl_b32 s{c.sT0}, s{c.sLw}, 5
        s_add_u32 s{c.sT1}, s{c.sT0}, s{c.sN0}
        s_lshl_b32 s{c.sT1}, s{c.sT1}, 2
        s_add_u32 s{c.sT1}, s{c.sT1}, {WS_CS1 if c.qkv else WS_CS2}
        s_mov_b32 exec_hi, 0
        """)
        for j in range(16):
            a(f"buffer_load_dword v{d+j}, v{v+5}, s[{sWS}:{sWS+3}], s{c.sT1} offen")
            if j < 15: a(f"s_add_u32 s{c.sT1}, s{c.sT1}, {ncol*4}")
        a(f"""
        s_mov_b32 exec_lo, 0
        s_mov_b32 exec_hi, -1
        s_add_u32 s{c.sT1}, s{c.sT0}, s{c.sM0}
        s_lshl_b32 s{c.sT1}, s{c.sT1}, 3
        s_add_u32 s{c.sT1}, s{c.sT1}, {WS_ST1 if c.qkv else WS_ST2}
        """)
        npart = 1 if c.qkv else 8
        for j in range(npart):
            a(f"buffer_load_dwordx2 {vr(d+16+2*j,2)}, v{v+4}, s[{sWS}:{sWS+3}], s{c.sT1} offen")
            if j < npart - 1: a(f"s_add_u32 s{c.sT1}, s{c.sT1}, {2048*8}")
        a("s_mov_b64 exec, -1")
        q.push("stats", 16 + npart)
    def lst_finish(self, q):
        a, c = self.a, self
        v = c.vLs
        d = v + 8
        a(f"s_waitcnt vmcnt({q.need('stats')})")
        for j in range(1, 16):
            a(f"v_add_f32 v{d}, v{d}, v{d+j}")
        S, Q = d + 16, d + 17
        if not c.qkv:
            for j in range(1, 8):
                a(f"v_add_f32 v{S}, v{S}, v{S+2*j}")
                a(f"v_add_f32 v{Q}, v{Q}, v{Q+2*j}")
            a(f"""
            v_mul_f32 v{S}, {f32bits(1.0/640):#x}, v{S}
            v_mul_f32 v{Q}, {f32bits(1.0/640):#x}, v{Q}
            v_fma_f32 v{Q}, -v{S}, v{S}, v{Q}
            v_max_f32 v{Q}, 0, v{Q}
            v_add_f32 v{Q}, {f32bits(1e-5):#x}, v{Q}
            v_rsq_f32 v{Q}, v{Q}
            """)
        a(f"""
        s_lshl_b32 s{c.sT0}, s{c.sLw}, 7
        s_add_u32 s{c.sT0}, s{c.sT0}, {STAT}
        v_add_u32 v{v+5}, s{c.sT0}, v{v+5}
        s_mov_b32 exec_hi, 0
        ds_write_b32 v{v+5}, v{d} offset:1024
        s_mov_b32 exec_lo, 0
        s_mov_b32 exec_hi, -1
        ds_write_b32 v{v+5}, v{S}
        ds_write_b32 v{v+5}, v{Q} offset:512
        s_mov_b64 exec, -1
        s_waitcnt lgkmcnt(0)
        """)
    def tq_poll_issue(self):
        a, c = self.a, self
        v = c.vLs
        a(f"""
        s_lshr_b32 s{c.sT1}, s{c.sM0}, 7
        s_add_u32 s{c.sT1}, s{c.sT1}, {C_ST}
        s_lshl_b32 s{c.sT1}, s{c.sT1}, 7
        s_add_u32 s{c.sT1}, s{c.sT1}, {WS_CNT}
        v_mov_b32 v{v}, s{c.sT1}
        v_mov_b32 v{v+1}, {5 if E('P0L') else 1}
        s_mov_b64 exec, 1
        buffer_load_dword v{v+2}, v{v}, s[{sWS}:{sWS+3}], 0 offen sc1
        s_mov_b64 exec, -1
        """)
    def tq_check_issue(self, q):
        a, c = self.a, self
        v = c.vLs
        ok = a.newlabel("lok")
        a(f"""
        s_waitcnt vmcnt({q.need('poll')})
        v_readfirstlane_b32 s{c.sT0}, v{v+2}
        s_cmp_ge_u32 s{c.sT0}, {5 if E('P0L') else 1}
        s_cbranch_scc1 {ok}
        """)
        poll(a, v, v + 1, 1, v + 2)
        a.label(ok)
        a(f"""
        v_and_b32 v{v+4}, 31, v1
        v_lshlrev_b32 v{v+5}, 2, v{v+4}
        v_lshlrev_b32 v{v+4}, 3, v{v+4}
        s_lshl_b32 s{c.sT0}, s{c.sLw}, 5
        s_add_u32 s{c.sT1}, s{c.sT0}, s{c.sM0}
        s_lshl_b32 s{c.sT1}, s{c.sT1}, 3
        s_add_u32 s{c.sT1}, s{c.sT1}, {WS_ST1}
        buffer_load_dwordx2 {vr(v+8,2)}, v{v+4}, s[{sWS}:{sWS+3}], s{c.sT1} offen
        """)
        q.push("stats", 1)
    def tq_finish(self, q):
        a, c = self.a, self
        v = c.vLs
        a(f"""
        s_waitcnt vmcnt({q.need('stats')})
        s_lshl_b32 s{c.sT0}, s{c.sLw}, 7
        s_add_u32 s{c.sT0}, s{c.sT0}, {STAT}
        v_add_u32 v{v+5}, s{c.sT0}, v{v+5}
        ds_write_b32 v{v+5}, v{v+8}
        ds_write_b32 v{v+5}, v{v+9} offset:512
        """)
    def tok_issue(self, q):
        a, c = self.a, self
        v = c.vLs
        d = v + 8
        a(f"""
        v_and_b32 v{v+4}, 31, v1
        v_lshlrev_b32 v{v+5}, 2, v{v+4}
        v_lshlrev_b32 v{v+4}, 3, v{v+4}
        s_lshl_b32 s{c.sT0}, s{c.sLw}, 5
        s_add_u32 s{c.sT1}, s{c.sT0}, s{c.sM0}
        s_lshl_b32 s{c.sT1}, s{c.sT1}, 3
        s_add_u32 s{c.sT1}, s{c.sT1}, {WS_ST2}
        s_mov_b32 exec_hi, 0
        """)
        for j in range(16):
            a(f"buffer_load_dwordx2 {vr(d+2*j,2)}, v{v+4}, s[{sWS}:{sWS+3}], s{c.sT1} offen")
            if j < 15: a(f"s_add_u32 s{c.sT1}, s{c.sT1}, {2048*8}")
        a("s_mov_b32 exec_hi, -1")
        q.push("stats", 16)
    def tok_finish(self, q):
        a, c = self.a, self
        v = c.vLs
        S, Q = v + 8, v + 9
        a(f"s_waitcnt vmcnt({q.need('stats')})")
        for j in range(1, 16):
            a(f"v_add_f32 v{S}, v{S}, v{S+2*j}")
            a(f"v_add_f32 v{Q}, v{Q}, v{Q+2*j}")
        a(f"""
        v_mul_f32 v{S}, {f32bits(1.0/640):#x}, v{S}
        v_mul_f32 v{Q}, {f32bits(1.0/640):#x}, v{Q}
        v_fma_f32 v{Q}, -v{S}, v{S}, v{Q}
        v_max_f32 v{Q}, 0, v{Q}
        v_add_f32 v{Q}, {f32bits(1e-5):#x}, v{Q}
        v_rsq_f32 v{Q}, v{Q}
        s_lshl_b32 s{c.sT0}, s{c.sLw}, 7
        s_add_u32 s{c.sT0}, s{c.sT0}, {STAT}
        v_add_u32 v{v+5}, s{c.sT0}, v{v+5}
        s_mov_b32 exec_hi, 0
        ds_write_b32 v{v+5}, v{S}
        ds_write_b32 v{v+5}, v{Q} offset:512
        s_mov_b32 exec_hi, -1
        """)
    def loader_main(self, q, p0=None):
        a, c = self.a, self
        for s_ in range(c.NST):
            tags = [f'A{s_}', f'W{s_}']
            if c.qkv and s_ == 4 and E('P0L'): tags.append('p0st')
            a(f"s_waitcnt vmcnt({q.need(*tags)}) lgkmcnt(0)")
            if getattr(c, 'ldstamps', False) and s_ in (0, 1, 2): st(a, 4 + s_)
            a("s_barrier")
            stx(a, f"{c.tag}l{s_}")
            if c.qkv:
                vd = 70
                if s_ == 0: wave_only(a, 4, lambda: a(f"buffer_load_dword v{vd}, v{vd+1}, s[44:47], 0 offen sc1"))
                if s_ == 4 and E('P0L'): wave_only(a, 4, lambda: p0r_arrive(a, c, vd))
                if s_ == 3: wave_only(a, 7, lambda: reg_step1(a, vd))
                if s_ == 5: wave_only(a, 7, lambda: reg_step2(a, vd))
                if s_ == 7: wave_only(a, 7, lambda: reg_step3(a, vd))
            if s_ + PD < c.NST and not (E('X_NODMA') and c.qkv):
                c.issue_A(s_ + PD); q.push(f"A{s_+PD}", 4)
                c.issue_W(s_ + PD); q.push(f"W{s_+PD}", 4)
            if c.qkv and s_ == 1 and E('P0L'):
                a(f"s_waitcnt vmcnt({q.need('p0l')})"); c.p0l.finish(); q.push('p0st', 1)
            if not c.qkv:
                if s_ == 7: c.tok_issue(q)
                if s_ == 8 and not E('NOPFW0'): w2_first_prefetch(a, c)
                if s_ == 9: c.tok_finish(q)
                if E('PFW2') and 0 <= s_ < 9:
                    wave_only(a, 4 + (s_ % 4), lambda: w2p_prefetch(a, s_))
            else:
                if s_ == 8 and getattr(c, 'hook7', None): c.hook7()
                if s_ == 6:
                    c.tq_poll_issue(); q.push("poll", 1)
                if s_ == 7: c.tq_check_issue(q)
                if s_ == 9: c.tq_finish(q)

    vAd, vX, vW, vAcc, vT, vSt = 24, 32, 32, 64, 128, 144
    def compute_setup(self):
        a, c = self.a, self
        NXA = 8 if c.qkv else 2
        c.NXA = NXA
        c.vXa = 4
        c.vWa = c.vXa + 2 * NXA
        vXa, vWa, vT = c.vXa, c.vWa, c.vT
        t0, t1 = vT, vT + 1
        a(f"""
        s_lshr_b32 s{c.sWm}, s{sWV}, 1
        s_and_b32 s{c.sWn}, s{sWV}, 1
        v_and_b32 v2, 31, v1
        v_lshrrev_b32 v3, 5, v1
        """)
        if c.qkv:
            a(f"""
            v_lshrrev_b32 v{t0}, 1, v1
            v_and_b32 v{t0}, 7, v{t0}
            v_xor_b32 v{t0}, v{t0}, v3
            v_lshlrev_b32 v{t0}, 4, v{t0}
            v_lshlrev_b32 v{t1}, 7, v2
            v_add_u32 v{t0}, v{t0}, v{t1}
            s_lshl_b32 s{c.sT0}, s{c.sWm}, 13
            s_lshl_b32 s{c.sT1}, s{c.sWn}, 12
            s_add_u32 s{c.sT0}, s{c.sT0}, s{c.sT1}
            v_add_u32 v{t0}, s{c.sT0}, v{t0}
            """)
            for s in range(4):
                a(f"v_xor_b32 v{vXa + s}, {32 * s}, v{t0}")
                a(f"v_xor_b32 v{vXa + 4 + s}, 4096, v{vXa + s}")
        else:
            a(f"""
            v_lshlrev_b32 v{t0}, 11, v3
            v_lshlrev_b32 v{t1}, 4, v2
            v_add_u32 v{t0}, v{t0}, v{t1}
            s_lshl_b32 s{c.sT0}, s{c.sWm}, 10
            v_add_u32 v{vXa}, s{c.sT0}, v{t0}
            v_add_u32 v{vXa + 1}, 512, v{vXa}
            """)
        for i in range(NXA):
            a(f"v_add_u32 v{vXa + NXA + i}, 65536, v{vXa + i}")
        a(f"""
        v_lshrrev_b32 v{t0}, 2, v1
        v_and_b32 v{t0}, 3, v{t0}
        v_lshlrev_b32 v{t1}, 3, v3
        v_add_u32 v{t1}, v{t1}, v{t0}
        v_lshlrev_b32 v{t1}, 8, v{t1}
        v_lshlrev_b32 v{t0}, 6, v{t0}
        v_add_u32 v{t1}, v{t1}, v{t0}
        v_lshrrev_b32 v{t0}, 4, v1
        v_and_b32 v{t0}, 1, v{t0}
        v_lshlrev_b32 v{t0}, 5, v{t0}
        v_add_u32 v{t1}, v{t1}, v{t0}
        v_lshrrev_b32 v{t0}, 1, v1
        v_and_b32 v{t0}, 1, v{t0}
        v_lshlrev_b32 v{t0}, 4, v{t0}
        v_add_u32 v{t1}, v{t1}, v{t0}
        v_and_b32 v{t0}, 1, v1
        v_lshlrev_b32 v{t0}, 3, v{t0}
        v_add_u32 v{t1}, v{t1}, v{t0}
        v_add_u32 v{t1}, 16384, v{t1}
        s_lshl_b32 s{c.sT0}, s{c.sWn}, 7
        s_lshl_b32 s{c.sT1}, s{c.sWm}, 6
        s_add_u32 s{c.sT0}, s{c.sT0}, s{c.sT1}
        v_xor_b32 v{vWa}, s{c.sT0}, v{t1}
        v_xor_b32 v{vWa + 1}, 64, v{vWa}
        v_add_u32 v{vWa + 2}, 65536, v{vWa}
        v_add_u32 v{vWa + 3}, 65536, v{vWa + 1}
        """)
    def addr_qk(self):
        a, c = self.a, self
        vT, vAd = c.vT, c.vAd
        t0, t1 = vT, vT + 1
        a(f"""
        s_cmp_lt_u32 s{c.sNt}, 5
        s_cselect_b32 s{c.sT0}, 0, 640
        s_sub_u32 s{c.sT2}, s{c.sN0}, s{c.sT0}
        s_lshl_b32 s{c.sT1}, s{c.sWn}, 6
        s_add_u32 s{c.sT2}, s{c.sT2}, s{c.sT1}
        s_lshr_b32 s{c.sT2}, s{c.sT2}, 3
        v_add_u32 v{t0}, s{c.sT2}, v3
        v_lshlrev_b32 v{vT+4}, 4, v2
        """)
        for ft in range(2):
            for j in range(2):
                d = vAd + ft*2 + j
                a(f"""
                s_xor_b32 s{c.sT3}, s{c.sWm}, {ft}
                s_lshl_b32 s{c.sT3}, s{c.sT3}, 2
                s_add_u32 s{c.sT3}, s{c.sT3}, {2*j}
                v_add_u32 v{t1}, s{c.sT3}, v{t0}
                v_mul_u32_u24 v{vT+2}, 0xcccd, v{t1}
                v_lshrrev_b32 v{vT+2}, 18, v{vT+2}
                v_mul_u32_u24 v{vT+3}, 5, v{vT+2}
                v_sub_u32 v{vT+3}, v{t1}, v{vT+3}
                v_lshlrev_b32 v{vT+3}, 9, v{vT+3}
                v_mul_u32_u24 v{vT+2}, 0x28000, v{vT+2}
                v_add3_u32 v{d}, v{vT+2}, v{vT+3}, v{vT+4}
                """)
        a(f"""
        s_lshr_b32 s{c.sT0}, s{c.sM0}, 5
        s_lshl_b32 s{c.sT1}, s{c.sWm}, 1
        s_add_u32 s{c.sT0}, s{c.sT0}, s{c.sT1}
        s_add_u32 s{c.sT1}, s{c.sT0}, s{c.sWn}
        s_mul_i32 s40, s{c.sT1}, 2560
        s_xor_b32 s{c.sT1}, s{c.sWn}, 1
        s_add_u32 s{c.sT1}, s{c.sT0}, s{c.sT1}
        s_mul_i32 s41, s{c.sT1}, 2560
        s_cmp_lt_u32 s{c.sNt}, 5
        s_cselect_b32 s{c.sT0}, {WS_Q}, {WS_K}
        s_add_u32 s{c.sO}, s{pWS}, s{c.sT0}
        s_addc_u32 s{c.sO+1}, s{pWS+1}, 0
        s_and_b32 s{c.sO+1}, s{c.sO+1}, 0xffff
        s_mov_b32 s{c.sO+2}, {SZ_QK}
        s_mov_b32 s{c.sO+3}, 0x20000
        """)
    def addr_f(self):
        a, c = self.a, self
        vT, vAd = c.vT, c.vAd
        t0, t1 = vT, vT + 1
        a(f"""
        s_lshl_b32 s{c.sT1}, s{c.sWn}, 6
        s_add_u32 s{c.sT2}, s{c.sN0}, s{c.sT1}
        s_lshr_b32 s{c.sT2}, s{c.sT2}, 3
        v_add_u32 v{t0}, s{c.sT2}, v3
        v_lshlrev_b32 v{t0}, 15, v{t0}
        v_lshlrev_b32 v{t1}, 4, v2
        v_add_u32 v{t0}, v{t0}, v{t1}
        """)
        for ft in range(2):
            for j in range(2):
                a(f"s_xor_b32 s{c.sT3}, s{c.sWm}, {ft}")
                a(f"s_lshl_b32 s{c.sT3}, s{c.sT3}, 2")
                a(f"s_add_u32 s{c.sT3}, s{c.sT3}, {2*j}")
                a(f"s_lshl_b32 s{c.sT3}, s{c.sT3}, 15")
                a(f"v_add_u32 v{vAd + ft*2 + j}, s{c.sT3}, v{t0}")
        a(f"""
        s_lshl_b32 s{c.sT1}, s{c.sWm}, 6
        s_add_u32 s{c.sT0}, s{c.sM0}, s{c.sT1}
        s_lshl_b32 s40, s{c.sT0}, 4
        s_add_u32 s41, s40, 512
        """)
        make_srd(a, c.sO, pWS, pWS+1, WS_F, SZ_F)
    def addr_v(self):
        a, c = self.a, self
        vT, vAd = c.vT, c.vAd
        t0, t1 = vT, vT + 1
        for ft in range(2):
            a(f"""
            s_lshl_b32 s{c.sT1}, s{c.sWn}, 6
            s_add_u32 s{c.sT0}, s{c.sN0}, s{c.sT1}
            s_xor_b32 s{c.sT1}, s{c.sWm}, {ft}
            s_lshl_b32 s{c.sT1}, s{c.sT1}, 5
            s_add_u32 s{c.sT0}, s{c.sT0}, s{c.sT1}
            s_sub_u32 s{c.sT0}, s{c.sT0}, 1280
            v_add_u32 v{t0}, s{c.sT0}, v2
            v_mul_u32_u24 v{t1}, 0xcccd, v{t0}
            v_lshrrev_b32 v{t1}, 20, v{t1}
            v_mul_u32_u24 v{vT+2}, 20, v{t1}
            v_sub_u32 v{t0}, v{t0}, v{vT+2}
            v_lshlrev_b32 v{t0}, 4, v{t0}
            v_mul_u32_u24 v{t1}, 0x14000, v{t1}
            v_add_u32 v{t0}, v{t0}, v{t1}
            v_mul_u32_u24 v{t1}, 320, v3
            v_add_u32 v{vAd+ft}, v{t0}, v{t1}
            """)
        a(f"""
        s_lshl_b32 s{c.sT1}, s{c.sWm}, 6
        s_add_u32 s{c.sT0}, s{c.sM0}, s{c.sT1}
        s_lshr_b32 s{c.sT0}, s{c.sT0}, 4
        s_lshl_b32 s{c.sT1}, s{c.sWn}, 1
        s_add_u32 s{c.sT1}, s{c.sT1}, s{c.sT0}
        s_mul_i32 s40, s{c.sT1}, 640
        s_add_u32 s41, s40, 640
        s_xor_b32 s{c.sT1}, s{c.sWn}, 1
        s_lshl_b32 s{c.sT1}, s{c.sT1}, 1
        s_add_u32 s{c.sT1}, s{c.sT1}, s{c.sT0}
        s_mul_i32 s42, s{c.sT1}, 640
        s_add_u32 s43, s42, 640
        """)
        make_srd(a, c.sO, pWS, pWS+1, WS_V, SZ_QKV)
    def stats_poll_issue(self):
        a, c = self.a, self
        vS = c.vSt
        a(f"""
        v_lshlrev_b32 v{vS+30}, 7, v1
        v_add_u32 v{vS+30}, {WS_CNT + (C_P0 if c.qkv else C_W1)*128}, v{vS+30}
        s_mov_b64 exec, 0xff
        buffer_load_dword v{vS+29}, v{vS+30}, s[{sWS}:{sWS+3}], 0 offen sc1
        s_mov_b64 exec, -1
        """)
    def stats_poll_check(self):
        a, c = self.a, self
        vS = c.vSt
        ok = a.newlabel("stok")
        a(f"""
        s_waitcnt vmcnt(0)
        s_mov_b64 exec, 0xff
        v_cmp_gt_u32 vcc, 128, v{vS+29}
        s_nop 4
        s_cmp_eq_u64 vcc, 0
        s_cbranch_scc1 {ok}
        v_mov_b32 v{vS+28}, 128
        """)
        poll(a, vS + 30, vS + 28, 8, vS + 29)
        a.label(ok)
        a("s_mov_b64 exec, -1")
        a("s_nop 3")
    def stats_issue(self):
        a, c = self.a, self
        vS = c.vSt
        a(f"""
        v_lshlrev_b32 v{vS+31}, 2, v2
        v_lshlrev_b32 v{vS+30}, 3, v2
        s_lshl_b32 s{c.sT0}, s{sWV}, 5
        s_add_u32 s{c.sT1}, s{c.sT0}, s{c.sM0}
        s_lshl_b32 s{c.sT1}, s{c.sT1}, 3
        s_add_u32 s{c.sT1}, s{c.sT1}, {WS_ST2}
        """)
        for j in range(8):
            a(f"buffer_load_dwordx2 {vr(vS+8+2*j,2)}, v{vS+30}, s[{sWS}:{sWS+3}], s{c.sT1} offen")
            if j < 7: a(f"s_add_u32 s{c.sT1}, s{c.sT1}, {2048*8}")
    def stats_finish(self):
        a, c = self.a, self
        vS = c.vSt
        a("s_waitcnt vmcnt(0)")
        S, Q = vS + 8, vS + 9
        for j in range(1, 8):
            a(f"v_add_f32 v{S}, v{S}, v{S+2*j}")
            a(f"v_add_f32 v{Q}, v{Q}, v{Q+2*j}")
        a(f"""
        v_mul_f32 v{S}, {f32bits(1.0/640):#x}, v{S}
        v_mul_f32 v{Q}, {f32bits(1.0/640):#x}, v{Q}
        v_fma_f32 v{Q}, -v{S}, v{S}, v{Q}
        v_max_f32 v{Q}, 0, v{Q}
        v_add_f32 v{Q}, {f32bits(1e-5):#x}, v{Q}
        v_rsq_f32 v{Q}, v{Q}
        s_lshl_b32 s{c.sT0}, s{sWV}, 7
        s_add_u32 s{c.sT0}, s{c.sT0}, {STAT}
        v_add_u32 v{vS+31}, s{c.sT0}, v{vS+31}
        ds_write_b32 v{vS+31}, v{S}
        ds_write_b32 v{vS+31}, v{Q} offset:512
        """)
    aX = 4
    def read_list(self, i):
        c = self
        st_, step, buf = i // 4, i % 4, i % 3
        slot = st_ % 4
        win, base = slot >> 1, (slot & 1) * 32768
        L = []
        for lt in range(2):
            if c.qkv:
                L.append(f"ds_read_b128 {ar(c.aX + buf*8 + lt*4, 4)}, v{c.vXa + win*8 + lt*4 + step} offset:{base}")
            else:
                L.append(f"ds_read_b128 {ar(c.aX + buf*8 + lt*4, 4)}, v{c.vXa + win*2 + lt} offset:{base + step*4096}")
        for lf in range(2):
            for h2 in range(2):
                L.append(f"ds_read_b64_tr_b16 {vr(c.vW + buf*8 + lf*4 + h2*2, 2)}, v{c.vWa + win*2 + lf} offset:{base + step*4096 + h2*1024}")
        return L
    def reads(self, i):
        for r in self.read_list(i): self.a(r)
    def mfma(self, i, k, orientY):
        a, c = self.a, self
        buf = i % 3
        lf, lt = k >> 1, k & 1
        acc = c.vAcc + (lf*2 + lt) * 16
        xa, wa = ar(c.aX + buf*8 + lt*4, 4), vr(c.vW + buf*8 + lf*4, 4)
        cc = "0" if i == 0 else vr(acc, 16)
        if orientY: a(f"v_mfma_f32_32x32x16_bf16 {vr(acc,16)}, {wa}, {xa}, {cc}")
        else: a(f"v_mfma_f32_32x32x16_bf16 {vr(acc,16)}, {xa}, {wa}, {cc}")
    def mainloop(self, orientY, stamp0=None, tag='q'):
        a, c = self.a, self
        vS = c.vSt
        CS = vS
        UU = c.vT
        a(f"v_mov_b32 v{CS}, 0")
        a(f"v_mov_b32 v{CS+1}, 0")
        a("s_barrier")
        if stamp0 is not None: st(a, stamp0)
        stx(a, tag + '_s0')
        c.reads(0)
        c.reads(1)
        for i in range(40):
            buf = i % 3
            Wl = c.vW + buf*8
            ops = []
            for r in range(4):
                u = UU + 2*(r & 1)
                ops += [f"v_lshlrev_b32 v{u}, 16, v{Wl+r}", f"v_and_b32 v{u+1}, 0xffff0000, v{Wl+r}",
                        f"v_add_f32 v{CS}, v{CS}, v{u}", f"v_add_f32 v{CS+1}, v{CS+1}, v{u+1}"]
            if E('X_NOVALU'): ops = []
            rl = c.read_list(i + 2) if i + 2 < 40 else []
            if i == 4: stx(a, tag + '_s1')
            if i == 20: stx(a, tag + '_s5')
            a(f"s_waitcnt lgkmcnt({6 if i + 1 < 40 else 0})")
            c.mfma(i, 0, orientY)
            if i + 2 < 40 and (i + 2) % 4 == 0:
                a("s_barrier")
            for o in rl[0:2] + ops[0:3]: a(o)
            c.mfma(i, 1, orientY)
            for o in rl[2:4] + ops[3:6]: a(o)
            if c.qkv and i == int(E('RPL', '14')): c.rp.loads(base=146, tmp=156)
            c.mfma(i, 2, orientY)
            for o in rl[4:6] + ops[6:10]: a(o)
            c.mfma(i, 3, orientY)
            for o in ops[10:16]: a(o)
        U = vS + 14
        a(f"""
        v_add_f32 v{CS}, v{CS}, v{CS+1}
        s_nop 0
        v_mov_b32 v{CS+1}, v{CS}
        s_nop 1
        v_permlane32_swap_b32 v{CS}, v{CS+1}
        s_nop 1
        v_add_f32 v{CS}, v{CS}, v{CS+1}
        """)
        a(f"""
        s_lshl_b32 s{c.sT0}, s{c.sWn}, 8
        s_lshl_b32 s{c.sT1}, s{c.sWm}, 7
        s_add_u32 s{c.sT0}, s{c.sT0}, s{c.sT1}
        s_add_u32 s{c.sT0}, s{c.sT0}, {STAT + 1024}
        v_lshlrev_b32 v{U}, 2, v2
        v_add_u32 v{U+1}, s{c.sT0}, v{U}
        ds_write_b32 v{U+1}, v{CS}
        """)
        a("s_waitcnt lgkmcnt(0)")
    def dbg_issue(self):
        a, c = self.a, self
        make_srd(a, 44, pDBG, pDBG+1, 0, 256)
        a(f"v_lshlrev_b32 v{c.vSt+27}, 2, v1")
        a("s_mov_b64 exec, 0x1ff")
        a(f"buffer_load_dword v{c.vSt+26}, v{c.vSt+27}, s[44:47], 0 offen sc1")
        a("s_mov_b64 exec, -1")
        a("s_nop 1")
    def epilogue_Y(self, kind):
        a, c = self.a, self
        vT, vAcc, vAd = c.vT, c.vAcc, c.vAd
        vM, vR, vC = vT, vT + 2, 32
        for lt in range(2):
            a(f"""
            s_lshl_b32 s{c.sT1}, s{c.sWm}, 8
            s_add_u32 s{c.sT0}, s{c.sT1}, {STAT + (0 if c.qkv else lt*128)}
            s_xor_b32 s{c.sT1}, s{c.sWn}, {lt}
            s_lshl_b32 s{c.sT1}, s{c.sT1}, {7 if c.qkv else 31}
            s_add_u32 s{c.sT0}, s{c.sT0}, {'s%d' % c.sT1 if c.qkv else 0}
            v_lshlrev_b32 v{vT+4}, 2, v2
            v_add_u32 v{vT+4}, s{c.sT0}, v{vT+4}
            ds_read_b32 v{vM + lt}, v{vT+4}
            ds_read_b32 v{vR + lt}, v{vT+4} offset:512
            """)
        for lf in range(2):
            a(f"""
            s_lshl_b32 s{c.sT1}, s{c.sWn}, 8
            s_add_u32 s{c.sT0}, s{c.sT1}, {STAT + 1024}
            s_xor_b32 s{c.sT1}, s{c.sWm}, {lf}
            s_lshl_b32 s{c.sT1}, s{c.sT1}, 7
            s_add_u32 s{c.sT0}, s{c.sT0}, s{c.sT1}
            v_lshlrev_b32 v{vT+4}, 4, v3
            v_add_u32 v{vT+4}, s{c.sT0}, v{vT+4}
            """)
            for q in range(4):
                a(f"ds_read_b128 {vr(vC + lf*16 + q*4, 4)}, v{vT+4} offset:{q*32}")
        a("s_waitcnt lgkmcnt(0)")
        if kind == 'qk':
            a(f"""
            s_cmp_lt_u32 s{c.sNt}, 5
            s_cselect_b32 s{c.sT0}, {f32bits(QSCALE):#x}, 1.0
            v_mul_f32 v{vR}, s{c.sT0}, v{vR}
            v_mul_f32 v{vR+1}, s{c.sT0}, v{vR+1}
            """)
        B = c.vSt + 2
        for lt in range(2):
            a(f"v_mov_b32 v{B + 2*lt}, v{vM + lt}")
            a(f"v_mov_b32 v{B + 2*lt + 1}, v{vM + lt}")
            a(f"v_mov_b32 v{B + 4 + 2*lt}, v{vR + lt}")
            a(f"v_mov_b32 v{B + 4 + 2*lt + 1}, v{vR + lt}")
        vP = vT + 8
        n = 0
        for lf in range(2):
            for lt in range(2):
                acc = vAcc + (lf*2 + lt) * 16
                for r in range(0, 16, 2):
                    a(f"v_pk_fma_f32 {vr(acc + r, 2)}, {vr(B + 2*lt, 2)}, {vr(vC + lf*16 + r, 2)}, {vr(acc + r, 2)} neg_lo:[1,0,0] neg_hi:[1,0,0]")
                for r in range(0, 16, 2):
                    a(f"v_pk_mul_f32 {vr(acc + r, 2)}, {vr(acc + r, 2)}, {vr(B + 4 + 2*lt, 2)}")
                for j in range(2):
                    p = vP + (n & 1) * 4
                    n += 1
                    q0 = acc + j*8
                    for k in range(4):
                        a(f"v_cvt_pk_bf16_f32 v{p+k}, v{q0+2*k}, v{q0+2*k+1}")
                    if kind == 'ffn1':
                        for k in range(4):
                            a(f"v_pk_max_i16 v{p+k}, v{p+k}, 0")
                    else:
                        a("s_nop 0")
                    a("s_nop 0")
                    if kind == 'ffn1': a("s_nop 0")
                    a(f"v_permlane32_swap_b32 v{p}, v{p+2}")
                    a(f"v_permlane32_swap_b32 v{p+1}, v{p+3}")
                    ins = f"buffer_store_dwordx4 {vr(p,4)}, v{vAd + lf*2 + j}, s[{c.sO}:{c.sO+3}], s{40 + lt} offen @SC"
                    if kind == 'ffn1': dual(a, [ins])
                    else: a(ins.replace("@SC", SC))
    def epilogue_X(self):
        a, c = self.a, self
        vT, vAcc, vAd = c.vT, c.vAcc, c.vAd
        vC, vM, vR = vT, 32, 48
        for lf in range(2):
            a(f"""
            s_lshl_b32 s{c.sT1}, s{c.sWn}, 8
            s_add_u32 s{c.sT0}, s{c.sT1}, {STAT + 1024}
            s_xor_b32 s{c.sT1}, s{c.sWm}, {lf}
            s_lshl_b32 s{c.sT1}, s{c.sT1}, 7
            s_add_u32 s{c.sT0}, s{c.sT0}, s{c.sT1}
            v_lshlrev_b32 v{vT+4}, 2, v2
            v_add_u32 v{vT+4}, s{c.sT0}, v{vT+4}
            ds_read_b32 v{vC + lf}, v{vT+4}
            """)
        vP = vT + 8
        n = 0
        for lt in range(2):
            a(f"""
            s_lshl_b32 s{c.sT1}, s{c.sWm}, 8
            s_add_u32 s{c.sT0}, s{c.sT1}, {STAT}
            s_xor_b32 s{c.sT1}, s{c.sWn}, {lt}
            s_lshl_b32 s{c.sT1}, s{c.sT1}, 7
            s_add_u32 s{c.sT0}, s{c.sT0}, s{c.sT1}
            v_lshlrev_b32 v{vT+4}, 4, v3
            v_add_u32 v{vT+4}, s{c.sT0}, v{vT+4}
            """)
            for q in range(4):
                a(f"ds_read_b128 {vr(vM + q*4, 4)}, v{vT+4} offset:{q*32}")
                a(f"ds_read_b128 {vr(vR + q*4, 4)}, v{vT+4} offset:{512 + q*32}")
            a("s_waitcnt lgkmcnt(0)")
            B = c.vSt + 2
            if lt == 0:
                for lf in range(2):
                    a(f"v_mov_b32 v{B + 2*lf}, v{vC + lf}")
                    a(f"v_mov_b32 v{B + 2*lf + 1}, v{vC + lf}")
            for lf in range(2):
                acc = vAcc + (lf*2 + lt) * 16
                for r in range(0, 16, 2):
                    a(f"v_pk_fma_f32 {vr(acc + r, 2)}, {vr(vM + r, 2)}, {vr(B + 2*lf, 2)}, {vr(acc + r, 2)} neg_lo:[1,0,0] neg_hi:[1,0,0]")
                for r in range(0, 16, 2):
                    a(f"v_pk_mul_f32 {vr(acc + r, 2)}, {vr(acc + r, 2)}, {vr(vR + r, 2)}")
                for g in range(2):
                    p = vP + (n & 1) * 4
                    n += 1
                    for r in range(4):
                        a(f"v_cvt_pk_bf16_f32 v{p + r}, v{acc + g*8 + 2*r}, v{acc + g*8 + 2*r + 1}")
                    a(f"buffer_store_dwordx4 {vr(p,4)}, v{vAd + lf}, s[{c.sO}:{c.sO+3}], s{40 + lt*2 + g} offen {SC}")

STG = 36864
class CoreS:
    sA, sO, sR = 8, 16, 40
    sM0, sN0, sT0, sT1, sT2, sNt = 21, 22, 23, 24, 25, 26
    sLw, sAoff, sWoff, sLdsA, sLdsW, sSeq, sSeqW = 20, 29, 30, 31, 32, 33, 34
    vA = 4
    vXa2, vWa2 = 116, 117
    def __init__(self, a, mode):
        self.a, self.mode = a, mode
        self.op = mode == 'oproj'
        self.NST = 5 if self.op else 14
    def map_tiles(self):
        a, c = self.a, self
        NST = c.NST
        a(f"""
        s_and_b32 s{c.sT0}, s{sRk}, 3
        s_lshl_b32 s{c.sM0}, s{sX}, 2
        s_add_u32 s{c.sM0}, s{c.sM0}, s{c.sT0}
        s_lshl_b32 s{c.sM0}, s{c.sM0}, 6
        s_lshr_b32 s{c.sNt}, s{sRk}, 2
        s_mul_i32 s{c.sN0}, s{c.sNt}, 80
        s_mul_i32 s{c.sSeq}, s{c.sT0}, {1 if c.op else 3}
        s_mul_i32 s{c.sT1}, s{c.sNt}, {1 if c.op else 2}
        s_add_u32 s{c.sSeq}, s{c.sSeq}, s{c.sT1}
        s_cmp_ge_u32 s{c.sSeq}, {NST}
        s_cselect_b32 s{c.sT1}, {NST}, 0
        s_sub_u32 s{c.sSeq}, s{c.sSeq}, s{c.sT1}
        s_cmp_ge_u32 s{c.sSeq}, {NST}
        s_cselect_b32 s{c.sT1}, {NST}, 0
        s_sub_u32 s{c.sSeq}, s{c.sSeq}, s{c.sT1}
        """)
        if E('NOROTS'): a(f"s_mov_b32 s{c.sSeq}, 0")
    def loader_setup(self):
        a, c = self.a, self
        if c.op: make_srd(a, c.sA, pWS, pWS+1, WS_O, SZ_ACT)
        else: make_srd(a, c.sA, pWS, pWS+1, WS_F, SZ_F)
        a(f"""
        s_sub_u32 s{c.sLw}, s{sWV}, 4
        v_lshlrev_b32 v{c.vA}, 4, v1
        s_lshl_b32 s{c.sT0}, s{c.sLw}, 17
        s_lshl_b32 s{c.sT1}, s{c.sM0}, 4
        s_add_u32 s{c.sAoff}, s{c.sT0}, s{c.sT1}
        s_mul_i32 s{c.sT0}, s{c.sLw}, 5120
        s_mul_i32 s{c.sT1}, s{c.sNt}, {c.NST * 20480}
        s_add_u32 s{c.sWoff}, s{c.sT0}, s{c.sT1}
        s_add_u32 s{c.sWoff}, s{c.sWoff}, {WS_WOP if c.op else WS_W2P}
        s_lshl_b32 s{c.sLdsA}, s{c.sLw}, 12
        s_add_u32 s{c.sLdsW}, s{c.sT0}, 16384
        s_mul_i32 s{c.sT0}, s{c.sSeq}, {16 * 32768}
        s_add_u32 s{c.sAoff}, s{c.sAoff}, s{c.sT0}
        s_mul_i32 s{c.sT0}, s{c.sSeq}, 20480
        s_add_u32 s{c.sWoff}, s{c.sWoff}, s{c.sT0}
        s_mov_b32 s{c.sSeqW}, s{c.sSeq}
        """)
    def issue_A(self, seq):
        a, c = self.a, self
        slot = (seq % 4) * STG
        for j in range(4):
            a(f"s_add_u32 m0, s{c.sLdsA}, {slot}" if j == 0 else "s_add_u32 m0, m0, 1024")
            a(f"s_mov_b32 s{c.sT0}, s{c.sAoff}" if j == 0 else f"s_add_u32 s{c.sT0}, s{c.sT0}, 32768")
            a(f"buffer_load_dwordx4 v{c.vA}, s[{c.sA}:{c.sA+3}], s{c.sT0} offen lds")
        a(f"""
        s_add_u32 s{c.sSeq}, s{c.sSeq}, 1
        s_cmp_eq_u32 s{c.sSeq}, {c.NST}
        s_cselect_b32 s{c.sT0}, {c.NST * 16 * 32768}, 0
        s_cselect_b32 s{c.sSeq}, 0, s{c.sSeq}
        s_add_u32 s{c.sAoff}, s{c.sAoff}, {16 * 32768}
        s_sub_u32 s{c.sAoff}, s{c.sAoff}, s{c.sT0}
        """)
    def issue_W(self, seq):
        a, c = self.a, self
        slot = (seq % 4) * STG
        a(f"s_add_u32 m0, s{c.sLdsW}, {slot}")
        a(f"s_add_u32 s{c.sT0}, s{c.sWoff}, 4096")
        for j in range(4):
            a(f"buffer_load_dwordx4 v{c.vA}, s[{sWS}:{sWS+3}], s{c.sWoff} offen offset:{j*1024} lds")
        a("s_add_u32 m0, m0, 4096")
        a(f"s_add_u32 s{c.sSeqW}, s{c.sSeqW}, 1")
        a(f"buffer_load_dwordx4 v{c.vA}, s[{sWS}:{sWS+3}], s{c.sT0} offen lds")
        a(f"""
        s_cmp_eq_u32 s{c.sSeqW}, {c.NST}
        s_cselect_b32 s{c.sT0}, {c.NST * 20480}, 0
        s_cselect_b32 s{c.sSeqW}, 0, s{c.sSeqW}
        s_add_u32 s{c.sWoff}, s{c.sWoff}, 20480
        s_sub_u32 s{c.sWoff}, s{c.sWoff}, s{c.sT0}
        """)
    def loader_main(self, q):
        a, c = self.a, self
        for s_ in range(c.NST):
            a(f"s_waitcnt vmcnt({q.need(f'A{s_}', f'W{s_}')})")
            a("s_barrier")
            stx(a, f"{'o' if c.op else 'g'}l{s_}")
            if s_ + PD < c.NST and not (E('S_NODMA') and not c.op):
                if not E('S_NOA'): c.issue_A(s_ + PD); q.push(f"A{s_+PD}", 4)
                if not E('S_NOW'): c.issue_W(s_ + PD); q.push(f"W{s_+PD}", 5)
    vXb, vWb, vXa, vWa, vX, vW, vRes, vT, vAcc = 4, 5, 6, 7, 8, 32, 70, 84, 96
    vXa2, vWa2 = 120, 121
    def compute_setup(self):
        a, c = self.a, self
        vT = c.vT
        a(f"""
        v_and_b32 v2, 15, v1
        v_lshrrev_b32 v3, 4, v1
        s_lshr_b32 s{c.sT1}, s{sWV}, 1
        s_and_b32 s{c.sT2}, s{sWV}, 1
        s_lshl_b32 s{c.sT0}, s{c.sT1}, 5
        s_add_u32 s{c.sT0}, s{c.sT0}, s{c.sM0}
        v_add_u32 v{vT}, s{c.sT0}, v2
        """)
        a(f"""
        s_mul_i32 s{c.sAoff}, s{c.sT2}, 48
        s_add_u32 s{c.sAoff}, s{c.sAoff}, s{c.sN0}
        v_mul_u32_u24 v{vT+1}, 1280, v{vT}
        v_lshlrev_b32 v{vT+3}, 3, v3
        v_add_u32 v{vT+1}, v{vT+1}, v{vT+3}
        s_lshl_b32 s{c.sT0}, s{c.sAoff}, 1
        v_add_u32 v{vT+1}, s{c.sT0}, v{vT+1}
        v_lshrrev_b32 v{vT+3}, 1, v3
        v_lshlrev_b32 v{vT+3}, 15, v{vT+3}
        v_lshlrev_b32 v{vT+2}, 4, v{vT}
        v_add_u32 v{vT+2}, v{vT+2}, v{vT+3}
        v_and_b32 v{vT+3}, 1, v3
        v_lshlrev_b32 v{vT+3}, 3, v{vT+3}
        v_add_u32 v{vT+2}, v{vT+2}, v{vT+3}
        s_lshl_b32 s{c.sT0}, s{c.sAoff}, 12
        v_add_u32 v{vT+2}, s{c.sT0}, v{vT+2}
        s_lshl_b32 s{c.sT0}, s{c.sT1}, 9
        v_lshlrev_b32 v{c.vXb}, 10, v3
        v_lshlrev_b32 v{vT+3}, 4, v2
        v_add_u32 v{c.vXb}, v{c.vXb}, v{vT+3}
        v_add_u32 v{c.vXb}, s{c.sT0}, v{c.vXb}
        v_lshrrev_b32 v{vT+3}, 1, v3
        v_lshlrev_b32 v{vT+3}, 4, v{vT+3}
        v_and_b32 v{vT+4}, 1, v3
        v_lshlrev_b32 v{vT+4}, 2, v{vT+4}
        v_add_u32 v{vT+3}, v{vT+3}, v{vT+4}
        v_lshrrev_b32 v{vT+4}, 2, v2
        v_add_u32 v{vT+3}, v{vT+3}, v{vT+4}
        v_mul_u32_u24 v{vT+3}, 160, v{vT+3}
        v_and_b32 v{vT+4}, 3, v1
        v_lshlrev_b32 v{vT+4}, 3, v{vT+4}
        v_add_u32 v{vT+3}, v{vT+3}, v{vT+4}
        s_mul_i32 s{c.sT0}, s{c.sT2}, 96
        s_add_u32 s{c.sT0}, s{c.sT0}, 16384
        v_add_u32 v{c.vWb}, s{c.sT0}, v{vT+3}
        s_mov_b32 s{c.sWoff}, s{c.sT2}
        """)
        if c.op:
            make_srd(a, c.sR, pX, pX+1, 0, 2048 * 1280)
            make_srd(a, c.sO, pWS, pWS+1, WS_H, SZ_ACT)
        else:
            make_srd(a, c.sR, pWS, pWS+1, WS_H, SZ_ACT)
            make_srd(a, c.sO, pOUT, pOUT+1, 0, 2048 * 1280)
        a(f"""
        s_cmp_eq_u32 s{c.sT2}, 1
        s_cselect_b32 s44, 0x7f000000, 0
        s_cselect_b64 s[46:47], -1, 0
        """)
    def pretouch(self): pass
    def tile_off(self, T, tt, rowmajor):
        a, c = self.a, self
        if rowmajor:
            base = T * 32 + tt * 16 * 1280
            val = base
        else:
            val = T * 65536 + tt * 256
        if T == 2:
            a(f"s_add_u32 s{c.sT0}, s44, {val}")
        else:
            a(f"s_mov_b32 s{c.sT0}, {val}")
        return (c.vT + 1 if rowmajor else c.vT + 2), c.sT0
    def residual_loads(self):
        a, c = self.a, self
        for T in range(3):
            for tt in range(2):
                va, so = c.tile_off(T, tt, c.op)
                a(f"buffer_load_dwordx2 {vr(c.vRes + 2*(T*2 + tt), 2)}, v{va}, s[{c.sR}:{c.sR+3}], s{so} offen")
    def mainloop(self, stamp0=None, tag=''):
        a, c = self.a, self
        N = c.NST * 4
        def rlist(i):
            st_, k, buf = i // 4, i % 4, i % 3
            xa, wa = (c.vXa, c.vWa) if st_ % 2 == 0 else (c.vXa2, c.vWa2)
            L = [f"ds_read_b128 {vr(c.vX + buf*8 + tt*4, 4)}, v{xa} offset:{k*4096 + tt*256}" for tt in range(2)]
            for T in range(3):
                for h2 in range(2):
                    L.append(f"ds_read_b64_tr_b16 {vr(c.vW + buf*12 + T*4 + h2*2, 2)}, v{wa} offset:{k*5120 + h2*1280 + T*32}")
            return L
        def setaddr(st_):
            slot = (st_ % 4) * STG
            xa, wa = (c.vXa, c.vWa) if st_ % 2 == 0 else (c.vXa2, c.vWa2)
            a(f"v_add_u32 v{xa}, {slot}, v{c.vXb}")
            a(f"v_add_u32 v{wa}, {slot}, v{c.vWb}")
        a("s_barrier")
        stx(a, tag + '_s0')
        setaddr(0)
        for r in rlist(0) + rlist(1): a(r)
        for i in range(N):
            buf = i % 3
            rl = rlist(i + 2) if i + 2 < N else []
            a(f"s_waitcnt lgkmcnt({8 if i + 1 < N else 0})")
            k = 0
            for T in range(3):
                for tt in range(2):
                    acc = c.vAcc + (T*2 + tt) * 4
                    cc = "0" if i == 0 else vr(acc, 4)
                    a(f"v_mfma_f32_16x16x32_bf16 {vr(acc,4)}, {vr(c.vW + buf*12 + T*4, 4)}, {vr(c.vX + buf*8 + tt*4, 4)}, {cc}")
                    if k == 0 and i + 2 < N and (i + 2) % 4 == 0:
                        a("s_barrier")
                        if (i + 2) // 4 == 1: stx(a, tag + '_s1')
                        if (i + 2) // 4 == 4: stx(a, tag + '_s4')
                        setaddr((i + 2) // 4)
                    for r in rl[[0, 2, 4, 5, 6, 7][k]:[2, 4, 5, 6, 7, 8][k]]: a(r)
                    k += 1
        a("s_nop 7")
    def reduce(self):
        pass
    def epilogue(self):
        a, c = self.a, self
        vT, vRes = c.vT, c.vRes
        a("s_waitcnt vmcnt(0)")
        P = 8
        for T in range(3):
            for tt in range(2):
                n = T*2 + tt
                acc = c.vAcc + n*4
                rr = vRes + 2*n
                a(f"""
                v_lshlrev_b32 v24, 16, v{rr}
                v_and_b32 v25, 0xffff0000, v{rr}
                v_lshlrev_b32 v26, 16, v{rr+1}
                v_and_b32 v27, 0xffff0000, v{rr+1}
                v_add_f32 v{acc}, v{acc}, v24
                v_add_f32 v{acc+1}, v{acc+1}, v25
                v_add_f32 v{acc+2}, v{acc+2}, v26
                v_add_f32 v{acc+3}, v{acc+3}, v27
                v_cvt_pk_bf16_f32 v{P+2*n}, v{acc}, v{acc+1}
                v_cvt_pk_bf16_f32 v{P+2*n+1}, v{acc+2}, v{acc+3}
                """)
                va, so = c.tile_off(T, tt, not c.op)
                ins = f"buffer_store_dwordx2 {vr(P+2*n, 2)}, v{va}, s[{c.sO}:{c.sO+3}], s{so} offen @SC"
                if c.op: dual(a, [ins])
                else: a(ins.replace("@SC", E('OUTFL', '')))
        if c.op:
            for tt in range(2):
                S, Q = 28 + 2*tt, 29 + 2*tt
                first = True
                for T in range(3):
                    n = T*2 + tt
                    for d in range(2):
                        r = P + 2*n + d
                        a(f"v_lshlrev_b32 v24, 16, v{r}")
                        a(f"v_and_b32 v25, 0xffff0000, v{r}")
                        if T == 2:
                            a(f"v_cndmask_b32 v24, v24, 0, s[46:47]")
                            a(f"v_cndmask_b32 v25, v25, 0, s[46:47]")
                        if first:
                            a(f"v_add_f32 v{S}, v24, v25")
                            a(f"v_mul_f32 v{Q}, v24, v24")
                            first = False
                        else:
                            a(f"v_add_f32 v{S}, v{S}, v24")
                            a(f"v_add_f32 v{S}, v{S}, v25")
                            a(f"v_fmac_f32 v{Q}, v24, v24")
                        a(f"v_fmac_f32 v{Q}, v25, v25")
            a(f"""
            v_mov_b32 v32, v28
            v_mov_b32 v33, v29
            v_mov_b32 v34, v30
            v_mov_b32 v35, v31
            s_nop 1
            v_permlane32_swap_b32 v28, v32
            v_permlane32_swap_b32 v29, v33
            v_permlane32_swap_b32 v30, v34
            v_permlane32_swap_b32 v31, v35
            s_nop 1
            v_add_f32 v28, v28, v32
            v_add_f32 v29, v29, v33
            v_add_f32 v30, v30, v34
            v_add_f32 v31, v31, v35
            s_nop 0
            v_mov_b32 v32, v28
            v_mov_b32 v33, v29
            v_mov_b32 v34, v30
            v_mov_b32 v35, v31
            s_nop 1
            v_permlane16_swap_b32 v28, v32
            v_permlane16_swap_b32 v29, v33
            v_permlane16_swap_b32 v30, v34
            v_permlane16_swap_b32 v31, v35
            s_nop 1
            v_add_f32 v28, v28, v32
            v_add_f32 v29, v29, v33
            v_add_f32 v30, v30, v34
            v_add_f32 v31, v31, v35
            s_lshl_b32 s{c.sT0}, s{c.sNt}, 1
            s_add_u32 s{c.sT0}, s{c.sT0}, s{c.sWoff}
            s_lshl_b32 s{c.sT0}, s{c.sT0}, 14
            s_add_u32 s{c.sT0}, s{c.sT0}, {WS_ST2}
            v_lshlrev_b32 v32, 3, v{vT}
            s_mov_b64 exec, 0xffff
            """)
            dual(a, [f"buffer_store_dwordx2 v[28:29], v32, s[{sWS}:{sWS+3}], s{c.sT0} offen @SC",
                     f"buffer_store_dwordx2 v[30:31], v32, s[{sWS}:{sWS+3}], s{c.sT0} offen offset:128 @SC"])
            a("s_mov_b64 exec, -1")

KT = 1536
SLOT = 8 * KT + 16384
VOFF = 8 * KT
NSLOT = 5
FLAG = NSLOT * SLOT

def emit_attention(a, after_stores):
    name = "att"
    sK, sV, sQ, sO = 8, 12, 16, 20
    sHead, sQt, sT0, sT1, sT2 = 25, 26, 27, 28, 29
    sChunk, sSlotN, sPass, sKoff, sVoff, sKh = 30, 31, 32, 33, 34, 35
    sVmask = 38
    sSlotW, sE, sQg, sQb = 40, 41, 42, 43
    sW1s = 44
    vL16, vVoff = 2, 3
    vA3 = [[4, 5, 6], [7, 8, 9], [172, 173, 174]]
    vQ, vQr, vNC, vS, vP, vKb, vKr, vV, vO, vT = 10, 18, 22, 54, 86, 94, 102, 110, 126, 158
    lane_id(a, 0)
    lane_id(a, 1)
    a(f"""
    v_mov_b32 v4, {ROLE}
    ds_read_b96 v[6:8], v4
    s_waitcnt lgkmcnt(0)
    v_readfirstlane_b32 s{sX}, v6
    v_readfirstlane_b32 s{sRk}, v7
    v_readfirstlane_b32 s{sLoc}, v8
    s_and_b32 s{sT0}, s2, 7
    s_lshr_b32 s{sT1}, s2, 3
    s_cmp_eq_u32 s{sLoc}, 0
    s_cselect_b32 s{sX}, s{sT0}, s{sX}
    s_cselect_b32 s{sRk}, s{sT1}, s{sRk}
    s_mov_b32 s{sHead}, s{sRk}
    s_mov_b32 s{sQb}, s{sX}
    s_lshl_b32 s{sQt}, s{sQb}, 3
    s_mov_b32 s{sVmask}, 0x000fffff
    s_mov_b32 s{sVmask+1}, 0x000fffff
    s_mov_b32 s{sPass}, 0
    s_and_b32 s{sE}, s{sHead}, 1
    s_lshr_b32 s{sKh}, s{sWV}, 2
    s_and_b32 s{sQg}, s{sWV}, 3
    """)
    a(f"""
    v_lshlrev_b32 v{vL16}, 4, v0
    v_and_b32 v{vT}, 31, v0
    v_lshrrev_b32 v{vT+1}, 5, v0
    v_mul_u32_u24 v{vVoff}, 320, v{vT+1}
    v_lshlrev_b32 v{vT+2}, 4, v{vT}
    v_add_u32 v{vVoff}, v{vVoff}, v{vT+2}
    """)
    make_srd(a, sK, pWS, pWS+1, WS_K, SZ_QK)
    make_srd(a, sV, pWS, pWS+1, WS_V, SZ_QKV)
    make_srd(a, sQ, pWS, pWS+1, WS_Q, SZ_QK)
    make_srd(a, sO, pWS, pWS+1, WS_O, SZ_ACT)
    make_srd(a, sW1s, pW1, pW1+1, 0, 640*3456)
    a(f"""
    v_mov_b32 v{vT+4}, 0
    v_mov_b32 v{vT+3}, 0x3f803f80
    v_cmp_eq_u32 vcc, 20, v{vT}
    s_lshl_b32 s{sT0}, s{sWV}, 11
    s_add_u32 s{sT0}, s{sT0}, {VOFF}
    v_cndmask_b32 v{vT+4}, v{vT+4}, v{vT+3}, vcc
    v_add_u32 v{vT+3}, s{sT0}, v{vL16}
    v_mov_b32 v{vT+5}, v{vT+4}
    v_mov_b32 v{vT+6}, v{vT+4}
    v_mov_b32 v{vT+7}, v{vT+4}
    s_not_b64 exec, s[{sVmask}:{sVmask+1}]
    """)
    base = 0
    for sl in range(NSLOT):
        for j in range(2):
            off = sl * SLOT + j * 1024
            if off - base >= 65536 - 1024:
                a(f"v_add_u32 v{vT+3}, {sl*SLOT - base}, v{vT+3}")
                base = sl * SLOT
            a(f"ds_write_b128 v{vT+3}, {vr(vT+4,4)} offset:{off - base}")
    a(f"""
    s_mov_b64 exec, -1
    v_mov_b32 v{vT+3}, {FLAG}
    v_mov_b32 v{vT+4}, 0
    ds_write_b32 v{vT+3}, v{vT+4}
    """)
    def reinit():
        a(f"""
        s_lshl_b32 s{sT0}, s{sE}, 9
        s_mul_i32 s{sT1}, s{sKh}, {4*KT}
        s_add_u32 s{sT0}, s{sT0}, s{sT1}
        v_add_u32 v{vA3[0][0]}, s{sT0}, v{vL16}
        s_sub_u32 s{sT0}, 1, s{sE}
        s_lshl_b32 s{sT0}, s{sT0}, 10
        s_lshl_b32 s{sT2}, s{sE}, 3
        s_add_u32 s{sT0}, s{sT0}, s{sT2}
        s_add_u32 s{sT0}, s{sT0}, s{sT1}
        v_and_b32 v{vT}, 31, v0
        v_lshlrev_b32 v{vA3[0][1]}, 4, v{vT}
        v_add_u32 v{vA3[0][1]}, s{sT0}, v{vA3[0][1]}
        s_lshl_b32 s{sT0}, s{sKh}, 13
        s_add_u32 s{sT0}, s{sT0}, {VOFF}
        v_add_u32 v{vA3[0][2]}, s{sT0}, v{vL16}
        s_mov_b32 s{sSlotN}, {2*SLOT}
        s_lshr_b32 s{sT0}, s{sHead}, 1
        s_mul_i32 s{sT0}, s{sT0}, 163840
        s_mul_i32 s{sT1}, s{sWV}, 2560
        s_add_u32 s{sKoff}, s{sT0}, s{sT1}
        s_lshl_b32 s{sT1}, s{sE}, 10
        s_add_u32 s{sKoff}, s{sKoff}, s{sT1}
        s_mul_i32 s{sT0}, s{sHead}, 81920
        s_mul_i32 s{sT1}, s{sWV}, 1280
        s_add_u32 s{sVoff}, s{sT0}, s{sT1}
        s_mov_b32 s{sSlotW}, 0
        """)
        for k in range(3):
            a(f"v_add_u32 v{vA3[1][k]}, {SLOT}, v{vA3[0][k]}")
            a(f"v_add_u32 v{vA3[2][k]}, {2*SLOT}, v{vA3[0][k]}")
        for i in range(32): a(f"v_mov_b32 v{vO+i}, 0")
        for i in range(4):
            a(f"v_mov_b32 v{vP+4+i}, 0")
            a(f"v_mov_b32 v{vV+12+i}, 0")
    reinit()
    a(f"v_and_b32 v{vT+11}, 7, v0")
    a(f"v_lshlrev_b32 v{vT+11}, 7, v{vT+11}")
    a(f"v_add_u32 v{vT+11}, {WS_CNT + C_RPS*128}, v{vT+11}")
    a(f"v_mov_b32 v{vT+10}, 0")
    a(f"""
    s_lshl_b32 s{sT0}, s{sQg}, 1
    s_add_u32 s{sQt}, s{sQt}, s{sT0}
    v_lshlrev_b32 v{vT+13}, 4, v{vT}
    s_lshl_b32 s{sT1}, s{sE}, 3
    s_add_u32 s{sT1}, s{sT1}, 1024
    v_add_u32 v{vT+13}, s{sT1}, v{vT+13}
    v_mov_b32 v{vT+9}, 0x7fffff00
    """)
    a(f"""
    v_cmp_gt_u32 vcc, 32, v0
    s_mul_i32 s{sT1}, s{sE}, 1536
    v_cndmask_b32 v{vT+13}, v{vT+9}, v{vT+13}, vcc
    v_add_u32 v{vT+12}, s{sT1}, v{vL16}
    """)
    lw = a.newlabel("attw")
    a(f"""
    s_cmp_eq_u32 s{sWV}, 0
    s_cbranch_scc0 {lw}
    s_mul_i32 s{sT0}, s{sHead}, 20
    s_lshr_b32 s{sT1}, s{sT0}, 7
    s_add_u32 s{sT0}, s{sT0}, 19
    s_lshr_b32 s{sT0}, s{sT0}, 7
    v_and_b32 v{vT+3}, 1, v0
    v_mov_b32 v{vT+4}, s{sT1}
    v_mov_b32 v{vT+5}, s{sT0}
    v_cmp_eq_u32 vcc, 1, v{vT+3}
    v_lshrrev_b32 v{vT+6}, 1, v0
    v_mul_u32_u24 v{vT+6}, 5, v{vT+6}
    v_cndmask_b32 v{vT+4}, v{vT+4}, v{vT+5}, vcc
    v_add_u32 v{vT+4}, v{vT+4}, v{vT+6}
    v_add_u32 v{vT+4}, {C_QKV}, v{vT+4}
    v_lshlrev_b32 v{vT+4}, 7, v{vT+4}
    v_add_u32 v{vT+4}, {WS_CNT}, v{vT+4}
    v_mov_b32 v{vT+5}, 16
    """)
    poll(a, vT + 4, vT + 5, 6, vT + 6)
    a.label(lw)
    a("s_waitcnt vmcnt(0) lgkmcnt(0)")
    a("s_barrier")
    st(a, 5)
    def rpa():
        a("s_and_b32 s76, s2, 7")
        a(f"s_add_u32 s76, s76, {C_RPS}")
        arrive(a, 76, vT + 4)
    wave_only(a, 4, rpa)
    def dma_chunk():
        a(f"""
        s_mul_i32 s{sT0}, s{sWV}, {KT}
        s_add_u32 m0, s{sSlotW}, s{sT0}
        s_lshl_b32 s{sT1}, s{sWV}, 11
        buffer_load_dwordx4 v{vL16}, s[{sK}:{sK+3}], s{sKoff} offen lds
        s_mov_b32 exec_hi, 0
        buffer_load_dwordx4 v{vL16}, s[{sK}:{sK+3}], s{sKoff} offen offset:1024 lds
        s_add_u32 s{sT1}, s{sT1}, s{sSlotW}
        s_add_u32 m0, s{sT1}, {VOFF}
        s_mov_b64 exec, s[{sVmask}:{sVmask+1}]
        buffer_load_dwordx4 v{vVoff}, s[{sV}:{sV+3}], s{sVoff} offen lds
        s_add_u32 m0, m0, 1024
        s_add_u32 s{sT1}, s{sVoff}, 640
        buffer_load_dwordx4 v{vVoff}, s[{sV}:{sV+3}], s{sT1} offen lds
        s_mov_b64 exec, -1
        s_add_u32 s{sKoff}, s{sKoff}, {8*2560}
        s_add_u32 s{sVoff}, s{sVoff}, 10240
        s_add_u32 s{sSlotW}, s{sSlotW}, {SLOT}
        s_cmp_ge_u32 s{sSlotW}, {NSLOT*SLOT}
        s_cselect_b32 s{sSlotW}, 0, s{sSlotW}
        """)
    dma_chunk()
    a(f"s_lshr_b32 s{sT0}, s{sHead}, 1")
    a(f"s_mul_i32 s{sT0}, s{sT0}, 163840")
    for s in range(2):
        a(f"""
        s_xor_b32 s{sT1}, s{sKh}, {s}
        s_add_u32 s{sT1}, s{sT1}, s{sQt}
        s_mul_i32 s{sT1}, s{sT1}, 2560
        s_add_u32 s{sT1}, s{sT1}, s{sT0}
        buffer_load_dwordx4 {vr(vQ+4*s,4)}, v{vT+12}, s[{sQ}:{sQ+3}], s{sT1} offen
        buffer_load_dwordx2 {vr(vQr+2*s,2)}, v{vT+13}, s[{sQ}:{sQ+3}], s{sT1} offen
        """)
    dma_chunk()
    a(f"s_branch L_{name}_start")
    a.label(f"L_{name}_restart")
    reinit()
    dma_chunk(); dma_chunk()
    a.label(f"L_{name}_start")
    vKc, vKrc, vVc = vA3[0]
    a(f"""
    s_waitcnt vmcnt(4)
    s_barrier
    s_cmp_eq_u32 s{sPass}, 0
    s_cbranch_scc0 L_{name}_haveC
    s_mul_i32 s{sT1}, s{sKh}, {4*KT}
    v_subrev_u32 v{vT+1}, s{sT1}, v{vKc}
    v_subrev_u32 v{vT+2}, s{sT1}, v{vKrc}
    ds_read_b128 {vr(vKb,4)}, v{vT+1}
    ds_read_b64 {vr(vKr,2)}, v{vT+2}
    s_waitcnt lgkmcnt(0)
    """)
    for s in range(2):
        S = vS + 16*s
        a(f"v_mfma_f32_32x32x16_bf16 {vr(S,16)}, {vr(vKb,4)}, {vr(vQ+4*s,4)}, 0")
    for s in range(2):
        S = vS + 16*s
        a(f"v_mfma_f32_32x32x8_bf16 {vr(S,16)}, {vr(vKr,2)}, {vr(vQr+2*s,2)}, {vr(S,16)}")
    a(f"""
    ds_read_b128 {vr(vKb,4)}, v{vKc}
    ds_read2st64_b64 {vr(vKr,4)}, v{vKrc} offset0:0 offset1:3
    ds_read_b128 {vr(vV,4)}, v{vVc}
    ds_read_b128 {vr(vV+4,4)}, v{vVc} offset:1024
    s_nop 11
    """)
    for s in range(2):
        S = vS + 16*s
        T_ = vT + 2*s
        a(f"v_max3_f32 v{T_}, v{S}, v{S+1}, v{S+2}")
        for i in range(3, 15, 2):
            a(f"v_max3_f32 v{T_}, v{T_}, v{S+i}, v{S+i+1}")
        a(f"v_max_f32 v{T_}, v{T_}, v{S+15}")
    a(f"""
    v_mov_b32 v{vT+1}, v{vT}
    v_mov_b32 v{vT+3}, v{vT+2}
    s_nop 1
    v_permlane32_swap_b32 v{vT}, v{vT+1}
    v_permlane32_swap_b32 v{vT+2}, v{vT+3}
    s_nop 1
    v_max_f32 v{vT}, v{vT}, v{vT+1}
    v_max_f32 v{vT+2}, v{vT+2}, v{vT+3}
    v_sub_f32 v{vNC}, 0, v{vT}
    v_sub_f32 v{vNC+16}, 0, v{vT+2}
    """)
    for i in range(1, 16):
        a(f"v_mov_b32 v{vNC+i}, v{vNC}")
        a(f"v_mov_b32 v{vNC+16+i}, v{vNC+16}")
    a(f"s_branch L_{name}_haveC2")
    a.label(f"L_{name}_haveC")
    a(f"""
    ds_read_b128 {vr(vKb,4)}, v{vKc}
    ds_read2st64_b64 {vr(vKr,4)}, v{vKrc} offset0:0 offset1:3
    ds_read_b128 {vr(vV,4)}, v{vVc}
    ds_read_b128 {vr(vV+4,4)}, v{vVc} offset:1024
    """)
    a.label(f"L_{name}_haveC2")
    a(f"""
    s_waitcnt lgkmcnt(0)
    v_mfma_f32_32x32x16_bf16 {vr(vS,16)}, {vr(vKb,4)}, {vr(vQ,4)}, {vr(vNC,16)}
    v_mfma_f32_32x32x8_bf16 {vr(vS,16)}, {vr(vKr,2)}, {vr(vQr,2)}, {vr(vS,16)}
    s_mov_b32 s{sChunk}, 0
    s_nop 7
    """)
    st(a, 6)
    a(f"""
    s_cmp_eq_u32 s{sKh}, 0
    s_cselect_b32 s36, 7, 0
    s_cselect_b32 s37, 0, 7
    """)
    ool = []
    def rare(mask, fn, tag):
        l, b = a.newlabel(tag), a.newlabel(tag + "b")
        a(f"s_bitcmp1_b32 {mask:#x}, s{sChunk}")
        a(f"s_cbranch_scc1 {l}")
        a.label(b)
        ool.append((l, b, fn))
    def common_(mask, fn, tag):
        l = a.newlabel(tag)
        a(f"s_bitcmp1_b32 {mask if isinstance(mask, str) else hex(mask)}, s{sChunk}")
        a(f"s_cbranch_scc0 {l}")
        fn()
        a.label(l)
    def pf_A(half, which='w1'):
        if which == 'w1':
            a(f"""
            v_lshlrev_b32 v{vT+12}, 7, v0
            s_mul_i32 s{sT0}, s{sRk}, 69120
            s_lshl_b32 s{sT1}, s{sWV}, 13
            s_add_u32 s{sT0}, s{sT0}, s{sT1}
            s_mov_b32 exec_lo, {-1 if half == 0 else 0}
            s_mov_b32 exec_hi, {0 if half == 0 else -1}
            buffer_load_dword v{vT+13}, v{vT+12}, s[{sW1s}:{sW1s+3}], s{sT0} offen sc1
            s_mov_b64 exec, -1
            """)
        else:
            a(f"""
            v_lshlrev_b32 v{vT+12}, 7, v0
            s_mul_i32 s{sT0}, s{sRk}, {SZ_W2P // 32}
            s_lshl_b32 s{sT1}, s{sWV}, 13
            s_add_u32 s{sT0}, s{sT0}, s{sT1}
            s_add_u32 s{sT0}, s{sT0}, {WS_W2P}
            s_mov_b32 exec_lo, {-1 if half == 0 else 0}
            s_mov_b32 exec_hi, {0 if half == 0 else -1}
            buffer_load_dword v{vT+13}, v{vT+12}, s[{sWS}:{sWS+3}], s{sT0} offen sc1
            s_mov_b64 exec, -1
            """)
    def pf_B():
        l5, l4, le = a.newlabel("pf5"), a.newlabel("pf4"), a.newlabel("pfe")
        a(f"""
        v_lshlrev_b32 v{vT+12}, 7, v0
        s_cmp_ge_u32 s{sWV}, 5
        s_cbranch_scc1 {l5}
        s_cmp_eq_u32 s{sWV}, 4
        s_cbranch_scc1 {l4}
        s_mul_i32 s{sT0}, s{sRk}, {SZ_WOP // 32}
        s_lshl_b32 s{sT1}, s{sWV}, 13
        s_add_u32 s{sT0}, s{sT0}, s{sT1}
        s_add_u32 s{sT0}, s{sT0}, {WS_WOP}
        buffer_load_dword v{vT+13}, v{vT+12}, s[{sWS}:{sWS+3}], s{sT0} offen sc1
        s_branch {le}
        """)
        a.label(l4)
        a(f"""
        s_mul_i32 s{sT0}, s{sRk}, 69120
        s_add_u32 s{sT0}, s{sT0}, 65536
        s_mov_b32 exec_hi, 0
        buffer_load_dword v{vT+13}, v{vT+12}, s[{sW1s}:{sW1s+3}], s{sT0} offen sc1
        s_mov_b32 exec_hi, -1
        s_branch {le}
        """)
        a.label(l5)
        a(f"""
        s_sub_u32 s{sT1}, s{sWV}, 5
        s_lshl_b32 s{sT1}, s{sT1}, 5
        s_mul_i32 s{sT0}, s{sRk}, 80
        s_add_u32 s{sT0}, s{sT0}, s{sT1}
        v_and_b32 v{vT+8}, 31, v0
        v_add_u32 v{vT+8}, s{sT0}, v{vT+8}
        v_lshrrev_b32 v{vT+9}, 5, v{vT+8}
        v_lshlrev_b32 v{vT+9}, 15, v{vT+9}
        v_and_b32 v{vT+8}, 31, v{vT+8}
        v_lshlrev_b32 v{vT+8}, 7, v{vT+8}
        v_add_u32 v{vT+8}, v{vT+8}, v{vT+9}
        s_lshl_b32 s{sT0}, s{sX}, 12
        s_mov_b32 exec_hi, 0
        buffer_load_dword v{vT+13}, v{vT+8}, s[{sO}:{sO+3}], s{sT0} offen sc1
        s_mov_b32 exec_hi, -1
        """)
        a.label(le)
    def rp_issue():
        a("s_mov_b64 exec, 0xff")
        a(f"buffer_load_dword v{vT+10}, v{vT+11}, s[{sWS}:{sWS+3}], 0 offen sc1")
        a("s_mov_b64 exec, -1")
    def rp_check():
        ok = a.newlabel("rpok")
        a("s_mov_b64 exec, 0xff")
        a(f"v_cmp_gt_u32 vcc, 32, v{vT+10}")
        a("s_nop 4")
        a("s_cmp_eq_u64 vcc, 0")
        a(f"s_cbranch_scc1 {ok}")
        a(f"v_mov_b32 v{vT+9}, 32")
        poll(a, vT + 11, vT + 9, 8, vT + 10)
        a.label(ok)
        a("s_mov_b64 exec, -1")
    if E('A_PRIO'):
        l = a.newlabel("prio")
        a(f"s_cmp_ge_u32 s{sWV}, 4")
        a(f"s_cbranch_scc0 {l}")
        a(f"s_setprio {E('A_PRIO')}")
        a.label(l)
    a(".p2align 6")
    a.label(f"L_{name}_loop")
    rd = (lambda x: None) if E('A_NORD') else a
    for u in range(16):
        p = u & 1
        t = u >> 1
        D1 = int(E('A_D1', '6'))
        PS = E('PFSEL', 'w1')
        if u == 0:
            if not E('A_NODMA'): common_(0b0111, dma_chunk, "d0")
            if not E('NOPF2'): rare(0b1000, lambda: pf_A(0, 'w2' if PS == 'w2' else 'w1'), "pa")
        if u == 4 and not E('NOPF2'): rare(0b1000, lambda: pf_A(1, 'w2' if PS == 'w2' else 'w1'), "pb")
        if PS == 'both':
            if u == 10: rare(0b0100, lambda: pf_A(0, 'w2'), "pd")
            if u == 12: rare(0b0100, lambda: pf_A(1, 'w2'), "pe")
        if u == 6 and not E('A_NOBAR'):
            rare(0b0001, lambda: (a(f"s_waitcnt vmcnt({8 if D1 < 6 else 4})"), a("s_barrier")), "c1")
        if u == D1 and not E('A_NODMA'): common_(0b0111, dma_chunk, "d1")
        if u == 8 and not E('NOPF2'): rare(0b1000, pf_B, "pc")
        if u == 14:
            rare(0b0010, rp_issue, "rpi")
            a("s_waitcnt vmcnt(0)")
            if not E('A_NOBAR'): a("s_barrier")
            rare(0b0010, rp_check, "rpc")
        tn = t + 1
        A = vA3[tn // 4]
        if p == 0:
            rd(f"ds_read_b128 {vr(vKb + 4*(tn&1),4)}, v{A[0]} offset:{(tn%4)*KT}")
            if tn % 2 == 0:
                pb = (tn // 2) & 1
                rd(f"ds_read2st64_b64 {vr(vKr + 4*pb,4)}, v{A[1]} offset0:{(tn%4)*3} offset1:{(tn%4)*3+3}")
            rd(f"ds_read_b128 {vr(vV + 8*(tn&1),4)}, v{A[2]} offset:{(tn%4)*2048}")
        else:
            rd("s_waitcnt lgkmcnt(0)")
        un = u + 1
        tq = un >> 1
        qs = un & 1
        Sc, Sn = vS + 16*p, vS + 16*(p^1)
        kbuf = vKb + 4*(tq & 1)
        krbuf = vKr + 4*((tq // 2) & 1) + 2*(tq & 1)
        ex = lambda r: a(f"v_exp_f32 v{Sc+r}, v{Sc+r}")
        cv = lambda r: a(f"v_cvt_pk_bf16_f32 v{vP+r}, v{Sc+2*r}, v{Sc+2*r+1}")
        a(f"v_mfma_f32_32x32x16_bf16 {vr(Sn,16)}, {vr(kbuf,4)}, {vr(vQ+4*qs,4)}, {vr(vNC+16*qs,16)}")
        for r in range(4): ex(r)
        tp = (u - 1) >> 1 if u > 0 else -1
        Op = vO + 16*((u - 1) & 1)
        a(f"v_mfma_f32_32x32x16_bf16 {vr(Op,16)}, {vr(vV + 8*(tp & 1) + 4,4)}, {vr(vP+4,4)}, {vr(Op,16)}")
        if p == 0:
            rd(f"ds_read_b128 {vr(vV + 8*(tn&1) + 4,4)}, v{A[2]} offset:{(tn%4)*2048 + 1024}")
        for r in range(4, 8): ex(r)
        cv(0); cv(1)
        a(f"v_mfma_f32_32x32x8_bf16 {vr(Sn,16)}, {vr(krbuf,2)}, {vr(vQr+2*qs,2)}, {vr(Sn,16)}")
        cv(2); cv(3)
        for r in range(8, 12): ex(r)
        Oc = vO + 16*p
        a(f"v_mfma_f32_32x32x16_bf16 {vr(Oc,16)}, {vr(vV + 8*(t & 1),4)}, {vr(vP,4)}, {vr(Oc,16)}")
        for r in range(12, 16): ex(r)
        if u == 15:
            a(f"""
            s_add_u32 s{sT0}, s{sSlotN}, {SLOT}
            s_cmp_ge_u32 s{sT0}, {NSLOT*SLOT}
            s_cselect_b32 s{sT1}, {NSLOT*SLOT}, 0
            s_sub_u32 s{sT0}, s{sT0}, s{sT1}
            s_sub_u32 s{sT1}, s{sT0}, s{sSlotN}
            s_add_u32 s{sT2}, s{sT0}, {SLOT}
            s_cmp_ge_u32 s{sT2}, {NSLOT*SLOT}
            s_cselect_b32 s{sT0}, {NSLOT*SLOT}, 0
            s_sub_u32 s{sT2}, s{sT2}, s{sT0}
            s_sub_u32 s{sT0}, s{sT2}, s{sSlotN}
            s_mov_b32 s{sSlotN}, s{sT2}
            """)
            for k in range(3):
                a(f"v_mov_b32 v{vA3[0][k]}, v{vA3[2][k]}")
                a(f"v_add_u32 v{vA3[1][k]}, s{sT1}, v{vA3[2][k]}")
                a(f"v_add_u32 v{vA3[2][k]}, s{sT0}, v{vA3[2][k]}")
        for r in range(4, 8): cv(r)
    a(f"""
    s_add_u32 s{sChunk}, s{sChunk}, 1
    s_cmp_lt_u32 s{sChunk}, 4
    s_cbranch_scc1 L_{name}_loop
    s_waitcnt lgkmcnt(0)
    """)
    a(f"v_mfma_f32_32x32x16_bf16 {vr(vO+16,16)}, {vr(vV + 8 + 4,4)}, {vr(vP+4,4)}, {vr(vO+16,16)}")
    st(a, 7)
    a(f"s_branch L_{name}_post")
    for l, b, fn in ool:
        a.label(l)
        fn()
        a(f"s_branch {b}")
    a.label(f"L_{name}_post")
    a(f"""
    s_barrier
    s_lshl_b32 s{sT0}, s{sQg}, 1
    s_add_u32 s{sT1}, s{sT0}, s{sKh}
    s_lshr_b32 s{sT2}, s{sT1}, 2
    s_mul_i32 s{sT2}, s{sT2}, {SLOT}
    s_and_b32 s{sT1}, s{sT1}, 3
    s_mul_i32 s{sT1}, s{sT1}, 3072
    s_add_u32 s{sT1}, s{sT1}, s{sT2}
    v_add_u32 v{vT}, s{sT1}, v{vL16}
    s_xor_b32 s{sT1}, s{sKh}, 1
    s_add_u32 s{sT1}, s{sT1}, s{sT0}
    s_lshr_b32 s{sT2}, s{sT1}, 2
    s_mul_i32 s{sT2}, s{sT2}, {SLOT}
    s_and_b32 s{sT1}, s{sT1}, 3
    s_mul_i32 s{sT1}, s{sT1}, 3072
    s_add_u32 s{sT1}, s{sT1}, s{sT2}
    v_add_u32 v{vT+1}, s{sT1}, v{vL16}
    s_nop 7
    """)
    stx(a, 'a_bar1')
    for i in range(3):
        a(f"ds_write_b128 v{vT}, {vr(vO+16+4*i,4)} offset:{i*1024}")
    a("s_waitcnt lgkmcnt(0)")
    a("s_barrier")
    stx(a, 'a_bar2')
    for i in range(3):
        a(f"ds_read_b128 {vr(vS+4*i,4)}, v{vT+1} offset:{i*1024}")
    a("s_waitcnt lgkmcnt(0)")
    for r in range(12):
        a(f"v_add_f32 v{vO+r}, v{vO+r}, v{vS+r}")
    a(f"v_mov_b32 v{vT}, 0")
    for r in range(12):
        a(f"v_fma_f32 v{vT}, v{vO+r}, 0, v{vT}")
    a(f"""
    s_cmp_eq_u32 s{sPass}, 0
    s_cbranch_scc0 L_{name}_store2
    v_cmp_u_f32 vcc, v{vT}, v{vT}
    s_nop 4
    s_cmp_eq_u64 vcc, 0
    s_cbranch_scc1 L_{name}_store2
    v_mov_b32 v{vT+1}, {FLAG}
    v_mov_b32 v{vT+2}, 1
    ds_write_b32 v{vT+1}, v{vT+2}
    s_branch L_{name}_store2
    L_{name}_redo:
    s_mov_b32 s{sPass}, 1
    v_mov_b32 v{vT}, 0xff800000
    v_mov_b32 v{vT+1}, 0xff800000
    s_lshr_b32 s{sT0}, s{sHead}, 1
    s_mul_i32 s{sT0}, s{sT0}, 163840
    s_mov_b32 s{sT1}, 0
    v_and_b32 v{vT+2}, 31, v0
    v_lshlrev_b32 v{vT+2}, 4, v{vT+2}
    s_lshl_b32 s{sT2}, s{sE}, 3
    s_add_u32 s{sT2}, s{sT2}, 1024
    v_add_u32 v{vT+2}, s{sT2}, v{vT+2}
    s_mul_i32 s{sT2}, s{sE}, 1536
    v_add_u32 v{vT+3}, s{sT2}, v{vL16}
    L_{name}_maxloop:
    buffer_load_dwordx4 {vr(vKb,4)}, v{vT+3}, s[{sK}:{sK+3}], s{sT0} offen
    buffer_load_dwordx2 {vr(vKr,2)}, v{vT+2}, s[{sK}:{sK+3}], s{sT0} offen
    s_waitcnt vmcnt(0)
    """)
    for s in range(2):
        S = vS + 16*s
        a(f"v_mfma_f32_32x32x16_bf16 {vr(S,16)}, {vr(vKb,4)}, {vr(vQ+4*s,4)}, 0")
        a(f"v_mfma_f32_32x32x8_bf16 {vr(S,16)}, {vr(vKr,2)}, {vr(vQr+2*s,2)}, {vr(S,16)}")
    a("s_nop 15")
    for s in range(2):
        for i in range(0, 16, 2):
            a(f"v_max3_f32 v{vT+s}, v{vT+s}, v{vS+16*s+i}, v{vS+16*s+i+1}")
    a(f"""
    s_add_u32 s{sT0}, s{sT0}, 2560
    s_add_u32 s{sT1}, s{sT1}, 1
    s_cmp_lt_u32 s{sT1}, 64
    s_cbranch_scc1 L_{name}_maxloop
    """)
    for s in range(2):
        a(f"""
        v_mov_b32 v{vT+2}, v{vT+s}
        s_nop 1
        v_permlane32_swap_b32 v{vT+s}, v{vT+2}
        s_nop 1
        v_max_f32 v{vT+2}, v{vT+s}, v{vT+2}
        v_sub_f32 v{vNC+16*s}, 0, v{vT+2}
        """)
        for i in range(1, 16):
            a(f"v_mov_b32 v{vNC+16*s+i}, v{vNC+16*s}")
    a("s_barrier")
    a(f"s_branch L_{name}_restart")
    a.label(f"L_{name}_store2")
    stx(a, 'a_vote')
    a(f"""
    v_mov_b32 v{vT}, v{vO+8}
    v_mov_b32 v{vT+1}, v{vO+8}
    s_nop 1
    v_permlane32_swap_b32 v{vT}, v{vT+1}
    s_nop 1
    v_rcp_f32 v{vT+1}, v{vT+1}
    v_lshrrev_b32 v{vT+2}, 5, v0
    v_and_b32 v{vT+3}, 31, v0
    s_add_u32 s{sT0}, s{sQt}, s{sKh}
    s_lshl_b32 s{sT0}, s{sT0}, 5
    v_add_u32 v{vT+3}, s{sT0}, v{vT+3}
    v_lshlrev_b32 v{vT+3}, 4, v{vT+3}
    s_mul_i32 s{sT0}, s{sHead}, 5
    v_add_u32 v{vT+2}, s{sT0}, v{vT+2}
    """)
    for r in range(12):
        a(f"v_mul_f32 v{vO+r}, v{vO+r}, v{vT+1}")
    for q in range(3):
        a(f"""
        v_add_u32 v{vT+4}, {2*q}, v{vT+2}
        v_lshrrev_b32 v{vT+5}, 1, v{vT+4}
        v_lshlrev_b32 v{vT+5}, 15, v{vT+5}
        v_and_b32 v{vT+4}, 1, v{vT+4}
        v_lshlrev_b32 v{vT+4}, 3, v{vT+4}
        v_add3_u32 v{vT+4}, v{vT+4}, v{vT+5}, v{vT+3}
        v_cvt_pk_bf16_f32 v{vT+6}, v{vO+4*q}, v{vO+4*q+1}
        v_cvt_pk_bf16_f32 v{vT+7}, v{vO+4*q+2}, v{vO+4*q+3}
        """)
        if q == 2: a("s_mov_b32 exec_hi, 0")
        dual(a, [f"buffer_store_dwordx2 {vr(vT+6,2)}, v{vT+4}, s[{sO}:{sO+3}], 0 offen @SC"])
    a("s_mov_b64 exec, -1")
    stx(a, 'a_stores')
    a(f"""
    s_waitcnt vmcnt(0) lgkmcnt(0)
    s_barrier
    v_mov_b32 v{vT+1}, {FLAG}
    ds_read_b32 v{vT+2}, v{vT+1}
    s_waitcnt lgkmcnt(0)
    v_readfirstlane_b32 s{sT0}, v{vT+2}
    s_cmp_eq_u32 s{sPass}, 0
    s_cselect_b32 s{sT0}, s{sT0}, 0
    s_cmp_lg_u32 s{sT0}, 0
    s_cbranch_scc1 L_{name}_redo
    """)
    a(f"s_add_u32 s76, s{sQb}, {C_ATT}")

def gemm_phase_prologue_loader(a, core, q, dep_idx_sgpr, dep_target, nW, pre_issued):
    pass

LANDED = [True]
def reg_step1(a, vd):
    a("s_mov_b64 exec, 7")
    a(f"buffer_load_dword v{vd}, v{vd+1}, s[44:47], 0 offen sc1")
    a("s_mov_b64 exec, -1")
def reg_step2(a, vd):
    dbg_flag_wait(a, vd, landed=LANDED[0])
    a(f"""
    s_getreg_b32 s{sX}, hwreg(HW_REG_XCC_ID)
    s_and_b32 s{sX}, s{sX}, 7
    s_add_u32 s76, s{sX}, {C_RK}
    s_lshl_b32 s76, s76, 7
    s_add_u32 s76, s76, {WS_CNT}
    v_mov_b32 v{vd-1}, s76
    v_accvgpr_write_b32 a0, 1
    s_mov_b64 exec, 1
    s_nop 1
    buffer_atomic_add a0, v{vd-1}, s[{sWS}:{sWS+3}], 0 offen sc0
    s_mov_b64 exec, -1
    """)
def reg_step3(a, vd):
    l1, l2 = a.newlabel("r3a"), a.newlabel("r3b")
    if not LANDED[0]: a("s_waitcnt vmcnt(0)")
    a(f"""
    v_accvgpr_read_b32 v{vd-1}, a0
    s_nop 1
    v_readfirstlane_b32 s{sRk}, v{vd-1}
    s_cmp_eq_u32 s{sRk}, 31
    s_cbranch_scc0 {l1}
    v_mov_b32 v{vd-1}, 4
    v_mov_b32 v{vd-2}, 1
    s_mov_b64 exec, 1
    buffer_atomic_add v{vd-2}, v{vd-1}, s[44:47], 0 offen sc1
    s_mov_b64 exec, -1
    """)
    a.label(l1)
    a(f"""
    s_cmp_ge_u32 s{sRk}, 32
    s_cbranch_scc0 {l2}
    v_mov_b32 v{vd-1}, 8
    v_mov_b32 v{vd-2}, 1
    s_mov_b64 exec, 1
    buffer_store_dword v{vd-2}, v{vd-1}, s[44:47], 0 offen sc1
    s_mov_b64 exec, -1
    """)
    a.label(l2)
    a("s_mov_b64 exec, 7")
    a(f"buffer_load_dword v{vd}, v{vd+1}, s[44:47], 0 offen sc1")
    a("s_mov_b64 exec, -1")
def register_publish(a, vd):
    l0, l1 = a.newlabel("rp"), a.newlabel("rpok")
    a(f"s_mov_b32 s{sPoll}, 0")
    a.label(l0)
    a(f"""
    s_waitcnt vmcnt(0)
    v_readlane_b32 s39, v{vd}, 1
    v_readlane_b32 s40, v{vd}, 2
    s_cmp_eq_u32 s39, 8
    s_cselect_b32 s38, 1, 0
    s_cmp_lg_u32 s40, 0
    s_cselect_b32 s38, 0, s38
    s_cbranch_scc1 {l1}
    s_cmp_eq_u32 s38, 1
    s_cbranch_scc1 {l1}
    s_add_u32 s{sPoll}, s{sPoll}, 1
    s_cmp_gt_u32 s{sPoll}, {POLL_MAX}
    s_cbranch_scc1 {l1}
    s_sleep 1
    s_mov_b64 exec, 7
    buffer_load_dword v{vd}, v{vd+1}, s[44:47], 0 offen sc1
    s_mov_b64 exec, -1
    s_branch {l0}
    """)
    a.label(l1)
    if E('FORCE_SLOW'): a("s_mov_b32 s38, 0")
    a(f"""
    v_mov_b32 v{vd-6}, s{sX}
    v_mov_b32 v{vd-4}, s38
    v_mov_b32 v{vd-5}, s{sRk}
    v_mov_b32 v{vd-7}, {ROLE}
    ds_write_b96 v{vd-7}, v[{vd-6}:{vd-4}]
    s_waitcnt lgkmcnt(0)
    """)
def wave_only(a, w, fn):
    l = a.newlabel("wo")
    a(f"s_cmp_eq_u32 s{sWV}, {w}")
    a(f"s_cbranch_scc0 {l}")
    fn()
    a.label(l)
def code_prefetch(a):
    a(f"""
    s_getpc_b64 s[40:41]
    s_and_b32 s40, s40, 0xffffff00
    s_lshr_b32 s42, s2, 3
    s_lshl_b32 s42, s42, 11
    v_lshlrev_b32 v26, 7, v1
    v_add_u32 v26, s42, v26
    s_mov_b64 exec, 0xffff
    global_load_dword v31, v26, s[40:41]
    s_mov_b64 exec, -1
    """)

def tlb_warm(a):
    G = int(E('TLBG', '16'))
    a(f"""
    s_lshr_b32 s42, s2, 3
    v_lshlrev_b32 v160, 5, v1
    v_add_u32 v160, s42, v160
    v_lshlrev_b32 v160, {G}, v160
    """)
    n_ws = -(-WS_END >> G)
    a(f"s_mov_b64 exec, {(1 << min(64, -(-n_ws // 32))) - 1:#x}")
    a(f"buffer_load_dword v161, v160, s[{sWS}:{sWS+3}], 0 offen sc1")
    a("s_mov_b64 exec, 3")
    for k, (pp, size) in enumerate(((pW1, 640*3456), (pW2, 1728*1280), (pWO, 640*1280), (pOUT, 2048*1280), (pX, 2048*1280), (pWQ, 640*3840))):
        make_srd(a, 44, pp, pp+1, 0, size)
        a(f"buffer_load_dword v{162+k}, v160, s[44:47], 0 offen sc1")
    a("s_mov_b64 exec, -1")
    make_srd(a, 44, pW1, pW1+1, 0, 640*3456)
    a(f"""
    s_mul_i32 s42, s2, 8640
    v_lshlrev_b32 v160, 7, v1
    buffer_load_dword v161, v160, s[44:47], s42 offen sc1
    s_add_u32 s42, s42, 8192
    s_mov_b64 exec, 15
    buffer_load_dword v161, v160, s[44:47], s42 offen sc1
    s_mov_b64 exec, -1
    """)

CODE_KB = 64
def gen_mega():
    a = Asm()
    a(f"""
    s_cmp_ge_u32 s2, 256
    s_cbranch_scc1 L_exit
    s_load_dwordx8 s[84:91], s[0:1], 0
    s_load_dwordx8 s[92:99], s[0:1], 32
    s_load_dwordx2 s[78:79], s[0:1], 64
    """)
    st_rt(a, 0); st(a, 1)
    a(f"""
    v_lshrrev_b32 v2, 6, v0
    s_nop 0
    v_readfirstlane_b32 s{sWV}, v2
    """)
    lane_id(a, 1)
    if not E('NOPF'):
        l = a.newlabel("pf")
        a(f"s_cmp_eq_u32 s{sWV}, 1")
        a(f"s_cbranch_scc0 {l}")
        code_prefetch(a)
        a.label(l)
    a("s_waitcnt lgkmcnt(0)")
    make_srd(a, sWS, pWS, pWS+1, 0, WS_END)
    if E('TLB'):
        l = a.newlabel("tlb")
        a(f"s_cmp_eq_u32 s{sWV}, 3")
        a(f"s_cbranch_scc0 {l}")
        tlb_warm(a)
        a.label(l)
    L = CoreL(a, 'qkv', 'q')
    L.map_tiles("L_repack")
    a(f"""
    s_cmp_ge_u32 s{sWV}, 4
    s_cbranch_scc0 L_q_compute
    """)
    L.loader_setup()
    st(a, 2)
    q = VmQ()
    for s_ in range(PD):
        L.issue_A(s_); q.push(f"A{s_}", 4)
        if not FS: stamp(a, 9 + 2*s_, base=SB)
        L.issue_W(s_); q.push(f"W{s_}", 4)
        if not FS: stamp(a, 10 + 2*s_, base=SB)
    st(a, 3)
    make_srd(a, 44, pDBG, pDBG+1, 0, 256)
    a("v_lshlrev_b32 v71, 2, v1")
    a("v_mov_b32 v70, 0")
    PL = P0L(a, L)
    if E('P0L'):
        PL.issue(); q.push('p0l', 5)
    L.p0l = PL
    L.ldstamps = True
    L.loader_main(q)
    st(a, 8)
    a("s_waitcnt lgkmcnt(0)")
    a("s_barrier")
    wave_only(a, 7, lambda: register_publish(a, 70))
    a("s_barrier")
    a("s_branch L_attn")
    a.label("L_q_compute")
    l = a.newlabel("zc")
    a(f"""
    s_or_b32 s40, s2, s{sWV}
    s_cmp_eq_u32 s40, 0
    s_cbranch_scc0 {l}
    v_mov_b32 v4, 0
    v_mov_b32 v5, 0
    v_mov_b32 v6, 0
    v_mov_b32 v7, 0
    v_lshlrev_b32 v8, 4, v1
    s_mov_b32 s40, {WS_CNT}
    """)
    for j in range(SZ_CNT // 1024):
        a(f"buffer_store_dwordx4 v[4:7], v8, s[{sWS}:{sWS+3}], s40 offen {SC}")
        a("s_add_u32 s40, s40, 1024")
    make_srd(a, 8, pDBG, pDBG+1, 0, 256)
    a(f"""
    s_waitcnt vmcnt(0)
    v_mov_b32 v4, 1
    v_mov_b32 v5, 0
    s_mov_b64 exec, 1
    buffer_store_dword v4, v5, s[8:11], 0 offen sc1
    s_mov_b64 exec, -1
    """)
    a.label(l)
    RP = Repack(a)
    RP.issue(defer=True)
    L.rp = RP
    L.compute_setup()
    make_srd(a, 44, pDBG, pDBG+1, 0, 256)
    a(f"v_lshlrev_b32 v{L.vSt+27}, 2, v1")
    a(f"v_mov_b32 v{L.vSt+26}, 0")
    a(f"""
    s_cmp_ge_u32 s{L.sNt}, 10
    s_cbranch_scc1 L_q_vpath
    """)
    L.addr_qk()
    L.mainloop(True, 2)
    st(a, 3)
    a("s_barrier")
    L.rp.store(wait_after=False)
    L.epilogue_Y('qk')
    a("s_branch L_q_done")
    a.label("L_q_vpath")
    L.addr_v()
    L.mainloop(False, 2)
    st(a, 3)
    a("s_barrier")
    L.rp.store(wait_after=False)
    L.epilogue_X()
    a.label("L_q_done")
    a(f"buffer_load_dword v{L.vSt+26}, v{L.vSt+27}, s[44:47], 0 offen sc1")
    a("s_waitcnt vmcnt(0)")
    a("s_barrier")
    a(f"s_cmp_eq_u32 s{sWV}, 0")
    a("s_cbranch_scc0 L_attn")
    dbg_flag_wait(a, L.vSt + 26, landed=True)
    a(f"s_add_u32 s40, s{L.sNt}, {C_QKV}")
    arrive(a, 40, 4)
    st(a, 4)
    a("s_branch L_attn")
    a.label("L_repack")
    make_srd(a, 44, pDBG, pDBG+1, 0, 256)
    a(f"v_lshlrev_b32 v71, 2, v1")
    a(f"v_mov_b32 v70, 0")
    a(f"""
    s_and_b32 s21, s2, 7
    s_lshr_b32 s21, s21, 1
    s_lshl_b32 s21, s21, 2
    s_lshr_b32 s22, s2, 3
    s_and_b32 s22, s22, 3
    s_add_u32 s21, s21, s22
    """)
    idle_rows(a, 21)
    a("s_waitcnt vmcnt(0)")
    a(f"buffer_load_dword v70, v71, s[44:47], 0 offen sc1")
    a("s_barrier")
    def st_arr():
        dbg_flag_wait(a, 70)
        a(f"s_add_u32 s76, s21, {C_ST}")
        arrive(a, 76, 64)
    wave_only(a, 0, st_arr)
    def regall():
        LANDED[0] = False
        reg_step1(a, 70); reg_step2(a, 70); reg_step3(a, 70); register_publish(a, 70)
    wave_only(a, 2, regall)
    l = a.newlabel("rpl")
    a(f"s_cmp_ge_u32 s{sWV}, 4")
    a(f"s_cbranch_scc1 {l}")
    RP2 = Repack(a)
    RP2.issue()
    RP2.store(wait_after=False)
    a.label(l)
    def fl():
        a(f"buffer_load_dword v70, v71, s[44:47], 0 offen sc1")
        dbg_flag_wait(a, 70)
    wave_only(a, 4, fl)
    a("s_barrier")
    a.label("L_attn")
    emit_attention(a, None)
    S = CoreS(a, 'oproj')
    lane_id(a, 1)
    S.map_tiles()
    a(f"""
    s_cmp_ge_u32 s{sWV}, 4
    s_cbranch_scc0 L_o_compute
    """)
    S.loader_setup()
    q = VmQ()
    for s_ in range(PD):
        S.issue_W(s_); q.push(f"W{s_}", 5)
    lw = a.newlabel("ow")
    a(f"s_cmp_eq_u32 s{sWV}, 4")
    a(f"s_cbranch_scc0 {lw}")
    a(f"s_add_u32 s40, s{sX}, {C_ATT}")
    poll_f(a, 40, 32, 8)
    a.label(lw)
    stx(a, 'o_poll')
    a("s_barrier")
    for s_ in range(PD):
        S.issue_A(s_); q.push(f"A{s_}", 4)
    S.loader_main(q)
    a("s_barrier")
    F1 = CoreL(a, 'ffn1', 'f')
    F1.map_tiles("L_o_ld_idle")
    F1.loader_setup()
    q = VmQ()
    a("s_barrier")
    for s_ in range(PD):
        F1.issue_W(s_); q.push(f"W{s_}", 4)
    a("s_branch L_f1_loader")
    a.label("L_o_ld_idle")
    a("s_barrier")
    a("s_branch L_f2_loader0")
    a.label("L_o_compute")
    lw = a.newlabel("oa")
    a(f"s_cmp_eq_u32 s{sWV}, 0")
    a(f"s_cbranch_scc0 {lw}")
    arrive_f(a, 76, sRk, 4)
    st(a, 8)
    a.label(lw)
    S.compute_setup()
    S.pretouch()
    S.residual_loads()
    a("s_barrier")
    st(a, 9)
    stx(a, 'o_X')
    S.mainloop(tag='o')
    stx(a, 'o_loop')
    S.reduce()
    stx(a, 'o_red')
    a("s_barrier")
    S.epilogue()
    stx(a, 'o_epi')
    a("s_waitcnt vmcnt(0)")
    stx(a, 'o_drain')
    a("s_barrier")
    stx(a, 'o_e2')
    lw = a.newlabel("oa2")
    a(f"s_cmp_eq_u32 s{sWV}, 0")
    a(f"s_cbranch_scc0 {lw}")
    a(f"s_lshr_b32 s40, s{S.sM0}, 7")
    a(f"s_add_u32 s40, s40, {C_OP}")
    a(f"s_lshr_b32 s41, s{S.sM0}, 6")
    a(f"s_and_b32 s41, s41, 1")
    a(f"s_lshl_b32 s41, s41, 3")
    a(f"s_add_u32 s41, s41, s{S.sNt}")
    arrive_f(a, 40, 41, 4)
    st(a, 10)
    a.label(lw)
    lane_id(a, 1)
    F1.map_tiles("L_f2_compute0")
    a("s_branch L_f1_compute")
    a.label("L_f1_loader")
    lw = a.newlabel("fw")
    a(f"s_cmp_eq_u32 s{sWV}, 4")
    a(f"s_cbranch_scc0 {lw}")
    a(f"s_lshr_b32 s40, s{F1.sM0}, 7")
    a(f"s_add_u32 s40, s40, {C_OP}")
    stx(a, 'f_p0')
    poll_f(a, 40, 16, 8)
    a.label(lw)
    stx(a, 'f_poll')
    a("s_barrier")
    for s_ in range(PD):
        F1.issue_A(s_); q.push(f"A{s_}", 4)
    F1.lstats_init()
    F1.loader_main(q)
    a("s_waitcnt lgkmcnt(0)")
    a("s_barrier")
    S2 = CoreS(a, 'ffn2')
    S2.map_tiles()
    S2.loader_setup()
    q = VmQ()
    a("s_barrier")
    if E('PFW2B'):
        for j in range(9):
            wave_only(a, 4 + (j % 4), lambda: w2p_prefetch(a, j))
    for s_ in range(PD):
        S2.issue_W(s_); q.push(f"W{s_}", 5)
    a("s_branch L_f2_loader")
    a.label("L_f2_loader0")
    if E('PFW2') or E('PFW2B'):
        for j in range(9):
            wave_only(a, 4 + (j % 4), lambda: w2p_prefetch(a, j))
    S2.map_tiles()
    S2.loader_setup()
    for s_ in range(PD):
        S2.issue_W(s_)
    a.label("L_f2_loader")
    lw = a.newlabel("gw")
    a(f"s_cmp_eq_u32 s{sWV}, 4")
    a(f"s_cbranch_scc0 {lw}")
    a(f"s_lshr_b32 s40, s{S2.sM0}, 7")
    a(f"s_add_u32 s40, s40, {C_F1}")
    poll_f(a, 40, 14, 8)
    a.label(lw)
    a("s_barrier")
    for s_ in range(PD):
        S2.issue_A(s_); q.push(f"A{s_}", 4)
    S2.loader_main(q)
    if common.STAMPS:
        stamp_flush(a, 0, sWV, base=SB, vt=90)
    a("s_endpgm")
    a.label("L_f1_compute")
    F1.compute_setup()
    F1.addr_f()
    a("s_barrier")
    st(a, 11)
    stx(a, 'f_X')
    F1.mainloop(True, tag='f')
    stx(a, 'f_loop')
    a("s_barrier")
    F1.epilogue_Y('ffn1')
    stx(a, 'f_epi')
    a("s_waitcnt vmcnt(0)")
    stx(a, 'f_drain')
    a("s_barrier")
    lw = a.newlabel("fa")
    a(f"s_cmp_eq_u32 s{sWV}, 0")
    a(f"s_cbranch_scc0 {lw}")
    a(f"s_lshr_b32 s40, s{F1.sM0}, 7")
    a(f"s_add_u32 s40, s40, {C_F1}")
    arrive_f(a, 40, F1.sNt, 4)
    st(a, 12)
    a.label(lw)
    lane_id(a, 1)
    a.label("L_f2_compute0")
    S2.map_tiles()
    S2.compute_setup()
    a("s_barrier")
    st(a, 13)
    stx(a, 'g_X')
    S2.residual_loads()
    S2.mainloop(tag='g')
    stx(a, 'g_loop')
    S2.reduce()
    stx(a, 'g_red')
    S2.epilogue()
    stx(a, 'g_epi')
    if common.STAMPS:
        a("s_waitcnt vmcnt(0)")
        st(a, 14); st_rt(a, 15)
        stamp_flush(a, 0, sWV, base=SB, vt=90)
        if E('DBGOUT'):
            l = a.newlabel("dbo")
            a(f"s_cmp_eq_u32 s2, 9")
            a(f"s_cbranch_scc0 {l}")
            a(f"s_cmp_eq_u32 s{sWV}, 0")
            a(f"s_cbranch_scc0 {l}")
            make_srd(a, 8, pDBG, pDBG+1, 0, 256)
            a("s_mov_b64 exec, 1")
            pairs = [(15, 0), (14, 1), (2, 1), (3, 1), (4, 1), (5, 1), (6, 1), (7, 1), (9, 1), (11, 1), (13, 1)]
            for k, (x, y) in enumerate(pairs):
                a(f"s_sub_u32 s40, s{SB+x}, s{SB+y}")
                a(f"v_mov_b32 v4, s40")
                a(f"v_mov_b32 v5, {16 + 4*k}")
                a(f"buffer_store_dword v4, v5, s[8:11], 0 offen")
            a("s_waitcnt vmcnt(0)")
            a.label(l)
    a.label("L_exit")
    a("s_endpgm")
    return kernel_header(NAME) + a.text() + kernel_desc(NAME, 256, 176, sgpr=102)
```

```python
from common import *
import common, os
E = os.environ.get

NAME = "sequential_preLN__softmax_full_mha__dense_activation_relu__prompt_kernel"
pX, pWQ, pWO, pW1, pW2, pOUT, pDBG, pWS = 84, 86, 88, 92, 94, 96, 98, 78
sWS = 80
sWV = 100
sPoll = 101
SB = 48
STAT = 131072
LDS_TOTAL = 149504
SC = "sc1"
sX, sRk, sLoc = 72, 73, 74
ROLE = LDS_TOTAL - 64
POLL_MAX = 1 << 22

FS = E('FS', '').split(',') if E('FS') else []
FS0 = int(E('FS0', '9'))
def st(a, i):
    if FS and (i >= FS0) and i != 15: return
    stamp(a, i, base=SB)
def st2(a, i): pass
def stx(a, tag):
    if tag in FS: stamp(a, FS0 + FS.index(tag), base=SB)
def st_rt(a, i): stamp_rt(a, i, base=SB)

def lane_id(a, v):
    a(f"v_mbcnt_lo_u32_b32 v{v}, -1, 0")
    a(f"v_mbcnt_hi_u32_b32 v{v}, -1, v{v}")

def arrive(a, sIdx, vt):
    a(f"""
    s_lshl_b32 s{sPoll}, s{sIdx}, 7
    s_add_u32 s{sPoll}, s{sPoll}, {WS_CNT}
    v_mov_b32 v{vt}, s{sPoll}
    v_mov_b32 v{vt+1}, 1
    s_mov_b64 exec, 1
    buffer_atomic_add v{vt+1}, v{vt}, s[{sWS}:{sWS+3}], 0 offen sc1
    s_mov_b64 exec, -1
    """)

def dual(a, instrs):
    l0, l1 = a.newlabel("slow"), a.newlabel("dd")
    a(f"s_cmp_eq_u32 s{sLoc}, 0")
    a(f"s_cbranch_scc1 {l0}")
    for i in instrs: a(i.replace("@SC", E('LOCFL', '') if 'store' in i else ''))
    a(f"s_branch {l1}")
    a.label(l0)
    for i in instrs: a(i.replace("@SC", "sc1"))
    a.label(l1)

def arrive_l(a, sIdx, vt):
    a(f"""
    s_lshl_b32 s{sPoll}, s{sIdx}, 7
    s_add_u32 s{sPoll}, s{sPoll}, {WS_CNT}
    v_mov_b32 v{vt}, s{sPoll}
    v_mov_b32 v{vt+1}, 1
    s_mov_b64 exec, 1
    """)
    dual(a, [f"buffer_atomic_add v{vt+1}, v{vt}, s[{sWS}:{sWS+3}], 0 offen @SC"])
    a("s_mov_b64 exec, -1")

def arrive_f(a, sIdx, sSlot, vt):
    a(f"""
    s_lshl_b32 s{sPoll}, s{sIdx}, 7
    s_add_u32 s{sPoll}, s{sPoll}, {WS_CNT}
    s_lshl_b32 s75, s{sSlot}, 2
    s_add_u32 s{sPoll}, s{sPoll}, s75
    v_mov_b32 v{vt}, s{sPoll}
    v_mov_b32 v{vt+1}, 1
    s_mov_b64 exec, 1
    """)
    dual(a, [f"buffer_store_dword v{vt+1}, v{vt}, s[{sWS}:{sWS+3}], 0 offen @SC"])
    a("s_mov_b64 exec, -1")

def poll_f(a, sIdx, n, vt):
    a(f"""
    s_lshl_b32 s{sPoll}, s{sIdx}, 7
    s_add_u32 s{sPoll}, s{sPoll}, {WS_CNT}
    v_lshlrev_b32 v{vt+1}, 2, v1
    v_add_u32 v{vt+1}, s{sPoll}, v{vt+1}
    v_mov_b32 v{vt+2}, 1
    """)
    poll(a, vt + 1, vt + 2, n, vt)

def poll(a, vOff, vTgt, nl, vt):
    l0, l1 = a.newlabel("poll"), a.newlabel("pollok")
    a(f"s_mov_b64 exec, {(1 << nl) - 1:#x}")
    a(f"s_mov_b32 s{sPoll}, 0")
    a.label(l0)
    a(f"""
    buffer_load_dword v{vt}, v{vOff}, s[{sWS}:{sWS+3}], 0 offen sc1
    s_waitcnt vmcnt(0)
    v_cmp_gt_u32 vcc, v{vTgt}, v{vt}
    s_nop 4
    s_cmp_eq_u64 vcc, 0
    s_cbranch_scc1 {l1}
    s_add_u32 s{sPoll}, s{sPoll}, 1
    s_cmp_gt_u32 s{sPoll}, {POLL_MAX}
    s_cbranch_scc1 {l1}
    s_sleep 1
    s_branch {l0}
    """)
    a.label(l1)
    a("s_mov_b64 exec, -1")

def poll1(a, sIdx, target, vt):
    a(f"""
    s_lshl_b32 s{sPoll}, s{sIdx}, 7
    s_add_u32 s{sPoll}, s{sPoll}, {WS_CNT}
    v_mov_b32 v{vt+1}, s{sPoll}
    v_mov_b32 v{vt+2}, {target}
    """)
    poll(a, vt + 1, vt + 2, 1, vt)

def wave_sum(a, v):
    for sh in (1, 2, 4, 8):
        a(f"v_add_f32_dpp v{v}, v{v}, v{v} row_shr:{sh} row_mask:0xf bank_mask:0xf bound_ctrl:0")
        a("s_nop 1")
    a(f"v_add_f32_dpp v{v}, v{v}, v{v} row_bcast:15 row_mask:0xa bank_mask:0xf")
    a("s_nop 1")
    a(f"v_add_f32_dpp v{v}, v{v}, v{v} row_bcast:31 row_mask:0xc bank_mask:0xf")
    a("s_nop 1")

def p0_rows_issue(a, sXs, s0, vR, vA):
    a(f"""
    s_lshl_b32 s{s0}, s2, 3
    s_lshl_b32 s{s0+1}, s{sWV}, 1
    s_add_u32 s{s0}, s{s0}, s{s0+1}
    s_mul_i32 s{s0+2}, s{s0}, 1280
    v_lshlrev_b32 v{vA}, 4, v1
    v_lshlrev_b32 v{vA+1}, 2, v1
    s_add_u32 s{s0+3}, s{s0+2}, 1280
    buffer_load_dwordx4 {vr(vR,4)}, v{vA}, s[{sXs}:{sXs+3}], s{s0+2} offen
    buffer_load_dword v{vR+4}, v{vA+1}, s[{sXs}:{sXs+3}], s{s0+2} offen offset:1024
    buffer_load_dwordx4 {vr(vR+6,4)}, v{vA}, s[{sXs}:{sXs+3}], s{s0+3} offen
    buffer_load_dword v{vR+5}, v{vA+1}, s[{sXs}:{sXs+3}], s{s0+3} offen offset:1024
    """)
def p0_rows_finish(a, s0, vR, vA):
    for rr in range(2):
        regs = [vR + 6*rr + i for i in range(4)] + [vR + 4 + rr]
        S, Q, U = vA + 4, vA + 5, vA + 6
        for n, r in enumerate(regs):
            a(f"v_lshlrev_b32 v{U}, 16, v{r}")
            a(f"v_and_b32 v{U+1}, 0xffff0000, v{r}")
            if n == 0:
                a(f"v_add_f32 v{S}, v{U}, v{U+1}")
                a(f"v_mul_f32 v{Q}, v{U}, v{U}")
            else:
                a(f"v_add_f32 v{S}, v{S}, v{U}")
                a(f"v_add_f32 v{S}, v{S}, v{U+1}")
                a(f"v_fmac_f32 v{Q}, v{U}, v{U}")
            a(f"v_fmac_f32 v{Q}, v{U+1}, v{U+1}")
        a("s_nop 1")
        for sh in (1, 2, 4, 8):
            a(f"v_add_f32_dpp v{S}, v{S}, v{S} row_shr:{sh} row_mask:0xf bank_mask:0xf bound_ctrl:0")
            a(f"v_add_f32_dpp v{Q}, v{Q}, v{Q} row_shr:{sh} row_mask:0xf bank_mask:0xf bound_ctrl:0")
            a("s_nop 0")
        a(f"v_add_f32_dpp v{S}, v{S}, v{S} row_bcast:15 row_mask:0xa bank_mask:0xf")
        a(f"v_add_f32_dpp v{Q}, v{Q}, v{Q} row_bcast:15 row_mask:0xa bank_mask:0xf")
        a("s_nop 0")
        a(f"v_add_f32_dpp v{S}, v{S}, v{S} row_bcast:31 row_mask:0xc bank_mask:0xf")
        a(f"v_add_f32_dpp v{Q}, v{Q}, v{Q} row_bcast:31 row_mask:0xc bank_mask:0xf")
        a(f"""
        s_nop 0
        v_mul_f32 v{S}, {f32bits(1.0/640):#x}, v{S}
        v_mul_f32 v{Q}, {f32bits(1.0/640):#x}, v{Q}
        v_fma_f32 v{Q}, -v{S}, v{S}, v{Q}
        v_max_f32 v{Q}, 0, v{Q}
        v_add_f32 v{Q}, {f32bits(1e-5):#x}, v{Q}
        v_rsq_f32 v{Q}, v{Q}
        s_nop 0
        v_mov_b32 v{vA+8+2*rr}, v{S}
        v_mov_b32 v{vA+9+2*rr}, v{Q}
        """)
    a(f"""
    s_lshl_b32 s{s0+4}, s{s0}, 3
    s_add_u32 s{s0+4}, s{s0+4}, {WS_ST1}
    v_mov_b32 v{vA+4}, 0
    s_mov_b32 exec_lo, 0
    s_mov_b32 exec_hi, 0x80000000
    buffer_store_dwordx4 {vr(vA+8,4)}, v{vA+4}, s[{sWS}:{sWS+3}], s{s0+4} offen {SC}
    s_mov_b64 exec, -1
    """)
def colsum_issue(a, which, srd, sW4, s0, vC, vA):
    ld = 3840 if which == 'wq' else 3456
    a(f"""
    s_and_b32 s{s0+1}, s2, 7
    s_lshr_b32 s{s0+2}, s2, 3
    s_lshr_b32 s{s0+3}, s{s0+1}, 1
    s_lshl_b32 s{s0+3}, s{s0+3}, 5
    s_add_u32 s{s0+2}, s{s0+2}, s{s0+3}
    s_and_b32 s{s0+1}, s{s0+1}, 1
    s_and_b32 s{s0+3}, s{s0+2}, 15
    s_lshr_b32 s{s0+2}, s{s0+2}, 4
    v_lshrrev_b32 v{vA}, 3, v1
    v_and_b32 v{vA+1}, 7, v1
    v_lshlrev_b32 v{vA+1}, 2, v{vA+1}
    v_mul_u32_u24 v{vA+2}, {ld}, v{vA}
    v_add_u32 v{vA+2}, v{vA+2}, v{vA+1}
    s_lshl_b32 s{s0+4}, s{s0+3}, 6
    s_lshl_b32 s{s0+7}, s{sW4}, 4
    s_add_u32 s{s0+4}, s{s0+4}, s{s0+7}
    s_mul_i32 s{s0+5}, s{s0+1}, {1024 if which == 'wq' else 896}
    s_add_u32 s{s0+5}, s{s0+5}, s{s0+4}
    s_mul_i32 s{s0+7}, s{s0+2}, {80*ld}
    s_lshl_b32 s{s0+4}, s{s0+5}, 1
    s_add_u32 s{s0+7}, s{s0+7}, s{s0+4}
    """)
    for j in range(10):
        a(f"buffer_load_dword v{vC+j}, v{vA+2}, s[{srd}:{srd+3}], s{s0+7} offen")
        if j < 9: a(f"s_add_u32 s{s0+7}, s{s0+7}, {8*ld}")
def colsum_finish(a, which, s0, vC, vA):
    base, ncol = (WS_CS1, 1920) if which == 'wq' else (WS_CS2, 1792)
    A0, A1, U = vA + 4, vA + 5, vA + 6
    for j in range(10):
        if j == 0:
            a(f"v_lshlrev_b32 v{A0}, 16, v{vC}")
            a(f"v_and_b32 v{A1}, 0xffff0000, v{vC}")
        else:
            a(f"v_lshlrev_b32 v{U}, 16, v{vC+j}")
            a(f"v_and_b32 v{U+1}, 0xffff0000, v{vC+j}")
            a(f"v_add_f32 v{A0}, v{A0}, v{U}")
            a(f"v_add_f32 v{A1}, v{A1}, v{U+1}")
    a(f"""
    s_nop 1
    v_add_f32_dpp v{A0}, v{A0}, v{A0} row_ror:8 row_mask:0xf bank_mask:0xf
    v_add_f32_dpp v{A1}, v{A1}, v{A1} row_ror:8 row_mask:0xf bank_mask:0xf
    s_nop 1
    v_mov_b32 v{U}, v{A0}
    v_mov_b32 v{U+1}, v{A1}
    s_nop 1
    v_permlane16_swap_b32 v{A0}, v{U}
    v_permlane16_swap_b32 v{A1}, v{U+1}
    s_nop 1
    v_add_f32 v{A0}, v{A0}, v{U}
    v_add_f32 v{A1}, v{A1}, v{U+1}
    s_nop 0
    v_mov_b32 v{U}, v{A0}
    v_mov_b32 v{U+1}, v{A1}
    s_nop 1
    v_permlane32_swap_b32 v{A0}, v{U}
    v_permlane32_swap_b32 v{A1}, v{U+1}
    s_nop 1
    v_add_f32 v{vA+12}, v{A0}, v{U}
    v_add_f32 v{vA+13}, v{A1}, v{U+1}
    v_lshlrev_b32 v{U}, 3, v1
    s_mul_i32 s{s0+4}, s{s0+2}, {ncol*4}
    s_lshl_b32 s{s0+7}, s{s0+5}, 2
    s_add_u32 s{s0+4}, s{s0+4}, s{s0+7}
    s_add_u32 s{s0+4}, s{s0+4}, {base}
    """)
    lab = a.newlabel("p0skip")
    if which == 'wq':
        a(f"s_cmp_ge_u32 s{s0+5}, 1920")
    else:
        a(f"s_sub_u32 s{s0+7}, 14, s{s0+1}")
        a(f"s_cmp_ge_u32 s{s0+3}, s{s0+7}")
    a(f"s_cbranch_scc1 {lab}")
    a("s_mov_b64 exec, 0xff")
    a(f"buffer_store_dwordx2 {vr(vA+12,2)}, v{U}, s[{sWS}:{sWS+3}], s{s0+4} offen {SC}")
    a("s_mov_b64 exec, -1")
    a.label(lab)
def emit_p0(a):
    sXs, sWq, s0 = 8, 12, 40
    vR, vC, vA = 4, 14, 34
    make_srd(a, sXs, pX, pX+1, 0, 2048*1280)
    make_srd(a, sWq, pWQ, pWQ+1, 0, 640*3840)
    p0_rows_issue(a, sXs, s0, vR, vA)
    a(f"s_mov_b32 s39, s{s0}")
    colsum_issue(a, 'wq', sWq, sWV, s0, vC, vA + 12)
    a("s_waitcnt vmcnt(10)")
    a(f"s_mov_b32 s38, s{s0+4}")
    p0_rows_finish(a, 39, vR, vA) if False else None
    p0_rows_finish_b(a, 39, 38, vR, vA)
    a("s_waitcnt vmcnt(1)")
    colsum_finish(a, 'wq', s0, vC, vA + 12)
def p0_rows_finish_b(a, sRow, sTmp, vR, vA):
    import io
    class Tmp: pass
    for rr in range(2):
        regs = [vR + 6*rr + i for i in range(4)] + [vR + 4 + rr]
        S, Q, U = vA + 4, vA + 5, vA + 6
        for n, r in enumerate(regs):
            a(f"v_lshlrev_b32 v{U}, 16, v{r}")
            a(f"v_and_b32 v{U+1}, 0xffff0000, v{r}")
            if n == 0:
                a(f"v_add_f32 v{S}, v{U}, v{U+1}")
                a(f"v_mul_f32 v{Q}, v{U}, v{U}")
            else:
                a(f"v_add_f32 v{S}, v{S}, v{U}")
                a(f"v_add_f32 v{S}, v{S}, v{U+1}")
                a(f"v_fmac_f32 v{Q}, v{U}, v{U}")
            a(f"v_fmac_f32 v{Q}, v{U+1}, v{U+1}")
        a("s_nop 1")
        for sh in (1, 2, 4, 8):
            a(f"v_add_f32_dpp v{S}, v{S}, v{S} row_shr:{sh} row_mask:0xf bank_mask:0xf bound_ctrl:0")
            a(f"v_add_f32_dpp v{Q}, v{Q}, v{Q} row_shr:{sh} row_mask:0xf bank_mask:0xf bound_ctrl:0")
            a("s_nop 0")
        a(f"v_add_f32_dpp v{S}, v{S}, v{S} row_bcast:15 row_mask:0xa bank_mask:0xf")
        a(f"v_add_f32_dpp v{Q}, v{Q}, v{Q} row_bcast:15 row_mask:0xa bank_mask:0xf")
        a("s_nop 0")
        a(f"v_add_f32_dpp v{S}, v{S}, v{S} row_bcast:31 row_mask:0xc bank_mask:0xf")
        a(f"v_add_f32_dpp v{Q}, v{Q}, v{Q} row_bcast:31 row_mask:0xc bank_mask:0xf")
        a(f"""
        s_nop 0
        v_mul_f32 v{S}, {f32bits(1.0/640):#x}, v{S}
        v_mul_f32 v{Q}, {f32bits(1.0/640):#x}, v{Q}
        v_fma_f32 v{Q}, -v{S}, v{S}, v{Q}
        v_max_f32 v{Q}, 0, v{Q}
        v_add_f32 v{Q}, {f32bits(1e-5):#x}, v{Q}
        v_rsq_f32 v{Q}, v{Q}
        s_nop 0
        v_mov_b32 v{vA+8+2*rr}, v{S}
        v_mov_b32 v{vA+9+2*rr}, v{Q}
        """)
    a(f"""
    s_lshl_b32 s{sTmp}, s{sRow}, 3
    s_add_u32 s{sTmp}, s{sTmp}, {WS_ST1}
    v_mov_b32 v{vA+4}, 0
    s_mov_b32 exec_lo, 0
    s_mov_b32 exec_hi, 0x80000000
    buffer_store_dwordx4 {vr(vA+8,4)}, v{vA+4}, s[{sWS}:{sWS+3}], s{sTmp} offen {SC}
    s_mov_b64 exec, -1
    """)
def dbg_flag_issue(a, vt):
    make_srd(a, 44, pDBG, pDBG+1, 0, 256)
    a(f"v_mov_b32 v{vt+1}, 0")
    a(f"buffer_load_dword v{vt}, v{vt+1}, s[44:47], 0 offen sc1")
def dbg_flag_issue_b(a, vt):
    make_srd(a, 16, pDBG, pDBG+1, 0, 256)
    a(f"v_mov_b32 v{vt+1}, 0")
    a(f"buffer_load_dword v{vt}, v{vt+1}, s[16:19], 0 offen sc1")
def dbg_flag_wait(a, vt, srd=44, landed=False):
    l0, l1, l2 = a.newlabel("dbgp"), a.newlabel("dbgok"), a.newlabel("dbgc")
    a(f"s_mov_b32 s{sPoll}, 0")
    if landed: a(f"s_branch {l2}")
    a.label(l0)
    a("s_waitcnt vmcnt(0)")
    a.label(l2)
    a(f"""
    v_readfirstlane_b32 s75, v{vt}
    s_cmp_lg_u32 s75, 0
    s_cbranch_scc1 {l1}
    s_add_u32 s{sPoll}, s{sPoll}, 1
    s_cmp_gt_u32 s{sPoll}, {POLL_MAX}
    s_cbranch_scc1 {l1}
    s_sleep 1
    buffer_load_dword v{vt}, v{vt+1}, s[{srd}:{srd+3}], 0 offen sc1
    s_branch {l0}
    """)
    a.label(l1)
def dbg_flag_wait_arrive_b(a, cbase, vt):
    dbg_flag_wait_arrive(a, cbase, vt, 16)
def dbg_flag_wait_arrive(a, cbase, vt, srd=44):
    l0, l1 = a.newlabel("dbgp"), a.newlabel("dbgok")
    a(f"s_mov_b32 s{sPoll}, 0")
    a.label(l0)
    a(f"""
    s_waitcnt vmcnt(0)
    v_readfirstlane_b32 s75, v{vt}
    s_cmp_lg_u32 s75, 0
    s_cbranch_scc1 {l1}
    s_add_u32 s{sPoll}, s{sPoll}, 1
    s_cmp_gt_u32 s{sPoll}, {POLL_MAX}
    s_cbranch_scc1 {l1}
    s_sleep 1
    buffer_load_dword v{vt}, v{vt+1}, s[{srd}:{srd+3}], 0 offen sc1
    s_branch {l0}
    """)
    a.label(l1)
    a(f"s_and_b32 s75, s2, 7")
    a(f"s_add_u32 s75, s75, {cbase}")
    arrive(a, 75, vt)

class P0Q:
    vR, vC, vD, vA = 64, 84, 94, 104
    def __init__(self, a, L):
        self.a, self.L = a, L
    def issue(self):
        a, L = self.a, self.L
        vR, vC, vD, vA = self.vR, self.vC, self.vD, self.vA
        sXs, sWq = L.sA, L.sW
        sW1 = 16
        make_srd(a, sW1, pW1, pW1+1, 0, 640*3456)
        a(f"""
        v_lshrrev_b32 v2, 4, v1
        v_and_b32 v3, 15, v1
        s_lshl_b32 s40, s{L.sNt}, 4
        s_add_u32 s40, s40, s{L.sM0}
        s_lshl_b32 s41, s{L.sLw}, 2
        s_add_u32 s40, s40, s41
        s_cmp_lt_u32 s{L.sNt}, 8
        s_cselect_b32 s40, s40, 4096
        v_add_u32 v{vA}, s40, v2
        v_mul_u32_u24 v{vA+1}, 1280, v{vA}
        v_lshlrev_b32 v{vA+2}, 4, v3
        v_add_u32 v{vA+1}, v{vA+1}, v{vA+2}
        """)
        for j in range(5):
            a(f"buffer_load_dwordx4 {vr(vR+4*j,4)}, v{vA+1}, s[{sXs}:{sXs+3}], 0 offen offset:{256*j}")
        a(f"""
        s_lshr_b32 s41, s{L.sM0}, 7
        s_mul_i32 s42, s41, {40*3840}
        s_lshl_b32 s43, s{L.sLw}, 5
        s_add_u32 s43, s43, s{L.sN0}
        s_lshl_b32 s40, s43, 1
        s_add_u32 s42, s42, s40
        v_mul_u32_u24 v{vA+2}, 3840, v2
        v_lshlrev_b32 v{vA+3}, 2, v3
        v_add_u32 v{vA+2}, v{vA+2}, v{vA+3}
        """)
        for j in range(10):
            a(f"buffer_load_dword v{vC+j}, v{vA+2}, s[{sWq}:{sWq+3}], s42 offen")
            if j < 9: a(f"s_add_u32 s42, s42, {4*3840}")
        a(f"""
        s_mul_i32 s42, s41, {40*3456}
        s_add_u32 s42, s42, s40
        s_cmp_lt_u32 s{L.sNt}, 14
        s_cselect_b32 s42, s42, 0x7f000000
        v_mul_u32_u24 v{vA+4}, 3456, v2
        v_add_u32 v{vA+4}, v{vA+4}, v{vA+3}
        """)
        for j in range(10):
            a(f"buffer_load_dword v{vD+j}, v{vA+4}, s[{sW1}:{sW1+3}], s42 offen")
            if j < 9: a(f"s_add_u32 s42, s42, {4*3456}")
    def rows(self):
        a, L = self.a, self.L
        vR, vA = self.vR, self.vA
        S, Q, U = vA + 5, vA + 6, vA + 8
        for n in range(20):
            r = vR + n
            u = U + 2*(n & 1)
            a(f"v_lshlrev_b32 v{u}, 16, v{r}")
            a(f"v_and_b32 v{u+1}, 0xffff0000, v{r}")
            if n == 0:
                a(f"v_add_f32 v{S}, v{u}, v{u+1}")
                a(f"v_mul_f32 v{Q}, v{u}, v{u}")
            else:
                a(f"v_add_f32 v{S}, v{S}, v{u}")
                a(f"v_fmac_f32 v{Q}, v{u}, v{u}")
                a(f"v_add_f32 v{S}, v{S}, v{u+1}")
            a(f"v_fmac_f32 v{Q}, v{u+1}, v{u+1}")
        a("s_nop 1")
        for sh in (1, 2, 4, 8):
            a(f"v_add_f32_dpp v{S}, v{S}, v{S} row_shr:{sh} row_mask:0xf bank_mask:0xf bound_ctrl:0")
            a(f"v_add_f32_dpp v{Q}, v{Q}, v{Q} row_shr:{sh} row_mask:0xf bank_mask:0xf bound_ctrl:0")
            a("s_nop 0")
        a(f"""
        v_mul_f32 v{S}, {f32bits(1.0/640):#x}, v{S}
        v_mul_f32 v{Q}, {f32bits(1.0/640):#x}, v{Q}
        v_fma_f32 v{Q}, -v{S}, v{S}, v{Q}
        v_max_f32 v{Q}, 0, v{Q}
        v_add_f32 v{Q}, {f32bits(1e-5):#x}, v{Q}
        v_rsq_f32 v{Q}, v{Q}
        v_mov_b32 v{U}, v{S}
        v_lshlrev_b32 v{U+2}, 3, v{vA}
        v_mov_b32 v{U+3}, 0x7fffff00
        v_cmp_gt_u32 vcc, 2048, v{vA}
        v_mov_b32 v{U+1}, v{Q}
        v_cndmask_b32 v{U+2}, v{U+3}, v{U+2}, vcc
        s_mov_b32 s40, {WS_ST1}
        s_mov_b32 exec_lo, 0x80008000
        s_mov_b32 exec_hi, 0x80008000
        buffer_store_dwordx2 {vr(U,2)}, v{U+2}, s[{sWS}:{sWS+3}], s40 offen {SC}
        s_mov_b64 exec, -1
        """)
    def cols(self, which):
        a, L = self.a, self.L
        vA = self.vA
        regs, base, ncol, lim = (self.vC, WS_CS1, 1920, 15) if which == 0 else (self.vD, WS_CS2, 1792, 14)
        U = vA + 8
        A0, A1 = vA + 5, vA + 6
        for j in range(10):
            u = U + 2*(j & 1)
            if j == 0:
                a(f"v_lshlrev_b32 v{A0}, 16, v{regs}")
                a(f"v_and_b32 v{A1}, 0xffff0000, v{regs}")
            else:
                a(f"v_lshlrev_b32 v{u}, 16, v{regs+j}")
                a(f"v_and_b32 v{u+1}, 0xffff0000, v{regs+j}")
                a(f"v_add_f32 v{A0}, v{A0}, v{u}")
                a(f"v_add_f32 v{A1}, v{A1}, v{u+1}")
        a(f"""
        s_nop 0
        v_mov_b32 v{U}, v{A0}
        v_mov_b32 v{U+1}, v{A1}
        s_nop 1
        v_permlane16_swap_b32 v{A0}, v{U}
        v_permlane16_swap_b32 v{A1}, v{U+1}
        s_nop 1
        v_add_f32 v{A0}, v{A0}, v{U}
        v_add_f32 v{A1}, v{A1}, v{U+1}
        s_nop 0
        v_mov_b32 v{U}, v{A0}
        v_mov_b32 v{U+1}, v{A1}
        s_nop 1
        v_permlane32_swap_b32 v{A0}, v{U}
        v_permlane32_swap_b32 v{A1}, v{U+1}
        s_nop 1
        v_add_f32 v{U+4}, v{A0}, v{U}
        v_add_f32 v{U+5}, v{A1}, v{U+1}
        v_lshlrev_b32 v{U}, 3, v3
        s_mul_i32 s42, s41, {ncol*4}
        s_lshl_b32 s40, s43, 2
        s_add_u32 s42, s42, s40
        s_add_u32 s42, s42, {base}
        s_cmp_lt_u32 s{L.sNt}, {lim}
        s_cselect_b32 s42, s42, 0x7f000000
        s_mov_b64 exec, 0xffff
        buffer_store_dwordx2 {vr(U+4,2)}, v{U}, s[{sWS}:{sWS+3}], s42 offen {SC}
        s_mov_b64 exec, -1
        s_nop 1
        """)
def emit_p0r(a, L):
    sXs, vR, vA = 8, 146, 132
    make_srd(a, sXs, pX, pX+1, 0, 2048*1280)
    a(f"""
    v_lshrrev_b32 v166, 4, v1
    v_and_b32 v167, 15, v1
    s_lshl_b32 s75, s{L.sNt}, 4
    s_add_u32 s75, s75, s{L.sM0}
    s_lshl_b32 s76, s{sWV}, 2
    s_add_u32 s75, s75, s76
    s_cmp_lt_u32 s{L.sNt}, 8
    s_cselect_b32 s75, s75, 4096
    v_add_u32 v{vA}, s75, v166
    v_mul_u32_u24 v{vA+1}, 1280, v{vA}
    v_lshlrev_b32 v{vA+2}, 4, v167
    v_add_u32 v{vA+1}, v{vA+1}, v{vA+2}
    """)
    for j in range(5):
        a(f"buffer_load_dwordx4 {vr(vR+4*j,4)}, v{vA+1}, s[{sXs}:{sXs+3}], 0 offen offset:{256*j}")
def emit_p0r_finish(a, L, extra=0):
    vR, vA = 146, 132
    S, Q, S2, Q2, U = vA + 4, vA + 5, vA + 6, vA + 7, vA + 8
    for j in range(5):
        a(f"s_waitcnt vmcnt({4 - j + extra})")
        for n in range(4):
            r = vR + 4*j + n
            u = U + 2*(n & 1)
            a(f"v_lshlrev_b32 v{u}, 16, v{r}")
            a(f"v_and_b32 v{u+1}, 0xffff0000, v{r}")
            if j == 0 and n == 0:
                a(f"v_mov_b32 v{S}, v{u}")
                a(f"v_mul_f32 v{Q}, v{u}, v{u}")
                a(f"v_mov_b32 v{S2}, v{u+1}")
                a(f"v_mul_f32 v{Q2}, v{u+1}, v{u+1}")
            else:
                a(f"v_add_f32 v{S}, v{S}, v{u}")
                a(f"v_fmac_f32 v{Q}, v{u}, v{u}")
                a(f"v_add_f32 v{S2}, v{S2}, v{u+1}")
                a(f"v_fmac_f32 v{Q2}, v{u+1}, v{u+1}")
    a(f"v_add_f32 v{S}, v{S}, v{S2}")
    a(f"v_add_f32 v{Q}, v{Q}, v{Q2}")
    a("s_nop 1")
    for sh in (1, 2, 4, 8):
        a(f"v_add_f32_dpp v{S}, v{S}, v{S} row_shr:{sh} row_mask:0xf bank_mask:0xf bound_ctrl:0")
        a(f"v_add_f32_dpp v{Q}, v{Q}, v{Q} row_shr:{sh} row_mask:0xf bank_mask:0xf bound_ctrl:0")
        a("s_nop 0")
    a(f"""
    v_mul_f32 v{S}, {f32bits(1.0/640):#x}, v{S}
    v_mul_f32 v{Q}, {f32bits(1.0/640):#x}, v{Q}
    v_fma_f32 v{Q}, -v{S}, v{S}, v{Q}
    v_max_f32 v{Q}, 0, v{Q}
    v_add_f32 v{Q}, {f32bits(1e-5):#x}, v{Q}
    v_rsq_f32 v{Q}, v{Q}
    v_mov_b32 v{U}, v{S}
    v_lshlrev_b32 v{U+2}, 3, v{vA}
    v_mov_b32 v{U+3}, 0x7fffff00
    v_cmp_gt_u32 vcc, 2048, v{vA}
    v_mov_b32 v{U+1}, v{Q}
    v_cndmask_b32 v{U+2}, v{U+3}, v{U+2}, vcc
    s_mov_b32 s75, {WS_ST1}
    s_mov_b32 exec_lo, 0x80008000
    s_mov_b32 exec_hi, 0x80008000
    buffer_store_dwordx2 {vr(U,2)}, v{U+2}, s[{sWS}:{sWS+3}], s75 offen {SC}
    s_mov_b64 exec, -1
    """)
def idle_rows(a, sMt):
    sXs, vR, vA = 8, 72, 4
    NP = 2 if E('P0L') else 4
    make_srd(a, sXs, pX, pX+1, 0, 2048*1280)
    a(f"""
    v_lshrrev_b32 v2, 4, v1
    v_and_b32 v3, 15, v1
    s_lshl_b32 s40, s{sMt}, 7
    s_lshl_b32 s41, s{sWV}, {3 if E('P0L') else 4}
    s_add_u32 s40, s40, s41
    v_add_u32 v{vA}, s40, v2
    v_mul_u32_u24 v{vA+1}, 1280, v{vA}
    v_lshlrev_b32 v{vA+2}, 4, v3
    v_add_u32 v{vA+1}, v{vA+1}, v{vA+2}
    """)
    for p in range(NP):
        a(f"s_mov_b32 s41, {p * 4 * 1280}")
        for j in range(5):
            a(f"buffer_load_dwordx4 {vr(vR + 20*p + 4*j, 4)}, v{vA+1}, s[{sXs}:{sXs+3}], s41 offen offset:{256*j}")
    S, Q, S2, Q2, U = vA + 4, vA + 5, vA + 6, vA + 7, vA + 8
    for p in range(NP):
        a(f"s_waitcnt vmcnt({(NP - 1 - p) * 5 + p})")
        for n in range(20):
            r = vR + 20*p + n
            u = U + 2*(n & 1)
            a(f"v_lshlrev_b32 v{u}, 16, v{r}")
            a(f"v_and_b32 v{u+1}, 0xffff0000, v{r}")
            if n == 0:
                a(f"v_mov_b32 v{S}, v{u}")
                a(f"v_mul_f32 v{Q}, v{u}, v{u}")
                a(f"v_mov_b32 v{S2}, v{u+1}")
                a(f"v_mul_f32 v{Q2}, v{u+1}, v{u+1}")
            else:
                a(f"v_add_f32 v{S}, v{S}, v{u}")
                a(f"v_fmac_f32 v{Q}, v{u}, v{u}")
                a(f"v_add_f32 v{S2}, v{S2}, v{u+1}")
                a(f"v_fmac_f32 v{Q2}, v{u+1}, v{u+1}")
        a(f"v_add_f32 v{S}, v{S}, v{S2}")
        a(f"v_add_f32 v{Q}, v{Q}, v{Q2}")
        a("s_nop 1")
        for sh in (1, 2, 4, 8):
            a(f"v_add_f32_dpp v{S}, v{S}, v{S} row_shr:{sh} row_mask:0xf bank_mask:0xf bound_ctrl:0")
            a(f"v_add_f32_dpp v{Q}, v{Q}, v{Q} row_shr:{sh} row_mask:0xf bank_mask:0xf bound_ctrl:0")
            a("s_nop 0")
        a(f"""
        v_mul_f32 v{S}, {f32bits(1.0/640):#x}, v{S}
        v_mul_f32 v{Q}, {f32bits(1.0/640):#x}, v{Q}
        v_fma_f32 v{Q}, -v{S}, v{S}, v{Q}
        v_max_f32 v{Q}, 0, v{Q}
        v_add_f32 v{Q}, {f32bits(1e-5):#x}, v{Q}
        v_rsq_f32 v{Q}, v{Q}
        v_mov_b32 v{U+4}, v{S}
        v_add_u32 v{U+2}, {4*p}, v{vA}
        v_lshlrev_b32 v{U+2}, 3, v{U+2}
        v_mov_b32 v{U+5}, v{Q}
        s_mov_b32 s41, {WS_ST1}
        s_mov_b32 exec_lo, 0x80008000
        s_mov_b32 exec_hi, 0x80008000
        buffer_store_dwordx2 {vr(U+4,2)}, v{U+2}, s[{sWS}:{sWS+3}], s41 offen {SC}
        s_mov_b64 exec, -1
        s_nop 1
        """)

class P0L:
    vR, vA = 116, 136
    def __init__(self, a, L): self.a, self.L = a, L
    def issue(self):
        a, L = self.a, self.L
        vR, vA = self.vR, self.vA
        a(f"""
        v_lshrrev_b32 v{vA+2}, 4, v1
        v_and_b32 v{vA+3}, 15, v1
        s_lshl_b32 s75, s{L.sNt}, 4
        s_add_u32 s75, s75, s{L.sM0}
        s_add_u32 s75, s75, 64
        s_lshl_b32 s76, s{L.sLw}, 2
        s_add_u32 s75, s75, s76
        s_cmp_lt_u32 s{L.sNt}, 4
        s_cselect_b32 s75, s75, 4096
        v_add_u32 v{vA}, s75, v{vA+2}
        v_mul_u32_u24 v{vA+1}, 1280, v{vA}
        v_lshlrev_b32 v{vA+3}, 4, v{vA+3}
        v_add_u32 v{vA+1}, v{vA+1}, v{vA+3}
        """)
        for j in range(5):
            a(f"buffer_load_dwordx4 {vr(vR+4*j,4)}, v{vA+1}, s[{L.sA}:{L.sA+3}], 0 offen offset:{256*j}")
    def finish(self):
        a = self.a
        vR, vA = self.vR, self.vA
        S, Q, S2, Q2, U = vA + 4, vA + 5, vA + 6, vA + 7, vA + 8
        for n in range(20):
            r = vR + n
            u = U + 2*(n & 1)
            a(f"v_lshlrev_b32 v{u}, 16, v{r}")
            a(f"v_and_b32 v{u+1}, 0xffff0000, v{r}")
            if n == 0:
                a(f"v_mov_b32 v{S}, v{u}")
                a(f"v_mul_f32 v{Q}, v{u}, v{u}")
                a(f"v_mov_b32 v{S2}, v{u+1}")
                a(f"v_mul_f32 v{Q2}, v{u+1}, v{u+1}")
            else:
                a(f"v_add_f32 v{S}, v{S}, v{u}")
                a(f"v_fmac_f32 v{Q}, v{u}, v{u}")
                a(f"v_add_f32 v{S2}, v{S2}, v{u+1}")
                a(f"v_fmac_f32 v{Q2}, v{u+1}, v{u+1}")
        a(f"v_add_f32 v{S}, v{S}, v{S2}")
        a(f"v_add_f32 v{Q}, v{Q}, v{Q2}")
        a("s_nop 1")
        for sh in (1, 2, 4, 8):
            a(f"v_add_f32_dpp v{S}, v{S}, v{S} row_shr:{sh} row_mask:0xf bank_mask:0xf bound_ctrl:0")
            a(f"v_add_f32_dpp v{Q}, v{Q}, v{Q} row_shr:{sh} row_mask:0xf bank_mask:0xf bound_ctrl:0")
            a("s_nop 0")
        a(f"""
        v_mul_f32 v{S}, {f32bits(1.0/640):#x}, v{S}
        v_mul_f32 v{Q}, {f32bits(1.0/640):#x}, v{Q}
        v_fma_f32 v{Q}, -v{S}, v{S}, v{Q}
        v_max_f32 v{Q}, 0, v{Q}
        v_add_f32 v{Q}, {f32bits(1e-5):#x}, v{Q}
        v_rsq_f32 v{Q}, v{Q}
        v_mov_b32 v{U}, v{S}
        v_lshlrev_b32 v{U+2}, 3, v{vA}
        v_mov_b32 v{U+3}, 0x7fffff00
        v_cmp_gt_u32 vcc, 2048, v{vA}
        v_mov_b32 v{U+1}, v{Q}
        v_cndmask_b32 v{U+2}, v{U+3}, v{U+2}, vcc
        s_mov_b32 s75, {WS_ST1}
        s_mov_b32 exec_lo, 0x80008000
        s_mov_b32 exec_hi, 0x80008000
        buffer_store_dwordx2 {vr(U,2)}, v{U+2}, s[{sWS}:{sWS+3}], s75 offen {SC}
        s_mov_b64 exec, -1
        """)

def p0r_arrive(a, L, vt):
    ok, skip = a.newlabel("fok"), a.newlabel("fsk")
    dbg_flag_wait(a, vt, landed=True)
    a(f"s_cmp_lt_u32 s{L.sNt}, 4")
    a(f"s_cbranch_scc0 {skip}")
    a(f"s_lshr_b32 s76, s{L.sM0}, 7")
    a(f"s_add_u32 s76, s76, {C_ST}")
    arrive(a, 76, vt - 2)
    a.label(skip)

def qkv_prefetch(a, L):
    make_srd(a, 12, pWQ, pWQ+1, 0, 640*3840)
    make_srd(a, 8, pX, pX+1, 0, 2048*1280)
    fl = E('QPF_FL', 'sc1')
    a(f"""
    s_lshr_b32 s40, s2, 3
    s_and_b32 s41, s2, 1
    v_and_b32 v2, 15, v1
    v_lshrrev_b32 v3, 4, v1
    v_lshlrev_b32 v2, 7, v2
    v_mul_u32_u24 v3, 3840, v3
    v_add_u32 v4, v2, v3
    s_mul_i32 s42, s40, {20*3840}
    s_lshl_b32 s43, s41, 11
    s_add_u32 s42, s42, s43
    s_mul_i32 s43, s{sWV}, {4*3840}
    s_add_u32 s42, s42, s43
    buffer_load_dword v162, v4, s[12:15], s42 offen {fl}
    """)
    l = a.newlabel("qpf")
    a(f"""
    s_cmp_eq_u32 s{sWV}, 0
    s_cbranch_scc0 {l}
    s_add_u32 s42, s42, {16*3840}
    buffer_load_dword v162, v4, s[12:15], s42 offen {fl}
    """)
    a.label(l)
    l = a.newlabel("qpf")
    a(f"""
    s_cmp_eq_u32 s{sWV}, 0
    s_cbranch_scc1 {l}
    s_and_b32 s41, s2, 7
    s_lshr_b32 s41, s41, 1
    s_lshl_b32 s41, s41, 5
    s_add_u32 s41, s41, s40
    s_mul_i32 s42, s41, 20480
    s_sub_u32 s43, s{sWV}, 1
    s_lshl_b32 s43, s43, 13
    s_add_u32 s42, s42, s43
    v_lshlrev_b32 v4, 7, v1
    buffer_load_dword v162, v4, s[8:11], s42 offen {fl}
    """)
    a.label(l)

def p0q_arrive(a, L, vt):
    ok = a.newlabel("fok")
    a(f"v_readfirstlane_b32 s75, v{vt}")
    a("s_cmp_lg_u32 s75, 0")
    a(f"s_cbranch_scc1 {ok}")
    dbg_flag_wait(a, vt)
    a.label(ok)
    a(f"""
    s_lshr_b32 s75, s{L.sM0}, 7
    s_add_u32 s75, s75, {C_ST}
    s_add_u32 s76, s{L.sNt}, {C_CS1}
    s_add_u32 s77, s{L.sNt}, {C_CS2}
    v_mov_b32 v{vt-1}, s75
    v_writelane_b32 v{vt-1}, s76, 1
    v_writelane_b32 v{vt-1}, s77, 2
    s_nop 0
    v_lshlrev_b32 v{vt-1}, 7, v{vt-1}
    v_add_u32 v{vt-1}, {WS_CNT}, v{vt-1}
    v_mov_b32 v{vt-2}, 1
    s_cmp_lt_u32 s{L.sNt}, 8
    s_cselect_b32 s75, 1, 0
    s_or_b32 s75, s75, 2
    s_cmp_lt_u32 s{L.sNt}, 14
    s_cselect_b32 s76, 4, 0
    s_or_b32 s75, s75, s76
    s_mov_b32 exec_lo, s75
    s_mov_b32 exec_hi, 0
    buffer_atomic_add v{vt-2}, v{vt-1}, s[{sWS}:{sWS+3}], 0 offen sc1
    s_mov_b64 exec, -1
    """)

def w2p_prefetch(a, j):
    a(f"""
    s_mul_i32 s75, s{sRk}, {SZ_W2P // 32}
    s_add_u32 s75, s75, {WS_W2P + j * 8192}
    v_lshlrev_b32 v61, 7, v1
    buffer_load_dword v60, v61, s[{sWS}:{sWS+3}], s75 offen sc1
    """)

def w2_first_prefetch(a, c):
    NST = 14
    a(f"""
    s_and_b32 s75, s{sRk}, 3
    s_mul_i32 s75, s75, 3
    s_lshr_b32 s76, s{sRk}, 2
    s_lshl_b32 s77, s76, 1
    s_add_u32 s75, s75, s77
    s_cmp_ge_u32 s75, {NST}
    s_cselect_b32 s77, {NST}, 0
    s_sub_u32 s75, s75, s77
    s_cmp_ge_u32 s75, {NST}
    s_cselect_b32 s77, {NST}, 0
    s_sub_u32 s75, s75, s77
    s_mul_i32 s76, s76, {NST * 20480}
    s_add_u32 s76, s76, {WS_W2P}
    s_mul_i32 s77, s{c.sLw}, 5120
    s_add_u32 s76, s76, s77
    s_mul_i32 s77, s75, 20480
    s_add_u32 s77, s77, s76
    v_lshlrev_b32 v61, 7, v1
    s_mov_b32 exec_lo, -1
    s_mov_b32 exec_hi, 0xff
    buffer_load_dword v60, v61, s[{sWS}:{sWS+3}], s77 offen sc1
    s_add_u32 s75, s75, 1
    s_cmp_eq_u32 s75, {NST}
    s_cselect_b32 s75, 0, s75
    s_mul_i32 s77, s75, 20480
    s_add_u32 s77, s77, s76
    buffer_load_dword v60, v61, s[{sWS}:{sWS+3}], s77 offen sc1
    s_mov_b64 exec, -1
    """)

class Repack:
    aB, vD, vT = 28, 110, 88
    sWo, sW2, sW1 = 12, 16, 40
    def __init__(self, a): self.a = a
    def issue(self, defer=False):
        a = self.a
        aB, vD, T = self.aB, self.vD, self.vT
        a(f"""
        s_mul_i32 s75, s2, 768
        s_sub_u32 s76, s{sWV}, 4
        s_lshl_b32 s76, s76, 6
        s_add_u32 s75, s75, s76
        v_add_u32 v{T}, s75, v1
        """)
        for r in range(3):
            g, it, sg, rho, c, row, nt, st_, x = T+1, T+2, T+3, T+4, T+5, T+6, T+7, T+8, T+9
            a(f"""
            v_add_u32 v{g}, {256*r}, v{T}
            s_mov_b32 s75, {(1 << 32) // 1280 + 1:#x}
            v_mul_hi_u32 v{it}, v{g}, s75
            v_mul_u32_u24 v{sg}, 1280, v{it}
            v_sub_u32 v{sg}, v{g}, v{sg}
            v_mul_u32_u24 v{rho}, 0xcccd, v{sg}
            v_lshrrev_b32 v{rho}, 19, v{rho}
            v_mul_u32_u24 v{c}, 10, v{rho}
            v_sub_u32 v{c}, v{sg}, v{c}
            v_and_b32 v{row}, 0x73, v{rho}
            v_and_b32 v{x}, 4, v{rho}
            v_lshlrev_b32 v{x}, 1, v{x}
            v_or_b32 v{row}, v{row}, v{x}
            v_and_b32 v{x}, 8, v{rho}
            v_lshrrev_b32 v{x}, 1, v{x}
            v_or_b32 v{row}, v{row}, v{x}
            v_lshlrev_b32 v{vD+r}, 4, v{g}
            v_cmp_gt_u32 vcc, 40, v{it}
            v_subrev_u32 v{x}, 40, v{it}
            s_nop 0
            v_cndmask_b32 v{x}, v{x}, v{it}, vcc
            v_mul_u32_u24 v{nt}, 0x4925, v{x}
            v_mul_u32_u24 v{st_}, 0xcccd, v{x}
            v_cndmask_b32 v{nt}, v{nt}, v{st_}, vcc
            v_lshrrev_b32 v{nt}, 18, v{nt}
            v_mov_b32 v{st_}, 14
            v_cndmask_b32 v{st_}, v{st_}, 5, vcc
            v_mul_u32_u24 v{st_}, v{st_}, v{nt}
            v_sub_u32 v{st_}, v{x}, v{st_}
            v_lshlrev_b32 v{st_}, 7, v{st_}
            v_add_u32 v{row}, v{row}, v{st_}
            v_mul_u32_u24 v{row}, 1280, v{row}
            v_mul_u32_u24 v{nt}, 160, v{nt}
            v_lshlrev_b32 v{c}, 4, v{c}
            v_add3_u32 v{row}, v{row}, v{nt}, v{c}
            v_mov_b32 v{x}, 0x7fffff00
            v_cndmask_b32 v{nt}, v{x}, v{row}, vcc
            v_cndmask_b32 v{row}, v{row}, v{x}, vcc
            v_cmp_gt_u32 vcc, 152, v{it}
            s_nop 1
            v_cndmask_b32 v{vD+r}, v{x}, v{vD+r}, vcc
            """)
            a(f"v_mov_b32 v{100+2*r}, v{nt}")
            a(f"v_mov_b32 v{101+2*r}, v{row}")
            a(f"v_mov_b32 v{106+r}, v{it}")
        if defer: return
        self.loads()
    def loads(self, base=100, tmp=None):
        a = self.a
        aB, T = self.aB, (self.vT if tmp is None else tmp)
        if base != 100:
            for k in range(9): a(f"v_accvgpr_read_b32 v{base+k}, a{40+k}")
        self.sWo, self.sW2, self.sW1 = 8, 12, 8
        make_srd(a, self.sWo, pWO, pWO+1, 0, 640*1280)
        make_srd(a, self.sW2, pW2, pW2+1, 0, 1728*1280)
        for r in range(3):
            la, lb = a.newlabel("rpa"), a.newlabel("rpb")
            a(f"""
            v_cmp_gt_u32 vcc, 40, v{base+6+r}
            s_nop 4
            s_mov_b64 s[76:77], vcc
            s_mov_b64 exec, vcc
            s_cbranch_execz {la}
            buffer_load_dwordx4 {ar(aB+4*r,4)}, v{base+2*r}, s[{self.sWo}:{self.sWo+3}], 0 offen
            {la}:
            s_not_b64 exec, s[76:77]
            s_cbranch_execz {lb}
            buffer_load_dwordx4 {ar(aB+4*r,4)}, v{base+1+2*r}, s[{self.sW2}:{self.sW2+3}], 0 offen
            {lb}:
            s_mov_b64 exec, -1
            """)
        make_srd(a, self.sW1, pW1, pW1+1, 0, 640*3456)
        a(f"""
        s_mul_i32 s75, s2, 8640
        s_sub_u32 s76, s{sWV}, 4
        s_mul_i32 s76, s76, 2176
        s_add_u32 s75, s75, s76
        v_lshlrev_b32 v{T}, 7, v1
        s_mov_b64 exec, 0x1ffff
        buffer_load_dword v113, v{T}, s[{self.sW1}:{self.sW1+3}], s75 offen sc1
        s_mov_b64 exec, -1
        """)
    def store(self, wait_after=True, pre="s_waitcnt vmcnt(0)"):
        a = self.a
        a(pre)
        a(f"s_mov_b32 s75, {WS_WOP}")
        for r in range(3):
            a(f"buffer_store_dwordx4 {ar(self.aB+4*r,4)}, v{self.vD+r}, s[{sWS}:{sWS+3}], s75 offen {SC}")
        if wait_after: a("s_waitcnt vmcnt(0)")
        else: a("s_nop 1")

class CoreL:
    sA, sW, sO = 8, 12, 16
    sM0, sN0, sT0, sT1, sT2, sT3 = 21, 22, 23, 24, 25, 26
    sLw, sSlot, sAoff, sWoff, sLds = 20, 28, 29, 30, 31
    sWm, sWn, sNt, sSeq, sSeqW = 32, 33, 34, 35, 36
    vAe, vAo, vWo = 4, 5, 6
    NST = 10
    def __init__(self, a, mode, tag):
        self.a, self.mode, self.tag = a, mode, tag
        self.qkv = mode == 'qkv'
        self.LDW = 3840 if self.qkv else 3456
    def map_tiles(self, idle_label):
        a, c = self.a, self
        if not c.qkv:
            a(f"""
            s_and_b32 s{c.sT3}, s{sRk}, 1
            s_lshl_b32 s{c.sM0}, s{sX}, 1
            s_add_u32 s{c.sM0}, s{c.sM0}, s{c.sT3}
            s_lshl_b32 s{c.sM0}, s{c.sM0}, 7
            s_lshr_b32 s{c.sNt}, s{sRk}, 1
            s_cmp_ge_u32 s{c.sNt}, 14
            s_cbranch_scc1 {idle_label}
            s_lshl_b32 s{c.sN0}, s{c.sNt}, 7
            s_mul_i32 s{c.sSeq}, s{c.sNt}, 3
            s_mul_i32 s{c.sT0}, s{c.sT3}, 5
            s_add_u32 s{c.sSeq}, s{c.sSeq}, s{c.sT0}
            s_mul_i32 s{c.sT0}, s{c.sSeq}, 0xcccd
            s_lshr_b32 s{c.sT0}, s{c.sT0}, 19
            s_mul_i32 s{c.sT0}, s{c.sT0}, 10
            s_sub_u32 s{c.sSeq}, s{c.sSeq}, s{c.sT0}
            """)
            if E('NOROTL'): a(f"s_mov_b32 s{c.sSeq}, 0")
            return
        NT_PER = 8 if c.qkv else 7
        NT_TOT = 15 if c.qkv else 14
        a(f"""
        s_and_b32 s{c.sT0}, s2, 7
        s_lshr_b32 s{c.sT1}, s2, 3
        s_lshr_b32 s{c.sT2}, s{c.sT0}, 1
        s_lshl_b32 s{c.sT2}, s{c.sT2}, 2
        s_and_b32 s{c.sT3}, s{c.sT1}, 3
        s_add_u32 s{c.sM0}, s{c.sT2}, s{c.sT3}
        s_lshl_b32 s{c.sM0}, s{c.sM0}, 7
        s_and_b32 s{c.sT0}, s{c.sT0}, 1
        s_mul_i32 s{c.sT0}, s{c.sT0}, {NT_PER}
        s_lshr_b32 s{c.sT1}, s{c.sT1}, 2
        s_add_u32 s{c.sNt}, s{c.sT0}, s{c.sT1}
        s_cmp_ge_u32 s{c.sT1}, {NT_PER}
        s_cbranch_scc1 {idle_label}
        s_cmp_ge_u32 s{c.sNt}, {NT_TOT}
        s_cbranch_scc1 {idle_label}
        s_lshl_b32 s{c.sN0}, s{c.sNt}, 7
        s_mul_i32 s{c.sSeq}, s{c.sT3}, 3
        s_add_u32 s{c.sSeq}, s{c.sSeq}, s{c.sT1}
        s_cmp_ge_u32 s{c.sSeq}, 10
        s_cselect_b32 s{c.sT0}, 10, 0
        s_sub_u32 s{c.sSeq}, s{c.sSeq}, s{c.sT0}
        """)
        if E('NOROTL'): a(f"s_mov_b32 s{c.sSeq}, 0")
    def loader_setup(self):
        a, c = self.a, self
        a(f"s_sub_u32 s{c.sLw}, s{sWV}, 4")
        if c.qkv:
            make_srd(a, c.sA, pX, pX+1, 0, 2048*1280)
            a(f"""
            v_lshrrev_b32 v2, 3, v1
            v_mul_u32_u24 v2, 1280, v2
            v_lshrrev_b32 v3, 4, v1
            v_and_b32 v7, 7, v1
            v_xor_b32 v3, v3, v7
            v_lshlrev_b32 v3, 4, v3
            v_add_u32 v{c.vAe}, v2, v3
            v_xor_b32 v{c.vAo}, 64, v{c.vAe}
            s_lshl_b32 s{c.sT0}, s{c.sLw}, 5
            s_add_u32 s{c.sT0}, s{c.sT0}, s{c.sM0}
            s_mul_i32 s{c.sAoff}, s{c.sT0}, 1280
            """)
            c.A_SSTEP = 128
        else:
            make_srd(a, c.sA, pWS, pWS+1, WS_H, SZ_ACT)
            a(f"""
            v_lshlrev_b32 v{c.vAe}, 4, v1
            v_add_u32 v{c.vAo}, 1024, v{c.vAe}
            s_lshl_b32 s{c.sT0}, s{c.sLw}, 16
            s_lshl_b32 s{c.sT1}, s{c.sM0}, 4
            s_add_u32 s{c.sAoff}, s{c.sT0}, s{c.sT1}
            """)
            c.A_SSTEP = 8 * 32768
        pw = pWQ if c.qkv else pW1
        make_srd(a, c.sW, pw, pw+1, 0, 640 * c.LDW)
        a(f"""
        v_lshrrev_b32 v2, 4, v1
        v_mul_u32_u24 v3, {c.LDW}, v2
        v_lshlrev_b32 v2, 2, v2
        v_and_b32 v7, 15, v1
        v_xor_b32 v2, v2, v7
        v_lshlrev_b32 v2, 4, v2
        v_add_u32 v{c.vWo}, v2, v3
        s_lshl_b32 s{c.sT0}, s{c.sLw}, 4
        s_mul_i32 s{c.sT0}, s{c.sT0}, {c.LDW}
        s_lshl_b32 s{c.sT1}, s{c.sN0}, 1
        s_add_u32 s{c.sWoff}, s{c.sT0}, s{c.sT1}
        s_lshl_b32 s{c.sLds}, s{c.sLw}, 12
        s_mul_i32 s{c.sT0}, s{c.sSeq}, {c.A_SSTEP}
        s_add_u32 s{c.sAoff}, s{c.sAoff}, s{c.sT0}
        s_mul_i32 s{c.sT0}, s{c.sSeq}, {64 * c.LDW}
        s_add_u32 s{c.sWoff}, s{c.sWoff}, s{c.sT0}
        s_mov_b32 s{c.sSeqW}, s{c.sSeq}
        """)
    def issue_A(self, seq):
        a, c = self.a, self
        slot = (seq % 4) * 32768
        for j in range(4):
            a(f"s_add_u32 m0, s{c.sLds}, {slot}" if j == 0 else "s_add_u32 m0, m0, 1024")
            if c.qkv:
                a(f"s_mov_b32 s{c.sT0}, s{c.sAoff}" if j == 0 else f"s_add_u32 s{c.sT0}, s{c.sT0}, {8*1280}")
            else:
                if j == 0: a(f"s_mov_b32 s{c.sT0}, s{c.sAoff}")
                elif j == 2: a(f"s_add_u32 s{c.sT0}, s{c.sT0}, 32768")
                else: a("s_nop 0")
            a(f"buffer_load_dwordx4 v{c.vAe if j % 2 == 0 else c.vAo}, s[{c.sA}:{c.sA+3}], s{c.sT0} offen {E('QNT_A','') if c.qkv else ''} lds")
        a(f"""
        s_add_u32 s{c.sSeq}, s{c.sSeq}, 1
        s_cmp_eq_u32 s{c.sSeq}, {c.NST}
        s_cselect_b32 s{c.sT0}, {c.NST * c.A_SSTEP}, 0
        s_cselect_b32 s{c.sSeq}, 0, s{c.sSeq}
        s_add_u32 s{c.sAoff}, s{c.sAoff}, {c.A_SSTEP}
        s_sub_u32 s{c.sAoff}, s{c.sAoff}, s{c.sT0}
        """)
    def issue_W(self, seq):
        a, c = self.a, self
        slot = (seq % 4) * 32768 + 16384
        for j in range(4):
            a(f"s_add_u32 m0, s{c.sLds}, {slot}" if j == 0 else "s_add_u32 m0, m0, 1024")
            a(f"s_mov_b32 s{c.sT0}, s{c.sWoff}" if j == 0 else f"s_add_u32 s{c.sT0}, s{c.sT0}, {4 * c.LDW}")
            a(f"buffer_load_dwordx4 v{c.vWo}, s[{c.sW}:{c.sW+3}], s{c.sT0} offen {E('QNT_W','') if c.qkv else ''} lds")
        a(f"""
        s_add_u32 s{c.sSeqW}, s{c.sSeqW}, 1
        s_cmp_eq_u32 s{c.sSeqW}, {c.NST}
        s_cselect_b32 s{c.sT0}, {c.NST * 64 * c.LDW}, 0
        s_cselect_b32 s{c.sSeqW}, 0, s{c.sSeqW}
        s_add_u32 s{c.sWoff}, s{c.sWoff}, {64 * c.LDW}
        s_sub_u32 s{c.sWoff}, s{c.sWoff}, s{c.sT0}
        """)
    vLs = 16
    vSx, vSq, vCs, vU = 48, 56, 64, 72
    vLs = 16
    def lstats_init(self): pass
    def lst_poll_issue(self):
        a, c = self.a, self
        v = c.vLs
        a(f"""
        s_add_u32 s{c.sT0}, s{c.sNt}, {C_CS1 if c.qkv else C_CS2}
        s_lshr_b32 s{c.sT1}, s{c.sM0}, 7
        s_add_u32 s{c.sT1}, s{c.sT1}, {C_ST}
        v_mov_b32 v{v}, s{c.sT0}
        v_writelane_b32 v{v}, s{c.sT1}, 1
        v_mov_b32 v{v+1}, 16
        v_writelane_b32 v{v+1}, {8 if c.qkv else 0}, 1
        v_lshlrev_b32 v{v}, 7, v{v}
        v_add_u32 v{v}, {WS_CNT}, v{v}
        s_mov_b64 exec, 3
        buffer_load_dword v{v+2}, v{v}, s[{sWS}:{sWS+3}], 0 offen sc1
        s_mov_b64 exec, -1
        """)
    def lst_check_issue(self, q):
        a, c = self.a, self
        v = c.vLs
        ok = a.newlabel("lok")
        a(f"""
        s_waitcnt vmcnt({q.need('poll')})
        s_mov_b64 exec, 3
        v_cmp_gt_u32 vcc, v{v+1}, v{v+2}
        s_nop 4
        s_cmp_eq_u64 vcc, 0
        s_cbranch_scc1 {ok}
        """)
        poll(a, v, v + 1, 2, v + 2)
        a.label(ok)
        a("s_mov_b64 exec, -1")
        ncol = 1920 if c.qkv else 1792
        d = v + 8
        a(f"""
        v_and_b32 v{v+4}, 31, v1
        v_lshlrev_b32 v{v+5}, 2, v{v+4}
        v_lshlrev_b32 v{v+4}, 3, v{v+4}
        s_lshl_b32 s{c.sT0}, s{c.sLw}, 5
        s_add_u32 s{c.sT1}, s{c.sT0}, s{c.sN0}
        s_lshl_b32 s{c.sT1}, s{c.sT1}, 2
        s_add_u32 s{c.sT1}, s{c.sT1}, {WS_CS1 if c.qkv else WS_CS2}
        s_mov_b32 exec_hi, 0
        """)
        for j in range(16):
            a(f"buffer_load_dword v{d+j}, v{v+5}, s[{sWS}:{sWS+3}], s{c.sT1} offen")
            if j < 15: a(f"s_add_u32 s{c.sT1}, s{c.sT1}, {ncol*4}")
        a(f"""
        s_mov_b32 exec_lo, 0
        s_mov_b32 exec_hi, -1
        s_add_u32 s{c.sT1}, s{c.sT0}, s{c.sM0}
        s_lshl_b32 s{c.sT1}, s{c.sT1}, 3
        s_add_u32 s{c.sT1}, s{c.sT1}, {WS_ST1 if c.qkv else WS_ST2}
        """)
        npart = 1 if c.qkv else 8
        for j in range(npart):
            a(f"buffer_load_dwordx2 {vr(d+16+2*j,2)}, v{v+4}, s[{sWS}:{sWS+3}], s{c.sT1} offen")
            if j < npart - 1: a(f"s_add_u32 s{c.sT1}, s{c.sT1}, {2048*8}")
        a("s_mov_b64 exec, -1")
        q.push("stats", 16 + npart)
    def lst_finish(self, q):
        a, c = self.a, self
        v = c.vLs
        d = v + 8
        a(f"s_waitcnt vmcnt({q.need('stats')})")
        for j in range(1, 16):
            a(f"v_add_f32 v{d}, v{d}, v{d+j}")
        S, Q = d + 16, d + 17
        if not c.qkv:
            for j in range(1, 8):
                a(f"v_add_f32 v{S}, v{S}, v{S+2*j}")
                a(f"v_add_f32 v{Q}, v{Q}, v{Q+2*j}")
            a(f"""
            v_mul_f32 v{S}, {f32bits(1.0/640):#x}, v{S}
            v_mul_f32 v{Q}, {f32bits(1.0/640):#x}, v{Q}
            v_fma_f32 v{Q}, -v{S}, v{S}, v{Q}
            v_max_f32 v{Q}, 0, v{Q}
            v_add_f32 v{Q}, {f32bits(1e-5):#x}, v{Q}
            v_rsq_f32 v{Q}, v{Q}
            """)
        a(f"""
        s_lshl_b32 s{c.sT0}, s{c.sLw}, 7
        s_add_u32 s{c.sT0}, s{c.sT0}, {STAT}
        v_add_u32 v{v+5}, s{c.sT0}, v{v+5}
        s_mov_b32 exec_hi, 0
        ds_write_b32 v{v+5}, v{d} offset:1024
        s_mov_b32 exec_lo, 0
        s_mov_b32 exec_hi, -1
        ds_write_b32 v{v+5}, v{S}
        ds_write_b32 v{v+5}, v{Q} offset:512
        s_mov_b64 exec, -1
        s_waitcnt lgkmcnt(0)
        """)
    def tq_poll_issue(self):
        a, c = self.a, self
        v = c.vLs
        a(f"""
        s_lshr_b32 s{c.sT1}, s{c.sM0}, 7
        s_add_u32 s{c.sT1}, s{c.sT1}, {C_ST}
        s_lshl_b32 s{c.sT1}, s{c.sT1}, 7
        s_add_u32 s{c.sT1}, s{c.sT1}, {WS_CNT}
        v_mov_b32 v{v}, s{c.sT1}
        v_mov_b32 v{v+1}, {5 if E('P0L') else 1}
        s_mov_b64 exec, 1
        buffer_load_dword v{v+2}, v{v}, s[{sWS}:{sWS+3}], 0 offen sc1
        s_mov_b64 exec, -1
        """)
    def tq_check_issue(self, q):
        a, c = self.a, self
        v = c.vLs
        ok = a.newlabel("lok")
        a(f"""
        s_waitcnt vmcnt({q.need('poll')})
        v_readfirstlane_b32 s{c.sT0}, v{v+2}
        s_cmp_ge_u32 s{c.sT0}, {5 if E('P0L') else 1}
        s_cbranch_scc1 {ok}
        """)
        poll(a, v, v + 1, 1, v + 2)
        a.label(ok)
        a(f"""
        v_and_b32 v{v+4}, 31, v1
        v_lshlrev_b32 v{v+5}, 2, v{v+4}
        v_lshlrev_b32 v{v+4}, 3, v{v+4}
        s_lshl_b32 s{c.sT0}, s{c.sLw}, 5
        s_add_u32 s{c.sT1}, s{c.sT0}, s{c.sM0}
        s_lshl_b32 s{c.sT1}, s{c.sT1}, 3
        s_add_u32 s{c.sT1}, s{c.sT1}, {WS_ST1}
        buffer_load_dwordx2 {vr(v+8,2)}, v{v+4}, s[{sWS}:{sWS+3}], s{c.sT1} offen
        """)
        q.push("stats", 1)
    def tq_finish(self, q):
        a, c = self.a, self
        v = c.vLs
        a(f"""
        s_waitcnt vmcnt({q.need('stats')})
        s_lshl_b32 s{c.sT0}, s{c.sLw}, 7
        s_add_u32 s{c.sT0}, s{c.sT0}, {STAT}
        v_add_u32 v{v+5}, s{c.sT0}, v{v+5}
        ds_write_b32 v{v+5}, v{v+8}
        ds_write_b32 v{v+5}, v{v+9} offset:512
        """)
    def tok_issue(self, q):
        a, c = self.a, self
        v = c.vLs
        d = v + 8
        a(f"""
        v_and_b32 v{v+4}, 31, v1
        v_lshlrev_b32 v{v+5}, 2, v{v+4}
        v_lshlrev_b32 v{v+4}, 3, v{v+4}
        s_lshl_b32 s{c.sT0}, s{c.sLw}, 5
        s_add_u32 s{c.sT1}, s{c.sT0}, s{c.sM0}
        s_lshl_b32 s{c.sT1}, s{c.sT1}, 3
        s_add_u32 s{c.sT1}, s{c.sT1}, {WS_ST2}
        s_mov_b32 exec_hi, 0
        """)
        for j in range(16):
            a(f"buffer_load_dwordx2 {vr(d+2*j,2)}, v{v+4}, s[{sWS}:{sWS+3}], s{c.sT1} offen")
            if j < 15: a(f"s_add_u32 s{c.sT1}, s{c.sT1}, {2048*8}")
        a("s_mov_b32 exec_hi, -1")
        q.push("stats", 16)
    def tok_finish(self, q):
        a, c = self.a, self
        v = c.vLs
        S, Q = v + 8, v + 9
        a(f"s_waitcnt vmcnt({q.need('stats')})")
        for j in range(1, 16):
            a(f"v_add_f32 v{S}, v{S}, v{S+2*j}")
            a(f"v_add_f32 v{Q}, v{Q}, v{Q+2*j}")
        a(f"""
        v_mul_f32 v{S}, {f32bits(1.0/640):#x}, v{S}
        v_mul_f32 v{Q}, {f32bits(1.0/640):#x}, v{Q}
        v_fma_f32 v{Q}, -v{S}, v{S}, v{Q}
        v_max_f32 v{Q}, 0, v{Q}
        v_add_f32 v{Q}, {f32bits(1e-5):#x}, v{Q}
        v_rsq_f32 v{Q}, v{Q}
        s_lshl_b32 s{c.sT0}, s{c.sLw}, 7
        s_add_u32 s{c.sT0}, s{c.sT0}, {STAT}
        v_add_u32 v{v+5}, s{c.sT0}, v{v+5}
        s_mov_b32 exec_hi, 0
        ds_write_b32 v{v+5}, v{S}
        ds_write_b32 v{v+5}, v{Q} offset:512
        s_mov_b32 exec_hi, -1
        """)
    def loader_main(self, q, p0=None):
        a, c = self.a, self
        for s_ in range(c.NST):
            tags = [f'A{s_}', f'W{s_}']
            if c.qkv and s_ == 4 and E('P0L'): tags.append('p0st')
            a(f"s_waitcnt vmcnt({q.need(*tags)}) lgkmcnt(0)")
            if getattr(c, 'ldstamps', False) and s_ in (0, 1, 2): st(a, 4 + s_)
            a("s_barrier")
            stx(a, f"{c.tag}l{s_}")
            if c.qkv:
                vd = 70
                if s_ == 0: wave_only(a, 4, lambda: a(f"buffer_load_dword v{vd}, v{vd+1}, s[44:47], 0 offen sc1"))
                if s_ == 4 and E('P0L'): wave_only(a, 4, lambda: p0r_arrive(a, c, vd))
                if s_ == 3: wave_only(a, 7, lambda: reg_step1(a, vd))
                if s_ == 5: wave_only(a, 7, lambda: reg_step2(a, vd))
                if s_ == 7: wave_only(a, 7, lambda: reg_step3(a, vd))
            if s_ + PD < c.NST and not (E('X_NODMA') and c.qkv):
                c.issue_A(s_ + PD); q.push(f"A{s_+PD}", 4)
                c.issue_W(s_ + PD); q.push(f"W{s_+PD}", 4)
            if c.qkv and s_ == 1 and E('P0L'):
                a(f"s_waitcnt vmcnt({q.need('p0l')})"); c.p0l.finish(); q.push('p0st', 1)
            if not c.qkv:
                if s_ == 7: c.tok_issue(q)
                if s_ == 8 and not E('NOPFW0'): w2_first_prefetch(a, c)
                if s_ == 9: c.tok_finish(q)
                if E('PFW2') and 0 <= s_ < 9:
                    wave_only(a, 4 + (s_ % 4), lambda: w2p_prefetch(a, s_))
            else:
                if s_ == 8 and getattr(c, 'hook7', None): c.hook7()
                if s_ == 6:
                    c.tq_poll_issue(); q.push("poll", 1)
                if s_ == 7: c.tq_check_issue(q)
                if s_ == 9: c.tq_finish(q)

    vAd, vX, vW, vAcc, vT, vSt = 24, 32, 32, 64, 128, 144
    def compute_setup(self):
        a, c = self.a, self
        NXA = 8 if c.qkv else 2
        c.NXA = NXA
        c.vXa = 4
        c.vWa = c.vXa + 2 * NXA
        vXa, vWa, vT = c.vXa, c.vWa, c.vT
        t0, t1 = vT, vT + 1
        a(f"""
        s_lshr_b32 s{c.sWm}, s{sWV}, 1
        s_and_b32 s{c.sWn}, s{sWV}, 1
        v_and_b32 v2, 31, v1
        v_lshrrev_b32 v3, 5, v1
        """)
        if c.qkv:
            a(f"""
            v_lshrrev_b32 v{t0}, 1, v1
            v_and_b32 v{t0}, 7, v{t0}
            v_xor_b32 v{t0}, v{t0}, v3
            v_lshlrev_b32 v{t0}, 4, v{t0}
            v_lshlrev_b32 v{t1}, 7, v2
            v_add_u32 v{t0}, v{t0}, v{t1}
            s_lshl_b32 s{c.sT0}, s{c.sWm}, 13
            s_lshl_b32 s{c.sT1}, s{c.sWn}, 12
            s_add_u32 s{c.sT0}, s{c.sT0}, s{c.sT1}
            v_add_u32 v{t0}, s{c.sT0}, v{t0}
            """)
            for s in range(4):
                a(f"v_xor_b32 v{vXa + s}, {32 * s}, v{t0}")
                a(f"v_xor_b32 v{vXa + 4 + s}, 4096, v{vXa + s}")
        else:
            a(f"""
            v_lshlrev_b32 v{t0}, 11, v3
            v_lshlrev_b32 v{t1}, 4, v2
            v_add_u32 v{t0}, v{t0}, v{t1}
            s_lshl_b32 s{c.sT0}, s{c.sWm}, 10
            v_add_u32 v{vXa}, s{c.sT0}, v{t0}
            v_add_u32 v{vXa + 1}, 512, v{vXa}
            """)
        for i in range(NXA):
            a(f"v_add_u32 v{vXa + NXA + i}, 65536, v{vXa + i}")
        a(f"""
        v_lshrrev_b32 v{t0}, 2, v1
        v_and_b32 v{t0}, 3, v{t0}
        v_lshlrev_b32 v{t1}, 3, v3
        v_add_u32 v{t1}, v{t1}, v{t0}
        v_lshlrev_b32 v{t1}, 8, v{t1}
        v_lshlrev_b32 v{t0}, 6, v{t0}
        v_add_u32 v{t1}, v{t1}, v{t0}
        v_lshrrev_b32 v{t0}, 4, v1
        v_and_b32 v{t0}, 1, v{t0}
        v_lshlrev_b32 v{t0}, 5, v{t0}
        v_add_u32 v{t1}, v{t1}, v{t0}
        v_lshrrev_b32 v{t0}, 1, v1
        v_and_b32 v{t0}, 1, v{t0}
        v_lshlrev_b32 v{t0}, 4, v{t0}
        v_add_u32 v{t1}, v{t1}, v{t0}
        v_and_b32 v{t0}, 1, v1
        v_lshlrev_b32 v{t0}, 3, v{t0}
        v_add_u32 v{t1}, v{t1}, v{t0}
        v_add_u32 v{t1}, 16384, v{t1}
        s_lshl_b32 s{c.sT0}, s{c.sWn}, 7
        s_lshl_b32 s{c.sT1}, s{c.sWm}, 6
        s_add_u32 s{c.sT0}, s{c.sT0}, s{c.sT1}
        v_xor_b32 v{vWa}, s{c.sT0}, v{t1}
        v_xor_b32 v{vWa + 1}, 64, v{vWa}
        v_add_u32 v{vWa + 2}, 65536, v{vWa}
        v_add_u32 v{vWa + 3}, 65536, v{vWa + 1}
        """)
    def addr_qk(self):
        a, c = self.a, self
        vT, vAd = c.vT, c.vAd
        t0, t1 = vT, vT + 1
        a(f"""
        s_cmp_lt_u32 s{c.sNt}, 5
        s_cselect_b32 s{c.sT0}, 0, 640
        s_sub_u32 s{c.sT2}, s{c.sN0}, s{c.sT0}
        s_lshl_b32 s{c.sT1}, s{c.sWn}, 6
        s_add_u32 s{c.sT2}, s{c.sT2}, s{c.sT1}
        s_lshr_b32 s{c.sT2}, s{c.sT2}, 3
        v_add_u32 v{t0}, s{c.sT2}, v3
        v_lshlrev_b32 v{vT+4}, 4, v2
        """)
        for ft in range(2):
            for j in range(2):
                d = vAd + ft*2 + j
                a(f"""
                s_xor_b32 s{c.sT3}, s{c.sWm}, {ft}
                s_lshl_b32 s{c.sT3}, s{c.sT3}, 2
                s_add_u32 s{c.sT3}, s{c.sT3}, {2*j}
                v_add_u32 v{t1}, s{c.sT3}, v{t0}
                v_mul_u32_u24 v{vT+2}, 0xcccd, v{t1}
                v_lshrrev_b32 v{vT+2}, 18, v{vT+2}
                v_mul_u32_u24 v{vT+3}, 5, v{vT+2}
                v_sub_u32 v{vT+3}, v{t1}, v{vT+3}
                v_lshlrev_b32 v{vT+3}, 9, v{vT+3}
                v_mul_u32_u24 v{vT+2}, 0x28000, v{vT+2}
                v_add3_u32 v{d}, v{vT+2}, v{vT+3}, v{vT+4}
                """)
        a(f"""
        s_lshr_b32 s{c.sT0}, s{c.sM0}, 5
        s_lshl_b32 s{c.sT1}, s{c.sWm}, 1
        s_add_u32 s{c.sT0}, s{c.sT0}, s{c.sT1}
        s_add_u32 s{c.sT1}, s{c.sT0}, s{c.sWn}
        s_mul_i32 s40, s{c.sT1}, 2560
        s_xor_b32 s{c.sT1}, s{c.sWn}, 1
        s_add_u32 s{c.sT1}, s{c.sT0}, s{c.sT1}
        s_mul_i32 s41, s{c.sT1}, 2560
        s_cmp_lt_u32 s{c.sNt}, 5
        s_cselect_b32 s{c.sT0}, {WS_Q}, {WS_K}
        s_add_u32 s{c.sO}, s{pWS}, s{c.sT0}
        s_addc_u32 s{c.sO+1}, s{pWS+1}, 0
        s_and_b32 s{c.sO+1}, s{c.sO+1}, 0xffff
        s_mov_b32 s{c.sO+2}, {SZ_QK}
        s_mov_b32 s{c.sO+3}, 0x20000
        """)
    def addr_f(self):
        a, c = self.a, self
        vT, vAd = c.vT, c.vAd
        t0, t1 = vT, vT + 1
        a(f"""
        s_lshl_b32 s{c.sT1}, s{c.sWn}, 6
        s_add_u32 s{c.sT2}, s{c.sN0}, s{c.sT1}
        s_lshr_b32 s{c.sT2}, s{c.sT2}, 3
        v_add_u32 v{t0}, s{c.sT2}, v3
        v_lshlrev_b32 v{t0}, 15, v{t0}
        v_lshlrev_b32 v{t1}, 4, v2
        v_add_u32 v{t0}, v{t0}, v{t1}
        """)
        for ft in range(2):
            for j in range(2):
                a(f"s_xor_b32 s{c.sT3}, s{c.sWm}, {ft}")
                a(f"s_lshl_b32 s{c.sT3}, s{c.sT3}, 2")
                a(f"s_add_u32 s{c.sT3}, s{c.sT3}, {2*j}")
                a(f"s_lshl_b32 s{c.sT3}, s{c.sT3}, 15")
                a(f"v_add_u32 v{vAd + ft*2 + j}, s{c.sT3}, v{t0}")
        a(f"""
        s_lshl_b32 s{c.sT1}, s{c.sWm}, 6
        s_add_u32 s{c.sT0}, s{c.sM0}, s{c.sT1}
        s_lshl_b32 s40, s{c.sT0}, 4
        s_add_u32 s41, s40, 512
        """)
        make_srd(a, c.sO, pWS, pWS+1, WS_F, SZ_F)
    def addr_v(self):
        a, c = self.a, self
        vT, vAd = c.vT, c.vAd
        t0, t1 = vT, vT + 1
        for ft in range(2):
            a(f"""
            s_lshl_b32 s{c.sT1}, s{c.sWn}, 6
            s_add_u32 s{c.sT0}, s{c.sN0}, s{c.sT1}
            s_xor_b32 s{c.sT1}, s{c.sWm}, {ft}
            s_lshl_b32 s{c.sT1}, s{c.sT1}, 5
            s_add_u32 s{c.sT0}, s{c.sT0}, s{c.sT1}
            s_sub_u32 s{c.sT0}, s{c.sT0}, 1280
            v_add_u32 v{t0}, s{c.sT0}, v2
            v_mul_u32_u24 v{t1}, 0xcccd, v{t0}
            v_lshrrev_b32 v{t1}, 20, v{t1}
            v_mul_u32_u24 v{vT+2}, 20, v{t1}
            v_sub_u32 v{t0}, v{t0}, v{vT+2}
            v_lshlrev_b32 v{t0}, 4, v{t0}
            v_mul_u32_u24 v{t1}, 0x14000, v{t1}
            v_add_u32 v{t0}, v{t0}, v{t1}
            v_mul_u32_u24 v{t1}, 320, v3
            v_add_u32 v{vAd+ft}, v{t0}, v{t1}
            """)
        a(f"""
        s_lshl_b32 s{c.sT1}, s{c.sWm}, 6
        s_add_u32 s{c.sT0}, s{c.sM0}, s{c.sT1}
        s_lshr_b32 s{c.sT0}, s{c.sT0}, 4
        s_lshl_b32 s{c.sT1}, s{c.sWn}, 1
        s_add_u32 s{c.sT1}, s{c.sT1}, s{c.sT0}
        s_mul_i32 s40, s{c.sT1}, 640
        s_add_u32 s41, s40, 640
        s_xor_b32 s{c.sT1}, s{c.sWn}, 1
        s_lshl_b32 s{c.sT1}, s{c.sT1}, 1
        s_add_u32 s{c.sT1}, s{c.sT1}, s{c.sT0}
        s_mul_i32 s42, s{c.sT1}, 640
        s_add_u32 s43, s42, 640
        """)
        make_srd(a, c.sO, pWS, pWS+1, WS_V, SZ_QKV)
    def stats_poll_issue(self):
        a, c = self.a, self
        vS = c.vSt
        a(f"""
        v_lshlrev_b32 v{vS+30}, 7, v1
        v_add_u32 v{vS+30}, {WS_CNT + (C_P0 if c.qkv else C_W1)*128}, v{vS+30}
        s_mov_b64 exec, 0xff
        buffer_load_dword v{vS+29}, v{vS+30}, s[{sWS}:{sWS+3}], 0 offen sc1
        s_mov_b64 exec, -1
        """)
    def stats_poll_check(self):
        a, c = self.a, self
        vS = c.vSt
        ok = a.newlabel("stok")
        a(f"""
        s_waitcnt vmcnt(0)
        s_mov_b64 exec, 0xff
        v_cmp_gt_u32 vcc, 128, v{vS+29}
        s_nop 4
        s_cmp_eq_u64 vcc, 0
        s_cbranch_scc1 {ok}
        v_mov_b32 v{vS+28}, 128
        """)
        poll(a, vS + 30, vS + 28, 8, vS + 29)
        a.label(ok)
        a("s_mov_b64 exec, -1")
        a("s_nop 3")
    def stats_issue(self):
        a, c = self.a, self
        vS = c.vSt
        a(f"""
        v_lshlrev_b32 v{vS+31}, 2, v2
        v_lshlrev_b32 v{vS+30}, 3, v2
        s_lshl_b32 s{c.sT0}, s{sWV}, 5
        s_add_u32 s{c.sT1}, s{c.sT0}, s{c.sM0}
        s_lshl_b32 s{c.sT1}, s{c.sT1}, 3
        s_add_u32 s{c.sT1}, s{c.sT1}, {WS_ST2}
        """)
        for j in range(8):
            a(f"buffer_load_dwordx2 {vr(vS+8+2*j,2)}, v{vS+30}, s[{sWS}:{sWS+3}], s{c.sT1} offen")
            if j < 7: a(f"s_add_u32 s{c.sT1}, s{c.sT1}, {2048*8}")
    def stats_finish(self):
        a, c = self.a, self
        vS = c.vSt
        a("s_waitcnt vmcnt(0)")
        S, Q = vS + 8, vS + 9
        for j in range(1, 8):
            a(f"v_add_f32 v{S}, v{S}, v{S+2*j}")
            a(f"v_add_f32 v{Q}, v{Q}, v{Q+2*j}")
        a(f"""
        v_mul_f32 v{S}, {f32bits(1.0/640):#x}, v{S}
        v_mul_f32 v{Q}, {f32bits(1.0/640):#x}, v{Q}
        v_fma_f32 v{Q}, -v{S}, v{S}, v{Q}
        v_max_f32 v{Q}, 0, v{Q}
        v_add_f32 v{Q}, {f32bits(1e-5):#x}, v{Q}
        v_rsq_f32 v{Q}, v{Q}
        s_lshl_b32 s{c.sT0}, s{sWV}, 7
        s_add_u32 s{c.sT0}, s{c.sT0}, {STAT}
        v_add_u32 v{vS+31}, s{c.sT0}, v{vS+31}
        ds_write_b32 v{vS+31}, v{S}
        ds_write_b32 v{vS+31}, v{Q} offset:512
        """)
    aX = 4
    def read_list(self, i):
        c = self
        st_, step, buf = i // 4, i % 4, i % 3
        slot = st_ % 4
        win, base = slot >> 1, (slot & 1) * 32768
        L = []
        for lt in range(2):
            if c.qkv:
                L.append(f"ds_read_b128 {ar(c.aX + buf*8 + lt*4, 4)}, v{c.vXa + win*8 + lt*4 + step} offset:{base}")
            else:
                L.append(f"ds_read_b128 {ar(c.aX + buf*8 + lt*4, 4)}, v{c.vXa + win*2 + lt} offset:{base + step*4096}")
        for lf in range(2):
            for h2 in range(2):
                L.append(f"ds_read_b64_tr_b16 {vr(c.vW + buf*8 + lf*4 + h2*2, 2)}, v{c.vWa + win*2 + lf} offset:{base + step*4096 + h2*1024}")
        return L
    def reads(self, i):
        for r in self.read_list(i): self.a(r)
    def mfma(self, i, k, orientY):
        a, c = self.a, self
        buf = i % 3
        lf, lt = k >> 1, k & 1
        acc = c.vAcc + (lf*2 + lt) * 16
        xa, wa = ar(c.aX + buf*8 + lt*4, 4), vr(c.vW + buf*8 + lf*4, 4)
        cc = "0" if i == 0 else vr(acc, 16)
        if orientY: a(f"v_mfma_f32_32x32x16_bf16 {vr(acc,16)}, {wa}, {xa}, {cc}")
        else: a(f"v_mfma_f32_32x32x16_bf16 {vr(acc,16)}, {xa}, {wa}, {cc}")
    def mainloop(self, orientY, stamp0=None, tag='q'):
        a, c = self.a, self
        vS = c.vSt
        CS = vS
        UU = c.vT
        a(f"v_mov_b32 v{CS}, 0")
        a(f"v_mov_b32 v{CS+1}, 0")
        a("s_barrier")
        if stamp0 is not None: st(a, stamp0)
        stx(a, tag + '_s0')
        c.reads(0)
        c.reads(1)
        for i in range(40):
            buf = i % 3
            Wl = c.vW + buf*8
            ops = []
            for r in range(4):
                u = UU + 2*(r & 1)
                ops += [f"v_lshlrev_b32 v{u}, 16, v{Wl+r}", f"v_and_b32 v{u+1}, 0xffff0000, v{Wl+r}",
                        f"v_add_f32 v{CS}, v{CS}, v{u}", f"v_add_f32 v{CS+1}, v{CS+1}, v{u+1}"]
            if E('X_NOVALU'): ops = []
            rl = c.read_list(i + 2) if i + 2 < 40 else []
            if i == 4: stx(a, tag + '_s1')
            if i == 20: stx(a, tag + '_s5')
            a(f"s_waitcnt lgkmcnt({6 if i + 1 < 40 else 0})")
            c.mfma(i, 0, orientY)
            if i + 2 < 40 and (i + 2) % 4 == 0:
                a("s_barrier")
            for o in rl[0:2] + ops[0:3]: a(o)
            c.mfma(i, 1, orientY)
            for o in rl[2:4] + ops[3:6]: a(o)
            c.mfma(i, 2, orientY)
            for o in rl[4:6] + ops[6:10]: a(o)
            c.mfma(i, 3, orientY)
            for o in ops[10:16]: a(o)
        U = vS + 14
        a(f"""
        v_add_f32 v{CS}, v{CS}, v{CS+1}
        s_nop 0
        v_mov_b32 v{CS+1}, v{CS}
        s_nop 1
        v_permlane32_swap_b32 v{CS}, v{CS+1}
        s_nop 1
        v_add_f32 v{CS}, v{CS}, v{CS+1}
        """)
        a(f"""
        s_lshl_b32 s{c.sT0}, s{c.sWn}, 8
        s_lshl_b32 s{c.sT1}, s{c.sWm}, 7
        s_add_u32 s{c.sT0}, s{c.sT0}, s{c.sT1}
        s_add_u32 s{c.sT0}, s{c.sT0}, {STAT + 1024}
        v_lshlrev_b32 v{U}, 2, v2
        v_add_u32 v{U+1}, s{c.sT0}, v{U}
        ds_write_b32 v{U+1}, v{CS}
        """)
        a("s_waitcnt lgkmcnt(0)")
    def dbg_issue(self):
        a, c = self.a, self
        make_srd(a, 44, pDBG, pDBG+1, 0, 256)
        a(f"v_lshlrev_b32 v{c.vSt+27}, 2, v1")
        a("s_mov_b64 exec, 0x1ff")
        a(f"buffer_load_dword v{c.vSt+26}, v{c.vSt+27}, s[44:47], 0 offen sc1")
        a("s_mov_b64 exec, -1")
        a("s_nop 1")
    def epilogue_Y(self, kind):
        a, c = self.a, self
        vT, vAcc, vAd = c.vT, c.vAcc, c.vAd
        vM, vR, vC = vT, vT + 2, 32
        for lt in range(2):
            a(f"""
            s_lshl_b32 s{c.sT1}, s{c.sWm}, 8
            s_add_u32 s{c.sT0}, s{c.sT1}, {STAT + (0 if c.qkv else lt*128)}
            s_xor_b32 s{c.sT1}, s{c.sWn}, {lt}
            s_lshl_b32 s{c.sT1}, s{c.sT1}, {7 if c.qkv else 31}
            s_add_u32 s{c.sT0}, s{c.sT0}, {'s%d' % c.sT1 if c.qkv else 0}
            v_lshlrev_b32 v{vT+4}, 2, v2
            v_add_u32 v{vT+4}, s{c.sT0}, v{vT+4}
            ds_read_b32 v{vM + lt}, v{vT+4}
            ds_read_b32 v{vR + lt}, v{vT+4} offset:512
            """)
        for lf in range(2):
            a(f"""
            s_lshl_b32 s{c.sT1}, s{c.sWn}, 8
            s_add_u32 s{c.sT0}, s{c.sT1}, {STAT + 1024}
            s_xor_b32 s{c.sT1}, s{c.sWm}, {lf}
            s_lshl_b32 s{c.sT1}, s{c.sT1}, 7
            s_add_u32 s{c.sT0}, s{c.sT0}, s{c.sT1}
            v_lshlrev_b32 v{vT+4}, 4, v3
            v_add_u32 v{vT+4}, s{c.sT0}, v{vT+4}
            """)
            for q in range(4):
                a(f"ds_read_b128 {vr(vC + lf*16 + q*4, 4)}, v{vT+4} offset:{q*32}")
        a("s_waitcnt lgkmcnt(0)")
        if kind == 'qk':
            a(f"""
            s_cmp_lt_u32 s{c.sNt}, 5
            s_cselect_b32 s{c.sT0}, {f32bits(QSCALE):#x}, 1.0
            v_mul_f32 v{vR}, s{c.sT0}, v{vR}
            v_mul_f32 v{vR+1}, s{c.sT0}, v{vR+1}
            """)
        B = c.vSt + 2
        for lt in range(2):
            a(f"v_mov_b32 v{B + 2*lt}, v{vM + lt}")
            a(f"v_mov_b32 v{B + 2*lt + 1}, v{vM + lt}")
            a(f"v_mov_b32 v{B + 4 + 2*lt}, v{vR + lt}")
            a(f"v_mov_b32 v{B + 4 + 2*lt + 1}, v{vR + lt}")
        vP = vT + 8
        n = 0
        for lf in range(2):
            for lt in range(2):
                acc = vAcc + (lf*2 + lt) * 16
                for r in range(0, 16, 2):
                    a(f"v_pk_fma_f32 {vr(acc + r, 2)}, {vr(B + 2*lt, 2)}, {vr(vC + lf*16 + r, 2)}, {vr(acc + r, 2)} neg_lo:[1,0,0] neg_hi:[1,0,0]")
                for r in range(0, 16, 2):
                    a(f"v_pk_mul_f32 {vr(acc + r, 2)}, {vr(acc + r, 2)}, {vr(B + 4 + 2*lt, 2)}")
                for j in range(2):
                    p = vP + (n & 1) * 4
                    n += 1
                    q0 = acc + j*8
                    for k in range(4):
                        a(f"v_cvt_pk_bf16_f32 v{p+k}, v{q0+2*k}, v{q0+2*k+1}")
                    if kind == 'ffn1':
                        for k in range(4):
                            a(f"v_pk_max_i16 v{p+k}, v{p+k}, 0")
                    else:
                        a("s_nop 0")
                    a("s_nop 0")
                    if kind == 'ffn1': a("s_nop 0")
                    a(f"v_permlane32_swap_b32 v{p}, v{p+2}")
                    a(f"v_permlane32_swap_b32 v{p+1}, v{p+3}")
                    ins = f"buffer_store_dwordx4 {vr(p,4)}, v{vAd + lf*2 + j}, s[{c.sO}:{c.sO+3}], s{40 + lt} offen @SC"
                    if kind == 'ffn1': dual(a, [ins])
                    else: a(ins.replace("@SC", SC))
    def epilogue_X(self):
        a, c = self.a, self
        vT, vAcc, vAd = c.vT, c.vAcc, c.vAd
        vC, vM, vR = vT, 32, 48
        for lf in range(2):
            a(f"""
            s_lshl_b32 s{c.sT1}, s{c.sWn}, 8
            s_add_u32 s{c.sT0}, s{c.sT1}, {STAT + 1024}
            s_xor_b32 s{c.sT1}, s{c.sWm}, {lf}
            s_lshl_b32 s{c.sT1}, s{c.sT1}, 7
            s_add_u32 s{c.sT0}, s{c.sT0}, s{c.sT1}
            v_lshlrev_b32 v{vT+4}, 2, v2
            v_add_u32 v{vT+4}, s{c.sT0}, v{vT+4}
            ds_read_b32 v{vC + lf}, v{vT+4}
            """)
        vP = vT + 8
        n = 0
        for lt in range(2):
            a(f"""
            s_lshl_b32 s{c.sT1}, s{c.sWm}, 8
            s_add_u32 s{c.sT0}, s{c.sT1}, {STAT}
            s_xor_b32 s{c.sT1}, s{c.sWn}, {lt}
            s_lshl_b32 s{c.sT1}, s{c.sT1}, 7
            s_add_u32 s{c.sT0}, s{c.sT0}, s{c.sT1}
            v_lshlrev_b32 v{vT+4}, 4, v3
            v_add_u32 v{vT+4}, s{c.sT0}, v{vT+4}
            """)
            for q in range(4):
                a(f"ds_read_b128 {vr(vM + q*4, 4)}, v{vT+4} offset:{q*32}")
                a(f"ds_read_b128 {vr(vR + q*4, 4)}, v{vT+4} offset:{512 + q*32}")
            a("s_waitcnt lgkmcnt(0)")
            B = c.vSt + 2
            if lt == 0:
                for lf in range(2):
                    a(f"v_mov_b32 v{B + 2*lf}, v{vC + lf}")
                    a(f"v_mov_b32 v{B + 2*lf + 1}, v{vC + lf}")
            for lf in range(2):
                acc = vAcc + (lf*2 + lt) * 16
                for r in range(0, 16, 2):
                    a(f"v_pk_fma_f32 {vr(acc + r, 2)}, {vr(vM + r, 2)}, {vr(B + 2*lf, 2)}, {vr(acc + r, 2)} neg_lo:[1,0,0] neg_hi:[1,0,0]")
                for r in range(0, 16, 2):
                    a(f"v_pk_mul_f32 {vr(acc + r, 2)}, {vr(acc + r, 2)}, {vr(vR + r, 2)}")
                for g in range(2):
                    p = vP + (n & 1) * 4
                    n += 1
                    for r in range(4):
                        a(f"v_cvt_pk_bf16_f32 v{p + r}, v{acc + g*8 + 2*r}, v{acc + g*8 + 2*r + 1}")
                    a(f"buffer_store_dwordx4 {vr(p,4)}, v{vAd + lf}, s[{c.sO}:{c.sO+3}], s{40 + lt*2 + g} offen {SC}")

STG = 36864
class CoreS:
    sA, sO, sR = 8, 16, 40
    sM0, sN0, sT0, sT1, sT2, sNt = 21, 22, 23, 24, 25, 26
    sLw, sAoff, sWoff, sLdsA, sLdsW, sSeq, sSeqW = 20, 29, 30, 31, 32, 33, 34
    vA = 4
    vXa2, vWa2 = 116, 117
    def __init__(self, a, mode):
        self.a, self.mode = a, mode
        self.op = mode == 'oproj'
        self.NST = 5 if self.op else 14
    def map_tiles(self):
        a, c = self.a, self
        NST = c.NST
        a(f"""
        s_and_b32 s{c.sT0}, s{sRk}, 3
        s_lshl_b32 s{c.sM0}, s{sX}, 2
        s_add_u32 s{c.sM0}, s{c.sM0}, s{c.sT0}
        s_lshl_b32 s{c.sM0}, s{c.sM0}, 6
        s_lshr_b32 s{c.sNt}, s{sRk}, 2
        s_mul_i32 s{c.sN0}, s{c.sNt}, 80
        s_mul_i32 s{c.sSeq}, s{c.sT0}, {1 if c.op else 3}
        s_mul_i32 s{c.sT1}, s{c.sNt}, {1 if c.op else 2}
        s_add_u32 s{c.sSeq}, s{c.sSeq}, s{c.sT1}
        s_cmp_ge_u32 s{c.sSeq}, {NST}
        s_cselect_b32 s{c.sT1}, {NST}, 0
        s_sub_u32 s{c.sSeq}, s{c.sSeq}, s{c.sT1}
        s_cmp_ge_u32 s{c.sSeq}, {NST}
        s_cselect_b32 s{c.sT1}, {NST}, 0
        s_sub_u32 s{c.sSeq}, s{c.sSeq}, s{c.sT1}
        """)
        if E('NOROTS'): a(f"s_mov_b32 s{c.sSeq}, 0")
    def loader_setup(self):
        a, c = self.a, self
        if c.op: make_srd(a, c.sA, pWS, pWS+1, WS_O, SZ_ACT)
        else: make_srd(a, c.sA, pWS, pWS+1, WS_F, SZ_F)
        a(f"""
        s_sub_u32 s{c.sLw}, s{sWV}, 4
        v_lshlrev_b32 v{c.vA}, 4, v1
        s_lshl_b32 s{c.sT0}, s{c.sLw}, 17
        s_lshl_b32 s{c.sT1}, s{c.sM0}, 4
        s_add_u32 s{c.sAoff}, s{c.sT0}, s{c.sT1}
        s_mul_i32 s{c.sT0}, s{c.sLw}, 5120
        s_mul_i32 s{c.sT1}, s{c.sNt}, {c.NST * 20480}
        s_add_u32 s{c.sWoff}, s{c.sT0}, s{c.sT1}
        s_add_u32 s{c.sWoff}, s{c.sWoff}, {WS_WOP if c.op else WS_W2P}
        s_lshl_b32 s{c.sLdsA}, s{c.sLw}, 12
        s_add_u32 s{c.sLdsW}, s{c.sT0}, 16384
        s_mul_i32 s{c.sT0}, s{c.sSeq}, {16 * 32768}
        s_add_u32 s{c.sAoff}, s{c.sAoff}, s{c.sT0}
        s_mul_i32 s{c.sT0}, s{c.sSeq}, 20480
        s_add_u32 s{c.sWoff}, s{c.sWoff}, s{c.sT0}
        s_mov_b32 s{c.sSeqW}, s{c.sSeq}
        """)
    def issue_A(self, seq):
        a, c = self.a, self
        slot = (seq % 4) * STG
        for j in range(4):
            a(f"s_add_u32 m0, s{c.sLdsA}, {slot}" if j == 0 else "s_add_u32 m0, m0, 1024")
            a(f"s_mov_b32 s{c.sT0}, s{c.sAoff}" if j == 0 else f"s_add_u32 s{c.sT0}, s{c.sT0}, 32768")
            a(f"buffer_load_dwordx4 v{c.vA}, s[{c.sA}:{c.sA+3}], s{c.sT0} offen lds")
        a(f"""
        s_add_u32 s{c.sSeq}, s{c.sSeq}, 1
        s_cmp_eq_u32 s{c.sSeq}, {c.NST}
        s_cselect_b32 s{c.sT0}, {c.NST * 16 * 32768}, 0
        s_cselect_b32 s{c.sSeq}, 0, s{c.sSeq}
        s_add_u32 s{c.sAoff}, s{c.sAoff}, {16 * 32768}
        s_sub_u32 s{c.sAoff}, s{c.sAoff}, s{c.sT0}
        """)
    def issue_W(self, seq):
        a, c = self.a, self
        slot = (seq % 4) * STG
        a(f"s_add_u32 m0, s{c.sLdsW}, {slot}")
        a(f"s_add_u32 s{c.sT0}, s{c.sWoff}, 4096")
        for j in range(4):
            a(f"buffer_load_dwordx4 v{c.vA}, s[{sWS}:{sWS+3}], s{c.sWoff} offen offset:{j*1024} lds")
        a("s_add_u32 m0, m0, 4096")
        a(f"s_add_u32 s{c.sSeqW}, s{c.sSeqW}, 1")
        a(f"buffer_load_dwordx4 v{c.vA}, s[{sWS}:{sWS+3}], s{c.sT0} offen lds")
        a(f"""
        s_cmp_eq_u32 s{c.sSeqW}, {c.NST}
        s_cselect_b32 s{c.sT0}, {c.NST * 20480}, 0
        s_cselect_b32 s{c.sSeqW}, 0, s{c.sSeqW}
        s_add_u32 s{c.sWoff}, s{c.sWoff}, 20480
        s_sub_u32 s{c.sWoff}, s{c.sWoff}, s{c.sT0}
        """)
    def loader_main(self, q):
        a, c = self.a, self
        for s_ in range(c.NST):
            a(f"s_waitcnt vmcnt({q.need(f'A{s_}', f'W{s_}')})")
            a("s_barrier")
            stx(a, f"{'o' if c.op else 'g'}l{s_}")
            if s_ + PD < c.NST and not (E('S_NODMA') and not c.op):
                if not E('S_NOA'): c.issue_A(s_ + PD); q.push(f"A{s_+PD}", 4)
                if not E('S_NOW'): c.issue_W(s_ + PD); q.push(f"W{s_+PD}", 5)
    vXb, vWb, vXa, vWa, vX, vW, vRes, vT, vAcc = 4, 5, 6, 7, 8, 32, 70, 84, 96
    vXa2, vWa2 = 120, 121
    def compute_setup(self):
        a, c = self.a, self
        vT = c.vT
        a(f"""
        v_and_b32 v2, 15, v1
        v_lshrrev_b32 v3, 4, v1
        s_lshr_b32 s{c.sT1}, s{sWV}, 1
        s_and_b32 s{c.sT2}, s{sWV}, 1
        s_lshl_b32 s{c.sT0}, s{c.sT1}, 5
        s_add_u32 s{c.sT0}, s{c.sT0}, s{c.sM0}
        v_add_u32 v{vT}, s{c.sT0}, v2
        """)
        a(f"""
        s_mul_i32 s{c.sAoff}, s{c.sT2}, 48
        s_add_u32 s{c.sAoff}, s{c.sAoff}, s{c.sN0}
        v_mul_u32_u24 v{vT+1}, 1280, v{vT}
        v_lshlrev_b32 v{vT+3}, 3, v3
        v_add_u32 v{vT+1}, v{vT+1}, v{vT+3}
        s_lshl_b32 s{c.sT0}, s{c.sAoff}, 1
        v_add_u32 v{vT+1}, s{c.sT0}, v{vT+1}
        v_lshrrev_b32 v{vT+3}, 1, v3
        v_lshlrev_b32 v{vT+3}, 15, v{vT+3}
        v_lshlrev_b32 v{vT+2}, 4, v{vT}
        v_add_u32 v{vT+2}, v{vT+2}, v{vT+3}
        v_and_b32 v{vT+3}, 1, v3
        v_lshlrev_b32 v{vT+3}, 3, v{vT+3}
        v_add_u32 v{vT+2}, v{vT+2}, v{vT+3}
        s_lshl_b32 s{c.sT0}, s{c.sAoff}, 12
        v_add_u32 v{vT+2}, s{c.sT0}, v{vT+2}
        s_lshl_b32 s{c.sT0}, s{c.sT1}, 9
        v_lshlrev_b32 v{c.vXb}, 10, v3
        v_lshlrev_b32 v{vT+3}, 4, v2
        v_add_u32 v{c.vXb}, v{c.vXb}, v{vT+3}
        v_add_u32 v{c.vXb}, s{c.sT0}, v{c.vXb}
        v_lshrrev_b32 v{vT+3}, 1, v3
        v_lshlrev_b32 v{vT+3}, 4, v{vT+3}
        v_and_b32 v{vT+4}, 1, v3
        v_lshlrev_b32 v{vT+4}, 2, v{vT+4}
        v_add_u32 v{vT+3}, v{vT+3}, v{vT+4}
        v_lshrrev_b32 v{vT+4}, 2, v2
        v_add_u32 v{vT+3}, v{vT+3}, v{vT+4}
        v_mul_u32_u24 v{vT+3}, 160, v{vT+3}
        v_and_b32 v{vT+4}, 3, v1
        v_lshlrev_b32 v{vT+4}, 3, v{vT+4}
        v_add_u32 v{vT+3}, v{vT+3}, v{vT+4}
        s_mul_i32 s{c.sT0}, s{c.sT2}, 96
        s_add_u32 s{c.sT0}, s{c.sT0}, 16384
        v_add_u32 v{c.vWb}, s{c.sT0}, v{vT+3}
        s_mov_b32 s{c.sWoff}, s{c.sT2}
        """)
        if c.op:
            make_srd(a, c.sR, pX, pX+1, 0, 2048 * 1280)
            make_srd(a, c.sO, pWS, pWS+1, WS_H, SZ_ACT)
        else:
            make_srd(a, c.sR, pWS, pWS+1, WS_H, SZ_ACT)
            make_srd(a, c.sO, pOUT, pOUT+1, 0, 2048 * 1280)
        a(f"""
        s_cmp_eq_u32 s{c.sT2}, 1
        s_cselect_b32 s44, 0x7f000000, 0
        s_cselect_b64 s[46:47], -1, 0
        """)
    def pretouch(self): pass
    def tile_off(self, T, tt, rowmajor):
        a, c = self.a, self
        if rowmajor:
            base = T * 32 + tt * 16 * 1280
            val = base
        else:
            val = T * 65536 + tt * 256
        if T == 2:
            a(f"s_add_u32 s{c.sT0}, s44, {val}")
        else:
            a(f"s_mov_b32 s{c.sT0}, {val}")
        return (c.vT + 1 if rowmajor else c.vT + 2), c.sT0
    def residual_loads(self):
        a, c = self.a, self
        for T in range(3):
            for tt in range(2):
                va, so = c.tile_off(T, tt, c.op)
                a(f"buffer_load_dwordx2 {vr(c.vRes + 2*(T*2 + tt), 2)}, v{va}, s[{c.sR}:{c.sR+3}], s{so} offen")
    def mainloop(self, stamp0=None, tag=''):
        a, c = self.a, self
        N = c.NST * 4
        def rlist(i):
            st_, k, buf = i // 4, i % 4, i % 3
            xa, wa = (c.vXa, c.vWa) if st_ % 2 == 0 else (c.vXa2, c.vWa2)
            L = [f"ds_read_b128 {vr(c.vX + buf*8 + tt*4, 4)}, v{xa} offset:{k*4096 + tt*256}" for tt in range(2)]
            for T in range(3):
                for h2 in range(2):
                    L.append(f"ds_read_b64_tr_b16 {vr(c.vW + buf*12 + T*4 + h2*2, 2)}, v{wa} offset:{k*5120 + h2*1280 + T*32}")
            return L
        def setaddr(st_):
            slot = (st_ % 4) * STG
            xa, wa = (c.vXa, c.vWa) if st_ % 2 == 0 else (c.vXa2, c.vWa2)
            a(f"v_add_u32 v{xa}, {slot}, v{c.vXb}")
            a(f"v_add_u32 v{wa}, {slot}, v{c.vWb}")
        a("s_barrier")
        stx(a, tag + '_s0')
        setaddr(0)
        for r in rlist(0) + rlist(1): a(r)
        for i in range(N):
            buf = i % 3
            rl = rlist(i + 2) if i + 2 < N else []
            a(f"s_waitcnt lgkmcnt({8 if i + 1 < N else 0})")
            k = 0
            for T in range(3):
                for tt in range(2):
                    acc = c.vAcc + (T*2 + tt) * 4
                    cc = "0" if i == 0 else vr(acc, 4)
                    a(f"v_mfma_f32_16x16x32_bf16 {vr(acc,4)}, {vr(c.vW + buf*12 + T*4, 4)}, {vr(c.vX + buf*8 + tt*4, 4)}, {cc}")
                    if k == 0 and i + 2 < N and (i + 2) % 4 == 0:
                        a("s_barrier")
                        if (i + 2) // 4 == 1: stx(a, tag + '_s1')
                        if (i + 2) // 4 == 4: stx(a, tag + '_s4')
                        setaddr((i + 2) // 4)
                    for r in rl[[0, 2, 4, 5, 6, 7][k]:[2, 4, 5, 6, 7, 8][k]]: a(r)
                    k += 1
        a("s_nop 7")
    def reduce(self):
        pass
    def epilogue(self):
        a, c = self.a, self
        vT, vRes = c.vT, c.vRes
        a("s_waitcnt vmcnt(0)")
        P = 8
        for T in range(3):
            for tt in range(2):
                n = T*2 + tt
                acc = c.vAcc + n*4
                rr = vRes + 2*n
                a(f"""
                v_lshlrev_b32 v24, 16, v{rr}
                v_and_b32 v25, 0xffff0000, v{rr}
                v_lshlrev_b32 v26, 16, v{rr+1}
                v_and_b32 v27, 0xffff0000, v{rr+1}
                v_add_f32 v{acc}, v{acc}, v24
                v_add_f32 v{acc+1}, v{acc+1}, v25
                v_add_f32 v{acc+2}, v{acc+2}, v26
                v_add_f32 v{acc+3}, v{acc+3}, v27
                v_cvt_pk_bf16_f32 v{P+2*n}, v{acc}, v{acc+1}
                v_cvt_pk_bf16_f32 v{P+2*n+1}, v{acc+2}, v{acc+3}
                """)
                va, so = c.tile_off(T, tt, not c.op)
                ins = f"buffer_store_dwordx2 {vr(P+2*n, 2)}, v{va}, s[{c.sO}:{c.sO+3}], s{so} offen @SC"
                if c.op: dual(a, [ins])
                else: a(ins.replace("@SC", E('OUTFL', '')))
        if c.op:
            for tt in range(2):
                S, Q = 28 + 2*tt, 29 + 2*tt
                first = True
                for T in range(3):
                    n = T*2 + tt
                    for d in range(2):
                        r = P + 2*n + d
                        a(f"v_lshlrev_b32 v24, 16, v{r}")
                        a(f"v_and_b32 v25, 0xffff0000, v{r}")
                        if T == 2:
                            a(f"v_cndmask_b32 v24, v24, 0, s[46:47]")
                            a(f"v_cndmask_b32 v25, v25, 0, s[46:47]")
                        if first:
                            a(f"v_add_f32 v{S}, v24, v25")
                            a(f"v_mul_f32 v{Q}, v24, v24")
                            first = False
                        else:
                            a(f"v_add_f32 v{S}, v{S}, v24")
                            a(f"v_add_f32 v{S}, v{S}, v25")
                            a(f"v_fmac_f32 v{Q}, v24, v24")
                        a(f"v_fmac_f32 v{Q}, v25, v25")
            a(f"""
            v_mov_b32 v32, v28
            v_mov_b32 v33, v29
            v_mov_b32 v34, v30
            v_mov_b32 v35, v31
            s_nop 1
            v_permlane32_swap_b32 v28, v32
            v_permlane32_swap_b32 v29, v33
            v_permlane32_swap_b32 v30, v34
            v_permlane32_swap_b32 v31, v35
            s_nop 1
            v_add_f32 v28, v28, v32
            v_add_f32 v29, v29, v33
            v_add_f32 v30, v30, v34
            v_add_f32 v31, v31, v35
            s_nop 0
            v_mov_b32 v32, v28
            v_mov_b32 v33, v29
            v_mov_b32 v34, v30
            v_mov_b32 v35, v31
            s_nop 1
            v_permlane16_swap_b32 v28, v32
            v_permlane16_swap_b32 v29, v33
            v_permlane16_swap_b32 v30, v34
            v_permlane16_swap_b32 v31, v35
            s_nop 1
            v_add_f32 v28, v28, v32
            v_add_f32 v29, v29, v33
            v_add_f32 v30, v30, v34
            v_add_f32 v31, v31, v35
            s_lshl_b32 s{c.sT0}, s{c.sNt}, 1
            s_add_u32 s{c.sT0}, s{c.sT0}, s{c.sWoff}
            s_lshl_b32 s{c.sT0}, s{c.sT0}, 14
            s_add_u32 s{c.sT0}, s{c.sT0}, {WS_ST2}
            v_lshlrev_b32 v32, 3, v{vT}
            s_mov_b64 exec, 0xffff
            """)
            dual(a, [f"buffer_store_dwordx2 v[28:29], v32, s[{sWS}:{sWS+3}], s{c.sT0} offen @SC",
                     f"buffer_store_dwordx2 v[30:31], v32, s[{sWS}:{sWS+3}], s{c.sT0} offen offset:128 @SC"])
            a("s_mov_b64 exec, -1")

KT = 1536
SLOT = 8 * KT + 16384
VOFF = 8 * KT
NSLOT = 5
FLAG = NSLOT * SLOT

def emit_attention(a, after_stores):
    name = "att"
    sK, sV, sQ, sO = 8, 12, 16, 20
    sHead, sQt, sT0, sT1, sT2 = 25, 26, 27, 28, 29
    sChunk, sSlotN, sPass, sKoff, sVoff, sKh = 30, 31, 32, 33, 34, 35
    sVmask = 38
    sSlotW, sE, sQg, sQb = 40, 41, 42, 43
    sW1s = 44
    vL16, vVoff = 2, 3
    vA3 = [[4, 5, 6], [7, 8, 9], [172, 173, 174]]
    vQ, vQr, vNC, vS, vP, vKb, vKr, vV, vO, vT = 10, 18, 22, 54, 86, 94, 102, 110, 126, 158
    lane_id(a, 0)
    lane_id(a, 1)
    a(f"""
    v_mov_b32 v4, {ROLE}
    ds_read_b96 v[6:8], v4
    s_waitcnt lgkmcnt(0)
    v_readfirstlane_b32 s{sX}, v6
    v_readfirstlane_b32 s{sRk}, v7
    v_readfirstlane_b32 s{sLoc}, v8
    s_and_b32 s{sT0}, s2, 7
    s_lshr_b32 s{sT1}, s2, 3
    s_cmp_eq_u32 s{sLoc}, 0
    s_cselect_b32 s{sX}, s{sT0}, s{sX}
    s_cselect_b32 s{sRk}, s{sT1}, s{sRk}
    s_mov_b32 s{sHead}, s{sRk}
    s_mov_b32 s{sQb}, s{sX}
    s_lshl_b32 s{sQt}, s{sQb}, 3
    s_mov_b32 s{sVmask}, 0x000fffff
    s_mov_b32 s{sVmask+1}, 0x000fffff
    s_mov_b32 s{sPass}, 0
    s_and_b32 s{sE}, s{sHead}, 1
    s_lshr_b32 s{sKh}, s{sWV}, 2
    s_and_b32 s{sQg}, s{sWV}, 3
    """)
    a(f"""
    v_lshlrev_b32 v{vL16}, 4, v0
    v_and_b32 v{vT}, 31, v0
    v_lshrrev_b32 v{vT+1}, 5, v0
    v_mul_u32_u24 v{vVoff}, 320, v{vT+1}
    v_lshlrev_b32 v{vT+2}, 4, v{vT}
    v_add_u32 v{vVoff}, v{vVoff}, v{vT+2}
    """)
    make_srd(a, sK, pWS, pWS+1, WS_K, SZ_QK)
    make_srd(a, sV, pWS, pWS+1, WS_V, SZ_QKV)
    make_srd(a, sQ, pWS, pWS+1, WS_Q, SZ_QK)
    make_srd(a, sO, pWS, pWS+1, WS_O, SZ_ACT)
    make_srd(a, sW1s, pW1, pW1+1, 0, 640*3456)
    a(f"""
    v_mov_b32 v{vT+4}, 0
    v_mov_b32 v{vT+3}, 0x3f803f80
    v_cmp_eq_u32 vcc, 20, v{vT}
    s_lshl_b32 s{sT0}, s{sWV}, 11
    s_add_u32 s{sT0}, s{sT0}, {VOFF}
    v_cndmask_b32 v{vT+4}, v{vT+4}, v{vT+3}, vcc
    v_add_u32 v{vT+3}, s{sT0}, v{vL16}
    v_mov_b32 v{vT+5}, v{vT+4}
    v_mov_b32 v{vT+6}, v{vT+4}
    v_mov_b32 v{vT+7}, v{vT+4}
    s_not_b64 exec, s[{sVmask}:{sVmask+1}]
    """)
    base = 0
    for sl in range(NSLOT):
        for j in range(2):
            off = sl * SLOT + j * 1024
            if off - base >= 65536 - 1024:
                a(f"v_add_u32 v{vT+3}, {sl*SLOT - base}, v{vT+3}")
                base = sl * SLOT
            a(f"ds_write_b128 v{vT+3}, {vr(vT+4,4)} offset:{off - base}")
    a(f"""
    s_mov_b64 exec, -1
    v_mov_b32 v{vT+3}, {FLAG}
    v_mov_b32 v{vT+4}, 0
    ds_write_b32 v{vT+3}, v{vT+4}
    """)
    def reinit():
        a(f"""
        s_lshl_b32 s{sT0}, s{sE}, 9
        s_mul_i32 s{sT1}, s{sKh}, {4*KT}
        s_add_u32 s{sT0}, s{sT0}, s{sT1}
        v_add_u32 v{vA3[0][0]}, s{sT0}, v{vL16}
        s_sub_u32 s{sT0}, 1, s{sE}
        s_lshl_b32 s{sT0}, s{sT0}, 10
        s_lshl_b32 s{sT2}, s{sE}, 3
        s_add_u32 s{sT0}, s{sT0}, s{sT2}
        s_add_u32 s{sT0}, s{sT0}, s{sT1}
        v_and_b32 v{vT}, 31, v0
        v_lshlrev_b32 v{vA3[0][1]}, 4, v{vT}
        v_add_u32 v{vA3[0][1]}, s{sT0}, v{vA3[0][1]}
        s_lshl_b32 s{sT0}, s{sKh}, 13
        s_add_u32 s{sT0}, s{sT0}, {VOFF}
        v_add_u32 v{vA3[0][2]}, s{sT0}, v{vL16}
        s_mov_b32 s{sSlotN}, {2*SLOT}
        s_lshr_b32 s{sT0}, s{sHead}, 1
        s_mul_i32 s{sT0}, s{sT0}, 163840
        s_mul_i32 s{sT1}, s{sWV}, 2560
        s_add_u32 s{sKoff}, s{sT0}, s{sT1}
        s_lshl_b32 s{sT1}, s{sE}, 10
        s_add_u32 s{sKoff}, s{sKoff}, s{sT1}
        s_mul_i32 s{sT0}, s{sHead}, 81920
        s_mul_i32 s{sT1}, s{sWV}, 1280
        s_add_u32 s{sVoff}, s{sT0}, s{sT1}
        s_mov_b32 s{sSlotW}, 0
        """)
        for k in range(3):
            a(f"v_add_u32 v{vA3[1][k]}, {SLOT}, v{vA3[0][k]}")
            a(f"v_add_u32 v{vA3[2][k]}, {2*SLOT}, v{vA3[0][k]}")
        for i in range(32): a(f"v_mov_b32 v{vO+i}, 0")
        for i in range(4):
            a(f"v_mov_b32 v{vP+4+i}, 0")
            a(f"v_mov_b32 v{vV+12+i}, 0")
    reinit()
    a(f"v_and_b32 v{vT+11}, 7, v0")
    a(f"v_lshlrev_b32 v{vT+11}, 7, v{vT+11}")
    a(f"v_add_u32 v{vT+11}, {WS_CNT + C_RPS*128}, v{vT+11}")
    a(f"v_mov_b32 v{vT+10}, 0")
    a(f"""
    s_lshl_b32 s{sT0}, s{sQg}, 1
    s_add_u32 s{sQt}, s{sQt}, s{sT0}
    v_lshlrev_b32 v{vT+13}, 4, v{vT}
    s_lshl_b32 s{sT1}, s{sE}, 3
    s_add_u32 s{sT1}, s{sT1}, 1024
    v_add_u32 v{vT+13}, s{sT1}, v{vT+13}
    v_mov_b32 v{vT+9}, 0x7fffff00
    """)
    a(f"""
    v_cmp_gt_u32 vcc, 32, v0
    s_mul_i32 s{sT1}, s{sE}, 1536
    v_cndmask_b32 v{vT+13}, v{vT+9}, v{vT+13}, vcc
    v_add_u32 v{vT+12}, s{sT1}, v{vL16}
    """)
    lw = a.newlabel("attw")
    a(f"""
    s_cmp_eq_u32 s{sWV}, 0
    s_cbranch_scc0 {lw}
    s_mul_i32 s{sT0}, s{sHead}, 20
    s_lshr_b32 s{sT1}, s{sT0}, 7
    s_add_u32 s{sT0}, s{sT0}, 19
    s_lshr_b32 s{sT0}, s{sT0}, 7
    v_and_b32 v{vT+3}, 1, v0
    v_mov_b32 v{vT+4}, s{sT1}
    v_mov_b32 v{vT+5}, s{sT0}
    v_cmp_eq_u32 vcc, 1, v{vT+3}
    v_lshrrev_b32 v{vT+6}, 1, v0
    v_mul_u32_u24 v{vT+6}, 5, v{vT+6}
    v_cndmask_b32 v{vT+4}, v{vT+4}, v{vT+5}, vcc
    v_add_u32 v{vT+4}, v{vT+4}, v{vT+6}
    v_add_u32 v{vT+4}, {C_QKV}, v{vT+4}
    v_lshlrev_b32 v{vT+4}, 7, v{vT+4}
    v_add_u32 v{vT+4}, {WS_CNT}, v{vT+4}
    v_mov_b32 v{vT+5}, 16
    """)
    poll(a, vT + 4, vT + 5, 6, vT + 6)
    a.label(lw)
    a("s_waitcnt lgkmcnt(0)")
    a("s_barrier")
    st(a, 5)
    def rpa():
        a("s_and_b32 s76, s2, 7")
        a(f"s_add_u32 s76, s76, {C_RPS}")
        arrive(a, 76, vT + 4)
    def dma_chunk():
        a(f"""
        s_mul_i32 s{sT0}, s{sWV}, {KT}
        s_add_u32 m0, s{sSlotW}, s{sT0}
        s_lshl_b32 s{sT1}, s{sWV}, 11
        buffer_load_dwordx4 v{vL16}, s[{sK}:{sK+3}], s{sKoff} offen lds
        s_mov_b32 exec_hi, 0
        buffer_load_dwordx4 v{vL16}, s[{sK}:{sK+3}], s{sKoff} offen offset:1024 lds
        s_add_u32 s{sT1}, s{sT1}, s{sSlotW}
        s_add_u32 m0, s{sT1}, {VOFF}
        s_mov_b64 exec, s[{sVmask}:{sVmask+1}]
        buffer_load_dwordx4 v{vVoff}, s[{sV}:{sV+3}], s{sVoff} offen lds
        s_add_u32 m0, m0, 1024
        s_add_u32 s{sT1}, s{sVoff}, 640
        buffer_load_dwordx4 v{vVoff}, s[{sV}:{sV+3}], s{sT1} offen lds
        s_mov_b64 exec, -1
        s_add_u32 s{sKoff}, s{sKoff}, {8*2560}
        s_add_u32 s{sVoff}, s{sVoff}, 10240
        s_add_u32 s{sSlotW}, s{sSlotW}, {SLOT}
        s_cmp_ge_u32 s{sSlotW}, {NSLOT*SLOT}
        s_cselect_b32 s{sSlotW}, 0, s{sSlotW}
        """)
    dma_chunk()
    a(f"s_lshr_b32 s{sT0}, s{sHead}, 1")
    a(f"s_mul_i32 s{sT0}, s{sT0}, 163840")
    for s in range(2):
        a(f"""
        s_xor_b32 s{sT1}, s{sKh}, {s}
        s_add_u32 s{sT1}, s{sT1}, s{sQt}
        s_mul_i32 s{sT1}, s{sT1}, 2560
        s_add_u32 s{sT1}, s{sT1}, s{sT0}
        buffer_load_dwordx4 {vr(vQ+4*s,4)}, v{vT+12}, s[{sQ}:{sQ+3}], s{sT1} offen
        buffer_load_dwordx2 {vr(vQr+2*s,2)}, v{vT+13}, s[{sQ}:{sQ+3}], s{sT1} offen
        """)
    dma_chunk()
    a(f"s_branch L_{name}_start")
    a.label(f"L_{name}_restart")
    reinit()
    dma_chunk(); dma_chunk()
    a.label(f"L_{name}_start")
    vKc, vKrc, vVc = vA3[0]
    a(f"""
    s_waitcnt vmcnt(4)
    s_barrier
    s_cmp_eq_u32 s{sPass}, 0
    s_cbranch_scc0 L_{name}_haveC
    s_mul_i32 s{sT1}, s{sKh}, {4*KT}
    v_subrev_u32 v{vT+1}, s{sT1}, v{vKc}
    v_subrev_u32 v{vT+2}, s{sT1}, v{vKrc}
    ds_read_b128 {vr(vKb,4)}, v{vT+1}
    ds_read_b64 {vr(vKr,2)}, v{vT+2}
    s_waitcnt lgkmcnt(0)
    """)
    for s in range(2):
        S = vS + 16*s
        a(f"v_mfma_f32_32x32x16_bf16 {vr(S,16)}, {vr(vKb,4)}, {vr(vQ+4*s,4)}, 0")
    for s in range(2):
        S = vS + 16*s
        a(f"v_mfma_f32_32x32x8_bf16 {vr(S,16)}, {vr(vKr,2)}, {vr(vQr+2*s,2)}, {vr(S,16)}")
    a(f"""
    ds_read_b128 {vr(vKb,4)}, v{vKc}
    ds_read2st64_b64 {vr(vKr,4)}, v{vKrc} offset0:0 offset1:3
    ds_read_b128 {vr(vV,4)}, v{vVc}
    ds_read_b128 {vr(vV+4,4)}, v{vVc} offset:1024
    s_nop 11
    """)
    for s in range(2):
        S = vS + 16*s
        T_ = vT + 2*s
        a(f"v_max3_f32 v{T_}, v{S}, v{S+1}, v{S+2}")
        for i in range(3, 15, 2):
            a(f"v_max3_f32 v{T_}, v{T_}, v{S+i}, v{S+i+1}")
        a(f"v_max_f32 v{T_}, v{T_}, v{S+15}")
    a(f"""
    v_mov_b32 v{vT+1}, v{vT}
    v_mov_b32 v{vT+3}, v{vT+2}
    s_nop 1
    v_permlane32_swap_b32 v{vT}, v{vT+1}
    v_permlane32_swap_b32 v{vT+2}, v{vT+3}
    s_nop 1
    v_max_f32 v{vT}, v{vT}, v{vT+1}
    v_max_f32 v{vT+2}, v{vT+2}, v{vT+3}
    v_sub_f32 v{vNC}, 0, v{vT}
    v_sub_f32 v{vNC+16}, 0, v{vT+2}
    """)
    for i in range(1, 16):
        a(f"v_mov_b32 v{vNC+i}, v{vNC}")
        a(f"v_mov_b32 v{vNC+16+i}, v{vNC+16}")
    a(f"s_branch L_{name}_haveC2")
    a.label(f"L_{name}_haveC")
    a(f"""
    ds_read_b128 {vr(vKb,4)}, v{vKc}
    ds_read2st64_b64 {vr(vKr,4)}, v{vKrc} offset0:0 offset1:3
    ds_read_b128 {vr(vV,4)}, v{vVc}
    ds_read_b128 {vr(vV+4,4)}, v{vVc} offset:1024
    """)
    a.label(f"L_{name}_haveC2")
    a(f"""
    s_waitcnt lgkmcnt(0)
    v_mfma_f32_32x32x16_bf16 {vr(vS,16)}, {vr(vKb,4)}, {vr(vQ,4)}, {vr(vNC,16)}
    v_mfma_f32_32x32x8_bf16 {vr(vS,16)}, {vr(vKr,2)}, {vr(vQr,2)}, {vr(vS,16)}
    s_mov_b32 s{sChunk}, 0
    s_nop 7
    """)
    st(a, 6)
    a(f"""
    s_cmp_eq_u32 s{sKh}, 0
    s_cselect_b32 s36, 7, 0
    s_cselect_b32 s37, 0, 7
    """)
    ool = []
    def rare(mask, fn, tag):
        l, b = a.newlabel(tag), a.newlabel(tag + "b")
        a(f"s_bitcmp1_b32 {mask:#x}, s{sChunk}")
        a(f"s_cbranch_scc1 {l}")
        a.label(b)
        ool.append((l, b, fn))
    def common_(mask, fn, tag):
        l = a.newlabel(tag)
        a(f"s_bitcmp1_b32 {mask if isinstance(mask, str) else hex(mask)}, s{sChunk}")
        a(f"s_cbranch_scc0 {l}")
        fn()
        a.label(l)
    def pf_A(half, which='w1'):
        if which == 'w1':
            a(f"""
            v_lshlrev_b32 v{vT+12}, 7, v0
            s_mul_i32 s{sT0}, s{sRk}, 69120
            s_lshl_b32 s{sT1}, s{sWV}, 13
            s_add_u32 s{sT0}, s{sT0}, s{sT1}
            s_mov_b32 exec_lo, {-1 if half == 0 else 0}
            s_mov_b32 exec_hi, {0 if half == 0 else -1}
            buffer_load_dword v{vT+13}, v{vT+12}, s[{sW1s}:{sW1s+3}], s{sT0} offen sc1
            s_mov_b64 exec, -1
            """)
        else:
            a(f"""
            v_lshlrev_b32 v{vT+12}, 7, v0
            s_mul_i32 s{sT0}, s{sRk}, {SZ_W2P // 32}
            s_lshl_b32 s{sT1}, s{sWV}, 13
            s_add_u32 s{sT0}, s{sT0}, s{sT1}
            s_add_u32 s{sT0}, s{sT0}, {WS_W2P}
            s_mov_b32 exec_lo, {-1 if half == 0 else 0}
            s_mov_b32 exec_hi, {0 if half == 0 else -1}
            buffer_load_dword v{vT+13}, v{vT+12}, s[{sWS}:{sWS+3}], s{sT0} offen sc1
            s_mov_b64 exec, -1
            """)
    def pf_B():
        l5, l4, le = a.newlabel("pf5"), a.newlabel("pf4"), a.newlabel("pfe")
        a(f"""
        v_lshlrev_b32 v{vT+12}, 7, v0
        s_cmp_ge_u32 s{sWV}, 5
        s_cbranch_scc1 {l5}
        s_cmp_eq_u32 s{sWV}, 4
        s_cbranch_scc1 {l4}
        s_mul_i32 s{sT0}, s{sRk}, {SZ_WOP // 32}
        s_lshl_b32 s{sT1}, s{sWV}, 13
        s_add_u32 s{sT0}, s{sT0}, s{sT1}
        s_add_u32 s{sT0}, s{sT0}, {WS_WOP}
        buffer_load_dword v{vT+13}, v{vT+12}, s[{sWS}:{sWS+3}], s{sT0} offen sc1
        s_branch {le}
        """)
        a.label(l4)
        a(f"""
        s_mul_i32 s{sT0}, s{sRk}, 69120
        s_add_u32 s{sT0}, s{sT0}, 65536
        s_mov_b32 exec_hi, 0
        buffer_load_dword v{vT+13}, v{vT+12}, s[{sW1s}:{sW1s+3}], s{sT0} offen sc1
        s_mov_b32 exec_hi, -1
        s_branch {le}
        """)
        a.label(l5)
        a(f"""
        s_sub_u32 s{sT1}, s{sWV}, 5
        s_lshl_b32 s{sT1}, s{sT1}, 5
        s_mul_i32 s{sT0}, s{sRk}, 80
        s_add_u32 s{sT0}, s{sT0}, s{sT1}
        v_and_b32 v{vT+8}, 31, v0
        v_add_u32 v{vT+8}, s{sT0}, v{vT+8}
        v_lshrrev_b32 v{vT+9}, 5, v{vT+8}
        v_lshlrev_b32 v{vT+9}, 15, v{vT+9}
        v_and_b32 v{vT+8}, 31, v{vT+8}
        v_lshlrev_b32 v{vT+8}, 7, v{vT+8}
        v_add_u32 v{vT+8}, v{vT+8}, v{vT+9}
        s_lshl_b32 s{sT0}, s{sX}, 12
        s_mov_b32 exec_hi, 0
        buffer_load_dword v{vT+13}, v{vT+8}, s[{sO}:{sO+3}], s{sT0} offen sc1
        s_mov_b32 exec_hi, -1
        """)
        a.label(le)
    def rp_issue():
        a("s_mov_b64 exec, 0xff")
        a(f"buffer_load_dword v{vT+10}, v{vT+11}, s[{sWS}:{sWS+3}], 0 offen sc1")
        a("s_mov_b64 exec, -1")
    def rp_check():
        ok = a.newlabel("rpok")
        a("s_mov_b64 exec, 0xff")
        a(f"v_cmp_gt_u32 vcc, 32, v{vT+10}")
        a("s_nop 4")
        a("s_cmp_eq_u64 vcc, 0")
        a(f"s_cbranch_scc1 {ok}")
        a(f"v_mov_b32 v{vT+9}, 32")
        poll(a, vT + 11, vT + 9, 8, vT + 10)
        a.label(ok)
        a("s_mov_b64 exec, -1")
    def rp_store():
        le = a.newlabel("rse")
        a(f"s_cmp_eq_u32 s{sPass}, 0")
        a(f"s_cbranch_scc0 {le}")
        a(f"s_cmp_ge_u32 s{sWV}, 4")
        a(f"s_cbranch_scc0 {le}")
        for r in range(3): a(f"v_accvgpr_read_b32 v{vT+4+r}, a{40+r}")
        a(f"s_mov_b32 s76, {WS_WOP}")
        for r in range(3):
            a(f"buffer_store_dwordx4 {ar(28+4*r,4)}, v{vT+4+r}, s[{sWS}:{sWS+3}], s76 offen {SC}")
        a.label(le)
    def rp_post():
        l2, le = a.newlabel("rp2"), a.newlabel("rpe")
        a(f"s_cmp_eq_u32 s{sChunk}, 0")
        a(f"s_cbranch_scc0 {l2}")
        a(f"s_cmp_eq_u32 s{sPass}, 0")
        a(f"s_cbranch_scc0 {le}")
        wave_only(a, 4, rpa)
        a(f"s_branch {le}")
        a.label(l2)
        rp_check()
        a.label(le)
    if E('A_PRIO'):
        l = a.newlabel("prio")
        a(f"s_cmp_ge_u32 s{sWV}, 4")
        a(f"s_cbranch_scc0 {l}")
        a(f"s_setprio {E('A_PRIO')}")
        a.label(l)
    a(".p2align 6")
    a.label(f"L_{name}_loop")
    rd = (lambda x: None) if E('A_NORD') else a
    for u in range(16):
        p = u & 1
        t = u >> 1
        D1 = int(E('A_D1', '6'))
        PS = E('PFSEL', 'w1')
        if u == 0:
            if not E('A_NODMA'): common_(0b0111, dma_chunk, "d0")
            if not E('NOPF2'): rare(0b1000, lambda: pf_A(0, 'w2' if PS == 'w2' else 'w1'), "pa")
        if u == 4 and not E('NOPF2'): rare(0b1000, lambda: pf_A(1, 'w2' if PS == 'w2' else 'w1'), "pb")
        if PS == 'both':
            if u == 10: rare(0b0100, lambda: pf_A(0, 'w2'), "pd")
            if u == 12: rare(0b0100, lambda: pf_A(1, 'w2'), "pe")
        if u == 6 and not E('A_NOBAR'):
            rare(0b0001, lambda: (a(f"s_waitcnt vmcnt({8 if D1 < 6 else 4})"), a("s_barrier")), "c1")
        if u == D1 and not E('A_NODMA'): common_(0b0111, dma_chunk, "d1")
        if u == 8 and not E('NOPF2'): rare(0b1000, pf_B, "pc")
        if u == 10: rare(0b0001, rp_store, "rps")
        if u == 14:
            rare(0b0100, rp_issue, "rpi")
            a("s_waitcnt vmcnt(0)")
            if not E('A_NOBAR'): a("s_barrier")
            rare(0b0101, rp_post, "rpc")
        tn = t + 1
        A = vA3[tn // 4]
        if p == 0:
            rd(f"ds_read_b128 {vr(vKb + 4*(tn&1),4)}, v{A[0]} offset:{(tn%4)*KT}")
            if tn % 2 == 0:
                pb = (tn // 2) & 1
                rd(f"ds_read2st64_b64 {vr(vKr + 4*pb,4)}, v{A[1]} offset0:{(tn%4)*3} offset1:{(tn%4)*3+3}")
            rd(f"ds_read_b128 {vr(vV + 8*(tn&1),4)}, v{A[2]} offset:{(tn%4)*2048}")
        else:
            rd("s_waitcnt lgkmcnt(0)")
        un = u + 1
        tq = un >> 1
        qs = un & 1
        Sc, Sn = vS + 16*p, vS + 16*(p^1)
        kbuf = vKb + 4*(tq & 1)
        krbuf = vKr + 4*((tq // 2) & 1) + 2*(tq & 1)
        ex = lambda r: a(f"v_exp_f32 v{Sc+r}, v{Sc+r}")
        cv = lambda r: a(f"v_cvt_pk_bf16_f32 v{vP+r}, v{Sc+2*r}, v{Sc+2*r+1}")
        a(f"v_mfma_f32_32x32x16_bf16 {vr(Sn,16)}, {vr(kbuf,4)}, {vr(vQ+4*qs,4)}, {vr(vNC+16*qs,16)}")
        for r in range(4): ex(r)
        tp = (u - 1) >> 1 if u > 0 else -1
        Op = vO + 16*((u - 1) & 1)
        a(f"v_mfma_f32_32x32x16_bf16 {vr(Op,16)}, {vr(vV + 8*(tp & 1) + 4,4)}, {vr(vP+4,4)}, {vr(Op,16)}")
        if p == 0:
            rd(f"ds_read_b128 {vr(vV + 8*(tn&1) + 4,4)}, v{A[2]} offset:{(tn%4)*2048 + 1024}")
        for r in range(4, 8): ex(r)
        cv(0); cv(1)
        a(f"v_mfma_f32_32x32x8_bf16 {vr(Sn,16)}, {vr(krbuf,2)}, {vr(vQr+2*qs,2)}, {vr(Sn,16)}")
        cv(2); cv(3)
        for r in range(8, 12): ex(r)
        Oc = vO + 16*p
        a(f"v_mfma_f32_32x32x16_bf16 {vr(Oc,16)}, {vr(vV + 8*(t & 1),4)}, {vr(vP,4)}, {vr(Oc,16)}")
        for r in range(12, 16): ex(r)
        if u == 15:
            a(f"""
            s_add_u32 s{sT0}, s{sSlotN}, {SLOT}
            s_cmp_ge_u32 s{sT0}, {NSLOT*SLOT}
            s_cselect_b32 s{sT1}, {NSLOT*SLOT}, 0
            s_sub_u32 s{sT0}, s{sT0}, s{sT1}
            s_sub_u32 s{sT1}, s{sT0}, s{sSlotN}
            s_add_u32 s{sT2}, s{sT0}, {SLOT}
            s_cmp_ge_u32 s{sT2}, {NSLOT*SLOT}
            s_cselect_b32 s{sT0}, {NSLOT*SLOT}, 0
            s_sub_u32 s{sT2}, s{sT2}, s{sT0}
            s_sub_u32 s{sT0}, s{sT2}, s{sSlotN}
            s_mov_b32 s{sSlotN}, s{sT2}
            """)
            for k in range(3):
                a(f"v_mov_b32 v{vA3[0][k]}, v{vA3[2][k]}")
                a(f"v_add_u32 v{vA3[1][k]}, s{sT1}, v{vA3[2][k]}")
                a(f"v_add_u32 v{vA3[2][k]}, s{sT0}, v{vA3[2][k]}")
        for r in range(4, 8): cv(r)
    a(f"""
    s_add_u32 s{sChunk}, s{sChunk}, 1
    s_cmp_lt_u32 s{sChunk}, 4
    s_cbranch_scc1 L_{name}_loop
    s_waitcnt lgkmcnt(0)
    """)
    a(f"v_mfma_f32_32x32x16_bf16 {vr(vO+16,16)}, {vr(vV + 8 + 4,4)}, {vr(vP+4,4)}, {vr(vO+16,16)}")
    st(a, 7)
    a(f"s_branch L_{name}_post")
    for l, b, fn in ool:
        a.label(l)
        fn()
        a(f"s_branch {b}")
    a.label(f"L_{name}_post")
    a(f"""
    s_barrier
    s_lshl_b32 s{sT0}, s{sQg}, 1
    s_add_u32 s{sT1}, s{sT0}, s{sKh}
    s_lshr_b32 s{sT2}, s{sT1}, 2
    s_mul_i32 s{sT2}, s{sT2}, {SLOT}
    s_and_b32 s{sT1}, s{sT1}, 3
    s_mul_i32 s{sT1}, s{sT1}, 3072
    s_add_u32 s{sT1}, s{sT1}, s{sT2}
    v_add_u32 v{vT}, s{sT1}, v{vL16}
    s_xor_b32 s{sT1}, s{sKh}, 1
    s_add_u32 s{sT1}, s{sT1}, s{sT0}
    s_lshr_b32 s{sT2}, s{sT1}, 2
    s_mul_i32 s{sT2}, s{sT2}, {SLOT}
    s_and_b32 s{sT1}, s{sT1}, 3
    s_mul_i32 s{sT1}, s{sT1}, 3072
    s_add_u32 s{sT1}, s{sT1}, s{sT2}
    v_add_u32 v{vT+1}, s{sT1}, v{vL16}
    s_nop 7
    """)
    stx(a, 'a_bar1')
    for i in range(3):
        a(f"ds_write_b128 v{vT}, {vr(vO+16+4*i,4)} offset:{i*1024}")
    a("s_waitcnt lgkmcnt(0)")
    a("s_barrier")
    stx(a, 'a_bar2')
    for i in range(3):
        a(f"ds_read_b128 {vr(vS+4*i,4)}, v{vT+1} offset:{i*1024}")
    a("s_waitcnt lgkmcnt(0)")
    for r in range(12):
        a(f"v_add_f32 v{vO+r}, v{vO+r}, v{vS+r}")
    a(f"v_mov_b32 v{vT}, 0")
    for r in range(12):
        a(f"v_fma_f32 v{vT}, v{vO+r}, 0, v{vT}")
    a(f"""
    s_cmp_eq_u32 s{sPass}, 0
    s_cbranch_scc0 L_{name}_store2
    v_cmp_u_f32 vcc, v{vT}, v{vT}
    s_nop 4
    s_cmp_eq_u64 vcc, 0
    s_cbranch_scc1 L_{name}_store2
    v_mov_b32 v{vT+1}, {FLAG}
    v_mov_b32 v{vT+2}, 1
    ds_write_b32 v{vT+1}, v{vT+2}
    s_branch L_{name}_store2
    L_{name}_redo:
    s_mov_b32 s{sPass}, 1
    v_mov_b32 v{vT}, 0xff800000
    v_mov_b32 v{vT+1}, 0xff800000
    s_lshr_b32 s{sT0}, s{sHead}, 1
    s_mul_i32 s{sT0}, s{sT0}, 163840
    s_mov_b32 s{sT1}, 0
    v_and_b32 v{vT+2}, 31, v0
    v_lshlrev_b32 v{vT+2}, 4, v{vT+2}
    s_lshl_b32 s{sT2}, s{sE}, 3
    s_add_u32 s{sT2}, s{sT2}, 1024
    v_add_u32 v{vT+2}, s{sT2}, v{vT+2}
    s_mul_i32 s{sT2}, s{sE}, 1536
    v_add_u32 v{vT+3}, s{sT2}, v{vL16}
    L_{name}_maxloop:
    buffer_load_dwordx4 {vr(vKb,4)}, v{vT+3}, s[{sK}:{sK+3}], s{sT0} offen
    buffer_load_dwordx2 {vr(vKr,2)}, v{vT+2}, s[{sK}:{sK+3}], s{sT0} offen
    s_waitcnt vmcnt(0)
    """)
    for s in range(2):
        S = vS + 16*s
        a(f"v_mfma_f32_32x32x16_bf16 {vr(S,16)}, {vr(vKb,4)}, {vr(vQ+4*s,4)}, 0")
        a(f"v_mfma_f32_32x32x8_bf16 {vr(S,16)}, {vr(vKr,2)}, {vr(vQr+2*s,2)}, {vr(S,16)}")
    a("s_nop 15")
    for s in range(2):
        for i in range(0, 16, 2):
            a(f"v_max3_f32 v{vT+s}, v{vT+s}, v{vS+16*s+i}, v{vS+16*s+i+1}")
    a(f"""
    s_add_u32 s{sT0}, s{sT0}, 2560
    s_add_u32 s{sT1}, s{sT1}, 1
    s_cmp_lt_u32 s{sT1}, 64
    s_cbranch_scc1 L_{name}_maxloop
    """)
    for s in range(2):
        a(f"""
        v_mov_b32 v{vT+2}, v{vT+s}
        s_nop 1
        v_permlane32_swap_b32 v{vT+s}, v{vT+2}
        s_nop 1
        v_max_f32 v{vT+2}, v{vT+s}, v{vT+2}
        v_sub_f32 v{vNC+16*s}, 0, v{vT+2}
        """)
        for i in range(1, 16):
            a(f"v_mov_b32 v{vNC+16*s+i}, v{vNC+16*s}")
    a("s_barrier")
    a(f"s_branch L_{name}_restart")
    a.label(f"L_{name}_store2")
    stx(a, 'a_vote')
    a(f"""
    v_mov_b32 v{vT}, v{vO+8}
    v_mov_b32 v{vT+1}, v{vO+8}
    s_nop 1
    v_permlane32_swap_b32 v{vT}, v{vT+1}
    s_nop 1
    v_rcp_f32 v{vT+1}, v{vT+1}
    v_lshrrev_b32 v{vT+2}, 5, v0
    v_and_b32 v{vT+3}, 31, v0
    s_add_u32 s{sT0}, s{sQt}, s{sKh}
    s_lshl_b32 s{sT0}, s{sT0}, 5
    v_add_u32 v{vT+3}, s{sT0}, v{vT+3}
    v_lshlrev_b32 v{vT+3}, 4, v{vT+3}
    s_mul_i32 s{sT0}, s{sHead}, 5
    v_add_u32 v{vT+2}, s{sT0}, v{vT+2}
    """)
    for r in range(12):
        a(f"v_mul_f32 v{vO+r}, v{vO+r}, v{vT+1}")
    for q in range(3):
        a(f"""
        v_add_u32 v{vT+4}, {2*q}, v{vT+2}
        v_lshrrev_b32 v{vT+5}, 1, v{vT+4}
        v_lshlrev_b32 v{vT+5}, 15, v{vT+5}
        v_and_b32 v{vT+4}, 1, v{vT+4}
        v_lshlrev_b32 v{vT+4}, 3, v{vT+4}
        v_add3_u32 v{vT+4}, v{vT+4}, v{vT+5}, v{vT+3}
        v_cvt_pk_bf16_f32 v{vT+6}, v{vO+4*q}, v{vO+4*q+1}
        v_cvt_pk_bf16_f32 v{vT+7}, v{vO+4*q+2}, v{vO+4*q+3}
        """)
        if q == 2: a("s_mov_b32 exec_hi, 0")
        dual(a, [f"buffer_store_dwordx2 {vr(vT+6,2)}, v{vT+4}, s[{sO}:{sO+3}], 0 offen @SC"])
    a("s_mov_b64 exec, -1")
    stx(a, 'a_stores')
    a(f"""
    s_waitcnt vmcnt(0) lgkmcnt(0)
    s_barrier
    v_mov_b32 v{vT+1}, {FLAG}
    ds_read_b32 v{vT+2}, v{vT+1}
    s_waitcnt lgkmcnt(0)
    v_readfirstlane_b32 s{sT0}, v{vT+2}
    s_cmp_eq_u32 s{sPass}, 0
    s_cselect_b32 s{sT0}, s{sT0}, 0
    s_cmp_lg_u32 s{sT0}, 0
    s_cbranch_scc1 L_{name}_redo
    """)
    a(f"s_add_u32 s76, s{sQb}, {C_ATT}")

def gemm_phase_prologue_loader(a, core, q, dep_idx_sgpr, dep_target, nW, pre_issued):
    pass

LANDED = [True]
def reg_step1(a, vd):
    a("s_mov_b64 exec, 7")
    a(f"buffer_load_dword v{vd}, v{vd+1}, s[44:47], 0 offen sc1")
    a("s_mov_b64 exec, -1")
def reg_step2(a, vd):
    dbg_flag_wait(a, vd, landed=LANDED[0])
    a(f"""
    s_getreg_b32 s{sX}, hwreg(HW_REG_XCC_ID)
    s_and_b32 s{sX}, s{sX}, 7
    s_add_u32 s76, s{sX}, {C_RK}
    s_lshl_b32 s76, s76, 7
    s_add_u32 s76, s76, {WS_CNT}
    v_mov_b32 v{vd-1}, s76
    v_accvgpr_write_b32 a0, 1
    s_mov_b64 exec, 1
    s_nop 1
    buffer_atomic_add a0, v{vd-1}, s[{sWS}:{sWS+3}], 0 offen sc0
    s_mov_b64 exec, -1
    """)
def reg_step3(a, vd):
    l1, l2 = a.newlabel("r3a"), a.newlabel("r3b")
    if not LANDED[0]: a("s_waitcnt vmcnt(0)")
    a(f"""
    v_accvgpr_read_b32 v{vd-1}, a0
    s_nop 1
    v_readfirstlane_b32 s{sRk}, v{vd-1}
    s_cmp_eq_u32 s{sRk}, 31
    s_cbranch_scc0 {l1}
    v_mov_b32 v{vd-1}, 4
    v_mov_b32 v{vd-2}, 1
    s_mov_b64 exec, 1
    buffer_atomic_add v{vd-2}, v{vd-1}, s[44:47], 0 offen sc1
    s_mov_b64 exec, -1
    """)
    a.label(l1)
    a(f"""
    s_cmp_ge_u32 s{sRk}, 32
    s_cbranch_scc0 {l2}
    v_mov_b32 v{vd-1}, 8
    v_mov_b32 v{vd-2}, 1
    s_mov_b64 exec, 1
    buffer_store_dword v{vd-2}, v{vd-1}, s[44:47], 0 offen sc1
    s_mov_b64 exec, -1
    """)
    a.label(l2)
    a("s_mov_b64 exec, 7")
    a(f"buffer_load_dword v{vd}, v{vd+1}, s[44:47], 0 offen sc1")
    a("s_mov_b64 exec, -1")
def register_publish(a, vd):
    l0, l1 = a.newlabel("rp"), a.newlabel("rpok")
    a(f"s_mov_b32 s{sPoll}, 0")
    a.label(l0)
    a(f"""
    s_waitcnt vmcnt(0)
    v_readlane_b32 s39, v{vd}, 1
    v_readlane_b32 s40, v{vd}, 2
    s_cmp_eq_u32 s39, 8
    s_cselect_b32 s38, 1, 0
    s_cmp_lg_u32 s40, 0
    s_cselect_b32 s38, 0, s38
    s_cbranch_scc1 {l1}
    s_cmp_eq_u32 s38, 1
    s_cbranch_scc1 {l1}
    s_add_u32 s{sPoll}, s{sPoll}, 1
    s_cmp_gt_u32 s{sPoll}, {POLL_MAX}
    s_cbranch_scc1 {l1}
    s_sleep 1
    s_mov_b64 exec, 7
    buffer_load_dword v{vd}, v{vd+1}, s[44:47], 0 offen sc1
    s_mov_b64 exec, -1
    s_branch {l0}
    """)
    a.label(l1)
    if E('FORCE_SLOW'): a("s_mov_b32 s38, 0")
    a(f"""
    v_mov_b32 v{vd-6}, s{sX}
    v_mov_b32 v{vd-4}, s38
    v_mov_b32 v{vd-5}, s{sRk}
    v_mov_b32 v{vd-7}, {ROLE}
    ds_write_b96 v{vd-7}, v[{vd-6}:{vd-4}]
    s_waitcnt lgkmcnt(0)
    """)
def wave_only(a, w, fn):
    l = a.newlabel("wo")
    a(f"s_cmp_eq_u32 s{sWV}, {w}")
    a(f"s_cbranch_scc0 {l}")
    fn()
    a.label(l)
def code_prefetch(a):
    a(f"""
    s_getpc_b64 s[40:41]
    s_and_b32 s40, s40, 0xffffff00
    s_lshr_b32 s42, s2, 3
    s_lshl_b32 s42, s42, 11
    v_lshlrev_b32 v26, 7, v1
    v_add_u32 v26, s42, v26
    s_mov_b64 exec, 0xffff
    global_load_dword v31, v26, s[40:41]
    s_mov_b64 exec, -1
    """)

def tlb_warm(a):
    G = int(E('TLBG', '16'))
    a(f"""
    s_lshr_b32 s42, s2, 3
    v_lshlrev_b32 v160, 5, v1
    v_add_u32 v160, s42, v160
    v_lshlrev_b32 v160, {G}, v160
    """)
    n_ws = -(-WS_END >> G)
    a(f"s_mov_b64 exec, {(1 << min(64, -(-n_ws // 32))) - 1:#x}")
    a(f"buffer_load_dword v161, v160, s[{sWS}:{sWS+3}], 0 offen sc1")
    a("s_mov_b64 exec, 3")
    for k, (pp, size) in enumerate(((pW1, 640*3456), (pW2, 1728*1280), (pWO, 640*1280), (pOUT, 2048*1280), (pX, 2048*1280), (pWQ, 640*3840))):
        make_srd(a, 44, pp, pp+1, 0, size)
        a(f"buffer_load_dword v{162+k}, v160, s[44:47], 0 offen sc1")
    a("s_mov_b64 exec, -1")
    make_srd(a, 44, pW1, pW1+1, 0, 640*3456)
    a(f"""
    s_mul_i32 s42, s2, 8640
    v_lshlrev_b32 v160, 7, v1
    buffer_load_dword v161, v160, s[44:47], s42 offen sc1
    s_add_u32 s42, s42, 8192
    s_mov_b64 exec, 15
    buffer_load_dword v161, v160, s[44:47], s42 offen sc1
    s_mov_b64 exec, -1
    """)

CODE_KB = 64
def gen_mega():
    a = Asm()
    a(f"""
    s_cmp_ge_u32 s2, 256
    s_cbranch_scc1 L_exit
    s_load_dwordx8 s[84:91], s[0:1], 0
    s_load_dwordx8 s[92:99], s[0:1], 32
    s_load_dwordx2 s[78:79], s[0:1], 64
    """)
    st_rt(a, 0); st(a, 1)
    a(f"""
    v_lshrrev_b32 v2, 6, v0
    s_nop 0
    v_readfirstlane_b32 s{sWV}, v2
    """)
    lane_id(a, 1)
    if not E('NOPF'):
        l = a.newlabel("pf")
        a(f"s_cmp_eq_u32 s{sWV}, 1")
        a(f"s_cbranch_scc0 {l}")
        code_prefetch(a)
        a.label(l)
    a("s_waitcnt lgkmcnt(0)")
    make_srd(a, sWS, pWS, pWS+1, 0, WS_END)
    if E('TLB'):
        l = a.newlabel("tlb")
        a(f"s_cmp_eq_u32 s{sWV}, 3")
        a(f"s_cbranch_scc0 {l}")
        tlb_warm(a)
        a.label(l)
    L = CoreL(a, 'qkv', 'q')
    L.map_tiles("L_repack")
    a(f"""
    s_cmp_ge_u32 s{sWV}, 4
    s_cbranch_scc0 L_q_compute
    """)
    L.loader_setup()
    st(a, 2)
    q = VmQ()
    for s_ in range(PD):
        L.issue_A(s_); q.push(f"A{s_}", 4)
        if not FS: stamp(a, 9 + 2*s_, base=SB)
        L.issue_W(s_); q.push(f"W{s_}", 4)
        if not FS: stamp(a, 10 + 2*s_, base=SB)
    st(a, 3)
    make_srd(a, 44, pDBG, pDBG+1, 0, 256)
    a("v_lshlrev_b32 v71, 2, v1")
    a("v_mov_b32 v70, 0")
    PL = P0L(a, L)
    if E('P0L'):
        PL.issue(); q.push('p0l', 5)
    L.p0l = PL
    RP = Repack(a)
    RP.issue(defer=True)
    L.ldstamps = True
    L.loader_main(q)
    st(a, 8)
    a("s_waitcnt lgkmcnt(0)")
    a("s_barrier")
    wave_only(a, 7, lambda: register_publish(a, 70))
    a("s_barrier")
    RP.loads()
    for r in range(3): a(f"v_accvgpr_write_b32 a{40+r}, v{RP.vD+r}")
    a("s_branch L_attn")
    a.label("L_q_compute")
    L.compute_setup()
    make_srd(a, 44, pDBG, pDBG+1, 0, 256)
    a(f"v_lshlrev_b32 v{L.vSt+27}, 2, v1")
    a(f"v_mov_b32 v{L.vSt+26}, 0")
    a(f"""
    s_cmp_ge_u32 s{L.sNt}, 10
    s_cbranch_scc1 L_q_vpath
    """)
    L.addr_qk()
    L.mainloop(True, 2)
    st(a, 3)
    a("s_barrier")
    stx(a, 'q_e1')
    L.epilogue_Y('qk')
    a("s_branch L_q_done")
    a.label("L_q_vpath")
    L.addr_v()
    L.mainloop(False, 2)
    st(a, 3)
    a("s_barrier")
    stx(a, 'q_e1')
    L.epilogue_X()
    a.label("L_q_done")
    stx(a, 'q_epi')
    a(f"buffer_load_dword v{L.vSt+26}, v{L.vSt+27}, s[44:47], 0 offen sc1")
    a("s_waitcnt vmcnt(0)")
    stx(a, 'q_drain')
    a("s_barrier")
    stx(a, 'q_e2')
    a(f"s_cmp_eq_u32 s{sWV}, 0")
    a("s_cbranch_scc0 L_attn")
    dbg_flag_wait(a, L.vSt + 26, landed=True)
    a(f"s_add_u32 s40, s{L.sNt}, {C_QKV}")
    arrive(a, 40, 4)
    st(a, 4)
    a("s_branch L_attn")
    a.label("L_repack")
    l = a.newlabel("zc")
    a(f"""
    s_xor_b32 s40, s2, 225
    s_or_b32 s40, s40, s{sWV}
    s_cmp_eq_u32 s40, 0
    s_cbranch_scc0 {l}
    v_mov_b32 v4, 0
    v_mov_b32 v5, 0
    v_mov_b32 v6, 0
    v_mov_b32 v7, 0
    v_lshlrev_b32 v8, 4, v1
    s_mov_b32 s40, {WS_CNT}
    """)
    for j in range(SZ_CNT // 1024):
        a(f"buffer_store_dwordx4 v[4:7], v8, s[{sWS}:{sWS+3}], s40 offen {SC}")
        a("s_add_u32 s40, s40, 1024")
    make_srd(a, 8, pDBG, pDBG+1, 0, 256)
    a(f"""
    s_waitcnt vmcnt(0)
    v_mov_b32 v4, 1
    v_mov_b32 v5, 0
    s_mov_b64 exec, 1
    buffer_store_dword v4, v5, s[8:11], 0 offen sc1
    s_mov_b64 exec, -1
    """)
    a.label(l)
    make_srd(a, 44, pDBG, pDBG+1, 0, 256)
    a(f"v_lshlrev_b32 v71, 2, v1")
    a(f"v_mov_b32 v70, 0")
    a(f"""
    s_and_b32 s21, s2, 7
    s_lshr_b32 s21, s21, 1
    s_lshl_b32 s21, s21, 2
    s_lshr_b32 s22, s2, 3
    s_and_b32 s22, s22, 3
    s_add_u32 s21, s21, s22
    """)
    idle_rows(a, 21)
    a("s_waitcnt vmcnt(0)")
    a(f"buffer_load_dword v70, v71, s[44:47], 0 offen sc1")
    a("s_barrier")
    def st_arr():
        dbg_flag_wait(a, 70)
        a(f"s_add_u32 s76, s21, {C_ST}")
        arrive(a, 76, 64)
    wave_only(a, 0, st_arr)
    def regall():
        LANDED[0] = False
        reg_step1(a, 70); reg_step2(a, 70); reg_step3(a, 70); register_publish(a, 70)
    wave_only(a, 2, regall)
    l = a.newlabel("rpl")
    a(f"s_cmp_ge_u32 s{sWV}, 4")
    a(f"s_cbranch_scc0 {l}")
    RP2 = Repack(a)
    RP2.issue()
    for r in range(3): a(f"v_accvgpr_write_b32 a{40+r}, v{RP2.vD+r}")
    a.label(l)
    def fl():
        a(f"buffer_load_dword v70, v71, s[44:47], 0 offen sc1")
        dbg_flag_wait(a, 70)
    wave_only(a, 4, fl)
    a("s_barrier")
    a.label("L_attn")
    emit_attention(a, None)
    S = CoreS(a, 'oproj')
    lane_id(a, 1)
    S.map_tiles()
    a(f"""
    s_cmp_ge_u32 s{sWV}, 4
    s_cbranch_scc0 L_o_compute
    """)
    S.loader_setup()
    q = VmQ()
    for s_ in range(PD):
        S.issue_W(s_); q.push(f"W{s_}", 5)
    lw = a.newlabel("ow")
    a(f"s_cmp_eq_u32 s{sWV}, 4")
    a(f"s_cbranch_scc0 {lw}")
    a(f"s_add_u32 s40, s{sX}, {C_ATT}")
    poll_f(a, 40, 32, 8)
    a.label(lw)
    stx(a, 'o_poll')
    a("s_barrier")
    for s_ in range(PD):
        S.issue_A(s_); q.push(f"A{s_}", 4)
    S.loader_main(q)
    a("s_barrier")
    F1 = CoreL(a, 'ffn1', 'f')
    F1.map_tiles("L_o_ld_idle")
    F1.loader_setup()
    q = VmQ()
    a("s_barrier")
    for s_ in range(PD):
        F1.issue_W(s_); q.push(f"W{s_}", 4)
    a("s_branch L_f1_loader")
    a.label("L_o_ld_idle")
    a("s_barrier")
    a("s_branch L_f2_loader0")
    a.label("L_o_compute")
    lw = a.newlabel("oa")
    a(f"s_cmp_eq_u32 s{sWV}, 0")
    a(f"s_cbranch_scc0 {lw}")
    arrive_f(a, 76, sRk, 4)
    st(a, 8)
    a.label(lw)
    S.compute_setup()
    S.pretouch()
    S.residual_loads()
    a("s_barrier")
    st(a, 9)
    stx(a, 'o_X')
    S.mainloop(tag='o')
    stx(a, 'o_loop')
    S.reduce()
    stx(a, 'o_red')
    a("s_barrier")
    S.epilogue()
    stx(a, 'o_epi')
    a("s_waitcnt vmcnt(0)")
    stx(a, 'o_drain')
    a("s_barrier")
    stx(a, 'o_e2')
    lw = a.newlabel("oa2")
    a(f"s_cmp_eq_u32 s{sWV}, 0")
    a(f"s_cbranch_scc0 {lw}")
    a(f"s_lshr_b32 s40, s{S.sM0}, 7")
    a(f"s_add_u32 s40, s40, {C_OP}")
    a(f"s_lshr_b32 s41, s{S.sM0}, 6")
    a(f"s_and_b32 s41, s41, 1")
    a(f"s_lshl_b32 s41, s41, 3")
    a(f"s_add_u32 s41, s41, s{S.sNt}")
    arrive_f(a, 40, 41, 4)
    st(a, 10)
    a.label(lw)
    lane_id(a, 1)
    F1.map_tiles("L_f2_compute0")
    a("s_branch L_f1_compute")
    a.label("L_f1_loader")
    lw = a.newlabel("fw")
    a(f"s_cmp_eq_u32 s{sWV}, 4")
    a(f"s_cbranch_scc0 {lw}")
    a(f"s_lshr_b32 s40, s{F1.sM0}, 7")
    a(f"s_add_u32 s40, s40, {C_OP}")
    stx(a, 'f_p0')
    poll_f(a, 40, 16, 8)
    a.label(lw)
    stx(a, 'f_poll')
    a("s_barrier")
    for s_ in range(PD):
        F1.issue_A(s_); q.push(f"A{s_}", 4)
    F1.lstats_init()
    F1.loader_main(q)
    a("s_waitcnt lgkmcnt(0)")
    a("s_barrier")
    S2 = CoreS(a, 'ffn2')
    S2.map_tiles()
    S2.loader_setup()
    q = VmQ()
    a("s_barrier")
    if E('PFW2B'):
        for j in range(9):
            wave_only(a, 4 + (j % 4), lambda: w2p_prefetch(a, j))
    for s_ in range(PD):
        S2.issue_W(s_); q.push(f"W{s_}", 5)
    a("s_branch L_f2_loader")
    a.label("L_f2_loader0")
    if E('PFW2') or E('PFW2B'):
        for j in range(9):
            wave_only(a, 4 + (j % 4), lambda: w2p_prefetch(a, j))
    S2.map_tiles()
    S2.loader_setup()
    for s_ in range(PD):
        S2.issue_W(s_)
    a.label("L_f2_loader")
    lw = a.newlabel("gw")
    a(f"s_cmp_eq_u32 s{sWV}, 4")
    a(f"s_cbranch_scc0 {lw}")
    a(f"s_lshr_b32 s40, s{S2.sM0}, 7")
    a(f"s_add_u32 s40, s40, {C_F1}")
    poll_f(a, 40, 14, 8)
    a.label(lw)
    a("s_barrier")
    for s_ in range(PD):
        S2.issue_A(s_); q.push(f"A{s_}", 4)
    S2.loader_main(q)
    if common.STAMPS:
        stamp_flush(a, 0, sWV, base=SB, vt=90)
    a("s_endpgm")
    a.label("L_f1_compute")
    F1.compute_setup()
    F1.addr_f()
    a("s_barrier")
    st(a, 11)
    stx(a, 'f_X')
    F1.mainloop(True, tag='f')
    stx(a, 'f_loop')
    a("s_barrier")
    F1.epilogue_Y('ffn1')
    stx(a, 'f_epi')
    a("s_waitcnt vmcnt(0)")
    stx(a, 'f_drain')
    a("s_barrier")
    lw = a.newlabel("fa")
    a(f"s_cmp_eq_u32 s{sWV}, 0")
    a(f"s_cbranch_scc0 {lw}")
    a(f"s_lshr_b32 s40, s{F1.sM0}, 7")
    a(f"s_add_u32 s40, s40, {C_F1}")
    arrive_f(a, 40, F1.sNt, 4)
    st(a, 12)
    a.label(lw)
    lane_id(a, 1)
    a.label("L_f2_compute0")
    S2.map_tiles()
    S2.compute_setup()
    a("s_barrier")
    st(a, 13)
    stx(a, 'g_X')
    S2.residual_loads()
    S2.mainloop(tag='g')
    stx(a, 'g_loop')
    S2.reduce()
    stx(a, 'g_red')
    S2.epilogue()
    stx(a, 'g_epi')
    if common.STAMPS:
        a("s_waitcnt vmcnt(0)")
        st(a, 14); st_rt(a, 15)
        stamp_flush(a, 0, sWV, base=SB, vt=90)
        if E('DBGOUT'):
            l = a.newlabel("dbo")
            a(f"s_cmp_eq_u32 s2, 9")
            a(f"s_cbranch_scc0 {l}")
            a(f"s_cmp_eq_u32 s{sWV}, 0")
            a(f"s_cbranch_scc0 {l}")
            make_srd(a, 8, pDBG, pDBG+1, 0, 256)
            a("s_mov_b64 exec, 1")
            pairs = [(15, 0), (14, 1), (2, 1), (3, 1), (4, 1), (5, 1), (6, 1), (7, 1), (9, 1), (11, 1), (13, 1)]
            for k, (x, y) in enumerate(pairs):
                a(f"s_sub_u32 s40, s{SB+x}, s{SB+y}")
                a(f"v_mov_b32 v4, s40")
                a(f"v_mov_b32 v5, {16 + 4*k}")
                a(f"buffer_store_dword v4, v5, s[8:11], 0 offen")
            a("s_waitcnt vmcnt(0)")
            a.label(l)
    a.label("L_exit")
    a("s_endpgm")
    return kernel_header(NAME) + a.text() + kernel_desc(NAME, 256, 176, sgpr=102)
```

```python
from common import *
import common, os
E = os.environ.get

NAME = "sequential_preLN__softmax_full_mha__dense_activation_relu__prompt_kernel"
pX, pWQ, pWO, pW1, pW2, pOUT, pDBG, pWS = 84, 86, 88, 92, 94, 96, 98, 78
sWS = 80
sWV = 100
sPoll = 101
SB = 48
STAT = 131072
LDS_TOTAL = 149504
SC = "sc1"
sX, sRk, sLoc = 72, 73, 74
ROLE = LDS_TOTAL - 64
POLL_MAX = 1 << 22

FS = E('FS', '').split(',') if E('FS') else []
FS0 = int(E('FS0', '9'))
def st(a, i):
    if FS and (i >= FS0) and i != 15: return
    stamp(a, i, base=SB)
def st2(a, i): pass
def stx(a, tag):
    if tag in FS: stamp(a, FS0 + FS.index(tag), base=SB)
def st_rt(a, i): stamp_rt(a, i, base=SB)

def lane_id(a, v):
    a(f"v_mbcnt_lo_u32_b32 v{v}, -1, 0")
    a(f"v_mbcnt_hi_u32_b32 v{v}, -1, v{v}")

def arrive(a, sIdx, vt):
    a(f"""
    s_lshl_b32 s{sPoll}, s{sIdx}, 7
    s_add_u32 s{sPoll}, s{sPoll}, {WS_CNT}
    v_mov_b32 v{vt}, s{sPoll}
    v_mov_b32 v{vt+1}, 1
    s_mov_b64 exec, 1
    buffer_atomic_add v{vt+1}, v{vt}, s[{sWS}:{sWS+3}], 0 offen sc1
    s_mov_b64 exec, -1
    """)

def dual(a, instrs):
    l0, l1 = a.newlabel("slow"), a.newlabel("dd")
    a(f"s_cmp_eq_u32 s{sLoc}, 0")
    a(f"s_cbranch_scc1 {l0}")
    for i in instrs: a(i.replace("@SC", E('LOCFL', '') if 'store' in i else ''))
    a(f"s_branch {l1}")
    a.label(l0)
    for i in instrs: a(i.replace("@SC", "sc1"))
    a.label(l1)

def arrive_l(a, sIdx, vt):
    a(f"""
    s_lshl_b32 s{sPoll}, s{sIdx}, 7
    s_add_u32 s{sPoll}, s{sPoll}, {WS_CNT}
    v_mov_b32 v{vt}, s{sPoll}
    v_mov_b32 v{vt+1}, 1
    s_mov_b64 exec, 1
    """)
    dual(a, [f"buffer_atomic_add v{vt+1}, v{vt}, s[{sWS}:{sWS+3}], 0 offen @SC"])
    a("s_mov_b64 exec, -1")

def arrive_f(a, sIdx, sSlot, vt):
    a(f"""
    s_lshl_b32 s{sPoll}, s{sIdx}, 7
    s_add_u32 s{sPoll}, s{sPoll}, {WS_CNT}
    s_lshl_b32 s75, s{sSlot}, 2
    s_add_u32 s{sPoll}, s{sPoll}, s75
    v_mov_b32 v{vt}, s{sPoll}
    v_mov_b32 v{vt+1}, 1
    s_mov_b64 exec, 1
    """)
    dual(a, [f"buffer_store_dword v{vt+1}, v{vt}, s[{sWS}:{sWS+3}], 0 offen @SC"])
    a("s_mov_b64 exec, -1")

def poll_f(a, sIdx, n, vt):
    a(f"""
    s_lshl_b32 s{sPoll}, s{sIdx}, 7
    s_add_u32 s{sPoll}, s{sPoll}, {WS_CNT}
    v_lshlrev_b32 v{vt+1}, 2, v1
    v_add_u32 v{vt+1}, s{sPoll}, v{vt+1}
    v_mov_b32 v{vt+2}, 1
    """)
    poll(a, vt + 1, vt + 2, n, vt)

def poll(a, vOff, vTgt, nl, vt, slp=1):
    l0, l1 = a.newlabel("poll"), a.newlabel("pollok")
    a(f"s_mov_b64 exec, {(1 << nl) - 1:#x}")
    a(f"s_mov_b32 s{sPoll}, 0")
    a.label(l0)
    a(f"""
    buffer_load_dword v{vt}, v{vOff}, s[{sWS}:{sWS+3}], 0 offen sc1
    s_waitcnt vmcnt(0)
    v_cmp_gt_u32 vcc, v{vTgt}, v{vt}
    s_nop 4
    s_cmp_eq_u64 vcc, 0
    s_cbranch_scc1 {l1}
    s_add_u32 s{sPoll}, s{sPoll}, 1
    s_cmp_gt_u32 s{sPoll}, {POLL_MAX}
    s_cbranch_scc1 {l1}
    s_sleep {slp}
    s_branch {l0}
    """)
    a.label(l1)
    a("s_mov_b64 exec, -1")

def poll1(a, sIdx, target, vt):
    a(f"""
    s_lshl_b32 s{sPoll}, s{sIdx}, 7
    s_add_u32 s{sPoll}, s{sPoll}, {WS_CNT}
    v_mov_b32 v{vt+1}, s{sPoll}
    v_mov_b32 v{vt+2}, {target}
    """)
    poll(a, vt + 1, vt + 2, 1, vt)

def wave_sum(a, v):
    for sh in (1, 2, 4, 8):
        a(f"v_add_f32_dpp v{v}, v{v}, v{v} row_shr:{sh} row_mask:0xf bank_mask:0xf bound_ctrl:0")
        a("s_nop 1")
    a(f"v_add_f32_dpp v{v}, v{v}, v{v} row_bcast:15 row_mask:0xa bank_mask:0xf")
    a("s_nop 1")
    a(f"v_add_f32_dpp v{v}, v{v}, v{v} row_bcast:31 row_mask:0xc bank_mask:0xf")
    a("s_nop 1")

def p0_rows_issue(a, sXs, s0, vR, vA):
    a(f"""
    s_lshl_b32 s{s0}, s2, 3
    s_lshl_b32 s{s0+1}, s{sWV}, 1
    s_add_u32 s{s0}, s{s0}, s{s0+1}
    s_mul_i32 s{s0+2}, s{s0}, 1280
    v_lshlrev_b32 v{vA}, 4, v1
    v_lshlrev_b32 v{vA+1}, 2, v1
    s_add_u32 s{s0+3}, s{s0+2}, 1280
    buffer_load_dwordx4 {vr(vR,4)}, v{vA}, s[{sXs}:{sXs+3}], s{s0+2} offen
    buffer_load_dword v{vR+4}, v{vA+1}, s[{sXs}:{sXs+3}], s{s0+2} offen offset:1024
    buffer_load_dwordx4 {vr(vR+6,4)}, v{vA}, s[{sXs}:{sXs+3}], s{s0+3} offen
    buffer_load_dword v{vR+5}, v{vA+1}, s[{sXs}:{sXs+3}], s{s0+3} offen offset:1024
    """)
def p0_rows_finish(a, s0, vR, vA):
    for rr in range(2):
        regs = [vR + 6*rr + i for i in range(4)] + [vR + 4 + rr]
        S, Q, U = vA + 4, vA + 5, vA + 6
        for n, r in enumerate(regs):
            a(f"v_lshlrev_b32 v{U}, 16, v{r}")
            a(f"v_and_b32 v{U+1}, 0xffff0000, v{r}")
            if n == 0:
                a(f"v_add_f32 v{S}, v{U}, v{U+1}")
                a(f"v_mul_f32 v{Q}, v{U}, v{U}")
            else:
                a(f"v_add_f32 v{S}, v{S}, v{U}")
                a(f"v_add_f32 v{S}, v{S}, v{U+1}")
                a(f"v_fmac_f32 v{Q}, v{U}, v{U}")
            a(f"v_fmac_f32 v{Q}, v{U+1}, v{U+1}")
        a("s_nop 1")
        for sh in (1, 2, 4, 8):
            a(f"v_add_f32_dpp v{S}, v{S}, v{S} row_shr:{sh} row_mask:0xf bank_mask:0xf bound_ctrl:0")
            a(f"v_add_f32_dpp v{Q}, v{Q}, v{Q} row_shr:{sh} row_mask:0xf bank_mask:0xf bound_ctrl:0")
            a("s_nop 0")
        a(f"v_add_f32_dpp v{S}, v{S}, v{S} row_bcast:15 row_mask:0xa bank_mask:0xf")
        a(f"v_add_f32_dpp v{Q}, v{Q}, v{Q} row_bcast:15 row_mask:0xa bank_mask:0xf")
        a("s_nop 0")
        a(f"v_add_f32_dpp v{S}, v{S}, v{S} row_bcast:31 row_mask:0xc bank_mask:0xf")
        a(f"v_add_f32_dpp v{Q}, v{Q}, v{Q} row_bcast:31 row_mask:0xc bank_mask:0xf")
        a(f"""
        s_nop 0
        v_mul_f32 v{S}, {f32bits(1.0/640):#x}, v{S}
        v_mul_f32 v{Q}, {f32bits(1.0/640):#x}, v{Q}
        v_fma_f32 v{Q}, -v{S}, v{S}, v{Q}
        v_max_f32 v{Q}, 0, v{Q}
        v_add_f32 v{Q}, {f32bits(1e-5):#x}, v{Q}
        v_rsq_f32 v{Q}, v{Q}
        s_nop 0
        v_mov_b32 v{vA+8+2*rr}, v{S}
        v_mov_b32 v{vA+9+2*rr}, v{Q}
        """)
    a(f"""
    s_lshl_b32 s{s0+4}, s{s0}, 3
    s_add_u32 s{s0+4}, s{s0+4}, {WS_ST1}
    v_mov_b32 v{vA+4}, 0
    s_mov_b32 exec_lo, 0
    s_mov_b32 exec_hi, 0x80000000
    buffer_store_dwordx4 {vr(vA+8,4)}, v{vA+4}, s[{sWS}:{sWS+3}], s{s0+4} offen {SC}
    s_mov_b64 exec, -1
    """)
def colsum_issue(a, which, srd, sW4, s0, vC, vA):
    ld = 3840 if which == 'wq' else 3456
    a(f"""
    s_and_b32 s{s0+1}, s2, 7
    s_lshr_b32 s{s0+2}, s2, 3
    s_lshr_b32 s{s0+3}, s{s0+1}, 1
    s_lshl_b32 s{s0+3}, s{s0+3}, 5
    s_add_u32 s{s0+2}, s{s0+2}, s{s0+3}
    s_and_b32 s{s0+1}, s{s0+1}, 1
    s_and_b32 s{s0+3}, s{s0+2}, 15
    s_lshr_b32 s{s0+2}, s{s0+2}, 4
    v_lshrrev_b32 v{vA}, 3, v1
    v_and_b32 v{vA+1}, 7, v1
    v_lshlrev_b32 v{vA+1}, 2, v{vA+1}
    v_mul_u32_u24 v{vA+2}, {ld}, v{vA}
    v_add_u32 v{vA+2}, v{vA+2}, v{vA+1}
    s_lshl_b32 s{s0+4}, s{s0+3}, 6
    s_lshl_b32 s{s0+7}, s{sW4}, 4
    s_add_u32 s{s0+4}, s{s0+4}, s{s0+7}
    s_mul_i32 s{s0+5}, s{s0+1}, {1024 if which == 'wq' else 896}
    s_add_u32 s{s0+5}, s{s0+5}, s{s0+4}
    s_mul_i32 s{s0+7}, s{s0+2}, {80*ld}
    s_lshl_b32 s{s0+4}, s{s0+5}, 1
    s_add_u32 s{s0+7}, s{s0+7}, s{s0+4}
    """)
    for j in range(10):
        a(f"buffer_load_dword v{vC+j}, v{vA+2}, s[{srd}:{srd+3}], s{s0+7} offen")
        if j < 9: a(f"s_add_u32 s{s0+7}, s{s0+7}, {8*ld}")
def colsum_finish(a, which, s0, vC, vA):
    base, ncol = (WS_CS1, 1920) if which == 'wq' else (WS_CS2, 1792)
    A0, A1, U = vA + 4, vA + 5, vA + 6
    for j in range(10):
        if j == 0:
            a(f"v_lshlrev_b32 v{A0}, 16, v{vC}")
            a(f"v_and_b32 v{A1}, 0xffff0000, v{vC}")
        else:
            a(f"v_lshlrev_b32 v{U}, 16, v{vC+j}")
            a(f"v_and_b32 v{U+1}, 0xffff0000, v{vC+j}")
            a(f"v_add_f32 v{A0}, v{A0}, v{U}")
            a(f"v_add_f32 v{A1}, v{A1}, v{U+1}")
    a(f"""
    s_nop 1
    v_add_f32_dpp v{A0}, v{A0}, v{A0} row_ror:8 row_mask:0xf bank_mask:0xf
    v_add_f32_dpp v{A1}, v{A1}, v{A1} row_ror:8 row_mask:0xf bank_mask:0xf
    s_nop 1
    v_mov_b32 v{U}, v{A0}
    v_mov_b32 v{U+1}, v{A1}
    s_nop 1
    v_permlane16_swap_b32 v{A0}, v{U}
    v_permlane16_swap_b32 v{A1}, v{U+1}
    s_nop 1
    v_add_f32 v{A0}, v{A0}, v{U}
    v_add_f32 v{A1}, v{A1}, v{U+1}
    s_nop 0
    v_mov_b32 v{U}, v{A0}
    v_mov_b32 v{U+1}, v{A1}
    s_nop 1
    v_permlane32_swap_b32 v{A0}, v{U}
    v_permlane32_swap_b32 v{A1}, v{U+1}
    s_nop 1
    v_add_f32 v{vA+12}, v{A0}, v{U}
    v_add_f32 v{vA+13}, v{A1}, v{U+1}
    v_lshlrev_b32 v{U}, 3, v1
    s_mul_i32 s{s0+4}, s{s0+2}, {ncol*4}
    s_lshl_b32 s{s0+7}, s{s0+5}, 2
    s_add_u32 s{s0+4}, s{s0+4}, s{s0+7}
    s_add_u32 s{s0+4}, s{s0+4}, {base}
    """)
    lab = a.newlabel("p0skip")
    if which == 'wq':
        a(f"s_cmp_ge_u32 s{s0+5}, 1920")
    else:
        a(f"s_sub_u32 s{s0+7}, 14, s{s0+1}")
        a(f"s_cmp_ge_u32 s{s0+3}, s{s0+7}")
    a(f"s_cbranch_scc1 {lab}")
    a("s_mov_b64 exec, 0xff")
    a(f"buffer_store_dwordx2 {vr(vA+12,2)}, v{U}, s[{sWS}:{sWS+3}], s{s0+4} offen {SC}")
    a("s_mov_b64 exec, -1")
    a.label(lab)
def emit_p0(a):
    sXs, sWq, s0 = 8, 12, 40
    vR, vC, vA = 4, 14, 34
    make_srd(a, sXs, pX, pX+1, 0, 2048*1280)
    make_srd(a, sWq, pWQ, pWQ+1, 0, 640*3840)
    p0_rows_issue(a, sXs, s0, vR, vA)
    a(f"s_mov_b32 s39, s{s0}")
    colsum_issue(a, 'wq', sWq, sWV, s0, vC, vA + 12)
    a("s_waitcnt vmcnt(10)")
    a(f"s_mov_b32 s38, s{s0+4}")
    p0_rows_finish(a, 39, vR, vA) if False else None
    p0_rows_finish_b(a, 39, 38, vR, vA)
    a("s_waitcnt vmcnt(1)")
    colsum_finish(a, 'wq', s0, vC, vA + 12)
def p0_rows_finish_b(a, sRow, sTmp, vR, vA):
    import io
    class Tmp: pass
    for rr in range(2):
        regs = [vR + 6*rr + i for i in range(4)] + [vR + 4 + rr]
        S, Q, U = vA + 4, vA + 5, vA + 6
        for n, r in enumerate(regs):
            a(f"v_lshlrev_b32 v{U}, 16, v{r}")
            a(f"v_and_b32 v{U+1}, 0xffff0000, v{r}")
            if n == 0:
                a(f"v_add_f32 v{S}, v{U}, v{U+1}")
                a(f"v_mul_f32 v{Q}, v{U}, v{U}")
            else:
                a(f"v_add_f32 v{S}, v{S}, v{U}")
                a(f"v_add_f32 v{S}, v{S}, v{U+1}")
                a(f"v_fmac_f32 v{Q}, v{U}, v{U}")
            a(f"v_fmac_f32 v{Q}, v{U+1}, v{U+1}")
        a("s_nop 1")
        for sh in (1, 2, 4, 8):
            a(f"v_add_f32_dpp v{S}, v{S}, v{S} row_shr:{sh} row_mask:0xf bank_mask:0xf bound_ctrl:0")
            a(f"v_add_f32_dpp v{Q}, v{Q}, v{Q} row_shr:{sh} row_mask:0xf bank_mask:0xf bound_ctrl:0")
            a("s_nop 0")
        a(f"v_add_f32_dpp v{S}, v{S}, v{S} row_bcast:15 row_mask:0xa bank_mask:0xf")
        a(f"v_add_f32_dpp v{Q}, v{Q}, v{Q} row_bcast:15 row_mask:0xa bank_mask:0xf")
        a("s_nop 0")
        a(f"v_add_f32_dpp v{S}, v{S}, v{S} row_bcast:31 row_mask:0xc bank_mask:0xf")
        a(f"v_add_f32_dpp v{Q}, v{Q}, v{Q} row_bcast:31 row_mask:0xc bank_mask:0xf")
        a(f"""
        s_nop 0
        v_mul_f32 v{S}, {f32bits(1.0/640):#x}, v{S}
        v_mul_f32 v{Q}, {f32bits(1.0/640):#x}, v{Q}
        v_fma_f32 v{Q}, -v{S}, v{S}, v{Q}
        v_max_f32 v{Q}, 0, v{Q}
        v_add_f32 v{Q}, {f32bits(1e-5):#x}, v{Q}
        v_rsq_f32 v{Q}, v{Q}
        s_nop 0
        v_mov_b32 v{vA+8+2*rr}, v{S}
        v_mov_b32 v{vA+9+2*rr}, v{Q}
        """)
    a(f"""
    s_lshl_b32 s{sTmp}, s{sRow}, 3
    s_add_u32 s{sTmp}, s{sTmp}, {WS_ST1}
    v_mov_b32 v{vA+4}, 0
    s_mov_b32 exec_lo, 0
    s_mov_b32 exec_hi, 0x80000000
    buffer_store_dwordx4 {vr(vA+8,4)}, v{vA+4}, s[{sWS}:{sWS+3}], s{sTmp} offen {SC}
    s_mov_b64 exec, -1
    """)
def dbg_flag_issue(a, vt):
    make_srd(a, 44, pDBG, pDBG+1, 0, 256)
    a(f"v_mov_b32 v{vt+1}, 0")
    a(f"buffer_load_dword v{vt}, v{vt+1}, s[44:47], 0 offen sc1")
def dbg_flag_issue_b(a, vt):
    make_srd(a, 16, pDBG, pDBG+1, 0, 256)
    a(f"v_mov_b32 v{vt+1}, 0")
    a(f"buffer_load_dword v{vt}, v{vt+1}, s[16:19], 0 offen sc1")
def dbg_flag_wait(a, vt, srd=44, landed=False):
    l0, l1, l2 = a.newlabel("dbgp"), a.newlabel("dbgok"), a.newlabel("dbgc")
    a(f"s_mov_b32 s{sPoll}, 0")
    if landed: a(f"s_branch {l2}")
    a.label(l0)
    a("s_waitcnt vmcnt(0)")
    a.label(l2)
    a(f"""
    v_readfirstlane_b32 s75, v{vt}
    s_cmp_lg_u32 s75, 0
    s_cbranch_scc1 {l1}
    s_add_u32 s{sPoll}, s{sPoll}, 1
    s_cmp_gt_u32 s{sPoll}, {POLL_MAX}
    s_cbranch_scc1 {l1}
    s_sleep 1
    buffer_load_dword v{vt}, v{vt+1}, s[{srd}:{srd+3}], 0 offen sc1
    s_branch {l0}
    """)
    a.label(l1)
def dbg_flag_wait_arrive_b(a, cbase, vt):
    dbg_flag_wait_arrive(a, cbase, vt, 16)
def dbg_flag_wait_arrive(a, cbase, vt, srd=44):
    l0, l1 = a.newlabel("dbgp"), a.newlabel("dbgok")
    a(f"s_mov_b32 s{sPoll}, 0")
    a.label(l0)
    a(f"""
    s_waitcnt vmcnt(0)
    v_readfirstlane_b32 s75, v{vt}
    s_cmp_lg_u32 s75, 0
    s_cbranch_scc1 {l1}
    s_add_u32 s{sPoll}, s{sPoll}, 1
    s_cmp_gt_u32 s{sPoll}, {POLL_MAX}
    s_cbranch_scc1 {l1}
    s_sleep 1
    buffer_load_dword v{vt}, v{vt+1}, s[{srd}:{srd+3}], 0 offen sc1
    s_branch {l0}
    """)
    a.label(l1)
    a(f"s_and_b32 s75, s2, 7")
    a(f"s_add_u32 s75, s75, {cbase}")
    arrive(a, 75, vt)

class P0Q:
    vR, vC, vD, vA = 64, 84, 94, 104
    def __init__(self, a, L):
        self.a, self.L = a, L
    def issue(self):
        a, L = self.a, self.L
        vR, vC, vD, vA = self.vR, self.vC, self.vD, self.vA
        sXs, sWq = L.sA, L.sW
        sW1 = 16
        make_srd(a, sW1, pW1, pW1+1, 0, 640*3456)
        a(f"""
        v_lshrrev_b32 v2, 4, v1
        v_and_b32 v3, 15, v1
        s_lshl_b32 s40, s{L.sNt}, 4
        s_add_u32 s40, s40, s{L.sM0}
        s_lshl_b32 s41, s{L.sLw}, 2
        s_add_u32 s40, s40, s41
        s_cmp_lt_u32 s{L.sNt}, 8
        s_cselect_b32 s40, s40, 4096
        v_add_u32 v{vA}, s40, v2
        v_mul_u32_u24 v{vA+1}, 1280, v{vA}
        v_lshlrev_b32 v{vA+2}, 4, v3
        v_add_u32 v{vA+1}, v{vA+1}, v{vA+2}
        """)
        for j in range(5):
            a(f"buffer_load_dwordx4 {vr(vR+4*j,4)}, v{vA+1}, s[{sXs}:{sXs+3}], 0 offen offset:{256*j}")
        a(f"""
        s_lshr_b32 s41, s{L.sM0}, 7
        s_mul_i32 s42, s41, {40*3840}
        s_lshl_b32 s43, s{L.sLw}, 5
        s_add_u32 s43, s43, s{L.sN0}
        s_lshl_b32 s40, s43, 1
        s_add_u32 s42, s42, s40
        v_mul_u32_u24 v{vA+2}, 3840, v2
        v_lshlrev_b32 v{vA+3}, 2, v3
        v_add_u32 v{vA+2}, v{vA+2}, v{vA+3}
        """)
        for j in range(10):
            a(f"buffer_load_dword v{vC+j}, v{vA+2}, s[{sWq}:{sWq+3}], s42 offen")
            if j < 9: a(f"s_add_u32 s42, s42, {4*3840}")
        a(f"""
        s_mul_i32 s42, s41, {40*3456}
        s_add_u32 s42, s42, s40
        s_cmp_lt_u32 s{L.sNt}, 14
        s_cselect_b32 s42, s42, 0x7f000000
        v_mul_u32_u24 v{vA+4}, 3456, v2
        v_add_u32 v{vA+4}, v{vA+4}, v{vA+3}
        """)
        for j in range(10):
            a(f"buffer_load_dword v{vD+j}, v{vA+4}, s[{sW1}:{sW1+3}], s42 offen")
            if j < 9: a(f"s_add_u32 s42, s42, {4*3456}")
    def rows(self):
        a, L = self.a, self.L
        vR, vA = self.vR, self.vA
        S, Q, U = vA + 5, vA + 6, vA + 8
        for n in range(20):
            r = vR + n
            u = U + 2*(n & 1)
            a(f"v_lshlrev_b32 v{u}, 16, v{r}")
            a(f"v_and_b32 v{u+1}, 0xffff0000, v{r}")
            if n == 0:
                a(f"v_add_f32 v{S}, v{u}, v{u+1}")
                a(f"v_mul_f32 v{Q}, v{u}, v{u}")
            else:
                a(f"v_add_f32 v{S}, v{S}, v{u}")
                a(f"v_fmac_f32 v{Q}, v{u}, v{u}")
                a(f"v_add_f32 v{S}, v{S}, v{u+1}")
            a(f"v_fmac_f32 v{Q}, v{u+1}, v{u+1}")
        a("s_nop 1")
        for sh in (1, 2, 4, 8):
            a(f"v_add_f32_dpp v{S}, v{S}, v{S} row_shr:{sh} row_mask:0xf bank_mask:0xf bound_ctrl:0")
            a(f"v_add_f32_dpp v{Q}, v{Q}, v{Q} row_shr:{sh} row_mask:0xf bank_mask:0xf bound_ctrl:0")
            a("s_nop 0")
        a(f"""
        v_mul_f32 v{S}, {f32bits(1.0/640):#x}, v{S}
        v_mul_f32 v{Q}, {f32bits(1.0/640):#x}, v{Q}
        v_fma_f32 v{Q}, -v{S}, v{S}, v{Q}
        v_max_f32 v{Q}, 0, v{Q}
        v_add_f32 v{Q}, {f32bits(1e-5):#x}, v{Q}
        v_rsq_f32 v{Q}, v{Q}
        v_mov_b32 v{U}, v{S}
        v_lshlrev_b32 v{U+2}, 3, v{vA}
        v_mov_b32 v{U+3}, 0x7fffff00
        v_cmp_gt_u32 vcc, 2048, v{vA}
        v_mov_b32 v{U+1}, v{Q}
        v_cndmask_b32 v{U+2}, v{U+3}, v{U+2}, vcc
        s_mov_b32 s40, {WS_ST1}
        s_mov_b32 exec_lo, 0x80008000
        s_mov_b32 exec_hi, 0x80008000
        buffer_store_dwordx2 {vr(U,2)}, v{U+2}, s[{sWS}:{sWS+3}], s40 offen {SC}
        s_mov_b64 exec, -1
        """)
    def cols(self, which):
        a, L = self.a, self.L
        vA = self.vA
        regs, base, ncol, lim = (self.vC, WS_CS1, 1920, 15) if which == 0 else (self.vD, WS_CS2, 1792, 14)
        U = vA + 8
        A0, A1 = vA + 5, vA + 6
        for j in range(10):
            u = U + 2*(j & 1)
            if j == 0:
                a(f"v_lshlrev_b32 v{A0}, 16, v{regs}")
                a(f"v_and_b32 v{A1}, 0xffff0000, v{regs}")
            else:
                a(f"v_lshlrev_b32 v{u}, 16, v{regs+j}")
                a(f"v_and_b32 v{u+1}, 0xffff0000, v{regs+j}")
                a(f"v_add_f32 v{A0}, v{A0}, v{u}")
                a(f"v_add_f32 v{A1}, v{A1}, v{u+1}")
        a(f"""
        s_nop 0
        v_mov_b32 v{U}, v{A0}
        v_mov_b32 v{U+1}, v{A1}
        s_nop 1
        v_permlane16_swap_b32 v{A0}, v{U}
        v_permlane16_swap_b32 v{A1}, v{U+1}
        s_nop 1
        v_add_f32 v{A0}, v{A0}, v{U}
        v_add_f32 v{A1}, v{A1}, v{U+1}
        s_nop 0
        v_mov_b32 v{U}, v{A0}
        v_mov_b32 v{U+1}, v{A1}
        s_nop 1
        v_permlane32_swap_b32 v{A0}, v{U}
        v_permlane32_swap_b32 v{A1}, v{U+1}
        s_nop 1
        v_add_f32 v{U+4}, v{A0}, v{U}
        v_add_f32 v{U+5}, v{A1}, v{U+1}
        v_lshlrev_b32 v{U}, 3, v3
        s_mul_i32 s42, s41, {ncol*4}
        s_lshl_b32 s40, s43, 2
        s_add_u32 s42, s42, s40
        s_add_u32 s42, s42, {base}
        s_cmp_lt_u32 s{L.sNt}, {lim}
        s_cselect_b32 s42, s42, 0x7f000000
        s_mov_b64 exec, 0xffff
        buffer_store_dwordx2 {vr(U+4,2)}, v{U}, s[{sWS}:{sWS+3}], s42 offen {SC}
        s_mov_b64 exec, -1
        s_nop 1
        """)
def emit_p0r(a, L):
    sXs, vR, vA = 8, 146, 132
    make_srd(a, sXs, pX, pX+1, 0, 2048*1280)
    a(f"""
    v_lshrrev_b32 v166, 4, v1
    v_and_b32 v167, 15, v1
    s_lshl_b32 s75, s{L.sNt}, 4
    s_add_u32 s75, s75, s{L.sM0}
    s_lshl_b32 s76, s{sWV}, 2
    s_add_u32 s75, s75, s76
    s_cmp_lt_u32 s{L.sNt}, 8
    s_cselect_b32 s75, s75, 4096
    v_add_u32 v{vA}, s75, v166
    v_mul_u32_u24 v{vA+1}, 1280, v{vA}
    v_lshlrev_b32 v{vA+2}, 4, v167
    v_add_u32 v{vA+1}, v{vA+1}, v{vA+2}
    """)
    for j in range(5):
        a(f"buffer_load_dwordx4 {vr(vR+4*j,4)}, v{vA+1}, s[{sXs}:{sXs+3}], 0 offen offset:{256*j}")
def emit_p0r_finish(a, L, extra=0):
    vR, vA = 146, 132
    S, Q, S2, Q2, U = vA + 4, vA + 5, vA + 6, vA + 7, vA + 8
    for j in range(5):
        a(f"s_waitcnt vmcnt({4 - j + extra})")
        for n in range(4):
            r = vR + 4*j + n
            u = U + 2*(n & 1)
            a(f"v_lshlrev_b32 v{u}, 16, v{r}")
            a(f"v_and_b32 v{u+1}, 0xffff0000, v{r}")
            if j == 0 and n == 0:
                a(f"v_mov_b32 v{S}, v{u}")
                a(f"v_mul_f32 v{Q}, v{u}, v{u}")
                a(f"v_mov_b32 v{S2}, v{u+1}")
                a(f"v_mul_f32 v{Q2}, v{u+1}, v{u+1}")
            else:
                a(f"v_add_f32 v{S}, v{S}, v{u}")
                a(f"v_fmac_f32 v{Q}, v{u}, v{u}")
                a(f"v_add_f32 v{S2}, v{S2}, v{u+1}")
                a(f"v_fmac_f32 v{Q2}, v{u+1}, v{u+1}")
    a(f"v_add_f32 v{S}, v{S}, v{S2}")
    a(f"v_add_f32 v{Q}, v{Q}, v{Q2}")
    a("s_nop 1")
    for sh in (1, 2, 4, 8):
        a(f"v_add_f32_dpp v{S}, v{S}, v{S} row_shr:{sh} row_mask:0xf bank_mask:0xf bound_ctrl:0")
        a(f"v_add_f32_dpp v{Q}, v{Q}, v{Q} row_shr:{sh} row_mask:0xf bank_mask:0xf bound_ctrl:0")
        a("s_nop 0")
    a(f"""
    v_mul_f32 v{S}, {f32bits(1.0/640):#x}, v{S}
    v_mul_f32 v{Q}, {f32bits(1.0/640):#x}, v{Q}
    v_fma_f32 v{Q}, -v{S}, v{S}, v{Q}
    v_max_f32 v{Q}, 0, v{Q}
    v_add_f32 v{Q}, {f32bits(1e-5):#x}, v{Q}
    v_rsq_f32 v{Q}, v{Q}
    v_mov_b32 v{U}, v{S}
    v_lshlrev_b32 v{U+2}, 3, v{vA}
    v_mov_b32 v{U+3}, 0x7fffff00
    v_cmp_gt_u32 vcc, 2048, v{vA}
    v_mov_b32 v{U+1}, v{Q}
    v_cndmask_b32 v{U+2}, v{U+3}, v{U+2}, vcc
    s_mov_b32 s75, {WS_ST1}
    s_mov_b32 exec_lo, 0x80008000
    s_mov_b32 exec_hi, 0x80008000
    buffer_store_dwordx2 {vr(U,2)}, v{U+2}, s[{sWS}:{sWS+3}], s75 offen {SC}
    s_mov_b64 exec, -1
    """)
def idle_rows(a, sMt, hook=None):
    sXs, vR, vA = 8, 72, 4
    NP = 2 if E('P0L') else 4
    make_srd(a, sXs, pX, pX+1, 0, 2048*1280)
    a(f"""
    v_lshrrev_b32 v2, 4, v1
    v_and_b32 v3, 15, v1
    s_lshl_b32 s40, s{sMt}, 7
    s_lshl_b32 s41, s{sWV}, {3 if E('P0L') else 4}
    s_add_u32 s40, s40, s41
    v_add_u32 v{vA}, s40, v2
    v_mul_u32_u24 v{vA+1}, 1280, v{vA}
    v_lshlrev_b32 v{vA+2}, 4, v3
    v_add_u32 v{vA+1}, v{vA+1}, v{vA+2}
    """)
    for p in range(NP):
        a(f"s_mov_b32 s41, {p * 4 * 1280}")
        for j in range(5):
            a(f"buffer_load_dwordx4 {vr(vR + 20*p + 4*j, 4)}, v{vA+1}, s[{sXs}:{sXs+3}], s41 offen offset:{256*j}")
    S, Q, S2, Q2, U = vA + 4, vA + 5, vA + 6, vA + 7, vA + 8
    if hook: hook(-1)
    for p in range(NP):
        if hook and p > 0: hook(p - 1)
        a(f"s_waitcnt vmcnt({(NP - 1 - p) * 5 + p})")
        for n in range(20):
            r = vR + 20*p + n
            u = U + 2*(n & 1)
            a(f"v_lshlrev_b32 v{u}, 16, v{r}")
            a(f"v_and_b32 v{u+1}, 0xffff0000, v{r}")
            if n == 0:
                a(f"v_mov_b32 v{S}, v{u}")
                a(f"v_mul_f32 v{Q}, v{u}, v{u}")
                a(f"v_mov_b32 v{S2}, v{u+1}")
                a(f"v_mul_f32 v{Q2}, v{u+1}, v{u+1}")
            else:
                a(f"v_add_f32 v{S}, v{S}, v{u}")
                a(f"v_fmac_f32 v{Q}, v{u}, v{u}")
                a(f"v_add_f32 v{S2}, v{S2}, v{u+1}")
                a(f"v_fmac_f32 v{Q2}, v{u+1}, v{u+1}")
        a(f"v_add_f32 v{S}, v{S}, v{S2}")
        a(f"v_add_f32 v{Q}, v{Q}, v{Q2}")
        a("s_nop 1")
        for sh in (1, 2, 4, 8):
            a(f"v_add_f32_dpp v{S}, v{S}, v{S} row_shr:{sh} row_mask:0xf bank_mask:0xf bound_ctrl:0")
            a(f"v_add_f32_dpp v{Q}, v{Q}, v{Q} row_shr:{sh} row_mask:0xf bank_mask:0xf bound_ctrl:0")
            a("s_nop 0")
        a(f"""
        v_mul_f32 v{S}, {f32bits(1.0/640):#x}, v{S}
        v_mul_f32 v{Q}, {f32bits(1.0/640):#x}, v{Q}
        v_fma_f32 v{Q}, -v{S}, v{S}, v{Q}
        v_max_f32 v{Q}, 0, v{Q}
        v_add_f32 v{Q}, {f32bits(1e-5):#x}, v{Q}
        v_rsq_f32 v{Q}, v{Q}
        v_mov_b32 v{U+4}, v{S}
        v_add_u32 v{U+2}, {4*p}, v{vA}
        v_lshlrev_b32 v{U+2}, 3, v{U+2}
        v_mov_b32 v{U+5}, v{Q}
        s_mov_b32 s41, {WS_ST1}
        s_mov_b32 exec_lo, 0x80008000
        s_mov_b32 exec_hi, 0x80008000
        buffer_store_dwordx2 {vr(U+4,2)}, v{U+2}, s[{sWS}:{sWS+3}], s41 offen {SC}
        s_mov_b64 exec, -1
        s_nop 1
        """)

class P0L:
    vR, vA = 116, 136
    def __init__(self, a, L): self.a, self.L = a, L
    def issue(self):
        a, L = self.a, self.L
        vR, vA = self.vR, self.vA
        a(f"""
        v_lshrrev_b32 v{vA+2}, 4, v1
        v_and_b32 v{vA+3}, 15, v1
        s_lshl_b32 s75, s{L.sNt}, 4
        s_add_u32 s75, s75, s{L.sM0}
        s_add_u32 s75, s75, 64
        s_lshl_b32 s76, s{L.sLw}, 2
        s_add_u32 s75, s75, s76
        s_cmp_lt_u32 s{L.sNt}, 4
        s_cselect_b32 s75, s75, 4096
        v_add_u32 v{vA}, s75, v{vA+2}
        v_mul_u32_u24 v{vA+1}, 1280, v{vA}
        v_lshlrev_b32 v{vA+3}, 4, v{vA+3}
        v_add_u32 v{vA+1}, v{vA+1}, v{vA+3}
        """)
        for j in range(5):
            a(f"buffer_load_dwordx4 {vr(vR+4*j,4)}, v{vA+1}, s[{L.sA}:{L.sA+3}], 0 offen offset:{256*j}")
    def finish(self):
        a = self.a
        vR, vA = self.vR, self.vA
        S, Q, S2, Q2, U = vA + 4, vA + 5, vA + 6, vA + 7, vA + 8
        for n in range(20):
            r = vR + n
            u = U + 2*(n & 1)
            a(f"v_lshlrev_b32 v{u}, 16, v{r}")
            a(f"v_and_b32 v{u+1}, 0xffff0000, v{r}")
            if n == 0:
                a(f"v_mov_b32 v{S}, v{u}")
                a(f"v_mul_f32 v{Q}, v{u}, v{u}")
                a(f"v_mov_b32 v{S2}, v{u+1}")
                a(f"v_mul_f32 v{Q2}, v{u+1}, v{u+1}")
            else:
                a(f"v_add_f32 v{S}, v{S}, v{u}")
                a(f"v_fmac_f32 v{Q}, v{u}, v{u}")
                a(f"v_add_f32 v{S2}, v{S2}, v{u+1}")
                a(f"v_fmac_f32 v{Q2}, v{u+1}, v{u+1}")
        a(f"v_add_f32 v{S}, v{S}, v{S2}")
        a(f"v_add_f32 v{Q}, v{Q}, v{Q2}")
        a("s_nop 1")
        for sh in (1, 2, 4, 8):
            a(f"v_add_f32_dpp v{S}, v{S}, v{S} row_shr:{sh} row_mask:0xf bank_mask:0xf bound_ctrl:0")
            a(f"v_add_f32_dpp v{Q}, v{Q}, v{Q} row_shr:{sh} row_mask:0xf bank_mask:0xf bound_ctrl:0")
            a("s_nop 0")
        a(f"""
        v_mul_f32 v{S}, {f32bits(1.0/640):#x}, v{S}
        v_mul_f32 v{Q}, {f32bits(1.0/640):#x}, v{Q}
        v_fma_f32 v{Q}, -v{S}, v{S}, v{Q}
        v_max_f32 v{Q}, 0, v{Q}
        v_add_f32 v{Q}, {f32bits(1e-5):#x}, v{Q}
        v_rsq_f32 v{Q}, v{Q}
        v_mov_b32 v{U}, v{S}
        v_lshlrev_b32 v{U+2}, 3, v{vA}
        v_mov_b32 v{U+3}, 0x7fffff00
        v_cmp_gt_u32 vcc, 2048, v{vA}
        v_mov_b32 v{U+1}, v{Q}
        v_cndmask_b32 v{U+2}, v{U+3}, v{U+2}, vcc
        s_mov_b32 s75, {WS_ST1}
        s_mov_b32 exec_lo, 0x80008000
        s_mov_b32 exec_hi, 0x80008000
        buffer_store_dwordx2 {vr(U,2)}, v{U+2}, s[{sWS}:{sWS+3}], s75 offen {SC}
        s_mov_b64 exec, -1
        """)

def p0r_arrive(a, L, vt):
    ok, skip = a.newlabel("fok"), a.newlabel("fsk")
    dbg_flag_wait(a, vt, landed=True)
    a(f"s_cmp_lt_u32 s{L.sNt}, 4")
    a(f"s_cbranch_scc0 {skip}")
    a(f"s_lshr_b32 s76, s{L.sM0}, 7")
    a(f"s_add_u32 s76, s76, {C_ST}")
    arrive(a, 76, vt - 2)
    a.label(skip)

def qkv_prefetch(a, L):
    make_srd(a, 12, pWQ, pWQ+1, 0, 640*3840)
    make_srd(a, 8, pX, pX+1, 0, 2048*1280)
    fl = E('QPF_FL', 'sc1')
    a(f"""
    s_lshr_b32 s40, s2, 3
    s_and_b32 s41, s2, 1
    v_and_b32 v2, 15, v1
    v_lshrrev_b32 v3, 4, v1
    v_lshlrev_b32 v2, 7, v2
    v_mul_u32_u24 v3, 3840, v3
    v_add_u32 v4, v2, v3
    s_mul_i32 s42, s40, {20*3840}
    s_lshl_b32 s43, s41, 11
    s_add_u32 s42, s42, s43
    s_mul_i32 s43, s{sWV}, {4*3840}
    s_add_u32 s42, s42, s43
    buffer_load_dword v162, v4, s[12:15], s42 offen {fl}
    """)
    l = a.newlabel("qpf")
    a(f"""
    s_cmp_eq_u32 s{sWV}, 0
    s_cbranch_scc0 {l}
    s_add_u32 s42, s42, {16*3840}
    buffer_load_dword v162, v4, s[12:15], s42 offen {fl}
    """)
    a.label(l)
    l = a.newlabel("qpf")
    a(f"""
    s_cmp_eq_u32 s{sWV}, 0
    s_cbranch_scc1 {l}
    s_and_b32 s41, s2, 7
    s_lshr_b32 s41, s41, 1
    s_lshl_b32 s41, s41, 5
    s_add_u32 s41, s41, s40
    s_mul_i32 s42, s41, 20480
    s_sub_u32 s43, s{sWV}, 1
    s_lshl_b32 s43, s43, 13
    s_add_u32 s42, s42, s43
    v_lshlrev_b32 v4, 7, v1
    buffer_load_dword v162, v4, s[8:11], s42 offen {fl}
    """)
    a.label(l)

def p0q_arrive(a, L, vt):
    ok = a.newlabel("fok")
    a(f"v_readfirstlane_b32 s75, v{vt}")
    a("s_cmp_lg_u32 s75, 0")
    a(f"s_cbranch_scc1 {ok}")
    dbg_flag_wait(a, vt)
    a.label(ok)
    a(f"""
    s_lshr_b32 s75, s{L.sM0}, 7
    s_add_u32 s75, s75, {C_ST}
    s_add_u32 s76, s{L.sNt}, {C_CS1}
    s_add_u32 s77, s{L.sNt}, {C_CS2}
    v_mov_b32 v{vt-1}, s75
    v_writelane_b32 v{vt-1}, s76, 1
    v_writelane_b32 v{vt-1}, s77, 2
    s_nop 0
    v_lshlrev_b32 v{vt-1}, 7, v{vt-1}
    v_add_u32 v{vt-1}, {WS_CNT}, v{vt-1}
    v_mov_b32 v{vt-2}, 1
    s_cmp_lt_u32 s{L.sNt}, 8
    s_cselect_b32 s75, 1, 0
    s_or_b32 s75, s75, 2
    s_cmp_lt_u32 s{L.sNt}, 14
    s_cselect_b32 s76, 4, 0
    s_or_b32 s75, s75, s76
    s_mov_b32 exec_lo, s75
    s_mov_b32 exec_hi, 0
    buffer_atomic_add v{vt-2}, v{vt-1}, s[{sWS}:{sWS+3}], 0 offen sc1
    s_mov_b64 exec, -1
    """)

def w2p_prefetch(a, j):
    a(f"""
    s_mul_i32 s75, s{sRk}, {SZ_W2P // 32}
    s_add_u32 s75, s75, {WS_W2P + j * 8192}
    v_lshlrev_b32 v61, 7, v1
    buffer_load_dword v60, v61, s[{sWS}:{sWS+3}], s75 offen sc1
    """)

def w2_first_prefetch(a, c):
    NST = 14
    a(f"""
    s_and_b32 s75, s{sRk}, 3
    s_mul_i32 s75, s75, 3
    s_lshr_b32 s76, s{sRk}, 2
    s_lshl_b32 s77, s76, 1
    s_add_u32 s75, s75, s77
    s_cmp_ge_u32 s75, {NST}
    s_cselect_b32 s77, {NST}, 0
    s_sub_u32 s75, s75, s77
    s_cmp_ge_u32 s75, {NST}
    s_cselect_b32 s77, {NST}, 0
    s_sub_u32 s75, s75, s77
    s_mul_i32 s76, s76, {NST * 20480}
    s_add_u32 s76, s76, {WS_W2P}
    s_mul_i32 s77, s{c.sLw}, 5120
    s_add_u32 s76, s76, s77
    s_mul_i32 s77, s75, 20480
    s_add_u32 s77, s77, s76
    v_lshlrev_b32 v61, 7, v1
    s_mov_b32 exec_lo, -1
    s_mov_b32 exec_hi, 0xff
    buffer_load_dword v60, v61, s[{sWS}:{sWS+3}], s77 offen sc1
    s_add_u32 s75, s75, 1
    s_cmp_eq_u32 s75, {NST}
    s_cselect_b32 s75, 0, s75
    s_mul_i32 s77, s75, 20480
    s_add_u32 s77, s77, s76
    buffer_load_dword v60, v61, s[{sWS}:{sWS+3}], s77 offen sc1
    s_mov_b64 exec, -1
    """)

class Repack:
    aB, vD, vT = 28, 110, 88
    sWo, sW2, sW1 = 12, 16, 40
    def __init__(self, a): self.a = a
    def issue(self, defer=False):
        a = self.a
        aB, vD, T = self.aB, self.vD, self.vT
        a(f"""
        s_mul_i32 s75, s2, 768
        s_sub_u32 s76, s{sWV}, 4
        s_lshl_b32 s76, s76, 6
        s_add_u32 s75, s75, s76
        v_add_u32 v{T}, s75, v1
        """)
        for r in range(3):
            g, it, sg, rho, c, row, nt, st_, x = T+1, T+2, T+3, T+4, T+5, T+6, T+7, T+8, T+9
            a(f"""
            v_add_u32 v{g}, {256*r}, v{T}
            s_mov_b32 s75, {(1 << 32) // 1280 + 1:#x}
            v_mul_hi_u32 v{it}, v{g}, s75
            v_mul_u32_u24 v{sg}, 1280, v{it}
            v_sub_u32 v{sg}, v{g}, v{sg}
            v_mul_u32_u24 v{rho}, 0xcccd, v{sg}
            v_lshrrev_b32 v{rho}, 19, v{rho}
            v_mul_u32_u24 v{c}, 10, v{rho}
            v_sub_u32 v{c}, v{sg}, v{c}
            v_and_b32 v{row}, 0x73, v{rho}
            v_and_b32 v{x}, 4, v{rho}
            v_lshlrev_b32 v{x}, 1, v{x}
            v_or_b32 v{row}, v{row}, v{x}
            v_and_b32 v{x}, 8, v{rho}
            v_lshrrev_b32 v{x}, 1, v{x}
            v_or_b32 v{row}, v{row}, v{x}
            v_lshlrev_b32 v{vD+r}, 4, v{g}
            v_cmp_gt_u32 vcc, 40, v{it}
            v_subrev_u32 v{x}, 40, v{it}
            s_nop 0
            v_cndmask_b32 v{x}, v{x}, v{it}, vcc
            v_mul_u32_u24 v{nt}, 0x4925, v{x}
            v_mul_u32_u24 v{st_}, 0xcccd, v{x}
            v_cndmask_b32 v{nt}, v{nt}, v{st_}, vcc
            v_lshrrev_b32 v{nt}, 18, v{nt}
            v_mov_b32 v{st_}, 14
            v_cndmask_b32 v{st_}, v{st_}, 5, vcc
            v_mul_u32_u24 v{st_}, v{st_}, v{nt}
            v_sub_u32 v{st_}, v{x}, v{st_}
            v_lshlrev_b32 v{st_}, 7, v{st_}
            v_add_u32 v{row}, v{row}, v{st_}
            v_mul_u32_u24 v{row}, 1280, v{row}
            v_mul_u32_u24 v{nt}, 160, v{nt}
            v_lshlrev_b32 v{c}, 4, v{c}
            v_add3_u32 v{row}, v{row}, v{nt}, v{c}
            v_mov_b32 v{x}, 0x7fffff00
            v_cndmask_b32 v{nt}, v{x}, v{row}, vcc
            v_cndmask_b32 v{row}, v{row}, v{x}, vcc
            v_cmp_gt_u32 vcc, 152, v{it}
            s_nop 1
            v_cndmask_b32 v{vD+r}, v{x}, v{vD+r}, vcc
            """)
            a(f"v_mov_b32 v{100+2*r}, v{nt}")
            a(f"v_mov_b32 v{101+2*r}, v{row}")
            a(f"v_mov_b32 v{106+r}, v{it}")
        if defer: return
        self.loads()
    def loads(self, base=100, tmp=None):
        a = self.a
        aB, T = self.aB, (self.vT if tmp is None else tmp)
        if base != 100:
            for k in range(9): a(f"v_accvgpr_read_b32 v{base+k}, a{40+k}")
        self.sWo, self.sW2, self.sW1 = 8, 12, 8
        make_srd(a, self.sWo, pWO, pWO+1, 0, 640*1280)
        make_srd(a, self.sW2, pW2, pW2+1, 0, 1728*1280)
        for r in range(3):
            la, lb = a.newlabel("rpa"), a.newlabel("rpb")
            a(f"""
            v_cmp_gt_u32 vcc, 40, v{base+6+r}
            s_nop 4
            s_mov_b64 s[76:77], vcc
            s_mov_b64 exec, vcc
            s_cbranch_execz {la}
            buffer_load_dwordx4 {ar(aB+4*r,4)}, v{base+2*r}, s[{self.sWo}:{self.sWo+3}], 0 offen
            {la}:
            s_not_b64 exec, s[76:77]
            s_cbranch_execz {lb}
            buffer_load_dwordx4 {ar(aB+4*r,4)}, v{base+1+2*r}, s[{self.sW2}:{self.sW2+3}], 0 offen
            {lb}:
            s_mov_b64 exec, -1
            """)
        make_srd(a, self.sW1, pW1, pW1+1, 0, 640*3456)
        a(f"""
        s_mul_i32 s75, s2, 8640
        s_sub_u32 s76, s{sWV}, 4
        s_mul_i32 s76, s76, 2176
        s_add_u32 s75, s75, s76
        v_lshlrev_b32 v{T}, 7, v1
        s_mov_b64 exec, 0x1ffff
        buffer_load_dword v113, v{T}, s[{self.sW1}:{self.sW1+3}], s75 offen sc1
        s_mov_b64 exec, -1
        """)
    def save(self):
        a = self.a
        for r in range(3): a(f"v_accvgpr_write_b32 a{40+r}, v{self.vD+r}")
        for k in range(9): a(f"v_accvgpr_write_b32 a{43+k}, v{100+k}")
    def store(self, wait_after=True, pre="s_waitcnt vmcnt(0)"):
        a = self.a
        a(pre)
        a(f"s_mov_b32 s75, {WS_WOP}")
        for r in range(3):
            a(f"buffer_store_dwordx4 {ar(self.aB+4*r,4)}, v{self.vD+r}, s[{sWS}:{sWS+3}], s75 offen {SC}")
        if wait_after: a("s_waitcnt vmcnt(0)")
        else: a("s_nop 1")

class CoreL:
    sA, sW, sO = 8, 12, 16
    sM0, sN0, sT0, sT1, sT2, sT3 = 21, 22, 23, 24, 25, 26
    sLw, sSlot, sAoff, sWoff, sLds = 20, 28, 29, 30, 31
    sWm, sWn, sNt, sSeq, sSeqW = 32, 33, 34, 35, 36
    vAe, vAo, vWo = 4, 5, 6
    NST = 10
    def __init__(self, a, mode, tag):
        self.a, self.mode, self.tag = a, mode, tag
        self.qkv = mode == 'qkv'
        self.LDW = 3840 if self.qkv else 3456
    def map_tiles(self, idle_label):
        a, c = self.a, self
        if not c.qkv:
            a(f"""
            s_and_b32 s{c.sT3}, s{sRk}, 1
            s_lshl_b32 s{c.sM0}, s{sX}, 1
            s_add_u32 s{c.sM0}, s{c.sM0}, s{c.sT3}
            s_lshl_b32 s{c.sM0}, s{c.sM0}, 7
            s_lshr_b32 s{c.sNt}, s{sRk}, 1
            s_cmp_ge_u32 s{c.sNt}, 14
            s_cbranch_scc1 {idle_label}
            s_lshl_b32 s{c.sN0}, s{c.sNt}, 7
            s_mul_i32 s{c.sSeq}, s{c.sNt}, 3
            s_mul_i32 s{c.sT0}, s{c.sT3}, 5
            s_add_u32 s{c.sSeq}, s{c.sSeq}, s{c.sT0}
            s_mul_i32 s{c.sT0}, s{c.sSeq}, 0xcccd
            s_lshr_b32 s{c.sT0}, s{c.sT0}, 19
            s_mul_i32 s{c.sT0}, s{c.sT0}, 10
            s_sub_u32 s{c.sSeq}, s{c.sSeq}, s{c.sT0}
            """)
            if E('NOROTL'): a(f"s_mov_b32 s{c.sSeq}, 0")
            return
        NT_PER = 8 if c.qkv else 7
        NT_TOT = 15 if c.qkv else 14
        a(f"""
        s_and_b32 s{c.sT0}, s2, 7
        s_lshr_b32 s{c.sT1}, s2, 3
        s_lshr_b32 s{c.sT2}, s{c.sT0}, 1
        s_lshl_b32 s{c.sT2}, s{c.sT2}, 2
        s_and_b32 s{c.sT3}, s{c.sT1}, 3
        s_add_u32 s{c.sM0}, s{c.sT2}, s{c.sT3}
        s_lshl_b32 s{c.sM0}, s{c.sM0}, 7
        s_and_b32 s{c.sT0}, s{c.sT0}, 1
        s_mul_i32 s{c.sT0}, s{c.sT0}, {NT_PER}
        s_lshr_b32 s{c.sT1}, s{c.sT1}, 2
        s_add_u32 s{c.sNt}, s{c.sT0}, s{c.sT1}
        s_cmp_ge_u32 s{c.sT1}, {NT_PER}
        s_cbranch_scc1 {idle_label}
        s_cmp_ge_u32 s{c.sNt}, {NT_TOT}
        s_cbranch_scc1 {idle_label}
        s_lshl_b32 s{c.sN0}, s{c.sNt}, 7
        s_mul_i32 s{c.sSeq}, s{c.sT3}, 3
        s_add_u32 s{c.sSeq}, s{c.sSeq}, s{c.sT1}
        s_cmp_ge_u32 s{c.sSeq}, 10
        s_cselect_b32 s{c.sT0}, 10, 0
        s_sub_u32 s{c.sSeq}, s{c.sSeq}, s{c.sT0}
        """)
        if E('NOROTL'): a(f"s_mov_b32 s{c.sSeq}, 0")
    def loader_setup(self):
        a, c = self.a, self
        a(f"s_sub_u32 s{c.sLw}, s{sWV}, 4")
        if c.qkv:
            make_srd(a, c.sA, pX, pX+1, 0, 2048*1280)
            a(f"""
            v_lshrrev_b32 v2, 3, v1
            v_mul_u32_u24 v2, 1280, v2
            v_lshrrev_b32 v3, 4, v1
            v_and_b32 v7, 7, v1
            v_xor_b32 v3, v3, v7
            v_lshlrev_b32 v3, 4, v3
            v_add_u32 v{c.vAe}, v2, v3
            v_xor_b32 v{c.vAo}, 64, v{c.vAe}
            s_lshl_b32 s{c.sT0}, s{c.sLw}, 5
            s_add_u32 s{c.sT0}, s{c.sT0}, s{c.sM0}
            s_mul_i32 s{c.sAoff}, s{c.sT0}, 1280
            """)
            c.A_SSTEP = 128
        else:
            make_srd(a, c.sA, pWS, pWS+1, WS_H, SZ_ACT)
            a(f"""
            v_lshlrev_b32 v{c.vAe}, 4, v1
            v_add_u32 v{c.vAo}, 1024, v{c.vAe}
            s_lshl_b32 s{c.sT0}, s{c.sLw}, 16
            s_lshl_b32 s{c.sT1}, s{c.sM0}, 4
            s_add_u32 s{c.sAoff}, s{c.sT0}, s{c.sT1}
            """)
            c.A_SSTEP = 8 * 32768
        pw = pWQ if c.qkv else pW1
        make_srd(a, c.sW, pw, pw+1, 0, 640 * c.LDW)
        a(f"""
        v_lshrrev_b32 v2, 4, v1
        v_mul_u32_u24 v3, {c.LDW}, v2
        v_lshlrev_b32 v2, 2, v2
        v_and_b32 v7, 15, v1
        v_xor_b32 v2, v2, v7
        v_lshlrev_b32 v2, 4, v2
        v_add_u32 v{c.vWo}, v2, v3
        s_lshl_b32 s{c.sT0}, s{c.sLw}, 4
        s_mul_i32 s{c.sT0}, s{c.sT0}, {c.LDW}
        s_lshl_b32 s{c.sT1}, s{c.sN0}, 1
        s_add_u32 s{c.sWoff}, s{c.sT0}, s{c.sT1}
        s_lshl_b32 s{c.sLds}, s{c.sLw}, 12
        s_mul_i32 s{c.sT0}, s{c.sSeq}, {c.A_SSTEP}
        s_add_u32 s{c.sAoff}, s{c.sAoff}, s{c.sT0}
        s_mul_i32 s{c.sT0}, s{c.sSeq}, {64 * c.LDW}
        s_add_u32 s{c.sWoff}, s{c.sWoff}, s{c.sT0}
        s_mov_b32 s{c.sSeqW}, s{c.sSeq}
        """)
    def issue_A(self, seq):
        a, c = self.a, self
        slot = (seq % 4) * 32768
        for j in range(4):
            a(f"s_add_u32 m0, s{c.sLds}, {slot}" if j == 0 else "s_add_u32 m0, m0, 1024")
            if c.qkv:
                a(f"s_mov_b32 s{c.sT0}, s{c.sAoff}" if j == 0 else f"s_add_u32 s{c.sT0}, s{c.sT0}, {8*1280}")
            else:
                if j == 0: a(f"s_mov_b32 s{c.sT0}, s{c.sAoff}")
                elif j == 2: a(f"s_add_u32 s{c.sT0}, s{c.sT0}, 32768")
                else: a("s_nop 0")
            a(f"buffer_load_dwordx4 v{c.vAe if j % 2 == 0 else c.vAo}, s[{c.sA}:{c.sA+3}], s{c.sT0} offen {E('QNT_A','') if c.qkv else ''} lds")
        a(f"""
        s_add_u32 s{c.sSeq}, s{c.sSeq}, 1
        s_cmp_eq_u32 s{c.sSeq}, {c.NST}
        s_cselect_b32 s{c.sT0}, {c.NST * c.A_SSTEP}, 0
        s_cselect_b32 s{c.sSeq}, 0, s{c.sSeq}
        s_add_u32 s{c.sAoff}, s{c.sAoff}, {c.A_SSTEP}
        s_sub_u32 s{c.sAoff}, s{c.sAoff}, s{c.sT0}
        """)
    def issue_W(self, seq):
        a, c = self.a, self
        slot = (seq % 4) * 32768 + 16384
        for j in range(4):
            a(f"s_add_u32 m0, s{c.sLds}, {slot}" if j == 0 else "s_add_u32 m0, m0, 1024")
            a(f"s_mov_b32 s{c.sT0}, s{c.sWoff}" if j == 0 else f"s_add_u32 s{c.sT0}, s{c.sT0}, {4 * c.LDW}")
            a(f"buffer_load_dwordx4 v{c.vWo}, s[{c.sW}:{c.sW+3}], s{c.sT0} offen {E('QNT_W','') if c.qkv else ''} lds")
        a(f"""
        s_add_u32 s{c.sSeqW}, s{c.sSeqW}, 1
        s_cmp_eq_u32 s{c.sSeqW}, {c.NST}
        s_cselect_b32 s{c.sT0}, {c.NST * 64 * c.LDW}, 0
        s_cselect_b32 s{c.sSeqW}, 0, s{c.sSeqW}
        s_add_u32 s{c.sWoff}, s{c.sWoff}, {64 * c.LDW}
        s_sub_u32 s{c.sWoff}, s{c.sWoff}, s{c.sT0}
        """)
    vLs = 16
    vSx, vSq, vCs, vU = 48, 56, 64, 72
    vLs = 16
    def lstats_init(self): pass
    def lst_poll_issue(self):
        a, c = self.a, self
        v = c.vLs
        a(f"""
        s_add_u32 s{c.sT0}, s{c.sNt}, {C_CS1 if c.qkv else C_CS2}
        s_lshr_b32 s{c.sT1}, s{c.sM0}, 7
        s_add_u32 s{c.sT1}, s{c.sT1}, {C_ST}
        v_mov_b32 v{v}, s{c.sT0}
        v_writelane_b32 v{v}, s{c.sT1}, 1
        v_mov_b32 v{v+1}, 16
        v_writelane_b32 v{v+1}, {8 if c.qkv else 0}, 1
        v_lshlrev_b32 v{v}, 7, v{v}
        v_add_u32 v{v}, {WS_CNT}, v{v}
        s_mov_b64 exec, 3
        buffer_load_dword v{v+2}, v{v}, s[{sWS}:{sWS+3}], 0 offen sc1
        s_mov_b64 exec, -1
        """)
    def lst_check_issue(self, q):
        a, c = self.a, self
        v = c.vLs
        ok = a.newlabel("lok")
        a(f"""
        s_waitcnt vmcnt({q.need('poll')})
        s_mov_b64 exec, 3
        v_cmp_gt_u32 vcc, v{v+1}, v{v+2}
        s_nop 4
        s_cmp_eq_u64 vcc, 0
        s_cbranch_scc1 {ok}
        """)
        poll(a, v, v + 1, 2, v + 2)
        a.label(ok)
        a("s_mov_b64 exec, -1")
        ncol = 1920 if c.qkv else 1792
        d = v + 8
        a(f"""
        v_and_b32 v{v+4}, 31, v1
        v_lshlrev_b32 v{v+5}, 2, v{v+4}
        v_lshlrev_b32 v{v+4}, 3, v{v+4}
        s_lshl_b32 s{c.sT0}, s{c.sLw}, 5
        s_add_u32 s{c.sT1}, s{c.sT0}, s{c.sN0}
        s_lshl_b32 s{c.sT1}, s{c.sT1}, 2
        s_add_u32 s{c.sT1}, s{c.sT1}, {WS_CS1 if c.qkv else WS_CS2}
        s_mov_b32 exec_hi, 0
        """)
        for j in range(16):
            a(f"buffer_load_dword v{d+j}, v{v+5}, s[{sWS}:{sWS+3}], s{c.sT1} offen")
            if j < 15: a(f"s_add_u32 s{c.sT1}, s{c.sT1}, {ncol*4}")
        a(f"""
        s_mov_b32 exec_lo, 0
        s_mov_b32 exec_hi, -1
        s_add_u32 s{c.sT1}, s{c.sT0}, s{c.sM0}
        s_lshl_b32 s{c.sT1}, s{c.sT1}, 3
        s_add_u32 s{c.sT1}, s{c.sT1}, {WS_ST1 if c.qkv else WS_ST2}
        """)
        npart = 1 if c.qkv else 8
        for j in range(npart):
            a(f"buffer_load_dwordx2 {vr(d+16+2*j,2)}, v{v+4}, s[{sWS}:{sWS+3}], s{c.sT1} offen")
            if j < npart - 1: a(f"s_add_u32 s{c.sT1}, s{c.sT1}, {2048*8}")
        a("s_mov_b64 exec, -1")
        q.push("stats", 16 + npart)
    def lst_finish(self, q):
        a, c = self.a, self
        v = c.vLs
        d = v + 8
        a(f"s_waitcnt vmcnt({q.need('stats')})")
        for j in range(1, 16):
            a(f"v_add_f32 v{d}, v{d}, v{d+j}")
        S, Q = d + 16, d + 17
        if not c.qkv:
            for j in range(1, 8):
                a(f"v_add_f32 v{S}, v{S}, v{S+2*j}")
                a(f"v_add_f32 v{Q}, v{Q}, v{Q+2*j}")
            a(f"""
            v_mul_f32 v{S}, {f32bits(1.0/640):#x}, v{S}
            v_mul_f32 v{Q}, {f32bits(1.0/640):#x}, v{Q}
            v_fma_f32 v{Q}, -v{S}, v{S}, v{Q}
            v_max_f32 v{Q}, 0, v{Q}
            v_add_f32 v{Q}, {f32bits(1e-5):#x}, v{Q}
            v_rsq_f32 v{Q}, v{Q}
            """)
        a(f"""
        s_lshl_b32 s{c.sT0}, s{c.sLw}, 7
        s_add_u32 s{c.sT0}, s{c.sT0}, {STAT}
        v_add_u32 v{v+5}, s{c.sT0}, v{v+5}
        s_mov_b32 exec_hi, 0
        ds_write_b32 v{v+5}, v{d} offset:1024
        s_mov_b32 exec_lo, 0
        s_mov_b32 exec_hi, -1
        ds_write_b32 v{v+5}, v{S}
        ds_write_b32 v{v+5}, v{Q} offset:512
        s_mov_b64 exec, -1
        s_waitcnt lgkmcnt(0)
        """)
    def tq_poll_issue(self):
        a, c = self.a, self
        v = c.vLs
        a(f"""
        s_lshr_b32 s{c.sT1}, s{c.sM0}, 7
        s_add_u32 s{c.sT1}, s{c.sT1}, {C_ST}
        s_lshl_b32 s{c.sT1}, s{c.sT1}, 7
        s_add_u32 s{c.sT1}, s{c.sT1}, {WS_CNT}
        v_mov_b32 v{v}, s{c.sT1}
        v_mov_b32 v{v+1}, {5 if E('P0L') else 1}
        s_mov_b64 exec, 1
        buffer_load_dword v{v+2}, v{v}, s[{sWS}:{sWS+3}], 0 offen sc1
        s_mov_b64 exec, -1
        """)
    def tq_check_issue(self, q):
        a, c = self.a, self
        v = c.vLs
        ok = a.newlabel("lok")
        a(f"""
        s_waitcnt vmcnt({q.need('poll')})
        v_readfirstlane_b32 s{c.sT0}, v{v+2}
        s_cmp_ge_u32 s{c.sT0}, {5 if E('P0L') else 1}
        s_cbranch_scc1 {ok}
        """)
        poll(a, v, v + 1, 1, v + 2)
        a.label(ok)
        a(f"""
        v_and_b32 v{v+4}, 31, v1
        v_lshlrev_b32 v{v+5}, 2, v{v+4}
        v_lshlrev_b32 v{v+4}, 3, v{v+4}
        s_lshl_b32 s{c.sT0}, s{c.sLw}, 5
        s_add_u32 s{c.sT1}, s{c.sT0}, s{c.sM0}
        s_lshl_b32 s{c.sT1}, s{c.sT1}, 3
        s_add_u32 s{c.sT1}, s{c.sT1}, {WS_ST1}
        buffer_load_dwordx2 {vr(v+8,2)}, v{v+4}, s[{sWS}:{sWS+3}], s{c.sT1} offen
        """)
        q.push("stats", 1)
    def tq_finish(self, q):
        a, c = self.a, self
        v = c.vLs
        a(f"""
        s_waitcnt vmcnt({q.need('stats')})
        s_lshl_b32 s{c.sT0}, s{c.sLw}, 7
        s_add_u32 s{c.sT0}, s{c.sT0}, {STAT}
        v_add_u32 v{v+5}, s{c.sT0}, v{v+5}
        ds_write_b32 v{v+5}, v{v+8}
        ds_write_b32 v{v+5}, v{v+9} offset:512
        """)
    def tok_issue(self, q):
        a, c = self.a, self
        v = c.vLs
        d = v + 8
        a(f"""
        v_and_b32 v{v+4}, 31, v1
        v_lshlrev_b32 v{v+5}, 2, v{v+4}
        v_lshlrev_b32 v{v+4}, 3, v{v+4}
        s_lshl_b32 s{c.sT0}, s{c.sLw}, 5
        s_add_u32 s{c.sT1}, s{c.sT0}, s{c.sM0}
        s_lshl_b32 s{c.sT1}, s{c.sT1}, 3
        s_add_u32 s{c.sT1}, s{c.sT1}, {WS_ST2}
        s_mov_b32 exec_hi, 0
        """)
        for j in range(16):
            a(f"buffer_load_dwordx2 {vr(d+2*j,2)}, v{v+4}, s[{sWS}:{sWS+3}], s{c.sT1} offen")
            if j < 15: a(f"s_add_u32 s{c.sT1}, s{c.sT1}, {2048*8}")
        a("s_mov_b32 exec_hi, -1")
        q.push("stats", 16)
    def tok_finish(self, q):
        a, c = self.a, self
        v = c.vLs
        S, Q = v + 8, v + 9
        a(f"s_waitcnt vmcnt({q.need('stats')})")
        for j in range(1, 16):
            a(f"v_add_f32 v{S}, v{S}, v{S+2*j}")
            a(f"v_add_f32 v{Q}, v{Q}, v{Q+2*j}")
        a(f"""
        v_mul_f32 v{S}, {f32bits(1.0/640):#x}, v{S}
        v_mul_f32 v{Q}, {f32bits(1.0/640):#x}, v{Q}
        v_fma_f32 v{Q}, -v{S}, v{S}, v{Q}
        v_max_f32 v{Q}, 0, v{Q}
        v_add_f32 v{Q}, {f32bits(1e-5):#x}, v{Q}
        v_rsq_f32 v{Q}, v{Q}
        s_lshl_b32 s{c.sT0}, s{c.sLw}, 7
        s_add_u32 s{c.sT0}, s{c.sT0}, {STAT}
        v_add_u32 v{v+5}, s{c.sT0}, v{v+5}
        s_mov_b32 exec_hi, 0
        ds_write_b32 v{v+5}, v{S}
        ds_write_b32 v{v+5}, v{Q} offset:512
        s_mov_b32 exec_hi, -1
        """)
    def loader_main(self, q, p0=None):
        a, c = self.a, self
        for s_ in range(c.NST):
            tags = [f'A{s_}', f'W{s_}']
            if c.qkv and s_ == 4 and E('P0L'): tags.append('p0st')
            a(f"s_waitcnt vmcnt({q.need(*tags)}) lgkmcnt(0)")
            if getattr(c, 'ldstamps', False) and s_ in (0, 1, 2): st(a, 4 + s_)
            a("s_barrier")
            stx(a, f"{c.tag}l{s_}")
            if c.qkv:
                vd = 70
                if s_ == 0: wave_only(a, 4, lambda: a(f"buffer_load_dword v{vd}, v{vd+1}, s[44:47], 0 offen sc1"))
                if s_ == 4 and E('P0L'): wave_only(a, 4, lambda: p0r_arrive(a, c, vd))
                if s_ == 3: wave_only(a, 7, lambda: reg_step1(a, vd))
                if s_ == 5: wave_only(a, 7, lambda: reg_step2(a, vd))
                if s_ == 7: wave_only(a, 7, lambda: reg_step3(a, vd))
            if s_ + PD < c.NST and not (E('X_NODMA') and c.qkv):
                c.issue_A(s_ + PD); q.push(f"A{s_+PD}", 4)
                c.issue_W(s_ + PD); q.push(f"W{s_+PD}", 4)
            if c.qkv and s_ == 1 and E('P0L'):
                a(f"s_waitcnt vmcnt({q.need('p0l')})"); c.p0l.finish(); q.push('p0st', 1)
            if not c.qkv:
                if s_ == 7: c.tok_issue(q)
                if s_ == 8 and not E('NOPFW0'): w2_first_prefetch(a, c)
                if s_ == 9: c.tok_finish(q)
                if E('PFW2') and 0 <= s_ < 9:
                    wave_only(a, 4 + (s_ % 4), lambda: w2p_prefetch(a, s_))
            else:
                if s_ == 8 and getattr(c, 'hook7', None): c.hook7()
                if s_ == 6:
                    c.tq_poll_issue(); q.push("poll", 1)
                if s_ == 7: c.tq_check_issue(q)
                if s_ == 9: c.tq_finish(q)

    vAd, vX, vW, vAcc, vT, vSt = 24, 32, 32, 64, 128, 144
    def compute_setup(self):
        a, c = self.a, self
        NXA = 8 if c.qkv else 2
        c.NXA = NXA
        c.vXa = 4
        c.vWa = c.vXa + 2 * NXA
        vXa, vWa, vT = c.vXa, c.vWa, c.vT
        t0, t1 = vT, vT + 1
        a(f"""
        s_lshr_b32 s{c.sWm}, s{sWV}, 1
        s_and_b32 s{c.sWn}, s{sWV}, 1
        v_and_b32 v2, 31, v1
        v_lshrrev_b32 v3, 5, v1
        """)
        if c.qkv:
            a(f"""
            v_lshrrev_b32 v{t0}, 1, v1
            v_and_b32 v{t0}, 7, v{t0}
            v_xor_b32 v{t0}, v{t0}, v3
            v_lshlrev_b32 v{t0}, 4, v{t0}
            v_lshlrev_b32 v{t1}, 7, v2
            v_add_u32 v{t0}, v{t0}, v{t1}
            s_lshl_b32 s{c.sT0}, s{c.sWm}, 13
            s_lshl_b32 s{c.sT1}, s{c.sWn}, 12
            s_add_u32 s{c.sT0}, s{c.sT0}, s{c.sT1}
            v_add_u32 v{t0}, s{c.sT0}, v{t0}
            """)
            for s in range(4):
                a(f"v_xor_b32 v{vXa + s}, {32 * s}, v{t0}")
                a(f"v_xor_b32 v{vXa + 4 + s}, 4096, v{vXa + s}")
        else:
            a(f"""
            v_lshlrev_b32 v{t0}, 11, v3
            v_lshlrev_b32 v{t1}, 4, v2
            v_add_u32 v{t0}, v{t0}, v{t1}
            s_lshl_b32 s{c.sT0}, s{c.sWm}, 10
            v_add_u32 v{vXa}, s{c.sT0}, v{t0}
            v_add_u32 v{vXa + 1}, 512, v{vXa}
            """)
        for i in range(NXA):
            a(f"v_add_u32 v{vXa + NXA + i}, 65536, v{vXa + i}")
        a(f"""
        v_lshrrev_b32 v{t0}, 2, v1
        v_and_b32 v{t0}, 3, v{t0}
        v_lshlrev_b32 v{t1}, 3, v3
        v_add_u32 v{t1}, v{t1}, v{t0}
        v_lshlrev_b32 v{t1}, 8, v{t1}
        v_lshlrev_b32 v{t0}, 6, v{t0}
        v_add_u32 v{t1}, v{t1}, v{t0}
        v_lshrrev_b32 v{t0}, 4, v1
        v_and_b32 v{t0}, 1, v{t0}
        v_lshlrev_b32 v{t0}, 5, v{t0}
        v_add_u32 v{t1}, v{t1}, v{t0}
        v_lshrrev_b32 v{t0}, 1, v1
        v_and_b32 v{t0}, 1, v{t0}
        v_lshlrev_b32 v{t0}, 4, v{t0}
        v_add_u32 v{t1}, v{t1}, v{t0}
        v_and_b32 v{t0}, 1, v1
        v_lshlrev_b32 v{t0}, 3, v{t0}
        v_add_u32 v{t1}, v{t1}, v{t0}
        v_add_u32 v{t1}, 16384, v{t1}
        s_lshl_b32 s{c.sT0}, s{c.sWn}, 7
        s_lshl_b32 s{c.sT1}, s{c.sWm}, 6
        s_add_u32 s{c.sT0}, s{c.sT0}, s{c.sT1}
        v_xor_b32 v{vWa}, s{c.sT0}, v{t1}
        v_xor_b32 v{vWa + 1}, 64, v{vWa}
        v_add_u32 v{vWa + 2}, 65536, v{vWa}
        v_add_u32 v{vWa + 3}, 65536, v{vWa + 1}
        """)
    def addr_qk(self):
        a, c = self.a, self
        vT, vAd = c.vT, c.vAd
        t0, t1 = vT, vT + 1
        a(f"""
        s_cmp_lt_u32 s{c.sNt}, 5
        s_cselect_b32 s{c.sT0}, 0, 640
        s_sub_u32 s{c.sT2}, s{c.sN0}, s{c.sT0}
        s_lshl_b32 s{c.sT1}, s{c.sWn}, 6
        s_add_u32 s{c.sT2}, s{c.sT2}, s{c.sT1}
        s_lshr_b32 s{c.sT2}, s{c.sT2}, 3
        v_add_u32 v{t0}, s{c.sT2}, v3
        v_lshlrev_b32 v{vT+4}, 4, v2
        """)
        for ft in range(2):
            for j in range(2):
                d = vAd + ft*2 + j
                a(f"""
                s_xor_b32 s{c.sT3}, s{c.sWm}, {ft}
                s_lshl_b32 s{c.sT3}, s{c.sT3}, 2
                s_add_u32 s{c.sT3}, s{c.sT3}, {2*j}
                v_add_u32 v{t1}, s{c.sT3}, v{t0}
                v_mul_u32_u24 v{vT+2}, 0xcccd, v{t1}
                v_lshrrev_b32 v{vT+2}, 18, v{vT+2}
                v_mul_u32_u24 v{vT+3}, 5, v{vT+2}
                v_sub_u32 v{vT+3}, v{t1}, v{vT+3}
                v_lshlrev_b32 v{vT+3}, 9, v{vT+3}
                v_mul_u32_u24 v{vT+2}, 0x28000, v{vT+2}
                v_add3_u32 v{d}, v{vT+2}, v{vT+3}, v{vT+4}
                """)
        a(f"""
        s_lshr_b32 s{c.sT0}, s{c.sM0}, 5
        s_lshl_b32 s{c.sT1}, s{c.sWm}, 1
        s_add_u32 s{c.sT0}, s{c.sT0}, s{c.sT1}
        s_add_u32 s{c.sT1}, s{c.sT0}, s{c.sWn}
        s_mul_i32 s40, s{c.sT1}, 2560
        s_xor_b32 s{c.sT1}, s{c.sWn}, 1
        s_add_u32 s{c.sT1}, s{c.sT0}, s{c.sT1}
        s_mul_i32 s41, s{c.sT1}, 2560
        s_cmp_lt_u32 s{c.sNt}, 5
        s_cselect_b32 s{c.sT0}, {WS_Q}, {WS_K}
        s_add_u32 s{c.sO}, s{pWS}, s{c.sT0}
        s_addc_u32 s{c.sO+1}, s{pWS+1}, 0
        s_and_b32 s{c.sO+1}, s{c.sO+1}, 0xffff
        s_mov_b32 s{c.sO+2}, {SZ_QK}
        s_mov_b32 s{c.sO+3}, 0x20000
        """)
    def addr_f(self):
        a, c = self.a, self
        vT, vAd = c.vT, c.vAd
        t0, t1 = vT, vT + 1
        a(f"""
        s_lshl_b32 s{c.sT1}, s{c.sWn}, 6
        s_add_u32 s{c.sT2}, s{c.sN0}, s{c.sT1}
        s_lshr_b32 s{c.sT2}, s{c.sT2}, 3
        v_add_u32 v{t0}, s{c.sT2}, v3
        v_lshlrev_b32 v{t0}, 15, v{t0}
        v_lshlrev_b32 v{t1}, 4, v2
        v_add_u32 v{t0}, v{t0}, v{t1}
        """)
        for ft in range(2):
            for j in range(2):
                a(f"s_xor_b32 s{c.sT3}, s{c.sWm}, {ft}")
                a(f"s_lshl_b32 s{c.sT3}, s{c.sT3}, 2")
                a(f"s_add_u32 s{c.sT3}, s{c.sT3}, {2*j}")
                a(f"s_lshl_b32 s{c.sT3}, s{c.sT3}, 15")
                a(f"v_add_u32 v{vAd + ft*2 + j}, s{c.sT3}, v{t0}")
        a(f"""
        s_lshl_b32 s{c.sT1}, s{c.sWm}, 6
        s_add_u32 s{c.sT0}, s{c.sM0}, s{c.sT1}
        s_lshl_b32 s40, s{c.sT0}, 4
        s_add_u32 s41, s40, 512
        """)
        make_srd(a, c.sO, pWS, pWS+1, WS_F, SZ_F)
    def addr_v(self):
        a, c = self.a, self
        vT, vAd = c.vT, c.vAd
        t0, t1 = vT, vT + 1
        for ft in range(2):
            a(f"""
            s_lshl_b32 s{c.sT1}, s{c.sWn}, 6
            s_add_u32 s{c.sT0}, s{c.sN0}, s{c.sT1}
            s_xor_b32 s{c.sT1}, s{c.sWm}, {ft}
            s_lshl_b32 s{c.sT1}, s{c.sT1}, 5
            s_add_u32 s{c.sT0}, s{c.sT0}, s{c.sT1}
            s_sub_u32 s{c.sT0}, s{c.sT0}, 1280
            v_add_u32 v{t0}, s{c.sT0}, v2
            v_mul_u32_u24 v{t1}, 0xcccd, v{t0}
            v_lshrrev_b32 v{t1}, 20, v{t1}
            v_mul_u32_u24 v{vT+2}, 20, v{t1}
            v_sub_u32 v{t0}, v{t0}, v{vT+2}
            v_lshlrev_b32 v{t0}, 4, v{t0}
            v_mul_u32_u24 v{t1}, 0x14000, v{t1}
            v_add_u32 v{t0}, v{t0}, v{t1}
            v_mul_u32_u24 v{t1}, 320, v3
            v_add_u32 v{vAd+ft}, v{t0}, v{t1}
            """)
        a(f"""
        s_lshl_b32 s{c.sT1}, s{c.sWm}, 6
        s_add_u32 s{c.sT0}, s{c.sM0}, s{c.sT1}
        s_lshr_b32 s{c.sT0}, s{c.sT0}, 4
        s_lshl_b32 s{c.sT1}, s{c.sWn}, 1
        s_add_u32 s{c.sT1}, s{c.sT1}, s{c.sT0}
        s_mul_i32 s40, s{c.sT1}, 640
        s_add_u32 s41, s40, 640
        s_xor_b32 s{c.sT1}, s{c.sWn}, 1
        s_lshl_b32 s{c.sT1}, s{c.sT1}, 1
        s_add_u32 s{c.sT1}, s{c.sT1}, s{c.sT0}
        s_mul_i32 s42, s{c.sT1}, 640
        s_add_u32 s43, s42, 640
        """)
        make_srd(a, c.sO, pWS, pWS+1, WS_V, SZ_QKV)
    def stats_poll_issue(self):
        a, c = self.a, self
        vS = c.vSt
        a(f"""
        v_lshlrev_b32 v{vS+30}, 7, v1
        v_add_u32 v{vS+30}, {WS_CNT + (C_P0 if c.qkv else C_W1)*128}, v{vS+30}
        s_mov_b64 exec, 0xff
        buffer_load_dword v{vS+29}, v{vS+30}, s[{sWS}:{sWS+3}], 0 offen sc1
        s_mov_b64 exec, -1
        """)
    def stats_poll_check(self):
        a, c = self.a, self
        vS = c.vSt
        ok = a.newlabel("stok")
        a(f"""
        s_waitcnt vmcnt(0)
        s_mov_b64 exec, 0xff
        v_cmp_gt_u32 vcc, 128, v{vS+29}
        s_nop 4
        s_cmp_eq_u64 vcc, 0
        s_cbranch_scc1 {ok}
        v_mov_b32 v{vS+28}, 128
        """)
        poll(a, vS + 30, vS + 28, 8, vS + 29)
        a.label(ok)
        a("s_mov_b64 exec, -1")
        a("s_nop 3")
    def stats_issue(self):
        a, c = self.a, self
        vS = c.vSt
        a(f"""
        v_lshlrev_b32 v{vS+31}, 2, v2
        v_lshlrev_b32 v{vS+30}, 3, v2
        s_lshl_b32 s{c.sT0}, s{sWV}, 5
        s_add_u32 s{c.sT1}, s{c.sT0}, s{c.sM0}
        s_lshl_b32 s{c.sT1}, s{c.sT1}, 3
        s_add_u32 s{c.sT1}, s{c.sT1}, {WS_ST2}
        """)
        for j in range(8):
            a(f"buffer_load_dwordx2 {vr(vS+8+2*j,2)}, v{vS+30}, s[{sWS}:{sWS+3}], s{c.sT1} offen")
            if j < 7: a(f"s_add_u32 s{c.sT1}, s{c.sT1}, {2048*8}")
    def stats_finish(self):
        a, c = self.a, self
        vS = c.vSt
        a("s_waitcnt vmcnt(0)")
        S, Q = vS + 8, vS + 9
        for j in range(1, 8):
            a(f"v_add_f32 v{S}, v{S}, v{S+2*j}")
            a(f"v_add_f32 v{Q}, v{Q}, v{Q+2*j}")
        a(f"""
        v_mul_f32 v{S}, {f32bits(1.0/640):#x}, v{S}
        v_mul_f32 v{Q}, {f32bits(1.0/640):#x}, v{Q}
        v_fma_f32 v{Q}, -v{S}, v{S}, v{Q}
        v_max_f32 v{Q}, 0, v{Q}
        v_add_f32 v{Q}, {f32bits(1e-5):#x}, v{Q}
        v_rsq_f32 v{Q}, v{Q}
        s_lshl_b32 s{c.sT0}, s{sWV}, 7
        s_add_u32 s{c.sT0}, s{c.sT0}, {STAT}
        v_add_u32 v{vS+31}, s{c.sT0}, v{vS+31}
        ds_write_b32 v{vS+31}, v{S}
        ds_write_b32 v{vS+31}, v{Q} offset:512
        """)
    aX = 4
    def read_list(self, i):
        c = self
        st_, step, buf = i // 4, i % 4, i % 3
        slot = st_ % 4
        win, base = slot >> 1, (slot & 1) * 32768
        L = []
        for lt in range(2):
            if c.qkv:
                L.append(f"ds_read_b128 {ar(c.aX + buf*8 + lt*4, 4)}, v{c.vXa + win*8 + lt*4 + step} offset:{base}")
            else:
                L.append(f"ds_read_b128 {ar(c.aX + buf*8 + lt*4, 4)}, v{c.vXa + win*2 + lt} offset:{base + step*4096}")
        for lf in range(2):
            for h2 in range(2):
                L.append(f"ds_read_b64_tr_b16 {vr(c.vW + buf*8 + lf*4 + h2*2, 2)}, v{c.vWa + win*2 + lf} offset:{base + step*4096 + h2*1024}")
        return L
    def reads(self, i):
        for r in self.read_list(i): self.a(r)
    def mfma(self, i, k, orientY):
        a, c = self.a, self
        buf = i % 3
        lf, lt = k >> 1, k & 1
        acc = c.vAcc + (lf*2 + lt) * 16
        xa, wa = ar(c.aX + buf*8 + lt*4, 4), vr(c.vW + buf*8 + lf*4, 4)
        cc = "0" if i == 0 else vr(acc, 16)
        if orientY: a(f"v_mfma_f32_32x32x16_bf16 {vr(acc,16)}, {wa}, {xa}, {cc}")
        else: a(f"v_mfma_f32_32x32x16_bf16 {vr(acc,16)}, {xa}, {wa}, {cc}")
    def mainloop(self, orientY, stamp0=None, tag='q'):
        a, c = self.a, self
        vS = c.vSt
        CS = vS
        UU = c.vT
        a(f"v_mov_b32 v{CS}, 0")
        a(f"v_mov_b32 v{CS+1}, 0")
        a("s_barrier")
        if stamp0 is not None: st(a, stamp0)
        stx(a, tag + '_s0')
        c.reads(0)
        c.reads(1)
        for i in range(40):
            buf = i % 3
            Wl = c.vW + buf*8
            ops = []
            for r in range(4):
                u = UU + 2*(r & 1)
                ops += [f"v_lshlrev_b32 v{u}, 16, v{Wl+r}", f"v_and_b32 v{u+1}, 0xffff0000, v{Wl+r}",
                        f"v_add_f32 v{CS}, v{CS}, v{u}", f"v_add_f32 v{CS+1}, v{CS+1}, v{u+1}"]
            if E('X_NOVALU'): ops = []
            rl = c.read_list(i + 2) if i + 2 < 40 else []
            if i == 4: stx(a, tag + '_s1')
            if i == 20: stx(a, tag + '_s5')
            a(f"s_waitcnt lgkmcnt({6 if i + 1 < 40 else 0})")
            c.mfma(i, 0, orientY)
            if i + 2 < 40 and (i + 2) % 4 == 0:
                a("s_barrier")
            for o in rl[0:2] + ops[0:3]: a(o)
            c.mfma(i, 1, orientY)
            for o in rl[2:4] + ops[3:6]: a(o)
            if c.qkv and i == int(E('TLBI', '2')) and E('TLB'): wave_only(a, 3, lambda: tlb_warm(a))
            c.mfma(i, 2, orientY)
            for o in rl[4:6] + ops[6:10]: a(o)
            c.mfma(i, 3, orientY)
            for o in ops[10:16]: a(o)
        U = vS + 14
        a(f"""
        v_add_f32 v{CS}, v{CS}, v{CS+1}
        s_nop 0
        v_mov_b32 v{CS+1}, v{CS}
        s_nop 1
        v_permlane32_swap_b32 v{CS}, v{CS+1}
        s_nop 1
        v_add_f32 v{CS}, v{CS}, v{CS+1}
        """)
        a(f"""
        s_lshl_b32 s{c.sT0}, s{c.sWn}, 8
        s_lshl_b32 s{c.sT1}, s{c.sWm}, 7
        s_add_u32 s{c.sT0}, s{c.sT0}, s{c.sT1}
        s_add_u32 s{c.sT0}, s{c.sT0}, {STAT + 1024}
        v_lshlrev_b32 v{U}, 2, v2
        v_add_u32 v{U+1}, s{c.sT0}, v{U}
        ds_write_b32 v{U+1}, v{CS}
        """)
        a("s_waitcnt lgkmcnt(0)")
    def dbg_issue(self):
        a, c = self.a, self
        make_srd(a, 44, pDBG, pDBG+1, 0, 256)
        a(f"v_lshlrev_b32 v{c.vSt+27}, 2, v1")
        a("s_mov_b64 exec, 0x1ff")
        a(f"buffer_load_dword v{c.vSt+26}, v{c.vSt+27}, s[44:47], 0 offen sc1")
        a("s_mov_b64 exec, -1")
        a("s_nop 1")
    def epilogue_Y(self, kind):
        a, c = self.a, self
        vT, vAcc, vAd = c.vT, c.vAcc, c.vAd
        vM, vR, vC = vT, vT + 2, 32
        for lt in range(2):
            a(f"""
            s_lshl_b32 s{c.sT1}, s{c.sWm}, 8
            s_add_u32 s{c.sT0}, s{c.sT1}, {STAT + (0 if c.qkv else lt*128)}
            s_xor_b32 s{c.sT1}, s{c.sWn}, {lt}
            s_lshl_b32 s{c.sT1}, s{c.sT1}, {7 if c.qkv else 31}
            s_add_u32 s{c.sT0}, s{c.sT0}, {'s%d' % c.sT1 if c.qkv else 0}
            v_lshlrev_b32 v{vT+4}, 2, v2
            v_add_u32 v{vT+4}, s{c.sT0}, v{vT+4}
            ds_read_b32 v{vM + lt}, v{vT+4}
            ds_read_b32 v{vR + lt}, v{vT+4} offset:512
            """)
        for lf in range(2):
            a(f"""
            s_lshl_b32 s{c.sT1}, s{c.sWn}, 8
            s_add_u32 s{c.sT0}, s{c.sT1}, {STAT + 1024}
            s_xor_b32 s{c.sT1}, s{c.sWm}, {lf}
            s_lshl_b32 s{c.sT1}, s{c.sT1}, 7
            s_add_u32 s{c.sT0}, s{c.sT0}, s{c.sT1}
            v_lshlrev_b32 v{vT+4}, 4, v3
            v_add_u32 v{vT+4}, s{c.sT0}, v{vT+4}
            """)
            for q in range(4):
                a(f"ds_read_b128 {vr(vC + lf*16 + q*4, 4)}, v{vT+4} offset:{q*32}")
        a("s_waitcnt lgkmcnt(0)")
        if kind == 'qk':
            a(f"""
            s_cmp_lt_u32 s{c.sNt}, 5
            s_cselect_b32 s{c.sT0}, {f32bits(QSCALE):#x}, 1.0
            v_mul_f32 v{vR}, s{c.sT0}, v{vR}
            v_mul_f32 v{vR+1}, s{c.sT0}, v{vR+1}
            """)
        B = c.vSt + 2
        for lt in range(2):
            a(f"v_mov_b32 v{B + 2*lt}, v{vM + lt}")
            a(f"v_mov_b32 v{B + 2*lt + 1}, v{vM + lt}")
            a(f"v_mov_b32 v{B + 4 + 2*lt}, v{vR + lt}")
            a(f"v_mov_b32 v{B + 4 + 2*lt + 1}, v{vR + lt}")
        vP = vT + 8
        n = 0
        for lf in range(2):
            for lt in range(2):
                acc = vAcc + (lf*2 + lt) * 16
                for r in range(0, 16, 2):
                    a(f"v_pk_fma_f32 {vr(acc + r, 2)}, {vr(B + 2*lt, 2)}, {vr(vC + lf*16 + r, 2)}, {vr(acc + r, 2)} neg_lo:[1,0,0] neg_hi:[1,0,0]")
                for r in range(0, 16, 2):
                    a(f"v_pk_mul_f32 {vr(acc + r, 2)}, {vr(acc + r, 2)}, {vr(B + 4 + 2*lt, 2)}")
                for j in range(2):
                    p = vP + (n & 1) * 4
                    n += 1
                    q0 = acc + j*8
                    for k in range(4):
                        a(f"v_cvt_pk_bf16_f32 v{p+k}, v{q0+2*k}, v{q0+2*k+1}")
                    if kind == 'ffn1':
                        for k in range(4):
                            a(f"v_pk_max_i16 v{p+k}, v{p+k}, 0")
                    else:
                        a("s_nop 0")
                    a("s_nop 0")
                    if kind == 'ffn1': a("s_nop 0")
                    a(f"v_permlane32_swap_b32 v{p}, v{p+2}")
                    a(f"v_permlane32_swap_b32 v{p+1}, v{p+3}")
                    ins = f"buffer_store_dwordx4 {vr(p,4)}, v{vAd + lf*2 + j}, s[{c.sO}:{c.sO+3}], s{40 + lt} offen @SC"
                    if kind == 'ffn1': dual(a, [ins])
                    else: a(ins.replace("@SC", SC))
    def epilogue_X(self):
        a, c = self.a, self
        vT, vAcc, vAd = c.vT, c.vAcc, c.vAd
        vC, vM, vR = vT, 32, 48
        for lf in range(2):
            a(f"""
            s_lshl_b32 s{c.sT1}, s{c.sWn}, 8
            s_add_u32 s{c.sT0}, s{c.sT1}, {STAT + 1024}
            s_xor_b32 s{c.sT1}, s{c.sWm}, {lf}
            s_lshl_b32 s{c.sT1}, s{c.sT1}, 7
            s_add_u32 s{c.sT0}, s{c.sT0}, s{c.sT1}
            v_lshlrev_b32 v{vT+4}, 2, v2
            v_add_u32 v{vT+4}, s{c.sT0}, v{vT+4}
            ds_read_b32 v{vC + lf}, v{vT+4}
            """)
        vP = vT + 8
        n = 0
        for lt in range(2):
            a(f"""
            s_lshl_b32 s{c.sT1}, s{c.sWm}, 8
            s_add_u32 s{c.sT0}, s{c.sT1}, {STAT}
            s_xor_b32 s{c.sT1}, s{c.sWn}, {lt}
            s_lshl_b32 s{c.sT1}, s{c.sT1}, 7
            s_add_u32 s{c.sT0}, s{c.sT0}, s{c.sT1}
            v_lshlrev_b32 v{vT+4}, 4, v3
            v_add_u32 v{vT+4}, s{c.sT0}, v{vT+4}
            """)
            for q in range(4):
                a(f"ds_read_b128 {vr(vM + q*4, 4)}, v{vT+4} offset:{q*32}")
                a(f"ds_read_b128 {vr(vR + q*4, 4)}, v{vT+4} offset:{512 + q*32}")
            a("s_waitcnt lgkmcnt(0)")
            B = c.vSt + 2
            if lt == 0:
                for lf in range(2):
                    a(f"v_mov_b32 v{B + 2*lf}, v{vC + lf}")
                    a(f"v_mov_b32 v{B + 2*lf + 1}, v{vC + lf}")
            for lf in range(2):
                acc = vAcc + (lf*2 + lt) * 16
                for r in range(0, 16, 2):
                    a(f"v_pk_fma_f32 {vr(acc + r, 2)}, {vr(vM + r, 2)}, {vr(B + 2*lf, 2)}, {vr(acc + r, 2)} neg_lo:[1,0,0] neg_hi:[1,0,0]")
                for r in range(0, 16, 2):
                    a(f"v_pk_mul_f32 {vr(acc + r, 2)}, {vr(acc + r, 2)}, {vr(vR + r, 2)}")
                for g in range(2):
                    p = vP + (n & 1) * 4
                    n += 1
                    for r in range(4):
                        a(f"v_cvt_pk_bf16_f32 v{p + r}, v{acc + g*8 + 2*r}, v{acc + g*8 + 2*r + 1}")
                    a(f"buffer_store_dwordx4 {vr(p,4)}, v{vAd + lf}, s[{c.sO}:{c.sO+3}], s{40 + lt*2 + g} offen {SC}")

STG = 36864
class CoreS:
    sA, sO, sR = 8, 16, 40
    sM0, sN0, sT0, sT1, sT2, sNt = 21, 22, 23, 24, 25, 26
    sLw, sAoff, sWoff, sLdsA, sLdsW, sSeq, sSeqW = 20, 29, 30, 31, 32, 33, 34
    vA = 4
    vXa2, vWa2 = 116, 117
    def __init__(self, a, mode):
        self.a, self.mode = a, mode
        self.op = mode == 'oproj'
        self.NST = 5 if self.op else 14
    def map_tiles(self):
        a, c = self.a, self
        NST = c.NST
        a(f"""
        s_and_b32 s{c.sT0}, s{sRk}, 3
        s_lshl_b32 s{c.sM0}, s{sX}, 2
        s_add_u32 s{c.sM0}, s{c.sM0}, s{c.sT0}
        s_lshl_b32 s{c.sM0}, s{c.sM0}, 6
        s_lshr_b32 s{c.sNt}, s{sRk}, 2
        s_mul_i32 s{c.sN0}, s{c.sNt}, 80
        s_mul_i32 s{c.sSeq}, s{c.sT0}, {1 if c.op else 3}
        s_mul_i32 s{c.sT1}, s{c.sNt}, {1 if c.op else 2}
        s_add_u32 s{c.sSeq}, s{c.sSeq}, s{c.sT1}
        s_cmp_ge_u32 s{c.sSeq}, {NST}
        s_cselect_b32 s{c.sT1}, {NST}, 0
        s_sub_u32 s{c.sSeq}, s{c.sSeq}, s{c.sT1}
        s_cmp_ge_u32 s{c.sSeq}, {NST}
        s_cselect_b32 s{c.sT1}, {NST}, 0
        s_sub_u32 s{c.sSeq}, s{c.sSeq}, s{c.sT1}
        """)
        if E('NOROTS'): a(f"s_mov_b32 s{c.sSeq}, 0")
    def loader_setup(self):
        a, c = self.a, self
        if c.op: make_srd(a, c.sA, pWS, pWS+1, WS_O, SZ_ACT)
        else: make_srd(a, c.sA, pWS, pWS+1, WS_F, SZ_F)
        a(f"""
        s_sub_u32 s{c.sLw}, s{sWV}, 4
        v_lshlrev_b32 v{c.vA}, 4, v1
        s_lshl_b32 s{c.sT0}, s{c.sLw}, 17
        s_lshl_b32 s{c.sT1}, s{c.sM0}, 4
        s_add_u32 s{c.sAoff}, s{c.sT0}, s{c.sT1}
        s_mul_i32 s{c.sT0}, s{c.sLw}, 5120
        s_mul_i32 s{c.sT1}, s{c.sNt}, {c.NST * 20480}
        s_add_u32 s{c.sWoff}, s{c.sT0}, s{c.sT1}
        s_add_u32 s{c.sWoff}, s{c.sWoff}, {WS_WOP if c.op else WS_W2P}
        s_lshl_b32 s{c.sLdsA}, s{c.sLw}, 12
        s_add_u32 s{c.sLdsW}, s{c.sT0}, 16384
        s_mul_i32 s{c.sT0}, s{c.sSeq}, {16 * 32768}
        s_add_u32 s{c.sAoff}, s{c.sAoff}, s{c.sT0}
        s_mul_i32 s{c.sT0}, s{c.sSeq}, 20480
        s_add_u32 s{c.sWoff}, s{c.sWoff}, s{c.sT0}
        s_mov_b32 s{c.sSeqW}, s{c.sSeq}
        """)
    def issue_A(self, seq):
        a, c = self.a, self
        slot = (seq % 4) * STG
        for j in range(4):
            a(f"s_add_u32 m0, s{c.sLdsA}, {slot}" if j == 0 else "s_add_u32 m0, m0, 1024")
            a(f"s_mov_b32 s{c.sT0}, s{c.sAoff}" if j == 0 else f"s_add_u32 s{c.sT0}, s{c.sT0}, 32768")
            a(f"buffer_load_dwordx4 v{c.vA}, s[{c.sA}:{c.sA+3}], s{c.sT0} offen lds")
        a(f"""
        s_add_u32 s{c.sSeq}, s{c.sSeq}, 1
        s_cmp_eq_u32 s{c.sSeq}, {c.NST}
        s_cselect_b32 s{c.sT0}, {c.NST * 16 * 32768}, 0
        s_cselect_b32 s{c.sSeq}, 0, s{c.sSeq}
        s_add_u32 s{c.sAoff}, s{c.sAoff}, {16 * 32768}
        s_sub_u32 s{c.sAoff}, s{c.sAoff}, s{c.sT0}
        """)
    def issue_W(self, seq):
        a, c = self.a, self
        slot = (seq % 4) * STG
        a(f"s_add_u32 m0, s{c.sLdsW}, {slot}")
        a(f"s_add_u32 s{c.sT0}, s{c.sWoff}, 4096")
        for j in range(4):
            a(f"buffer_load_dwordx4 v{c.vA}, s[{sWS}:{sWS+3}], s{c.sWoff} offen offset:{j*1024} lds")
        a("s_add_u32 m0, m0, 4096")
        a(f"s_add_u32 s{c.sSeqW}, s{c.sSeqW}, 1")
        a(f"buffer_load_dwordx4 v{c.vA}, s[{sWS}:{sWS+3}], s{c.sT0} offen lds")
        a(f"""
        s_cmp_eq_u32 s{c.sSeqW}, {c.NST}
        s_cselect_b32 s{c.sT0}, {c.NST * 20480}, 0
        s_cselect_b32 s{c.sSeqW}, 0, s{c.sSeqW}
        s_add_u32 s{c.sWoff}, s{c.sWoff}, 20480
        s_sub_u32 s{c.sWoff}, s{c.sWoff}, s{c.sT0}
        """)
    def loader_main(self, q):
        a, c = self.a, self
        for s_ in range(c.NST):
            a(f"s_waitcnt vmcnt({q.need(f'A{s_}', f'W{s_}')})")
            a("s_barrier")
            stx(a, f"{'o' if c.op else 'g'}l{s_}")
            if s_ + PD < c.NST and not (E('S_NODMA') and not c.op):
                if not E('S_NOA'): c.issue_A(s_ + PD); q.push(f"A{s_+PD}", 4)
                if not E('S_NOW'): c.issue_W(s_ + PD); q.push(f"W{s_+PD}", 5)
    vXb, vWb, vXa, vWa, vX, vW, vRes, vT, vAcc = 4, 5, 6, 7, 8, 32, 70, 84, 96
    vXa2, vWa2 = 120, 121
    def compute_setup(self):
        a, c = self.a, self
        vT = c.vT
        a(f"""
        v_and_b32 v2, 15, v1
        v_lshrrev_b32 v3, 4, v1
        s_lshr_b32 s{c.sT1}, s{sWV}, 1
        s_and_b32 s{c.sT2}, s{sWV}, 1
        s_lshl_b32 s{c.sT0}, s{c.sT1}, 5
        s_add_u32 s{c.sT0}, s{c.sT0}, s{c.sM0}
        v_add_u32 v{vT}, s{c.sT0}, v2
        """)
        a(f"""
        s_mul_i32 s{c.sAoff}, s{c.sT2}, 48
        s_add_u32 s{c.sAoff}, s{c.sAoff}, s{c.sN0}
        v_mul_u32_u24 v{vT+1}, 1280, v{vT}
        v_lshlrev_b32 v{vT+3}, 3, v3
        v_add_u32 v{vT+1}, v{vT+1}, v{vT+3}
        s_lshl_b32 s{c.sT0}, s{c.sAoff}, 1
        v_add_u32 v{vT+1}, s{c.sT0}, v{vT+1}
        v_lshrrev_b32 v{vT+3}, 1, v3
        v_lshlrev_b32 v{vT+3}, 15, v{vT+3}
        v_lshlrev_b32 v{vT+2}, 4, v{vT}
        v_add_u32 v{vT+2}, v{vT+2}, v{vT+3}
        v_and_b32 v{vT+3}, 1, v3
        v_lshlrev_b32 v{vT+3}, 3, v{vT+3}
        v_add_u32 v{vT+2}, v{vT+2}, v{vT+3}
        s_lshl_b32 s{c.sT0}, s{c.sAoff}, 12
        v_add_u32 v{vT+2}, s{c.sT0}, v{vT+2}
        s_lshl_b32 s{c.sT0}, s{c.sT1}, 9
        v_lshlrev_b32 v{c.vXb}, 10, v3
        v_lshlrev_b32 v{vT+3}, 4, v2
        v_add_u32 v{c.vXb}, v{c.vXb}, v{vT+3}
        v_add_u32 v{c.vXb}, s{c.sT0}, v{c.vXb}
        v_lshrrev_b32 v{vT+3}, 1, v3
        v_lshlrev_b32 v{vT+3}, 4, v{vT+3}
        v_and_b32 v{vT+4}, 1, v3
        v_lshlrev_b32 v{vT+4}, 2, v{vT+4}
        v_add_u32 v{vT+3}, v{vT+3}, v{vT+4}
        v_lshrrev_b32 v{vT+4}, 2, v2
        v_add_u32 v{vT+3}, v{vT+3}, v{vT+4}
        v_mul_u32_u24 v{vT+3}, 160, v{vT+3}
        v_and_b32 v{vT+4}, 3, v1
        v_lshlrev_b32 v{vT+4}, 3, v{vT+4}
        v_add_u32 v{vT+3}, v{vT+3}, v{vT+4}
        s_mul_i32 s{c.sT0}, s{c.sT2}, 96
        s_add_u32 s{c.sT0}, s{c.sT0}, 16384
        v_add_u32 v{c.vWb}, s{c.sT0}, v{vT+3}
        s_mov_b32 s{c.sWoff}, s{c.sT2}
        """)
        if c.op:
            make_srd(a, c.sR, pX, pX+1, 0, 2048 * 1280)
            make_srd(a, c.sO, pWS, pWS+1, WS_H, SZ_ACT)
        else:
            make_srd(a, c.sR, pWS, pWS+1, WS_H, SZ_ACT)
            make_srd(a, c.sO, pOUT, pOUT+1, 0, 2048 * 1280)
        a(f"""
        s_cmp_eq_u32 s{c.sT2}, 1
        s_cselect_b32 s44, 0x7f000000, 0
        s_cselect_b64 s[46:47], -1, 0
        """)
    def pretouch(self): pass
    def tile_off(self, T, tt, rowmajor):
        a, c = self.a, self
        if rowmajor:
            base = T * 32 + tt * 16 * 1280
            val = base
        else:
            val = T * 65536 + tt * 256
        if T == 2:
            a(f"s_add_u32 s{c.sT0}, s44, {val}")
        else:
            a(f"s_mov_b32 s{c.sT0}, {val}")
        return (c.vT + 1 if rowmajor else c.vT + 2), c.sT0
    def residual_loads(self):
        a, c = self.a, self
        for T in range(3):
            for tt in range(2):
                va, so = c.tile_off(T, tt, c.op)
                a(f"buffer_load_dwordx2 {vr(c.vRes + 2*(T*2 + tt), 2)}, v{va}, s[{c.sR}:{c.sR+3}], s{so} offen")
    def mainloop(self, stamp0=None, tag=''):
        a, c = self.a, self
        N = c.NST * 4
        def rlist(i):
            st_, k, buf = i // 4, i % 4, i % 3
            xa, wa = (c.vXa, c.vWa) if st_ % 2 == 0 else (c.vXa2, c.vWa2)
            L = [f"ds_read_b128 {vr(c.vX + buf*8 + tt*4, 4)}, v{xa} offset:{k*4096 + tt*256}" for tt in range(2)]
            for T in range(3):
                for h2 in range(2):
                    L.append(f"ds_read_b64_tr_b16 {vr(c.vW + buf*12 + T*4 + h2*2, 2)}, v{wa} offset:{k*5120 + h2*1280 + T*32}")
            return L
        def setaddr(st_):
            slot = (st_ % 4) * STG
            xa, wa = (c.vXa, c.vWa) if st_ % 2 == 0 else (c.vXa2, c.vWa2)
            a(f"v_add_u32 v{xa}, {slot}, v{c.vXb}")
            a(f"v_add_u32 v{wa}, {slot}, v{c.vWb}")
        a("s_barrier")
        stx(a, tag + '_s0')
        setaddr(0)
        for r in rlist(0) + rlist(1): a(r)
        for i in range(N):
            buf = i % 3
            rl = rlist(i + 2) if i + 2 < N else []
            a(f"s_waitcnt lgkmcnt({8 if i + 1 < N else 0})")
            k = 0
            for T in range(3):
                for tt in range(2):
                    acc = c.vAcc + (T*2 + tt) * 4
                    cc = "0" if i == 0 else vr(acc, 4)
                    a(f"v_mfma_f32_16x16x32_bf16 {vr(acc,4)}, {vr(c.vW + buf*12 + T*4, 4)}, {vr(c.vX + buf*8 + tt*4, 4)}, {cc}")
                    if k == 0 and i + 2 < N and (i + 2) % 4 == 0:
                        a("s_barrier")
                        if (i + 2) // 4 == 1: stx(a, tag + '_s1')
                        if (i + 2) // 4 == 4: stx(a, tag + '_s4')
                        setaddr((i + 2) // 4)
                    for r in rl[[0, 2, 4, 5, 6, 7][k]:[2, 4, 5, 6, 7, 8][k]]: a(r)
                    k += 1
        a("s_nop 7")
    def reduce(self):
        pass
    def epilogue(self):
        a, c = self.a, self
        vT, vRes = c.vT, c.vRes
        a("s_waitcnt vmcnt(0)")
        P = 8
        for T in range(3):
            for tt in range(2):
                n = T*2 + tt
                acc = c.vAcc + n*4
                rr = vRes + 2*n
                a(f"""
                v_lshlrev_b32 v24, 16, v{rr}
                v_and_b32 v25, 0xffff0000, v{rr}
                v_lshlrev_b32 v26, 16, v{rr+1}
                v_and_b32 v27, 0xffff0000, v{rr+1}
                v_add_f32 v{acc}, v{acc}, v24
                v_add_f32 v{acc+1}, v{acc+1}, v25
                v_add_f32 v{acc+2}, v{acc+2}, v26
                v_add_f32 v{acc+3}, v{acc+3}, v27
                v_cvt_pk_bf16_f32 v{P+2*n}, v{acc}, v{acc+1}
                v_cvt_pk_bf16_f32 v{P+2*n+1}, v{acc+2}, v{acc+3}
                """)
                va, so = c.tile_off(T, tt, not c.op)
                ins = f"buffer_store_dwordx2 {vr(P+2*n, 2)}, v{va}, s[{c.sO}:{c.sO+3}], s{so} offen @SC"
                if c.op: dual(a, [ins])
                else: a(ins.replace("@SC", E('OUTFL', '')))
        if c.op:
            for tt in range(2):
                S, Q = 28 + 2*tt, 29 + 2*tt
                first = True
                for T in range(3):
                    n = T*2 + tt
                    for d in range(2):
                        r = P + 2*n + d
                        a(f"v_lshlrev_b32 v24, 16, v{r}")
                        a(f"v_and_b32 v25, 0xffff0000, v{r}")
                        if T == 2:
                            a(f"v_cndmask_b32 v24, v24, 0, s[46:47]")
                            a(f"v_cndmask_b32 v25, v25, 0, s[46:47]")
                        if first:
                            a(f"v_add_f32 v{S}, v24, v25")
                            a(f"v_mul_f32 v{Q}, v24, v24")
                            first = False
                        else:
                            a(f"v_add_f32 v{S}, v{S}, v24")
                            a(f"v_add_f32 v{S}, v{S}, v25")
                            a(f"v_fmac_f32 v{Q}, v24, v24")
                        a(f"v_fmac_f32 v{Q}, v25, v25")
            a(f"""
            v_mov_b32 v32, v28
            v_mov_b32 v33, v29
            v_mov_b32 v34, v30
            v_mov_b32 v35, v31
            s_nop 1
            v_permlane32_swap_b32 v28, v32
            v_permlane32_swap_b32 v29, v33
            v_permlane32_swap_b32 v30, v34
            v_permlane32_swap_b32 v31, v35
            s_nop 1
            v_add_f32 v28, v28, v32
            v_add_f32 v29, v29, v33
            v_add_f32 v30, v30, v34
            v_add_f32 v31, v31, v35
            s_nop 0
            v_mov_b32 v32, v28
            v_mov_b32 v33, v29
            v_mov_b32 v34, v30
            v_mov_b32 v35, v31
            s_nop 1
            v_permlane16_swap_b32 v28, v32
            v_permlane16_swap_b32 v29, v33
            v_permlane16_swap_b32 v30, v34
            v_permlane16_swap_b32 v31, v35
            s_nop 1
            v_add_f32 v28, v28, v32
            v_add_f32 v29, v29, v33
            v_add_f32 v30, v30, v34
            v_add_f32 v31, v31, v35
            s_lshl_b32 s{c.sT0}, s{c.sNt}, 1
            s_add_u32 s{c.sT0}, s{c.sT0}, s{c.sWoff}
            s_lshl_b32 s{c.sT0}, s{c.sT0}, 14
            s_add_u32 s{c.sT0}, s{c.sT0}, {WS_ST2}
            v_lshlrev_b32 v32, 3, v{vT}
            s_mov_b64 exec, 0xffff
            """)
            dual(a, [f"buffer_store_dwordx2 v[28:29], v32, s[{sWS}:{sWS+3}], s{c.sT0} offen @SC",
                     f"buffer_store_dwordx2 v[30:31], v32, s[{sWS}:{sWS+3}], s{c.sT0} offen offset:128 @SC"])
            a("s_mov_b64 exec, -1")

KT = 1536
SLOT = 8 * KT + 16384
VOFF = 8 * KT
NSLOT = 5
FLAG = NSLOT * SLOT

def emit_attention(a, after_stores):
    name = "att"
    sK, sV, sQ, sO = 8, 12, 16, 20
    sHead, sQt, sT0, sT1, sT2 = 25, 26, 27, 28, 29
    sChunk, sSlotN, sPass, sKoff, sVoff, sKh = 30, 31, 32, 33, 34, 35
    sVmask = 38
    sSlotW, sE, sQg, sQb = 40, 41, 42, 43
    sW1s = 44
    vL16, vVoff = 2, 3
    vA3 = [[4, 5, 6], [7, 8, 9], [172, 173, 174]]
    vQ, vQr, vNC, vS, vP, vKb, vKr, vV, vO, vT = 10, 18, 22, 54, 86, 94, 102, 110, 126, 158
    lane_id(a, 0)
    lane_id(a, 1)
    a("s_barrier")
    a(f"""
    v_mov_b32 v4, {ROLE}
    ds_read_b96 v[6:8], v4
    s_waitcnt lgkmcnt(0)
    v_readfirstlane_b32 s{sX}, v6
    v_readfirstlane_b32 s{sRk}, v7
    v_readfirstlane_b32 s{sLoc}, v8
    s_and_b32 s{sT0}, s2, 7
    s_lshr_b32 s{sT1}, s2, 3
    s_cmp_eq_u32 s{sLoc}, 0
    s_cselect_b32 s{sX}, s{sT0}, s{sX}
    s_cselect_b32 s{sRk}, s{sT1}, s{sRk}
    s_mov_b32 s{sHead}, s{sRk}
    s_mov_b32 s{sQb}, s{sX}
    s_lshl_b32 s{sQt}, s{sQb}, 3
    s_mov_b32 s{sVmask}, 0x000fffff
    s_mov_b32 s{sVmask+1}, 0x000fffff
    s_mov_b32 s{sPass}, 0
    s_and_b32 s{sE}, s{sHead}, 1
    s_lshr_b32 s{sKh}, s{sWV}, 2
    s_and_b32 s{sQg}, s{sWV}, 3
    """)
    a(f"""
    v_lshlrev_b32 v{vL16}, 4, v0
    v_and_b32 v{vT}, 31, v0
    v_lshrrev_b32 v{vT+1}, 5, v0
    v_mul_u32_u24 v{vVoff}, 320, v{vT+1}
    v_lshlrev_b32 v{vT+2}, 4, v{vT}
    v_add_u32 v{vVoff}, v{vVoff}, v{vT+2}
    """)
    make_srd(a, sK, pWS, pWS+1, WS_K, SZ_QK)
    make_srd(a, sV, pWS, pWS+1, WS_V, SZ_QKV)
    make_srd(a, sQ, pWS, pWS+1, WS_Q, SZ_QK)
    make_srd(a, sO, pWS, pWS+1, WS_O, SZ_ACT)
    make_srd(a, sW1s, pW1, pW1+1, 0, 640*3456)
    a(f"""
    v_mov_b32 v{vT+4}, 0
    v_mov_b32 v{vT+3}, 0x3f803f80
    v_cmp_eq_u32 vcc, 20, v{vT}
    s_lshl_b32 s{sT0}, s{sWV}, 11
    s_add_u32 s{sT0}, s{sT0}, {VOFF}
    v_cndmask_b32 v{vT+4}, v{vT+4}, v{vT+3}, vcc
    v_add_u32 v{vT+3}, s{sT0}, v{vL16}
    v_mov_b32 v{vT+5}, v{vT+4}
    v_mov_b32 v{vT+6}, v{vT+4}
    v_mov_b32 v{vT+7}, v{vT+4}
    s_not_b64 exec, s[{sVmask}:{sVmask+1}]
    """)
    base = 0
    for sl in range(NSLOT):
        for j in range(2):
            off = sl * SLOT + j * 1024
            if off - base >= 65536 - 1024:
                a(f"v_add_u32 v{vT+3}, {sl*SLOT - base}, v{vT+3}")
                base = sl * SLOT
            a(f"ds_write_b128 v{vT+3}, {vr(vT+4,4)} offset:{off - base}")
    a(f"""
    s_mov_b64 exec, -1
    v_mov_b32 v{vT+3}, {FLAG}
    v_mov_b32 v{vT+4}, 0
    ds_write_b32 v{vT+3}, v{vT+4}
    """)
    def reinit():
        a(f"""
        s_lshl_b32 s{sT0}, s{sE}, 9
        s_mul_i32 s{sT1}, s{sKh}, {4*KT}
        s_add_u32 s{sT0}, s{sT0}, s{sT1}
        v_add_u32 v{vA3[0][0]}, s{sT0}, v{vL16}
        s_sub_u32 s{sT0}, 1, s{sE}
        s_lshl_b32 s{sT0}, s{sT0}, 10
        s_lshl_b32 s{sT2}, s{sE}, 3
        s_add_u32 s{sT0}, s{sT0}, s{sT2}
        s_add_u32 s{sT0}, s{sT0}, s{sT1}
        v_and_b32 v{vT}, 31, v0
        v_lshlrev_b32 v{vA3[0][1]}, 4, v{vT}
        v_add_u32 v{vA3[0][1]}, s{sT0}, v{vA3[0][1]}
        s_lshl_b32 s{sT0}, s{sKh}, 13
        s_add_u32 s{sT0}, s{sT0}, {VOFF}
        v_add_u32 v{vA3[0][2]}, s{sT0}, v{vL16}
        s_mov_b32 s{sSlotN}, {2*SLOT}
        s_lshr_b32 s{sT0}, s{sHead}, 1
        s_mul_i32 s{sT0}, s{sT0}, 163840
        s_mul_i32 s{sT1}, s{sWV}, 2560
        s_add_u32 s{sKoff}, s{sT0}, s{sT1}
        s_lshl_b32 s{sT1}, s{sE}, 10
        s_add_u32 s{sKoff}, s{sKoff}, s{sT1}
        s_mul_i32 s{sT0}, s{sHead}, 81920
        s_mul_i32 s{sT1}, s{sWV}, 1280
        s_add_u32 s{sVoff}, s{sT0}, s{sT1}
        s_mov_b32 s{sSlotW}, 0
        """)
        for k in range(3):
            a(f"v_add_u32 v{vA3[1][k]}, {SLOT}, v{vA3[0][k]}")
            a(f"v_add_u32 v{vA3[2][k]}, {2*SLOT}, v{vA3[0][k]}")
        for i in range(32): a(f"v_mov_b32 v{vO+i}, 0")
        for i in range(4):
            a(f"v_mov_b32 v{vP+4+i}, 0")
            a(f"v_mov_b32 v{vV+12+i}, 0")
    reinit()
    a(f"v_and_b32 v{vT+11}, 7, v0")
    a(f"v_lshlrev_b32 v{vT+11}, 7, v{vT+11}")
    a(f"v_add_u32 v{vT+11}, {WS_CNT + C_RPS*128}, v{vT+11}")
    a(f"v_mov_b32 v{vT+10}, 0")
    a(f"""
    s_lshl_b32 s{sT0}, s{sQg}, 1
    s_add_u32 s{sQt}, s{sQt}, s{sT0}
    v_lshlrev_b32 v{vT+13}, 4, v{vT}
    s_lshl_b32 s{sT1}, s{sE}, 3
    s_add_u32 s{sT1}, s{sT1}, 1024
    v_add_u32 v{vT+13}, s{sT1}, v{vT+13}
    v_mov_b32 v{vT+9}, 0x7fffff00
    """)
    a(f"""
    v_cmp_gt_u32 vcc, 32, v0
    s_mul_i32 s{sT1}, s{sE}, 1536
    v_cndmask_b32 v{vT+13}, v{vT+9}, v{vT+13}, vcc
    v_add_u32 v{vT+12}, s{sT1}, v{vL16}
    """)
    lw = a.newlabel("attw")
    a(f"""
    s_cmp_eq_u32 s{sWV}, 0
    s_cbranch_scc0 {lw}
    s_mul_i32 s{sT0}, s{sHead}, 20
    s_lshr_b32 s{sT1}, s{sT0}, 7
    s_add_u32 s{sT0}, s{sT0}, 19
    s_lshr_b32 s{sT0}, s{sT0}, 7
    v_and_b32 v{vT+3}, 1, v0
    v_mov_b32 v{vT+4}, s{sT1}
    v_mov_b32 v{vT+5}, s{sT0}
    v_cmp_eq_u32 vcc, 1, v{vT+3}
    v_lshrrev_b32 v{vT+6}, 1, v0
    v_mul_u32_u24 v{vT+6}, 5, v{vT+6}
    v_cndmask_b32 v{vT+4}, v{vT+4}, v{vT+5}, vcc
    v_add_u32 v{vT+4}, v{vT+4}, v{vT+6}
    v_add_u32 v{vT+4}, {C_QKV}, v{vT+4}
    v_lshlrev_b32 v{vT+4}, 7, v{vT+4}
    v_add_u32 v{vT+4}, {WS_CNT}, v{vT+4}
    v_mov_b32 v{vT+5}, 16
    """)
    stx(a, 'a_p0')
    poll(a, vT + 4, vT + 5, 6, vT + 6, slp=int(E('QSLP', '1')))
    a.label(lw)
    stx(a, 'a_pre')
    a("s_waitcnt lgkmcnt(0)")
    a("s_barrier")
    st(a, 5)
    def rpa():
        a("s_and_b32 s76, s2, 7")
        a(f"s_add_u32 s76, s76, {C_RPS}")
        arrive(a, 76, vT + 4)
    def dma_chunk():
        a(f"""
        s_mul_i32 s{sT0}, s{sWV}, {KT}
        s_add_u32 m0, s{sSlotW}, s{sT0}
        s_lshl_b32 s{sT1}, s{sWV}, 11
        buffer_load_dwordx4 v{vL16}, s[{sK}:{sK+3}], s{sKoff} offen lds
        s_mov_b32 exec_hi, 0
        buffer_load_dwordx4 v{vL16}, s[{sK}:{sK+3}], s{sKoff} offen offset:1024 lds
        s_add_u32 s{sT1}, s{sT1}, s{sSlotW}
        s_add_u32 m0, s{sT1}, {VOFF}
        s_mov_b64 exec, s[{sVmask}:{sVmask+1}]
        buffer_load_dwordx4 v{vVoff}, s[{sV}:{sV+3}], s{sVoff} offen lds
        s_add_u32 m0, m0, 1024
        s_add_u32 s{sT1}, s{sVoff}, 640
        buffer_load_dwordx4 v{vVoff}, s[{sV}:{sV+3}], s{sT1} offen lds
        s_mov_b64 exec, -1
        s_add_u32 s{sKoff}, s{sKoff}, {8*2560}
        s_add_u32 s{sVoff}, s{sVoff}, 10240
        s_add_u32 s{sSlotW}, s{sSlotW}, {SLOT}
        s_cmp_ge_u32 s{sSlotW}, {NSLOT*SLOT}
        s_cselect_b32 s{sSlotW}, 0, s{sSlotW}
        """)
    dma_chunk()
    a(f"s_lshr_b32 s{sT0}, s{sHead}, 1")
    a(f"s_mul_i32 s{sT0}, s{sT0}, 163840")
    for s in range(2):
        a(f"""
        s_xor_b32 s{sT1}, s{sKh}, {s}
        s_add_u32 s{sT1}, s{sT1}, s{sQt}
        s_mul_i32 s{sT1}, s{sT1}, 2560
        s_add_u32 s{sT1}, s{sT1}, s{sT0}
        buffer_load_dwordx4 {vr(vQ+4*s,4)}, v{vT+12}, s[{sQ}:{sQ+3}], s{sT1} offen
        buffer_load_dwordx2 {vr(vQr+2*s,2)}, v{vT+13}, s[{sQ}:{sQ+3}], s{sT1} offen
        """)
    dma_chunk()
    a(f"s_branch L_{name}_start")
    a.label(f"L_{name}_restart")
    reinit()
    dma_chunk(); dma_chunk()
    a.label(f"L_{name}_start")
    vKc, vKrc, vVc = vA3[0]
    a(f"""
    s_waitcnt vmcnt(4)
    """)
    stx(a, 'a_c0')
    a(f"""
    s_barrier
    s_cmp_eq_u32 s{sPass}, 0
    s_cbranch_scc0 L_{name}_haveC
    s_mul_i32 s{sT1}, s{sKh}, {4*KT}
    v_subrev_u32 v{vT+1}, s{sT1}, v{vKc}
    v_subrev_u32 v{vT+2}, s{sT1}, v{vKrc}
    ds_read_b128 {vr(vKb,4)}, v{vT+1}
    ds_read_b64 {vr(vKr,2)}, v{vT+2}
    s_waitcnt lgkmcnt(0)
    """)
    for s in range(2):
        S = vS + 16*s
        a(f"v_mfma_f32_32x32x16_bf16 {vr(S,16)}, {vr(vKb,4)}, {vr(vQ+4*s,4)}, 0")
    for s in range(2):
        S = vS + 16*s
        a(f"v_mfma_f32_32x32x8_bf16 {vr(S,16)}, {vr(vKr,2)}, {vr(vQr+2*s,2)}, {vr(S,16)}")
    a(f"""
    ds_read_b128 {vr(vKb,4)}, v{vKc}
    ds_read2st64_b64 {vr(vKr,4)}, v{vKrc} offset0:0 offset1:3
    ds_read_b128 {vr(vV,4)}, v{vVc}
    ds_read_b128 {vr(vV+4,4)}, v{vVc} offset:1024
    s_nop 11
    """)
    for s in range(2):
        S = vS + 16*s
        T_ = vT + 2*s
        a(f"v_max3_f32 v{T_}, v{S}, v{S+1}, v{S+2}")
        for i in range(3, 15, 2):
            a(f"v_max3_f32 v{T_}, v{T_}, v{S+i}, v{S+i+1}")
        a(f"v_max_f32 v{T_}, v{T_}, v{S+15}")
    a(f"""
    v_mov_b32 v{vT+1}, v{vT}
    v_mov_b32 v{vT+3}, v{vT+2}
    s_nop 1
    v_permlane32_swap_b32 v{vT}, v{vT+1}
    v_permlane32_swap_b32 v{vT+2}, v{vT+3}
    s_nop 1
    v_max_f32 v{vT}, v{vT}, v{vT+1}
    v_max_f32 v{vT+2}, v{vT+2}, v{vT+3}
    v_sub_f32 v{vNC}, 0, v{vT}
    v_sub_f32 v{vNC+16}, 0, v{vT+2}
    """)
    for i in range(1, 16):
        a(f"v_mov_b32 v{vNC+i}, v{vNC}")
        a(f"v_mov_b32 v{vNC+16+i}, v{vNC+16}")
    a(f"s_branch L_{name}_haveC2")
    a.label(f"L_{name}_haveC")
    a(f"""
    ds_read_b128 {vr(vKb,4)}, v{vKc}
    ds_read2st64_b64 {vr(vKr,4)}, v{vKrc} offset0:0 offset1:3
    ds_read_b128 {vr(vV,4)}, v{vVc}
    ds_read_b128 {vr(vV+4,4)}, v{vVc} offset:1024
    """)
    a.label(f"L_{name}_haveC2")
    a(f"""
    s_waitcnt lgkmcnt(0)
    v_mfma_f32_32x32x16_bf16 {vr(vS,16)}, {vr(vKb,4)}, {vr(vQ,4)}, {vr(vNC,16)}
    v_mfma_f32_32x32x8_bf16 {vr(vS,16)}, {vr(vKr,2)}, {vr(vQr,2)}, {vr(vS,16)}
    s_mov_b32 s{sChunk}, 0
    s_nop 7
    """)
    st(a, 6)
    a(f"""
    s_cmp_eq_u32 s{sKh}, 0
    s_cselect_b32 s36, 7, 0
    s_cselect_b32 s37, 0, 7
    """)
    ool = []
    def rare(mask, fn, tag):
        l, b = a.newlabel(tag), a.newlabel(tag + "b")
        a(f"s_bitcmp1_b32 {mask:#x}, s{sChunk}")
        a(f"s_cbranch_scc1 {l}")
        a.label(b)
        ool.append((l, b, fn))
    def common_(mask, fn, tag):
        l = a.newlabel(tag)
        a(f"s_bitcmp1_b32 {mask if isinstance(mask, str) else hex(mask)}, s{sChunk}")
        a(f"s_cbranch_scc0 {l}")
        fn()
        a.label(l)
    def pf_A(half, which='w1'):
        if which == 'w1':
            a(f"""
            v_lshlrev_b32 v{vT+12}, 7, v0
            s_mul_i32 s{sT0}, s{sRk}, 69120
            s_lshl_b32 s{sT1}, s{sWV}, 13
            s_add_u32 s{sT0}, s{sT0}, s{sT1}
            s_mov_b32 exec_lo, {-1 if half == 0 else 0}
            s_mov_b32 exec_hi, {0 if half == 0 else -1}
            buffer_load_dword v{vT+13}, v{vT+12}, s[{sW1s}:{sW1s+3}], s{sT0} offen sc1
            s_mov_b64 exec, -1
            """)
        else:
            a(f"""
            v_lshlrev_b32 v{vT+12}, 7, v0
            s_mul_i32 s{sT0}, s{sRk}, {SZ_W2P // 32}
            s_lshl_b32 s{sT1}, s{sWV}, 13
            s_add_u32 s{sT0}, s{sT0}, s{sT1}
            s_add_u32 s{sT0}, s{sT0}, {WS_W2P}
            s_mov_b32 exec_lo, {-1 if half == 0 else 0}
            s_mov_b32 exec_hi, {0 if half == 0 else -1}
            buffer_load_dword v{vT+13}, v{vT+12}, s[{sWS}:{sWS+3}], s{sT0} offen sc1
            s_mov_b64 exec, -1
            """)
    def pf_B():
        l5, l4, le = a.newlabel("pf5"), a.newlabel("pf4"), a.newlabel("pfe")
        a(f"""
        v_lshlrev_b32 v{vT+12}, 7, v0
        s_cmp_ge_u32 s{sWV}, 5
        s_cbranch_scc1 {l5}
        s_cmp_eq_u32 s{sWV}, 4
        s_cbranch_scc1 {l4}
        s_mul_i32 s{sT0}, s{sRk}, {SZ_WOP // 32}
        s_lshl_b32 s{sT1}, s{sWV}, 13
        s_add_u32 s{sT0}, s{sT0}, s{sT1}
        s_add_u32 s{sT0}, s{sT0}, {WS_WOP}
        buffer_load_dword v{vT+13}, v{vT+12}, s[{sWS}:{sWS+3}], s{sT0} offen sc1
        s_branch {le}
        """)
        a.label(l4)
        a(f"""
        s_mul_i32 s{sT0}, s{sRk}, 69120
        s_add_u32 s{sT0}, s{sT0}, 65536
        s_mov_b32 exec_hi, 0
        buffer_load_dword v{vT+13}, v{vT+12}, s[{sW1s}:{sW1s+3}], s{sT0} offen sc1
        s_mov_b32 exec_hi, -1
        s_branch {le}
        """)
        a.label(l5)
        a(f"""
        s_sub_u32 s{sT1}, s{sWV}, 5
        s_lshl_b32 s{sT1}, s{sT1}, 5
        s_mul_i32 s{sT0}, s{sRk}, 80
        s_add_u32 s{sT0}, s{sT0}, s{sT1}
        v_and_b32 v{vT+8}, 31, v0
        v_add_u32 v{vT+8}, s{sT0}, v{vT+8}
        v_lshrrev_b32 v{vT+9}, 5, v{vT+8}
        v_lshlrev_b32 v{vT+9}, 15, v{vT+9}
        v_and_b32 v{vT+8}, 31, v{vT+8}
        v_lshlrev_b32 v{vT+8}, 7, v{vT+8}
        v_add_u32 v{vT+8}, v{vT+8}, v{vT+9}
        s_lshl_b32 s{sT0}, s{sX}, 12
        s_mov_b32 exec_hi, 0
        buffer_load_dword v{vT+13}, v{vT+8}, s[{sO}:{sO+3}], s{sT0} offen sc1
        s_mov_b32 exec_hi, -1
        """)
        a.label(le)
    def rp_issue():
        a("s_mov_b64 exec, 0xff")
        a(f"buffer_load_dword v{vT+10}, v{vT+11}, s[{sWS}:{sWS+3}], 0 offen sc1")
        a("s_mov_b64 exec, -1")
    def rp_check():
        ok = a.newlabel("rpok")
        a("s_mov_b64 exec, 0xff")
        a(f"v_cmp_gt_u32 vcc, 32, v{vT+10}")
        a("s_nop 4")
        a("s_cmp_eq_u64 vcc, 0")
        a(f"s_cbranch_scc1 {ok}")
        a(f"v_mov_b32 v{vT+9}, 32")
        poll(a, vT + 11, vT + 9, 8, vT + 10)
        a.label(ok)
        a("s_mov_b64 exec, -1")
    def rp_load():
        le = a.newlabel("rle")
        a(f"s_cmp_eq_u32 s{sPass}, 0")
        a(f"s_cbranch_scc0 {le}")
        a(f"s_cmp_ge_u32 s{sWV}, 4")
        a(f"s_cbranch_scc0 {le}")
        for r in range(3):
            la, lb = a.newlabel("rla"), a.newlabel("rlb")
            a(f"v_accvgpr_read_b32 v{vT+4}, a{43+2*r}")
            a(f"v_accvgpr_read_b32 v{vT+5}, a{44+2*r}")
            a(f"v_accvgpr_read_b32 v{vT+6}, a{49+r}")
            make_srd(a, 16, pWO, pWO+1, 0, 640*1280)
            a(f"""
            v_cmp_gt_u32 vcc, 40, v{vT+6}
            s_nop 4
            s_mov_b64 s[76:77], vcc
            s_mov_b64 exec, vcc
            s_cbranch_execz {la}
            buffer_load_dwordx4 {ar(28+4*r,4)}, v{vT+4}, s[16:19], 0 offen
            {la}:
            """)
            make_srd(a, 16, pW2, pW2+1, 0, 1728*1280)
            a(f"""
            s_not_b64 exec, s[76:77]
            s_cbranch_execz {lb}
            buffer_load_dwordx4 {ar(28+4*r,4)}, v{vT+5}, s[16:19], 0 offen
            {lb}:
            s_mov_b64 exec, -1
            """)
        a(f"""
        s_mul_i32 s76, s2, 8640
        s_sub_u32 s77, s{sWV}, 4
        s_mul_i32 s77, s77, 2176
        s_add_u32 s76, s76, s77
        v_lshlrev_b32 v{vT+4}, 7, v0
        s_mov_b64 exec, 0x1ffff
        buffer_load_dword v{vT+5}, v{vT+4}, s[{sW1s}:{sW1s+3}], s76 offen sc1
        s_mov_b64 exec, -1
        """)
        a.label(le)
    def rp_store():
        le = a.newlabel("rse")
        a(f"s_cmp_eq_u32 s{sPass}, 0")
        a(f"s_cbranch_scc0 {le}")
        a(f"s_cmp_ge_u32 s{sWV}, 4")
        a(f"s_cbranch_scc0 {le}")
        for r in range(3): a(f"v_accvgpr_read_b32 v{vT+4+r}, a{40+r}")
        a(f"s_mov_b32 s76, {WS_WOP}")
        for r in range(3):
            a(f"buffer_store_dwordx4 {ar(28+4*r,4)}, v{vT+4+r}, s[{sWS}:{sWS+3}], s76 offen {SC}")
        a.label(le)
    def rp_post():
        l2, le = a.newlabel("rp2"), a.newlabel("rpe")
        a(f"s_cmp_eq_u32 s{sChunk}, 2")
        a(f"s_cbranch_scc0 {l2}")
        a(f"s_cmp_eq_u32 s{sPass}, 0")
        a(f"s_cbranch_scc0 {le}")
        wave_only(a, 4, rpa)
        a(f"s_branch {le}")
        a.label(l2)
        rp_check()
        a.label(le)
    if E('A_PRIO'):
        l = a.newlabel("prio")
        a(f"s_cmp_ge_u32 s{sWV}, 4")
        a(f"s_cbranch_scc0 {l}")
        a(f"s_setprio {E('A_PRIO')}")
        a.label(l)
    a(".p2align 6")
    a.label(f"L_{name}_loop")
    rd = (lambda x: None) if E('A_NORD') else a
    for u in range(16):
        p = u & 1
        t = u >> 1
        D1 = int(E('A_D1', '6'))
        PS = E('PFSEL', 'w1')
        if u == 0:
            if not E('A_NODMA'): common_(0b0111, lambda: (stx(a, 'd_a'), dma_chunk(), stx(a, 'd_b')), "d0")
            if not E('NOPF2'): rare(0b1000, lambda: pf_A(0, 'w2' if PS == 'w2' else 'w1'), "pa")
        if u == 4 and not E('NOPF2'): rare(0b1000, lambda: pf_A(1, 'w2' if PS == 'w2' else 'w1'), "pb")
        if PS == 'both':
            if u == 10: rare(0b0100, lambda: pf_A(0, 'w2'), "pd")
            if u == 12: rare(0b0100, lambda: pf_A(1, 'w2'), "pe")
        if u == 6 and not E('A_NOBAR'):
            rare(0b0001, lambda: (a(f"s_waitcnt vmcnt({8 if D1 < 6 else 4})"), a("s_barrier")), "c1")
        if u == D1 and not E('A_NODMA'): common_(0b0111, dma_chunk, "d1")
        if u == 8 and not E('NOPF2'): rare(0b1000, pf_B, "pc")
        if u == 15: rare(0b0001, rp_load, "rpl")
        if u == 2: rare(0b0100, rp_store, "rps")
        if u == 14:
            rare(0b1000, rp_issue, "rpi")
            stx(a, 'd_c')
            a("s_waitcnt vmcnt(0)")
            stx(a, 'd_d')
            if not E('A_NOBAR'): a("s_barrier")
            stx(a, 'd_e')
            rare(0b1100, rp_post, "rpc")
        tn = t + 1
        A = vA3[tn // 4]
        if p == 0:
            rd(f"ds_read_b128 {vr(vKb + 4*(tn&1),4)}, v{A[0]} offset:{(tn%4)*KT}")
            if tn % 2 == 0:
                pb = (tn // 2) & 1
                rd(f"ds_read2st64_b64 {vr(vKr + 4*pb,4)}, v{A[1]} offset0:{(tn%4)*3} offset1:{(tn%4)*3+3}")
            rd(f"ds_read_b128 {vr(vV + 8*(tn&1),4)}, v{A[2]} offset:{(tn%4)*2048}")
        else:
            rd("s_waitcnt lgkmcnt(0)")
        un = u + 1
        tq = un >> 1
        qs = un & 1
        Sc, Sn = vS + 16*p, vS + 16*(p^1)
        kbuf = vKb + 4*(tq & 1)
        krbuf = vKr + 4*((tq // 2) & 1) + 2*(tq & 1)
        ex = lambda r: a(f"v_exp_f32 v{Sc+r}, v{Sc+r}")
        cv = lambda r: a(f"v_cvt_pk_bf16_f32 v{vP+r}, v{Sc+2*r}, v{Sc+2*r+1}")
        a(f"v_mfma_f32_32x32x16_bf16 {vr(Sn,16)}, {vr(kbuf,4)}, {vr(vQ+4*qs,4)}, {vr(vNC+16*qs,16)}")
        for r in range(4): ex(r)
        tp = (u - 1) >> 1 if u > 0 else -1
        Op = vO + 16*((u - 1) & 1)
        a(f"v_mfma_f32_32x32x16_bf16 {vr(Op,16)}, {vr(vV + 8*(tp & 1) + 4,4)}, {vr(vP+4,4)}, {vr(Op,16)}")
        if p == 0:
            rd(f"ds_read_b128 {vr(vV + 8*(tn&1) + 4,4)}, v{A[2]} offset:{(tn%4)*2048 + 1024}")
        for r in range(4, 8): ex(r)
        cv(0); cv(1)
        a(f"v_mfma_f32_32x32x8_bf16 {vr(Sn,16)}, {vr(krbuf,2)}, {vr(vQr+2*qs,2)}, {vr(Sn,16)}")
        cv(2); cv(3)
        for r in range(8, 12): ex(r)
        Oc = vO + 16*p
        a(f"v_mfma_f32_32x32x16_bf16 {vr(Oc,16)}, {vr(vV + 8*(t & 1),4)}, {vr(vP,4)}, {vr(Oc,16)}")
        for r in range(12, 16): ex(r)
        if u == 15:
            a(f"""
            s_add_u32 s{sT0}, s{sSlotN}, {SLOT}
            s_cmp_ge_u32 s{sT0}, {NSLOT*SLOT}
            s_cselect_b32 s{sT1}, {NSLOT*SLOT}, 0
            s_sub_u32 s{sT0}, s{sT0}, s{sT1}
            s_sub_u32 s{sT1}, s{sT0}, s{sSlotN}
            s_add_u32 s{sT2}, s{sT0}, {SLOT}
            s_cmp_ge_u32 s{sT2}, {NSLOT*SLOT}
            s_cselect_b32 s{sT0}, {NSLOT*SLOT}, 0
            s_sub_u32 s{sT2}, s{sT2}, s{sT0}
            s_sub_u32 s{sT0}, s{sT2}, s{sSlotN}
            s_mov_b32 s{sSlotN}, s{sT2}
            """)
            for k in range(3):
                a(f"v_mov_b32 v{vA3[0][k]}, v{vA3[2][k]}")
                a(f"v_add_u32 v{vA3[1][k]}, s{sT1}, v{vA3[2][k]}")
                a(f"v_add_u32 v{vA3[2][k]}, s{sT0}, v{vA3[2][k]}")
        for r in range(4, 8): cv(r)
    a(f"""
    s_add_u32 s{sChunk}, s{sChunk}, 1
    s_cmp_lt_u32 s{sChunk}, 4
    s_cbranch_scc1 L_{name}_loop
    s_waitcnt lgkmcnt(0)
    """)
    a(f"v_mfma_f32_32x32x16_bf16 {vr(vO+16,16)}, {vr(vV + 8 + 4,4)}, {vr(vP+4,4)}, {vr(vO+16,16)}")
    st(a, 7)
    a(f"s_branch L_{name}_post")
    for l, b, fn in ool:
        a.label(l)
        fn()
        a(f"s_branch {b}")
    a.label(f"L_{name}_post")
    a(f"""
    s_barrier
    s_lshl_b32 s{sT0}, s{sQg}, 1
    s_add_u32 s{sT1}, s{sT0}, s{sKh}
    s_lshr_b32 s{sT2}, s{sT1}, 2
    s_mul_i32 s{sT2}, s{sT2}, {SLOT}
    s_and_b32 s{sT1}, s{sT1}, 3
    s_mul_i32 s{sT1}, s{sT1}, 3072
    s_add_u32 s{sT1}, s{sT1}, s{sT2}
    v_add_u32 v{vT}, s{sT1}, v{vL16}
    s_xor_b32 s{sT1}, s{sKh}, 1
    s_add_u32 s{sT1}, s{sT1}, s{sT0}
    s_lshr_b32 s{sT2}, s{sT1}, 2
    s_mul_i32 s{sT2}, s{sT2}, {SLOT}
    s_and_b32 s{sT1}, s{sT1}, 3
    s_mul_i32 s{sT1}, s{sT1}, 3072
    s_add_u32 s{sT1}, s{sT1}, s{sT2}
    v_add_u32 v{vT+1}, s{sT1}, v{vL16}
    s_nop 7
    """)
    stx(a, 'a_bar1')
    for i in range(3):
        a(f"ds_write_b128 v{vT}, {vr(vO+16+4*i,4)} offset:{i*1024}")
    a("s_waitcnt lgkmcnt(0)")
    a("s_barrier")
    stx(a, 'a_bar2')
    for i in range(3):
        a(f"ds_read_b128 {vr(vS+4*i,4)}, v{vT+1} offset:{i*1024}")
    a("s_waitcnt lgkmcnt(0)")
    for r in range(12):
        a(f"v_add_f32 v{vO+r}, v{vO+r}, v{vS+r}")
    a(f"v_mov_b32 v{vT}, 0")
    for r in range(12):
        a(f"v_fma_f32 v{vT}, v{vO+r}, 0, v{vT}")
    a(f"""
    s_cmp_eq_u32 s{sPass}, 0
    s_cbranch_scc0 L_{name}_store2
    v_cmp_u_f32 vcc, v{vT}, v{vT}
    s_nop 4
    s_cmp_eq_u64 vcc, 0
    s_cbranch_scc1 L_{name}_store2
    v_mov_b32 v{vT+1}, {FLAG}
    v_mov_b32 v{vT+2}, 1
    ds_write_b32 v{vT+1}, v{vT+2}
    s_branch L_{name}_store2
    L_{name}_redo:
    s_mov_b32 s{sPass}, 1
    v_mov_b32 v{vT}, 0xff800000
    v_mov_b32 v{vT+1}, 0xff800000
    s_lshr_b32 s{sT0}, s{sHead}, 1
    s_mul_i32 s{sT0}, s{sT0}, 163840
    s_mov_b32 s{sT1}, 0
    v_and_b32 v{vT+2}, 31, v0
    v_lshlrev_b32 v{vT+2}, 4, v{vT+2}
    s_lshl_b32 s{sT2}, s{sE}, 3
    s_add_u32 s{sT2}, s{sT2}, 1024
    v_add_u32 v{vT+2}, s{sT2}, v{vT+2}
    s_mul_i32 s{sT2}, s{sE}, 1536
    v_add_u32 v{vT+3}, s{sT2}, v{vL16}
    L_{name}_maxloop:
    buffer_load_dwordx4 {vr(vKb,4)}, v{vT+3}, s[{sK}:{sK+3}], s{sT0} offen
    buffer_load_dwordx2 {vr(vKr,2)}, v{vT+2}, s[{sK}:{sK+3}], s{sT0} offen
    s_waitcnt vmcnt(0)
    """)
    for s in range(2):
        S = vS + 16*s
        a(f"v_mfma_f32_32x32x16_bf16 {vr(S,16)}, {vr(vKb,4)}, {vr(vQ+4*s,4)}, 0")
        a(f"v_mfma_f32_32x32x8_bf16 {vr(S,16)}, {vr(vKr,2)}, {vr(vQr+2*s,2)}, {vr(S,16)}")
    a("s_nop 15")
    for s in range(2):
        for i in range(0, 16, 2):
            a(f"v_max3_f32 v{vT+s}, v{vT+s}, v{vS+16*s+i}, v{vS+16*s+i+1}")
    a(f"""
    s_add_u32 s{sT0}, s{sT0}, 2560
    s_add_u32 s{sT1}, s{sT1}, 1
    s_cmp_lt_u32 s{sT1}, 64
    s_cbranch_scc1 L_{name}_maxloop
    """)
    for s in range(2):
        a(f"""
        v_mov_b32 v{vT+2}, v{vT+s}
        s_nop 1
        v_permlane32_swap_b32 v{vT+s}, v{vT+2}
        s_nop 1
        v_max_f32 v{vT+2}, v{vT+s}, v{vT+2}
        v_sub_f32 v{vNC+16*s}, 0, v{vT+2}
        """)
        for i in range(1, 16):
            a(f"v_mov_b32 v{vNC+16*s+i}, v{vNC+16*s}")
    a("s_barrier")
    a(f"s_branch L_{name}_restart")
    a.label(f"L_{name}_store2")
    stx(a, 'a_vote')
    a(f"""
    v_mov_b32 v{vT}, v{vO+8}
    v_mov_b32 v{vT+1}, v{vO+8}
    s_nop 1
    v_permlane32_swap_b32 v{vT}, v{vT+1}
    s_nop 1
    v_rcp_f32 v{vT+1}, v{vT+1}
    v_lshrrev_b32 v{vT+2}, 5, v0
    v_and_b32 v{vT+3}, 31, v0
    s_add_u32 s{sT0}, s{sQt}, s{sKh}
    s_lshl_b32 s{sT0}, s{sT0}, 5
    v_add_u32 v{vT+3}, s{sT0}, v{vT+3}
    v_lshlrev_b32 v{vT+3}, 4, v{vT+3}
    s_mul_i32 s{sT0}, s{sHead}, 5
    v_add_u32 v{vT+2}, s{sT0}, v{vT+2}
    """)
    for r in range(12):
        a(f"v_mul_f32 v{vO+r}, v{vO+r}, v{vT+1}")
    for q in range(3):
        a(f"""
        v_add_u32 v{vT+4}, {2*q}, v{vT+2}
        v_lshrrev_b32 v{vT+5}, 1, v{vT+4}
        v_lshlrev_b32 v{vT+5}, 15, v{vT+5}
        v_and_b32 v{vT+4}, 1, v{vT+4}
        v_lshlrev_b32 v{vT+4}, 3, v{vT+4}
        v_add3_u32 v{vT+4}, v{vT+4}, v{vT+5}, v{vT+3}
        v_cvt_pk_bf16_f32 v{vT+6}, v{vO+4*q}, v{vO+4*q+1}
        v_cvt_pk_bf16_f32 v{vT+7}, v{vO+4*q+2}, v{vO+4*q+3}
        """)
        if q == 2: a("s_mov_b32 exec_hi, 0")
        dual(a, [f"buffer_store_dwordx2 {vr(vT+6,2)}, v{vT+4}, s[{sO}:{sO+3}], 0 offen @SC"])
    a("s_mov_b64 exec, -1")
    stx(a, 'a_stores')
    a(f"""
    s_waitcnt vmcnt(0) lgkmcnt(0)
    s_barrier
    v_mov_b32 v{vT+1}, {FLAG}
    ds_read_b32 v{vT+2}, v{vT+1}
    s_waitcnt lgkmcnt(0)
    v_readfirstlane_b32 s{sT0}, v{vT+2}
    s_cmp_eq_u32 s{sPass}, 0
    s_cselect_b32 s{sT0}, s{sT0}, 0
    s_cmp_lg_u32 s{sT0}, 0
    s_cbranch_scc1 L_{name}_redo
    """)
    a(f"s_add_u32 s76, s{sQb}, {C_ATT}")

def gemm_phase_prologue_loader(a, core, q, dep_idx_sgpr, dep_target, nW, pre_issued):
    pass

LANDED = [True]
def reg_step1(a, vd):
    a("s_mov_b64 exec, 7")
    a(f"buffer_load_dword v{vd}, v{vd+1}, s[44:47], 0 offen sc1")
    a("s_mov_b64 exec, -1")
def reg_step2(a, vd):
    dbg_flag_wait(a, vd, landed=LANDED[0])
    a(f"""
    s_getreg_b32 s{sX}, hwreg(HW_REG_XCC_ID)
    s_and_b32 s{sX}, s{sX}, 7
    s_add_u32 s76, s{sX}, {C_RK}
    s_lshl_b32 s76, s76, 7
    s_add_u32 s76, s76, {WS_CNT}
    v_mov_b32 v{vd-1}, s76
    v_accvgpr_write_b32 a0, 1
    s_mov_b64 exec, 1
    s_nop 1
    buffer_atomic_add a0, v{vd-1}, s[{sWS}:{sWS+3}], 0 offen sc0
    s_mov_b64 exec, -1
    """)
def reg_step3(a, vd):
    l1, l2 = a.newlabel("r3a"), a.newlabel("r3b")
    if not LANDED[0]: a("s_waitcnt vmcnt(0)")
    a(f"""
    v_accvgpr_read_b32 v{vd-1}, a0
    s_nop 1
    v_readfirstlane_b32 s{sRk}, v{vd-1}
    s_cmp_eq_u32 s{sRk}, 31
    s_cbranch_scc0 {l1}
    v_mov_b32 v{vd-1}, 4
    v_mov_b32 v{vd-2}, 1
    s_mov_b64 exec, 1
    buffer_atomic_add v{vd-2}, v{vd-1}, s[44:47], 0 offen sc1
    s_mov_b64 exec, -1
    """)
    a.label(l1)
    a(f"""
    s_cmp_ge_u32 s{sRk}, 32
    s_cbranch_scc0 {l2}
    v_mov_b32 v{vd-1}, 8
    v_mov_b32 v{vd-2}, 1
    s_mov_b64 exec, 1
    buffer_store_dword v{vd-2}, v{vd-1}, s[44:47], 0 offen sc1
    s_mov_b64 exec, -1
    """)
    a.label(l2)
    a("s_mov_b64 exec, 7")
    a(f"buffer_load_dword v{vd}, v{vd+1}, s[44:47], 0 offen sc1")
    a("s_mov_b64 exec, -1")
def register_publish(a, vd):
    l0, l1 = a.newlabel("rp"), a.newlabel("rpok")
    a(f"s_mov_b32 s{sPoll}, 0")
    a.label(l0)
    a(f"""
    s_waitcnt vmcnt(0)
    v_readlane_b32 s39, v{vd}, 1
    v_readlane_b32 s40, v{vd}, 2
    s_cmp_eq_u32 s39, 8
    s_cselect_b32 s38, 1, 0
    s_cmp_lg_u32 s40, 0
    s_cselect_b32 s38, 0, s38
    s_cbranch_scc1 {l1}
    s_cmp_eq_u32 s38, 1
    s_cbranch_scc1 {l1}
    s_add_u32 s{sPoll}, s{sPoll}, 1
    s_cmp_gt_u32 s{sPoll}, {POLL_MAX}
    s_cbranch_scc1 {l1}
    s_sleep 1
    s_mov_b64 exec, 7
    buffer_load_dword v{vd}, v{vd+1}, s[44:47], 0 offen sc1
    s_mov_b64 exec, -1
    s_branch {l0}
    """)
    a.label(l1)
    if E('FORCE_SLOW'): a("s_mov_b32 s38, 0")
    a(f"""
    v_mov_b32 v{vd-6}, s{sX}
    v_mov_b32 v{vd-4}, s38
    v_mov_b32 v{vd-5}, s{sRk}
    v_mov_b32 v{vd-7}, {ROLE}
    ds_write_b96 v{vd-7}, v[{vd-6}:{vd-4}]
    s_waitcnt lgkmcnt(0)
    """)
def wave_only(a, w, fn):
    l = a.newlabel("wo")
    a(f"s_cmp_eq_u32 s{sWV}, {w}")
    a(f"s_cbranch_scc0 {l}")
    fn()
    a.label(l)
def code_prefetch(a):
    a(f"""
    s_getpc_b64 s[40:41]
    s_and_b32 s40, s40, 0xffffff00
    s_lshr_b32 s42, s2, 3
    s_lshl_b32 s42, s42, 11
    v_lshlrev_b32 v26, 7, v1
    v_add_u32 v26, s42, v26
    s_mov_b64 exec, 0xffff
    global_load_dword v31, v26, s[40:41]
    s_mov_b64 exec, -1
    """)

def tlb_warm(a):
    G = int(E('TLBG', '16'))
    a(f"""
    s_lshr_b32 s75, s2, 3
    v_lshlrev_b32 v166, 5, v1
    v_add_u32 v166, s75, v166
    v_lshlrev_b32 v166, {G}, v166
    """)
    n_ws = -(-WS_END >> G)
    a(f"s_mov_b64 exec, {(1 << min(31, -(-n_ws // 32))) - 1:#x}")
    a(f"buffer_load_dword v167, v166, s[{sWS}:{sWS+3}], 0 offen sc1")
    a("s_mov_b64 exec, 3")
    for k, (pp, size) in enumerate(((pW1, 640*3456), (pW2, 1728*1280), (pWO, 640*1280), (pOUT, 2048*1280))):
        make_srd(a, 8, pp, pp+1, 0, size)
        a(f"buffer_load_dword v167, v166, s[8:11], 0 offen sc1")
    a("s_mov_b64 exec, -1")

CODE_KB = 64
def gen_mega():
    a = Asm()
    a(f"""
    s_cmp_ge_u32 s2, 256
    s_cbranch_scc1 L_exit
    s_load_dwordx8 s[84:91], s[0:1], 0
    s_load_dwordx8 s[92:99], s[0:1], 32
    s_load_dwordx2 s[78:79], s[0:1], 64
    """)
    st_rt(a, 0); st(a, 1)
    a(f"""
    v_lshrrev_b32 v2, 6, v0
    s_nop 0
    v_readfirstlane_b32 s{sWV}, v2
    """)
    lane_id(a, 1)
    if not E('NOPF'):
        l = a.newlabel("pf")
        a(f"s_cmp_eq_u32 s{sWV}, 1")
        a(f"s_cbranch_scc0 {l}")
        code_prefetch(a)
        a.label(l)
    a("s_waitcnt lgkmcnt(0)")
    make_srd(a, sWS, pWS, pWS+1, 0, WS_END)
    L = CoreL(a, 'qkv', 'q')
    L.map_tiles("L_repack")
    a(f"""
    s_cmp_ge_u32 s{sWV}, 4
    s_cbranch_scc0 L_q_compute
    """)
    L.loader_setup()
    st(a, 2)
    q = VmQ()
    for s_ in range(PD):
        L.issue_A(s_); q.push(f"A{s_}", 4)
        if not FS: stamp(a, 9 + 2*s_, base=SB)
        L.issue_W(s_); q.push(f"W{s_}", 4)
        if not FS: stamp(a, 10 + 2*s_, base=SB)
    st(a, 3)
    make_srd(a, 44, pDBG, pDBG+1, 0, 256)
    a("v_lshlrev_b32 v71, 2, v1")
    a("v_mov_b32 v70, 0")
    PL = P0L(a, L)
    if E('P0L'):
        PL.issue(); q.push('p0l', 5)
    L.p0l = PL
    RP = Repack(a)
    RP.issue(defer=True)
    RP.save()
    L.ldstamps = True
    L.loader_main(q)
    st(a, 8)
    a("s_waitcnt lgkmcnt(0)")
    a("s_barrier")
    a("s_barrier")
    wave_only(a, 7, lambda: register_publish(a, 70))
    a("s_branch L_attn")
    a.label("L_q_compute")
    L.compute_setup()
    make_srd(a, 44, pDBG, pDBG+1, 0, 256)
    a(f"v_lshlrev_b32 v{L.vSt+27}, 2, v1")
    a(f"v_mov_b32 v{L.vSt+26}, 0")
    a(f"""
    s_cmp_ge_u32 s{L.sNt}, 10
    s_cbranch_scc1 L_q_vpath
    """)
    L.addr_qk()
    L.mainloop(True, 2)
    st(a, 3)
    a("s_barrier")
    stx(a, 'q_e1')
    L.epilogue_Y('qk')
    a("s_branch L_q_done")
    a.label("L_q_vpath")
    L.addr_v()
    L.mainloop(False, 2)
    st(a, 3)
    a("s_barrier")
    stx(a, 'q_e1')
    L.epilogue_X()
    a.label("L_q_done")
    stx(a, 'q_epi')
    a(f"buffer_load_dword v{L.vSt+26}, v{L.vSt+27}, s[44:47], 0 offen sc1")
    a("s_waitcnt vmcnt(0)")
    stx(a, 'q_drain')
    a("s_barrier")
    stx(a, 'q_e2')
    a(f"s_cmp_eq_u32 s{sWV}, 0")
    a("s_cbranch_scc0 L_attn")
    dbg_flag_wait(a, L.vSt + 26, landed=True)
    a(f"s_add_u32 s40, s{L.sNt}, {C_QKV}")
    arrive(a, 40, 4)
    st(a, 4)
    a("s_branch L_attn")
    a.label("L_repack")
    l = a.newlabel("zc")
    a(f"""
    s_xor_b32 s40, s2, 225
    s_or_b32 s40, s40, s{sWV}
    s_cmp_eq_u32 s40, 0
    s_cbranch_scc0 {l}
    v_mov_b32 v4, 0
    v_mov_b32 v5, 0
    v_mov_b32 v6, 0
    v_mov_b32 v7, 0
    v_lshlrev_b32 v8, 4, v1
    s_mov_b32 s40, {WS_CNT}
    """)
    for j in range(SZ_CNT // 1024):
        a(f"buffer_store_dwordx4 v[4:7], v8, s[{sWS}:{sWS+3}], s40 offen {SC}")
        a("s_add_u32 s40, s40, 1024")
    make_srd(a, 8, pDBG, pDBG+1, 0, 256)
    a(f"""
    s_waitcnt vmcnt(0)
    v_mov_b32 v4, 1
    v_mov_b32 v5, 0
    s_mov_b64 exec, 1
    buffer_store_dword v4, v5, s[8:11], 0 offen sc1
    s_mov_b64 exec, -1
    """)
    a.label(l)
    make_srd(a, 44, pDBG, pDBG+1, 0, 256)
    a(f"v_lshlrev_b32 v71, 2, v1")
    a(f"v_mov_b32 v70, 0")
    a(f"""
    s_and_b32 s21, s2, 7
    s_lshr_b32 s21, s21, 1
    s_lshl_b32 s21, s21, 2
    s_lshr_b32 s22, s2, 3
    s_and_b32 s22, s22, 3
    s_add_u32 s21, s21, s22
    """)
    idle_rows(a, 21)
    a("s_waitcnt vmcnt(0)")
    a(f"buffer_load_dword v70, v71, s[44:47], 0 offen sc1")
    a("s_barrier")
    def st_arr():
        dbg_flag_wait(a, 70)
        a(f"s_add_u32 s76, s21, {C_ST}")
        arrive(a, 76, 64)
    wave_only(a, 0, st_arr)
    def regall():
        LANDED[0] = False
        reg_step1(a, 70); reg_step2(a, 70); reg_step3(a, 70); register_publish(a, 70)
    wave_only(a, 7, regall)
    l = a.newlabel("rpl")
    a(f"s_cmp_ge_u32 s{sWV}, 4")
    a(f"s_cbranch_scc0 {l}")
    RP2 = Repack(a)
    RP2.issue(defer=True)
    RP2.save()
    a.label(l)
    def fl():
        a(f"buffer_load_dword v70, v71, s[44:47], 0 offen sc1")
        dbg_flag_wait(a, 70)
    wave_only(a, 4, fl)
    a("s_barrier")
    a.label("L_attn")
    emit_attention(a, None)
    S = CoreS(a, 'oproj')
    lane_id(a, 1)
    S.map_tiles()
    a(f"""
    s_cmp_ge_u32 s{sWV}, 4
    s_cbranch_scc0 L_o_compute
    """)
    S.loader_setup()
    q = VmQ()
    for s_ in range(PD):
        S.issue_W(s_); q.push(f"W{s_}", 5)
    lw = a.newlabel("ow")
    a(f"s_cmp_eq_u32 s{sWV}, 4")
    a(f"s_cbranch_scc0 {lw}")
    a(f"s_add_u32 s40, s{sX}, {C_ATT}")
    poll_f(a, 40, 32, 8)
    a.label(lw)
    stx(a, 'o_poll')
    a("s_barrier")
    for s_ in range(PD):
        S.issue_A(s_); q.push(f"A{s_}", 4)
    S.loader_main(q)
    a("s_barrier")
    F1 = CoreL(a, 'ffn1', 'f')
    F1.map_tiles("L_o_ld_idle")
    F1.loader_setup()
    q = VmQ()
    a("s_barrier")
    for s_ in range(PD):
        F1.issue_W(s_); q.push(f"W{s_}", 4)
    a("s_branch L_f1_loader")
    a.label("L_o_ld_idle")
    a("s_barrier")
    a("s_branch L_f2_loader0")
    a.label("L_o_compute")
    lw = a.newlabel("oa")
    a(f"s_cmp_eq_u32 s{sWV}, 0")
    a(f"s_cbranch_scc0 {lw}")
    arrive_f(a, 76, sRk, 4)
    st(a, 8)
    a.label(lw)
    S.compute_setup()
    S.pretouch()
    S.residual_loads()
    a("s_barrier")
    st(a, 9)
    stx(a, 'o_X')
    S.mainloop(tag='o')
    stx(a, 'o_loop')
    S.reduce()
    stx(a, 'o_red')
    a("s_barrier")
    S.epilogue()
    stx(a, 'o_epi')
    a("s_waitcnt vmcnt(0)")
    stx(a, 'o_drain')
    a("s_barrier")
    stx(a, 'o_e2')
    lw = a.newlabel("oa2")
    a(f"s_cmp_eq_u32 s{sWV}, 0")
    a(f"s_cbranch_scc0 {lw}")
    a(f"s_lshr_b32 s40, s{S.sM0}, 7")
    a(f"s_add_u32 s40, s40, {C_OP}")
    a(f"s_lshr_b32 s41, s{S.sM0}, 6")
    a(f"s_and_b32 s41, s41, 1")
    a(f"s_lshl_b32 s41, s41, 3")
    a(f"s_add_u32 s41, s41, s{S.sNt}")
    arrive_f(a, 40, 41, 4)
    st(a, 10)
    a.label(lw)
    lane_id(a, 1)
    F1.map_tiles("L_f2_compute0")
    a("s_branch L_f1_compute")
    a.label("L_f1_loader")
    lw = a.newlabel("fw")
    a(f"s_cmp_eq_u32 s{sWV}, 4")
    a(f"s_cbranch_scc0 {lw}")
    a(f"s_lshr_b32 s40, s{F1.sM0}, 7")
    a(f"s_add_u32 s40, s40, {C_OP}")
    stx(a, 'f_p0')
    poll_f(a, 40, 16, 8)
    a.label(lw)
    stx(a, 'f_poll')
    a("s_barrier")
    for s_ in range(PD):
        F1.issue_A(s_); q.push(f"A{s_}", 4)
    F1.lstats_init()
    F1.loader_main(q)
    a("s_waitcnt lgkmcnt(0)")
    a("s_barrier")
    S2 = CoreS(a, 'ffn2')
    S2.map_tiles()
    S2.loader_setup()
    q = VmQ()
    a("s_barrier")
    if E('PFW2B'):
        for j in range(9):
            wave_only(a, 4 + (j % 4), lambda: w2p_prefetch(a, j))
    for s_ in range(PD):
        S2.issue_W(s_); q.push(f"W{s_}", 5)
    a("s_branch L_f2_loader")
    a.label("L_f2_loader0")
    if E('PFW2') or E('PFW2B'):
        for j in range(9):
            wave_only(a, 4 + (j % 4), lambda: w2p_prefetch(a, j))
    S2.map_tiles()
    S2.loader_setup()
    for s_ in range(PD):
        S2.issue_W(s_)
    a.label("L_f2_loader")
    lw = a.newlabel("gw")
    a(f"s_cmp_eq_u32 s{sWV}, 4")
    a(f"s_cbranch_scc0 {lw}")
    a(f"s_lshr_b32 s40, s{S2.sM0}, 7")
    a(f"s_add_u32 s40, s40, {C_F1}")
    poll_f(a, 40, 14, 8)
    a.label(lw)
    a("s_barrier")
    for s_ in range(PD):
        S2.issue_A(s_); q.push(f"A{s_}", 4)
    S2.loader_main(q)
    if common.STAMPS:
        stamp_flush(a, 0, sWV, base=SB, vt=90)
    a("s_endpgm")
    a.label("L_f1_compute")
    F1.compute_setup()
    F1.addr_f()
    a("s_barrier")
    st(a, 11)
    stx(a, 'f_X')
    F1.mainloop(True, tag='f')
    stx(a, 'f_loop')
    a("s_barrier")
    F1.epilogue_Y('ffn1')
    stx(a, 'f_epi')
    a("s_waitcnt vmcnt(0)")
    stx(a, 'f_drain')
    a("s_barrier")
    lw = a.newlabel("fa")
    a(f"s_cmp_eq_u32 s{sWV}, 0")
    a(f"s_cbranch_scc0 {lw}")
    a(f"s_lshr_b32 s40, s{F1.sM0}, 7")
    a(f"s_add_u32 s40, s40, {C_F1}")
    arrive_f(a, 40, F1.sNt, 4)
    st(a, 12)
    a.label(lw)
    lane_id(a, 1)
    a.label("L_f2_compute0")
    S2.map_tiles()
    S2.compute_setup()
    a("s_barrier")
    st(a, 13)
    stx(a, 'g_X')
    S2.residual_loads()
    S2.mainloop(tag='g')
    stx(a, 'g_loop')
    S2.reduce()
    stx(a, 'g_red')
    S2.epilogue()
    stx(a, 'g_epi')
    if common.STAMPS:
        a("s_waitcnt vmcnt(0)")
        st(a, 14); st_rt(a, 15)
        stamp_flush(a, 0, sWV, base=SB, vt=90)
        if E('DBGOUT'):
            l = a.newlabel("dbo")
            a(f"s_cmp_eq_u32 s2, 9")
            a(f"s_cbranch_scc0 {l}")
            a(f"s_cmp_eq_u32 s{sWV}, 0")
            a(f"s_cbranch_scc0 {l}")
            make_srd(a, 8, pDBG, pDBG+1, 0, 256)
            a("s_mov_b64 exec, 1")
            pairs = [(15, 0), (14, 1), (2, 1), (3, 1), (4, 1), (5, 1), (6, 1), (7, 1), (9, 1), (11, 1), (13, 1)]
            for k, (x, y) in enumerate(pairs):
                a(f"s_sub_u32 s40, s{SB+x}, s{SB+y}")
                a(f"v_mov_b32 v4, s40")
                a(f"v_mov_b32 v5, {16 + 4*k}")
                a(f"buffer_store_dword v4, v5, s[8:11], 0 offen")
            a("s_waitcnt vmcnt(0)")
            a.label(l)
    a.label("L_exit")
    a("s_endpgm")
    return kernel_header(NAME) + a.text() + kernel_desc(NAME, 256, 176, sgpr=102)
```

```python
from common import *
import common, os
E = os.environ.get

NAME = "sequential_preLN__softmax_full_mha__dense_activation_relu__prompt_kernel"
pX, pWQ, pWO, pW1, pW2, pOUT, pDBG, pWS = 84, 86, 88, 92, 94, 96, 98, 78
sWS = 80
sWV = 100
sPoll = 101
SB = 48
STAT = 131072
LDS_TOTAL = 149504
SC = "sc1"
sX, sRk, sLoc = 72, 73, 74
ROLE = LDS_TOTAL - 64
POLL_MAX = 1 << 22

FS = E('FS', '').split(',') if E('FS') else []
FS0 = int(E('FS0', '9'))
def st(a, i):
    if FS and (i >= FS0) and i != 15: return
    stamp(a, i, base=SB)
def st2(a, i): pass
def stx(a, tag):
    if tag in FS: stamp(a, FS0 + FS.index(tag), base=SB)
def st_rt(a, i): stamp_rt(a, i, base=SB)

def lane_id(a, v):
    a(f"v_mbcnt_lo_u32_b32 v{v}, -1, 0")
    a(f"v_mbcnt_hi_u32_b32 v{v}, -1, v{v}")

def arrive(a, sIdx, vt):
    a(f"""
    s_lshl_b32 s{sPoll}, s{sIdx}, 7
    s_add_u32 s{sPoll}, s{sPoll}, {WS_CNT}
    v_mov_b32 v{vt}, s{sPoll}
    v_mov_b32 v{vt+1}, 1
    s_mov_b64 exec, 1
    buffer_atomic_add v{vt+1}, v{vt}, s[{sWS}:{sWS+3}], 0 offen sc1
    s_mov_b64 exec, -1
    """)

def dual(a, instrs):
    l0, l1 = a.newlabel("slow"), a.newlabel("dd")
    a(f"s_cmp_eq_u32 s{sLoc}, 0")
    a(f"s_cbranch_scc1 {l0}")
    for i in instrs: a(i.replace("@SC", E('LOCFL', '') if 'store' in i else ''))
    a(f"s_branch {l1}")
    a.label(l0)
    for i in instrs: a(i.replace("@SC", "sc1"))
    a.label(l1)

def arrive_l(a, sIdx, vt):
    a(f"""
    s_lshl_b32 s{sPoll}, s{sIdx}, 7
    s_add_u32 s{sPoll}, s{sPoll}, {WS_CNT}
    v_mov_b32 v{vt}, s{sPoll}
    v_mov_b32 v{vt+1}, 1
    s_mov_b64 exec, 1
    """)
    dual(a, [f"buffer_atomic_add v{vt+1}, v{vt}, s[{sWS}:{sWS+3}], 0 offen @SC"])
    a("s_mov_b64 exec, -1")

def arrive_f(a, sIdx, sSlot, vt):
    a(f"""
    s_lshl_b32 s{sPoll}, s{sIdx}, 7
    s_add_u32 s{sPoll}, s{sPoll}, {WS_CNT}
    s_lshl_b32 s75, s{sSlot}, 2
    s_add_u32 s{sPoll}, s{sPoll}, s75
    v_mov_b32 v{vt}, s{sPoll}
    v_mov_b32 v{vt+1}, 1
    s_mov_b64 exec, 1
    """)
    dual(a, [f"buffer_store_dword v{vt+1}, v{vt}, s[{sWS}:{sWS+3}], 0 offen @SC"])
    a("s_mov_b64 exec, -1")

def poll_f(a, sIdx, n, vt):
    a(f"""
    s_lshl_b32 s{sPoll}, s{sIdx}, 7
    s_add_u32 s{sPoll}, s{sPoll}, {WS_CNT}
    v_lshlrev_b32 v{vt+1}, 2, v1
    v_add_u32 v{vt+1}, s{sPoll}, v{vt+1}
    v_mov_b32 v{vt+2}, 1
    """)
    poll(a, vt + 1, vt + 2, n, vt)

def poll(a, vOff, vTgt, nl, vt, slp=1):
    l0, l1 = a.newlabel("poll"), a.newlabel("pollok")
    a(f"s_mov_b64 exec, {(1 << nl) - 1:#x}")
    a(f"s_mov_b32 s{sPoll}, 0")
    a.label(l0)
    a(f"""
    buffer_load_dword v{vt}, v{vOff}, s[{sWS}:{sWS+3}], 0 offen sc1
    s_waitcnt vmcnt(0)
    v_cmp_gt_u32 vcc, v{vTgt}, v{vt}
    s_nop 4
    s_cmp_eq_u64 vcc, 0
    s_cbranch_scc1 {l1}
    s_add_u32 s{sPoll}, s{sPoll}, 1
    s_cmp_gt_u32 s{sPoll}, {POLL_MAX}
    s_cbranch_scc1 {l1}
    s_sleep {slp}
    s_branch {l0}
    """)
    a.label(l1)
    a("s_mov_b64 exec, -1")

def poll1(a, sIdx, target, vt):
    a(f"""
    s_lshl_b32 s{sPoll}, s{sIdx}, 7
    s_add_u32 s{sPoll}, s{sPoll}, {WS_CNT}
    v_mov_b32 v{vt+1}, s{sPoll}
    v_mov_b32 v{vt+2}, {target}
    """)
    poll(a, vt + 1, vt + 2, 1, vt)

def wave_sum(a, v):
    for sh in (1, 2, 4, 8):
        a(f"v_add_f32_dpp v{v}, v{v}, v{v} row_shr:{sh} row_mask:0xf bank_mask:0xf bound_ctrl:0")
        a("s_nop 1")
    a(f"v_add_f32_dpp v{v}, v{v}, v{v} row_bcast:15 row_mask:0xa bank_mask:0xf")
    a("s_nop 1")
    a(f"v_add_f32_dpp v{v}, v{v}, v{v} row_bcast:31 row_mask:0xc bank_mask:0xf")
    a("s_nop 1")

def p0_rows_issue(a, sXs, s0, vR, vA):
    a(f"""
    s_lshl_b32 s{s0}, s2, 3
    s_lshl_b32 s{s0+1}, s{sWV}, 1
    s_add_u32 s{s0}, s{s0}, s{s0+1}
    s_mul_i32 s{s0+2}, s{s0}, 1280
    v_lshlrev_b32 v{vA}, 4, v1
    v_lshlrev_b32 v{vA+1}, 2, v1
    s_add_u32 s{s0+3}, s{s0+2}, 1280
    buffer_load_dwordx4 {vr(vR,4)}, v{vA}, s[{sXs}:{sXs+3}], s{s0+2} offen
    buffer_load_dword v{vR+4}, v{vA+1}, s[{sXs}:{sXs+3}], s{s0+2} offen offset:1024
    buffer_load_dwordx4 {vr(vR+6,4)}, v{vA}, s[{sXs}:{sXs+3}], s{s0+3} offen
    buffer_load_dword v{vR+5}, v{vA+1}, s[{sXs}:{sXs+3}], s{s0+3} offen offset:1024
    """)
def p0_rows_finish(a, s0, vR, vA):
    for rr in range(2):
        regs = [vR + 6*rr + i for i in range(4)] + [vR + 4 + rr]
        S, Q, U = vA + 4, vA + 5, vA + 6
        for n, r in enumerate(regs):
            a(f"v_lshlrev_b32 v{U}, 16, v{r}")
            a(f"v_and_b32 v{U+1}, 0xffff0000, v{r}")
            if n == 0:
                a(f"v_add_f32 v{S}, v{U}, v{U+1}")
                a(f"v_mul_f32 v{Q}, v{U}, v{U}")
            else:
                a(f"v_add_f32 v{S}, v{S}, v{U}")
                a(f"v_add_f32 v{S}, v{S}, v{U+1}")
                a(f"v_fmac_f32 v{Q}, v{U}, v{U}")
            a(f"v_fmac_f32 v{Q}, v{U+1}, v{U+1}")
        a("s_nop 1")
        for sh in (1, 2, 4, 8):
            a(f"v_add_f32_dpp v{S}, v{S}, v{S} row_shr:{sh} row_mask:0xf bank_mask:0xf bound_ctrl:0")
            a(f"v_add_f32_dpp v{Q}, v{Q}, v{Q} row_shr:{sh} row_mask:0xf bank_mask:0xf bound_ctrl:0")
            a("s_nop 0")
        a(f"v_add_f32_dpp v{S}, v{S}, v{S} row_bcast:15 row_mask:0xa bank_mask:0xf")
        a(f"v_add_f32_dpp v{Q}, v{Q}, v{Q} row_bcast:15 row_mask:0xa bank_mask:0xf")
        a("s_nop 0")
        a(f"v_add_f32_dpp v{S}, v{S}, v{S} row_bcast:31 row_mask:0xc bank_mask:0xf")
        a(f"v_add_f32_dpp v{Q}, v{Q}, v{Q} row_bcast:31 row_mask:0xc bank_mask:0xf")
        a(f"""
        s_nop 0
        v_mul_f32 v{S}, {f32bits(1.0/640):#x}, v{S}
        v_mul_f32 v{Q}, {f32bits(1.0/640):#x}, v{Q}
        v_fma_f32 v{Q}, -v{S}, v{S}, v{Q}
        v_max_f32 v{Q}, 0, v{Q}
        v_add_f32 v{Q}, {f32bits(1e-5):#x}, v{Q}
        v_rsq_f32 v{Q}, v{Q}
        s_nop 0
        v_mov_b32 v{vA+8+2*rr}, v{S}
        v_mov_b32 v{vA+9+2*rr}, v{Q}
        """)
    a(f"""
    s_lshl_b32 s{s0+4}, s{s0}, 3
    s_add_u32 s{s0+4}, s{s0+4}, {WS_ST1}
    v_mov_b32 v{vA+4}, 0
    s_mov_b32 exec_lo, 0
    s_mov_b32 exec_hi, 0x80000000
    buffer_store_dwordx4 {vr(vA+8,4)}, v{vA+4}, s[{sWS}:{sWS+3}], s{s0+4} offen {SC}
    s_mov_b64 exec, -1
    """)
def colsum_issue(a, which, srd, sW4, s0, vC, vA):
    ld = 3840 if which == 'wq' else 3456
    a(f"""
    s_and_b32 s{s0+1}, s2, 7
    s_lshr_b32 s{s0+2}, s2, 3
    s_lshr_b32 s{s0+3}, s{s0+1}, 1
    s_lshl_b32 s{s0+3}, s{s0+3}, 5
    s_add_u32 s{s0+2}, s{s0+2}, s{s0+3}
    s_and_b32 s{s0+1}, s{s0+1}, 1
    s_and_b32 s{s0+3}, s{s0+2}, 15
    s_lshr_b32 s{s0+2}, s{s0+2}, 4
    v_lshrrev_b32 v{vA}, 3, v1
    v_and_b32 v{vA+1}, 7, v1
    v_lshlrev_b32 v{vA+1}, 2, v{vA+1}
    v_mul_u32_u24 v{vA+2}, {ld}, v{vA}
    v_add_u32 v{vA+2}, v{vA+2}, v{vA+1}
    s_lshl_b32 s{s0+4}, s{s0+3}, 6
    s_lshl_b32 s{s0+7}, s{sW4}, 4
    s_add_u32 s{s0+4}, s{s0+4}, s{s0+7}
    s_mul_i32 s{s0+5}, s{s0+1}, {1024 if which == 'wq' else 896}
    s_add_u32 s{s0+5}, s{s0+5}, s{s0+4}
    s_mul_i32 s{s0+7}, s{s0+2}, {80*ld}
    s_lshl_b32 s{s0+4}, s{s0+5}, 1
    s_add_u32 s{s0+7}, s{s0+7}, s{s0+4}
    """)
    for j in range(10):
        a(f"buffer_load_dword v{vC+j}, v{vA+2}, s[{srd}:{srd+3}], s{s0+7} offen")
        if j < 9: a(f"s_add_u32 s{s0+7}, s{s0+7}, {8*ld}")
def colsum_finish(a, which, s0, vC, vA):
    base, ncol = (WS_CS1, 1920) if which == 'wq' else (WS_CS2, 1792)
    A0, A1, U = vA + 4, vA + 5, vA + 6
    for j in range(10):
        if j == 0:
            a(f"v_lshlrev_b32 v{A0}, 16, v{vC}")
            a(f"v_and_b32 v{A1}, 0xffff0000, v{vC}")
        else:
            a(f"v_lshlrev_b32 v{U}, 16, v{vC+j}")
            a(f"v_and_b32 v{U+1}, 0xffff0000, v{vC+j}")
            a(f"v_add_f32 v{A0}, v{A0}, v{U}")
            a(f"v_add_f32 v{A1}, v{A1}, v{U+1}")
    a(f"""
    s_nop 1
    v_add_f32_dpp v{A0}, v{A0}, v{A0} row_ror:8 row_mask:0xf bank_mask:0xf
    v_add_f32_dpp v{A1}, v{A1}, v{A1} row_ror:8 row_mask:0xf bank_mask:0xf
    s_nop 1
    v_mov_b32 v{U}, v{A0}
    v_mov_b32 v{U+1}, v{A1}
    s_nop 1
    v_permlane16_swap_b32 v{A0}, v{U}
    v_permlane16_swap_b32 v{A1}, v{U+1}
    s_nop 1
    v_add_f32 v{A0}, v{A0}, v{U}
    v_add_f32 v{A1}, v{A1}, v{U+1}
    s_nop 0
    v_mov_b32 v{U}, v{A0}
    v_mov_b32 v{U+1}, v{A1}
    s_nop 1
    v_permlane32_swap_b32 v{A0}, v{U}
    v_permlane32_swap_b32 v{A1}, v{U+1}
    s_nop 1
    v_add_f32 v{vA+12}, v{A0}, v{U}
    v_add_f32 v{vA+13}, v{A1}, v{U+1}
    v_lshlrev_b32 v{U}, 3, v1
    s_mul_i32 s{s0+4}, s{s0+2}, {ncol*4}
    s_lshl_b32 s{s0+7}, s{s0+5}, 2
    s_add_u32 s{s0+4}, s{s0+4}, s{s0+7}
    s_add_u32 s{s0+4}, s{s0+4}, {base}
    """)
    lab = a.newlabel("p0skip")
    if which == 'wq':
        a(f"s_cmp_ge_u32 s{s0+5}, 1920")
    else:
        a(f"s_sub_u32 s{s0+7}, 14, s{s0+1}")
        a(f"s_cmp_ge_u32 s{s0+3}, s{s0+7}")
    a(f"s_cbranch_scc1 {lab}")
    a("s_mov_b64 exec, 0xff")
    a(f"buffer_store_dwordx2 {vr(vA+12,2)}, v{U}, s[{sWS}:{sWS+3}], s{s0+4} offen {SC}")
    a("s_mov_b64 exec, -1")
    a.label(lab)
def emit_p0(a):
    sXs, sWq, s0 = 8, 12, 40
    vR, vC, vA = 4, 14, 34
    make_srd(a, sXs, pX, pX+1, 0, 2048*1280)
    make_srd(a, sWq, pWQ, pWQ+1, 0, 640*3840)
    p0_rows_issue(a, sXs, s0, vR, vA)
    a(f"s_mov_b32 s39, s{s0}")
    colsum_issue(a, 'wq', sWq, sWV, s0, vC, vA + 12)
    a("s_waitcnt vmcnt(10)")
    a(f"s_mov_b32 s38, s{s0+4}")
    p0_rows_finish(a, 39, vR, vA) if False else None
    p0_rows_finish_b(a, 39, 38, vR, vA)
    a("s_waitcnt vmcnt(1)")
    colsum_finish(a, 'wq', s0, vC, vA + 12)
def p0_rows_finish_b(a, sRow, sTmp, vR, vA):
    import io
    class Tmp: pass
    for rr in range(2):
        regs = [vR + 6*rr + i for i in range(4)] + [vR + 4 + rr]
        S, Q, U = vA + 4, vA + 5, vA + 6
        for n, r in enumerate(regs):
            a(f"v_lshlrev_b32 v{U}, 16, v{r}")
            a(f"v_and_b32 v{U+1}, 0xffff0000, v{r}")
            if n == 0:
                a(f"v_add_f32 v{S}, v{U}, v{U+1}")
                a(f"v_mul_f32 v{Q}, v{U}, v{U}")
            else:
                a(f"v_add_f32 v{S}, v{S}, v{U}")
                a(f"v_add_f32 v{S}, v{S}, v{U+1}")
                a(f"v_fmac_f32 v{Q}, v{U}, v{U}")
            a(f"v_fmac_f32 v{Q}, v{U+1}, v{U+1}")
        a("s_nop 1")
        for sh in (1, 2, 4, 8):
            a(f"v_add_f32_dpp v{S}, v{S}, v{S} row_shr:{sh} row_mask:0xf bank_mask:0xf bound_ctrl:0")
            a(f"v_add_f32_dpp v{Q}, v{Q}, v{Q} row_shr:{sh} row_mask:0xf bank_mask:0xf bound_ctrl:0")
            a("s_nop 0")
        a(f"v_add_f32_dpp v{S}, v{S}, v{S} row_bcast:15 row_mask:0xa bank_mask:0xf")
        a(f"v_add_f32_dpp v{Q}, v{Q}, v{Q} row_bcast:15 row_mask:0xa bank_mask:0xf")
        a("s_nop 0")
        a(f"v_add_f32_dpp v{S}, v{S}, v{S} row_bcast:31 row_mask:0xc bank_mask:0xf")
        a(f"v_add_f32_dpp v{Q}, v{Q}, v{Q} row_bcast:31 row_mask:0xc bank_mask:0xf")
        a(f"""
        s_nop 0
        v_mul_f32 v{S}, {f32bits(1.0/640):#x}, v{S}
        v_mul_f32 v{Q}, {f32bits(1.0/640):#x}, v{Q}
        v_fma_f32 v{Q}, -v{S}, v{S}, v{Q}
        v_max_f32 v{Q}, 0, v{Q}
        v_add_f32 v{Q}, {f32bits(1e-5):#x}, v{Q}
        v_rsq_f32 v{Q}, v{Q}
        s_nop 0
        v_mov_b32 v{vA+8+2*rr}, v{S}
        v_mov_b32 v{vA+9+2*rr}, v{Q}
        """)
    a(f"""
    s_lshl_b32 s{sTmp}, s{sRow}, 3
    s_add_u32 s{sTmp}, s{sTmp}, {WS_ST1}
    v_mov_b32 v{vA+4}, 0
    s_mov_b32 exec_lo, 0
    s_mov_b32 exec_hi, 0x80000000
    buffer_store_dwordx4 {vr(vA+8,4)}, v{vA+4}, s[{sWS}:{sWS+3}], s{sTmp} offen {SC}
    s_mov_b64 exec, -1
    """)
def dbg_flag_issue(a, vt):
    make_srd(a, 44, pDBG, pDBG+1, 0, 256)
    a(f"v_mov_b32 v{vt+1}, 0")
    a(f"buffer_load_dword v{vt}, v{vt+1}, s[44:47], 0 offen sc1")
def dbg_flag_issue_b(a, vt):
    make_srd(a, 16, pDBG, pDBG+1, 0, 256)
    a(f"v_mov_b32 v{vt+1}, 0")
    a(f"buffer_load_dword v{vt}, v{vt+1}, s[16:19], 0 offen sc1")
def dbg_flag_wait(a, vt, srd=44, landed=False):
    l0, l1, l2 = a.newlabel("dbgp"), a.newlabel("dbgok"), a.newlabel("dbgc")
    a(f"s_mov_b32 s{sPoll}, 0")
    if landed: a(f"s_branch {l2}")
    a.label(l0)
    a("s_waitcnt vmcnt(0)")
    a.label(l2)
    a(f"""
    v_readfirstlane_b32 s75, v{vt}
    s_cmp_lg_u32 s75, 0
    s_cbranch_scc1 {l1}
    s_add_u32 s{sPoll}, s{sPoll}, 1
    s_cmp_gt_u32 s{sPoll}, {POLL_MAX}
    s_cbranch_scc1 {l1}
    s_sleep 1
    buffer_load_dword v{vt}, v{vt+1}, s[{srd}:{srd+3}], 0 offen sc1
    s_branch {l0}
    """)
    a.label(l1)
def dbg_flag_wait_arrive_b(a, cbase, vt):
    dbg_flag_wait_arrive(a, cbase, vt, 16)
def dbg_flag_wait_arrive(a, cbase, vt, srd=44):
    l0, l1 = a.newlabel("dbgp"), a.newlabel("dbgok")
    a(f"s_mov_b32 s{sPoll}, 0")
    a.label(l0)
    a(f"""
    s_waitcnt vmcnt(0)
    v_readfirstlane_b32 s75, v{vt}
    s_cmp_lg_u32 s75, 0
    s_cbranch_scc1 {l1}
    s_add_u32 s{sPoll}, s{sPoll}, 1
    s_cmp_gt_u32 s{sPoll}, {POLL_MAX}
    s_cbranch_scc1 {l1}
    s_sleep 1
    buffer_load_dword v{vt}, v{vt+1}, s[{srd}:{srd+3}], 0 offen sc1
    s_branch {l0}
    """)
    a.label(l1)
    a(f"s_and_b32 s75, s2, 7")
    a(f"s_add_u32 s75, s75, {cbase}")
    arrive(a, 75, vt)

class P0Q:
    vR, vC, vD, vA = 64, 84, 94, 104
    def __init__(self, a, L):
        self.a, self.L = a, L
    def issue(self):
        a, L = self.a, self.L
        vR, vC, vD, vA = self.vR, self.vC, self.vD, self.vA
        sXs, sWq = L.sA, L.sW
        sW1 = 16
        make_srd(a, sW1, pW1, pW1+1, 0, 640*3456)
        a(f"""
        v_lshrrev_b32 v2, 4, v1
        v_and_b32 v3, 15, v1
        s_lshl_b32 s40, s{L.sNt}, 4
        s_add_u32 s40, s40, s{L.sM0}
        s_lshl_b32 s41, s{L.sLw}, 2
        s_add_u32 s40, s40, s41
        s_cmp_lt_u32 s{L.sNt}, 8
        s_cselect_b32 s40, s40, 4096
        v_add_u32 v{vA}, s40, v2
        v_mul_u32_u24 v{vA+1}, 1280, v{vA}
        v_lshlrev_b32 v{vA+2}, 4, v3
        v_add_u32 v{vA+1}, v{vA+1}, v{vA+2}
        """)
        for j in range(5):
            a(f"buffer_load_dwordx4 {vr(vR+4*j,4)}, v{vA+1}, s[{sXs}:{sXs+3}], 0 offen offset:{256*j}")
        a(f"""
        s_lshr_b32 s41, s{L.sM0}, 7
        s_mul_i32 s42, s41, {40*3840}
        s_lshl_b32 s43, s{L.sLw}, 5
        s_add_u32 s43, s43, s{L.sN0}
        s_lshl_b32 s40, s43, 1
        s_add_u32 s42, s42, s40
        v_mul_u32_u24 v{vA+2}, 3840, v2
        v_lshlrev_b32 v{vA+3}, 2, v3
        v_add_u32 v{vA+2}, v{vA+2}, v{vA+3}
        """)
        for j in range(10):
            a(f"buffer_load_dword v{vC+j}, v{vA+2}, s[{sWq}:{sWq+3}], s42 offen")
            if j < 9: a(f"s_add_u32 s42, s42, {4*3840}")
        a(f"""
        s_mul_i32 s42, s41, {40*3456}
        s_add_u32 s42, s42, s40
        s_cmp_lt_u32 s{L.sNt}, 14
        s_cselect_b32 s42, s42, 0x7f000000
        v_mul_u32_u24 v{vA+4}, 3456, v2
        v_add_u32 v{vA+4}, v{vA+4}, v{vA+3}
        """)
        for j in range(10):
            a(f"buffer_load_dword v{vD+j}, v{vA+4}, s[{sW1}:{sW1+3}], s42 offen")
            if j < 9: a(f"s_add_u32 s42, s42, {4*3456}")
    def rows(self):
        a, L = self.a, self.L
        vR, vA = self.vR, self.vA
        S, Q, U = vA + 5, vA + 6, vA + 8
        for n in range(20):
            r = vR + n
            u = U + 2*(n & 1)
            a(f"v_lshlrev_b32 v{u}, 16, v{r}")
            a(f"v_and_b32 v{u+1}, 0xffff0000, v{r}")
            if n == 0:
                a(f"v_add_f32 v{S}, v{u}, v{u+1}")
                a(f"v_mul_f32 v{Q}, v{u}, v{u}")
            else:
                a(f"v_add_f32 v{S}, v{S}, v{u}")
                a(f"v_fmac_f32 v{Q}, v{u}, v{u}")
                a(f"v_add_f32 v{S}, v{S}, v{u+1}")
            a(f"v_fmac_f32 v{Q}, v{u+1}, v{u+1}")
        a("s_nop 1")
        for sh in (1, 2, 4, 8):
            a(f"v_add_f32_dpp v{S}, v{S}, v{S} row_shr:{sh} row_mask:0xf bank_mask:0xf bound_ctrl:0")
            a(f"v_add_f32_dpp v{Q}, v{Q}, v{Q} row_shr:{sh} row_mask:0xf bank_mask:0xf bound_ctrl:0")
            a("s_nop 0")
        a(f"""
        v_mul_f32 v{S}, {f32bits(1.0/640):#x}, v{S}
        v_mul_f32 v{Q}, {f32bits(1.0/640):#x}, v{Q}
        v_fma_f32 v{Q}, -v{S}, v{S}, v{Q}
        v_max_f32 v{Q}, 0, v{Q}
        v_add_f32 v{Q}, {f32bits(1e-5):#x}, v{Q}
        v_rsq_f32 v{Q}, v{Q}
        v_mov_b32 v{U}, v{S}
        v_lshlrev_b32 v{U+2}, 3, v{vA}
        v_mov_b32 v{U+3}, 0x7fffff00
        v_cmp_gt_u32 vcc, 2048, v{vA}
        v_mov_b32 v{U+1}, v{Q}
        v_cndmask_b32 v{U+2}, v{U+3}, v{U+2}, vcc
        s_mov_b32 s40, {WS_ST1}
        s_mov_b32 exec_lo, 0x80008000
        s_mov_b32 exec_hi, 0x80008000
        buffer_store_dwordx2 {vr(U,2)}, v{U+2}, s[{sWS}:{sWS+3}], s40 offen {SC}
        s_mov_b64 exec, -1
        """)
    def cols(self, which):
        a, L = self.a, self.L
        vA = self.vA
        regs, base, ncol, lim = (self.vC, WS_CS1, 1920, 15) if which == 0 else (self.vD, WS_CS2, 1792, 14)
        U = vA + 8
        A0, A1 = vA + 5, vA + 6
        for j in range(10):
            u = U + 2*(j & 1)
            if j == 0:
                a(f"v_lshlrev_b32 v{A0}, 16, v{regs}")
                a(f"v_and_b32 v{A1}, 0xffff0000, v{regs}")
            else:
                a(f"v_lshlrev_b32 v{u}, 16, v{regs+j}")
                a(f"v_and_b32 v{u+1}, 0xffff0000, v{regs+j}")
                a(f"v_add_f32 v{A0}, v{A0}, v{u}")
                a(f"v_add_f32 v{A1}, v{A1}, v{u+1}")
        a(f"""
        s_nop 0
        v_mov_b32 v{U}, v{A0}
        v_mov_b32 v{U+1}, v{A1}
        s_nop 1
        v_permlane16_swap_b32 v{A0}, v{U}
        v_permlane16_swap_b32 v{A1}, v{U+1}
        s_nop 1
        v_add_f32 v{A0}, v{A0}, v{U}
        v_add_f32 v{A1}, v{A1}, v{U+1}
        s_nop 0
        v_mov_b32 v{U}, v{A0}
        v_mov_b32 v{U+1}, v{A1}
        s_nop 1
        v_permlane32_swap_b32 v{A0}, v{U}
        v_permlane32_swap_b32 v{A1}, v{U+1}
        s_nop 1
        v_add_f32 v{U+4}, v{A0}, v{U}
        v_add_f32 v{U+5}, v{A1}, v{U+1}
        v_lshlrev_b32 v{U}, 3, v3
        s_mul_i32 s42, s41, {ncol*4}
        s_lshl_b32 s40, s43, 2
        s_add_u32 s42, s42, s40
        s_add_u32 s42, s42, {base}
        s_cmp_lt_u32 s{L.sNt}, {lim}
        s_cselect_b32 s42, s42, 0x7f000000
        s_mov_b64 exec, 0xffff
        buffer_store_dwordx2 {vr(U+4,2)}, v{U}, s[{sWS}:{sWS+3}], s42 offen {SC}
        s_mov_b64 exec, -1
        s_nop 1
        """)
def emit_p0r(a, L):
    sXs, vR, vA = 8, 146, 132
    make_srd(a, sXs, pX, pX+1, 0, 2048*1280)
    a(f"""
    v_lshrrev_b32 v166, 4, v1
    v_and_b32 v167, 15, v1
    s_lshl_b32 s75, s{L.sNt}, 4
    s_add_u32 s75, s75, s{L.sM0}
    s_lshl_b32 s76, s{sWV}, 2
    s_add_u32 s75, s75, s76
    s_cmp_lt_u32 s{L.sNt}, 8
    s_cselect_b32 s75, s75, 4096
    v_add_u32 v{vA}, s75, v166
    v_mul_u32_u24 v{vA+1}, 1280, v{vA}
    v_lshlrev_b32 v{vA+2}, 4, v167
    v_add_u32 v{vA+1}, v{vA+1}, v{vA+2}
    """)
    for j in range(5):
        a(f"buffer_load_dwordx4 {vr(vR+4*j,4)}, v{vA+1}, s[{sXs}:{sXs+3}], 0 offen offset:{256*j}")
def emit_p0r_finish(a, L, extra=0):
    vR, vA = 146, 132
    S, Q, S2, Q2, U = vA + 4, vA + 5, vA + 6, vA + 7, vA + 8
    for j in range(5):
        a(f"s_waitcnt vmcnt({4 - j + extra})")
        for n in range(4):
            r = vR + 4*j + n
            u = U + 2*(n & 1)
            a(f"v_lshlrev_b32 v{u}, 16, v{r}")
            a(f"v_and_b32 v{u+1}, 0xffff0000, v{r}")
            if j == 0 and n == 0:
                a(f"v_mov_b32 v{S}, v{u}")
                a(f"v_mul_f32 v{Q}, v{u}, v{u}")
                a(f"v_mov_b32 v{S2}, v{u+1}")
                a(f"v_mul_f32 v{Q2}, v{u+1}, v{u+1}")
            else:
                a(f"v_add_f32 v{S}, v{S}, v{u}")
                a(f"v_fmac_f32 v{Q}, v{u}, v{u}")
                a(f"v_add_f32 v{S2}, v{S2}, v{u+1}")
                a(f"v_fmac_f32 v{Q2}, v{u+1}, v{u+1}")
    a(f"v_add_f32 v{S}, v{S}, v{S2}")
    a(f"v_add_f32 v{Q}, v{Q}, v{Q2}")
    a("s_nop 1")
    for sh in (1, 2, 4, 8):
        a(f"v_add_f32_dpp v{S}, v{S}, v{S} row_shr:{sh} row_mask:0xf bank_mask:0xf bound_ctrl:0")
        a(f"v_add_f32_dpp v{Q}, v{Q}, v{Q} row_shr:{sh} row_mask:0xf bank_mask:0xf bound_ctrl:0")
        a("s_nop 0")
    a(f"""
    v_mul_f32 v{S}, {f32bits(1.0/640):#x}, v{S}
    v_mul_f32 v{Q}, {f32bits(1.0/640):#x}, v{Q}
    v_fma_f32 v{Q}, -v{S}, v{S}, v{Q}
    v_max_f32 v{Q}, 0, v{Q}
    v_add_f32 v{Q}, {f32bits(1e-5):#x}, v{Q}
    v_rsq_f32 v{Q}, v{Q}
    v_mov_b32 v{U}, v{S}
    v_lshlrev_b32 v{U+2}, 3, v{vA}
    v_mov_b32 v{U+3}, 0x7fffff00
    v_cmp_gt_u32 vcc, 2048, v{vA}
    v_mov_b32 v{U+1}, v{Q}
    v_cndmask_b32 v{U+2}, v{U+3}, v{U+2}, vcc
    s_mov_b32 s75, {WS_ST1}
    s_mov_b32 exec_lo, 0x80008000
    s_mov_b32 exec_hi, 0x80008000
    buffer_store_dwordx2 {vr(U,2)}, v{U+2}, s[{sWS}:{sWS+3}], s75 offen {SC}
    s_mov_b64 exec, -1
    """)
def idle_rows(a, sMt, hook=None):
    sXs, vR, vA = 8, 72, 4
    NP = 2 if E('P0L') else 4
    make_srd(a, sXs, pX, pX+1, 0, 2048*1280)
    a(f"""
    v_lshrrev_b32 v2, 4, v1
    v_and_b32 v3, 15, v1
    s_lshl_b32 s40, s{sMt}, 7
    s_lshl_b32 s41, s{sWV}, {3 if E('P0L') else 4}
    s_add_u32 s40, s40, s41
    v_add_u32 v{vA}, s40, v2
    v_mul_u32_u24 v{vA+1}, 1280, v{vA}
    v_lshlrev_b32 v{vA+2}, 4, v3
    v_add_u32 v{vA+1}, v{vA+1}, v{vA+2}
    """)
    for p in range(NP):
        a(f"s_mov_b32 s41, {p * 4 * 1280}")
        for j in range(5):
            a(f"buffer_load_dwordx4 {vr(vR + 20*p + 4*j, 4)}, v{vA+1}, s[{sXs}:{sXs+3}], s41 offen offset:{256*j}")
    S, Q, S2, Q2, U = vA + 4, vA + 5, vA + 6, vA + 7, vA + 8
    if hook: hook(-1)
    for p in range(NP):
        if hook and p > 0: hook(p - 1)
        a(f"s_waitcnt vmcnt({(NP - 1 - p) * 5 + p})")
        for n in range(20):
            r = vR + 20*p + n
            u = U + 2*(n & 1)
            a(f"v_lshlrev_b32 v{u}, 16, v{r}")
            a(f"v_and_b32 v{u+1}, 0xffff0000, v{r}")
            if n == 0:
                a(f"v_mov_b32 v{S}, v{u}")
                a(f"v_mul_f32 v{Q}, v{u}, v{u}")
                a(f"v_mov_b32 v{S2}, v{u+1}")
                a(f"v_mul_f32 v{Q2}, v{u+1}, v{u+1}")
            else:
                a(f"v_add_f32 v{S}, v{S}, v{u}")
                a(f"v_fmac_f32 v{Q}, v{u}, v{u}")
                a(f"v_add_f32 v{S2}, v{S2}, v{u+1}")
                a(f"v_fmac_f32 v{Q2}, v{u+1}, v{u+1}")
        a(f"v_add_f32 v{S}, v{S}, v{S2}")
        a(f"v_add_f32 v{Q}, v{Q}, v{Q2}")
        a("s_nop 1")
        for sh in (1, 2, 4, 8):
            a(f"v_add_f32_dpp v{S}, v{S}, v{S} row_shr:{sh} row_mask:0xf bank_mask:0xf bound_ctrl:0")
            a(f"v_add_f32_dpp v{Q}, v{Q}, v{Q} row_shr:{sh} row_mask:0xf bank_mask:0xf bound_ctrl:0")
            a("s_nop 0")
        a(f"""
        v_mul_f32 v{S}, {f32bits(1.0/640):#x}, v{S}
        v_mul_f32 v{Q}, {f32bits(1.0/640):#x}, v{Q}
        v_fma_f32 v{Q}, -v{S}, v{S}, v{Q}
        v_max_f32 v{Q}, 0, v{Q}
        v_add_f32 v{Q}, {f32bits(1e-5):#x}, v{Q}
        v_rsq_f32 v{Q}, v{Q}
        v_mov_b32 v{U+4}, v{S}
        v_add_u32 v{U+2}, {4*p}, v{vA}
        v_lshlrev_b32 v{U+2}, 3, v{U+2}
        v_mov_b32 v{U+5}, v{Q}
        s_mov_b32 s41, {WS_ST1}
        s_mov_b32 exec_lo, 0x80008000
        s_mov_b32 exec_hi, 0x80008000
        buffer_store_dwordx2 {vr(U+4,2)}, v{U+2}, s[{sWS}:{sWS+3}], s41 offen {SC}
        s_mov_b64 exec, -1
        s_nop 1
        """)

class P0L:
    vR, vA = 116, 136
    def __init__(self, a, L): self.a, self.L = a, L
    def issue(self):
        a, L = self.a, self.L
        vR, vA = self.vR, self.vA
        a(f"""
        v_lshrrev_b32 v{vA+2}, 4, v1
        v_and_b32 v{vA+3}, 15, v1
        s_lshl_b32 s75, s{L.sNt}, 4
        s_add_u32 s75, s75, s{L.sM0}
        s_add_u32 s75, s75, 64
        s_lshl_b32 s76, s{L.sLw}, 2
        s_add_u32 s75, s75, s76
        s_cmp_lt_u32 s{L.sNt}, 4
        s_cselect_b32 s75, s75, 4096
        v_add_u32 v{vA}, s75, v{vA+2}
        v_mul_u32_u24 v{vA+1}, 1280, v{vA}
        v_lshlrev_b32 v{vA+3}, 4, v{vA+3}
        v_add_u32 v{vA+1}, v{vA+1}, v{vA+3}
        """)
        for j in range(5):
            a(f"buffer_load_dwordx4 {vr(vR+4*j,4)}, v{vA+1}, s[{L.sA}:{L.sA+3}], 0 offen offset:{256*j}")
    def finish(self):
        a = self.a
        vR, vA = self.vR, self.vA
        S, Q, S2, Q2, U = vA + 4, vA + 5, vA + 6, vA + 7, vA + 8
        for n in range(20):
            r = vR + n
            u = U + 2*(n & 1)
            a(f"v_lshlrev_b32 v{u}, 16, v{r}")
            a(f"v_and_b32 v{u+1}, 0xffff0000, v{r}")
            if n == 0:
                a(f"v_mov_b32 v{S}, v{u}")
                a(f"v_mul_f32 v{Q}, v{u}, v{u}")
                a(f"v_mov_b32 v{S2}, v{u+1}")
                a(f"v_mul_f32 v{Q2}, v{u+1}, v{u+1}")
            else:
                a(f"v_add_f32 v{S}, v{S}, v{u}")
                a(f"v_fmac_f32 v{Q}, v{u}, v{u}")
                a(f"v_add_f32 v{S2}, v{S2}, v{u+1}")
                a(f"v_fmac_f32 v{Q2}, v{u+1}, v{u+1}")
        a(f"v_add_f32 v{S}, v{S}, v{S2}")
        a(f"v_add_f32 v{Q}, v{Q}, v{Q2}")
        a("s_nop 1")
        for sh in (1, 2, 4, 8):
            a(f"v_add_f32_dpp v{S}, v{S}, v{S} row_shr:{sh} row_mask:0xf bank_mask:0xf bound_ctrl:0")
            a(f"v_add_f32_dpp v{Q}, v{Q}, v{Q} row_shr:{sh} row_mask:0xf bank_mask:0xf bound_ctrl:0")
            a("s_nop 0")
        a(f"""
        v_mul_f32 v{S}, {f32bits(1.0/640):#x}, v{S}
        v_mul_f32 v{Q}, {f32bits(1.0/640):#x}, v{Q}
        v_fma_f32 v{Q}, -v{S}, v{S}, v{Q}
        v_max_f32 v{Q}, 0, v{Q}
        v_add_f32 v{Q}, {f32bits(1e-5):#x}, v{Q}
        v_rsq_f32 v{Q}, v{Q}
        v_mov_b32 v{U}, v{S}
        v_lshlrev_b32 v{U+2}, 3, v{vA}
        v_mov_b32 v{U+3}, 0x7fffff00
        v_cmp_gt_u32 vcc, 2048, v{vA}
        v_mov_b32 v{U+1}, v{Q}
        v_cndmask_b32 v{U+2}, v{U+3}, v{U+2}, vcc
        s_mov_b32 s75, {WS_ST1}
        s_mov_b32 exec_lo, 0x80008000
        s_mov_b32 exec_hi, 0x80008000
        buffer_store_dwordx2 {vr(U,2)}, v{U+2}, s[{sWS}:{sWS+3}], s75 offen {SC}
        s_mov_b64 exec, -1
        """)

def p0r_arrive(a, L, vt):
    ok, skip = a.newlabel("fok"), a.newlabel("fsk")
    dbg_flag_wait(a, vt, landed=True)
    a(f"s_cmp_lt_u32 s{L.sNt}, 4")
    a(f"s_cbranch_scc0 {skip}")
    a(f"s_lshr_b32 s76, s{L.sM0}, 7")
    a(f"s_add_u32 s76, s76, {C_ST}")
    arrive(a, 76, vt - 2)
    a.label(skip)

def qkv_prefetch(a, L):
    make_srd(a, 12, pWQ, pWQ+1, 0, 640*3840)
    make_srd(a, 8, pX, pX+1, 0, 2048*1280)
    fl = E('QPF_FL', 'sc1')
    a(f"""
    s_lshr_b32 s40, s2, 3
    s_and_b32 s41, s2, 1
    v_and_b32 v2, 15, v1
    v_lshrrev_b32 v3, 4, v1
    v_lshlrev_b32 v2, 7, v2
    v_mul_u32_u24 v3, 3840, v3
    v_add_u32 v4, v2, v3
    s_mul_i32 s42, s40, {20*3840}
    s_lshl_b32 s43, s41, 11
    s_add_u32 s42, s42, s43
    s_mul_i32 s43, s{sWV}, {4*3840}
    s_add_u32 s42, s42, s43
    buffer_load_dword v162, v4, s[12:15], s42 offen {fl}
    """)
    l = a.newlabel("qpf")
    a(f"""
    s_cmp_eq_u32 s{sWV}, 0
    s_cbranch_scc0 {l}
    s_add_u32 s42, s42, {16*3840}
    buffer_load_dword v162, v4, s[12:15], s42 offen {fl}
    """)
    a.label(l)
    l = a.newlabel("qpf")
    a(f"""
    s_cmp_eq_u32 s{sWV}, 0
    s_cbranch_scc1 {l}
    s_and_b32 s41, s2, 7
    s_lshr_b32 s41, s41, 1
    s_lshl_b32 s41, s41, 5
    s_add_u32 s41, s41, s40
    s_mul_i32 s42, s41, 20480
    s_sub_u32 s43, s{sWV}, 1
    s_lshl_b32 s43, s43, 13
    s_add_u32 s42, s42, s43
    v_lshlrev_b32 v4, 7, v1
    buffer_load_dword v162, v4, s[8:11], s42 offen {fl}
    """)
    a.label(l)

def p0q_arrive(a, L, vt):
    ok = a.newlabel("fok")
    a(f"v_readfirstlane_b32 s75, v{vt}")
    a("s_cmp_lg_u32 s75, 0")
    a(f"s_cbranch_scc1 {ok}")
    dbg_flag_wait(a, vt)
    a.label(ok)
    a(f"""
    s_lshr_b32 s75, s{L.sM0}, 7
    s_add_u32 s75, s75, {C_ST}
    s_add_u32 s76, s{L.sNt}, {C_CS1}
    s_add_u32 s77, s{L.sNt}, {C_CS2}
    v_mov_b32 v{vt-1}, s75
    v_writelane_b32 v{vt-1}, s76, 1
    v_writelane_b32 v{vt-1}, s77, 2
    s_nop 0
    v_lshlrev_b32 v{vt-1}, 7, v{vt-1}
    v_add_u32 v{vt-1}, {WS_CNT}, v{vt-1}
    v_mov_b32 v{vt-2}, 1
    s_cmp_lt_u32 s{L.sNt}, 8
    s_cselect_b32 s75, 1, 0
    s_or_b32 s75, s75, 2
    s_cmp_lt_u32 s{L.sNt}, 14
    s_cselect_b32 s76, 4, 0
    s_or_b32 s75, s75, s76
    s_mov_b32 exec_lo, s75
    s_mov_b32 exec_hi, 0
    buffer_atomic_add v{vt-2}, v{vt-1}, s[{sWS}:{sWS+3}], 0 offen sc1
    s_mov_b64 exec, -1
    """)

def w2p_prefetch(a, j):
    a(f"""
    s_mul_i32 s75, s{sRk}, {SZ_W2P // 32}
    s_add_u32 s75, s75, {WS_W2P + j * 8192}
    v_lshlrev_b32 v61, 7, v1
    buffer_load_dword v60, v61, s[{sWS}:{sWS+3}], s75 offen sc1
    """)

def w2_first_prefetch(a, c):
    NST = 14
    a(f"""
    s_and_b32 s75, s{sRk}, 3
    s_mul_i32 s75, s75, 3
    s_lshr_b32 s76, s{sRk}, 2
    s_lshl_b32 s77, s76, 1
    s_add_u32 s75, s75, s77
    s_cmp_ge_u32 s75, {NST}
    s_cselect_b32 s77, {NST}, 0
    s_sub_u32 s75, s75, s77
    s_cmp_ge_u32 s75, {NST}
    s_cselect_b32 s77, {NST}, 0
    s_sub_u32 s75, s75, s77
    s_mul_i32 s76, s76, {NST * 20480}
    s_add_u32 s76, s76, {WS_W2P}
    s_mul_i32 s77, s{c.sLw}, 5120
    s_add_u32 s76, s76, s77
    s_mul_i32 s77, s75, 20480
    s_add_u32 s77, s77, s76
    v_lshlrev_b32 v61, 7, v1
    s_mov_b32 exec_lo, -1
    s_mov_b32 exec_hi, 0xff
    buffer_load_dword v60, v61, s[{sWS}:{sWS+3}], s77 offen sc1
    s_add_u32 s75, s75, 1
    s_cmp_eq_u32 s75, {NST}
    s_cselect_b32 s75, 0, s75
    s_mul_i32 s77, s75, 20480
    s_add_u32 s77, s77, s76
    buffer_load_dword v60, v61, s[{sWS}:{sWS+3}], s77 offen sc1
    s_mov_b64 exec, -1
    """)

class Repack:
    aB, vD, vT = 28, 110, 88
    sWo, sW2, sW1 = 12, 16, 40
    def __init__(self, a): self.a = a
    def issue(self, defer=False):
        a = self.a
        aB, vD, T = self.aB, self.vD, self.vT
        a(f"""
        s_mul_i32 s75, s2, 768
        s_sub_u32 s76, s{sWV}, 4
        s_lshl_b32 s76, s76, 6
        s_add_u32 s75, s75, s76
        v_add_u32 v{T}, s75, v1
        """)
        for r in range(3):
            g, it, sg, rho, c, row, nt, st_, x = T+1, T+2, T+3, T+4, T+5, T+6, T+7, T+8, T+9
            a(f"""
            v_add_u32 v{g}, {256*r}, v{T}
            s_mov_b32 s75, {(1 << 32) // 1280 + 1:#x}
            v_mul_hi_u32 v{it}, v{g}, s75
            v_mul_u32_u24 v{sg}, 1280, v{it}
            v_sub_u32 v{sg}, v{g}, v{sg}
            v_mul_u32_u24 v{rho}, 0xcccd, v{sg}
            v_lshrrev_b32 v{rho}, 19, v{rho}
            v_mul_u32_u24 v{c}, 10, v{rho}
            v_sub_u32 v{c}, v{sg}, v{c}
            v_and_b32 v{row}, 0x73, v{rho}
            v_and_b32 v{x}, 4, v{rho}
            v_lshlrev_b32 v{x}, 1, v{x}
            v_or_b32 v{row}, v{row}, v{x}
            v_and_b32 v{x}, 8, v{rho}
            v_lshrrev_b32 v{x}, 1, v{x}
            v_or_b32 v{row}, v{row}, v{x}
            v_lshlrev_b32 v{vD+r}, 4, v{g}
            v_cmp_gt_u32 vcc, 40, v{it}
            v_subrev_u32 v{x}, 40, v{it}
            s_nop 0
            v_cndmask_b32 v{x}, v{x}, v{it}, vcc
            v_mul_u32_u24 v{nt}, 0x4925, v{x}
            v_mul_u32_u24 v{st_}, 0xcccd, v{x}
            v_cndmask_b32 v{nt}, v{nt}, v{st_}, vcc
            v_lshrrev_b32 v{nt}, 18, v{nt}
            v_mov_b32 v{st_}, 14
            v_cndmask_b32 v{st_}, v{st_}, 5, vcc
            v_mul_u32_u24 v{st_}, v{st_}, v{nt}
            v_sub_u32 v{st_}, v{x}, v{st_}
            v_lshlrev_b32 v{st_}, 7, v{st_}
            v_add_u32 v{row}, v{row}, v{st_}
            v_mul_u32_u24 v{row}, 1280, v{row}
            v_mul_u32_u24 v{nt}, 160, v{nt}
            v_lshlrev_b32 v{c}, 4, v{c}
            v_add3_u32 v{row}, v{row}, v{nt}, v{c}
            v_mov_b32 v{x}, 0x7fffff00
            v_cndmask_b32 v{nt}, v{x}, v{row}, vcc
            v_cndmask_b32 v{row}, v{row}, v{x}, vcc
            v_cmp_gt_u32 vcc, 152, v{it}
            s_nop 1
            v_cndmask_b32 v{vD+r}, v{x}, v{vD+r}, vcc
            """)
            a(f"v_mov_b32 v{100+2*r}, v{nt}")
            a(f"v_mov_b32 v{101+2*r}, v{row}")
            a(f"v_mov_b32 v{106+r}, v{it}")
        if defer: return
        self.loads()
    def loads(self, base=100, tmp=None):
        a = self.a
        aB, T = self.aB, (self.vT if tmp is None else tmp)
        if base != 100:
            for k in range(9): a(f"v_accvgpr_read_b32 v{base+k}, a{40+k}")
        self.sWo, self.sW2, self.sW1 = 8, 12, 8
        make_srd(a, self.sWo, pWO, pWO+1, 0, 640*1280)
        make_srd(a, self.sW2, pW2, pW2+1, 0, 1728*1280)
        for r in range(3):
            la, lb = a.newlabel("rpa"), a.newlabel("rpb")
            a(f"""
            v_cmp_gt_u32 vcc, 40, v{base+6+r}
            s_nop 4
            s_mov_b64 s[76:77], vcc
            s_mov_b64 exec, vcc
            s_cbranch_execz {la}
            buffer_load_dwordx4 {ar(aB+4*r,4)}, v{base+2*r}, s[{self.sWo}:{self.sWo+3}], 0 offen
            {la}:
            s_not_b64 exec, s[76:77]
            s_cbranch_execz {lb}
            buffer_load_dwordx4 {ar(aB+4*r,4)}, v{base+1+2*r}, s[{self.sW2}:{self.sW2+3}], 0 offen
            {lb}:
            s_mov_b64 exec, -1
            """)
        make_srd(a, self.sW1, pW1, pW1+1, 0, 640*3456)
        a(f"""
        s_mul_i32 s75, s2, 8640
        s_sub_u32 s76, s{sWV}, 4
        s_mul_i32 s76, s76, 2176
        s_add_u32 s75, s75, s76
        v_lshlrev_b32 v{T}, 7, v1
        s_mov_b64 exec, 0x1ffff
        buffer_load_dword v113, v{T}, s[{self.sW1}:{self.sW1+3}], s75 offen sc1
        s_mov_b64 exec, -1
        """)
    def save(self):
        a = self.a
        for r in range(3): a(f"v_accvgpr_write_b32 a{40+r}, v{self.vD+r}")
        for k in range(9): a(f"v_accvgpr_write_b32 a{43+k}, v{100+k}")
    def store(self, wait_after=True, pre="s_waitcnt vmcnt(0)"):
        a = self.a
        a(pre)
        a(f"s_mov_b32 s75, {WS_WOP}")
        for r in range(3):
            a(f"buffer_store_dwordx4 {ar(self.aB+4*r,4)}, v{self.vD+r}, s[{sWS}:{sWS+3}], s75 offen {SC}")
        if wait_after: a("s_waitcnt vmcnt(0)")
        else: a("s_nop 1")

class CoreL:
    sA, sW, sO = 8, 12, 16
    sM0, sN0, sT0, sT1, sT2, sT3 = 21, 22, 23, 24, 25, 26
    sLw, sSlot, sAoff, sWoff, sLds = 20, 28, 29, 30, 31
    sWm, sWn, sNt, sSeq, sSeqW = 32, 33, 34, 35, 36
    vAe, vAo, vWo = 4, 5, 6
    NST = 10
    def __init__(self, a, mode, tag):
        self.a, self.mode, self.tag = a, mode, tag
        self.qkv = mode == 'qkv'
        self.LDW = 3840 if self.qkv else 3456
    def map_tiles(self, idle_label):
        a, c = self.a, self
        if not c.qkv:
            a(f"""
            s_and_b32 s{c.sT3}, s{sRk}, 1
            s_lshl_b32 s{c.sM0}, s{sX}, 1
            s_add_u32 s{c.sM0}, s{c.sM0}, s{c.sT3}
            s_lshl_b32 s{c.sM0}, s{c.sM0}, 7
            s_lshr_b32 s{c.sNt}, s{sRk}, 1
            s_cmp_ge_u32 s{c.sNt}, 14
            s_cbranch_scc1 {idle_label}
            s_lshl_b32 s{c.sN0}, s{c.sNt}, 7
            s_mul_i32 s{c.sSeq}, s{c.sNt}, 3
            s_mul_i32 s{c.sT0}, s{c.sT3}, 5
            s_add_u32 s{c.sSeq}, s{c.sSeq}, s{c.sT0}
            s_mul_i32 s{c.sT0}, s{c.sSeq}, 0xcccd
            s_lshr_b32 s{c.sT0}, s{c.sT0}, 19
            s_mul_i32 s{c.sT0}, s{c.sT0}, 10
            s_sub_u32 s{c.sSeq}, s{c.sSeq}, s{c.sT0}
            """)
            if E('NOROTL'): a(f"s_mov_b32 s{c.sSeq}, 0")
            return
        NT_PER = 8 if c.qkv else 7
        NT_TOT = 15 if c.qkv else 14
        a(f"""
        s_and_b32 s{c.sT0}, s2, 7
        s_lshr_b32 s{c.sT1}, s2, 3
        s_lshr_b32 s{c.sT2}, s{c.sT0}, 1
        s_lshl_b32 s{c.sT2}, s{c.sT2}, 2
        s_and_b32 s{c.sT3}, s{c.sT1}, 3
        s_add_u32 s{c.sM0}, s{c.sT2}, s{c.sT3}
        s_lshl_b32 s{c.sM0}, s{c.sM0}, 7
        s_and_b32 s{c.sT0}, s{c.sT0}, 1
        s_mul_i32 s{c.sT0}, s{c.sT0}, {NT_PER}
        s_lshr_b32 s{c.sT1}, s{c.sT1}, 2
        s_add_u32 s{c.sNt}, s{c.sT0}, s{c.sT1}
        s_cmp_ge_u32 s{c.sT1}, {NT_PER}
        s_cbranch_scc1 {idle_label}
        s_cmp_ge_u32 s{c.sNt}, {NT_TOT}
        s_cbranch_scc1 {idle_label}
        s_lshl_b32 s{c.sN0}, s{c.sNt}, 7
        s_mul_i32 s{c.sSeq}, s{c.sT3}, 3
        s_add_u32 s{c.sSeq}, s{c.sSeq}, s{c.sT1}
        s_cmp_ge_u32 s{c.sSeq}, 10
        s_cselect_b32 s{c.sT0}, 10, 0
        s_sub_u32 s{c.sSeq}, s{c.sSeq}, s{c.sT0}
        """)
        if E('NOROTL'): a(f"s_mov_b32 s{c.sSeq}, 0")
    def loader_setup(self):
        a, c = self.a, self
        a(f"s_sub_u32 s{c.sLw}, s{sWV}, 4")
        if c.qkv:
            make_srd(a, c.sA, pX, pX+1, 0, 2048*1280)
            a(f"""
            v_lshrrev_b32 v2, 3, v1
            v_mul_u32_u24 v2, 1280, v2
            v_lshrrev_b32 v3, 4, v1
            v_and_b32 v7, 7, v1
            v_xor_b32 v3, v3, v7
            v_lshlrev_b32 v3, 4, v3
            v_add_u32 v{c.vAe}, v2, v3
            v_xor_b32 v{c.vAo}, 64, v{c.vAe}
            s_lshl_b32 s{c.sT0}, s{c.sLw}, 5
            s_add_u32 s{c.sT0}, s{c.sT0}, s{c.sM0}
            s_mul_i32 s{c.sAoff}, s{c.sT0}, 1280
            """)
            c.A_SSTEP = 128
        else:
            make_srd(a, c.sA, pWS, pWS+1, WS_H, SZ_ACT)
            a(f"""
            v_lshlrev_b32 v{c.vAe}, 4, v1
            v_add_u32 v{c.vAo}, 1024, v{c.vAe}
            s_lshl_b32 s{c.sT0}, s{c.sLw}, 16
            s_lshl_b32 s{c.sT1}, s{c.sM0}, 4
            s_add_u32 s{c.sAoff}, s{c.sT0}, s{c.sT1}
            """)
            c.A_SSTEP = 8 * 32768
        pw = pWQ if c.qkv else pW1
        make_srd(a, c.sW, pw, pw+1, 0, 640 * c.LDW)
        a(f"""
        v_lshrrev_b32 v2, 4, v1
        v_mul_u32_u24 v3, {c.LDW}, v2
        v_lshlrev_b32 v2, 2, v2
        v_and_b32 v7, 15, v1
        v_xor_b32 v2, v2, v7
        v_lshlrev_b32 v2, 4, v2
        v_add_u32 v{c.vWo}, v2, v3
        s_lshl_b32 s{c.sT0}, s{c.sLw}, 4
        s_mul_i32 s{c.sT0}, s{c.sT0}, {c.LDW}
        s_lshl_b32 s{c.sT1}, s{c.sN0}, 1
        s_add_u32 s{c.sWoff}, s{c.sT0}, s{c.sT1}
        s_lshl_b32 s{c.sLds}, s{c.sLw}, 12
        s_mul_i32 s{c.sT0}, s{c.sSeq}, {c.A_SSTEP}
        s_add_u32 s{c.sAoff}, s{c.sAoff}, s{c.sT0}
        s_mul_i32 s{c.sT0}, s{c.sSeq}, {64 * c.LDW}
        s_add_u32 s{c.sWoff}, s{c.sWoff}, s{c.sT0}
        s_mov_b32 s{c.sSeqW}, s{c.sSeq}
        """)
    def issue_A(self, seq):
        a, c = self.a, self
        slot = (seq % 4) * 32768
        for j in range(4):
            a(f"s_add_u32 m0, s{c.sLds}, {slot}" if j == 0 else "s_add_u32 m0, m0, 1024")
            if c.qkv:
                a(f"s_mov_b32 s{c.sT0}, s{c.sAoff}" if j == 0 else f"s_add_u32 s{c.sT0}, s{c.sT0}, {8*1280}")
            else:
                if j == 0: a(f"s_mov_b32 s{c.sT0}, s{c.sAoff}")
                elif j == 2: a(f"s_add_u32 s{c.sT0}, s{c.sT0}, 32768")
                else: a("s_nop 0")
            a(f"buffer_load_dwordx4 v{c.vAe if j % 2 == 0 else c.vAo}, s[{c.sA}:{c.sA+3}], s{c.sT0} offen {E('QNT_A','') if c.qkv else ''} lds")
        a(f"""
        s_add_u32 s{c.sSeq}, s{c.sSeq}, 1
        s_cmp_eq_u32 s{c.sSeq}, {c.NST}
        s_cselect_b32 s{c.sT0}, {c.NST * c.A_SSTEP}, 0
        s_cselect_b32 s{c.sSeq}, 0, s{c.sSeq}
        s_add_u32 s{c.sAoff}, s{c.sAoff}, {c.A_SSTEP}
        s_sub_u32 s{c.sAoff}, s{c.sAoff}, s{c.sT0}
        """)
    def issue_W(self, seq):
        a, c = self.a, self
        slot = (seq % 4) * 32768 + 16384
        for j in range(4):
            a(f"s_add_u32 m0, s{c.sLds}, {slot}" if j == 0 else "s_add_u32 m0, m0, 1024")
            a(f"s_mov_b32 s{c.sT0}, s{c.sWoff}" if j == 0 else f"s_add_u32 s{c.sT0}, s{c.sT0}, {4 * c.LDW}")
            a(f"buffer_load_dwordx4 v{c.vWo}, s[{c.sW}:{c.sW+3}], s{c.sT0} offen {E('QNT_W','') if c.qkv else ''} lds")
        a(f"""
        s_add_u32 s{c.sSeqW}, s{c.sSeqW}, 1
        s_cmp_eq_u32 s{c.sSeqW}, {c.NST}
        s_cselect_b32 s{c.sT0}, {c.NST * 64 * c.LDW}, 0
        s_cselect_b32 s{c.sSeqW}, 0, s{c.sSeqW}
        s_add_u32 s{c.sWoff}, s{c.sWoff}, {64 * c.LDW}
        s_sub_u32 s{c.sWoff}, s{c.sWoff}, s{c.sT0}
        """)
    vLs = 16
    vSx, vSq, vCs, vU = 48, 56, 64, 72
    vLs = 16
    def lstats_init(self): pass
    def lst_poll_issue(self):
        a, c = self.a, self
        v = c.vLs
        a(f"""
        s_add_u32 s{c.sT0}, s{c.sNt}, {C_CS1 if c.qkv else C_CS2}
        s_lshr_b32 s{c.sT1}, s{c.sM0}, 7
        s_add_u32 s{c.sT1}, s{c.sT1}, {C_ST}
        v_mov_b32 v{v}, s{c.sT0}
        v_writelane_b32 v{v}, s{c.sT1}, 1
        v_mov_b32 v{v+1}, 16
        v_writelane_b32 v{v+1}, {8 if c.qkv else 0}, 1
        v_lshlrev_b32 v{v}, 7, v{v}
        v_add_u32 v{v}, {WS_CNT}, v{v}
        s_mov_b64 exec, 3
        buffer_load_dword v{v+2}, v{v}, s[{sWS}:{sWS+3}], 0 offen sc1
        s_mov_b64 exec, -1
        """)
    def lst_check_issue(self, q):
        a, c = self.a, self
        v = c.vLs
        ok = a.newlabel("lok")
        a(f"""
        s_waitcnt vmcnt({q.need('poll')})
        s_mov_b64 exec, 3
        v_cmp_gt_u32 vcc, v{v+1}, v{v+2}
        s_nop 4
        s_cmp_eq_u64 vcc, 0
        s_cbranch_scc1 {ok}
        """)
        poll(a, v, v + 1, 2, v + 2)
        a.label(ok)
        a("s_mov_b64 exec, -1")
        ncol = 1920 if c.qkv else 1792
        d = v + 8
        a(f"""
        v_and_b32 v{v+4}, 31, v1
        v_lshlrev_b32 v{v+5}, 2, v{v+4}
        v_lshlrev_b32 v{v+4}, 3, v{v+4}
        s_lshl_b32 s{c.sT0}, s{c.sLw}, 5
        s_add_u32 s{c.sT1}, s{c.sT0}, s{c.sN0}
        s_lshl_b32 s{c.sT1}, s{c.sT1}, 2
        s_add_u32 s{c.sT1}, s{c.sT1}, {WS_CS1 if c.qkv else WS_CS2}
        s_mov_b32 exec_hi, 0
        """)
        for j in range(16):
            a(f"buffer_load_dword v{d+j}, v{v+5}, s[{sWS}:{sWS+3}], s{c.sT1} offen")
            if j < 15: a(f"s_add_u32 s{c.sT1}, s{c.sT1}, {ncol*4}")
        a(f"""
        s_mov_b32 exec_lo, 0
        s_mov_b32 exec_hi, -1
        s_add_u32 s{c.sT1}, s{c.sT0}, s{c.sM0}
        s_lshl_b32 s{c.sT1}, s{c.sT1}, 3
        s_add_u32 s{c.sT1}, s{c.sT1}, {WS_ST1 if c.qkv else WS_ST2}
        """)
        npart = 1 if c.qkv else 8
        for j in range(npart):
            a(f"buffer_load_dwordx2 {vr(d+16+2*j,2)}, v{v+4}, s[{sWS}:{sWS+3}], s{c.sT1} offen")
            if j < npart - 1: a(f"s_add_u32 s{c.sT1}, s{c.sT1}, {2048*8}")
        a("s_mov_b64 exec, -1")
        q.push("stats", 16 + npart)
    def lst_finish(self, q):
        a, c = self.a, self
        v = c.vLs
        d = v + 8
        a(f"s_waitcnt vmcnt({q.need('stats')})")
        for j in range(1, 16):
            a(f"v_add_f32 v{d}, v{d}, v{d+j}")
        S, Q = d + 16, d + 17
        if not c.qkv:
            for j in range(1, 8):
                a(f"v_add_f32 v{S}, v{S}, v{S+2*j}")
                a(f"v_add_f32 v{Q}, v{Q}, v{Q+2*j}")
            a(f"""
            v_mul_f32 v{S}, {f32bits(1.0/640):#x}, v{S}
            v_mul_f32 v{Q}, {f32bits(1.0/640):#x}, v{Q}
            v_fma_f32 v{Q}, -v{S}, v{S}, v{Q}
            v_max_f32 v{Q}, 0, v{Q}
            v_add_f32 v{Q}, {f32bits(1e-5):#x}, v{Q}
            v_rsq_f32 v{Q}, v{Q}
            """)
        a(f"""
        s_lshl_b32 s{c.sT0}, s{c.sLw}, 7
        s_add_u32 s{c.sT0}, s{c.sT0}, {STAT}
        v_add_u32 v{v+5}, s{c.sT0}, v{v+5}
        s_mov_b32 exec_hi, 0
        ds_write_b32 v{v+5}, v{d} offset:1024
        s_mov_b32 exec_lo, 0
        s_mov_b32 exec_hi, -1
        ds_write_b32 v{v+5}, v{S}
        ds_write_b32 v{v+5}, v{Q} offset:512
        s_mov_b64 exec, -1
        s_waitcnt lgkmcnt(0)
        """)
    def tq_poll_issue(self):
        a, c = self.a, self
        v = c.vLs
        a(f"""
        s_lshr_b32 s{c.sT1}, s{c.sM0}, 7
        s_add_u32 s{c.sT1}, s{c.sT1}, {C_ST}
        s_lshl_b32 s{c.sT1}, s{c.sT1}, 7
        s_add_u32 s{c.sT1}, s{c.sT1}, {WS_CNT}
        v_mov_b32 v{v}, s{c.sT1}
        v_mov_b32 v{v+1}, {5 if E('P0L') else 1}
        s_mov_b64 exec, 1
        buffer_load_dword v{v+2}, v{v}, s[{sWS}:{sWS+3}], 0 offen sc1
        s_mov_b64 exec, -1
        """)
    def tq_check_issue(self, q):
        a, c = self.a, self
        v = c.vLs
        ok = a.newlabel("lok")
        a(f"""
        s_waitcnt vmcnt({q.need('poll')})
        v_readfirstlane_b32 s{c.sT0}, v{v+2}
        s_cmp_ge_u32 s{c.sT0}, {5 if E('P0L') else 1}
        s_cbranch_scc1 {ok}
        """)
        poll(a, v, v + 1, 1, v + 2)
        a.label(ok)
        a(f"""
        v_and_b32 v{v+4}, 31, v1
        v_lshlrev_b32 v{v+5}, 2, v{v+4}
        v_lshlrev_b32 v{v+4}, 3, v{v+4}
        s_lshl_b32 s{c.sT0}, s{c.sLw}, 5
        s_add_u32 s{c.sT1}, s{c.sT0}, s{c.sM0}
        s_lshl_b32 s{c.sT1}, s{c.sT1}, 3
        s_add_u32 s{c.sT1}, s{c.sT1}, {WS_ST1}
        buffer_load_dwordx2 {vr(v+8,2)}, v{v+4}, s[{sWS}:{sWS+3}], s{c.sT1} offen
        """)
        q.push("stats", 1)
    def tq_finish(self, q):
        a, c = self.a, self
        v = c.vLs
        a(f"""
        s_waitcnt vmcnt({q.need('stats')})
        s_lshl_b32 s{c.sT0}, s{c.sLw}, 7
        s_add_u32 s{c.sT0}, s{c.sT0}, {STAT}
        v_add_u32 v{v+5}, s{c.sT0}, v{v+5}
        ds_write_b32 v{v+5}, v{v+8}
        ds_write_b32 v{v+5}, v{v+9} offset:512
        """)
    def tok_issue(self, q):
        a, c = self.a, self
        v = c.vLs
        d = v + 8
        a(f"""
        v_and_b32 v{v+4}, 31, v1
        v_lshlrev_b32 v{v+5}, 2, v{v+4}
        v_lshlrev_b32 v{v+4}, 3, v{v+4}
        s_lshl_b32 s{c.sT0}, s{c.sLw}, 5
        s_add_u32 s{c.sT1}, s{c.sT0}, s{c.sM0}
        s_lshl_b32 s{c.sT1}, s{c.sT1}, 3
        s_add_u32 s{c.sT1}, s{c.sT1}, {WS_ST2}
        s_mov_b32 exec_hi, 0
        """)
        for j in range(16):
            a(f"buffer_load_dwordx2 {vr(d+2*j,2)}, v{v+4}, s[{sWS}:{sWS+3}], s{c.sT1} offen")
            if j < 15: a(f"s_add_u32 s{c.sT1}, s{c.sT1}, {2048*8}")
        a("s_mov_b32 exec_hi, -1")
        q.push("stats", 16)
    def tok_finish(self, q):
        a, c = self.a, self
        v = c.vLs
        S, Q = v + 8, v + 9
        a(f"s_waitcnt vmcnt({q.need('stats')})")
        for j in range(1, 16):
            a(f"v_add_f32 v{S}, v{S}, v{S+2*j}")
            a(f"v_add_f32 v{Q}, v{Q}, v{Q+2*j}")
        a(f"""
        v_mul_f32 v{S}, {f32bits(1.0/640):#x}, v{S}
        v_mul_f32 v{Q}, {f32bits(1.0/640):#x}, v{Q}
        v_fma_f32 v{Q}, -v{S}, v{S}, v{Q}
        v_max_f32 v{Q}, 0, v{Q}
        v_add_f32 v{Q}, {f32bits(1e-5):#x}, v{Q}
        v_rsq_f32 v{Q}, v{Q}
        s_lshl_b32 s{c.sT0}, s{c.sLw}, 7
        s_add_u32 s{c.sT0}, s{c.sT0}, {STAT}
        v_add_u32 v{v+5}, s{c.sT0}, v{v+5}
        s_mov_b32 exec_hi, 0
        ds_write_b32 v{v+5}, v{S}
        ds_write_b32 v{v+5}, v{Q} offset:512
        s_mov_b32 exec_hi, -1
        """)
    def loader_main(self, q, p0=None):
        a, c = self.a, self
        for s_ in range(c.NST):
            tags = [f'A{s_}', f'W{s_}']
            if c.qkv and s_ == 4 and E('P0L'): tags.append('p0st')
            a(f"s_waitcnt vmcnt({q.need(*tags)}) lgkmcnt(0)")
            if getattr(c, 'ldstamps', False) and s_ in (0, 1, 2): st(a, 4 + s_)
            a("s_barrier")
            stx(a, f"{c.tag}l{s_}")
            if c.qkv:
                vd = 70
                if s_ == 0: wave_only(a, 4, lambda: a(f"buffer_load_dword v{vd}, v{vd+1}, s[44:47], 0 offen sc1"))
                if s_ == 4 and E('P0L'): wave_only(a, 4, lambda: p0r_arrive(a, c, vd))
                if s_ == 3: wave_only(a, 7, lambda: reg_step1(a, vd))
                if s_ == 5: wave_only(a, 7, lambda: reg_step2(a, vd))
                if s_ == 7: wave_only(a, 7, lambda: reg_step3(a, vd))
            if s_ + PD < c.NST and not (E('X_NODMA') and c.qkv):
                c.issue_A(s_ + PD); q.push(f"A{s_+PD}", 4)
                c.issue_W(s_ + PD); q.push(f"W{s_+PD}", 4)
            if c.qkv and s_ == 1 and E('P0L'):
                a(f"s_waitcnt vmcnt({q.need('p0l')})"); c.p0l.finish(); q.push('p0st', 1)
            if not c.qkv:
                if s_ == 7: c.tok_issue(q)
                if s_ == 8 and not E('NOPFW0'): w2_first_prefetch(a, c)
                if s_ == 9: c.tok_finish(q)
                if E('PFW2') and 0 <= s_ < 9:
                    wave_only(a, 4 + (s_ % 4), lambda: w2p_prefetch(a, s_))
            else:
                if s_ == 8 and getattr(c, 'hook7', None): c.hook7()
                if s_ == 6:
                    c.tq_poll_issue(); q.push("poll", 1)
                if s_ == 7: c.tq_check_issue(q)
                if s_ == 9: c.tq_finish(q)

    vAd, vX, vW, vAcc, vT, vSt = 24, 32, 32, 64, 128, 144
    def compute_setup(self):
        a, c = self.a, self
        NXA = 8 if c.qkv else 2
        c.NXA = NXA
        c.vXa = 4
        c.vWa = c.vXa + 2 * NXA
        vXa, vWa, vT = c.vXa, c.vWa, c.vT
        t0, t1 = vT, vT + 1
        a(f"""
        s_lshr_b32 s{c.sWm}, s{sWV}, 1
        s_and_b32 s{c.sWn}, s{sWV}, 1
        v_and_b32 v2, 31, v1
        v_lshrrev_b32 v3, 5, v1
        """)
        if c.qkv:
            a(f"""
            v_lshrrev_b32 v{t0}, 1, v1
            v_and_b32 v{t0}, 7, v{t0}
            v_xor_b32 v{t0}, v{t0}, v3
            v_lshlrev_b32 v{t0}, 4, v{t0}
            v_lshlrev_b32 v{t1}, 7, v2
            v_add_u32 v{t0}, v{t0}, v{t1}
            s_lshl_b32 s{c.sT0}, s{c.sWm}, 13
            s_lshl_b32 s{c.sT1}, s{c.sWn}, 12
            s_add_u32 s{c.sT0}, s{c.sT0}, s{c.sT1}
            v_add_u32 v{t0}, s{c.sT0}, v{t0}
            """)
            for s in range(4):
                a(f"v_xor_b32 v{vXa + s}, {32 * s}, v{t0}")
                a(f"v_xor_b32 v{vXa + 4 + s}, 4096, v{vXa + s}")
        else:
            a(f"""
            v_lshlrev_b32 v{t0}, 11, v3
            v_lshlrev_b32 v{t1}, 4, v2
            v_add_u32 v{t0}, v{t0}, v{t1}
            s_lshl_b32 s{c.sT0}, s{c.sWm}, 10
            v_add_u32 v{vXa}, s{c.sT0}, v{t0}
            v_add_u32 v{vXa + 1}, 512, v{vXa}
            """)
        for i in range(NXA):
            a(f"v_add_u32 v{vXa + NXA + i}, 65536, v{vXa + i}")
        a(f"""
        v_lshrrev_b32 v{t0}, 2, v1
        v_and_b32 v{t0}, 3, v{t0}
        v_lshlrev_b32 v{t1}, 3, v3
        v_add_u32 v{t1}, v{t1}, v{t0}
        v_lshlrev_b32 v{t1}, 8, v{t1}
        v_lshlrev_b32 v{t0}, 6, v{t0}
        v_add_u32 v{t1}, v{t1}, v{t0}
        v_lshrrev_b32 v{t0}, 4, v1
        v_and_b32 v{t0}, 1, v{t0}
        v_lshlrev_b32 v{t0}, 5, v{t0}
        v_add_u32 v{t1}, v{t1}, v{t0}
        v_lshrrev_b32 v{t0}, 1, v1
        v_and_b32 v{t0}, 1, v{t0}
        v_lshlrev_b32 v{t0}, 4, v{t0}
        v_add_u32 v{t1}, v{t1}, v{t0}
        v_and_b32 v{t0}, 1, v1
        v_lshlrev_b32 v{t0}, 3, v{t0}
        v_add_u32 v{t1}, v{t1}, v{t0}
        v_add_u32 v{t1}, 16384, v{t1}
        s_lshl_b32 s{c.sT0}, s{c.sWn}, 7
        s_lshl_b32 s{c.sT1}, s{c.sWm}, 6
        s_add_u32 s{c.sT0}, s{c.sT0}, s{c.sT1}
        v_xor_b32 v{vWa}, s{c.sT0}, v{t1}
        v_xor_b32 v{vWa + 1}, 64, v{vWa}
        v_add_u32 v{vWa + 2}, 65536, v{vWa}
        v_add_u32 v{vWa + 3}, 65536, v{vWa + 1}
        """)
    def addr_qk(self):
        a, c = self.a, self
        vT, vAd = c.vT, c.vAd
        t0, t1 = vT, vT + 1
        a(f"""
        s_cmp_lt_u32 s{c.sNt}, 5
        s_cselect_b32 s{c.sT0}, 0, 640
        s_sub_u32 s{c.sT2}, s{c.sN0}, s{c.sT0}
        s_lshl_b32 s{c.sT1}, s{c.sWn}, 6
        s_add_u32 s{c.sT2}, s{c.sT2}, s{c.sT1}
        s_lshr_b32 s{c.sT2}, s{c.sT2}, 3
        v_add_u32 v{t0}, s{c.sT2}, v3
        v_lshlrev_b32 v{vT+4}, 4, v2
        """)
        for ft in range(2):
            for j in range(2):
                d = vAd + ft*2 + j
                a(f"""
                s_xor_b32 s{c.sT3}, s{c.sWm}, {ft}
                s_lshl_b32 s{c.sT3}, s{c.sT3}, 2
                s_add_u32 s{c.sT3}, s{c.sT3}, {2*j}
                v_add_u32 v{t1}, s{c.sT3}, v{t0}
                v_mul_u32_u24 v{vT+2}, 0xcccd, v{t1}
                v_lshrrev_b32 v{vT+2}, 18, v{vT+2}
                v_mul_u32_u24 v{vT+3}, 5, v{vT+2}
                v_sub_u32 v{vT+3}, v{t1}, v{vT+3}
                v_lshlrev_b32 v{vT+3}, 9, v{vT+3}
                v_mul_u32_u24 v{vT+2}, 0x28000, v{vT+2}
                v_add3_u32 v{d}, v{vT+2}, v{vT+3}, v{vT+4}
                """)
        a(f"""
        s_lshr_b32 s{c.sT0}, s{c.sM0}, 5
        s_lshl_b32 s{c.sT1}, s{c.sWm}, 1
        s_add_u32 s{c.sT0}, s{c.sT0}, s{c.sT1}
        s_add_u32 s{c.sT1}, s{c.sT0}, s{c.sWn}
        s_mul_i32 s40, s{c.sT1}, 2560
        s_xor_b32 s{c.sT1}, s{c.sWn}, 1
        s_add_u32 s{c.sT1}, s{c.sT0}, s{c.sT1}
        s_mul_i32 s41, s{c.sT1}, 2560
        s_cmp_lt_u32 s{c.sNt}, 5
        s_cselect_b32 s{c.sT0}, {WS_Q}, {WS_K}
        s_add_u32 s{c.sO}, s{pWS}, s{c.sT0}
        s_addc_u32 s{c.sO+1}, s{pWS+1}, 0
        s_and_b32 s{c.sO+1}, s{c.sO+1}, 0xffff
        s_mov_b32 s{c.sO+2}, {SZ_QK}
        s_mov_b32 s{c.sO+3}, 0x20000
        """)
    def addr_f(self):
        a, c = self.a, self
        vT, vAd = c.vT, c.vAd
        t0, t1 = vT, vT + 1
        a(f"""
        s_lshl_b32 s{c.sT1}, s{c.sWn}, 6
        s_add_u32 s{c.sT2}, s{c.sN0}, s{c.sT1}
        s_lshr_b32 s{c.sT2}, s{c.sT2}, 3
        v_add_u32 v{t0}, s{c.sT2}, v3
        v_lshlrev_b32 v{t0}, 15, v{t0}
        v_lshlrev_b32 v{t1}, 4, v2
        v_add_u32 v{t0}, v{t0}, v{t1}
        """)
        for ft in range(2):
            for j in range(2):
                a(f"s_xor_b32 s{c.sT3}, s{c.sWm}, {ft}")
                a(f"s_lshl_b32 s{c.sT3}, s{c.sT3}, 2")
                a(f"s_add_u32 s{c.sT3}, s{c.sT3}, {2*j}")
                a(f"s_lshl_b32 s{c.sT3}, s{c.sT3}, 15")
                a(f"v_add_u32 v{vAd + ft*2 + j}, s{c.sT3}, v{t0}")
        a(f"""
        s_lshl_b32 s{c.sT1}, s{c.sWm}, 6
        s_add_u32 s{c.sT0}, s{c.sM0}, s{c.sT1}
        s_lshl_b32 s40, s{c.sT0}, 4
        s_add_u32 s41, s40, 512
        """)
        make_srd(a, c.sO, pWS, pWS+1, WS_F, SZ_F)
    def addr_v(self):
        a, c = self.a, self
        vT, vAd = c.vT, c.vAd
        t0, t1 = vT, vT + 1
        for ft in range(2):
            a(f"""
            s_lshl_b32 s{c.sT1}, s{c.sWn}, 6
            s_add_u32 s{c.sT0}, s{c.sN0}, s{c.sT1}
            s_xor_b32 s{c.sT1}, s{c.sWm}, {ft}
            s_lshl_b32 s{c.sT1}, s{c.sT1}, 5
            s_add_u32 s{c.sT0}, s{c.sT0}, s{c.sT1}
            s_sub_u32 s{c.sT0}, s{c.sT0}, 1280
            v_add_u32 v{t0}, s{c.sT0}, v2
            v_mul_u32_u24 v{t1}, 0xcccd, v{t0}
            v_lshrrev_b32 v{t1}, 20, v{t1}
            v_mul_u32_u24 v{vT+2}, 20, v{t1}
            v_sub_u32 v{t0}, v{t0}, v{vT+2}
            v_lshlrev_b32 v{t0}, 4, v{t0}
            v_mul_u32_u24 v{t1}, 0x14000, v{t1}
            v_add_u32 v{t0}, v{t0}, v{t1}
            v_mul_u32_u24 v{t1}, 320, v3
            v_add_u32 v{vAd+ft}, v{t0}, v{t1}
            """)
        a(f"""
        s_lshl_b32 s{c.sT1}, s{c.sWm}, 6
        s_add_u32 s{c.sT0}, s{c.sM0}, s{c.sT1}
        s_lshr_b32 s{c.sT0}, s{c.sT0}, 4
        s_lshl_b32 s{c.sT1}, s{c.sWn}, 1
        s_add_u32 s{c.sT1}, s{c.sT1}, s{c.sT0}
        s_mul_i32 s40, s{c.sT1}, 640
        s_add_u32 s41, s40, 640
        s_xor_b32 s{c.sT1}, s{c.sWn}, 1
        s_lshl_b32 s{c.sT1}, s{c.sT1}, 1
        s_add_u32 s{c.sT1}, s{c.sT1}, s{c.sT0}
        s_mul_i32 s42, s{c.sT1}, 640
        s_add_u32 s43, s42, 640
        """)
        make_srd(a, c.sO, pWS, pWS+1, WS_V, SZ_QKV)
    def stats_poll_issue(self):
        a, c = self.a, self
        vS = c.vSt
        a(f"""
        v_lshlrev_b32 v{vS+30}, 7, v1
        v_add_u32 v{vS+30}, {WS_CNT + (C_P0 if c.qkv else C_W1)*128}, v{vS+30}
        s_mov_b64 exec, 0xff
        buffer_load_dword v{vS+29}, v{vS+30}, s[{sWS}:{sWS+3}], 0 offen sc1
        s_mov_b64 exec, -1
        """)
    def stats_poll_check(self):
        a, c = self.a, self
        vS = c.vSt
        ok = a.newlabel("stok")
        a(f"""
        s_waitcnt vmcnt(0)
        s_mov_b64 exec, 0xff
        v_cmp_gt_u32 vcc, 128, v{vS+29}
        s_nop 4
        s_cmp_eq_u64 vcc, 0
        s_cbranch_scc1 {ok}
        v_mov_b32 v{vS+28}, 128
        """)
        poll(a, vS + 30, vS + 28, 8, vS + 29)
        a.label(ok)
        a("s_mov_b64 exec, -1")
        a("s_nop 3")
    def stats_issue(self):
        a, c = self.a, self
        vS = c.vSt
        a(f"""
        v_lshlrev_b32 v{vS+31}, 2, v2
        v_lshlrev_b32 v{vS+30}, 3, v2
        s_lshl_b32 s{c.sT0}, s{sWV}, 5
        s_add_u32 s{c.sT1}, s{c.sT0}, s{c.sM0}
        s_lshl_b32 s{c.sT1}, s{c.sT1}, 3
        s_add_u32 s{c.sT1}, s{c.sT1}, {WS_ST2}
        """)
        for j in range(8):
            a(f"buffer_load_dwordx2 {vr(vS+8+2*j,2)}, v{vS+30}, s[{sWS}:{sWS+3}], s{c.sT1} offen")
            if j < 7: a(f"s_add_u32 s{c.sT1}, s{c.sT1}, {2048*8}")
    def stats_finish(self):
        a, c = self.a, self
        vS = c.vSt
        a("s_waitcnt vmcnt(0)")
        S, Q = vS + 8, vS + 9
        for j in range(1, 8):
            a(f"v_add_f32 v{S}, v{S}, v{S+2*j}")
            a(f"v_add_f32 v{Q}, v{Q}, v{Q+2*j}")
        a(f"""
        v_mul_f32 v{S}, {f32bits(1.0/640):#x}, v{S}
        v_mul_f32 v{Q}, {f32bits(1.0/640):#x}, v{Q}
        v_fma_f32 v{Q}, -v{S}, v{S}, v{Q}
        v_max_f32 v{Q}, 0, v{Q}
        v_add_f32 v{Q}, {f32bits(1e-5):#x}, v{Q}
        v_rsq_f32 v{Q}, v{Q}
        s_lshl_b32 s{c.sT0}, s{sWV}, 7
        s_add_u32 s{c.sT0}, s{c.sT0}, {STAT}
        v_add_u32 v{vS+31}, s{c.sT0}, v{vS+31}
        ds_write_b32 v{vS+31}, v{S}
        ds_write_b32 v{vS+31}, v{Q} offset:512
        """)
    aX = 4
    def read_list(self, i):
        c = self
        st_, step, buf = i // 4, i % 4, i % 3
        slot = st_ % 4
        win, base = slot >> 1, (slot & 1) * 32768
        L = []
        for lt in range(2):
            if c.qkv:
                L.append(f"ds_read_b128 {ar(c.aX + buf*8 + lt*4, 4)}, v{c.vXa + win*8 + lt*4 + step} offset:{base}")
            else:
                L.append(f"ds_read_b128 {ar(c.aX + buf*8 + lt*4, 4)}, v{c.vXa + win*2 + lt} offset:{base + step*4096}")
        for lf in range(2):
            for h2 in range(2):
                L.append(f"ds_read_b64_tr_b16 {vr(c.vW + buf*8 + lf*4 + h2*2, 2)}, v{c.vWa + win*2 + lf} offset:{base + step*4096 + h2*1024}")
        return L
    def reads(self, i):
        for r in self.read_list(i): self.a(r)
    def mfma(self, i, k, orientY):
        a, c = self.a, self
        buf = i % 3
        lf, lt = k >> 1, k & 1
        acc = c.vAcc + (lf*2 + lt) * 16
        xa, wa = ar(c.aX + buf*8 + lt*4, 4), vr(c.vW + buf*8 + lf*4, 4)
        cc = "0" if i == 0 else vr(acc, 16)
        if orientY: a(f"v_mfma_f32_32x32x16_bf16 {vr(acc,16)}, {wa}, {xa}, {cc}")
        else: a(f"v_mfma_f32_32x32x16_bf16 {vr(acc,16)}, {xa}, {wa}, {cc}")
    def mainloop(self, orientY, stamp0=None, tag='q'):
        a, c = self.a, self
        vS = c.vSt
        CS = vS
        UU = c.vT
        a(f"v_mov_b32 v{CS}, 0")
        a(f"v_mov_b32 v{CS+1}, 0")
        a("s_barrier")
        if stamp0 is not None: st(a, stamp0)
        stx(a, tag + '_s0')
        c.reads(0)
        c.reads(1)
        for i in range(40):
            buf = i % 3
            Wl = c.vW + buf*8
            ops = []
            for r in range(4):
                u = UU + 2*(r & 1)
                ops += [f"v_lshlrev_b32 v{u}, 16, v{Wl+r}", f"v_and_b32 v{u+1}, 0xffff0000, v{Wl+r}",
                        f"v_add_f32 v{CS}, v{CS}, v{u}", f"v_add_f32 v{CS+1}, v{CS+1}, v{u+1}"]
            if E('X_NOVALU'): ops = []
            rl = c.read_list(i + 2) if i + 2 < 40 else []
            if i == 4: stx(a, tag + '_s1')
            if i == 20: stx(a, tag + '_s5')
            a(f"s_waitcnt lgkmcnt({6 if i + 1 < 40 else 0})")
            c.mfma(i, 0, orientY)
            if i + 2 < 40 and (i + 2) % 4 == 0:
                a("s_barrier")
            for o in rl[0:2] + ops[0:3]: a(o)
            c.mfma(i, 1, orientY)
            for o in rl[2:4] + ops[3:6]: a(o)
            if c.qkv and i == int(E('TLBI', '2')) and E('TLB'): wave_only(a, 3, lambda: tlb_warm(a))
            c.mfma(i, 2, orientY)
            for o in rl[4:6] + ops[6:10]: a(o)
            c.mfma(i, 3, orientY)
            for o in ops[10:16]: a(o)
        U = vS + 14
        a(f"""
        v_add_f32 v{CS}, v{CS}, v{CS+1}
        s_nop 0
        v_mov_b32 v{CS+1}, v{CS}
        s_nop 1
        v_permlane32_swap_b32 v{CS}, v{CS+1}
        s_nop 1
        v_add_f32 v{CS}, v{CS}, v{CS+1}
        """)
        a(f"""
        s_lshl_b32 s{c.sT0}, s{c.sWn}, 8
        s_lshl_b32 s{c.sT1}, s{c.sWm}, 7
        s_add_u32 s{c.sT0}, s{c.sT0}, s{c.sT1}
        s_add_u32 s{c.sT0}, s{c.sT0}, {STAT + 1024}
        v_lshlrev_b32 v{U}, 2, v2
        v_add_u32 v{U+1}, s{c.sT0}, v{U}
        ds_write_b32 v{U+1}, v{CS}
        """)
        a("s_waitcnt lgkmcnt(0)")
    def dbg_issue(self):
        a, c = self.a, self
        make_srd(a, 44, pDBG, pDBG+1, 0, 256)
        a(f"v_lshlrev_b32 v{c.vSt+27}, 2, v1")
        a("s_mov_b64 exec, 0x1ff")
        a(f"buffer_load_dword v{c.vSt+26}, v{c.vSt+27}, s[44:47], 0 offen sc1")
        a("s_mov_b64 exec, -1")
        a("s_nop 1")
    def epilogue_Y(self, kind):
        a, c = self.a, self
        vT, vAcc, vAd = c.vT, c.vAcc, c.vAd
        vM, vR, vC = vT, vT + 2, 32
        for lt in range(2):
            a(f"""
            s_lshl_b32 s{c.sT1}, s{c.sWm}, 8
            s_add_u32 s{c.sT0}, s{c.sT1}, {STAT + (0 if c.qkv else lt*128)}
            s_xor_b32 s{c.sT1}, s{c.sWn}, {lt}
            s_lshl_b32 s{c.sT1}, s{c.sT1}, {7 if c.qkv else 31}
            s_add_u32 s{c.sT0}, s{c.sT0}, {'s%d' % c.sT1 if c.qkv else 0}
            v_lshlrev_b32 v{vT+4}, 2, v2
            v_add_u32 v{vT+4}, s{c.sT0}, v{vT+4}
            ds_read_b32 v{vM + lt}, v{vT+4}
            ds_read_b32 v{vR + lt}, v{vT+4} offset:512
            """)
        for lf in range(2):
            a(f"""
            s_lshl_b32 s{c.sT1}, s{c.sWn}, 8
            s_add_u32 s{c.sT0}, s{c.sT1}, {STAT + 1024}
            s_xor_b32 s{c.sT1}, s{c.sWm}, {lf}
            s_lshl_b32 s{c.sT1}, s{c.sT1}, 7
            s_add_u32 s{c.sT0}, s{c.sT0}, s{c.sT1}
            v_lshlrev_b32 v{vT+4}, 4, v3
            v_add_u32 v{vT+4}, s{c.sT0}, v{vT+4}
            """)
            for q in range(4):
                a(f"ds_read_b128 {vr(vC + lf*16 + q*4, 4)}, v{vT+4} offset:{q*32}")
        a("s_waitcnt lgkmcnt(0)")
        if kind == 'qk':
            a(f"""
            s_cmp_lt_u32 s{c.sNt}, 5
            s_cselect_b32 s{c.sT0}, {f32bits(QSCALE):#x}, 1.0
            v_mul_f32 v{vR}, s{c.sT0}, v{vR}
            v_mul_f32 v{vR+1}, s{c.sT0}, v{vR+1}
            """)
        B = c.vSt + 2
        for lt in range(2):
            a(f"v_mov_b32 v{B + 2*lt}, v{vM + lt}")
            a(f"v_mov_b32 v{B + 2*lt + 1}, v{vM + lt}")
            a(f"v_mov_b32 v{B + 4 + 2*lt}, v{vR + lt}")
            a(f"v_mov_b32 v{B + 4 + 2*lt + 1}, v{vR + lt}")
        vP = vT + 8
        n = 0
        for lf in range(2):
            for lt in range(2):
                acc = vAcc + (lf*2 + lt) * 16
                for r in range(0, 16, 2):
                    a(f"v_pk_fma_f32 {vr(acc + r, 2)}, {vr(B + 2*lt, 2)}, {vr(vC + lf*16 + r, 2)}, {vr(acc + r, 2)} neg_lo:[1,0,0] neg_hi:[1,0,0]")
                for r in range(0, 16, 2):
                    a(f"v_pk_mul_f32 {vr(acc + r, 2)}, {vr(acc + r, 2)}, {vr(B + 4 + 2*lt, 2)}")
                for j in range(2):
                    p = vP + (n & 1) * 4
                    n += 1
                    q0 = acc + j*8
                    for k in range(4):
                        a(f"v_cvt_pk_bf16_f32 v{p+k}, v{q0+2*k}, v{q0+2*k+1}")
                    if kind == 'ffn1':
                        for k in range(4):
                            a(f"v_pk_max_i16 v{p+k}, v{p+k}, 0")
                    else:
                        a("s_nop 0")
                    a("s_nop 0")
                    if kind == 'ffn1': a("s_nop 0")
                    a(f"v_permlane32_swap_b32 v{p}, v{p+2}")
                    a(f"v_permlane32_swap_b32 v{p+1}, v{p+3}")
                    ins = f"buffer_store_dwordx4 {vr(p,4)}, v{vAd + lf*2 + j}, s[{c.sO}:{c.sO+3}], s{40 + lt} offen @SC"
                    if kind == 'ffn1': dual(a, [ins])
                    else: a(ins.replace("@SC", SC))
    def epilogue_X(self):
        a, c = self.a, self
        vT, vAcc, vAd = c.vT, c.vAcc, c.vAd
        vC, vM, vR = vT, 32, 48
        for lf in range(2):
            a(f"""
            s_lshl_b32 s{c.sT1}, s{c.sWn}, 8
            s_add_u32 s{c.sT0}, s{c.sT1}, {STAT + 1024}
            s_xor_b32 s{c.sT1}, s{c.sWm}, {lf}
            s_lshl_b32 s{c.sT1}, s{c.sT1}, 7
            s_add_u32 s{c.sT0}, s{c.sT0}, s{c.sT1}
            v_lshlrev_b32 v{vT+4}, 2, v2
            v_add_u32 v{vT+4}, s{c.sT0}, v{vT+4}
            ds_read_b32 v{vC + lf}, v{vT+4}
            """)
        vP = vT + 8
        n = 0
        for lt in range(2):
            a(f"""
            s_lshl_b32 s{c.sT1}, s{c.sWm}, 8
            s_add_u32 s{c.sT0}, s{c.sT1}, {STAT}
            s_xor_b32 s{c.sT1}, s{c.sWn}, {lt}
            s_lshl_b32 s{c.sT1}, s{c.sT1}, 7
            s_add_u32 s{c.sT0}, s{c.sT0}, s{c.sT1}
            v_lshlrev_b32 v{vT+4}, 4, v3
            v_add_u32 v{vT+4}, s{c.sT0}, v{vT+4}
            """)
            for q in range(4):
                a(f"ds_read_b128 {vr(vM + q*4, 4)}, v{vT+4} offset:{q*32}")
                a(f"ds_read_b128 {vr(vR + q*4, 4)}, v{vT+4} offset:{512 + q*32}")
            a("s_waitcnt lgkmcnt(0)")
            B = c.vSt + 2
            if lt == 0:
                for lf in range(2):
                    a(f"v_mov_b32 v{B + 2*lf}, v{vC + lf}")
                    a(f"v_mov_b32 v{B + 2*lf + 1}, v{vC + lf}")
            for lf in range(2):
                acc = vAcc + (lf*2 + lt) * 16
                for r in range(0, 16, 2):
                    a(f"v_pk_fma_f32 {vr(acc + r, 2)}, {vr(vM + r, 2)}, {vr(B + 2*lf, 2)}, {vr(acc + r, 2)} neg_lo:[1,0,0] neg_hi:[1,0,0]")
                for r in range(0, 16, 2):
                    a(f"v_pk_mul_f32 {vr(acc + r, 2)}, {vr(acc + r, 2)}, {vr(vR + r, 2)}")
                for g in range(2):
                    p = vP + (n & 1) * 4
                    n += 1
                    for r in range(4):
                        a(f"v_cvt_pk_bf16_f32 v{p + r}, v{acc + g*8 + 2*r}, v{acc + g*8 + 2*r + 1}")
                    a(f"buffer_store_dwordx4 {vr(p,4)}, v{vAd + lf}, s[{c.sO}:{c.sO+3}], s{40 + lt*2 + g} offen {SC}")

STG = 36864
class CoreS:
    sA, sO, sR = 8, 16, 40
    sM0, sN0, sT0, sT1, sT2, sNt = 21, 22, 23, 24, 25, 26
    sLw, sAoff, sWoff, sLdsA, sLdsW, sSeq, sSeqW = 20, 29, 30, 31, 32, 33, 34
    vA = 4
    vXa2, vWa2 = 116, 117
    def __init__(self, a, mode):
        self.a, self.mode = a, mode
        self.op = mode == 'oproj'
        self.NST = 5 if self.op else 14
    def map_tiles(self):
        a, c = self.a, self
        NST = c.NST
        a(f"""
        s_and_b32 s{c.sT0}, s{sRk}, 3
        s_lshl_b32 s{c.sM0}, s{sX}, 2
        s_add_u32 s{c.sM0}, s{c.sM0}, s{c.sT0}
        s_lshl_b32 s{c.sM0}, s{c.sM0}, 6
        s_lshr_b32 s{c.sNt}, s{sRk}, 2
        s_mul_i32 s{c.sN0}, s{c.sNt}, 80
        s_mul_i32 s{c.sSeq}, s{c.sT0}, {1 if c.op else 3}
        s_mul_i32 s{c.sT1}, s{c.sNt}, {1 if c.op else 2}
        s_add_u32 s{c.sSeq}, s{c.sSeq}, s{c.sT1}
        s_cmp_ge_u32 s{c.sSeq}, {NST}
        s_cselect_b32 s{c.sT1}, {NST}, 0
        s_sub_u32 s{c.sSeq}, s{c.sSeq}, s{c.sT1}
        s_cmp_ge_u32 s{c.sSeq}, {NST}
        s_cselect_b32 s{c.sT1}, {NST}, 0
        s_sub_u32 s{c.sSeq}, s{c.sSeq}, s{c.sT1}
        """)
        if E('NOROTS'): a(f"s_mov_b32 s{c.sSeq}, 0")
    def loader_setup(self):
        a, c = self.a, self
        if c.op: make_srd(a, c.sA, pWS, pWS+1, WS_O, SZ_ACT)
        else: make_srd(a, c.sA, pWS, pWS+1, WS_F, SZ_F)
        a(f"""
        s_sub_u32 s{c.sLw}, s{sWV}, 4
        v_lshlrev_b32 v{c.vA}, 4, v1
        s_lshl_b32 s{c.sT0}, s{c.sLw}, 17
        s_lshl_b32 s{c.sT1}, s{c.sM0}, 4
        s_add_u32 s{c.sAoff}, s{c.sT0}, s{c.sT1}
        s_mul_i32 s{c.sT0}, s{c.sLw}, 5120
        s_mul_i32 s{c.sT1}, s{c.sNt}, {c.NST * 20480}
        s_add_u32 s{c.sWoff}, s{c.sT0}, s{c.sT1}
        s_add_u32 s{c.sWoff}, s{c.sWoff}, {WS_WOP if c.op else WS_W2P}
        s_lshl_b32 s{c.sLdsA}, s{c.sLw}, 12
        s_add_u32 s{c.sLdsW}, s{c.sT0}, 16384
        s_mul_i32 s{c.sT0}, s{c.sSeq}, {16 * 32768}
        s_add_u32 s{c.sAoff}, s{c.sAoff}, s{c.sT0}
        s_mul_i32 s{c.sT0}, s{c.sSeq}, 20480
        s_add_u32 s{c.sWoff}, s{c.sWoff}, s{c.sT0}
        s_mov_b32 s{c.sSeqW}, s{c.sSeq}
        """)
    def issue_A(self, seq):
        a, c = self.a, self
        slot = (seq % 4) * STG
        for j in range(4):
            a(f"s_add_u32 m0, s{c.sLdsA}, {slot}" if j == 0 else "s_add_u32 m0, m0, 1024")
            a(f"s_mov_b32 s{c.sT0}, s{c.sAoff}" if j == 0 else f"s_add_u32 s{c.sT0}, s{c.sT0}, 32768")
            a(f"buffer_load_dwordx4 v{c.vA}, s[{c.sA}:{c.sA+3}], s{c.sT0} offen lds")
        a(f"""
        s_add_u32 s{c.sSeq}, s{c.sSeq}, 1
        s_cmp_eq_u32 s{c.sSeq}, {c.NST}
        s_cselect_b32 s{c.sT0}, {c.NST * 16 * 32768}, 0
        s_cselect_b32 s{c.sSeq}, 0, s{c.sSeq}
        s_add_u32 s{c.sAoff}, s{c.sAoff}, {16 * 32768}
        s_sub_u32 s{c.sAoff}, s{c.sAoff}, s{c.sT0}
        """)
    def issue_W(self, seq):
        a, c = self.a, self
        slot = (seq % 4) * STG
        a(f"s_add_u32 m0, s{c.sLdsW}, {slot}")
        a(f"s_add_u32 s{c.sT0}, s{c.sWoff}, 4096")
        for j in range(4):
            a(f"buffer_load_dwordx4 v{c.vA}, s[{sWS}:{sWS+3}], s{c.sWoff} offen offset:{j*1024} lds")
        a("s_add_u32 m0, m0, 4096")
        a(f"s_add_u32 s{c.sSeqW}, s{c.sSeqW}, 1")
        a(f"buffer_load_dwordx4 v{c.vA}, s[{sWS}:{sWS+3}], s{c.sT0} offen lds")
        a(f"""
        s_cmp_eq_u32 s{c.sSeqW}, {c.NST}
        s_cselect_b32 s{c.sT0}, {c.NST * 20480}, 0
        s_cselect_b32 s{c.sSeqW}, 0, s{c.sSeqW}
        s_add_u32 s{c.sWoff}, s{c.sWoff}, 20480
        s_sub_u32 s{c.sWoff}, s{c.sWoff}, s{c.sT0}
        """)
    def loader_main(self, q):
        a, c = self.a, self
        for s_ in range(c.NST):
            a(f"s_waitcnt vmcnt({q.need(f'A{s_}', f'W{s_}')})")
            a("s_barrier")
            stx(a, f"{'o' if c.op else 'g'}l{s_}")
            if s_ + PD < c.NST and not (E('S_NODMA') and not c.op):
                if not E('S_NOA'): c.issue_A(s_ + PD); q.push(f"A{s_+PD}", 4)
                if not E('S_NOW'): c.issue_W(s_ + PD); q.push(f"W{s_+PD}", 5)
    vXb, vWb, vXa, vWa, vX, vW, vRes, vT, vAcc = 4, 5, 6, 7, 8, 32, 70, 84, 96
    vXa2, vWa2 = 120, 121
    def compute_setup(self):
        a, c = self.a, self
        vT = c.vT
        a(f"""
        v_and_b32 v2, 15, v1
        v_lshrrev_b32 v3, 4, v1
        s_lshr_b32 s{c.sT1}, s{sWV}, 1
        s_and_b32 s{c.sT2}, s{sWV}, 1
        s_lshl_b32 s{c.sT0}, s{c.sT1}, 5
        s_add_u32 s{c.sT0}, s{c.sT0}, s{c.sM0}
        v_add_u32 v{vT}, s{c.sT0}, v2
        """)
        a(f"""
        s_mul_i32 s{c.sAoff}, s{c.sT2}, 48
        s_add_u32 s{c.sAoff}, s{c.sAoff}, s{c.sN0}
        v_mul_u32_u24 v{vT+1}, 1280, v{vT}
        v_lshlrev_b32 v{vT+3}, 3, v3
        v_add_u32 v{vT+1}, v{vT+1}, v{vT+3}
        s_lshl_b32 s{c.sT0}, s{c.sAoff}, 1
        v_add_u32 v{vT+1}, s{c.sT0}, v{vT+1}
        v_lshrrev_b32 v{vT+3}, 1, v3
        v_lshlrev_b32 v{vT+3}, 15, v{vT+3}
        v_lshlrev_b32 v{vT+2}, 4, v{vT}
        v_add_u32 v{vT+2}, v{vT+2}, v{vT+3}
        v_and_b32 v{vT+3}, 1, v3
        v_lshlrev_b32 v{vT+3}, 3, v{vT+3}
        v_add_u32 v{vT+2}, v{vT+2}, v{vT+3}
        s_lshl_b32 s{c.sT0}, s{c.sAoff}, 12
        v_add_u32 v{vT+2}, s{c.sT0}, v{vT+2}
        s_lshl_b32 s{c.sT0}, s{c.sT1}, 9
        v_lshlrev_b32 v{c.vXb}, 10, v3
        v_lshlrev_b32 v{vT+3}, 4, v2
        v_add_u32 v{c.vXb}, v{c.vXb}, v{vT+3}
        v_add_u32 v{c.vXb}, s{c.sT0}, v{c.vXb}
        v_lshrrev_b32 v{vT+3}, 1, v3
        v_lshlrev_b32 v{vT+3}, 4, v{vT+3}
        v_and_b32 v{vT+4}, 1, v3
        v_lshlrev_b32 v{vT+4}, 2, v{vT+4}
        v_add_u32 v{vT+3}, v{vT+3}, v{vT+4}
        v_lshrrev_b32 v{vT+4}, 2, v2
        v_add_u32 v{vT+3}, v{vT+3}, v{vT+4}
        v_mul_u32_u24 v{vT+3}, 160, v{vT+3}
        v_and_b32 v{vT+4}, 3, v1
        v_lshlrev_b32 v{vT+4}, 3, v{vT+4}
        v_add_u32 v{vT+3}, v{vT+3}, v{vT+4}
        s_mul_i32 s{c.sT0}, s{c.sT2}, 96
        s_add_u32 s{c.sT0}, s{c.sT0}, 16384
        v_add_u32 v{c.vWb}, s{c.sT0}, v{vT+3}
        s_mov_b32 s{c.sWoff}, s{c.sT2}
        """)
        if c.op:
            make_srd(a, c.sR, pX, pX+1, 0, 2048 * 1280)
            make_srd(a, c.sO, pWS, pWS+1, WS_H, SZ_ACT)
        else:
            make_srd(a, c.sR, pWS, pWS+1, WS_H, SZ_ACT)
            make_srd(a, c.sO, pOUT, pOUT+1, 0, 2048 * 1280)
        a(f"""
        s_cmp_eq_u32 s{c.sT2}, 1
        s_cselect_b32 s44, 0x7f000000, 0
        s_cselect_b64 s[46:47], -1, 0
        """)
    def pretouch(self): pass
    def tile_off(self, T, tt, rowmajor):
        a, c = self.a, self
        if rowmajor:
            base = T * 32 + tt * 16 * 1280
            val = base
        else:
            val = T * 65536 + tt * 256
        if T == 2:
            a(f"s_add_u32 s{c.sT0}, s44, {val}")
        else:
            a(f"s_mov_b32 s{c.sT0}, {val}")
        return (c.vT + 1 if rowmajor else c.vT + 2), c.sT0
    def residual_loads(self):
        a, c = self.a, self
        for T in range(3):
            for tt in range(2):
                va, so = c.tile_off(T, tt, c.op)
                a(f"buffer_load_dwordx2 {vr(c.vRes + 2*(T*2 + tt), 2)}, v{va}, s[{c.sR}:{c.sR+3}], s{so} offen")
    def mainloop(self, stamp0=None, tag=''):
        a, c = self.a, self
        N = c.NST * 4
        def rlist(i):
            st_, k, buf = i // 4, i % 4, i % 3
            xa, wa = (c.vXa, c.vWa) if st_ % 2 == 0 else (c.vXa2, c.vWa2)
            L = [f"ds_read_b128 {vr(c.vX + buf*8 + tt*4, 4)}, v{xa} offset:{k*4096 + tt*256}" for tt in range(2)]
            for T in range(3):
                for h2 in range(2):
                    L.append(f"ds_read_b64_tr_b16 {vr(c.vW + buf*12 + T*4 + h2*2, 2)}, v{wa} offset:{k*5120 + h2*1280 + T*32}")
            return L
        def setaddr(st_):
            slot = (st_ % 4) * STG
            xa, wa = (c.vXa, c.vWa) if st_ % 2 == 0 else (c.vXa2, c.vWa2)
            a(f"v_add_u32 v{xa}, {slot}, v{c.vXb}")
            a(f"v_add_u32 v{wa}, {slot}, v{c.vWb}")
        a("s_barrier")
        stx(a, tag + '_s0')
        setaddr(0)
        for r in rlist(0) + rlist(1): a(r)
        for i in range(N):
            buf = i % 3
            rl = rlist(i + 2) if i + 2 < N else []
            a(f"s_waitcnt lgkmcnt({8 if i + 1 < N else 0})")
            k = 0
            for T in range(3):
                for tt in range(2):
                    acc = c.vAcc + (T*2 + tt) * 4
                    cc = "0" if i == 0 else vr(acc, 4)
                    a(f"v_mfma_f32_16x16x32_bf16 {vr(acc,4)}, {vr(c.vW + buf*12 + T*4, 4)}, {vr(c.vX + buf*8 + tt*4, 4)}, {cc}")
                    if k == 0 and i + 2 < N and (i + 2) % 4 == 0:
                        a("s_barrier")
                        if (i + 2) // 4 == 1: stx(a, tag + '_s1')
                        if (i + 2) // 4 == 4: stx(a, tag + '_s4')
                        setaddr((i + 2) // 4)
                    for r in rl[[0, 2, 4, 5, 6, 7][k]:[2, 4, 5, 6, 7, 8][k]]: a(r)
                    k += 1
        a("s_nop 7")
    def reduce(self):
        pass
    def epilogue(self):
        a, c = self.a, self
        vT, vRes = c.vT, c.vRes
        a("s_waitcnt vmcnt(0)")
        P = 8
        for T in range(3):
            for tt in range(2):
                n = T*2 + tt
                acc = c.vAcc + n*4
                rr = vRes + 2*n
                a(f"""
                v_lshlrev_b32 v24, 16, v{rr}
                v_and_b32 v25, 0xffff0000, v{rr}
                v_lshlrev_b32 v26, 16, v{rr+1}
                v_and_b32 v27, 0xffff0000, v{rr+1}
                v_add_f32 v{acc}, v{acc}, v24
                v_add_f32 v{acc+1}, v{acc+1}, v25
                v_add_f32 v{acc+2}, v{acc+2}, v26
                v_add_f32 v{acc+3}, v{acc+3}, v27
                v_cvt_pk_bf16_f32 v{P+2*n}, v{acc}, v{acc+1}
                v_cvt_pk_bf16_f32 v{P+2*n+1}, v{acc+2}, v{acc+3}
                """)
                va, so = c.tile_off(T, tt, not c.op)
                ins = f"buffer_store_dwordx2 {vr(P+2*n, 2)}, v{va}, s[{c.sO}:{c.sO+3}], s{so} offen @SC"
                if c.op: dual(a, [ins])
                else: a(ins.replace("@SC", E('OUTFL', '')))
        if c.op:
            for tt in range(2):
                S, Q = 28 + 2*tt, 29 + 2*tt
                first = True
                for T in range(3):
                    n = T*2 + tt
                    for d in range(2):
                        r = P + 2*n + d
                        a(f"v_lshlrev_b32 v24, 16, v{r}")
                        a(f"v_and_b32 v25, 0xffff0000, v{r}")
                        if T == 2:
                            a(f"v_cndmask_b32 v24, v24, 0, s[46:47]")
                            a(f"v_cndmask_b32 v25, v25, 0, s[46:47]")
                        if first:
                            a(f"v_add_f32 v{S}, v24, v25")
                            a(f"v_mul_f32 v{Q}, v24, v24")
                            first = False
                        else:
                            a(f"v_add_f32 v{S}, v{S}, v24")
                            a(f"v_add_f32 v{S}, v{S}, v25")
                            a(f"v_fmac_f32 v{Q}, v24, v24")
                        a(f"v_fmac_f32 v{Q}, v25, v25")
            a(f"""
            v_mov_b32 v32, v28
            v_mov_b32 v33, v29
            v_mov_b32 v34, v30
            v_mov_b32 v35, v31
            s_nop 1
            v_permlane32_swap_b32 v28, v32
            v_permlane32_swap_b32 v29, v33
            v_permlane32_swap_b32 v30, v34
            v_permlane32_swap_b32 v31, v35
            s_nop 1
            v_add_f32 v28, v28, v32
            v_add_f32 v29, v29, v33
            v_add_f32 v30, v30, v34
            v_add_f32 v31, v31, v35
            s_nop 0
            v_mov_b32 v32, v28
            v_mov_b32 v33, v29
            v_mov_b32 v34, v30
            v_mov_b32 v35, v31
            s_nop 1
            v_permlane16_swap_b32 v28, v32
            v_permlane16_swap_b32 v29, v33
            v_permlane16_swap_b32 v30, v34
            v_permlane16_swap_b32 v31, v35
            s_nop 1
            v_add_f32 v28, v28, v32
            v_add_f32 v29, v29, v33
            v_add_f32 v30, v30, v34
            v_add_f32 v31, v31, v35
            s_lshl_b32 s{c.sT0}, s{c.sNt}, 1
            s_add_u32 s{c.sT0}, s{c.sT0}, s{c.sWoff}
            s_lshl_b32 s{c.sT0}, s{c.sT0}, 14
            s_add_u32 s{c.sT0}, s{c.sT0}, {WS_ST2}
            v_lshlrev_b32 v32, 3, v{vT}
            s_mov_b64 exec, 0xffff
            """)
            dual(a, [f"buffer_store_dwordx2 v[28:29], v32, s[{sWS}:{sWS+3}], s{c.sT0} offen @SC",
                     f"buffer_store_dwordx2 v[30:31], v32, s[{sWS}:{sWS+3}], s{c.sT0} offen offset:128 @SC"])
            a("s_mov_b64 exec, -1")

KT = 1536
SLOT = 8 * KT + 16384
VOFF = 8 * KT
NSLOT = 5
FLAG = NSLOT * SLOT

def emit_attention(a, after_stores):
    name = "att"
    sK, sV, sQ, sO = 8, 12, 16, 20
    sHead, sQt, sT0, sT1, sT2 = 25, 26, 27, 28, 29
    sChunk, sSlotN, sPass, sKoff, sVoff, sKh = 30, 31, 32, 33, 34, 35
    sVmask = 38
    sSlotW, sE, sQg, sQb = 40, 41, 42, 43
    sW1s = 44
    vL16, vVoff = 2, 3
    vA3 = [[4, 5, 6], [7, 8, 9], [172, 173, 174]]
    vQ, vQr, vNC, vS, vP, vKb, vKr, vV, vO, vT = 10, 18, 22, 54, 86, 94, 102, 110, 126, 158
    lane_id(a, 0)
    lane_id(a, 1)
    a(f"""
    s_mov_b32 s{sVmask}, 0x000fffff
    s_mov_b32 s{sVmask+1}, 0x000fffff
    s_mov_b32 s{sPass}, 0
    s_lshr_b32 s{sKh}, s{sWV}, 2
    s_and_b32 s{sQg}, s{sWV}, 3
    v_lshlrev_b32 v{vL16}, 4, v0
    v_and_b32 v{vT}, 31, v0
    v_lshrrev_b32 v{vT+1}, 5, v0
    v_mul_u32_u24 v{vVoff}, 320, v{vT+1}
    v_lshlrev_b32 v{vT+2}, 4, v{vT}
    v_add_u32 v{vVoff}, v{vVoff}, v{vT+2}
    """)
    make_srd(a, sK, pWS, pWS+1, WS_K, SZ_QK)
    make_srd(a, sV, pWS, pWS+1, WS_V, SZ_QKV)
    make_srd(a, sQ, pWS, pWS+1, WS_Q, SZ_QK)
    make_srd(a, sO, pWS, pWS+1, WS_O, SZ_ACT)
    make_srd(a, sW1s, pW1, pW1+1, 0, 640*3456)
    a(f"""
    v_mov_b32 v{vT+4}, 0
    v_mov_b32 v{vT+3}, 0x3f803f80
    v_cmp_eq_u32 vcc, 20, v{vT}
    s_lshl_b32 s{sT0}, s{sWV}, 11
    s_add_u32 s{sT0}, s{sT0}, {VOFF}
    v_cndmask_b32 v{vT+4}, v{vT+4}, v{vT+3}, vcc
    v_add_u32 v{vT+3}, s{sT0}, v{vL16}
    v_mov_b32 v{vT+5}, v{vT+4}
    v_mov_b32 v{vT+6}, v{vT+4}
    v_mov_b32 v{vT+7}, v{vT+4}
    s_not_b64 exec, s[{sVmask}:{sVmask+1}]
    """)
    base = 0
    for sl in range(NSLOT):
        for j in range(2):
            off = sl * SLOT + j * 1024
            if off - base >= 65536 - 1024:
                a(f"v_add_u32 v{vT+3}, {sl*SLOT - base}, v{vT+3}")
                base = sl * SLOT
            a(f"ds_write_b128 v{vT+3}, {vr(vT+4,4)} offset:{off - base}")
    a(f"""
    s_mov_b64 exec, -1
    v_mov_b32 v{vT+3}, {FLAG}
    v_mov_b32 v{vT+4}, 0
    ds_write_b32 v{vT+3}, v{vT+4}
    """)
    def zero_regs():
        for i in range(32): a(f"v_mov_b32 v{vO+i}, 0")
        for i in range(4):
            a(f"v_mov_b32 v{vP+4+i}, 0")
            a(f"v_mov_b32 v{vV+12+i}, 0")
    zero_regs()
    a(f"v_and_b32 v{vT+11}, 7, v0")
    a(f"v_lshlrev_b32 v{vT+11}, 7, v{vT+11}")
    a(f"v_add_u32 v{vT+11}, {WS_CNT + C_RPS*128}, v{vT+11}")
    a(f"v_mov_b32 v{vT+10}, 0")
    a("s_barrier")
    a(f"""
    v_mov_b32 v4, {ROLE}
    ds_read_b96 v[6:8], v4
    s_waitcnt lgkmcnt(0)
    v_readfirstlane_b32 s{sX}, v6
    v_readfirstlane_b32 s{sRk}, v7
    v_readfirstlane_b32 s{sLoc}, v8
    s_and_b32 s{sT0}, s2, 7
    s_lshr_b32 s{sT1}, s2, 3
    s_cmp_eq_u32 s{sLoc}, 0
    s_cselect_b32 s{sX}, s{sT0}, s{sX}
    s_cselect_b32 s{sRk}, s{sT1}, s{sRk}
    s_mov_b32 s{sHead}, s{sRk}
    s_mov_b32 s{sQb}, s{sX}
    s_lshl_b32 s{sQt}, s{sQb}, 3
    s_and_b32 s{sE}, s{sHead}, 1
    """)
    def reinit():
        a(f"""
        s_lshl_b32 s{sT0}, s{sE}, 9
        s_mul_i32 s{sT1}, s{sKh}, {4*KT}
        s_add_u32 s{sT0}, s{sT0}, s{sT1}
        v_add_u32 v{vA3[0][0]}, s{sT0}, v{vL16}
        s_sub_u32 s{sT0}, 1, s{sE}
        s_lshl_b32 s{sT0}, s{sT0}, 10
        s_lshl_b32 s{sT2}, s{sE}, 3
        s_add_u32 s{sT0}, s{sT0}, s{sT2}
        s_add_u32 s{sT0}, s{sT0}, s{sT1}
        v_and_b32 v{vT}, 31, v0
        v_lshlrev_b32 v{vA3[0][1]}, 4, v{vT}
        v_add_u32 v{vA3[0][1]}, s{sT0}, v{vA3[0][1]}
        s_lshl_b32 s{sT0}, s{sKh}, 13
        s_add_u32 s{sT0}, s{sT0}, {VOFF}
        v_add_u32 v{vA3[0][2]}, s{sT0}, v{vL16}
        s_mov_b32 s{sSlotN}, {2*SLOT}
        s_lshr_b32 s{sT0}, s{sHead}, 1
        s_mul_i32 s{sT0}, s{sT0}, 163840
        s_mul_i32 s{sT1}, s{sWV}, 2560
        s_add_u32 s{sKoff}, s{sT0}, s{sT1}
        s_lshl_b32 s{sT1}, s{sE}, 10
        s_add_u32 s{sKoff}, s{sKoff}, s{sT1}
        s_mul_i32 s{sT0}, s{sHead}, 81920
        s_mul_i32 s{sT1}, s{sWV}, 1280
        s_add_u32 s{sVoff}, s{sT0}, s{sT1}
        s_mov_b32 s{sSlotW}, 0
        """)
        for k in range(3):
            a(f"v_add_u32 v{vA3[1][k]}, {SLOT}, v{vA3[0][k]}")
            a(f"v_add_u32 v{vA3[2][k]}, {2*SLOT}, v{vA3[0][k]}")
    reinit()
    a(f"""
    s_lshl_b32 s{sT0}, s{sQg}, 1
    s_add_u32 s{sQt}, s{sQt}, s{sT0}
    v_lshlrev_b32 v{vT+13}, 4, v{vT}
    s_lshl_b32 s{sT1}, s{sE}, 3
    s_add_u32 s{sT1}, s{sT1}, 1024
    v_add_u32 v{vT+13}, s{sT1}, v{vT+13}
    v_mov_b32 v{vT+9}, 0x7fffff00
    """)
    a(f"""
    v_cmp_gt_u32 vcc, 32, v0
    s_mul_i32 s{sT1}, s{sE}, 1536
    v_cndmask_b32 v{vT+13}, v{vT+9}, v{vT+13}, vcc
    v_add_u32 v{vT+12}, s{sT1}, v{vL16}
    """)
    lw = a.newlabel("attw")
    a(f"""
    s_cmp_eq_u32 s{sWV}, 0
    s_cbranch_scc0 {lw}
    s_mul_i32 s{sT0}, s{sHead}, 20
    s_lshr_b32 s{sT1}, s{sT0}, 7
    s_add_u32 s{sT0}, s{sT0}, 19
    s_lshr_b32 s{sT0}, s{sT0}, 7
    v_and_b32 v{vT+3}, 1, v0
    v_mov_b32 v{vT+4}, s{sT1}
    v_mov_b32 v{vT+5}, s{sT0}
    v_cmp_eq_u32 vcc, 1, v{vT+3}
    v_lshrrev_b32 v{vT+6}, 1, v0
    v_mul_u32_u24 v{vT+6}, 5, v{vT+6}
    v_cndmask_b32 v{vT+4}, v{vT+4}, v{vT+5}, vcc
    v_add_u32 v{vT+4}, v{vT+4}, v{vT+6}
    v_add_u32 v{vT+4}, {C_QKV}, v{vT+4}
    v_lshlrev_b32 v{vT+4}, 7, v{vT+4}
    v_add_u32 v{vT+4}, {WS_CNT}, v{vT+4}
    v_mov_b32 v{vT+5}, 16
    """)
    stx(a, 'a_p0')
    poll(a, vT + 4, vT + 5, 6, vT + 6, slp=int(E('QSLP', '1')))
    a.label(lw)
    stx(a, 'a_pre')
    a("s_waitcnt lgkmcnt(0)")
    a("s_barrier")
    st(a, 5)
    def rpa():
        a("s_and_b32 s76, s2, 7")
        a(f"s_add_u32 s76, s76, {C_RPS}")
        arrive(a, 76, vT + 4)
    def dma_chunk():
        a(f"""
        s_mul_i32 s{sT0}, s{sWV}, {KT}
        s_add_u32 m0, s{sSlotW}, s{sT0}
        s_lshl_b32 s{sT1}, s{sWV}, 11
        buffer_load_dwordx4 v{vL16}, s[{sK}:{sK+3}], s{sKoff} offen lds
        s_mov_b32 exec_hi, 0
        buffer_load_dwordx4 v{vL16}, s[{sK}:{sK+3}], s{sKoff} offen offset:1024 lds
        s_add_u32 s{sT1}, s{sT1}, s{sSlotW}
        s_add_u32 m0, s{sT1}, {VOFF}
        s_mov_b64 exec, s[{sVmask}:{sVmask+1}]
        buffer_load_dwordx4 v{vVoff}, s[{sV}:{sV+3}], s{sVoff} offen lds
        s_add_u32 m0, m0, 1024
        s_add_u32 s{sT1}, s{sVoff}, 640
        buffer_load_dwordx4 v{vVoff}, s[{sV}:{sV+3}], s{sT1} offen lds
        s_mov_b64 exec, -1
        s_add_u32 s{sKoff}, s{sKoff}, {8*2560}
        s_add_u32 s{sVoff}, s{sVoff}, 10240
        s_add_u32 s{sSlotW}, s{sSlotW}, {SLOT}
        s_cmp_ge_u32 s{sSlotW}, {NSLOT*SLOT}
        s_cselect_b32 s{sSlotW}, 0, s{sSlotW}
        """)
    dma_chunk()
    a(f"s_lshr_b32 s{sT0}, s{sHead}, 1")
    a(f"s_mul_i32 s{sT0}, s{sT0}, 163840")
    for s in range(2):
        a(f"""
        s_xor_b32 s{sT1}, s{sKh}, {s}
        s_add_u32 s{sT1}, s{sT1}, s{sQt}
        s_mul_i32 s{sT1}, s{sT1}, 2560
        s_add_u32 s{sT1}, s{sT1}, s{sT0}
        buffer_load_dwordx4 {vr(vQ+4*s,4)}, v{vT+12}, s[{sQ}:{sQ+3}], s{sT1} offen
        buffer_load_dwordx2 {vr(vQr+2*s,2)}, v{vT+13}, s[{sQ}:{sQ+3}], s{sT1} offen
        """)
    dma_chunk()
    a(f"s_branch L_{name}_start")
    a.label(f"L_{name}_restart")
    zero_regs()
    reinit()
    dma_chunk(); dma_chunk()
    a.label(f"L_{name}_start")
    vKc, vKrc, vVc = vA3[0]
    a(f"""
    s_waitcnt vmcnt(4)
    """)
    stx(a, 'a_c0')
    a(f"""
    s_barrier
    s_cmp_eq_u32 s{sPass}, 0
    s_cbranch_scc0 L_{name}_haveC
    s_mul_i32 s{sT1}, s{sKh}, {4*KT}
    v_subrev_u32 v{vT+1}, s{sT1}, v{vKc}
    v_subrev_u32 v{vT+2}, s{sT1}, v{vKrc}
    ds_read_b128 {vr(vKb,4)}, v{vT+1}
    ds_read_b64 {vr(vKr,2)}, v{vT+2}
    s_waitcnt lgkmcnt(0)
    """)
    for s in range(2):
        S = vS + 16*s
        a(f"v_mfma_f32_32x32x16_bf16 {vr(S,16)}, {vr(vKb,4)}, {vr(vQ+4*s,4)}, 0")
    for s in range(2):
        S = vS + 16*s
        a(f"v_mfma_f32_32x32x8_bf16 {vr(S,16)}, {vr(vKr,2)}, {vr(vQr+2*s,2)}, {vr(S,16)}")
    a(f"""
    ds_read_b128 {vr(vKb,4)}, v{vKc}
    ds_read2st64_b64 {vr(vKr,4)}, v{vKrc} offset0:0 offset1:3
    ds_read_b128 {vr(vV,4)}, v{vVc}
    ds_read_b128 {vr(vV+4,4)}, v{vVc} offset:1024
    s_nop 11
    """)
    for s in range(2):
        S = vS + 16*s
        T_ = vT + 2*s
        a(f"v_max3_f32 v{T_}, v{S}, v{S+1}, v{S+2}")
        for i in range(3, 15, 2):
            a(f"v_max3_f32 v{T_}, v{T_}, v{S+i}, v{S+i+1}")
        a(f"v_max_f32 v{T_}, v{T_}, v{S+15}")
    a(f"""
    v_mov_b32 v{vT+1}, v{vT}
    v_mov_b32 v{vT+3}, v{vT+2}
    s_nop 1
    v_permlane32_swap_b32 v{vT}, v{vT+1}
    v_permlane32_swap_b32 v{vT+2}, v{vT+3}
    s_nop 1
    v_max_f32 v{vT}, v{vT}, v{vT+1}
    v_max_f32 v{vT+2}, v{vT+2}, v{vT+3}
    v_sub_f32 v{vNC}, 0, v{vT}
    v_sub_f32 v{vNC+16}, 0, v{vT+2}
    """)
    for i in range(1, 16):
        a(f"v_mov_b32 v{vNC+i}, v{vNC}")
        a(f"v_mov_b32 v{vNC+16+i}, v{vNC+16}")
    a(f"s_branch L_{name}_haveC2")
    a.label(f"L_{name}_haveC")
    a(f"""
    ds_read_b128 {vr(vKb,4)}, v{vKc}
    ds_read2st64_b64 {vr(vKr,4)}, v{vKrc} offset0:0 offset1:3
    ds_read_b128 {vr(vV,4)}, v{vVc}
    ds_read_b128 {vr(vV+4,4)}, v{vVc} offset:1024
    """)
    a.label(f"L_{name}_haveC2")
    a(f"""
    s_waitcnt lgkmcnt(0)
    v_mfma_f32_32x32x16_bf16 {vr(vS,16)}, {vr(vKb,4)}, {vr(vQ,4)}, {vr(vNC,16)}
    v_mfma_f32_32x32x8_bf16 {vr(vS,16)}, {vr(vKr,2)}, {vr(vQr,2)}, {vr(vS,16)}
    s_mov_b32 s{sChunk}, 0
    s_nop 7
    """)
    st(a, 6)
    a(f"""
    s_cmp_eq_u32 s{sKh}, 0
    s_cselect_b32 s36, 7, 0
    s_cselect_b32 s37, 0, 7
    """)
    ool = []
    def rare(mask, fn, tag):
        l, b = a.newlabel(tag), a.newlabel(tag + "b")
        a(f"s_bitcmp1_b32 {mask:#x}, s{sChunk}")
        a(f"s_cbranch_scc1 {l}")
        a.label(b)
        ool.append((l, b, fn))
    def common_(mask, fn, tag):
        l = a.newlabel(tag)
        a(f"s_bitcmp1_b32 {mask if isinstance(mask, str) else hex(mask)}, s{sChunk}")
        a(f"s_cbranch_scc0 {l}")
        fn()
        a.label(l)
    def pf_A(half, which='w1'):
        if which == 'w1':
            a(f"""
            v_lshlrev_b32 v{vT+12}, 7, v0
            s_mul_i32 s{sT0}, s{sRk}, 69120
            s_lshl_b32 s{sT1}, s{sWV}, 13
            s_add_u32 s{sT0}, s{sT0}, s{sT1}
            s_mov_b32 exec_lo, {-1 if half == 0 else 0}
            s_mov_b32 exec_hi, {0 if half == 0 else -1}
            buffer_load_dword v{vT+13}, v{vT+12}, s[{sW1s}:{sW1s+3}], s{sT0} offen sc1
            s_mov_b64 exec, -1
            """)
        else:
            a(f"""
            v_lshlrev_b32 v{vT+12}, 7, v0
            s_mul_i32 s{sT0}, s{sRk}, {SZ_W2P // 32}
            s_lshl_b32 s{sT1}, s{sWV}, 13
            s_add_u32 s{sT0}, s{sT0}, s{sT1}
            s_add_u32 s{sT0}, s{sT0}, {WS_W2P}
            s_mov_b32 exec_lo, {-1 if half == 0 else 0}
            s_mov_b32 exec_hi, {0 if half == 0 else -1}
            buffer_load_dword v{vT+13}, v{vT+12}, s[{sWS}:{sWS+3}], s{sT0} offen sc1
            s_mov_b64 exec, -1
            """)
    def pf_B():
        l5, l4, le = a.newlabel("pf5"), a.newlabel("pf4"), a.newlabel("pfe")
        a(f"""
        v_lshlrev_b32 v{vT+12}, 7, v0
        s_cmp_ge_u32 s{sWV}, 5
        s_cbranch_scc1 {l5}
        s_cmp_eq_u32 s{sWV}, 4
        s_cbranch_scc1 {l4}
        s_mul_i32 s{sT0}, s{sRk}, {SZ_WOP // 32}
        s_lshl_b32 s{sT1}, s{sWV}, 13
        s_add_u32 s{sT0}, s{sT0}, s{sT1}
        s_add_u32 s{sT0}, s{sT0}, {WS_WOP}
        buffer_load_dword v{vT+13}, v{vT+12}, s[{sWS}:{sWS+3}], s{sT0} offen sc1
        s_branch {le}
        """)
        a.label(l4)
        a(f"""
        s_mul_i32 s{sT0}, s{sRk}, 69120
        s_add_u32 s{sT0}, s{sT0}, 65536
        s_mov_b32 exec_hi, 0
        buffer_load_dword v{vT+13}, v{vT+12}, s[{sW1s}:{sW1s+3}], s{sT0} offen sc1
        s_mov_b32 exec_hi, -1
        s_branch {le}
        """)
        a.label(l5)
        a(f"""
        s_sub_u32 s{sT1}, s{sWV}, 5
        s_lshl_b32 s{sT1}, s{sT1}, 5
        s_mul_i32 s{sT0}, s{sRk}, 80
        s_add_u32 s{sT0}, s{sT0}, s{sT1}
        v_and_b32 v{vT+8}, 31, v0
        v_add_u32 v{vT+8}, s{sT0}, v{vT+8}
        v_lshrrev_b32 v{vT+9}, 5, v{vT+8}
        v_lshlrev_b32 v{vT+9}, 15, v{vT+9}
        v_and_b32 v{vT+8}, 31, v{vT+8}
        v_lshlrev_b32 v{vT+8}, 7, v{vT+8}
        v_add_u32 v{vT+8}, v{vT+8}, v{vT+9}
        s_lshl_b32 s{sT0}, s{sX}, 12
        s_mov_b32 exec_hi, 0
        buffer_load_dword v{vT+13}, v{vT+8}, s[{sO}:{sO+3}], s{sT0} offen sc1
        s_mov_b32 exec_hi, -1
        """)
        a.label(le)
    def rp_issue():
        a("s_mov_b64 exec, 0xff")
        a(f"buffer_load_dword v{vT+10}, v{vT+11}, s[{sWS}:{sWS+3}], 0 offen sc1")
        a("s_mov_b64 exec, -1")
    def rp_check():
        ok = a.newlabel("rpok")
        a("s_mov_b64 exec, 0xff")
        a(f"v_cmp_gt_u32 vcc, 32, v{vT+10}")
        a("s_nop 4")
        a("s_cmp_eq_u64 vcc, 0")
        a(f"s_cbranch_scc1 {ok}")
        a(f"v_mov_b32 v{vT+9}, 32")
        poll(a, vT + 11, vT + 9, 8, vT + 10)
        a.label(ok)
        a("s_mov_b64 exec, -1")
    def rp_load():
        le = a.newlabel("rle")
        a(f"s_cmp_eq_u32 s{sPass}, 0")
        a(f"s_cbranch_scc0 {le}")
        a(f"s_cmp_ge_u32 s{sWV}, 4")
        a(f"s_cbranch_scc0 {le}")
        for r in range(3):
            la, lb = a.newlabel("rla"), a.newlabel("rlb")
            a(f"v_accvgpr_read_b32 v{vT+4}, a{43+2*r}")
            a(f"v_accvgpr_read_b32 v{vT+5}, a{44+2*r}")
            a(f"v_accvgpr_read_b32 v{vT+6}, a{49+r}")
            make_srd(a, 16, pWO, pWO+1, 0, 640*1280)
            a(f"""
            v_cmp_gt_u32 vcc, 40, v{vT+6}
            s_nop 4
            s_mov_b64 s[76:77], vcc
            s_mov_b64 exec, vcc
            s_cbranch_execz {la}
            buffer_load_dwordx4 {ar(28+4*r,4)}, v{vT+4}, s[16:19], 0 offen
            {la}:
            """)
            make_srd(a, 16, pW2, pW2+1, 0, 1728*1280)
            a(f"""
            s_not_b64 exec, s[76:77]
            s_cbranch_execz {lb}
            buffer_load_dwordx4 {ar(28+4*r,4)}, v{vT+5}, s[16:19], 0 offen
            {lb}:
            s_mov_b64 exec, -1
            """)
        a(f"""
        s_mul_i32 s76, s2, 8640
        s_sub_u32 s77, s{sWV}, 4
        s_mul_i32 s77, s77, 2176
        s_add_u32 s76, s76, s77
        v_lshlrev_b32 v{vT+4}, 7, v0
        s_mov_b64 exec, 0x1ffff
        buffer_load_dword v{vT+5}, v{vT+4}, s[{sW1s}:{sW1s+3}], s76 offen sc1
        s_mov_b64 exec, -1
        """)
        a.label(le)
    def rp_store():
        le = a.newlabel("rse")
        a(f"s_cmp_eq_u32 s{sPass}, 0")
        a(f"s_cbranch_scc0 {le}")
        a(f"s_cmp_ge_u32 s{sWV}, 4")
        a(f"s_cbranch_scc0 {le}")
        for r in range(3): a(f"v_accvgpr_read_b32 v{vT+4+r}, a{40+r}")
        a(f"s_mov_b32 s76, {WS_WOP}")
        for r in range(3):
            a(f"buffer_store_dwordx4 {ar(28+4*r,4)}, v{vT+4+r}, s[{sWS}:{sWS+3}], s76 offen {SC}")
        a.label(le)
    def rp_arr():
        le = a.newlabel("rae")
        a(f"s_cmp_eq_u32 s{sPass}, 0")
        a(f"s_cbranch_scc0 {le}")
        wave_only(a, 4, rpa)
        a.label(le)
    def rp_post():
        l2, le = a.newlabel("rp2"), a.newlabel("rpe")
        a(f"s_cmp_eq_u32 s{sChunk}, 2")
        a(f"s_cbranch_scc0 {l2}")
        a(f"s_cmp_eq_u32 s{sPass}, 0")
        a(f"s_cbranch_scc0 {le}")
        wave_only(a, 4, rpa)
        a(f"s_branch {le}")
        a.label(l2)
        rp_check()
        a.label(le)
    if E('A_PRIO'):
        l = a.newlabel("prio")
        a(f"s_cmp_ge_u32 s{sWV}, 4")
        a(f"s_cbranch_scc0 {l}")
        a(f"s_setprio {E('A_PRIO')}")
        a.label(l)
    a(".p2align 6")
    a.label(f"L_{name}_loop")
    rd = (lambda x: None) if E('A_NORD') else a
    for u in range(16):
        p = u & 1
        t = u >> 1
        D1 = int(E('A_D1', '6'))
        def common_else(mask, fn, fn_else, tag):
            l, b = a.newlabel(tag), a.newlabel(tag + "b")
            a(f"s_bitcmp1_b32 {mask:#x}, s{sChunk}")
            a(f"s_cbranch_scc0 {l}")
            fn()
            a.label(b)
            ool.append((l, b, fn_else))
        def by_pair(d):
            def f():
                le = a.newlabel("bpe")
                for k, fn in d.items():
                    ln = a.newlabel("bpn")
                    a(f"s_cmp_eq_u32 s{sChunk}, {k}")
                    a(f"s_cbranch_scc0 {ln}")
                    fn()
                    a(f"s_branch {le}")
                    a.label(ln)
                a.label(le)
            return f
        if u == 0: common_else(0b0111, dma_chunk, lambda: pf_A(0), "d0")
        if u == 6:
            rare(0b0101, by_pair({0: lambda: (a("s_waitcnt vmcnt(4)"), a("s_barrier")), 2: rp_store}), "c1")
            common_else(0b0111, dma_chunk, lambda: pf_A(1), "d1")
        if u == 10: rare(0b1000, pf_B, "pc")
        if u == 14:
            rare(0b1000, rp_issue, "rpi")
            a("s_waitcnt vmcnt(0)")
            a("s_barrier")
            rare(0b1101, by_pair({0: rp_load, 2: rp_arr, 3: rp_check}), "rpc")
        tn = t + 1
        A = vA3[tn // 4]
        if p == 0:
            rd(f"ds_read_b128 {vr(vKb + 4*(tn&1),4)}, v{A[0]} offset:{(tn%4)*KT}")
            if tn % 2 == 0:
                pb = (tn // 2) & 1
                rd(f"ds_read2st64_b64 {vr(vKr + 4*pb,4)}, v{A[1]} offset0:{(tn%4)*3} offset1:{(tn%4)*3+3}")
            rd(f"ds_read_b128 {vr(vV + 8*(tn&1),4)}, v{A[2]} offset:{(tn%4)*2048}")
        else:
            rd("s_waitcnt lgkmcnt(0)")
        un = u + 1
        tq = un >> 1
        qs = un & 1
        Sc, Sn = vS + 16*p, vS + 16*(p^1)
        kbuf = vKb + 4*(tq & 1)
        krbuf = vKr + 4*((tq // 2) & 1) + 2*(tq & 1)
        ex = lambda r: a(f"v_exp_f32 v{Sc+r}, v{Sc+r}")
        cv = lambda r: a(f"v_cvt_pk_bf16_f32 v{vP+r}, v{Sc+2*r}, v{Sc+2*r+1}")
        a(f"v_mfma_f32_32x32x16_bf16 {vr(Sn,16)}, {vr(kbuf,4)}, {vr(vQ+4*qs,4)}, {vr(vNC+16*qs,16)}")
        for r in range(4): ex(r)
        tp = (u - 1) >> 1 if u > 0 else -1
        Op = vO + 16*((u - 1) & 1)
        a(f"v_mfma_f32_32x32x16_bf16 {vr(Op,16)}, {vr(vV + 8*(tp & 1) + 4,4)}, {vr(vP+4,4)}, {vr(Op,16)}")
        if p == 0:
            rd(f"ds_read_b128 {vr(vV + 8*(tn&1) + 4,4)}, v{A[2]} offset:{(tn%4)*2048 + 1024}")
        for r in range(4, 8): ex(r)
        cv(0); cv(1)
        a(f"v_mfma_f32_32x32x8_bf16 {vr(Sn,16)}, {vr(krbuf,2)}, {vr(vQr+2*qs,2)}, {vr(Sn,16)}")
        cv(2); cv(3)
        for r in range(8, 12): ex(r)
        Oc = vO + 16*p
        a(f"v_mfma_f32_32x32x16_bf16 {vr(Oc,16)}, {vr(vV + 8*(t & 1),4)}, {vr(vP,4)}, {vr(Oc,16)}")
        for r in range(12, 16): ex(r)
        if u == 15:
            a(f"""
            s_add_u32 s{sT0}, s{sSlotN}, {SLOT}
            s_cmp_ge_u32 s{sT0}, {NSLOT*SLOT}
            s_cselect_b32 s{sT1}, {NSLOT*SLOT}, 0
            s_sub_u32 s{sT0}, s{sT0}, s{sT1}
            s_sub_u32 s{sT1}, s{sT0}, s{sSlotN}
            s_add_u32 s{sT2}, s{sT0}, {SLOT}
            s_cmp_ge_u32 s{sT2}, {NSLOT*SLOT}
            s_cselect_b32 s{sT0}, {NSLOT*SLOT}, 0
            s_sub_u32 s{sT2}, s{sT2}, s{sT0}
            s_sub_u32 s{sT0}, s{sT2}, s{sSlotN}
            s_mov_b32 s{sSlotN}, s{sT2}
            """)
            for k in range(3):
                a(f"v_mov_b32 v{vA3[0][k]}, v{vA3[2][k]}")
                a(f"v_add_u32 v{vA3[1][k]}, s{sT1}, v{vA3[2][k]}")
                a(f"v_add_u32 v{vA3[2][k]}, s{sT0}, v{vA3[2][k]}")
        for r in range(4, 8): cv(r)
    a(f"""
    s_add_u32 s{sChunk}, s{sChunk}, 1
    s_cmp_lt_u32 s{sChunk}, 4
    s_cbranch_scc1 L_{name}_loop
    s_waitcnt lgkmcnt(0)
    """)
    a(f"v_mfma_f32_32x32x16_bf16 {vr(vO+16,16)}, {vr(vV + 8 + 4,4)}, {vr(vP+4,4)}, {vr(vO+16,16)}")
    st(a, 7)
    a(f"s_branch L_{name}_post")
    for l, b, fn in ool:
        a.label(l)
        fn()
        a(f"s_branch {b}")
    a.label(f"L_{name}_post")
    a(f"""
    s_barrier
    s_lshl_b32 s{sT0}, s{sQg}, 1
    s_add_u32 s{sT1}, s{sT0}, s{sKh}
    s_lshr_b32 s{sT2}, s{sT1}, 2
    s_mul_i32 s{sT2}, s{sT2}, {SLOT}
    s_and_b32 s{sT1}, s{sT1}, 3
    s_mul_i32 s{sT1}, s{sT1}, 3072
    s_add_u32 s{sT1}, s{sT1}, s{sT2}
    v_add_u32 v{vT}, s{sT1}, v{vL16}
    s_xor_b32 s{sT1}, s{sKh}, 1
    s_add_u32 s{sT1}, s{sT1}, s{sT0}
    s_lshr_b32 s{sT2}, s{sT1}, 2
    s_mul_i32 s{sT2}, s{sT2}, {SLOT}
    s_and_b32 s{sT1}, s{sT1}, 3
    s_mul_i32 s{sT1}, s{sT1}, 3072
    s_add_u32 s{sT1}, s{sT1}, s{sT2}
    v_add_u32 v{vT+1}, s{sT1}, v{vL16}
    s_nop 7
    """)
    stx(a, 'a_bar1')
    for i in range(3):
        a(f"ds_write_b128 v{vT}, {vr(vO+16+4*i,4)} offset:{i*1024}")
    a("s_waitcnt lgkmcnt(0)")
    a("s_barrier")
    stx(a, 'a_bar2')
    for i in range(3):
        a(f"ds_read_b128 {vr(vS+4*i,4)}, v{vT+1} offset:{i*1024}")
    a("s_waitcnt lgkmcnt(0)")
    for r in range(12):
        a(f"v_add_f32 v{vO+r}, v{vO+r}, v{vS+r}")
    a(f"v_mov_b32 v{vT}, 0")
    for r in range(12):
        a(f"v_fma_f32 v{vT}, v{vO+r}, 0, v{vT}")
    a(f"""
    s_cmp_eq_u32 s{sPass}, 0
    s_cbranch_scc0 L_{name}_store2
    v_cmp_u_f32 vcc, v{vT}, v{vT}
    s_nop 4
    s_cmp_eq_u64 vcc, 0
    s_cbranch_scc1 L_{name}_store2
    v_mov_b32 v{vT+1}, {FLAG}
    v_mov_b32 v{vT+2}, 1
    ds_write_b32 v{vT+1}, v{vT+2}
    s_branch L_{name}_store2
    L_{name}_redo:
    s_mov_b32 s{sPass}, 1
    v_mov_b32 v{vT}, 0xff800000
    v_mov_b32 v{vT+1}, 0xff800000
    s_lshr_b32 s{sT0}, s{sHead}, 1
    s_mul_i32 s{sT0}, s{sT0}, 163840
    s_mov_b32 s{sT1}, 0
    v_and_b32 v{vT+2}, 31, v0
    v_lshlrev_b32 v{vT+2}, 4, v{vT+2}
    s_lshl_b32 s{sT2}, s{sE}, 3
    s_add_u32 s{sT2}, s{sT2}, 1024
    v_add_u32 v{vT+2}, s{sT2}, v{vT+2}
    s_mul_i32 s{sT2}, s{sE}, 1536
    v_add_u32 v{vT+3}, s{sT2}, v{vL16}
    L_{name}_maxloop:
    buffer_load_dwordx4 {vr(vKb,4)}, v{vT+3}, s[{sK}:{sK+3}], s{sT0} offen
    buffer_load_dwordx2 {vr(vKr,2)}, v{vT+2}, s[{sK}:{sK+3}], s{sT0} offen
    s_waitcnt vmcnt(0)
    """)
    for s in range(2):
        S = vS + 16*s
        a(f"v_mfma_f32_32x32x16_bf16 {vr(S,16)}, {vr(vKb,4)}, {vr(vQ+4*s,4)}, 0")
        a(f"v_mfma_f32_32x32x8_bf16 {vr(S,16)}, {vr(vKr,2)}, {vr(vQr+2*s,2)}, {vr(S,16)}")
    a("s_nop 15")
    for s in range(2):
        for i in range(0, 16, 2):
            a(f"v_max3_f32 v{vT+s}, v{vT+s}, v{vS+16*s+i}, v{vS+16*s+i+1}")
    a(f"""
    s_add_u32 s{sT0}, s{sT0}, 2560
    s_add_u32 s{sT1}, s{sT1}, 1
    s_cmp_lt_u32 s{sT1}, 64
    s_cbranch_scc1 L_{name}_maxloop
    """)
    for s in range(2):
        a(f"""
        v_mov_b32 v{vT+2}, v{vT+s}
        s_nop 1
        v_permlane32_swap_b32 v{vT+s}, v{vT+2}
        s_nop 1
        v_max_f32 v{vT+2}, v{vT+s}, v{vT+2}
        v_sub_f32 v{vNC+16*s}, 0, v{vT+2}
        """)
        for i in range(1, 16):
            a(f"v_mov_b32 v{vNC+16*s+i}, v{vNC+16*s}")
    a("s_barrier")
    a(f"s_branch L_{name}_restart")
    a.label(f"L_{name}_store2")
    stx(a, 'a_vote')
    a(f"""
    v_mov_b32 v{vT}, v{vO+8}
    v_mov_b32 v{vT+1}, v{vO+8}
    s_nop 1
    v_permlane32_swap_b32 v{vT}, v{vT+1}
    s_nop 1
    v_rcp_f32 v{vT+1}, v{vT+1}
    v_lshrrev_b32 v{vT+2}, 5, v0
    v_and_b32 v{vT+3}, 31, v0
    s_add_u32 s{sT0}, s{sQt}, s{sKh}
    s_lshl_b32 s{sT0}, s{sT0}, 5
    v_add_u32 v{vT+3}, s{sT0}, v{vT+3}
    v_lshlrev_b32 v{vT+3}, 4, v{vT+3}
    s_mul_i32 s{sT0}, s{sHead}, 5
    v_add_u32 v{vT+2}, s{sT0}, v{vT+2}
    """)
    for r in range(12):
        a(f"v_mul_f32 v{vO+r}, v{vO+r}, v{vT+1}")
    for q in range(3):
        a(f"""
        v_add_u32 v{vT+4}, {2*q}, v{vT+2}
        v_lshrrev_b32 v{vT+5}, 1, v{vT+4}
        v_lshlrev_b32 v{vT+5}, 15, v{vT+5}
        v_and_b32 v{vT+4}, 1, v{vT+4}
        v_lshlrev_b32 v{vT+4}, 3, v{vT+4}
        v_add3_u32 v{vT+4}, v{vT+4}, v{vT+5}, v{vT+3}
        v_cvt_pk_bf16_f32 v{vT+6}, v{vO+4*q}, v{vO+4*q+1}
        v_cvt_pk_bf16_f32 v{vT+7}, v{vO+4*q+2}, v{vO+4*q+3}
        """)
        if q == 2: a("s_mov_b32 exec_hi, 0")
        dual(a, [f"buffer_store_dwordx2 {vr(vT+6,2)}, v{vT+4}, s[{sO}:{sO+3}], 0 offen @SC"])
    a("s_mov_b64 exec, -1")
    stx(a, 'a_stores')
    a(f"""
    s_waitcnt vmcnt(0) lgkmcnt(0)
    s_barrier
    v_mov_b32 v{vT+1}, {FLAG}
    ds_read_b32 v{vT+2}, v{vT+1}
    s_waitcnt lgkmcnt(0)
    v_readfirstlane_b32 s{sT0}, v{vT+2}
    s_cmp_eq_u32 s{sPass}, 0
    s_cselect_b32 s{sT0}, s{sT0}, 0
    s_cmp_lg_u32 s{sT0}, 0
    s_cbranch_scc1 L_{name}_redo
    """)
    a(f"s_add_u32 s76, s{sQb}, {C_ATT}")

def gemm_phase_prologue_loader(a, core, q, dep_idx_sgpr, dep_target, nW, pre_issued):
    pass

LANDED = [True]
def reg_step1(a, vd):
    a("s_mov_b64 exec, 7")
    a(f"buffer_load_dword v{vd}, v{vd+1}, s[44:47], 0 offen sc1")
    a("s_mov_b64 exec, -1")
def reg_step2(a, vd):
    dbg_flag_wait(a, vd, landed=LANDED[0])
    a(f"""
    s_getreg_b32 s{sX}, hwreg(HW_REG_XCC_ID)
    s_and_b32 s{sX}, s{sX}, 7
    s_add_u32 s76, s{sX}, {C_RK}
    s_lshl_b32 s76, s76, 7
    s_add_u32 s76, s76, {WS_CNT}
    v_mov_b32 v{vd-1}, s76
    v_accvgpr_write_b32 a0, 1
    s_mov_b64 exec, 1
    s_nop 1
    buffer_atomic_add a0, v{vd-1}, s[{sWS}:{sWS+3}], 0 offen sc0
    s_mov_b64 exec, -1
    """)
def reg_step3(a, vd):
    l1, l2 = a.newlabel("r3a"), a.newlabel("r3b")
    if not LANDED[0]: a("s_waitcnt vmcnt(0)")
    a(f"""
    v_accvgpr_read_b32 v{vd-1}, a0
    s_nop 1
    v_readfirstlane_b32 s{sRk}, v{vd-1}
    s_cmp_eq_u32 s{sRk}, 31
    s_cbranch_scc0 {l1}
    v_mov_b32 v{vd-1}, 4
    v_mov_b32 v{vd-2}, 1
    s_mov_b64 exec, 1
    buffer_atomic_add v{vd-2}, v{vd-1}, s[44:47], 0 offen sc1
    s_mov_b64 exec, -1
    """)
    a.label(l1)
    a(f"""
    s_cmp_ge_u32 s{sRk}, 32
    s_cbranch_scc0 {l2}
    v_mov_b32 v{vd-1}, 8
    v_mov_b32 v{vd-2}, 1
    s_mov_b64 exec, 1
    buffer_store_dword v{vd-2}, v{vd-1}, s[44:47], 0 offen sc1
    s_mov_b64 exec, -1
    """)
    a.label(l2)
    a("s_mov_b64 exec, 7")
    a(f"buffer_load_dword v{vd}, v{vd+1}, s[44:47], 0 offen sc1")
    a("s_mov_b64 exec, -1")
def register_publish(a, vd):
    l0, l1 = a.newlabel("rp"), a.newlabel("rpok")
    a(f"s_mov_b32 s{sPoll}, 0")
    a.label(l0)
    a(f"""
    s_waitcnt vmcnt(0)
    v_readlane_b32 s39, v{vd}, 1
    v_readlane_b32 s40, v{vd}, 2
    s_cmp_eq_u32 s39, 8
    s_cselect_b32 s38, 1, 0
    s_cmp_lg_u32 s40, 0
    s_cselect_b32 s38, 0, s38
    s_cbranch_scc1 {l1}
    s_cmp_eq_u32 s38, 1
    s_cbranch_scc1 {l1}
    s_add_u32 s{sPoll}, s{sPoll}, 1
    s_cmp_gt_u32 s{sPoll}, {POLL_MAX}
    s_cbranch_scc1 {l1}
    s_sleep 1
    s_mov_b64 exec, 7
    buffer_load_dword v{vd}, v{vd+1}, s[44:47], 0 offen sc1
    s_mov_b64 exec, -1
    s_branch {l0}
    """)
    a.label(l1)
    if E('FORCE_SLOW'): a("s_mov_b32 s38, 0")
    a(f"""
    v_mov_b32 v{vd-6}, s{sX}
    v_mov_b32 v{vd-4}, s38
    v_mov_b32 v{vd-5}, s{sRk}
    v_mov_b32 v{vd-7}, {ROLE}
    ds_write_b96 v{vd-7}, v[{vd-6}:{vd-4}]
    s_waitcnt lgkmcnt(0)
    """)
def wave_only(a, w, fn):
    l = a.newlabel("wo")
    a(f"s_cmp_eq_u32 s{sWV}, {w}")
    a(f"s_cbranch_scc0 {l}")
    fn()
    a.label(l)
def code_prefetch(a):
    a(f"""
    s_getpc_b64 s[40:41]
    L_pcref:
    s_lshr_b32 s42, s2, 3
    s_lshl_b32 s42, s42, 11
    v_lshlrev_b32 v26, 7, v1
    v_add_u32 v26, s42, v26
    s_mov_b32 s43, L_exit-L_pcref
    v_cmp_gt_u32 vcc, s43, v26
    s_nop 4
    s_and_b32 vcc_lo, vcc_lo, 0xffff
    s_mov_b32 vcc_hi, 0
    s_mov_b64 exec, vcc
    s_cbranch_execz L_pcskip
    global_load_dword v31, v26, s[40:41]
    L_pcskip:
    s_mov_b64 exec, -1
    """)

def tlb_warm(a):
    G = int(E('TLBG', '16'))
    a(f"""
    s_lshr_b32 s75, s2, 3
    v_lshlrev_b32 v166, 5, v1
    v_add_u32 v166, s75, v166
    v_lshlrev_b32 v166, {G}, v166
    """)
    n_ws = -(-WS_END >> G)
    a(f"s_mov_b64 exec, {(1 << min(31, -(-n_ws // 32))) - 1:#x}")
    a(f"buffer_load_dword v167, v166, s[{sWS}:{sWS+3}], 0 offen sc1")
    a("s_mov_b64 exec, 3")
    for k, (pp, size) in enumerate(((pW1, 640*3456), (pW2, 1728*1280), (pWO, 640*1280), (pOUT, 2048*1280))):
        make_srd(a, 8, pp, pp+1, 0, size)
        a(f"buffer_load_dword v167, v166, s[8:11], 0 offen sc1")
    a("s_mov_b64 exec, -1")

CODE_KB = 64
def gen_mega():
    a = Asm()
    a(f"""
    s_cmp_ge_u32 s2, 256
    s_cbranch_scc1 L_exit
    s_load_dwordx8 s[84:91], s[0:1], 0
    s_load_dwordx8 s[92:99], s[0:1], 32
    s_load_dwordx2 s[78:79], s[0:1], 64
    """)
    st_rt(a, 0); st(a, 1)
    a(f"""
    v_lshrrev_b32 v2, 6, v0
    s_nop 0
    v_readfirstlane_b32 s{sWV}, v2
    """)
    lane_id(a, 1)
    if not E('NOPF'):
        l = a.newlabel("pf")
        a(f"s_cmp_eq_u32 s{sWV}, 1")
        a(f"s_cbranch_scc0 {l}")
        code_prefetch(a)
        a.label(l)
    a("s_waitcnt lgkmcnt(0)")
    make_srd(a, sWS, pWS, pWS+1, 0, WS_END)
    L = CoreL(a, 'qkv', 'q')
    L.map_tiles("L_repack")
    a(f"""
    s_cmp_ge_u32 s{sWV}, 4
    s_cbranch_scc0 L_q_compute
    """)
    L.loader_setup()
    st(a, 2)
    q = VmQ()
    for s_ in range(PD):
        L.issue_A(s_); q.push(f"A{s_}", 4)
        if not FS: stamp(a, 9 + 2*s_, base=SB)
        L.issue_W(s_); q.push(f"W{s_}", 4)
        if not FS: stamp(a, 10 + 2*s_, base=SB)
    st(a, 3)
    make_srd(a, 44, pDBG, pDBG+1, 0, 256)
    a("v_lshlrev_b32 v71, 2, v1")
    a("v_mov_b32 v70, 0")
    PL = P0L(a, L)
    if E('P0L'):
        PL.issue(); q.push('p0l', 5)
    L.p0l = PL
    RP = Repack(a)
    RP.issue(defer=True)
    RP.save()
    L.ldstamps = True
    L.loader_main(q)
    st(a, 8)
    a("s_waitcnt lgkmcnt(0)")
    a("s_barrier")
    a("s_barrier")
    wave_only(a, 7, lambda: register_publish(a, 70))
    a("s_branch L_attn")
    a.label("L_q_compute")
    L.compute_setup()
    make_srd(a, 44, pDBG, pDBG+1, 0, 256)
    a(f"v_lshlrev_b32 v{L.vSt+27}, 2, v1")
    a(f"v_mov_b32 v{L.vSt+26}, 0")
    a(f"""
    s_cmp_ge_u32 s{L.sNt}, 10
    s_cbranch_scc1 L_q_vpath
    """)
    L.addr_qk()
    L.mainloop(True, 2)
    st(a, 3)
    a("s_barrier")
    stx(a, 'q_e1')
    L.epilogue_Y('qk')
    a("s_branch L_q_done")
    a.label("L_q_vpath")
    L.addr_v()
    L.mainloop(False, 2)
    st(a, 3)
    a("s_barrier")
    stx(a, 'q_e1')
    L.epilogue_X()
    a.label("L_q_done")
    stx(a, 'q_epi')
    a(f"buffer_load_dword v{L.vSt+26}, v{L.vSt+27}, s[44:47], 0 offen sc1")
    a("s_waitcnt vmcnt(0)")
    stx(a, 'q_drain')
    a("s_barrier")
    stx(a, 'q_e2')
    a(f"s_cmp_eq_u32 s{sWV}, 0")
    a("s_cbranch_scc0 L_attn")
    dbg_flag_wait(a, L.vSt + 26, landed=True)
    a(f"s_add_u32 s40, s{L.sNt}, {C_QKV}")
    arrive(a, 40, 4)
    st(a, 4)
    a("s_branch L_attn")
    a.label("L_repack")
    l = a.newlabel("zc")
    a(f"""
    s_xor_b32 s40, s2, 225
    s_or_b32 s40, s40, s{sWV}
    s_cmp_eq_u32 s40, 0
    s_cbranch_scc0 {l}
    v_mov_b32 v4, 0
    v_mov_b32 v5, 0
    v_mov_b32 v6, 0
    v_mov_b32 v7, 0
    v_lshlrev_b32 v8, 4, v1
    s_mov_b32 s40, {WS_CNT}
    """)
    for j in range(SZ_CNT // 1024):
        a(f"buffer_store_dwordx4 v[4:7], v8, s[{sWS}:{sWS+3}], s40 offen {SC}")
        a("s_add_u32 s40, s40, 1024")
    make_srd(a, 8, pDBG, pDBG+1, 0, 256)
    a(f"""
    s_waitcnt vmcnt(0)
    v_mov_b32 v4, 1
    v_mov_b32 v5, 0
    s_mov_b64 exec, 1
    buffer_store_dword v4, v5, s[8:11], 0 offen sc1
    s_mov_b64 exec, -1
    """)
    a.label(l)
    make_srd(a, 44, pDBG, pDBG+1, 0, 256)
    a(f"v_lshlrev_b32 v71, 2, v1")
    a(f"v_mov_b32 v70, 0")
    a(f"""
    s_and_b32 s21, s2, 7
    s_lshr_b32 s21, s21, 1
    s_lshl_b32 s21, s21, 2
    s_lshr_b32 s22, s2, 3
    s_and_b32 s22, s22, 3
    s_add_u32 s21, s21, s22
    """)
    idle_rows(a, 21)
    a("s_waitcnt vmcnt(0)")
    a(f"buffer_load_dword v70, v71, s[44:47], 0 offen sc1")
    a("s_barrier")
    def st_arr():
        dbg_flag_wait(a, 70)
        a(f"s_add_u32 s76, s21, {C_ST}")
        arrive(a, 76, 64)
    wave_only(a, 0, st_arr)
    def regall():
        LANDED[0] = False
        reg_step1(a, 70); reg_step2(a, 70); reg_step3(a, 70); register_publish(a, 70)
    wave_only(a, 7, regall)
    l = a.newlabel("rpl")
    a(f"s_cmp_ge_u32 s{sWV}, 4")
    a(f"s_cbranch_scc0 {l}")
    RP2 = Repack(a)
    RP2.issue(defer=True)
    RP2.save()
    a.label(l)
    def fl():
        a(f"buffer_load_dword v70, v71, s[44:47], 0 offen sc1")
        dbg_flag_wait(a, 70)
    wave_only(a, 4, fl)
    a("s_barrier")
    a.label("L_attn")
    emit_attention(a, None)
    S = CoreS(a, 'oproj')
    lane_id(a, 1)
    S.map_tiles()
    a(f"""
    s_cmp_ge_u32 s{sWV}, 4
    s_cbranch_scc0 L_o_compute
    """)
    S.loader_setup()
    q = VmQ()
    for s_ in range(PD):
        S.issue_W(s_); q.push(f"W{s_}", 5)
    lw = a.newlabel("ow")
    a(f"s_cmp_eq_u32 s{sWV}, 4")
    a(f"s_cbranch_scc0 {lw}")
    a(f"s_add_u32 s40, s{sX}, {C_ATT}")
    poll_f(a, 40, 32, 8)
    a.label(lw)
    stx(a, 'o_poll')
    a("s_barrier")
    for s_ in range(PD):
        S.issue_A(s_); q.push(f"A{s_}", 4)
    S.loader_main(q)
    a("s_barrier")
    F1 = CoreL(a, 'ffn1', 'f')
    F1.map_tiles("L_o_ld_idle")
    F1.loader_setup()
    q = VmQ()
    a("s_barrier")
    for s_ in range(PD):
        F1.issue_W(s_); q.push(f"W{s_}", 4)
    a("s_branch L_f1_loader")
    a.label("L_o_ld_idle")
    a("s_barrier")
    a("s_branch L_f2_loader0")
    a.label("L_o_compute")
    lw = a.newlabel("oa")
    a(f"s_cmp_eq_u32 s{sWV}, 0")
    a(f"s_cbranch_scc0 {lw}")
    arrive_f(a, 76, sRk, 4)
    st(a, 8)
    a.label(lw)
    S.compute_setup()
    S.pretouch()
    S.residual_loads()
    a("s_barrier")
    st(a, 9)
    stx(a, 'o_X')
    S.mainloop(tag='o')
    stx(a, 'o_loop')
    S.reduce()
    stx(a, 'o_red')
    a("s_barrier")
    S.epilogue()
    stx(a, 'o_epi')
    a("s_waitcnt vmcnt(0)")
    stx(a, 'o_drain')
    a("s_barrier")
    stx(a, 'o_e2')
    lw = a.newlabel("oa2")
    a(f"s_cmp_eq_u32 s{sWV}, 0")
    a(f"s_cbranch_scc0 {lw}")
    a(f"s_lshr_b32 s40, s{S.sM0}, 7")
    a(f"s_add_u32 s40, s40, {C_OP}")
    a(f"s_lshr_b32 s41, s{S.sM0}, 6")
    a(f"s_and_b32 s41, s41, 1")
    a(f"s_lshl_b32 s41, s41, 3")
    a(f"s_add_u32 s41, s41, s{S.sNt}")
    arrive_f(a, 40, 41, 4)
    st(a, 10)
    a.label(lw)
    lane_id(a, 1)
    F1.map_tiles("L_f2_compute0")
    a("s_branch L_f1_compute")
    a.label("L_f1_loader")
    lw = a.newlabel("fw")
    a(f"s_cmp_eq_u32 s{sWV}, 4")
    a(f"s_cbranch_scc0 {lw}")
    a(f"s_lshr_b32 s40, s{F1.sM0}, 7")
    a(f"s_add_u32 s40, s40, {C_OP}")
    stx(a, 'f_p0')
    poll_f(a, 40, 16, 8)
    a.label(lw)
    stx(a, 'f_poll')
    a("s_barrier")
    for s_ in range(PD):
        F1.issue_A(s_); q.push(f"A{s_}", 4)
    F1.lstats_init()
    F1.loader_main(q)
    a("s_waitcnt lgkmcnt(0)")
    a("s_barrier")
    S2 = CoreS(a, 'ffn2')
    S2.map_tiles()
    S2.loader_setup()
    q = VmQ()
    a("s_barrier")
    if E('PFW2B'):
        for j in range(9):
            wave_only(a, 4 + (j % 4), lambda: w2p_prefetch(a, j))
    for s_ in range(PD):
        S2.issue_W(s_); q.push(f"W{s_}", 5)
    a("s_branch L_f2_loader")
    a.label("L_f2_loader0")
    if E('PFW2') or E('PFW2B'):
        for j in range(9):
            wave_only(a, 4 + (j % 4), lambda: w2p_prefetch(a, j))
    S2.map_tiles()
    S2.loader_setup()
    for s_ in range(PD):
        S2.issue_W(s_)
    a.label("L_f2_loader")
    lw = a.newlabel("gw")
    a(f"s_cmp_eq_u32 s{sWV}, 4")
    a(f"s_cbranch_scc0 {lw}")
    a(f"s_lshr_b32 s40, s{S2.sM0}, 7")
    a(f"s_add_u32 s40, s40, {C_F1}")
    poll_f(a, 40, 14, 8)
    a.label(lw)
    a("s_barrier")
    for s_ in range(PD):
        S2.issue_A(s_); q.push(f"A{s_}", 4)
    S2.loader_main(q)
    if common.STAMPS:
        stamp_flush(a, 0, sWV, base=SB, vt=90)
    a("s_endpgm")
    a.label("L_f1_compute")
    F1.compute_setup()
    F1.addr_f()
    a("s_barrier")
    st(a, 11)
    stx(a, 'f_X')
    F1.mainloop(True, tag='f')
    stx(a, 'f_loop')
    a("s_barrier")
    F1.epilogue_Y('ffn1')
    stx(a, 'f_epi')
    a("s_waitcnt vmcnt(0)")
    stx(a, 'f_drain')
    a("s_barrier")
    lw = a.newlabel("fa")
    a(f"s_cmp_eq_u32 s{sWV}, 0")
    a(f"s_cbranch_scc0 {lw}")
    a(f"s_lshr_b32 s40, s{F1.sM0}, 7")
    a(f"s_add_u32 s40, s40, {C_F1}")
    arrive_f(a, 40, F1.sNt, 4)
    st(a, 12)
    a.label(lw)
    lane_id(a, 1)
    a.label("L_f2_compute0")
    S2.map_tiles()
    S2.compute_setup()
    a("s_barrier")
    st(a, 13)
    stx(a, 'g_X')
    S2.residual_loads()
    S2.mainloop(tag='g')
    stx(a, 'g_loop')
    S2.reduce()
    stx(a, 'g_red')
    S2.epilogue()
    stx(a, 'g_epi')
    if common.STAMPS:
        a("s_waitcnt vmcnt(0)")
        st(a, 14); st_rt(a, 15)
        stamp_flush(a, 0, sWV, base=SB, vt=90)
        if E('DBGOUT'):
            l = a.newlabel("dbo")
            a(f"s_cmp_eq_u32 s2, 9")
            a(f"s_cbranch_scc0 {l}")
            a(f"s_cmp_eq_u32 s{sWV}, 0")
            a(f"s_cbranch_scc0 {l}")
            make_srd(a, 8, pDBG, pDBG+1, 0, 256)
            a("s_mov_b64 exec, 1")
            pairs = [(15, 0), (14, 1), (2, 1), (3, 1), (4, 1), (5, 1), (6, 1), (7, 1), (9, 1), (11, 1), (13, 1)]
            for k, (x, y) in enumerate(pairs):
                a(f"s_sub_u32 s40, s{SB+x}, s{SB+y}")
                a(f"v_mov_b32 v4, s40")
                a(f"v_mov_b32 v5, {16 + 4*k}")
                a(f"buffer_store_dword v4, v5, s[8:11], 0 offen")
            a("s_waitcnt vmcnt(0)")
            a.label(l)
    a.label("L_exit")
    a("s_endpgm")
    return kernel_header(NAME) + a.text() + kernel_desc(NAME, 256, 176, sgpr=102)
```

```python
from common import *
import common, os
E = os.environ.get

NAME = "sequential_preLN__softmax_full_mha__dense_activation_relu__prompt_kernel"
pX, pWQ, pWO, pW1, pW2, pOUT, pDBG, pWS = 84, 86, 88, 92, 94, 96, 98, 78
sWS = 80
sWV = 100
sPoll = 101
SB = 48
STAT = 145408
LDS_TOTAL = 149504
SC = "sc1"
sX, sRk, sLoc = 72, 73, 74
ROLE = LDS_TOTAL - 64
POLL_MAX = 1 << 22

FS = E('FS', '').split(',') if E('FS') else []
FS0 = int(E('FS0', '9'))
def st(a, i):
    if FS and (i >= FS0) and i != 15: return
    stamp(a, i, base=SB)
def st2(a, i): pass
def stx(a, tag):
    if tag in FS: stamp(a, FS0 + FS.index(tag), base=SB)
def st_rt(a, i): stamp_rt(a, i, base=SB)

def lane_id(a, v):
    a(f"v_mbcnt_lo_u32_b32 v{v}, -1, 0")
    a(f"v_mbcnt_hi_u32_b32 v{v}, -1, v{v}")

def arrive(a, sIdx, vt):
    a(f"""
    s_lshl_b32 s{sPoll}, s{sIdx}, 7
    s_add_u32 s{sPoll}, s{sPoll}, {WS_CNT}
    v_mov_b32 v{vt}, s{sPoll}
    v_mov_b32 v{vt+1}, 1
    s_mov_b64 exec, 1
    buffer_atomic_add v{vt+1}, v{vt}, s[{sWS}:{sWS+3}], 0 offen sc1
    s_mov_b64 exec, -1
    """)

def dual(a, instrs):
    l0, l1 = a.newlabel("slow"), a.newlabel("dd")
    a(f"s_cmp_eq_u32 s{sLoc}, 0")
    a(f"s_cbranch_scc1 {l0}")
    for i in instrs: a(i.replace("@SC", E('LOCFL', '') if 'store' in i else ''))
    a(f"s_branch {l1}")
    a.label(l0)
    for i in instrs: a(i.replace("@SC", "sc1"))
    a.label(l1)

def arrive_l(a, sIdx, vt):
    a(f"""
    s_lshl_b32 s{sPoll}, s{sIdx}, 7
    s_add_u32 s{sPoll}, s{sPoll}, {WS_CNT}
    v_mov_b32 v{vt}, s{sPoll}
    v_mov_b32 v{vt+1}, 1
    s_mov_b64 exec, 1
    """)
    dual(a, [f"buffer_atomic_add v{vt+1}, v{vt}, s[{sWS}:{sWS+3}], 0 offen @SC"])
    a("s_mov_b64 exec, -1")

def arrive_f(a, sIdx, sSlot, vt):
    a(f"""
    s_lshl_b32 s{sPoll}, s{sIdx}, 7
    s_add_u32 s{sPoll}, s{sPoll}, {WS_CNT}
    s_lshl_b32 s75, s{sSlot}, 2
    s_add_u32 s{sPoll}, s{sPoll}, s75
    v_mov_b32 v{vt}, s{sPoll}
    v_mov_b32 v{vt+1}, 1
    s_mov_b64 exec, 1
    """)
    dual(a, [f"buffer_store_dword v{vt+1}, v{vt}, s[{sWS}:{sWS+3}], 0 offen @SC"])
    a("s_mov_b64 exec, -1")

def poll_f(a, sIdx, n, vt):
    a(f"""
    s_lshl_b32 s{sPoll}, s{sIdx}, 7
    s_add_u32 s{sPoll}, s{sPoll}, {WS_CNT}
    v_lshlrev_b32 v{vt+1}, 2, v1
    v_add_u32 v{vt+1}, s{sPoll}, v{vt+1}
    v_mov_b32 v{vt+2}, 1
    """)
    poll(a, vt + 1, vt + 2, n, vt)

def poll(a, vOff, vTgt, nl, vt, slp=1):
    l0, l1 = a.newlabel("poll"), a.newlabel("pollok")
    a(f"s_mov_b64 exec, {(1 << nl) - 1:#x}")
    a(f"s_mov_b32 s{sPoll}, 0")
    a.label(l0)
    a(f"""
    buffer_load_dword v{vt}, v{vOff}, s[{sWS}:{sWS+3}], 0 offen sc1
    s_waitcnt vmcnt(0)
    v_cmp_gt_u32 vcc, v{vTgt}, v{vt}
    s_nop 4
    s_cmp_eq_u64 vcc, 0
    s_cbranch_scc1 {l1}
    s_add_u32 s{sPoll}, s{sPoll}, 1
    s_cmp_gt_u32 s{sPoll}, {POLL_MAX}
    s_cbranch_scc1 {l1}
    s_sleep {slp}
    s_branch {l0}
    """)
    a.label(l1)
    a("s_mov_b64 exec, -1")

def poll1(a, sIdx, target, vt):
    a(f"""
    s_lshl_b32 s{sPoll}, s{sIdx}, 7
    s_add_u32 s{sPoll}, s{sPoll}, {WS_CNT}
    v_mov_b32 v{vt+1}, s{sPoll}
    v_mov_b32 v{vt+2}, {target}
    """)
    poll(a, vt + 1, vt + 2, 1, vt)

def wave_sum(a, v):
    for sh in (1, 2, 4, 8):
        a(f"v_add_f32_dpp v{v}, v{v}, v{v} row_shr:{sh} row_mask:0xf bank_mask:0xf bound_ctrl:0")
        a("s_nop 1")
    a(f"v_add_f32_dpp v{v}, v{v}, v{v} row_bcast:15 row_mask:0xa bank_mask:0xf")
    a("s_nop 1")
    a(f"v_add_f32_dpp v{v}, v{v}, v{v} row_bcast:31 row_mask:0xc bank_mask:0xf")
    a("s_nop 1")

def p0_rows_issue(a, sXs, s0, vR, vA):
    a(f"""
    s_lshl_b32 s{s0}, s2, 3
    s_lshl_b32 s{s0+1}, s{sWV}, 1
    s_add_u32 s{s0}, s{s0}, s{s0+1}
    s_mul_i32 s{s0+2}, s{s0}, 1280
    v_lshlrev_b32 v{vA}, 4, v1
    v_lshlrev_b32 v{vA+1}, 2, v1
    s_add_u32 s{s0+3}, s{s0+2}, 1280
    buffer_load_dwordx4 {vr(vR,4)}, v{vA}, s[{sXs}:{sXs+3}], s{s0+2} offen
    buffer_load_dword v{vR+4}, v{vA+1}, s[{sXs}:{sXs+3}], s{s0+2} offen offset:1024
    buffer_load_dwordx4 {vr(vR+6,4)}, v{vA}, s[{sXs}:{sXs+3}], s{s0+3} offen
    buffer_load_dword v{vR+5}, v{vA+1}, s[{sXs}:{sXs+3}], s{s0+3} offen offset:1024
    """)
def p0_rows_finish(a, s0, vR, vA):
    for rr in range(2):
        regs = [vR + 6*rr + i for i in range(4)] + [vR + 4 + rr]
        S, Q, U = vA + 4, vA + 5, vA + 6
        for n, r in enumerate(regs):
            a(f"v_lshlrev_b32 v{U}, 16, v{r}")
            a(f"v_and_b32 v{U+1}, 0xffff0000, v{r}")
            if n == 0:
                a(f"v_add_f32 v{S}, v{U}, v{U+1}")
                a(f"v_mul_f32 v{Q}, v{U}, v{U}")
            else:
                a(f"v_add_f32 v{S}, v{S}, v{U}")
                a(f"v_add_f32 v{S}, v{S}, v{U+1}")
                a(f"v_fmac_f32 v{Q}, v{U}, v{U}")
            a(f"v_fmac_f32 v{Q}, v{U+1}, v{U+1}")
        a("s_nop 1")
        for sh in (1, 2, 4, 8):
            a(f"v_add_f32_dpp v{S}, v{S}, v{S} row_shr:{sh} row_mask:0xf bank_mask:0xf bound_ctrl:0")
            a(f"v_add_f32_dpp v{Q}, v{Q}, v{Q} row_shr:{sh} row_mask:0xf bank_mask:0xf bound_ctrl:0")
            a("s_nop 0")
        a(f"v_add_f32_dpp v{S}, v{S}, v{S} row_bcast:15 row_mask:0xa bank_mask:0xf")
        a(f"v_add_f32_dpp v{Q}, v{Q}, v{Q} row_bcast:15 row_mask:0xa bank_mask:0xf")
        a("s_nop 0")
        a(f"v_add_f32_dpp v{S}, v{S}, v{S} row_bcast:31 row_mask:0xc bank_mask:0xf")
        a(f"v_add_f32_dpp v{Q}, v{Q}, v{Q} row_bcast:31 row_mask:0xc bank_mask:0xf")
        a(f"""
        s_nop 0
        v_mul_f32 v{S}, {f32bits(1.0/640):#x}, v{S}
        v_mul_f32 v{Q}, {f32bits(1.0/640):#x}, v{Q}
        v_fma_f32 v{Q}, -v{S}, v{S}, v{Q}
        v_max_f32 v{Q}, 0, v{Q}
        v_add_f32 v{Q}, {f32bits(1e-5):#x}, v{Q}
        v_rsq_f32 v{Q}, v{Q}
        s_nop 0
        v_mov_b32 v{vA+8+2*rr}, v{S}
        v_mov_b32 v{vA+9+2*rr}, v{Q}
        """)
    a(f"""
    s_lshl_b32 s{s0+4}, s{s0}, 3
    s_add_u32 s{s0+4}, s{s0+4}, {WS_ST1}
    v_mov_b32 v{vA+4}, 0
    s_mov_b32 exec_lo, 0
    s_mov_b32 exec_hi, 0x80000000
    buffer_store_dwordx4 {vr(vA+8,4)}, v{vA+4}, s[{sWS}:{sWS+3}], s{s0+4} offen {SC}
    s_mov_b64 exec, -1
    """)
def colsum_issue(a, which, srd, sW4, s0, vC, vA):
    ld = 3840 if which == 'wq' else 3456
    a(f"""
    s_and_b32 s{s0+1}, s2, 7
    s_lshr_b32 s{s0+2}, s2, 3
    s_lshr_b32 s{s0+3}, s{s0+1}, 1
    s_lshl_b32 s{s0+3}, s{s0+3}, 5
    s_add_u32 s{s0+2}, s{s0+2}, s{s0+3}
    s_and_b32 s{s0+1}, s{s0+1}, 1
    s_and_b32 s{s0+3}, s{s0+2}, 15
    s_lshr_b32 s{s0+2}, s{s0+2}, 4
    v_lshrrev_b32 v{vA}, 3, v1
    v_and_b32 v{vA+1}, 7, v1
    v_lshlrev_b32 v{vA+1}, 2, v{vA+1}
    v_mul_u32_u24 v{vA+2}, {ld}, v{vA}
    v_add_u32 v{vA+2}, v{vA+2}, v{vA+1}
    s_lshl_b32 s{s0+4}, s{s0+3}, 6
    s_lshl_b32 s{s0+7}, s{sW4}, 4
    s_add_u32 s{s0+4}, s{s0+4}, s{s0+7}
    s_mul_i32 s{s0+5}, s{s0+1}, {1024 if which == 'wq' else 896}
    s_add_u32 s{s0+5}, s{s0+5}, s{s0+4}
    s_mul_i32 s{s0+7}, s{s0+2}, {80*ld}
    s_lshl_b32 s{s0+4}, s{s0+5}, 1
    s_add_u32 s{s0+7}, s{s0+7}, s{s0+4}
    """)
    for j in range(10):
        a(f"buffer_load_dword v{vC+j}, v{vA+2}, s[{srd}:{srd+3}], s{s0+7} offen")
        if j < 9: a(f"s_add_u32 s{s0+7}, s{s0+7}, {8*ld}")
def colsum_finish(a, which, s0, vC, vA):
    base, ncol = (WS_CS1, 1920) if which == 'wq' else (WS_CS2, 1792)
    A0, A1, U = vA + 4, vA + 5, vA + 6
    for j in range(10):
        if j == 0:
            a(f"v_lshlrev_b32 v{A0}, 16, v{vC}")
            a(f"v_and_b32 v{A1}, 0xffff0000, v{vC}")
        else:
            a(f"v_lshlrev_b32 v{U}, 16, v{vC+j}")
            a(f"v_and_b32 v{U+1}, 0xffff0000, v{vC+j}")
            a(f"v_add_f32 v{A0}, v{A0}, v{U}")
            a(f"v_add_f32 v{A1}, v{A1}, v{U+1}")
    a(f"""
    s_nop 1
    v_add_f32_dpp v{A0}, v{A0}, v{A0} row_ror:8 row_mask:0xf bank_mask:0xf
    v_add_f32_dpp v{A1}, v{A1}, v{A1} row_ror:8 row_mask:0xf bank_mask:0xf
    s_nop 1
    v_mov_b32 v{U}, v{A0}
    v_mov_b32 v{U+1}, v{A1}
    s_nop 1
    v_permlane16_swap_b32 v{A0}, v{U}
    v_permlane16_swap_b32 v{A1}, v{U+1}
    s_nop 1
    v_add_f32 v{A0}, v{A0}, v{U}
    v_add_f32 v{A1}, v{A1}, v{U+1}
    s_nop 0
    v_mov_b32 v{U}, v{A0}
    v_mov_b32 v{U+1}, v{A1}
    s_nop 1
    v_permlane32_swap_b32 v{A0}, v{U}
    v_permlane32_swap_b32 v{A1}, v{U+1}
    s_nop 1
    v_add_f32 v{vA+12}, v{A0}, v{U}
    v_add_f32 v{vA+13}, v{A1}, v{U+1}
    v_lshlrev_b32 v{U}, 3, v1
    s_mul_i32 s{s0+4}, s{s0+2}, {ncol*4}
    s_lshl_b32 s{s0+7}, s{s0+5}, 2
    s_add_u32 s{s0+4}, s{s0+4}, s{s0+7}
    s_add_u32 s{s0+4}, s{s0+4}, {base}
    """)
    lab = a.newlabel("p0skip")
    if which == 'wq':
        a(f"s_cmp_ge_u32 s{s0+5}, 1920")
    else:
        a(f"s_sub_u32 s{s0+7}, 14, s{s0+1}")
        a(f"s_cmp_ge_u32 s{s0+3}, s{s0+7}")
    a(f"s_cbranch_scc1 {lab}")
    a("s_mov_b64 exec, 0xff")
    a(f"buffer_store_dwordx2 {vr(vA+12,2)}, v{U}, s[{sWS}:{sWS+3}], s{s0+4} offen {SC}")
    a("s_mov_b64 exec, -1")
    a.label(lab)
def emit_p0(a):
    sXs, sWq, s0 = 8, 12, 40
    vR, vC, vA = 4, 14, 34
    make_srd(a, sXs, pX, pX+1, 0, 2048*1280)
    make_srd(a, sWq, pWQ, pWQ+1, 0, 640*3840)
    p0_rows_issue(a, sXs, s0, vR, vA)
    a(f"s_mov_b32 s39, s{s0}")
    colsum_issue(a, 'wq', sWq, sWV, s0, vC, vA + 12)
    a("s_waitcnt vmcnt(10)")
    a(f"s_mov_b32 s38, s{s0+4}")
    p0_rows_finish(a, 39, vR, vA) if False else None
    p0_rows_finish_b(a, 39, 38, vR, vA)
    a("s_waitcnt vmcnt(1)")
    colsum_finish(a, 'wq', s0, vC, vA + 12)
def p0_rows_finish_b(a, sRow, sTmp, vR, vA):
    import io
    class Tmp: pass
    for rr in range(2):
        regs = [vR + 6*rr + i for i in range(4)] + [vR + 4 + rr]
        S, Q, U = vA + 4, vA + 5, vA + 6
        for n, r in enumerate(regs):
            a(f"v_lshlrev_b32 v{U}, 16, v{r}")
            a(f"v_and_b32 v{U+1}, 0xffff0000, v{r}")
            if n == 0:
                a(f"v_add_f32 v{S}, v{U}, v{U+1}")
                a(f"v_mul_f32 v{Q}, v{U}, v{U}")
            else:
                a(f"v_add_f32 v{S}, v{S}, v{U}")
                a(f"v_add_f32 v{S}, v{S}, v{U+1}")
                a(f"v_fmac_f32 v{Q}, v{U}, v{U}")
            a(f"v_fmac_f32 v{Q}, v{U+1}, v{U+1}")
        a("s_nop 1")
        for sh in (1, 2, 4, 8):
            a(f"v_add_f32_dpp v{S}, v{S}, v{S} row_shr:{sh} row_mask:0xf bank_mask:0xf bound_ctrl:0")
            a(f"v_add_f32_dpp v{Q}, v{Q}, v{Q} row_shr:{sh} row_mask:0xf bank_mask:0xf bound_ctrl:0")
            a("s_nop 0")
        a(f"v_add_f32_dpp v{S}, v{S}, v{S} row_bcast:15 row_mask:0xa bank_mask:0xf")
        a(f"v_add_f32_dpp v{Q}, v{Q}, v{Q} row_bcast:15 row_mask:0xa bank_mask:0xf")
        a("s_nop 0")
        a(f"v_add_f32_dpp v{S}, v{S}, v{S} row_bcast:31 row_mask:0xc bank_mask:0xf")
        a(f"v_add_f32_dpp v{Q}, v{Q}, v{Q} row_bcast:31 row_mask:0xc bank_mask:0xf")
        a(f"""
        s_nop 0
        v_mul_f32 v{S}, {f32bits(1.0/640):#x}, v{S}
        v_mul_f32 v{Q}, {f32bits(1.0/640):#x}, v{Q}
        v_fma_f32 v{Q}, -v{S}, v{S}, v{Q}
        v_max_f32 v{Q}, 0, v{Q}
        v_add_f32 v{Q}, {f32bits(1e-5):#x}, v{Q}
        v_rsq_f32 v{Q}, v{Q}
        s_nop 0
        v_mov_b32 v{vA+8+2*rr}, v{S}
        v_mov_b32 v{vA+9+2*rr}, v{Q}
        """)
    a(f"""
    s_lshl_b32 s{sTmp}, s{sRow}, 3
    s_add_u32 s{sTmp}, s{sTmp}, {WS_ST1}
    v_mov_b32 v{vA+4}, 0
    s_mov_b32 exec_lo, 0
    s_mov_b32 exec_hi, 0x80000000
    buffer_store_dwordx4 {vr(vA+8,4)}, v{vA+4}, s[{sWS}:{sWS+3}], s{sTmp} offen {SC}
    s_mov_b64 exec, -1
    """)
def dbg_flag_issue(a, vt):
    make_srd(a, 44, pDBG, pDBG+1, 0, 256)
    a(f"v_mov_b32 v{vt+1}, 0")
    a(f"buffer_load_dword v{vt}, v{vt+1}, s[44:47], 0 offen sc1")
def dbg_flag_issue_b(a, vt):
    make_srd(a, 16, pDBG, pDBG+1, 0, 256)
    a(f"v_mov_b32 v{vt+1}, 0")
    a(f"buffer_load_dword v{vt}, v{vt+1}, s[16:19], 0 offen sc1")
def dbg_flag_wait(a, vt, srd=44, landed=False):
    l0, l1, l2 = a.newlabel("dbgp"), a.newlabel("dbgok"), a.newlabel("dbgc")
    a(f"s_mov_b32 s{sPoll}, 0")
    if landed: a(f"s_branch {l2}")
    a.label(l0)
    a("s_waitcnt vmcnt(0)")
    a.label(l2)
    a(f"""
    v_readfirstlane_b32 s75, v{vt}
    s_cmp_lg_u32 s75, 0
    s_cbranch_scc1 {l1}
    s_add_u32 s{sPoll}, s{sPoll}, 1
    s_cmp_gt_u32 s{sPoll}, {POLL_MAX}
    s_cbranch_scc1 {l1}
    s_sleep 1
    buffer_load_dword v{vt}, v{vt+1}, s[{srd}:{srd+3}], 0 offen sc1
    s_branch {l0}
    """)
    a.label(l1)
def dbg_flag_wait_arrive_b(a, cbase, vt):
    dbg_flag_wait_arrive(a, cbase, vt, 16)
def dbg_flag_wait_arrive(a, cbase, vt, srd=44):
    l0, l1 = a.newlabel("dbgp"), a.newlabel("dbgok")
    a(f"s_mov_b32 s{sPoll}, 0")
    a.label(l0)
    a(f"""
    s_waitcnt vmcnt(0)
    v_readfirstlane_b32 s75, v{vt}
    s_cmp_lg_u32 s75, 0
    s_cbranch_scc1 {l1}
    s_add_u32 s{sPoll}, s{sPoll}, 1
    s_cmp_gt_u32 s{sPoll}, {POLL_MAX}
    s_cbranch_scc1 {l1}
    s_sleep 1
    buffer_load_dword v{vt}, v{vt+1}, s[{srd}:{srd+3}], 0 offen sc1
    s_branch {l0}
    """)
    a.label(l1)
    a(f"s_and_b32 s75, s2, 7")
    a(f"s_add_u32 s75, s75, {cbase}")
    arrive(a, 75, vt)

class P0Q:
    vR, vC, vD, vA = 64, 84, 94, 104
    def __init__(self, a, L):
        self.a, self.L = a, L
    def issue(self):
        a, L = self.a, self.L
        vR, vC, vD, vA = self.vR, self.vC, self.vD, self.vA
        sXs, sWq = L.sA, L.sW
        sW1 = 16
        make_srd(a, sW1, pW1, pW1+1, 0, 640*3456)
        a(f"""
        v_lshrrev_b32 v2, 4, v1
        v_and_b32 v3, 15, v1
        s_lshl_b32 s40, s{L.sNt}, 4
        s_add_u32 s40, s40, s{L.sM0}
        s_lshl_b32 s41, s{L.sLw}, 2
        s_add_u32 s40, s40, s41
        s_cmp_lt_u32 s{L.sNt}, 8
        s_cselect_b32 s40, s40, 4096
        v_add_u32 v{vA}, s40, v2
        v_mul_u32_u24 v{vA+1}, 1280, v{vA}
        v_lshlrev_b32 v{vA+2}, 4, v3
        v_add_u32 v{vA+1}, v{vA+1}, v{vA+2}
        """)
        for j in range(5):
            a(f"buffer_load_dwordx4 {vr(vR+4*j,4)}, v{vA+1}, s[{sXs}:{sXs+3}], 0 offen offset:{256*j}")
        a(f"""
        s_lshr_b32 s41, s{L.sM0}, 7
        s_mul_i32 s42, s41, {40*3840}
        s_lshl_b32 s43, s{L.sLw}, 5
        s_add_u32 s43, s43, s{L.sN0}
        s_lshl_b32 s40, s43, 1
        s_add_u32 s42, s42, s40
        v_mul_u32_u24 v{vA+2}, 3840, v2
        v_lshlrev_b32 v{vA+3}, 2, v3
        v_add_u32 v{vA+2}, v{vA+2}, v{vA+3}
        """)
        for j in range(10):
            a(f"buffer_load_dword v{vC+j}, v{vA+2}, s[{sWq}:{sWq+3}], s42 offen")
            if j < 9: a(f"s_add_u32 s42, s42, {4*3840}")
        a(f"""
        s_mul_i32 s42, s41, {40*3456}
        s_add_u32 s42, s42, s40
        s_cmp_lt_u32 s{L.sNt}, 14
        s_cselect_b32 s42, s42, 0x7f000000
        v_mul_u32_u24 v{vA+4}, 3456, v2
        v_add_u32 v{vA+4}, v{vA+4}, v{vA+3}
        """)
        for j in range(10):
            a(f"buffer_load_dword v{vD+j}, v{vA+4}, s[{sW1}:{sW1+3}], s42 offen")
            if j < 9: a(f"s_add_u32 s42, s42, {4*3456}")
    def rows(self):
        a, L = self.a, self.L
        vR, vA = self.vR, self.vA
        S, Q, U = vA + 5, vA + 6, vA + 8
        for n in range(20):
            r = vR + n
            u = U + 2*(n & 1)
            a(f"v_lshlrev_b32 v{u}, 16, v{r}")
            a(f"v_and_b32 v{u+1}, 0xffff0000, v{r}")
            if n == 0:
                a(f"v_add_f32 v{S}, v{u}, v{u+1}")
                a(f"v_mul_f32 v{Q}, v{u}, v{u}")
            else:
                a(f"v_add_f32 v{S}, v{S}, v{u}")
                a(f"v_fmac_f32 v{Q}, v{u}, v{u}")
                a(f"v_add_f32 v{S}, v{S}, v{u+1}")
            a(f"v_fmac_f32 v{Q}, v{u+1}, v{u+1}")
        a("s_nop 1")
        for sh in (1, 2, 4, 8):
            a(f"v_add_f32_dpp v{S}, v{S}, v{S} row_shr:{sh} row_mask:0xf bank_mask:0xf bound_ctrl:0")
            a(f"v_add_f32_dpp v{Q}, v{Q}, v{Q} row_shr:{sh} row_mask:0xf bank_mask:0xf bound_ctrl:0")
            a("s_nop 0")
        a(f"""
        v_mul_f32 v{S}, {f32bits(1.0/640):#x}, v{S}
        v_mul_f32 v{Q}, {f32bits(1.0/640):#x}, v{Q}
        v_fma_f32 v{Q}, -v{S}, v{S}, v{Q}
        v_max_f32 v{Q}, 0, v{Q}
        v_add_f32 v{Q}, {f32bits(1e-5):#x}, v{Q}
        v_rsq_f32 v{Q}, v{Q}
        v_mov_b32 v{U}, v{S}
        v_lshlrev_b32 v{U+2}, 3, v{vA}
        v_mov_b32 v{U+3}, 0x7fffff00
        v_cmp_gt_u32 vcc, 2048, v{vA}
        v_mov_b32 v{U+1}, v{Q}
        v_cndmask_b32 v{U+2}, v{U+3}, v{U+2}, vcc
        s_mov_b32 s40, {WS_ST1}
        s_mov_b32 exec_lo, 0x80008000
        s_mov_b32 exec_hi, 0x80008000
        buffer_store_dwordx2 {vr(U,2)}, v{U+2}, s[{sWS}:{sWS+3}], s40 offen {SC}
        s_mov_b64 exec, -1
        """)
    def cols(self, which):
        a, L = self.a, self.L
        vA = self.vA
        regs, base, ncol, lim = (self.vC, WS_CS1, 1920, 15) if which == 0 else (self.vD, WS_CS2, 1792, 14)
        U = vA + 8
        A0, A1 = vA + 5, vA + 6
        for j in range(10):
            u = U + 2*(j & 1)
            if j == 0:
                a(f"v_lshlrev_b32 v{A0}, 16, v{regs}")
                a(f"v_and_b32 v{A1}, 0xffff0000, v{regs}")
            else:
                a(f"v_lshlrev_b32 v{u}, 16, v{regs+j}")
                a(f"v_and_b32 v{u+1}, 0xffff0000, v{regs+j}")
                a(f"v_add_f32 v{A0}, v{A0}, v{u}")
                a(f"v_add_f32 v{A1}, v{A1}, v{u+1}")
        a(f"""
        s_nop 0
        v_mov_b32 v{U}, v{A0}
        v_mov_b32 v{U+1}, v{A1}
        s_nop 1
        v_permlane16_swap_b32 v{A0}, v{U}
        v_permlane16_swap_b32 v{A1}, v{U+1}
        s_nop 1
        v_add_f32 v{A0}, v{A0}, v{U}
        v_add_f32 v{A1}, v{A1}, v{U+1}
        s_nop 0
        v_mov_b32 v{U}, v{A0}
        v_mov_b32 v{U+1}, v{A1}
        s_nop 1
        v_permlane32_swap_b32 v{A0}, v{U}
        v_permlane32_swap_b32 v{A1}, v{U+1}
        s_nop 1
        v_add_f32 v{U+4}, v{A0}, v{U}
        v_add_f32 v{U+5}, v{A1}, v{U+1}
        v_lshlrev_b32 v{U}, 3, v3
        s_mul_i32 s42, s41, {ncol*4}
        s_lshl_b32 s40, s43, 2
        s_add_u32 s42, s42, s40
        s_add_u32 s42, s42, {base}
        s_cmp_lt_u32 s{L.sNt}, {lim}
        s_cselect_b32 s42, s42, 0x7f000000
        s_mov_b64 exec, 0xffff
        buffer_store_dwordx2 {vr(U+4,2)}, v{U}, s[{sWS}:{sWS+3}], s42 offen {SC}
        s_mov_b64 exec, -1
        s_nop 1
        """)
def emit_p0r(a, L):
    sXs, vR, vA = 8, 146, 132
    make_srd(a, sXs, pX, pX+1, 0, 2048*1280)
    a(f"""
    v_lshrrev_b32 v166, 4, v1
    v_and_b32 v167, 15, v1
    s_lshl_b32 s75, s{L.sNt}, 4
    s_add_u32 s75, s75, s{L.sM0}
    s_lshl_b32 s76, s{sWV}, 2
    s_add_u32 s75, s75, s76
    s_cmp_lt_u32 s{L.sNt}, 8
    s_cselect_b32 s75, s75, 4096
    v_add_u32 v{vA}, s75, v166
    v_mul_u32_u24 v{vA+1}, 1280, v{vA}
    v_lshlrev_b32 v{vA+2}, 4, v167
    v_add_u32 v{vA+1}, v{vA+1}, v{vA+2}
    """)
    for j in range(5):
        a(f"buffer_load_dwordx4 {vr(vR+4*j,4)}, v{vA+1}, s[{sXs}:{sXs+3}], 0 offen offset:{256*j}")
def emit_p0r_finish(a, L, extra=0):
    vR, vA = 146, 132
    S, Q, S2, Q2, U = vA + 4, vA + 5, vA + 6, vA + 7, vA + 8
    for j in range(5):
        a(f"s_waitcnt vmcnt({4 - j + extra})")
        for n in range(4):
            r = vR + 4*j + n
            u = U + 2*(n & 1)
            a(f"v_lshlrev_b32 v{u}, 16, v{r}")
            a(f"v_and_b32 v{u+1}, 0xffff0000, v{r}")
            if j == 0 and n == 0:
                a(f"v_mov_b32 v{S}, v{u}")
                a(f"v_mul_f32 v{Q}, v{u}, v{u}")
                a(f"v_mov_b32 v{S2}, v{u+1}")
                a(f"v_mul_f32 v{Q2}, v{u+1}, v{u+1}")
            else:
                a(f"v_add_f32 v{S}, v{S}, v{u}")
                a(f"v_fmac_f32 v{Q}, v{u}, v{u}")
                a(f"v_add_f32 v{S2}, v{S2}, v{u+1}")
                a(f"v_fmac_f32 v{Q2}, v{u+1}, v{u+1}")
    a(f"v_add_f32 v{S}, v{S}, v{S2}")
    a(f"v_add_f32 v{Q}, v{Q}, v{Q2}")
    a("s_nop 1")
    for sh in (1, 2, 4, 8):
        a(f"v_add_f32_dpp v{S}, v{S}, v{S} row_shr:{sh} row_mask:0xf bank_mask:0xf bound_ctrl:0")
        a(f"v_add_f32_dpp v{Q}, v{Q}, v{Q} row_shr:{sh} row_mask:0xf bank_mask:0xf bound_ctrl:0")
        a("s_nop 0")
    a(f"""
    v_mul_f32 v{S}, {f32bits(1.0/640):#x}, v{S}
    v_mul_f32 v{Q}, {f32bits(1.0/640):#x}, v{Q}
    v_fma_f32 v{Q}, -v{S}, v{S}, v{Q}
    v_max_f32 v{Q}, 0, v{Q}
    v_add_f32 v{Q}, {f32bits(1e-5):#x}, v{Q}
    v_rsq_f32 v{Q}, v{Q}
    v_mov_b32 v{U}, v{S}
    v_lshlrev_b32 v{U+2}, 3, v{vA}
    v_mov_b32 v{U+3}, 0x7fffff00
    v_cmp_gt_u32 vcc, 2048, v{vA}
    v_mov_b32 v{U+1}, v{Q}
    v_cndmask_b32 v{U+2}, v{U+3}, v{U+2}, vcc
    s_mov_b32 s75, {WS_ST1}
    s_mov_b32 exec_lo, 0x80008000
    s_mov_b32 exec_hi, 0x80008000
    buffer_store_dwordx2 {vr(U,2)}, v{U+2}, s[{sWS}:{sWS+3}], s75 offen {SC}
    s_mov_b64 exec, -1
    """)
def idle_rows(a, sMt, hook=None):
    sXs, vR, vA = 8, 72, 4
    NP = 2 if E('P0L') else 4
    make_srd(a, sXs, pX, pX+1, 0, 2048*1280)
    a(f"""
    v_lshrrev_b32 v2, 4, v1
    v_and_b32 v3, 15, v1
    s_lshl_b32 s40, s{sMt}, 7
    s_lshl_b32 s41, s{sWV}, {3 if E('P0L') else 4}
    s_add_u32 s40, s40, s41
    v_add_u32 v{vA}, s40, v2
    v_mul_u32_u24 v{vA+1}, 1280, v{vA}
    v_lshlrev_b32 v{vA+2}, 4, v3
    v_add_u32 v{vA+1}, v{vA+1}, v{vA+2}
    """)
    for p in range(NP):
        a(f"s_mov_b32 s41, {p * 4 * 1280}")
        for j in range(5):
            a(f"buffer_load_dwordx4 {vr(vR + 20*p + 4*j, 4)}, v{vA+1}, s[{sXs}:{sXs+3}], s41 offen offset:{256*j}")
    S, Q, S2, Q2, U = vA + 4, vA + 5, vA + 6, vA + 7, vA + 8
    if hook: hook(-1)
    for p in range(NP):
        if hook and p > 0: hook(p - 1)
        a(f"s_waitcnt vmcnt({(NP - 1 - p) * 5 + p})")
        for n in range(20):
            r = vR + 20*p + n
            u = U + 2*(n & 1)
            a(f"v_lshlrev_b32 v{u}, 16, v{r}")
            a(f"v_and_b32 v{u+1}, 0xffff0000, v{r}")
            if n == 0:
                a(f"v_mov_b32 v{S}, v{u}")
                a(f"v_mul_f32 v{Q}, v{u}, v{u}")
                a(f"v_mov_b32 v{S2}, v{u+1}")
                a(f"v_mul_f32 v{Q2}, v{u+1}, v{u+1}")
            else:
                a(f"v_add_f32 v{S}, v{S}, v{u}")
                a(f"v_fmac_f32 v{Q}, v{u}, v{u}")
                a(f"v_add_f32 v{S2}, v{S2}, v{u+1}")
                a(f"v_fmac_f32 v{Q2}, v{u+1}, v{u+1}")
        a(f"v_add_f32 v{S}, v{S}, v{S2}")
        a(f"v_add_f32 v{Q}, v{Q}, v{Q2}")
        a("s_nop 1")
        for sh in (1, 2, 4, 8):
            a(f"v_add_f32_dpp v{S}, v{S}, v{S} row_shr:{sh} row_mask:0xf bank_mask:0xf bound_ctrl:0")
            a(f"v_add_f32_dpp v{Q}, v{Q}, v{Q} row_shr:{sh} row_mask:0xf bank_mask:0xf bound_ctrl:0")
            a("s_nop 0")
        a(f"""
        v_mul_f32 v{S}, {f32bits(1.0/640):#x}, v{S}
        v_mul_f32 v{Q}, {f32bits(1.0/640):#x}, v{Q}
        v_fma_f32 v{Q}, -v{S}, v{S}, v{Q}
        v_max_f32 v{Q}, 0, v{Q}
        v_add_f32 v{Q}, {f32bits(1e-5):#x}, v{Q}
        v_rsq_f32 v{Q}, v{Q}
        v_mov_b32 v{U+4}, v{S}
        v_add_u32 v{U+2}, {4*p}, v{vA}
        v_lshlrev_b32 v{U+2}, 3, v{U+2}
        v_mov_b32 v{U+5}, v{Q}
        s_mov_b32 s41, {WS_ST1}
        s_mov_b32 exec_lo, 0x80008000
        s_mov_b32 exec_hi, 0x80008000
        buffer_store_dwordx2 {vr(U+4,2)}, v{U+2}, s[{sWS}:{sWS+3}], s41 offen {SC}
        s_mov_b64 exec, -1
        s_nop 1
        """)

class P0L:
    vR, vA = 116, 136
    def __init__(self, a, L): self.a, self.L = a, L
    def issue(self):
        a, L = self.a, self.L
        vR, vA = self.vR, self.vA
        a(f"""
        v_lshrrev_b32 v{vA+2}, 4, v1
        v_and_b32 v{vA+3}, 15, v1
        s_lshl_b32 s75, s{L.sNt}, 4
        s_add_u32 s75, s75, s{L.sM0}
        s_add_u32 s75, s75, 64
        s_lshl_b32 s76, s{L.sLw}, 2
        s_add_u32 s75, s75, s76
        s_cmp_lt_u32 s{L.sNt}, 4
        s_cselect_b32 s75, s75, 4096
        v_add_u32 v{vA}, s75, v{vA+2}
        v_mul_u32_u24 v{vA+1}, 1280, v{vA}
        v_lshlrev_b32 v{vA+3}, 4, v{vA+3}
        v_add_u32 v{vA+1}, v{vA+1}, v{vA+3}
        """)
        for j in range(5):
            a(f"buffer_load_dwordx4 {vr(vR+4*j,4)}, v{vA+1}, s[{L.sA}:{L.sA+3}], 0 offen offset:{256*j}")
    def finish(self):
        a = self.a
        vR, vA = self.vR, self.vA
        S, Q, S2, Q2, U = vA + 4, vA + 5, vA + 6, vA + 7, vA + 8
        for n in range(20):
            r = vR + n
            u = U + 2*(n & 1)
            a(f"v_lshlrev_b32 v{u}, 16, v{r}")
            a(f"v_and_b32 v{u+1}, 0xffff0000, v{r}")
            if n == 0:
                a(f"v_mov_b32 v{S}, v{u}")
                a(f"v_mul_f32 v{Q}, v{u}, v{u}")
                a(f"v_mov_b32 v{S2}, v{u+1}")
                a(f"v_mul_f32 v{Q2}, v{u+1}, v{u+1}")
            else:
                a(f"v_add_f32 v{S}, v{S}, v{u}")
                a(f"v_fmac_f32 v{Q}, v{u}, v{u}")
                a(f"v_add_f32 v{S2}, v{S2}, v{u+1}")
                a(f"v_fmac_f32 v{Q2}, v{u+1}, v{u+1}")
        a(f"v_add_f32 v{S}, v{S}, v{S2}")
        a(f"v_add_f32 v{Q}, v{Q}, v{Q2}")
        a("s_nop 1")
        for sh in (1, 2, 4, 8):
            a(f"v_add_f32_dpp v{S}, v{S}, v{S} row_shr:{sh} row_mask:0xf bank_mask:0xf bound_ctrl:0")
            a(f"v_add_f32_dpp v{Q}, v{Q}, v{Q} row_shr:{sh} row_mask:0xf bank_mask:0xf bound_ctrl:0")
            a("s_nop 0")
        a(f"""
        v_mul_f32 v{S}, {f32bits(1.0/640):#x}, v{S}
        v_mul_f32 v{Q}, {f32bits(1.0/640):#x}, v{Q}
        v_fma_f32 v{Q}, -v{S}, v{S}, v{Q}
        v_max_f32 v{Q}, 0, v{Q}
        v_add_f32 v{Q}, {f32bits(1e-5):#x}, v{Q}
        v_rsq_f32 v{Q}, v{Q}
        v_mov_b32 v{U}, v{S}
        v_lshlrev_b32 v{U+2}, 3, v{vA}
        v_mov_b32 v{U+3}, 0x7fffff00
        v_cmp_gt_u32 vcc, 2048, v{vA}
        v_mov_b32 v{U+1}, v{Q}
        v_cndmask_b32 v{U+2}, v{U+3}, v{U+2}, vcc
        s_mov_b32 s75, {WS_ST1}
        s_mov_b32 exec_lo, 0x80008000
        s_mov_b32 exec_hi, 0x80008000
        buffer_store_dwordx2 {vr(U,2)}, v{U+2}, s[{sWS}:{sWS+3}], s75 offen {SC}
        s_mov_b64 exec, -1
        """)

def p0r_arrive(a, L, vt):
    ok, skip = a.newlabel("fok"), a.newlabel("fsk")
    dbg_flag_wait(a, vt, landed=True)
    a(f"s_cmp_lt_u32 s{L.sNt}, 4")
    a(f"s_cbranch_scc0 {skip}")
    a(f"s_lshr_b32 s76, s{L.sM0}, 7")
    a(f"s_add_u32 s76, s76, {C_ST}")
    arrive(a, 76, vt - 2)
    a.label(skip)

def qkv_prefetch(a, L):
    make_srd(a, 12, pWQ, pWQ+1, 0, 640*3840)
    make_srd(a, 8, pX, pX+1, 0, 2048*1280)
    fl = E('QPF_FL', 'sc1')
    a(f"""
    s_lshr_b32 s40, s2, 3
    s_and_b32 s41, s2, 1
    v_and_b32 v2, 15, v1
    v_lshrrev_b32 v3, 4, v1
    v_lshlrev_b32 v2, 7, v2
    v_mul_u32_u24 v3, 3840, v3
    v_add_u32 v4, v2, v3
    s_mul_i32 s42, s40, {20*3840}
    s_lshl_b32 s43, s41, 11
    s_add_u32 s42, s42, s43
    s_mul_i32 s43, s{sWV}, {4*3840}
    s_add_u32 s42, s42, s43
    buffer_load_dword v162, v4, s[12:15], s42 offen {fl}
    """)
    l = a.newlabel("qpf")
    a(f"""
    s_cmp_eq_u32 s{sWV}, 0
    s_cbranch_scc0 {l}
    s_add_u32 s42, s42, {16*3840}
    buffer_load_dword v162, v4, s[12:15], s42 offen {fl}
    """)
    a.label(l)
    l = a.newlabel("qpf")
    a(f"""
    s_cmp_eq_u32 s{sWV}, 0
    s_cbranch_scc1 {l}
    s_and_b32 s41, s2, 7
    s_lshr_b32 s41, s41, 1
    s_lshl_b32 s41, s41, 5
    s_add_u32 s41, s41, s40
    s_mul_i32 s42, s41, 20480
    s_sub_u32 s43, s{sWV}, 1
    s_lshl_b32 s43, s43, 13
    s_add_u32 s42, s42, s43
    v_lshlrev_b32 v4, 7, v1
    buffer_load_dword v162, v4, s[8:11], s42 offen {fl}
    """)
    a.label(l)

def p0q_arrive(a, L, vt):
    ok = a.newlabel("fok")
    a(f"v_readfirstlane_b32 s75, v{vt}")
    a("s_cmp_lg_u32 s75, 0")
    a(f"s_cbranch_scc1 {ok}")
    dbg_flag_wait(a, vt)
    a.label(ok)
    a(f"""
    s_lshr_b32 s75, s{L.sM0}, 7
    s_add_u32 s75, s75, {C_ST}
    s_add_u32 s76, s{L.sNt}, {C_CS1}
    s_add_u32 s77, s{L.sNt}, {C_CS2}
    v_mov_b32 v{vt-1}, s75
    v_writelane_b32 v{vt-1}, s76, 1
    v_writelane_b32 v{vt-1}, s77, 2
    s_nop 0
    v_lshlrev_b32 v{vt-1}, 7, v{vt-1}
    v_add_u32 v{vt-1}, {WS_CNT}, v{vt-1}
    v_mov_b32 v{vt-2}, 1
    s_cmp_lt_u32 s{L.sNt}, 8
    s_cselect_b32 s75, 1, 0
    s_or_b32 s75, s75, 2
    s_cmp_lt_u32 s{L.sNt}, 14
    s_cselect_b32 s76, 4, 0
    s_or_b32 s75, s75, s76
    s_mov_b32 exec_lo, s75
    s_mov_b32 exec_hi, 0
    buffer_atomic_add v{vt-2}, v{vt-1}, s[{sWS}:{sWS+3}], 0 offen sc1
    s_mov_b64 exec, -1
    """)

def w2p_prefetch(a, j):
    a(f"""
    s_mul_i32 s75, s{sRk}, {SZ_W2P // 32}
    s_add_u32 s75, s75, {WS_W2P + j * 8192}
    v_lshlrev_b32 v61, 7, v1
    buffer_load_dword v60, v61, s[{sWS}:{sWS+3}], s75 offen sc1
    """)

def w2_first_prefetch(a, c):
    NST = 14
    a(f"""
    s_and_b32 s75, s{sRk}, 3
    s_mul_i32 s75, s75, 3
    s_lshr_b32 s76, s{sRk}, 2
    s_lshl_b32 s77, s76, 1
    s_add_u32 s75, s75, s77
    s_cmp_ge_u32 s75, {NST}
    s_cselect_b32 s77, {NST}, 0
    s_sub_u32 s75, s75, s77
    s_cmp_ge_u32 s75, {NST}
    s_cselect_b32 s77, {NST}, 0
    s_sub_u32 s75, s75, s77
    s_mul_i32 s76, s76, {NST * 20480}
    s_add_u32 s76, s76, {WS_W2P}
    s_mul_i32 s77, s{c.sLw}, 5120
    s_add_u32 s76, s76, s77
    s_mul_i32 s77, s75, 20480
    s_add_u32 s77, s77, s76
    v_lshlrev_b32 v61, 7, v1
    s_mov_b32 exec_lo, -1
    s_mov_b32 exec_hi, 0xff
    buffer_load_dword v60, v61, s[{sWS}:{sWS+3}], s77 offen sc1
    s_add_u32 s75, s75, 1
    s_cmp_eq_u32 s75, {NST}
    s_cselect_b32 s75, 0, s75
    s_mul_i32 s77, s75, 20480
    s_add_u32 s77, s77, s76
    buffer_load_dword v60, v61, s[{sWS}:{sWS+3}], s77 offen sc1
    s_mov_b64 exec, -1
    """)

class Repack:
    aB, vD, vT = 28, 110, 88
    sWo, sW2, sW1 = 12, 16, 40
    def __init__(self, a): self.a = a
    def issue(self, defer=False):
        a = self.a
        aB, vD, T = self.aB, self.vD, self.vT
        a(f"""
        s_mul_i32 s75, s2, 768
        s_sub_u32 s76, s{sWV}, 4
        s_lshl_b32 s76, s76, 6
        s_add_u32 s75, s75, s76
        v_add_u32 v{T}, s75, v1
        """)
        for r in range(3):
            g, it, sg, rho, c, row, nt, st_, x = T+1, T+2, T+3, T+4, T+5, T+6, T+7, T+8, T+9
            a(f"""
            v_add_u32 v{g}, {256*r}, v{T}
            s_mov_b32 s75, {(1 << 32) // 1280 + 1:#x}
            v_mul_hi_u32 v{it}, v{g}, s75
            v_mul_u32_u24 v{sg}, 1280, v{it}
            v_sub_u32 v{sg}, v{g}, v{sg}
            v_mul_u32_u24 v{rho}, 0xcccd, v{sg}
            v_lshrrev_b32 v{rho}, 19, v{rho}
            v_mul_u32_u24 v{c}, 10, v{rho}
            v_sub_u32 v{c}, v{sg}, v{c}
            v_and_b32 v{row}, 0x73, v{rho}
            v_and_b32 v{x}, 4, v{rho}
            v_lshlrev_b32 v{x}, 1, v{x}
            v_or_b32 v{row}, v{row}, v{x}
            v_and_b32 v{x}, 8, v{rho}
            v_lshrrev_b32 v{x}, 1, v{x}
            v_or_b32 v{row}, v{row}, v{x}
            v_lshlrev_b32 v{vD+r}, 4, v{g}
            v_cmp_gt_u32 vcc, 40, v{it}
            v_subrev_u32 v{x}, 40, v{it}
            s_nop 0
            v_cndmask_b32 v{x}, v{x}, v{it}, vcc
            v_mul_u32_u24 v{nt}, 0x4925, v{x}
            v_mul_u32_u24 v{st_}, 0xcccd, v{x}
            v_cndmask_b32 v{nt}, v{nt}, v{st_}, vcc
            v_lshrrev_b32 v{nt}, 18, v{nt}
            v_mov_b32 v{st_}, 14
            v_cndmask_b32 v{st_}, v{st_}, 5, vcc
            v_mul_u32_u24 v{st_}, v{st_}, v{nt}
            v_sub_u32 v{st_}, v{x}, v{st_}
            v_lshlrev_b32 v{st_}, 7, v{st_}
            v_add_u32 v{row}, v{row}, v{st_}
            v_mul_u32_u24 v{row}, 1280, v{row}
            v_mul_u32_u24 v{nt}, 160, v{nt}
            v_lshlrev_b32 v{c}, 4, v{c}
            v_add3_u32 v{row}, v{row}, v{nt}, v{c}
            v_mov_b32 v{x}, 0x7fffff00
            v_cndmask_b32 v{nt}, v{x}, v{row}, vcc
            v_cndmask_b32 v{row}, v{row}, v{x}, vcc
            v_cmp_gt_u32 vcc, 152, v{it}
            s_nop 1
            v_cndmask_b32 v{vD+r}, v{x}, v{vD+r}, vcc
            """)
            a(f"v_mov_b32 v{100+2*r}, v{nt}")
            a(f"v_mov_b32 v{101+2*r}, v{row}")
            a(f"v_mov_b32 v{106+r}, v{it}")
        if defer: return
        self.loads()
    def loads(self, base=100, tmp=None):
        a = self.a
        aB, T = self.aB, (self.vT if tmp is None else tmp)
        if base != 100:
            for k in range(9): a(f"v_accvgpr_read_b32 v{base+k}, a{40+k}")
        self.sWo, self.sW2, self.sW1 = 8, 12, 8
        make_srd(a, self.sWo, pWO, pWO+1, 0, 640*1280)
        make_srd(a, self.sW2, pW2, pW2+1, 0, 1728*1280)
        for r in range(3):
            la, lb = a.newlabel("rpa"), a.newlabel("rpb")
            a(f"""
            v_cmp_gt_u32 vcc, 40, v{base+6+r}
            s_nop 4
            s_mov_b64 s[76:77], vcc
            s_mov_b64 exec, vcc
            s_cbranch_execz {la}
            buffer_load_dwordx4 {ar(aB+4*r,4)}, v{base+2*r}, s[{self.sWo}:{self.sWo+3}], 0 offen
            {la}:
            s_not_b64 exec, s[76:77]
            s_cbranch_execz {lb}
            buffer_load_dwordx4 {ar(aB+4*r,4)}, v{base+1+2*r}, s[{self.sW2}:{self.sW2+3}], 0 offen
            {lb}:
            s_mov_b64 exec, -1
            """)
        make_srd(a, self.sW1, pW1, pW1+1, 0, 640*3456)
        a(f"""
        s_mul_i32 s75, s2, 8640
        s_sub_u32 s76, s{sWV}, 4
        s_mul_i32 s76, s76, 2176
        s_add_u32 s75, s75, s76
        v_lshlrev_b32 v{T}, 7, v1
        s_mov_b64 exec, 0x1ffff
        buffer_load_dword v113, v{T}, s[{self.sW1}:{self.sW1+3}], s75 offen sc1
        s_mov_b64 exec, -1
        """)
    def save(self):
        a = self.a
        for r in range(3): a(f"v_accvgpr_write_b32 a{40+r}, v{self.vD+r}")
        for k in range(9): a(f"v_accvgpr_write_b32 a{43+k}, v{100+k}")
    def store(self, wait_after=True, pre="s_waitcnt vmcnt(0)"):
        a = self.a
        a(pre)
        a(f"s_mov_b32 s75, {WS_WOP}")
        for r in range(3):
            a(f"buffer_store_dwordx4 {ar(self.aB+4*r,4)}, v{self.vD+r}, s[{sWS}:{sWS+3}], s75 offen {SC}")
        if wait_after: a("s_waitcnt vmcnt(0)")
        else: a("s_nop 1")

class CoreL:
    sA, sW, sO = 8, 12, 16
    sM0, sN0, sT0, sT1, sT2, sT3 = 21, 22, 23, 24, 25, 26
    sLw, sSlot, sAoff, sWoff, sLds = 20, 28, 29, 30, 31
    sWm, sWn, sNt, sSeq, sSeqW = 32, 33, 34, 35, 36
    vAe, vAo, vWo = 4, 5, 6
    NST = 10
    def __init__(self, a, mode, tag):
        self.a, self.mode, self.tag = a, mode, tag
        self.qkv = mode == 'qkv'
        self.LDW = 3840 if self.qkv else 3456
    def map_tiles(self, idle_label):
        a, c = self.a, self
        if not c.qkv:
            a(f"""
            s_and_b32 s{c.sT3}, s{sRk}, 1
            s_lshl_b32 s{c.sM0}, s{sX}, 1
            s_add_u32 s{c.sM0}, s{c.sM0}, s{c.sT3}
            s_lshl_b32 s{c.sM0}, s{c.sM0}, 7
            s_lshr_b32 s{c.sNt}, s{sRk}, 1
            s_cmp_ge_u32 s{c.sNt}, 14
            s_cbranch_scc1 {idle_label}
            s_lshl_b32 s{c.sN0}, s{c.sNt}, 7
            s_mul_i32 s{c.sSeq}, s{c.sNt}, 3
            s_mul_i32 s{c.sT0}, s{c.sT3}, 5
            s_add_u32 s{c.sSeq}, s{c.sSeq}, s{c.sT0}
            s_mul_i32 s{c.sT0}, s{c.sSeq}, 0xcccd
            s_lshr_b32 s{c.sT0}, s{c.sT0}, 19
            s_mul_i32 s{c.sT0}, s{c.sT0}, 10
            s_sub_u32 s{c.sSeq}, s{c.sSeq}, s{c.sT0}
            """)
            if E('NOROTL'): a(f"s_mov_b32 s{c.sSeq}, 0")
            return
        NT_PER = 8 if c.qkv else 7
        NT_TOT = 15 if c.qkv else 14
        a(f"""
        s_and_b32 s{c.sT0}, s2, 7
        s_lshr_b32 s{c.sT1}, s2, 3
        s_lshr_b32 s{c.sT2}, s{c.sT0}, 1
        s_lshl_b32 s{c.sT2}, s{c.sT2}, 2
        s_and_b32 s{c.sT3}, s{c.sT1}, 3
        s_add_u32 s{c.sM0}, s{c.sT2}, s{c.sT3}
        s_lshl_b32 s{c.sM0}, s{c.sM0}, 7
        s_and_b32 s{c.sT0}, s{c.sT0}, 1
        s_mul_i32 s{c.sT0}, s{c.sT0}, {NT_PER}
        s_lshr_b32 s{c.sT1}, s{c.sT1}, 2
        s_add_u32 s{c.sNt}, s{c.sT0}, s{c.sT1}
        s_cmp_ge_u32 s{c.sT1}, {NT_PER}
        s_cbranch_scc1 {idle_label}
        s_cmp_ge_u32 s{c.sNt}, {NT_TOT}
        s_cbranch_scc1 {idle_label}
        s_lshl_b32 s{c.sN0}, s{c.sNt}, 7
        s_mul_i32 s{c.sSeq}, s{c.sT3}, 3
        s_add_u32 s{c.sSeq}, s{c.sSeq}, s{c.sT1}
        s_cmp_ge_u32 s{c.sSeq}, 10
        s_cselect_b32 s{c.sT0}, 10, 0
        s_sub_u32 s{c.sSeq}, s{c.sSeq}, s{c.sT0}
        """)
        if E('NOROTL'): a(f"s_mov_b32 s{c.sSeq}, 0")
    def loader_setup(self):
        a, c = self.a, self
        a(f"s_sub_u32 s{c.sLw}, s{sWV}, 4")
        if c.qkv:
            make_srd(a, c.sA, pX, pX+1, 0, 2048*1280)
            a(f"""
            v_lshrrev_b32 v2, 3, v1
            v_mul_u32_u24 v2, 1280, v2
            v_lshrrev_b32 v3, 4, v1
            v_and_b32 v7, 7, v1
            v_xor_b32 v3, v3, v7
            v_lshlrev_b32 v3, 4, v3
            v_add_u32 v{c.vAe}, v2, v3
            v_xor_b32 v{c.vAo}, 64, v{c.vAe}
            s_lshl_b32 s{c.sT0}, s{c.sLw}, 5
            s_add_u32 s{c.sT0}, s{c.sT0}, s{c.sM0}
            s_mul_i32 s{c.sAoff}, s{c.sT0}, 1280
            """)
            c.A_SSTEP = 128
        else:
            make_srd(a, c.sA, pWS, pWS+1, WS_H, SZ_ACT)
            a(f"""
            v_lshlrev_b32 v{c.vAe}, 4, v1
            v_add_u32 v{c.vAo}, 1024, v{c.vAe}
            s_lshl_b32 s{c.sT0}, s{c.sLw}, 16
            s_lshl_b32 s{c.sT1}, s{c.sM0}, 4
            s_add_u32 s{c.sAoff}, s{c.sT0}, s{c.sT1}
            """)
            c.A_SSTEP = 8 * 32768
        pw = pWQ if c.qkv else pW1
        make_srd(a, c.sW, pw, pw+1, 0, 640 * c.LDW)
        a(f"""
        v_lshrrev_b32 v2, 4, v1
        v_mul_u32_u24 v3, {c.LDW}, v2
        v_lshlrev_b32 v2, 2, v2
        v_and_b32 v7, 15, v1
        v_xor_b32 v2, v2, v7
        v_lshlrev_b32 v2, 4, v2
        v_add_u32 v{c.vWo}, v2, v3
        s_lshl_b32 s{c.sT0}, s{c.sLw}, 4
        s_mul_i32 s{c.sT0}, s{c.sT0}, {c.LDW}
        s_lshl_b32 s{c.sT1}, s{c.sN0}, 1
        s_add_u32 s{c.sWoff}, s{c.sT0}, s{c.sT1}
        s_lshl_b32 s{c.sLds}, s{c.sLw}, 12
        s_mul_i32 s{c.sT0}, s{c.sSeq}, {c.A_SSTEP}
        s_add_u32 s{c.sAoff}, s{c.sAoff}, s{c.sT0}
        s_mul_i32 s{c.sT0}, s{c.sSeq}, {64 * c.LDW}
        s_add_u32 s{c.sWoff}, s{c.sWoff}, s{c.sT0}
        s_mov_b32 s{c.sSeqW}, s{c.sSeq}
        """)
    def issue_A(self, seq):
        a, c = self.a, self
        slot = (seq % 4) * 32768
        for j in range(4):
            a(f"s_add_u32 m0, s{c.sLds}, {slot}" if j == 0 else "s_add_u32 m0, m0, 1024")
            if c.qkv:
                a(f"s_mov_b32 s{c.sT0}, s{c.sAoff}" if j == 0 else f"s_add_u32 s{c.sT0}, s{c.sT0}, {8*1280}")
            else:
                if j == 0: a(f"s_mov_b32 s{c.sT0}, s{c.sAoff}")
                elif j == 2: a(f"s_add_u32 s{c.sT0}, s{c.sT0}, 32768")
                else: a("s_nop 0")
            a(f"buffer_load_dwordx4 v{c.vAe if j % 2 == 0 else c.vAo}, s[{c.sA}:{c.sA+3}], s{c.sT0} offen {E('QNT_A','') if c.qkv else ''} lds")
        a(f"""
        s_add_u32 s{c.sSeq}, s{c.sSeq}, 1
        s_cmp_eq_u32 s{c.sSeq}, {c.NST}
        s_cselect_b32 s{c.sT0}, {c.NST * c.A_SSTEP}, 0
        s_cselect_b32 s{c.sSeq}, 0, s{c.sSeq}
        s_add_u32 s{c.sAoff}, s{c.sAoff}, {c.A_SSTEP}
        s_sub_u32 s{c.sAoff}, s{c.sAoff}, s{c.sT0}
        """)
    def issue_W(self, seq):
        a, c = self.a, self
        slot = (seq % 4) * 32768 + 16384
        for j in range(4):
            a(f"s_add_u32 m0, s{c.sLds}, {slot}" if j == 0 else "s_add_u32 m0, m0, 1024")
            a(f"s_mov_b32 s{c.sT0}, s{c.sWoff}" if j == 0 else f"s_add_u32 s{c.sT0}, s{c.sT0}, {4 * c.LDW}")
            a(f"buffer_load_dwordx4 v{c.vWo}, s[{c.sW}:{c.sW+3}], s{c.sT0} offen {E('QNT_W','') if c.qkv else ''} lds")
        a(f"""
        s_add_u32 s{c.sSeqW}, s{c.sSeqW}, 1
        s_cmp_eq_u32 s{c.sSeqW}, {c.NST}
        s_cselect_b32 s{c.sT0}, {c.NST * 64 * c.LDW}, 0
        s_cselect_b32 s{c.sSeqW}, 0, s{c.sSeqW}
        s_add_u32 s{c.sWoff}, s{c.sWoff}, {64 * c.LDW}
        s_sub_u32 s{c.sWoff}, s{c.sWoff}, s{c.sT0}
        """)
    vLs = 16
    vSx, vSq, vCs, vU = 48, 56, 64, 72
    vLs = 16
    def lstats_init(self): pass
    def lst_poll_issue(self):
        a, c = self.a, self
        v = c.vLs
        a(f"""
        s_add_u32 s{c.sT0}, s{c.sNt}, {C_CS1 if c.qkv else C_CS2}
        s_lshr_b32 s{c.sT1}, s{c.sM0}, 7
        s_add_u32 s{c.sT1}, s{c.sT1}, {C_ST}
        v_mov_b32 v{v}, s{c.sT0}
        v_writelane_b32 v{v}, s{c.sT1}, 1
        v_mov_b32 v{v+1}, 16
        v_writelane_b32 v{v+1}, {8 if c.qkv else 0}, 1
        v_lshlrev_b32 v{v}, 7, v{v}
        v_add_u32 v{v}, {WS_CNT}, v{v}
        s_mov_b64 exec, 3
        buffer_load_dword v{v+2}, v{v}, s[{sWS}:{sWS+3}], 0 offen sc1
        s_mov_b64 exec, -1
        """)
    def lst_check_issue(self, q):
        a, c = self.a, self
        v = c.vLs
        ok = a.newlabel("lok")
        a(f"""
        s_waitcnt vmcnt({q.need('poll')})
        s_mov_b64 exec, 3
        v_cmp_gt_u32 vcc, v{v+1}, v{v+2}
        s_nop 4
        s_cmp_eq_u64 vcc, 0
        s_cbranch_scc1 {ok}
        """)
        poll(a, v, v + 1, 2, v + 2)
        a.label(ok)
        a("s_mov_b64 exec, -1")
        ncol = 1920 if c.qkv else 1792
        d = v + 8
        a(f"""
        v_and_b32 v{v+4}, 31, v1
        v_lshlrev_b32 v{v+5}, 2, v{v+4}
        v_lshlrev_b32 v{v+4}, 3, v{v+4}
        s_lshl_b32 s{c.sT0}, s{c.sLw}, 5
        s_add_u32 s{c.sT1}, s{c.sT0}, s{c.sN0}
        s_lshl_b32 s{c.sT1}, s{c.sT1}, 2
        s_add_u32 s{c.sT1}, s{c.sT1}, {WS_CS1 if c.qkv else WS_CS2}
        s_mov_b32 exec_hi, 0
        """)
        for j in range(16):
            a(f"buffer_load_dword v{d+j}, v{v+5}, s[{sWS}:{sWS+3}], s{c.sT1} offen")
            if j < 15: a(f"s_add_u32 s{c.sT1}, s{c.sT1}, {ncol*4}")
        a(f"""
        s_mov_b32 exec_lo, 0
        s_mov_b32 exec_hi, -1
        s_add_u32 s{c.sT1}, s{c.sT0}, s{c.sM0}
        s_lshl_b32 s{c.sT1}, s{c.sT1}, 3
        s_add_u32 s{c.sT1}, s{c.sT1}, {WS_ST1 if c.qkv else WS_ST2}
        """)
        npart = 1 if c.qkv else 8
        for j in range(npart):
            a(f"buffer_load_dwordx2 {vr(d+16+2*j,2)}, v{v+4}, s[{sWS}:{sWS+3}], s{c.sT1} offen")
            if j < npart - 1: a(f"s_add_u32 s{c.sT1}, s{c.sT1}, {2048*8}")
        a("s_mov_b64 exec, -1")
        q.push("stats", 16 + npart)
    def lst_finish(self, q):
        a, c = self.a, self
        v = c.vLs
        d = v + 8
        a(f"s_waitcnt vmcnt({q.need('stats')})")
        for j in range(1, 16):
            a(f"v_add_f32 v{d}, v{d}, v{d+j}")
        S, Q = d + 16, d + 17
        if not c.qkv:
            for j in range(1, 8):
                a(f"v_add_f32 v{S}, v{S}, v{S+2*j}")
                a(f"v_add_f32 v{Q}, v{Q}, v{Q+2*j}")
            a(f"""
            v_mul_f32 v{S}, {f32bits(1.0/640):#x}, v{S}
            v_mul_f32 v{Q}, {f32bits(1.0/640):#x}, v{Q}
            v_fma_f32 v{Q}, -v{S}, v{S}, v{Q}
            v_max_f32 v{Q}, 0, v{Q}
            v_add_f32 v{Q}, {f32bits(1e-5):#x}, v{Q}
            v_rsq_f32 v{Q}, v{Q}
            """)
        a(f"""
        s_lshl_b32 s{c.sT0}, s{c.sLw}, 7
        s_add_u32 s{c.sT0}, s{c.sT0}, {STAT}
        v_add_u32 v{v+5}, s{c.sT0}, v{v+5}
        s_mov_b32 exec_hi, 0
        ds_write_b32 v{v+5}, v{d} offset:1024
        s_mov_b32 exec_lo, 0
        s_mov_b32 exec_hi, -1
        ds_write_b32 v{v+5}, v{S}
        ds_write_b32 v{v+5}, v{Q} offset:512
        s_mov_b64 exec, -1
        s_waitcnt lgkmcnt(0)
        """)
    def tq_poll_issue(self):
        a, c = self.a, self
        v = c.vLs
        a(f"""
        s_lshr_b32 s{c.sT1}, s{c.sM0}, 7
        s_add_u32 s{c.sT1}, s{c.sT1}, {C_ST}
        s_lshl_b32 s{c.sT1}, s{c.sT1}, 7
        s_add_u32 s{c.sT1}, s{c.sT1}, {WS_CNT}
        v_mov_b32 v{v}, s{c.sT1}
        v_mov_b32 v{v+1}, {5 if E('P0L') else 1}
        s_mov_b64 exec, 1
        buffer_load_dword v{v+2}, v{v}, s[{sWS}:{sWS+3}], 0 offen sc1
        s_mov_b64 exec, -1
        """)
    def tq_check_issue(self, q):
        a, c = self.a, self
        v = c.vLs
        ok = a.newlabel("lok")
        a(f"""
        s_waitcnt vmcnt({q.need('poll')})
        v_readfirstlane_b32 s{c.sT0}, v{v+2}
        s_cmp_ge_u32 s{c.sT0}, {5 if E('P0L') else 1}
        s_cbranch_scc1 {ok}
        """)
        poll(a, v, v + 1, 1, v + 2)
        a.label(ok)
        a(f"""
        v_and_b32 v{v+4}, 31, v1
        v_lshlrev_b32 v{v+5}, 2, v{v+4}
        v_lshlrev_b32 v{v+4}, 3, v{v+4}
        s_lshl_b32 s{c.sT0}, s{c.sLw}, 5
        s_add_u32 s{c.sT1}, s{c.sT0}, s{c.sM0}
        s_lshl_b32 s{c.sT1}, s{c.sT1}, 3
        s_add_u32 s{c.sT1}, s{c.sT1}, {WS_ST1}
        buffer_load_dwordx2 {vr(v+8,2)}, v{v+4}, s[{sWS}:{sWS+3}], s{c.sT1} offen
        """)
        q.push("stats", 1)
    def tq_finish(self, q):
        a, c = self.a, self
        v = c.vLs
        a(f"""
        s_waitcnt vmcnt({q.need('stats')})
        s_lshl_b32 s{c.sT0}, s{c.sLw}, 7
        s_add_u32 s{c.sT0}, s{c.sT0}, {STAT}
        v_add_u32 v{v+5}, s{c.sT0}, v{v+5}
        ds_write_b32 v{v+5}, v{v+8}
        ds_write_b32 v{v+5}, v{v+9} offset:512
        """)
    def tok_issue(self, q):
        a, c = self.a, self
        v = c.vLs
        d = v + 8
        a(f"""
        v_and_b32 v{v+4}, 31, v1
        v_lshlrev_b32 v{v+5}, 2, v{v+4}
        v_lshlrev_b32 v{v+4}, 3, v{v+4}
        s_lshl_b32 s{c.sT0}, s{c.sLw}, 5
        s_add_u32 s{c.sT1}, s{c.sT0}, s{c.sM0}
        s_lshl_b32 s{c.sT1}, s{c.sT1}, 3
        s_add_u32 s{c.sT1}, s{c.sT1}, {WS_ST2}
        s_mov_b32 exec_hi, 0
        """)
        for j in range(16):
            a(f"buffer_load_dwordx2 {vr(d+2*j,2)}, v{v+4}, s[{sWS}:{sWS+3}], s{c.sT1} offen")
            if j < 15: a(f"s_add_u32 s{c.sT1}, s{c.sT1}, {2048*8}")
        a("s_mov_b32 exec_hi, -1")
        q.push("stats", 16)
    def tok_finish(self, q):
        a, c = self.a, self
        v = c.vLs
        S, Q = v + 8, v + 9
        a(f"s_waitcnt vmcnt({q.need('stats')})")
        for j in range(1, 16):
            a(f"v_add_f32 v{S}, v{S}, v{S+2*j}")
            a(f"v_add_f32 v{Q}, v{Q}, v{Q+2*j}")
        a(f"""
        v_mul_f32 v{S}, {f32bits(1.0/640):#x}, v{S}
        v_mul_f32 v{Q}, {f32bits(1.0/640):#x}, v{Q}
        v_fma_f32 v{Q}, -v{S}, v{S}, v{Q}
        v_max_f32 v{Q}, 0, v{Q}
        v_add_f32 v{Q}, {f32bits(1e-5):#x}, v{Q}
        v_rsq_f32 v{Q}, v{Q}
        s_lshl_b32 s{c.sT0}, s{c.sLw}, 7
        s_add_u32 s{c.sT0}, s{c.sT0}, {STAT}
        v_add_u32 v{v+5}, s{c.sT0}, v{v+5}
        s_mov_b32 exec_hi, 0
        ds_write_b32 v{v+5}, v{S}
        ds_write_b32 v{v+5}, v{Q} offset:512
        s_mov_b32 exec_hi, -1
        """)
    def loader_main(self, q, p0=None):
        a, c = self.a, self
        for s_ in range(c.NST):
            tags = [f'A{s_}', f'W{s_}']
            if c.qkv and s_ == 4 and E('P0L'): tags.append('p0st')
            a(f"s_waitcnt vmcnt({q.need(*tags)}) lgkmcnt(0)")
            if getattr(c, 'ldstamps', False) and s_ in (0, 1, 2): st(a, 4 + s_)
            a("s_barrier")
            stx(a, f"{c.tag}l{s_}")
            if c.qkv:
                vd = 70
                if s_ == 0: wave_only(a, 4, lambda: a(f"buffer_load_dword v{vd}, v{vd+1}, s[44:47], 0 offen sc1"))
                if s_ == 4 and E('P0L'): wave_only(a, 4, lambda: p0r_arrive(a, c, vd))
                if s_ == 3: wave_only(a, 7, lambda: reg_step1(a, vd))
                if s_ == 5: wave_only(a, 7, lambda: reg_step2(a, vd))
                if s_ == 7: wave_only(a, 7, lambda: reg_step3(a, vd))
            if s_ + PD < c.NST and not (E('X_NODMA') and c.qkv):
                c.issue_A(s_ + PD); q.push(f"A{s_+PD}", 4)
                c.issue_W(s_ + PD); q.push(f"W{s_+PD}", 4)
            if c.qkv and s_ == 1 and E('P0L'):
                a(f"s_waitcnt vmcnt({q.need('p0l')})"); c.p0l.finish(); q.push('p0st', 1)
            if not c.qkv:
                if s_ == 7: c.tok_issue(q)
                if s_ == 8 and not E('NOPFW0'): w2_first_prefetch(a, c)
                if s_ == 9: c.tok_finish(q)
                if E('PFW2') and 0 <= s_ < 9:
                    wave_only(a, 4 + (s_ % 4), lambda: w2p_prefetch(a, s_))
            else:
                if s_ == 8 and getattr(c, 'hook7', None): c.hook7()
                if s_ == 6:
                    c.tq_poll_issue(); q.push("poll", 1)
                if s_ == 7: c.tq_check_issue(q)
                if s_ == 9: c.tq_finish(q)

    vAd, vX, vW, vAcc, vT, vSt = 24, 32, 32, 64, 128, 144
    def compute_setup(self):
        a, c = self.a, self
        NXA = 8 if c.qkv else 2
        c.NXA = NXA
        c.vXa = 4
        c.vWa = c.vXa + 2 * NXA
        vXa, vWa, vT = c.vXa, c.vWa, c.vT
        t0, t1 = vT, vT + 1
        a(f"""
        s_lshr_b32 s{c.sWm}, s{sWV}, 1
        s_and_b32 s{c.sWn}, s{sWV}, 1
        v_and_b32 v2, 31, v1
        v_lshrrev_b32 v3, 5, v1
        """)
        if c.qkv:
            a(f"""
            v_lshrrev_b32 v{t0}, 1, v1
            v_and_b32 v{t0}, 7, v{t0}
            v_xor_b32 v{t0}, v{t0}, v3
            v_lshlrev_b32 v{t0}, 4, v{t0}
            v_lshlrev_b32 v{t1}, 7, v2
            v_add_u32 v{t0}, v{t0}, v{t1}
            s_lshl_b32 s{c.sT0}, s{c.sWm}, 13
            s_lshl_b32 s{c.sT1}, s{c.sWn}, 12
            s_add_u32 s{c.sT0}, s{c.sT0}, s{c.sT1}
            v_add_u32 v{t0}, s{c.sT0}, v{t0}
            """)
            for s in range(4):
                a(f"v_xor_b32 v{vXa + s}, {32 * s}, v{t0}")
                a(f"v_xor_b32 v{vXa + 4 + s}, 4096, v{vXa + s}")
        else:
            a(f"""
            v_lshlrev_b32 v{t0}, 11, v3
            v_lshlrev_b32 v{t1}, 4, v2
            v_add_u32 v{t0}, v{t0}, v{t1}
            s_lshl_b32 s{c.sT0}, s{c.sWm}, 10
            v_add_u32 v{vXa}, s{c.sT0}, v{t0}
            v_add_u32 v{vXa + 1}, 512, v{vXa}
            """)
        for i in range(NXA):
            a(f"v_add_u32 v{vXa + NXA + i}, 65536, v{vXa + i}")
        a(f"""
        v_lshrrev_b32 v{t0}, 2, v1
        v_and_b32 v{t0}, 3, v{t0}
        v_lshlrev_b32 v{t1}, 3, v3
        v_add_u32 v{t1}, v{t1}, v{t0}
        v_lshlrev_b32 v{t1}, 8, v{t1}
        v_lshlrev_b32 v{t0}, 6, v{t0}
        v_add_u32 v{t1}, v{t1}, v{t0}
        v_lshrrev_b32 v{t0}, 4, v1
        v_and_b32 v{t0}, 1, v{t0}
        v_lshlrev_b32 v{t0}, 5, v{t0}
        v_add_u32 v{t1}, v{t1}, v{t0}
        v_lshrrev_b32 v{t0}, 1, v1
        v_and_b32 v{t0}, 1, v{t0}
        v_lshlrev_b32 v{t0}, 4, v{t0}
        v_add_u32 v{t1}, v{t1}, v{t0}
        v_and_b32 v{t0}, 1, v1
        v_lshlrev_b32 v{t0}, 3, v{t0}
        v_add_u32 v{t1}, v{t1}, v{t0}
        v_add_u32 v{t1}, 16384, v{t1}
        s_lshl_b32 s{c.sT0}, s{c.sWn}, 7
        s_lshl_b32 s{c.sT1}, s{c.sWm}, 6
        s_add_u32 s{c.sT0}, s{c.sT0}, s{c.sT1}
        v_xor_b32 v{vWa}, s{c.sT0}, v{t1}
        v_xor_b32 v{vWa + 1}, 64, v{vWa}
        v_add_u32 v{vWa + 2}, 65536, v{vWa}
        v_add_u32 v{vWa + 3}, 65536, v{vWa + 1}
        """)
    def addr_qk(self):
        a, c = self.a, self
        vT, vAd = c.vT, c.vAd
        t0, t1 = vT, vT + 1
        a(f"""
        s_cmp_lt_u32 s{c.sNt}, 5
        s_cselect_b32 s{c.sT0}, 0, 640
        s_sub_u32 s{c.sT2}, s{c.sN0}, s{c.sT0}
        s_lshl_b32 s{c.sT1}, s{c.sWn}, 6
        s_add_u32 s{c.sT2}, s{c.sT2}, s{c.sT1}
        s_lshr_b32 s{c.sT2}, s{c.sT2}, 3
        v_add_u32 v{t0}, s{c.sT2}, v3
        v_lshlrev_b32 v{vT+4}, 4, v2
        """)
        for ft in range(2):
            for j in range(2):
                d = vAd + ft*2 + j
                a(f"""
                s_xor_b32 s{c.sT3}, s{c.sWm}, {ft}
                s_lshl_b32 s{c.sT3}, s{c.sT3}, 2
                s_add_u32 s{c.sT3}, s{c.sT3}, {2*j}
                v_add_u32 v{t1}, s{c.sT3}, v{t0}
                v_mul_u32_u24 v{vT+2}, 0xcccd, v{t1}
                v_lshrrev_b32 v{vT+2}, 18, v{vT+2}
                v_mul_u32_u24 v{vT+3}, 5, v{vT+2}
                v_sub_u32 v{vT+3}, v{t1}, v{vT+3}
                v_lshlrev_b32 v{vT+3}, 9, v{vT+3}
                v_mul_u32_u24 v{vT+2}, 0x28000, v{vT+2}
                v_add3_u32 v{d}, v{vT+2}, v{vT+3}, v{vT+4}
                """)
        a(f"""
        s_lshr_b32 s{c.sT0}, s{c.sM0}, 5
        s_lshl_b32 s{c.sT1}, s{c.sWm}, 1
        s_add_u32 s{c.sT0}, s{c.sT0}, s{c.sT1}
        s_add_u32 s{c.sT1}, s{c.sT0}, s{c.sWn}
        s_mul_i32 s40, s{c.sT1}, 2560
        s_xor_b32 s{c.sT1}, s{c.sWn}, 1
        s_add_u32 s{c.sT1}, s{c.sT0}, s{c.sT1}
        s_mul_i32 s41, s{c.sT1}, 2560
        s_cmp_lt_u32 s{c.sNt}, 5
        s_cselect_b32 s{c.sT0}, {WS_Q}, {WS_K}
        s_add_u32 s{c.sO}, s{pWS}, s{c.sT0}
        s_addc_u32 s{c.sO+1}, s{pWS+1}, 0
        s_and_b32 s{c.sO+1}, s{c.sO+1}, 0xffff
        s_mov_b32 s{c.sO+2}, {SZ_QK}
        s_mov_b32 s{c.sO+3}, 0x20000
        """)
    def addr_f(self):
        a, c = self.a, self
        vT, vAd = c.vT, c.vAd
        t0, t1 = vT, vT + 1
        a(f"""
        s_lshl_b32 s{c.sT1}, s{c.sWn}, 6
        s_add_u32 s{c.sT2}, s{c.sN0}, s{c.sT1}
        s_lshr_b32 s{c.sT2}, s{c.sT2}, 3
        v_add_u32 v{t0}, s{c.sT2}, v3
        v_lshlrev_b32 v{t0}, 15, v{t0}
        v_lshlrev_b32 v{t1}, 4, v2
        v_add_u32 v{t0}, v{t0}, v{t1}
        """)
        for ft in range(2):
            for j in range(2):
                a(f"s_xor_b32 s{c.sT3}, s{c.sWm}, {ft}")
                a(f"s_lshl_b32 s{c.sT3}, s{c.sT3}, 2")
                a(f"s_add_u32 s{c.sT3}, s{c.sT3}, {2*j}")
                a(f"s_lshl_b32 s{c.sT3}, s{c.sT3}, 15")
                a(f"v_add_u32 v{vAd + ft*2 + j}, s{c.sT3}, v{t0}")
        a(f"""
        s_lshl_b32 s{c.sT1}, s{c.sWm}, 6
        s_add_u32 s{c.sT0}, s{c.sM0}, s{c.sT1}
        s_lshl_b32 s40, s{c.sT0}, 4
        s_add_u32 s41, s40, 512
        """)
        make_srd(a, c.sO, pWS, pWS+1, WS_F, SZ_F)
    def addr_v(self):
        a, c = self.a, self
        vT, vAd = c.vT, c.vAd
        t0, t1 = vT, vT + 1
        for ft in range(2):
            a(f"""
            s_lshl_b32 s{c.sT1}, s{c.sWn}, 6
            s_add_u32 s{c.sT0}, s{c.sN0}, s{c.sT1}
            s_xor_b32 s{c.sT1}, s{c.sWm}, {ft}
            s_lshl_b32 s{c.sT1}, s{c.sT1}, 5
            s_add_u32 s{c.sT0}, s{c.sT0}, s{c.sT1}
            s_sub_u32 s{c.sT0}, s{c.sT0}, 1280
            v_add_u32 v{t0}, s{c.sT0}, v2
            v_mul_u32_u24 v{t1}, 0xcccd, v{t0}
            v_lshrrev_b32 v{t1}, 20, v{t1}
            v_mul_u32_u24 v{vT+2}, 20, v{t1}
            v_sub_u32 v{t0}, v{t0}, v{vT+2}
            v_lshlrev_b32 v{t0}, 4, v{t0}
            v_mul_u32_u24 v{t1}, 0x14000, v{t1}
            v_add_u32 v{t0}, v{t0}, v{t1}
            v_mul_u32_u24 v{t1}, 320, v3
            v_add_u32 v{vAd+ft}, v{t0}, v{t1}
            """)
        a(f"""
        s_lshl_b32 s{c.sT1}, s{c.sWm}, 6
        s_add_u32 s{c.sT0}, s{c.sM0}, s{c.sT1}
        s_lshr_b32 s{c.sT0}, s{c.sT0}, 4
        s_lshl_b32 s{c.sT1}, s{c.sWn}, 1
        s_add_u32 s{c.sT1}, s{c.sT1}, s{c.sT0}
        s_mul_i32 s40, s{c.sT1}, 640
        s_add_u32 s41, s40, 640
        s_xor_b32 s{c.sT1}, s{c.sWn}, 1
        s_lshl_b32 s{c.sT1}, s{c.sT1}, 1
        s_add_u32 s{c.sT1}, s{c.sT1}, s{c.sT0}
        s_mul_i32 s42, s{c.sT1}, 640
        s_add_u32 s43, s42, 640
        """)
        make_srd(a, c.sO, pWS, pWS+1, WS_V, SZ_QKV)
    def stats_poll_issue(self):
        a, c = self.a, self
        vS = c.vSt
        a(f"""
        v_lshlrev_b32 v{vS+30}, 7, v1
        v_add_u32 v{vS+30}, {WS_CNT + (C_P0 if c.qkv else C_W1)*128}, v{vS+30}
        s_mov_b64 exec, 0xff
        buffer_load_dword v{vS+29}, v{vS+30}, s[{sWS}:{sWS+3}], 0 offen sc1
        s_mov_b64 exec, -1
        """)
    def stats_poll_check(self):
        a, c = self.a, self
        vS = c.vSt
        ok = a.newlabel("stok")
        a(f"""
        s_waitcnt vmcnt(0)
        s_mov_b64 exec, 0xff
        v_cmp_gt_u32 vcc, 128, v{vS+29}
        s_nop 4
        s_cmp_eq_u64 vcc, 0
        s_cbranch_scc1 {ok}
        v_mov_b32 v{vS+28}, 128
        """)
        poll(a, vS + 30, vS + 28, 8, vS + 29)
        a.label(ok)
        a("s_mov_b64 exec, -1")
        a("s_nop 3")
    def stats_issue(self):
        a, c = self.a, self
        vS = c.vSt
        a(f"""
        v_lshlrev_b32 v{vS+31}, 2, v2
        v_lshlrev_b32 v{vS+30}, 3, v2
        s_lshl_b32 s{c.sT0}, s{sWV}, 5
        s_add_u32 s{c.sT1}, s{c.sT0}, s{c.sM0}
        s_lshl_b32 s{c.sT1}, s{c.sT1}, 3
        s_add_u32 s{c.sT1}, s{c.sT1}, {WS_ST2}
        """)
        for j in range(8):
            a(f"buffer_load_dwordx2 {vr(vS+8+2*j,2)}, v{vS+30}, s[{sWS}:{sWS+3}], s{c.sT1} offen")
            if j < 7: a(f"s_add_u32 s{c.sT1}, s{c.sT1}, {2048*8}")
    def stats_finish(self):
        a, c = self.a, self
        vS = c.vSt
        a("s_waitcnt vmcnt(0)")
        S, Q = vS + 8, vS + 9
        for j in range(1, 8):
            a(f"v_add_f32 v{S}, v{S}, v{S+2*j}")
            a(f"v_add_f32 v{Q}, v{Q}, v{Q+2*j}")
        a(f"""
        v_mul_f32 v{S}, {f32bits(1.0/640):#x}, v{S}
        v_mul_f32 v{Q}, {f32bits(1.0/640):#x}, v{Q}
        v_fma_f32 v{Q}, -v{S}, v{S}, v{Q}
        v_max_f32 v{Q}, 0, v{Q}
        v_add_f32 v{Q}, {f32bits(1e-5):#x}, v{Q}
        v_rsq_f32 v{Q}, v{Q}
        s_lshl_b32 s{c.sT0}, s{sWV}, 7
        s_add_u32 s{c.sT0}, s{c.sT0}, {STAT}
        v_add_u32 v{vS+31}, s{c.sT0}, v{vS+31}
        ds_write_b32 v{vS+31}, v{S}
        ds_write_b32 v{vS+31}, v{Q} offset:512
        """)
    aX = 4
    def read_list(self, i):
        c = self
        st_, step, buf = i // 4, i % 4, i % 3
        slot = st_ % 4
        win, base = slot >> 1, (slot & 1) * 32768
        L = []
        for lt in range(2):
            if c.qkv:
                L.append(f"ds_read_b128 {ar(c.aX + buf*8 + lt*4, 4)}, v{c.vXa + win*8 + lt*4 + step} offset:{base}")
            else:
                L.append(f"ds_read_b128 {ar(c.aX + buf*8 + lt*4, 4)}, v{c.vXa + win*2 + lt} offset:{base + step*4096}")
        for lf in range(2):
            for h2 in range(2):
                L.append(f"ds_read_b64_tr_b16 {vr(c.vW + buf*8 + lf*4 + h2*2, 2)}, v{c.vWa + win*2 + lf} offset:{base + step*4096 + h2*1024}")
        return L
    def reads(self, i):
        for r in self.read_list(i): self.a(r)
    def mfma(self, i, k, orientY):
        a, c = self.a, self
        buf = i % 3
        lf, lt = k >> 1, k & 1
        acc = c.vAcc + (lf*2 + lt) * 16
        xa, wa = ar(c.aX + buf*8 + lt*4, 4), vr(c.vW + buf*8 + lf*4, 4)
        cc = "0" if i == 0 else vr(acc, 16)
        if orientY: a(f"v_mfma_f32_32x32x16_bf16 {vr(acc,16)}, {wa}, {xa}, {cc}")
        else: a(f"v_mfma_f32_32x32x16_bf16 {vr(acc,16)}, {xa}, {wa}, {cc}")
    def mainloop(self, orientY, stamp0=None, tag='q'):
        a, c = self.a, self
        vS = c.vSt
        CS = vS
        UU = c.vT
        a(f"v_mov_b32 v{CS}, 0")
        a(f"v_mov_b32 v{CS+1}, 0")
        a("s_barrier")
        if stamp0 is not None: st(a, stamp0)
        stx(a, tag + '_s0')
        c.reads(0)
        c.reads(1)
        for i in range(40):
            buf = i % 3
            Wl = c.vW + buf*8
            ops = []
            for r in range(4):
                u = UU + 2*(r & 1)
                ops += [f"v_lshlrev_b32 v{u}, 16, v{Wl+r}", f"v_and_b32 v{u+1}, 0xffff0000, v{Wl+r}",
                        f"v_add_f32 v{CS}, v{CS}, v{u}", f"v_add_f32 v{CS+1}, v{CS+1}, v{u+1}"]
            if E('X_NOVALU'): ops = []
            rl = c.read_list(i + 2) if i + 2 < 40 else []
            if i == 4: stx(a, tag + '_s1')
            if i == 20: stx(a, tag + '_s5')
            a(f"s_waitcnt lgkmcnt({6 if i + 1 < 40 else 0})")
            c.mfma(i, 0, orientY)
            if i + 2 < 40 and (i + 2) % 4 == 0:
                a("s_barrier")
            for o in rl[0:2] + ops[0:3]: a(o)
            c.mfma(i, 1, orientY)
            for o in rl[2:4] + ops[3:6]: a(o)
            if c.qkv and i == int(E('TLBI', '2')) and E('TLB'): wave_only(a, 3, lambda: tlb_warm(a))
            c.mfma(i, 2, orientY)
            for o in rl[4:6] + ops[6:10]: a(o)
            c.mfma(i, 3, orientY)
            for o in ops[10:16]: a(o)
        U = vS + 14
        a(f"""
        v_add_f32 v{CS}, v{CS}, v{CS+1}
        s_nop 0
        v_mov_b32 v{CS+1}, v{CS}
        s_nop 1
        v_permlane32_swap_b32 v{CS}, v{CS+1}
        s_nop 1
        v_add_f32 v{CS}, v{CS}, v{CS+1}
        """)
        a(f"""
        s_lshl_b32 s{c.sT0}, s{c.sWn}, 8
        s_lshl_b32 s{c.sT1}, s{c.sWm}, 7
        s_add_u32 s{c.sT0}, s{c.sT0}, s{c.sT1}
        s_add_u32 s{c.sT0}, s{c.sT0}, {STAT + 1024}
        v_lshlrev_b32 v{U}, 2, v2
        v_add_u32 v{U+1}, s{c.sT0}, v{U}
        ds_write_b32 v{U+1}, v{CS}
        """)
        a("s_waitcnt lgkmcnt(0)")
    def dbg_issue(self):
        a, c = self.a, self
        make_srd(a, 44, pDBG, pDBG+1, 0, 256)
        a(f"v_lshlrev_b32 v{c.vSt+27}, 2, v1")
        a("s_mov_b64 exec, 0x1ff")
        a(f"buffer_load_dword v{c.vSt+26}, v{c.vSt+27}, s[44:47], 0 offen sc1")
        a("s_mov_b64 exec, -1")
        a("s_nop 1")
    def epilogue_Y(self, kind):
        a, c = self.a, self
        vT, vAcc, vAd = c.vT, c.vAcc, c.vAd
        vM, vR, vC = vT, vT + 2, 32
        for lt in range(2):
            a(f"""
            s_lshl_b32 s{c.sT1}, s{c.sWm}, 8
            s_add_u32 s{c.sT0}, s{c.sT1}, {STAT + (0 if c.qkv else lt*128)}
            s_xor_b32 s{c.sT1}, s{c.sWn}, {lt}
            s_lshl_b32 s{c.sT1}, s{c.sT1}, {7 if c.qkv else 31}
            s_add_u32 s{c.sT0}, s{c.sT0}, {'s%d' % c.sT1 if c.qkv else 0}
            v_lshlrev_b32 v{vT+4}, 2, v2
            v_add_u32 v{vT+4}, s{c.sT0}, v{vT+4}
            ds_read_b32 v{vM + lt}, v{vT+4}
            ds_read_b32 v{vR + lt}, v{vT+4} offset:512
            """)
        for lf in range(2):
            a(f"""
            s_lshl_b32 s{c.sT1}, s{c.sWn}, 8
            s_add_u32 s{c.sT0}, s{c.sT1}, {STAT + 1024}
            s_xor_b32 s{c.sT1}, s{c.sWm}, {lf}
            s_lshl_b32 s{c.sT1}, s{c.sT1}, 7
            s_add_u32 s{c.sT0}, s{c.sT0}, s{c.sT1}
            v_lshlrev_b32 v{vT+4}, 4, v3
            v_add_u32 v{vT+4}, s{c.sT0}, v{vT+4}
            """)
            for q in range(4):
                a(f"ds_read_b128 {vr(vC + lf*16 + q*4, 4)}, v{vT+4} offset:{q*32}")
        a("s_waitcnt lgkmcnt(0)")
        if kind == 'qk':
            a(f"""
            s_cmp_lt_u32 s{c.sNt}, 5
            s_cselect_b32 s{c.sT0}, {f32bits(QSCALE):#x}, 1.0
            v_mul_f32 v{vR}, s{c.sT0}, v{vR}
            v_mul_f32 v{vR+1}, s{c.sT0}, v{vR+1}
            """)
        B = c.vSt + 2
        for lt in range(2):
            a(f"v_mov_b32 v{B + 2*lt}, v{vM + lt}")
            a(f"v_mov_b32 v{B + 2*lt + 1}, v{vM + lt}")
            a(f"v_mov_b32 v{B + 4 + 2*lt}, v{vR + lt}")
            a(f"v_mov_b32 v{B + 4 + 2*lt + 1}, v{vR + lt}")
        vP = vT + 8
        n = 0
        for lf in range(2):
            for lt in range(2):
                acc = vAcc + (lf*2 + lt) * 16
                for r in range(0, 16, 2):
                    a(f"v_pk_fma_f32 {vr(acc + r, 2)}, {vr(B + 2*lt, 2)}, {vr(vC + lf*16 + r, 2)}, {vr(acc + r, 2)} neg_lo:[1,0,0] neg_hi:[1,0,0]")
                for r in range(0, 16, 2):
                    a(f"v_pk_mul_f32 {vr(acc + r, 2)}, {vr(acc + r, 2)}, {vr(B + 4 + 2*lt, 2)}")
                for j in range(2):
                    p = vP + (n & 1) * 4
                    n += 1
                    q0 = acc + j*8
                    for k in range(4):
                        a(f"v_cvt_pk_bf16_f32 v{p+k}, v{q0+2*k}, v{q0+2*k+1}")
                    if kind == 'ffn1':
                        for k in range(4):
                            a(f"v_pk_max_i16 v{p+k}, v{p+k}, 0")
                    else:
                        a("s_nop 0")
                    a("s_nop 0")
                    if kind == 'ffn1': a("s_nop 0")
                    a(f"v_permlane32_swap_b32 v{p}, v{p+2}")
                    a(f"v_permlane32_swap_b32 v{p+1}, v{p+3}")
                    ins = f"buffer_store_dwordx4 {vr(p,4)}, v{vAd + lf*2 + j}, s[{c.sO}:{c.sO+3}], s{40 + lt} offen @SC"
                    if kind == 'ffn1': dual(a, [ins])
                    else: a(ins.replace("@SC", SC))
    def epilogue_X(self):
        a, c = self.a, self
        vT, vAcc, vAd = c.vT, c.vAcc, c.vAd
        vC, vM, vR = vT, 32, 48
        for lf in range(2):
            a(f"""
            s_lshl_b32 s{c.sT1}, s{c.sWn}, 8
            s_add_u32 s{c.sT0}, s{c.sT1}, {STAT + 1024}
            s_xor_b32 s{c.sT1}, s{c.sWm}, {lf}
            s_lshl_b32 s{c.sT1}, s{c.sT1}, 7
            s_add_u32 s{c.sT0}, s{c.sT0}, s{c.sT1}
            v_lshlrev_b32 v{vT+4}, 2, v2
            v_add_u32 v{vT+4}, s{c.sT0}, v{vT+4}
            ds_read_b32 v{vC + lf}, v{vT+4}
            """)
        vP = vT + 8
        n = 0
        for lt in range(2):
            a(f"""
            s_lshl_b32 s{c.sT1}, s{c.sWm}, 8
            s_add_u32 s{c.sT0}, s{c.sT1}, {STAT}
            s_xor_b32 s{c.sT1}, s{c.sWn}, {lt}
            s_lshl_b32 s{c.sT1}, s{c.sT1}, 7
            s_add_u32 s{c.sT0}, s{c.sT0}, s{c.sT1}
            v_lshlrev_b32 v{vT+4}, 4, v3
            v_add_u32 v{vT+4}, s{c.sT0}, v{vT+4}
            """)
            for q in range(4):
                a(f"ds_read_b128 {vr(vM + q*4, 4)}, v{vT+4} offset:{q*32}")
                a(f"ds_read_b128 {vr(vR + q*4, 4)}, v{vT+4} offset:{512 + q*32}")
            a("s_waitcnt lgkmcnt(0)")
            B = c.vSt + 2
            if lt == 0:
                for lf in range(2):
                    a(f"v_mov_b32 v{B + 2*lf}, v{vC + lf}")
                    a(f"v_mov_b32 v{B + 2*lf + 1}, v{vC + lf}")
            for lf in range(2):
                acc = vAcc + (lf*2 + lt) * 16
                for r in range(0, 16, 2):
                    a(f"v_pk_fma_f32 {vr(acc + r, 2)}, {vr(vM + r, 2)}, {vr(B + 2*lf, 2)}, {vr(acc + r, 2)} neg_lo:[1,0,0] neg_hi:[1,0,0]")
                for r in range(0, 16, 2):
                    a(f"v_pk_mul_f32 {vr(acc + r, 2)}, {vr(acc + r, 2)}, {vr(vR + r, 2)}")
                for g in range(2):
                    p = vP + (n & 1) * 4
                    n += 1
                    for r in range(4):
                        a(f"v_cvt_pk_bf16_f32 v{p + r}, v{acc + g*8 + 2*r}, v{acc + g*8 + 2*r + 1}")
                    a(f"buffer_store_dwordx4 {vr(p,4)}, v{vAd + lf}, s[{c.sO}:{c.sO+3}], s{40 + lt*2 + g} offen {SC}")

STG = 36864
class CoreS:
    sA, sO, sR = 8, 16, 40
    sM0, sN0, sT0, sT1, sT2, sNt = 21, 22, 23, 24, 25, 26
    sLw, sAoff, sWoff, sLdsA, sLdsW, sSeq, sSeqW = 20, 29, 30, 31, 32, 33, 34
    vA = 4
    vXa2, vWa2 = 116, 117
    def __init__(self, a, mode):
        self.a, self.mode = a, mode
        self.op = mode == 'oproj'
        self.NST = 5 if self.op else 14
    def map_tiles(self):
        a, c = self.a, self
        NST = c.NST
        a(f"""
        s_and_b32 s{c.sT0}, s{sRk}, 3
        s_lshl_b32 s{c.sM0}, s{sX}, 2
        s_add_u32 s{c.sM0}, s{c.sM0}, s{c.sT0}
        s_lshl_b32 s{c.sM0}, s{c.sM0}, 6
        s_lshr_b32 s{c.sNt}, s{sRk}, 2
        s_mul_i32 s{c.sN0}, s{c.sNt}, 80
        s_mul_i32 s{c.sSeq}, s{c.sT0}, {1 if c.op else 3}
        s_mul_i32 s{c.sT1}, s{c.sNt}, {1 if c.op else 2}
        s_add_u32 s{c.sSeq}, s{c.sSeq}, s{c.sT1}
        s_cmp_ge_u32 s{c.sSeq}, {NST}
        s_cselect_b32 s{c.sT1}, {NST}, 0
        s_sub_u32 s{c.sSeq}, s{c.sSeq}, s{c.sT1}
        s_cmp_ge_u32 s{c.sSeq}, {NST}
        s_cselect_b32 s{c.sT1}, {NST}, 0
        s_sub_u32 s{c.sSeq}, s{c.sSeq}, s{c.sT1}
        """)
        if E('NOROTS'): a(f"s_mov_b32 s{c.sSeq}, 0")
    def loader_setup(self):
        a, c = self.a, self
        if c.op: make_srd(a, c.sA, pWS, pWS+1, WS_O, SZ_ACT)
        else: make_srd(a, c.sA, pWS, pWS+1, WS_F, SZ_F)
        a(f"""
        s_sub_u32 s{c.sLw}, s{sWV}, 4
        v_lshlrev_b32 v{c.vA}, 4, v1
        s_lshl_b32 s{c.sT0}, s{c.sLw}, 17
        s_lshl_b32 s{c.sT1}, s{c.sM0}, 4
        s_add_u32 s{c.sAoff}, s{c.sT0}, s{c.sT1}
        s_mul_i32 s{c.sT0}, s{c.sLw}, 5120
        s_mul_i32 s{c.sT1}, s{c.sNt}, {c.NST * 20480}
        s_add_u32 s{c.sWoff}, s{c.sT0}, s{c.sT1}
        s_add_u32 s{c.sWoff}, s{c.sWoff}, {WS_WOP if c.op else WS_W2P}
        s_lshl_b32 s{c.sLdsA}, s{c.sLw}, 12
        s_add_u32 s{c.sLdsW}, s{c.sT0}, 16384
        s_mul_i32 s{c.sT0}, s{c.sSeq}, {16 * 32768}
        s_add_u32 s{c.sAoff}, s{c.sAoff}, s{c.sT0}
        s_mul_i32 s{c.sT0}, s{c.sSeq}, 20480
        s_add_u32 s{c.sWoff}, s{c.sWoff}, s{c.sT0}
        s_mov_b32 s{c.sSeqW}, s{c.sSeq}
        """)
    def issue_A(self, seq):
        a, c = self.a, self
        slot = (seq % 4) * STG
        for j in range(4):
            a(f"s_add_u32 m0, s{c.sLdsA}, {slot}" if j == 0 else "s_add_u32 m0, m0, 1024")
            a(f"s_mov_b32 s{c.sT0}, s{c.sAoff}" if j == 0 else f"s_add_u32 s{c.sT0}, s{c.sT0}, 32768")
            a(f"buffer_load_dwordx4 v{c.vA}, s[{c.sA}:{c.sA+3}], s{c.sT0} offen lds")
        a(f"""
        s_add_u32 s{c.sSeq}, s{c.sSeq}, 1
        s_cmp_eq_u32 s{c.sSeq}, {c.NST}
        s_cselect_b32 s{c.sT0}, {c.NST * 16 * 32768}, 0
        s_cselect_b32 s{c.sSeq}, 0, s{c.sSeq}
        s_add_u32 s{c.sAoff}, s{c.sAoff}, {16 * 32768}
        s_sub_u32 s{c.sAoff}, s{c.sAoff}, s{c.sT0}
        """)
    def issue_W(self, seq):
        a, c = self.a, self
        slot = (seq % 4) * STG
        a(f"s_add_u32 m0, s{c.sLdsW}, {slot}")
        a(f"s_add_u32 s{c.sT0}, s{c.sWoff}, 4096")
        for j in range(4):
            a(f"buffer_load_dwordx4 v{c.vA}, s[{sWS}:{sWS+3}], s{c.sWoff} offen offset:{j*1024} lds")
        a("s_add_u32 m0, m0, 4096")
        a(f"s_add_u32 s{c.sSeqW}, s{c.sSeqW}, 1")
        a(f"buffer_load_dwordx4 v{c.vA}, s[{sWS}:{sWS+3}], s{c.sT0} offen lds")
        a(f"""
        s_cmp_eq_u32 s{c.sSeqW}, {c.NST}
        s_cselect_b32 s{c.sT0}, {c.NST * 20480}, 0
        s_cselect_b32 s{c.sSeqW}, 0, s{c.sSeqW}
        s_add_u32 s{c.sWoff}, s{c.sWoff}, 20480
        s_sub_u32 s{c.sWoff}, s{c.sWoff}, s{c.sT0}
        """)
    def loader_main(self, q):
        a, c = self.a, self
        for s_ in range(c.NST):
            a(f"s_waitcnt vmcnt({q.need(f'A{s_}', f'W{s_}')})")
            a("s_barrier")
            stx(a, f"{'o' if c.op else 'g'}l{s_}")
            if s_ + PD < c.NST and not (E('S_NODMA') and not c.op):
                if not E('S_NOA'): c.issue_A(s_ + PD); q.push(f"A{s_+PD}", 4)
                if not E('S_NOW'): c.issue_W(s_ + PD); q.push(f"W{s_+PD}", 5)
    vXb, vWb, vXa, vWa, vX, vW, vRes, vT, vAcc = 4, 5, 6, 7, 8, 32, 70, 84, 96
    vXa2, vWa2 = 120, 121
    def compute_setup(self):
        a, c = self.a, self
        vT = c.vT
        a(f"""
        v_and_b32 v2, 15, v1
        v_lshrrev_b32 v3, 4, v1
        s_lshr_b32 s{c.sT1}, s{sWV}, 1
        s_and_b32 s{c.sT2}, s{sWV}, 1
        s_lshl_b32 s{c.sT0}, s{c.sT1}, 5
        s_add_u32 s{c.sT0}, s{c.sT0}, s{c.sM0}
        v_add_u32 v{vT}, s{c.sT0}, v2
        """)
        a(f"""
        s_mul_i32 s{c.sAoff}, s{c.sT2}, 48
        s_add_u32 s{c.sAoff}, s{c.sAoff}, s{c.sN0}
        v_mul_u32_u24 v{vT+1}, 1280, v{vT}
        v_lshlrev_b32 v{vT+3}, 3, v3
        v_add_u32 v{vT+1}, v{vT+1}, v{vT+3}
        s_lshl_b32 s{c.sT0}, s{c.sAoff}, 1
        v_add_u32 v{vT+1}, s{c.sT0}, v{vT+1}
        v_lshrrev_b32 v{vT+3}, 1, v3
        v_lshlrev_b32 v{vT+3}, 15, v{vT+3}
        v_lshlrev_b32 v{vT+2}, 4, v{vT}
        v_add_u32 v{vT+2}, v{vT+2}, v{vT+3}
        v_and_b32 v{vT+3}, 1, v3
        v_lshlrev_b32 v{vT+3}, 3, v{vT+3}
        v_add_u32 v{vT+2}, v{vT+2}, v{vT+3}
        s_lshl_b32 s{c.sT0}, s{c.sAoff}, 12
        v_add_u32 v{vT+2}, s{c.sT0}, v{vT+2}
        s_lshl_b32 s{c.sT0}, s{c.sT1}, 9
        v_lshlrev_b32 v{c.vXb}, 10, v3
        v_lshlrev_b32 v{vT+3}, 4, v2
        v_add_u32 v{c.vXb}, v{c.vXb}, v{vT+3}
        v_add_u32 v{c.vXb}, s{c.sT0}, v{c.vXb}
        v_lshrrev_b32 v{vT+3}, 1, v3
        v_lshlrev_b32 v{vT+3}, 4, v{vT+3}
        v_and_b32 v{vT+4}, 1, v3
        v_lshlrev_b32 v{vT+4}, 2, v{vT+4}
        v_add_u32 v{vT+3}, v{vT+3}, v{vT+4}
        v_lshrrev_b32 v{vT+4}, 2, v2
        v_add_u32 v{vT+3}, v{vT+3}, v{vT+4}
        v_mul_u32_u24 v{vT+3}, 160, v{vT+3}
        v_and_b32 v{vT+4}, 3, v1
        v_lshlrev_b32 v{vT+4}, 3, v{vT+4}
        v_add_u32 v{vT+3}, v{vT+3}, v{vT+4}
        s_mul_i32 s{c.sT0}, s{c.sT2}, 96
        s_add_u32 s{c.sT0}, s{c.sT0}, 16384
        v_add_u32 v{c.vWb}, s{c.sT0}, v{vT+3}
        s_mov_b32 s{c.sWoff}, s{c.sT2}
        """)
        if c.op:
            make_srd(a, c.sR, pX, pX+1, 0, 2048 * 1280)
            make_srd(a, c.sO, pWS, pWS+1, WS_H, SZ_ACT)
        else:
            make_srd(a, c.sR, pWS, pWS+1, WS_H, SZ_ACT)
            make_srd(a, c.sO, pOUT, pOUT+1, 0, 2048 * 1280)
        a(f"""
        s_cmp_eq_u32 s{c.sT2}, 1
        s_cselect_b32 s44, 0x7f000000, 0
        s_cselect_b64 s[46:47], -1, 0
        """)
    def pretouch(self): pass
    def tile_off(self, T, tt, rowmajor):
        a, c = self.a, self
        if rowmajor:
            base = T * 32 + tt * 16 * 1280
            val = base
        else:
            val = T * 65536 + tt * 256
        if T == 2:
            a(f"s_add_u32 s{c.sT0}, s44, {val}")
        else:
            a(f"s_mov_b32 s{c.sT0}, {val}")
        return (c.vT + 1 if rowmajor else c.vT + 2), c.sT0
    def residual_loads(self):
        a, c = self.a, self
        for T in range(3):
            for tt in range(2):
                va, so = c.tile_off(T, tt, c.op)
                a(f"buffer_load_dwordx2 {vr(c.vRes + 2*(T*2 + tt), 2)}, v{va}, s[{c.sR}:{c.sR+3}], s{so} offen")
    def mainloop(self, stamp0=None, tag=''):
        a, c = self.a, self
        N = c.NST * 4
        def rlist(i):
            st_, k, buf = i // 4, i % 4, i % 3
            xa, wa = (c.vXa, c.vWa) if st_ % 2 == 0 else (c.vXa2, c.vWa2)
            L = [f"ds_read_b128 {vr(c.vX + buf*8 + tt*4, 4)}, v{xa} offset:{k*4096 + tt*256}" for tt in range(2)]
            for T in range(3):
                for h2 in range(2):
                    L.append(f"ds_read_b64_tr_b16 {vr(c.vW + buf*12 + T*4 + h2*2, 2)}, v{wa} offset:{k*5120 + h2*1280 + T*32}")
            return L
        def setaddr(st_):
            slot = (st_ % 4) * STG
            xa, wa = (c.vXa, c.vWa) if st_ % 2 == 0 else (c.vXa2, c.vWa2)
            a(f"v_add_u32 v{xa}, {slot}, v{c.vXb}")
            a(f"v_add_u32 v{wa}, {slot}, v{c.vWb}")
        a("s_barrier")
        stx(a, tag + '_s0')
        setaddr(0)
        for r in rlist(0) + rlist(1): a(r)
        for i in range(N):
            buf = i % 3
            rl = rlist(i + 2) if i + 2 < N else []
            a(f"s_waitcnt lgkmcnt({8 if i + 1 < N else 0})")
            k = 0
            for T in range(3):
                for tt in range(2):
                    acc = c.vAcc + (T*2 + tt) * 4
                    cc = "0" if i == 0 else vr(acc, 4)
                    a(f"v_mfma_f32_16x16x32_bf16 {vr(acc,4)}, {vr(c.vW + buf*12 + T*4, 4)}, {vr(c.vX + buf*8 + tt*4, 4)}, {cc}")
                    if k == 0 and i + 2 < N and (i + 2) % 4 == 0:
                        a("s_barrier")
                        if (i + 2) // 4 == 1: stx(a, tag + '_s1')
                        if (i + 2) // 4 == 4: stx(a, tag + '_s4')
                        setaddr((i + 2) // 4)
                    for r in rl[[0, 2, 4, 5, 6, 7][k]:[2, 4, 5, 6, 7, 8][k]]: a(r)
                    k += 1
        a("s_nop 7")
    def reduce(self):
        pass
    def epilogue(self):
        a, c = self.a, self
        vT, vRes = c.vT, c.vRes
        a("s_waitcnt vmcnt(0)")
        P = 8
        for T in range(3):
            for tt in range(2):
                n = T*2 + tt
                acc = c.vAcc + n*4
                rr = vRes + 2*n
                a(f"""
                v_lshlrev_b32 v24, 16, v{rr}
                v_and_b32 v25, 0xffff0000, v{rr}
                v_lshlrev_b32 v26, 16, v{rr+1}
                v_and_b32 v27, 0xffff0000, v{rr+1}
                v_add_f32 v{acc}, v{acc}, v24
                v_add_f32 v{acc+1}, v{acc+1}, v25
                v_add_f32 v{acc+2}, v{acc+2}, v26
                v_add_f32 v{acc+3}, v{acc+3}, v27
                v_cvt_pk_bf16_f32 v{P+2*n}, v{acc}, v{acc+1}
                v_cvt_pk_bf16_f32 v{P+2*n+1}, v{acc+2}, v{acc+3}
                """)
                va, so = c.tile_off(T, tt, not c.op)
                ins = f"buffer_store_dwordx2 {vr(P+2*n, 2)}, v{va}, s[{c.sO}:{c.sO+3}], s{so} offen @SC"
                if c.op: dual(a, [ins])
                else: a(ins.replace("@SC", E('OUTFL', '')))
        if c.op:
            for tt in range(2):
                S, Q = 28 + 2*tt, 29 + 2*tt
                first = True
                for T in range(3):
                    n = T*2 + tt
                    for d in range(2):
                        r = P + 2*n + d
                        a(f"v_lshlrev_b32 v24, 16, v{r}")
                        a(f"v_and_b32 v25, 0xffff0000, v{r}")
                        if T == 2:
                            a(f"v_cndmask_b32 v24, v24, 0, s[46:47]")
                            a(f"v_cndmask_b32 v25, v25, 0, s[46:47]")
                        if first:
                            a(f"v_add_f32 v{S}, v24, v25")
                            a(f"v_mul_f32 v{Q}, v24, v24")
                            first = False
                        else:
                            a(f"v_add_f32 v{S}, v{S}, v24")
                            a(f"v_add_f32 v{S}, v{S}, v25")
                            a(f"v_fmac_f32 v{Q}, v24, v24")
                        a(f"v_fmac_f32 v{Q}, v25, v25")
            a(f"""
            v_mov_b32 v32, v28
            v_mov_b32 v33, v29
            v_mov_b32 v34, v30
            v_mov_b32 v35, v31
            s_nop 1
            v_permlane32_swap_b32 v28, v32
            v_permlane32_swap_b32 v29, v33
            v_permlane32_swap_b32 v30, v34
            v_permlane32_swap_b32 v31, v35
            s_nop 1
            v_add_f32 v28, v28, v32
            v_add_f32 v29, v29, v33
            v_add_f32 v30, v30, v34
            v_add_f32 v31, v31, v35
            s_nop 0
            v_mov_b32 v32, v28
            v_mov_b32 v33, v29
            v_mov_b32 v34, v30
            v_mov_b32 v35, v31
            s_nop 1
            v_permlane16_swap_b32 v28, v32
            v_permlane16_swap_b32 v29, v33
            v_permlane16_swap_b32 v30, v34
            v_permlane16_swap_b32 v31, v35
            s_nop 1
            v_add_f32 v28, v28, v32
            v_add_f32 v29, v29, v33
            v_add_f32 v30, v30, v34
            v_add_f32 v31, v31, v35
            s_lshl_b32 s{c.sT0}, s{c.sNt}, 1
            s_add_u32 s{c.sT0}, s{c.sT0}, s{c.sWoff}
            s_lshl_b32 s{c.sT0}, s{c.sT0}, 14
            s_add_u32 s{c.sT0}, s{c.sT0}, {WS_ST2}
            v_lshlrev_b32 v32, 3, v{vT}
            s_mov_b64 exec, 0xffff
            """)
            dual(a, [f"buffer_store_dwordx2 v[28:29], v32, s[{sWS}:{sWS+3}], s{c.sT0} offen @SC",
                     f"buffer_store_dwordx2 v[30:31], v32, s[{sWS}:{sWS+3}], s{c.sT0} offen offset:128 @SC"])
            a("s_mov_b64 exec, -1")

KT = 1536
SLOT = 8 * KT + 16384
VOFF = 8 * KT
NSLOT = 5
FLAG = NSLOT * SLOT

def attn_pad_init(a, nw_base, per_wave):
    a(f"""
    v_and_b32 v120, 31, v1
    v_mov_b32 v124, 0
    v_mov_b32 v123, 0x3f803f80
    v_cmp_eq_u32 vcc, 20, v120
    s_sub_u32 s75, s{sWV}, {nw_base}
    s_mul_i32 s75, s75, {per_wave * 1024}
    s_add_u32 s75, s75, {VOFF}
    v_cndmask_b32 v124, v124, v123, vcc
    v_lshlrev_b32 v123, 4, v1
    v_add_u32 v123, s75, v123
    v_mov_b32 v125, v124
    v_mov_b32 v126, v124
    v_mov_b32 v127, v124
    s_mov_b32 exec_lo, 0xfff00000
    s_mov_b32 exec_hi, 0xfff00000
    """)
    base = 0
    for sl in range(NSLOT):
        for j in range(per_wave):
            off = sl * SLOT + j * 1024
            if off - base >= 65536 - 1024:
                a(f"v_add_u32 v123, {sl*SLOT - base}, v123")
                base = sl * SLOT
            a(f"ds_write_b128 v123, v[124:127] offset:{off - base}")
    a(f"""
    s_mov_b64 exec, -1
    v_mov_b32 v123, {FLAG}
    v_mov_b32 v124, 0
    ds_write_b32 v123, v124
    s_waitcnt lgkmcnt(0)
    """)

def emit_attention(a, after_stores):
    name = "att"
    sK, sV, sQ, sO = 8, 12, 16, 20
    sHead, sQt, sT0, sT1, sT2 = 25, 26, 27, 28, 29
    sChunk, sSlotN, sPass, sKoff, sVoff, sKh = 30, 31, 32, 33, 34, 35
    sVmask = 38
    sSlotW, sE, sQg, sQb = 40, 41, 42, 43
    sW1s = 44
    vL16, vVoff = 2, 3
    vA3 = [[4, 5, 6], [7, 8, 9], [172, 173, 174]]
    vQ, vQr, vNC, vS, vP, vKb, vKr, vV, vO, vT = 10, 18, 22, 54, 86, 94, 102, 110, 126, 158
    lane_id(a, 0)
    lane_id(a, 1)
    a(f"""
    s_mov_b32 s{sVmask}, 0x000fffff
    s_mov_b32 s{sVmask+1}, 0x000fffff
    s_mov_b32 s{sPass}, 0
    s_lshr_b32 s{sKh}, s{sWV}, 2
    s_and_b32 s{sQg}, s{sWV}, 3
    v_lshlrev_b32 v{vL16}, 4, v0
    v_and_b32 v{vT}, 31, v0
    v_lshrrev_b32 v{vT+1}, 5, v0
    v_mul_u32_u24 v{vVoff}, 320, v{vT+1}
    v_lshlrev_b32 v{vT+2}, 4, v{vT}
    v_add_u32 v{vVoff}, v{vVoff}, v{vT+2}
    """)
    make_srd(a, sK, pWS, pWS+1, WS_K, SZ_QK)
    make_srd(a, sV, pWS, pWS+1, WS_V, SZ_QKV)
    make_srd(a, sQ, pWS, pWS+1, WS_Q, SZ_QK)
    make_srd(a, sO, pWS, pWS+1, WS_O, SZ_ACT)
    make_srd(a, sW1s, pW1, pW1+1, 0, 640*3456)
    def zero_regs():
        for i in range(32): a(f"v_mov_b32 v{vO+i}, 0")
        for i in range(4):
            a(f"v_mov_b32 v{vP+4+i}, 0")
            a(f"v_mov_b32 v{vV+12+i}, 0")
    zero_regs()
    a(f"v_and_b32 v{vT+11}, 7, v0")
    a(f"v_lshlrev_b32 v{vT+11}, 7, v{vT+11}")
    a(f"v_add_u32 v{vT+11}, {WS_CNT + C_RPS*128}, v{vT+11}")
    a(f"v_mov_b32 v{vT+10}, 0")
    a("s_barrier")
    a(f"""
    v_mov_b32 v4, {ROLE}
    ds_read_b96 v[6:8], v4
    s_waitcnt lgkmcnt(0)
    v_readfirstlane_b32 s{sX}, v6
    v_readfirstlane_b32 s{sRk}, v7
    v_readfirstlane_b32 s{sLoc}, v8
    s_and_b32 s{sT0}, s2, 7
    s_lshr_b32 s{sT1}, s2, 3
    s_cmp_eq_u32 s{sLoc}, 0
    s_cselect_b32 s{sX}, s{sT0}, s{sX}
    s_cselect_b32 s{sRk}, s{sT1}, s{sRk}
    s_mov_b32 s{sHead}, s{sRk}
    s_mov_b32 s{sQb}, s{sX}
    s_lshl_b32 s{sQt}, s{sQb}, 3
    s_and_b32 s{sE}, s{sHead}, 1
    """)
    def reinit():
        a(f"""
        s_lshl_b32 s{sT0}, s{sE}, 9
        s_mul_i32 s{sT1}, s{sKh}, {4*KT}
        s_add_u32 s{sT0}, s{sT0}, s{sT1}
        v_add_u32 v{vA3[0][0]}, s{sT0}, v{vL16}
        s_sub_u32 s{sT0}, 1, s{sE}
        s_lshl_b32 s{sT0}, s{sT0}, 10
        s_lshl_b32 s{sT2}, s{sE}, 3
        s_add_u32 s{sT0}, s{sT0}, s{sT2}
        s_add_u32 s{sT0}, s{sT0}, s{sT1}
        v_and_b32 v{vT}, 31, v0
        v_lshlrev_b32 v{vA3[0][1]}, 4, v{vT}
        v_add_u32 v{vA3[0][1]}, s{sT0}, v{vA3[0][1]}
        s_lshl_b32 s{sT0}, s{sKh}, 13
        s_add_u32 s{sT0}, s{sT0}, {VOFF}
        v_add_u32 v{vA3[0][2]}, s{sT0}, v{vL16}
        s_mov_b32 s{sSlotN}, {2*SLOT}
        s_lshr_b32 s{sT0}, s{sHead}, 1
        s_mul_i32 s{sT0}, s{sT0}, 163840
        s_mul_i32 s{sT1}, s{sWV}, 2560
        s_add_u32 s{sKoff}, s{sT0}, s{sT1}
        s_lshl_b32 s{sT1}, s{sE}, 10
        s_add_u32 s{sKoff}, s{sKoff}, s{sT1}
        s_mul_i32 s{sT0}, s{sHead}, 81920
        s_mul_i32 s{sT1}, s{sWV}, 1280
        s_add_u32 s{sVoff}, s{sT0}, s{sT1}
        s_mov_b32 s{sSlotW}, 0
        """)
        for k in range(3):
            a(f"v_add_u32 v{vA3[1][k]}, {SLOT}, v{vA3[0][k]}")
            a(f"v_add_u32 v{vA3[2][k]}, {2*SLOT}, v{vA3[0][k]}")
    reinit()
    a(f"""
    s_lshl_b32 s{sT0}, s{sQg}, 1
    s_add_u32 s{sQt}, s{sQt}, s{sT0}
    v_lshlrev_b32 v{vT+13}, 4, v{vT}
    s_lshl_b32 s{sT1}, s{sE}, 3
    s_add_u32 s{sT1}, s{sT1}, 1024
    v_add_u32 v{vT+13}, s{sT1}, v{vT+13}
    v_mov_b32 v{vT+9}, 0x7fffff00
    """)
    a(f"""
    v_cmp_gt_u32 vcc, 32, v0
    s_mul_i32 s{sT1}, s{sE}, 1536
    v_cndmask_b32 v{vT+13}, v{vT+9}, v{vT+13}, vcc
    v_add_u32 v{vT+12}, s{sT1}, v{vL16}
    """)
    lw = a.newlabel("attw")
    a(f"""
    s_cmp_eq_u32 s{sWV}, 0
    s_cbranch_scc0 {lw}
    s_mul_i32 s{sT0}, s{sHead}, 20
    s_lshr_b32 s{sT1}, s{sT0}, 7
    s_add_u32 s{sT0}, s{sT0}, 19
    s_lshr_b32 s{sT0}, s{sT0}, 7
    v_and_b32 v{vT+3}, 1, v0
    v_mov_b32 v{vT+4}, s{sT1}
    v_mov_b32 v{vT+5}, s{sT0}
    v_cmp_eq_u32 vcc, 1, v{vT+3}
    v_lshrrev_b32 v{vT+6}, 1, v0
    v_mul_u32_u24 v{vT+6}, 5, v{vT+6}
    v_cndmask_b32 v{vT+4}, v{vT+4}, v{vT+5}, vcc
    v_add_u32 v{vT+4}, v{vT+4}, v{vT+6}
    v_add_u32 v{vT+4}, {C_QKV}, v{vT+4}
    v_lshlrev_b32 v{vT+4}, 7, v{vT+4}
    v_add_u32 v{vT+4}, {WS_CNT}, v{vT+4}
    v_mov_b32 v{vT+5}, 16
    """)
    stx(a, 'a_p0')
    poll(a, vT + 4, vT + 5, 6, vT + 6, slp=int(E('QSLP', '1')))
    a.label(lw)
    stx(a, 'a_pre')
    a("s_waitcnt lgkmcnt(0)")
    a("s_barrier")
    st(a, 5)
    def rpa():
        a("s_and_b32 s76, s2, 7")
        a(f"s_add_u32 s76, s76, {C_RPS}")
        arrive(a, 76, vT + 4)
    KVF = E('KVF', '')
    def dma_chunk():
        a(f"""
        s_mul_i32 s{sT0}, s{sWV}, {KT}
        s_add_u32 m0, s{sSlotW}, s{sT0}
        s_lshl_b32 s{sT1}, s{sWV}, 11
        buffer_load_dwordx4 v{vL16}, s[{sK}:{sK+3}], s{sKoff} offen {KVF} lds
        s_mov_b32 exec_hi, 0
        buffer_load_dwordx4 v{vL16}, s[{sK}:{sK+3}], s{sKoff} offen offset:1024 {KVF} lds
        s_add_u32 s{sT1}, s{sT1}, s{sSlotW}
        s_add_u32 m0, s{sT1}, {VOFF}
        s_mov_b64 exec, s[{sVmask}:{sVmask+1}]
        buffer_load_dwordx4 v{vVoff}, s[{sV}:{sV+3}], s{sVoff} offen {KVF} lds
        s_add_u32 m0, m0, 1024
        s_add_u32 s{sT1}, s{sVoff}, 640
        buffer_load_dwordx4 v{vVoff}, s[{sV}:{sV+3}], s{sT1} offen {KVF} lds
        s_mov_b64 exec, -1
        s_add_u32 s{sKoff}, s{sKoff}, {8*2560}
        s_add_u32 s{sVoff}, s{sVoff}, 10240
        s_add_u32 s{sSlotW}, s{sSlotW}, {SLOT}
        s_cmp_ge_u32 s{sSlotW}, {NSLOT*SLOT}
        s_cselect_b32 s{sSlotW}, 0, s{sSlotW}
        """)
    dma_chunk()
    a(f"s_lshr_b32 s{sT0}, s{sHead}, 1")
    a(f"s_mul_i32 s{sT0}, s{sT0}, 163840")
    for s in range(2):
        a(f"""
        s_xor_b32 s{sT1}, s{sKh}, {s}
        s_add_u32 s{sT1}, s{sT1}, s{sQt}
        s_mul_i32 s{sT1}, s{sT1}, 2560
        s_add_u32 s{sT1}, s{sT1}, s{sT0}
        buffer_load_dwordx4 {vr(vQ+4*s,4)}, v{vT+12}, s[{sQ}:{sQ+3}], s{sT1} offen
        buffer_load_dwordx2 {vr(vQr+2*s,2)}, v{vT+13}, s[{sQ}:{sQ+3}], s{sT1} offen
        """)
    a(f"s_branch L_{name}_start")
    a.label(f"L_{name}_restart")
    zero_regs()
    reinit()
    dma_chunk()
    a.label(f"L_{name}_start")
    vKc, vKrc, vVc = vA3[0]
    a(f"""
    s_waitcnt vmcnt(0)
    """)
    stx(a, 'a_c0')
    a("s_barrier")
    dma_chunk()
    a(f"""
    s_cmp_eq_u32 s{sPass}, 0
    s_cbranch_scc0 L_{name}_haveC
    s_mul_i32 s{sT1}, s{sKh}, {4*KT}
    v_subrev_u32 v{vT+1}, s{sT1}, v{vKc}
    v_subrev_u32 v{vT+2}, s{sT1}, v{vKrc}
    ds_read_b128 {vr(vKb,4)}, v{vT+1}
    ds_read_b64 {vr(vKr,2)}, v{vT+2}
    s_waitcnt lgkmcnt(0)
    """)
    for s in range(2):
        S = vS + 16*s
        a(f"v_mfma_f32_32x32x16_bf16 {vr(S,16)}, {vr(vKb,4)}, {vr(vQ+4*s,4)}, 0")
    for s in range(2):
        S = vS + 16*s
        a(f"v_mfma_f32_32x32x8_bf16 {vr(S,16)}, {vr(vKr,2)}, {vr(vQr+2*s,2)}, {vr(S,16)}")
    a(f"""
    ds_read_b128 {vr(vKb,4)}, v{vKc}
    ds_read2st64_b64 {vr(vKr,4)}, v{vKrc} offset0:0 offset1:3
    ds_read_b128 {vr(vV,4)}, v{vVc}
    ds_read_b128 {vr(vV+4,4)}, v{vVc} offset:1024
    s_nop 11
    """)
    for s in range(2):
        S = vS + 16*s
        T_ = vT + 2*s
        a(f"v_max3_f32 v{T_}, v{S}, v{S+1}, v{S+2}")
        for i in range(3, 15, 2):
            a(f"v_max3_f32 v{T_}, v{T_}, v{S+i}, v{S+i+1}")
        a(f"v_max_f32 v{T_}, v{T_}, v{S+15}")
    a(f"""
    v_mov_b32 v{vT+1}, v{vT}
    v_mov_b32 v{vT+3}, v{vT+2}
    s_nop 1
    v_permlane32_swap_b32 v{vT}, v{vT+1}
    v_permlane32_swap_b32 v{vT+2}, v{vT+3}
    s_nop 1
    v_max_f32 v{vT}, v{vT}, v{vT+1}
    v_max_f32 v{vT+2}, v{vT+2}, v{vT+3}
    v_sub_f32 v{vNC}, 0, v{vT}
    v_sub_f32 v{vNC+16}, 0, v{vT+2}
    """)
    for i in range(1, 16):
        a(f"v_mov_b32 v{vNC+i}, v{vNC}")
        a(f"v_mov_b32 v{vNC+16+i}, v{vNC+16}")
    a(f"s_branch L_{name}_haveC2")
    a.label(f"L_{name}_haveC")
    a(f"""
    ds_read_b128 {vr(vKb,4)}, v{vKc}
    ds_read2st64_b64 {vr(vKr,4)}, v{vKrc} offset0:0 offset1:3
    ds_read_b128 {vr(vV,4)}, v{vVc}
    ds_read_b128 {vr(vV+4,4)}, v{vVc} offset:1024
    """)
    a.label(f"L_{name}_haveC2")
    a(f"""
    s_waitcnt lgkmcnt(0)
    v_mfma_f32_32x32x16_bf16 {vr(vS,16)}, {vr(vKb,4)}, {vr(vQ,4)}, {vr(vNC,16)}
    v_mfma_f32_32x32x8_bf16 {vr(vS,16)}, {vr(vKr,2)}, {vr(vQr,2)}, {vr(vS,16)}
    s_mov_b32 s{sChunk}, 0
    s_nop 7
    """)
    st(a, 6)
    a(f"""
    s_cmp_eq_u32 s{sKh}, 0
    s_cselect_b32 s36, 7, 0
    s_cselect_b32 s37, 0, 7
    """)
    ool = []
    def rare(mask, fn, tag):
        l, b = a.newlabel(tag), a.newlabel(tag + "b")
        a(f"s_bitcmp1_b32 {mask:#x}, s{sChunk}")
        a(f"s_cbranch_scc1 {l}")
        a.label(b)
        ool.append((l, b, fn))
    def common_(mask, fn, tag):
        l = a.newlabel(tag)
        a(f"s_bitcmp1_b32 {mask if isinstance(mask, str) else hex(mask)}, s{sChunk}")
        a(f"s_cbranch_scc0 {l}")
        fn()
        a.label(l)
    def pf_A(half, which='w1'):
        if which == 'w1':
            a(f"""
            v_lshlrev_b32 v{vT+12}, 7, v0
            s_mul_i32 s{sT0}, s{sRk}, 69120
            s_lshl_b32 s{sT1}, s{sWV}, 13
            s_add_u32 s{sT0}, s{sT0}, s{sT1}
            s_mov_b32 exec_lo, {-1 if half == 0 else 0}
            s_mov_b32 exec_hi, {0 if half == 0 else -1}
            buffer_load_dword v{vT+13}, v{vT+12}, s[{sW1s}:{sW1s+3}], s{sT0} offen sc1
            s_mov_b64 exec, -1
            """)
        else:
            a(f"""
            v_lshlrev_b32 v{vT+12}, 7, v0
            s_mul_i32 s{sT0}, s{sRk}, {SZ_W2P // 32}
            s_lshl_b32 s{sT1}, s{sWV}, 13
            s_add_u32 s{sT0}, s{sT0}, s{sT1}
            s_add_u32 s{sT0}, s{sT0}, {WS_W2P}
            s_mov_b32 exec_lo, {-1 if half == 0 else 0}
            s_mov_b32 exec_hi, {0 if half == 0 else -1}
            buffer_load_dword v{vT+13}, v{vT+12}, s[{sWS}:{sWS+3}], s{sT0} offen sc1
            s_mov_b64 exec, -1
            """)
    def pf_B():
        l5, l4, le = a.newlabel("pf5"), a.newlabel("pf4"), a.newlabel("pfe")
        a(f"""
        v_lshlrev_b32 v{vT+12}, 7, v0
        s_cmp_ge_u32 s{sWV}, 5
        s_cbranch_scc1 {l5}
        s_cmp_eq_u32 s{sWV}, 4
        s_cbranch_scc1 {l4}
        s_mul_i32 s{sT0}, s{sRk}, {SZ_WOP // 32}
        s_lshl_b32 s{sT1}, s{sWV}, 13
        s_add_u32 s{sT0}, s{sT0}, s{sT1}
        s_add_u32 s{sT0}, s{sT0}, {WS_WOP}
        buffer_load_dword v{vT+13}, v{vT+12}, s[{sWS}:{sWS+3}], s{sT0} offen sc1
        s_branch {le}
        """)
        a.label(l4)
        a(f"""
        s_mul_i32 s{sT0}, s{sRk}, 69120
        s_add_u32 s{sT0}, s{sT0}, 65536
        s_mov_b32 exec_hi, 0
        buffer_load_dword v{vT+13}, v{vT+12}, s[{sW1s}:{sW1s+3}], s{sT0} offen sc1
        s_mov_b32 exec_hi, -1
        s_branch {le}
        """)
        a.label(l5)
        a(f"""
        s_sub_u32 s{sT1}, s{sWV}, 5
        s_lshl_b32 s{sT1}, s{sT1}, 5
        s_mul_i32 s{sT0}, s{sRk}, 80
        s_add_u32 s{sT0}, s{sT0}, s{sT1}
        v_and_b32 v{vT+8}, 31, v0
        v_add_u32 v{vT+8}, s{sT0}, v{vT+8}
        v_lshrrev_b32 v{vT+9}, 5, v{vT+8}
        v_lshlrev_b32 v{vT+9}, 15, v{vT+9}
        v_and_b32 v{vT+8}, 31, v{vT+8}
        v_lshlrev_b32 v{vT+8}, 7, v{vT+8}
        v_add_u32 v{vT+8}, v{vT+8}, v{vT+9}
        s_lshl_b32 s{sT0}, s{sX}, 12
        s_mov_b32 exec_hi, 0
        buffer_load_dword v{vT+13}, v{vT+8}, s[{sO}:{sO+3}], s{sT0} offen sc1
        s_mov_b32 exec_hi, -1
        """)
        a.label(le)
    def rp_issue():
        a("s_mov_b64 exec, 0xff")
        a(f"buffer_load_dword v{vT+10}, v{vT+11}, s[{sWS}:{sWS+3}], 0 offen sc1")
        a("s_mov_b64 exec, -1")
    def rp_check():
        ok = a.newlabel("rpok")
        a("s_mov_b64 exec, 0xff")
        a(f"v_cmp_gt_u32 vcc, 32, v{vT+10}")
        a("s_nop 4")
        a("s_cmp_eq_u64 vcc, 0")
        a(f"s_cbranch_scc1 {ok}")
        a(f"v_mov_b32 v{vT+9}, 32")
        poll(a, vT + 11, vT + 9, 8, vT + 10)
        a.label(ok)
        a("s_mov_b64 exec, -1")
    def rp_load():
        le = a.newlabel("rle")
        a(f"s_cmp_eq_u32 s{sPass}, 0")
        a(f"s_cbranch_scc0 {le}")
        a(f"s_cmp_ge_u32 s{sWV}, 4")
        a(f"s_cbranch_scc0 {le}")
        for r in range(3):
            la, lb = a.newlabel("rla"), a.newlabel("rlb")
            a(f"v_accvgpr_read_b32 v{vT+4}, a{43+2*r}")
            a(f"v_accvgpr_read_b32 v{vT+5}, a{44+2*r}")
            a(f"v_accvgpr_read_b32 v{vT+6}, a{49+r}")
            make_srd(a, 16, pWO, pWO+1, 0, 640*1280)
            a(f"""
            v_cmp_gt_u32 vcc, 40, v{vT+6}
            s_nop 4
            s_mov_b64 s[76:77], vcc
            s_mov_b64 exec, vcc
            s_cbranch_execz {la}
            buffer_load_dwordx4 {ar(28+4*r,4)}, v{vT+4}, s[16:19], 0 offen
            {la}:
            """)
            make_srd(a, 16, pW2, pW2+1, 0, 1728*1280)
            a(f"""
            s_not_b64 exec, s[76:77]
            s_cbranch_execz {lb}
            buffer_load_dwordx4 {ar(28+4*r,4)}, v{vT+5}, s[16:19], 0 offen
            {lb}:
            s_mov_b64 exec, -1
            """)
        a(f"""
        s_mul_i32 s76, s2, 8640
        s_sub_u32 s77, s{sWV}, 4
        s_mul_i32 s77, s77, 2176
        s_add_u32 s76, s76, s77
        v_lshlrev_b32 v{vT+4}, 7, v0
        s_mov_b64 exec, 0x1ffff
        buffer_load_dword v{vT+5}, v{vT+4}, s[{sW1s}:{sW1s+3}], s76 offen sc1
        s_mov_b64 exec, -1
        """)
        a.label(le)
    def rp_store():
        le = a.newlabel("rse")
        a(f"s_cmp_eq_u32 s{sPass}, 0")
        a(f"s_cbranch_scc0 {le}")
        a(f"s_cmp_ge_u32 s{sWV}, 4")
        a(f"s_cbranch_scc0 {le}")
        for r in range(3): a(f"v_accvgpr_read_b32 v{vT+4+r}, a{40+r}")
        a(f"s_mov_b32 s76, {WS_WOP}")
        for r in range(3):
            a(f"buffer_store_dwordx4 {ar(28+4*r,4)}, v{vT+4+r}, s[{sWS}:{sWS+3}], s76 offen {SC}")
        a.label(le)
    def rp_arr():
        le = a.newlabel("rae")
        a(f"s_cmp_eq_u32 s{sPass}, 0")
        a(f"s_cbranch_scc0 {le}")
        wave_only(a, 4, rpa)
        a.label(le)
    def rp_post():
        l2, le = a.newlabel("rp2"), a.newlabel("rpe")
        a(f"s_cmp_eq_u32 s{sChunk}, 2")
        a(f"s_cbranch_scc0 {l2}")
        a(f"s_cmp_eq_u32 s{sPass}, 0")
        a(f"s_cbranch_scc0 {le}")
        wave_only(a, 4, rpa)
        a(f"s_branch {le}")
        a.label(l2)
        rp_check()
        a.label(le)
    if E('A_PRIO'):
        l = a.newlabel("prio")
        a(f"s_cmp_ge_u32 s{sWV}, 4")
        a(f"s_cbranch_scc0 {l}")
        a(f"s_setprio {E('A_PRIO')}")
        a.label(l)
    a(".p2align 6")
    a.label(f"L_{name}_loop")
    rd = (lambda x: None) if E('A_NORD') else a
    for u in range(16):
        p = u & 1
        t = u >> 1
        D1 = int(E('A_D1', '6'))
        def common_else(mask, fn, fn_else, tag):
            l, b = a.newlabel(tag), a.newlabel(tag + "b")
            a(f"s_bitcmp1_b32 {mask:#x}, s{sChunk}")
            a(f"s_cbranch_scc0 {l}")
            fn()
            a.label(b)
            ool.append((l, b, fn_else))
        def by_pair(d):
            def f():
                le = a.newlabel("bpe")
                for k, fn in d.items():
                    ln = a.newlabel("bpn")
                    a(f"s_cmp_eq_u32 s{sChunk}, {k}")
                    a(f"s_cbranch_scc0 {ln}")
                    fn()
                    a(f"s_branch {le}")
                    a.label(ln)
                a.label(le)
            return f
        if u == 0: common_else(0b0111, dma_chunk, lambda: pf_A(0), "d0")
        if u == 6:
            rare(0b0101, by_pair({0: lambda: (a("s_waitcnt vmcnt(4)"), a("s_barrier")), 2: rp_store}), "c1")
            common_else(0b0111, dma_chunk, lambda: pf_A(1), "d1")
        if u == 10: rare(0b1000, pf_B, "pc")
        if u == 14:
            rare(0b1000, rp_issue, "rpi")
            a("s_waitcnt vmcnt(0)")
            a("s_barrier")
            rare(0b1101, by_pair({0: rp_load, 2: rp_arr, 3: rp_check}), "rpc")
        tn = t + 1
        A = vA3[tn // 4]
        if p == 0:
            rd(f"ds_read_b128 {vr(vKb + 4*(tn&1),4)}, v{A[0]} offset:{(tn%4)*KT}")
            if tn % 2 == 0:
                pb = (tn // 2) & 1
                rd(f"ds_read2st64_b64 {vr(vKr + 4*pb,4)}, v{A[1]} offset0:{(tn%4)*3} offset1:{(tn%4)*3+3}")
            rd(f"ds_read_b128 {vr(vV + 8*(tn&1),4)}, v{A[2]} offset:{(tn%4)*2048}")
        else:
            rd("s_waitcnt lgkmcnt(0)")
        un = u + 1
        tq = un >> 1
        qs = un & 1
        Sc, Sn = vS + 16*p, vS + 16*(p^1)
        kbuf = vKb + 4*(tq & 1)
        krbuf = vKr + 4*((tq // 2) & 1) + 2*(tq & 1)
        ex = lambda r: a(f"v_exp_f32 v{Sc+r}, v{Sc+r}")
        cv = lambda r: a(f"v_cvt_pk_bf16_f32 v{vP+r}, v{Sc+2*r}, v{Sc+2*r+1}")
        a(f"v_mfma_f32_32x32x16_bf16 {vr(Sn,16)}, {vr(kbuf,4)}, {vr(vQ+4*qs,4)}, {vr(vNC+16*qs,16)}")
        for r in range(4): ex(r)
        tp = (u - 1) >> 1 if u > 0 else -1
        Op = vO + 16*((u - 1) & 1)
        a(f"v_mfma_f32_32x32x16_bf16 {vr(Op,16)}, {vr(vV + 8*(tp & 1) + 4,4)}, {vr(vP+4,4)}, {vr(Op,16)}")
        if p == 0:
            rd(f"ds_read_b128 {vr(vV + 8*(tn&1) + 4,4)}, v{A[2]} offset:{(tn%4)*2048 + 1024}")
        for r in range(4, 8): ex(r)
        cv(0); cv(1)
        a(f"v_mfma_f32_32x32x8_bf16 {vr(Sn,16)}, {vr(krbuf,2)}, {vr(vQr+2*qs,2)}, {vr(Sn,16)}")
        cv(2); cv(3)
        for r in range(8, 12): ex(r)
        Oc = vO + 16*p
        a(f"v_mfma_f32_32x32x16_bf16 {vr(Oc,16)}, {vr(vV + 8*(t & 1),4)}, {vr(vP,4)}, {vr(Oc,16)}")
        for r in range(12, 16): ex(r)
        if u == 15:
            a(f"""
            s_add_u32 s{sT0}, s{sSlotN}, {SLOT}
            s_cmp_ge_u32 s{sT0}, {NSLOT*SLOT}
            s_cselect_b32 s{sT1}, {NSLOT*SLOT}, 0
            s_sub_u32 s{sT0}, s{sT0}, s{sT1}
            s_sub_u32 s{sT1}, s{sT0}, s{sSlotN}
            s_add_u32 s{sT2}, s{sT0}, {SLOT}
            s_cmp_ge_u32 s{sT2}, {NSLOT*SLOT}
            s_cselect_b32 s{sT0}, {NSLOT*SLOT}, 0
            s_sub_u32 s{sT2}, s{sT2}, s{sT0}
            s_sub_u32 s{sT0}, s{sT2}, s{sSlotN}
            s_mov_b32 s{sSlotN}, s{sT2}
            """)
            for k in range(3):
                a(f"v_mov_b32 v{vA3[0][k]}, v{vA3[2][k]}")
                a(f"v_add_u32 v{vA3[1][k]}, s{sT1}, v{vA3[2][k]}")
                a(f"v_add_u32 v{vA3[2][k]}, s{sT0}, v{vA3[2][k]}")
        for r in range(4, 8): cv(r)
    a(f"""
    s_add_u32 s{sChunk}, s{sChunk}, 1
    s_cmp_lt_u32 s{sChunk}, 4
    s_cbranch_scc1 L_{name}_loop
    s_waitcnt lgkmcnt(0)
    """)
    a(f"v_mfma_f32_32x32x16_bf16 {vr(vO+16,16)}, {vr(vV + 8 + 4,4)}, {vr(vP+4,4)}, {vr(vO+16,16)}")
    st(a, 7)
    a(f"s_branch L_{name}_post")
    for l, b, fn in ool:
        a.label(l)
        fn()
        a(f"s_branch {b}")
    a.label(f"L_{name}_post")
    a(f"""
    s_barrier
    s_lshl_b32 s{sT0}, s{sQg}, 1
    s_add_u32 s{sT1}, s{sT0}, s{sKh}
    s_lshr_b32 s{sT2}, s{sT1}, 2
    s_mul_i32 s{sT2}, s{sT2}, {SLOT}
    s_and_b32 s{sT1}, s{sT1}, 3
    s_mul_i32 s{sT1}, s{sT1}, 3072
    s_add_u32 s{sT1}, s{sT1}, s{sT2}
    v_add_u32 v{vT}, s{sT1}, v{vL16}
    s_xor_b32 s{sT1}, s{sKh}, 1
    s_add_u32 s{sT1}, s{sT1}, s{sT0}
    s_lshr_b32 s{sT2}, s{sT1}, 2
    s_mul_i32 s{sT2}, s{sT2}, {SLOT}
    s_and_b32 s{sT1}, s{sT1}, 3
    s_mul_i32 s{sT1}, s{sT1}, 3072
    s_add_u32 s{sT1}, s{sT1}, s{sT2}
    v_add_u32 v{vT+1}, s{sT1}, v{vL16}
    s_nop 7
    """)
    stx(a, 'a_bar1')
    for i in range(3):
        a(f"ds_write_b128 v{vT}, {vr(vO+16+4*i,4)} offset:{i*1024}")
    a("s_waitcnt lgkmcnt(0)")
    a("s_barrier")
    stx(a, 'a_bar2')
    for i in range(3):
        a(f"ds_read_b128 {vr(vS+4*i,4)}, v{vT+1} offset:{i*1024}")
    a("s_waitcnt lgkmcnt(0)")
    for r in range(12):
        a(f"v_add_f32 v{vO+r}, v{vO+r}, v{vS+r}")
    a(f"v_mov_b32 v{vT}, 0")
    for r in range(12):
        a(f"v_fma_f32 v{vT}, v{vO+r}, 0, v{vT}")
    a(f"""
    s_cmp_eq_u32 s{sPass}, 0
    s_cbranch_scc0 L_{name}_store2
    v_cmp_u_f32 vcc, v{vT}, v{vT}
    s_nop 4
    s_cmp_eq_u64 vcc, 0
    s_cbranch_scc1 L_{name}_store2
    v_mov_b32 v{vT+1}, {FLAG}
    v_mov_b32 v{vT+2}, 1
    ds_write_b32 v{vT+1}, v{vT+2}
    s_branch L_{name}_store2
    L_{name}_redo:
    s_mov_b32 s{sPass}, 1
    v_mov_b32 v{vT}, 0xff800000
    v_mov_b32 v{vT+1}, 0xff800000
    s_lshr_b32 s{sT0}, s{sHead}, 1
    s_mul_i32 s{sT0}, s{sT0}, 163840
    s_mov_b32 s{sT1}, 0
    v_and_b32 v{vT+2}, 31, v0
    v_lshlrev_b32 v{vT+2}, 4, v{vT+2}
    s_lshl_b32 s{sT2}, s{sE}, 3
    s_add_u32 s{sT2}, s{sT2}, 1024
    v_add_u32 v{vT+2}, s{sT2}, v{vT+2}
    s_mul_i32 s{sT2}, s{sE}, 1536
    v_add_u32 v{vT+3}, s{sT2}, v{vL16}
    L_{name}_maxloop:
    buffer_load_dwordx4 {vr(vKb,4)}, v{vT+3}, s[{sK}:{sK+3}], s{sT0} offen
    buffer_load_dwordx2 {vr(vKr,2)}, v{vT+2}, s[{sK}:{sK+3}], s{sT0} offen
    s_waitcnt vmcnt(0)
    """)
    for s in range(2):
        S = vS + 16*s
        a(f"v_mfma_f32_32x32x16_bf16 {vr(S,16)}, {vr(vKb,4)}, {vr(vQ+4*s,4)}, 0")
        a(f"v_mfma_f32_32x32x8_bf16 {vr(S,16)}, {vr(vKr,2)}, {vr(vQr+2*s,2)}, {vr(S,16)}")
    a("s_nop 15")
    for s in range(2):
        for i in range(0, 16, 2):
            a(f"v_max3_f32 v{vT+s}, v{vT+s}, v{vS+16*s+i}, v{vS+16*s+i+1}")
    a(f"""
    s_add_u32 s{sT0}, s{sT0}, 2560
    s_add_u32 s{sT1}, s{sT1}, 1
    s_cmp_lt_u32 s{sT1}, 64
    s_cbranch_scc1 L_{name}_maxloop
    """)
    for s in range(2):
        a(f"""
        v_mov_b32 v{vT+2}, v{vT+s}
        s_nop 1
        v_permlane32_swap_b32 v{vT+s}, v{vT+2}
        s_nop 1
        v_max_f32 v{vT+2}, v{vT+s}, v{vT+2}
        v_sub_f32 v{vNC+16*s}, 0, v{vT+2}
        """)
        for i in range(1, 16):
            a(f"v_mov_b32 v{vNC+16*s+i}, v{vNC+16*s}")
    a("s_barrier")
    a(f"s_branch L_{name}_restart")
    a.label(f"L_{name}_store2")
    stx(a, 'a_vote')
    a(f"""
    v_mov_b32 v{vT}, v{vO+8}
    v_mov_b32 v{vT+1}, v{vO+8}
    s_nop 1
    v_permlane32_swap_b32 v{vT}, v{vT+1}
    s_nop 1
    v_rcp_f32 v{vT+1}, v{vT+1}
    v_lshrrev_b32 v{vT+2}, 5, v0
    v_and_b32 v{vT+3}, 31, v0
    s_add_u32 s{sT0}, s{sQt}, s{sKh}
    s_lshl_b32 s{sT0}, s{sT0}, 5
    v_add_u32 v{vT+3}, s{sT0}, v{vT+3}
    v_lshlrev_b32 v{vT+3}, 4, v{vT+3}
    s_mul_i32 s{sT0}, s{sHead}, 5
    v_add_u32 v{vT+2}, s{sT0}, v{vT+2}
    """)
    for r in range(12):
        a(f"v_mul_f32 v{vO+r}, v{vO+r}, v{vT+1}")
    for q in range(3):
        a(f"""
        v_add_u32 v{vT+4}, {2*q}, v{vT+2}
        v_lshrrev_b32 v{vT+5}, 1, v{vT+4}
        v_lshlrev_b32 v{vT+5}, 15, v{vT+5}
        v_and_b32 v{vT+4}, 1, v{vT+4}
        v_lshlrev_b32 v{vT+4}, 3, v{vT+4}
        v_add3_u32 v{vT+4}, v{vT+4}, v{vT+5}, v{vT+3}
        v_cvt_pk_bf16_f32 v{vT+6}, v{vO+4*q}, v{vO+4*q+1}
        v_cvt_pk_bf16_f32 v{vT+7}, v{vO+4*q+2}, v{vO+4*q+3}
        """)
        if q == 2: a("s_mov_b32 exec_hi, 0")
        dual(a, [f"buffer_store_dwordx2 {vr(vT+6,2)}, v{vT+4}, s[{sO}:{sO+3}], 0 offen @SC"])
    a("s_mov_b64 exec, -1")
    stx(a, 'a_stores')
    a(f"""
    s_waitcnt vmcnt(0) lgkmcnt(0)
    s_barrier
    v_mov_b32 v{vT+1}, {FLAG}
    ds_read_b32 v{vT+2}, v{vT+1}
    s_waitcnt lgkmcnt(0)
    v_readfirstlane_b32 s{sT0}, v{vT+2}
    s_cmp_eq_u32 s{sPass}, 0
    s_cselect_b32 s{sT0}, s{sT0}, 0
    s_cmp_lg_u32 s{sT0}, 0
    s_cbranch_scc1 L_{name}_redo
    """)
    a(f"s_add_u32 s76, s{sQb}, {C_ATT}")

def gemm_phase_prologue_loader(a, core, q, dep_idx_sgpr, dep_target, nW, pre_issued):
    pass

LANDED = [True]
def reg_step1(a, vd):
    a("s_mov_b64 exec, 7")
    a(f"buffer_load_dword v{vd}, v{vd+1}, s[44:47], 0 offen sc1")
    a("s_mov_b64 exec, -1")
def reg_step2(a, vd):
    dbg_flag_wait(a, vd, landed=LANDED[0])
    a(f"""
    s_getreg_b32 s{sX}, hwreg(HW_REG_XCC_ID)
    s_and_b32 s{sX}, s{sX}, 7
    s_add_u32 s76, s{sX}, {C_RK}
    s_lshl_b32 s76, s76, 7
    s_add_u32 s76, s76, {WS_CNT}
    v_mov_b32 v{vd-1}, s76
    v_accvgpr_write_b32 a0, 1
    s_mov_b64 exec, 1
    s_nop 1
    buffer_atomic_add a0, v{vd-1}, s[{sWS}:{sWS+3}], 0 offen sc0
    s_mov_b64 exec, -1
    """)
def reg_step3(a, vd):
    l1, l2 = a.newlabel("r3a"), a.newlabel("r3b")
    if not LANDED[0]: a("s_waitcnt vmcnt(0)")
    a(f"""
    v_accvgpr_read_b32 v{vd-1}, a0
    s_nop 1
    v_readfirstlane_b32 s{sRk}, v{vd-1}
    s_cmp_eq_u32 s{sRk}, 31
    s_cbranch_scc0 {l1}
    v_mov_b32 v{vd-1}, 4
    v_mov_b32 v{vd-2}, 1
    s_mov_b64 exec, 1
    buffer_atomic_add v{vd-2}, v{vd-1}, s[44:47], 0 offen sc1
    s_mov_b64 exec, -1
    """)
    a.label(l1)
    a(f"""
    s_cmp_ge_u32 s{sRk}, 32
    s_cbranch_scc0 {l2}
    v_mov_b32 v{vd-1}, 8
    v_mov_b32 v{vd-2}, 1
    s_mov_b64 exec, 1
    buffer_store_dword v{vd-2}, v{vd-1}, s[44:47], 0 offen sc1
    s_mov_b64 exec, -1
    """)
    a.label(l2)
    a("s_mov_b64 exec, 7")
    a(f"buffer_load_dword v{vd}, v{vd+1}, s[44:47], 0 offen sc1")
    a("s_mov_b64 exec, -1")
def register_publish(a, vd):
    l0, l1 = a.newlabel("rp"), a.newlabel("rpok")
    a(f"s_mov_b32 s{sPoll}, 0")
    a.label(l0)
    a(f"""
    s_waitcnt vmcnt(0)
    v_readlane_b32 s39, v{vd}, 1
    v_readlane_b32 s40, v{vd}, 2
    s_cmp_eq_u32 s39, 8
    s_cselect_b32 s38, 1, 0
    s_cmp_lg_u32 s40, 0
    s_cselect_b32 s38, 0, s38
    s_cbranch_scc1 {l1}
    s_cmp_eq_u32 s38, 1
    s_cbranch_scc1 {l1}
    s_add_u32 s{sPoll}, s{sPoll}, 1
    s_cmp_gt_u32 s{sPoll}, {POLL_MAX}
    s_cbranch_scc1 {l1}
    s_sleep 1
    s_mov_b64 exec, 7
    buffer_load_dword v{vd}, v{vd+1}, s[44:47], 0 offen sc1
    s_mov_b64 exec, -1
    s_branch {l0}
    """)
    a.label(l1)
    if E('FORCE_SLOW'): a("s_mov_b32 s38, 0")
    a(f"""
    v_mov_b32 v{vd-6}, s{sX}
    v_mov_b32 v{vd-4}, s38
    v_mov_b32 v{vd-5}, s{sRk}
    v_mov_b32 v{vd-7}, {ROLE}
    ds_write_b96 v{vd-7}, v[{vd-6}:{vd-4}]
    s_waitcnt lgkmcnt(0)
    """)
def wave_only(a, w, fn):
    l = a.newlabel("wo")
    a(f"s_cmp_eq_u32 s{sWV}, {w}")
    a(f"s_cbranch_scc0 {l}")
    fn()
    a.label(l)
def code_prefetch(a):
    a(f"""
    s_getpc_b64 s[40:41]
    L_pcref:
    s_lshr_b32 s42, s2, 3
    s_lshl_b32 s42, s42, 11
    v_lshlrev_b32 v26, 7, v1
    v_add_u32 v26, s42, v26
    s_mov_b32 s43, L_exit-L_pcref
    v_cmp_gt_u32 vcc, s43, v26
    s_nop 4
    s_and_b32 vcc_lo, vcc_lo, 0xffff
    s_mov_b32 vcc_hi, 0
    s_mov_b64 exec, vcc
    s_cbranch_execz L_pcskip
    global_load_dword v31, v26, s[40:41]
    L_pcskip:
    s_mov_b64 exec, -1
    """)

def tlb_warm(a):
    G = int(E('TLBG', '16'))
    a(f"""
    s_lshr_b32 s75, s2, 3
    v_lshlrev_b32 v166, 5, v1
    v_add_u32 v166, s75, v166
    v_lshlrev_b32 v166, {G}, v166
    """)
    n_ws = -(-WS_END >> G)
    a(f"s_mov_b64 exec, {(1 << min(31, -(-n_ws // 32))) - 1:#x}")
    a(f"buffer_load_dword v167, v166, s[{sWS}:{sWS+3}], 0 offen sc1")
    a("s_mov_b64 exec, 3")
    for k, (pp, size) in enumerate(((pW1, 640*3456), (pW2, 1728*1280), (pWO, 640*1280), (pOUT, 2048*1280))):
        make_srd(a, 8, pp, pp+1, 0, size)
        a(f"buffer_load_dword v167, v166, s[8:11], 0 offen sc1")
    a("s_mov_b64 exec, -1")

CODE_KB = 64
def gen_mega():
    a = Asm()
    a(f"""
    s_cmp_ge_u32 s2, 256
    s_cbranch_scc1 L_exit
    s_load_dwordx8 s[84:91], s[0:1], 0
    s_load_dwordx8 s[92:99], s[0:1], 32
    s_load_dwordx2 s[78:79], s[0:1], 64
    """)
    st_rt(a, 0); st(a, 1)
    a(f"""
    v_lshrrev_b32 v2, 6, v0
    s_nop 0
    v_readfirstlane_b32 s{sWV}, v2
    """)
    lane_id(a, 1)
    if not E('NOPF'):
        l = a.newlabel("pf")
        a(f"s_cmp_eq_u32 s{sWV}, 1")
        a(f"s_cbranch_scc0 {l}")
        code_prefetch(a)
        a.label(l)
    a("s_waitcnt lgkmcnt(0)")
    make_srd(a, sWS, pWS, pWS+1, 0, WS_END)
    L = CoreL(a, 'qkv', 'q')
    L.map_tiles("L_repack")
    a(f"""
    s_cmp_ge_u32 s{sWV}, 4
    s_cbranch_scc0 L_q_compute
    """)
    L.loader_setup()
    st(a, 2)
    q = VmQ()
    for s_ in range(PD):
        L.issue_A(s_); q.push(f"A{s_}", 4)
        if not FS: stamp(a, 9 + 2*s_, base=SB)
        L.issue_W(s_); q.push(f"W{s_}", 4)
        if not FS: stamp(a, 10 + 2*s_, base=SB)
    st(a, 3)
    make_srd(a, 44, pDBG, pDBG+1, 0, 256)
    a("v_lshlrev_b32 v71, 2, v1")
    a("v_mov_b32 v70, 0")
    PL = P0L(a, L)
    if E('P0L'):
        PL.issue(); q.push('p0l', 5)
    L.p0l = PL
    RP = Repack(a)
    RP.issue(defer=True)
    RP.save()
    L.ldstamps = True
    L.loader_main(q)
    st(a, 8)
    a("s_waitcnt lgkmcnt(0)")
    a("s_barrier")
    attn_pad_init(a, 4, 4)
    a("s_barrier")
    wave_only(a, 7, lambda: register_publish(a, 70))
    a("s_branch L_attn")
    a.label("L_q_compute")
    L.compute_setup()
    make_srd(a, 44, pDBG, pDBG+1, 0, 256)
    a(f"v_lshlrev_b32 v{L.vSt+27}, 2, v1")
    a(f"v_mov_b32 v{L.vSt+26}, 0")
    a(f"""
    s_cmp_ge_u32 s{L.sNt}, 10
    s_cbranch_scc1 L_q_vpath
    """)
    L.addr_qk()
    L.mainloop(True, 2)
    st(a, 3)
    a("s_barrier")
    stx(a, 'q_e1')
    L.epilogue_Y('qk')
    a("s_branch L_q_done")
    a.label("L_q_vpath")
    L.addr_v()
    L.mainloop(False, 2)
    st(a, 3)
    a("s_barrier")
    stx(a, 'q_e1')
    L.epilogue_X()
    a.label("L_q_done")
    stx(a, 'q_epi')
    a(f"buffer_load_dword v{L.vSt+26}, v{L.vSt+27}, s[44:47], 0 offen sc1")
    a("s_waitcnt vmcnt(0)")
    stx(a, 'q_drain')
    a("s_barrier")
    stx(a, 'q_e2')
    a(f"s_cmp_eq_u32 s{sWV}, 0")
    a("s_cbranch_scc0 L_attn")
    dbg_flag_wait(a, L.vSt + 26, landed=True)
    a(f"s_add_u32 s40, s{L.sNt}, {C_QKV}")
    arrive(a, 40, 4)
    st(a, 4)
    a("s_branch L_attn")
    a.label("L_repack")
    l = a.newlabel("zc")
    a(f"""
    s_xor_b32 s40, s2, 225
    s_or_b32 s40, s40, s{sWV}
    s_cmp_eq_u32 s40, 0
    s_cbranch_scc0 {l}
    v_mov_b32 v4, 0
    v_mov_b32 v5, 0
    v_mov_b32 v6, 0
    v_mov_b32 v7, 0
    v_lshlrev_b32 v8, 4, v1
    s_mov_b32 s40, {WS_CNT}
    """)
    for j in range(SZ_CNT // 1024):
        a(f"buffer_store_dwordx4 v[4:7], v8, s[{sWS}:{sWS+3}], s40 offen {SC}")
        a("s_add_u32 s40, s40, 1024")
    make_srd(a, 8, pDBG, pDBG+1, 0, 256)
    a(f"""
    s_waitcnt vmcnt(0)
    v_mov_b32 v4, 1
    v_mov_b32 v5, 0
    s_mov_b64 exec, 1
    buffer_store_dword v4, v5, s[8:11], 0 offen sc1
    s_mov_b64 exec, -1
    """)
    a.label(l)
    make_srd(a, 44, pDBG, pDBG+1, 0, 256)
    a(f"v_lshlrev_b32 v71, 2, v1")
    a(f"v_mov_b32 v70, 0")
    a(f"""
    s_and_b32 s21, s2, 7
    s_lshr_b32 s21, s21, 1
    s_lshl_b32 s21, s21, 2
    s_lshr_b32 s22, s2, 3
    s_and_b32 s22, s22, 3
    s_add_u32 s21, s21, s22
    """)
    idle_rows(a, 21)
    a("s_waitcnt vmcnt(0)")
    a(f"buffer_load_dword v70, v71, s[44:47], 0 offen sc1")
    a("s_barrier")
    def st_arr():
        dbg_flag_wait(a, 70)
        a(f"s_add_u32 s76, s21, {C_ST}")
        arrive(a, 76, 64)
    wave_only(a, 0, st_arr)
    def regall():
        LANDED[0] = False
        reg_step1(a, 70); reg_step2(a, 70); reg_step3(a, 70); register_publish(a, 70)
    wave_only(a, 7, regall)
    l = a.newlabel("rpl")
    a(f"s_cmp_ge_u32 s{sWV}, 4")
    a(f"s_cbranch_scc0 {l}")
    RP2 = Repack(a)
    RP2.issue(defer=True)
    RP2.save()
    attn_pad_init(a, 4, 4)
    a.label(l)
    def fl():
        a(f"buffer_load_dword v70, v71, s[44:47], 0 offen sc1")
        dbg_flag_wait(a, 70)
    wave_only(a, 4, fl)
    a("s_barrier")
    a.label("L_attn")
    emit_attention(a, None)
    S = CoreS(a, 'oproj')
    lane_id(a, 1)
    S.map_tiles()
    a(f"""
    s_cmp_ge_u32 s{sWV}, 4
    s_cbranch_scc0 L_o_compute
    """)
    S.loader_setup()
    q = VmQ()
    for s_ in range(PD):
        S.issue_W(s_); q.push(f"W{s_}", 5)
    lw = a.newlabel("ow")
    a(f"s_cmp_eq_u32 s{sWV}, 4")
    a(f"s_cbranch_scc0 {lw}")
    a(f"s_add_u32 s40, s{sX}, {C_ATT}")
    poll_f(a, 40, 32, 8)
    a.label(lw)
    stx(a, 'o_poll')
    a("s_barrier")
    for s_ in range(PD):
        S.issue_A(s_); q.push(f"A{s_}", 4)
    S.loader_main(q)
    a("s_barrier")
    F1 = CoreL(a, 'ffn1', 'f')
    F1.map_tiles("L_o_ld_idle")
    F1.loader_setup()
    q = VmQ()
    a("s_barrier")
    for s_ in range(PD):
        F1.issue_W(s_); q.push(f"W{s_}", 4)
    a("s_branch L_f1_loader")
    a.label("L_o_ld_idle")
    a("s_barrier")
    a("s_branch L_f2_loader0")
    a.label("L_o_compute")
    lw = a.newlabel("oa")
    a(f"s_cmp_eq_u32 s{sWV}, 0")
    a(f"s_cbranch_scc0 {lw}")
    arrive_f(a, 76, sRk, 4)
    st(a, 8)
    a.label(lw)
    S.compute_setup()
    S.pretouch()
    S.residual_loads()
    a("s_barrier")
    st(a, 9)
    stx(a, 'o_X')
    S.mainloop(tag='o')
    stx(a, 'o_loop')
    S.reduce()
    stx(a, 'o_red')
    a("s_barrier")
    S.epilogue()
    stx(a, 'o_epi')
    a("s_waitcnt vmcnt(0)")
    stx(a, 'o_drain')
    a("s_barrier")
    stx(a, 'o_e2')
    lw = a.newlabel("oa2")
    a(f"s_cmp_eq_u32 s{sWV}, 0")
    a(f"s_cbranch_scc0 {lw}")
    a(f"s_lshr_b32 s40, s{S.sM0}, 7")
    a(f"s_add_u32 s40, s40, {C_OP}")
    a(f"s_lshr_b32 s41, s{S.sM0}, 6")
    a(f"s_and_b32 s41, s41, 1")
    a(f"s_lshl_b32 s41, s41, 3")
    a(f"s_add_u32 s41, s41, s{S.sNt}")
    arrive_f(a, 40, 41, 4)
    st(a, 10)
    a.label(lw)
    lane_id(a, 1)
    F1.map_tiles("L_f2_compute0")
    a("s_branch L_f1_compute")
    a.label("L_f1_loader")
    lw = a.newlabel("fw")
    a(f"s_cmp_eq_u32 s{sWV}, 4")
    a(f"s_cbranch_scc0 {lw}")
    a(f"s_lshr_b32 s40, s{F1.sM0}, 7")
    a(f"s_add_u32 s40, s40, {C_OP}")
    stx(a, 'f_p0')
    poll_f(a, 40, 16, 8)
    a.label(lw)
    stx(a, 'f_poll')
    a("s_barrier")
    for s_ in range(PD):
        F1.issue_A(s_); q.push(f"A{s_}", 4)
    F1.lstats_init()
    F1.loader_main(q)
    a("s_waitcnt lgkmcnt(0)")
    a("s_barrier")
    S2 = CoreS(a, 'ffn2')
    S2.map_tiles()
    S2.loader_setup()
    q = VmQ()
    a("s_barrier")
    if E('PFW2B'):
        for j in range(9):
            wave_only(a, 4 + (j % 4), lambda: w2p_prefetch(a, j))
    for s_ in range(PD):
        S2.issue_W(s_); q.push(f"W{s_}", 5)
    a("s_branch L_f2_loader")
    a.label("L_f2_loader0")
    if E('PFW2') or E('PFW2B'):
        for j in range(9):
            wave_only(a, 4 + (j % 4), lambda: w2p_prefetch(a, j))
    S2.map_tiles()
    S2.loader_setup()
    for s_ in range(PD):
        S2.issue_W(s_)
    a.label("L_f2_loader")
    lw = a.newlabel("gw")
    a(f"s_cmp_eq_u32 s{sWV}, 4")
    a(f"s_cbranch_scc0 {lw}")
    a(f"s_lshr_b32 s40, s{S2.sM0}, 7")
    a(f"s_add_u32 s40, s40, {C_F1}")
    poll_f(a, 40, 14, 8)
    a.label(lw)
    a("s_barrier")
    for s_ in range(PD):
        S2.issue_A(s_); q.push(f"A{s_}", 4)
    S2.loader_main(q)
    if common.STAMPS:
        stamp_flush(a, 0, sWV, base=SB, vt=90)
    a("s_endpgm")
    a.label("L_f1_compute")
    F1.compute_setup()
    F1.addr_f()
    a("s_barrier")
    st(a, 11)
    stx(a, 'f_X')
    F1.mainloop(True, tag='f')
    stx(a, 'f_loop')
    a("s_barrier")
    F1.epilogue_Y('ffn1')
    stx(a, 'f_epi')
    a("s_waitcnt vmcnt(0)")
    stx(a, 'f_drain')
    a("s_barrier")
    lw = a.newlabel("fa")
    a(f"s_cmp_eq_u32 s{sWV}, 0")
    a(f"s_cbranch_scc0 {lw}")
    a(f"s_lshr_b32 s40, s{F1.sM0}, 7")
    a(f"s_add_u32 s40, s40, {C_F1}")
    arrive_f(a, 40, F1.sNt, 4)
    st(a, 12)
    a.label(lw)
    lane_id(a, 1)
    a.label("L_f2_compute0")
    S2.map_tiles()
    S2.compute_setup()
    a("s_barrier")
    st(a, 13)
    stx(a, 'g_X')
    S2.residual_loads()
    S2.mainloop(tag='g')
    stx(a, 'g_loop')
    S2.reduce()
    stx(a, 'g_red')
    S2.epilogue()
    stx(a, 'g_epi')
    if common.STAMPS:
        a("s_waitcnt vmcnt(0)")
        st(a, 14); st_rt(a, 15)
        stamp_flush(a, 0, sWV, base=SB, vt=90)
        if E('DBGOUT'):
            l = a.newlabel("dbo")
            a(f"s_cmp_eq_u32 s2, 9")
            a(f"s_cbranch_scc0 {l}")
            a(f"s_cmp_eq_u32 s{sWV}, 0")
            a(f"s_cbranch_scc0 {l}")
            make_srd(a, 8, pDBG, pDBG+1, 0, 256)
            a("s_mov_b64 exec, 1")
            pairs = [(15, 0), (14, 1), (2, 1), (3, 1), (4, 1), (5, 1), (6, 1), (7, 1), (9, 1), (11, 1), (13, 1)]
            for k, (x, y) in enumerate(pairs):
                a(f"s_sub_u32 s40, s{SB+x}, s{SB+y}")
                a(f"v_mov_b32 v4, s40")
                a(f"v_mov_b32 v5, {16 + 4*k}")
                a(f"buffer_store_dword v4, v5, s[8:11], 0 offen")
            a("s_waitcnt vmcnt(0)")
            a.label(l)
    a.label("L_exit")
    a("s_endpgm")
    return kernel_header(NAME) + a.text() + kernel_desc(NAME, 256, 176, sgpr=102)
```

```python
from common import *
import common, os
E = os.environ.get

NAME = "sequential_preLN__softmax_full_mha__dense_activation_relu__prompt_kernel"
pX, pWQ, pWO, pW1, pW2, pOUT, pDBG, pWS = 84, 86, 88, 92, 94, 96, 98, 78
sWS = 80
sWV = 100
sPoll = 101
SB = 48
STAT = 145408
LDS_TOTAL = 149504
SC = "sc1"
sX, sRk, sLoc = 72, 73, 74
ROLE = LDS_TOTAL - 64
POLL_MAX = 1 << 22

FS = E('FS', '').split(',') if E('FS') else []
FS0 = int(E('FS0', '9'))
def st(a, i):
    if FS and (i >= FS0) and i != 15: return
    stamp(a, i, base=SB)
def st2(a, i): pass
def stx(a, tag):
    if tag in FS: stamp(a, FS0 + FS.index(tag), base=SB)
def st_rt(a, i): stamp_rt(a, i, base=SB)

def lane_id(a, v):
    a(f"v_mbcnt_lo_u32_b32 v{v}, -1, 0")
    a(f"v_mbcnt_hi_u32_b32 v{v}, -1, v{v}")

def arrive(a, sIdx, vt):
    a(f"""
    s_lshl_b32 s{sPoll}, s{sIdx}, 7
    s_add_u32 s{sPoll}, s{sPoll}, {WS_CNT}
    v_mov_b32 v{vt}, s{sPoll}
    v_mov_b32 v{vt+1}, 1
    s_mov_b64 exec, 1
    buffer_atomic_add v{vt+1}, v{vt}, s[{sWS}:{sWS+3}], 0 offen sc1
    s_mov_b64 exec, -1
    """)

def dual(a, instrs):
    l0, l1 = a.newlabel("slow"), a.newlabel("dd")
    a(f"s_cmp_eq_u32 s{sLoc}, 0")
    a(f"s_cbranch_scc1 {l0}")
    for i in instrs: a(i.replace("@SC", E('LOCFL', '') if 'store' in i else ''))
    a(f"s_branch {l1}")
    a.label(l0)
    for i in instrs: a(i.replace("@SC", "sc1"))
    a.label(l1)

def arrive_l(a, sIdx, vt):
    a(f"""
    s_lshl_b32 s{sPoll}, s{sIdx}, 7
    s_add_u32 s{sPoll}, s{sPoll}, {WS_CNT}
    v_mov_b32 v{vt}, s{sPoll}
    v_mov_b32 v{vt+1}, 1
    s_mov_b64 exec, 1
    """)
    dual(a, [f"buffer_atomic_add v{vt+1}, v{vt}, s[{sWS}:{sWS+3}], 0 offen @SC"])
    a("s_mov_b64 exec, -1")

def arrive_f(a, sIdx, sSlot, vt):
    a(f"""
    s_lshl_b32 s{sPoll}, s{sIdx}, 7
    s_add_u32 s{sPoll}, s{sPoll}, {WS_CNT}
    s_lshl_b32 s75, s{sSlot}, 2
    s_add_u32 s{sPoll}, s{sPoll}, s75
    v_mov_b32 v{vt}, s{sPoll}
    v_mov_b32 v{vt+1}, 1
    s_mov_b64 exec, 1
    """)
    dual(a, [f"buffer_store_dword v{vt+1}, v{vt}, s[{sWS}:{sWS+3}], 0 offen @SC"])
    a("s_mov_b64 exec, -1")

def poll_f(a, sIdx, n, vt):
    a(f"""
    s_lshl_b32 s{sPoll}, s{sIdx}, 7
    s_add_u32 s{sPoll}, s{sPoll}, {WS_CNT}
    v_lshlrev_b32 v{vt+1}, 2, v1
    v_add_u32 v{vt+1}, s{sPoll}, v{vt+1}
    v_mov_b32 v{vt+2}, 1
    """)
    poll(a, vt + 1, vt + 2, n, vt)

def poll(a, vOff, vTgt, nl, vt, slp=1):
    l0, l1 = a.newlabel("poll"), a.newlabel("pollok")
    a(f"s_mov_b64 exec, {(1 << nl) - 1:#x}")
    a(f"s_mov_b32 s{sPoll}, 0")
    a.label(l0)
    a(f"""
    buffer_load_dword v{vt}, v{vOff}, s[{sWS}:{sWS+3}], 0 offen sc1
    s_waitcnt vmcnt(0)
    v_cmp_gt_u32 vcc, v{vTgt}, v{vt}
    s_nop 4
    s_cmp_eq_u64 vcc, 0
    s_cbranch_scc1 {l1}
    s_add_u32 s{sPoll}, s{sPoll}, 1
    s_cmp_gt_u32 s{sPoll}, {POLL_MAX}
    s_cbranch_scc1 {l1}
    s_sleep {slp}
    s_branch {l0}
    """)
    a.label(l1)
    a("s_mov_b64 exec, -1")

def poll1(a, sIdx, target, vt):
    a(f"""
    s_lshl_b32 s{sPoll}, s{sIdx}, 7
    s_add_u32 s{sPoll}, s{sPoll}, {WS_CNT}
    v_mov_b32 v{vt+1}, s{sPoll}
    v_mov_b32 v{vt+2}, {target}
    """)
    poll(a, vt + 1, vt + 2, 1, vt)

def wave_sum(a, v):
    for sh in (1, 2, 4, 8):
        a(f"v_add_f32_dpp v{v}, v{v}, v{v} row_shr:{sh} row_mask:0xf bank_mask:0xf bound_ctrl:0")
        a("s_nop 1")
    a(f"v_add_f32_dpp v{v}, v{v}, v{v} row_bcast:15 row_mask:0xa bank_mask:0xf")
    a("s_nop 1")
    a(f"v_add_f32_dpp v{v}, v{v}, v{v} row_bcast:31 row_mask:0xc bank_mask:0xf")
    a("s_nop 1")

def p0_rows_issue(a, sXs, s0, vR, vA):
    a(f"""
    s_lshl_b32 s{s0}, s2, 3
    s_lshl_b32 s{s0+1}, s{sWV}, 1
    s_add_u32 s{s0}, s{s0}, s{s0+1}
    s_mul_i32 s{s0+2}, s{s0}, 1280
    v_lshlrev_b32 v{vA}, 4, v1
    v_lshlrev_b32 v{vA+1}, 2, v1
    s_add_u32 s{s0+3}, s{s0+2}, 1280
    buffer_load_dwordx4 {vr(vR,4)}, v{vA}, s[{sXs}:{sXs+3}], s{s0+2} offen
    buffer_load_dword v{vR+4}, v{vA+1}, s[{sXs}:{sXs+3}], s{s0+2} offen offset:1024
    buffer_load_dwordx4 {vr(vR+6,4)}, v{vA}, s[{sXs}:{sXs+3}], s{s0+3} offen
    buffer_load_dword v{vR+5}, v{vA+1}, s[{sXs}:{sXs+3}], s{s0+3} offen offset:1024
    """)
def p0_rows_finish(a, s0, vR, vA):
    for rr in range(2):
        regs = [vR + 6*rr + i for i in range(4)] + [vR + 4 + rr]
        S, Q, U = vA + 4, vA + 5, vA + 6
        for n, r in enumerate(regs):
            a(f"v_lshlrev_b32 v{U}, 16, v{r}")
            a(f"v_and_b32 v{U+1}, 0xffff0000, v{r}")
            if n == 0:
                a(f"v_add_f32 v{S}, v{U}, v{U+1}")
                a(f"v_mul_f32 v{Q}, v{U}, v{U}")
            else:
                a(f"v_add_f32 v{S}, v{S}, v{U}")
                a(f"v_add_f32 v{S}, v{S}, v{U+1}")
                a(f"v_fmac_f32 v{Q}, v{U}, v{U}")
            a(f"v_fmac_f32 v{Q}, v{U+1}, v{U+1}")
        a("s_nop 1")
        for sh in (1, 2, 4, 8):
            a(f"v_add_f32_dpp v{S}, v{S}, v{S} row_shr:{sh} row_mask:0xf bank_mask:0xf bound_ctrl:0")
            a(f"v_add_f32_dpp v{Q}, v{Q}, v{Q} row_shr:{sh} row_mask:0xf bank_mask:0xf bound_ctrl:0")
            a("s_nop 0")
        a(f"v_add_f32_dpp v{S}, v{S}, v{S} row_bcast:15 row_mask:0xa bank_mask:0xf")
        a(f"v_add_f32_dpp v{Q}, v{Q}, v{Q} row_bcast:15 row_mask:0xa bank_mask:0xf")
        a("s_nop 0")
        a(f"v_add_f32_dpp v{S}, v{S}, v{S} row_bcast:31 row_mask:0xc bank_mask:0xf")
        a(f"v_add_f32_dpp v{Q}, v{Q}, v{Q} row_bcast:31 row_mask:0xc bank_mask:0xf")
        a(f"""
        s_nop 0
        v_mul_f32 v{S}, {f32bits(1.0/640):#x}, v{S}
        v_mul_f32 v{Q}, {f32bits(1.0/640):#x}, v{Q}
        v_fma_f32 v{Q}, -v{S}, v{S}, v{Q}
        v_max_f32 v{Q}, 0, v{Q}
        v_add_f32 v{Q}, {f32bits(1e-5):#x}, v{Q}
        v_rsq_f32 v{Q}, v{Q}
        s_nop 0
        v_mov_b32 v{vA+8+2*rr}, v{S}
        v_mov_b32 v{vA+9+2*rr}, v{Q}
        """)
    a(f"""
    s_lshl_b32 s{s0+4}, s{s0}, 3
    s_add_u32 s{s0+4}, s{s0+4}, {WS_ST1}
    v_mov_b32 v{vA+4}, 0
    s_mov_b32 exec_lo, 0
    s_mov_b32 exec_hi, 0x80000000
    buffer_store_dwordx4 {vr(vA+8,4)}, v{vA+4}, s[{sWS}:{sWS+3}], s{s0+4} offen {SC}
    s_mov_b64 exec, -1
    """)
def colsum_issue(a, which, srd, sW4, s0, vC, vA):
    ld = 3840 if which == 'wq' else 3456
    a(f"""
    s_and_b32 s{s0+1}, s2, 7
    s_lshr_b32 s{s0+2}, s2, 3
    s_lshr_b32 s{s0+3}, s{s0+1}, 1
    s_lshl_b32 s{s0+3}, s{s0+3}, 5
    s_add_u32 s{s0+2}, s{s0+2}, s{s0+3}
    s_and_b32 s{s0+1}, s{s0+1}, 1
    s_and_b32 s{s0+3}, s{s0+2}, 15
    s_lshr_b32 s{s0+2}, s{s0+2}, 4
    v_lshrrev_b32 v{vA}, 3, v1
    v_and_b32 v{vA+1}, 7, v1
    v_lshlrev_b32 v{vA+1}, 2, v{vA+1}
    v_mul_u32_u24 v{vA+2}, {ld}, v{vA}
    v_add_u32 v{vA+2}, v{vA+2}, v{vA+1}
    s_lshl_b32 s{s0+4}, s{s0+3}, 6
    s_lshl_b32 s{s0+7}, s{sW4}, 4
    s_add_u32 s{s0+4}, s{s0+4}, s{s0+7}
    s_mul_i32 s{s0+5}, s{s0+1}, {1024 if which == 'wq' else 896}
    s_add_u32 s{s0+5}, s{s0+5}, s{s0+4}
    s_mul_i32 s{s0+7}, s{s0+2}, {80*ld}
    s_lshl_b32 s{s0+4}, s{s0+5}, 1
    s_add_u32 s{s0+7}, s{s0+7}, s{s0+4}
    """)
    for j in range(10):
        a(f"buffer_load_dword v{vC+j}, v{vA+2}, s[{srd}:{srd+3}], s{s0+7} offen")
        if j < 9: a(f"s_add_u32 s{s0+7}, s{s0+7}, {8*ld}")
def colsum_finish(a, which, s0, vC, vA):
    base, ncol = (WS_CS1, 1920) if which == 'wq' else (WS_CS2, 1792)
    A0, A1, U = vA + 4, vA + 5, vA + 6
    for j in range(10):
        if j == 0:
            a(f"v_lshlrev_b32 v{A0}, 16, v{vC}")
            a(f"v_and_b32 v{A1}, 0xffff0000, v{vC}")
        else:
            a(f"v_lshlrev_b32 v{U}, 16, v{vC+j}")
            a(f"v_and_b32 v{U+1}, 0xffff0000, v{vC+j}")
            a(f"v_add_f32 v{A0}, v{A0}, v{U}")
            a(f"v_add_f32 v{A1}, v{A1}, v{U+1}")
    a(f"""
    s_nop 1
    v_add_f32_dpp v{A0}, v{A0}, v{A0} row_ror:8 row_mask:0xf bank_mask:0xf
    v_add_f32_dpp v{A1}, v{A1}, v{A1} row_ror:8 row_mask:0xf bank_mask:0xf
    s_nop 1
    v_mov_b32 v{U}, v{A0}
    v_mov_b32 v{U+1}, v{A1}
    s_nop 1
    v_permlane16_swap_b32 v{A0}, v{U}
    v_permlane16_swap_b32 v{A1}, v{U+1}
    s_nop 1
    v_add_f32 v{A0}, v{A0}, v{U}
    v_add_f32 v{A1}, v{A1}, v{U+1}
    s_nop 0
    v_mov_b32 v{U}, v{A0}
    v_mov_b32 v{U+1}, v{A1}
    s_nop 1
    v_permlane32_swap_b32 v{A0}, v{U}
    v_permlane32_swap_b32 v{A1}, v{U+1}
    s_nop 1
    v_add_f32 v{vA+12}, v{A0}, v{U}
    v_add_f32 v{vA+13}, v{A1}, v{U+1}
    v_lshlrev_b32 v{U}, 3, v1
    s_mul_i32 s{s0+4}, s{s0+2}, {ncol*4}
    s_lshl_b32 s{s0+7}, s{s0+5}, 2
    s_add_u32 s{s0+4}, s{s0+4}, s{s0+7}
    s_add_u32 s{s0+4}, s{s0+4}, {base}
    """)
    lab = a.newlabel("p0skip")
    if which == 'wq':
        a(f"s_cmp_ge_u32 s{s0+5}, 1920")
    else:
        a(f"s_sub_u32 s{s0+7}, 14, s{s0+1}")
        a(f"s_cmp_ge_u32 s{s0+3}, s{s0+7}")
    a(f"s_cbranch_scc1 {lab}")
    a("s_mov_b64 exec, 0xff")
    a(f"buffer_store_dwordx2 {vr(vA+12,2)}, v{U}, s[{sWS}:{sWS+3}], s{s0+4} offen {SC}")
    a("s_mov_b64 exec, -1")
    a.label(lab)
def emit_p0(a):
    sXs, sWq, s0 = 8, 12, 40
    vR, vC, vA = 4, 14, 34
    make_srd(a, sXs, pX, pX+1, 0, 2048*1280)
    make_srd(a, sWq, pWQ, pWQ+1, 0, 640*3840)
    p0_rows_issue(a, sXs, s0, vR, vA)
    a(f"s_mov_b32 s39, s{s0}")
    colsum_issue(a, 'wq', sWq, sWV, s0, vC, vA + 12)
    a("s_waitcnt vmcnt(10)")
    a(f"s_mov_b32 s38, s{s0+4}")
    p0_rows_finish(a, 39, vR, vA) if False else None
    p0_rows_finish_b(a, 39, 38, vR, vA)
    a("s_waitcnt vmcnt(1)")
    colsum_finish(a, 'wq', s0, vC, vA + 12)
def p0_rows_finish_b(a, sRow, sTmp, vR, vA):
    import io
    class Tmp: pass
    for rr in range(2):
        regs = [vR + 6*rr + i for i in range(4)] + [vR + 4 + rr]
        S, Q, U = vA + 4, vA + 5, vA + 6
        for n, r in enumerate(regs):
            a(f"v_lshlrev_b32 v{U}, 16, v{r}")
            a(f"v_and_b32 v{U+1}, 0xffff0000, v{r}")
            if n == 0:
                a(f"v_add_f32 v{S}, v{U}, v{U+1}")
                a(f"v_mul_f32 v{Q}, v{U}, v{U}")
            else:
                a(f"v_add_f32 v{S}, v{S}, v{U}")
                a(f"v_add_f32 v{S}, v{S}, v{U+1}")
                a(f"v_fmac_f32 v{Q}, v{U}, v{U}")
            a(f"v_fmac_f32 v{Q}, v{U+1}, v{U+1}")
        a("s_nop 1")
        for sh in (1, 2, 4, 8):
            a(f"v_add_f32_dpp v{S}, v{S}, v{S} row_shr:{sh} row_mask:0xf bank_mask:0xf bound_ctrl:0")
            a(f"v_add_f32_dpp v{Q}, v{Q}, v{Q} row_shr:{sh} row_mask:0xf bank_mask:0xf bound_ctrl:0")
            a("s_nop 0")
        a(f"v_add_f32_dpp v{S}, v{S}, v{S} row_bcast:15 row_mask:0xa bank_mask:0xf")
        a(f"v_add_f32_dpp v{Q}, v{Q}, v{Q} row_bcast:15 row_mask:0xa bank_mask:0xf")
        a("s_nop 0")
        a(f"v_add_f32_dpp v{S}, v{S}, v{S} row_bcast:31 row_mask:0xc bank_mask:0xf")
        a(f"v_add_f32_dpp v{Q}, v{Q}, v{Q} row_bcast:31 row_mask:0xc bank_mask:0xf")
        a(f"""
        s_nop 0
        v_mul_f32 v{S}, {f32bits(1.0/640):#x}, v{S}
        v_mul_f32 v{Q}, {f32bits(1.0/640):#x}, v{Q}
        v_fma_f32 v{Q}, -v{S}, v{S}, v{Q}
        v_max_f32 v{Q}, 0, v{Q}
        v_add_f32 v{Q}, {f32bits(1e-5):#x}, v{Q}
        v_rsq_f32 v{Q}, v{Q}
        s_nop 0
        v_mov_b32 v{vA+8+2*rr}, v{S}
        v_mov_b32 v{vA+9+2*rr}, v{Q}
        """)
    a(f"""
    s_lshl_b32 s{sTmp}, s{sRow}, 3
    s_add_u32 s{sTmp}, s{sTmp}, {WS_ST1}
    v_mov_b32 v{vA+4}, 0
    s_mov_b32 exec_lo, 0
    s_mov_b32 exec_hi, 0x80000000
    buffer_store_dwordx4 {vr(vA+8,4)}, v{vA+4}, s[{sWS}:{sWS+3}], s{sTmp} offen {SC}
    s_mov_b64 exec, -1
    """)
def dbg_flag_issue(a, vt):
    make_srd(a, 44, pDBG, pDBG+1, 0, 256)
    a(f"v_mov_b32 v{vt+1}, 0")
    a(f"buffer_load_dword v{vt}, v{vt+1}, s[44:47], 0 offen sc1")
def dbg_flag_issue_b(a, vt):
    make_srd(a, 16, pDBG, pDBG+1, 0, 256)
    a(f"v_mov_b32 v{vt+1}, 0")
    a(f"buffer_load_dword v{vt}, v{vt+1}, s[16:19], 0 offen sc1")
def dbg_flag_wait(a, vt, srd=44, landed=False):
    l0, l1, l2 = a.newlabel("dbgp"), a.newlabel("dbgok"), a.newlabel("dbgc")
    a(f"s_mov_b32 s{sPoll}, 0")
    if landed: a(f"s_branch {l2}")
    a.label(l0)
    a("s_waitcnt vmcnt(0)")
    a.label(l2)
    a(f"""
    v_readfirstlane_b32 s75, v{vt}
    s_cmp_lg_u32 s75, 0
    s_cbranch_scc1 {l1}
    s_add_u32 s{sPoll}, s{sPoll}, 1
    s_cmp_gt_u32 s{sPoll}, {POLL_MAX}
    s_cbranch_scc1 {l1}
    s_sleep 1
    buffer_load_dword v{vt}, v{vt+1}, s[{srd}:{srd+3}], 0 offen sc1
    s_branch {l0}
    """)
    a.label(l1)
def dbg_flag_wait_arrive_b(a, cbase, vt):
    dbg_flag_wait_arrive(a, cbase, vt, 16)
def dbg_flag_wait_arrive(a, cbase, vt, srd=44):
    l0, l1 = a.newlabel("dbgp"), a.newlabel("dbgok")
    a(f"s_mov_b32 s{sPoll}, 0")
    a.label(l0)
    a(f"""
    s_waitcnt vmcnt(0)
    v_readfirstlane_b32 s75, v{vt}
    s_cmp_lg_u32 s75, 0
    s_cbranch_scc1 {l1}
    s_add_u32 s{sPoll}, s{sPoll}, 1
    s_cmp_gt_u32 s{sPoll}, {POLL_MAX}
    s_cbranch_scc1 {l1}
    s_sleep 1
    buffer_load_dword v{vt}, v{vt+1}, s[{srd}:{srd+3}], 0 offen sc1
    s_branch {l0}
    """)
    a.label(l1)
    a(f"s_and_b32 s75, s2, 7")
    a(f"s_add_u32 s75, s75, {cbase}")
    arrive(a, 75, vt)

class P0Q:
    vR, vC, vD, vA = 64, 84, 94, 104
    def __init__(self, a, L):
        self.a, self.L = a, L
    def issue(self):
        a, L = self.a, self.L
        vR, vC, vD, vA = self.vR, self.vC, self.vD, self.vA
        sXs, sWq = L.sA, L.sW
        sW1 = 16
        make_srd(a, sW1, pW1, pW1+1, 0, 640*3456)
        a(f"""
        v_lshrrev_b32 v2, 4, v1
        v_and_b32 v3, 15, v1
        s_lshl_b32 s40, s{L.sNt}, 4
        s_add_u32 s40, s40, s{L.sM0}
        s_lshl_b32 s41, s{L.sLw}, 2
        s_add_u32 s40, s40, s41
        s_cmp_lt_u32 s{L.sNt}, 8
        s_cselect_b32 s40, s40, 4096
        v_add_u32 v{vA}, s40, v2
        v_mul_u32_u24 v{vA+1}, 1280, v{vA}
        v_lshlrev_b32 v{vA+2}, 4, v3
        v_add_u32 v{vA+1}, v{vA+1}, v{vA+2}
        """)
        for j in range(5):
            a(f"buffer_load_dwordx4 {vr(vR+4*j,4)}, v{vA+1}, s[{sXs}:{sXs+3}], 0 offen offset:{256*j}")
        a(f"""
        s_lshr_b32 s41, s{L.sM0}, 7
        s_mul_i32 s42, s41, {40*3840}
        s_lshl_b32 s43, s{L.sLw}, 5
        s_add_u32 s43, s43, s{L.sN0}
        s_lshl_b32 s40, s43, 1
        s_add_u32 s42, s42, s40
        v_mul_u32_u24 v{vA+2}, 3840, v2
        v_lshlrev_b32 v{vA+3}, 2, v3
        v_add_u32 v{vA+2}, v{vA+2}, v{vA+3}
        """)
        for j in range(10):
            a(f"buffer_load_dword v{vC+j}, v{vA+2}, s[{sWq}:{sWq+3}], s42 offen")
            if j < 9: a(f"s_add_u32 s42, s42, {4*3840}")
        a(f"""
        s_mul_i32 s42, s41, {40*3456}
        s_add_u32 s42, s42, s40
        s_cmp_lt_u32 s{L.sNt}, 14
        s_cselect_b32 s42, s42, 0x7f000000
        v_mul_u32_u24 v{vA+4}, 3456, v2
        v_add_u32 v{vA+4}, v{vA+4}, v{vA+3}
        """)
        for j in range(10):
            a(f"buffer_load_dword v{vD+j}, v{vA+4}, s[{sW1}:{sW1+3}], s42 offen")
            if j < 9: a(f"s_add_u32 s42, s42, {4*3456}")
    def rows(self):
        a, L = self.a, self.L
        vR, vA = self.vR, self.vA
        S, Q, U = vA + 5, vA + 6, vA + 8
        for n in range(20):
            r = vR + n
            u = U + 2*(n & 1)
            a(f"v_lshlrev_b32 v{u}, 16, v{r}")
            a(f"v_and_b32 v{u+1}, 0xffff0000, v{r}")
            if n == 0:
                a(f"v_add_f32 v{S}, v{u}, v{u+1}")
                a(f"v_mul_f32 v{Q}, v{u}, v{u}")
            else:
                a(f"v_add_f32 v{S}, v{S}, v{u}")
                a(f"v_fmac_f32 v{Q}, v{u}, v{u}")
                a(f"v_add_f32 v{S}, v{S}, v{u+1}")
            a(f"v_fmac_f32 v{Q}, v{u+1}, v{u+1}")
        a("s_nop 1")
        for sh in (1, 2, 4, 8):
            a(f"v_add_f32_dpp v{S}, v{S}, v{S} row_shr:{sh} row_mask:0xf bank_mask:0xf bound_ctrl:0")
            a(f"v_add_f32_dpp v{Q}, v{Q}, v{Q} row_shr:{sh} row_mask:0xf bank_mask:0xf bound_ctrl:0")
            a("s_nop 0")
        a(f"""
        v_mul_f32 v{S}, {f32bits(1.0/640):#x}, v{S}
        v_mul_f32 v{Q}, {f32bits(1.0/640):#x}, v{Q}
        v_fma_f32 v{Q}, -v{S}, v{S}, v{Q}
        v_max_f32 v{Q}, 0, v{Q}
        v_add_f32 v{Q}, {f32bits(1e-5):#x}, v{Q}
        v_rsq_f32 v{Q}, v{Q}
        v_mov_b32 v{U}, v{S}
        v_lshlrev_b32 v{U+2}, 3, v{vA}
        v_mov_b32 v{U+3}, 0x7fffff00
        v_cmp_gt_u32 vcc, 2048, v{vA}
        v_mov_b32 v{U+1}, v{Q}
        v_cndmask_b32 v{U+2}, v{U+3}, v{U+2}, vcc
        s_mov_b32 s40, {WS_ST1}
        s_mov_b32 exec_lo, 0x80008000
        s_mov_b32 exec_hi, 0x80008000
        buffer_store_dwordx2 {vr(U,2)}, v{U+2}, s[{sWS}:{sWS+3}], s40 offen {SC}
        s_mov_b64 exec, -1
        """)
    def cols(self, which):
        a, L = self.a, self.L
        vA = self.vA
        regs, base, ncol, lim = (self.vC, WS_CS1, 1920, 15) if which == 0 else (self.vD, WS_CS2, 1792, 14)
        U = vA + 8
        A0, A1 = vA + 5, vA + 6
        for j in range(10):
            u = U + 2*(j & 1)
            if j == 0:
                a(f"v_lshlrev_b32 v{A0}, 16, v{regs}")
                a(f"v_and_b32 v{A1}, 0xffff0000, v{regs}")
            else:
                a(f"v_lshlrev_b32 v{u}, 16, v{regs+j}")
                a(f"v_and_b32 v{u+1}, 0xffff0000, v{regs+j}")
                a(f"v_add_f32 v{A0}, v{A0}, v{u}")
                a(f"v_add_f32 v{A1}, v{A1}, v{u+1}")
        a(f"""
        s_nop 0
        v_mov_b32 v{U}, v{A0}
        v_mov_b32 v{U+1}, v{A1}
        s_nop 1
        v_permlane16_swap_b32 v{A0}, v{U}
        v_permlane16_swap_b32 v{A1}, v{U+1}
        s_nop 1
        v_add_f32 v{A0}, v{A0}, v{U}
        v_add_f32 v{A1}, v{A1}, v{U+1}
        s_nop 0
        v_mov_b32 v{U}, v{A0}
        v_mov_b32 v{U+1}, v{A1}
        s_nop 1
        v_permlane32_swap_b32 v{A0}, v{U}
        v_permlane32_swap_b32 v{A1}, v{U+1}
        s_nop 1
        v_add_f32 v{U+4}, v{A0}, v{U}
        v_add_f32 v{U+5}, v{A1}, v{U+1}
        v_lshlrev_b32 v{U}, 3, v3
        s_mul_i32 s42, s41, {ncol*4}
        s_lshl_b32 s40, s43, 2
        s_add_u32 s42, s42, s40
        s_add_u32 s42, s42, {base}
        s_cmp_lt_u32 s{L.sNt}, {lim}
        s_cselect_b32 s42, s42, 0x7f000000
        s_mov_b64 exec, 0xffff
        buffer_store_dwordx2 {vr(U+4,2)}, v{U}, s[{sWS}:{sWS+3}], s42 offen {SC}
        s_mov_b64 exec, -1
        s_nop 1
        """)
def emit_p0r(a, L):
    sXs, vR, vA = 8, 146, 132
    make_srd(a, sXs, pX, pX+1, 0, 2048*1280)
    a(f"""
    v_lshrrev_b32 v166, 4, v1
    v_and_b32 v167, 15, v1
    s_lshl_b32 s75, s{L.sNt}, 4
    s_add_u32 s75, s75, s{L.sM0}
    s_lshl_b32 s76, s{sWV}, 2
    s_add_u32 s75, s75, s76
    s_cmp_lt_u32 s{L.sNt}, 8
    s_cselect_b32 s75, s75, 4096
    v_add_u32 v{vA}, s75, v166
    v_mul_u32_u24 v{vA+1}, 1280, v{vA}
    v_lshlrev_b32 v{vA+2}, 4, v167
    v_add_u32 v{vA+1}, v{vA+1}, v{vA+2}
    """)
    for j in range(5):
        a(f"buffer_load_dwordx4 {vr(vR+4*j,4)}, v{vA+1}, s[{sXs}:{sXs+3}], 0 offen offset:{256*j}")
def emit_p0r_finish(a, L, extra=0):
    vR, vA = 146, 132
    S, Q, S2, Q2, U = vA + 4, vA + 5, vA + 6, vA + 7, vA + 8
    for j in range(5):
        a(f"s_waitcnt vmcnt({4 - j + extra})")
        for n in range(4):
            r = vR + 4*j + n
            u = U + 2*(n & 1)
            a(f"v_lshlrev_b32 v{u}, 16, v{r}")
            a(f"v_and_b32 v{u+1}, 0xffff0000, v{r}")
            if j == 0 and n == 0:
                a(f"v_mov_b32 v{S}, v{u}")
                a(f"v_mul_f32 v{Q}, v{u}, v{u}")
                a(f"v_mov_b32 v{S2}, v{u+1}")
                a(f"v_mul_f32 v{Q2}, v{u+1}, v{u+1}")
            else:
                a(f"v_add_f32 v{S}, v{S}, v{u}")
                a(f"v_fmac_f32 v{Q}, v{u}, v{u}")
                a(f"v_add_f32 v{S2}, v{S2}, v{u+1}")
                a(f"v_fmac_f32 v{Q2}, v{u+1}, v{u+1}")
    a(f"v_add_f32 v{S}, v{S}, v{S2}")
    a(f"v_add_f32 v{Q}, v{Q}, v{Q2}")
    a("s_nop 1")
    for sh in (1, 2, 4, 8):
        a(f"v_add_f32_dpp v{S}, v{S}, v{S} row_shr:{sh} row_mask:0xf bank_mask:0xf bound_ctrl:0")
        a(f"v_add_f32_dpp v{Q}, v{Q}, v{Q} row_shr:{sh} row_mask:0xf bank_mask:0xf bound_ctrl:0")
        a("s_nop 0")
    a(f"""
    v_mul_f32 v{S}, {f32bits(1.0/640):#x}, v{S}
    v_mul_f32 v{Q}, {f32bits(1.0/640):#x}, v{Q}
    v_fma_f32 v{Q}, -v{S}, v{S}, v{Q}
    v_max_f32 v{Q}, 0, v{Q}
    v_add_f32 v{Q}, {f32bits(1e-5):#x}, v{Q}
    v_rsq_f32 v{Q}, v{Q}
    v_mov_b32 v{U}, v{S}
    v_lshlrev_b32 v{U+2}, 3, v{vA}
    v_mov_b32 v{U+3}, 0x7fffff00
    v_cmp_gt_u32 vcc, 2048, v{vA}
    v_mov_b32 v{U+1}, v{Q}
    v_cndmask_b32 v{U+2}, v{U+3}, v{U+2}, vcc
    s_mov_b32 s75, {WS_ST1}
    s_mov_b32 exec_lo, 0x80008000
    s_mov_b32 exec_hi, 0x80008000
    buffer_store_dwordx2 {vr(U,2)}, v{U+2}, s[{sWS}:{sWS+3}], s75 offen {SC}
    s_mov_b64 exec, -1
    """)
def idle_rows(a, sMt, hook=None):
    sXs, vR, vA = 8, 72, 4
    NP = 2 if E('P0L') else 4
    make_srd(a, sXs, pX, pX+1, 0, 2048*1280)
    a(f"""
    v_lshrrev_b32 v2, 4, v1
    v_and_b32 v3, 15, v1
    s_lshl_b32 s40, s{sMt}, 7
    s_lshl_b32 s41, s{sWV}, {3 if E('P0L') else 4}
    s_add_u32 s40, s40, s41
    v_add_u32 v{vA}, s40, v2
    v_mul_u32_u24 v{vA+1}, 1280, v{vA}
    v_lshlrev_b32 v{vA+2}, 4, v3
    v_add_u32 v{vA+1}, v{vA+1}, v{vA+2}
    """)
    for p in range(NP):
        a(f"s_mov_b32 s41, {p * 4 * 1280}")
        for j in range(5):
            a(f"buffer_load_dwordx4 {vr(vR + 20*p + 4*j, 4)}, v{vA+1}, s[{sXs}:{sXs+3}], s41 offen offset:{256*j}")
    S, Q, S2, Q2, U = vA + 4, vA + 5, vA + 6, vA + 7, vA + 8
    if hook: hook(-1)
    for p in range(NP):
        if hook and p > 0: hook(p - 1)
        a(f"s_waitcnt vmcnt({(NP - 1 - p) * 5 + p})")
        for n in range(20):
            r = vR + 20*p + n
            u = U + 2*(n & 1)
            a(f"v_lshlrev_b32 v{u}, 16, v{r}")
            a(f"v_and_b32 v{u+1}, 0xffff0000, v{r}")
            if n == 0:
                a(f"v_mov_b32 v{S}, v{u}")
                a(f"v_mul_f32 v{Q}, v{u}, v{u}")
                a(f"v_mov_b32 v{S2}, v{u+1}")
                a(f"v_mul_f32 v{Q2}, v{u+1}, v{u+1}")
            else:
                a(f"v_add_f32 v{S}, v{S}, v{u}")
                a(f"v_fmac_f32 v{Q}, v{u}, v{u}")
                a(f"v_add_f32 v{S2}, v{S2}, v{u+1}")
                a(f"v_fmac_f32 v{Q2}, v{u+1}, v{u+1}")
        a(f"v_add_f32 v{S}, v{S}, v{S2}")
        a(f"v_add_f32 v{Q}, v{Q}, v{Q2}")
        a("s_nop 1")
        for sh in (1, 2, 4, 8):
            a(f"v_add_f32_dpp v{S}, v{S}, v{S} row_shr:{sh} row_mask:0xf bank_mask:0xf bound_ctrl:0")
            a(f"v_add_f32_dpp v{Q}, v{Q}, v{Q} row_shr:{sh} row_mask:0xf bank_mask:0xf bound_ctrl:0")
            a("s_nop 0")
        a(f"""
        v_mul_f32 v{S}, {f32bits(1.0/640):#x}, v{S}
        v_mul_f32 v{Q}, {f32bits(1.0/640):#x}, v{Q}
        v_fma_f32 v{Q}, -v{S}, v{S}, v{Q}
        v_max_f32 v{Q}, 0, v{Q}
        v_add_f32 v{Q}, {f32bits(1e-5):#x}, v{Q}
        v_rsq_f32 v{Q}, v{Q}
        v_mov_b32 v{U+4}, v{S}
        v_add_u32 v{U+2}, {4*p}, v{vA}
        v_lshlrev_b32 v{U+2}, 3, v{U+2}
        v_mov_b32 v{U+5}, v{Q}
        s_mov_b32 s41, {WS_ST1}
        s_mov_b32 exec_lo, 0x80008000
        s_mov_b32 exec_hi, 0x80008000
        buffer_store_dwordx2 {vr(U+4,2)}, v{U+2}, s[{sWS}:{sWS+3}], s41 offen {SC}
        s_mov_b64 exec, -1
        s_nop 1
        """)

class P0L:
    vR, vA = 116, 136
    def __init__(self, a, L): self.a, self.L = a, L
    def issue(self):
        a, L = self.a, self.L
        vR, vA = self.vR, self.vA
        a(f"""
        v_lshrrev_b32 v{vA+2}, 4, v1
        v_and_b32 v{vA+3}, 15, v1
        s_lshl_b32 s75, s{L.sNt}, 4
        s_add_u32 s75, s75, s{L.sM0}
        s_add_u32 s75, s75, 64
        s_lshl_b32 s76, s{L.sLw}, 2
        s_add_u32 s75, s75, s76
        s_cmp_lt_u32 s{L.sNt}, 4
        s_cselect_b32 s75, s75, 4096
        v_add_u32 v{vA}, s75, v{vA+2}
        v_mul_u32_u24 v{vA+1}, 1280, v{vA}
        v_lshlrev_b32 v{vA+3}, 4, v{vA+3}
        v_add_u32 v{vA+1}, v{vA+1}, v{vA+3}
        """)
        for j in range(5):
            a(f"buffer_load_dwordx4 {vr(vR+4*j,4)}, v{vA+1}, s[{L.sA}:{L.sA+3}], 0 offen offset:{256*j}")
    def finish(self):
        a = self.a
        vR, vA = self.vR, self.vA
        S, Q, S2, Q2, U = vA + 4, vA + 5, vA + 6, vA + 7, vA + 8
        for n in range(20):
            r = vR + n
            u = U + 2*(n & 1)
            a(f"v_lshlrev_b32 v{u}, 16, v{r}")
            a(f"v_and_b32 v{u+1}, 0xffff0000, v{r}")
            if n == 0:
                a(f"v_mov_b32 v{S}, v{u}")
                a(f"v_mul_f32 v{Q}, v{u}, v{u}")
                a(f"v_mov_b32 v{S2}, v{u+1}")
                a(f"v_mul_f32 v{Q2}, v{u+1}, v{u+1}")
            else:
                a(f"v_add_f32 v{S}, v{S}, v{u}")
                a(f"v_fmac_f32 v{Q}, v{u}, v{u}")
                a(f"v_add_f32 v{S2}, v{S2}, v{u+1}")
                a(f"v_fmac_f32 v{Q2}, v{u+1}, v{u+1}")
        a(f"v_add_f32 v{S}, v{S}, v{S2}")
        a(f"v_add_f32 v{Q}, v{Q}, v{Q2}")
        a("s_nop 1")
        for sh in (1, 2, 4, 8):
            a(f"v_add_f32_dpp v{S}, v{S}, v{S} row_shr:{sh} row_mask:0xf bank_mask:0xf bound_ctrl:0")
            a(f"v_add_f32_dpp v{Q}, v{Q}, v{Q} row_shr:{sh} row_mask:0xf bank_mask:0xf bound_ctrl:0")
            a("s_nop 0")
        a(f"""
        v_mul_f32 v{S}, {f32bits(1.0/640):#x}, v{S}
        v_mul_f32 v{Q}, {f32bits(1.0/640):#x}, v{Q}
        v_fma_f32 v{Q}, -v{S}, v{S}, v{Q}
        v_max_f32 v{Q}, 0, v{Q}
        v_add_f32 v{Q}, {f32bits(1e-5):#x}, v{Q}
        v_rsq_f32 v{Q}, v{Q}
        v_mov_b32 v{U}, v{S}
        v_lshlrev_b32 v{U+2}, 3, v{vA}
        v_mov_b32 v{U+3}, 0x7fffff00
        v_cmp_gt_u32 vcc, 2048, v{vA}
        v_mov_b32 v{U+1}, v{Q}
        v_cndmask_b32 v{U+2}, v{U+3}, v{U+2}, vcc
        s_mov_b32 s75, {WS_ST1}
        s_mov_b32 exec_lo, 0x80008000
        s_mov_b32 exec_hi, 0x80008000
        buffer_store_dwordx2 {vr(U,2)}, v{U+2}, s[{sWS}:{sWS+3}], s75 offen {SC}
        s_mov_b64 exec, -1
        """)

def p0r_arrive(a, L, vt):
    ok, skip = a.newlabel("fok"), a.newlabel("fsk")
    dbg_flag_wait(a, vt, landed=True)
    a(f"s_cmp_lt_u32 s{L.sNt}, 4")
    a(f"s_cbranch_scc0 {skip}")
    a(f"s_lshr_b32 s76, s{L.sM0}, 7")
    a(f"s_add_u32 s76, s76, {C_ST}")
    arrive(a, 76, vt - 2)
    a.label(skip)

def qkv_prefetch(a, L):
    make_srd(a, 12, pWQ, pWQ+1, 0, 640*3840)
    make_srd(a, 8, pX, pX+1, 0, 2048*1280)
    fl = E('QPF_FL', 'sc1')
    a(f"""
    s_lshr_b32 s40, s2, 3
    s_and_b32 s41, s2, 1
    v_and_b32 v2, 15, v1
    v_lshrrev_b32 v3, 4, v1
    v_lshlrev_b32 v2, 7, v2
    v_mul_u32_u24 v3, 3840, v3
    v_add_u32 v4, v2, v3
    s_mul_i32 s42, s40, {20*3840}
    s_lshl_b32 s43, s41, 11
    s_add_u32 s42, s42, s43
    s_mul_i32 s43, s{sWV}, {4*3840}
    s_add_u32 s42, s42, s43
    buffer_load_dword v162, v4, s[12:15], s42 offen {fl}
    """)
    l = a.newlabel("qpf")
    a(f"""
    s_cmp_eq_u32 s{sWV}, 0
    s_cbranch_scc0 {l}
    s_add_u32 s42, s42, {16*3840}
    buffer_load_dword v162, v4, s[12:15], s42 offen {fl}
    """)
    a.label(l)
    l = a.newlabel("qpf")
    a(f"""
    s_cmp_eq_u32 s{sWV}, 0
    s_cbranch_scc1 {l}
    s_and_b32 s41, s2, 7
    s_lshr_b32 s41, s41, 1
    s_lshl_b32 s41, s41, 5
    s_add_u32 s41, s41, s40
    s_mul_i32 s42, s41, 20480
    s_sub_u32 s43, s{sWV}, 1
    s_lshl_b32 s43, s43, 13
    s_add_u32 s42, s42, s43
    v_lshlrev_b32 v4, 7, v1
    buffer_load_dword v162, v4, s[8:11], s42 offen {fl}
    """)
    a.label(l)

def p0q_arrive(a, L, vt):
    ok = a.newlabel("fok")
    a(f"v_readfirstlane_b32 s75, v{vt}")
    a("s_cmp_lg_u32 s75, 0")
    a(f"s_cbranch_scc1 {ok}")
    dbg_flag_wait(a, vt)
    a.label(ok)
    a(f"""
    s_lshr_b32 s75, s{L.sM0}, 7
    s_add_u32 s75, s75, {C_ST}
    s_add_u32 s76, s{L.sNt}, {C_CS1}
    s_add_u32 s77, s{L.sNt}, {C_CS2}
    v_mov_b32 v{vt-1}, s75
    v_writelane_b32 v{vt-1}, s76, 1
    v_writelane_b32 v{vt-1}, s77, 2
    s_nop 0
    v_lshlrev_b32 v{vt-1}, 7, v{vt-1}
    v_add_u32 v{vt-1}, {WS_CNT}, v{vt-1}
    v_mov_b32 v{vt-2}, 1
    s_cmp_lt_u32 s{L.sNt}, 8
    s_cselect_b32 s75, 1, 0
    s_or_b32 s75, s75, 2
    s_cmp_lt_u32 s{L.sNt}, 14
    s_cselect_b32 s76, 4, 0
    s_or_b32 s75, s75, s76
    s_mov_b32 exec_lo, s75
    s_mov_b32 exec_hi, 0
    buffer_atomic_add v{vt-2}, v{vt-1}, s[{sWS}:{sWS+3}], 0 offen sc1
    s_mov_b64 exec, -1
    """)

def w2p_prefetch(a, j):
    a(f"""
    s_mul_i32 s75, s{sRk}, {SZ_W2P // 32}
    s_add_u32 s75, s75, {WS_W2P + j * 8192}
    v_lshlrev_b32 v61, 7, v1
    buffer_load_dword v60, v61, s[{sWS}:{sWS+3}], s75 offen sc1
    """)

def w2_first_prefetch(a, c):
    NST = 14
    a(f"""
    s_and_b32 s75, s{sRk}, 3
    s_mul_i32 s75, s75, 3
    s_lshr_b32 s76, s{sRk}, 2
    s_lshl_b32 s77, s76, 1
    s_add_u32 s75, s75, s77
    s_cmp_ge_u32 s75, {NST}
    s_cselect_b32 s77, {NST}, 0
    s_sub_u32 s75, s75, s77
    s_cmp_ge_u32 s75, {NST}
    s_cselect_b32 s77, {NST}, 0
    s_sub_u32 s75, s75, s77
    s_mul_i32 s76, s76, {NST * 20480}
    s_add_u32 s76, s76, {WS_W2P}
    s_mul_i32 s77, s{c.sLw}, 5120
    s_add_u32 s76, s76, s77
    s_mul_i32 s77, s75, 20480
    s_add_u32 s77, s77, s76
    v_lshlrev_b32 v61, 7, v1
    s_mov_b32 exec_lo, -1
    s_mov_b32 exec_hi, 0xff
    buffer_load_dword v60, v61, s[{sWS}:{sWS+3}], s77 offen sc1
    s_add_u32 s75, s75, 1
    s_cmp_eq_u32 s75, {NST}
    s_cselect_b32 s75, 0, s75
    s_mul_i32 s77, s75, 20480
    s_add_u32 s77, s77, s76
    buffer_load_dword v60, v61, s[{sWS}:{sWS+3}], s77 offen sc1
    s_mov_b64 exec, -1
    """)

class Repack:
    aB, vD, vT = 28, 110, 88
    sWo, sW2, sW1 = 12, 16, 40
    def __init__(self, a): self.a = a
    def issue(self, defer=False):
        a = self.a
        aB, vD, T = self.aB, self.vD, self.vT
        a(f"""
        s_mul_i32 s75, s2, 768
        s_sub_u32 s76, s{sWV}, 4
        s_lshl_b32 s76, s76, 6
        s_add_u32 s75, s75, s76
        v_add_u32 v{T}, s75, v1
        """)
        for r in range(3):
            g, it, sg, rho, c, row, nt, st_, x = T+1, T+2, T+3, T+4, T+5, T+6, T+7, T+8, T+9
            a(f"""
            v_add_u32 v{g}, {256*r}, v{T}
            s_mov_b32 s75, {(1 << 32) // 1280 + 1:#x}
            v_mul_hi_u32 v{it}, v{g}, s75
            v_mul_u32_u24 v{sg}, 1280, v{it}
            v_sub_u32 v{sg}, v{g}, v{sg}
            v_mul_u32_u24 v{rho}, 0xcccd, v{sg}
            v_lshrrev_b32 v{rho}, 19, v{rho}
            v_mul_u32_u24 v{c}, 10, v{rho}
            v_sub_u32 v{c}, v{sg}, v{c}
            v_and_b32 v{row}, 0x73, v{rho}
            v_and_b32 v{x}, 4, v{rho}
            v_lshlrev_b32 v{x}, 1, v{x}
            v_or_b32 v{row}, v{row}, v{x}
            v_and_b32 v{x}, 8, v{rho}
            v_lshrrev_b32 v{x}, 1, v{x}
            v_or_b32 v{row}, v{row}, v{x}
            v_lshlrev_b32 v{vD+r}, 4, v{g}
            v_cmp_gt_u32 vcc, 40, v{it}
            v_subrev_u32 v{x}, 40, v{it}
            s_nop 0
            v_cndmask_b32 v{x}, v{x}, v{it}, vcc
            v_mul_u32_u24 v{nt}, 0x4925, v{x}
            v_mul_u32_u24 v{st_}, 0xcccd, v{x}
            v_cndmask_b32 v{nt}, v{nt}, v{st_}, vcc
            v_lshrrev_b32 v{nt}, 18, v{nt}
            v_mov_b32 v{st_}, 14
            v_cndmask_b32 v{st_}, v{st_}, 5, vcc
            v_mul_u32_u24 v{st_}, v{st_}, v{nt}
            v_sub_u32 v{st_}, v{x}, v{st_}
            v_lshlrev_b32 v{st_}, 7, v{st_}
            v_add_u32 v{row}, v{row}, v{st_}
            v_mul_u32_u24 v{row}, 1280, v{row}
            v_mul_u32_u24 v{nt}, 160, v{nt}
            v_lshlrev_b32 v{c}, 4, v{c}
            v_add3_u32 v{row}, v{row}, v{nt}, v{c}
            v_mov_b32 v{x}, 0x7fffff00
            v_cndmask_b32 v{nt}, v{x}, v{row}, vcc
            v_cndmask_b32 v{row}, v{row}, v{x}, vcc
            v_cmp_gt_u32 vcc, 152, v{it}
            s_nop 1
            v_cndmask_b32 v{vD+r}, v{x}, v{vD+r}, vcc
            """)
            a(f"v_mov_b32 v{100+2*r}, v{nt}")
            a(f"v_mov_b32 v{101+2*r}, v{row}")
            a(f"v_mov_b32 v{106+r}, v{it}")
        if defer: return
        self.loads()
    def loads(self, base=100, tmp=None):
        a = self.a
        aB, T = self.aB, (self.vT if tmp is None else tmp)
        if base != 100:
            for k in range(9): a(f"v_accvgpr_read_b32 v{base+k}, a{40+k}")
        self.sWo, self.sW2, self.sW1 = 8, 12, 8
        make_srd(a, self.sWo, pWO, pWO+1, 0, 640*1280)
        make_srd(a, self.sW2, pW2, pW2+1, 0, 1728*1280)
        for r in range(3):
            la, lb = a.newlabel("rpa"), a.newlabel("rpb")
            a(f"""
            v_cmp_gt_u32 vcc, 40, v{base+6+r}
            s_nop 4
            s_mov_b64 s[76:77], vcc
            s_mov_b64 exec, vcc
            s_cbranch_execz {la}
            buffer_load_dwordx4 {ar(aB+4*r,4)}, v{base+2*r}, s[{self.sWo}:{self.sWo+3}], 0 offen
            {la}:
            s_not_b64 exec, s[76:77]
            s_cbranch_execz {lb}
            buffer_load_dwordx4 {ar(aB+4*r,4)}, v{base+1+2*r}, s[{self.sW2}:{self.sW2+3}], 0 offen
            {lb}:
            s_mov_b64 exec, -1
            """)
        make_srd(a, self.sW1, pW1, pW1+1, 0, 640*3456)
        a(f"""
        s_mul_i32 s75, s2, 8640
        s_sub_u32 s76, s{sWV}, 4
        s_mul_i32 s76, s76, 2176
        s_add_u32 s75, s75, s76
        v_lshlrev_b32 v{T}, 7, v1
        s_mov_b64 exec, 0x1ffff
        buffer_load_dword v113, v{T}, s[{self.sW1}:{self.sW1+3}], s75 offen sc1
        s_mov_b64 exec, -1
        """)
    def save(self):
        a = self.a
        for r in range(3): a(f"v_accvgpr_write_b32 a{40+r}, v{self.vD+r}")
        for k in range(9): a(f"v_accvgpr_write_b32 a{43+k}, v{100+k}")
    def store(self, wait_after=True, pre="s_waitcnt vmcnt(0)"):
        a = self.a
        a(pre)
        a(f"s_mov_b32 s75, {WS_WOP}")
        for r in range(3):
            a(f"buffer_store_dwordx4 {ar(self.aB+4*r,4)}, v{self.vD+r}, s[{sWS}:{sWS+3}], s75 offen {SC}")
        if wait_after: a("s_waitcnt vmcnt(0)")
        else: a("s_nop 1")

class CoreL:
    sA, sW, sO = 8, 12, 16
    sM0, sN0, sT0, sT1, sT2, sT3 = 21, 22, 23, 24, 25, 26
    sLw, sSlot, sAoff, sWoff, sLds = 20, 28, 29, 30, 31
    sWm, sWn, sNt, sSeq, sSeqW = 32, 33, 34, 35, 36
    vAe, vAo, vWo = 4, 5, 6
    NST = 10
    def __init__(self, a, mode, tag):
        self.a, self.mode, self.tag = a, mode, tag
        self.qkv = mode == 'qkv'
        self.LDW = 3840 if self.qkv else 3456
    def map_tiles(self, idle_label):
        a, c = self.a, self
        if not c.qkv:
            a(f"""
            s_and_b32 s{c.sT3}, s{sRk}, 1
            s_lshl_b32 s{c.sM0}, s{sX}, 1
            s_add_u32 s{c.sM0}, s{c.sM0}, s{c.sT3}
            s_lshl_b32 s{c.sM0}, s{c.sM0}, 7
            s_lshr_b32 s{c.sNt}, s{sRk}, 1
            s_cmp_ge_u32 s{c.sNt}, 14
            s_cbranch_scc1 {idle_label}
            s_lshl_b32 s{c.sN0}, s{c.sNt}, 7
            s_mul_i32 s{c.sSeq}, s{c.sNt}, 3
            s_mul_i32 s{c.sT0}, s{c.sT3}, 5
            s_add_u32 s{c.sSeq}, s{c.sSeq}, s{c.sT0}
            s_mul_i32 s{c.sT0}, s{c.sSeq}, 0xcccd
            s_lshr_b32 s{c.sT0}, s{c.sT0}, 19
            s_mul_i32 s{c.sT0}, s{c.sT0}, 10
            s_sub_u32 s{c.sSeq}, s{c.sSeq}, s{c.sT0}
            """)
            if E('NOROTL'): a(f"s_mov_b32 s{c.sSeq}, 0")
            return
        NT_PER = 8 if c.qkv else 7
        NT_TOT = 15 if c.qkv else 14
        a(f"""
        s_and_b32 s{c.sT0}, s2, 7
        s_lshr_b32 s{c.sT1}, s2, 3
        s_lshr_b32 s{c.sT2}, s{c.sT0}, 1
        s_lshl_b32 s{c.sT2}, s{c.sT2}, 2
        s_and_b32 s{c.sT3}, s{c.sT1}, 3
        s_add_u32 s{c.sM0}, s{c.sT2}, s{c.sT3}
        s_lshl_b32 s{c.sM0}, s{c.sM0}, 7
        s_and_b32 s{c.sT0}, s{c.sT0}, 1
        s_mul_i32 s{c.sT0}, s{c.sT0}, {NT_PER}
        s_lshr_b32 s{c.sT1}, s{c.sT1}, 2
        s_add_u32 s{c.sNt}, s{c.sT0}, s{c.sT1}
        s_cmp_ge_u32 s{c.sT1}, {NT_PER}
        s_cbranch_scc1 {idle_label}
        s_cmp_ge_u32 s{c.sNt}, {NT_TOT}
        s_cbranch_scc1 {idle_label}
        s_lshl_b32 s{c.sN0}, s{c.sNt}, 7
        s_mul_i32 s{c.sSeq}, s{c.sT3}, 3
        s_add_u32 s{c.sSeq}, s{c.sSeq}, s{c.sT1}
        s_cmp_ge_u32 s{c.sSeq}, 10
        s_cselect_b32 s{c.sT0}, 10, 0
        s_sub_u32 s{c.sSeq}, s{c.sSeq}, s{c.sT0}
        """)
        if E('NOROTL'): a(f"s_mov_b32 s{c.sSeq}, 0")
    def loader_setup(self):
        a, c = self.a, self
        a(f"s_sub_u32 s{c.sLw}, s{sWV}, 4")
        if c.qkv:
            make_srd(a, c.sA, pX, pX+1, 0, 2048*1280)
            a(f"""
            v_lshrrev_b32 v2, 3, v1
            v_mul_u32_u24 v2, 1280, v2
            v_lshrrev_b32 v3, 4, v1
            v_and_b32 v7, 7, v1
            v_xor_b32 v3, v3, v7
            v_lshlrev_b32 v3, 4, v3
            v_add_u32 v{c.vAe}, v2, v3
            v_xor_b32 v{c.vAo}, 64, v{c.vAe}
            s_lshl_b32 s{c.sT0}, s{c.sLw}, 5
            s_add_u32 s{c.sT0}, s{c.sT0}, s{c.sM0}
            s_mul_i32 s{c.sAoff}, s{c.sT0}, 1280
            """)
            c.A_SSTEP = 128
        else:
            make_srd(a, c.sA, pWS, pWS+1, WS_H, SZ_ACT)
            a(f"""
            v_lshlrev_b32 v{c.vAe}, 4, v1
            v_add_u32 v{c.vAo}, 1024, v{c.vAe}
            s_lshl_b32 s{c.sT0}, s{c.sLw}, 16
            s_lshl_b32 s{c.sT1}, s{c.sM0}, 4
            s_add_u32 s{c.sAoff}, s{c.sT0}, s{c.sT1}
            """)
            c.A_SSTEP = 8 * 32768
        pw = pWQ if c.qkv else pW1
        make_srd(a, c.sW, pw, pw+1, 0, 640 * c.LDW)
        a(f"""
        v_lshrrev_b32 v2, 4, v1
        v_mul_u32_u24 v3, {c.LDW}, v2
        v_lshlrev_b32 v2, 2, v2
        v_and_b32 v7, 15, v1
        v_xor_b32 v2, v2, v7
        v_lshlrev_b32 v2, 4, v2
        v_add_u32 v{c.vWo}, v2, v3
        s_lshl_b32 s{c.sT0}, s{c.sLw}, 4
        s_mul_i32 s{c.sT0}, s{c.sT0}, {c.LDW}
        s_lshl_b32 s{c.sT1}, s{c.sN0}, 1
        s_add_u32 s{c.sWoff}, s{c.sT0}, s{c.sT1}
        s_lshl_b32 s{c.sLds}, s{c.sLw}, 12
        s_mul_i32 s{c.sT0}, s{c.sSeq}, {c.A_SSTEP}
        s_add_u32 s{c.sAoff}, s{c.sAoff}, s{c.sT0}
        s_mul_i32 s{c.sT0}, s{c.sSeq}, {64 * c.LDW}
        s_add_u32 s{c.sWoff}, s{c.sWoff}, s{c.sT0}
        s_mov_b32 s{c.sSeqW}, s{c.sSeq}
        """)
    def issue_A(self, seq):
        a, c = self.a, self
        slot = (seq % 4) * 32768
        for j in range(4):
            a(f"s_add_u32 m0, s{c.sLds}, {slot}" if j == 0 else "s_add_u32 m0, m0, 1024")
            if c.qkv:
                a(f"s_mov_b32 s{c.sT0}, s{c.sAoff}" if j == 0 else f"s_add_u32 s{c.sT0}, s{c.sT0}, {8*1280}")
            else:
                if j == 0: a(f"s_mov_b32 s{c.sT0}, s{c.sAoff}")
                elif j == 2: a(f"s_add_u32 s{c.sT0}, s{c.sT0}, 32768")
                else: a("s_nop 0")
            a(f"buffer_load_dwordx4 v{c.vAe if j % 2 == 0 else c.vAo}, s[{c.sA}:{c.sA+3}], s{c.sT0} offen {E('QNT_A','') if c.qkv else ''} lds")
        a(f"""
        s_add_u32 s{c.sSeq}, s{c.sSeq}, 1
        s_cmp_eq_u32 s{c.sSeq}, {c.NST}
        s_cselect_b32 s{c.sT0}, {c.NST * c.A_SSTEP}, 0
        s_cselect_b32 s{c.sSeq}, 0, s{c.sSeq}
        s_add_u32 s{c.sAoff}, s{c.sAoff}, {c.A_SSTEP}
        s_sub_u32 s{c.sAoff}, s{c.sAoff}, s{c.sT0}
        """)
    def issue_W(self, seq):
        a, c = self.a, self
        slot = (seq % 4) * 32768 + 16384
        for j in range(4):
            a(f"s_add_u32 m0, s{c.sLds}, {slot}" if j == 0 else "s_add_u32 m0, m0, 1024")
            a(f"s_mov_b32 s{c.sT0}, s{c.sWoff}" if j == 0 else f"s_add_u32 s{c.sT0}, s{c.sT0}, {4 * c.LDW}")
            a(f"buffer_load_dwordx4 v{c.vWo}, s[{c.sW}:{c.sW+3}], s{c.sT0} offen {E('QNT_W','') if c.qkv else ''} lds")
        a(f"""
        s_add_u32 s{c.sSeqW}, s{c.sSeqW}, 1
        s_cmp_eq_u32 s{c.sSeqW}, {c.NST}
        s_cselect_b32 s{c.sT0}, {c.NST * 64 * c.LDW}, 0
        s_cselect_b32 s{c.sSeqW}, 0, s{c.sSeqW}
        s_add_u32 s{c.sWoff}, s{c.sWoff}, {64 * c.LDW}
        s_sub_u32 s{c.sWoff}, s{c.sWoff}, s{c.sT0}
        """)
    vLs = 16
    vSx, vSq, vCs, vU = 48, 56, 64, 72
    vLs = 16
    def lstats_init(self): pass
    def lst_poll_issue(self):
        a, c = self.a, self
        v = c.vLs
        a(f"""
        s_add_u32 s{c.sT0}, s{c.sNt}, {C_CS1 if c.qkv else C_CS2}
        s_lshr_b32 s{c.sT1}, s{c.sM0}, 7
        s_add_u32 s{c.sT1}, s{c.sT1}, {C_ST}
        v_mov_b32 v{v}, s{c.sT0}
        v_writelane_b32 v{v}, s{c.sT1}, 1
        v_mov_b32 v{v+1}, 16
        v_writelane_b32 v{v+1}, {8 if c.qkv else 0}, 1
        v_lshlrev_b32 v{v}, 7, v{v}
        v_add_u32 v{v}, {WS_CNT}, v{v}
        s_mov_b64 exec, 3
        buffer_load_dword v{v+2}, v{v}, s[{sWS}:{sWS+3}], 0 offen sc1
        s_mov_b64 exec, -1
        """)
    def lst_check_issue(self, q):
        a, c = self.a, self
        v = c.vLs
        ok = a.newlabel("lok")
        a(f"""
        s_waitcnt vmcnt({q.need('poll')})
        s_mov_b64 exec, 3
        v_cmp_gt_u32 vcc, v{v+1}, v{v+2}
        s_nop 4
        s_cmp_eq_u64 vcc, 0
        s_cbranch_scc1 {ok}
        """)
        poll(a, v, v + 1, 2, v + 2)
        a.label(ok)
        a("s_mov_b64 exec, -1")
        ncol = 1920 if c.qkv else 1792
        d = v + 8
        a(f"""
        v_and_b32 v{v+4}, 31, v1
        v_lshlrev_b32 v{v+5}, 2, v{v+4}
        v_lshlrev_b32 v{v+4}, 3, v{v+4}
        s_lshl_b32 s{c.sT0}, s{c.sLw}, 5
        s_add_u32 s{c.sT1}, s{c.sT0}, s{c.sN0}
        s_lshl_b32 s{c.sT1}, s{c.sT1}, 2
        s_add_u32 s{c.sT1}, s{c.sT1}, {WS_CS1 if c.qkv else WS_CS2}
        s_mov_b32 exec_hi, 0
        """)
        for j in range(16):
            a(f"buffer_load_dword v{d+j}, v{v+5}, s[{sWS}:{sWS+3}], s{c.sT1} offen")
            if j < 15: a(f"s_add_u32 s{c.sT1}, s{c.sT1}, {ncol*4}")
        a(f"""
        s_mov_b32 exec_lo, 0
        s_mov_b32 exec_hi, -1
        s_add_u32 s{c.sT1}, s{c.sT0}, s{c.sM0}
        s_lshl_b32 s{c.sT1}, s{c.sT1}, 3
        s_add_u32 s{c.sT1}, s{c.sT1}, {WS_ST1 if c.qkv else WS_ST2}
        """)
        npart = 1 if c.qkv else 8
        for j in range(npart):
            a(f"buffer_load_dwordx2 {vr(d+16+2*j,2)}, v{v+4}, s[{sWS}:{sWS+3}], s{c.sT1} offen")
            if j < npart - 1: a(f"s_add_u32 s{c.sT1}, s{c.sT1}, {2048*8}")
        a("s_mov_b64 exec, -1")
        q.push("stats", 16 + npart)
    def lst_finish(self, q):
        a, c = self.a, self
        v = c.vLs
        d = v + 8
        a(f"s_waitcnt vmcnt({q.need('stats')})")
        for j in range(1, 16):
            a(f"v_add_f32 v{d}, v{d}, v{d+j}")
        S, Q = d + 16, d + 17
        if not c.qkv:
            for j in range(1, 8):
                a(f"v_add_f32 v{S}, v{S}, v{S+2*j}")
                a(f"v_add_f32 v{Q}, v{Q}, v{Q+2*j}")
            a(f"""
            v_mul_f32 v{S}, {f32bits(1.0/640):#x}, v{S}
            v_mul_f32 v{Q}, {f32bits(1.0/640):#x}, v{Q}
            v_fma_f32 v{Q}, -v{S}, v{S}, v{Q}
            v_max_f32 v{Q}, 0, v{Q}
            v_add_f32 v{Q}, {f32bits(1e-5):#x}, v{Q}
            v_rsq_f32 v{Q}, v{Q}
            """)
        a(f"""
        s_lshl_b32 s{c.sT0}, s{c.sLw}, 7
        s_add_u32 s{c.sT0}, s{c.sT0}, {STAT}
        v_add_u32 v{v+5}, s{c.sT0}, v{v+5}
        s_mov_b32 exec_hi, 0
        ds_write_b32 v{v+5}, v{d} offset:1024
        s_mov_b32 exec_lo, 0
        s_mov_b32 exec_hi, -1
        ds_write_b32 v{v+5}, v{S}
        ds_write_b32 v{v+5}, v{Q} offset:512
        s_mov_b64 exec, -1
        s_waitcnt lgkmcnt(0)
        """)
    def tq_poll_issue(self):
        a, c = self.a, self
        v = c.vLs
        a(f"""
        s_lshr_b32 s{c.sT1}, s{c.sM0}, 7
        s_add_u32 s{c.sT1}, s{c.sT1}, {C_ST}
        s_lshl_b32 s{c.sT1}, s{c.sT1}, 7
        s_add_u32 s{c.sT1}, s{c.sT1}, {WS_CNT}
        v_mov_b32 v{v}, s{c.sT1}
        v_mov_b32 v{v+1}, {5 if E('P0L') else 1}
        s_mov_b64 exec, 1
        buffer_load_dword v{v+2}, v{v}, s[{sWS}:{sWS+3}], 0 offen sc1
        s_mov_b64 exec, -1
        """)
    def tq_check_issue(self, q):
        a, c = self.a, self
        v = c.vLs
        ok = a.newlabel("lok")
        a(f"""
        s_waitcnt vmcnt({q.need('poll')})
        v_readfirstlane_b32 s{c.sT0}, v{v+2}
        s_cmp_ge_u32 s{c.sT0}, {5 if E('P0L') else 1}
        s_cbranch_scc1 {ok}
        """)
        poll(a, v, v + 1, 1, v + 2)
        a.label(ok)
        a(f"""
        v_and_b32 v{v+4}, 31, v1
        v_lshlrev_b32 v{v+5}, 2, v{v+4}
        v_lshlrev_b32 v{v+4}, 3, v{v+4}
        s_lshl_b32 s{c.sT0}, s{c.sLw}, 5
        s_add_u32 s{c.sT1}, s{c.sT0}, s{c.sM0}
        s_lshl_b32 s{c.sT1}, s{c.sT1}, 3
        s_add_u32 s{c.sT1}, s{c.sT1}, {WS_ST1}
        buffer_load_dwordx2 {vr(v+8,2)}, v{v+4}, s[{sWS}:{sWS+3}], s{c.sT1} offen
        """)
        q.push("stats", 1)
    def tq_finish(self, q):
        a, c = self.a, self
        v = c.vLs
        a(f"""
        s_waitcnt vmcnt({q.need('stats')})
        s_lshl_b32 s{c.sT0}, s{c.sLw}, 7
        s_add_u32 s{c.sT0}, s{c.sT0}, {STAT}
        v_add_u32 v{v+5}, s{c.sT0}, v{v+5}
        ds_write_b32 v{v+5}, v{v+8}
        ds_write_b32 v{v+5}, v{v+9} offset:512
        """)
    def tok_issue(self, q):
        a, c = self.a, self
        v = c.vLs
        d = v + 8
        a(f"""
        v_and_b32 v{v+4}, 31, v1
        v_lshlrev_b32 v{v+5}, 2, v{v+4}
        v_lshlrev_b32 v{v+4}, 3, v{v+4}
        s_lshl_b32 s{c.sT0}, s{c.sLw}, 5
        s_add_u32 s{c.sT1}, s{c.sT0}, s{c.sM0}
        s_lshl_b32 s{c.sT1}, s{c.sT1}, 3
        s_add_u32 s{c.sT1}, s{c.sT1}, {WS_ST2}
        s_mov_b32 exec_hi, 0
        """)
        for j in range(16):
            a(f"buffer_load_dwordx2 {vr(d+2*j,2)}, v{v+4}, s[{sWS}:{sWS+3}], s{c.sT1} offen")
            if j < 15: a(f"s_add_u32 s{c.sT1}, s{c.sT1}, {2048*8}")
        a("s_mov_b32 exec_hi, -1")
        q.push("stats", 16)
    def tok_finish(self, q):
        a, c = self.a, self
        v = c.vLs
        S, Q = v + 8, v + 9
        a(f"s_waitcnt vmcnt({q.need('stats')})")
        for j in range(1, 16):
            a(f"v_add_f32 v{S}, v{S}, v{S+2*j}")
            a(f"v_add_f32 v{Q}, v{Q}, v{Q+2*j}")
        a(f"""
        v_mul_f32 v{S}, {f32bits(1.0/640):#x}, v{S}
        v_mul_f32 v{Q}, {f32bits(1.0/640):#x}, v{Q}
        v_fma_f32 v{Q}, -v{S}, v{S}, v{Q}
        v_max_f32 v{Q}, 0, v{Q}
        v_add_f32 v{Q}, {f32bits(1e-5):#x}, v{Q}
        v_rsq_f32 v{Q}, v{Q}
        s_lshl_b32 s{c.sT0}, s{c.sLw}, 7
        s_add_u32 s{c.sT0}, s{c.sT0}, {STAT}
        v_add_u32 v{v+5}, s{c.sT0}, v{v+5}
        s_mov_b32 exec_hi, 0
        ds_write_b32 v{v+5}, v{S}
        ds_write_b32 v{v+5}, v{Q} offset:512
        s_mov_b32 exec_hi, -1
        """)
    def loader_main(self, q, p0=None):
        a, c = self.a, self
        for s_ in range(c.NST):
            tags = [f'A{s_}', f'W{s_}']
            if c.qkv and s_ == 4 and E('P0L'): tags.append('p0st')
            a(f"s_waitcnt vmcnt({q.need(*tags)}) lgkmcnt(0)")
            if getattr(c, 'ldstamps', False) and s_ in (0, 1, 2): st(a, 4 + s_)
            a("s_barrier")
            stx(a, f"{c.tag}l{s_}")
            if c.qkv:
                vd = 70
                if s_ == 0: wave_only(a, 4, lambda: a(f"buffer_load_dword v{vd}, v{vd+1}, s[44:47], 0 offen sc1"))
                if s_ == 4 and E('P0L'): wave_only(a, 4, lambda: p0r_arrive(a, c, vd))
                if s_ == 3: wave_only(a, 7, lambda: reg_step1(a, vd))
                if s_ == 5: wave_only(a, 7, lambda: reg_step2(a, vd))
                if s_ == 7: wave_only(a, 7, lambda: reg_step3(a, vd))
            if s_ + PD < c.NST and not (E('X_NODMA') and c.qkv):
                c.issue_A(s_ + PD); q.push(f"A{s_+PD}", 4)
                c.issue_W(s_ + PD); q.push(f"W{s_+PD}", 4)
            if c.qkv and s_ == 1 and E('P0L'):
                a(f"s_waitcnt vmcnt({q.need('p0l')})"); c.p0l.finish(); q.push('p0st', 1)
            if not c.qkv:
                if s_ == 7: c.tok_issue(q)
                if s_ == 8 and not E('NOPFW0'): w2_first_prefetch(a, c)
                if s_ == 9: c.tok_finish(q)
                if E('PFW2') and 0 <= s_ < 9:
                    wave_only(a, 4 + (s_ % 4), lambda: w2p_prefetch(a, s_))
            else:
                if s_ == 8 and getattr(c, 'hook7', None): c.hook7()
                if s_ == 6:
                    c.tq_poll_issue(); q.push("poll", 1)
                if s_ == 7: c.tq_check_issue(q)
                if s_ == 9: c.tq_finish(q)

    vAd, vX, vW, vAcc, vT, vSt = 24, 32, 32, 64, 128, 144
    def compute_setup(self):
        a, c = self.a, self
        NXA = 8 if c.qkv else 2
        c.NXA = NXA
        c.vXa = 4
        c.vWa = c.vXa + 2 * NXA
        vXa, vWa, vT = c.vXa, c.vWa, c.vT
        t0, t1 = vT, vT + 1
        a(f"""
        s_lshr_b32 s{c.sWm}, s{sWV}, 1
        s_and_b32 s{c.sWn}, s{sWV}, 1
        v_and_b32 v2, 31, v1
        v_lshrrev_b32 v3, 5, v1
        """)
        if c.qkv:
            a(f"""
            v_lshrrev_b32 v{t0}, 1, v1
            v_and_b32 v{t0}, 7, v{t0}
            v_xor_b32 v{t0}, v{t0}, v3
            v_lshlrev_b32 v{t0}, 4, v{t0}
            v_lshlrev_b32 v{t1}, 7, v2
            v_add_u32 v{t0}, v{t0}, v{t1}
            s_lshl_b32 s{c.sT0}, s{c.sWm}, 13
            s_lshl_b32 s{c.sT1}, s{c.sWn}, 12
            s_add_u32 s{c.sT0}, s{c.sT0}, s{c.sT1}
            v_add_u32 v{t0}, s{c.sT0}, v{t0}
            """)
            for s in range(4):
                a(f"v_xor_b32 v{vXa + s}, {32 * s}, v{t0}")
                a(f"v_xor_b32 v{vXa + 4 + s}, 4096, v{vXa + s}")
        else:
            a(f"""
            v_lshlrev_b32 v{t0}, 11, v3
            v_lshlrev_b32 v{t1}, 4, v2
            v_add_u32 v{t0}, v{t0}, v{t1}
            s_lshl_b32 s{c.sT0}, s{c.sWm}, 10
            v_add_u32 v{vXa}, s{c.sT0}, v{t0}
            v_add_u32 v{vXa + 1}, 512, v{vXa}
            """)
        for i in range(NXA):
            a(f"v_add_u32 v{vXa + NXA + i}, 65536, v{vXa + i}")
        a(f"""
        v_lshrrev_b32 v{t0}, 2, v1
        v_and_b32 v{t0}, 3, v{t0}
        v_lshlrev_b32 v{t1}, 3, v3
        v_add_u32 v{t1}, v{t1}, v{t0}
        v_lshlrev_b32 v{t1}, 8, v{t1}
        v_lshlrev_b32 v{t0}, 6, v{t0}
        v_add_u32 v{t1}, v{t1}, v{t0}
        v_lshrrev_b32 v{t0}, 4, v1
        v_and_b32 v{t0}, 1, v{t0}
        v_lshlrev_b32 v{t0}, 5, v{t0}
        v_add_u32 v{t1}, v{t1}, v{t0}
        v_lshrrev_b32 v{t0}, 1, v1
        v_and_b32 v{t0}, 1, v{t0}
        v_lshlrev_b32 v{t0}, 4, v{t0}
        v_add_u32 v{t1}, v{t1}, v{t0}
        v_and_b32 v{t0}, 1, v1
        v_lshlrev_b32 v{t0}, 3, v{t0}
        v_add_u32 v{t1}, v{t1}, v{t0}
        v_add_u32 v{t1}, 16384, v{t1}
        s_lshl_b32 s{c.sT0}, s{c.sWn}, 7
        s_lshl_b32 s{c.sT1}, s{c.sWm}, 6
        s_add_u32 s{c.sT0}, s{c.sT0}, s{c.sT1}
        v_xor_b32 v{vWa}, s{c.sT0}, v{t1}
        v_xor_b32 v{vWa + 1}, 64, v{vWa}
        v_add_u32 v{vWa + 2}, 65536, v{vWa}
        v_add_u32 v{vWa + 3}, 65536, v{vWa + 1}
        """)
    def addr_qk(self):
        a, c = self.a, self
        vT, vAd = c.vT, c.vAd
        t0, t1 = vT, vT + 1
        a(f"""
        s_cmp_lt_u32 s{c.sNt}, 5
        s_cselect_b32 s{c.sT0}, 0, 640
        s_sub_u32 s{c.sT2}, s{c.sN0}, s{c.sT0}
        s_lshl_b32 s{c.sT1}, s{c.sWn}, 6
        s_add_u32 s{c.sT2}, s{c.sT2}, s{c.sT1}
        s_lshr_b32 s{c.sT2}, s{c.sT2}, 3
        v_add_u32 v{t0}, s{c.sT2}, v3
        v_lshlrev_b32 v{vT+4}, 4, v2
        """)
        for ft in range(2):
            for j in range(2):
                d = vAd + ft*2 + j
                a(f"""
                s_xor_b32 s{c.sT3}, s{c.sWm}, {ft}
                s_lshl_b32 s{c.sT3}, s{c.sT3}, 2
                s_add_u32 s{c.sT3}, s{c.sT3}, {2*j}
                v_add_u32 v{t1}, s{c.sT3}, v{t0}
                v_mul_u32_u24 v{vT+2}, 0xcccd, v{t1}
                v_lshrrev_b32 v{vT+2}, 18, v{vT+2}
                v_mul_u32_u24 v{vT+3}, 5, v{vT+2}
                v_sub_u32 v{vT+3}, v{t1}, v{vT+3}
                v_lshlrev_b32 v{vT+3}, 9, v{vT+3}
                v_mul_u32_u24 v{vT+2}, 0x28000, v{vT+2}
                v_add3_u32 v{d}, v{vT+2}, v{vT+3}, v{vT+4}
                """)
        a(f"""
        s_lshr_b32 s{c.sT0}, s{c.sM0}, 5
        s_lshl_b32 s{c.sT1}, s{c.sWm}, 1
        s_add_u32 s{c.sT0}, s{c.sT0}, s{c.sT1}
        s_add_u32 s{c.sT1}, s{c.sT0}, s{c.sWn}
        s_mul_i32 s40, s{c.sT1}, 2560
        s_xor_b32 s{c.sT1}, s{c.sWn}, 1
        s_add_u32 s{c.sT1}, s{c.sT0}, s{c.sT1}
        s_mul_i32 s41, s{c.sT1}, 2560
        s_cmp_lt_u32 s{c.sNt}, 5
        s_cselect_b32 s{c.sT0}, {WS_Q}, {WS_K}
        s_add_u32 s{c.sO}, s{pWS}, s{c.sT0}
        s_addc_u32 s{c.sO+1}, s{pWS+1}, 0
        s_and_b32 s{c.sO+1}, s{c.sO+1}, 0xffff
        s_mov_b32 s{c.sO+2}, {SZ_QK}
        s_mov_b32 s{c.sO+3}, 0x20000
        """)
    def addr_f(self):
        a, c = self.a, self
        vT, vAd = c.vT, c.vAd
        t0, t1 = vT, vT + 1
        a(f"""
        s_lshl_b32 s{c.sT1}, s{c.sWn}, 6
        s_add_u32 s{c.sT2}, s{c.sN0}, s{c.sT1}
        s_lshr_b32 s{c.sT2}, s{c.sT2}, 3
        v_add_u32 v{t0}, s{c.sT2}, v3
        v_lshlrev_b32 v{t0}, 15, v{t0}
        v_lshlrev_b32 v{t1}, 4, v2
        v_add_u32 v{t0}, v{t0}, v{t1}
        """)
        for ft in range(2):
            for j in range(2):
                a(f"s_xor_b32 s{c.sT3}, s{c.sWm}, {ft}")
                a(f"s_lshl_b32 s{c.sT3}, s{c.sT3}, 2")
                a(f"s_add_u32 s{c.sT3}, s{c.sT3}, {2*j}")
                a(f"s_lshl_b32 s{c.sT3}, s{c.sT3}, 15")
                a(f"v_add_u32 v{vAd + ft*2 + j}, s{c.sT3}, v{t0}")
        a(f"""
        s_lshl_b32 s{c.sT1}, s{c.sWm}, 6
        s_add_u32 s{c.sT0}, s{c.sM0}, s{c.sT1}
        s_lshl_b32 s40, s{c.sT0}, 4
        s_add_u32 s41, s40, 512
        """)
        make_srd(a, c.sO, pWS, pWS+1, WS_F, SZ_F)
    def addr_v(self):
        a, c = self.a, self
        vT, vAd = c.vT, c.vAd
        t0, t1 = vT, vT + 1
        for ft in range(2):
            a(f"""
            s_lshl_b32 s{c.sT1}, s{c.sWn}, 6
            s_add_u32 s{c.sT0}, s{c.sN0}, s{c.sT1}
            s_xor_b32 s{c.sT1}, s{c.sWm}, {ft}
            s_lshl_b32 s{c.sT1}, s{c.sT1}, 5
            s_add_u32 s{c.sT0}, s{c.sT0}, s{c.sT1}
            s_sub_u32 s{c.sT0}, s{c.sT0}, 1280
            v_add_u32 v{t0}, s{c.sT0}, v2
            v_mul_u32_u24 v{t1}, 0xcccd, v{t0}
            v_lshrrev_b32 v{t1}, 20, v{t1}
            v_mul_u32_u24 v{vT+2}, 20, v{t1}
            v_sub_u32 v{t0}, v{t0}, v{vT+2}
            v_lshlrev_b32 v{t0}, 4, v{t0}
            v_mul_u32_u24 v{t1}, 0x14000, v{t1}
            v_add_u32 v{t0}, v{t0}, v{t1}
            v_mul_u32_u24 v{t1}, 320, v3
            v_add_u32 v{vAd+ft}, v{t0}, v{t1}
            """)
        a(f"""
        s_lshl_b32 s{c.sT1}, s{c.sWm}, 6
        s_add_u32 s{c.sT0}, s{c.sM0}, s{c.sT1}
        s_lshr_b32 s{c.sT0}, s{c.sT0}, 4
        s_lshl_b32 s{c.sT1}, s{c.sWn}, 1
        s_add_u32 s{c.sT1}, s{c.sT1}, s{c.sT0}
        s_mul_i32 s40, s{c.sT1}, 640
        s_add_u32 s41, s40, 640
        s_xor_b32 s{c.sT1}, s{c.sWn}, 1
        s_lshl_b32 s{c.sT1}, s{c.sT1}, 1
        s_add_u32 s{c.sT1}, s{c.sT1}, s{c.sT0}
        s_mul_i32 s42, s{c.sT1}, 640
        s_add_u32 s43, s42, 640
        """)
        make_srd(a, c.sO, pWS, pWS+1, WS_V, SZ_QKV)
    def stats_poll_issue(self):
        a, c = self.a, self
        vS = c.vSt
        a(f"""
        v_lshlrev_b32 v{vS+30}, 7, v1
        v_add_u32 v{vS+30}, {WS_CNT + (C_P0 if c.qkv else C_W1)*128}, v{vS+30}
        s_mov_b64 exec, 0xff
        buffer_load_dword v{vS+29}, v{vS+30}, s[{sWS}:{sWS+3}], 0 offen sc1
        s_mov_b64 exec, -1
        """)
    def stats_poll_check(self):
        a, c = self.a, self
        vS = c.vSt
        ok = a.newlabel("stok")
        a(f"""
        s_waitcnt vmcnt(0)
        s_mov_b64 exec, 0xff
        v_cmp_gt_u32 vcc, 128, v{vS+29}
        s_nop 4
        s_cmp_eq_u64 vcc, 0
        s_cbranch_scc1 {ok}
        v_mov_b32 v{vS+28}, 128
        """)
        poll(a, vS + 30, vS + 28, 8, vS + 29)
        a.label(ok)
        a("s_mov_b64 exec, -1")
        a("s_nop 3")
    def stats_issue(self):
        a, c = self.a, self
        vS = c.vSt
        a(f"""
        v_lshlrev_b32 v{vS+31}, 2, v2
        v_lshlrev_b32 v{vS+30}, 3, v2
        s_lshl_b32 s{c.sT0}, s{sWV}, 5
        s_add_u32 s{c.sT1}, s{c.sT0}, s{c.sM0}
        s_lshl_b32 s{c.sT1}, s{c.sT1}, 3
        s_add_u32 s{c.sT1}, s{c.sT1}, {WS_ST2}
        """)
        for j in range(8):
            a(f"buffer_load_dwordx2 {vr(vS+8+2*j,2)}, v{vS+30}, s[{sWS}:{sWS+3}], s{c.sT1} offen")
            if j < 7: a(f"s_add_u32 s{c.sT1}, s{c.sT1}, {2048*8}")
    def stats_finish(self):
        a, c = self.a, self
        vS = c.vSt
        a("s_waitcnt vmcnt(0)")
        S, Q = vS + 8, vS + 9
        for j in range(1, 8):
            a(f"v_add_f32 v{S}, v{S}, v{S+2*j}")
            a(f"v_add_f32 v{Q}, v{Q}, v{Q+2*j}")
        a(f"""
        v_mul_f32 v{S}, {f32bits(1.0/640):#x}, v{S}
        v_mul_f32 v{Q}, {f32bits(1.0/640):#x}, v{Q}
        v_fma_f32 v{Q}, -v{S}, v{S}, v{Q}
        v_max_f32 v{Q}, 0, v{Q}
        v_add_f32 v{Q}, {f32bits(1e-5):#x}, v{Q}
        v_rsq_f32 v{Q}, v{Q}
        s_lshl_b32 s{c.sT0}, s{sWV}, 7
        s_add_u32 s{c.sT0}, s{c.sT0}, {STAT}
        v_add_u32 v{vS+31}, s{c.sT0}, v{vS+31}
        ds_write_b32 v{vS+31}, v{S}
        ds_write_b32 v{vS+31}, v{Q} offset:512
        """)
    aX = 4
    def read_list(self, i):
        c = self
        st_, step, buf = i // 4, i % 4, i % 3
        slot = st_ % 4
        win, base = slot >> 1, (slot & 1) * 32768
        L = []
        for lt in range(2):
            if c.qkv:
                L.append(f"ds_read_b128 {ar(c.aX + buf*8 + lt*4, 4)}, v{c.vXa + win*8 + lt*4 + step} offset:{base}")
            else:
                L.append(f"ds_read_b128 {ar(c.aX + buf*8 + lt*4, 4)}, v{c.vXa + win*2 + lt} offset:{base + step*4096}")
        for lf in range(2):
            for h2 in range(2):
                L.append(f"ds_read_b64_tr_b16 {vr(c.vW + buf*8 + lf*4 + h2*2, 2)}, v{c.vWa + win*2 + lf} offset:{base + step*4096 + h2*1024}")
        return L
    def reads(self, i):
        for r in self.read_list(i): self.a(r)
    def mfma(self, i, k, orientY):
        a, c = self.a, self
        buf = i % 3
        lf, lt = k >> 1, k & 1
        acc = c.vAcc + (lf*2 + lt) * 16
        xa, wa = ar(c.aX + buf*8 + lt*4, 4), vr(c.vW + buf*8 + lf*4, 4)
        cc = "0" if i == 0 else vr(acc, 16)
        if orientY: a(f"v_mfma_f32_32x32x16_bf16 {vr(acc,16)}, {wa}, {xa}, {cc}")
        else: a(f"v_mfma_f32_32x32x16_bf16 {vr(acc,16)}, {xa}, {wa}, {cc}")
    def mainloop(self, orientY, stamp0=None, tag='q'):
        a, c = self.a, self
        vS = c.vSt
        CS = vS
        UU = c.vT
        a(f"v_mov_b32 v{CS}, 0")
        a(f"v_mov_b32 v{CS+1}, 0")
        if c.qkv and E('TLBE'): wave_only(a, 3, lambda: tlb_warm(a))
        a("s_barrier")
        if stamp0 is not None: st(a, stamp0)
        stx(a, tag + '_s0')
        c.reads(0)
        c.reads(1)
        for i in range(40):
            buf = i % 3
            Wl = c.vW + buf*8
            ops = []
            for r in range(4):
                u = UU + 2*(r & 1)
                ops += [f"v_lshlrev_b32 v{u}, 16, v{Wl+r}", f"v_and_b32 v{u+1}, 0xffff0000, v{Wl+r}",
                        f"v_add_f32 v{CS}, v{CS}, v{u}", f"v_add_f32 v{CS+1}, v{CS+1}, v{u+1}"]
            if E('X_NOVALU'): ops = []
            rl = c.read_list(i + 2) if i + 2 < 40 else []
            if i == 4: stx(a, tag + '_s1')
            if i == 20: stx(a, tag + '_s5')
            a(f"s_waitcnt lgkmcnt({6 if i + 1 < 40 else 0})")
            c.mfma(i, 0, orientY)
            if i + 2 < 40 and (i + 2) % 4 == 0:
                a("s_barrier")
            for o in rl[0:2] + ops[0:3]: a(o)
            c.mfma(i, 1, orientY)
            for o in rl[2:4] + ops[3:6]: a(o)
            if c.qkv and i == int(E('TLBI', '2')) and not E('NOTLB') and not E('TLBE'): wave_only(a, 3, lambda: tlb_warm(a))
            c.mfma(i, 2, orientY)
            for o in rl[4:6] + ops[6:10]: a(o)
            c.mfma(i, 3, orientY)
            for o in ops[10:16]: a(o)
        U = vS + 14
        a(f"""
        v_add_f32 v{CS}, v{CS}, v{CS+1}
        s_nop 0
        v_mov_b32 v{CS+1}, v{CS}
        s_nop 1
        v_permlane32_swap_b32 v{CS}, v{CS+1}
        s_nop 1
        v_add_f32 v{CS}, v{CS}, v{CS+1}
        """)
        a(f"""
        s_lshl_b32 s{c.sT0}, s{c.sWn}, 8
        s_lshl_b32 s{c.sT1}, s{c.sWm}, 7
        s_add_u32 s{c.sT0}, s{c.sT0}, s{c.sT1}
        s_add_u32 s{c.sT0}, s{c.sT0}, {STAT + 1024}
        v_lshlrev_b32 v{U}, 2, v2
        v_add_u32 v{U+1}, s{c.sT0}, v{U}
        ds_write_b32 v{U+1}, v{CS}
        """)
        a("s_waitcnt lgkmcnt(0)")
    def dbg_issue(self):
        a, c = self.a, self
        make_srd(a, 44, pDBG, pDBG+1, 0, 256)
        a(f"v_lshlrev_b32 v{c.vSt+27}, 2, v1")
        a("s_mov_b64 exec, 0x1ff")
        a(f"buffer_load_dword v{c.vSt+26}, v{c.vSt+27}, s[44:47], 0 offen sc1")
        a("s_mov_b64 exec, -1")
        a("s_nop 1")
    def epilogue_Y(self, kind):
        a, c = self.a, self
        vT, vAcc, vAd = c.vT, c.vAcc, c.vAd
        vM, vR, vC = vT, vT + 2, 32
        for lt in range(2):
            a(f"""
            s_lshl_b32 s{c.sT1}, s{c.sWm}, 8
            s_add_u32 s{c.sT0}, s{c.sT1}, {STAT + (0 if c.qkv else lt*128)}
            s_xor_b32 s{c.sT1}, s{c.sWn}, {lt}
            s_lshl_b32 s{c.sT1}, s{c.sT1}, {7 if c.qkv else 31}
            s_add_u32 s{c.sT0}, s{c.sT0}, {'s%d' % c.sT1 if c.qkv else 0}
            v_lshlrev_b32 v{vT+4}, 2, v2
            v_add_u32 v{vT+4}, s{c.sT0}, v{vT+4}
            ds_read_b32 v{vM + lt}, v{vT+4}
            ds_read_b32 v{vR + lt}, v{vT+4} offset:512
            """)
        for lf in range(2):
            a(f"""
            s_lshl_b32 s{c.sT1}, s{c.sWn}, 8
            s_add_u32 s{c.sT0}, s{c.sT1}, {STAT + 1024}
            s_xor_b32 s{c.sT1}, s{c.sWm}, {lf}
            s_lshl_b32 s{c.sT1}, s{c.sT1}, 7
            s_add_u32 s{c.sT0}, s{c.sT0}, s{c.sT1}
            v_lshlrev_b32 v{vT+4}, 4, v3
            v_add_u32 v{vT+4}, s{c.sT0}, v{vT+4}
            """)
            for q in range(4):
                a(f"ds_read_b128 {vr(vC + lf*16 + q*4, 4)}, v{vT+4} offset:{q*32}")
        a("s_waitcnt lgkmcnt(0)")
        if kind == 'qk':
            a(f"""
            s_cmp_lt_u32 s{c.sNt}, 5
            s_cselect_b32 s{c.sT0}, {f32bits(QSCALE):#x}, 1.0
            v_mul_f32 v{vR}, s{c.sT0}, v{vR}
            v_mul_f32 v{vR+1}, s{c.sT0}, v{vR+1}
            """)
        B = c.vSt + 2
        for lt in range(2):
            a(f"v_mov_b32 v{B + 2*lt}, v{vM + lt}")
            a(f"v_mov_b32 v{B + 2*lt + 1}, v{vM + lt}")
            a(f"v_mov_b32 v{B + 4 + 2*lt}, v{vR + lt}")
            a(f"v_mov_b32 v{B + 4 + 2*lt + 1}, v{vR + lt}")
        vP = vT + 8
        n = 0
        for lf in range(2):
            for lt in range(2):
                acc = vAcc + (lf*2 + lt) * 16
                for r in range(0, 16, 2):
                    a(f"v_pk_fma_f32 {vr(acc + r, 2)}, {vr(B + 2*lt, 2)}, {vr(vC + lf*16 + r, 2)}, {vr(acc + r, 2)} neg_lo:[1,0,0] neg_hi:[1,0,0]")
                for r in range(0, 16, 2):
                    a(f"v_pk_mul_f32 {vr(acc + r, 2)}, {vr(acc + r, 2)}, {vr(B + 4 + 2*lt, 2)}")
                for j in range(2):
                    p = vP + (n & 1) * 4
                    n += 1
                    q0 = acc + j*8
                    for k in range(4):
                        a(f"v_cvt_pk_bf16_f32 v{p+k}, v{q0+2*k}, v{q0+2*k+1}")
                    if kind == 'ffn1':
                        for k in range(4):
                            a(f"v_pk_max_i16 v{p+k}, v{p+k}, 0")
                    else:
                        a("s_nop 0")
                    a("s_nop 0")
                    if kind == 'ffn1': a("s_nop 0")
                    a(f"v_permlane32_swap_b32 v{p}, v{p+2}")
                    a(f"v_permlane32_swap_b32 v{p+1}, v{p+3}")
                    ins = f"buffer_store_dwordx4 {vr(p,4)}, v{vAd + lf*2 + j}, s[{c.sO}:{c.sO+3}], s{40 + lt} offen @SC"
                    if kind == 'ffn1': dual(a, [ins])
                    else: a(ins.replace("@SC", SC))
    def epilogue_X(self):
        a, c = self.a, self
        vT, vAcc, vAd = c.vT, c.vAcc, c.vAd
        vC, vM, vR = vT, 32, 48
        for lf in range(2):
            a(f"""
            s_lshl_b32 s{c.sT1}, s{c.sWn}, 8
            s_add_u32 s{c.sT0}, s{c.sT1}, {STAT + 1024}
            s_xor_b32 s{c.sT1}, s{c.sWm}, {lf}
            s_lshl_b32 s{c.sT1}, s{c.sT1}, 7
            s_add_u32 s{c.sT0}, s{c.sT0}, s{c.sT1}
            v_lshlrev_b32 v{vT+4}, 2, v2
            v_add_u32 v{vT+4}, s{c.sT0}, v{vT+4}
            ds_read_b32 v{vC + lf}, v{vT+4}
            """)
        vP = vT + 8
        n = 0
        for lt in range(2):
            a(f"""
            s_lshl_b32 s{c.sT1}, s{c.sWm}, 8
            s_add_u32 s{c.sT0}, s{c.sT1}, {STAT}
            s_xor_b32 s{c.sT1}, s{c.sWn}, {lt}
            s_lshl_b32 s{c.sT1}, s{c.sT1}, 7
            s_add_u32 s{c.sT0}, s{c.sT0}, s{c.sT1}
            v_lshlrev_b32 v{vT+4}, 4, v3
            v_add_u32 v{vT+4}, s{c.sT0}, v{vT+4}
            """)
            for q in range(4):
                a(f"ds_read_b128 {vr(vM + q*4, 4)}, v{vT+4} offset:{q*32}")
                a(f"ds_read_b128 {vr(vR + q*4, 4)}, v{vT+4} offset:{512 + q*32}")
            a("s_waitcnt lgkmcnt(0)")
            B = c.vSt + 2
            if lt == 0:
                for lf in range(2):
                    a(f"v_mov_b32 v{B + 2*lf}, v{vC + lf}")
                    a(f"v_mov_b32 v{B + 2*lf + 1}, v{vC + lf}")
            for lf in range(2):
                acc = vAcc + (lf*2 + lt) * 16
                for r in range(0, 16, 2):
                    a(f"v_pk_fma_f32 {vr(acc + r, 2)}, {vr(vM + r, 2)}, {vr(B + 2*lf, 2)}, {vr(acc + r, 2)} neg_lo:[1,0,0] neg_hi:[1,0,0]")
                for r in range(0, 16, 2):
                    a(f"v_pk_mul_f32 {vr(acc + r, 2)}, {vr(acc + r, 2)}, {vr(vR + r, 2)}")
                for g in range(2):
                    p = vP + (n & 1) * 4
                    n += 1
                    for r in range(4):
                        a(f"v_cvt_pk_bf16_f32 v{p + r}, v{acc + g*8 + 2*r}, v{acc + g*8 + 2*r + 1}")
                    a(f"buffer_store_dwordx4 {vr(p,4)}, v{vAd + lf}, s[{c.sO}:{c.sO+3}], s{40 + lt*2 + g} offen {SC}")

STG = 36864
class CoreS:
    sA, sO, sR = 8, 16, 40
    sM0, sN0, sT0, sT1, sT2, sNt = 21, 22, 23, 24, 25, 26
    sLw, sAoff, sWoff, sLdsA, sLdsW, sSeq, sSeqW = 20, 29, 30, 31, 32, 33, 34
    vA = 4
    vXa2, vWa2 = 116, 117
    def __init__(self, a, mode):
        self.a, self.mode = a, mode
        self.op = mode == 'oproj'
        self.NST = 5 if self.op else 14
    def map_tiles(self):
        a, c = self.a, self
        NST = c.NST
        a(f"""
        s_and_b32 s{c.sT0}, s{sRk}, 3
        s_lshl_b32 s{c.sM0}, s{sX}, 2
        s_add_u32 s{c.sM0}, s{c.sM0}, s{c.sT0}
        s_lshl_b32 s{c.sM0}, s{c.sM0}, 6
        s_lshr_b32 s{c.sNt}, s{sRk}, 2
        s_mul_i32 s{c.sN0}, s{c.sNt}, 80
        s_mul_i32 s{c.sSeq}, s{c.sT0}, {1 if c.op else 3}
        s_mul_i32 s{c.sT1}, s{c.sNt}, {1 if c.op else 2}
        s_add_u32 s{c.sSeq}, s{c.sSeq}, s{c.sT1}
        s_cmp_ge_u32 s{c.sSeq}, {NST}
        s_cselect_b32 s{c.sT1}, {NST}, 0
        s_sub_u32 s{c.sSeq}, s{c.sSeq}, s{c.sT1}
        s_cmp_ge_u32 s{c.sSeq}, {NST}
        s_cselect_b32 s{c.sT1}, {NST}, 0
        s_sub_u32 s{c.sSeq}, s{c.sSeq}, s{c.sT1}
        """)
        if E('NOROTS'): a(f"s_mov_b32 s{c.sSeq}, 0")
    def loader_setup(self):
        a, c = self.a, self
        if c.op: make_srd(a, c.sA, pWS, pWS+1, WS_O, SZ_ACT)
        else: make_srd(a, c.sA, pWS, pWS+1, WS_F, SZ_F)
        a(f"""
        s_sub_u32 s{c.sLw}, s{sWV}, 4
        v_lshlrev_b32 v{c.vA}, 4, v1
        s_lshl_b32 s{c.sT0}, s{c.sLw}, 17
        s_lshl_b32 s{c.sT1}, s{c.sM0}, 4
        s_add_u32 s{c.sAoff}, s{c.sT0}, s{c.sT1}
        s_mul_i32 s{c.sT0}, s{c.sLw}, 5120
        s_mul_i32 s{c.sT1}, s{c.sNt}, {c.NST * 20480}
        s_add_u32 s{c.sWoff}, s{c.sT0}, s{c.sT1}
        s_add_u32 s{c.sWoff}, s{c.sWoff}, {WS_WOP if c.op else WS_W2P}
        s_lshl_b32 s{c.sLdsA}, s{c.sLw}, 12
        s_add_u32 s{c.sLdsW}, s{c.sT0}, 16384
        s_mul_i32 s{c.sT0}, s{c.sSeq}, {16 * 32768}
        s_add_u32 s{c.sAoff}, s{c.sAoff}, s{c.sT0}
        s_mul_i32 s{c.sT0}, s{c.sSeq}, 20480
        s_add_u32 s{c.sWoff}, s{c.sWoff}, s{c.sT0}
        s_mov_b32 s{c.sSeqW}, s{c.sSeq}
        """)
    def issue_A(self, seq):
        a, c = self.a, self
        slot = (seq % 4) * STG
        for j in range(4):
            a(f"s_add_u32 m0, s{c.sLdsA}, {slot}" if j == 0 else "s_add_u32 m0, m0, 1024")
            a(f"s_mov_b32 s{c.sT0}, s{c.sAoff}" if j == 0 else f"s_add_u32 s{c.sT0}, s{c.sT0}, 32768")
            a(f"buffer_load_dwordx4 v{c.vA}, s[{c.sA}:{c.sA+3}], s{c.sT0} offen lds")
        a(f"""
        s_add_u32 s{c.sSeq}, s{c.sSeq}, 1
        s_cmp_eq_u32 s{c.sSeq}, {c.NST}
        s_cselect_b32 s{c.sT0}, {c.NST * 16 * 32768}, 0
        s_cselect_b32 s{c.sSeq}, 0, s{c.sSeq}
        s_add_u32 s{c.sAoff}, s{c.sAoff}, {16 * 32768}
        s_sub_u32 s{c.sAoff}, s{c.sAoff}, s{c.sT0}
        """)
    def issue_W(self, seq):
        a, c = self.a, self
        slot = (seq % 4) * STG
        a(f"s_add_u32 m0, s{c.sLdsW}, {slot}")
        a(f"s_add_u32 s{c.sT0}, s{c.sWoff}, 4096")
        for j in range(4):
            a(f"buffer_load_dwordx4 v{c.vA}, s[{sWS}:{sWS+3}], s{c.sWoff} offen offset:{j*1024} lds")
        a("s_add_u32 m0, m0, 4096")
        a(f"s_add_u32 s{c.sSeqW}, s{c.sSeqW}, 1")
        a(f"buffer_load_dwordx4 v{c.vA}, s[{sWS}:{sWS+3}], s{c.sT0} offen lds")
        a(f"""
        s_cmp_eq_u32 s{c.sSeqW}, {c.NST}
        s_cselect_b32 s{c.sT0}, {c.NST * 20480}, 0
        s_cselect_b32 s{c.sSeqW}, 0, s{c.sSeqW}
        s_add_u32 s{c.sWoff}, s{c.sWoff}, 20480
        s_sub_u32 s{c.sWoff}, s{c.sWoff}, s{c.sT0}
        """)
    def loader_main(self, q):
        a, c = self.a, self
        for s_ in range(c.NST):
            a(f"s_waitcnt vmcnt({q.need(f'A{s_}', f'W{s_}')})")
            a("s_barrier")
            stx(a, f"{'o' if c.op else 'g'}l{s_}")
            if s_ + PD < c.NST and not (E('S_NODMA') and not c.op):
                if not E('S_NOA'): c.issue_A(s_ + PD); q.push(f"A{s_+PD}", 4)
                if not E('S_NOW'): c.issue_W(s_ + PD); q.push(f"W{s_+PD}", 5)
    vXb, vWb, vXa, vWa, vX, vW, vRes, vT, vAcc = 4, 5, 6, 7, 8, 32, 70, 84, 96
    vXa2, vWa2 = 120, 121
    def compute_setup(self):
        a, c = self.a, self
        vT = c.vT
        a(f"""
        v_and_b32 v2, 15, v1
        v_lshrrev_b32 v3, 4, v1
        s_lshr_b32 s{c.sT1}, s{sWV}, 1
        s_and_b32 s{c.sT2}, s{sWV}, 1
        s_lshl_b32 s{c.sT0}, s{c.sT1}, 5
        s_add_u32 s{c.sT0}, s{c.sT0}, s{c.sM0}
        v_add_u32 v{vT}, s{c.sT0}, v2
        """)
        a(f"""
        s_mul_i32 s{c.sAoff}, s{c.sT2}, 48
        s_add_u32 s{c.sAoff}, s{c.sAoff}, s{c.sN0}
        v_mul_u32_u24 v{vT+1}, 1280, v{vT}
        v_lshlrev_b32 v{vT+3}, 3, v3
        v_add_u32 v{vT+1}, v{vT+1}, v{vT+3}
        s_lshl_b32 s{c.sT0}, s{c.sAoff}, 1
        v_add_u32 v{vT+1}, s{c.sT0}, v{vT+1}
        v_lshrrev_b32 v{vT+3}, 1, v3
        v_lshlrev_b32 v{vT+3}, 15, v{vT+3}
        v_lshlrev_b32 v{vT+2}, 4, v{vT}
        v_add_u32 v{vT+2}, v{vT+2}, v{vT+3}
        v_and_b32 v{vT+3}, 1, v3
        v_lshlrev_b32 v{vT+3}, 3, v{vT+3}
        v_add_u32 v{vT+2}, v{vT+2}, v{vT+3}
        s_lshl_b32 s{c.sT0}, s{c.sAoff}, 12
        v_add_u32 v{vT+2}, s{c.sT0}, v{vT+2}
        s_lshl_b32 s{c.sT0}, s{c.sT1}, 9
        v_lshlrev_b32 v{c.vXb}, 10, v3
        v_lshlrev_b32 v{vT+3}, 4, v2
        v_add_u32 v{c.vXb}, v{c.vXb}, v{vT+3}
        v_add_u32 v{c.vXb}, s{c.sT0}, v{c.vXb}
        v_lshrrev_b32 v{vT+3}, 1, v3
        v_lshlrev_b32 v{vT+3}, 4, v{vT+3}
        v_and_b32 v{vT+4}, 1, v3
        v_lshlrev_b32 v{vT+4}, 2, v{vT+4}
        v_add_u32 v{vT+3}, v{vT+3}, v{vT+4}
        v_lshrrev_b32 v{vT+4}, 2, v2
        v_add_u32 v{vT+3}, v{vT+3}, v{vT+4}
        v_mul_u32_u24 v{vT+3}, 160, v{vT+3}
        v_and_b32 v{vT+4}, 3, v1
        v_lshlrev_b32 v{vT+4}, 3, v{vT+4}
        v_add_u32 v{vT+3}, v{vT+3}, v{vT+4}
        s_mul_i32 s{c.sT0}, s{c.sT2}, 96
        s_add_u32 s{c.sT0}, s{c.sT0}, 16384
        v_add_u32 v{c.vWb}, s{c.sT0}, v{vT+3}
        s_mov_b32 s{c.sWoff}, s{c.sT2}
        """)
        if c.op:
            make_srd(a, c.sR, pX, pX+1, 0, 2048 * 1280)
            make_srd(a, c.sO, pWS, pWS+1, WS_H, SZ_ACT)
        else:
            make_srd(a, c.sR, pWS, pWS+1, WS_H, SZ_ACT)
            make_srd(a, c.sO, pOUT, pOUT+1, 0, 2048 * 1280)
        a(f"""
        s_cmp_eq_u32 s{c.sT2}, 1
        s_cselect_b32 s44, 0x7f000000, 0
        s_cselect_b64 s[46:47], -1, 0
        """)
    def pretouch(self): pass
    def tile_off(self, T, tt, rowmajor):
        a, c = self.a, self
        if rowmajor:
            base = T * 32 + tt * 16 * 1280
            val = base
        else:
            val = T * 65536 + tt * 256
        if T == 2:
            a(f"s_add_u32 s{c.sT0}, s44, {val}")
        else:
            a(f"s_mov_b32 s{c.sT0}, {val}")
        return (c.vT + 1 if rowmajor else c.vT + 2), c.sT0
    def residual_loads(self):
        a, c = self.a, self
        for T in range(3):
            for tt in range(2):
                va, so = c.tile_off(T, tt, c.op)
                a(f"buffer_load_dwordx2 {vr(c.vRes + 2*(T*2 + tt), 2)}, v{va}, s[{c.sR}:{c.sR+3}], s{so} offen")
    def mainloop(self, stamp0=None, tag=''):
        a, c = self.a, self
        N = c.NST * 4
        def rlist(i):
            st_, k, buf = i // 4, i % 4, i % 3
            xa, wa = (c.vXa, c.vWa) if st_ % 2 == 0 else (c.vXa2, c.vWa2)
            L = [f"ds_read_b128 {vr(c.vX + buf*8 + tt*4, 4)}, v{xa} offset:{k*4096 + tt*256}" for tt in range(2)]
            for T in range(3):
                for h2 in range(2):
                    L.append(f"ds_read_b64_tr_b16 {vr(c.vW + buf*12 + T*4 + h2*2, 2)}, v{wa} offset:{k*5120 + h2*1280 + T*32}")
            return L
        def setaddr(st_):
            slot = (st_ % 4) * STG
            xa, wa = (c.vXa, c.vWa) if st_ % 2 == 0 else (c.vXa2, c.vWa2)
            a(f"v_add_u32 v{xa}, {slot}, v{c.vXb}")
            a(f"v_add_u32 v{wa}, {slot}, v{c.vWb}")
        a("s_barrier")
        stx(a, tag + '_s0')
        setaddr(0)
        for r in rlist(0) + rlist(1): a(r)
        for i in range(N):
            buf = i % 3
            rl = rlist(i + 2) if i + 2 < N else []
            a(f"s_waitcnt lgkmcnt({8 if i + 1 < N else 0})")
            k = 0
            for T in range(3):
                for tt in range(2):
                    acc = c.vAcc + (T*2 + tt) * 4
                    cc = "0" if i == 0 else vr(acc, 4)
                    a(f"v_mfma_f32_16x16x32_bf16 {vr(acc,4)}, {vr(c.vW + buf*12 + T*4, 4)}, {vr(c.vX + buf*8 + tt*4, 4)}, {cc}")
                    if k == 0 and i + 2 < N and (i + 2) % 4 == 0:
                        a("s_barrier")
                        if (i + 2) // 4 == 1: stx(a, tag + '_s1')
                        if (i + 2) // 4 == 4: stx(a, tag + '_s4')
                        setaddr((i + 2) // 4)
                    for r in rl[[0, 2, 4, 5, 6, 7][k]:[2, 4, 5, 6, 7, 8][k]]: a(r)
                    k += 1
        a("s_nop 7")
    def reduce(self):
        pass
    def epilogue(self):
        a, c = self.a, self
        vT, vRes = c.vT, c.vRes
        a("s_waitcnt vmcnt(0)")
        P = 8
        for T in range(3):
            for tt in range(2):
                n = T*2 + tt
                acc = c.vAcc + n*4
                rr = vRes + 2*n
                a(f"""
                v_lshlrev_b32 v24, 16, v{rr}
                v_and_b32 v25, 0xffff0000, v{rr}
                v_lshlrev_b32 v26, 16, v{rr+1}
                v_and_b32 v27, 0xffff0000, v{rr+1}
                v_add_f32 v{acc}, v{acc}, v24
                v_add_f32 v{acc+1}, v{acc+1}, v25
                v_add_f32 v{acc+2}, v{acc+2}, v26
                v_add_f32 v{acc+3}, v{acc+3}, v27
                v_cvt_pk_bf16_f32 v{P+2*n}, v{acc}, v{acc+1}
                v_cvt_pk_bf16_f32 v{P+2*n+1}, v{acc+2}, v{acc+3}
                """)
                va, so = c.tile_off(T, tt, not c.op)
                ins = f"buffer_store_dwordx2 {vr(P+2*n, 2)}, v{va}, s[{c.sO}:{c.sO+3}], s{so} offen @SC"
                if c.op: dual(a, [ins])
                else: a(ins.replace("@SC", E('OUTFL', '')))
        if c.op:
            for tt in range(2):
                S, Q = 28 + 2*tt, 29 + 2*tt
                first = True
                for T in range(3):
                    n = T*2 + tt
                    for d in range(2):
                        r = P + 2*n + d
                        a(f"v_lshlrev_b32 v24, 16, v{r}")
                        a(f"v_and_b32 v25, 0xffff0000, v{r}")
                        if T == 2:
                            a(f"v_cndmask_b32 v24, v24, 0, s[46:47]")
                            a(f"v_cndmask_b32 v25, v25, 0, s[46:47]")
                        if first:
                            a(f"v_add_f32 v{S}, v24, v25")
                            a(f"v_mul_f32 v{Q}, v24, v24")
                            first = False
                        else:
                            a(f"v_add_f32 v{S}, v{S}, v24")
                            a(f"v_add_f32 v{S}, v{S}, v25")
                            a(f"v_fmac_f32 v{Q}, v24, v24")
                        a(f"v_fmac_f32 v{Q}, v25, v25")
            a(f"""
            v_mov_b32 v32, v28
            v_mov_b32 v33, v29
            v_mov_b32 v34, v30
            v_mov_b32 v35, v31
            s_nop 1
            v_permlane32_swap_b32 v28, v32
            v_permlane32_swap_b32 v29, v33
            v_permlane32_swap_b32 v30, v34
            v_permlane32_swap_b32 v31, v35
            s_nop 1
            v_add_f32 v28, v28, v32
            v_add_f32 v29, v29, v33
            v_add_f32 v30, v30, v34
            v_add_f32 v31, v31, v35
            s_nop 0
            v_mov_b32 v32, v28
            v_mov_b32 v33, v29
            v_mov_b32 v34, v30
            v_mov_b32 v35, v31
            s_nop 1
            v_permlane16_swap_b32 v28, v32
            v_permlane16_swap_b32 v29, v33
            v_permlane16_swap_b32 v30, v34
            v_permlane16_swap_b32 v31, v35
            s_nop 1
            v_add_f32 v28, v28, v32
            v_add_f32 v29, v29, v33
            v_add_f32 v30, v30, v34
            v_add_f32 v31, v31, v35
            s_lshl_b32 s{c.sT0}, s{c.sNt}, 1
            s_add_u32 s{c.sT0}, s{c.sT0}, s{c.sWoff}
            s_lshl_b32 s{c.sT0}, s{c.sT0}, 14
            s_add_u32 s{c.sT0}, s{c.sT0}, {WS_ST2}
            v_lshlrev_b32 v32, 3, v{vT}
            s_mov_b64 exec, 0xffff
            """)
            dual(a, [f"buffer_store_dwordx2 v[28:29], v32, s[{sWS}:{sWS+3}], s{c.sT0} offen @SC",
                     f"buffer_store_dwordx2 v[30:31], v32, s[{sWS}:{sWS+3}], s{c.sT0} offen offset:128 @SC"])
            a("s_mov_b64 exec, -1")

KT = 1536
SLOT = 8 * KT + 16384
VOFF = 8 * KT
NSLOT = 5
FLAG = NSLOT * SLOT

def attn_pad_init(a, nw_base, per_wave):
    a(f"""
    v_and_b32 v120, 31, v1
    v_mov_b32 v124, 0
    v_mov_b32 v123, 0x3f803f80
    v_cmp_eq_u32 vcc, 20, v120
    s_sub_u32 s75, s{sWV}, {nw_base}
    s_mul_i32 s75, s75, {per_wave * 1024}
    s_add_u32 s75, s75, {VOFF}
    v_cndmask_b32 v124, v124, v123, vcc
    v_lshlrev_b32 v123, 4, v1
    v_add_u32 v123, s75, v123
    v_mov_b32 v125, v124
    v_mov_b32 v126, v124
    v_mov_b32 v127, v124
    s_mov_b32 exec_lo, 0xfff00000
    s_mov_b32 exec_hi, 0xfff00000
    """)
    base = 0
    for sl in range(NSLOT):
        for j in range(per_wave):
            off = sl * SLOT + j * 1024
            if off - base >= 65536 - 1024:
                a(f"v_add_u32 v123, {sl*SLOT - base}, v123")
                base = sl * SLOT
            a(f"ds_write_b128 v123, v[124:127] offset:{off - base}")
    a(f"""
    s_mov_b64 exec, -1
    v_mov_b32 v123, {FLAG}
    v_mov_b32 v124, 0
    ds_write_b32 v123, v124
    s_waitcnt lgkmcnt(0)
    """)

def emit_attention(a, after_stores):
    name = "att"
    sK, sV, sQ, sO = 8, 12, 16, 20
    sHead, sQt, sT0, sT1, sT2 = 25, 26, 27, 28, 29
    sChunk, sSlotN, sPass, sKoff, sVoff, sKh = 30, 31, 32, 33, 34, 35
    sVmask = 38
    sSlotW, sE, sQg, sQb = 40, 41, 42, 43
    sW1s = 44
    vL16, vVoff = 2, 3
    vA3 = [[4, 5, 6], [7, 8, 9], [172, 173, 174]]
    vQ, vQr, vNC, vS, vP, vKb, vKr, vV, vO, vT = 10, 18, 22, 54, 86, 94, 102, 110, 126, 158
    lane_id(a, 0)
    lane_id(a, 1)
    a(f"""
    s_mov_b32 s{sVmask}, 0x000fffff
    s_mov_b32 s{sVmask+1}, 0x000fffff
    s_mov_b32 s{sPass}, 0
    s_lshr_b32 s{sKh}, s{sWV}, 2
    s_and_b32 s{sQg}, s{sWV}, 3
    v_lshlrev_b32 v{vL16}, 4, v0
    v_and_b32 v{vT}, 31, v0
    v_lshrrev_b32 v{vT+1}, 5, v0
    v_mul_u32_u24 v{vVoff}, 320, v{vT+1}
    v_lshlrev_b32 v{vT+2}, 4, v{vT}
    v_add_u32 v{vVoff}, v{vVoff}, v{vT+2}
    """)
    make_srd(a, sK, pWS, pWS+1, WS_K, SZ_QK)
    make_srd(a, sV, pWS, pWS+1, WS_V, SZ_QKV)
    make_srd(a, sQ, pWS, pWS+1, WS_Q, SZ_QK)
    make_srd(a, sO, pWS, pWS+1, WS_O, SZ_ACT)
    make_srd(a, sW1s, pW1, pW1+1, 0, 640*3456)
    def zero_regs():
        for i in range(32): a(f"v_mov_b32 v{vO+i}, 0")
        for i in range(4):
            a(f"v_mov_b32 v{vP+4+i}, 0")
            a(f"v_mov_b32 v{vV+12+i}, 0")
    zero_regs()
    a(f"v_and_b32 v{vT+11}, 7, v0")
    a(f"v_lshlrev_b32 v{vT+11}, 7, v{vT+11}")
    a(f"v_add_u32 v{vT+11}, {WS_CNT + C_RPS*128}, v{vT+11}")
    a(f"v_mov_b32 v{vT+10}, 0")
    a("s_barrier")
    a(f"""
    v_mov_b32 v4, {ROLE}
    ds_read_b96 v[6:8], v4
    s_waitcnt lgkmcnt(0)
    v_readfirstlane_b32 s{sX}, v6
    v_readfirstlane_b32 s{sRk}, v7
    v_readfirstlane_b32 s{sLoc}, v8
    s_and_b32 s{sT0}, s2, 7
    s_lshr_b32 s{sT1}, s2, 3
    s_cmp_eq_u32 s{sLoc}, 0
    s_cselect_b32 s{sX}, s{sT0}, s{sX}
    s_cselect_b32 s{sRk}, s{sT1}, s{sRk}
    s_mov_b32 s{sHead}, s{sRk}
    s_mov_b32 s{sQb}, s{sX}
    s_lshl_b32 s{sQt}, s{sQb}, 3
    s_and_b32 s{sE}, s{sHead}, 1
    """)
    def reinit():
        a(f"""
        s_lshl_b32 s{sT0}, s{sE}, 9
        s_mul_i32 s{sT1}, s{sKh}, {4*KT}
        s_add_u32 s{sT0}, s{sT0}, s{sT1}
        v_add_u32 v{vA3[0][0]}, s{sT0}, v{vL16}
        s_sub_u32 s{sT0}, 1, s{sE}
        s_lshl_b32 s{sT0}, s{sT0}, 10
        s_lshl_b32 s{sT2}, s{sE}, 3
        s_add_u32 s{sT0}, s{sT0}, s{sT2}
        s_add_u32 s{sT0}, s{sT0}, s{sT1}
        v_and_b32 v{vT}, 31, v0
        v_lshlrev_b32 v{vA3[0][1]}, 4, v{vT}
        v_add_u32 v{vA3[0][1]}, s{sT0}, v{vA3[0][1]}
        s_lshl_b32 s{sT0}, s{sKh}, 13
        s_add_u32 s{sT0}, s{sT0}, {VOFF}
        v_add_u32 v{vA3[0][2]}, s{sT0}, v{vL16}
        s_mov_b32 s{sSlotN}, {2*SLOT}
        s_lshr_b32 s{sT0}, s{sHead}, 1
        s_mul_i32 s{sT0}, s{sT0}, 163840
        s_mul_i32 s{sT1}, s{sWV}, 2560
        s_add_u32 s{sKoff}, s{sT0}, s{sT1}
        s_lshl_b32 s{sT1}, s{sE}, 10
        s_add_u32 s{sKoff}, s{sKoff}, s{sT1}
        s_mul_i32 s{sT0}, s{sHead}, 81920
        s_mul_i32 s{sT1}, s{sWV}, 1280
        s_add_u32 s{sVoff}, s{sT0}, s{sT1}
        s_mov_b32 s{sSlotW}, 0
        """)
        for k in range(3):
            a(f"v_add_u32 v{vA3[1][k]}, {SLOT}, v{vA3[0][k]}")
            a(f"v_add_u32 v{vA3[2][k]}, {2*SLOT}, v{vA3[0][k]}")
    reinit()
    a(f"""
    s_lshl_b32 s{sT0}, s{sQg}, 1
    s_add_u32 s{sQt}, s{sQt}, s{sT0}
    v_lshlrev_b32 v{vT+13}, 4, v{vT}
    s_lshl_b32 s{sT1}, s{sE}, 3
    s_add_u32 s{sT1}, s{sT1}, 1024
    v_add_u32 v{vT+13}, s{sT1}, v{vT+13}
    v_mov_b32 v{vT+9}, 0x7fffff00
    """)
    a(f"""
    v_cmp_gt_u32 vcc, 32, v0
    s_mul_i32 s{sT1}, s{sE}, 1536
    v_cndmask_b32 v{vT+13}, v{vT+9}, v{vT+13}, vcc
    v_add_u32 v{vT+12}, s{sT1}, v{vL16}
    """)
    lw = a.newlabel("attw")
    a(f"""
    s_cmp_eq_u32 s{sWV}, 0
    s_cbranch_scc0 {lw}
    s_mul_i32 s{sT0}, s{sHead}, 20
    s_lshr_b32 s{sT1}, s{sT0}, 7
    s_add_u32 s{sT0}, s{sT0}, 19
    s_lshr_b32 s{sT0}, s{sT0}, 7
    v_and_b32 v{vT+3}, 1, v0
    v_mov_b32 v{vT+4}, s{sT1}
    v_mov_b32 v{vT+5}, s{sT0}
    v_cmp_eq_u32 vcc, 1, v{vT+3}
    v_lshrrev_b32 v{vT+6}, 1, v0
    v_mul_u32_u24 v{vT+6}, 5, v{vT+6}
    v_cndmask_b32 v{vT+4}, v{vT+4}, v{vT+5}, vcc
    v_add_u32 v{vT+4}, v{vT+4}, v{vT+6}
    v_add_u32 v{vT+4}, {C_QKV}, v{vT+4}
    v_lshlrev_b32 v{vT+4}, 7, v{vT+4}
    v_add_u32 v{vT+4}, {WS_CNT}, v{vT+4}
    v_mov_b32 v{vT+5}, 16
    """)
    stx(a, 'a_p0')
    poll(a, vT + 4, vT + 5, 6, vT + 6, slp=int(E('QSLP', '1')))
    a.label(lw)
    stx(a, 'a_pre')
    a("s_waitcnt lgkmcnt(0)")
    a("s_barrier")
    st(a, 5)
    def rpa():
        a("s_and_b32 s76, s2, 7")
        a(f"s_add_u32 s76, s76, {C_RPS}")
        arrive(a, 76, vT + 4)
    KVF = E('KVF', '')
    def dma_kpart():
        a(f"""
        s_mul_i32 s{sT0}, s{sWV}, {KT}
        s_add_u32 m0, s{sSlotW}, s{sT0}
        s_nop 0
        buffer_load_dwordx4 v{vL16}, s[{sK}:{sK+3}], s{sKoff} offen {KVF} lds
        s_mov_b32 exec_hi, 0
        buffer_load_dwordx4 v{vL16}, s[{sK}:{sK+3}], s{sKoff} offen offset:1024 {KVF} lds
        s_mov_b32 exec_hi, -1
        s_add_u32 s{sKoff}, s{sKoff}, {8*2560}
        """)
    def dma_vpart():
        a(f"""
        s_lshl_b32 s{sT1}, s{sWV}, 11
        s_add_u32 s{sT1}, s{sT1}, s{sSlotW}
        s_add_u32 m0, s{sT1}, {VOFF}
        s_mov_b64 exec, s[{sVmask}:{sVmask+1}]
        buffer_load_dwordx4 v{vVoff}, s[{sV}:{sV+3}], s{sVoff} offen {KVF} lds
        s_add_u32 m0, m0, 1024
        s_add_u32 s{sT1}, s{sVoff}, 640
        buffer_load_dwordx4 v{vVoff}, s[{sV}:{sV+3}], s{sT1} offen {KVF} lds
        s_mov_b64 exec, -1
        s_add_u32 s{sVoff}, s{sVoff}, 10240
        s_add_u32 s{sSlotW}, s{sSlotW}, {SLOT}
        s_cmp_ge_u32 s{sSlotW}, {NSLOT*SLOT}
        s_cselect_b32 s{sSlotW}, 0, s{sSlotW}
        """)
    def dma_chunk():
        dma_kpart(); dma_vpart()
    dma_kpart()
    a(f"s_lshr_b32 s{sT0}, s{sHead}, 1")
    a(f"s_mul_i32 s{sT0}, s{sT0}, 163840")
    for s in range(2):
        a(f"""
        s_xor_b32 s{sT1}, s{sKh}, {s}
        s_add_u32 s{sT1}, s{sT1}, s{sQt}
        s_mul_i32 s{sT1}, s{sT1}, 2560
        s_add_u32 s{sT1}, s{sT1}, s{sT0}
        buffer_load_dwordx4 {vr(vQ+4*s,4)}, v{vT+12}, s[{sQ}:{sQ+3}], s{sT1} offen
        buffer_load_dwordx2 {vr(vQr+2*s,2)}, v{vT+13}, s[{sQ}:{sQ+3}], s{sT1} offen
        """)
    dma_vpart()
    a(f"s_branch L_{name}_start")
    a.label(f"L_{name}_restart")
    zero_regs()
    reinit()
    dma_chunk()
    a.label(f"L_{name}_start")
    vKc, vKrc, vVc = vA3[0]
    a(f"""
    s_waitcnt vmcnt(2)
    """)
    stx(a, 'a_c0')
    a("s_barrier")
    a(f"""
    s_cmp_eq_u32 s{sPass}, 0
    s_cbranch_scc0 L_{name}_haveC
    s_mul_i32 s{sT1}, s{sKh}, {4*KT}
    v_subrev_u32 v{vT+1}, s{sT1}, v{vKc}
    v_subrev_u32 v{vT+2}, s{sT1}, v{vKrc}
    ds_read_b128 {vr(vKb,4)}, v{vT+1}
    ds_read_b64 {vr(vKr,2)}, v{vT+2}
    s_waitcnt lgkmcnt(0)
    """)
    for s in range(2):
        S = vS + 16*s
        a(f"v_mfma_f32_32x32x16_bf16 {vr(S,16)}, {vr(vKb,4)}, {vr(vQ+4*s,4)}, 0")
    for s in range(2):
        S = vS + 16*s
        a(f"v_mfma_f32_32x32x8_bf16 {vr(S,16)}, {vr(vKr,2)}, {vr(vQr+2*s,2)}, {vr(S,16)}")
    a(f"""
    ds_read_b128 {vr(vKb,4)}, v{vKc}
    ds_read2st64_b64 {vr(vKr,4)}, v{vKrc} offset0:0 offset1:3
    s_nop 13
    """)
    for s in range(2):
        S = vS + 16*s
        T_ = vT + 2*s
        a(f"v_max3_f32 v{T_}, v{S}, v{S+1}, v{S+2}")
        for i in range(3, 15, 2):
            a(f"v_max3_f32 v{T_}, v{T_}, v{S+i}, v{S+i+1}")
        a(f"v_max_f32 v{T_}, v{T_}, v{S+15}")
    a(f"""
    v_mov_b32 v{vT+1}, v{vT}
    v_mov_b32 v{vT+3}, v{vT+2}
    s_nop 1
    v_permlane32_swap_b32 v{vT}, v{vT+1}
    v_permlane32_swap_b32 v{vT+2}, v{vT+3}
    s_nop 1
    v_max_f32 v{vT}, v{vT}, v{vT+1}
    v_max_f32 v{vT+2}, v{vT+2}, v{vT+3}
    v_sub_f32 v{vNC}, 0, v{vT}
    v_sub_f32 v{vNC+16}, 0, v{vT+2}
    """)
    for i in range(1, 16):
        a(f"v_mov_b32 v{vNC+i}, v{vNC}")
        a(f"v_mov_b32 v{vNC+16+i}, v{vNC+16}")
    a(f"s_branch L_{name}_haveC2")
    a.label(f"L_{name}_haveC")
    a(f"""
    ds_read_b128 {vr(vKb,4)}, v{vKc}
    ds_read2st64_b64 {vr(vKr,4)}, v{vKrc} offset0:0 offset1:3
    """)
    a.label(f"L_{name}_haveC2")
    a(f"""
    s_waitcnt lgkmcnt(0)
    v_mfma_f32_32x32x16_bf16 {vr(vS,16)}, {vr(vKb,4)}, {vr(vQ,4)}, {vr(vNC,16)}
    v_mfma_f32_32x32x8_bf16 {vr(vS,16)}, {vr(vKr,2)}, {vr(vQr,2)}, {vr(vS,16)}
    s_waitcnt vmcnt(0)
    s_barrier
    ds_read_b128 {vr(vV,4)}, v{vVc}
    ds_read_b128 {vr(vV+4,4)}, v{vVc} offset:1024
    """)
    dma_chunk()
    a(f"""
    s_mov_b32 s{sChunk}, 0
    s_waitcnt lgkmcnt(0)
    """)
    st(a, 6)
    a(f"""
    s_cmp_eq_u32 s{sKh}, 0
    s_cselect_b32 s36, 7, 0
    s_cselect_b32 s37, 0, 7
    """)
    ool = []
    def rare(mask, fn, tag):
        l, b = a.newlabel(tag), a.newlabel(tag + "b")
        a(f"s_bitcmp1_b32 {mask:#x}, s{sChunk}")
        a(f"s_cbranch_scc1 {l}")
        a.label(b)
        ool.append((l, b, fn))
    def common_(mask, fn, tag):
        l = a.newlabel(tag)
        a(f"s_bitcmp1_b32 {mask if isinstance(mask, str) else hex(mask)}, s{sChunk}")
        a(f"s_cbranch_scc0 {l}")
        fn()
        a.label(l)
    def pf_A(half, which='w1'):
        if which == 'w1':
            a(f"""
            v_lshlrev_b32 v{vT+12}, 7, v0
            s_mul_i32 s{sT0}, s{sRk}, 69120
            s_lshl_b32 s{sT1}, s{sWV}, 13
            s_add_u32 s{sT0}, s{sT0}, s{sT1}
            s_mov_b32 exec_lo, {-1 if half == 0 else 0}
            s_mov_b32 exec_hi, {0 if half == 0 else -1}
            buffer_load_dword v{vT+13}, v{vT+12}, s[{sW1s}:{sW1s+3}], s{sT0} offen sc1
            s_mov_b64 exec, -1
            """)
        else:
            a(f"""
            v_lshlrev_b32 v{vT+12}, 7, v0
            s_mul_i32 s{sT0}, s{sRk}, {SZ_W2P // 32}
            s_lshl_b32 s{sT1}, s{sWV}, 13
            s_add_u32 s{sT0}, s{sT0}, s{sT1}
            s_add_u32 s{sT0}, s{sT0}, {WS_W2P}
            s_mov_b32 exec_lo, {-1 if half == 0 else 0}
            s_mov_b32 exec_hi, {0 if half == 0 else -1}
            buffer_load_dword v{vT+13}, v{vT+12}, s[{sWS}:{sWS+3}], s{sT0} offen sc1
            s_mov_b64 exec, -1
            """)
    def pf_B():
        l5, l4, le = a.newlabel("pf5"), a.newlabel("pf4"), a.newlabel("pfe")
        a(f"""
        v_lshlrev_b32 v{vT+12}, 7, v0
        s_cmp_ge_u32 s{sWV}, 5
        s_cbranch_scc1 {l5}
        s_cmp_eq_u32 s{sWV}, 4
        s_cbranch_scc1 {l4}
        s_mul_i32 s{sT0}, s{sRk}, {SZ_WOP // 32}
        s_lshl_b32 s{sT1}, s{sWV}, 13
        s_add_u32 s{sT0}, s{sT0}, s{sT1}
        s_add_u32 s{sT0}, s{sT0}, {WS_WOP}
        buffer_load_dword v{vT+13}, v{vT+12}, s[{sWS}:{sWS+3}], s{sT0} offen sc1
        s_branch {le}
        """)
        a.label(l4)
        a(f"""
        s_mul_i32 s{sT0}, s{sRk}, 69120
        s_add_u32 s{sT0}, s{sT0}, 65536
        s_mov_b32 exec_hi, 0
        buffer_load_dword v{vT+13}, v{vT+12}, s[{sW1s}:{sW1s+3}], s{sT0} offen sc1
        s_mov_b32 exec_hi, -1
        s_branch {le}
        """)
        a.label(l5)
        a(f"""
        s_sub_u32 s{sT1}, s{sWV}, 5
        s_lshl_b32 s{sT1}, s{sT1}, 5
        s_mul_i32 s{sT0}, s{sRk}, 80
        s_add_u32 s{sT0}, s{sT0}, s{sT1}
        v_and_b32 v{vT+8}, 31, v0
        v_add_u32 v{vT+8}, s{sT0}, v{vT+8}
        v_lshrrev_b32 v{vT+9}, 5, v{vT+8}
        v_lshlrev_b32 v{vT+9}, 15, v{vT+9}
        v_and_b32 v{vT+8}, 31, v{vT+8}
        v_lshlrev_b32 v{vT+8}, 7, v{vT+8}
        v_add_u32 v{vT+8}, v{vT+8}, v{vT+9}
        s_lshl_b32 s{sT0}, s{sX}, 12
        s_mov_b32 exec_hi, 0
        buffer_load_dword v{vT+13}, v{vT+8}, s[{sO}:{sO+3}], s{sT0} offen sc1
        s_mov_b32 exec_hi, -1
        """)
        a.label(le)
    def rp_issue():
        a("s_mov_b64 exec, 0xff")
        a(f"buffer_load_dword v{vT+10}, v{vT+11}, s[{sWS}:{sWS+3}], 0 offen sc1")
        a("s_mov_b64 exec, -1")
    def rp_check():
        ok = a.newlabel("rpok")
        a("s_mov_b64 exec, 0xff")
        a(f"v_cmp_gt_u32 vcc, 32, v{vT+10}")
        a("s_nop 4")
        a("s_cmp_eq_u64 vcc, 0")
        a(f"s_cbranch_scc1 {ok}")
        a(f"v_mov_b32 v{vT+9}, 32")
        poll(a, vT + 11, vT + 9, 8, vT + 10)
        a.label(ok)
        a("s_mov_b64 exec, -1")
    def rp_load():
        le = a.newlabel("rle")
        a(f"s_cmp_eq_u32 s{sPass}, 0")
        a(f"s_cbranch_scc0 {le}")
        a(f"s_cmp_ge_u32 s{sWV}, 4")
        a(f"s_cbranch_scc0 {le}")
        for r in range(3):
            la, lb = a.newlabel("rla"), a.newlabel("rlb")
            a(f"v_accvgpr_read_b32 v{vT+4}, a{43+2*r}")
            a(f"v_accvgpr_read_b32 v{vT+5}, a{44+2*r}")
            a(f"v_accvgpr_read_b32 v{vT+6}, a{49+r}")
            make_srd(a, 16, pWO, pWO+1, 0, 640*1280)
            a(f"""
            v_cmp_gt_u32 vcc, 40, v{vT+6}
            s_nop 4
            s_mov_b64 s[76:77], vcc
            s_mov_b64 exec, vcc
            s_cbranch_execz {la}
            buffer_load_dwordx4 {ar(28+4*r,4)}, v{vT+4}, s[16:19], 0 offen
            {la}:
            """)
            make_srd(a, 16, pW2, pW2+1, 0, 1728*1280)
            a(f"""
            s_not_b64 exec, s[76:77]
            s_cbranch_execz {lb}
            buffer_load_dwordx4 {ar(28+4*r,4)}, v{vT+5}, s[16:19], 0 offen
            {lb}:
            s_mov_b64 exec, -1
            """)
        a(f"""
        s_mul_i32 s76, s2, 8640
        s_sub_u32 s77, s{sWV}, 4
        s_mul_i32 s77, s77, 2176
        s_add_u32 s76, s76, s77
        v_lshlrev_b32 v{vT+4}, 7, v0
        s_mov_b64 exec, 0x1ffff
        buffer_load_dword v{vT+5}, v{vT+4}, s[{sW1s}:{sW1s+3}], s76 offen sc1
        s_mov_b64 exec, -1
        """)
        a.label(le)
    def rp_store():
        le = a.newlabel("rse")
        a(f"s_cmp_eq_u32 s{sPass}, 0")
        a(f"s_cbranch_scc0 {le}")
        a(f"s_cmp_ge_u32 s{sWV}, 4")
        a(f"s_cbranch_scc0 {le}")
        for r in range(3): a(f"v_accvgpr_read_b32 v{vT+4+r}, a{40+r}")
        a(f"s_mov_b32 s76, {WS_WOP}")
        for r in range(3):
            a(f"buffer_store_dwordx4 {ar(28+4*r,4)}, v{vT+4+r}, s[{sWS}:{sWS+3}], s76 offen {SC}")
        a.label(le)
    def rp_arr():
        le = a.newlabel("rae")
        a(f"s_cmp_eq_u32 s{sPass}, 0")
        a(f"s_cbranch_scc0 {le}")
        wave_only(a, 4, rpa)
        a.label(le)
    def rp_post():
        l2, le = a.newlabel("rp2"), a.newlabel("rpe")
        a(f"s_cmp_eq_u32 s{sChunk}, 2")
        a(f"s_cbranch_scc0 {l2}")
        a(f"s_cmp_eq_u32 s{sPass}, 0")
        a(f"s_cbranch_scc0 {le}")
        wave_only(a, 4, rpa)
        a(f"s_branch {le}")
        a.label(l2)
        rp_check()
        a.label(le)
    if E('A_PRIO'):
        l = a.newlabel("prio")
        a(f"s_cmp_ge_u32 s{sWV}, 4")
        a(f"s_cbranch_scc0 {l}")
        a(f"s_setprio {E('A_PRIO')}")
        a.label(l)
    a(".p2align 6")
    a.label(f"L_{name}_loop")
    rd = (lambda x: None) if E('A_NORD') else a
    for u in range(16):
        p = u & 1
        t = u >> 1
        D1 = int(E('A_D1', '6'))
        def common_else(mask, fn, fn_else, tag):
            l, b = a.newlabel(tag), a.newlabel(tag + "b")
            a(f"s_bitcmp1_b32 {mask:#x}, s{sChunk}")
            a(f"s_cbranch_scc0 {l}")
            fn()
            a.label(b)
            ool.append((l, b, fn_else))
        def by_pair(d):
            def f():
                le = a.newlabel("bpe")
                for k, fn in d.items():
                    ln = a.newlabel("bpn")
                    a(f"s_cmp_eq_u32 s{sChunk}, {k}")
                    a(f"s_cbranch_scc0 {ln}")
                    fn()
                    a(f"s_branch {le}")
                    a.label(ln)
                a.label(le)
            return f
        if u == 0: common_else(0b0111, dma_chunk, lambda: pf_A(0), "d0")
        if u == 6:
            rare(0b0101, by_pair({0: lambda: (a("s_waitcnt vmcnt(4)"), a("s_barrier")), 2: rp_store}), "c1")
            common_else(0b0111, dma_chunk, lambda: pf_A(1), "d1")
        if u == 10: rare(0b1000, pf_B, "pc")
        if u == 14:
            rare(0b1000, rp_issue, "rpi")
            a("s_waitcnt vmcnt(0)")
            a("s_barrier")
            rare(0b1101, by_pair({0: rp_load, 2: rp_arr, 3: rp_check}), "rpc")
        tn = t + 1
        A = vA3[tn // 4]
        if p == 0:
            rd(f"ds_read_b128 {vr(vKb + 4*(tn&1),4)}, v{A[0]} offset:{(tn%4)*KT}")
            if tn % 2 == 0:
                pb = (tn // 2) & 1
                rd(f"ds_read2st64_b64 {vr(vKr + 4*pb,4)}, v{A[1]} offset0:{(tn%4)*3} offset1:{(tn%4)*3+3}")
            rd(f"ds_read_b128 {vr(vV + 8*(tn&1),4)}, v{A[2]} offset:{(tn%4)*2048}")
        else:
            rd("s_waitcnt lgkmcnt(0)")
        un = u + 1
        tq = un >> 1
        qs = un & 1
        Sc, Sn = vS + 16*p, vS + 16*(p^1)
        kbuf = vKb + 4*(tq & 1)
        krbuf = vKr + 4*((tq // 2) & 1) + 2*(tq & 1)
        ex = lambda r: a(f"v_exp_f32 v{Sc+r}, v{Sc+r}")
        cv = lambda r: a(f"v_cvt_pk_bf16_f32 v{vP+r}, v{Sc+2*r}, v{Sc+2*r+1}")
        a(f"v_mfma_f32_32x32x16_bf16 {vr(Sn,16)}, {vr(kbuf,4)}, {vr(vQ+4*qs,4)}, {vr(vNC+16*qs,16)}")
        for r in range(4): ex(r)
        tp = (u - 1) >> 1 if u > 0 else -1
        Op = vO + 16*((u - 1) & 1)
        a(f"v_mfma_f32_32x32x16_bf16 {vr(Op,16)}, {vr(vV + 8*(tp & 1) + 4,4)}, {vr(vP+4,4)}, {vr(Op,16)}")
        if p == 0:
            rd(f"ds_read_b128 {vr(vV + 8*(tn&1) + 4,4)}, v{A[2]} offset:{(tn%4)*2048 + 1024}")
        for r in range(4, 8): ex(r)
        cv(0); cv(1)
        a(f"v_mfma_f32_32x32x8_bf16 {vr(Sn,16)}, {vr(krbuf,2)}, {vr(vQr+2*qs,2)}, {vr(Sn,16)}")
        cv(2); cv(3)
        for r in range(8, 12): ex(r)
        Oc = vO + 16*p
        a(f"v_mfma_f32_32x32x16_bf16 {vr(Oc,16)}, {vr(vV + 8*(t & 1),4)}, {vr(vP,4)}, {vr(Oc,16)}")
        for r in range(12, 16): ex(r)
        if u == 15:
            a(f"""
            s_add_u32 s{sT0}, s{sSlotN}, {SLOT}
            s_cmp_ge_u32 s{sT0}, {NSLOT*SLOT}
            s_cselect_b32 s{sT1}, {NSLOT*SLOT}, 0
            s_sub_u32 s{sT0}, s{sT0}, s{sT1}
            s_sub_u32 s{sT1}, s{sT0}, s{sSlotN}
            s_add_u32 s{sT2}, s{sT0}, {SLOT}
            s_cmp_ge_u32 s{sT2}, {NSLOT*SLOT}
            s_cselect_b32 s{sT0}, {NSLOT*SLOT}, 0
            s_sub_u32 s{sT2}, s{sT2}, s{sT0}
            s_sub_u32 s{sT0}, s{sT2}, s{sSlotN}
            s_mov_b32 s{sSlotN}, s{sT2}
            """)
            for k in range(3):
                a(f"v_mov_b32 v{vA3[0][k]}, v{vA3[2][k]}")
                a(f"v_add_u32 v{vA3[1][k]}, s{sT1}, v{vA3[2][k]}")
                a(f"v_add_u32 v{vA3[2][k]}, s{sT0}, v{vA3[2][k]}")
        for r in range(4, 8): cv(r)
    a(f"""
    s_add_u32 s{sChunk}, s{sChunk}, 1
    s_cmp_lt_u32 s{sChunk}, 4
    s_cbranch_scc1 L_{name}_loop
    s_waitcnt lgkmcnt(0)
    """)
    a(f"v_mfma_f32_32x32x16_bf16 {vr(vO+16,16)}, {vr(vV + 8 + 4,4)}, {vr(vP+4,4)}, {vr(vO+16,16)}")
    st(a, 7)
    a(f"s_branch L_{name}_post")
    for l, b, fn in ool:
        a.label(l)
        fn()
        a(f"s_branch {b}")
    a.label(f"L_{name}_post")
    a(f"""
    s_barrier
    s_lshl_b32 s{sT0}, s{sQg}, 1
    s_add_u32 s{sT1}, s{sT0}, s{sKh}
    s_lshr_b32 s{sT2}, s{sT1}, 2
    s_mul_i32 s{sT2}, s{sT2}, {SLOT}
    s_and_b32 s{sT1}, s{sT1}, 3
    s_mul_i32 s{sT1}, s{sT1}, 3072
    s_add_u32 s{sT1}, s{sT1}, s{sT2}
    v_add_u32 v{vT}, s{sT1}, v{vL16}
    s_xor_b32 s{sT1}, s{sKh}, 1
    s_add_u32 s{sT1}, s{sT1}, s{sT0}
    s_lshr_b32 s{sT2}, s{sT1}, 2
    s_mul_i32 s{sT2}, s{sT2}, {SLOT}
    s_and_b32 s{sT1}, s{sT1}, 3
    s_mul_i32 s{sT1}, s{sT1}, 3072
    s_add_u32 s{sT1}, s{sT1}, s{sT2}
    v_add_u32 v{vT+1}, s{sT1}, v{vL16}
    s_nop 7
    """)
    stx(a, 'a_bar1')
    for i in range(3):
        a(f"ds_write_b128 v{vT}, {vr(vO+16+4*i,4)} offset:{i*1024}")
    a("s_waitcnt lgkmcnt(0)")
    a("s_barrier")
    stx(a, 'a_bar2')
    for i in range(3):
        a(f"ds_read_b128 {vr(vS+4*i,4)}, v{vT+1} offset:{i*1024}")
    a("s_waitcnt lgkmcnt(0)")
    for r in range(12):
        a(f"v_add_f32 v{vO+r}, v{vO+r}, v{vS+r}")
    a(f"v_mov_b32 v{vT}, 0")
    for r in range(12):
        a(f"v_fma_f32 v{vT}, v{vO+r}, 0, v{vT}")
    a(f"""
    s_cmp_eq_u32 s{sPass}, 0
    s_cbranch_scc0 L_{name}_store2
    v_cmp_u_f32 vcc, v{vT}, v{vT}
    s_nop 4
    s_cmp_eq_u64 vcc, 0
    s_cbranch_scc1 L_{name}_store2
    v_mov_b32 v{vT+1}, {FLAG}
    v_mov_b32 v{vT+2}, 1
    ds_write_b32 v{vT+1}, v{vT+2}
    s_branch L_{name}_store2
    L_{name}_redo:
    s_mov_b32 s{sPass}, 1
    v_mov_b32 v{vT}, 0xff800000
    v_mov_b32 v{vT+1}, 0xff800000
    s_lshr_b32 s{sT0}, s{sHead}, 1
    s_mul_i32 s{sT0}, s{sT0}, 163840
    s_mov_b32 s{sT1}, 0
    v_and_b32 v{vT+2}, 31, v0
    v_lshlrev_b32 v{vT+2}, 4, v{vT+2}
    s_lshl_b32 s{sT2}, s{sE}, 3
    s_add_u32 s{sT2}, s{sT2}, 1024
    v_add_u32 v{vT+2}, s{sT2}, v{vT+2}
    s_mul_i32 s{sT2}, s{sE}, 1536
    v_add_u32 v{vT+3}, s{sT2}, v{vL16}
    L_{name}_maxloop:
    buffer_load_dwordx4 {vr(vKb,4)}, v{vT+3}, s[{sK}:{sK+3}], s{sT0} offen
    buffer_load_dwordx2 {vr(vKr,2)}, v{vT+2}, s[{sK}:{sK+3}], s{sT0} offen
    s_waitcnt vmcnt(0)
    """)
    for s in range(2):
        S = vS + 16*s
        a(f"v_mfma_f32_32x32x16_bf16 {vr(S,16)}, {vr(vKb,4)}, {vr(vQ+4*s,4)}, 0")
        a(f"v_mfma_f32_32x32x8_bf16 {vr(S,16)}, {vr(vKr,2)}, {vr(vQr+2*s,2)}, {vr(S,16)}")
    a("s_nop 15")
    for s in range(2):
        for i in range(0, 16, 2):
            a(f"v_max3_f32 v{vT+s}, v{vT+s}, v{vS+16*s+i}, v{vS+16*s+i+1}")
    a(f"""
    s_add_u32 s{sT0}, s{sT0}, 2560
    s_add_u32 s{sT1}, s{sT1}, 1
    s_cmp_lt_u32 s{sT1}, 64
    s_cbranch_scc1 L_{name}_maxloop
    """)
    for s in range(2):
        a(f"""
        v_mov_b32 v{vT+2}, v{vT+s}
        s_nop 1
        v_permlane32_swap_b32 v{vT+s}, v{vT+2}
        s_nop 1
        v_max_f32 v{vT+2}, v{vT+s}, v{vT+2}
        v_sub_f32 v{vNC+16*s}, 0, v{vT+2}
        """)
        for i in range(1, 16):
            a(f"v_mov_b32 v{vNC+16*s+i}, v{vNC+16*s}")
    a("s_barrier")
    a(f"s_branch L_{name}_restart")
    a.label(f"L_{name}_store2")
    stx(a, 'a_vote')
    a(f"""
    v_mov_b32 v{vT}, v{vO+8}
    v_mov_b32 v{vT+1}, v{vO+8}
    s_nop 1
    v_permlane32_swap_b32 v{vT}, v{vT+1}
    s_nop 1
    v_rcp_f32 v{vT+1}, v{vT+1}
    v_lshrrev_b32 v{vT+2}, 5, v0
    v_and_b32 v{vT+3}, 31, v0
    s_add_u32 s{sT0}, s{sQt}, s{sKh}
    s_lshl_b32 s{sT0}, s{sT0}, 5
    v_add_u32 v{vT+3}, s{sT0}, v{vT+3}
    v_lshlrev_b32 v{vT+3}, 4, v{vT+3}
    s_mul_i32 s{sT0}, s{sHead}, 5
    v_add_u32 v{vT+2}, s{sT0}, v{vT+2}
    """)
    for r in range(12):
        a(f"v_mul_f32 v{vO+r}, v{vO+r}, v{vT+1}")
    for q in range(3):
        a(f"""
        v_add_u32 v{vT+4}, {2*q}, v{vT+2}
        v_lshrrev_b32 v{vT+5}, 1, v{vT+4}
        v_lshlrev_b32 v{vT+5}, 15, v{vT+5}
        v_and_b32 v{vT+4}, 1, v{vT+4}
        v_lshlrev_b32 v{vT+4}, 3, v{vT+4}
        v_add3_u32 v{vT+4}, v{vT+4}, v{vT+5}, v{vT+3}
        v_cvt_pk_bf16_f32 v{vT+6}, v{vO+4*q}, v{vO+4*q+1}
        v_cvt_pk_bf16_f32 v{vT+7}, v{vO+4*q+2}, v{vO+4*q+3}
        """)
        if q == 2: a("s_mov_b32 exec_hi, 0")
        dual(a, [f"buffer_store_dwordx2 {vr(vT+6,2)}, v{vT+4}, s[{sO}:{sO+3}], 0 offen @SC"])
    a("s_mov_b64 exec, -1")
    stx(a, 'a_stores')
    a(f"""
    s_waitcnt vmcnt(0) lgkmcnt(0)
    s_barrier
    v_mov_b32 v{vT+1}, {FLAG}
    ds_read_b32 v{vT+2}, v{vT+1}
    s_waitcnt lgkmcnt(0)
    v_readfirstlane_b32 s{sT0}, v{vT+2}
    s_cmp_eq_u32 s{sPass}, 0
    s_cselect_b32 s{sT0}, s{sT0}, 0
    s_cmp_lg_u32 s{sT0}, 0
    s_cbranch_scc1 L_{name}_redo
    """)
    a(f"s_add_u32 s76, s{sQb}, {C_ATT}")

def gemm_phase_prologue_loader(a, core, q, dep_idx_sgpr, dep_target, nW, pre_issued):
    pass

LANDED = [True]
def reg_step1(a, vd):
    a("s_mov_b64 exec, 7")
    a(f"buffer_load_dword v{vd}, v{vd+1}, s[44:47], 0 offen sc1")
    a("s_mov_b64 exec, -1")
def reg_step2(a, vd):
    dbg_flag_wait(a, vd, landed=LANDED[0])
    a(f"""
    s_getreg_b32 s{sX}, hwreg(HW_REG_XCC_ID)
    s_and_b32 s{sX}, s{sX}, 7
    s_add_u32 s76, s{sX}, {C_RK}
    s_lshl_b32 s76, s76, 7
    s_add_u32 s76, s76, {WS_CNT}
    v_mov_b32 v{vd-1}, s76
    v_accvgpr_write_b32 a0, 1
    s_mov_b64 exec, 1
    s_nop 1
    buffer_atomic_add a0, v{vd-1}, s[{sWS}:{sWS+3}], 0 offen sc0
    s_mov_b64 exec, -1
    """)
def reg_step3(a, vd):
    l1, l2 = a.newlabel("r3a"), a.newlabel("r3b")
    if not LANDED[0]: a("s_waitcnt vmcnt(0)")
    a(f"""
    v_accvgpr_read_b32 v{vd-1}, a0
    s_nop 1
    v_readfirstlane_b32 s{sRk}, v{vd-1}
    s_cmp_eq_u32 s{sRk}, 31
    s_cbranch_scc0 {l1}
    v_mov_b32 v{vd-1}, 4
    v_mov_b32 v{vd-2}, 1
    s_mov_b64 exec, 1
    buffer_atomic_add v{vd-2}, v{vd-1}, s[44:47], 0 offen sc1
    s_mov_b64 exec, -1
    """)
    a.label(l1)
    a(f"""
    s_cmp_ge_u32 s{sRk}, 32
    s_cbranch_scc0 {l2}
    v_mov_b32 v{vd-1}, 8
    v_mov_b32 v{vd-2}, 1
    s_mov_b64 exec, 1
    buffer_store_dword v{vd-2}, v{vd-1}, s[44:47], 0 offen sc1
    s_mov_b64 exec, -1
    """)
    a.label(l2)
    a("s_mov_b64 exec, 7")
    a(f"buffer_load_dword v{vd}, v{vd+1}, s[44:47], 0 offen sc1")
    a("s_mov_b64 exec, -1")
def register_publish(a, vd):
    l0, l1 = a.newlabel("rp"), a.newlabel("rpok")
    a(f"s_mov_b32 s{sPoll}, 0")
    a.label(l0)
    a(f"""
    s_waitcnt vmcnt(0)
    v_readlane_b32 s39, v{vd}, 1
    v_readlane_b32 s40, v{vd}, 2
    s_cmp_eq_u32 s39, 8
    s_cselect_b32 s38, 1, 0
    s_cmp_lg_u32 s40, 0
    s_cselect_b32 s38, 0, s38
    s_cbranch_scc1 {l1}
    s_cmp_eq_u32 s38, 1
    s_cbranch_scc1 {l1}
    s_add_u32 s{sPoll}, s{sPoll}, 1
    s_cmp_gt_u32 s{sPoll}, {POLL_MAX}
    s_cbranch_scc1 {l1}
    s_sleep 1
    s_mov_b64 exec, 7
    buffer_load_dword v{vd}, v{vd+1}, s[44:47], 0 offen sc1
    s_mov_b64 exec, -1
    s_branch {l0}
    """)
    a.label(l1)
    if E('FORCE_SLOW'): a("s_mov_b32 s38, 0")
    a(f"""
    v_mov_b32 v{vd-6}, s{sX}
    v_mov_b32 v{vd-4}, s38
    v_mov_b32 v{vd-5}, s{sRk}
    v_mov_b32 v{vd-7}, {ROLE}
    ds_write_b96 v{vd-7}, v[{vd-6}:{vd-4}]
    s_waitcnt lgkmcnt(0)
    """)
def wave_only(a, w, fn):
    l = a.newlabel("wo")
    a(f"s_cmp_eq_u32 s{sWV}, {w}")
    a(f"s_cbranch_scc0 {l}")
    fn()
    a.label(l)
def code_prefetch(a):
    a(f"""
    s_getpc_b64 s[40:41]
    L_pcref:
    s_lshr_b32 s42, s2, 3
    s_lshl_b32 s42, s42, 11
    v_lshlrev_b32 v26, 7, v1
    v_add_u32 v26, s42, v26
    s_mov_b32 s43, L_exit-L_pcref
    v_cmp_gt_u32 vcc, s43, v26
    s_nop 4
    s_and_b32 vcc_lo, vcc_lo, 0xffff
    s_mov_b32 vcc_hi, 0
    s_mov_b64 exec, vcc
    s_cbranch_execz L_pcskip
    global_load_dword v31, v26, s[40:41]
    L_pcskip:
    s_mov_b64 exec, -1
    """)

def tlb_warm(a):
    G = int(E('TLBG', '21'))
    a(f"""
    s_lshr_b32 s75, s2, 3
    v_lshlrev_b32 v166, 5, v1
    v_add_u32 v166, s75, v166
    v_lshlrev_b32 v166, {G}, v166
    """)
    n_ws = -(-WS_END >> G)
    a(f"s_mov_b64 exec, {(1 << min(31, -(-n_ws // 32))) - 1:#x}")
    a(f"buffer_load_dword v167, v166, s[{sWS}:{sWS+3}], 0 offen sc1")
    a("s_mov_b64 exec, 3")
    for k, (pp, size) in enumerate(((pW1, 640*3456), (pW2, 1728*1280), (pWO, 640*1280), (pOUT, 2048*1280))):
        make_srd(a, 8, pp, pp+1, 0, size)
        a(f"buffer_load_dword v167, v166, s[8:11], 0 offen sc1")
    a("s_mov_b64 exec, -1")

CODE_KB = 64
def gen_mega():
    a = Asm()
    a(f"""
    s_cmp_ge_u32 s2, 256
    s_cbranch_scc1 L_exit
    s_load_dwordx8 s[84:91], s[0:1], 0
    s_load_dwordx8 s[92:99], s[0:1], 32
    s_load_dwordx2 s[78:79], s[0:1], 64
    """)
    st_rt(a, 0); st(a, 1)
    a(f"""
    v_lshrrev_b32 v2, 6, v0
    s_nop 0
    v_readfirstlane_b32 s{sWV}, v2
    """)
    lane_id(a, 1)
    if not E('NOPF'):
        l = a.newlabel("pf")
        a(f"s_cmp_eq_u32 s{sWV}, 1")
        a(f"s_cbranch_scc0 {l}")
        code_prefetch(a)
        a.label(l)
    a("s_waitcnt lgkmcnt(0)")
    make_srd(a, sWS, pWS, pWS+1, 0, WS_END)
    L = CoreL(a, 'qkv', 'q')
    L.map_tiles("L_repack")
    a(f"""
    s_cmp_ge_u32 s{sWV}, 4
    s_cbranch_scc0 L_q_compute
    """)
    L.loader_setup()
    st(a, 2)
    q = VmQ()
    for s_ in range(PD):
        L.issue_A(s_); q.push(f"A{s_}", 4)
        if not FS: stamp(a, 9 + 2*s_, base=SB)
        L.issue_W(s_); q.push(f"W{s_}", 4)
        if not FS: stamp(a, 10 + 2*s_, base=SB)
    st(a, 3)
    make_srd(a, 44, pDBG, pDBG+1, 0, 256)
    a("v_lshlrev_b32 v71, 2, v1")
    a("v_mov_b32 v70, 0")
    PL = P0L(a, L)
    if E('P0L'):
        PL.issue(); q.push('p0l', 5)
    L.p0l = PL
    RP = Repack(a)
    RP.issue(defer=True)
    RP.save()
    L.ldstamps = True
    L.loader_main(q)
    st(a, 8)
    a("s_waitcnt lgkmcnt(0)")
    a("s_barrier")
    attn_pad_init(a, 4, 4)
    a("s_barrier")
    wave_only(a, 7, lambda: register_publish(a, 70))
    a("s_branch L_attn")
    a.label("L_q_compute")
    L.compute_setup()
    make_srd(a, 44, pDBG, pDBG+1, 0, 256)
    a(f"v_lshlrev_b32 v{L.vSt+27}, 2, v1")
    a(f"v_mov_b32 v{L.vSt+26}, 0")
    a(f"""
    s_cmp_ge_u32 s{L.sNt}, 10
    s_cbranch_scc1 L_q_vpath
    """)
    L.addr_qk()
    L.mainloop(True, 2)
    st(a, 3)
    a("s_barrier")
    stx(a, 'q_e1')
    L.epilogue_Y('qk')
    a("s_branch L_q_done")
    a.label("L_q_vpath")
    L.addr_v()
    L.mainloop(False, 2)
    st(a, 3)
    a("s_barrier")
    stx(a, 'q_e1')
    L.epilogue_X()
    a.label("L_q_done")
    stx(a, 'q_epi')
    a(f"buffer_load_dword v{L.vSt+26}, v{L.vSt+27}, s[44:47], 0 offen sc1")
    a("s_waitcnt vmcnt(0)")
    stx(a, 'q_drain')
    a("s_barrier")
    stx(a, 'q_e2')
    a(f"s_cmp_eq_u32 s{sWV}, 0")
    a("s_cbranch_scc0 L_attn")
    dbg_flag_wait(a, L.vSt + 26, landed=True)
    a(f"s_add_u32 s40, s{L.sNt}, {C_QKV}")
    arrive(a, 40, 4)
    st(a, 4)
    a("s_branch L_attn")
    a.label("L_repack")
    l = a.newlabel("zc")
    a(f"""
    s_xor_b32 s40, s2, 225
    s_or_b32 s40, s40, s{sWV}
    s_cmp_eq_u32 s40, 0
    s_cbranch_scc0 {l}
    v_mov_b32 v4, 0
    v_mov_b32 v5, 0
    v_mov_b32 v6, 0
    v_mov_b32 v7, 0
    v_lshlrev_b32 v8, 4, v1
    s_mov_b32 s40, {WS_CNT}
    """)
    for j in range(SZ_CNT // 1024):
        a(f"buffer_store_dwordx4 v[4:7], v8, s[{sWS}:{sWS+3}], s40 offen {SC}")
        a("s_add_u32 s40, s40, 1024")
    make_srd(a, 8, pDBG, pDBG+1, 0, 256)
    a(f"""
    s_waitcnt vmcnt(0)
    v_mov_b32 v4, 1
    v_mov_b32 v5, 0
    s_mov_b64 exec, 1
    buffer_store_dword v4, v5, s[8:11], 0 offen sc1
    s_mov_b64 exec, -1
    """)
    a.label(l)
    make_srd(a, 44, pDBG, pDBG+1, 0, 256)
    a(f"v_lshlrev_b32 v71, 2, v1")
    a(f"v_mov_b32 v70, 0")
    a(f"""
    s_and_b32 s21, s2, 7
    s_lshr_b32 s21, s21, 1
    s_lshl_b32 s21, s21, 2
    s_lshr_b32 s22, s2, 3
    s_and_b32 s22, s22, 3
    s_add_u32 s21, s21, s22
    """)
    idle_rows(a, 21)
    a("s_waitcnt vmcnt(0)")
    a(f"buffer_load_dword v70, v71, s[44:47], 0 offen sc1")
    a("s_barrier")
    def st_arr():
        dbg_flag_wait(a, 70)
        a(f"s_add_u32 s76, s21, {C_ST}")
        arrive(a, 76, 64)
    wave_only(a, 0, st_arr)
    def regall():
        LANDED[0] = False
        reg_step1(a, 70); reg_step2(a, 70); reg_step3(a, 70); register_publish(a, 70)
    wave_only(a, 7, regall)
    l = a.newlabel("rpl")
    a(f"s_cmp_ge_u32 s{sWV}, 4")
    a(f"s_cbranch_scc0 {l}")
    RP2 = Repack(a)
    RP2.issue(defer=True)
    RP2.save()
    attn_pad_init(a, 4, 4)
    a.label(l)
    def fl():
        a(f"buffer_load_dword v70, v71, s[44:47], 0 offen sc1")
        dbg_flag_wait(a, 70)
    wave_only(a, 4, fl)
    a("s_barrier")
    a.label("L_attn")
    emit_attention(a, None)
    S = CoreS(a, 'oproj')
    lane_id(a, 1)
    S.map_tiles()
    a(f"""
    s_cmp_ge_u32 s{sWV}, 4
    s_cbranch_scc0 L_o_compute
    """)
    S.loader_setup()
    q = VmQ()
    for s_ in range(PD):
        S.issue_W(s_); q.push(f"W{s_}", 5)
    lw = a.newlabel("ow")
    a(f"s_cmp_eq_u32 s{sWV}, 4")
    a(f"s_cbranch_scc0 {lw}")
    a(f"s_add_u32 s40, s{sX}, {C_ATT}")
    poll_f(a, 40, 32, 8)
    a.label(lw)
    stx(a, 'o_poll')
    a("s_barrier")
    for s_ in range(PD):
        S.issue_A(s_); q.push(f"A{s_}", 4)
    S.loader_main(q)
    a("s_barrier")
    F1 = CoreL(a, 'ffn1', 'f')
    F1.map_tiles("L_o_ld_idle")
    F1.loader_setup()
    q = VmQ()
    a("s_barrier")
    for s_ in range(PD):
        F1.issue_W(s_); q.push(f"W{s_}", 4)
    a("s_branch L_f1_loader")
    a.label("L_o_ld_idle")
    a("s_barrier")
    a("s_branch L_f2_loader0")
    a.label("L_o_compute")
    lw = a.newlabel("oa")
    a(f"s_cmp_eq_u32 s{sWV}, 0")
    a(f"s_cbranch_scc0 {lw}")
    arrive_f(a, 76, sRk, 4)
    st(a, 8)
    a.label(lw)
    S.compute_setup()
    S.pretouch()
    S.residual_loads()
    a("s_barrier")
    st(a, 9)
    stx(a, 'o_X')
    S.mainloop(tag='o')
    stx(a, 'o_loop')
    S.reduce()
    stx(a, 'o_red')
    a("s_barrier")
    S.epilogue()
    stx(a, 'o_epi')
    a("s_waitcnt vmcnt(0)")
    stx(a, 'o_drain')
    a("s_barrier")
    stx(a, 'o_e2')
    lw = a.newlabel("oa2")
    a(f"s_cmp_eq_u32 s{sWV}, 0")
    a(f"s_cbranch_scc0 {lw}")
    a(f"s_lshr_b32 s40, s{S.sM0}, 7")
    a(f"s_add_u32 s40, s40, {C_OP}")
    a(f"s_lshr_b32 s41, s{S.sM0}, 6")
    a(f"s_and_b32 s41, s41, 1")
    a(f"s_lshl_b32 s41, s41, 3")
    a(f"s_add_u32 s41, s41, s{S.sNt}")
    arrive_f(a, 40, 41, 4)
    st(a, 10)
    a.label(lw)
    lane_id(a, 1)
    F1.map_tiles("L_f2_compute0")
    a("s_branch L_f1_compute")
    a.label("L_f1_loader")
    lw = a.newlabel("fw")
    a(f"s_cmp_eq_u32 s{sWV}, 4")
    a(f"s_cbranch_scc0 {lw}")
    a(f"s_lshr_b32 s40, s{F1.sM0}, 7")
    a(f"s_add_u32 s40, s40, {C_OP}")
    stx(a, 'f_p0')
    poll_f(a, 40, 16, 8)
    a.label(lw)
    stx(a, 'f_poll')
    a("s_barrier")
    for s_ in range(PD):
        F1.issue_A(s_); q.push(f"A{s_}", 4)
    F1.lstats_init()
    F1.loader_main(q)
    a("s_waitcnt lgkmcnt(0)")
    a("s_barrier")
    S2 = CoreS(a, 'ffn2')
    S2.map_tiles()
    S2.loader_setup()
    q = VmQ()
    a("s_barrier")
    if E('PFW2B'):
        for j in range(9):
            wave_only(a, 4 + (j % 4), lambda: w2p_prefetch(a, j))
    for s_ in range(PD):
        S2.issue_W(s_); q.push(f"W{s_}", 5)
    a("s_branch L_f2_loader")
    a.label("L_f2_loader0")
    if E('PFW2') or E('PFW2B'):
        for j in range(9):
            wave_only(a, 4 + (j % 4), lambda: w2p_prefetch(a, j))
    S2.map_tiles()
    S2.loader_setup()
    for s_ in range(PD):
        S2.issue_W(s_)
    a.label("L_f2_loader")
    lw = a.newlabel("gw")
    a(f"s_cmp_eq_u32 s{sWV}, 4")
    a(f"s_cbranch_scc0 {lw}")
    a(f"s_lshr_b32 s40, s{S2.sM0}, 7")
    a(f"s_add_u32 s40, s40, {C_F1}")
    poll_f(a, 40, 14, 8)
    a.label(lw)
    a("s_barrier")
    for s_ in range(PD):
        S2.issue_A(s_); q.push(f"A{s_}", 4)
    S2.loader_main(q)
    if common.STAMPS:
        stamp_flush(a, 0, sWV, base=SB, vt=90)
    a("s_endpgm")
    a.label("L_f1_compute")
    F1.compute_setup()
    F1.addr_f()
    a("s_barrier")
    st(a, 11)
    stx(a, 'f_X')
    F1.mainloop(True, tag='f')
    stx(a, 'f_loop')
    a("s_barrier")
    F1.epilogue_Y('ffn1')
    stx(a, 'f_epi')
    a("s_waitcnt vmcnt(0)")
    stx(a, 'f_drain')
    a("s_barrier")
    lw = a.newlabel("fa")
    a(f"s_cmp_eq_u32 s{sWV}, 0")
    a(f"s_cbranch_scc0 {lw}")
    a(f"s_lshr_b32 s40, s{F1.sM0}, 7")
    a(f"s_add_u32 s40, s40, {C_F1}")
    arrive_f(a, 40, F1.sNt, 4)
    st(a, 12)
    a.label(lw)
    lane_id(a, 1)
    a.label("L_f2_compute0")
    S2.map_tiles()
    S2.compute_setup()
    a("s_barrier")
    st(a, 13)
    stx(a, 'g_X')
    S2.residual_loads()
    S2.mainloop(tag='g')
    stx(a, 'g_loop')
    S2.reduce()
    stx(a, 'g_red')
    S2.epilogue()
    stx(a, 'g_epi')
    if common.STAMPS:
        a("s_waitcnt vmcnt(0)")
        st(a, 14); st_rt(a, 15)
        stamp_flush(a, 0, sWV, base=SB, vt=90)
        if E('DBGOUT'):
            l = a.newlabel("dbo")
            a(f"s_cmp_eq_u32 s2, 9")
            a(f"s_cbranch_scc0 {l}")
            a(f"s_cmp_eq_u32 s{sWV}, 0")
            a(f"s_cbranch_scc0 {l}")
            make_srd(a, 8, pDBG, pDBG+1, 0, 256)
            a("s_mov_b64 exec, 1")
            pairs = [(15, 0), (14, 1), (2, 1), (3, 1), (4, 1), (5, 1), (6, 1), (7, 1), (9, 1), (11, 1), (13, 1)]
            for k, (x, y) in enumerate(pairs):
                a(f"s_sub_u32 s40, s{SB+x}, s{SB+y}")
                a(f"v_mov_b32 v4, s40")
                a(f"v_mov_b32 v5, {16 + 4*k}")
                a(f"buffer_store_dword v4, v5, s[8:11], 0 offen")
            a("s_waitcnt vmcnt(0)")
            a.label(l)
    a.label("L_exit")
    a("s_endpgm")
    return kernel_header(NAME) + a.text() + kernel_desc(NAME, 256, 176, sgpr=102)
```

```python
from common import *
import common, os
E = os.environ.get

NAME = "sequential_preLN__softmax_full_mha__dense_activation_relu__prompt_kernel"
pX, pWQ, pWO, pW1, pW2, pOUT, pDBG, pWS = 84, 86, 88, 92, 94, 96, 98, 78
sWS = 80
sWV = 100
sPoll = 101
SB = 48
STAT = 145408
LDS_TOTAL = 149504
SC = "sc1"
sX, sRk, sLoc = 72, 73, 74
ROLE = LDS_TOTAL - 64
POLL_MAX = 1 << 22

FS = E('FS', '').split(',') if E('FS') else []
FS0 = int(E('FS0', '9'))
def st(a, i):
    if FS and (i >= FS0) and i != 15: return
    stamp(a, i, base=SB)
def st2(a, i): pass
def stx(a, tag):
    if tag in FS: stamp(a, FS0 + FS.index(tag), base=SB)
def st_rt(a, i): stamp_rt(a, i, base=SB)

def lane_id(a, v):
    a(f"v_mbcnt_lo_u32_b32 v{v}, -1, 0")
    a(f"v_mbcnt_hi_u32_b32 v{v}, -1, v{v}")

def arrive(a, sIdx, vt):
    a(f"""
    s_lshl_b32 s{sPoll}, s{sIdx}, 7
    s_add_u32 s{sPoll}, s{sPoll}, {WS_CNT}
    v_mov_b32 v{vt}, s{sPoll}
    v_mov_b32 v{vt+1}, 1
    s_mov_b64 exec, 1
    buffer_atomic_add v{vt+1}, v{vt}, s[{sWS}:{sWS+3}], 0 offen sc1
    s_mov_b64 exec, -1
    """)

def dual(a, instrs):
    l0, l1 = a.newlabel("slow"), a.newlabel("dd")
    a(f"s_cmp_eq_u32 s{sLoc}, 0")
    a(f"s_cbranch_scc1 {l0}")
    for i in instrs: a(i.replace("@SC", E('LOCFL', '') if 'store' in i else ''))
    a(f"s_branch {l1}")
    a.label(l0)
    for i in instrs: a(i.replace("@SC", "sc1"))
    a.label(l1)

def arrive_l(a, sIdx, vt):
    a(f"""
    s_lshl_b32 s{sPoll}, s{sIdx}, 7
    s_add_u32 s{sPoll}, s{sPoll}, {WS_CNT}
    v_mov_b32 v{vt}, s{sPoll}
    v_mov_b32 v{vt+1}, 1
    s_mov_b64 exec, 1
    """)
    dual(a, [f"buffer_atomic_add v{vt+1}, v{vt}, s[{sWS}:{sWS+3}], 0 offen @SC"])
    a("s_mov_b64 exec, -1")

def arrive_f(a, sIdx, sSlot, vt):
    a(f"""
    s_lshl_b32 s{sPoll}, s{sIdx}, 7
    s_add_u32 s{sPoll}, s{sPoll}, {WS_CNT}
    s_lshl_b32 s75, s{sSlot}, 2
    s_add_u32 s{sPoll}, s{sPoll}, s75
    v_mov_b32 v{vt}, s{sPoll}
    v_mov_b32 v{vt+1}, 1
    s_mov_b64 exec, 1
    """)
    dual(a, [f"buffer_store_dword v{vt+1}, v{vt}, s[{sWS}:{sWS+3}], 0 offen @SC"])
    a("s_mov_b64 exec, -1")

def poll_f(a, sIdx, n, vt):
    a(f"""
    s_lshl_b32 s{sPoll}, s{sIdx}, 7
    s_add_u32 s{sPoll}, s{sPoll}, {WS_CNT}
    v_lshlrev_b32 v{vt+1}, 2, v1
    v_add_u32 v{vt+1}, s{sPoll}, v{vt+1}
    v_mov_b32 v{vt+2}, 1
    """)
    poll(a, vt + 1, vt + 2, n, vt)

def poll(a, vOff, vTgt, nl, vt, slp=1):
    l0, l1 = a.newlabel("poll"), a.newlabel("pollok")
    a(f"s_mov_b64 exec, {(1 << nl) - 1:#x}")
    a(f"s_mov_b32 s{sPoll}, 0")
    a.label(l0)
    a(f"""
    buffer_load_dword v{vt}, v{vOff}, s[{sWS}:{sWS+3}], 0 offen sc1
    s_waitcnt vmcnt(0)
    v_cmp_gt_u32 vcc, v{vTgt}, v{vt}
    s_nop 4
    s_cmp_eq_u64 vcc, 0
    s_cbranch_scc1 {l1}
    s_add_u32 s{sPoll}, s{sPoll}, 1
    s_cmp_gt_u32 s{sPoll}, {POLL_MAX}
    s_cbranch_scc1 {l1}
    s_sleep {slp}
    s_branch {l0}
    """)
    a.label(l1)
    a("s_mov_b64 exec, -1")

def poll1(a, sIdx, target, vt):
    a(f"""
    s_lshl_b32 s{sPoll}, s{sIdx}, 7
    s_add_u32 s{sPoll}, s{sPoll}, {WS_CNT}
    v_mov_b32 v{vt+1}, s{sPoll}
    v_mov_b32 v{vt+2}, {target}
    """)
    poll(a, vt + 1, vt + 2, 1, vt)

def wave_sum(a, v):
    for sh in (1, 2, 4, 8):
        a(f"v_add_f32_dpp v{v}, v{v}, v{v} row_shr:{sh} row_mask:0xf bank_mask:0xf bound_ctrl:0")
        a("s_nop 1")
    a(f"v_add_f32_dpp v{v}, v{v}, v{v} row_bcast:15 row_mask:0xa bank_mask:0xf")
    a("s_nop 1")
    a(f"v_add_f32_dpp v{v}, v{v}, v{v} row_bcast:31 row_mask:0xc bank_mask:0xf")
    a("s_nop 1")

def p0_rows_issue(a, sXs, s0, vR, vA):
    a(f"""
    s_lshl_b32 s{s0}, s2, 3
    s_lshl_b32 s{s0+1}, s{sWV}, 1
    s_add_u32 s{s0}, s{s0}, s{s0+1}
    s_mul_i32 s{s0+2}, s{s0}, 1280
    v_lshlrev_b32 v{vA}, 4, v1
    v_lshlrev_b32 v{vA+1}, 2, v1
    s_add_u32 s{s0+3}, s{s0+2}, 1280
    buffer_load_dwordx4 {vr(vR,4)}, v{vA}, s[{sXs}:{sXs+3}], s{s0+2} offen
    buffer_load_dword v{vR+4}, v{vA+1}, s[{sXs}:{sXs+3}], s{s0+2} offen offset:1024
    buffer_load_dwordx4 {vr(vR+6,4)}, v{vA}, s[{sXs}:{sXs+3}], s{s0+3} offen
    buffer_load_dword v{vR+5}, v{vA+1}, s[{sXs}:{sXs+3}], s{s0+3} offen offset:1024
    """)
def p0_rows_finish(a, s0, vR, vA):
    for rr in range(2):
        regs = [vR + 6*rr + i for i in range(4)] + [vR + 4 + rr]
        S, Q, U = vA + 4, vA + 5, vA + 6
        for n, r in enumerate(regs):
            a(f"v_lshlrev_b32 v{U}, 16, v{r}")
            a(f"v_and_b32 v{U+1}, 0xffff0000, v{r}")
            if n == 0:
                a(f"v_add_f32 v{S}, v{U}, v{U+1}")
                a(f"v_mul_f32 v{Q}, v{U}, v{U}")
            else:
                a(f"v_add_f32 v{S}, v{S}, v{U}")
                a(f"v_add_f32 v{S}, v{S}, v{U+1}")
                a(f"v_fmac_f32 v{Q}, v{U}, v{U}")
            a(f"v_fmac_f32 v{Q}, v{U+1}, v{U+1}")
        a("s_nop 1")
        for sh in (1, 2, 4, 8):
            a(f"v_add_f32_dpp v{S}, v{S}, v{S} row_shr:{sh} row_mask:0xf bank_mask:0xf bound_ctrl:0")
            a(f"v_add_f32_dpp v{Q}, v{Q}, v{Q} row_shr:{sh} row_mask:0xf bank_mask:0xf bound_ctrl:0")
            a("s_nop 0")
        a(f"v_add_f32_dpp v{S}, v{S}, v{S} row_bcast:15 row_mask:0xa bank_mask:0xf")
        a(f"v_add_f32_dpp v{Q}, v{Q}, v{Q} row_bcast:15 row_mask:0xa bank_mask:0xf")
        a("s_nop 0")
        a(f"v_add_f32_dpp v{S}, v{S}, v{S} row_bcast:31 row_mask:0xc bank_mask:0xf")
        a(f"v_add_f32_dpp v{Q}, v{Q}, v{Q} row_bcast:31 row_mask:0xc bank_mask:0xf")
        a(f"""
        s_nop 0
        v_mul_f32 v{S}, {f32bits(1.0/640):#x}, v{S}
        v_mul_f32 v{Q}, {f32bits(1.0/640):#x}, v{Q}
        v_fma_f32 v{Q}, -v{S}, v{S}, v{Q}
        v_max_f32 v{Q}, 0, v{Q}
        v_add_f32 v{Q}, {f32bits(1e-5):#x}, v{Q}
        v_rsq_f32 v{Q}, v{Q}
        s_nop 0
        v_mov_b32 v{vA+8+2*rr}, v{S}
        v_mov_b32 v{vA+9+2*rr}, v{Q}
        """)
    a(f"""
    s_lshl_b32 s{s0+4}, s{s0}, 3
    s_add_u32 s{s0+4}, s{s0+4}, {WS_ST1}
    v_mov_b32 v{vA+4}, 0
    s_mov_b32 exec_lo, 0
    s_mov_b32 exec_hi, 0x80000000
    buffer_store_dwordx4 {vr(vA+8,4)}, v{vA+4}, s[{sWS}:{sWS+3}], s{s0+4} offen {SC}
    s_mov_b64 exec, -1
    """)
def colsum_issue(a, which, srd, sW4, s0, vC, vA):
    ld = 3840 if which == 'wq' else 3456
    a(f"""
    s_and_b32 s{s0+1}, s2, 7
    s_lshr_b32 s{s0+2}, s2, 3
    s_lshr_b32 s{s0+3}, s{s0+1}, 1
    s_lshl_b32 s{s0+3}, s{s0+3}, 5
    s_add_u32 s{s0+2}, s{s0+2}, s{s0+3}
    s_and_b32 s{s0+1}, s{s0+1}, 1
    s_and_b32 s{s0+3}, s{s0+2}, 15
    s_lshr_b32 s{s0+2}, s{s0+2}, 4
    v_lshrrev_b32 v{vA}, 3, v1
    v_and_b32 v{vA+1}, 7, v1
    v_lshlrev_b32 v{vA+1}, 2, v{vA+1}
    v_mul_u32_u24 v{vA+2}, {ld}, v{vA}
    v_add_u32 v{vA+2}, v{vA+2}, v{vA+1}
    s_lshl_b32 s{s0+4}, s{s0+3}, 6
    s_lshl_b32 s{s0+7}, s{sW4}, 4
    s_add_u32 s{s0+4}, s{s0+4}, s{s0+7}
    s_mul_i32 s{s0+5}, s{s0+1}, {1024 if which == 'wq' else 896}
    s_add_u32 s{s0+5}, s{s0+5}, s{s0+4}
    s_mul_i32 s{s0+7}, s{s0+2}, {80*ld}
    s_lshl_b32 s{s0+4}, s{s0+5}, 1
    s_add_u32 s{s0+7}, s{s0+7}, s{s0+4}
    """)
    for j in range(10):
        a(f"buffer_load_dword v{vC+j}, v{vA+2}, s[{srd}:{srd+3}], s{s0+7} offen")
        if j < 9: a(f"s_add_u32 s{s0+7}, s{s0+7}, {8*ld}")
def colsum_finish(a, which, s0, vC, vA):
    base, ncol = (WS_CS1, 1920) if which == 'wq' else (WS_CS2, 1792)
    A0, A1, U = vA + 4, vA + 5, vA + 6
    for j in range(10):
        if j == 0:
            a(f"v_lshlrev_b32 v{A0}, 16, v{vC}")
            a(f"v_and_b32 v{A1}, 0xffff0000, v{vC}")
        else:
            a(f"v_lshlrev_b32 v{U}, 16, v{vC+j}")
            a(f"v_and_b32 v{U+1}, 0xffff0000, v{vC+j}")
            a(f"v_add_f32 v{A0}, v{A0}, v{U}")
            a(f"v_add_f32 v{A1}, v{A1}, v{U+1}")
    a(f"""
    s_nop 1
    v_add_f32_dpp v{A0}, v{A0}, v{A0} row_ror:8 row_mask:0xf bank_mask:0xf
    v_add_f32_dpp v{A1}, v{A1}, v{A1} row_ror:8 row_mask:0xf bank_mask:0xf
    s_nop 1
    v_mov_b32 v{U}, v{A0}
    v_mov_b32 v{U+1}, v{A1}
    s_nop 1
    v_permlane16_swap_b32 v{A0}, v{U}
    v_permlane16_swap_b32 v{A1}, v{U+1}
    s_nop 1
    v_add_f32 v{A0}, v{A0}, v{U}
    v_add_f32 v{A1}, v{A1}, v{U+1}
    s_nop 0
    v_mov_b32 v{U}, v{A0}
    v_mov_b32 v{U+1}, v{A1}
    s_nop 1
    v_permlane32_swap_b32 v{A0}, v{U}
    v_permlane32_swap_b32 v{A1}, v{U+1}
    s_nop 1
    v_add_f32 v{vA+12}, v{A0}, v{U}
    v_add_f32 v{vA+13}, v{A1}, v{U+1}
    v_lshlrev_b32 v{U}, 3, v1
    s_mul_i32 s{s0+4}, s{s0+2}, {ncol*4}
    s_lshl_b32 s{s0+7}, s{s0+5}, 2
    s_add_u32 s{s0+4}, s{s0+4}, s{s0+7}
    s_add_u32 s{s0+4}, s{s0+4}, {base}
    """)
    lab = a.newlabel("p0skip")
    if which == 'wq':
        a(f"s_cmp_ge_u32 s{s0+5}, 1920")
    else:
        a(f"s_sub_u32 s{s0+7}, 14, s{s0+1}")
        a(f"s_cmp_ge_u32 s{s0+3}, s{s0+7}")
    a(f"s_cbranch_scc1 {lab}")
    a("s_mov_b64 exec, 0xff")
    a(f"buffer_store_dwordx2 {vr(vA+12,2)}, v{U}, s[{sWS}:{sWS+3}], s{s0+4} offen {SC}")
    a("s_mov_b64 exec, -1")
    a.label(lab)
def emit_p0(a):
    sXs, sWq, s0 = 8, 12, 40
    vR, vC, vA = 4, 14, 34
    make_srd(a, sXs, pX, pX+1, 0, 2048*1280)
    make_srd(a, sWq, pWQ, pWQ+1, 0, 640*3840)
    p0_rows_issue(a, sXs, s0, vR, vA)
    a(f"s_mov_b32 s39, s{s0}")
    colsum_issue(a, 'wq', sWq, sWV, s0, vC, vA + 12)
    a("s_waitcnt vmcnt(10)")
    a(f"s_mov_b32 s38, s{s0+4}")
    p0_rows_finish(a, 39, vR, vA) if False else None
    p0_rows_finish_b(a, 39, 38, vR, vA)
    a("s_waitcnt vmcnt(1)")
    colsum_finish(a, 'wq', s0, vC, vA + 12)
def p0_rows_finish_b(a, sRow, sTmp, vR, vA):
    import io
    class Tmp: pass
    for rr in range(2):
        regs = [vR + 6*rr + i for i in range(4)] + [vR + 4 + rr]
        S, Q, U = vA + 4, vA + 5, vA + 6
        for n, r in enumerate(regs):
            a(f"v_lshlrev_b32 v{U}, 16, v{r}")
            a(f"v_and_b32 v{U+1}, 0xffff0000, v{r}")
            if n == 0:
                a(f"v_add_f32 v{S}, v{U}, v{U+1}")
                a(f"v_mul_f32 v{Q}, v{U}, v{U}")
            else:
                a(f"v_add_f32 v{S}, v{S}, v{U}")
                a(f"v_add_f32 v{S}, v{S}, v{U+1}")
                a(f"v_fmac_f32 v{Q}, v{U}, v{U}")
            a(f"v_fmac_f32 v{Q}, v{U+1}, v{U+1}")
        a("s_nop 1")
        for sh in (1, 2, 4, 8):
            a(f"v_add_f32_dpp v{S}, v{S}, v{S} row_shr:{sh} row_mask:0xf bank_mask:0xf bound_ctrl:0")
            a(f"v_add_f32_dpp v{Q}, v{Q}, v{Q} row_shr:{sh} row_mask:0xf bank_mask:0xf bound_ctrl:0")
            a("s_nop 0")
        a(f"v_add_f32_dpp v{S}, v{S}, v{S} row_bcast:15 row_mask:0xa bank_mask:0xf")
        a(f"v_add_f32_dpp v{Q}, v{Q}, v{Q} row_bcast:15 row_mask:0xa bank_mask:0xf")
        a("s_nop 0")
        a(f"v_add_f32_dpp v{S}, v{S}, v{S} row_bcast:31 row_mask:0xc bank_mask:0xf")
        a(f"v_add_f32_dpp v{Q}, v{Q}, v{Q} row_bcast:31 row_mask:0xc bank_mask:0xf")
        a(f"""
        s_nop 0
        v_mul_f32 v{S}, {f32bits(1.0/640):#x}, v{S}
        v_mul_f32 v{Q}, {f32bits(1.0/640):#x}, v{Q}
        v_fma_f32 v{Q}, -v{S}, v{S}, v{Q}
        v_max_f32 v{Q}, 0, v{Q}
        v_add_f32 v{Q}, {f32bits(1e-5):#x}, v{Q}
        v_rsq_f32 v{Q}, v{Q}
        s_nop 0
        v_mov_b32 v{vA+8+2*rr}, v{S}
        v_mov_b32 v{vA+9+2*rr}, v{Q}
        """)
    a(f"""
    s_lshl_b32 s{sTmp}, s{sRow}, 3
    s_add_u32 s{sTmp}, s{sTmp}, {WS_ST1}
    v_mov_b32 v{vA+4}, 0
    s_mov_b32 exec_lo, 0
    s_mov_b32 exec_hi, 0x80000000
    buffer_store_dwordx4 {vr(vA+8,4)}, v{vA+4}, s[{sWS}:{sWS+3}], s{sTmp} offen {SC}
    s_mov_b64 exec, -1
    """)
def dbg_flag_issue(a, vt):
    make_srd(a, 44, pDBG, pDBG+1, 0, 256)
    a(f"v_mov_b32 v{vt+1}, 0")
    a(f"buffer_load_dword v{vt}, v{vt+1}, s[44:47], 0 offen sc1")
def dbg_flag_issue_b(a, vt):
    make_srd(a, 16, pDBG, pDBG+1, 0, 256)
    a(f"v_mov_b32 v{vt+1}, 0")
    a(f"buffer_load_dword v{vt}, v{vt+1}, s[16:19], 0 offen sc1")
def dbg_flag_wait(a, vt, srd=44, landed=False):
    l0, l1, l2 = a.newlabel("dbgp"), a.newlabel("dbgok"), a.newlabel("dbgc")
    a(f"s_mov_b32 s{sPoll}, 0")
    if landed: a(f"s_branch {l2}")
    a.label(l0)
    a("s_waitcnt vmcnt(0)")
    a.label(l2)
    a(f"""
    v_readfirstlane_b32 s75, v{vt}
    s_cmp_lg_u32 s75, 0
    s_cbranch_scc1 {l1}
    s_add_u32 s{sPoll}, s{sPoll}, 1
    s_cmp_gt_u32 s{sPoll}, {POLL_MAX}
    s_cbranch_scc1 {l1}
    s_sleep 1
    buffer_load_dword v{vt}, v{vt+1}, s[{srd}:{srd+3}], 0 offen sc1
    s_branch {l0}
    """)
    a.label(l1)
def dbg_flag_wait_arrive_b(a, cbase, vt):
    dbg_flag_wait_arrive(a, cbase, vt, 16)
def dbg_flag_wait_arrive(a, cbase, vt, srd=44):
    l0, l1 = a.newlabel("dbgp"), a.newlabel("dbgok")
    a(f"s_mov_b32 s{sPoll}, 0")
    a.label(l0)
    a(f"""
    s_waitcnt vmcnt(0)
    v_readfirstlane_b32 s75, v{vt}
    s_cmp_lg_u32 s75, 0
    s_cbranch_scc1 {l1}
    s_add_u32 s{sPoll}, s{sPoll}, 1
    s_cmp_gt_u32 s{sPoll}, {POLL_MAX}
    s_cbranch_scc1 {l1}
    s_sleep 1
    buffer_load_dword v{vt}, v{vt+1}, s[{srd}:{srd+3}], 0 offen sc1
    s_branch {l0}
    """)
    a.label(l1)
    a(f"s_and_b32 s75, s2, 7")
    a(f"s_add_u32 s75, s75, {cbase}")
    arrive(a, 75, vt)

class P0Q:
    vR, vC, vD, vA = 64, 84, 94, 104
    def __init__(self, a, L):
        self.a, self.L = a, L
    def issue(self):
        a, L = self.a, self.L
        vR, vC, vD, vA = self.vR, self.vC, self.vD, self.vA
        sXs, sWq = L.sA, L.sW
        sW1 = 16
        make_srd(a, sW1, pW1, pW1+1, 0, 640*3456)
        a(f"""
        v_lshrrev_b32 v2, 4, v1
        v_and_b32 v3, 15, v1
        s_lshl_b32 s40, s{L.sNt}, 4
        s_add_u32 s40, s40, s{L.sM0}
        s_lshl_b32 s41, s{L.sLw}, 2
        s_add_u32 s40, s40, s41
        s_cmp_lt_u32 s{L.sNt}, 8
        s_cselect_b32 s40, s40, 4096
        v_add_u32 v{vA}, s40, v2
        v_mul_u32_u24 v{vA+1}, 1280, v{vA}
        v_lshlrev_b32 v{vA+2}, 4, v3
        v_add_u32 v{vA+1}, v{vA+1}, v{vA+2}
        """)
        for j in range(5):
            a(f"buffer_load_dwordx4 {vr(vR+4*j,4)}, v{vA+1}, s[{sXs}:{sXs+3}], 0 offen offset:{256*j}")
        a(f"""
        s_lshr_b32 s41, s{L.sM0}, 7
        s_mul_i32 s42, s41, {40*3840}
        s_lshl_b32 s43, s{L.sLw}, 5
        s_add_u32 s43, s43, s{L.sN0}
        s_lshl_b32 s40, s43, 1
        s_add_u32 s42, s42, s40
        v_mul_u32_u24 v{vA+2}, 3840, v2
        v_lshlrev_b32 v{vA+3}, 2, v3
        v_add_u32 v{vA+2}, v{vA+2}, v{vA+3}
        """)
        for j in range(10):
            a(f"buffer_load_dword v{vC+j}, v{vA+2}, s[{sWq}:{sWq+3}], s42 offen")
            if j < 9: a(f"s_add_u32 s42, s42, {4*3840}")
        a(f"""
        s_mul_i32 s42, s41, {40*3456}
        s_add_u32 s42, s42, s40
        s_cmp_lt_u32 s{L.sNt}, 14
        s_cselect_b32 s42, s42, 0x7f000000
        v_mul_u32_u24 v{vA+4}, 3456, v2
        v_add_u32 v{vA+4}, v{vA+4}, v{vA+3}
        """)
        for j in range(10):
            a(f"buffer_load_dword v{vD+j}, v{vA+4}, s[{sW1}:{sW1+3}], s42 offen")
            if j < 9: a(f"s_add_u32 s42, s42, {4*3456}")
    def rows(self):
        a, L = self.a, self.L
        vR, vA = self.vR, self.vA
        S, Q, U = vA + 5, vA + 6, vA + 8
        for n in range(20):
            r = vR + n
            u = U + 2*(n & 1)
            a(f"v_lshlrev_b32 v{u}, 16, v{r}")
            a(f"v_and_b32 v{u+1}, 0xffff0000, v{r}")
            if n == 0:
                a(f"v_add_f32 v{S}, v{u}, v{u+1}")
                a(f"v_mul_f32 v{Q}, v{u}, v{u}")
            else:
                a(f"v_add_f32 v{S}, v{S}, v{u}")
                a(f"v_fmac_f32 v{Q}, v{u}, v{u}")
                a(f"v_add_f32 v{S}, v{S}, v{u+1}")
            a(f"v_fmac_f32 v{Q}, v{u+1}, v{u+1}")
        a("s_nop 1")
        for sh in (1, 2, 4, 8):
            a(f"v_add_f32_dpp v{S}, v{S}, v{S} row_shr:{sh} row_mask:0xf bank_mask:0xf bound_ctrl:0")
            a(f"v_add_f32_dpp v{Q}, v{Q}, v{Q} row_shr:{sh} row_mask:0xf bank_mask:0xf bound_ctrl:0")
            a("s_nop 0")
        a(f"""
        v_mul_f32 v{S}, {f32bits(1.0/640):#x}, v{S}
        v_mul_f32 v{Q}, {f32bits(1.0/640):#x}, v{Q}
        v_fma_f32 v{Q}, -v{S}, v{S}, v{Q}
        v_max_f32 v{Q}, 0, v{Q}
        v_add_f32 v{Q}, {f32bits(1e-5):#x}, v{Q}
        v_rsq_f32 v{Q}, v{Q}
        v_mov_b32 v{U}, v{S}
        v_lshlrev_b32 v{U+2}, 3, v{vA}
        v_mov_b32 v{U+3}, 0x7fffff00
        v_cmp_gt_u32 vcc, 2048, v{vA}
        v_mov_b32 v{U+1}, v{Q}
        v_cndmask_b32 v{U+2}, v{U+3}, v{U+2}, vcc
        s_mov_b32 s40, {WS_ST1}
        s_mov_b32 exec_lo, 0x80008000
        s_mov_b32 exec_hi, 0x80008000
        buffer_store_dwordx2 {vr(U,2)}, v{U+2}, s[{sWS}:{sWS+3}], s40 offen {SC}
        s_mov_b64 exec, -1
        """)
    def cols(self, which):
        a, L = self.a, self.L
        vA = self.vA
        regs, base, ncol, lim = (self.vC, WS_CS1, 1920, 15) if which == 0 else (self.vD, WS_CS2, 1792, 14)
        U = vA + 8
        A0, A1 = vA + 5, vA + 6
        for j in range(10):
            u = U + 2*(j & 1)
            if j == 0:
                a(f"v_lshlrev_b32 v{A0}, 16, v{regs}")
                a(f"v_and_b32 v{A1}, 0xffff0000, v{regs}")
            else:
                a(f"v_lshlrev_b32 v{u}, 16, v{regs+j}")
                a(f"v_and_b32 v{u+1}, 0xffff0000, v{regs+j}")
                a(f"v_add_f32 v{A0}, v{A0}, v{u}")
                a(f"v_add_f32 v{A1}, v{A1}, v{u+1}")
        a(f"""
        s_nop 0
        v_mov_b32 v{U}, v{A0}
        v_mov_b32 v{U+1}, v{A1}
        s_nop 1
        v_permlane16_swap_b32 v{A0}, v{U}
        v_permlane16_swap_b32 v{A1}, v{U+1}
        s_nop 1
        v_add_f32 v{A0}, v{A0}, v{U}
        v_add_f32 v{A1}, v{A1}, v{U+1}
        s_nop 0
        v_mov_b32 v{U}, v{A0}
        v_mov_b32 v{U+1}, v{A1}
        s_nop 1
        v_permlane32_swap_b32 v{A0}, v{U}
        v_permlane32_swap_b32 v{A1}, v{U+1}
        s_nop 1
        v_add_f32 v{U+4}, v{A0}, v{U}
        v_add_f32 v{U+5}, v{A1}, v{U+1}
        v_lshlrev_b32 v{U}, 3, v3
        s_mul_i32 s42, s41, {ncol*4}
        s_lshl_b32 s40, s43, 2
        s_add_u32 s42, s42, s40
        s_add_u32 s42, s42, {base}
        s_cmp_lt_u32 s{L.sNt}, {lim}
        s_cselect_b32 s42, s42, 0x7f000000
        s_mov_b64 exec, 0xffff
        buffer_store_dwordx2 {vr(U+4,2)}, v{U}, s[{sWS}:{sWS+3}], s42 offen {SC}
        s_mov_b64 exec, -1
        s_nop 1
        """)
def emit_p0r(a, L):
    sXs, vR, vA = 8, 146, 132
    make_srd(a, sXs, pX, pX+1, 0, 2048*1280)
    a(f"""
    v_lshrrev_b32 v166, 4, v1
    v_and_b32 v167, 15, v1
    s_lshl_b32 s75, s{L.sNt}, 4
    s_add_u32 s75, s75, s{L.sM0}
    s_lshl_b32 s76, s{sWV}, 2
    s_add_u32 s75, s75, s76
    s_cmp_lt_u32 s{L.sNt}, 8
    s_cselect_b32 s75, s75, 4096
    v_add_u32 v{vA}, s75, v166
    v_mul_u32_u24 v{vA+1}, 1280, v{vA}
    v_lshlrev_b32 v{vA+2}, 4, v167
    v_add_u32 v{vA+1}, v{vA+1}, v{vA+2}
    """)
    for j in range(5):
        a(f"buffer_load_dwordx4 {vr(vR+4*j,4)}, v{vA+1}, s[{sXs}:{sXs+3}], 0 offen offset:{256*j}")
def emit_p0r_finish(a, L, extra=0):
    vR, vA = 146, 132
    S, Q, S2, Q2, U = vA + 4, vA + 5, vA + 6, vA + 7, vA + 8
    for j in range(5):
        a(f"s_waitcnt vmcnt({4 - j + extra})")
        for n in range(4):
            r = vR + 4*j + n
            u = U + 2*(n & 1)
            a(f"v_lshlrev_b32 v{u}, 16, v{r}")
            a(f"v_and_b32 v{u+1}, 0xffff0000, v{r}")
            if j == 0 and n == 0:
                a(f"v_mov_b32 v{S}, v{u}")
                a(f"v_mul_f32 v{Q}, v{u}, v{u}")
                a(f"v_mov_b32 v{S2}, v{u+1}")
                a(f"v_mul_f32 v{Q2}, v{u+1}, v{u+1}")
            else:
                a(f"v_add_f32 v{S}, v{S}, v{u}")
                a(f"v_fmac_f32 v{Q}, v{u}, v{u}")
                a(f"v_add_f32 v{S2}, v{S2}, v{u+1}")
                a(f"v_fmac_f32 v{Q2}, v{u+1}, v{u+1}")
    a(f"v_add_f32 v{S}, v{S}, v{S2}")
    a(f"v_add_f32 v{Q}, v{Q}, v{Q2}")
    a("s_nop 1")
    for sh in (1, 2, 4, 8):
        a(f"v_add_f32_dpp v{S}, v{S}, v{S} row_shr:{sh} row_mask:0xf bank_mask:0xf bound_ctrl:0")
        a(f"v_add_f32_dpp v{Q}, v{Q}, v{Q} row_shr:{sh} row_mask:0xf bank_mask:0xf bound_ctrl:0")
        a("s_nop 0")
    a(f"""
    v_mul_f32 v{S}, {f32bits(1.0/640):#x}, v{S}
    v_mul_f32 v{Q}, {f32bits(1.0/640):#x}, v{Q}
    v_fma_f32 v{Q}, -v{S}, v{S}, v{Q}
    v_max_f32 v{Q}, 0, v{Q}
    v_add_f32 v{Q}, {f32bits(1e-5):#x}, v{Q}
    v_rsq_f32 v{Q}, v{Q}
    v_mov_b32 v{U}, v{S}
    v_lshlrev_b32 v{U+2}, 3, v{vA}
    v_mov_b32 v{U+3}, 0x7fffff00
    v_cmp_gt_u32 vcc, 2048, v{vA}
    v_mov_b32 v{U+1}, v{Q}
    v_cndmask_b32 v{U+2}, v{U+3}, v{U+2}, vcc
    s_mov_b32 s75, {WS_ST1}
    s_mov_b32 exec_lo, 0x80008000
    s_mov_b32 exec_hi, 0x80008000
    buffer_store_dwordx2 {vr(U,2)}, v{U+2}, s[{sWS}:{sWS+3}], s75 offen {SC}
    s_mov_b64 exec, -1
    """)
def idle_rows(a, sMt, hook=None):
    sXs, vR, vA = 8, 72, 4
    NP = 2 if E('P0L') else 4
    make_srd(a, sXs, pX, pX+1, 0, 2048*1280)
    a(f"""
    v_lshrrev_b32 v2, 4, v1
    v_and_b32 v3, 15, v1
    s_lshl_b32 s40, s{sMt}, 7
    s_lshl_b32 s41, s{sWV}, {3 if E('P0L') else 4}
    s_add_u32 s40, s40, s41
    v_add_u32 v{vA}, s40, v2
    v_mul_u32_u24 v{vA+1}, 1280, v{vA}
    v_lshlrev_b32 v{vA+2}, 4, v3
    v_add_u32 v{vA+1}, v{vA+1}, v{vA+2}
    """)
    for p in range(NP):
        a(f"s_mov_b32 s41, {p * 4 * 1280}")
        for j in range(5):
            a(f"buffer_load_dwordx4 {vr(vR + 20*p + 4*j, 4)}, v{vA+1}, s[{sXs}:{sXs+3}], s41 offen offset:{256*j}")
    S, Q, S2, Q2, U = vA + 4, vA + 5, vA + 6, vA + 7, vA + 8
    if hook: hook(-1)
    for p in range(NP):
        if hook and p > 0: hook(p - 1)
        a(f"s_waitcnt vmcnt({(NP - 1 - p) * 5 + p})")
        for n in range(20):
            r = vR + 20*p + n
            u = U + 2*(n & 1)
            a(f"v_lshlrev_b32 v{u}, 16, v{r}")
            a(f"v_and_b32 v{u+1}, 0xffff0000, v{r}")
            if n == 0:
                a(f"v_mov_b32 v{S}, v{u}")
                a(f"v_mul_f32 v{Q}, v{u}, v{u}")
                a(f"v_mov_b32 v{S2}, v{u+1}")
                a(f"v_mul_f32 v{Q2}, v{u+1}, v{u+1}")
            else:
                a(f"v_add_f32 v{S}, v{S}, v{u}")
                a(f"v_fmac_f32 v{Q}, v{u}, v{u}")
                a(f"v_add_f32 v{S2}, v{S2}, v{u+1}")
                a(f"v_fmac_f32 v{Q2}, v{u+1}, v{u+1}")
        a(f"v_add_f32 v{S}, v{S}, v{S2}")
        a(f"v_add_f32 v{Q}, v{Q}, v{Q2}")
        a("s_nop 1")
        for sh in (1, 2, 4, 8):
            a(f"v_add_f32_dpp v{S}, v{S}, v{S} row_shr:{sh} row_mask:0xf bank_mask:0xf bound_ctrl:0")
            a(f"v_add_f32_dpp v{Q}, v{Q}, v{Q} row_shr:{sh} row_mask:0xf bank_mask:0xf bound_ctrl:0")
            a("s_nop 0")
        a(f"""
        v_mul_f32 v{S}, {f32bits(1.0/640):#x}, v{S}
        v_mul_f32 v{Q}, {f32bits(1.0/640):#x}, v{Q}
        v_fma_f32 v{Q}, -v{S}, v{S}, v{Q}
        v_max_f32 v{Q}, 0, v{Q}
        v_add_f32 v{Q}, {f32bits(1e-5):#x}, v{Q}
        v_rsq_f32 v{Q}, v{Q}
        v_mov_b32 v{U+4}, v{S}
        v_add_u32 v{U+2}, {4*p}, v{vA}
        v_lshlrev_b32 v{U+2}, 3, v{U+2}
        v_mov_b32 v{U+5}, v{Q}
        s_mov_b32 s41, {WS_ST1}
        s_mov_b32 exec_lo, 0x80008000
        s_mov_b32 exec_hi, 0x80008000
        buffer_store_dwordx2 {vr(U+4,2)}, v{U+2}, s[{sWS}:{sWS+3}], s41 offen {SC}
        s_mov_b64 exec, -1
        s_nop 1
        """)

class P0L:
    vR, vA = 116, 136
    def __init__(self, a, L): self.a, self.L = a, L
    def issue(self):
        a, L = self.a, self.L
        vR, vA = self.vR, self.vA
        a(f"""
        v_lshrrev_b32 v{vA+2}, 4, v1
        v_and_b32 v{vA+3}, 15, v1
        s_lshl_b32 s75, s{L.sNt}, 4
        s_add_u32 s75, s75, s{L.sM0}
        s_add_u32 s75, s75, 64
        s_lshl_b32 s76, s{L.sLw}, 2
        s_add_u32 s75, s75, s76
        s_cmp_lt_u32 s{L.sNt}, 4
        s_cselect_b32 s75, s75, 4096
        v_add_u32 v{vA}, s75, v{vA+2}
        v_mul_u32_u24 v{vA+1}, 1280, v{vA}
        v_lshlrev_b32 v{vA+3}, 4, v{vA+3}
        v_add_u32 v{vA+1}, v{vA+1}, v{vA+3}
        """)
        for j in range(5):
            a(f"buffer_load_dwordx4 {vr(vR+4*j,4)}, v{vA+1}, s[{L.sA}:{L.sA+3}], 0 offen offset:{256*j}")
    def finish(self):
        a = self.a
        vR, vA = self.vR, self.vA
        S, Q, S2, Q2, U = vA + 4, vA + 5, vA + 6, vA + 7, vA + 8
        for n in range(20):
            r = vR + n
            u = U + 2*(n & 1)
            a(f"v_lshlrev_b32 v{u}, 16, v{r}")
            a(f"v_and_b32 v{u+1}, 0xffff0000, v{r}")
            if n == 0:
                a(f"v_mov_b32 v{S}, v{u}")
                a(f"v_mul_f32 v{Q}, v{u}, v{u}")
                a(f"v_mov_b32 v{S2}, v{u+1}")
                a(f"v_mul_f32 v{Q2}, v{u+1}, v{u+1}")
            else:
                a(f"v_add_f32 v{S}, v{S}, v{u}")
                a(f"v_fmac_f32 v{Q}, v{u}, v{u}")
                a(f"v_add_f32 v{S2}, v{S2}, v{u+1}")
                a(f"v_fmac_f32 v{Q2}, v{u+1}, v{u+1}")
        a(f"v_add_f32 v{S}, v{S}, v{S2}")
        a(f"v_add_f32 v{Q}, v{Q}, v{Q2}")
        a("s_nop 1")
        for sh in (1, 2, 4, 8):
            a(f"v_add_f32_dpp v{S}, v{S}, v{S} row_shr:{sh} row_mask:0xf bank_mask:0xf bound_ctrl:0")
            a(f"v_add_f32_dpp v{Q}, v{Q}, v{Q} row_shr:{sh} row_mask:0xf bank_mask:0xf bound_ctrl:0")
            a("s_nop 0")
        a(f"""
        v_mul_f32 v{S}, {f32bits(1.0/640):#x}, v{S}
        v_mul_f32 v{Q}, {f32bits(1.0/640):#x}, v{Q}
        v_fma_f32 v{Q}, -v{S}, v{S}, v{Q}
        v_max_f32 v{Q}, 0, v{Q}
        v_add_f32 v{Q}, {f32bits(1e-5):#x}, v{Q}
        v_rsq_f32 v{Q}, v{Q}
        v_mov_b32 v{U}, v{S}
        v_lshlrev_b32 v{U+2}, 3, v{vA}
        v_mov_b32 v{U+3}, 0x7fffff00
        v_cmp_gt_u32 vcc, 2048, v{vA}
        v_mov_b32 v{U+1}, v{Q}
        v_cndmask_b32 v{U+2}, v{U+3}, v{U+2}, vcc
        s_mov_b32 s75, {WS_ST1}
        s_mov_b32 exec_lo, 0x80008000
        s_mov_b32 exec_hi, 0x80008000
        buffer_store_dwordx2 {vr(U,2)}, v{U+2}, s[{sWS}:{sWS+3}], s75 offen {SC}
        s_mov_b64 exec, -1
        """)

def p0r_arrive(a, L, vt):
    ok, skip = a.newlabel("fok"), a.newlabel("fsk")
    dbg_flag_wait(a, vt, landed=True)
    a(f"s_cmp_lt_u32 s{L.sNt}, 4")
    a(f"s_cbranch_scc0 {skip}")
    a(f"s_lshr_b32 s76, s{L.sM0}, 7")
    a(f"s_add_u32 s76, s76, {C_ST}")
    arrive(a, 76, vt - 2)
    a.label(skip)

def qkv_prefetch(a, L):
    make_srd(a, 12, pWQ, pWQ+1, 0, 640*3840)
    make_srd(a, 8, pX, pX+1, 0, 2048*1280)
    fl = E('QPF_FL', 'sc1')
    a(f"""
    s_lshr_b32 s40, s2, 3
    s_and_b32 s41, s2, 1
    v_and_b32 v2, 15, v1
    v_lshrrev_b32 v3, 4, v1
    v_lshlrev_b32 v2, 7, v2
    v_mul_u32_u24 v3, 3840, v3
    v_add_u32 v4, v2, v3
    s_mul_i32 s42, s40, {20*3840}
    s_lshl_b32 s43, s41, 11
    s_add_u32 s42, s42, s43
    s_mul_i32 s43, s{sWV}, {4*3840}
    s_add_u32 s42, s42, s43
    buffer_load_dword v162, v4, s[12:15], s42 offen {fl}
    """)
    l = a.newlabel("qpf")
    a(f"""
    s_cmp_eq_u32 s{sWV}, 0
    s_cbranch_scc0 {l}
    s_add_u32 s42, s42, {16*3840}
    buffer_load_dword v162, v4, s[12:15], s42 offen {fl}
    """)
    a.label(l)
    l = a.newlabel("qpf")
    a(f"""
    s_cmp_eq_u32 s{sWV}, 0
    s_cbranch_scc1 {l}
    s_and_b32 s41, s2, 7
    s_lshr_b32 s41, s41, 1
    s_lshl_b32 s41, s41, 5
    s_add_u32 s41, s41, s40
    s_mul_i32 s42, s41, 20480
    s_sub_u32 s43, s{sWV}, 1
    s_lshl_b32 s43, s43, 13
    s_add_u32 s42, s42, s43
    v_lshlrev_b32 v4, 7, v1
    buffer_load_dword v162, v4, s[8:11], s42 offen {fl}
    """)
    a.label(l)

def p0q_arrive(a, L, vt):
    ok = a.newlabel("fok")
    a(f"v_readfirstlane_b32 s75, v{vt}")
    a("s_cmp_lg_u32 s75, 0")
    a(f"s_cbranch_scc1 {ok}")
    dbg_flag_wait(a, vt)
    a.label(ok)
    a(f"""
    s_lshr_b32 s75, s{L.sM0}, 7
    s_add_u32 s75, s75, {C_ST}
    s_add_u32 s76, s{L.sNt}, {C_CS1}
    s_add_u32 s77, s{L.sNt}, {C_CS2}
    v_mov_b32 v{vt-1}, s75
    v_writelane_b32 v{vt-1}, s76, 1
    v_writelane_b32 v{vt-1}, s77, 2
    s_nop 0
    v_lshlrev_b32 v{vt-1}, 7, v{vt-1}
    v_add_u32 v{vt-1}, {WS_CNT}, v{vt-1}
    v_mov_b32 v{vt-2}, 1
    s_cmp_lt_u32 s{L.sNt}, 8
    s_cselect_b32 s75, 1, 0
    s_or_b32 s75, s75, 2
    s_cmp_lt_u32 s{L.sNt}, 14
    s_cselect_b32 s76, 4, 0
    s_or_b32 s75, s75, s76
    s_mov_b32 exec_lo, s75
    s_mov_b32 exec_hi, 0
    buffer_atomic_add v{vt-2}, v{vt-1}, s[{sWS}:{sWS+3}], 0 offen sc1
    s_mov_b64 exec, -1
    """)

def w2p_prefetch(a, j):
    a(f"""
    s_mul_i32 s75, s{sRk}, {SZ_W2P // 32}
    s_add_u32 s75, s75, {WS_W2P + j * 8192}
    v_lshlrev_b32 v61, 7, v1
    buffer_load_dword v60, v61, s[{sWS}:{sWS+3}], s75 offen sc1
    """)

def w2_first_prefetch(a, c):
    NST = 14
    a(f"""
    s_and_b32 s75, s{sRk}, 3
    s_mul_i32 s75, s75, 3
    s_lshr_b32 s76, s{sRk}, 2
    s_lshl_b32 s77, s76, 1
    s_add_u32 s75, s75, s77
    s_cmp_ge_u32 s75, {NST}
    s_cselect_b32 s77, {NST}, 0
    s_sub_u32 s75, s75, s77
    s_cmp_ge_u32 s75, {NST}
    s_cselect_b32 s77, {NST}, 0
    s_sub_u32 s75, s75, s77
    s_mul_i32 s76, s76, {NST * 20480}
    s_add_u32 s76, s76, {WS_W2P}
    s_mul_i32 s77, s{c.sLw}, 5120
    s_add_u32 s76, s76, s77
    s_mul_i32 s77, s75, 20480
    s_add_u32 s77, s77, s76
    v_lshlrev_b32 v61, 7, v1
    s_mov_b32 exec_lo, -1
    s_mov_b32 exec_hi, 0xff
    buffer_load_dword v60, v61, s[{sWS}:{sWS+3}], s77 offen sc1
    s_add_u32 s75, s75, 1
    s_cmp_eq_u32 s75, {NST}
    s_cselect_b32 s75, 0, s75
    s_mul_i32 s77, s75, 20480
    s_add_u32 s77, s77, s76
    buffer_load_dword v60, v61, s[{sWS}:{sWS+3}], s77 offen sc1
    s_mov_b64 exec, -1
    """)

class Repack:
    aB, vD, vT = 28, 110, 88
    sWo, sW2, sW1 = 12, 16, 40
    def __init__(self, a): self.a = a
    def issue(self, defer=False):
        a = self.a
        aB, vD, T = self.aB, self.vD, self.vT
        a(f"""
        s_mul_i32 s75, s2, 768
        s_sub_u32 s76, s{sWV}, 4
        s_lshl_b32 s76, s76, 6
        s_add_u32 s75, s75, s76
        v_add_u32 v{T}, s75, v1
        """)
        for r in range(3):
            g, it, sg, rho, c, row, nt, st_, x = T+1, T+2, T+3, T+4, T+5, T+6, T+7, T+8, T+9
            a(f"""
            v_add_u32 v{g}, {256*r}, v{T}
            s_mov_b32 s75, {(1 << 32) // 1280 + 1:#x}
            v_mul_hi_u32 v{it}, v{g}, s75
            v_mul_u32_u24 v{sg}, 1280, v{it}
            v_sub_u32 v{sg}, v{g}, v{sg}
            v_mul_u32_u24 v{rho}, 0xcccd, v{sg}
            v_lshrrev_b32 v{rho}, 19, v{rho}
            v_mul_u32_u24 v{c}, 10, v{rho}
            v_sub_u32 v{c}, v{sg}, v{c}
            v_and_b32 v{row}, 0x73, v{rho}
            v_and_b32 v{x}, 4, v{rho}
            v_lshlrev_b32 v{x}, 1, v{x}
            v_or_b32 v{row}, v{row}, v{x}
            v_and_b32 v{x}, 8, v{rho}
            v_lshrrev_b32 v{x}, 1, v{x}
            v_or_b32 v{row}, v{row}, v{x}
            v_lshlrev_b32 v{vD+r}, 4, v{g}
            v_cmp_gt_u32 vcc, 40, v{it}
            v_subrev_u32 v{x}, 40, v{it}
            s_nop 0
            v_cndmask_b32 v{x}, v{x}, v{it}, vcc
            v_mul_u32_u24 v{nt}, 0x4925, v{x}
            v_mul_u32_u24 v{st_}, 0xcccd, v{x}
            v_cndmask_b32 v{nt}, v{nt}, v{st_}, vcc
            v_lshrrev_b32 v{nt}, 18, v{nt}
            v_mov_b32 v{st_}, 14
            v_cndmask_b32 v{st_}, v{st_}, 5, vcc
            v_mul_u32_u24 v{st_}, v{st_}, v{nt}
            v_sub_u32 v{st_}, v{x}, v{st_}
            v_lshlrev_b32 v{st_}, 7, v{st_}
            v_add_u32 v{row}, v{row}, v{st_}
            v_mul_u32_u24 v{row}, 1280, v{row}
            v_mul_u32_u24 v{nt}, 160, v{nt}
            v_lshlrev_b32 v{c}, 4, v{c}
            v_add3_u32 v{row}, v{row}, v{nt}, v{c}
            v_mov_b32 v{x}, 0x7fffff00
            v_cndmask_b32 v{nt}, v{x}, v{row}, vcc
            v_cndmask_b32 v{row}, v{row}, v{x}, vcc
            v_cmp_gt_u32 vcc, 152, v{it}
            s_nop 1
            v_cndmask_b32 v{vD+r}, v{x}, v{vD+r}, vcc
            """)
            a(f"v_mov_b32 v{100+2*r}, v{nt}")
            a(f"v_mov_b32 v{101+2*r}, v{row}")
            a(f"v_mov_b32 v{106+r}, v{it}")
        if defer: return
        self.loads()
    def loads(self, base=100, tmp=None):
        a = self.a
        aB, T = self.aB, (self.vT if tmp is None else tmp)
        if base != 100:
            for k in range(9): a(f"v_accvgpr_read_b32 v{base+k}, a{40+k}")
        self.sWo, self.sW2, self.sW1 = 8, 12, 8
        make_srd(a, self.sWo, pWO, pWO+1, 0, 640*1280)
        make_srd(a, self.sW2, pW2, pW2+1, 0, 1728*1280)
        for r in range(3):
            la, lb = a.newlabel("rpa"), a.newlabel("rpb")
            a(f"""
            v_cmp_gt_u32 vcc, 40, v{base+6+r}
            s_nop 4
            s_mov_b64 s[76:77], vcc
            s_mov_b64 exec, vcc
            s_cbranch_execz {la}
            buffer_load_dwordx4 {ar(aB+4*r,4)}, v{base+2*r}, s[{self.sWo}:{self.sWo+3}], 0 offen
            {la}:
            s_not_b64 exec, s[76:77]
            s_cbranch_execz {lb}
            buffer_load_dwordx4 {ar(aB+4*r,4)}, v{base+1+2*r}, s[{self.sW2}:{self.sW2+3}], 0 offen
            {lb}:
            s_mov_b64 exec, -1
            """)
        make_srd(a, self.sW1, pW1, pW1+1, 0, 640*3456)
        a(f"""
        s_mul_i32 s75, s2, 8640
        s_sub_u32 s76, s{sWV}, 4
        s_mul_i32 s76, s76, 2176
        s_add_u32 s75, s75, s76
        v_lshlrev_b32 v{T}, 7, v1
        s_mov_b64 exec, 0x1ffff
        buffer_load_dword v113, v{T}, s[{self.sW1}:{self.sW1+3}], s75 offen sc1
        s_mov_b64 exec, -1
        """)
    def save(self):
        a = self.a
        for r in range(3): a(f"v_accvgpr_write_b32 a{40+r}, v{self.vD+r}")
        for k in range(9): a(f"v_accvgpr_write_b32 a{43+k}, v{100+k}")
    def store(self, wait_after=True, pre="s_waitcnt vmcnt(0)"):
        a = self.a
        a(pre)
        a(f"s_mov_b32 s75, {WS_WOP}")
        for r in range(3):
            a(f"buffer_store_dwordx4 {ar(self.aB+4*r,4)}, v{self.vD+r}, s[{sWS}:{sWS+3}], s75 offen {SC}")
        if wait_after: a("s_waitcnt vmcnt(0)")
        else: a("s_nop 1")

class CoreL:
    sA, sW, sO = 8, 12, 16
    sM0, sN0, sT0, sT1, sT2, sT3 = 21, 22, 23, 24, 25, 26
    sLw, sSlot, sAoff, sWoff, sLds = 20, 28, 29, 30, 31
    sWm, sWn, sNt, sSeq, sSeqW = 32, 33, 34, 35, 36
    vAe, vAo, vWo = 4, 5, 6
    NST = 10
    def __init__(self, a, mode, tag):
        self.a, self.mode, self.tag = a, mode, tag
        self.qkv = mode == 'qkv'
        self.LDW = 3840 if self.qkv else 3456
    def map_tiles(self, idle_label):
        a, c = self.a, self
        if not c.qkv:
            a(f"""
            s_and_b32 s{c.sT3}, s{sRk}, 1
            s_lshl_b32 s{c.sM0}, s{sX}, 1
            s_add_u32 s{c.sM0}, s{c.sM0}, s{c.sT3}
            s_lshl_b32 s{c.sM0}, s{c.sM0}, 7
            s_lshr_b32 s{c.sNt}, s{sRk}, 1
            s_cmp_ge_u32 s{c.sNt}, 14
            s_cbranch_scc1 {idle_label}
            s_lshl_b32 s{c.sN0}, s{c.sNt}, 7
            s_mul_i32 s{c.sSeq}, s{c.sNt}, 3
            s_mul_i32 s{c.sT0}, s{c.sT3}, 5
            s_add_u32 s{c.sSeq}, s{c.sSeq}, s{c.sT0}
            s_mul_i32 s{c.sT0}, s{c.sSeq}, 0xcccd
            s_lshr_b32 s{c.sT0}, s{c.sT0}, 19
            s_mul_i32 s{c.sT0}, s{c.sT0}, 10
            s_sub_u32 s{c.sSeq}, s{c.sSeq}, s{c.sT0}
            """)
            if E('NOROTL'): a(f"s_mov_b32 s{c.sSeq}, 0")
            return
        NT_PER = 8 if c.qkv else 7
        NT_TOT = 15 if c.qkv else 14
        a(f"""
        s_and_b32 s{c.sT0}, s2, 7
        s_lshr_b32 s{c.sT1}, s2, 3
        s_lshr_b32 s{c.sT2}, s{c.sT0}, 1
        s_lshl_b32 s{c.sT2}, s{c.sT2}, 2
        s_and_b32 s{c.sT3}, s{c.sT1}, 3
        s_add_u32 s{c.sM0}, s{c.sT2}, s{c.sT3}
        s_lshl_b32 s{c.sM0}, s{c.sM0}, 7
        s_and_b32 s{c.sT0}, s{c.sT0}, 1
        s_mul_i32 s{c.sT0}, s{c.sT0}, {NT_PER}
        s_lshr_b32 s{c.sT1}, s{c.sT1}, 2
        s_add_u32 s{c.sNt}, s{c.sT0}, s{c.sT1}
        s_cmp_ge_u32 s{c.sT1}, {NT_PER}
        s_cbranch_scc1 {idle_label}
        s_cmp_ge_u32 s{c.sNt}, {NT_TOT}
        s_cbranch_scc1 {idle_label}
        s_lshl_b32 s{c.sN0}, s{c.sNt}, 7
        s_mul_i32 s{c.sSeq}, s{c.sT3}, 3
        s_add_u32 s{c.sSeq}, s{c.sSeq}, s{c.sT1}
        s_cmp_ge_u32 s{c.sSeq}, 10
        s_cselect_b32 s{c.sT0}, 10, 0
        s_sub_u32 s{c.sSeq}, s{c.sSeq}, s{c.sT0}
        """)
        if E('NOROTL'): a(f"s_mov_b32 s{c.sSeq}, 0")
    def loader_setup(self):
        a, c = self.a, self
        a(f"s_sub_u32 s{c.sLw}, s{sWV}, 4")
        if c.qkv:
            make_srd(a, c.sA, pX, pX+1, 0, 2048*1280)
            a(f"""
            v_lshrrev_b32 v2, 3, v1
            v_mul_u32_u24 v2, 1280, v2
            v_lshrrev_b32 v3, 4, v1
            v_and_b32 v7, 7, v1
            v_xor_b32 v3, v3, v7
            v_lshlrev_b32 v3, 4, v3
            v_add_u32 v{c.vAe}, v2, v3
            v_xor_b32 v{c.vAo}, 64, v{c.vAe}
            s_lshl_b32 s{c.sT0}, s{c.sLw}, 5
            s_add_u32 s{c.sT0}, s{c.sT0}, s{c.sM0}
            s_mul_i32 s{c.sAoff}, s{c.sT0}, 1280
            """)
            c.A_SSTEP = 128
        else:
            make_srd(a, c.sA, pWS, pWS+1, WS_H, SZ_ACT)
            a(f"""
            v_lshlrev_b32 v{c.vAe}, 4, v1
            v_add_u32 v{c.vAo}, 1024, v{c.vAe}
            s_lshl_b32 s{c.sT0}, s{c.sLw}, 16
            s_lshl_b32 s{c.sT1}, s{c.sM0}, 4
            s_add_u32 s{c.sAoff}, s{c.sT0}, s{c.sT1}
            """)
            c.A_SSTEP = 8 * 32768
        pw = pWQ if c.qkv else pW1
        make_srd(a, c.sW, pw, pw+1, 0, 640 * c.LDW)
        a(f"""
        v_lshrrev_b32 v2, 4, v1
        v_mul_u32_u24 v3, {c.LDW}, v2
        v_lshlrev_b32 v2, 2, v2
        v_and_b32 v7, 15, v1
        v_xor_b32 v2, v2, v7
        v_lshlrev_b32 v2, 4, v2
        v_add_u32 v{c.vWo}, v2, v3
        s_lshl_b32 s{c.sT0}, s{c.sLw}, 4
        s_mul_i32 s{c.sT0}, s{c.sT0}, {c.LDW}
        s_lshl_b32 s{c.sT1}, s{c.sN0}, 1
        s_add_u32 s{c.sWoff}, s{c.sT0}, s{c.sT1}
        s_lshl_b32 s{c.sLds}, s{c.sLw}, 12
        s_mul_i32 s{c.sT0}, s{c.sSeq}, {c.A_SSTEP}
        s_add_u32 s{c.sAoff}, s{c.sAoff}, s{c.sT0}
        s_mul_i32 s{c.sT0}, s{c.sSeq}, {64 * c.LDW}
        s_add_u32 s{c.sWoff}, s{c.sWoff}, s{c.sT0}
        s_mov_b32 s{c.sSeqW}, s{c.sSeq}
        """)
    def issue_A(self, seq):
        a, c = self.a, self
        slot = (seq % 4) * 32768
        for j in range(4):
            a(f"s_add_u32 m0, s{c.sLds}, {slot}" if j == 0 else "s_add_u32 m0, m0, 1024")
            if c.qkv:
                a(f"s_mov_b32 s{c.sT0}, s{c.sAoff}" if j == 0 else f"s_add_u32 s{c.sT0}, s{c.sT0}, {8*1280}")
            else:
                if j == 0: a(f"s_mov_b32 s{c.sT0}, s{c.sAoff}")
                elif j == 2: a(f"s_add_u32 s{c.sT0}, s{c.sT0}, 32768")
                else: a("s_nop 0")
            a(f"buffer_load_dwordx4 v{c.vAe if j % 2 == 0 else c.vAo}, s[{c.sA}:{c.sA+3}], s{c.sT0} offen {E('QNT_A','') if c.qkv else ''} lds")
        a(f"""
        s_add_u32 s{c.sSeq}, s{c.sSeq}, 1
        s_cmp_eq_u32 s{c.sSeq}, {c.NST}
        s_cselect_b32 s{c.sT0}, {c.NST * c.A_SSTEP}, 0
        s_cselect_b32 s{c.sSeq}, 0, s{c.sSeq}
        s_add_u32 s{c.sAoff}, s{c.sAoff}, {c.A_SSTEP}
        s_sub_u32 s{c.sAoff}, s{c.sAoff}, s{c.sT0}
        """)
    def issue_W(self, seq):
        a, c = self.a, self
        slot = (seq % 4) * 32768 + 16384
        for j in range(4):
            a(f"s_add_u32 m0, s{c.sLds}, {slot}" if j == 0 else "s_add_u32 m0, m0, 1024")
            a(f"s_mov_b32 s{c.sT0}, s{c.sWoff}" if j == 0 else f"s_add_u32 s{c.sT0}, s{c.sT0}, {4 * c.LDW}")
            a(f"buffer_load_dwordx4 v{c.vWo}, s[{c.sW}:{c.sW+3}], s{c.sT0} offen {E('QNT_W','') if c.qkv else ''} lds")
        a(f"""
        s_add_u32 s{c.sSeqW}, s{c.sSeqW}, 1
        s_cmp_eq_u32 s{c.sSeqW}, {c.NST}
        s_cselect_b32 s{c.sT0}, {c.NST * 64 * c.LDW}, 0
        s_cselect_b32 s{c.sSeqW}, 0, s{c.sSeqW}
        s_add_u32 s{c.sWoff}, s{c.sWoff}, {64 * c.LDW}
        s_sub_u32 s{c.sWoff}, s{c.sWoff}, s{c.sT0}
        """)
    vLs = 16
    vSx, vSq, vCs, vU = 48, 56, 64, 72
    vLs = 16
    def lstats_init(self): pass
    def lst_poll_issue(self):
        a, c = self.a, self
        v = c.vLs
        a(f"""
        s_add_u32 s{c.sT0}, s{c.sNt}, {C_CS1 if c.qkv else C_CS2}
        s_lshr_b32 s{c.sT1}, s{c.sM0}, 7
        s_add_u32 s{c.sT1}, s{c.sT1}, {C_ST}
        v_mov_b32 v{v}, s{c.sT0}
        v_writelane_b32 v{v}, s{c.sT1}, 1
        v_mov_b32 v{v+1}, 16
        v_writelane_b32 v{v+1}, {8 if c.qkv else 0}, 1
        v_lshlrev_b32 v{v}, 7, v{v}
        v_add_u32 v{v}, {WS_CNT}, v{v}
        s_mov_b64 exec, 3
        buffer_load_dword v{v+2}, v{v}, s[{sWS}:{sWS+3}], 0 offen sc1
        s_mov_b64 exec, -1
        """)
    def lst_check_issue(self, q):
        a, c = self.a, self
        v = c.vLs
        ok = a.newlabel("lok")
        a(f"""
        s_waitcnt vmcnt({q.need('poll')})
        s_mov_b64 exec, 3
        v_cmp_gt_u32 vcc, v{v+1}, v{v+2}
        s_nop 4
        s_cmp_eq_u64 vcc, 0
        s_cbranch_scc1 {ok}
        """)
        poll(a, v, v + 1, 2, v + 2)
        a.label(ok)
        a("s_mov_b64 exec, -1")
        ncol = 1920 if c.qkv else 1792
        d = v + 8
        a(f"""
        v_and_b32 v{v+4}, 31, v1
        v_lshlrev_b32 v{v+5}, 2, v{v+4}
        v_lshlrev_b32 v{v+4}, 3, v{v+4}
        s_lshl_b32 s{c.sT0}, s{c.sLw}, 5
        s_add_u32 s{c.sT1}, s{c.sT0}, s{c.sN0}
        s_lshl_b32 s{c.sT1}, s{c.sT1}, 2
        s_add_u32 s{c.sT1}, s{c.sT1}, {WS_CS1 if c.qkv else WS_CS2}
        s_mov_b32 exec_hi, 0
        """)
        for j in range(16):
            a(f"buffer_load_dword v{d+j}, v{v+5}, s[{sWS}:{sWS+3}], s{c.sT1} offen")
            if j < 15: a(f"s_add_u32 s{c.sT1}, s{c.sT1}, {ncol*4}")
        a(f"""
        s_mov_b32 exec_lo, 0
        s_mov_b32 exec_hi, -1
        s_add_u32 s{c.sT1}, s{c.sT0}, s{c.sM0}
        s_lshl_b32 s{c.sT1}, s{c.sT1}, 3
        s_add_u32 s{c.sT1}, s{c.sT1}, {WS_ST1 if c.qkv else WS_ST2}
        """)
        npart = 1 if c.qkv else 8
        for j in range(npart):
            a(f"buffer_load_dwordx2 {vr(d+16+2*j,2)}, v{v+4}, s[{sWS}:{sWS+3}], s{c.sT1} offen")
            if j < npart - 1: a(f"s_add_u32 s{c.sT1}, s{c.sT1}, {2048*8}")
        a("s_mov_b64 exec, -1")
        q.push("stats", 16 + npart)
    def lst_finish(self, q):
        a, c = self.a, self
        v = c.vLs
        d = v + 8
        a(f"s_waitcnt vmcnt({q.need('stats')})")
        for j in range(1, 16):
            a(f"v_add_f32 v{d}, v{d}, v{d+j}")
        S, Q = d + 16, d + 17
        if not c.qkv:
            for j in range(1, 8):
                a(f"v_add_f32 v{S}, v{S}, v{S+2*j}")
                a(f"v_add_f32 v{Q}, v{Q}, v{Q+2*j}")
            a(f"""
            v_mul_f32 v{S}, {f32bits(1.0/640):#x}, v{S}
            v_mul_f32 v{Q}, {f32bits(1.0/640):#x}, v{Q}
            v_fma_f32 v{Q}, -v{S}, v{S}, v{Q}
            v_max_f32 v{Q}, 0, v{Q}
            v_add_f32 v{Q}, {f32bits(1e-5):#x}, v{Q}
            v_rsq_f32 v{Q}, v{Q}
            """)
        a(f"""
        s_lshl_b32 s{c.sT0}, s{c.sLw}, 7
        s_add_u32 s{c.sT0}, s{c.sT0}, {STAT}
        v_add_u32 v{v+5}, s{c.sT0}, v{v+5}
        s_mov_b32 exec_hi, 0
        ds_write_b32 v{v+5}, v{d} offset:1024
        s_mov_b32 exec_lo, 0
        s_mov_b32 exec_hi, -1
        ds_write_b32 v{v+5}, v{S}
        ds_write_b32 v{v+5}, v{Q} offset:512
        s_mov_b64 exec, -1
        s_waitcnt lgkmcnt(0)
        """)
    def tq_poll_issue(self):
        a, c = self.a, self
        v = c.vLs
        a(f"""
        s_lshr_b32 s{c.sT1}, s{c.sM0}, 7
        s_add_u32 s{c.sT1}, s{c.sT1}, {C_ST}
        s_lshl_b32 s{c.sT1}, s{c.sT1}, 7
        s_add_u32 s{c.sT1}, s{c.sT1}, {WS_CNT}
        v_mov_b32 v{v}, s{c.sT1}
        v_mov_b32 v{v+1}, {5 if E('P0L') else 1}
        s_mov_b64 exec, 1
        buffer_load_dword v{v+2}, v{v}, s[{sWS}:{sWS+3}], 0 offen sc1
        s_mov_b64 exec, -1
        """)
    def tq_check_issue(self, q):
        a, c = self.a, self
        v = c.vLs
        ok = a.newlabel("lok")
        a(f"""
        s_waitcnt vmcnt({q.need('poll')})
        v_readfirstlane_b32 s{c.sT0}, v{v+2}
        s_cmp_ge_u32 s{c.sT0}, {5 if E('P0L') else 1}
        s_cbranch_scc1 {ok}
        """)
        poll(a, v, v + 1, 1, v + 2)
        a.label(ok)
        a(f"""
        v_and_b32 v{v+4}, 31, v1
        v_lshlrev_b32 v{v+5}, 2, v{v+4}
        v_lshlrev_b32 v{v+4}, 3, v{v+4}
        s_lshl_b32 s{c.sT0}, s{c.sLw}, 5
        s_add_u32 s{c.sT1}, s{c.sT0}, s{c.sM0}
        s_lshl_b32 s{c.sT1}, s{c.sT1}, 3
        s_add_u32 s{c.sT1}, s{c.sT1}, {WS_ST1}
        buffer_load_dwordx2 {vr(v+8,2)}, v{v+4}, s[{sWS}:{sWS+3}], s{c.sT1} offen
        """)
        q.push("stats", 1)
    def tq_finish(self, q):
        a, c = self.a, self
        v = c.vLs
        a(f"""
        s_waitcnt vmcnt({q.need('stats')})
        s_lshl_b32 s{c.sT0}, s{c.sLw}, 7
        s_add_u32 s{c.sT0}, s{c.sT0}, {STAT}
        v_add_u32 v{v+5}, s{c.sT0}, v{v+5}
        ds_write_b32 v{v+5}, v{v+8}
        ds_write_b32 v{v+5}, v{v+9} offset:512
        """)
    def tok_issue(self, q):
        a, c = self.a, self
        v = c.vLs
        d = v + 8
        a(f"""
        v_and_b32 v{v+4}, 31, v1
        v_lshlrev_b32 v{v+5}, 2, v{v+4}
        v_lshlrev_b32 v{v+4}, 3, v{v+4}
        s_lshl_b32 s{c.sT0}, s{c.sLw}, 5
        s_add_u32 s{c.sT1}, s{c.sT0}, s{c.sM0}
        s_lshl_b32 s{c.sT1}, s{c.sT1}, 3
        s_add_u32 s{c.sT1}, s{c.sT1}, {WS_ST2}
        s_mov_b32 exec_hi, 0
        """)
        for j in range(16):
            a(f"buffer_load_dwordx2 {vr(d+2*j,2)}, v{v+4}, s[{sWS}:{sWS+3}], s{c.sT1} offen")
            if j < 15: a(f"s_add_u32 s{c.sT1}, s{c.sT1}, {2048*8}")
        a("s_mov_b32 exec_hi, -1")
        q.push("stats", 16)
    def tok_finish(self, q):
        a, c = self.a, self
        v = c.vLs
        S, Q = v + 8, v + 9
        a(f"s_waitcnt vmcnt({q.need('stats')})")
        for j in range(1, 16):
            a(f"v_add_f32 v{S}, v{S}, v{S+2*j}")
            a(f"v_add_f32 v{Q}, v{Q}, v{Q+2*j}")
        a(f"""
        v_mul_f32 v{S}, {f32bits(1.0/640):#x}, v{S}
        v_mul_f32 v{Q}, {f32bits(1.0/640):#x}, v{Q}
        v_fma_f32 v{Q}, -v{S}, v{S}, v{Q}
        v_max_f32 v{Q}, 0, v{Q}
        v_add_f32 v{Q}, {f32bits(1e-5):#x}, v{Q}
        v_rsq_f32 v{Q}, v{Q}
        s_lshl_b32 s{c.sT0}, s{c.sLw}, 7
        s_add_u32 s{c.sT0}, s{c.sT0}, {STAT}
        v_add_u32 v{v+5}, s{c.sT0}, v{v+5}
        s_mov_b32 exec_hi, 0
        ds_write_b32 v{v+5}, v{S}
        ds_write_b32 v{v+5}, v{Q} offset:512
        s_mov_b32 exec_hi, -1
        """)
    def loader_main(self, q, p0=None):
        a, c = self.a, self
        for s_ in range(c.NST):
            tags = [f'A{s_}', f'W{s_}']
            if c.qkv and s_ == 4 and E('P0L'): tags.append('p0st')
            a(f"s_waitcnt vmcnt({q.need(*tags)}) lgkmcnt(0)")
            if getattr(c, 'ldstamps', False) and s_ in (0, 1, 2): st(a, 4 + s_)
            a("s_barrier")
            stx(a, f"{c.tag}l{s_}")
            if c.qkv:
                vd = 70
                if s_ == 0: wave_only(a, 4, lambda: a(f"buffer_load_dword v{vd}, v{vd+1}, s[44:47], 0 offen sc1"))
                if s_ == 4 and E('P0L'): wave_only(a, 4, lambda: p0r_arrive(a, c, vd))
                if s_ == 3: wave_only(a, 7, lambda: reg_step1(a, vd))
                if s_ == 5: wave_only(a, 7, lambda: reg_step2(a, vd))
                if s_ == 7: wave_only(a, 7, lambda: reg_step3(a, vd))
            if s_ + PD < c.NST and not (E('X_NODMA') and c.qkv):
                c.issue_A(s_ + PD); q.push(f"A{s_+PD}", 4)
                c.issue_W(s_ + PD); q.push(f"W{s_+PD}", 4)
            if c.qkv and s_ == 1 and E('P0L'):
                a(f"s_waitcnt vmcnt({q.need('p0l')})"); c.p0l.finish(); q.push('p0st', 1)
            if not c.qkv:
                if s_ == 7: c.tok_issue(q)
                if s_ == 8 and not E('NOPFW0'): w2_first_prefetch(a, c)
                if s_ == 9: c.tok_finish(q)
                if E('PFW2') and 0 <= s_ < 9:
                    wave_only(a, 4 + (s_ % 4), lambda: w2p_prefetch(a, s_))
            else:
                if s_ == 8 and getattr(c, 'hook7', None): c.hook7()
                if s_ == 6:
                    c.tq_poll_issue(); q.push("poll", 1)
                if s_ == 7: c.tq_check_issue(q)
                if s_ == 9: c.tq_finish(q)

    vAd, vX, vW, vAcc, vT, vSt = 24, 32, 32, 64, 128, 144
    def compute_setup(self):
        a, c = self.a, self
        NXA = 8 if c.qkv else 2
        c.NXA = NXA
        c.vXa = 4
        c.vWa = c.vXa + 2 * NXA
        vXa, vWa, vT = c.vXa, c.vWa, c.vT
        t0, t1 = vT, vT + 1
        a(f"""
        s_lshr_b32 s{c.sWm}, s{sWV}, 1
        s_and_b32 s{c.sWn}, s{sWV}, 1
        v_and_b32 v2, 31, v1
        v_lshrrev_b32 v3, 5, v1
        """)
        if c.qkv:
            a(f"""
            v_lshrrev_b32 v{t0}, 1, v1
            v_and_b32 v{t0}, 7, v{t0}
            v_xor_b32 v{t0}, v{t0}, v3
            v_lshlrev_b32 v{t0}, 4, v{t0}
            v_lshlrev_b32 v{t1}, 7, v2
            v_add_u32 v{t0}, v{t0}, v{t1}
            s_lshl_b32 s{c.sT0}, s{c.sWm}, 13
            s_lshl_b32 s{c.sT1}, s{c.sWn}, 12
            s_add_u32 s{c.sT0}, s{c.sT0}, s{c.sT1}
            v_add_u32 v{t0}, s{c.sT0}, v{t0}
            """)
            for s in range(4):
                a(f"v_xor_b32 v{vXa + s}, {32 * s}, v{t0}")
                a(f"v_xor_b32 v{vXa + 4 + s}, 4096, v{vXa + s}")
        else:
            a(f"""
            v_lshlrev_b32 v{t0}, 11, v3
            v_lshlrev_b32 v{t1}, 4, v2
            v_add_u32 v{t0}, v{t0}, v{t1}
            s_lshl_b32 s{c.sT0}, s{c.sWm}, 10
            v_add_u32 v{vXa}, s{c.sT0}, v{t0}
            v_add_u32 v{vXa + 1}, 512, v{vXa}
            """)
        for i in range(NXA):
            a(f"v_add_u32 v{vXa + NXA + i}, 65536, v{vXa + i}")
        a(f"""
        v_lshrrev_b32 v{t0}, 2, v1
        v_and_b32 v{t0}, 3, v{t0}
        v_lshlrev_b32 v{t1}, 3, v3
        v_add_u32 v{t1}, v{t1}, v{t0}
        v_lshlrev_b32 v{t1}, 8, v{t1}
        v_lshlrev_b32 v{t0}, 6, v{t0}
        v_add_u32 v{t1}, v{t1}, v{t0}
        v_lshrrev_b32 v{t0}, 4, v1
        v_and_b32 v{t0}, 1, v{t0}
        v_lshlrev_b32 v{t0}, 5, v{t0}
        v_add_u32 v{t1}, v{t1}, v{t0}
        v_lshrrev_b32 v{t0}, 1, v1
        v_and_b32 v{t0}, 1, v{t0}
        v_lshlrev_b32 v{t0}, 4, v{t0}
        v_add_u32 v{t1}, v{t1}, v{t0}
        v_and_b32 v{t0}, 1, v1
        v_lshlrev_b32 v{t0}, 3, v{t0}
        v_add_u32 v{t1}, v{t1}, v{t0}
        v_add_u32 v{t1}, 16384, v{t1}
        s_lshl_b32 s{c.sT0}, s{c.sWn}, 7
        s_lshl_b32 s{c.sT1}, s{c.sWm}, 6
        s_add_u32 s{c.sT0}, s{c.sT0}, s{c.sT1}
        v_xor_b32 v{vWa}, s{c.sT0}, v{t1}
        v_xor_b32 v{vWa + 1}, 64, v{vWa}
        v_add_u32 v{vWa + 2}, 65536, v{vWa}
        v_add_u32 v{vWa + 3}, 65536, v{vWa + 1}
        """)
    def addr_qk(self):
        a, c = self.a, self
        vT, vAd = c.vT, c.vAd
        t0, t1 = vT, vT + 1
        a(f"""
        s_cmp_lt_u32 s{c.sNt}, 5
        s_cselect_b32 s{c.sT0}, 0, 640
        s_sub_u32 s{c.sT2}, s{c.sN0}, s{c.sT0}
        s_lshl_b32 s{c.sT1}, s{c.sWn}, 6
        s_add_u32 s{c.sT2}, s{c.sT2}, s{c.sT1}
        s_lshr_b32 s{c.sT2}, s{c.sT2}, 3
        v_add_u32 v{t0}, s{c.sT2}, v3
        v_lshlrev_b32 v{vT+4}, 4, v2
        """)
        for ft in range(2):
            for j in range(2):
                d = vAd + ft*2 + j
                a(f"""
                s_xor_b32 s{c.sT3}, s{c.sWm}, {ft}
                s_lshl_b32 s{c.sT3}, s{c.sT3}, 2
                s_add_u32 s{c.sT3}, s{c.sT3}, {2*j}
                v_add_u32 v{t1}, s{c.sT3}, v{t0}
                v_mul_u32_u24 v{vT+2}, 0xcccd, v{t1}
                v_lshrrev_b32 v{vT+2}, 18, v{vT+2}
                v_mul_u32_u24 v{vT+3}, 5, v{vT+2}
                v_sub_u32 v{vT+3}, v{t1}, v{vT+3}
                v_lshlrev_b32 v{vT+3}, 9, v{vT+3}
                v_mul_u32_u24 v{vT+2}, 0x28000, v{vT+2}
                v_add3_u32 v{d}, v{vT+2}, v{vT+3}, v{vT+4}
                """)
        a(f"""
        s_lshr_b32 s{c.sT0}, s{c.sM0}, 5
        s_lshl_b32 s{c.sT1}, s{c.sWm}, 1
        s_add_u32 s{c.sT0}, s{c.sT0}, s{c.sT1}
        s_add_u32 s{c.sT1}, s{c.sT0}, s{c.sWn}
        s_mul_i32 s40, s{c.sT1}, 2560
        s_xor_b32 s{c.sT1}, s{c.sWn}, 1
        s_add_u32 s{c.sT1}, s{c.sT0}, s{c.sT1}
        s_mul_i32 s41, s{c.sT1}, 2560
        s_cmp_lt_u32 s{c.sNt}, 5
        s_cselect_b32 s{c.sT0}, {WS_Q}, {WS_K}
        s_add_u32 s{c.sO}, s{pWS}, s{c.sT0}
        s_addc_u32 s{c.sO+1}, s{pWS+1}, 0
        s_and_b32 s{c.sO+1}, s{c.sO+1}, 0xffff
        s_mov_b32 s{c.sO+2}, {SZ_QK}
        s_mov_b32 s{c.sO+3}, 0x20000
        """)
    def addr_f(self):
        a, c = self.a, self
        vT, vAd = c.vT, c.vAd
        t0, t1 = vT, vT + 1
        a(f"""
        s_lshl_b32 s{c.sT1}, s{c.sWn}, 6
        s_add_u32 s{c.sT2}, s{c.sN0}, s{c.sT1}
        s_lshr_b32 s{c.sT2}, s{c.sT2}, 3
        v_add_u32 v{t0}, s{c.sT2}, v3
        v_lshlrev_b32 v{t0}, 15, v{t0}
        v_lshlrev_b32 v{t1}, 4, v2
        v_add_u32 v{t0}, v{t0}, v{t1}
        """)
        for ft in range(2):
            for j in range(2):
                a(f"s_xor_b32 s{c.sT3}, s{c.sWm}, {ft}")
                a(f"s_lshl_b32 s{c.sT3}, s{c.sT3}, 2")
                a(f"s_add_u32 s{c.sT3}, s{c.sT3}, {2*j}")
                a(f"s_lshl_b32 s{c.sT3}, s{c.sT3}, 15")
                a(f"v_add_u32 v{vAd + ft*2 + j}, s{c.sT3}, v{t0}")
        a(f"""
        s_lshl_b32 s{c.sT1}, s{c.sWm}, 6
        s_add_u32 s{c.sT0}, s{c.sM0}, s{c.sT1}
        s_lshl_b32 s40, s{c.sT0}, 4
        s_add_u32 s41, s40, 512
        """)
        make_srd(a, c.sO, pWS, pWS+1, WS_F, SZ_F)
    def addr_v(self):
        a, c = self.a, self
        vT, vAd = c.vT, c.vAd
        t0, t1 = vT, vT + 1
        for ft in range(2):
            a(f"""
            s_lshl_b32 s{c.sT1}, s{c.sWn}, 6
            s_add_u32 s{c.sT0}, s{c.sN0}, s{c.sT1}
            s_xor_b32 s{c.sT1}, s{c.sWm}, {ft}
            s_lshl_b32 s{c.sT1}, s{c.sT1}, 5
            s_add_u32 s{c.sT0}, s{c.sT0}, s{c.sT1}
            s_sub_u32 s{c.sT0}, s{c.sT0}, 1280
            v_add_u32 v{t0}, s{c.sT0}, v2
            v_mul_u32_u24 v{t1}, 0xcccd, v{t0}
            v_lshrrev_b32 v{t1}, 20, v{t1}
            v_mul_u32_u24 v{vT+2}, 20, v{t1}
            v_sub_u32 v{t0}, v{t0}, v{vT+2}
            v_lshlrev_b32 v{t0}, 4, v{t0}
            v_mul_u32_u24 v{t1}, 0x14000, v{t1}
            v_add_u32 v{t0}, v{t0}, v{t1}
            v_mul_u32_u24 v{t1}, 320, v3
            v_add_u32 v{vAd+ft}, v{t0}, v{t1}
            """)
        a(f"""
        s_lshl_b32 s{c.sT1}, s{c.sWm}, 6
        s_add_u32 s{c.sT0}, s{c.sM0}, s{c.sT1}
        s_lshr_b32 s{c.sT0}, s{c.sT0}, 4
        s_lshl_b32 s{c.sT1}, s{c.sWn}, 1
        s_add_u32 s{c.sT1}, s{c.sT1}, s{c.sT0}
        s_mul_i32 s40, s{c.sT1}, 640
        s_add_u32 s41, s40, 640
        s_xor_b32 s{c.sT1}, s{c.sWn}, 1
        s_lshl_b32 s{c.sT1}, s{c.sT1}, 1
        s_add_u32 s{c.sT1}, s{c.sT1}, s{c.sT0}
        s_mul_i32 s42, s{c.sT1}, 640
        s_add_u32 s43, s42, 640
        """)
        make_srd(a, c.sO, pWS, pWS+1, WS_V, SZ_QKV)
    def stats_poll_issue(self):
        a, c = self.a, self
        vS = c.vSt
        a(f"""
        v_lshlrev_b32 v{vS+30}, 7, v1
        v_add_u32 v{vS+30}, {WS_CNT + (C_P0 if c.qkv else C_W1)*128}, v{vS+30}
        s_mov_b64 exec, 0xff
        buffer_load_dword v{vS+29}, v{vS+30}, s[{sWS}:{sWS+3}], 0 offen sc1
        s_mov_b64 exec, -1
        """)
    def stats_poll_check(self):
        a, c = self.a, self
        vS = c.vSt
        ok = a.newlabel("stok")
        a(f"""
        s_waitcnt vmcnt(0)
        s_mov_b64 exec, 0xff
        v_cmp_gt_u32 vcc, 128, v{vS+29}
        s_nop 4
        s_cmp_eq_u64 vcc, 0
        s_cbranch_scc1 {ok}
        v_mov_b32 v{vS+28}, 128
        """)
        poll(a, vS + 30, vS + 28, 8, vS + 29)
        a.label(ok)
        a("s_mov_b64 exec, -1")
        a("s_nop 3")
    def stats_issue(self):
        a, c = self.a, self
        vS = c.vSt
        a(f"""
        v_lshlrev_b32 v{vS+31}, 2, v2
        v_lshlrev_b32 v{vS+30}, 3, v2
        s_lshl_b32 s{c.sT0}, s{sWV}, 5
        s_add_u32 s{c.sT1}, s{c.sT0}, s{c.sM0}
        s_lshl_b32 s{c.sT1}, s{c.sT1}, 3
        s_add_u32 s{c.sT1}, s{c.sT1}, {WS_ST2}
        """)
        for j in range(8):
            a(f"buffer_load_dwordx2 {vr(vS+8+2*j,2)}, v{vS+30}, s[{sWS}:{sWS+3}], s{c.sT1} offen")
            if j < 7: a(f"s_add_u32 s{c.sT1}, s{c.sT1}, {2048*8}")
    def stats_finish(self):
        a, c = self.a, self
        vS = c.vSt
        a("s_waitcnt vmcnt(0)")
        S, Q = vS + 8, vS + 9
        for j in range(1, 8):
            a(f"v_add_f32 v{S}, v{S}, v{S+2*j}")
            a(f"v_add_f32 v{Q}, v{Q}, v{Q+2*j}")
        a(f"""
        v_mul_f32 v{S}, {f32bits(1.0/640):#x}, v{S}
        v_mul_f32 v{Q}, {f32bits(1.0/640):#x}, v{Q}
        v_fma_f32 v{Q}, -v{S}, v{S}, v{Q}
        v_max_f32 v{Q}, 0, v{Q}
        v_add_f32 v{Q}, {f32bits(1e-5):#x}, v{Q}
        v_rsq_f32 v{Q}, v{Q}
        s_lshl_b32 s{c.sT0}, s{sWV}, 7
        s_add_u32 s{c.sT0}, s{c.sT0}, {STAT}
        v_add_u32 v{vS+31}, s{c.sT0}, v{vS+31}
        ds_write_b32 v{vS+31}, v{S}
        ds_write_b32 v{vS+31}, v{Q} offset:512
        """)
    aX = 4
    def read_list(self, i):
        c = self
        st_, step, buf = i // 4, i % 4, i % 3
        slot = st_ % 4
        win, base = slot >> 1, (slot & 1) * 32768
        L = []
        for lt in range(2):
            if c.qkv:
                L.append(f"ds_read_b128 {ar(c.aX + buf*8 + lt*4, 4)}, v{c.vXa + win*8 + lt*4 + step} offset:{base}")
            else:
                L.append(f"ds_read_b128 {ar(c.aX + buf*8 + lt*4, 4)}, v{c.vXa + win*2 + lt} offset:{base + step*4096}")
        for lf in range(2):
            for h2 in range(2):
                L.append(f"ds_read_b64_tr_b16 {vr(c.vW + buf*8 + lf*4 + h2*2, 2)}, v{c.vWa + win*2 + lf} offset:{base + step*4096 + h2*1024}")
        return L
    def reads(self, i):
        for r in self.read_list(i): self.a(r)
    def mfma(self, i, k, orientY):
        a, c = self.a, self
        buf = i % 3
        lf, lt = k >> 1, k & 1
        acc = c.vAcc + (lf*2 + lt) * 16
        xa, wa = ar(c.aX + buf*8 + lt*4, 4), vr(c.vW + buf*8 + lf*4, 4)
        cc = "0" if i == 0 else vr(acc, 16)
        if orientY: a(f"v_mfma_f32_32x32x16_bf16 {vr(acc,16)}, {wa}, {xa}, {cc}")
        else: a(f"v_mfma_f32_32x32x16_bf16 {vr(acc,16)}, {xa}, {wa}, {cc}")
    def mainloop(self, orientY, stamp0=None, tag='q'):
        a, c = self.a, self
        vS = c.vSt
        CS = vS
        UU = c.vT
        a(f"v_mov_b32 v{CS}, 0")
        a(f"v_mov_b32 v{CS+1}, 0")
        if c.qkv and E('TLBE'): wave_only(a, 3, lambda: tlb_warm(a))
        a("s_barrier")
        if stamp0 is not None: st(a, stamp0)
        stx(a, tag + '_s0')
        c.reads(0)
        c.reads(1)
        for i in range(40):
            buf = i % 3
            Wl = c.vW + buf*8
            ops = []
            for r in range(4):
                u = UU + 2*(r & 1)
                ops += [f"v_lshlrev_b32 v{u}, 16, v{Wl+r}", f"v_and_b32 v{u+1}, 0xffff0000, v{Wl+r}",
                        f"v_add_f32 v{CS}, v{CS}, v{u}", f"v_add_f32 v{CS+1}, v{CS+1}, v{u+1}"]
            if E('X_NOVALU'): ops = []
            rl = c.read_list(i + 2) if i + 2 < 40 else []
            if i == 4: stx(a, tag + '_s1')
            if i == 20: stx(a, tag + '_s5')
            a(f"s_waitcnt lgkmcnt({6 if i + 1 < 40 else 0})")
            c.mfma(i, 0, orientY)
            if i + 2 < 40 and (i + 2) % 4 == 0:
                a("s_barrier")
            for o in rl[0:2] + ops[0:3]: a(o)
            c.mfma(i, 1, orientY)
            for o in rl[2:4] + ops[3:6]: a(o)
            if c.qkv and i == int(E('TLBI', '2')) and not E('NOTLB') and not E('TLBE'): wave_only(a, 3, lambda: tlb_warm(a))
            c.mfma(i, 2, orientY)
            for o in rl[4:6] + ops[6:10]: a(o)
            c.mfma(i, 3, orientY)
            for o in ops[10:16]: a(o)
        U = vS + 14
        a(f"""
        v_add_f32 v{CS}, v{CS}, v{CS+1}
        s_nop 0
        v_mov_b32 v{CS+1}, v{CS}
        s_nop 1
        v_permlane32_swap_b32 v{CS}, v{CS+1}
        s_nop 1
        v_add_f32 v{CS}, v{CS}, v{CS+1}
        """)
        a(f"""
        s_lshl_b32 s{c.sT0}, s{c.sWn}, 8
        s_lshl_b32 s{c.sT1}, s{c.sWm}, 7
        s_add_u32 s{c.sT0}, s{c.sT0}, s{c.sT1}
        s_add_u32 s{c.sT0}, s{c.sT0}, {STAT + 1024}
        v_lshlrev_b32 v{U}, 2, v2
        v_add_u32 v{U+1}, s{c.sT0}, v{U}
        ds_write_b32 v{U+1}, v{CS}
        """)
        a("s_waitcnt lgkmcnt(0)")
    def dbg_issue(self):
        a, c = self.a, self
        make_srd(a, 44, pDBG, pDBG+1, 0, 256)
        a(f"v_lshlrev_b32 v{c.vSt+27}, 2, v1")
        a("s_mov_b64 exec, 0x1ff")
        a(f"buffer_load_dword v{c.vSt+26}, v{c.vSt+27}, s[44:47], 0 offen sc1")
        a("s_mov_b64 exec, -1")
        a("s_nop 1")
    def epilogue_Y(self, kind):
        a, c = self.a, self
        vT, vAcc, vAd = c.vT, c.vAcc, c.vAd
        vM, vR, vC = vT, vT + 2, 32
        for lt in range(2):
            a(f"""
            s_lshl_b32 s{c.sT1}, s{c.sWm}, 8
            s_add_u32 s{c.sT0}, s{c.sT1}, {STAT + (0 if c.qkv else lt*128)}
            s_xor_b32 s{c.sT1}, s{c.sWn}, {lt}
            s_lshl_b32 s{c.sT1}, s{c.sT1}, {7 if c.qkv else 31}
            s_add_u32 s{c.sT0}, s{c.sT0}, {'s%d' % c.sT1 if c.qkv else 0}
            v_lshlrev_b32 v{vT+4}, 2, v2
            v_add_u32 v{vT+4}, s{c.sT0}, v{vT+4}
            ds_read_b32 v{vM + lt}, v{vT+4}
            ds_read_b32 v{vR + lt}, v{vT+4} offset:512
            """)
        for lf in range(2):
            a(f"""
            s_lshl_b32 s{c.sT1}, s{c.sWn}, 8
            s_add_u32 s{c.sT0}, s{c.sT1}, {STAT + 1024}
            s_xor_b32 s{c.sT1}, s{c.sWm}, {lf}
            s_lshl_b32 s{c.sT1}, s{c.sT1}, 7
            s_add_u32 s{c.sT0}, s{c.sT0}, s{c.sT1}
            v_lshlrev_b32 v{vT+4}, 4, v3
            v_add_u32 v{vT+4}, s{c.sT0}, v{vT+4}
            """)
            for q in range(4):
                a(f"ds_read_b128 {vr(vC + lf*16 + q*4, 4)}, v{vT+4} offset:{q*32}")
        a("s_waitcnt lgkmcnt(0)")
        if kind == 'qk':
            a(f"""
            s_cmp_lt_u32 s{c.sNt}, 5
            s_cselect_b32 s{c.sT0}, {f32bits(QSCALE):#x}, 1.0
            v_mul_f32 v{vR}, s{c.sT0}, v{vR}
            v_mul_f32 v{vR+1}, s{c.sT0}, v{vR+1}
            """)
        B = c.vSt + 2
        for lt in range(2):
            a(f"v_mov_b32 v{B + 2*lt}, v{vM + lt}")
            a(f"v_mov_b32 v{B + 2*lt + 1}, v{vM + lt}")
            a(f"v_mov_b32 v{B + 4 + 2*lt}, v{vR + lt}")
            a(f"v_mov_b32 v{B + 4 + 2*lt + 1}, v{vR + lt}")
        vP = vT + 8
        n = 0
        for lf in range(2):
            for lt in range(2):
                acc = vAcc + (lf*2 + lt) * 16
                for r in range(0, 16, 2):
                    a(f"v_pk_fma_f32 {vr(acc + r, 2)}, {vr(B + 2*lt, 2)}, {vr(vC + lf*16 + r, 2)}, {vr(acc + r, 2)} neg_lo:[1,0,0] neg_hi:[1,0,0]")
                for r in range(0, 16, 2):
                    a(f"v_pk_mul_f32 {vr(acc + r, 2)}, {vr(acc + r, 2)}, {vr(B + 4 + 2*lt, 2)}")
                for j in range(2):
                    p = vP + (n & 1) * 4
                    n += 1
                    q0 = acc + j*8
                    for k in range(4):
                        a(f"v_cvt_pk_bf16_f32 v{p+k}, v{q0+2*k}, v{q0+2*k+1}")
                    if kind == 'ffn1':
                        for k in range(4):
                            a(f"v_pk_max_i16 v{p+k}, v{p+k}, 0")
                    else:
                        a("s_nop 0")
                    a("s_nop 0")
                    if kind == 'ffn1': a("s_nop 0")
                    a(f"v_permlane32_swap_b32 v{p}, v{p+2}")
                    a(f"v_permlane32_swap_b32 v{p+1}, v{p+3}")
                    ins = f"buffer_store_dwordx4 {vr(p,4)}, v{vAd + lf*2 + j}, s[{c.sO}:{c.sO+3}], s{40 + lt} offen @SC"
                    if kind == 'ffn1': dual(a, [ins])
                    else: a(ins.replace("@SC", SC))
    def epilogue_X(self):
        a, c = self.a, self
        vT, vAcc, vAd = c.vT, c.vAcc, c.vAd
        vC, vM, vR = vT, 32, 48
        for lf in range(2):
            a(f"""
            s_lshl_b32 s{c.sT1}, s{c.sWn}, 8
            s_add_u32 s{c.sT0}, s{c.sT1}, {STAT + 1024}
            s_xor_b32 s{c.sT1}, s{c.sWm}, {lf}
            s_lshl_b32 s{c.sT1}, s{c.sT1}, 7
            s_add_u32 s{c.sT0}, s{c.sT0}, s{c.sT1}
            v_lshlrev_b32 v{vT+4}, 2, v2
            v_add_u32 v{vT+4}, s{c.sT0}, v{vT+4}
            ds_read_b32 v{vC + lf}, v{vT+4}
            """)
        vP = vT + 8
        n = 0
        for lt in range(2):
            a(f"""
            s_lshl_b32 s{c.sT1}, s{c.sWm}, 8
            s_add_u32 s{c.sT0}, s{c.sT1}, {STAT}
            s_xor_b32 s{c.sT1}, s{c.sWn}, {lt}
            s_lshl_b32 s{c.sT1}, s{c.sT1}, 7
            s_add_u32 s{c.sT0}, s{c.sT0}, s{c.sT1}
            v_lshlrev_b32 v{vT+4}, 4, v3
            v_add_u32 v{vT+4}, s{c.sT0}, v{vT+4}
            """)
            for q in range(4):
                a(f"ds_read_b128 {vr(vM + q*4, 4)}, v{vT+4} offset:{q*32}")
                a(f"ds_read_b128 {vr(vR + q*4, 4)}, v{vT+4} offset:{512 + q*32}")
            a("s_waitcnt lgkmcnt(0)")
            B = c.vSt + 2
            if lt == 0:
                for lf in range(2):
                    a(f"v_mov_b32 v{B + 2*lf}, v{vC + lf}")
                    a(f"v_mov_b32 v{B + 2*lf + 1}, v{vC + lf}")
            for lf in range(2):
                acc = vAcc + (lf*2 + lt) * 16
                for r in range(0, 16, 2):
                    a(f"v_pk_fma_f32 {vr(acc + r, 2)}, {vr(vM + r, 2)}, {vr(B + 2*lf, 2)}, {vr(acc + r, 2)} neg_lo:[1,0,0] neg_hi:[1,0,0]")
                for r in range(0, 16, 2):
                    a(f"v_pk_mul_f32 {vr(acc + r, 2)}, {vr(acc + r, 2)}, {vr(vR + r, 2)}")
                for g in range(2):
                    p = vP + (n & 1) * 4
                    n += 1
                    for r in range(4):
                        a(f"v_cvt_pk_bf16_f32 v{p + r}, v{acc + g*8 + 2*r}, v{acc + g*8 + 2*r + 1}")
                    a(f"buffer_store_dwordx4 {vr(p,4)}, v{vAd + lf}, s[{c.sO}:{c.sO+3}], s{40 + lt*2 + g} offen {SC}")

STG = 36864
class CoreS:
    sA, sO, sR = 8, 16, 40
    sM0, sN0, sT0, sT1, sT2, sNt = 21, 22, 23, 24, 25, 26
    sLw, sAoff, sWoff, sLdsA, sLdsW, sSeq, sSeqW = 20, 29, 30, 31, 32, 33, 34
    vA = 4
    vXa2, vWa2 = 116, 117
    def __init__(self, a, mode):
        self.a, self.mode = a, mode
        self.op = mode == 'oproj'
        self.NST = 5 if self.op else 14
    def map_tiles(self):
        a, c = self.a, self
        NST = c.NST
        a(f"""
        s_and_b32 s{c.sT0}, s{sRk}, 3
        s_lshl_b32 s{c.sM0}, s{sX}, 2
        s_add_u32 s{c.sM0}, s{c.sM0}, s{c.sT0}
        s_lshl_b32 s{c.sM0}, s{c.sM0}, 6
        s_lshr_b32 s{c.sNt}, s{sRk}, 2
        s_mul_i32 s{c.sN0}, s{c.sNt}, 80
        s_mul_i32 s{c.sSeq}, s{c.sT0}, {1 if c.op else 3}
        s_mul_i32 s{c.sT1}, s{c.sNt}, {1 if c.op else 2}
        s_add_u32 s{c.sSeq}, s{c.sSeq}, s{c.sT1}
        s_cmp_ge_u32 s{c.sSeq}, {NST}
        s_cselect_b32 s{c.sT1}, {NST}, 0
        s_sub_u32 s{c.sSeq}, s{c.sSeq}, s{c.sT1}
        s_cmp_ge_u32 s{c.sSeq}, {NST}
        s_cselect_b32 s{c.sT1}, {NST}, 0
        s_sub_u32 s{c.sSeq}, s{c.sSeq}, s{c.sT1}
        """)
        if E('NOROTS'): a(f"s_mov_b32 s{c.sSeq}, 0")
    def loader_setup(self):
        a, c = self.a, self
        if c.op: make_srd(a, c.sA, pWS, pWS+1, WS_O, SZ_ACT)
        else: make_srd(a, c.sA, pWS, pWS+1, WS_F, SZ_F)
        a(f"""
        s_sub_u32 s{c.sLw}, s{sWV}, 4
        v_lshlrev_b32 v{c.vA}, 4, v1
        s_lshl_b32 s{c.sT0}, s{c.sLw}, 17
        s_lshl_b32 s{c.sT1}, s{c.sM0}, 4
        s_add_u32 s{c.sAoff}, s{c.sT0}, s{c.sT1}
        s_mul_i32 s{c.sT0}, s{c.sLw}, 5120
        s_mul_i32 s{c.sT1}, s{c.sNt}, {c.NST * 20480}
        s_add_u32 s{c.sWoff}, s{c.sT0}, s{c.sT1}
        s_add_u32 s{c.sWoff}, s{c.sWoff}, {WS_WOP if c.op else WS_W2P}
        s_lshl_b32 s{c.sLdsA}, s{c.sLw}, 12
        s_add_u32 s{c.sLdsW}, s{c.sT0}, 16384
        s_mul_i32 s{c.sT0}, s{c.sSeq}, {16 * 32768}
        s_add_u32 s{c.sAoff}, s{c.sAoff}, s{c.sT0}
        s_mul_i32 s{c.sT0}, s{c.sSeq}, 20480
        s_add_u32 s{c.sWoff}, s{c.sWoff}, s{c.sT0}
        s_mov_b32 s{c.sSeqW}, s{c.sSeq}
        """)
    def issue_A(self, seq):
        a, c = self.a, self
        slot = (seq % 4) * STG
        for j in range(4):
            a(f"s_add_u32 m0, s{c.sLdsA}, {slot}" if j == 0 else "s_add_u32 m0, m0, 1024")
            a(f"s_mov_b32 s{c.sT0}, s{c.sAoff}" if j == 0 else f"s_add_u32 s{c.sT0}, s{c.sT0}, 32768")
            a(f"buffer_load_dwordx4 v{c.vA}, s[{c.sA}:{c.sA+3}], s{c.sT0} offen lds")
        a(f"""
        s_add_u32 s{c.sSeq}, s{c.sSeq}, 1
        s_cmp_eq_u32 s{c.sSeq}, {c.NST}
        s_cselect_b32 s{c.sT0}, {c.NST * 16 * 32768}, 0
        s_cselect_b32 s{c.sSeq}, 0, s{c.sSeq}
        s_add_u32 s{c.sAoff}, s{c.sAoff}, {16 * 32768}
        s_sub_u32 s{c.sAoff}, s{c.sAoff}, s{c.sT0}
        """)
    def issue_W(self, seq):
        a, c = self.a, self
        slot = (seq % 4) * STG
        a(f"s_add_u32 m0, s{c.sLdsW}, {slot}")
        a(f"s_add_u32 s{c.sT0}, s{c.sWoff}, 4096")
        for j in range(4):
            a(f"buffer_load_dwordx4 v{c.vA}, s[{sWS}:{sWS+3}], s{c.sWoff} offen offset:{j*1024} lds")
        a("s_add_u32 m0, m0, 4096")
        a(f"s_add_u32 s{c.sSeqW}, s{c.sSeqW}, 1")
        a(f"buffer_load_dwordx4 v{c.vA}, s[{sWS}:{sWS+3}], s{c.sT0} offen lds")
        a(f"""
        s_cmp_eq_u32 s{c.sSeqW}, {c.NST}
        s_cselect_b32 s{c.sT0}, {c.NST * 20480}, 0
        s_cselect_b32 s{c.sSeqW}, 0, s{c.sSeqW}
        s_add_u32 s{c.sWoff}, s{c.sWoff}, 20480
        s_sub_u32 s{c.sWoff}, s{c.sWoff}, s{c.sT0}
        """)
    def loader_main(self, q):
        a, c = self.a, self
        for s_ in range(c.NST):
            a(f"s_waitcnt vmcnt({q.need(f'A{s_}', f'W{s_}')})")
            a("s_barrier")
            stx(a, f"{'o' if c.op else 'g'}l{s_}")
            if s_ + PD < c.NST and not (E('S_NODMA') and not c.op):
                if not E('S_NOA'): c.issue_A(s_ + PD); q.push(f"A{s_+PD}", 4)
                if not E('S_NOW'): c.issue_W(s_ + PD); q.push(f"W{s_+PD}", 5)
    vXb, vWb, vXa, vWa, vX, vW, vRes, vT, vAcc = 4, 5, 6, 7, 8, 32, 70, 84, 96
    vXa2, vWa2 = 120, 121
    def compute_setup(self):
        a, c = self.a, self
        vT = c.vT
        a(f"""
        v_and_b32 v2, 15, v1
        v_lshrrev_b32 v3, 4, v1
        s_lshr_b32 s{c.sT1}, s{sWV}, 1
        s_and_b32 s{c.sT2}, s{sWV}, 1
        s_lshl_b32 s{c.sT0}, s{c.sT1}, 5
        s_add_u32 s{c.sT0}, s{c.sT0}, s{c.sM0}
        v_add_u32 v{vT}, s{c.sT0}, v2
        """)
        a(f"""
        s_mul_i32 s{c.sAoff}, s{c.sT2}, 48
        s_add_u32 s{c.sAoff}, s{c.sAoff}, s{c.sN0}
        v_mul_u32_u24 v{vT+1}, 1280, v{vT}
        v_lshlrev_b32 v{vT+3}, 3, v3
        v_add_u32 v{vT+1}, v{vT+1}, v{vT+3}
        s_lshl_b32 s{c.sT0}, s{c.sAoff}, 1
        v_add_u32 v{vT+1}, s{c.sT0}, v{vT+1}
        v_lshrrev_b32 v{vT+3}, 1, v3
        v_lshlrev_b32 v{vT+3}, 15, v{vT+3}
        v_lshlrev_b32 v{vT+2}, 4, v{vT}
        v_add_u32 v{vT+2}, v{vT+2}, v{vT+3}
        v_and_b32 v{vT+3}, 1, v3
        v_lshlrev_b32 v{vT+3}, 3, v{vT+3}
        v_add_u32 v{vT+2}, v{vT+2}, v{vT+3}
        s_lshl_b32 s{c.sT0}, s{c.sAoff}, 12
        v_add_u32 v{vT+2}, s{c.sT0}, v{vT+2}
        s_lshl_b32 s{c.sT0}, s{c.sT1}, 9
        v_lshlrev_b32 v{c.vXb}, 10, v3
        v_lshlrev_b32 v{vT+3}, 4, v2
        v_add_u32 v{c.vXb}, v{c.vXb}, v{vT+3}
        v_add_u32 v{c.vXb}, s{c.sT0}, v{c.vXb}
        v_lshrrev_b32 v{vT+3}, 1, v3
        v_lshlrev_b32 v{vT+3}, 4, v{vT+3}
        v_and_b32 v{vT+4}, 1, v3
        v_lshlrev_b32 v{vT+4}, 2, v{vT+4}
        v_add_u32 v{vT+3}, v{vT+3}, v{vT+4}
        v_lshrrev_b32 v{vT+4}, 2, v2
        v_add_u32 v{vT+3}, v{vT+3}, v{vT+4}
        v_mul_u32_u24 v{vT+3}, 160, v{vT+3}
        v_and_b32 v{vT+4}, 3, v1
        v_lshlrev_b32 v{vT+4}, 3, v{vT+4}
        v_add_u32 v{vT+3}, v{vT+3}, v{vT+4}
        s_mul_i32 s{c.sT0}, s{c.sT2}, 96
        s_add_u32 s{c.sT0}, s{c.sT0}, 16384
        v_add_u32 v{c.vWb}, s{c.sT0}, v{vT+3}
        s_mov_b32 s{c.sWoff}, s{c.sT2}
        """)
        if c.op:
            make_srd(a, c.sR, pX, pX+1, 0, 2048 * 1280)
            make_srd(a, c.sO, pWS, pWS+1, WS_H, SZ_ACT)
        else:
            make_srd(a, c.sR, pWS, pWS+1, WS_H, SZ_ACT)
            make_srd(a, c.sO, pOUT, pOUT+1, 0, 2048 * 1280)
        a(f"""
        s_cmp_eq_u32 s{c.sT2}, 1
        s_cselect_b32 s44, 0x7f000000, 0
        s_cselect_b64 s[46:47], -1, 0
        """)
    def pretouch(self): pass
    def tile_off(self, T, tt, rowmajor):
        a, c = self.a, self
        if rowmajor:
            base = T * 32 + tt * 16 * 1280
            val = base
        else:
            val = T * 65536 + tt * 256
        if T == 2:
            a(f"s_add_u32 s{c.sT0}, s44, {val}")
        else:
            a(f"s_mov_b32 s{c.sT0}, {val}")
        return (c.vT + 1 if rowmajor else c.vT + 2), c.sT0
    def residual_loads(self):
        a, c = self.a, self
        for T in range(3):
            for tt in range(2):
                va, so = c.tile_off(T, tt, c.op)
                a(f"buffer_load_dwordx2 {vr(c.vRes + 2*(T*2 + tt), 2)}, v{va}, s[{c.sR}:{c.sR+3}], s{so} offen")
    def mainloop(self, stamp0=None, tag=''):
        a, c = self.a, self
        N = c.NST * 4
        def rlist(i):
            st_, k, buf = i // 4, i % 4, i % 3
            xa, wa = (c.vXa, c.vWa) if st_ % 2 == 0 else (c.vXa2, c.vWa2)
            L = [f"ds_read_b128 {vr(c.vX + buf*8 + tt*4, 4)}, v{xa} offset:{k*4096 + tt*256}" for tt in range(2)]
            for T in range(3):
                for h2 in range(2):
                    L.append(f"ds_read_b64_tr_b16 {vr(c.vW + buf*12 + T*4 + h2*2, 2)}, v{wa} offset:{k*5120 + h2*1280 + T*32}")
            return L
        def setaddr(st_):
            slot = (st_ % 4) * STG
            xa, wa = (c.vXa, c.vWa) if st_ % 2 == 0 else (c.vXa2, c.vWa2)
            a(f"v_add_u32 v{xa}, {slot}, v{c.vXb}")
            a(f"v_add_u32 v{wa}, {slot}, v{c.vWb}")
        a("s_barrier")
        stx(a, tag + '_s0')
        setaddr(0)
        for r in rlist(0) + rlist(1): a(r)
        for i in range(N):
            buf = i % 3
            rl = rlist(i + 2) if i + 2 < N else []
            a(f"s_waitcnt lgkmcnt({8 if i + 1 < N else 0})")
            k = 0
            for T in range(3):
                for tt in range(2):
                    acc = c.vAcc + (T*2 + tt) * 4
                    cc = "0" if i == 0 else vr(acc, 4)
                    a(f"v_mfma_f32_16x16x32_bf16 {vr(acc,4)}, {vr(c.vW + buf*12 + T*4, 4)}, {vr(c.vX + buf*8 + tt*4, 4)}, {cc}")
                    if k == 0 and i + 2 < N and (i + 2) % 4 == 0:
                        a("s_barrier")
                        if (i + 2) // 4 == 1: stx(a, tag + '_s1')
                        if (i + 2) // 4 == 4: stx(a, tag + '_s4')
                        setaddr((i + 2) // 4)
                    for r in rl[[0, 2, 4, 5, 6, 7][k]:[2, 4, 5, 6, 7, 8][k]]: a(r)
                    k += 1
        a("s_nop 7")
    def reduce(self):
        pass
    def epilogue(self):
        a, c = self.a, self
        vT, vRes = c.vT, c.vRes
        a("s_waitcnt vmcnt(0)")
        P = 8
        for T in range(3):
            for tt in range(2):
                n = T*2 + tt
                acc = c.vAcc + n*4
                rr = vRes + 2*n
                a(f"""
                v_lshlrev_b32 v24, 16, v{rr}
                v_and_b32 v25, 0xffff0000, v{rr}
                v_lshlrev_b32 v26, 16, v{rr+1}
                v_and_b32 v27, 0xffff0000, v{rr+1}
                v_add_f32 v{acc}, v{acc}, v24
                v_add_f32 v{acc+1}, v{acc+1}, v25
                v_add_f32 v{acc+2}, v{acc+2}, v26
                v_add_f32 v{acc+3}, v{acc+3}, v27
                v_cvt_pk_bf16_f32 v{P+2*n}, v{acc}, v{acc+1}
                v_cvt_pk_bf16_f32 v{P+2*n+1}, v{acc+2}, v{acc+3}
                """)
                va, so = c.tile_off(T, tt, not c.op)
                ins = f"buffer_store_dwordx2 {vr(P+2*n, 2)}, v{va}, s[{c.sO}:{c.sO+3}], s{so} offen @SC"
                if c.op: dual(a, [ins])
                else: a(ins.replace("@SC", E('OUTFL', '')))
        if c.op:
            for tt in range(2):
                S, Q = 28 + 2*tt, 29 + 2*tt
                first = True
                for T in range(3):
                    n = T*2 + tt
                    for d in range(2):
                        r = P + 2*n + d
                        a(f"v_lshlrev_b32 v24, 16, v{r}")
                        a(f"v_and_b32 v25, 0xffff0000, v{r}")
                        if T == 2:
                            a(f"v_cndmask_b32 v24, v24, 0, s[46:47]")
                            a(f"v_cndmask_b32 v25, v25, 0, s[46:47]")
                        if first:
                            a(f"v_add_f32 v{S}, v24, v25")
                            a(f"v_mul_f32 v{Q}, v24, v24")
                            first = False
                        else:
                            a(f"v_add_f32 v{S}, v{S}, v24")
                            a(f"v_add_f32 v{S}, v{S}, v25")
                            a(f"v_fmac_f32 v{Q}, v24, v24")
                        a(f"v_fmac_f32 v{Q}, v25, v25")
            a(f"""
            v_mov_b32 v32, v28
            v_mov_b32 v33, v29
            v_mov_b32 v34, v30
            v_mov_b32 v35, v31
            s_nop 1
            v_permlane32_swap_b32 v28, v32
            v_permlane32_swap_b32 v29, v33
            v_permlane32_swap_b32 v30, v34
            v_permlane32_swap_b32 v31, v35
            s_nop 1
            v_add_f32 v28, v28, v32
            v_add_f32 v29, v29, v33
            v_add_f32 v30, v30, v34
            v_add_f32 v31, v31, v35
            s_nop 0
            v_mov_b32 v32, v28
            v_mov_b32 v33, v29
            v_mov_b32 v34, v30
            v_mov_b32 v35, v31
            s_nop 1
            v_permlane16_swap_b32 v28, v32
            v_permlane16_swap_b32 v29, v33
            v_permlane16_swap_b32 v30, v34
            v_permlane16_swap_b32 v31, v35
            s_nop 1
            v_add_f32 v28, v28, v32
            v_add_f32 v29, v29, v33
            v_add_f32 v30, v30, v34
            v_add_f32 v31, v31, v35
            s_lshl_b32 s{c.sT0}, s{c.sNt}, 1
            s_add_u32 s{c.sT0}, s{c.sT0}, s{c.sWoff}
            s_lshl_b32 s{c.sT0}, s{c.sT0}, 14
            s_add_u32 s{c.sT0}, s{c.sT0}, {WS_ST2}
            v_lshlrev_b32 v32, 3, v{vT}
            s_mov_b64 exec, 0xffff
            """)
            dual(a, [f"buffer_store_dwordx2 v[28:29], v32, s[{sWS}:{sWS+3}], s{c.sT0} offen @SC",
                     f"buffer_store_dwordx2 v[30:31], v32, s[{sWS}:{sWS+3}], s{c.sT0} offen offset:128 @SC"])
            a("s_mov_b64 exec, -1")

KT = 1536
SLOT = 8 * KT + 16384
VOFF = 8 * KT
NSLOT = 5
FLAG = NSLOT * SLOT

def attn_pad_init(a, nw_base, per_wave):
    a(f"""
    v_and_b32 v120, 31, v1
    v_mov_b32 v124, 0
    v_mov_b32 v123, 0x3f803f80
    v_cmp_eq_u32 vcc, 20, v120
    s_sub_u32 s75, s{sWV}, {nw_base}
    s_mul_i32 s75, s75, {per_wave * 1024}
    s_add_u32 s75, s75, {VOFF}
    v_cndmask_b32 v124, v124, v123, vcc
    v_lshlrev_b32 v123, 4, v1
    v_add_u32 v123, s75, v123
    v_mov_b32 v125, v124
    v_mov_b32 v126, v124
    v_mov_b32 v127, v124
    s_mov_b32 exec_lo, 0xfff00000
    s_mov_b32 exec_hi, 0xfff00000
    """)
    base = 0
    for sl in range(NSLOT):
        for j in range(per_wave):
            off = sl * SLOT + j * 1024
            if off - base >= 65536 - 1024:
                a(f"v_add_u32 v123, {sl*SLOT - base}, v123")
                base = sl * SLOT
            a(f"ds_write_b128 v123, v[124:127] offset:{off - base}")
    a(f"""
    s_mov_b64 exec, -1
    v_mov_b32 v123, {FLAG}
    v_mov_b32 v124, 0
    ds_write_b32 v123, v124
    s_waitcnt lgkmcnt(0)
    """)

def emit_attention(a, after_stores):
    name = "att"
    sK, sV, sQ, sO = 8, 12, 16, 20
    sHead, sQt, sT0, sT1, sT2 = 25, 26, 27, 28, 29
    sChunk, sSlotN, sPass, sKoff, sVoff, sKh = 30, 31, 32, 33, 34, 35
    sVmask = 38
    sSlotW, sE, sQg, sQb = 40, 41, 42, 43
    sW1s = 44
    vL16, vVoff = 2, 3
    vA3 = [[4, 5, 6], [7, 8, 9], [172, 173, 174]]
    vQ, vQr, vNC, vS, vP, vKb, vKr, vV, vO, vT = 10, 18, 22, 54, 86, 94, 102, 110, 126, 158
    lane_id(a, 0)
    lane_id(a, 1)
    a(f"""
    s_mov_b32 s{sVmask}, 0x000fffff
    s_mov_b32 s{sVmask+1}, 0x000fffff
    s_mov_b32 s{sPass}, 0
    s_lshr_b32 s{sKh}, s{sWV}, 2
    s_and_b32 s{sQg}, s{sWV}, 3
    v_lshlrev_b32 v{vL16}, 4, v0
    v_and_b32 v{vT}, 31, v0
    v_lshrrev_b32 v{vT+1}, 5, v0
    v_mul_u32_u24 v{vVoff}, 320, v{vT+1}
    v_lshlrev_b32 v{vT+2}, 4, v{vT}
    v_add_u32 v{vVoff}, v{vVoff}, v{vT+2}
    """)
    make_srd(a, sK, pWS, pWS+1, WS_K, SZ_QK)
    make_srd(a, sV, pWS, pWS+1, WS_V, SZ_QKV)
    make_srd(a, sQ, pWS, pWS+1, WS_Q, SZ_QK)
    make_srd(a, sO, pWS, pWS+1, WS_O, SZ_ACT)
    make_srd(a, sW1s, pW1, pW1+1, 0, 640*3456)
    def zero_regs():
        for i in range(32): a(f"v_mov_b32 v{vO+i}, 0")
        for i in range(4):
            a(f"v_mov_b32 v{vP+4+i}, 0")
            a(f"v_mov_b32 v{vV+12+i}, 0")
    zero_regs()
    a(f"v_and_b32 v{vT+11}, 7, v0")
    a(f"v_lshlrev_b32 v{vT+11}, 7, v{vT+11}")
    a(f"v_add_u32 v{vT+11}, {WS_CNT + C_RPS*128}, v{vT+11}")
    a(f"v_mov_b32 v{vT+10}, 0")
    a("s_barrier")
    a(f"""
    v_mov_b32 v4, {ROLE}
    ds_read_b96 v[6:8], v4
    s_waitcnt lgkmcnt(0)
    v_readfirstlane_b32 s{sX}, v6
    v_readfirstlane_b32 s{sRk}, v7
    v_readfirstlane_b32 s{sLoc}, v8
    s_and_b32 s{sT0}, s2, 7
    s_lshr_b32 s{sT1}, s2, 3
    s_cmp_eq_u32 s{sLoc}, 0
    s_cselect_b32 s{sX}, s{sT0}, s{sX}
    s_cselect_b32 s{sRk}, s{sT1}, s{sRk}
    s_mov_b32 s{sHead}, s{sRk}
    s_mov_b32 s{sQb}, s{sX}
    s_lshl_b32 s{sQt}, s{sQb}, 3
    s_and_b32 s{sE}, s{sHead}, 1
    """)
    def reinit():
        a(f"""
        s_lshl_b32 s{sT0}, s{sE}, 9
        s_mul_i32 s{sT1}, s{sKh}, {4*KT}
        s_add_u32 s{sT0}, s{sT0}, s{sT1}
        v_add_u32 v{vA3[0][0]}, s{sT0}, v{vL16}
        s_sub_u32 s{sT0}, 1, s{sE}
        s_lshl_b32 s{sT0}, s{sT0}, 10
        s_lshl_b32 s{sT2}, s{sE}, 3
        s_add_u32 s{sT0}, s{sT0}, s{sT2}
        s_add_u32 s{sT0}, s{sT0}, s{sT1}
        v_and_b32 v{vT}, 31, v0
        v_lshlrev_b32 v{vA3[0][1]}, 4, v{vT}
        v_add_u32 v{vA3[0][1]}, s{sT0}, v{vA3[0][1]}
        s_lshl_b32 s{sT0}, s{sKh}, 13
        s_add_u32 s{sT0}, s{sT0}, {VOFF}
        v_add_u32 v{vA3[0][2]}, s{sT0}, v{vL16}
        s_mov_b32 s{sSlotN}, {2*SLOT}
        s_lshr_b32 s{sT0}, s{sHead}, 1
        s_mul_i32 s{sT0}, s{sT0}, 163840
        s_mul_i32 s{sT1}, s{sWV}, 2560
        s_add_u32 s{sKoff}, s{sT0}, s{sT1}
        s_lshl_b32 s{sT1}, s{sE}, 10
        s_add_u32 s{sKoff}, s{sKoff}, s{sT1}
        s_mul_i32 s{sT0}, s{sHead}, 81920
        s_mul_i32 s{sT1}, s{sWV}, 1280
        s_add_u32 s{sVoff}, s{sT0}, s{sT1}
        s_mov_b32 s{sSlotW}, 0
        """)
        for k in range(3):
            a(f"v_add_u32 v{vA3[1][k]}, {SLOT}, v{vA3[0][k]}")
            a(f"v_add_u32 v{vA3[2][k]}, {2*SLOT}, v{vA3[0][k]}")
    reinit()
    a(f"""
    s_lshl_b32 s{sT0}, s{sQg}, 1
    s_add_u32 s{sQt}, s{sQt}, s{sT0}
    v_lshlrev_b32 v{vT+13}, 4, v{vT}
    s_lshl_b32 s{sT1}, s{sE}, 3
    s_add_u32 s{sT1}, s{sT1}, 1024
    v_add_u32 v{vT+13}, s{sT1}, v{vT+13}
    v_mov_b32 v{vT+9}, 0x7fffff00
    """)
    a(f"""
    v_cmp_gt_u32 vcc, 32, v0
    s_mul_i32 s{sT1}, s{sE}, 1536
    v_cndmask_b32 v{vT+13}, v{vT+9}, v{vT+13}, vcc
    v_add_u32 v{vT+12}, s{sT1}, v{vL16}
    """)
    lw = a.newlabel("attw")
    a(f"""
    s_cmp_eq_u32 s{sWV}, 0
    s_cbranch_scc0 {lw}
    s_mul_i32 s{sT0}, s{sHead}, 20
    s_lshr_b32 s{sT1}, s{sT0}, 7
    s_add_u32 s{sT0}, s{sT0}, 19
    s_lshr_b32 s{sT0}, s{sT0}, 7
    v_and_b32 v{vT+3}, 1, v0
    v_mov_b32 v{vT+4}, s{sT1}
    v_mov_b32 v{vT+5}, s{sT0}
    v_cmp_eq_u32 vcc, 1, v{vT+3}
    v_lshrrev_b32 v{vT+6}, 1, v0
    v_mul_u32_u24 v{vT+6}, 5, v{vT+6}
    v_cndmask_b32 v{vT+4}, v{vT+4}, v{vT+5}, vcc
    v_add_u32 v{vT+4}, v{vT+4}, v{vT+6}
    v_add_u32 v{vT+4}, {C_QKV}, v{vT+4}
    v_lshlrev_b32 v{vT+4}, 7, v{vT+4}
    v_add_u32 v{vT+4}, {WS_CNT}, v{vT+4}
    v_mov_b32 v{vT+5}, 16
    """)
    stx(a, 'a_p0')
    poll(a, vT + 4, vT + 5, 6, vT + 6, slp=int(E('QSLP', '1')))
    a.label(lw)
    stx(a, 'a_pre')
    a("s_waitcnt lgkmcnt(0)")
    a("s_barrier")
    st(a, 5)
    def rpa():
        a("s_and_b32 s76, s2, 7")
        a(f"s_add_u32 s76, s76, {C_RPS}")
        arrive(a, 76, vT + 4)
    KVF = E('KVF', '')
    def dma_kpart():
        a(f"""
        s_mul_i32 s{sT0}, s{sWV}, {KT}
        s_add_u32 m0, s{sSlotW}, s{sT0}
        s_nop 0
        buffer_load_dwordx4 v{vL16}, s[{sK}:{sK+3}], s{sKoff} offen {KVF} lds
        s_mov_b32 exec_hi, 0
        buffer_load_dwordx4 v{vL16}, s[{sK}:{sK+3}], s{sKoff} offen offset:1024 {KVF} lds
        s_mov_b32 exec_hi, -1
        s_add_u32 s{sKoff}, s{sKoff}, {8*2560}
        """)
    def dma_vpart():
        a(f"""
        s_lshl_b32 s{sT1}, s{sWV}, 11
        s_add_u32 s{sT1}, s{sT1}, s{sSlotW}
        s_add_u32 m0, s{sT1}, {VOFF}
        s_mov_b64 exec, s[{sVmask}:{sVmask+1}]
        buffer_load_dwordx4 v{vVoff}, s[{sV}:{sV+3}], s{sVoff} offen {KVF} lds
        s_add_u32 m0, m0, 1024
        s_add_u32 s{sT1}, s{sVoff}, 640
        buffer_load_dwordx4 v{vVoff}, s[{sV}:{sV+3}], s{sT1} offen {KVF} lds
        s_mov_b64 exec, -1
        s_add_u32 s{sVoff}, s{sVoff}, 10240
        s_add_u32 s{sSlotW}, s{sSlotW}, {SLOT}
        s_cmp_ge_u32 s{sSlotW}, {NSLOT*SLOT}
        s_cselect_b32 s{sSlotW}, 0, s{sSlotW}
        """)
    def dma_chunk():
        dma_kpart(); dma_vpart()
    dma_kpart()
    a(f"s_lshr_b32 s{sT0}, s{sHead}, 1")
    a(f"s_mul_i32 s{sT0}, s{sT0}, 163840")
    for s in range(2):
        a(f"""
        s_xor_b32 s{sT1}, s{sKh}, {s}
        s_add_u32 s{sT1}, s{sT1}, s{sQt}
        s_mul_i32 s{sT1}, s{sT1}, 2560
        s_add_u32 s{sT1}, s{sT1}, s{sT0}
        buffer_load_dwordx4 {vr(vQ+4*s,4)}, v{vT+12}, s[{sQ}:{sQ+3}], s{sT1} offen
        buffer_load_dwordx2 {vr(vQr+2*s,2)}, v{vT+13}, s[{sQ}:{sQ+3}], s{sT1} offen
        """)
    dma_vpart()
    a(f"s_branch L_{name}_start")
    a.label(f"L_{name}_restart")
    zero_regs()
    reinit()
    dma_chunk()
    a.label(f"L_{name}_start")
    vKc, vKrc, vVc = vA3[0]
    a(f"""
    s_waitcnt vmcnt(2)
    """)
    stx(a, 'a_c0')
    a("s_barrier")
    a(f"""
    s_cmp_eq_u32 s{sPass}, 0
    s_cbranch_scc0 L_{name}_haveC
    s_mul_i32 s{sT1}, s{sKh}, {4*KT}
    v_subrev_u32 v{vT+1}, s{sT1}, v{vKc}
    v_subrev_u32 v{vT+2}, s{sT1}, v{vKrc}
    ds_read_b128 {vr(vKb,4)}, v{vT+1}
    ds_read_b64 {vr(vKr,2)}, v{vT+2}
    s_waitcnt lgkmcnt(0)
    """)
    for s in range(2):
        S = vS + 16*s
        a(f"v_mfma_f32_32x32x16_bf16 {vr(S,16)}, {vr(vKb,4)}, {vr(vQ+4*s,4)}, 0")
    for s in range(2):
        S = vS + 16*s
        a(f"v_mfma_f32_32x32x8_bf16 {vr(S,16)}, {vr(vKr,2)}, {vr(vQr+2*s,2)}, {vr(S,16)}")
    a(f"""
    ds_read_b128 {vr(vKb,4)}, v{vKc}
    ds_read2st64_b64 {vr(vKr,4)}, v{vKrc} offset0:0 offset1:3
    s_nop 13
    """)
    for s in range(2):
        S = vS + 16*s
        T_ = vT + 2*s
        a(f"v_max3_f32 v{T_}, v{S}, v{S+1}, v{S+2}")
        for i in range(3, 15, 2):
            a(f"v_max3_f32 v{T_}, v{T_}, v{S+i}, v{S+i+1}")
        a(f"v_max_f32 v{T_}, v{T_}, v{S+15}")
    a(f"""
    v_mov_b32 v{vT+1}, v{vT}
    v_mov_b32 v{vT+3}, v{vT+2}
    s_nop 1
    v_permlane32_swap_b32 v{vT}, v{vT+1}
    v_permlane32_swap_b32 v{vT+2}, v{vT+3}
    s_nop 1
    v_max_f32 v{vT}, v{vT}, v{vT+1}
    v_max_f32 v{vT+2}, v{vT+2}, v{vT+3}
    v_sub_f32 v{vNC}, 0, v{vT}
    v_sub_f32 v{vNC+16}, 0, v{vT+2}
    """)
    for i in range(1, 16):
        a(f"v_mov_b32 v{vNC+i}, v{vNC}")
        a(f"v_mov_b32 v{vNC+16+i}, v{vNC+16}")
    a(f"s_branch L_{name}_haveC2")
    a.label(f"L_{name}_haveC")
    a(f"""
    ds_read_b128 {vr(vKb,4)}, v{vKc}
    ds_read2st64_b64 {vr(vKr,4)}, v{vKrc} offset0:0 offset1:3
    """)
    a.label(f"L_{name}_haveC2")
    a(f"""
    s_waitcnt lgkmcnt(0)
    v_mfma_f32_32x32x16_bf16 {vr(vS,16)}, {vr(vKb,4)}, {vr(vQ,4)}, {vr(vNC,16)}
    v_mfma_f32_32x32x8_bf16 {vr(vS,16)}, {vr(vKr,2)}, {vr(vQr,2)}, {vr(vS,16)}
    s_waitcnt vmcnt(0)
    s_barrier
    ds_read_b128 {vr(vV,4)}, v{vVc}
    ds_read_b128 {vr(vV+4,4)}, v{vVc} offset:1024
    """)
    dma_chunk()
    a(f"""
    s_mov_b32 s{sChunk}, 0
    s_waitcnt lgkmcnt(0)
    """)
    st(a, 6)
    a(f"""
    s_cmp_eq_u32 s{sKh}, 0
    s_cselect_b32 s36, 7, 0
    s_cselect_b32 s37, 0, 7
    """)
    ool = []
    def rare(mask, fn, tag):
        l, b = a.newlabel(tag), a.newlabel(tag + "b")
        a(f"s_bitcmp1_b32 {mask:#x}, s{sChunk}")
        a(f"s_cbranch_scc1 {l}")
        a.label(b)
        ool.append((l, b, fn))
    def common_(mask, fn, tag):
        l = a.newlabel(tag)
        a(f"s_bitcmp1_b32 {mask if isinstance(mask, str) else hex(mask)}, s{sChunk}")
        a(f"s_cbranch_scc0 {l}")
        fn()
        a.label(l)
    def pf_A(half, which='w1'):
        if which == 'w1':
            a(f"""
            v_lshlrev_b32 v{vT+12}, 7, v0
            s_mul_i32 s{sT0}, s{sRk}, 69120
            s_lshl_b32 s{sT1}, s{sWV}, 13
            s_add_u32 s{sT0}, s{sT0}, s{sT1}
            s_mov_b32 exec_lo, {-1 if half == 0 else 0}
            s_mov_b32 exec_hi, {0 if half == 0 else -1}
            buffer_load_dword v{vT+13}, v{vT+12}, s[{sW1s}:{sW1s+3}], s{sT0} offen sc1
            s_mov_b64 exec, -1
            """)
        else:
            a(f"""
            v_lshlrev_b32 v{vT+12}, 7, v0
            s_mul_i32 s{sT0}, s{sRk}, {SZ_W2P // 32}
            s_lshl_b32 s{sT1}, s{sWV}, 13
            s_add_u32 s{sT0}, s{sT0}, s{sT1}
            s_add_u32 s{sT0}, s{sT0}, {WS_W2P}
            s_mov_b32 exec_lo, {-1 if half == 0 else 0}
            s_mov_b32 exec_hi, {0 if half == 0 else -1}
            buffer_load_dword v{vT+13}, v{vT+12}, s[{sWS}:{sWS+3}], s{sT0} offen sc1
            s_mov_b64 exec, -1
            """)
    def pf_B():
        l5, l4, le = a.newlabel("pf5"), a.newlabel("pf4"), a.newlabel("pfe")
        a(f"""
        v_lshlrev_b32 v{vT+12}, 7, v0
        s_cmp_ge_u32 s{sWV}, 5
        s_cbranch_scc1 {l5}
        s_cmp_eq_u32 s{sWV}, 4
        s_cbranch_scc1 {l4}
        s_mul_i32 s{sT0}, s{sRk}, {SZ_WOP // 32}
        s_lshl_b32 s{sT1}, s{sWV}, 13
        s_add_u32 s{sT0}, s{sT0}, s{sT1}
        s_add_u32 s{sT0}, s{sT0}, {WS_WOP}
        buffer_load_dword v{vT+13}, v{vT+12}, s[{sWS}:{sWS+3}], s{sT0} offen sc1
        s_branch {le}
        """)
        a.label(l4)
        a(f"""
        s_mul_i32 s{sT0}, s{sRk}, 69120
        s_add_u32 s{sT0}, s{sT0}, 65536
        s_mov_b32 exec_hi, 0
        buffer_load_dword v{vT+13}, v{vT+12}, s[{sW1s}:{sW1s+3}], s{sT0} offen sc1
        s_mov_b32 exec_hi, -1
        """)
        if E('TLB2'):
            a(f"v_lshlrev_b32 v{vT+12}, 21, v0")
            a("s_mov_b64 exec, 0xfff")
            a(f"buffer_load_dword v{vT+13}, v{vT+12}, s[{sWS}:{sWS+3}], 0 offen sc1")
            a("s_mov_b64 exec, 3")
            make_srd(a, 16, pOUT, pOUT+1, 0, 2048*1280)
            a(f"buffer_load_dword v{vT+13}, v{vT+12}, s[16:19], 0 offen sc1")
            a("s_mov_b64 exec, -1")
        a(f"""
        s_branch {le}
        """)
        a.label(l5)
        a(f"""
        s_sub_u32 s{sT1}, s{sWV}, 5
        s_lshl_b32 s{sT1}, s{sT1}, 5
        s_mul_i32 s{sT0}, s{sRk}, 80
        s_add_u32 s{sT0}, s{sT0}, s{sT1}
        v_and_b32 v{vT+8}, 31, v0
        v_add_u32 v{vT+8}, s{sT0}, v{vT+8}
        v_lshrrev_b32 v{vT+9}, 5, v{vT+8}
        v_lshlrev_b32 v{vT+9}, 15, v{vT+9}
        v_and_b32 v{vT+8}, 31, v{vT+8}
        v_lshlrev_b32 v{vT+8}, 7, v{vT+8}
        v_add_u32 v{vT+8}, v{vT+8}, v{vT+9}
        s_lshl_b32 s{sT0}, s{sX}, 12
        s_mov_b32 exec_hi, 0
        buffer_load_dword v{vT+13}, v{vT+8}, s[{sO}:{sO+3}], s{sT0} offen sc1
        s_mov_b32 exec_hi, -1
        """)
        a.label(le)
    def rp_issue():
        a("s_mov_b64 exec, 0xff")
        a(f"buffer_load_dword v{vT+10}, v{vT+11}, s[{sWS}:{sWS+3}], 0 offen sc1")
        a("s_mov_b64 exec, -1")
    def rp_check():
        ok = a.newlabel("rpok")
        a("s_mov_b64 exec, 0xff")
        a(f"v_cmp_gt_u32 vcc, 32, v{vT+10}")
        a("s_nop 4")
        a("s_cmp_eq_u64 vcc, 0")
        a(f"s_cbranch_scc1 {ok}")
        a(f"v_mov_b32 v{vT+9}, 32")
        poll(a, vT + 11, vT + 9, 8, vT + 10)
        a.label(ok)
        a("s_mov_b64 exec, -1")
    def rp_load():
        le = a.newlabel("rle")
        a(f"s_cmp_eq_u32 s{sPass}, 0")
        a(f"s_cbranch_scc0 {le}")
        a(f"s_cmp_ge_u32 s{sWV}, 4")
        a(f"s_cbranch_scc0 {le}")
        for r in range(3):
            la, lb = a.newlabel("rla"), a.newlabel("rlb")
            a(f"v_accvgpr_read_b32 v{vT+4}, a{43+2*r}")
            a(f"v_accvgpr_read_b32 v{vT+5}, a{44+2*r}")
            a(f"v_accvgpr_read_b32 v{vT+6}, a{49+r}")
            make_srd(a, 16, pWO, pWO+1, 0, 640*1280)
            a(f"""
            v_cmp_gt_u32 vcc, 40, v{vT+6}
            s_nop 4
            s_mov_b64 s[76:77], vcc
            s_mov_b64 exec, vcc
            s_cbranch_execz {la}
            buffer_load_dwordx4 {ar(28+4*r,4)}, v{vT+4}, s[16:19], 0 offen
            {la}:
            """)
            make_srd(a, 16, pW2, pW2+1, 0, 1728*1280)
            a(f"""
            s_not_b64 exec, s[76:77]
            s_cbranch_execz {lb}
            buffer_load_dwordx4 {ar(28+4*r,4)}, v{vT+5}, s[16:19], 0 offen
            {lb}:
            s_mov_b64 exec, -1
            """)
        a(f"""
        s_mul_i32 s76, s2, 8640
        s_sub_u32 s77, s{sWV}, 4
        s_mul_i32 s77, s77, 2176
        s_add_u32 s76, s76, s77
        v_lshlrev_b32 v{vT+4}, 7, v0
        s_mov_b64 exec, 0x1ffff
        buffer_load_dword v{vT+5}, v{vT+4}, s[{sW1s}:{sW1s+3}], s76 offen sc1
        s_mov_b64 exec, -1
        """)
        a.label(le)
    def rp_store():
        le = a.newlabel("rse")
        a(f"s_cmp_eq_u32 s{sPass}, 0")
        a(f"s_cbranch_scc0 {le}")
        a(f"s_cmp_ge_u32 s{sWV}, 4")
        a(f"s_cbranch_scc0 {le}")
        for r in range(3): a(f"v_accvgpr_read_b32 v{vT+4+r}, a{40+r}")
        a(f"s_mov_b32 s76, {WS_WOP}")
        for r in range(3):
            a(f"buffer_store_dwordx4 {ar(28+4*r,4)}, v{vT+4+r}, s[{sWS}:{sWS+3}], s76 offen {SC}")
        a.label(le)
    def rp_arr():
        le = a.newlabel("rae")
        a(f"s_cmp_eq_u32 s{sPass}, 0")
        a(f"s_cbranch_scc0 {le}")
        wave_only(a, 4, rpa)
        a.label(le)
    def rp_post():
        l2, le = a.newlabel("rp2"), a.newlabel("rpe")
        a(f"s_cmp_eq_u32 s{sChunk}, 2")
        a(f"s_cbranch_scc0 {l2}")
        a(f"s_cmp_eq_u32 s{sPass}, 0")
        a(f"s_cbranch_scc0 {le}")
        wave_only(a, 4, rpa)
        a(f"s_branch {le}")
        a.label(l2)
        rp_check()
        a.label(le)
    if E('A_PRIO'):
        l = a.newlabel("prio")
        a(f"s_cmp_ge_u32 s{sWV}, 4")
        a(f"s_cbranch_scc0 {l}")
        a(f"s_setprio {E('A_PRIO')}")
        a.label(l)
    a(".p2align 6")
    a.label(f"L_{name}_loop")
    rd = (lambda x: None) if E('A_NORD') else a
    for u in range(16):
        p = u & 1
        t = u >> 1
        D1 = int(E('A_D1', '6'))
        def common_else(mask, fn, fn_else, tag):
            l, b = a.newlabel(tag), a.newlabel(tag + "b")
            a(f"s_bitcmp1_b32 {mask:#x}, s{sChunk}")
            a(f"s_cbranch_scc0 {l}")
            fn()
            a.label(b)
            ool.append((l, b, fn_else))
        def by_pair(d):
            def f():
                le = a.newlabel("bpe")
                for k, fn in d.items():
                    ln = a.newlabel("bpn")
                    a(f"s_cmp_eq_u32 s{sChunk}, {k}")
                    a(f"s_cbranch_scc0 {ln}")
                    fn()
                    a(f"s_branch {le}")
                    a.label(ln)
                a.label(le)
            return f
        if u == 0: common_else(0b0111, dma_chunk, lambda: pf_A(0), "d0")
        if u == 6:
            rare(0b0101, by_pair({0: lambda: (a("s_waitcnt vmcnt(4)"), a("s_barrier")), 2: rp_store}), "c1")
            common_else(0b0111, dma_chunk, lambda: pf_A(1), "d1")
        if u == 10: rare(0b1000, pf_B, "pc")
        if u == 14:
            rare(0b1000, rp_issue, "rpi")
            a("s_waitcnt vmcnt(0)")
            a("s_barrier")
            rare(0b1101, by_pair({0: rp_load, 2: rp_arr, 3: rp_check}), "rpc")
        tn = t + 1
        A = vA3[tn // 4]
        if p == 0:
            rd(f"ds_read_b128 {vr(vKb + 4*(tn&1),4)}, v{A[0]} offset:{(tn%4)*KT}")
            if tn % 2 == 0:
                pb = (tn // 2) & 1
                rd(f"ds_read2st64_b64 {vr(vKr + 4*pb,4)}, v{A[1]} offset0:{(tn%4)*3} offset1:{(tn%4)*3+3}")
            rd(f"ds_read_b128 {vr(vV + 8*(tn&1),4)}, v{A[2]} offset:{(tn%4)*2048}")
        else:
            rd("s_waitcnt lgkmcnt(0)")
        un = u + 1
        tq = un >> 1
        qs = un & 1
        Sc, Sn = vS + 16*p, vS + 16*(p^1)
        kbuf = vKb + 4*(tq & 1)
        krbuf = vKr + 4*((tq // 2) & 1) + 2*(tq & 1)
        ex = lambda r: a(f"v_exp_f32 v{Sc+r}, v{Sc+r}")
        cv = lambda r: a(f"v_cvt_pk_bf16_f32 v{vP+r}, v{Sc+2*r}, v{Sc+2*r+1}")
        a(f"v_mfma_f32_32x32x16_bf16 {vr(Sn,16)}, {vr(kbuf,4)}, {vr(vQ+4*qs,4)}, {vr(vNC+16*qs,16)}")
        for r in range(4): ex(r)
        tp = (u - 1) >> 1 if u > 0 else -1
        Op = vO + 16*((u - 1) & 1)
        a(f"v_mfma_f32_32x32x16_bf16 {vr(Op,16)}, {vr(vV + 8*(tp & 1) + 4,4)}, {vr(vP+4,4)}, {vr(Op,16)}")
        if p == 0:
            rd(f"ds_read_b128 {vr(vV + 8*(tn&1) + 4,4)}, v{A[2]} offset:{(tn%4)*2048 + 1024}")
        for r in range(4, 8): ex(r)
        cv(0); cv(1)
        a(f"v_mfma_f32_32x32x8_bf16 {vr(Sn,16)}, {vr(krbuf,2)}, {vr(vQr+2*qs,2)}, {vr(Sn,16)}")
        cv(2); cv(3)
        for r in range(8, 12): ex(r)
        Oc = vO + 16*p
        a(f"v_mfma_f32_32x32x16_bf16 {vr(Oc,16)}, {vr(vV + 8*(t & 1),4)}, {vr(vP,4)}, {vr(Oc,16)}")
        for r in range(12, 16): ex(r)
        if u == 15:
            a(f"""
            s_add_u32 s{sT0}, s{sSlotN}, {SLOT}
            s_cmp_ge_u32 s{sT0}, {NSLOT*SLOT}
            s_cselect_b32 s{sT1}, {NSLOT*SLOT}, 0
            s_sub_u32 s{sT0}, s{sT0}, s{sT1}
            s_sub_u32 s{sT1}, s{sT0}, s{sSlotN}
            s_add_u32 s{sT2}, s{sT0}, {SLOT}
            s_cmp_ge_u32 s{sT2}, {NSLOT*SLOT}
            s_cselect_b32 s{sT0}, {NSLOT*SLOT}, 0
            s_sub_u32 s{sT2}, s{sT2}, s{sT0}
            s_sub_u32 s{sT0}, s{sT2}, s{sSlotN}
            s_mov_b32 s{sSlotN}, s{sT2}
            """)
            for k in range(3):
                a(f"v_mov_b32 v{vA3[0][k]}, v{vA3[2][k]}")
                a(f"v_add_u32 v{vA3[1][k]}, s{sT1}, v{vA3[2][k]}")
                a(f"v_add_u32 v{vA3[2][k]}, s{sT0}, v{vA3[2][k]}")
        for r in range(4, 8): cv(r)
    a(f"""
    s_add_u32 s{sChunk}, s{sChunk}, 1
    s_cmp_lt_u32 s{sChunk}, 4
    s_cbranch_scc1 L_{name}_loop
    s_waitcnt lgkmcnt(0)
    """)
    a(f"v_mfma_f32_32x32x16_bf16 {vr(vO+16,16)}, {vr(vV + 8 + 4,4)}, {vr(vP+4,4)}, {vr(vO+16,16)}")
    st(a, 7)
    a(f"s_branch L_{name}_post")
    for l, b, fn in ool:
        a.label(l)
        fn()
        a(f"s_branch {b}")
    a.label(f"L_{name}_post")
    a(f"""
    s_barrier
    s_lshl_b32 s{sT0}, s{sQg}, 1
    s_add_u32 s{sT1}, s{sT0}, s{sKh}
    s_lshr_b32 s{sT2}, s{sT1}, 2
    s_mul_i32 s{sT2}, s{sT2}, {SLOT}
    s_and_b32 s{sT1}, s{sT1}, 3
    s_mul_i32 s{sT1}, s{sT1}, 3072
    s_add_u32 s{sT1}, s{sT1}, s{sT2}
    v_add_u32 v{vT}, s{sT1}, v{vL16}
    s_xor_b32 s{sT1}, s{sKh}, 1
    s_add_u32 s{sT1}, s{sT1}, s{sT0}
    s_lshr_b32 s{sT2}, s{sT1}, 2
    s_mul_i32 s{sT2}, s{sT2}, {SLOT}
    s_and_b32 s{sT1}, s{sT1}, 3
    s_mul_i32 s{sT1}, s{sT1}, 3072
    s_add_u32 s{sT1}, s{sT1}, s{sT2}
    v_add_u32 v{vT+1}, s{sT1}, v{vL16}
    s_nop 7
    """)
    stx(a, 'a_bar1')
    for i in range(3):
        a(f"ds_write_b128 v{vT}, {vr(vO+16+4*i,4)} offset:{i*1024}")
    a("s_waitcnt lgkmcnt(0)")
    a("s_barrier")
    stx(a, 'a_bar2')
    for i in range(3):
        a(f"ds_read_b128 {vr(vS+4*i,4)}, v{vT+1} offset:{i*1024}")
    a("s_waitcnt lgkmcnt(0)")
    for r in range(12):
        a(f"v_add_f32 v{vO+r}, v{vO+r}, v{vS+r}")
    a(f"v_mov_b32 v{vT}, 0")
    for r in range(12):
        a(f"v_fma_f32 v{vT}, v{vO+r}, 0, v{vT}")
    a(f"""
    s_cmp_eq_u32 s{sPass}, 0
    s_cbranch_scc0 L_{name}_store2
    v_cmp_u_f32 vcc, v{vT}, v{vT}
    s_nop 4
    s_cmp_eq_u64 vcc, 0
    s_cbranch_scc1 L_{name}_store2
    v_mov_b32 v{vT+1}, {FLAG}
    v_mov_b32 v{vT+2}, 1
    ds_write_b32 v{vT+1}, v{vT+2}
    s_branch L_{name}_store2
    L_{name}_redo:
    s_mov_b32 s{sPass}, 1
    v_mov_b32 v{vT}, 0xff800000
    v_mov_b32 v{vT+1}, 0xff800000
    s_lshr_b32 s{sT0}, s{sHead}, 1
    s_mul_i32 s{sT0}, s{sT0}, 163840
    s_mov_b32 s{sT1}, 0
    v_and_b32 v{vT+2}, 31, v0
    v_lshlrev_b32 v{vT+2}, 4, v{vT+2}
    s_lshl_b32 s{sT2}, s{sE}, 3
    s_add_u32 s{sT2}, s{sT2}, 1024
    v_add_u32 v{vT+2}, s{sT2}, v{vT+2}
    s_mul_i32 s{sT2}, s{sE}, 1536
    v_add_u32 v{vT+3}, s{sT2}, v{vL16}
    L_{name}_maxloop:
    buffer_load_dwordx4 {vr(vKb,4)}, v{vT+3}, s[{sK}:{sK+3}], s{sT0} offen
    buffer_load_dwordx2 {vr(vKr,2)}, v{vT+2}, s[{sK}:{sK+3}], s{sT0} offen
    s_waitcnt vmcnt(0)
    """)
    for s in range(2):
        S = vS + 16*s
        a(f"v_mfma_f32_32x32x16_bf16 {vr(S,16)}, {vr(vKb,4)}, {vr(vQ+4*s,4)}, 0")
        a(f"v_mfma_f32_32x32x8_bf16 {vr(S,16)}, {vr(vKr,2)}, {vr(vQr+2*s,2)}, {vr(S,16)}")
    a("s_nop 15")
    for s in range(2):
        for i in range(0, 16, 2):
            a(f"v_max3_f32 v{vT+s}, v{vT+s}, v{vS+16*s+i}, v{vS+16*s+i+1}")
    a(f"""
    s_add_u32 s{sT0}, s{sT0}, 2560
    s_add_u32 s{sT1}, s{sT1}, 1
    s_cmp_lt_u32 s{sT1}, 64
    s_cbranch_scc1 L_{name}_maxloop
    """)
    for s in range(2):
        a(f"""
        v_mov_b32 v{vT+2}, v{vT+s}
        s_nop 1
        v_permlane32_swap_b32 v{vT+s}, v{vT+2}
        s_nop 1
        v_max_f32 v{vT+2}, v{vT+s}, v{vT+2}
        v_sub_f32 v{vNC+16*s}, 0, v{vT+2}
        """)
        for i in range(1, 16):
            a(f"v_mov_b32 v{vNC+16*s+i}, v{vNC+16*s}")
    a("s_barrier")
    a(f"s_branch L_{name}_restart")
    a.label(f"L_{name}_store2")
    stx(a, 'a_vote')
    a(f"""
    v_mov_b32 v{vT}, v{vO+8}
    v_mov_b32 v{vT+1}, v{vO+8}
    s_nop 1
    v_permlane32_swap_b32 v{vT}, v{vT+1}
    s_nop 1
    v_rcp_f32 v{vT+1}, v{vT+1}
    v_lshrrev_b32 v{vT+2}, 5, v0
    v_and_b32 v{vT+3}, 31, v0
    s_add_u32 s{sT0}, s{sQt}, s{sKh}
    s_lshl_b32 s{sT0}, s{sT0}, 5
    v_add_u32 v{vT+3}, s{sT0}, v{vT+3}
    v_lshlrev_b32 v{vT+3}, 4, v{vT+3}
    s_mul_i32 s{sT0}, s{sHead}, 5
    v_add_u32 v{vT+2}, s{sT0}, v{vT+2}
    """)
    for r in range(12):
        a(f"v_mul_f32 v{vO+r}, v{vO+r}, v{vT+1}")
    for q in range(3):
        a(f"""
        v_add_u32 v{vT+4}, {2*q}, v{vT+2}
        v_lshrrev_b32 v{vT+5}, 1, v{vT+4}
        v_lshlrev_b32 v{vT+5}, 15, v{vT+5}
        v_and_b32 v{vT+4}, 1, v{vT+4}
        v_lshlrev_b32 v{vT+4}, 3, v{vT+4}
        v_add3_u32 v{vT+4}, v{vT+4}, v{vT+5}, v{vT+3}
        v_cvt_pk_bf16_f32 v{vT+6}, v{vO+4*q}, v{vO+4*q+1}
        v_cvt_pk_bf16_f32 v{vT+7}, v{vO+4*q+2}, v{vO+4*q+3}
        """)
        if q == 2: a("s_mov_b32 exec_hi, 0")
        dual(a, [f"buffer_store_dwordx2 {vr(vT+6,2)}, v{vT+4}, s[{sO}:{sO+3}], 0 offen @SC"])
    a("s_mov_b64 exec, -1")
    stx(a, 'a_stores')
    a(f"""
    s_waitcnt vmcnt(0) lgkmcnt(0)
    s_barrier
    v_mov_b32 v{vT+1}, {FLAG}
    ds_read_b32 v{vT+2}, v{vT+1}
    s_waitcnt lgkmcnt(0)
    v_readfirstlane_b32 s{sT0}, v{vT+2}
    s_cmp_eq_u32 s{sPass}, 0
    s_cselect_b32 s{sT0}, s{sT0}, 0
    s_cmp_lg_u32 s{sT0}, 0
    s_cbranch_scc1 L_{name}_redo
    """)
    a(f"s_add_u32 s76, s{sQb}, {C_ATT}")

def gemm_phase_prologue_loader(a, core, q, dep_idx_sgpr, dep_target, nW, pre_issued):
    pass

LANDED = [True]
def reg_step1(a, vd):
    a("s_mov_b64 exec, 7")
    a(f"buffer_load_dword v{vd}, v{vd+1}, s[44:47], 0 offen sc1")
    a("s_mov_b64 exec, -1")
def reg_step2(a, vd):
    dbg_flag_wait(a, vd, landed=LANDED[0])
    a(f"""
    s_getreg_b32 s{sX}, hwreg(HW_REG_XCC_ID)
    s_and_b32 s{sX}, s{sX}, 7
    s_add_u32 s76, s{sX}, {C_RK}
    s_lshl_b32 s76, s76, 7
    s_add_u32 s76, s76, {WS_CNT}
    v_mov_b32 v{vd-1}, s76
    v_accvgpr_write_b32 a0, 1
    s_mov_b64 exec, 1
    s_nop 1
    buffer_atomic_add a0, v{vd-1}, s[{sWS}:{sWS+3}], 0 offen sc0
    s_mov_b64 exec, -1
    """)
def reg_step3(a, vd):
    l1, l2 = a.newlabel("r3a"), a.newlabel("r3b")
    if not LANDED[0]: a("s_waitcnt vmcnt(0)")
    a(f"""
    v_accvgpr_read_b32 v{vd-1}, a0
    s_nop 1
    v_readfirstlane_b32 s{sRk}, v{vd-1}
    s_cmp_eq_u32 s{sRk}, 31
    s_cbranch_scc0 {l1}
    v_mov_b32 v{vd-1}, 4
    v_mov_b32 v{vd-2}, 1
    s_mov_b64 exec, 1
    buffer_atomic_add v{vd-2}, v{vd-1}, s[44:47], 0 offen sc1
    s_mov_b64 exec, -1
    """)
    a.label(l1)
    a(f"""
    s_cmp_ge_u32 s{sRk}, 32
    s_cbranch_scc0 {l2}
    v_mov_b32 v{vd-1}, 8
    v_mov_b32 v{vd-2}, 1
    s_mov_b64 exec, 1
    buffer_store_dword v{vd-2}, v{vd-1}, s[44:47], 0 offen sc1
    s_mov_b64 exec, -1
    """)
    a.label(l2)
    a("s_mov_b64 exec, 7")
    a(f"buffer_load_dword v{vd}, v{vd+1}, s[44:47], 0 offen sc1")
    a("s_mov_b64 exec, -1")
def register_publish(a, vd):
    l0, l1 = a.newlabel("rp"), a.newlabel("rpok")
    a(f"s_mov_b32 s{sPoll}, 0")
    a.label(l0)
    a(f"""
    s_waitcnt vmcnt(0)
    v_readlane_b32 s39, v{vd}, 1
    v_readlane_b32 s40, v{vd}, 2
    s_cmp_eq_u32 s39, 8
    s_cselect_b32 s38, 1, 0
    s_cmp_lg_u32 s40, 0
    s_cselect_b32 s38, 0, s38
    s_cbranch_scc1 {l1}
    s_cmp_eq_u32 s38, 1
    s_cbranch_scc1 {l1}
    s_add_u32 s{sPoll}, s{sPoll}, 1
    s_cmp_gt_u32 s{sPoll}, {POLL_MAX}
    s_cbranch_scc1 {l1}
    s_sleep 1
    s_mov_b64 exec, 7
    buffer_load_dword v{vd}, v{vd+1}, s[44:47], 0 offen sc1
    s_mov_b64 exec, -1
    s_branch {l0}
    """)
    a.label(l1)
    if E('FORCE_SLOW'): a("s_mov_b32 s38, 0")
    a(f"""
    v_mov_b32 v{vd-6}, s{sX}
    v_mov_b32 v{vd-4}, s38
    v_mov_b32 v{vd-5}, s{sRk}
    v_mov_b32 v{vd-7}, {ROLE}
    ds_write_b96 v{vd-7}, v[{vd-6}:{vd-4}]
    s_waitcnt lgkmcnt(0)
    """)
def wave_only(a, w, fn):
    l = a.newlabel("wo")
    a(f"s_cmp_eq_u32 s{sWV}, {w}")
    a(f"s_cbranch_scc0 {l}")
    fn()
    a.label(l)
def code_prefetch(a):
    a(f"""
    s_getpc_b64 s[40:41]
    L_pcref:
    s_lshr_b32 s42, s2, 3
    s_lshl_b32 s42, s42, 11
    v_lshlrev_b32 v26, 7, v1
    v_add_u32 v26, s42, v26
    s_mov_b32 s43, L_exit-L_pcref
    v_cmp_gt_u32 vcc, s43, v26
    s_nop 4
    s_and_b32 vcc_lo, vcc_lo, 0xffff
    s_mov_b32 vcc_hi, 0
    s_mov_b64 exec, vcc
    s_cbranch_execz L_pcskip
    global_load_dword v31, v26, s[40:41]
    L_pcskip:
    s_mov_b64 exec, -1
    """)

def tlb_warm(a):
    G = int(E('TLBG', '21'))
    a(f"""
    s_lshr_b32 s75, s2, 3
    v_lshlrev_b32 v166, 5, v1
    v_add_u32 v166, s75, v166
    v_lshlrev_b32 v166, {G}, v166
    """)
    n_ws = -(-WS_END >> G)
    a(f"s_mov_b64 exec, {(1 << min(31, -(-n_ws // 32))) - 1:#x}")
    a(f"buffer_load_dword v167, v166, s[{sWS}:{sWS+3}], 0 offen sc1")
    a("s_mov_b64 exec, 3")
    for k, (pp, size) in enumerate(((pW1, 640*3456), (pW2, 1728*1280), (pWO, 640*1280), (pOUT, 2048*1280))):
        make_srd(a, 8, pp, pp+1, 0, size)
        a(f"buffer_load_dword v167, v166, s[8:11], 0 offen sc1")
    a("s_mov_b64 exec, -1")

CODE_KB = 64
def gen_mega():
    a = Asm()
    a(f"""
    s_cmp_ge_u32 s2, 256
    s_cbranch_scc1 L_exit
    s_load_dwordx8 s[84:91], s[0:1], 0
    s_load_dwordx8 s[92:99], s[0:1], 32
    s_load_dwordx2 s[78:79], s[0:1], 64
    """)
    st_rt(a, 0); st(a, 1)
    a(f"""
    v_lshrrev_b32 v2, 6, v0
    s_nop 0
    v_readfirstlane_b32 s{sWV}, v2
    """)
    lane_id(a, 1)
    if not E('NOPF'):
        l = a.newlabel("pf")
        a(f"s_cmp_eq_u32 s{sWV}, 1")
        a(f"s_cbranch_scc0 {l}")
        code_prefetch(a)
        a.label(l)
    a("s_waitcnt lgkmcnt(0)")
    make_srd(a, sWS, pWS, pWS+1, 0, WS_END)
    L = CoreL(a, 'qkv', 'q')
    L.map_tiles("L_repack")
    a(f"""
    s_cmp_ge_u32 s{sWV}, 4
    s_cbranch_scc0 L_q_compute
    """)
    L.loader_setup()
    st(a, 2)
    q = VmQ()
    for s_ in range(PD):
        L.issue_A(s_); q.push(f"A{s_}", 4)
        if not FS: stamp(a, 9 + 2*s_, base=SB)
        L.issue_W(s_); q.push(f"W{s_}", 4)
        if not FS: stamp(a, 10 + 2*s_, base=SB)
    st(a, 3)
    make_srd(a, 44, pDBG, pDBG+1, 0, 256)
    a("v_lshlrev_b32 v71, 2, v1")
    a("v_mov_b32 v70, 0")
    PL = P0L(a, L)
    if E('P0L'):
        PL.issue(); q.push('p0l', 5)
    L.p0l = PL
    RP = Repack(a)
    RP.issue(defer=True)
    RP.save()
    L.ldstamps = True
    L.loader_main(q)
    st(a, 8)
    a("s_waitcnt lgkmcnt(0)")
    a("s_barrier")
    attn_pad_init(a, 4, 4)
    a("s_barrier")
    wave_only(a, 7, lambda: register_publish(a, 70))
    a("s_branch L_attn")
    a.label("L_q_compute")
    L.compute_setup()
    make_srd(a, 44, pDBG, pDBG+1, 0, 256)
    a(f"v_lshlrev_b32 v{L.vSt+27}, 2, v1")
    a(f"v_mov_b32 v{L.vSt+26}, 0")
    a(f"""
    s_cmp_ge_u32 s{L.sNt}, 10
    s_cbranch_scc1 L_q_vpath
    """)
    L.addr_qk()
    L.mainloop(True, 2)
    st(a, 3)
    a("s_barrier")
    stx(a, 'q_e1')
    L.epilogue_Y('qk')
    a("s_branch L_q_done")
    a.label("L_q_vpath")
    L.addr_v()
    L.mainloop(False, 2)
    st(a, 3)
    a("s_barrier")
    stx(a, 'q_e1')
    L.epilogue_X()
    a.label("L_q_done")
    stx(a, 'q_epi')
    a(f"buffer_load_dword v{L.vSt+26}, v{L.vSt+27}, s[44:47], 0 offen sc1")
    a("s_waitcnt vmcnt(0)")
    stx(a, 'q_drain')
    a("s_barrier")
    stx(a, 'q_e2')
    a(f"s_cmp_eq_u32 s{sWV}, 0")
    a("s_cbranch_scc0 L_attn")
    dbg_flag_wait(a, L.vSt + 26, landed=True)
    a(f"s_add_u32 s40, s{L.sNt}, {C_QKV}")
    arrive(a, 40, 4)
    st(a, 4)
    a("s_branch L_attn")
    a.label("L_repack")
    l = a.newlabel("zc")
    a(f"""
    s_xor_b32 s40, s2, 225
    s_or_b32 s40, s40, s{sWV}
    s_cmp_eq_u32 s40, 0
    s_cbranch_scc0 {l}
    v_mov_b32 v4, 0
    v_mov_b32 v5, 0
    v_mov_b32 v6, 0
    v_mov_b32 v7, 0
    v_lshlrev_b32 v8, 4, v1
    s_mov_b32 s40, {WS_CNT}
    """)
    for j in range(SZ_CNT // 1024):
        a(f"buffer_store_dwordx4 v[4:7], v8, s[{sWS}:{sWS+3}], s40 offen {SC}")
        a("s_add_u32 s40, s40, 1024")
    make_srd(a, 8, pDBG, pDBG+1, 0, 256)
    a(f"""
    s_waitcnt vmcnt(0)
    v_mov_b32 v4, 1
    v_mov_b32 v5, 0
    s_mov_b64 exec, 1
    buffer_store_dword v4, v5, s[8:11], 0 offen sc1
    s_mov_b64 exec, -1
    """)
    a.label(l)
    make_srd(a, 44, pDBG, pDBG+1, 0, 256)
    a(f"v_lshlrev_b32 v71, 2, v1")
    a(f"v_mov_b32 v70, 0")
    a(f"""
    s_and_b32 s21, s2, 7
    s_lshr_b32 s21, s21, 1
    s_lshl_b32 s21, s21, 2
    s_lshr_b32 s22, s2, 3
    s_and_b32 s22, s22, 3
    s_add_u32 s21, s21, s22
    """)
    idle_rows(a, 21)
    a("s_waitcnt vmcnt(0)")
    a(f"buffer_load_dword v70, v71, s[44:47], 0 offen sc1")
    a("s_barrier")
    def st_arr():
        dbg_flag_wait(a, 70)
        a(f"s_add_u32 s76, s21, {C_ST}")
        arrive(a, 76, 64)
    wave_only(a, 0, st_arr)
    def regall():
        LANDED[0] = False
        reg_step1(a, 70); reg_step2(a, 70); reg_step3(a, 70); register_publish(a, 70)
    wave_only(a, 7, regall)
    l = a.newlabel("rpl")
    a(f"s_cmp_ge_u32 s{sWV}, 4")
    a(f"s_cbranch_scc0 {l}")
    RP2 = Repack(a)
    RP2.issue(defer=True)
    RP2.save()
    attn_pad_init(a, 4, 4)
    a.label(l)
    def fl():
        a(f"buffer_load_dword v70, v71, s[44:47], 0 offen sc1")
        dbg_flag_wait(a, 70)
    wave_only(a, 4, fl)
    a("s_barrier")
    a.label("L_attn")
    emit_attention(a, None)
    S = CoreS(a, 'oproj')
    lane_id(a, 1)
    S.map_tiles()
    a(f"""
    s_cmp_ge_u32 s{sWV}, 4
    s_cbranch_scc0 L_o_compute
    """)
    S.loader_setup()
    q = VmQ()
    for s_ in range(PD):
        S.issue_W(s_); q.push(f"W{s_}", 5)
    lw = a.newlabel("ow")
    a(f"s_cmp_eq_u32 s{sWV}, 4")
    a(f"s_cbranch_scc0 {lw}")
    a(f"s_add_u32 s40, s{sX}, {C_ATT}")
    poll_f(a, 40, 32, 8)
    a.label(lw)
    stx(a, 'o_poll')
    a("s_barrier")
    for s_ in range(PD):
        S.issue_A(s_); q.push(f"A{s_}", 4)
    S.loader_main(q)
    a("s_barrier")
    F1 = CoreL(a, 'ffn1', 'f')
    F1.map_tiles("L_o_ld_idle")
    F1.loader_setup()
    q = VmQ()
    a("s_barrier")
    for s_ in range(PD):
        F1.issue_W(s_); q.push(f"W{s_}", 4)
    a("s_branch L_f1_loader")
    a.label("L_o_ld_idle")
    a("s_barrier")
    a("s_branch L_f2_loader0")
    a.label("L_o_compute")
    lw = a.newlabel("oa")
    a(f"s_cmp_eq_u32 s{sWV}, 0")
    a(f"s_cbranch_scc0 {lw}")
    arrive_f(a, 76, sRk, 4)
    st(a, 8)
    a.label(lw)
    S.compute_setup()
    S.pretouch()
    S.residual_loads()
    a("s_barrier")
    st(a, 9)
    stx(a, 'o_X')
    S.mainloop(tag='o')
    stx(a, 'o_loop')
    S.reduce()
    stx(a, 'o_red')
    a("s_barrier")
    S.epilogue()
    stx(a, 'o_epi')
    a("s_waitcnt vmcnt(0)")
    stx(a, 'o_drain')
    a("s_barrier")
    stx(a, 'o_e2')
    lw = a.newlabel("oa2")
    a(f"s_cmp_eq_u32 s{sWV}, 0")
    a(f"s_cbranch_scc0 {lw}")
    a(f"s_lshr_b32 s40, s{S.sM0}, 7")
    a(f"s_add_u32 s40, s40, {C_OP}")
    a(f"s_lshr_b32 s41, s{S.sM0}, 6")
    a(f"s_and_b32 s41, s41, 1")
    a(f"s_lshl_b32 s41, s41, 3")
    a(f"s_add_u32 s41, s41, s{S.sNt}")
    arrive_f(a, 40, 41, 4)
    st(a, 10)
    a.label(lw)
    lane_id(a, 1)
    F1.map_tiles("L_f2_compute0")
    a("s_branch L_f1_compute")
    a.label("L_f1_loader")
    lw = a.newlabel("fw")
    a(f"s_cmp_eq_u32 s{sWV}, 4")
    a(f"s_cbranch_scc0 {lw}")
    a(f"s_lshr_b32 s40, s{F1.sM0}, 7")
    a(f"s_add_u32 s40, s40, {C_OP}")
    stx(a, 'f_p0')
    poll_f(a, 40, 16, 8)
    a.label(lw)
    stx(a, 'f_poll')
    a("s_barrier")
    for s_ in range(PD):
        F1.issue_A(s_); q.push(f"A{s_}", 4)
    F1.lstats_init()
    F1.loader_main(q)
    a("s_waitcnt lgkmcnt(0)")
    a("s_barrier")
    S2 = CoreS(a, 'ffn2')
    S2.map_tiles()
    S2.loader_setup()
    q = VmQ()
    a("s_barrier")
    if E('PFW2B'):
        for j in range(9):
            wave_only(a, 4 + (j % 4), lambda: w2p_prefetch(a, j))
    for s_ in range(PD):
        S2.issue_W(s_); q.push(f"W{s_}", 5)
    a("s_branch L_f2_loader")
    a.label("L_f2_loader0")
    if E('PFW2') or E('PFW2B'):
        for j in range(9):
            wave_only(a, 4 + (j % 4), lambda: w2p_prefetch(a, j))
    S2.map_tiles()
    S2.loader_setup()
    for s_ in range(PD):
        S2.issue_W(s_)
    a.label("L_f2_loader")
    lw = a.newlabel("gw")
    a(f"s_cmp_eq_u32 s{sWV}, 4")
    a(f"s_cbranch_scc0 {lw}")
    a(f"s_lshr_b32 s40, s{S2.sM0}, 7")
    a(f"s_add_u32 s40, s40, {C_F1}")
    poll_f(a, 40, 14, 8)
    a.label(lw)
    a("s_barrier")
    for s_ in range(PD):
        S2.issue_A(s_); q.push(f"A{s_}", 4)
    S2.loader_main(q)
    if common.STAMPS:
        stamp_flush(a, 0, sWV, base=SB, vt=90)
    a("s_endpgm")
    a.label("L_f1_compute")
    F1.compute_setup()
    F1.addr_f()
    a("s_barrier")
    st(a, 11)
    stx(a, 'f_X')
    F1.mainloop(True, tag='f')
    stx(a, 'f_loop')
    a("s_barrier")
    F1.epilogue_Y('ffn1')
    stx(a, 'f_epi')
    a("s_waitcnt vmcnt(0)")
    stx(a, 'f_drain')
    a("s_barrier")
    lw = a.newlabel("fa")
    a(f"s_cmp_eq_u32 s{sWV}, 0")
    a(f"s_cbranch_scc0 {lw}")
    a(f"s_lshr_b32 s40, s{F1.sM0}, 7")
    a(f"s_add_u32 s40, s40, {C_F1}")
    arrive_f(a, 40, F1.sNt, 4)
    st(a, 12)
    a.label(lw)
    lane_id(a, 1)
    a.label("L_f2_compute0")
    S2.map_tiles()
    S2.compute_setup()
    a("s_barrier")
    st(a, 13)
    stx(a, 'g_X')
    S2.residual_loads()
    S2.mainloop(tag='g')
    stx(a, 'g_loop')
    S2.reduce()
    stx(a, 'g_red')
    S2.epilogue()
    stx(a, 'g_epi')
    if common.STAMPS:
        a("s_waitcnt vmcnt(0)")
        st(a, 14); st_rt(a, 15)
        stamp_flush(a, 0, sWV, base=SB, vt=90)
        if E('DBGOUT'):
            l = a.newlabel("dbo")
            a(f"s_cmp_eq_u32 s2, 9")
            a(f"s_cbranch_scc0 {l}")
            a(f"s_cmp_eq_u32 s{sWV}, 0")
            a(f"s_cbranch_scc0 {l}")
            make_srd(a, 8, pDBG, pDBG+1, 0, 256)
            a("s_mov_b64 exec, 1")
            pairs = [(15, 0), (14, 1), (2, 1), (3, 1), (4, 1), (5, 1), (6, 1), (7, 1), (9, 1), (11, 1), (13, 1)]
            for k, (x, y) in enumerate(pairs):
                a(f"s_sub_u32 s40, s{SB+x}, s{SB+y}")
                a(f"v_mov_b32 v4, s40")
                a(f"v_mov_b32 v5, {16 + 4*k}")
                a(f"buffer_store_dword v4, v5, s[8:11], 0 offen")
            a("s_waitcnt vmcnt(0)")
            a.label(l)
    a.label("L_exit")
    a("s_endpgm")
    return kernel_header(NAME) + a.text() + kernel_desc(NAME, 256, 176, sgpr=102)
```

```python
from common import *
import common, os
E = os.environ.get

NAME = "sequential_preLN__softmax_full_mha__dense_activation_relu__prompt_kernel"
pX, pWQ, pWO, pW1, pW2, pOUT, pDBG, pWS = 84, 86, 88, 92, 94, 96, 98, 78
sWS = 80
sWV = 100
sPoll = 101
SB = 48
STAT = 145408
LDS_TOTAL = 149504
SC = "sc1"
sX, sRk, sLoc = 72, 73, 74
ROLE = LDS_TOTAL - 64
POLL_MAX = 1 << 22

FS = E('FS', '').split(',') if E('FS') else []
FS0 = int(E('FS0', '9'))
def st(a, i):
    if FS and (i >= FS0) and i != 15: return
    stamp(a, i, base=SB)
def st2(a, i): pass
def stx(a, tag):
    if tag in FS: stamp(a, FS0 + FS.index(tag), base=SB)
def st_rt(a, i): stamp_rt(a, i, base=SB)

def lane_id(a, v):
    a(f"v_mbcnt_lo_u32_b32 v{v}, -1, 0")
    a(f"v_mbcnt_hi_u32_b32 v{v}, -1, v{v}")

def arrive(a, sIdx, vt):
    a(f"""
    s_lshl_b32 s{sPoll}, s{sIdx}, 7
    s_add_u32 s{sPoll}, s{sPoll}, {WS_CNT}
    v_mov_b32 v{vt}, s{sPoll}
    v_mov_b32 v{vt+1}, 1
    s_mov_b64 exec, 1
    buffer_atomic_add v{vt+1}, v{vt}, s[{sWS}:{sWS+3}], 0 offen sc1
    s_mov_b64 exec, -1
    """)

def dual(a, instrs):
    l0, l1 = a.newlabel("slow"), a.newlabel("dd")
    a(f"s_cmp_eq_u32 s{sLoc}, 0")
    a(f"s_cbranch_scc1 {l0}")
    for i in instrs: a(i.replace("@SC", E('LOCFL', '') if 'store' in i else ''))
    a(f"s_branch {l1}")
    a.label(l0)
    for i in instrs: a(i.replace("@SC", "sc1"))
    a.label(l1)

def arrive_l(a, sIdx, vt):
    a(f"""
    s_lshl_b32 s{sPoll}, s{sIdx}, 7
    s_add_u32 s{sPoll}, s{sPoll}, {WS_CNT}
    v_mov_b32 v{vt}, s{sPoll}
    v_mov_b32 v{vt+1}, 1
    s_mov_b64 exec, 1
    """)
    dual(a, [f"buffer_atomic_add v{vt+1}, v{vt}, s[{sWS}:{sWS+3}], 0 offen @SC"])
    a("s_mov_b64 exec, -1")

def arrive_f(a, sIdx, sSlot, vt):
    a(f"""
    s_lshl_b32 s{sPoll}, s{sIdx}, 7
    s_add_u32 s{sPoll}, s{sPoll}, {WS_CNT}
    s_lshl_b32 s75, s{sSlot}, 2
    s_add_u32 s{sPoll}, s{sPoll}, s75
    v_mov_b32 v{vt}, s{sPoll}
    v_mov_b32 v{vt+1}, 1
    s_mov_b64 exec, 1
    """)
    dual(a, [f"buffer_store_dword v{vt+1}, v{vt}, s[{sWS}:{sWS+3}], 0 offen @SC"])
    a("s_mov_b64 exec, -1")

def poll_f(a, sIdx, n, vt):
    a(f"""
    s_lshl_b32 s{sPoll}, s{sIdx}, 7
    s_add_u32 s{sPoll}, s{sPoll}, {WS_CNT}
    v_lshlrev_b32 v{vt+1}, 2, v1
    v_add_u32 v{vt+1}, s{sPoll}, v{vt+1}
    v_mov_b32 v{vt+2}, 1
    """)
    poll(a, vt + 1, vt + 2, n, vt)

def poll(a, vOff, vTgt, nl, vt, slp=1):
    l0, l1 = a.newlabel("poll"), a.newlabel("pollok")
    a(f"s_mov_b64 exec, {(1 << nl) - 1:#x}")
    a(f"s_mov_b32 s{sPoll}, 0")
    a.label(l0)
    a(f"""
    buffer_load_dword v{vt}, v{vOff}, s[{sWS}:{sWS+3}], 0 offen sc1
    s_waitcnt vmcnt(0)
    v_cmp_gt_u32 vcc, v{vTgt}, v{vt}
    s_nop 4
    s_cmp_eq_u64 vcc, 0
    s_cbranch_scc1 {l1}
    s_add_u32 s{sPoll}, s{sPoll}, 1
    s_cmp_gt_u32 s{sPoll}, {POLL_MAX}
    s_cbranch_scc1 {l1}
    s_sleep {slp}
    s_branch {l0}
    """)
    a.label(l1)
    a("s_mov_b64 exec, -1")

def poll1(a, sIdx, target, vt):
    a(f"""
    s_lshl_b32 s{sPoll}, s{sIdx}, 7
    s_add_u32 s{sPoll}, s{sPoll}, {WS_CNT}
    v_mov_b32 v{vt+1}, s{sPoll}
    v_mov_b32 v{vt+2}, {target}
    """)
    poll(a, vt + 1, vt + 2, 1, vt)

def wave_sum(a, v):
    for sh in (1, 2, 4, 8):
        a(f"v_add_f32_dpp v{v}, v{v}, v{v} row_shr:{sh} row_mask:0xf bank_mask:0xf bound_ctrl:0")
        a("s_nop 1")
    a(f"v_add_f32_dpp v{v}, v{v}, v{v} row_bcast:15 row_mask:0xa bank_mask:0xf")
    a("s_nop 1")
    a(f"v_add_f32_dpp v{v}, v{v}, v{v} row_bcast:31 row_mask:0xc bank_mask:0xf")
    a("s_nop 1")

def p0_rows_issue(a, sXs, s0, vR, vA):
    a(f"""
    s_lshl_b32 s{s0}, s2, 3
    s_lshl_b32 s{s0+1}, s{sWV}, 1
    s_add_u32 s{s0}, s{s0}, s{s0+1}
    s_mul_i32 s{s0+2}, s{s0}, 1280
    v_lshlrev_b32 v{vA}, 4, v1
    v_lshlrev_b32 v{vA+1}, 2, v1
    s_add_u32 s{s0+3}, s{s0+2}, 1280
    buffer_load_dwordx4 {vr(vR,4)}, v{vA}, s[{sXs}:{sXs+3}], s{s0+2} offen
    buffer_load_dword v{vR+4}, v{vA+1}, s[{sXs}:{sXs+3}], s{s0+2} offen offset:1024
    buffer_load_dwordx4 {vr(vR+6,4)}, v{vA}, s[{sXs}:{sXs+3}], s{s0+3} offen
    buffer_load_dword v{vR+5}, v{vA+1}, s[{sXs}:{sXs+3}], s{s0+3} offen offset:1024
    """)
def p0_rows_finish(a, s0, vR, vA):
    for rr in range(2):
        regs = [vR + 6*rr + i for i in range(4)] + [vR + 4 + rr]
        S, Q, U = vA + 4, vA + 5, vA + 6
        for n, r in enumerate(regs):
            a(f"v_lshlrev_b32 v{U}, 16, v{r}")
            a(f"v_and_b32 v{U+1}, 0xffff0000, v{r}")
            if n == 0:
                a(f"v_add_f32 v{S}, v{U}, v{U+1}")
                a(f"v_mul_f32 v{Q}, v{U}, v{U}")
            else:
                a(f"v_add_f32 v{S}, v{S}, v{U}")
                a(f"v_add_f32 v{S}, v{S}, v{U+1}")
                a(f"v_fmac_f32 v{Q}, v{U}, v{U}")
            a(f"v_fmac_f32 v{Q}, v{U+1}, v{U+1}")
        a("s_nop 1")
        for sh in (1, 2, 4, 8):
            a(f"v_add_f32_dpp v{S}, v{S}, v{S} row_shr:{sh} row_mask:0xf bank_mask:0xf bound_ctrl:0")
            a(f"v_add_f32_dpp v{Q}, v{Q}, v{Q} row_shr:{sh} row_mask:0xf bank_mask:0xf bound_ctrl:0")
            a("s_nop 0")
        a(f"v_add_f32_dpp v{S}, v{S}, v{S} row_bcast:15 row_mask:0xa bank_mask:0xf")
        a(f"v_add_f32_dpp v{Q}, v{Q}, v{Q} row_bcast:15 row_mask:0xa bank_mask:0xf")
        a("s_nop 0")
        a(f"v_add_f32_dpp v{S}, v{S}, v{S} row_bcast:31 row_mask:0xc bank_mask:0xf")
        a(f"v_add_f32_dpp v{Q}, v{Q}, v{Q} row_bcast:31 row_mask:0xc bank_mask:0xf")
        a(f"""
        s_nop 0
        v_mul_f32 v{S}, {f32bits(1.0/640):#x}, v{S}
        v_mul_f32 v{Q}, {f32bits(1.0/640):#x}, v{Q}
        v_fma_f32 v{Q}, -v{S}, v{S}, v{Q}
        v_max_f32 v{Q}, 0, v{Q}
        v_add_f32 v{Q}, {f32bits(1e-5):#x}, v{Q}
        v_rsq_f32 v{Q}, v{Q}
        s_nop 0
        v_mov_b32 v{vA+8+2*rr}, v{S}
        v_mov_b32 v{vA+9+2*rr}, v{Q}
        """)
    a(f"""
    s_lshl_b32 s{s0+4}, s{s0}, 3
    s_add_u32 s{s0+4}, s{s0+4}, {WS_ST1}
    v_mov_b32 v{vA+4}, 0
    s_mov_b32 exec_lo, 0
    s_mov_b32 exec_hi, 0x80000000
    buffer_store_dwordx4 {vr(vA+8,4)}, v{vA+4}, s[{sWS}:{sWS+3}], s{s0+4} offen {SC}
    s_mov_b64 exec, -1
    """)
def colsum_issue(a, which, srd, sW4, s0, vC, vA):
    ld = 3840 if which == 'wq' else 3456
    a(f"""
    s_and_b32 s{s0+1}, s2, 7
    s_lshr_b32 s{s0+2}, s2, 3
    s_lshr_b32 s{s0+3}, s{s0+1}, 1
    s_lshl_b32 s{s0+3}, s{s0+3}, 5
    s_add_u32 s{s0+2}, s{s0+2}, s{s0+3}
    s_and_b32 s{s0+1}, s{s0+1}, 1
    s_and_b32 s{s0+3}, s{s0+2}, 15
    s_lshr_b32 s{s0+2}, s{s0+2}, 4
    v_lshrrev_b32 v{vA}, 3, v1
    v_and_b32 v{vA+1}, 7, v1
    v_lshlrev_b32 v{vA+1}, 2, v{vA+1}
    v_mul_u32_u24 v{vA+2}, {ld}, v{vA}
    v_add_u32 v{vA+2}, v{vA+2}, v{vA+1}
    s_lshl_b32 s{s0+4}, s{s0+3}, 6
    s_lshl_b32 s{s0+7}, s{sW4}, 4
    s_add_u32 s{s0+4}, s{s0+4}, s{s0+7}
    s_mul_i32 s{s0+5}, s{s0+1}, {1024 if which == 'wq' else 896}
    s_add_u32 s{s0+5}, s{s0+5}, s{s0+4}
    s_mul_i32 s{s0+7}, s{s0+2}, {80*ld}
    s_lshl_b32 s{s0+4}, s{s0+5}, 1
    s_add_u32 s{s0+7}, s{s0+7}, s{s0+4}
    """)
    for j in range(10):
        a(f"buffer_load_dword v{vC+j}, v{vA+2}, s[{srd}:{srd+3}], s{s0+7} offen")
        if j < 9: a(f"s_add_u32 s{s0+7}, s{s0+7}, {8*ld}")
def colsum_finish(a, which, s0, vC, vA):
    base, ncol = (WS_CS1, 1920) if which == 'wq' else (WS_CS2, 1792)
    A0, A1, U = vA + 4, vA + 5, vA + 6
    for j in range(10):
        if j == 0:
            a(f"v_lshlrev_b32 v{A0}, 16, v{vC}")
            a(f"v_and_b32 v{A1}, 0xffff0000, v{vC}")
        else:
            a(f"v_lshlrev_b32 v{U}, 16, v{vC+j}")
            a(f"v_and_b32 v{U+1}, 0xffff0000, v{vC+j}")
            a(f"v_add_f32 v{A0}, v{A0}, v{U}")
            a(f"v_add_f32 v{A1}, v{A1}, v{U+1}")
    a(f"""
    s_nop 1
    v_add_f32_dpp v{A0}, v{A0}, v{A0} row_ror:8 row_mask:0xf bank_mask:0xf
    v_add_f32_dpp v{A1}, v{A1}, v{A1} row_ror:8 row_mask:0xf bank_mask:0xf
    s_nop 1
    v_mov_b32 v{U}, v{A0}
    v_mov_b32 v{U+1}, v{A1}
    s_nop 1
    v_permlane16_swap_b32 v{A0}, v{U}
    v_permlane16_swap_b32 v{A1}, v{U+1}
    s_nop 1
    v_add_f32 v{A0}, v{A0}, v{U}
    v_add_f32 v{A1}, v{A1}, v{U+1}
    s_nop 0
    v_mov_b32 v{U}, v{A0}
    v_mov_b32 v{U+1}, v{A1}
    s_nop 1
    v_permlane32_swap_b32 v{A0}, v{U}
    v_permlane32_swap_b32 v{A1}, v{U+1}
    s_nop 1
    v_add_f32 v{vA+12}, v{A0}, v{U}
    v_add_f32 v{vA+13}, v{A1}, v{U+1}
    v_lshlrev_b32 v{U}, 3, v1
    s_mul_i32 s{s0+4}, s{s0+2}, {ncol*4}
    s_lshl_b32 s{s0+7}, s{s0+5}, 2
    s_add_u32 s{s0+4}, s{s0+4}, s{s0+7}
    s_add_u32 s{s0+4}, s{s0+4}, {base}
    """)
    lab = a.newlabel("p0skip")
    if which == 'wq':
        a(f"s_cmp_ge_u32 s{s0+5}, 1920")
    else:
        a(f"s_sub_u32 s{s0+7}, 14, s{s0+1}")
        a(f"s_cmp_ge_u32 s{s0+3}, s{s0+7}")
    a(f"s_cbranch_scc1 {lab}")
    a("s_mov_b64 exec, 0xff")
    a(f"buffer_store_dwordx2 {vr(vA+12,2)}, v{U}, s[{sWS}:{sWS+3}], s{s0+4} offen {SC}")
    a("s_mov_b64 exec, -1")
    a.label(lab)
def emit_p0(a):
    sXs, sWq, s0 = 8, 12, 40
    vR, vC, vA = 4, 14, 34
    make_srd(a, sXs, pX, pX+1, 0, 2048*1280)
    make_srd(a, sWq, pWQ, pWQ+1, 0, 640*3840)
    p0_rows_issue(a, sXs, s0, vR, vA)
    a(f"s_mov_b32 s39, s{s0}")
    colsum_issue(a, 'wq', sWq, sWV, s0, vC, vA + 12)
    a("s_waitcnt vmcnt(10)")
    a(f"s_mov_b32 s38, s{s0+4}")
    p0_rows_finish(a, 39, vR, vA) if False else None
    p0_rows_finish_b(a, 39, 38, vR, vA)
    a("s_waitcnt vmcnt(1)")
    colsum_finish(a, 'wq', s0, vC, vA + 12)
def p0_rows_finish_b(a, sRow, sTmp, vR, vA):
    import io
    class Tmp: pass
    for rr in range(2):
        regs = [vR + 6*rr + i for i in range(4)] + [vR + 4 + rr]
        S, Q, U = vA + 4, vA + 5, vA + 6
        for n, r in enumerate(regs):
            a(f"v_lshlrev_b32 v{U}, 16, v{r}")
            a(f"v_and_b32 v{U+1}, 0xffff0000, v{r}")
            if n == 0:
                a(f"v_add_f32 v{S}, v{U}, v{U+1}")
                a(f"v_mul_f32 v{Q}, v{U}, v{U}")
            else:
                a(f"v_add_f32 v{S}, v{S}, v{U}")
                a(f"v_add_f32 v{S}, v{S}, v{U+1}")
                a(f"v_fmac_f32 v{Q}, v{U}, v{U}")
            a(f"v_fmac_f32 v{Q}, v{U+1}, v{U+1}")
        a("s_nop 1")
        for sh in (1, 2, 4, 8):
            a(f"v_add_f32_dpp v{S}, v{S}, v{S} row_shr:{sh} row_mask:0xf bank_mask:0xf bound_ctrl:0")
            a(f"v_add_f32_dpp v{Q}, v{Q}, v{Q} row_shr:{sh} row_mask:0xf bank_mask:0xf bound_ctrl:0")
            a("s_nop 0")
        a(f"v_add_f32_dpp v{S}, v{S}, v{S} row_bcast:15 row_mask:0xa bank_mask:0xf")
        a(f"v_add_f32_dpp v{Q}, v{Q}, v{Q} row_bcast:15 row_mask:0xa bank_mask:0xf")
        a("s_nop 0")
        a(f"v_add_f32_dpp v{S}, v{S}, v{S} row_bcast:31 row_mask:0xc bank_mask:0xf")
        a(f"v_add_f32_dpp v{Q}, v{Q}, v{Q} row_bcast:31 row_mask:0xc bank_mask:0xf")
        a(f"""
        s_nop 0
        v_mul_f32 v{S}, {f32bits(1.0/640):#x}, v{S}
        v_mul_f32 v{Q}, {f32bits(1.0/640):#x}, v{Q}
        v_fma_f32 v{Q}, -v{S}, v{S}, v{Q}
        v_max_f32 v{Q}, 0, v{Q}
        v_add_f32 v{Q}, {f32bits(1e-5):#x}, v{Q}
        v_rsq_f32 v{Q}, v{Q}
        s_nop 0
        v_mov_b32 v{vA+8+2*rr}, v{S}
        v_mov_b32 v{vA+9+2*rr}, v{Q}
        """)
    a(f"""
    s_lshl_b32 s{sTmp}, s{sRow}, 3
    s_add_u32 s{sTmp}, s{sTmp}, {WS_ST1}
    v_mov_b32 v{vA+4}, 0
    s_mov_b32 exec_lo, 0
    s_mov_b32 exec_hi, 0x80000000
    buffer_store_dwordx4 {vr(vA+8,4)}, v{vA+4}, s[{sWS}:{sWS+3}], s{sTmp} offen {SC}
    s_mov_b64 exec, -1
    """)
def dbg_flag_issue(a, vt):
    make_srd(a, 44, pDBG, pDBG+1, 0, 256)
    a(f"v_mov_b32 v{vt+1}, 0")
    a(f"buffer_load_dword v{vt}, v{vt+1}, s[44:47], 0 offen sc1")
def dbg_flag_issue_b(a, vt):
    make_srd(a, 16, pDBG, pDBG+1, 0, 256)
    a(f"v_mov_b32 v{vt+1}, 0")
    a(f"buffer_load_dword v{vt}, v{vt+1}, s[16:19], 0 offen sc1")
def dbg_flag_wait(a, vt, srd=44, landed=False):
    l0, l1, l2 = a.newlabel("dbgp"), a.newlabel("dbgok"), a.newlabel("dbgc")
    a(f"s_mov_b32 s{sPoll}, 0")
    if landed: a(f"s_branch {l2}")
    a.label(l0)
    a("s_waitcnt vmcnt(0)")
    a.label(l2)
    a(f"""
    v_readfirstlane_b32 s75, v{vt}
    s_cmp_lg_u32 s75, 0
    s_cbranch_scc1 {l1}
    s_add_u32 s{sPoll}, s{sPoll}, 1
    s_cmp_gt_u32 s{sPoll}, {POLL_MAX}
    s_cbranch_scc1 {l1}
    s_sleep 1
    buffer_load_dword v{vt}, v{vt+1}, s[{srd}:{srd+3}], 0 offen sc1
    s_branch {l0}
    """)
    a.label(l1)
def dbg_flag_wait_arrive_b(a, cbase, vt):
    dbg_flag_wait_arrive(a, cbase, vt, 16)
def dbg_flag_wait_arrive(a, cbase, vt, srd=44):
    l0, l1 = a.newlabel("dbgp"), a.newlabel("dbgok")
    a(f"s_mov_b32 s{sPoll}, 0")
    a.label(l0)
    a(f"""
    s_waitcnt vmcnt(0)
    v_readfirstlane_b32 s75, v{vt}
    s_cmp_lg_u32 s75, 0
    s_cbranch_scc1 {l1}
    s_add_u32 s{sPoll}, s{sPoll}, 1
    s_cmp_gt_u32 s{sPoll}, {POLL_MAX}
    s_cbranch_scc1 {l1}
    s_sleep 1
    buffer_load_dword v{vt}, v{vt+1}, s[{srd}:{srd+3}], 0 offen sc1
    s_branch {l0}
    """)
    a.label(l1)
    a(f"s_and_b32 s75, s2, 7")
    a(f"s_add_u32 s75, s75, {cbase}")
    arrive(a, 75, vt)

class P0Q:
    vR, vC, vD, vA = 64, 84, 94, 104
    def __init__(self, a, L):
        self.a, self.L = a, L
    def issue(self):
        a, L = self.a, self.L
        vR, vC, vD, vA = self.vR, self.vC, self.vD, self.vA
        sXs, sWq = L.sA, L.sW
        sW1 = 16
        make_srd(a, sW1, pW1, pW1+1, 0, 640*3456)
        a(f"""
        v_lshrrev_b32 v2, 4, v1
        v_and_b32 v3, 15, v1
        s_lshl_b32 s40, s{L.sNt}, 4
        s_add_u32 s40, s40, s{L.sM0}
        s_lshl_b32 s41, s{L.sLw}, 2
        s_add_u32 s40, s40, s41
        s_cmp_lt_u32 s{L.sNt}, 8
        s_cselect_b32 s40, s40, 4096
        v_add_u32 v{vA}, s40, v2
        v_mul_u32_u24 v{vA+1}, 1280, v{vA}
        v_lshlrev_b32 v{vA+2}, 4, v3
        v_add_u32 v{vA+1}, v{vA+1}, v{vA+2}
        """)
        for j in range(5):
            a(f"buffer_load_dwordx4 {vr(vR+4*j,4)}, v{vA+1}, s[{sXs}:{sXs+3}], 0 offen offset:{256*j}")
        a(f"""
        s_lshr_b32 s41, s{L.sM0}, 7
        s_mul_i32 s42, s41, {40*3840}
        s_lshl_b32 s43, s{L.sLw}, 5
        s_add_u32 s43, s43, s{L.sN0}
        s_lshl_b32 s40, s43, 1
        s_add_u32 s42, s42, s40
        v_mul_u32_u24 v{vA+2}, 3840, v2
        v_lshlrev_b32 v{vA+3}, 2, v3
        v_add_u32 v{vA+2}, v{vA+2}, v{vA+3}
        """)
        for j in range(10):
            a(f"buffer_load_dword v{vC+j}, v{vA+2}, s[{sWq}:{sWq+3}], s42 offen")
            if j < 9: a(f"s_add_u32 s42, s42, {4*3840}")
        a(f"""
        s_mul_i32 s42, s41, {40*3456}
        s_add_u32 s42, s42, s40
        s_cmp_lt_u32 s{L.sNt}, 14
        s_cselect_b32 s42, s42, 0x7f000000
        v_mul_u32_u24 v{vA+4}, 3456, v2
        v_add_u32 v{vA+4}, v{vA+4}, v{vA+3}
        """)
        for j in range(10):
            a(f"buffer_load_dword v{vD+j}, v{vA+4}, s[{sW1}:{sW1+3}], s42 offen")
            if j < 9: a(f"s_add_u32 s42, s42, {4*3456}")
    def rows(self):
        a, L = self.a, self.L
        vR, vA = self.vR, self.vA
        S, Q, U = vA + 5, vA + 6, vA + 8
        for n in range(20):
            r = vR + n
            u = U + 2*(n & 1)
            a(f"v_lshlrev_b32 v{u}, 16, v{r}")
            a(f"v_and_b32 v{u+1}, 0xffff0000, v{r}")
            if n == 0:
                a(f"v_add_f32 v{S}, v{u}, v{u+1}")
                a(f"v_mul_f32 v{Q}, v{u}, v{u}")
            else:
                a(f"v_add_f32 v{S}, v{S}, v{u}")
                a(f"v_fmac_f32 v{Q}, v{u}, v{u}")
                a(f"v_add_f32 v{S}, v{S}, v{u+1}")
            a(f"v_fmac_f32 v{Q}, v{u+1}, v{u+1}")
        a("s_nop 1")
        for sh in (1, 2, 4, 8):
            a(f"v_add_f32_dpp v{S}, v{S}, v{S} row_shr:{sh} row_mask:0xf bank_mask:0xf bound_ctrl:0")
            a(f"v_add_f32_dpp v{Q}, v{Q}, v{Q} row_shr:{sh} row_mask:0xf bank_mask:0xf bound_ctrl:0")
            a("s_nop 0")
        a(f"""
        v_mul_f32 v{S}, {f32bits(1.0/640):#x}, v{S}
        v_mul_f32 v{Q}, {f32bits(1.0/640):#x}, v{Q}
        v_fma_f32 v{Q}, -v{S}, v{S}, v{Q}
        v_max_f32 v{Q}, 0, v{Q}
        v_add_f32 v{Q}, {f32bits(1e-5):#x}, v{Q}
        v_rsq_f32 v{Q}, v{Q}
        v_mov_b32 v{U}, v{S}
        v_lshlrev_b32 v{U+2}, 3, v{vA}
        v_mov_b32 v{U+3}, 0x7fffff00
        v_cmp_gt_u32 vcc, 2048, v{vA}
        v_mov_b32 v{U+1}, v{Q}
        v_cndmask_b32 v{U+2}, v{U+3}, v{U+2}, vcc
        s_mov_b32 s40, {WS_ST1}
        s_mov_b32 exec_lo, 0x80008000
        s_mov_b32 exec_hi, 0x80008000
        buffer_store_dwordx2 {vr(U,2)}, v{U+2}, s[{sWS}:{sWS+3}], s40 offen {SC}
        s_mov_b64 exec, -1
        """)
    def cols(self, which):
        a, L = self.a, self.L
        vA = self.vA
        regs, base, ncol, lim = (self.vC, WS_CS1, 1920, 15) if which == 0 else (self.vD, WS_CS2, 1792, 14)
        U = vA + 8
        A0, A1 = vA + 5, vA + 6
        for j in range(10):
            u = U + 2*(j & 1)
            if j == 0:
                a(f"v_lshlrev_b32 v{A0}, 16, v{regs}")
                a(f"v_and_b32 v{A1}, 0xffff0000, v{regs}")
            else:
                a(f"v_lshlrev_b32 v{u}, 16, v{regs+j}")
                a(f"v_and_b32 v{u+1}, 0xffff0000, v{regs+j}")
                a(f"v_add_f32 v{A0}, v{A0}, v{u}")
                a(f"v_add_f32 v{A1}, v{A1}, v{u+1}")
        a(f"""
        s_nop 0
        v_mov_b32 v{U}, v{A0}
        v_mov_b32 v{U+1}, v{A1}
        s_nop 1
        v_permlane16_swap_b32 v{A0}, v{U}
        v_permlane16_swap_b32 v{A1}, v{U+1}
        s_nop 1
        v_add_f32 v{A0}, v{A0}, v{U}
        v_add_f32 v{A1}, v{A1}, v{U+1}
        s_nop 0
        v_mov_b32 v{U}, v{A0}
        v_mov_b32 v{U+1}, v{A1}
        s_nop 1
        v_permlane32_swap_b32 v{A0}, v{U}
        v_permlane32_swap_b32 v{A1}, v{U+1}
        s_nop 1
        v_add_f32 v{U+4}, v{A0}, v{U}
        v_add_f32 v{U+5}, v{A1}, v{U+1}
        v_lshlrev_b32 v{U}, 3, v3
        s_mul_i32 s42, s41, {ncol*4}
        s_lshl_b32 s40, s43, 2
        s_add_u32 s42, s42, s40
        s_add_u32 s42, s42, {base}
        s_cmp_lt_u32 s{L.sNt}, {lim}
        s_cselect_b32 s42, s42, 0x7f000000
        s_mov_b64 exec, 0xffff
        buffer_store_dwordx2 {vr(U+4,2)}, v{U}, s[{sWS}:{sWS+3}], s42 offen {SC}
        s_mov_b64 exec, -1
        s_nop 1
        """)
def emit_p0r(a, L):
    sXs, vR, vA = 8, 146, 132
    make_srd(a, sXs, pX, pX+1, 0, 2048*1280)
    a(f"""
    v_lshrrev_b32 v166, 4, v1
    v_and_b32 v167, 15, v1
    s_lshl_b32 s75, s{L.sNt}, 4
    s_add_u32 s75, s75, s{L.sM0}
    s_lshl_b32 s76, s{sWV}, 2
    s_add_u32 s75, s75, s76
    s_cmp_lt_u32 s{L.sNt}, 8
    s_cselect_b32 s75, s75, 4096
    v_add_u32 v{vA}, s75, v166
    v_mul_u32_u24 v{vA+1}, 1280, v{vA}
    v_lshlrev_b32 v{vA+2}, 4, v167
    v_add_u32 v{vA+1}, v{vA+1}, v{vA+2}
    """)
    for j in range(5):
        a(f"buffer_load_dwordx4 {vr(vR+4*j,4)}, v{vA+1}, s[{sXs}:{sXs+3}], 0 offen offset:{256*j}")
def emit_p0r_finish(a, L, extra=0):
    vR, vA = 146, 132
    S, Q, S2, Q2, U = vA + 4, vA + 5, vA + 6, vA + 7, vA + 8
    for j in range(5):
        a(f"s_waitcnt vmcnt({4 - j + extra})")
        for n in range(4):
            r = vR + 4*j + n
            u = U + 2*(n & 1)
            a(f"v_lshlrev_b32 v{u}, 16, v{r}")
            a(f"v_and_b32 v{u+1}, 0xffff0000, v{r}")
            if j == 0 and n == 0:
                a(f"v_mov_b32 v{S}, v{u}")
                a(f"v_mul_f32 v{Q}, v{u}, v{u}")
                a(f"v_mov_b32 v{S2}, v{u+1}")
                a(f"v_mul_f32 v{Q2}, v{u+1}, v{u+1}")
            else:
                a(f"v_add_f32 v{S}, v{S}, v{u}")
                a(f"v_fmac_f32 v{Q}, v{u}, v{u}")
                a(f"v_add_f32 v{S2}, v{S2}, v{u+1}")
                a(f"v_fmac_f32 v{Q2}, v{u+1}, v{u+1}")
    a(f"v_add_f32 v{S}, v{S}, v{S2}")
    a(f"v_add_f32 v{Q}, v{Q}, v{Q2}")
    a("s_nop 1")
    for sh in (1, 2, 4, 8):
        a(f"v_add_f32_dpp v{S}, v{S}, v{S} row_shr:{sh} row_mask:0xf bank_mask:0xf bound_ctrl:0")
        a(f"v_add_f32_dpp v{Q}, v{Q}, v{Q} row_shr:{sh} row_mask:0xf bank_mask:0xf bound_ctrl:0")
        a("s_nop 0")
    a(f"""
    v_mul_f32 v{S}, {f32bits(1.0/640):#x}, v{S}
    v_mul_f32 v{Q}, {f32bits(1.0/640):#x}, v{Q}
    v_fma_f32 v{Q}, -v{S}, v{S}, v{Q}
    v_max_f32 v{Q}, 0, v{Q}
    v_add_f32 v{Q}, {f32bits(1e-5):#x}, v{Q}
    v_rsq_f32 v{Q}, v{Q}
    v_mov_b32 v{U}, v{S}
    v_lshlrev_b32 v{U+2}, 3, v{vA}
    v_mov_b32 v{U+3}, 0x7fffff00
    v_cmp_gt_u32 vcc, 2048, v{vA}
    v_mov_b32 v{U+1}, v{Q}
    v_cndmask_b32 v{U+2}, v{U+3}, v{U+2}, vcc
    s_mov_b32 s75, {WS_ST1}
    s_mov_b32 exec_lo, 0x80008000
    s_mov_b32 exec_hi, 0x80008000
    buffer_store_dwordx2 {vr(U,2)}, v{U+2}, s[{sWS}:{sWS+3}], s75 offen {SC}
    s_mov_b64 exec, -1
    """)
def idle_rows(a, sMt, hook=None):
    sXs, vR, vA = 8, 72, 4
    NP = 2 if E('P0L') else 4
    make_srd(a, sXs, pX, pX+1, 0, 2048*1280)
    a(f"""
    v_lshrrev_b32 v2, 4, v1
    v_and_b32 v3, 15, v1
    s_lshl_b32 s40, s{sMt}, 7
    s_lshl_b32 s41, s{sWV}, {3 if E('P0L') else 4}
    s_add_u32 s40, s40, s41
    v_add_u32 v{vA}, s40, v2
    v_mul_u32_u24 v{vA+1}, 1280, v{vA}
    v_lshlrev_b32 v{vA+2}, 4, v3
    v_add_u32 v{vA+1}, v{vA+1}, v{vA+2}
    """)
    for p in range(NP):
        a(f"s_mov_b32 s41, {p * 4 * 1280}")
        for j in range(5):
            a(f"buffer_load_dwordx4 {vr(vR + 20*p + 4*j, 4)}, v{vA+1}, s[{sXs}:{sXs+3}], s41 offen offset:{256*j}")
    S, Q, S2, Q2, U = vA + 4, vA + 5, vA + 6, vA + 7, vA + 8
    if hook: hook(-1)
    for p in range(NP):
        if hook and p > 0: hook(p - 1)
        a(f"s_waitcnt vmcnt({(NP - 1 - p) * 5 + p})")
        for n in range(20):
            r = vR + 20*p + n
            u = U + 2*(n & 1)
            a(f"v_lshlrev_b32 v{u}, 16, v{r}")
            a(f"v_and_b32 v{u+1}, 0xffff0000, v{r}")
            if n == 0:
                a(f"v_mov_b32 v{S}, v{u}")
                a(f"v_mul_f32 v{Q}, v{u}, v{u}")
                a(f"v_mov_b32 v{S2}, v{u+1}")
                a(f"v_mul_f32 v{Q2}, v{u+1}, v{u+1}")
            else:
                a(f"v_add_f32 v{S}, v{S}, v{u}")
                a(f"v_fmac_f32 v{Q}, v{u}, v{u}")
                a(f"v_add_f32 v{S2}, v{S2}, v{u+1}")
                a(f"v_fmac_f32 v{Q2}, v{u+1}, v{u+1}")
        a(f"v_add_f32 v{S}, v{S}, v{S2}")
        a(f"v_add_f32 v{Q}, v{Q}, v{Q2}")
        a("s_nop 1")
        for sh in (1, 2, 4, 8):
            a(f"v_add_f32_dpp v{S}, v{S}, v{S} row_shr:{sh} row_mask:0xf bank_mask:0xf bound_ctrl:0")
            a(f"v_add_f32_dpp v{Q}, v{Q}, v{Q} row_shr:{sh} row_mask:0xf bank_mask:0xf bound_ctrl:0")
            a("s_nop 0")
        a(f"""
        v_mul_f32 v{S}, {f32bits(1.0/640):#x}, v{S}
        v_mul_f32 v{Q}, {f32bits(1.0/640):#x}, v{Q}
        v_fma_f32 v{Q}, -v{S}, v{S}, v{Q}
        v_max_f32 v{Q}, 0, v{Q}
        v_add_f32 v{Q}, {f32bits(1e-5):#x}, v{Q}
        v_rsq_f32 v{Q}, v{Q}
        v_mov_b32 v{U+4}, v{S}
        v_add_u32 v{U+2}, {4*p}, v{vA}
        v_lshlrev_b32 v{U+2}, 3, v{U+2}
        v_mov_b32 v{U+5}, v{Q}
        s_mov_b32 s41, {WS_ST1}
        s_mov_b32 exec_lo, 0x80008000
        s_mov_b32 exec_hi, 0x80008000
        buffer_store_dwordx2 {vr(U+4,2)}, v{U+2}, s[{sWS}:{sWS+3}], s41 offen {SC}
        s_mov_b64 exec, -1
        s_nop 1
        """)

class P0L:
    vR, vA = 116, 136
    def __init__(self, a, L): self.a, self.L = a, L
    def issue(self):
        a, L = self.a, self.L
        vR, vA = self.vR, self.vA
        a(f"""
        v_lshrrev_b32 v{vA+2}, 4, v1
        v_and_b32 v{vA+3}, 15, v1
        s_lshl_b32 s75, s{L.sNt}, 4
        s_add_u32 s75, s75, s{L.sM0}
        s_add_u32 s75, s75, 64
        s_lshl_b32 s76, s{L.sLw}, 2
        s_add_u32 s75, s75, s76
        s_cmp_lt_u32 s{L.sNt}, 4
        s_cselect_b32 s75, s75, 4096
        v_add_u32 v{vA}, s75, v{vA+2}
        v_mul_u32_u24 v{vA+1}, 1280, v{vA}
        v_lshlrev_b32 v{vA+3}, 4, v{vA+3}
        v_add_u32 v{vA+1}, v{vA+1}, v{vA+3}
        """)
        for j in range(5):
            a(f"buffer_load_dwordx4 {vr(vR+4*j,4)}, v{vA+1}, s[{L.sA}:{L.sA+3}], 0 offen offset:{256*j}")
    def finish(self):
        a = self.a
        vR, vA = self.vR, self.vA
        S, Q, S2, Q2, U = vA + 4, vA + 5, vA + 6, vA + 7, vA + 8
        for n in range(20):
            r = vR + n
            u = U + 2*(n & 1)
            a(f"v_lshlrev_b32 v{u}, 16, v{r}")
            a(f"v_and_b32 v{u+1}, 0xffff0000, v{r}")
            if n == 0:
                a(f"v_mov_b32 v{S}, v{u}")
                a(f"v_mul_f32 v{Q}, v{u}, v{u}")
                a(f"v_mov_b32 v{S2}, v{u+1}")
                a(f"v_mul_f32 v{Q2}, v{u+1}, v{u+1}")
            else:
                a(f"v_add_f32 v{S}, v{S}, v{u}")
                a(f"v_fmac_f32 v{Q}, v{u}, v{u}")
                a(f"v_add_f32 v{S2}, v{S2}, v{u+1}")
                a(f"v_fmac_f32 v{Q2}, v{u+1}, v{u+1}")
        a(f"v_add_f32 v{S}, v{S}, v{S2}")
        a(f"v_add_f32 v{Q}, v{Q}, v{Q2}")
        a("s_nop 1")
        for sh in (1, 2, 4, 8):
            a(f"v_add_f32_dpp v{S}, v{S}, v{S} row_shr:{sh} row_mask:0xf bank_mask:0xf bound_ctrl:0")
            a(f"v_add_f32_dpp v{Q}, v{Q}, v{Q} row_shr:{sh} row_mask:0xf bank_mask:0xf bound_ctrl:0")
            a("s_nop 0")
        a(f"""
        v_mul_f32 v{S}, {f32bits(1.0/640):#x}, v{S}
        v_mul_f32 v{Q}, {f32bits(1.0/640):#x}, v{Q}
        v_fma_f32 v{Q}, -v{S}, v{S}, v{Q}
        v_max_f32 v{Q}, 0, v{Q}
        v_add_f32 v{Q}, {f32bits(1e-5):#x}, v{Q}
        v_rsq_f32 v{Q}, v{Q}
        v_mov_b32 v{U}, v{S}
        v_lshlrev_b32 v{U+2}, 3, v{vA}
        v_mov_b32 v{U+3}, 0x7fffff00
        v_cmp_gt_u32 vcc, 2048, v{vA}
        v_mov_b32 v{U+1}, v{Q}
        v_cndmask_b32 v{U+2}, v{U+3}, v{U+2}, vcc
        s_mov_b32 s75, {WS_ST1}
        s_mov_b32 exec_lo, 0x80008000
        s_mov_b32 exec_hi, 0x80008000
        buffer_store_dwordx2 {vr(U,2)}, v{U+2}, s[{sWS}:{sWS+3}], s75 offen {SC}
        s_mov_b64 exec, -1
        """)

def p0r_arrive(a, L, vt):
    ok, skip = a.newlabel("fok"), a.newlabel("fsk")
    dbg_flag_wait(a, vt, landed=True)
    a(f"s_cmp_lt_u32 s{L.sNt}, 4")
    a(f"s_cbranch_scc0 {skip}")
    a(f"s_lshr_b32 s76, s{L.sM0}, 7")
    a(f"s_add_u32 s76, s76, {C_ST}")
    arrive(a, 76, vt - 2)
    a.label(skip)

def qkv_prefetch(a, L):
    make_srd(a, 12, pWQ, pWQ+1, 0, 640*3840)
    make_srd(a, 8, pX, pX+1, 0, 2048*1280)
    fl = E('QPF_FL', 'sc1')
    a(f"""
    s_lshr_b32 s40, s2, 3
    s_and_b32 s41, s2, 1
    v_and_b32 v2, 15, v1
    v_lshrrev_b32 v3, 4, v1
    v_lshlrev_b32 v2, 7, v2
    v_mul_u32_u24 v3, 3840, v3
    v_add_u32 v4, v2, v3
    s_mul_i32 s42, s40, {20*3840}
    s_lshl_b32 s43, s41, 11
    s_add_u32 s42, s42, s43
    s_mul_i32 s43, s{sWV}, {4*3840}
    s_add_u32 s42, s42, s43
    buffer_load_dword v162, v4, s[12:15], s42 offen {fl}
    """)
    l = a.newlabel("qpf")
    a(f"""
    s_cmp_eq_u32 s{sWV}, 0
    s_cbranch_scc0 {l}
    s_add_u32 s42, s42, {16*3840}
    buffer_load_dword v162, v4, s[12:15], s42 offen {fl}
    """)
    a.label(l)
    l = a.newlabel("qpf")
    a(f"""
    s_cmp_eq_u32 s{sWV}, 0
    s_cbranch_scc1 {l}
    s_and_b32 s41, s2, 7
    s_lshr_b32 s41, s41, 1
    s_lshl_b32 s41, s41, 5
    s_add_u32 s41, s41, s40
    s_mul_i32 s42, s41, 20480
    s_sub_u32 s43, s{sWV}, 1
    s_lshl_b32 s43, s43, 13
    s_add_u32 s42, s42, s43
    v_lshlrev_b32 v4, 7, v1
    buffer_load_dword v162, v4, s[8:11], s42 offen {fl}
    """)
    a.label(l)

def p0q_arrive(a, L, vt):
    ok = a.newlabel("fok")
    a(f"v_readfirstlane_b32 s75, v{vt}")
    a("s_cmp_lg_u32 s75, 0")
    a(f"s_cbranch_scc1 {ok}")
    dbg_flag_wait(a, vt)
    a.label(ok)
    a(f"""
    s_lshr_b32 s75, s{L.sM0}, 7
    s_add_u32 s75, s75, {C_ST}
    s_add_u32 s76, s{L.sNt}, {C_CS1}
    s_add_u32 s77, s{L.sNt}, {C_CS2}
    v_mov_b32 v{vt-1}, s75
    v_writelane_b32 v{vt-1}, s76, 1
    v_writelane_b32 v{vt-1}, s77, 2
    s_nop 0
    v_lshlrev_b32 v{vt-1}, 7, v{vt-1}
    v_add_u32 v{vt-1}, {WS_CNT}, v{vt-1}
    v_mov_b32 v{vt-2}, 1
    s_cmp_lt_u32 s{L.sNt}, 8
    s_cselect_b32 s75, 1, 0
    s_or_b32 s75, s75, 2
    s_cmp_lt_u32 s{L.sNt}, 14
    s_cselect_b32 s76, 4, 0
    s_or_b32 s75, s75, s76
    s_mov_b32 exec_lo, s75
    s_mov_b32 exec_hi, 0
    buffer_atomic_add v{vt-2}, v{vt-1}, s[{sWS}:{sWS+3}], 0 offen sc1
    s_mov_b64 exec, -1
    """)

def w2p_prefetch(a, j):
    a(f"""
    s_mul_i32 s75, s{sRk}, {SZ_W2P // 32}
    s_add_u32 s75, s75, {WS_W2P + j * 8192}
    v_lshlrev_b32 v61, 7, v1
    buffer_load_dword v60, v61, s[{sWS}:{sWS+3}], s75 offen sc1
    """)

def w2_first_prefetch(a, c):
    NST = 14
    a(f"""
    s_and_b32 s75, s{sRk}, 3
    s_mul_i32 s75, s75, 3
    s_lshr_b32 s76, s{sRk}, 2
    s_lshl_b32 s77, s76, 1
    s_add_u32 s75, s75, s77
    s_cmp_ge_u32 s75, {NST}
    s_cselect_b32 s77, {NST}, 0
    s_sub_u32 s75, s75, s77
    s_cmp_ge_u32 s75, {NST}
    s_cselect_b32 s77, {NST}, 0
    s_sub_u32 s75, s75, s77
    s_mul_i32 s76, s76, {NST * 20480}
    s_add_u32 s76, s76, {WS_W2P}
    s_mul_i32 s77, s{c.sLw}, 5120
    s_add_u32 s76, s76, s77
    s_mul_i32 s77, s75, 20480
    s_add_u32 s77, s77, s76
    v_lshlrev_b32 v61, 7, v1
    s_mov_b32 exec_lo, -1
    s_mov_b32 exec_hi, 0xff
    buffer_load_dword v60, v61, s[{sWS}:{sWS+3}], s77 offen sc1
    s_add_u32 s75, s75, 1
    s_cmp_eq_u32 s75, {NST}
    s_cselect_b32 s75, 0, s75
    s_mul_i32 s77, s75, 20480
    s_add_u32 s77, s77, s76
    buffer_load_dword v60, v61, s[{sWS}:{sWS+3}], s77 offen sc1
    s_mov_b64 exec, -1
    """)

class Repack:
    aB, vD, vT = 28, 110, 88
    sWo, sW2, sW1 = 12, 16, 40
    def __init__(self, a): self.a = a
    def issue(self, defer=False):
        a = self.a
        aB, vD, T = self.aB, self.vD, self.vT
        a(f"""
        s_mul_i32 s75, s2, 768
        s_sub_u32 s76, s{sWV}, 4
        s_lshl_b32 s76, s76, 6
        s_add_u32 s75, s75, s76
        v_add_u32 v{T}, s75, v1
        """)
        for r in range(3):
            g, it, sg, rho, c, row, nt, st_, x = T+1, T+2, T+3, T+4, T+5, T+6, T+7, T+8, T+9
            a(f"""
            v_add_u32 v{g}, {256*r}, v{T}
            s_mov_b32 s75, {(1 << 32) // 1280 + 1:#x}
            v_mul_hi_u32 v{it}, v{g}, s75
            v_mul_u32_u24 v{sg}, 1280, v{it}
            v_sub_u32 v{sg}, v{g}, v{sg}
            v_mul_u32_u24 v{rho}, 0xcccd, v{sg}
            v_lshrrev_b32 v{rho}, 19, v{rho}
            v_mul_u32_u24 v{c}, 10, v{rho}
            v_sub_u32 v{c}, v{sg}, v{c}
            v_and_b32 v{row}, 0x73, v{rho}
            v_and_b32 v{x}, 4, v{rho}
            v_lshlrev_b32 v{x}, 1, v{x}
            v_or_b32 v{row}, v{row}, v{x}
            v_and_b32 v{x}, 8, v{rho}
            v_lshrrev_b32 v{x}, 1, v{x}
            v_or_b32 v{row}, v{row}, v{x}
            v_lshlrev_b32 v{vD+r}, 4, v{g}
            v_cmp_gt_u32 vcc, 40, v{it}
            v_subrev_u32 v{x}, 40, v{it}
            s_nop 0
            v_cndmask_b32 v{x}, v{x}, v{it}, vcc
            v_mul_u32_u24 v{nt}, 0x4925, v{x}
            v_mul_u32_u24 v{st_}, 0xcccd, v{x}
            v_cndmask_b32 v{nt}, v{nt}, v{st_}, vcc
            v_lshrrev_b32 v{nt}, 18, v{nt}
            v_mov_b32 v{st_}, 14
            v_cndmask_b32 v{st_}, v{st_}, 5, vcc
            v_mul_u32_u24 v{st_}, v{st_}, v{nt}
            v_sub_u32 v{st_}, v{x}, v{st_}
            v_lshlrev_b32 v{st_}, 7, v{st_}
            v_add_u32 v{row}, v{row}, v{st_}
            v_mul_u32_u24 v{row}, 1280, v{row}
            v_mul_u32_u24 v{nt}, 160, v{nt}
            v_lshlrev_b32 v{c}, 4, v{c}
            v_add3_u32 v{row}, v{row}, v{nt}, v{c}
            v_mov_b32 v{x}, 0x7fffff00
            v_cndmask_b32 v{nt}, v{x}, v{row}, vcc
            v_cndmask_b32 v{row}, v{row}, v{x}, vcc
            v_cmp_gt_u32 vcc, 152, v{it}
            s_nop 1
            v_cndmask_b32 v{vD+r}, v{x}, v{vD+r}, vcc
            """)
            a(f"v_mov_b32 v{100+2*r}, v{nt}")
            a(f"v_mov_b32 v{101+2*r}, v{row}")
            a(f"v_mov_b32 v{106+r}, v{it}")
        if defer: return
        self.loads()
    def loads(self, base=100, tmp=None):
        a = self.a
        aB, T = self.aB, (self.vT if tmp is None else tmp)
        if base != 100:
            for k in range(9): a(f"v_accvgpr_read_b32 v{base+k}, a{40+k}")
        self.sWo, self.sW2, self.sW1 = 8, 12, 8
        make_srd(a, self.sWo, pWO, pWO+1, 0, 640*1280)
        make_srd(a, self.sW2, pW2, pW2+1, 0, 1728*1280)
        for r in range(3):
            la, lb = a.newlabel("rpa"), a.newlabel("rpb")
            a(f"""
            v_cmp_gt_u32 vcc, 40, v{base+6+r}
            s_nop 4
            s_mov_b64 s[76:77], vcc
            s_mov_b64 exec, vcc
            s_cbranch_execz {la}
            buffer_load_dwordx4 {ar(aB+4*r,4)}, v{base+2*r}, s[{self.sWo}:{self.sWo+3}], 0 offen
            {la}:
            s_not_b64 exec, s[76:77]
            s_cbranch_execz {lb}
            buffer_load_dwordx4 {ar(aB+4*r,4)}, v{base+1+2*r}, s[{self.sW2}:{self.sW2+3}], 0 offen
            {lb}:
            s_mov_b64 exec, -1
            """)
        make_srd(a, self.sW1, pW1, pW1+1, 0, 640*3456)
        a(f"""
        s_mul_i32 s75, s2, 8640
        s_sub_u32 s76, s{sWV}, 4
        s_mul_i32 s76, s76, 2176
        s_add_u32 s75, s75, s76
        v_lshlrev_b32 v{T}, 7, v1
        s_mov_b64 exec, 0x1ffff
        buffer_load_dword v113, v{T}, s[{self.sW1}:{self.sW1+3}], s75 offen sc1
        s_mov_b64 exec, -1
        """)
    def save(self):
        a = self.a
        for r in range(3): a(f"v_accvgpr_write_b32 a{40+r}, v{self.vD+r}")
        for k in range(9): a(f"v_accvgpr_write_b32 a{43+k}, v{100+k}")
    def store(self, wait_after=True, pre="s_waitcnt vmcnt(0)"):
        a = self.a
        a(pre)
        a(f"s_mov_b32 s75, {WS_WOP}")
        for r in range(3):
            a(f"buffer_store_dwordx4 {ar(self.aB+4*r,4)}, v{self.vD+r}, s[{sWS}:{sWS+3}], s75 offen {SC}")
        if wait_after: a("s_waitcnt vmcnt(0)")
        else: a("s_nop 1")

class CoreL:
    sA, sW, sO = 8, 12, 16
    sM0, sN0, sT0, sT1, sT2, sT3 = 21, 22, 23, 24, 25, 26
    sLw, sSlot, sAoff, sWoff, sLds = 20, 28, 29, 30, 31
    sWm, sWn, sNt, sSeq, sSeqW = 32, 33, 34, 35, 36
    vAe, vAo, vWo = 4, 5, 6
    NST = 10
    def __init__(self, a, mode, tag):
        self.a, self.mode, self.tag = a, mode, tag
        self.qkv = mode == 'qkv'
        self.LDW = 3840 if self.qkv else 3456
    def map_tiles(self, idle_label):
        a, c = self.a, self
        if not c.qkv:
            a(f"""
            s_and_b32 s{c.sT3}, s{sRk}, 1
            s_lshl_b32 s{c.sM0}, s{sX}, 1
            s_add_u32 s{c.sM0}, s{c.sM0}, s{c.sT3}
            s_lshl_b32 s{c.sM0}, s{c.sM0}, 7
            s_lshr_b32 s{c.sNt}, s{sRk}, 1
            s_cmp_ge_u32 s{c.sNt}, 14
            s_cbranch_scc1 {idle_label}
            s_lshl_b32 s{c.sN0}, s{c.sNt}, 7
            s_mul_i32 s{c.sSeq}, s{c.sNt}, 3
            s_mul_i32 s{c.sT0}, s{c.sT3}, 5
            s_add_u32 s{c.sSeq}, s{c.sSeq}, s{c.sT0}
            s_mul_i32 s{c.sT0}, s{c.sSeq}, 0xcccd
            s_lshr_b32 s{c.sT0}, s{c.sT0}, 19
            s_mul_i32 s{c.sT0}, s{c.sT0}, 10
            s_sub_u32 s{c.sSeq}, s{c.sSeq}, s{c.sT0}
            """)
            if E('NOROTL'): a(f"s_mov_b32 s{c.sSeq}, 0")
            return
        NT_PER = 8 if c.qkv else 7
        NT_TOT = 15 if c.qkv else 14
        a(f"""
        s_and_b32 s{c.sT0}, s2, 7
        s_lshr_b32 s{c.sT1}, s2, 3
        s_lshr_b32 s{c.sT2}, s{c.sT0}, 1
        s_lshl_b32 s{c.sT2}, s{c.sT2}, 2
        s_and_b32 s{c.sT3}, s{c.sT1}, 3
        s_add_u32 s{c.sM0}, s{c.sT2}, s{c.sT3}
        s_lshl_b32 s{c.sM0}, s{c.sM0}, 7
        s_and_b32 s{c.sT0}, s{c.sT0}, 1
        s_mul_i32 s{c.sT0}, s{c.sT0}, {NT_PER}
        s_lshr_b32 s{c.sT1}, s{c.sT1}, 2
        s_add_u32 s{c.sNt}, s{c.sT0}, s{c.sT1}
        s_cmp_ge_u32 s{c.sT1}, {NT_PER}
        s_cbranch_scc1 {idle_label}
        s_cmp_ge_u32 s{c.sNt}, {NT_TOT}
        s_cbranch_scc1 {idle_label}
        s_lshl_b32 s{c.sN0}, s{c.sNt}, 7
        s_mul_i32 s{c.sSeq}, s{c.sT3}, 3
        s_add_u32 s{c.sSeq}, s{c.sSeq}, s{c.sT1}
        s_cmp_ge_u32 s{c.sSeq}, 10
        s_cselect_b32 s{c.sT0}, 10, 0
        s_sub_u32 s{c.sSeq}, s{c.sSeq}, s{c.sT0}
        """)
        if E('NOROTL'): a(f"s_mov_b32 s{c.sSeq}, 0")
    def loader_setup(self):
        a, c = self.a, self
        a(f"s_sub_u32 s{c.sLw}, s{sWV}, 4")
        if c.qkv:
            make_srd(a, c.sA, pX, pX+1, 0, 2048*1280)
            a(f"""
            v_lshrrev_b32 v2, 3, v1
            v_mul_u32_u24 v2, 1280, v2
            v_lshrrev_b32 v3, 4, v1
            v_and_b32 v7, 7, v1
            v_xor_b32 v3, v3, v7
            v_lshlrev_b32 v3, 4, v3
            v_add_u32 v{c.vAe}, v2, v3
            v_xor_b32 v{c.vAo}, 64, v{c.vAe}
            s_lshl_b32 s{c.sT0}, s{c.sLw}, 5
            s_add_u32 s{c.sT0}, s{c.sT0}, s{c.sM0}
            s_mul_i32 s{c.sAoff}, s{c.sT0}, 1280
            """)
            c.A_SSTEP = 128
        else:
            make_srd(a, c.sA, pWS, pWS+1, WS_H, SZ_ACT)
            a(f"""
            v_lshlrev_b32 v{c.vAe}, 4, v1
            v_add_u32 v{c.vAo}, 1024, v{c.vAe}
            s_lshl_b32 s{c.sT0}, s{c.sLw}, 16
            s_lshl_b32 s{c.sT1}, s{c.sM0}, 4
            s_add_u32 s{c.sAoff}, s{c.sT0}, s{c.sT1}
            """)
            c.A_SSTEP = 8 * 32768
        pw = pWQ if c.qkv else pW1
        make_srd(a, c.sW, pw, pw+1, 0, 640 * c.LDW)
        a(f"""
        v_lshrrev_b32 v2, 4, v1
        v_mul_u32_u24 v3, {c.LDW}, v2
        v_lshlrev_b32 v2, 2, v2
        v_and_b32 v7, 15, v1
        v_xor_b32 v2, v2, v7
        v_lshlrev_b32 v2, 4, v2
        v_add_u32 v{c.vWo}, v2, v3
        s_lshl_b32 s{c.sT0}, s{c.sLw}, 4
        s_mul_i32 s{c.sT0}, s{c.sT0}, {c.LDW}
        s_lshl_b32 s{c.sT1}, s{c.sN0}, 1
        s_add_u32 s{c.sWoff}, s{c.sT0}, s{c.sT1}
        s_lshl_b32 s{c.sLds}, s{c.sLw}, 12
        s_mul_i32 s{c.sT0}, s{c.sSeq}, {c.A_SSTEP}
        s_add_u32 s{c.sAoff}, s{c.sAoff}, s{c.sT0}
        s_mul_i32 s{c.sT0}, s{c.sSeq}, {64 * c.LDW}
        s_add_u32 s{c.sWoff}, s{c.sWoff}, s{c.sT0}
        s_mov_b32 s{c.sSeqW}, s{c.sSeq}
        """)
    def issue_A(self, seq):
        a, c = self.a, self
        slot = (seq % 4) * 32768
        for j in range(4):
            a(f"s_add_u32 m0, s{c.sLds}, {slot}" if j == 0 else "s_add_u32 m0, m0, 1024")
            if c.qkv:
                a(f"s_mov_b32 s{c.sT0}, s{c.sAoff}" if j == 0 else f"s_add_u32 s{c.sT0}, s{c.sT0}, {8*1280}")
            else:
                if j == 0: a(f"s_mov_b32 s{c.sT0}, s{c.sAoff}")
                elif j == 2: a(f"s_add_u32 s{c.sT0}, s{c.sT0}, 32768")
                else: a("s_nop 0")
            a(f"buffer_load_dwordx4 v{c.vAe if j % 2 == 0 else c.vAo}, s[{c.sA}:{c.sA+3}], s{c.sT0} offen {E('QNT_A','') if c.qkv else ''} lds")
        a(f"""
        s_add_u32 s{c.sSeq}, s{c.sSeq}, 1
        s_cmp_eq_u32 s{c.sSeq}, {c.NST}
        s_cselect_b32 s{c.sT0}, {c.NST * c.A_SSTEP}, 0
        s_cselect_b32 s{c.sSeq}, 0, s{c.sSeq}
        s_add_u32 s{c.sAoff}, s{c.sAoff}, {c.A_SSTEP}
        s_sub_u32 s{c.sAoff}, s{c.sAoff}, s{c.sT0}
        """)
    def issue_W(self, seq):
        a, c = self.a, self
        slot = (seq % 4) * 32768 + 16384
        for j in range(4):
            a(f"s_add_u32 m0, s{c.sLds}, {slot}" if j == 0 else "s_add_u32 m0, m0, 1024")
            a(f"s_mov_b32 s{c.sT0}, s{c.sWoff}" if j == 0 else f"s_add_u32 s{c.sT0}, s{c.sT0}, {4 * c.LDW}")
            a(f"buffer_load_dwordx4 v{c.vWo}, s[{c.sW}:{c.sW+3}], s{c.sT0} offen {E('QNT_W','') if c.qkv else ''} lds")
        a(f"""
        s_add_u32 s{c.sSeqW}, s{c.sSeqW}, 1
        s_cmp_eq_u32 s{c.sSeqW}, {c.NST}
        s_cselect_b32 s{c.sT0}, {c.NST * 64 * c.LDW}, 0
        s_cselect_b32 s{c.sSeqW}, 0, s{c.sSeqW}
        s_add_u32 s{c.sWoff}, s{c.sWoff}, {64 * c.LDW}
        s_sub_u32 s{c.sWoff}, s{c.sWoff}, s{c.sT0}
        """)
    vLs = 16
    vSx, vSq, vCs, vU = 48, 56, 64, 72
    vLs = 16
    def lstats_init(self): pass
    def lst_poll_issue(self):
        a, c = self.a, self
        v = c.vLs
        a(f"""
        s_add_u32 s{c.sT0}, s{c.sNt}, {C_CS1 if c.qkv else C_CS2}
        s_lshr_b32 s{c.sT1}, s{c.sM0}, 7
        s_add_u32 s{c.sT1}, s{c.sT1}, {C_ST}
        v_mov_b32 v{v}, s{c.sT0}
        v_writelane_b32 v{v}, s{c.sT1}, 1
        v_mov_b32 v{v+1}, 16
        v_writelane_b32 v{v+1}, {8 if c.qkv else 0}, 1
        v_lshlrev_b32 v{v}, 7, v{v}
        v_add_u32 v{v}, {WS_CNT}, v{v}
        s_mov_b64 exec, 3
        buffer_load_dword v{v+2}, v{v}, s[{sWS}:{sWS+3}], 0 offen sc1
        s_mov_b64 exec, -1
        """)
    def lst_check_issue(self, q):
        a, c = self.a, self
        v = c.vLs
        ok = a.newlabel("lok")
        a(f"""
        s_waitcnt vmcnt({q.need('poll')})
        s_mov_b64 exec, 3
        v_cmp_gt_u32 vcc, v{v+1}, v{v+2}
        s_nop 4
        s_cmp_eq_u64 vcc, 0
        s_cbranch_scc1 {ok}
        """)
        poll(a, v, v + 1, 2, v + 2)
        a.label(ok)
        a("s_mov_b64 exec, -1")
        ncol = 1920 if c.qkv else 1792
        d = v + 8
        a(f"""
        v_and_b32 v{v+4}, 31, v1
        v_lshlrev_b32 v{v+5}, 2, v{v+4}
        v_lshlrev_b32 v{v+4}, 3, v{v+4}
        s_lshl_b32 s{c.sT0}, s{c.sLw}, 5
        s_add_u32 s{c.sT1}, s{c.sT0}, s{c.sN0}
        s_lshl_b32 s{c.sT1}, s{c.sT1}, 2
        s_add_u32 s{c.sT1}, s{c.sT1}, {WS_CS1 if c.qkv else WS_CS2}
        s_mov_b32 exec_hi, 0
        """)
        for j in range(16):
            a(f"buffer_load_dword v{d+j}, v{v+5}, s[{sWS}:{sWS+3}], s{c.sT1} offen")
            if j < 15: a(f"s_add_u32 s{c.sT1}, s{c.sT1}, {ncol*4}")
        a(f"""
        s_mov_b32 exec_lo, 0
        s_mov_b32 exec_hi, -1
        s_add_u32 s{c.sT1}, s{c.sT0}, s{c.sM0}
        s_lshl_b32 s{c.sT1}, s{c.sT1}, 3
        s_add_u32 s{c.sT1}, s{c.sT1}, {WS_ST1 if c.qkv else WS_ST2}
        """)
        npart = 1 if c.qkv else 8
        for j in range(npart):
            a(f"buffer_load_dwordx2 {vr(d+16+2*j,2)}, v{v+4}, s[{sWS}:{sWS+3}], s{c.sT1} offen")
            if j < npart - 1: a(f"s_add_u32 s{c.sT1}, s{c.sT1}, {2048*8}")
        a("s_mov_b64 exec, -1")
        q.push("stats", 16 + npart)
    def lst_finish(self, q):
        a, c = self.a, self
        v = c.vLs
        d = v + 8
        a(f"s_waitcnt vmcnt({q.need('stats')})")
        for j in range(1, 16):
            a(f"v_add_f32 v{d}, v{d}, v{d+j}")
        S, Q = d + 16, d + 17
        if not c.qkv:
            for j in range(1, 8):
                a(f"v_add_f32 v{S}, v{S}, v{S+2*j}")
                a(f"v_add_f32 v{Q}, v{Q}, v{Q+2*j}")
            a(f"""
            v_mul_f32 v{S}, {f32bits(1.0/640):#x}, v{S}
            v_mul_f32 v{Q}, {f32bits(1.0/640):#x}, v{Q}
            v_fma_f32 v{Q}, -v{S}, v{S}, v{Q}
            v_max_f32 v{Q}, 0, v{Q}
            v_add_f32 v{Q}, {f32bits(1e-5):#x}, v{Q}
            v_rsq_f32 v{Q}, v{Q}
            """)
        a(f"""
        s_lshl_b32 s{c.sT0}, s{c.sLw}, 7
        s_add_u32 s{c.sT0}, s{c.sT0}, {STAT}
        v_add_u32 v{v+5}, s{c.sT0}, v{v+5}
        s_mov_b32 exec_hi, 0
        ds_write_b32 v{v+5}, v{d} offset:1024
        s_mov_b32 exec_lo, 0
        s_mov_b32 exec_hi, -1
        ds_write_b32 v{v+5}, v{S}
        ds_write_b32 v{v+5}, v{Q} offset:512
        s_mov_b64 exec, -1
        s_waitcnt lgkmcnt(0)
        """)
    def tq_poll_issue(self):
        a, c = self.a, self
        v = c.vLs
        a(f"""
        s_lshr_b32 s{c.sT1}, s{c.sM0}, 7
        s_add_u32 s{c.sT1}, s{c.sT1}, {C_ST}
        s_lshl_b32 s{c.sT1}, s{c.sT1}, 7
        s_add_u32 s{c.sT1}, s{c.sT1}, {WS_CNT}
        v_mov_b32 v{v}, s{c.sT1}
        v_mov_b32 v{v+1}, {5 if E('P0L') else 1}
        s_mov_b64 exec, 1
        buffer_load_dword v{v+2}, v{v}, s[{sWS}:{sWS+3}], 0 offen sc1
        s_mov_b64 exec, -1
        """)
    def tq_check_issue(self, q):
        a, c = self.a, self
        v = c.vLs
        ok = a.newlabel("lok")
        a(f"""
        s_waitcnt vmcnt({q.need('poll')})
        v_readfirstlane_b32 s{c.sT0}, v{v+2}
        s_cmp_ge_u32 s{c.sT0}, {5 if E('P0L') else 1}
        s_cbranch_scc1 {ok}
        """)
        poll(a, v, v + 1, 1, v + 2)
        a.label(ok)
        a(f"""
        v_and_b32 v{v+4}, 31, v1
        v_lshlrev_b32 v{v+5}, 2, v{v+4}
        v_lshlrev_b32 v{v+4}, 3, v{v+4}
        s_lshl_b32 s{c.sT0}, s{c.sLw}, 5
        s_add_u32 s{c.sT1}, s{c.sT0}, s{c.sM0}
        s_lshl_b32 s{c.sT1}, s{c.sT1}, 3
        s_add_u32 s{c.sT1}, s{c.sT1}, {WS_ST1}
        buffer_load_dwordx2 {vr(v+8,2)}, v{v+4}, s[{sWS}:{sWS+3}], s{c.sT1} offen
        """)
        q.push("stats", 1)
    def tq_finish(self, q):
        a, c = self.a, self
        v = c.vLs
        a(f"""
        s_waitcnt vmcnt({q.need('stats')})
        s_lshl_b32 s{c.sT0}, s{c.sLw}, 7
        s_add_u32 s{c.sT0}, s{c.sT0}, {STAT}
        v_add_u32 v{v+5}, s{c.sT0}, v{v+5}
        ds_write_b32 v{v+5}, v{v+8}
        ds_write_b32 v{v+5}, v{v+9} offset:512
        """)
    def tok_issue(self, q):
        a, c = self.a, self
        v = c.vLs
        d = v + 8
        a(f"""
        v_and_b32 v{v+4}, 31, v1
        v_lshlrev_b32 v{v+5}, 2, v{v+4}
        v_lshlrev_b32 v{v+4}, 3, v{v+4}
        s_lshl_b32 s{c.sT0}, s{c.sLw}, 5
        s_add_u32 s{c.sT1}, s{c.sT0}, s{c.sM0}
        s_lshl_b32 s{c.sT1}, s{c.sT1}, 3
        s_add_u32 s{c.sT1}, s{c.sT1}, {WS_ST2}
        s_mov_b32 exec_hi, 0
        """)
        for j in range(16):
            a(f"buffer_load_dwordx2 {vr(d+2*j,2)}, v{v+4}, s[{sWS}:{sWS+3}], s{c.sT1} offen")
            if j < 15: a(f"s_add_u32 s{c.sT1}, s{c.sT1}, {2048*8}")
        a("s_mov_b32 exec_hi, -1")
        q.push("stats", 16)
    def tok_finish(self, q):
        a, c = self.a, self
        v = c.vLs
        S, Q = v + 8, v + 9
        a(f"s_waitcnt vmcnt({q.need('stats')})")
        for j in range(1, 16):
            a(f"v_add_f32 v{S}, v{S}, v{S+2*j}")
            a(f"v_add_f32 v{Q}, v{Q}, v{Q+2*j}")
        a(f"""
        v_mul_f32 v{S}, {f32bits(1.0/640):#x}, v{S}
        v_mul_f32 v{Q}, {f32bits(1.0/640):#x}, v{Q}
        v_fma_f32 v{Q}, -v{S}, v{S}, v{Q}
        v_max_f32 v{Q}, 0, v{Q}
        v_add_f32 v{Q}, {f32bits(1e-5):#x}, v{Q}
        v_rsq_f32 v{Q}, v{Q}
        s_lshl_b32 s{c.sT0}, s{c.sLw}, 7
        s_add_u32 s{c.sT0}, s{c.sT0}, {STAT}
        v_add_u32 v{v+5}, s{c.sT0}, v{v+5}
        s_mov_b32 exec_hi, 0
        ds_write_b32 v{v+5}, v{S}
        ds_write_b32 v{v+5}, v{Q} offset:512
        s_mov_b32 exec_hi, -1
        """)
    def loader_main(self, q, p0=None):
        a, c = self.a, self
        for s_ in range(c.NST):
            tags = [f'A{s_}', f'W{s_}']
            if c.qkv and s_ == 4 and E('P0L'): tags.append('p0st')
            a(f"s_waitcnt vmcnt({q.need(*tags)}) lgkmcnt(0)")
            if getattr(c, 'ldstamps', False) and s_ in (0, 1, 2): st(a, 4 + s_)
            a("s_barrier")
            stx(a, f"{c.tag}l{s_}")
            if c.qkv:
                vd = 70
                if s_ == 0: wave_only(a, 4, lambda: a(f"buffer_load_dword v{vd}, v{vd+1}, s[44:47], 0 offen sc1"))
                if s_ == 4 and E('P0L'): wave_only(a, 4, lambda: p0r_arrive(a, c, vd))
                if s_ == 3: wave_only(a, 7, lambda: reg_step1(a, vd))
                if s_ == 5: wave_only(a, 7, lambda: reg_step2(a, vd))
                if s_ == 7: wave_only(a, 7, lambda: reg_step3(a, vd))
            if s_ + PD < c.NST and not (E('X_NODMA') and c.qkv):
                c.issue_A(s_ + PD); q.push(f"A{s_+PD}", 4)
                c.issue_W(s_ + PD); q.push(f"W{s_+PD}", 4)
            if c.qkv and s_ == 1 and E('P0L'):
                a(f"s_waitcnt vmcnt({q.need('p0l')})"); c.p0l.finish(); q.push('p0st', 1)
            if not c.qkv:
                if s_ == 7: c.tok_issue(q)
                if s_ == 8 and not E('NOPFW0'): w2_first_prefetch(a, c)
                if s_ == 9: c.tok_finish(q)
                if E('PFW2') and 0 <= s_ < 9:
                    wave_only(a, 4 + (s_ % 4), lambda: w2p_prefetch(a, s_))
            else:
                if s_ == 8 and getattr(c, 'hook7', None): c.hook7()
                if s_ == 6:
                    c.tq_poll_issue(); q.push("poll", 1)
                if s_ == 7: c.tq_check_issue(q)
                if s_ == 9: c.tq_finish(q)

    vAd, vX, vW, vAcc, vT, vSt = 24, 32, 32, 64, 128, 144
    def compute_setup(self):
        a, c = self.a, self
        NXA = 8 if c.qkv else 2
        c.NXA = NXA
        c.vXa = 4
        c.vWa = c.vXa + 2 * NXA
        vXa, vWa, vT = c.vXa, c.vWa, c.vT
        t0, t1 = vT, vT + 1
        a(f"""
        s_lshr_b32 s{c.sWm}, s{sWV}, 1
        s_and_b32 s{c.sWn}, s{sWV}, 1
        v_and_b32 v2, 31, v1
        v_lshrrev_b32 v3, 5, v1
        """)
        if c.qkv:
            a(f"""
            v_lshrrev_b32 v{t0}, 1, v1
            v_and_b32 v{t0}, 7, v{t0}
            v_xor_b32 v{t0}, v{t0}, v3
            v_lshlrev_b32 v{t0}, 4, v{t0}
            v_lshlrev_b32 v{t1}, 7, v2
            v_add_u32 v{t0}, v{t0}, v{t1}
            s_lshl_b32 s{c.sT0}, s{c.sWm}, 13
            s_lshl_b32 s{c.sT1}, s{c.sWn}, 12
            s_add_u32 s{c.sT0}, s{c.sT0}, s{c.sT1}
            v_add_u32 v{t0}, s{c.sT0}, v{t0}
            """)
            for s in range(4):
                a(f"v_xor_b32 v{vXa + s}, {32 * s}, v{t0}")
                a(f"v_xor_b32 v{vXa + 4 + s}, 4096, v{vXa + s}")
        else:
            a(f"""
            v_lshlrev_b32 v{t0}, 11, v3
            v_lshlrev_b32 v{t1}, 4, v2
            v_add_u32 v{t0}, v{t0}, v{t1}
            s_lshl_b32 s{c.sT0}, s{c.sWm}, 10
            v_add_u32 v{vXa}, s{c.sT0}, v{t0}
            v_add_u32 v{vXa + 1}, 512, v{vXa}
            """)
        for i in range(NXA):
            a(f"v_add_u32 v{vXa + NXA + i}, 65536, v{vXa + i}")
        a(f"""
        v_lshrrev_b32 v{t0}, 2, v1
        v_and_b32 v{t0}, 3, v{t0}
        v_lshlrev_b32 v{t1}, 3, v3
        v_add_u32 v{t1}, v{t1}, v{t0}
        v_lshlrev_b32 v{t1}, 8, v{t1}
        v_lshlrev_b32 v{t0}, 6, v{t0}
        v_add_u32 v{t1}, v{t1}, v{t0}
        v_lshrrev_b32 v{t0}, 4, v1
        v_and_b32 v{t0}, 1, v{t0}
        v_lshlrev_b32 v{t0}, 5, v{t0}
        v_add_u32 v{t1}, v{t1}, v{t0}
        v_lshrrev_b32 v{t0}, 1, v1
        v_and_b32 v{t0}, 1, v{t0}
        v_lshlrev_b32 v{t0}, 4, v{t0}
        v_add_u32 v{t1}, v{t1}, v{t0}
        v_and_b32 v{t0}, 1, v1
        v_lshlrev_b32 v{t0}, 3, v{t0}
        v_add_u32 v{t1}, v{t1}, v{t0}
        v_add_u32 v{t1}, 16384, v{t1}
        s_lshl_b32 s{c.sT0}, s{c.sWn}, 7
        s_lshl_b32 s{c.sT1}, s{c.sWm}, 6
        s_add_u32 s{c.sT0}, s{c.sT0}, s{c.sT1}
        v_xor_b32 v{vWa}, s{c.sT0}, v{t1}
        v_xor_b32 v{vWa + 1}, 64, v{vWa}
        v_add_u32 v{vWa + 2}, 65536, v{vWa}
        v_add_u32 v{vWa + 3}, 65536, v{vWa + 1}
        """)
    def addr_qk(self):
        a, c = self.a, self
        vT, vAd = c.vT, c.vAd
        t0, t1 = vT, vT + 1
        a(f"""
        s_cmp_lt_u32 s{c.sNt}, 5
        s_cselect_b32 s{c.sT0}, 0, 640
        s_sub_u32 s{c.sT2}, s{c.sN0}, s{c.sT0}
        s_lshl_b32 s{c.sT1}, s{c.sWn}, 6
        s_add_u32 s{c.sT2}, s{c.sT2}, s{c.sT1}
        s_lshr_b32 s{c.sT2}, s{c.sT2}, 3
        v_add_u32 v{t0}, s{c.sT2}, v3
        v_lshlrev_b32 v{vT+4}, 4, v2
        """)
        for ft in range(2):
            for j in range(2):
                d = vAd + ft*2 + j
                a(f"""
                s_xor_b32 s{c.sT3}, s{c.sWm}, {ft}
                s_lshl_b32 s{c.sT3}, s{c.sT3}, 2
                s_add_u32 s{c.sT3}, s{c.sT3}, {2*j}
                v_add_u32 v{t1}, s{c.sT3}, v{t0}
                v_mul_u32_u24 v{vT+2}, 0xcccd, v{t1}
                v_lshrrev_b32 v{vT+2}, 18, v{vT+2}
                v_mul_u32_u24 v{vT+3}, 5, v{vT+2}
                v_sub_u32 v{vT+3}, v{t1}, v{vT+3}
                v_lshlrev_b32 v{vT+3}, 9, v{vT+3}
                v_mul_u32_u24 v{vT+2}, 0x28000, v{vT+2}
                v_add3_u32 v{d}, v{vT+2}, v{vT+3}, v{vT+4}
                """)
        a(f"""
        s_lshr_b32 s{c.sT0}, s{c.sM0}, 5
        s_lshl_b32 s{c.sT1}, s{c.sWm}, 1
        s_add_u32 s{c.sT0}, s{c.sT0}, s{c.sT1}
        s_add_u32 s{c.sT1}, s{c.sT0}, s{c.sWn}
        s_mul_i32 s40, s{c.sT1}, 2560
        s_xor_b32 s{c.sT1}, s{c.sWn}, 1
        s_add_u32 s{c.sT1}, s{c.sT0}, s{c.sT1}
        s_mul_i32 s41, s{c.sT1}, 2560
        s_cmp_lt_u32 s{c.sNt}, 5
        s_cselect_b32 s{c.sT0}, {WS_Q}, {WS_K}
        s_add_u32 s{c.sO}, s{pWS}, s{c.sT0}
        s_addc_u32 s{c.sO+1}, s{pWS+1}, 0
        s_and_b32 s{c.sO+1}, s{c.sO+1}, 0xffff
        s_mov_b32 s{c.sO+2}, {SZ_QK}
        s_mov_b32 s{c.sO+3}, 0x20000
        """)
    def addr_f(self):
        a, c = self.a, self
        vT, vAd = c.vT, c.vAd
        t0, t1 = vT, vT + 1
        a(f"""
        s_lshl_b32 s{c.sT1}, s{c.sWn}, 6
        s_add_u32 s{c.sT2}, s{c.sN0}, s{c.sT1}
        s_lshr_b32 s{c.sT2}, s{c.sT2}, 3
        v_add_u32 v{t0}, s{c.sT2}, v3
        v_lshlrev_b32 v{t0}, 15, v{t0}
        v_lshlrev_b32 v{t1}, 4, v2
        v_add_u32 v{t0}, v{t0}, v{t1}
        """)
        for ft in range(2):
            for j in range(2):
                a(f"s_xor_b32 s{c.sT3}, s{c.sWm}, {ft}")
                a(f"s_lshl_b32 s{c.sT3}, s{c.sT3}, 2")
                a(f"s_add_u32 s{c.sT3}, s{c.sT3}, {2*j}")
                a(f"s_lshl_b32 s{c.sT3}, s{c.sT3}, 15")
                a(f"v_add_u32 v{vAd + ft*2 + j}, s{c.sT3}, v{t0}")
        a(f"""
        s_lshl_b32 s{c.sT1}, s{c.sWm}, 6
        s_add_u32 s{c.sT0}, s{c.sM0}, s{c.sT1}
        s_lshl_b32 s40, s{c.sT0}, 4
        s_add_u32 s41, s40, 512
        """)
        make_srd(a, c.sO, pWS, pWS+1, WS_F, SZ_F)
    def addr_v(self):
        a, c = self.a, self
        vT, vAd = c.vT, c.vAd
        t0, t1 = vT, vT + 1
        for ft in range(2):
            a(f"""
            s_lshl_b32 s{c.sT1}, s{c.sWn}, 6
            s_add_u32 s{c.sT0}, s{c.sN0}, s{c.sT1}
            s_xor_b32 s{c.sT1}, s{c.sWm}, {ft}
            s_lshl_b32 s{c.sT1}, s{c.sT1}, 5
            s_add_u32 s{c.sT0}, s{c.sT0}, s{c.sT1}
            s_sub_u32 s{c.sT0}, s{c.sT0}, 1280
            v_add_u32 v{t0}, s{c.sT0}, v2
            v_mul_u32_u24 v{t1}, 0xcccd, v{t0}
            v_lshrrev_b32 v{t1}, 20, v{t1}
            v_mul_u32_u24 v{vT+2}, 20, v{t1}
            v_sub_u32 v{t0}, v{t0}, v{vT+2}
            v_lshlrev_b32 v{t0}, 4, v{t0}
            v_mul_u32_u24 v{t1}, 0x14000, v{t1}
            v_add_u32 v{t0}, v{t0}, v{t1}
            v_mul_u32_u24 v{t1}, 320, v3
            v_add_u32 v{vAd+ft}, v{t0}, v{t1}
            """)
        a(f"""
        s_lshl_b32 s{c.sT1}, s{c.sWm}, 6
        s_add_u32 s{c.sT0}, s{c.sM0}, s{c.sT1}
        s_lshr_b32 s{c.sT0}, s{c.sT0}, 4
        s_lshl_b32 s{c.sT1}, s{c.sWn}, 1
        s_add_u32 s{c.sT1}, s{c.sT1}, s{c.sT0}
        s_mul_i32 s40, s{c.sT1}, 640
        s_add_u32 s41, s40, 640
        s_xor_b32 s{c.sT1}, s{c.sWn}, 1
        s_lshl_b32 s{c.sT1}, s{c.sT1}, 1
        s_add_u32 s{c.sT1}, s{c.sT1}, s{c.sT0}
        s_mul_i32 s42, s{c.sT1}, 640
        s_add_u32 s43, s42, 640
        """)
        make_srd(a, c.sO, pWS, pWS+1, WS_V, SZ_QKV)
    def stats_poll_issue(self):
        a, c = self.a, self
        vS = c.vSt
        a(f"""
        v_lshlrev_b32 v{vS+30}, 7, v1
        v_add_u32 v{vS+30}, {WS_CNT + (C_P0 if c.qkv else C_W1)*128}, v{vS+30}
        s_mov_b64 exec, 0xff
        buffer_load_dword v{vS+29}, v{vS+30}, s[{sWS}:{sWS+3}], 0 offen sc1
        s_mov_b64 exec, -1
        """)
    def stats_poll_check(self):
        a, c = self.a, self
        vS = c.vSt
        ok = a.newlabel("stok")
        a(f"""
        s_waitcnt vmcnt(0)
        s_mov_b64 exec, 0xff
        v_cmp_gt_u32 vcc, 128, v{vS+29}
        s_nop 4
        s_cmp_eq_u64 vcc, 0
        s_cbranch_scc1 {ok}
        v_mov_b32 v{vS+28}, 128
        """)
        poll(a, vS + 30, vS + 28, 8, vS + 29)
        a.label(ok)
        a("s_mov_b64 exec, -1")
        a("s_nop 3")
    def stats_issue(self):
        a, c = self.a, self
        vS = c.vSt
        a(f"""
        v_lshlrev_b32 v{vS+31}, 2, v2
        v_lshlrev_b32 v{vS+30}, 3, v2
        s_lshl_b32 s{c.sT0}, s{sWV}, 5
        s_add_u32 s{c.sT1}, s{c.sT0}, s{c.sM0}
        s_lshl_b32 s{c.sT1}, s{c.sT1}, 3
        s_add_u32 s{c.sT1}, s{c.sT1}, {WS_ST2}
        """)
        for j in range(8):
            a(f"buffer_load_dwordx2 {vr(vS+8+2*j,2)}, v{vS+30}, s[{sWS}:{sWS+3}], s{c.sT1} offen")
            if j < 7: a(f"s_add_u32 s{c.sT1}, s{c.sT1}, {2048*8}")
    def stats_finish(self):
        a, c = self.a, self
        vS = c.vSt
        a("s_waitcnt vmcnt(0)")
        S, Q = vS + 8, vS + 9
        for j in range(1, 8):
            a(f"v_add_f32 v{S}, v{S}, v{S+2*j}")
            a(f"v_add_f32 v{Q}, v{Q}, v{Q+2*j}")
        a(f"""
        v_mul_f32 v{S}, {f32bits(1.0/640):#x}, v{S}
        v_mul_f32 v{Q}, {f32bits(1.0/640):#x}, v{Q}
        v_fma_f32 v{Q}, -v{S}, v{S}, v{Q}
        v_max_f32 v{Q}, 0, v{Q}
        v_add_f32 v{Q}, {f32bits(1e-5):#x}, v{Q}
        v_rsq_f32 v{Q}, v{Q}
        s_lshl_b32 s{c.sT0}, s{sWV}, 7
        s_add_u32 s{c.sT0}, s{c.sT0}, {STAT}
        v_add_u32 v{vS+31}, s{c.sT0}, v{vS+31}
        ds_write_b32 v{vS+31}, v{S}
        ds_write_b32 v{vS+31}, v{Q} offset:512
        """)
    aX = 4
    def read_list(self, i):
        c = self
        st_, step, buf = i // 4, i % 4, i % 3
        slot = st_ % 4
        win, base = slot >> 1, (slot & 1) * 32768
        L = []
        for lt in range(2):
            if c.qkv:
                L.append(f"ds_read_b128 {ar(c.aX + buf*8 + lt*4, 4)}, v{c.vXa + win*8 + lt*4 + step} offset:{base}")
            else:
                L.append(f"ds_read_b128 {ar(c.aX + buf*8 + lt*4, 4)}, v{c.vXa + win*2 + lt} offset:{base + step*4096}")
        for lf in range(2):
            for h2 in range(2):
                L.append(f"ds_read_b64_tr_b16 {vr(c.vW + buf*8 + lf*4 + h2*2, 2)}, v{c.vWa + win*2 + lf} offset:{base + step*4096 + h2*1024}")
        return L
    def reads(self, i):
        for r in self.read_list(i): self.a(r)
    def mfma(self, i, k, orientY):
        a, c = self.a, self
        buf = i % 3
        lf, lt = k >> 1, k & 1
        acc = c.vAcc + (lf*2 + lt) * 16
        xa, wa = ar(c.aX + buf*8 + lt*4, 4), vr(c.vW + buf*8 + lf*4, 4)
        cc = "0" if i == 0 else vr(acc, 16)
        if orientY: a(f"v_mfma_f32_32x32x16_bf16 {vr(acc,16)}, {wa}, {xa}, {cc}")
        else: a(f"v_mfma_f32_32x32x16_bf16 {vr(acc,16)}, {xa}, {wa}, {cc}")
    def mainloop(self, orientY, stamp0=None, tag='q'):
        a, c = self.a, self
        vS = c.vSt
        CS = vS
        UU = c.vT
        a(f"v_mov_b32 v{CS}, 0")
        a(f"v_mov_b32 v{CS+1}, 0")
        if c.qkv and E('TLBE'): wave_only(a, 3, lambda: tlb_warm(a))
        a("s_barrier")
        if stamp0 is not None: st(a, stamp0)
        stx(a, tag + '_s0')
        c.reads(0)
        c.reads(1)
        for i in range(40):
            buf = i % 3
            Wl = c.vW + buf*8
            ops = []
            for r in range(4):
                u = UU + 2*(r & 1)
                ops += [f"v_lshlrev_b32 v{u}, 16, v{Wl+r}", f"v_and_b32 v{u+1}, 0xffff0000, v{Wl+r}",
                        f"v_add_f32 v{CS}, v{CS}, v{u}", f"v_add_f32 v{CS+1}, v{CS+1}, v{u+1}"]
            if E('X_NOVALU'): ops = []
            rl = c.read_list(i + 2) if i + 2 < 40 else []
            if i == 4: stx(a, tag + '_s1')
            if i == 20: stx(a, tag + '_s5')
            a(f"s_waitcnt lgkmcnt({6 if i + 1 < 40 else 0})")
            c.mfma(i, 0, orientY)
            if i + 2 < 40 and (i + 2) % 4 == 0:
                a("s_barrier")
            for o in rl[0:2] + ops[0:3]: a(o)
            c.mfma(i, 1, orientY)
            for o in rl[2:4] + ops[3:6]: a(o)
            if c.qkv and i == int(E('TLBI', '2')) and not E('NOTLB') and not E('TLBE'): wave_only(a, 3, lambda: tlb_warm(a))
            if c.qkv and i == int(E('TLB3I', '14')) and E('TLB3'):
                def t3():
                    a(f"v_lshlrev_b32 v166, 21, v1")
                    a("s_mov_b64 exec, 0xfff")
                    a(f"buffer_load_dword v167, v166, s[{sWS}:{sWS+3}], 0 offen sc1")
                    a("s_mov_b64 exec, -1")
                wave_only(a, 3, t3)
            c.mfma(i, 2, orientY)
            for o in rl[4:6] + ops[6:10]: a(o)
            c.mfma(i, 3, orientY)
            for o in ops[10:16]: a(o)
        U = vS + 14
        a(f"""
        v_add_f32 v{CS}, v{CS}, v{CS+1}
        s_nop 0
        v_mov_b32 v{CS+1}, v{CS}
        s_nop 1
        v_permlane32_swap_b32 v{CS}, v{CS+1}
        s_nop 1
        v_add_f32 v{CS}, v{CS}, v{CS+1}
        """)
        a(f"""
        s_lshl_b32 s{c.sT0}, s{c.sWn}, 8
        s_lshl_b32 s{c.sT1}, s{c.sWm}, 7
        s_add_u32 s{c.sT0}, s{c.sT0}, s{c.sT1}
        s_add_u32 s{c.sT0}, s{c.sT0}, {STAT + 1024}
        v_lshlrev_b32 v{U}, 2, v2
        v_add_u32 v{U+1}, s{c.sT0}, v{U}
        ds_write_b32 v{U+1}, v{CS}
        """)
        a("s_waitcnt lgkmcnt(0)")
    def dbg_issue(self):
        a, c = self.a, self
        make_srd(a, 44, pDBG, pDBG+1, 0, 256)
        a(f"v_lshlrev_b32 v{c.vSt+27}, 2, v1")
        a("s_mov_b64 exec, 0x1ff")
        a(f"buffer_load_dword v{c.vSt+26}, v{c.vSt+27}, s[44:47], 0 offen sc1")
        a("s_mov_b64 exec, -1")
        a("s_nop 1")
    def epilogue_Y(self, kind):
        a, c = self.a, self
        vT, vAcc, vAd = c.vT, c.vAcc, c.vAd
        vM, vR, vC = vT, vT + 2, 32
        for lt in range(2):
            a(f"""
            s_lshl_b32 s{c.sT1}, s{c.sWm}, 8
            s_add_u32 s{c.sT0}, s{c.sT1}, {STAT + (0 if c.qkv else lt*128)}
            s_xor_b32 s{c.sT1}, s{c.sWn}, {lt}
            s_lshl_b32 s{c.sT1}, s{c.sT1}, {7 if c.qkv else 31}
            s_add_u32 s{c.sT0}, s{c.sT0}, {'s%d' % c.sT1 if c.qkv else 0}
            v_lshlrev_b32 v{vT+4}, 2, v2
            v_add_u32 v{vT+4}, s{c.sT0}, v{vT+4}
            ds_read_b32 v{vM + lt}, v{vT+4}
            ds_read_b32 v{vR + lt}, v{vT+4} offset:512
            """)
        for lf in range(2):
            a(f"""
            s_lshl_b32 s{c.sT1}, s{c.sWn}, 8
            s_add_u32 s{c.sT0}, s{c.sT1}, {STAT + 1024}
            s_xor_b32 s{c.sT1}, s{c.sWm}, {lf}
            s_lshl_b32 s{c.sT1}, s{c.sT1}, 7
            s_add_u32 s{c.sT0}, s{c.sT0}, s{c.sT1}
            v_lshlrev_b32 v{vT+4}, 4, v3
            v_add_u32 v{vT+4}, s{c.sT0}, v{vT+4}
            """)
            for q in range(4):
                a(f"ds_read_b128 {vr(vC + lf*16 + q*4, 4)}, v{vT+4} offset:{q*32}")
        a("s_waitcnt lgkmcnt(0)")
        if kind == 'qk':
            a(f"""
            s_cmp_lt_u32 s{c.sNt}, 5
            s_cselect_b32 s{c.sT0}, {f32bits(QSCALE):#x}, 1.0
            v_mul_f32 v{vR}, s{c.sT0}, v{vR}
            v_mul_f32 v{vR+1}, s{c.sT0}, v{vR+1}
            """)
        B = c.vSt + 2
        for lt in range(2):
            a(f"v_mov_b32 v{B + 2*lt}, v{vM + lt}")
            a(f"v_mov_b32 v{B + 2*lt + 1}, v{vM + lt}")
            a(f"v_mov_b32 v{B + 4 + 2*lt}, v{vR + lt}")
            a(f"v_mov_b32 v{B + 4 + 2*lt + 1}, v{vR + lt}")
        vP = vT + 8
        n = 0
        for lf in range(2):
            for lt in range(2):
                acc = vAcc + (lf*2 + lt) * 16
                for r in range(0, 16, 2):
                    a(f"v_pk_fma_f32 {vr(acc + r, 2)}, {vr(B + 2*lt, 2)}, {vr(vC + lf*16 + r, 2)}, {vr(acc + r, 2)} neg_lo:[1,0,0] neg_hi:[1,0,0]")
                for r in range(0, 16, 2):
                    a(f"v_pk_mul_f32 {vr(acc + r, 2)}, {vr(acc + r, 2)}, {vr(B + 4 + 2*lt, 2)}")
                for j in range(2):
                    p = vP + (n & 1) * 4
                    n += 1
                    q0 = acc + j*8
                    for k in range(4):
                        a(f"v_cvt_pk_bf16_f32 v{p+k}, v{q0+2*k}, v{q0+2*k+1}")
                    if kind == 'ffn1':
                        for k in range(4):
                            a(f"v_pk_max_i16 v{p+k}, v{p+k}, 0")
                    else:
                        a("s_nop 0")
                    a("s_nop 0")
                    if kind == 'ffn1': a("s_nop 0")
                    a(f"v_permlane32_swap_b32 v{p}, v{p+2}")
                    a(f"v_permlane32_swap_b32 v{p+1}, v{p+3}")
                    ins = f"buffer_store_dwordx4 {vr(p,4)}, v{vAd + lf*2 + j}, s[{c.sO}:{c.sO+3}], s{40 + lt} offen @SC"
                    if kind == 'ffn1': dual(a, [ins])
                    else: a(ins.replace("@SC", SC))
    def epilogue_X(self):
        a, c = self.a, self
        vT, vAcc, vAd = c.vT, c.vAcc, c.vAd
        vC, vM, vR = vT, 32, 48
        for lf in range(2):
            a(f"""
            s_lshl_b32 s{c.sT1}, s{c.sWn}, 8
            s_add_u32 s{c.sT0}, s{c.sT1}, {STAT + 1024}
            s_xor_b32 s{c.sT1}, s{c.sWm}, {lf}
            s_lshl_b32 s{c.sT1}, s{c.sT1}, 7
            s_add_u32 s{c.sT0}, s{c.sT0}, s{c.sT1}
            v_lshlrev_b32 v{vT+4}, 2, v2
            v_add_u32 v{vT+4}, s{c.sT0}, v{vT+4}
            ds_read_b32 v{vC + lf}, v{vT+4}
            """)
        vP = vT + 8
        n = 0
        for lt in range(2):
            a(f"""
            s_lshl_b32 s{c.sT1}, s{c.sWm}, 8
            s_add_u32 s{c.sT0}, s{c.sT1}, {STAT}
            s_xor_b32 s{c.sT1}, s{c.sWn}, {lt}
            s_lshl_b32 s{c.sT1}, s{c.sT1}, 7
            s_add_u32 s{c.sT0}, s{c.sT0}, s{c.sT1}
            v_lshlrev_b32 v{vT+4}, 4, v3
            v_add_u32 v{vT+4}, s{c.sT0}, v{vT+4}
            """)
            for q in range(4):
                a(f"ds_read_b128 {vr(vM + q*4, 4)}, v{vT+4} offset:{q*32}")
                a(f"ds_read_b128 {vr(vR + q*4, 4)}, v{vT+4} offset:{512 + q*32}")
            a("s_waitcnt lgkmcnt(0)")
            B = c.vSt + 2
            if lt == 0:
                for lf in range(2):
                    a(f"v_mov_b32 v{B + 2*lf}, v{vC + lf}")
                    a(f"v_mov_b32 v{B + 2*lf + 1}, v{vC + lf}")
            for lf in range(2):
                acc = vAcc + (lf*2 + lt) * 16
                for r in range(0, 16, 2):
                    a(f"v_pk_fma_f32 {vr(acc + r, 2)}, {vr(vM + r, 2)}, {vr(B + 2*lf, 2)}, {vr(acc + r, 2)} neg_lo:[1,0,0] neg_hi:[1,0,0]")
                for r in range(0, 16, 2):
                    a(f"v_pk_mul_f32 {vr(acc + r, 2)}, {vr(acc + r, 2)}, {vr(vR + r, 2)}")
                for g in range(2):
                    p = vP + (n & 1) * 4
                    n += 1
                    for r in range(4):
                        a(f"v_cvt_pk_bf16_f32 v{p + r}, v{acc + g*8 + 2*r}, v{acc + g*8 + 2*r + 1}")
                    a(f"buffer_store_dwordx4 {vr(p,4)}, v{vAd + lf}, s[{c.sO}:{c.sO+3}], s{40 + lt*2 + g} offen {SC}")

STG = 36864
class CoreS:
    sA, sO, sR = 8, 16, 40
    sM0, sN0, sT0, sT1, sT2, sNt = 21, 22, 23, 24, 25, 26
    sLw, sAoff, sWoff, sLdsA, sLdsW, sSeq, sSeqW = 20, 29, 30, 31, 32, 33, 34
    vA = 4
    vXa2, vWa2 = 116, 117
    def __init__(self, a, mode):
        self.a, self.mode = a, mode
        self.op = mode == 'oproj'
        self.NST = 5 if self.op else 14
    def map_tiles(self):
        a, c = self.a, self
        NST = c.NST
        a(f"""
        s_and_b32 s{c.sT0}, s{sRk}, 3
        s_lshl_b32 s{c.sM0}, s{sX}, 2
        s_add_u32 s{c.sM0}, s{c.sM0}, s{c.sT0}
        s_lshl_b32 s{c.sM0}, s{c.sM0}, 6
        s_lshr_b32 s{c.sNt}, s{sRk}, 2
        s_mul_i32 s{c.sN0}, s{c.sNt}, 80
        s_mul_i32 s{c.sSeq}, s{c.sT0}, {1 if c.op else 3}
        s_mul_i32 s{c.sT1}, s{c.sNt}, {1 if c.op else 2}
        s_add_u32 s{c.sSeq}, s{c.sSeq}, s{c.sT1}
        s_cmp_ge_u32 s{c.sSeq}, {NST}
        s_cselect_b32 s{c.sT1}, {NST}, 0
        s_sub_u32 s{c.sSeq}, s{c.sSeq}, s{c.sT1}
        s_cmp_ge_u32 s{c.sSeq}, {NST}
        s_cselect_b32 s{c.sT1}, {NST}, 0
        s_sub_u32 s{c.sSeq}, s{c.sSeq}, s{c.sT1}
        """)
        if E('NOROTS'): a(f"s_mov_b32 s{c.sSeq}, 0")
    def loader_setup(self):
        a, c = self.a, self
        if c.op: make_srd(a, c.sA, pWS, pWS+1, WS_O, SZ_ACT)
        else: make_srd(a, c.sA, pWS, pWS+1, WS_F, SZ_F)
        a(f"""
        s_sub_u32 s{c.sLw}, s{sWV}, 4
        v_lshlrev_b32 v{c.vA}, 4, v1
        s_lshl_b32 s{c.sT0}, s{c.sLw}, 17
        s_lshl_b32 s{c.sT1}, s{c.sM0}, 4
        s_add_u32 s{c.sAoff}, s{c.sT0}, s{c.sT1}
        s_mul_i32 s{c.sT0}, s{c.sLw}, 5120
        s_mul_i32 s{c.sT1}, s{c.sNt}, {c.NST * 20480}
        s_add_u32 s{c.sWoff}, s{c.sT0}, s{c.sT1}
        s_add_u32 s{c.sWoff}, s{c.sWoff}, {WS_WOP if c.op else WS_W2P}
        s_lshl_b32 s{c.sLdsA}, s{c.sLw}, 12
        s_add_u32 s{c.sLdsW}, s{c.sT0}, 16384
        s_mul_i32 s{c.sT0}, s{c.sSeq}, {16 * 32768}
        s_add_u32 s{c.sAoff}, s{c.sAoff}, s{c.sT0}
        s_mul_i32 s{c.sT0}, s{c.sSeq}, 20480
        s_add_u32 s{c.sWoff}, s{c.sWoff}, s{c.sT0}
        s_mov_b32 s{c.sSeqW}, s{c.sSeq}
        """)
    def issue_A(self, seq):
        a, c = self.a, self
        slot = (seq % 4) * STG
        for j in range(4):
            a(f"s_add_u32 m0, s{c.sLdsA}, {slot}" if j == 0 else "s_add_u32 m0, m0, 1024")
            a(f"s_mov_b32 s{c.sT0}, s{c.sAoff}" if j == 0 else f"s_add_u32 s{c.sT0}, s{c.sT0}, 32768")
            a(f"buffer_load_dwordx4 v{c.vA}, s[{c.sA}:{c.sA+3}], s{c.sT0} offen lds")
        a(f"""
        s_add_u32 s{c.sSeq}, s{c.sSeq}, 1
        s_cmp_eq_u32 s{c.sSeq}, {c.NST}
        s_cselect_b32 s{c.sT0}, {c.NST * 16 * 32768}, 0
        s_cselect_b32 s{c.sSeq}, 0, s{c.sSeq}
        s_add_u32 s{c.sAoff}, s{c.sAoff}, {16 * 32768}
        s_sub_u32 s{c.sAoff}, s{c.sAoff}, s{c.sT0}
        """)
    def issue_W(self, seq):
        a, c = self.a, self
        slot = (seq % 4) * STG
        a(f"s_add_u32 m0, s{c.sLdsW}, {slot}")
        a(f"s_add_u32 s{c.sT0}, s{c.sWoff}, 4096")
        for j in range(4):
            a(f"buffer_load_dwordx4 v{c.vA}, s[{sWS}:{sWS+3}], s{c.sWoff} offen offset:{j*1024} lds")
        a("s_add_u32 m0, m0, 4096")
        a(f"s_add_u32 s{c.sSeqW}, s{c.sSeqW}, 1")
        a(f"buffer_load_dwordx4 v{c.vA}, s[{sWS}:{sWS+3}], s{c.sT0} offen lds")
        a(f"""
        s_cmp_eq_u32 s{c.sSeqW}, {c.NST}
        s_cselect_b32 s{c.sT0}, {c.NST * 20480}, 0
        s_cselect_b32 s{c.sSeqW}, 0, s{c.sSeqW}
        s_add_u32 s{c.sWoff}, s{c.sWoff}, 20480
        s_sub_u32 s{c.sWoff}, s{c.sWoff}, s{c.sT0}
        """)
    def loader_main(self, q):
        a, c = self.a, self
        for s_ in range(c.NST):
            a(f"s_waitcnt vmcnt({q.need(f'A{s_}', f'W{s_}')})")
            a("s_barrier")
            stx(a, f"{'o' if c.op else 'g'}l{s_}")
            if s_ + PD < c.NST and not (E('S_NODMA') and not c.op):
                if not E('S_NOA'): c.issue_A(s_ + PD); q.push(f"A{s_+PD}", 4)
                if not E('S_NOW'): c.issue_W(s_ + PD); q.push(f"W{s_+PD}", 5)
    vXb, vWb, vXa, vWa, vX, vW, vRes, vT, vAcc = 4, 5, 6, 7, 8, 32, 70, 84, 96
    vXa2, vWa2 = 120, 121
    def compute_setup(self):
        a, c = self.a, self
        vT = c.vT
        a(f"""
        v_and_b32 v2, 15, v1
        v_lshrrev_b32 v3, 4, v1
        s_lshr_b32 s{c.sT1}, s{sWV}, 1
        s_and_b32 s{c.sT2}, s{sWV}, 1
        s_lshl_b32 s{c.sT0}, s{c.sT1}, 5
        s_add_u32 s{c.sT0}, s{c.sT0}, s{c.sM0}
        v_add_u32 v{vT}, s{c.sT0}, v2
        """)
        a(f"""
        s_mul_i32 s{c.sAoff}, s{c.sT2}, 48
        s_add_u32 s{c.sAoff}, s{c.sAoff}, s{c.sN0}
        v_mul_u32_u24 v{vT+1}, 1280, v{vT}
        v_lshlrev_b32 v{vT+3}, 3, v3
        v_add_u32 v{vT+1}, v{vT+1}, v{vT+3}
        s_lshl_b32 s{c.sT0}, s{c.sAoff}, 1
        v_add_u32 v{vT+1}, s{c.sT0}, v{vT+1}
        v_lshrrev_b32 v{vT+3}, 1, v3
        v_lshlrev_b32 v{vT+3}, 15, v{vT+3}
        v_lshlrev_b32 v{vT+2}, 4, v{vT}
        v_add_u32 v{vT+2}, v{vT+2}, v{vT+3}
        v_and_b32 v{vT+3}, 1, v3
        v_lshlrev_b32 v{vT+3}, 3, v{vT+3}
        v_add_u32 v{vT+2}, v{vT+2}, v{vT+3}
        s_lshl_b32 s{c.sT0}, s{c.sAoff}, 12
        v_add_u32 v{vT+2}, s{c.sT0}, v{vT+2}
        s_lshl_b32 s{c.sT0}, s{c.sT1}, 9
        v_lshlrev_b32 v{c.vXb}, 10, v3
        v_lshlrev_b32 v{vT+3}, 4, v2
        v_add_u32 v{c.vXb}, v{c.vXb}, v{vT+3}
        v_add_u32 v{c.vXb}, s{c.sT0}, v{c.vXb}
        v_lshrrev_b32 v{vT+3}, 1, v3
        v_lshlrev_b32 v{vT+3}, 4, v{vT+3}
        v_and_b32 v{vT+4}, 1, v3
        v_lshlrev_b32 v{vT+4}, 2, v{vT+4}
        v_add_u32 v{vT+3}, v{vT+3}, v{vT+4}
        v_lshrrev_b32 v{vT+4}, 2, v2
        v_add_u32 v{vT+3}, v{vT+3}, v{vT+4}
        v_mul_u32_u24 v{vT+3}, 160, v{vT+3}
        v_and_b32 v{vT+4}, 3, v1
        v_lshlrev_b32 v{vT+4}, 3, v{vT+4}
        v_add_u32 v{vT+3}, v{vT+3}, v{vT+4}
        s_mul_i32 s{c.sT0}, s{c.sT2}, 96
        s_add_u32 s{c.sT0}, s{c.sT0}, 16384
        v_add_u32 v{c.vWb}, s{c.sT0}, v{vT+3}
        s_mov_b32 s{c.sWoff}, s{c.sT2}
        """)
        if c.op:
            make_srd(a, c.sR, pX, pX+1, 0, 2048 * 1280)
            make_srd(a, c.sO, pWS, pWS+1, WS_H, SZ_ACT)
        else:
            make_srd(a, c.sR, pWS, pWS+1, WS_H, SZ_ACT)
            make_srd(a, c.sO, pOUT, pOUT+1, 0, 2048 * 1280)
        a(f"""
        s_cmp_eq_u32 s{c.sT2}, 1
        s_cselect_b32 s44, 0x7f000000, 0
        s_cselect_b64 s[46:47], -1, 0
        """)
    def pretouch(self): pass
    def tile_off(self, T, tt, rowmajor):
        a, c = self.a, self
        if rowmajor:
            base = T * 32 + tt * 16 * 1280
            val = base
        else:
            val = T * 65536 + tt * 256
        if T == 2:
            a(f"s_add_u32 s{c.sT0}, s44, {val}")
        else:
            a(f"s_mov_b32 s{c.sT0}, {val}")
        return (c.vT + 1 if rowmajor else c.vT + 2), c.sT0
    def residual_loads(self):
        a, c = self.a, self
        for T in range(3):
            for tt in range(2):
                va, so = c.tile_off(T, tt, c.op)
                a(f"buffer_load_dwordx2 {vr(c.vRes + 2*(T*2 + tt), 2)}, v{va}, s[{c.sR}:{c.sR+3}], s{so} offen")
    def mainloop(self, stamp0=None, tag=''):
        a, c = self.a, self
        N = c.NST * 4
        def rlist(i):
            st_, k, buf = i // 4, i % 4, i % 3
            xa, wa = (c.vXa, c.vWa) if st_ % 2 == 0 else (c.vXa2, c.vWa2)
            L = [f"ds_read_b128 {vr(c.vX + buf*8 + tt*4, 4)}, v{xa} offset:{k*4096 + tt*256}" for tt in range(2)]
            for T in range(3):
                for h2 in range(2):
                    L.append(f"ds_read_b64_tr_b16 {vr(c.vW + buf*12 + T*4 + h2*2, 2)}, v{wa} offset:{k*5120 + h2*1280 + T*32}")
            return L
        def setaddr(st_):
            slot = (st_ % 4) * STG
            xa, wa = (c.vXa, c.vWa) if st_ % 2 == 0 else (c.vXa2, c.vWa2)
            a(f"v_add_u32 v{xa}, {slot}, v{c.vXb}")
            a(f"v_add_u32 v{wa}, {slot}, v{c.vWb}")
        a("s_barrier")
        stx(a, tag + '_s0')
        setaddr(0)
        for r in rlist(0) + rlist(1): a(r)
        for i in range(N):
            buf = i % 3
            rl = rlist(i + 2) if i + 2 < N else []
            a(f"s_waitcnt lgkmcnt({8 if i + 1 < N else 0})")
            k = 0
            for T in range(3):
                for tt in range(2):
                    acc = c.vAcc + (T*2 + tt) * 4
                    cc = "0" if i == 0 else vr(acc, 4)
                    a(f"v_mfma_f32_16x16x32_bf16 {vr(acc,4)}, {vr(c.vW + buf*12 + T*4, 4)}, {vr(c.vX + buf*8 + tt*4, 4)}, {cc}")
                    if k == 0 and i + 2 < N and (i + 2) % 4 == 0:
                        a("s_barrier")
                        if (i + 2) // 4 == 1: stx(a, tag + '_s1')
                        if (i + 2) // 4 == 4: stx(a, tag + '_s4')
                        setaddr((i + 2) // 4)
                    for r in rl[[0, 2, 4, 5, 6, 7][k]:[2, 4, 5, 6, 7, 8][k]]: a(r)
                    k += 1
        a("s_nop 7")
    def reduce(self):
        pass
    def epilogue(self):
        a, c = self.a, self
        vT, vRes = c.vT, c.vRes
        a("s_waitcnt vmcnt(0)")
        P = 8
        for T in range(3):
            for tt in range(2):
                n = T*2 + tt
                acc = c.vAcc + n*4
                rr = vRes + 2*n
                a(f"""
                v_lshlrev_b32 v24, 16, v{rr}
                v_and_b32 v25, 0xffff0000, v{rr}
                v_lshlrev_b32 v26, 16, v{rr+1}
                v_and_b32 v27, 0xffff0000, v{rr+1}
                v_add_f32 v{acc}, v{acc}, v24
                v_add_f32 v{acc+1}, v{acc+1}, v25
                v_add_f32 v{acc+2}, v{acc+2}, v26
                v_add_f32 v{acc+3}, v{acc+3}, v27
                v_cvt_pk_bf16_f32 v{P+2*n}, v{acc}, v{acc+1}
                v_cvt_pk_bf16_f32 v{P+2*n+1}, v{acc+2}, v{acc+3}
                """)
                va, so = c.tile_off(T, tt, not c.op)
                ins = f"buffer_store_dwordx2 {vr(P+2*n, 2)}, v{va}, s[{c.sO}:{c.sO+3}], s{so} offen @SC"
                if c.op: dual(a, [ins])
                else: a(ins.replace("@SC", E('OUTFL', '')))
        if c.op:
            for tt in range(2):
                S, Q = 28 + 2*tt, 29 + 2*tt
                first = True
                for T in range(3):
                    n = T*2 + tt
                    for d in range(2):
                        r = P + 2*n + d
                        a(f"v_lshlrev_b32 v24, 16, v{r}")
                        a(f"v_and_b32 v25, 0xffff0000, v{r}")
                        if T == 2:
                            a(f"v_cndmask_b32 v24, v24, 0, s[46:47]")
                            a(f"v_cndmask_b32 v25, v25, 0, s[46:47]")
                        if first:
                            a(f"v_add_f32 v{S}, v24, v25")
                            a(f"v_mul_f32 v{Q}, v24, v24")
                            first = False
                        else:
                            a(f"v_add_f32 v{S}, v{S}, v24")
                            a(f"v_add_f32 v{S}, v{S}, v25")
                            a(f"v_fmac_f32 v{Q}, v24, v24")
                        a(f"v_fmac_f32 v{Q}, v25, v25")
            a(f"""
            v_mov_b32 v32, v28
            v_mov_b32 v33, v29
            v_mov_b32 v34, v30
            v_mov_b32 v35, v31
            s_nop 1
            v_permlane32_swap_b32 v28, v32
            v_permlane32_swap_b32 v29, v33
            v_permlane32_swap_b32 v30, v34
            v_permlane32_swap_b32 v31, v35
            s_nop 1
            v_add_f32 v28, v28, v32
            v_add_f32 v29, v29, v33
            v_add_f32 v30, v30, v34
            v_add_f32 v31, v31, v35
            s_nop 0
            v_mov_b32 v32, v28
            v_mov_b32 v33, v29
            v_mov_b32 v34, v30
            v_mov_b32 v35, v31
            s_nop 1
            v_permlane16_swap_b32 v28, v32
            v_permlane16_swap_b32 v29, v33
            v_permlane16_swap_b32 v30, v34
            v_permlane16_swap_b32 v31, v35
            s_nop 1
            v_add_f32 v28, v28, v32
            v_add_f32 v29, v29, v33
            v_add_f32 v30, v30, v34
            v_add_f32 v31, v31, v35
            s_lshl_b32 s{c.sT0}, s{c.sNt}, 1
            s_add_u32 s{c.sT0}, s{c.sT0}, s{c.sWoff}
            s_lshl_b32 s{c.sT0}, s{c.sT0}, 14
            s_add_u32 s{c.sT0}, s{c.sT0}, {WS_ST2}
            v_lshlrev_b32 v32, 3, v{vT}
            s_mov_b64 exec, 0xffff
            """)
            dual(a, [f"buffer_store_dwordx2 v[28:29], v32, s[{sWS}:{sWS+3}], s{c.sT0} offen @SC",
                     f"buffer_store_dwordx2 v[30:31], v32, s[{sWS}:{sWS+3}], s{c.sT0} offen offset:128 @SC"])
            a("s_mov_b64 exec, -1")

KT = 1536
SLOT = 8 * KT + 16384
VOFF = 8 * KT
NSLOT = 5
FLAG = NSLOT * SLOT

def attn_pad_init(a, nw_base, per_wave):
    a(f"""
    v_and_b32 v120, 31, v1
    v_mov_b32 v124, 0
    v_mov_b32 v123, 0x3f803f80
    v_cmp_eq_u32 vcc, 20, v120
    s_sub_u32 s75, s{sWV}, {nw_base}
    s_mul_i32 s75, s75, {per_wave * 1024}
    s_add_u32 s75, s75, {VOFF}
    v_cndmask_b32 v124, v124, v123, vcc
    v_lshlrev_b32 v123, 4, v1
    v_add_u32 v123, s75, v123
    v_mov_b32 v125, v124
    v_mov_b32 v126, v124
    v_mov_b32 v127, v124
    s_mov_b32 exec_lo, 0xfff00000
    s_mov_b32 exec_hi, 0xfff00000
    """)
    base = 0
    for sl in range(NSLOT):
        for j in range(per_wave):
            off = sl * SLOT + j * 1024
            if off - base >= 65536 - 1024:
                a(f"v_add_u32 v123, {sl*SLOT - base}, v123")
                base = sl * SLOT
            a(f"ds_write_b128 v123, v[124:127] offset:{off - base}")
    a(f"""
    s_mov_b64 exec, -1
    v_mov_b32 v123, {FLAG}
    v_mov_b32 v124, 0
    ds_write_b32 v123, v124
    s_waitcnt lgkmcnt(0)
    """)

def emit_attention(a, after_stores):
    name = "att"
    sK, sV, sQ, sO = 8, 12, 16, 20
    sHead, sQt, sT0, sT1, sT2 = 25, 26, 27, 28, 29
    sChunk, sSlotN, sPass, sKoff, sVoff, sKh = 30, 31, 32, 33, 34, 35
    sVmask = 38
    sSlotW, sE, sQg, sQb = 40, 41, 42, 43
    sW1s = 44
    vL16, vVoff = 2, 3
    vA3 = [[4, 5, 6], [7, 8, 9], [172, 173, 174]]
    vQ, vQr, vNC, vS, vP, vKb, vKr, vV, vO, vT = 10, 18, 22, 54, 86, 94, 102, 110, 126, 158
    lane_id(a, 0)
    lane_id(a, 1)
    a(f"""
    s_mov_b32 s{sVmask}, 0x000fffff
    s_mov_b32 s{sVmask+1}, 0x000fffff
    s_mov_b32 s{sPass}, 0
    s_lshr_b32 s{sKh}, s{sWV}, 2
    s_and_b32 s{sQg}, s{sWV}, 3
    v_lshlrev_b32 v{vL16}, 4, v0
    v_and_b32 v{vT}, 31, v0
    v_lshrrev_b32 v{vT+1}, 5, v0
    v_mul_u32_u24 v{vVoff}, 320, v{vT+1}
    v_lshlrev_b32 v{vT+2}, 4, v{vT}
    v_add_u32 v{vVoff}, v{vVoff}, v{vT+2}
    """)
    make_srd(a, sK, pWS, pWS+1, WS_K, SZ_QK)
    make_srd(a, sV, pWS, pWS+1, WS_V, SZ_QKV)
    make_srd(a, sQ, pWS, pWS+1, WS_Q, SZ_QK)
    make_srd(a, sO, pWS, pWS+1, WS_O, SZ_ACT)
    make_srd(a, sW1s, pW1, pW1+1, 0, 640*3456)
    def zero_regs():
        for i in range(32): a(f"v_mov_b32 v{vO+i}, 0")
        for i in range(4):
            a(f"v_mov_b32 v{vP+4+i}, 0")
            a(f"v_mov_b32 v{vV+12+i}, 0")
    zero_regs()
    a(f"v_and_b32 v{vT+11}, 7, v0")
    a(f"v_lshlrev_b32 v{vT+11}, 7, v{vT+11}")
    a(f"v_add_u32 v{vT+11}, {WS_CNT + C_RPS*128}, v{vT+11}")
    a(f"v_mov_b32 v{vT+10}, 0")
    a("s_barrier")
    a(f"""
    v_mov_b32 v4, {ROLE}
    ds_read_b96 v[6:8], v4
    s_waitcnt lgkmcnt(0)
    v_readfirstlane_b32 s{sX}, v6
    v_readfirstlane_b32 s{sRk}, v7
    v_readfirstlane_b32 s{sLoc}, v8
    s_and_b32 s{sT0}, s2, 7
    s_lshr_b32 s{sT1}, s2, 3
    s_cmp_eq_u32 s{sLoc}, 0
    s_cselect_b32 s{sX}, s{sT0}, s{sX}
    s_cselect_b32 s{sRk}, s{sT1}, s{sRk}
    s_mov_b32 s{sHead}, s{sRk}
    s_mov_b32 s{sQb}, s{sX}
    s_lshl_b32 s{sQt}, s{sQb}, 3
    s_and_b32 s{sE}, s{sHead}, 1
    """)
    def reinit():
        a(f"""
        s_lshl_b32 s{sT0}, s{sE}, 9
        s_mul_i32 s{sT1}, s{sKh}, {4*KT}
        s_add_u32 s{sT0}, s{sT0}, s{sT1}
        v_add_u32 v{vA3[0][0]}, s{sT0}, v{vL16}
        s_sub_u32 s{sT0}, 1, s{sE}
        s_lshl_b32 s{sT0}, s{sT0}, 10
        s_lshl_b32 s{sT2}, s{sE}, 3
        s_add_u32 s{sT0}, s{sT0}, s{sT2}
        s_add_u32 s{sT0}, s{sT0}, s{sT1}
        v_and_b32 v{vT}, 31, v0
        v_lshlrev_b32 v{vA3[0][1]}, 4, v{vT}
        v_add_u32 v{vA3[0][1]}, s{sT0}, v{vA3[0][1]}
        s_lshl_b32 s{sT0}, s{sKh}, 13
        s_add_u32 s{sT0}, s{sT0}, {VOFF}
        v_add_u32 v{vA3[0][2]}, s{sT0}, v{vL16}
        s_mov_b32 s{sSlotN}, {2*SLOT}
        s_lshr_b32 s{sT0}, s{sHead}, 1
        s_mul_i32 s{sT0}, s{sT0}, 163840
        s_mul_i32 s{sT1}, s{sWV}, 2560
        s_add_u32 s{sKoff}, s{sT0}, s{sT1}
        s_lshl_b32 s{sT1}, s{sE}, 10
        s_add_u32 s{sKoff}, s{sKoff}, s{sT1}
        s_mul_i32 s{sT0}, s{sHead}, 81920
        s_mul_i32 s{sT1}, s{sWV}, 1280
        s_add_u32 s{sVoff}, s{sT0}, s{sT1}
        s_mov_b32 s{sSlotW}, 0
        """)
        for k in range(3):
            a(f"v_add_u32 v{vA3[1][k]}, {SLOT}, v{vA3[0][k]}")
            a(f"v_add_u32 v{vA3[2][k]}, {2*SLOT}, v{vA3[0][k]}")
    reinit()
    a(f"""
    s_lshl_b32 s{sT0}, s{sQg}, 1
    s_add_u32 s{sQt}, s{sQt}, s{sT0}
    v_lshlrev_b32 v{vT+13}, 4, v{vT}
    s_lshl_b32 s{sT1}, s{sE}, 3
    s_add_u32 s{sT1}, s{sT1}, 1024
    v_add_u32 v{vT+13}, s{sT1}, v{vT+13}
    v_mov_b32 v{vT+9}, 0x7fffff00
    """)
    a(f"""
    v_cmp_gt_u32 vcc, 32, v0
    s_mul_i32 s{sT1}, s{sE}, 1536
    v_cndmask_b32 v{vT+13}, v{vT+9}, v{vT+13}, vcc
    v_add_u32 v{vT+12}, s{sT1}, v{vL16}
    """)
    lw = a.newlabel("attw")
    a(f"""
    s_cmp_eq_u32 s{sWV}, 0
    s_cbranch_scc0 {lw}
    s_mul_i32 s{sT0}, s{sHead}, 20
    s_lshr_b32 s{sT1}, s{sT0}, 7
    s_add_u32 s{sT0}, s{sT0}, 19
    s_lshr_b32 s{sT0}, s{sT0}, 7
    v_and_b32 v{vT+3}, 1, v0
    v_mov_b32 v{vT+4}, s{sT1}
    v_mov_b32 v{vT+5}, s{sT0}
    v_cmp_eq_u32 vcc, 1, v{vT+3}
    v_lshrrev_b32 v{vT+6}, 1, v0
    v_mul_u32_u24 v{vT+6}, 5, v{vT+6}
    v_cndmask_b32 v{vT+4}, v{vT+4}, v{vT+5}, vcc
    v_add_u32 v{vT+4}, v{vT+4}, v{vT+6}
    v_add_u32 v{vT+4}, {C_QKV}, v{vT+4}
    v_lshlrev_b32 v{vT+4}, 7, v{vT+4}
    v_add_u32 v{vT+4}, {WS_CNT}, v{vT+4}
    v_mov_b32 v{vT+5}, 16
    """)
    stx(a, 'a_p0')
    poll(a, vT + 4, vT + 5, 6, vT + 6, slp=int(E('QSLP', '1')))
    a.label(lw)
    stx(a, 'a_pre')
    a("s_waitcnt lgkmcnt(0)")
    a("s_barrier")
    st(a, 5)
    def rpa():
        a("s_and_b32 s76, s2, 7")
        a(f"s_add_u32 s76, s76, {C_RPS}")
        arrive(a, 76, vT + 4)
    KVF = E('KVF', '')
    def dma_kpart():
        a(f"""
        s_mul_i32 s{sT0}, s{sWV}, {KT}
        s_add_u32 m0, s{sSlotW}, s{sT0}
        s_nop 0
        buffer_load_dwordx4 v{vL16}, s[{sK}:{sK+3}], s{sKoff} offen {KVF} lds
        s_mov_b32 exec_hi, 0
        buffer_load_dwordx4 v{vL16}, s[{sK}:{sK+3}], s{sKoff} offen offset:1024 {KVF} lds
        s_mov_b32 exec_hi, -1
        s_add_u32 s{sKoff}, s{sKoff}, {8*2560}
        """)
    def dma_vpart():
        a(f"""
        s_lshl_b32 s{sT1}, s{sWV}, 11
        s_add_u32 s{sT1}, s{sT1}, s{sSlotW}
        s_add_u32 m0, s{sT1}, {VOFF}
        s_mov_b64 exec, s[{sVmask}:{sVmask+1}]
        buffer_load_dwordx4 v{vVoff}, s[{sV}:{sV+3}], s{sVoff} offen {KVF} lds
        s_add_u32 m0, m0, 1024
        s_add_u32 s{sT1}, s{sVoff}, 640
        buffer_load_dwordx4 v{vVoff}, s[{sV}:{sV+3}], s{sT1} offen {KVF} lds
        s_mov_b64 exec, -1
        s_add_u32 s{sVoff}, s{sVoff}, 10240
        s_add_u32 s{sSlotW}, s{sSlotW}, {SLOT}
        s_cmp_ge_u32 s{sSlotW}, {NSLOT*SLOT}
        s_cselect_b32 s{sSlotW}, 0, s{sSlotW}
        """)
    def dma_chunk():
        dma_kpart(); dma_vpart()
    dma_kpart()
    a(f"s_lshr_b32 s{sT0}, s{sHead}, 1")
    a(f"s_mul_i32 s{sT0}, s{sT0}, 163840")
    for s in range(2):
        a(f"""
        s_xor_b32 s{sT1}, s{sKh}, {s}
        s_add_u32 s{sT1}, s{sT1}, s{sQt}
        s_mul_i32 s{sT1}, s{sT1}, 2560
        s_add_u32 s{sT1}, s{sT1}, s{sT0}
        buffer_load_dwordx4 {vr(vQ+4*s,4)}, v{vT+12}, s[{sQ}:{sQ+3}], s{sT1} offen
        buffer_load_dwordx2 {vr(vQr+2*s,2)}, v{vT+13}, s[{sQ}:{sQ+3}], s{sT1} offen
        """)
    dma_vpart()
    a(f"s_branch L_{name}_start")
    a.label(f"L_{name}_restart")
    zero_regs()
    reinit()
    dma_chunk()
    a.label(f"L_{name}_start")
    vKc, vKrc, vVc = vA3[0]
    a(f"""
    s_waitcnt vmcnt(2)
    """)
    stx(a, 'a_c0')
    a("s_barrier")
    a(f"""
    s_cmp_eq_u32 s{sPass}, 0
    s_cbranch_scc0 L_{name}_haveC
    s_mul_i32 s{sT1}, s{sKh}, {4*KT}
    v_subrev_u32 v{vT+1}, s{sT1}, v{vKc}
    v_subrev_u32 v{vT+2}, s{sT1}, v{vKrc}
    ds_read_b128 {vr(vKb,4)}, v{vT+1}
    ds_read_b64 {vr(vKr,2)}, v{vT+2}
    s_waitcnt lgkmcnt(0)
    """)
    for s in range(2):
        S = vS + 16*s
        a(f"v_mfma_f32_32x32x16_bf16 {vr(S,16)}, {vr(vKb,4)}, {vr(vQ+4*s,4)}, 0")
    for s in range(2):
        S = vS + 16*s
        a(f"v_mfma_f32_32x32x8_bf16 {vr(S,16)}, {vr(vKr,2)}, {vr(vQr+2*s,2)}, {vr(S,16)}")
    a(f"""
    ds_read_b128 {vr(vKb,4)}, v{vKc}
    ds_read2st64_b64 {vr(vKr,4)}, v{vKrc} offset0:0 offset1:3
    s_nop 13
    """)
    for s in range(2):
        S = vS + 16*s
        T_ = vT + 2*s
        a(f"v_max3_f32 v{T_}, v{S}, v{S+1}, v{S+2}")
        for i in range(3, 15, 2):
            a(f"v_max3_f32 v{T_}, v{T_}, v{S+i}, v{S+i+1}")
        a(f"v_max_f32 v{T_}, v{T_}, v{S+15}")
    a(f"""
    v_mov_b32 v{vT+1}, v{vT}
    v_mov_b32 v{vT+3}, v{vT+2}
    s_nop 1
    v_permlane32_swap_b32 v{vT}, v{vT+1}
    v_permlane32_swap_b32 v{vT+2}, v{vT+3}
    s_nop 1
    v_max_f32 v{vT}, v{vT}, v{vT+1}
    v_max_f32 v{vT+2}, v{vT+2}, v{vT+3}
    v_sub_f32 v{vNC}, 0, v{vT}
    v_sub_f32 v{vNC+16}, 0, v{vT+2}
    """)
    for i in range(1, 16):
        a(f"v_mov_b32 v{vNC+i}, v{vNC}")
        a(f"v_mov_b32 v{vNC+16+i}, v{vNC+16}")
    a(f"s_branch L_{name}_haveC2")
    a.label(f"L_{name}_haveC")
    a(f"""
    ds_read_b128 {vr(vKb,4)}, v{vKc}
    ds_read2st64_b64 {vr(vKr,4)}, v{vKrc} offset0:0 offset1:3
    """)
    a.label(f"L_{name}_haveC2")
    a(f"""
    s_waitcnt lgkmcnt(0)
    v_mfma_f32_32x32x16_bf16 {vr(vS,16)}, {vr(vKb,4)}, {vr(vQ,4)}, {vr(vNC,16)}
    v_mfma_f32_32x32x8_bf16 {vr(vS,16)}, {vr(vKr,2)}, {vr(vQr,2)}, {vr(vS,16)}
    s_waitcnt vmcnt(0)
    s_barrier
    ds_read_b128 {vr(vV,4)}, v{vVc}
    ds_read_b128 {vr(vV+4,4)}, v{vVc} offset:1024
    """)
    dma_chunk()
    a(f"""
    s_mov_b32 s{sChunk}, 0
    s_waitcnt lgkmcnt(0)
    """)
    st(a, 6)
    a(f"""
    s_cmp_eq_u32 s{sKh}, 0
    s_cselect_b32 s36, 7, 0
    s_cselect_b32 s37, 0, 7
    """)
    ool = []
    def rare(mask, fn, tag):
        l, b = a.newlabel(tag), a.newlabel(tag + "b")
        a(f"s_bitcmp1_b32 {mask:#x}, s{sChunk}")
        a(f"s_cbranch_scc1 {l}")
        a.label(b)
        ool.append((l, b, fn))
    def common_(mask, fn, tag):
        l = a.newlabel(tag)
        a(f"s_bitcmp1_b32 {mask if isinstance(mask, str) else hex(mask)}, s{sChunk}")
        a(f"s_cbranch_scc0 {l}")
        fn()
        a.label(l)
    def pf_A(half, which='w1'):
        if which == 'w1':
            a(f"""
            v_lshlrev_b32 v{vT+12}, 7, v0
            s_mul_i32 s{sT0}, s{sRk}, 69120
            s_lshl_b32 s{sT1}, s{sWV}, 13
            s_add_u32 s{sT0}, s{sT0}, s{sT1}
            s_mov_b32 exec_lo, {-1 if half == 0 else 0}
            s_mov_b32 exec_hi, {0 if half == 0 else -1}
            buffer_load_dword v{vT+13}, v{vT+12}, s[{sW1s}:{sW1s+3}], s{sT0} offen sc1
            s_mov_b64 exec, -1
            """)
        else:
            a(f"""
            v_lshlrev_b32 v{vT+12}, 7, v0
            s_mul_i32 s{sT0}, s{sRk}, {SZ_W2P // 32}
            s_lshl_b32 s{sT1}, s{sWV}, 13
            s_add_u32 s{sT0}, s{sT0}, s{sT1}
            s_add_u32 s{sT0}, s{sT0}, {WS_W2P}
            s_mov_b32 exec_lo, {-1 if half == 0 else 0}
            s_mov_b32 exec_hi, {0 if half == 0 else -1}
            buffer_load_dword v{vT+13}, v{vT+12}, s[{sWS}:{sWS+3}], s{sT0} offen sc1
            s_mov_b64 exec, -1
            """)
    def pf_B():
        l5, l4, le = a.newlabel("pf5"), a.newlabel("pf4"), a.newlabel("pfe")
        a(f"""
        v_lshlrev_b32 v{vT+12}, 7, v0
        s_cmp_ge_u32 s{sWV}, 5
        s_cbranch_scc1 {l5}
        s_cmp_eq_u32 s{sWV}, 4
        s_cbranch_scc1 {l4}
        s_mul_i32 s{sT0}, s{sRk}, {SZ_WOP // 32}
        s_lshl_b32 s{sT1}, s{sWV}, 13
        s_add_u32 s{sT0}, s{sT0}, s{sT1}
        s_add_u32 s{sT0}, s{sT0}, {WS_WOP}
        buffer_load_dword v{vT+13}, v{vT+12}, s[{sWS}:{sWS+3}], s{sT0} offen sc1
        s_branch {le}
        """)
        a.label(l4)
        a(f"""
        s_mul_i32 s{sT0}, s{sRk}, 69120
        s_add_u32 s{sT0}, s{sT0}, 65536
        s_mov_b32 exec_hi, 0
        buffer_load_dword v{vT+13}, v{vT+12}, s[{sW1s}:{sW1s+3}], s{sT0} offen sc1
        s_mov_b32 exec_hi, -1
        """)
        if not E('NOTLB2'):
            a(f"v_lshlrev_b32 v{vT+12}, 21, v0")
            a("s_mov_b64 exec, 0xfff")
            a(f"buffer_load_dword v{vT+13}, v{vT+12}, s[{sWS}:{sWS+3}], 0 offen sc1")
            a("s_mov_b64 exec, 3")
            make_srd(a, 16, pOUT, pOUT+1, 0, 2048*1280)
            a(f"buffer_load_dword v{vT+13}, v{vT+12}, s[16:19], 0 offen sc1")
            a("s_mov_b64 exec, -1")
        a(f"""
        s_branch {le}
        """)
        a.label(l5)
        a(f"""
        s_sub_u32 s{sT1}, s{sWV}, 5
        s_lshl_b32 s{sT1}, s{sT1}, 5
        s_mul_i32 s{sT0}, s{sRk}, 80
        s_add_u32 s{sT0}, s{sT0}, s{sT1}
        v_and_b32 v{vT+8}, 31, v0
        v_add_u32 v{vT+8}, s{sT0}, v{vT+8}
        v_lshrrev_b32 v{vT+9}, 5, v{vT+8}
        v_lshlrev_b32 v{vT+9}, 15, v{vT+9}
        v_and_b32 v{vT+8}, 31, v{vT+8}
        v_lshlrev_b32 v{vT+8}, 7, v{vT+8}
        v_add_u32 v{vT+8}, v{vT+8}, v{vT+9}
        s_lshl_b32 s{sT0}, s{sX}, 12
        s_mov_b32 exec_hi, 0
        buffer_load_dword v{vT+13}, v{vT+8}, s[{sO}:{sO+3}], s{sT0} offen sc1
        s_mov_b32 exec_hi, -1
        """)
        a.label(le)
    def rp_issue():
        a("s_mov_b64 exec, 0xff")
        a(f"buffer_load_dword v{vT+10}, v{vT+11}, s[{sWS}:{sWS+3}], 0 offen sc1")
        a("s_mov_b64 exec, -1")
    def rp_check():
        ok = a.newlabel("rpok")
        a("s_mov_b64 exec, 0xff")
        a(f"v_cmp_gt_u32 vcc, 32, v{vT+10}")
        a("s_nop 4")
        a("s_cmp_eq_u64 vcc, 0")
        a(f"s_cbranch_scc1 {ok}")
        a(f"v_mov_b32 v{vT+9}, 32")
        poll(a, vT + 11, vT + 9, 8, vT + 10)
        a.label(ok)
        a("s_mov_b64 exec, -1")
    def rp_load():
        le = a.newlabel("rle")
        a(f"s_cmp_eq_u32 s{sPass}, 0")
        a(f"s_cbranch_scc0 {le}")
        a(f"s_cmp_ge_u32 s{sWV}, 4")
        a(f"s_cbranch_scc0 {le}")
        for r in range(3):
            la, lb = a.newlabel("rla"), a.newlabel("rlb")
            a(f"v_accvgpr_read_b32 v{vT+4}, a{43+2*r}")
            a(f"v_accvgpr_read_b32 v{vT+5}, a{44+2*r}")
            a(f"v_accvgpr_read_b32 v{vT+6}, a{49+r}")
            make_srd(a, 16, pWO, pWO+1, 0, 640*1280)
            a(f"""
            v_cmp_gt_u32 vcc, 40, v{vT+6}
            s_nop 4
            s_mov_b64 s[76:77], vcc
            s_mov_b64 exec, vcc
            s_cbranch_execz {la}
            buffer_load_dwordx4 {ar(28+4*r,4)}, v{vT+4}, s[16:19], 0 offen
            {la}:
            """)
            make_srd(a, 16, pW2, pW2+1, 0, 1728*1280)
            a(f"""
            s_not_b64 exec, s[76:77]
            s_cbranch_execz {lb}
            buffer_load_dwordx4 {ar(28+4*r,4)}, v{vT+5}, s[16:19], 0 offen
            {lb}:
            s_mov_b64 exec, -1
            """)
        a(f"""
        s_mul_i32 s76, s2, 8640
        s_sub_u32 s77, s{sWV}, 4
        s_mul_i32 s77, s77, 2176
        s_add_u32 s76, s76, s77
        v_lshlrev_b32 v{vT+4}, 7, v0
        s_mov_b64 exec, 0x1ffff
        buffer_load_dword v{vT+5}, v{vT+4}, s[{sW1s}:{sW1s+3}], s76 offen sc1
        s_mov_b64 exec, -1
        """)
        a.label(le)
    def rp_store():
        le = a.newlabel("rse")
        a(f"s_cmp_eq_u32 s{sPass}, 0")
        a(f"s_cbranch_scc0 {le}")
        a(f"s_cmp_ge_u32 s{sWV}, 4")
        a(f"s_cbranch_scc0 {le}")
        for r in range(3): a(f"v_accvgpr_read_b32 v{vT+4+r}, a{40+r}")
        a(f"s_mov_b32 s76, {WS_WOP}")
        for r in range(3):
            a(f"buffer_store_dwordx4 {ar(28+4*r,4)}, v{vT+4+r}, s[{sWS}:{sWS+3}], s76 offen {SC}")
        a.label(le)
    def rp_arr():
        le = a.newlabel("rae")
        a(f"s_cmp_eq_u32 s{sPass}, 0")
        a(f"s_cbranch_scc0 {le}")
        wave_only(a, 4, rpa)
        a.label(le)
    def rp_post():
        l2, le = a.newlabel("rp2"), a.newlabel("rpe")
        a(f"s_cmp_eq_u32 s{sChunk}, 2")
        a(f"s_cbranch_scc0 {l2}")
        a(f"s_cmp_eq_u32 s{sPass}, 0")
        a(f"s_cbranch_scc0 {le}")
        wave_only(a, 4, rpa)
        a(f"s_branch {le}")
        a.label(l2)
        rp_check()
        a.label(le)
    if E('A_PRIO'):
        l = a.newlabel("prio")
        a(f"s_cmp_ge_u32 s{sWV}, 4")
        a(f"s_cbranch_scc0 {l}")
        a(f"s_setprio {E('A_PRIO')}")
        a.label(l)
    a(".p2align 6")
    a.label(f"L_{name}_loop")
    rd = (lambda x: None) if E('A_NORD') else a
    for u in range(16):
        p = u & 1
        t = u >> 1
        D1 = int(E('A_D1', '6'))
        def common_else(mask, fn, fn_else, tag):
            l, b = a.newlabel(tag), a.newlabel(tag + "b")
            a(f"s_bitcmp1_b32 {mask:#x}, s{sChunk}")
            a(f"s_cbranch_scc0 {l}")
            fn()
            a.label(b)
            ool.append((l, b, fn_else))
        def by_pair(d):
            def f():
                le = a.newlabel("bpe")
                for k, fn in d.items():
                    ln = a.newlabel("bpn")
                    a(f"s_cmp_eq_u32 s{sChunk}, {k}")
                    a(f"s_cbranch_scc0 {ln}")
                    fn()
                    a(f"s_branch {le}")
                    a.label(ln)
                a.label(le)
            return f
        if u == 0: common_else(0b0111, dma_chunk, lambda: pf_A(0), "d0")
        if u == 6:
            rare(0b0101, by_pair({0: lambda: (a("s_waitcnt vmcnt(4)"), a("s_barrier")), 2: rp_store}), "c1")
            common_else(0b0111, dma_chunk, lambda: pf_A(1), "d1")
        if u == 10: rare(0b1000, pf_B, "pc")
        if u == 14:
            rare(0b1000, rp_issue, "rpi")
            a("s_waitcnt vmcnt(0)")
            a("s_barrier")
            rare(0b1101, by_pair({0: rp_load, 2: rp_arr, 3: rp_check}), "rpc")
        tn = t + 1
        A = vA3[tn // 4]
        if p == 0:
            rd(f"ds_read_b128 {vr(vKb + 4*(tn&1),4)}, v{A[0]} offset:{(tn%4)*KT}")
            if tn % 2 == 0:
                pb = (tn // 2) & 1
                rd(f"ds_read2st64_b64 {vr(vKr + 4*pb,4)}, v{A[1]} offset0:{(tn%4)*3} offset1:{(tn%4)*3+3}")
            rd(f"ds_read_b128 {vr(vV + 8*(tn&1),4)}, v{A[2]} offset:{(tn%4)*2048}")
        else:
            rd("s_waitcnt lgkmcnt(0)")
        un = u + 1
        tq = un >> 1
        qs = un & 1
        Sc, Sn = vS + 16*p, vS + 16*(p^1)
        kbuf = vKb + 4*(tq & 1)
        krbuf = vKr + 4*((tq // 2) & 1) + 2*(tq & 1)
        ex = lambda r: a(f"v_exp_f32 v{Sc+r}, v{Sc+r}")
        cv = lambda r: a(f"v_cvt_pk_bf16_f32 v{vP+r}, v{Sc+2*r}, v{Sc+2*r+1}")
        a(f"v_mfma_f32_32x32x16_bf16 {vr(Sn,16)}, {vr(kbuf,4)}, {vr(vQ+4*qs,4)}, {vr(vNC+16*qs,16)}")
        for r in range(4): ex(r)
        tp = (u - 1) >> 1 if u > 0 else -1
        Op = vO + 16*((u - 1) & 1)
        a(f"v_mfma_f32_32x32x16_bf16 {vr(Op,16)}, {vr(vV + 8*(tp & 1) + 4,4)}, {vr(vP+4,4)}, {vr(Op,16)}")
        if p == 0:
            rd(f"ds_read_b128 {vr(vV + 8*(tn&1) + 4,4)}, v{A[2]} offset:{(tn%4)*2048 + 1024}")
        for r in range(4, 8): ex(r)
        cv(0); cv(1)
        a(f"v_mfma_f32_32x32x8_bf16 {vr(Sn,16)}, {vr(krbuf,2)}, {vr(vQr+2*qs,2)}, {vr(Sn,16)}")
        cv(2); cv(3)
        for r in range(8, 12): ex(r)
        Oc = vO + 16*p
        a(f"v_mfma_f32_32x32x16_bf16 {vr(Oc,16)}, {vr(vV + 8*(t & 1),4)}, {vr(vP,4)}, {vr(Oc,16)}")
        for r in range(12, 16): ex(r)
        if u == 15:
            a(f"""
            s_add_u32 s{sT0}, s{sSlotN}, {SLOT}
            s_cmp_ge_u32 s{sT0}, {NSLOT*SLOT}
            s_cselect_b32 s{sT1}, {NSLOT*SLOT}, 0
            s_sub_u32 s{sT0}, s{sT0}, s{sT1}
            s_sub_u32 s{sT1}, s{sT0}, s{sSlotN}
            s_add_u32 s{sT2}, s{sT0}, {SLOT}
            s_cmp_ge_u32 s{sT2}, {NSLOT*SLOT}
            s_cselect_b32 s{sT0}, {NSLOT*SLOT}, 0
            s_sub_u32 s{sT2}, s{sT2}, s{sT0}
            s_sub_u32 s{sT0}, s{sT2}, s{sSlotN}
            s_mov_b32 s{sSlotN}, s{sT2}
            """)
            for k in range(3):
                a(f"v_mov_b32 v{vA3[0][k]}, v{vA3[2][k]}")
                a(f"v_add_u32 v{vA3[1][k]}, s{sT1}, v{vA3[2][k]}")
                a(f"v_add_u32 v{vA3[2][k]}, s{sT0}, v{vA3[2][k]}")
        for r in range(4, 8): cv(r)
    a(f"""
    s_add_u32 s{sChunk}, s{sChunk}, 1
    s_cmp_lt_u32 s{sChunk}, 4
    s_cbranch_scc1 L_{name}_loop
    s_waitcnt lgkmcnt(0)
    """)
    a(f"v_mfma_f32_32x32x16_bf16 {vr(vO+16,16)}, {vr(vV + 8 + 4,4)}, {vr(vP+4,4)}, {vr(vO+16,16)}")
    st(a, 7)
    a(f"s_branch L_{name}_post")
    for l, b, fn in ool:
        a.label(l)
        fn()
        a(f"s_branch {b}")
    a.label(f"L_{name}_post")
    a(f"""
    s_barrier
    s_lshl_b32 s{sT0}, s{sQg}, 1
    s_add_u32 s{sT1}, s{sT0}, s{sKh}
    s_lshr_b32 s{sT2}, s{sT1}, 2
    s_mul_i32 s{sT2}, s{sT2}, {SLOT}
    s_and_b32 s{sT1}, s{sT1}, 3
    s_mul_i32 s{sT1}, s{sT1}, 3072
    s_add_u32 s{sT1}, s{sT1}, s{sT2}
    v_add_u32 v{vT}, s{sT1}, v{vL16}
    s_xor_b32 s{sT1}, s{sKh}, 1
    s_add_u32 s{sT1}, s{sT1}, s{sT0}
    s_lshr_b32 s{sT2}, s{sT1}, 2
    s_mul_i32 s{sT2}, s{sT2}, {SLOT}
    s_and_b32 s{sT1}, s{sT1}, 3
    s_mul_i32 s{sT1}, s{sT1}, 3072
    s_add_u32 s{sT1}, s{sT1}, s{sT2}
    v_add_u32 v{vT+1}, s{sT1}, v{vL16}
    s_nop 7
    """)
    stx(a, 'a_bar1')
    for i in range(3):
        a(f"ds_write_b128 v{vT}, {vr(vO+16+4*i,4)} offset:{i*1024}")
    a("s_waitcnt lgkmcnt(0)")
    a("s_barrier")
    stx(a, 'a_bar2')
    for i in range(3):
        a(f"ds_read_b128 {vr(vS+4*i,4)}, v{vT+1} offset:{i*1024}")
    a("s_waitcnt lgkmcnt(0)")
    for r in range(12):
        a(f"v_add_f32 v{vO+r}, v{vO+r}, v{vS+r}")
    a(f"v_mov_b32 v{vT}, 0")
    for r in range(12):
        a(f"v_fma_f32 v{vT}, v{vO+r}, 0, v{vT}")
    a(f"""
    s_cmp_eq_u32 s{sPass}, 0
    s_cbranch_scc0 L_{name}_store2
    v_cmp_u_f32 vcc, v{vT}, v{vT}
    s_nop 4
    s_cmp_eq_u64 vcc, 0
    s_cbranch_scc1 L_{name}_store2
    v_mov_b32 v{vT+1}, {FLAG}
    v_mov_b32 v{vT+2}, 1
    ds_write_b32 v{vT+1}, v{vT+2}
    s_branch L_{name}_store2
    L_{name}_redo:
    s_mov_b32 s{sPass}, 1
    v_mov_b32 v{vT}, 0xff800000
    v_mov_b32 v{vT+1}, 0xff800000
    s_lshr_b32 s{sT0}, s{sHead}, 1
    s_mul_i32 s{sT0}, s{sT0}, 163840
    s_mov_b32 s{sT1}, 0
    v_and_b32 v{vT+2}, 31, v0
    v_lshlrev_b32 v{vT+2}, 4, v{vT+2}
    s_lshl_b32 s{sT2}, s{sE}, 3
    s_add_u32 s{sT2}, s{sT2}, 1024
    v_add_u32 v{vT+2}, s{sT2}, v{vT+2}
    s_mul_i32 s{sT2}, s{sE}, 1536
    v_add_u32 v{vT+3}, s{sT2}, v{vL16}
    L_{name}_maxloop:
    buffer_load_dwordx4 {vr(vKb,4)}, v{vT+3}, s[{sK}:{sK+3}], s{sT0} offen
    buffer_load_dwordx2 {vr(vKr,2)}, v{vT+2}, s[{sK}:{sK+3}], s{sT0} offen
    s_waitcnt vmcnt(0)
    """)
    for s in range(2):
        S = vS + 16*s
        a(f"v_mfma_f32_32x32x16_bf16 {vr(S,16)}, {vr(vKb,4)}, {vr(vQ+4*s,4)}, 0")
        a(f"v_mfma_f32_32x32x8_bf16 {vr(S,16)}, {vr(vKr,2)}, {vr(vQr+2*s,2)}, {vr(S,16)}")
    a("s_nop 15")
    for s in range(2):
        for i in range(0, 16, 2):
            a(f"v_max3_f32 v{vT+s}, v{vT+s}, v{vS+16*s+i}, v{vS+16*s+i+1}")
    a(f"""
    s_add_u32 s{sT0}, s{sT0}, 2560
    s_add_u32 s{sT1}, s{sT1}, 1
    s_cmp_lt_u32 s{sT1}, 64
    s_cbranch_scc1 L_{name}_maxloop
    """)
    for s in range(2):
        a(f"""
        v_mov_b32 v{vT+2}, v{vT+s}
        s_nop 1
        v_permlane32_swap_b32 v{vT+s}, v{vT+2}
        s_nop 1
        v_max_f32 v{vT+2}, v{vT+s}, v{vT+2}
        v_sub_f32 v{vNC+16*s}, 0, v{vT+2}
        """)
        for i in range(1, 16):
            a(f"v_mov_b32 v{vNC+16*s+i}, v{vNC+16*s}")
    a("s_barrier")
    a(f"s_branch L_{name}_restart")
    a.label(f"L_{name}_store2")
    stx(a, 'a_vote')
    a(f"""
    v_mov_b32 v{vT}, v{vO+8}
    v_mov_b32 v{vT+1}, v{vO+8}
    s_nop 1
    v_permlane32_swap_b32 v{vT}, v{vT+1}
    s_nop 1
    v_rcp_f32 v{vT+1}, v{vT+1}
    v_lshrrev_b32 v{vT+2}, 5, v0
    v_and_b32 v{vT+3}, 31, v0
    s_add_u32 s{sT0}, s{sQt}, s{sKh}
    s_lshl_b32 s{sT0}, s{sT0}, 5
    v_add_u32 v{vT+3}, s{sT0}, v{vT+3}
    v_lshlrev_b32 v{vT+3}, 4, v{vT+3}
    s_mul_i32 s{sT0}, s{sHead}, 5
    v_add_u32 v{vT+2}, s{sT0}, v{vT+2}
    """)
    for r in range(12):
        a(f"v_mul_f32 v{vO+r}, v{vO+r}, v{vT+1}")
    for q in range(3):
        a(f"""
        v_add_u32 v{vT+4}, {2*q}, v{vT+2}
        v_lshrrev_b32 v{vT+5}, 1, v{vT+4}
        v_lshlrev_b32 v{vT+5}, 15, v{vT+5}
        v_and_b32 v{vT+4}, 1, v{vT+4}
        v_lshlrev_b32 v{vT+4}, 3, v{vT+4}
        v_add3_u32 v{vT+4}, v{vT+4}, v{vT+5}, v{vT+3}
        v_cvt_pk_bf16_f32 v{vT+6}, v{vO+4*q}, v{vO+4*q+1}
        v_cvt_pk_bf16_f32 v{vT+7}, v{vO+4*q+2}, v{vO+4*q+3}
        """)
        if q == 2: a("s_mov_b32 exec_hi, 0")
        dual(a, [f"buffer_store_dwordx2 {vr(vT+6,2)}, v{vT+4}, s[{sO}:{sO+3}], 0 offen @SC"])
    a("s_mov_b64 exec, -1")
    stx(a, 'a_stores')
    a(f"""
    s_waitcnt vmcnt(0) lgkmcnt(0)
    s_barrier
    v_mov_b32 v{vT+1}, {FLAG}
    ds_read_b32 v{vT+2}, v{vT+1}
    s_waitcnt lgkmcnt(0)
    v_readfirstlane_b32 s{sT0}, v{vT+2}
    s_cmp_eq_u32 s{sPass}, 0
    s_cselect_b32 s{sT0}, s{sT0}, 0
    s_cmp_lg_u32 s{sT0}, 0
    s_cbranch_scc1 L_{name}_redo
    """)
    a(f"s_add_u32 s76, s{sQb}, {C_ATT}")

def gemm_phase_prologue_loader(a, core, q, dep_idx_sgpr, dep_target, nW, pre_issued):
    pass

LANDED = [True]
def reg_step1(a, vd):
    a("s_mov_b64 exec, 7")
    a(f"buffer_load_dword v{vd}, v{vd+1}, s[44:47], 0 offen sc1")
    a("s_mov_b64 exec, -1")
def reg_step2(a, vd):
    dbg_flag_wait(a, vd, landed=LANDED[0])
    a(f"""
    s_getreg_b32 s{sX}, hwreg(HW_REG_XCC_ID)
    s_and_b32 s{sX}, s{sX}, 7
    s_add_u32 s76, s{sX}, {C_RK}
    s_lshl_b32 s76, s76, 7
    s_add_u32 s76, s76, {WS_CNT}
    v_mov_b32 v{vd-1}, s76
    v_accvgpr_write_b32 a0, 1
    s_mov_b64 exec, 1
    s_nop 1
    buffer_atomic_add a0, v{vd-1}, s[{sWS}:{sWS+3}], 0 offen sc0
    s_mov_b64 exec, -1
    """)
def reg_step3(a, vd):
    l1, l2 = a.newlabel("r3a"), a.newlabel("r3b")
    if not LANDED[0]: a("s_waitcnt vmcnt(0)")
    a(f"""
    v_accvgpr_read_b32 v{vd-1}, a0
    s_nop 1
    v_readfirstlane_b32 s{sRk}, v{vd-1}
    s_cmp_eq_u32 s{sRk}, 31
    s_cbranch_scc0 {l1}
    v_mov_b32 v{vd-1}, 4
    v_mov_b32 v{vd-2}, 1
    s_mov_b64 exec, 1
    buffer_atomic_add v{vd-2}, v{vd-1}, s[44:47], 0 offen sc1
    s_mov_b64 exec, -1
    """)
    a.label(l1)
    a(f"""
    s_cmp_ge_u32 s{sRk}, 32
    s_cbranch_scc0 {l2}
    v_mov_b32 v{vd-1}, 8
    v_mov_b32 v{vd-2}, 1
    s_mov_b64 exec, 1
    buffer_store_dword v{vd-2}, v{vd-1}, s[44:47], 0 offen sc1
    s_mov_b64 exec, -1
    """)
    a.label(l2)
    a("s_mov_b64 exec, 7")
    a(f"buffer_load_dword v{vd}, v{vd+1}, s[44:47], 0 offen sc1")
    a("s_mov_b64 exec, -1")
def register_publish(a, vd):
    l0, l1 = a.newlabel("rp"), a.newlabel("rpok")
    a(f"s_mov_b32 s{sPoll}, 0")
    a.label(l0)
    a(f"""
    s_waitcnt vmcnt(0)
    v_readlane_b32 s39, v{vd}, 1
    v_readlane_b32 s40, v{vd}, 2
    s_cmp_eq_u32 s39, 8
    s_cselect_b32 s38, 1, 0
    s_cmp_lg_u32 s40, 0
    s_cselect_b32 s38, 0, s38
    s_cbranch_scc1 {l1}
    s_cmp_eq_u32 s38, 1
    s_cbranch_scc1 {l1}
    s_add_u32 s{sPoll}, s{sPoll}, 1
    s_cmp_gt_u32 s{sPoll}, {POLL_MAX}
    s_cbranch_scc1 {l1}
    s_sleep 1
    s_mov_b64 exec, 7
    buffer_load_dword v{vd}, v{vd+1}, s[44:47], 0 offen sc1
    s_mov_b64 exec, -1
    s_branch {l0}
    """)
    a.label(l1)
    if E('FORCE_SLOW'): a("s_mov_b32 s38, 0")
    a(f"""
    v_mov_b32 v{vd-6}, s{sX}
    v_mov_b32 v{vd-4}, s38
    v_mov_b32 v{vd-5}, s{sRk}
    v_mov_b32 v{vd-7}, {ROLE}
    ds_write_b96 v{vd-7}, v[{vd-6}:{vd-4}]
    s_waitcnt lgkmcnt(0)
    """)
def wave_only(a, w, fn):
    l = a.newlabel("wo")
    a(f"s_cmp_eq_u32 s{sWV}, {w}")
    a(f"s_cbranch_scc0 {l}")
    fn()
    a.label(l)
def code_prefetch(a):
    a(f"""
    s_getpc_b64 s[40:41]
    L_pcref:
    s_lshr_b32 s42, s2, 3
    s_lshl_b32 s42, s42, 11
    v_lshlrev_b32 v26, 7, v1
    v_add_u32 v26, s42, v26
    s_mov_b32 s43, L_exit-L_pcref
    v_cmp_gt_u32 vcc, s43, v26
    s_nop 4
    s_and_b32 vcc_lo, vcc_lo, 0xffff
    s_mov_b32 vcc_hi, 0
    s_mov_b64 exec, vcc
    s_cbranch_execz L_pcskip
    global_load_dword v31, v26, s[40:41]
    L_pcskip:
    s_mov_b64 exec, -1
    """)

def tlb_warm(a):
    G = int(E('TLBG', '21'))
    a(f"""
    s_lshr_b32 s75, s2, 3
    v_lshlrev_b32 v166, 5, v1
    v_add_u32 v166, s75, v166
    v_lshlrev_b32 v166, {G}, v166
    """)
    n_ws = -(-WS_END >> G)
    a(f"s_mov_b64 exec, {(1 << min(31, -(-n_ws // 32))) - 1:#x}")
    a(f"buffer_load_dword v167, v166, s[{sWS}:{sWS+3}], 0 offen sc1")
    a("s_mov_b64 exec, 3")
    for k, (pp, size) in enumerate(((pW1, 640*3456), (pW2, 1728*1280), (pWO, 640*1280), (pOUT, 2048*1280))):
        make_srd(a, 8, pp, pp+1, 0, size)
        a(f"buffer_load_dword v167, v166, s[8:11], 0 offen sc1")
    a("s_mov_b64 exec, -1")

CODE_KB = 64
def gen_mega():
    a = Asm()
    a(f"""
    s_cmp_ge_u32 s2, 256
    s_cbranch_scc1 L_exit
    s_load_dwordx8 s[84:91], s[0:1], 0
    s_load_dwordx8 s[92:99], s[0:1], 32
    s_load_dwordx2 s[78:79], s[0:1], 64
    """)
    st_rt(a, 0); st(a, 1)
    a(f"""
    v_lshrrev_b32 v2, 6, v0
    s_nop 0
    v_readfirstlane_b32 s{sWV}, v2
    """)
    lane_id(a, 1)
    if not E('NOPF'):
        l = a.newlabel("pf")
        a(f"s_cmp_eq_u32 s{sWV}, 1")
        a(f"s_cbranch_scc0 {l}")
        code_prefetch(a)
        a.label(l)
    a("s_waitcnt lgkmcnt(0)")
    make_srd(a, sWS, pWS, pWS+1, 0, WS_END)
    if E('TLB0'):
        def t0():
            a("v_lshlrev_b32 v26, 21, v1")
            a("s_mov_b64 exec, 3")
            make_srd(a, 8, pX, pX+1, 0, 2048*1280)
            a("buffer_load_dword v31, v26, s[8:11], 0 offen sc1")
            make_srd(a, 8, pWQ, pWQ+1, 0, 640*3840)
            a("buffer_load_dword v31, v26, s[8:11], 0 offen sc1")
            a("s_mov_b64 exec, -1")
        wave_only(a, 3, t0)
    L = CoreL(a, 'qkv', 'q')
    L.map_tiles("L_repack")
    a(f"""
    s_cmp_ge_u32 s{sWV}, 4
    s_cbranch_scc0 L_q_compute
    """)
    L.loader_setup()
    st(a, 2)
    q = VmQ()
    for s_ in range(PD):
        L.issue_A(s_); q.push(f"A{s_}", 4)
        if not FS: stamp(a, 9 + 2*s_, base=SB)
        L.issue_W(s_); q.push(f"W{s_}", 4)
        if not FS: stamp(a, 10 + 2*s_, base=SB)
    st(a, 3)
    make_srd(a, 44, pDBG, pDBG+1, 0, 256)
    a("v_lshlrev_b32 v71, 2, v1")
    a("v_mov_b32 v70, 0")
    PL = P0L(a, L)
    if E('P0L'):
        PL.issue(); q.push('p0l', 5)
    L.p0l = PL
    RP = Repack(a)
    RP.issue(defer=True)
    RP.save()
    L.ldstamps = True
    L.loader_main(q)
    st(a, 8)
    a("s_waitcnt lgkmcnt(0)")
    a("s_barrier")
    attn_pad_init(a, 4, 4)
    a("s_barrier")
    wave_only(a, 7, lambda: register_publish(a, 70))
    a("s_branch L_attn")
    a.label("L_q_compute")
    L.compute_setup()
    make_srd(a, 44, pDBG, pDBG+1, 0, 256)
    a(f"v_lshlrev_b32 v{L.vSt+27}, 2, v1")
    a(f"v_mov_b32 v{L.vSt+26}, 0")
    a(f"""
    s_cmp_ge_u32 s{L.sNt}, 10
    s_cbranch_scc1 L_q_vpath
    """)
    L.addr_qk()
    L.mainloop(True, 2)
    st(a, 3)
    a("s_barrier")
    stx(a, 'q_e1')
    L.epilogue_Y('qk')
    a("s_branch L_q_done")
    a.label("L_q_vpath")
    L.addr_v()
    L.mainloop(False, 2)
    st(a, 3)
    a("s_barrier")
    stx(a, 'q_e1')
    L.epilogue_X()
    a.label("L_q_done")
    stx(a, 'q_epi')
    a(f"buffer_load_dword v{L.vSt+26}, v{L.vSt+27}, s[44:47], 0 offen sc1")
    a("s_waitcnt vmcnt(0)")
    stx(a, 'q_drain')
    a("s_barrier")
    stx(a, 'q_e2')
    a(f"s_cmp_eq_u32 s{sWV}, 0")
    a("s_cbranch_scc0 L_attn")
    dbg_flag_wait(a, L.vSt + 26, landed=True)
    a(f"s_add_u32 s40, s{L.sNt}, {C_QKV}")
    arrive(a, 40, 4)
    st(a, 4)
    a("s_branch L_attn")
    a.label("L_repack")
    l = a.newlabel("zc")
    a(f"""
    s_xor_b32 s40, s2, 225
    s_or_b32 s40, s40, s{sWV}
    s_cmp_eq_u32 s40, 0
    s_cbranch_scc0 {l}
    v_mov_b32 v4, 0
    v_mov_b32 v5, 0
    v_mov_b32 v6, 0
    v_mov_b32 v7, 0
    v_lshlrev_b32 v8, 4, v1
    s_mov_b32 s40, {WS_CNT}
    """)
    for j in range(SZ_CNT // 1024):
        a(f"buffer_store_dwordx4 v[4:7], v8, s[{sWS}:{sWS+3}], s40 offen {SC}")
        a("s_add_u32 s40, s40, 1024")
    make_srd(a, 8, pDBG, pDBG+1, 0, 256)
    a(f"""
    s_waitcnt vmcnt(0)
    v_mov_b32 v4, 1
    v_mov_b32 v5, 0
    s_mov_b64 exec, 1
    buffer_store_dword v4, v5, s[8:11], 0 offen sc1
    s_mov_b64 exec, -1
    """)
    a.label(l)
    make_srd(a, 44, pDBG, pDBG+1, 0, 256)
    a(f"v_lshlrev_b32 v71, 2, v1")
    a(f"v_mov_b32 v70, 0")
    a(f"""
    s_and_b32 s21, s2, 7
    s_lshr_b32 s21, s21, 1
    s_lshl_b32 s21, s21, 2
    s_lshr_b32 s22, s2, 3
    s_and_b32 s22, s22, 3
    s_add_u32 s21, s21, s22
    """)
    idle_rows(a, 21)
    a("s_waitcnt vmcnt(0)")
    a(f"buffer_load_dword v70, v71, s[44:47], 0 offen sc1")
    a("s_barrier")
    def st_arr():
        dbg_flag_wait(a, 70)
        a(f"s_add_u32 s76, s21, {C_ST}")
        arrive(a, 76, 64)
    wave_only(a, 0, st_arr)
    def regall():
        LANDED[0] = False
        reg_step1(a, 70); reg_step2(a, 70); reg_step3(a, 70); register_publish(a, 70)
    wave_only(a, 7, regall)
    l = a.newlabel("rpl")
    a(f"s_cmp_ge_u32 s{sWV}, 4")
    a(f"s_cbranch_scc0 {l}")
    RP2 = Repack(a)
    RP2.issue(defer=True)
    RP2.save()
    attn_pad_init(a, 4, 4)
    a.label(l)
    def fl():
        a(f"buffer_load_dword v70, v71, s[44:47], 0 offen sc1")
        dbg_flag_wait(a, 70)
    wave_only(a, 4, fl)
    a("s_barrier")
    a.label("L_attn")
    emit_attention(a, None)
    S = CoreS(a, 'oproj')
    lane_id(a, 1)
    S.map_tiles()
    a(f"""
    s_cmp_ge_u32 s{sWV}, 4
    s_cbranch_scc0 L_o_compute
    """)
    S.loader_setup()
    q = VmQ()
    for s_ in range(PD):
        S.issue_W(s_); q.push(f"W{s_}", 5)
    lw = a.newlabel("ow")
    a(f"s_cmp_eq_u32 s{sWV}, 4")
    a(f"s_cbranch_scc0 {lw}")
    a(f"s_add_u32 s40, s{sX}, {C_ATT}")
    poll_f(a, 40, 32, 8)
    a.label(lw)
    stx(a, 'o_poll')
    a("s_barrier")
    for s_ in range(PD):
        S.issue_A(s_); q.push(f"A{s_}", 4)
    S.loader_main(q)
    a("s_barrier")
    F1 = CoreL(a, 'ffn1', 'f')
    F1.map_tiles("L_o_ld_idle")
    F1.loader_setup()
    q = VmQ()
    a("s_barrier")
    for s_ in range(PD):
        F1.issue_W(s_); q.push(f"W{s_}", 4)
    a("s_branch L_f1_loader")
    a.label("L_o_ld_idle")
    a("s_barrier")
    a("s_branch L_f2_loader0")
    a.label("L_o_compute")
    lw = a.newlabel("oa")
    a(f"s_cmp_eq_u32 s{sWV}, 0")
    a(f"s_cbranch_scc0 {lw}")
    arrive_f(a, 76, sRk, 4)
    st(a, 8)
    a.label(lw)
    S.compute_setup()
    S.pretouch()
    S.residual_loads()
    a("s_barrier")
    st(a, 9)
    stx(a, 'o_X')
    S.mainloop(tag='o')
    stx(a, 'o_loop')
    S.reduce()
    stx(a, 'o_red')
    a("s_barrier")
    S.epilogue()
    stx(a, 'o_epi')
    a("s_waitcnt vmcnt(0)")
    stx(a, 'o_drain')
    a("s_barrier")
    stx(a, 'o_e2')
    lw = a.newlabel("oa2")
    a(f"s_cmp_eq_u32 s{sWV}, 0")
    a(f"s_cbranch_scc0 {lw}")
    a(f"s_lshr_b32 s40, s{S.sM0}, 7")
    a(f"s_add_u32 s40, s40, {C_OP}")
    a(f"s_lshr_b32 s41, s{S.sM0}, 6")
    a(f"s_and_b32 s41, s41, 1")
    a(f"s_lshl_b32 s41, s41, 3")
    a(f"s_add_u32 s41, s41, s{S.sNt}")
    arrive_f(a, 40, 41, 4)
    st(a, 10)
    a.label(lw)
    lane_id(a, 1)
    F1.map_tiles("L_f2_compute0")
    a("s_branch L_f1_compute")
    a.label("L_f1_loader")
    lw = a.newlabel("fw")
    a(f"s_cmp_eq_u32 s{sWV}, 4")
    a(f"s_cbranch_scc0 {lw}")
    a(f"s_lshr_b32 s40, s{F1.sM0}, 7")
    a(f"s_add_u32 s40, s40, {C_OP}")
    stx(a, 'f_p0')
    poll_f(a, 40, 16, 8)
    a.label(lw)
    stx(a, 'f_poll')
    a("s_barrier")
    for s_ in range(PD):
        F1.issue_A(s_); q.push(f"A{s_}", 4)
    F1.lstats_init()
    F1.loader_main(q)
    a("s_waitcnt lgkmcnt(0)")
    a("s_barrier")
    S2 = CoreS(a, 'ffn2')
    S2.map_tiles()
    S2.loader_setup()
    q = VmQ()
    a("s_barrier")
    if E('PFW2B'):
        for j in range(9):
            wave_only(a, 4 + (j % 4), lambda: w2p_prefetch(a, j))
    for s_ in range(PD):
        S2.issue_W(s_); q.push(f"W{s_}", 5)
    a("s_branch L_f2_loader")
    a.label("L_f2_loader0")
    if E('PFW2') or E('PFW2B'):
        for j in range(9):
            wave_only(a, 4 + (j % 4), lambda: w2p_prefetch(a, j))
    S2.map_tiles()
    S2.loader_setup()
    for s_ in range(PD):
        S2.issue_W(s_)
    a.label("L_f2_loader")
    lw = a.newlabel("gw")
    a(f"s_cmp_eq_u32 s{sWV}, 4")
    a(f"s_cbranch_scc0 {lw}")
    a(f"s_lshr_b32 s40, s{S2.sM0}, 7")
    a(f"s_add_u32 s40, s40, {C_F1}")
    poll_f(a, 40, 14, 8)
    a.label(lw)
    a("s_barrier")
    for s_ in range(PD):
        S2.issue_A(s_); q.push(f"A{s_}", 4)
    S2.loader_main(q)
    if common.STAMPS:
        stamp_flush(a, 0, sWV, base=SB, vt=90)
    a("s_endpgm")
    a.label("L_f1_compute")
    F1.compute_setup()
    F1.addr_f()
    a("s_barrier")
    st(a, 11)
    stx(a, 'f_X')
    F1.mainloop(True, tag='f')
    stx(a, 'f_loop')
    a("s_barrier")
    F1.epilogue_Y('ffn1')
    stx(a, 'f_epi')
    a("s_waitcnt vmcnt(0)")
    stx(a, 'f_drain')
    a("s_barrier")
    lw = a.newlabel("fa")
    a(f"s_cmp_eq_u32 s{sWV}, 0")
    a(f"s_cbranch_scc0 {lw}")
    a(f"s_lshr_b32 s40, s{F1.sM0}, 7")
    a(f"s_add_u32 s40, s40, {C_F1}")
    arrive_f(a, 40, F1.sNt, 4)
    st(a, 12)
    a.label(lw)
    lane_id(a, 1)
    a.label("L_f2_compute0")
    S2.map_tiles()
    S2.compute_setup()
    a("s_barrier")
    st(a, 13)
    stx(a, 'g_X')
    S2.residual_loads()
    S2.mainloop(tag='g')
    stx(a, 'g_loop')
    S2.reduce()
    stx(a, 'g_red')
    S2.epilogue()
    stx(a, 'g_epi')
    if common.STAMPS:
        a("s_waitcnt vmcnt(0)")
        st(a, 14); st_rt(a, 15)
        stamp_flush(a, 0, sWV, base=SB, vt=90)
        if E('DBGOUT'):
            l = a.newlabel("dbo")
            a(f"s_cmp_eq_u32 s2, 9")
            a(f"s_cbranch_scc0 {l}")
            a(f"s_cmp_eq_u32 s{sWV}, 0")
            a(f"s_cbranch_scc0 {l}")
            make_srd(a, 8, pDBG, pDBG+1, 0, 256)
            a("s_mov_b64 exec, 1")
            pairs = [(15, 0), (14, 1), (2, 1), (3, 1), (4, 1), (5, 1), (6, 1), (7, 1), (9, 1), (11, 1), (13, 1)]
            for k, (x, y) in enumerate(pairs):
                a(f"s_sub_u32 s40, s{SB+x}, s{SB+y}")
                a(f"v_mov_b32 v4, s40")
                a(f"v_mov_b32 v5, {16 + 4*k}")
                a(f"buffer_store_dword v4, v5, s[8:11], 0 offen")
            a("s_waitcnt vmcnt(0)")
            a.label(l)
    a.label("L_exit")
    a("s_endpgm")
    return kernel_header(NAME) + a.text() + kernel_desc(NAME, 256, 176, sgpr=102)
```

```python
from common import *
import common, os
E = os.environ.get

NAME = "sequential_preLN__softmax_full_mha__dense_activation_relu__prompt_kernel"
pX, pWQ, pWO, pW1, pW2, pOUT, pDBG, pWS = 84, 86, 88, 92, 94, 96, 98, 78
sWS = 80
sWV = 100
sPoll = 101
SB = 48
STAT = 145408
LDS_TOTAL = 149504
SC = "sc1"
sX, sRk, sLoc = 72, 73, 74
ROLE = LDS_TOTAL - 64
POLL_MAX = 1 << 22

FS = E('FS', '').split(',') if E('FS') else []
FS0 = int(E('FS0', '9'))
def st(a, i):
    if FS and (i >= FS0) and i != 15: return
    stamp(a, i, base=SB)
def st2(a, i): pass
def stx(a, tag):
    if tag in FS: stamp(a, FS0 + FS.index(tag), base=SB)
def st_rt(a, i): stamp_rt(a, i, base=SB)

def lane_id(a, v):
    a(f"v_mbcnt_lo_u32_b32 v{v}, -1, 0")
    a(f"v_mbcnt_hi_u32_b32 v{v}, -1, v{v}")

def arrive(a, sIdx, vt):
    a(f"""
    s_lshl_b32 s{sPoll}, s{sIdx}, 7
    s_add_u32 s{sPoll}, s{sPoll}, {WS_CNT}
    v_mov_b32 v{vt}, s{sPoll}
    v_mov_b32 v{vt+1}, 1
    s_mov_b64 exec, 1
    buffer_atomic_add v{vt+1}, v{vt}, s[{sWS}:{sWS+3}], 0 offen sc1
    s_mov_b64 exec, -1
    """)

def dual(a, instrs):
    l0, l1 = a.newlabel("slow"), a.newlabel("dd")
    a(f"s_cmp_eq_u32 s{sLoc}, 0")
    a(f"s_cbranch_scc1 {l0}")
    for i in instrs: a(i.replace("@SC", E('LOCFL', '') if 'store' in i else ''))
    a(f"s_branch {l1}")
    a.label(l0)
    for i in instrs: a(i.replace("@SC", "sc1"))
    a.label(l1)

def arrive_l(a, sIdx, vt):
    a(f"""
    s_lshl_b32 s{sPoll}, s{sIdx}, 7
    s_add_u32 s{sPoll}, s{sPoll}, {WS_CNT}
    v_mov_b32 v{vt}, s{sPoll}
    v_mov_b32 v{vt+1}, 1
    s_mov_b64 exec, 1
    """)
    dual(a, [f"buffer_atomic_add v{vt+1}, v{vt}, s[{sWS}:{sWS+3}], 0 offen @SC"])
    a("s_mov_b64 exec, -1")

def arrive_f(a, sIdx, sSlot, vt):
    a(f"""
    s_lshl_b32 s{sPoll}, s{sIdx}, 7
    s_add_u32 s{sPoll}, s{sPoll}, {WS_CNT}
    s_lshl_b32 s75, s{sSlot}, 2
    s_add_u32 s{sPoll}, s{sPoll}, s75
    v_mov_b32 v{vt}, s{sPoll}
    v_mov_b32 v{vt+1}, 1
    s_mov_b64 exec, 1
    """)
    dual(a, [f"buffer_store_dword v{vt+1}, v{vt}, s[{sWS}:{sWS+3}], 0 offen @SC"])
    a("s_mov_b64 exec, -1")

def poll_f(a, sIdx, n, vt):
    a(f"""
    s_lshl_b32 s{sPoll}, s{sIdx}, 7
    s_add_u32 s{sPoll}, s{sPoll}, {WS_CNT}
    v_lshlrev_b32 v{vt+1}, 2, v1
    v_add_u32 v{vt+1}, s{sPoll}, v{vt+1}
    v_mov_b32 v{vt+2}, 1
    """)
    poll(a, vt + 1, vt + 2, n, vt)

def poll(a, vOff, vTgt, nl, vt, slp=1):
    l0, l1 = a.newlabel("poll"), a.newlabel("pollok")
    a(f"s_mov_b64 exec, {(1 << nl) - 1:#x}")
    a(f"s_mov_b32 s{sPoll}, 0")
    a.label(l0)
    a(f"""
    buffer_load_dword v{vt}, v{vOff}, s[{sWS}:{sWS+3}], 0 offen sc1
    s_waitcnt vmcnt(0)
    v_cmp_gt_u32 vcc, v{vTgt}, v{vt}
    s_nop 4
    s_cmp_eq_u64 vcc, 0
    s_cbranch_scc1 {l1}
    s_add_u32 s{sPoll}, s{sPoll}, 1
    s_cmp_gt_u32 s{sPoll}, {POLL_MAX}
    s_cbranch_scc1 {l1}
    s_sleep {slp}
    s_branch {l0}
    """)
    a.label(l1)
    a("s_mov_b64 exec, -1")

def poll1(a, sIdx, target, vt):
    a(f"""
    s_lshl_b32 s{sPoll}, s{sIdx}, 7
    s_add_u32 s{sPoll}, s{sPoll}, {WS_CNT}
    v_mov_b32 v{vt+1}, s{sPoll}
    v_mov_b32 v{vt+2}, {target}
    """)
    poll(a, vt + 1, vt + 2, 1, vt)

def wave_sum(a, v):
    for sh in (1, 2, 4, 8):
        a(f"v_add_f32_dpp v{v}, v{v}, v{v} row_shr:{sh} row_mask:0xf bank_mask:0xf bound_ctrl:0")
        a("s_nop 1")
    a(f"v_add_f32_dpp v{v}, v{v}, v{v} row_bcast:15 row_mask:0xa bank_mask:0xf")
    a("s_nop 1")
    a(f"v_add_f32_dpp v{v}, v{v}, v{v} row_bcast:31 row_mask:0xc bank_mask:0xf")
    a("s_nop 1")

def p0_rows_issue(a, sXs, s0, vR, vA):
    a(f"""
    s_lshl_b32 s{s0}, s2, 3
    s_lshl_b32 s{s0+1}, s{sWV}, 1
    s_add_u32 s{s0}, s{s0}, s{s0+1}
    s_mul_i32 s{s0+2}, s{s0}, 1280
    v_lshlrev_b32 v{vA}, 4, v1
    v_lshlrev_b32 v{vA+1}, 2, v1
    s_add_u32 s{s0+3}, s{s0+2}, 1280
    buffer_load_dwordx4 {vr(vR,4)}, v{vA}, s[{sXs}:{sXs+3}], s{s0+2} offen
    buffer_load_dword v{vR+4}, v{vA+1}, s[{sXs}:{sXs+3}], s{s0+2} offen offset:1024
    buffer_load_dwordx4 {vr(vR+6,4)}, v{vA}, s[{sXs}:{sXs+3}], s{s0+3} offen
    buffer_load_dword v{vR+5}, v{vA+1}, s[{sXs}:{sXs+3}], s{s0+3} offen offset:1024
    """)
def p0_rows_finish(a, s0, vR, vA):
    for rr in range(2):
        regs = [vR + 6*rr + i for i in range(4)] + [vR + 4 + rr]
        S, Q, U = vA + 4, vA + 5, vA + 6
        for n, r in enumerate(regs):
            a(f"v_lshlrev_b32 v{U}, 16, v{r}")
            a(f"v_and_b32 v{U+1}, 0xffff0000, v{r}")
            if n == 0:
                a(f"v_add_f32 v{S}, v{U}, v{U+1}")
                a(f"v_mul_f32 v{Q}, v{U}, v{U}")
            else:
                a(f"v_add_f32 v{S}, v{S}, v{U}")
                a(f"v_add_f32 v{S}, v{S}, v{U+1}")
                a(f"v_fmac_f32 v{Q}, v{U}, v{U}")
            a(f"v_fmac_f32 v{Q}, v{U+1}, v{U+1}")
        a("s_nop 1")
        for sh in (1, 2, 4, 8):
            a(f"v_add_f32_dpp v{S}, v{S}, v{S} row_shr:{sh} row_mask:0xf bank_mask:0xf bound_ctrl:0")
            a(f"v_add_f32_dpp v{Q}, v{Q}, v{Q} row_shr:{sh} row_mask:0xf bank_mask:0xf bound_ctrl:0")
            a("s_nop 0")
        a(f"v_add_f32_dpp v{S}, v{S}, v{S} row_bcast:15 row_mask:0xa bank_mask:0xf")
        a(f"v_add_f32_dpp v{Q}, v{Q}, v{Q} row_bcast:15 row_mask:0xa bank_mask:0xf")
        a("s_nop 0")
        a(f"v_add_f32_dpp v{S}, v{S}, v{S} row_bcast:31 row_mask:0xc bank_mask:0xf")
        a(f"v_add_f32_dpp v{Q}, v{Q}, v{Q} row_bcast:31 row_mask:0xc bank_mask:0xf")
        a(f"""
        s_nop 0
        v_mul_f32 v{S}, {f32bits(1.0/640):#x}, v{S}
        v_mul_f32 v{Q}, {f32bits(1.0/640):#x}, v{Q}
        v_fma_f32 v{Q}, -v{S}, v{S}, v{Q}
        v_max_f32 v{Q}, 0, v{Q}
        v_add_f32 v{Q}, {f32bits(1e-5):#x}, v{Q}
        v_rsq_f32 v{Q}, v{Q}
        s_nop 0
        v_mov_b32 v{vA+8+2*rr}, v{S}
        v_mov_b32 v{vA+9+2*rr}, v{Q}
        """)
    a(f"""
    s_lshl_b32 s{s0+4}, s{s0}, 3
    s_add_u32 s{s0+4}, s{s0+4}, {WS_ST1}
    v_mov_b32 v{vA+4}, 0
    s_mov_b32 exec_lo, 0
    s_mov_b32 exec_hi, 0x80000000
    buffer_store_dwordx4 {vr(vA+8,4)}, v{vA+4}, s[{sWS}:{sWS+3}], s{s0+4} offen {SC}
    s_mov_b64 exec, -1
    """)
def colsum_issue(a, which, srd, sW4, s0, vC, vA):
    ld = 3840 if which == 'wq' else 3456
    a(f"""
    s_and_b32 s{s0+1}, s2, 7
    s_lshr_b32 s{s0+2}, s2, 3
    s_lshr_b32 s{s0+3}, s{s0+1}, 1
    s_lshl_b32 s{s0+3}, s{s0+3}, 5
    s_add_u32 s{s0+2}, s{s0+2}, s{s0+3}
    s_and_b32 s{s0+1}, s{s0+1}, 1
    s_and_b32 s{s0+3}, s{s0+2}, 15
    s_lshr_b32 s{s0+2}, s{s0+2}, 4
    v_lshrrev_b32 v{vA}, 3, v1
    v_and_b32 v{vA+1}, 7, v1
    v_lshlrev_b32 v{vA+1}, 2, v{vA+1}
    v_mul_u32_u24 v{vA+2}, {ld}, v{vA}
    v_add_u32 v{vA+2}, v{vA+2}, v{vA+1}
    s_lshl_b32 s{s0+4}, s{s0+3}, 6
    s_lshl_b32 s{s0+7}, s{sW4}, 4
    s_add_u32 s{s0+4}, s{s0+4}, s{s0+7}
    s_mul_i32 s{s0+5}, s{s0+1}, {1024 if which == 'wq' else 896}
    s_add_u32 s{s0+5}, s{s0+5}, s{s0+4}
    s_mul_i32 s{s0+7}, s{s0+2}, {80*ld}
    s_lshl_b32 s{s0+4}, s{s0+5}, 1
    s_add_u32 s{s0+7}, s{s0+7}, s{s0+4}
    """)
    for j in range(10):
        a(f"buffer_load_dword v{vC+j}, v{vA+2}, s[{srd}:{srd+3}], s{s0+7} offen")
        if j < 9: a(f"s_add_u32 s{s0+7}, s{s0+7}, {8*ld}")
def colsum_finish(a, which, s0, vC, vA):
    base, ncol = (WS_CS1, 1920) if which == 'wq' else (WS_CS2, 1792)
    A0, A1, U = vA + 4, vA + 5, vA + 6
    for j in range(10):
        if j == 0:
            a(f"v_lshlrev_b32 v{A0}, 16, v{vC}")
            a(f"v_and_b32 v{A1}, 0xffff0000, v{vC}")
        else:
            a(f"v_lshlrev_b32 v{U}, 16, v{vC+j}")
            a(f"v_and_b32 v{U+1}, 0xffff0000, v{vC+j}")
            a(f"v_add_f32 v{A0}, v{A0}, v{U}")
            a(f"v_add_f32 v{A1}, v{A1}, v{U+1}")
    a(f"""
    s_nop 1
    v_add_f32_dpp v{A0}, v{A0}, v{A0} row_ror:8 row_mask:0xf bank_mask:0xf
    v_add_f32_dpp v{A1}, v{A1}, v{A1} row_ror:8 row_mask:0xf bank_mask:0xf
    s_nop 1
    v_mov_b32 v{U}, v{A0}
    v_mov_b32 v{U+1}, v{A1}
    s_nop 1
    v_permlane16_swap_b32 v{A0}, v{U}
    v_permlane16_swap_b32 v{A1}, v{U+1}
    s_nop 1
    v_add_f32 v{A0}, v{A0}, v{U}
    v_add_f32 v{A1}, v{A1}, v{U+1}
    s_nop 0
    v_mov_b32 v{U}, v{A0}
    v_mov_b32 v{U+1}, v{A1}
    s_nop 1
    v_permlane32_swap_b32 v{A0}, v{U}
    v_permlane32_swap_b32 v{A1}, v{U+1}
    s_nop 1
    v_add_f32 v{vA+12}, v{A0}, v{U}
    v_add_f32 v{vA+13}, v{A1}, v{U+1}
    v_lshlrev_b32 v{U}, 3, v1
    s_mul_i32 s{s0+4}, s{s0+2}, {ncol*4}
    s_lshl_b32 s{s0+7}, s{s0+5}, 2
    s_add_u32 s{s0+4}, s{s0+4}, s{s0+7}
    s_add_u32 s{s0+4}, s{s0+4}, {base}
    """)
    lab = a.newlabel("p0skip")
    if which == 'wq':
        a(f"s_cmp_ge_u32 s{s0+5}, 1920")
    else:
        a(f"s_sub_u32 s{s0+7}, 14, s{s0+1}")
        a(f"s_cmp_ge_u32 s{s0+3}, s{s0+7}")
    a(f"s_cbranch_scc1 {lab}")
    a("s_mov_b64 exec, 0xff")
    a(f"buffer_store_dwordx2 {vr(vA+12,2)}, v{U}, s[{sWS}:{sWS+3}], s{s0+4} offen {SC}")
    a("s_mov_b64 exec, -1")
    a.label(lab)
def emit_p0(a):
    sXs, sWq, s0 = 8, 12, 40
    vR, vC, vA = 4, 14, 34
    make_srd(a, sXs, pX, pX+1, 0, 2048*1280)
    make_srd(a, sWq, pWQ, pWQ+1, 0, 640*3840)
    p0_rows_issue(a, sXs, s0, vR, vA)
    a(f"s_mov_b32 s39, s{s0}")
    colsum_issue(a, 'wq', sWq, sWV, s0, vC, vA + 12)
    a("s_waitcnt vmcnt(10)")
    a(f"s_mov_b32 s38, s{s0+4}")
    p0_rows_finish(a, 39, vR, vA) if False else None
    p0_rows_finish_b(a, 39, 38, vR, vA)
    a("s_waitcnt vmcnt(1)")
    colsum_finish(a, 'wq', s0, vC, vA + 12)
def p0_rows_finish_b(a, sRow, sTmp, vR, vA):
    import io
    class Tmp: pass
    for rr in range(2):
        regs = [vR + 6*rr + i for i in range(4)] + [vR + 4 + rr]
        S, Q, U = vA + 4, vA + 5, vA + 6
        for n, r in enumerate(regs):
            a(f"v_lshlrev_b32 v{U}, 16, v{r}")
            a(f"v_and_b32 v{U+1}, 0xffff0000, v{r}")
            if n == 0:
                a(f"v_add_f32 v{S}, v{U}, v{U+1}")
                a(f"v_mul_f32 v{Q}, v{U}, v{U}")
            else:
                a(f"v_add_f32 v{S}, v{S}, v{U}")
                a(f"v_add_f32 v{S}, v{S}, v{U+1}")
                a(f"v_fmac_f32 v{Q}, v{U}, v{U}")
            a(f"v_fmac_f32 v{Q}, v{U+1}, v{U+1}")
        a("s_nop 1")
        for sh in (1, 2, 4, 8):
            a(f"v_add_f32_dpp v{S}, v{S}, v{S} row_shr:{sh} row_mask:0xf bank_mask:0xf bound_ctrl:0")
            a(f"v_add_f32_dpp v{Q}, v{Q}, v{Q} row_shr:{sh} row_mask:0xf bank_mask:0xf bound_ctrl:0")
            a("s_nop 0")
        a(f"v_add_f32_dpp v{S}, v{S}, v{S} row_bcast:15 row_mask:0xa bank_mask:0xf")
        a(f"v_add_f32_dpp v{Q}, v{Q}, v{Q} row_bcast:15 row_mask:0xa bank_mask:0xf")
        a("s_nop 0")
        a(f"v_add_f32_dpp v{S}, v{S}, v{S} row_bcast:31 row_mask:0xc bank_mask:0xf")
        a(f"v_add_f32_dpp v{Q}, v{Q}, v{Q} row_bcast:31 row_mask:0xc bank_mask:0xf")
        a(f"""
        s_nop 0
        v_mul_f32 v{S}, {f32bits(1.0/640):#x}, v{S}
        v_mul_f32 v{Q}, {f32bits(1.0/640):#x}, v{Q}
        v_fma_f32 v{Q}, -v{S}, v{S}, v{Q}
        v_max_f32 v{Q}, 0, v{Q}
        v_add_f32 v{Q}, {f32bits(1e-5):#x}, v{Q}
        v_rsq_f32 v{Q}, v{Q}
        s_nop 0
        v_mov_b32 v{vA+8+2*rr}, v{S}
        v_mov_b32 v{vA+9+2*rr}, v{Q}
        """)
    a(f"""
    s_lshl_b32 s{sTmp}, s{sRow}, 3
    s_add_u32 s{sTmp}, s{sTmp}, {WS_ST1}
    v_mov_b32 v{vA+4}, 0
    s_mov_b32 exec_lo, 0
    s_mov_b32 exec_hi, 0x80000000
    buffer_store_dwordx4 {vr(vA+8,4)}, v{vA+4}, s[{sWS}:{sWS+3}], s{sTmp} offen {SC}
    s_mov_b64 exec, -1
    """)
def dbg_flag_issue(a, vt):
    make_srd(a, 44, pDBG, pDBG+1, 0, 256)
    a(f"v_mov_b32 v{vt+1}, 0")
    a(f"buffer_load_dword v{vt}, v{vt+1}, s[44:47], 0 offen sc1")
def dbg_flag_issue_b(a, vt):
    make_srd(a, 16, pDBG, pDBG+1, 0, 256)
    a(f"v_mov_b32 v{vt+1}, 0")
    a(f"buffer_load_dword v{vt}, v{vt+1}, s[16:19], 0 offen sc1")
def dbg_flag_wait(a, vt, srd=44, landed=False):
    l0, l1, l2 = a.newlabel("dbgp"), a.newlabel("dbgok"), a.newlabel("dbgc")
    a(f"s_mov_b32 s{sPoll}, 0")
    if landed: a(f"s_branch {l2}")
    a.label(l0)
    a("s_waitcnt vmcnt(0)")
    a.label(l2)
    a(f"""
    v_readfirstlane_b32 s75, v{vt}
    s_cmp_lg_u32 s75, 0
    s_cbranch_scc1 {l1}
    s_add_u32 s{sPoll}, s{sPoll}, 1
    s_cmp_gt_u32 s{sPoll}, {POLL_MAX}
    s_cbranch_scc1 {l1}
    s_sleep 1
    buffer_load_dword v{vt}, v{vt+1}, s[{srd}:{srd+3}], 0 offen sc1
    s_branch {l0}
    """)
    a.label(l1)
def dbg_flag_wait_arrive_b(a, cbase, vt):
    dbg_flag_wait_arrive(a, cbase, vt, 16)
def dbg_flag_wait_arrive(a, cbase, vt, srd=44):
    l0, l1 = a.newlabel("dbgp"), a.newlabel("dbgok")
    a(f"s_mov_b32 s{sPoll}, 0")
    a.label(l0)
    a(f"""
    s_waitcnt vmcnt(0)
    v_readfirstlane_b32 s75, v{vt}
    s_cmp_lg_u32 s75, 0
    s_cbranch_scc1 {l1}
    s_add_u32 s{sPoll}, s{sPoll}, 1
    s_cmp_gt_u32 s{sPoll}, {POLL_MAX}
    s_cbranch_scc1 {l1}
    s_sleep 1
    buffer_load_dword v{vt}, v{vt+1}, s[{srd}:{srd+3}], 0 offen sc1
    s_branch {l0}
    """)
    a.label(l1)
    a(f"s_and_b32 s75, s2, 7")
    a(f"s_add_u32 s75, s75, {cbase}")
    arrive(a, 75, vt)

class P0Q:
    vR, vC, vD, vA = 64, 84, 94, 104
    def __init__(self, a, L):
        self.a, self.L = a, L
    def issue(self):
        a, L = self.a, self.L
        vR, vC, vD, vA = self.vR, self.vC, self.vD, self.vA
        sXs, sWq = L.sA, L.sW
        sW1 = 16
        make_srd(a, sW1, pW1, pW1+1, 0, 640*3456)
        a(f"""
        v_lshrrev_b32 v2, 4, v1
        v_and_b32 v3, 15, v1
        s_lshl_b32 s40, s{L.sNt}, 4
        s_add_u32 s40, s40, s{L.sM0}
        s_lshl_b32 s41, s{L.sLw}, 2
        s_add_u32 s40, s40, s41
        s_cmp_lt_u32 s{L.sNt}, 8
        s_cselect_b32 s40, s40, 4096
        v_add_u32 v{vA}, s40, v2
        v_mul_u32_u24 v{vA+1}, 1280, v{vA}
        v_lshlrev_b32 v{vA+2}, 4, v3
        v_add_u32 v{vA+1}, v{vA+1}, v{vA+2}
        """)
        for j in range(5):
            a(f"buffer_load_dwordx4 {vr(vR+4*j,4)}, v{vA+1}, s[{sXs}:{sXs+3}], 0 offen offset:{256*j}")
        a(f"""
        s_lshr_b32 s41, s{L.sM0}, 7
        s_mul_i32 s42, s41, {40*3840}
        s_lshl_b32 s43, s{L.sLw}, 5
        s_add_u32 s43, s43, s{L.sN0}
        s_lshl_b32 s40, s43, 1
        s_add_u32 s42, s42, s40
        v_mul_u32_u24 v{vA+2}, 3840, v2
        v_lshlrev_b32 v{vA+3}, 2, v3
        v_add_u32 v{vA+2}, v{vA+2}, v{vA+3}
        """)
        for j in range(10):
            a(f"buffer_load_dword v{vC+j}, v{vA+2}, s[{sWq}:{sWq+3}], s42 offen")
            if j < 9: a(f"s_add_u32 s42, s42, {4*3840}")
        a(f"""
        s_mul_i32 s42, s41, {40*3456}
        s_add_u32 s42, s42, s40
        s_cmp_lt_u32 s{L.sNt}, 14
        s_cselect_b32 s42, s42, 0x7f000000
        v_mul_u32_u24 v{vA+4}, 3456, v2
        v_add_u32 v{vA+4}, v{vA+4}, v{vA+3}
        """)
        for j in range(10):
            a(f"buffer_load_dword v{vD+j}, v{vA+4}, s[{sW1}:{sW1+3}], s42 offen")
            if j < 9: a(f"s_add_u32 s42, s42, {4*3456}")
    def rows(self):
        a, L = self.a, self.L
        vR, vA = self.vR, self.vA
        S, Q, U = vA + 5, vA + 6, vA + 8
        for n in range(20):
            r = vR + n
            u = U + 2*(n & 1)
            a(f"v_lshlrev_b32 v{u}, 16, v{r}")
            a(f"v_and_b32 v{u+1}, 0xffff0000, v{r}")
            if n == 0:
                a(f"v_add_f32 v{S}, v{u}, v{u+1}")
                a(f"v_mul_f32 v{Q}, v{u}, v{u}")
            else:
                a(f"v_add_f32 v{S}, v{S}, v{u}")
                a(f"v_fmac_f32 v{Q}, v{u}, v{u}")
                a(f"v_add_f32 v{S}, v{S}, v{u+1}")
            a(f"v_fmac_f32 v{Q}, v{u+1}, v{u+1}")
        a("s_nop 1")
        for sh in (1, 2, 4, 8):
            a(f"v_add_f32_dpp v{S}, v{S}, v{S} row_shr:{sh} row_mask:0xf bank_mask:0xf bound_ctrl:0")
            a(f"v_add_f32_dpp v{Q}, v{Q}, v{Q} row_shr:{sh} row_mask:0xf bank_mask:0xf bound_ctrl:0")
            a("s_nop 0")
        a(f"""
        v_mul_f32 v{S}, {f32bits(1.0/640):#x}, v{S}
        v_mul_f32 v{Q}, {f32bits(1.0/640):#x}, v{Q}
        v_fma_f32 v{Q}, -v{S}, v{S}, v{Q}
        v_max_f32 v{Q}, 0, v{Q}
        v_add_f32 v{Q}, {f32bits(1e-5):#x}, v{Q}
        v_rsq_f32 v{Q}, v{Q}
        v_mov_b32 v{U}, v{S}
        v_lshlrev_b32 v{U+2}, 3, v{vA}
        v_mov_b32 v{U+3}, 0x7fffff00
        v_cmp_gt_u32 vcc, 2048, v{vA}
        v_mov_b32 v{U+1}, v{Q}
        v_cndmask_b32 v{U+2}, v{U+3}, v{U+2}, vcc
        s_mov_b32 s40, {WS_ST1}
        s_mov_b32 exec_lo, 0x80008000
        s_mov_b32 exec_hi, 0x80008000
        buffer_store_dwordx2 {vr(U,2)}, v{U+2}, s[{sWS}:{sWS+3}], s40 offen {SC}
        s_mov_b64 exec, -1
        """)
    def cols(self, which):
        a, L = self.a, self.L
        vA = self.vA
        regs, base, ncol, lim = (self.vC, WS_CS1, 1920, 15) if which == 0 else (self.vD, WS_CS2, 1792, 14)
        U = vA + 8
        A0, A1 = vA + 5, vA + 6
        for j in range(10):
            u = U + 2*(j & 1)
            if j == 0:
                a(f"v_lshlrev_b32 v{A0}, 16, v{regs}")
                a(f"v_and_b32 v{A1}, 0xffff0000, v{regs}")
            else:
                a(f"v_lshlrev_b32 v{u}, 16, v{regs+j}")
                a(f"v_and_b32 v{u+1}, 0xffff0000, v{regs+j}")
                a(f"v_add_f32 v{A0}, v{A0}, v{u}")
                a(f"v_add_f32 v{A1}, v{A1}, v{u+1}")
        a(f"""
        s_nop 0
        v_mov_b32 v{U}, v{A0}
        v_mov_b32 v{U+1}, v{A1}
        s_nop 1
        v_permlane16_swap_b32 v{A0}, v{U}
        v_permlane16_swap_b32 v{A1}, v{U+1}
        s_nop 1
        v_add_f32 v{A0}, v{A0}, v{U}
        v_add_f32 v{A1}, v{A1}, v{U+1}
        s_nop 0
        v_mov_b32 v{U}, v{A0}
        v_mov_b32 v{U+1}, v{A1}
        s_nop 1
        v_permlane32_swap_b32 v{A0}, v{U}
        v_permlane32_swap_b32 v{A1}, v{U+1}
        s_nop 1
        v_add_f32 v{U+4}, v{A0}, v{U}
        v_add_f32 v{U+5}, v{A1}, v{U+1}
        v_lshlrev_b32 v{U}, 3, v3
        s_mul_i32 s42, s41, {ncol*4}
        s_lshl_b32 s40, s43, 2
        s_add_u32 s42, s42, s40
        s_add_u32 s42, s42, {base}
        s_cmp_lt_u32 s{L.sNt}, {lim}
        s_cselect_b32 s42, s42, 0x7f000000
        s_mov_b64 exec, 0xffff
        buffer_store_dwordx2 {vr(U+4,2)}, v{U}, s[{sWS}:{sWS+3}], s42 offen {SC}
        s_mov_b64 exec, -1
        s_nop 1
        """)
def emit_p0r(a, L):
    sXs, vR, vA = 8, 146, 132
    make_srd(a, sXs, pX, pX+1, 0, 2048*1280)
    a(f"""
    v_lshrrev_b32 v166, 4, v1
    v_and_b32 v167, 15, v1
    s_lshl_b32 s75, s{L.sNt}, 4
    s_add_u32 s75, s75, s{L.sM0}
    s_lshl_b32 s76, s{sWV}, 2
    s_add_u32 s75, s75, s76
    s_cmp_lt_u32 s{L.sNt}, 8
    s_cselect_b32 s75, s75, 4096
    v_add_u32 v{vA}, s75, v166
    v_mul_u32_u24 v{vA+1}, 1280, v{vA}
    v_lshlrev_b32 v{vA+2}, 4, v167
    v_add_u32 v{vA+1}, v{vA+1}, v{vA+2}
    """)
    for j in range(5):
        a(f"buffer_load_dwordx4 {vr(vR+4*j,4)}, v{vA+1}, s[{sXs}:{sXs+3}], 0 offen offset:{256*j}")
def emit_p0r_finish(a, L, extra=0):
    vR, vA = 146, 132
    S, Q, S2, Q2, U = vA + 4, vA + 5, vA + 6, vA + 7, vA + 8
    for j in range(5):
        a(f"s_waitcnt vmcnt({4 - j + extra})")
        for n in range(4):
            r = vR + 4*j + n
            u = U + 2*(n & 1)
            a(f"v_lshlrev_b32 v{u}, 16, v{r}")
            a(f"v_and_b32 v{u+1}, 0xffff0000, v{r}")
            if j == 0 and n == 0:
                a(f"v_mov_b32 v{S}, v{u}")
                a(f"v_mul_f32 v{Q}, v{u}, v{u}")
                a(f"v_mov_b32 v{S2}, v{u+1}")
                a(f"v_mul_f32 v{Q2}, v{u+1}, v{u+1}")
            else:
                a(f"v_add_f32 v{S}, v{S}, v{u}")
                a(f"v_fmac_f32 v{Q}, v{u}, v{u}")
                a(f"v_add_f32 v{S2}, v{S2}, v{u+1}")
                a(f"v_fmac_f32 v{Q2}, v{u+1}, v{u+1}")
    a(f"v_add_f32 v{S}, v{S}, v{S2}")
    a(f"v_add_f32 v{Q}, v{Q}, v{Q2}")
    a("s_nop 1")
    for sh in (1, 2, 4, 8):
        a(f"v_add_f32_dpp v{S}, v{S}, v{S} row_shr:{sh} row_mask:0xf bank_mask:0xf bound_ctrl:0")
        a(f"v_add_f32_dpp v{Q}, v{Q}, v{Q} row_shr:{sh} row_mask:0xf bank_mask:0xf bound_ctrl:0")
        a("s_nop 0")
    a(f"""
    v_mul_f32 v{S}, {f32bits(1.0/640):#x}, v{S}
    v_mul_f32 v{Q}, {f32bits(1.0/640):#x}, v{Q}
    v_fma_f32 v{Q}, -v{S}, v{S}, v{Q}
    v_max_f32 v{Q}, 0, v{Q}
    v_add_f32 v{Q}, {f32bits(1e-5):#x}, v{Q}
    v_rsq_f32 v{Q}, v{Q}
    v_mov_b32 v{U}, v{S}
    v_lshlrev_b32 v{U+2}, 3, v{vA}
    v_mov_b32 v{U+3}, 0x7fffff00
    v_cmp_gt_u32 vcc, 2048, v{vA}
    v_mov_b32 v{U+1}, v{Q}
    v_cndmask_b32 v{U+2}, v{U+3}, v{U+2}, vcc
    s_mov_b32 s75, {WS_ST1}
    s_mov_b32 exec_lo, 0x80008000
    s_mov_b32 exec_hi, 0x80008000
    buffer_store_dwordx2 {vr(U,2)}, v{U+2}, s[{sWS}:{sWS+3}], s75 offen {SC}
    s_mov_b64 exec, -1
    """)
def idle_rows(a, sMt, hook=None):
    sXs, vR, vA = 8, 72, 4
    NP = 2 if E('P0L') else 4
    make_srd(a, sXs, pX, pX+1, 0, 2048*1280)
    a(f"""
    v_lshrrev_b32 v2, 4, v1
    v_and_b32 v3, 15, v1
    s_lshl_b32 s40, s{sMt}, 7
    s_lshl_b32 s41, s{sWV}, {3 if E('P0L') else 4}
    s_add_u32 s40, s40, s41
    v_add_u32 v{vA}, s40, v2
    v_mul_u32_u24 v{vA+1}, 1280, v{vA}
    v_lshlrev_b32 v{vA+2}, 4, v3
    v_add_u32 v{vA+1}, v{vA+1}, v{vA+2}
    """)
    for p in range(NP):
        a(f"s_mov_b32 s41, {p * 4 * 1280}")
        for j in range(5):
            a(f"buffer_load_dwordx4 {vr(vR + 20*p + 4*j, 4)}, v{vA+1}, s[{sXs}:{sXs+3}], s41 offen offset:{256*j}")
    S, Q, S2, Q2, U = vA + 4, vA + 5, vA + 6, vA + 7, vA + 8
    if hook: hook(-1)
    for p in range(NP):
        if hook and p > 0: hook(p - 1)
        a(f"s_waitcnt vmcnt({(NP - 1 - p) * 5 + p})")
        for n in range(20):
            r = vR + 20*p + n
            u = U + 2*(n & 1)
            a(f"v_lshlrev_b32 v{u}, 16, v{r}")
            a(f"v_and_b32 v{u+1}, 0xffff0000, v{r}")
            if n == 0:
                a(f"v_mov_b32 v{S}, v{u}")
                a(f"v_mul_f32 v{Q}, v{u}, v{u}")
                a(f"v_mov_b32 v{S2}, v{u+1}")
                a(f"v_mul_f32 v{Q2}, v{u+1}, v{u+1}")
            else:
                a(f"v_add_f32 v{S}, v{S}, v{u}")
                a(f"v_fmac_f32 v{Q}, v{u}, v{u}")
                a(f"v_add_f32 v{S2}, v{S2}, v{u+1}")
                a(f"v_fmac_f32 v{Q2}, v{u+1}, v{u+1}")
        a(f"v_add_f32 v{S}, v{S}, v{S2}")
        a(f"v_add_f32 v{Q}, v{Q}, v{Q2}")
        a("s_nop 1")
        for sh in (1, 2, 4, 8):
            a(f"v_add_f32_dpp v{S}, v{S}, v{S} row_shr:{sh} row_mask:0xf bank_mask:0xf bound_ctrl:0")
            a(f"v_add_f32_dpp v{Q}, v{Q}, v{Q} row_shr:{sh} row_mask:0xf bank_mask:0xf bound_ctrl:0")
            a("s_nop 0")
        a(f"""
        v_mul_f32 v{S}, {f32bits(1.0/640):#x}, v{S}
        v_mul_f32 v{Q}, {f32bits(1.0/640):#x}, v{Q}
        v_fma_f32 v{Q}, -v{S}, v{S}, v{Q}
        v_max_f32 v{Q}, 0, v{Q}
        v_add_f32 v{Q}, {f32bits(1e-5):#x}, v{Q}
        v_rsq_f32 v{Q}, v{Q}
        v_mov_b32 v{U+4}, v{S}
        v_add_u32 v{U+2}, {4*p}, v{vA}
        v_lshlrev_b32 v{U+2}, 3, v{U+2}
        v_mov_b32 v{U+5}, v{Q}
        s_mov_b32 s41, {WS_ST1}
        s_mov_b32 exec_lo, 0x80008000
        s_mov_b32 exec_hi, 0x80008000
        buffer_store_dwordx2 {vr(U+4,2)}, v{U+2}, s[{sWS}:{sWS+3}], s41 offen {SC}
        s_mov_b64 exec, -1
        s_nop 1
        """)

class P0L:
    vR, vA = 116, 136
    def __init__(self, a, L): self.a, self.L = a, L
    def issue(self):
        a, L = self.a, self.L
        vR, vA = self.vR, self.vA
        a(f"""
        v_lshrrev_b32 v{vA+2}, 4, v1
        v_and_b32 v{vA+3}, 15, v1
        s_lshl_b32 s75, s{L.sNt}, 4
        s_add_u32 s75, s75, s{L.sM0}
        s_add_u32 s75, s75, 64
        s_lshl_b32 s76, s{L.sLw}, 2
        s_add_u32 s75, s75, s76
        s_cmp_lt_u32 s{L.sNt}, 4
        s_cselect_b32 s75, s75, 4096
        v_add_u32 v{vA}, s75, v{vA+2}
        v_mul_u32_u24 v{vA+1}, 1280, v{vA}
        v_lshlrev_b32 v{vA+3}, 4, v{vA+3}
        v_add_u32 v{vA+1}, v{vA+1}, v{vA+3}
        """)
        for j in range(5):
            a(f"buffer_load_dwordx4 {vr(vR+4*j,4)}, v{vA+1}, s[{L.sA}:{L.sA+3}], 0 offen offset:{256*j}")
    def finish(self):
        a = self.a
        vR, vA = self.vR, self.vA
        S, Q, S2, Q2, U = vA + 4, vA + 5, vA + 6, vA + 7, vA + 8
        for n in range(20):
            r = vR + n
            u = U + 2*(n & 1)
            a(f"v_lshlrev_b32 v{u}, 16, v{r}")
            a(f"v_and_b32 v{u+1}, 0xffff0000, v{r}")
            if n == 0:
                a(f"v_mov_b32 v{S}, v{u}")
                a(f"v_mul_f32 v{Q}, v{u}, v{u}")
                a(f"v_mov_b32 v{S2}, v{u+1}")
                a(f"v_mul_f32 v{Q2}, v{u+1}, v{u+1}")
            else:
                a(f"v_add_f32 v{S}, v{S}, v{u}")
                a(f"v_fmac_f32 v{Q}, v{u}, v{u}")
                a(f"v_add_f32 v{S2}, v{S2}, v{u+1}")
                a(f"v_fmac_f32 v{Q2}, v{u+1}, v{u+1}")
        a(f"v_add_f32 v{S}, v{S}, v{S2}")
        a(f"v_add_f32 v{Q}, v{Q}, v{Q2}")
        a("s_nop 1")
        for sh in (1, 2, 4, 8):
            a(f"v_add_f32_dpp v{S}, v{S}, v{S} row_shr:{sh} row_mask:0xf bank_mask:0xf bound_ctrl:0")
            a(f"v_add_f32_dpp v{Q}, v{Q}, v{Q} row_shr:{sh} row_mask:0xf bank_mask:0xf bound_ctrl:0")
            a("s_nop 0")
        a(f"""
        v_mul_f32 v{S}, {f32bits(1.0/640):#x}, v{S}
        v_mul_f32 v{Q}, {f32bits(1.0/640):#x}, v{Q}
        v_fma_f32 v{Q}, -v{S}, v{S}, v{Q}
        v_max_f32 v{Q}, 0, v{Q}
        v_add_f32 v{Q}, {f32bits(1e-5):#x}, v{Q}
        v_rsq_f32 v{Q}, v{Q}
        v_mov_b32 v{U}, v{S}
        v_lshlrev_b32 v{U+2}, 3, v{vA}
        v_mov_b32 v{U+3}, 0x7fffff00
        v_cmp_gt_u32 vcc, 2048, v{vA}
        v_mov_b32 v{U+1}, v{Q}
        v_cndmask_b32 v{U+2}, v{U+3}, v{U+2}, vcc
        s_mov_b32 s75, {WS_ST1}
        s_mov_b32 exec_lo, 0x80008000
        s_mov_b32 exec_hi, 0x80008000
        buffer_store_dwordx2 {vr(U,2)}, v{U+2}, s[{sWS}:{sWS+3}], s75 offen {SC}
        s_mov_b64 exec, -1
        """)

def p0r_arrive(a, L, vt):
    ok, skip = a.newlabel("fok"), a.newlabel("fsk")
    dbg_flag_wait(a, vt, landed=True)
    a(f"s_cmp_lt_u32 s{L.sNt}, 4")
    a(f"s_cbranch_scc0 {skip}")
    a(f"s_lshr_b32 s76, s{L.sM0}, 7")
    a(f"s_add_u32 s76, s76, {C_ST}")
    arrive(a, 76, vt - 2)
    a.label(skip)

def qkv_prefetch(a, L):
    make_srd(a, 12, pWQ, pWQ+1, 0, 640*3840)
    make_srd(a, 8, pX, pX+1, 0, 2048*1280)
    fl = E('QPF_FL', 'sc1')
    a(f"""
    s_lshr_b32 s40, s2, 3
    s_and_b32 s41, s2, 1
    v_and_b32 v2, 15, v1
    v_lshrrev_b32 v3, 4, v1
    v_lshlrev_b32 v2, 7, v2
    v_mul_u32_u24 v3, 3840, v3
    v_add_u32 v4, v2, v3
    s_mul_i32 s42, s40, {20*3840}
    s_lshl_b32 s43, s41, 11
    s_add_u32 s42, s42, s43
    s_mul_i32 s43, s{sWV}, {4*3840}
    s_add_u32 s42, s42, s43
    buffer_load_dword v162, v4, s[12:15], s42 offen {fl}
    """)
    l = a.newlabel("qpf")
    a(f"""
    s_cmp_eq_u32 s{sWV}, 0
    s_cbranch_scc0 {l}
    s_add_u32 s42, s42, {16*3840}
    buffer_load_dword v162, v4, s[12:15], s42 offen {fl}
    """)
    a.label(l)
    l = a.newlabel("qpf")
    a(f"""
    s_cmp_eq_u32 s{sWV}, 0
    s_cbranch_scc1 {l}
    s_and_b32 s41, s2, 7
    s_lshr_b32 s41, s41, 1
    s_lshl_b32 s41, s41, 5
    s_add_u32 s41, s41, s40
    s_mul_i32 s42, s41, 20480
    s_sub_u32 s43, s{sWV}, 1
    s_lshl_b32 s43, s43, 13
    s_add_u32 s42, s42, s43
    v_lshlrev_b32 v4, 7, v1
    buffer_load_dword v162, v4, s[8:11], s42 offen {fl}
    """)
    a.label(l)

def p0q_arrive(a, L, vt):
    ok = a.newlabel("fok")
    a(f"v_readfirstlane_b32 s75, v{vt}")
    a("s_cmp_lg_u32 s75, 0")
    a(f"s_cbranch_scc1 {ok}")
    dbg_flag_wait(a, vt)
    a.label(ok)
    a(f"""
    s_lshr_b32 s75, s{L.sM0}, 7
    s_add_u32 s75, s75, {C_ST}
    s_add_u32 s76, s{L.sNt}, {C_CS1}
    s_add_u32 s77, s{L.sNt}, {C_CS2}
    v_mov_b32 v{vt-1}, s75
    v_writelane_b32 v{vt-1}, s76, 1
    v_writelane_b32 v{vt-1}, s77, 2
    s_nop 0
    v_lshlrev_b32 v{vt-1}, 7, v{vt-1}
    v_add_u32 v{vt-1}, {WS_CNT}, v{vt-1}
    v_mov_b32 v{vt-2}, 1
    s_cmp_lt_u32 s{L.sNt}, 8
    s_cselect_b32 s75, 1, 0
    s_or_b32 s75, s75, 2
    s_cmp_lt_u32 s{L.sNt}, 14
    s_cselect_b32 s76, 4, 0
    s_or_b32 s75, s75, s76
    s_mov_b32 exec_lo, s75
    s_mov_b32 exec_hi, 0
    buffer_atomic_add v{vt-2}, v{vt-1}, s[{sWS}:{sWS+3}], 0 offen sc1
    s_mov_b64 exec, -1
    """)

def w2p_prefetch(a, j):
    a(f"""
    s_mul_i32 s75, s{sRk}, {SZ_W2P // 32}
    s_add_u32 s75, s75, {WS_W2P + j * 8192}
    v_lshlrev_b32 v61, 7, v1
    buffer_load_dword v60, v61, s[{sWS}:{sWS+3}], s75 offen sc1
    """)

def w2_first_prefetch(a, c):
    NST = 14
    a(f"""
    s_and_b32 s75, s{sRk}, 3
    s_mul_i32 s75, s75, 3
    s_lshr_b32 s76, s{sRk}, 2
    s_lshl_b32 s77, s76, 1
    s_add_u32 s75, s75, s77
    s_cmp_ge_u32 s75, {NST}
    s_cselect_b32 s77, {NST}, 0
    s_sub_u32 s75, s75, s77
    s_cmp_ge_u32 s75, {NST}
    s_cselect_b32 s77, {NST}, 0
    s_sub_u32 s75, s75, s77
    s_mul_i32 s76, s76, {NST * 20480}
    s_add_u32 s76, s76, {WS_W2P}
    s_mul_i32 s77, s{c.sLw}, 5120
    s_add_u32 s76, s76, s77
    s_mul_i32 s77, s75, 20480
    s_add_u32 s77, s77, s76
    v_lshlrev_b32 v61, 7, v1
    s_mov_b32 exec_lo, -1
    s_mov_b32 exec_hi, 0xff
    buffer_load_dword v60, v61, s[{sWS}:{sWS+3}], s77 offen sc1
    s_add_u32 s75, s75, 1
    s_cmp_eq_u32 s75, {NST}
    s_cselect_b32 s75, 0, s75
    s_mul_i32 s77, s75, 20480
    s_add_u32 s77, s77, s76
    buffer_load_dword v60, v61, s[{sWS}:{sWS+3}], s77 offen sc1
    s_mov_b64 exec, -1
    """)
    if not E('NOTLB4'):
        def t4():
            a("v_lshlrev_b32 v61, 21, v1")
            a("s_mov_b64 exec, 3")
            make_srd(a, 44, pOUT, pOUT+1, 0, 2048*1280)
            a("buffer_load_dword v60, v61, s[44:47], 0 offen sc1")
            a("s_mov_b64 exec, 0xfff")
            a(f"buffer_load_dword v60, v61, s[{sWS}:{sWS+3}], 0 offen sc1")
            a("s_mov_b64 exec, -1")
        wave_only(a, 7, t4)

class Repack:
    aB, vD, vT = 28, 110, 88
    sWo, sW2, sW1 = 12, 16, 40
    def __init__(self, a): self.a = a
    def issue(self, defer=False):
        a = self.a
        aB, vD, T = self.aB, self.vD, self.vT
        a(f"""
        s_mul_i32 s75, s2, 768
        s_sub_u32 s76, s{sWV}, 4
        s_lshl_b32 s76, s76, 6
        s_add_u32 s75, s75, s76
        v_add_u32 v{T}, s75, v1
        """)
        for r in range(3):
            g, it, sg, rho, c, row, nt, st_, x = T+1, T+2, T+3, T+4, T+5, T+6, T+7, T+8, T+9
            a(f"""
            v_add_u32 v{g}, {256*r}, v{T}
            s_mov_b32 s75, {(1 << 32) // 1280 + 1:#x}
            v_mul_hi_u32 v{it}, v{g}, s75
            v_mul_u32_u24 v{sg}, 1280, v{it}
            v_sub_u32 v{sg}, v{g}, v{sg}
            v_mul_u32_u24 v{rho}, 0xcccd, v{sg}
            v_lshrrev_b32 v{rho}, 19, v{rho}
            v_mul_u32_u24 v{c}, 10, v{rho}
            v_sub_u32 v{c}, v{sg}, v{c}
            v_and_b32 v{row}, 0x73, v{rho}
            v_and_b32 v{x}, 4, v{rho}
            v_lshlrev_b32 v{x}, 1, v{x}
            v_or_b32 v{row}, v{row}, v{x}
            v_and_b32 v{x}, 8, v{rho}
            v_lshrrev_b32 v{x}, 1, v{x}
            v_or_b32 v{row}, v{row}, v{x}
            v_lshlrev_b32 v{vD+r}, 4, v{g}
            v_cmp_gt_u32 vcc, 40, v{it}
            v_subrev_u32 v{x}, 40, v{it}
            s_nop 0
            v_cndmask_b32 v{x}, v{x}, v{it}, vcc
            v_mul_u32_u24 v{nt}, 0x4925, v{x}
            v_mul_u32_u24 v{st_}, 0xcccd, v{x}
            v_cndmask_b32 v{nt}, v{nt}, v{st_}, vcc
            v_lshrrev_b32 v{nt}, 18, v{nt}
            v_mov_b32 v{st_}, 14
            v_cndmask_b32 v{st_}, v{st_}, 5, vcc
            v_mul_u32_u24 v{st_}, v{st_}, v{nt}
            v_sub_u32 v{st_}, v{x}, v{st_}
            v_lshlrev_b32 v{st_}, 7, v{st_}
            v_add_u32 v{row}, v{row}, v{st_}
            v_mul_u32_u24 v{row}, 1280, v{row}
            v_mul_u32_u24 v{nt}, 160, v{nt}
            v_lshlrev_b32 v{c}, 4, v{c}
            v_add3_u32 v{row}, v{row}, v{nt}, v{c}
            v_mov_b32 v{x}, 0x7fffff00
            v_cndmask_b32 v{nt}, v{x}, v{row}, vcc
            v_cndmask_b32 v{row}, v{row}, v{x}, vcc
            v_cmp_gt_u32 vcc, 152, v{it}
            s_nop 1
            v_cndmask_b32 v{vD+r}, v{x}, v{vD+r}, vcc
            """)
            a(f"v_mov_b32 v{100+2*r}, v{nt}")
            a(f"v_mov_b32 v{101+2*r}, v{row}")
            a(f"v_mov_b32 v{106+r}, v{it}")
        if defer: return
        self.loads()
    def loads(self, base=100, tmp=None):
        a = self.a
        aB, T = self.aB, (self.vT if tmp is None else tmp)
        if base != 100:
            for k in range(9): a(f"v_accvgpr_read_b32 v{base+k}, a{40+k}")
        self.sWo, self.sW2, self.sW1 = 8, 12, 8
        make_srd(a, self.sWo, pWO, pWO+1, 0, 640*1280)
        make_srd(a, self.sW2, pW2, pW2+1, 0, 1728*1280)
        for r in range(3):
            la, lb = a.newlabel("rpa"), a.newlabel("rpb")
            a(f"""
            v_cmp_gt_u32 vcc, 40, v{base+6+r}
            s_nop 4
            s_mov_b64 s[76:77], vcc
            s_mov_b64 exec, vcc
            s_cbranch_execz {la}
            buffer_load_dwordx4 {ar(aB+4*r,4)}, v{base+2*r}, s[{self.sWo}:{self.sWo+3}], 0 offen
            {la}:
            s_not_b64 exec, s[76:77]
            s_cbranch_execz {lb}
            buffer_load_dwordx4 {ar(aB+4*r,4)}, v{base+1+2*r}, s[{self.sW2}:{self.sW2+3}], 0 offen
            {lb}:
            s_mov_b64 exec, -1
            """)
        make_srd(a, self.sW1, pW1, pW1+1, 0, 640*3456)
        a(f"""
        s_mul_i32 s75, s2, 8640
        s_sub_u32 s76, s{sWV}, 4
        s_mul_i32 s76, s76, 2176
        s_add_u32 s75, s75, s76
        v_lshlrev_b32 v{T}, 7, v1
        s_mov_b64 exec, 0x1ffff
        buffer_load_dword v113, v{T}, s[{self.sW1}:{self.sW1+3}], s75 offen sc1
        s_mov_b64 exec, -1
        """)
    def save(self):
        a = self.a
        for r in range(3): a(f"v_accvgpr_write_b32 a{40+r}, v{self.vD+r}")
        for k in range(9): a(f"v_accvgpr_write_b32 a{43+k}, v{100+k}")
    def store(self, wait_after=True, pre="s_waitcnt vmcnt(0)"):
        a = self.a
        a(pre)
        a(f"s_mov_b32 s75, {WS_WOP}")
        for r in range(3):
            a(f"buffer_store_dwordx4 {ar(self.aB+4*r,4)}, v{self.vD+r}, s[{sWS}:{sWS+3}], s75 offen {SC}")
        if wait_after: a("s_waitcnt vmcnt(0)")
        else: a("s_nop 1")

class CoreL:
    sA, sW, sO = 8, 12, 16
    sM0, sN0, sT0, sT1, sT2, sT3 = 21, 22, 23, 24, 25, 26
    sLw, sSlot, sAoff, sWoff, sLds = 20, 28, 29, 30, 31
    sWm, sWn, sNt, sSeq, sSeqW = 32, 33, 34, 35, 36
    vAe, vAo, vWo = 4, 5, 6
    NST = 10
    def __init__(self, a, mode, tag):
        self.a, self.mode, self.tag = a, mode, tag
        self.qkv = mode == 'qkv'
        self.LDW = 3840 if self.qkv else 3456
    def map_tiles(self, idle_label):
        a, c = self.a, self
        if not c.qkv:
            a(f"""
            s_and_b32 s{c.sT3}, s{sRk}, 1
            s_lshl_b32 s{c.sM0}, s{sX}, 1
            s_add_u32 s{c.sM0}, s{c.sM0}, s{c.sT3}
            s_lshl_b32 s{c.sM0}, s{c.sM0}, 7
            s_lshr_b32 s{c.sNt}, s{sRk}, 1
            s_cmp_ge_u32 s{c.sNt}, 14
            s_cbranch_scc1 {idle_label}
            s_lshl_b32 s{c.sN0}, s{c.sNt}, 7
            s_mul_i32 s{c.sSeq}, s{c.sNt}, 3
            s_mul_i32 s{c.sT0}, s{c.sT3}, 5
            s_add_u32 s{c.sSeq}, s{c.sSeq}, s{c.sT0}
            s_mul_i32 s{c.sT0}, s{c.sSeq}, 0xcccd
            s_lshr_b32 s{c.sT0}, s{c.sT0}, 19
            s_mul_i32 s{c.sT0}, s{c.sT0}, 10
            s_sub_u32 s{c.sSeq}, s{c.sSeq}, s{c.sT0}
            """)
            if E('NOROTL'): a(f"s_mov_b32 s{c.sSeq}, 0")
            return
        NT_PER = 8 if c.qkv else 7
        NT_TOT = 15 if c.qkv else 14
        a(f"""
        s_and_b32 s{c.sT0}, s2, 7
        s_lshr_b32 s{c.sT1}, s2, 3
        s_lshr_b32 s{c.sT2}, s{c.sT0}, 1
        s_lshl_b32 s{c.sT2}, s{c.sT2}, 2
        s_and_b32 s{c.sT3}, s{c.sT1}, 3
        s_add_u32 s{c.sM0}, s{c.sT2}, s{c.sT3}
        s_lshl_b32 s{c.sM0}, s{c.sM0}, 7
        s_and_b32 s{c.sT0}, s{c.sT0}, 1
        s_mul_i32 s{c.sT0}, s{c.sT0}, {NT_PER}
        s_lshr_b32 s{c.sT1}, s{c.sT1}, 2
        s_add_u32 s{c.sNt}, s{c.sT0}, s{c.sT1}
        s_cmp_ge_u32 s{c.sT1}, {NT_PER}
        s_cbranch_scc1 {idle_label}
        s_cmp_ge_u32 s{c.sNt}, {NT_TOT}
        s_cbranch_scc1 {idle_label}
        s_lshl_b32 s{c.sN0}, s{c.sNt}, 7
        s_mul_i32 s{c.sSeq}, s{c.sT3}, 3
        s_add_u32 s{c.sSeq}, s{c.sSeq}, s{c.sT1}
        s_cmp_ge_u32 s{c.sSeq}, 10
        s_cselect_b32 s{c.sT0}, 10, 0
        s_sub_u32 s{c.sSeq}, s{c.sSeq}, s{c.sT0}
        """)
        if E('NOROTL'): a(f"s_mov_b32 s{c.sSeq}, 0")
    def loader_setup(self):
        a, c = self.a, self
        a(f"s_sub_u32 s{c.sLw}, s{sWV}, 4")
        if c.qkv:
            make_srd(a, c.sA, pX, pX+1, 0, 2048*1280)
            a(f"""
            v_lshrrev_b32 v2, 3, v1
            v_mul_u32_u24 v2, 1280, v2
            v_lshrrev_b32 v3, 4, v1
            v_and_b32 v7, 7, v1
            v_xor_b32 v3, v3, v7
            v_lshlrev_b32 v3, 4, v3
            v_add_u32 v{c.vAe}, v2, v3
            v_xor_b32 v{c.vAo}, 64, v{c.vAe}
            s_lshl_b32 s{c.sT0}, s{c.sLw}, 5
            s_add_u32 s{c.sT0}, s{c.sT0}, s{c.sM0}
            s_mul_i32 s{c.sAoff}, s{c.sT0}, 1280
            """)
            c.A_SSTEP = 128
        else:
            make_srd(a, c.sA, pWS, pWS+1, WS_H, SZ_ACT)
            a(f"""
            v_lshlrev_b32 v{c.vAe}, 4, v1
            v_add_u32 v{c.vAo}, 1024, v{c.vAe}
            s_lshl_b32 s{c.sT0}, s{c.sLw}, 16
            s_lshl_b32 s{c.sT1}, s{c.sM0}, 4
            s_add_u32 s{c.sAoff}, s{c.sT0}, s{c.sT1}
            """)
            c.A_SSTEP = 8 * 32768
        pw = pWQ if c.qkv else pW1
        make_srd(a, c.sW, pw, pw+1, 0, 640 * c.LDW)
        a(f"""
        v_lshrrev_b32 v2, 4, v1
        v_mul_u32_u24 v3, {c.LDW}, v2
        v_lshlrev_b32 v2, 2, v2
        v_and_b32 v7, 15, v1
        v_xor_b32 v2, v2, v7
        v_lshlrev_b32 v2, 4, v2
        v_add_u32 v{c.vWo}, v2, v3
        s_lshl_b32 s{c.sT0}, s{c.sLw}, 4
        s_mul_i32 s{c.sT0}, s{c.sT0}, {c.LDW}
        s_lshl_b32 s{c.sT1}, s{c.sN0}, 1
        s_add_u32 s{c.sWoff}, s{c.sT0}, s{c.sT1}
        s_lshl_b32 s{c.sLds}, s{c.sLw}, 12
        s_mul_i32 s{c.sT0}, s{c.sSeq}, {c.A_SSTEP}
        s_add_u32 s{c.sAoff}, s{c.sAoff}, s{c.sT0}
        s_mul_i32 s{c.sT0}, s{c.sSeq}, {64 * c.LDW}
        s_add_u32 s{c.sWoff}, s{c.sWoff}, s{c.sT0}
        s_mov_b32 s{c.sSeqW}, s{c.sSeq}
        """)
    def issue_A(self, seq):
        a, c = self.a, self
        slot = (seq % 4) * 32768
        for j in range(4):
            a(f"s_add_u32 m0, s{c.sLds}, {slot}" if j == 0 else "s_add_u32 m0, m0, 1024")
            if c.qkv:
                a(f"s_mov_b32 s{c.sT0}, s{c.sAoff}" if j == 0 else f"s_add_u32 s{c.sT0}, s{c.sT0}, {8*1280}")
            else:
                if j == 0: a(f"s_mov_b32 s{c.sT0}, s{c.sAoff}")
                elif j == 2: a(f"s_add_u32 s{c.sT0}, s{c.sT0}, 32768")
                else: a("s_nop 0")
            a(f"buffer_load_dwordx4 v{c.vAe if j % 2 == 0 else c.vAo}, s[{c.sA}:{c.sA+3}], s{c.sT0} offen {E('QNT_A','') if c.qkv else ''} lds")
        a(f"""
        s_add_u32 s{c.sSeq}, s{c.sSeq}, 1
        s_cmp_eq_u32 s{c.sSeq}, {c.NST}
        s_cselect_b32 s{c.sT0}, {c.NST * c.A_SSTEP}, 0
        s_cselect_b32 s{c.sSeq}, 0, s{c.sSeq}
        s_add_u32 s{c.sAoff}, s{c.sAoff}, {c.A_SSTEP}
        s_sub_u32 s{c.sAoff}, s{c.sAoff}, s{c.sT0}
        """)
    def issue_W(self, seq):
        a, c = self.a, self
        slot = (seq % 4) * 32768 + 16384
        for j in range(4):
            a(f"s_add_u32 m0, s{c.sLds}, {slot}" if j == 0 else "s_add_u32 m0, m0, 1024")
            a(f"s_mov_b32 s{c.sT0}, s{c.sWoff}" if j == 0 else f"s_add_u32 s{c.sT0}, s{c.sT0}, {4 * c.LDW}")
            a(f"buffer_load_dwordx4 v{c.vWo}, s[{c.sW}:{c.sW+3}], s{c.sT0} offen {E('QNT_W','') if c.qkv else ''} lds")
        a(f"""
        s_add_u32 s{c.sSeqW}, s{c.sSeqW}, 1
        s_cmp_eq_u32 s{c.sSeqW}, {c.NST}
        s_cselect_b32 s{c.sT0}, {c.NST * 64 * c.LDW}, 0
        s_cselect_b32 s{c.sSeqW}, 0, s{c.sSeqW}
        s_add_u32 s{c.sWoff}, s{c.sWoff}, {64 * c.LDW}
        s_sub_u32 s{c.sWoff}, s{c.sWoff}, s{c.sT0}
        """)
    vLs = 16
    vSx, vSq, vCs, vU = 48, 56, 64, 72
    vLs = 16
    def lstats_init(self): pass
    def lst_poll_issue(self):
        a, c = self.a, self
        v = c.vLs
        a(f"""
        s_add_u32 s{c.sT0}, s{c.sNt}, {C_CS1 if c.qkv else C_CS2}
        s_lshr_b32 s{c.sT1}, s{c.sM0}, 7
        s_add_u32 s{c.sT1}, s{c.sT1}, {C_ST}
        v_mov_b32 v{v}, s{c.sT0}
        v_writelane_b32 v{v}, s{c.sT1}, 1
        v_mov_b32 v{v+1}, 16
        v_writelane_b32 v{v+1}, {8 if c.qkv else 0}, 1
        v_lshlrev_b32 v{v}, 7, v{v}
        v_add_u32 v{v}, {WS_CNT}, v{v}
        s_mov_b64 exec, 3
        buffer_load_dword v{v+2}, v{v}, s[{sWS}:{sWS+3}], 0 offen sc1
        s_mov_b64 exec, -1
        """)
    def lst_check_issue(self, q):
        a, c = self.a, self
        v = c.vLs
        ok = a.newlabel("lok")
        a(f"""
        s_waitcnt vmcnt({q.need('poll')})
        s_mov_b64 exec, 3
        v_cmp_gt_u32 vcc, v{v+1}, v{v+2}
        s_nop 4
        s_cmp_eq_u64 vcc, 0
        s_cbranch_scc1 {ok}
        """)
        poll(a, v, v + 1, 2, v + 2)
        a.label(ok)
        a("s_mov_b64 exec, -1")
        ncol = 1920 if c.qkv else 1792
        d = v + 8
        a(f"""
        v_and_b32 v{v+4}, 31, v1
        v_lshlrev_b32 v{v+5}, 2, v{v+4}
        v_lshlrev_b32 v{v+4}, 3, v{v+4}
        s_lshl_b32 s{c.sT0}, s{c.sLw}, 5
        s_add_u32 s{c.sT1}, s{c.sT0}, s{c.sN0}
        s_lshl_b32 s{c.sT1}, s{c.sT1}, 2
        s_add_u32 s{c.sT1}, s{c.sT1}, {WS_CS1 if c.qkv else WS_CS2}
        s_mov_b32 exec_hi, 0
        """)
        for j in range(16):
            a(f"buffer_load_dword v{d+j}, v{v+5}, s[{sWS}:{sWS+3}], s{c.sT1} offen")
            if j < 15: a(f"s_add_u32 s{c.sT1}, s{c.sT1}, {ncol*4}")
        a(f"""
        s_mov_b32 exec_lo, 0
        s_mov_b32 exec_hi, -1
        s_add_u32 s{c.sT1}, s{c.sT0}, s{c.sM0}
        s_lshl_b32 s{c.sT1}, s{c.sT1}, 3
        s_add_u32 s{c.sT1}, s{c.sT1}, {WS_ST1 if c.qkv else WS_ST2}
        """)
        npart = 1 if c.qkv else 8
        for j in range(npart):
            a(f"buffer_load_dwordx2 {vr(d+16+2*j,2)}, v{v+4}, s[{sWS}:{sWS+3}], s{c.sT1} offen")
            if j < npart - 1: a(f"s_add_u32 s{c.sT1}, s{c.sT1}, {2048*8}")
        a("s_mov_b64 exec, -1")
        q.push("stats", 16 + npart)
    def lst_finish(self, q):
        a, c = self.a, self
        v = c.vLs
        d = v + 8
        a(f"s_waitcnt vmcnt({q.need('stats')})")
        for j in range(1, 16):
            a(f"v_add_f32 v{d}, v{d}, v{d+j}")
        S, Q = d + 16, d + 17
        if not c.qkv:
            for j in range(1, 8):
                a(f"v_add_f32 v{S}, v{S}, v{S+2*j}")
                a(f"v_add_f32 v{Q}, v{Q}, v{Q+2*j}")
            a(f"""
            v_mul_f32 v{S}, {f32bits(1.0/640):#x}, v{S}
            v_mul_f32 v{Q}, {f32bits(1.0/640):#x}, v{Q}
            v_fma_f32 v{Q}, -v{S}, v{S}, v{Q}
            v_max_f32 v{Q}, 0, v{Q}
            v_add_f32 v{Q}, {f32bits(1e-5):#x}, v{Q}
            v_rsq_f32 v{Q}, v{Q}
            """)
        a(f"""
        s_lshl_b32 s{c.sT0}, s{c.sLw}, 7
        s_add_u32 s{c.sT0}, s{c.sT0}, {STAT}
        v_add_u32 v{v+5}, s{c.sT0}, v{v+5}
        s_mov_b32 exec_hi, 0
        ds_write_b32 v{v+5}, v{d} offset:1024
        s_mov_b32 exec_lo, 0
        s_mov_b32 exec_hi, -1
        ds_write_b32 v{v+5}, v{S}
        ds_write_b32 v{v+5}, v{Q} offset:512
        s_mov_b64 exec, -1
        s_waitcnt lgkmcnt(0)
        """)
    def tq_poll_issue(self):
        a, c = self.a, self
        v = c.vLs
        a(f"""
        s_lshr_b32 s{c.sT1}, s{c.sM0}, 7
        s_add_u32 s{c.sT1}, s{c.sT1}, {C_ST}
        s_lshl_b32 s{c.sT1}, s{c.sT1}, 7
        s_add_u32 s{c.sT1}, s{c.sT1}, {WS_CNT}
        v_mov_b32 v{v}, s{c.sT1}
        v_mov_b32 v{v+1}, {5 if E('P0L') else 1}
        s_mov_b64 exec, 1
        buffer_load_dword v{v+2}, v{v}, s[{sWS}:{sWS+3}], 0 offen sc1
        s_mov_b64 exec, -1
        """)
    def tq_check_issue(self, q):
        a, c = self.a, self
        v = c.vLs
        ok = a.newlabel("lok")
        a(f"""
        s_waitcnt vmcnt({q.need('poll')})
        v_readfirstlane_b32 s{c.sT0}, v{v+2}
        s_cmp_ge_u32 s{c.sT0}, {5 if E('P0L') else 1}
        s_cbranch_scc1 {ok}
        """)
        poll(a, v, v + 1, 1, v + 2)
        a.label(ok)
        a(f"""
        v_and_b32 v{v+4}, 31, v1
        v_lshlrev_b32 v{v+5}, 2, v{v+4}
        v_lshlrev_b32 v{v+4}, 3, v{v+4}
        s_lshl_b32 s{c.sT0}, s{c.sLw}, 5
        s_add_u32 s{c.sT1}, s{c.sT0}, s{c.sM0}
        s_lshl_b32 s{c.sT1}, s{c.sT1}, 3
        s_add_u32 s{c.sT1}, s{c.sT1}, {WS_ST1}
        buffer_load_dwordx2 {vr(v+8,2)}, v{v+4}, s[{sWS}:{sWS+3}], s{c.sT1} offen
        """)
        q.push("stats", 1)
    def tq_finish(self, q):
        a, c = self.a, self
        v = c.vLs
        a(f"""
        s_waitcnt vmcnt({q.need('stats')})
        s_lshl_b32 s{c.sT0}, s{c.sLw}, 7
        s_add_u32 s{c.sT0}, s{c.sT0}, {STAT}
        v_add_u32 v{v+5}, s{c.sT0}, v{v+5}
        ds_write_b32 v{v+5}, v{v+8}
        ds_write_b32 v{v+5}, v{v+9} offset:512
        """)
    def tok_issue(self, q):
        a, c = self.a, self
        v = c.vLs
        d = v + 8
        a(f"""
        v_and_b32 v{v+4}, 31, v1
        v_lshlrev_b32 v{v+5}, 2, v{v+4}
        v_lshlrev_b32 v{v+4}, 3, v{v+4}
        s_lshl_b32 s{c.sT0}, s{c.sLw}, 5
        s_add_u32 s{c.sT1}, s{c.sT0}, s{c.sM0}
        s_lshl_b32 s{c.sT1}, s{c.sT1}, 3
        s_add_u32 s{c.sT1}, s{c.sT1}, {WS_ST2}
        s_mov_b32 exec_hi, 0
        """)
        for j in range(16):
            a(f"buffer_load_dwordx2 {vr(d+2*j,2)}, v{v+4}, s[{sWS}:{sWS+3}], s{c.sT1} offen")
            if j < 15: a(f"s_add_u32 s{c.sT1}, s{c.sT1}, {2048*8}")
        a("s_mov_b32 exec_hi, -1")
        q.push("stats", 16)
    def tok_finish(self, q):
        a, c = self.a, self
        v = c.vLs
        S, Q = v + 8, v + 9
        a(f"s_waitcnt vmcnt({q.need('stats')})")
        for j in range(1, 16):
            a(f"v_add_f32 v{S}, v{S}, v{S+2*j}")
            a(f"v_add_f32 v{Q}, v{Q}, v{Q+2*j}")
        a(f"""
        v_mul_f32 v{S}, {f32bits(1.0/640):#x}, v{S}
        v_mul_f32 v{Q}, {f32bits(1.0/640):#x}, v{Q}
        v_fma_f32 v{Q}, -v{S}, v{S}, v{Q}
        v_max_f32 v{Q}, 0, v{Q}
        v_add_f32 v{Q}, {f32bits(1e-5):#x}, v{Q}
        v_rsq_f32 v{Q}, v{Q}
        s_lshl_b32 s{c.sT0}, s{c.sLw}, 7
        s_add_u32 s{c.sT0}, s{c.sT0}, {STAT}
        v_add_u32 v{v+5}, s{c.sT0}, v{v+5}
        s_mov_b32 exec_hi, 0
        ds_write_b32 v{v+5}, v{S}
        ds_write_b32 v{v+5}, v{Q} offset:512
        s_mov_b32 exec_hi, -1
        """)
    def loader_main(self, q, p0=None):
        a, c = self.a, self
        for s_ in range(c.NST):
            tags = [f'A{s_}', f'W{s_}']
            if c.qkv and s_ == 4 and E('P0L'): tags.append('p0st')
            a(f"s_waitcnt vmcnt({q.need(*tags)}) lgkmcnt(0)")
            if getattr(c, 'ldstamps', False) and s_ in (0, 1, 2): st(a, 4 + s_)
            a("s_barrier")
            stx(a, f"{c.tag}l{s_}")
            if c.qkv:
                vd = 70
                if s_ == 0: wave_only(a, 4, lambda: a(f"buffer_load_dword v{vd}, v{vd+1}, s[44:47], 0 offen sc1"))
                if s_ == 4 and E('P0L'): wave_only(a, 4, lambda: p0r_arrive(a, c, vd))
                if s_ == 3: wave_only(a, 7, lambda: reg_step1(a, vd))
                if s_ == 5: wave_only(a, 7, lambda: reg_step2(a, vd))
                if s_ == 7: wave_only(a, 7, lambda: reg_step3(a, vd))
            if s_ + PD < c.NST and not (E('X_NODMA') and c.qkv):
                c.issue_A(s_ + PD); q.push(f"A{s_+PD}", 4)
                c.issue_W(s_ + PD); q.push(f"W{s_+PD}", 4)
            if c.qkv and s_ == 1 and E('P0L'):
                a(f"s_waitcnt vmcnt({q.need('p0l')})"); c.p0l.finish(); q.push('p0st', 1)
            if not c.qkv:
                if s_ == 7: c.tok_issue(q)
                if s_ == 8 and not E('NOPFW0'): w2_first_prefetch(a, c)
                if s_ == 9: c.tok_finish(q)
                if E('PFW2') and 0 <= s_ < 9:
                    wave_only(a, 4 + (s_ % 4), lambda: w2p_prefetch(a, s_))
            else:
                if s_ == 8 and getattr(c, 'hook7', None): c.hook7()
                if s_ == 6:
                    c.tq_poll_issue(); q.push("poll", 1)
                if s_ == 7: c.tq_check_issue(q)
                if s_ == 9: c.tq_finish(q)

    vAd, vX, vW, vAcc, vT, vSt = 24, 32, 32, 64, 128, 144
    def compute_setup(self):
        a, c = self.a, self
        NXA = 8 if c.qkv else 2
        c.NXA = NXA
        c.vXa = 4
        c.vWa = c.vXa + 2 * NXA
        vXa, vWa, vT = c.vXa, c.vWa, c.vT
        t0, t1 = vT, vT + 1
        a(f"""
        s_lshr_b32 s{c.sWm}, s{sWV}, 1
        s_and_b32 s{c.sWn}, s{sWV}, 1
        v_and_b32 v2, 31, v1
        v_lshrrev_b32 v3, 5, v1
        """)
        if c.qkv:
            a(f"""
            v_lshrrev_b32 v{t0}, 1, v1
            v_and_b32 v{t0}, 7, v{t0}
            v_xor_b32 v{t0}, v{t0}, v3
            v_lshlrev_b32 v{t0}, 4, v{t0}
            v_lshlrev_b32 v{t1}, 7, v2
            v_add_u32 v{t0}, v{t0}, v{t1}
            s_lshl_b32 s{c.sT0}, s{c.sWm}, 13
            s_lshl_b32 s{c.sT1}, s{c.sWn}, 12
            s_add_u32 s{c.sT0}, s{c.sT0}, s{c.sT1}
            v_add_u32 v{t0}, s{c.sT0}, v{t0}
            """)
            for s in range(4):
                a(f"v_xor_b32 v{vXa + s}, {32 * s}, v{t0}")
                a(f"v_xor_b32 v{vXa + 4 + s}, 4096, v{vXa + s}")
        else:
            a(f"""
            v_lshlrev_b32 v{t0}, 11, v3
            v_lshlrev_b32 v{t1}, 4, v2
            v_add_u32 v{t0}, v{t0}, v{t1}
            s_lshl_b32 s{c.sT0}, s{c.sWm}, 10
            v_add_u32 v{vXa}, s{c.sT0}, v{t0}
            v_add_u32 v{vXa + 1}, 512, v{vXa}
            """)
        for i in range(NXA):
            a(f"v_add_u32 v{vXa + NXA + i}, 65536, v{vXa + i}")
        a(f"""
        v_lshrrev_b32 v{t0}, 2, v1
        v_and_b32 v{t0}, 3, v{t0}
        v_lshlrev_b32 v{t1}, 3, v3
        v_add_u32 v{t1}, v{t1}, v{t0}
        v_lshlrev_b32 v{t1}, 8, v{t1}
        v_lshlrev_b32 v{t0}, 6, v{t0}
        v_add_u32 v{t1}, v{t1}, v{t0}
        v_lshrrev_b32 v{t0}, 4, v1
        v_and_b32 v{t0}, 1, v{t0}
        v_lshlrev_b32 v{t0}, 5, v{t0}
        v_add_u32 v{t1}, v{t1}, v{t0}
        v_lshrrev_b32 v{t0}, 1, v1
        v_and_b32 v{t0}, 1, v{t0}
        v_lshlrev_b32 v{t0}, 4, v{t0}
        v_add_u32 v{t1}, v{t1}, v{t0}
        v_and_b32 v{t0}, 1, v1
        v_lshlrev_b32 v{t0}, 3, v{t0}
        v_add_u32 v{t1}, v{t1}, v{t0}
        v_add_u32 v{t1}, 16384, v{t1}
        s_lshl_b32 s{c.sT0}, s{c.sWn}, 7
        s_lshl_b32 s{c.sT1}, s{c.sWm}, 6
        s_add_u32 s{c.sT0}, s{c.sT0}, s{c.sT1}
        v_xor_b32 v{vWa}, s{c.sT0}, v{t1}
        v_xor_b32 v{vWa + 1}, 64, v{vWa}
        v_add_u32 v{vWa + 2}, 65536, v{vWa}
        v_add_u32 v{vWa + 3}, 65536, v{vWa + 1}
        """)
    def addr_qk(self):
        a, c = self.a, self
        vT, vAd = c.vT, c.vAd
        t0, t1 = vT, vT + 1
        a(f"""
        s_cmp_lt_u32 s{c.sNt}, 5
        s_cselect_b32 s{c.sT0}, 0, 640
        s_sub_u32 s{c.sT2}, s{c.sN0}, s{c.sT0}
        s_lshl_b32 s{c.sT1}, s{c.sWn}, 6
        s_add_u32 s{c.sT2}, s{c.sT2}, s{c.sT1}
        s_lshr_b32 s{c.sT2}, s{c.sT2}, 3
        v_add_u32 v{t0}, s{c.sT2}, v3
        v_lshlrev_b32 v{vT+4}, 4, v2
        """)
        for ft in range(2):
            for j in range(2):
                d = vAd + ft*2 + j
                a(f"""
                s_xor_b32 s{c.sT3}, s{c.sWm}, {ft}
                s_lshl_b32 s{c.sT3}, s{c.sT3}, 2
                s_add_u32 s{c.sT3}, s{c.sT3}, {2*j}
                v_add_u32 v{t1}, s{c.sT3}, v{t0}
                v_mul_u32_u24 v{vT+2}, 0xcccd, v{t1}
                v_lshrrev_b32 v{vT+2}, 18, v{vT+2}
                v_mul_u32_u24 v{vT+3}, 5, v{vT+2}
                v_sub_u32 v{vT+3}, v{t1}, v{vT+3}
                v_lshlrev_b32 v{vT+3}, 9, v{vT+3}
                v_mul_u32_u24 v{vT+2}, 0x28000, v{vT+2}
                v_add3_u32 v{d}, v{vT+2}, v{vT+3}, v{vT+4}
                """)
        a(f"""
        s_lshr_b32 s{c.sT0}, s{c.sM0}, 5
        s_lshl_b32 s{c.sT1}, s{c.sWm}, 1
        s_add_u32 s{c.sT0}, s{c.sT0}, s{c.sT1}
        s_add_u32 s{c.sT1}, s{c.sT0}, s{c.sWn}
        s_mul_i32 s40, s{c.sT1}, 2560
        s_xor_b32 s{c.sT1}, s{c.sWn}, 1
        s_add_u32 s{c.sT1}, s{c.sT0}, s{c.sT1}
        s_mul_i32 s41, s{c.sT1}, 2560
        s_cmp_lt_u32 s{c.sNt}, 5
        s_cselect_b32 s{c.sT0}, {WS_Q}, {WS_K}
        s_add_u32 s{c.sO}, s{pWS}, s{c.sT0}
        s_addc_u32 s{c.sO+1}, s{pWS+1}, 0
        s_and_b32 s{c.sO+1}, s{c.sO+1}, 0xffff
        s_mov_b32 s{c.sO+2}, {SZ_QK}
        s_mov_b32 s{c.sO+3}, 0x20000
        """)
    def addr_f(self):
        a, c = self.a, self
        vT, vAd = c.vT, c.vAd
        t0, t1 = vT, vT + 1
        a(f"""
        s_lshl_b32 s{c.sT1}, s{c.sWn}, 6
        s_add_u32 s{c.sT2}, s{c.sN0}, s{c.sT1}
        s_lshr_b32 s{c.sT2}, s{c.sT2}, 3
        v_add_u32 v{t0}, s{c.sT2}, v3
        v_lshlrev_b32 v{t0}, 15, v{t0}
        v_lshlrev_b32 v{t1}, 4, v2
        v_add_u32 v{t0}, v{t0}, v{t1}
        """)
        for ft in range(2):
            for j in range(2):
                a(f"s_xor_b32 s{c.sT3}, s{c.sWm}, {ft}")
                a(f"s_lshl_b32 s{c.sT3}, s{c.sT3}, 2")
                a(f"s_add_u32 s{c.sT3}, s{c.sT3}, {2*j}")
                a(f"s_lshl_b32 s{c.sT3}, s{c.sT3}, 15")
                a(f"v_add_u32 v{vAd + ft*2 + j}, s{c.sT3}, v{t0}")
        a(f"""
        s_lshl_b32 s{c.sT1}, s{c.sWm}, 6
        s_add_u32 s{c.sT0}, s{c.sM0}, s{c.sT1}
        s_lshl_b32 s40, s{c.sT0}, 4
        s_add_u32 s41, s40, 512
        """)
        make_srd(a, c.sO, pWS, pWS+1, WS_F, SZ_F)
    def addr_v(self):
        a, c = self.a, self
        vT, vAd = c.vT, c.vAd
        t0, t1 = vT, vT + 1
        for ft in range(2):
            a(f"""
            s_lshl_b32 s{c.sT1}, s{c.sWn}, 6
            s_add_u32 s{c.sT0}, s{c.sN0}, s{c.sT1}
            s_xor_b32 s{c.sT1}, s{c.sWm}, {ft}
            s_lshl_b32 s{c.sT1}, s{c.sT1}, 5
            s_add_u32 s{c.sT0}, s{c.sT0}, s{c.sT1}
            s_sub_u32 s{c.sT0}, s{c.sT0}, 1280
            v_add_u32 v{t0}, s{c.sT0}, v2
            v_mul_u32_u24 v{t1}, 0xcccd, v{t0}
            v_lshrrev_b32 v{t1}, 20, v{t1}
            v_mul_u32_u24 v{vT+2}, 20, v{t1}
            v_sub_u32 v{t0}, v{t0}, v{vT+2}
            v_lshlrev_b32 v{t0}, 4, v{t0}
            v_mul_u32_u24 v{t1}, 0x14000, v{t1}
            v_add_u32 v{t0}, v{t0}, v{t1}
            v_mul_u32_u24 v{t1}, 320, v3
            v_add_u32 v{vAd+ft}, v{t0}, v{t1}
            """)
        a(f"""
        s_lshl_b32 s{c.sT1}, s{c.sWm}, 6
        s_add_u32 s{c.sT0}, s{c.sM0}, s{c.sT1}
        s_lshr_b32 s{c.sT0}, s{c.sT0}, 4
        s_lshl_b32 s{c.sT1}, s{c.sWn}, 1
        s_add_u32 s{c.sT1}, s{c.sT1}, s{c.sT0}
        s_mul_i32 s40, s{c.sT1}, 640
        s_add_u32 s41, s40, 640
        s_xor_b32 s{c.sT1}, s{c.sWn}, 1
        s_lshl_b32 s{c.sT1}, s{c.sT1}, 1
        s_add_u32 s{c.sT1}, s{c.sT1}, s{c.sT0}
        s_mul_i32 s42, s{c.sT1}, 640
        s_add_u32 s43, s42, 640
        """)
        make_srd(a, c.sO, pWS, pWS+1, WS_V, SZ_QKV)
    def stats_poll_issue(self):
        a, c = self.a, self
        vS = c.vSt
        a(f"""
        v_lshlrev_b32 v{vS+30}, 7, v1
        v_add_u32 v{vS+30}, {WS_CNT + (C_P0 if c.qkv else C_W1)*128}, v{vS+30}
        s_mov_b64 exec, 0xff
        buffer_load_dword v{vS+29}, v{vS+30}, s[{sWS}:{sWS+3}], 0 offen sc1
        s_mov_b64 exec, -1
        """)
    def stats_poll_check(self):
        a, c = self.a, self
        vS = c.vSt
        ok = a.newlabel("stok")
        a(f"""
        s_waitcnt vmcnt(0)
        s_mov_b64 exec, 0xff
        v_cmp_gt_u32 vcc, 128, v{vS+29}
        s_nop 4
        s_cmp_eq_u64 vcc, 0
        s_cbranch_scc1 {ok}
        v_mov_b32 v{vS+28}, 128
        """)
        poll(a, vS + 30, vS + 28, 8, vS + 29)
        a.label(ok)
        a("s_mov_b64 exec, -1")
        a("s_nop 3")
    def stats_issue(self):
        a, c = self.a, self
        vS = c.vSt
        a(f"""
        v_lshlrev_b32 v{vS+31}, 2, v2
        v_lshlrev_b32 v{vS+30}, 3, v2
        s_lshl_b32 s{c.sT0}, s{sWV}, 5
        s_add_u32 s{c.sT1}, s{c.sT0}, s{c.sM0}
        s_lshl_b32 s{c.sT1}, s{c.sT1}, 3
        s_add_u32 s{c.sT1}, s{c.sT1}, {WS_ST2}
        """)
        for j in range(8):
            a(f"buffer_load_dwordx2 {vr(vS+8+2*j,2)}, v{vS+30}, s[{sWS}:{sWS+3}], s{c.sT1} offen")
            if j < 7: a(f"s_add_u32 s{c.sT1}, s{c.sT1}, {2048*8}")
    def stats_finish(self):
        a, c = self.a, self
        vS = c.vSt
        a("s_waitcnt vmcnt(0)")
        S, Q = vS + 8, vS + 9
        for j in range(1, 8):
            a(f"v_add_f32 v{S}, v{S}, v{S+2*j}")
            a(f"v_add_f32 v{Q}, v{Q}, v{Q+2*j}")
        a(f"""
        v_mul_f32 v{S}, {f32bits(1.0/640):#x}, v{S}
        v_mul_f32 v{Q}, {f32bits(1.0/640):#x}, v{Q}
        v_fma_f32 v{Q}, -v{S}, v{S}, v{Q}
        v_max_f32 v{Q}, 0, v{Q}
        v_add_f32 v{Q}, {f32bits(1e-5):#x}, v{Q}
        v_rsq_f32 v{Q}, v{Q}
        s_lshl_b32 s{c.sT0}, s{sWV}, 7
        s_add_u32 s{c.sT0}, s{c.sT0}, {STAT}
        v_add_u32 v{vS+31}, s{c.sT0}, v{vS+31}
        ds_write_b32 v{vS+31}, v{S}
        ds_write_b32 v{vS+31}, v{Q} offset:512
        """)
    aX = 4
    def read_list(self, i):
        c = self
        st_, step, buf = i // 4, i % 4, i % 3
        slot = st_ % 4
        win, base = slot >> 1, (slot & 1) * 32768
        L = []
        for lt in range(2):
            if c.qkv:
                L.append(f"ds_read_b128 {ar(c.aX + buf*8 + lt*4, 4)}, v{c.vXa + win*8 + lt*4 + step} offset:{base}")
            else:
                L.append(f"ds_read_b128 {ar(c.aX + buf*8 + lt*4, 4)}, v{c.vXa + win*2 + lt} offset:{base + step*4096}")
        for lf in range(2):
            for h2 in range(2):
                L.append(f"ds_read_b64_tr_b16 {vr(c.vW + buf*8 + lf*4 + h2*2, 2)}, v{c.vWa + win*2 + lf} offset:{base + step*4096 + h2*1024}")
        return L
    def reads(self, i):
        for r in self.read_list(i): self.a(r)
    def mfma(self, i, k, orientY):
        a, c = self.a, self
        buf = i % 3
        lf, lt = k >> 1, k & 1
        acc = c.vAcc + (lf*2 + lt) * 16
        xa, wa = ar(c.aX + buf*8 + lt*4, 4), vr(c.vW + buf*8 + lf*4, 4)
        cc = "0" if i == 0 else vr(acc, 16)
        if orientY: a(f"v_mfma_f32_32x32x16_bf16 {vr(acc,16)}, {wa}, {xa}, {cc}")
        else: a(f"v_mfma_f32_32x32x16_bf16 {vr(acc,16)}, {xa}, {wa}, {cc}")
    def mainloop(self, orientY, stamp0=None, tag='q'):
        a, c = self.a, self
        vS = c.vSt
        CS = vS
        UU = c.vT
        a(f"v_mov_b32 v{CS}, 0")
        a(f"v_mov_b32 v{CS+1}, 0")
        if c.qkv and E('TLBE'): wave_only(a, 3, lambda: tlb_warm(a))
        a("s_barrier")
        if stamp0 is not None: st(a, stamp0)
        stx(a, tag + '_s0')
        c.reads(0)
        c.reads(1)
        for i in range(40):
            buf = i % 3
            Wl = c.vW + buf*8
            ops = []
            for r in range(4):
                u = UU + 2*(r & 1)
                ops += [f"v_lshlrev_b32 v{u}, 16, v{Wl+r}", f"v_and_b32 v{u+1}, 0xffff0000, v{Wl+r}",
                        f"v_add_f32 v{CS}, v{CS}, v{u}", f"v_add_f32 v{CS+1}, v{CS+1}, v{u+1}"]
            if E('X_NOVALU'): ops = []
            rl = c.read_list(i + 2) if i + 2 < 40 else []
            if i == 4: stx(a, tag + '_s1')
            if i == 20: stx(a, tag + '_s5')
            a(f"s_waitcnt lgkmcnt({6 if i + 1 < 40 else 0})")
            c.mfma(i, 0, orientY)
            if i + 2 < 40 and (i + 2) % 4 == 0:
                a("s_barrier")
            for o in rl[0:2] + ops[0:3]: a(o)
            c.mfma(i, 1, orientY)
            for o in rl[2:4] + ops[3:6]: a(o)
            if c.qkv and i == int(E('TLBI', '2')) and not E('NOTLB') and not E('TLBE'): wave_only(a, 3, lambda: tlb_warm(a))
            if c.qkv and i == int(E('TLB3I', '14')) and not E('NOTLB3'):
                def t3():
                    a(f"v_lshlrev_b32 v166, 21, v1")
                    a("s_mov_b64 exec, 0xfff")
                    a(f"buffer_load_dword v167, v166, s[{sWS}:{sWS+3}], 0 offen sc1")
                    a("s_mov_b64 exec, -1")
                wave_only(a, 3, t3)
            c.mfma(i, 2, orientY)
            for o in rl[4:6] + ops[6:10]: a(o)
            c.mfma(i, 3, orientY)
            for o in ops[10:16]: a(o)
        U = vS + 14
        a(f"""
        v_add_f32 v{CS}, v{CS}, v{CS+1}
        s_nop 0
        v_mov_b32 v{CS+1}, v{CS}
        s_nop 1
        v_permlane32_swap_b32 v{CS}, v{CS+1}
        s_nop 1
        v_add_f32 v{CS}, v{CS}, v{CS+1}
        """)
        a(f"""
        s_lshl_b32 s{c.sT0}, s{c.sWn}, 8
        s_lshl_b32 s{c.sT1}, s{c.sWm}, 7
        s_add_u32 s{c.sT0}, s{c.sT0}, s{c.sT1}
        s_add_u32 s{c.sT0}, s{c.sT0}, {STAT + 1024}
        v_lshlrev_b32 v{U}, 2, v2
        v_add_u32 v{U+1}, s{c.sT0}, v{U}
        ds_write_b32 v{U+1}, v{CS}
        """)
        a("s_waitcnt lgkmcnt(0)")
    def dbg_issue(self):
        a, c = self.a, self
        make_srd(a, 44, pDBG, pDBG+1, 0, 256)
        a(f"v_lshlrev_b32 v{c.vSt+27}, 2, v1")
        a("s_mov_b64 exec, 0x1ff")
        a(f"buffer_load_dword v{c.vSt+26}, v{c.vSt+27}, s[44:47], 0 offen sc1")
        a("s_mov_b64 exec, -1")
        a("s_nop 1")
    def epilogue_Y(self, kind):
        a, c = self.a, self
        vT, vAcc, vAd = c.vT, c.vAcc, c.vAd
        vM, vR, vC = vT, vT + 2, 32
        for lt in range(2):
            a(f"""
            s_lshl_b32 s{c.sT1}, s{c.sWm}, 8
            s_add_u32 s{c.sT0}, s{c.sT1}, {STAT + (0 if c.qkv else lt*128)}
            s_xor_b32 s{c.sT1}, s{c.sWn}, {lt}
            s_lshl_b32 s{c.sT1}, s{c.sT1}, {7 if c.qkv else 31}
            s_add_u32 s{c.sT0}, s{c.sT0}, {'s%d' % c.sT1 if c.qkv else 0}
            v_lshlrev_b32 v{vT+4}, 2, v2
            v_add_u32 v{vT+4}, s{c.sT0}, v{vT+4}
            ds_read_b32 v{vM + lt}, v{vT+4}
            ds_read_b32 v{vR + lt}, v{vT+4} offset:512
            """)
        for lf in range(2):
            a(f"""
            s_lshl_b32 s{c.sT1}, s{c.sWn}, 8
            s_add_u32 s{c.sT0}, s{c.sT1}, {STAT + 1024}
            s_xor_b32 s{c.sT1}, s{c.sWm}, {lf}
            s_lshl_b32 s{c.sT1}, s{c.sT1}, 7
            s_add_u32 s{c.sT0}, s{c.sT0}, s{c.sT1}
            v_lshlrev_b32 v{vT+4}, 4, v3
            v_add_u32 v{vT+4}, s{c.sT0}, v{vT+4}
            """)
            for q in range(4):
                a(f"ds_read_b128 {vr(vC + lf*16 + q*4, 4)}, v{vT+4} offset:{q*32}")
        a("s_waitcnt lgkmcnt(0)")
        if kind == 'qk':
            a(f"""
            s_cmp_lt_u32 s{c.sNt}, 5
            s_cselect_b32 s{c.sT0}, {f32bits(QSCALE):#x}, 1.0
            v_mul_f32 v{vR}, s{c.sT0}, v{vR}
            v_mul_f32 v{vR+1}, s{c.sT0}, v{vR+1}
            """)
        B = c.vSt + 2
        for lt in range(2):
            a(f"v_mov_b32 v{B + 2*lt}, v{vM + lt}")
            a(f"v_mov_b32 v{B + 2*lt + 1}, v{vM + lt}")
            a(f"v_mov_b32 v{B + 4 + 2*lt}, v{vR + lt}")
            a(f"v_mov_b32 v{B + 4 + 2*lt + 1}, v{vR + lt}")
        vP = vT + 8
        n = 0
        for lf in range(2):
            for lt in range(2):
                acc = vAcc + (lf*2 + lt) * 16
                for r in range(0, 16, 2):
                    a(f"v_pk_fma_f32 {vr(acc + r, 2)}, {vr(B + 2*lt, 2)}, {vr(vC + lf*16 + r, 2)}, {vr(acc + r, 2)} neg_lo:[1,0,0] neg_hi:[1,0,0]")
                for r in range(0, 16, 2):
                    a(f"v_pk_mul_f32 {vr(acc + r, 2)}, {vr(acc + r, 2)}, {vr(B + 4 + 2*lt, 2)}")
                for j in range(2):
                    p = vP + (n & 1) * 4
                    n += 1
                    q0 = acc + j*8
                    for k in range(4):
                        a(f"v_cvt_pk_bf16_f32 v{p+k}, v{q0+2*k}, v{q0+2*k+1}")
                    if kind == 'ffn1':
                        for k in range(4):
                            a(f"v_pk_max_i16 v{p+k}, v{p+k}, 0")
                    else:
                        a("s_nop 0")
                    a("s_nop 0")
                    if kind == 'ffn1': a("s_nop 0")
                    a(f"v_permlane32_swap_b32 v{p}, v{p+2}")
                    a(f"v_permlane32_swap_b32 v{p+1}, v{p+3}")
                    ins = f"buffer_store_dwordx4 {vr(p,4)}, v{vAd + lf*2 + j}, s[{c.sO}:{c.sO+3}], s{40 + lt} offen @SC"
                    if kind == 'ffn1': dual(a, [ins])
                    else: a(ins.replace("@SC", SC))
    def epilogue_X(self):
        a, c = self.a, self
        vT, vAcc, vAd = c.vT, c.vAcc, c.vAd
        vC, vM, vR = vT, 32, 48
        for lf in range(2):
            a(f"""
            s_lshl_b32 s{c.sT1}, s{c.sWn}, 8
            s_add_u32 s{c.sT0}, s{c.sT1}, {STAT + 1024}
            s_xor_b32 s{c.sT1}, s{c.sWm}, {lf}
            s_lshl_b32 s{c.sT1}, s{c.sT1}, 7
            s_add_u32 s{c.sT0}, s{c.sT0}, s{c.sT1}
            v_lshlrev_b32 v{vT+4}, 2, v2
            v_add_u32 v{vT+4}, s{c.sT0}, v{vT+4}
            ds_read_b32 v{vC + lf}, v{vT+4}
            """)
        vP = vT + 8
        n = 0
        for lt in range(2):
            a(f"""
            s_lshl_b32 s{c.sT1}, s{c.sWm}, 8
            s_add_u32 s{c.sT0}, s{c.sT1}, {STAT}
            s_xor_b32 s{c.sT1}, s{c.sWn}, {lt}
            s_lshl_b32 s{c.sT1}, s{c.sT1}, 7
            s_add_u32 s{c.sT0}, s{c.sT0}, s{c.sT1}
            v_lshlrev_b32 v{vT+4}, 4, v3
            v_add_u32 v{vT+4}, s{c.sT0}, v{vT+4}
            """)
            for q in range(4):
                a(f"ds_read_b128 {vr(vM + q*4, 4)}, v{vT+4} offset:{q*32}")
                a(f"ds_read_b128 {vr(vR + q*4, 4)}, v{vT+4} offset:{512 + q*32}")
            a("s_waitcnt lgkmcnt(0)")
            B = c.vSt + 2
            if lt == 0:
                for lf in range(2):
                    a(f"v_mov_b32 v{B + 2*lf}, v{vC + lf}")
                    a(f"v_mov_b32 v{B + 2*lf + 1}, v{vC + lf}")
            for lf in range(2):
                acc = vAcc + (lf*2 + lt) * 16
                for r in range(0, 16, 2):
                    a(f"v_pk_fma_f32 {vr(acc + r, 2)}, {vr(vM + r, 2)}, {vr(B + 2*lf, 2)}, {vr(acc + r, 2)} neg_lo:[1,0,0] neg_hi:[1,0,0]")
                for r in range(0, 16, 2):
                    a(f"v_pk_mul_f32 {vr(acc + r, 2)}, {vr(acc + r, 2)}, {vr(vR + r, 2)}")
                for g in range(2):
                    p = vP + (n & 1) * 4
                    n += 1
                    for r in range(4):
                        a(f"v_cvt_pk_bf16_f32 v{p + r}, v{acc + g*8 + 2*r}, v{acc + g*8 + 2*r + 1}")
                    a(f"buffer_store_dwordx4 {vr(p,4)}, v{vAd + lf}, s[{c.sO}:{c.sO+3}], s{40 + lt*2 + g} offen {SC}")

STG = 36864
class CoreS:
    sA, sO, sR = 8, 16, 40
    sM0, sN0, sT0, sT1, sT2, sNt = 21, 22, 23, 24, 25, 26
    sLw, sAoff, sWoff, sLdsA, sLdsW, sSeq, sSeqW = 20, 29, 30, 31, 32, 33, 34
    vA = 4
    vXa2, vWa2 = 116, 117
    def __init__(self, a, mode):
        self.a, self.mode = a, mode
        self.op = mode == 'oproj'
        self.NST = 5 if self.op else 14
    def map_tiles(self):
        a, c = self.a, self
        NST = c.NST
        a(f"""
        s_and_b32 s{c.sT0}, s{sRk}, 3
        s_lshl_b32 s{c.sM0}, s{sX}, 2
        s_add_u32 s{c.sM0}, s{c.sM0}, s{c.sT0}
        s_lshl_b32 s{c.sM0}, s{c.sM0}, 6
        s_lshr_b32 s{c.sNt}, s{sRk}, 2
        s_mul_i32 s{c.sN0}, s{c.sNt}, 80
        s_mul_i32 s{c.sSeq}, s{c.sT0}, {1 if c.op else 3}
        s_mul_i32 s{c.sT1}, s{c.sNt}, {1 if c.op else 2}
        s_add_u32 s{c.sSeq}, s{c.sSeq}, s{c.sT1}
        s_cmp_ge_u32 s{c.sSeq}, {NST}
        s_cselect_b32 s{c.sT1}, {NST}, 0
        s_sub_u32 s{c.sSeq}, s{c.sSeq}, s{c.sT1}
        s_cmp_ge_u32 s{c.sSeq}, {NST}
        s_cselect_b32 s{c.sT1}, {NST}, 0
        s_sub_u32 s{c.sSeq}, s{c.sSeq}, s{c.sT1}
        """)
        if E('NOROTS'): a(f"s_mov_b32 s{c.sSeq}, 0")
    def loader_setup(self):
        a, c = self.a, self
        if c.op: make_srd(a, c.sA, pWS, pWS+1, WS_O, SZ_ACT)
        else: make_srd(a, c.sA, pWS, pWS+1, WS_F, SZ_F)
        a(f"""
        s_sub_u32 s{c.sLw}, s{sWV}, 4
        v_lshlrev_b32 v{c.vA}, 4, v1
        s_lshl_b32 s{c.sT0}, s{c.sLw}, 17
        s_lshl_b32 s{c.sT1}, s{c.sM0}, 4
        s_add_u32 s{c.sAoff}, s{c.sT0}, s{c.sT1}
        s_mul_i32 s{c.sT0}, s{c.sLw}, 5120
        s_mul_i32 s{c.sT1}, s{c.sNt}, {c.NST * 20480}
        s_add_u32 s{c.sWoff}, s{c.sT0}, s{c.sT1}
        s_add_u32 s{c.sWoff}, s{c.sWoff}, {WS_WOP if c.op else WS_W2P}
        s_lshl_b32 s{c.sLdsA}, s{c.sLw}, 12
        s_add_u32 s{c.sLdsW}, s{c.sT0}, 16384
        s_mul_i32 s{c.sT0}, s{c.sSeq}, {16 * 32768}
        s_add_u32 s{c.sAoff}, s{c.sAoff}, s{c.sT0}
        s_mul_i32 s{c.sT0}, s{c.sSeq}, 20480
        s_add_u32 s{c.sWoff}, s{c.sWoff}, s{c.sT0}
        s_mov_b32 s{c.sSeqW}, s{c.sSeq}
        """)
    def issue_A(self, seq):
        a, c = self.a, self
        slot = (seq % 4) * STG
        for j in range(4):
            a(f"s_add_u32 m0, s{c.sLdsA}, {slot}" if j == 0 else "s_add_u32 m0, m0, 1024")
            a(f"s_mov_b32 s{c.sT0}, s{c.sAoff}" if j == 0 else f"s_add_u32 s{c.sT0}, s{c.sT0}, 32768")
            a(f"buffer_load_dwordx4 v{c.vA}, s[{c.sA}:{c.sA+3}], s{c.sT0} offen lds")
        a(f"""
        s_add_u32 s{c.sSeq}, s{c.sSeq}, 1
        s_cmp_eq_u32 s{c.sSeq}, {c.NST}
        s_cselect_b32 s{c.sT0}, {c.NST * 16 * 32768}, 0
        s_cselect_b32 s{c.sSeq}, 0, s{c.sSeq}
        s_add_u32 s{c.sAoff}, s{c.sAoff}, {16 * 32768}
        s_sub_u32 s{c.sAoff}, s{c.sAoff}, s{c.sT0}
        """)
    def issue_W(self, seq):
        a, c = self.a, self
        slot = (seq % 4) * STG
        a(f"s_add_u32 m0, s{c.sLdsW}, {slot}")
        a(f"s_add_u32 s{c.sT0}, s{c.sWoff}, 4096")
        for j in range(4):
            a(f"buffer_load_dwordx4 v{c.vA}, s[{sWS}:{sWS+3}], s{c.sWoff} offen offset:{j*1024} lds")
        a("s_add_u32 m0, m0, 4096")
        a(f"s_add_u32 s{c.sSeqW}, s{c.sSeqW}, 1")
        a(f"buffer_load_dwordx4 v{c.vA}, s[{sWS}:{sWS+3}], s{c.sT0} offen lds")
        a(f"""
        s_cmp_eq_u32 s{c.sSeqW}, {c.NST}
        s_cselect_b32 s{c.sT0}, {c.NST * 20480}, 0
        s_cselect_b32 s{c.sSeqW}, 0, s{c.sSeqW}
        s_add_u32 s{c.sWoff}, s{c.sWoff}, 20480
        s_sub_u32 s{c.sWoff}, s{c.sWoff}, s{c.sT0}
        """)
    def loader_main(self, q):
        a, c = self.a, self
        for s_ in range(c.NST):
            a(f"s_waitcnt vmcnt({q.need(f'A{s_}', f'W{s_}')})")
            a("s_barrier")
            stx(a, f"{'o' if c.op else 'g'}l{s_}")
            if s_ + PD < c.NST and not (E('S_NODMA') and not c.op):
                if not E('S_NOA'): c.issue_A(s_ + PD); q.push(f"A{s_+PD}", 4)
                if not E('S_NOW'): c.issue_W(s_ + PD); q.push(f"W{s_+PD}", 5)
    vXb, vWb, vXa, vWa, vX, vW, vRes, vT, vAcc = 4, 5, 6, 7, 8, 32, 70, 84, 96
    vXa2, vWa2 = 120, 121
    def compute_setup(self):
        a, c = self.a, self
        vT = c.vT
        a(f"""
        v_and_b32 v2, 15, v1
        v_lshrrev_b32 v3, 4, v1
        s_lshr_b32 s{c.sT1}, s{sWV}, 1
        s_and_b32 s{c.sT2}, s{sWV}, 1
        s_lshl_b32 s{c.sT0}, s{c.sT1}, 5
        s_add_u32 s{c.sT0}, s{c.sT0}, s{c.sM0}
        v_add_u32 v{vT}, s{c.sT0}, v2
        """)
        a(f"""
        s_mul_i32 s{c.sAoff}, s{c.sT2}, 48
        s_add_u32 s{c.sAoff}, s{c.sAoff}, s{c.sN0}
        v_mul_u32_u24 v{vT+1}, 1280, v{vT}
        v_lshlrev_b32 v{vT+3}, 3, v3
        v_add_u32 v{vT+1}, v{vT+1}, v{vT+3}
        s_lshl_b32 s{c.sT0}, s{c.sAoff}, 1
        v_add_u32 v{vT+1}, s{c.sT0}, v{vT+1}
        v_lshrrev_b32 v{vT+3}, 1, v3
        v_lshlrev_b32 v{vT+3}, 15, v{vT+3}
        v_lshlrev_b32 v{vT+2}, 4, v{vT}
        v_add_u32 v{vT+2}, v{vT+2}, v{vT+3}
        v_and_b32 v{vT+3}, 1, v3
        v_lshlrev_b32 v{vT+3}, 3, v{vT+3}
        v_add_u32 v{vT+2}, v{vT+2}, v{vT+3}
        s_lshl_b32 s{c.sT0}, s{c.sAoff}, 12
        v_add_u32 v{vT+2}, s{c.sT0}, v{vT+2}
        s_lshl_b32 s{c.sT0}, s{c.sT1}, 9
        v_lshlrev_b32 v{c.vXb}, 10, v3
        v_lshlrev_b32 v{vT+3}, 4, v2
        v_add_u32 v{c.vXb}, v{c.vXb}, v{vT+3}
        v_add_u32 v{c.vXb}, s{c.sT0}, v{c.vXb}
        v_lshrrev_b32 v{vT+3}, 1, v3
        v_lshlrev_b32 v{vT+3}, 4, v{vT+3}
        v_and_b32 v{vT+4}, 1, v3
        v_lshlrev_b32 v{vT+4}, 2, v{vT+4}
        v_add_u32 v{vT+3}, v{vT+3}, v{vT+4}
        v_lshrrev_b32 v{vT+4}, 2, v2
        v_add_u32 v{vT+3}, v{vT+3}, v{vT+4}
        v_mul_u32_u24 v{vT+3}, 160, v{vT+3}
        v_and_b32 v{vT+4}, 3, v1
        v_lshlrev_b32 v{vT+4}, 3, v{vT+4}
        v_add_u32 v{vT+3}, v{vT+3}, v{vT+4}
        s_mul_i32 s{c.sT0}, s{c.sT2}, 96
        s_add_u32 s{c.sT0}, s{c.sT0}, 16384
        v_add_u32 v{c.vWb}, s{c.sT0}, v{vT+3}
        s_mov_b32 s{c.sWoff}, s{c.sT2}
        """)
        if c.op:
            make_srd(a, c.sR, pX, pX+1, 0, 2048 * 1280)
            make_srd(a, c.sO, pWS, pWS+1, WS_H, SZ_ACT)
        else:
            make_srd(a, c.sR, pWS, pWS+1, WS_H, SZ_ACT)
            make_srd(a, c.sO, pOUT, pOUT+1, 0, 2048 * 1280)
        a(f"""
        s_cmp_eq_u32 s{c.sT2}, 1
        s_cselect_b32 s44, 0x7f000000, 0
        s_cselect_b64 s[46:47], -1, 0
        """)
    def pretouch(self): pass
    def tile_off(self, T, tt, rowmajor):
        a, c = self.a, self
        if rowmajor:
            base = T * 32 + tt * 16 * 1280
            val = base
        else:
            val = T * 65536 + tt * 256
        if T == 2:
            a(f"s_add_u32 s{c.sT0}, s44, {val}")
        else:
            a(f"s_mov_b32 s{c.sT0}, {val}")
        return (c.vT + 1 if rowmajor else c.vT + 2), c.sT0
    def residual_loads(self):
        a, c = self.a, self
        for T in range(3):
            for tt in range(2):
                va, so = c.tile_off(T, tt, c.op)
                a(f"buffer_load_dwordx2 {vr(c.vRes + 2*(T*2 + tt), 2)}, v{va}, s[{c.sR}:{c.sR+3}], s{so} offen")
    def mainloop(self, stamp0=None, tag=''):
        a, c = self.a, self
        N = c.NST * 4
        def rlist(i):
            st_, k, buf = i // 4, i % 4, i % 3
            xa, wa = (c.vXa, c.vWa) if st_ % 2 == 0 else (c.vXa2, c.vWa2)
            L = [f"ds_read_b128 {vr(c.vX + buf*8 + tt*4, 4)}, v{xa} offset:{k*4096 + tt*256}" for tt in range(2)]
            for T in range(3):
                for h2 in range(2):
                    L.append(f"ds_read_b64_tr_b16 {vr(c.vW + buf*12 + T*4 + h2*2, 2)}, v{wa} offset:{k*5120 + h2*1280 + T*32}")
            return L
        def setaddr(st_):
            slot = (st_ % 4) * STG
            xa, wa = (c.vXa, c.vWa) if st_ % 2 == 0 else (c.vXa2, c.vWa2)
            a(f"v_add_u32 v{xa}, {slot}, v{c.vXb}")
            a(f"v_add_u32 v{wa}, {slot}, v{c.vWb}")
        a("s_barrier")
        stx(a, tag + '_s0')
        setaddr(0)
        for r in rlist(0) + rlist(1): a(r)
        for i in range(N):
            buf = i % 3
            rl = rlist(i + 2) if i + 2 < N else []
            a(f"s_waitcnt lgkmcnt({8 if i + 1 < N else 0})")
            k = 0
            for T in range(3):
                for tt in range(2):
                    acc = c.vAcc + (T*2 + tt) * 4
                    cc = "0" if i == 0 else vr(acc, 4)
                    a(f"v_mfma_f32_16x16x32_bf16 {vr(acc,4)}, {vr(c.vW + buf*12 + T*4, 4)}, {vr(c.vX + buf*8 + tt*4, 4)}, {cc}")
                    if k == 0 and i + 2 < N and (i + 2) % 4 == 0:
                        a("s_barrier")
                        if (i + 2) // 4 == 1: stx(a, tag + '_s1')
                        if (i + 2) // 4 == 4: stx(a, tag + '_s4')
                        setaddr((i + 2) // 4)
                    for r in rl[[0, 2, 4, 5, 6, 7][k]:[2, 4, 5, 6, 7, 8][k]]: a(r)
                    k += 1
        a("s_nop 7")
    def reduce(self):
        pass
    def epilogue(self):
        a, c = self.a, self
        vT, vRes = c.vT, c.vRes
        a("s_waitcnt vmcnt(0)")
        P = 8
        for T in range(3):
            for tt in range(2):
                n = T*2 + tt
                acc = c.vAcc + n*4
                rr = vRes + 2*n
                a(f"""
                v_lshlrev_b32 v24, 16, v{rr}
                v_and_b32 v25, 0xffff0000, v{rr}
                v_lshlrev_b32 v26, 16, v{rr+1}
                v_and_b32 v27, 0xffff0000, v{rr+1}
                v_add_f32 v{acc}, v{acc}, v24
                v_add_f32 v{acc+1}, v{acc+1}, v25
                v_add_f32 v{acc+2}, v{acc+2}, v26
                v_add_f32 v{acc+3}, v{acc+3}, v27
                v_cvt_pk_bf16_f32 v{P+2*n}, v{acc}, v{acc+1}
                v_cvt_pk_bf16_f32 v{P+2*n+1}, v{acc+2}, v{acc+3}
                """)
                va, so = c.tile_off(T, tt, not c.op)
                ins = f"buffer_store_dwordx2 {vr(P+2*n, 2)}, v{va}, s[{c.sO}:{c.sO+3}], s{so} offen @SC"
                if c.op: dual(a, [ins])
                else: a(ins.replace("@SC", E('OUTFL', '')))
        if c.op:
            for tt in range(2):
                S, Q = 28 + 2*tt, 29 + 2*tt
                first = True
                for T in range(3):
                    n = T*2 + tt
                    for d in range(2):
                        r = P + 2*n + d
                        a(f"v_lshlrev_b32 v24, 16, v{r}")
                        a(f"v_and_b32 v25, 0xffff0000, v{r}")
                        if T == 2:
                            a(f"v_cndmask_b32 v24, v24, 0, s[46:47]")
                            a(f"v_cndmask_b32 v25, v25, 0, s[46:47]")
                        if first:
                            a(f"v_add_f32 v{S}, v24, v25")
                            a(f"v_mul_f32 v{Q}, v24, v24")
                            first = False
                        else:
                            a(f"v_add_f32 v{S}, v{S}, v24")
                            a(f"v_add_f32 v{S}, v{S}, v25")
                            a(f"v_fmac_f32 v{Q}, v24, v24")
                        a(f"v_fmac_f32 v{Q}, v25, v25")
            a(f"""
            v_mov_b32 v32, v28
            v_mov_b32 v33, v29
            v_mov_b32 v34, v30
            v_mov_b32 v35, v31
            s_nop 1
            v_permlane32_swap_b32 v28, v32
            v_permlane32_swap_b32 v29, v33
            v_permlane32_swap_b32 v30, v34
            v_permlane32_swap_b32 v31, v35
            s_nop 1
            v_add_f32 v28, v28, v32
            v_add_f32 v29, v29, v33
            v_add_f32 v30, v30, v34
            v_add_f32 v31, v31, v35
            s_nop 0
            v_mov_b32 v32, v28
            v_mov_b32 v33, v29
            v_mov_b32 v34, v30
            v_mov_b32 v35, v31
            s_nop 1
            v_permlane16_swap_b32 v28, v32
            v_permlane16_swap_b32 v29, v33
            v_permlane16_swap_b32 v30, v34
            v_permlane16_swap_b32 v31, v35
            s_nop 1
            v_add_f32 v28, v28, v32
            v_add_f32 v29, v29, v33
            v_add_f32 v30, v30, v34
            v_add_f32 v31, v31, v35
            s_lshl_b32 s{c.sT0}, s{c.sNt}, 1
            s_add_u32 s{c.sT0}, s{c.sT0}, s{c.sWoff}
            s_lshl_b32 s{c.sT0}, s{c.sT0}, 14
            s_add_u32 s{c.sT0}, s{c.sT0}, {WS_ST2}
            v_lshlrev_b32 v32, 3, v{vT}
            s_mov_b64 exec, 0xffff
            """)
            dual(a, [f"buffer_store_dwordx2 v[28:29], v32, s[{sWS}:{sWS+3}], s{c.sT0} offen @SC",
                     f"buffer_store_dwordx2 v[30:31], v32, s[{sWS}:{sWS+3}], s{c.sT0} offen offset:128 @SC"])
            a("s_mov_b64 exec, -1")

KT = 1536
SLOT = 8 * KT + 16384
VOFF = 8 * KT
NSLOT = 5
FLAG = NSLOT * SLOT

def attn_pad_init(a, nw_base, per_wave):
    a(f"""
    v_and_b32 v120, 31, v1
    v_mov_b32 v124, 0
    v_mov_b32 v123, 0x3f803f80
    v_cmp_eq_u32 vcc, 20, v120
    s_sub_u32 s75, s{sWV}, {nw_base}
    s_mul_i32 s75, s75, {per_wave * 1024}
    s_add_u32 s75, s75, {VOFF}
    v_cndmask_b32 v124, v124, v123, vcc
    v_lshlrev_b32 v123, 4, v1
    v_add_u32 v123, s75, v123
    v_mov_b32 v125, v124
    v_mov_b32 v126, v124
    v_mov_b32 v127, v124
    s_mov_b32 exec_lo, 0xfff00000
    s_mov_b32 exec_hi, 0xfff00000
    """)
    base = 0
    for sl in range(NSLOT):
        for j in range(per_wave):
            off = sl * SLOT + j * 1024
            if off - base >= 65536 - 1024:
                a(f"v_add_u32 v123, {sl*SLOT - base}, v123")
                base = sl * SLOT
            a(f"ds_write_b128 v123, v[124:127] offset:{off - base}")
    a(f"""
    s_mov_b64 exec, -1
    v_mov_b32 v123, {FLAG}
    v_mov_b32 v124, 0
    ds_write_b32 v123, v124
    s_waitcnt lgkmcnt(0)
    """)

def emit_attention(a, after_stores):
    name = "att"
    sK, sV, sQ, sO = 8, 12, 16, 20
    sHead, sQt, sT0, sT1, sT2 = 25, 26, 27, 28, 29
    sChunk, sSlotN, sPass, sKoff, sVoff, sKh = 30, 31, 32, 33, 34, 35
    sVmask = 38
    sSlotW, sE, sQg, sQb = 40, 41, 42, 43
    sW1s = 44
    vL16, vVoff = 2, 3
    vA3 = [[4, 5, 6], [7, 8, 9], [172, 173, 174]]
    vQ, vQr, vNC, vS, vP, vKb, vKr, vV, vO, vT = 10, 18, 22, 54, 86, 94, 102, 110, 126, 158
    lane_id(a, 0)
    lane_id(a, 1)
    a(f"""
    s_mov_b32 s{sVmask}, 0x000fffff
    s_mov_b32 s{sVmask+1}, 0x000fffff
    s_mov_b32 s{sPass}, 0
    s_lshr_b32 s{sKh}, s{sWV}, 2
    s_and_b32 s{sQg}, s{sWV}, 3
    v_lshlrev_b32 v{vL16}, 4, v0
    v_and_b32 v{vT}, 31, v0
    v_lshrrev_b32 v{vT+1}, 5, v0
    v_mul_u32_u24 v{vVoff}, 320, v{vT+1}
    v_lshlrev_b32 v{vT+2}, 4, v{vT}
    v_add_u32 v{vVoff}, v{vVoff}, v{vT+2}
    """)
    make_srd(a, sK, pWS, pWS+1, WS_K, SZ_QK)
    make_srd(a, sV, pWS, pWS+1, WS_V, SZ_QKV)
    make_srd(a, sQ, pWS, pWS+1, WS_Q, SZ_QK)
    make_srd(a, sO, pWS, pWS+1, WS_O, SZ_ACT)
    make_srd(a, sW1s, pW1, pW1+1, 0, 640*3456)
    def zero_regs():
        for i in range(32): a(f"v_mov_b32 v{vO+i}, 0")
        for i in range(4):
            a(f"v_mov_b32 v{vP+4+i}, 0")
            a(f"v_mov_b32 v{vV+12+i}, 0")
    zero_regs()
    a(f"v_and_b32 v{vT+11}, 7, v0")
    a(f"v_lshlrev_b32 v{vT+11}, 7, v{vT+11}")
    a(f"v_add_u32 v{vT+11}, {WS_CNT + C_RPS*128}, v{vT+11}")
    a(f"v_mov_b32 v{vT+10}, 0")
    a("s_barrier")
    a(f"""
    v_mov_b32 v4, {ROLE}
    ds_read_b96 v[6:8], v4
    s_waitcnt lgkmcnt(0)
    v_readfirstlane_b32 s{sX}, v6
    v_readfirstlane_b32 s{sRk}, v7
    v_readfirstlane_b32 s{sLoc}, v8
    s_and_b32 s{sT0}, s2, 7
    s_lshr_b32 s{sT1}, s2, 3
    s_cmp_eq_u32 s{sLoc}, 0
    s_cselect_b32 s{sX}, s{sT0}, s{sX}
    s_cselect_b32 s{sRk}, s{sT1}, s{sRk}
    s_mov_b32 s{sHead}, s{sRk}
    s_mov_b32 s{sQb}, s{sX}
    s_lshl_b32 s{sQt}, s{sQb}, 3
    s_and_b32 s{sE}, s{sHead}, 1
    """)
    def reinit():
        a(f"""
        s_lshl_b32 s{sT0}, s{sE}, 9
        s_mul_i32 s{sT1}, s{sKh}, {4*KT}
        s_add_u32 s{sT0}, s{sT0}, s{sT1}
        v_add_u32 v{vA3[0][0]}, s{sT0}, v{vL16}
        s_sub_u32 s{sT0}, 1, s{sE}
        s_lshl_b32 s{sT0}, s{sT0}, 10
        s_lshl_b32 s{sT2}, s{sE}, 3
        s_add_u32 s{sT0}, s{sT0}, s{sT2}
        s_add_u32 s{sT0}, s{sT0}, s{sT1}
        v_and_b32 v{vT}, 31, v0
        v_lshlrev_b32 v{vA3[0][1]}, 4, v{vT}
        v_add_u32 v{vA3[0][1]}, s{sT0}, v{vA3[0][1]}
        s_lshl_b32 s{sT0}, s{sKh}, 13
        s_add_u32 s{sT0}, s{sT0}, {VOFF}
        v_add_u32 v{vA3[0][2]}, s{sT0}, v{vL16}
        s_mov_b32 s{sSlotN}, {2*SLOT}
        s_lshr_b32 s{sT0}, s{sHead}, 1
        s_mul_i32 s{sT0}, s{sT0}, 163840
        s_mul_i32 s{sT1}, s{sWV}, 2560
        s_add_u32 s{sKoff}, s{sT0}, s{sT1}
        s_lshl_b32 s{sT1}, s{sE}, 10
        s_add_u32 s{sKoff}, s{sKoff}, s{sT1}
        s_mul_i32 s{sT0}, s{sHead}, 81920
        s_mul_i32 s{sT1}, s{sWV}, 1280
        s_add_u32 s{sVoff}, s{sT0}, s{sT1}
        s_mov_b32 s{sSlotW}, 0
        """)
        for k in range(3):
            a(f"v_add_u32 v{vA3[1][k]}, {SLOT}, v{vA3[0][k]}")
            a(f"v_add_u32 v{vA3[2][k]}, {2*SLOT}, v{vA3[0][k]}")
    reinit()
    a(f"""
    s_lshl_b32 s{sT0}, s{sQg}, 1
    s_add_u32 s{sQt}, s{sQt}, s{sT0}
    v_lshlrev_b32 v{vT+13}, 4, v{vT}
    s_lshl_b32 s{sT1}, s{sE}, 3
    s_add_u32 s{sT1}, s{sT1}, 1024
    v_add_u32 v{vT+13}, s{sT1}, v{vT+13}
    v_mov_b32 v{vT+9}, 0x7fffff00
    """)
    a(f"""
    v_cmp_gt_u32 vcc, 32, v0
    s_mul_i32 s{sT1}, s{sE}, 1536
    v_cndmask_b32 v{vT+13}, v{vT+9}, v{vT+13}, vcc
    v_add_u32 v{vT+12}, s{sT1}, v{vL16}
    """)
    lw = a.newlabel("attw")
    a(f"""
    s_cmp_eq_u32 s{sWV}, 0
    s_cbranch_scc0 {lw}
    s_mul_i32 s{sT0}, s{sHead}, 20
    s_lshr_b32 s{sT1}, s{sT0}, 7
    s_add_u32 s{sT0}, s{sT0}, 19
    s_lshr_b32 s{sT0}, s{sT0}, 7
    v_and_b32 v{vT+3}, 1, v0
    v_mov_b32 v{vT+4}, s{sT1}
    v_mov_b32 v{vT+5}, s{sT0}
    v_cmp_eq_u32 vcc, 1, v{vT+3}
    v_lshrrev_b32 v{vT+6}, 1, v0
    v_mul_u32_u24 v{vT+6}, 5, v{vT+6}
    v_cndmask_b32 v{vT+4}, v{vT+4}, v{vT+5}, vcc
    v_add_u32 v{vT+4}, v{vT+4}, v{vT+6}
    v_add_u32 v{vT+4}, {C_QKV}, v{vT+4}
    v_lshlrev_b32 v{vT+4}, 7, v{vT+4}
    v_add_u32 v{vT+4}, {WS_CNT}, v{vT+4}
    v_mov_b32 v{vT+5}, 16
    """)
    stx(a, 'a_p0')
    poll(a, vT + 4, vT + 5, 6, vT + 6, slp=int(E('QSLP', '1')))
    a.label(lw)
    stx(a, 'a_pre')
    a("s_waitcnt lgkmcnt(0)")
    a("s_barrier")
    st(a, 5)
    def rpa():
        a("s_and_b32 s76, s2, 7")
        a(f"s_add_u32 s76, s76, {C_RPS}")
        arrive(a, 76, vT + 4)
    KVF = E('KVF', '')
    def dma_kpart():
        a(f"""
        s_mul_i32 s{sT0}, s{sWV}, {KT}
        s_add_u32 m0, s{sSlotW}, s{sT0}
        s_nop 0
        buffer_load_dwordx4 v{vL16}, s[{sK}:{sK+3}], s{sKoff} offen {KVF} lds
        s_mov_b32 exec_hi, 0
        buffer_load_dwordx4 v{vL16}, s[{sK}:{sK+3}], s{sKoff} offen offset:1024 {KVF} lds
        s_mov_b32 exec_hi, -1
        s_add_u32 s{sKoff}, s{sKoff}, {8*2560}
        """)
    def dma_vpart():
        a(f"""
        s_lshl_b32 s{sT1}, s{sWV}, 11
        s_add_u32 s{sT1}, s{sT1}, s{sSlotW}
        s_add_u32 m0, s{sT1}, {VOFF}
        s_mov_b64 exec, s[{sVmask}:{sVmask+1}]
        buffer_load_dwordx4 v{vVoff}, s[{sV}:{sV+3}], s{sVoff} offen {KVF} lds
        s_add_u32 m0, m0, 1024
        s_add_u32 s{sT1}, s{sVoff}, 640
        buffer_load_dwordx4 v{vVoff}, s[{sV}:{sV+3}], s{sT1} offen {KVF} lds
        s_mov_b64 exec, -1
        s_add_u32 s{sVoff}, s{sVoff}, 10240
        s_add_u32 s{sSlotW}, s{sSlotW}, {SLOT}
        s_cmp_ge_u32 s{sSlotW}, {NSLOT*SLOT}
        s_cselect_b32 s{sSlotW}, 0, s{sSlotW}
        """)
    def dma_chunk():
        dma_kpart(); dma_vpart()
    dma_kpart()
    a(f"s_lshr_b32 s{sT0}, s{sHead}, 1")
    a(f"s_mul_i32 s{sT0}, s{sT0}, 163840")
    for s in range(2):
        a(f"""
        s_xor_b32 s{sT1}, s{sKh}, {s}
        s_add_u32 s{sT1}, s{sT1}, s{sQt}
        s_mul_i32 s{sT1}, s{sT1}, 2560
        s_add_u32 s{sT1}, s{sT1}, s{sT0}
        buffer_load_dwordx4 {vr(vQ+4*s,4)}, v{vT+12}, s[{sQ}:{sQ+3}], s{sT1} offen
        buffer_load_dwordx2 {vr(vQr+2*s,2)}, v{vT+13}, s[{sQ}:{sQ+3}], s{sT1} offen
        """)
    dma_vpart()
    a(f"s_branch L_{name}_start")
    a.label(f"L_{name}_restart")
    zero_regs()
    reinit()
    dma_chunk()
    a.label(f"L_{name}_start")
    vKc, vKrc, vVc = vA3[0]
    a(f"""
    s_waitcnt vmcnt(2)
    """)
    stx(a, 'a_c0')
    a("s_barrier")
    a(f"""
    s_cmp_eq_u32 s{sPass}, 0
    s_cbranch_scc0 L_{name}_haveC
    s_mul_i32 s{sT1}, s{sKh}, {4*KT}
    v_subrev_u32 v{vT+1}, s{sT1}, v{vKc}
    v_subrev_u32 v{vT+2}, s{sT1}, v{vKrc}
    ds_read_b128 {vr(vKb,4)}, v{vT+1}
    ds_read_b64 {vr(vKr,2)}, v{vT+2}
    s_waitcnt lgkmcnt(0)
    """)
    for s in range(2):
        S = vS + 16*s
        a(f"v_mfma_f32_32x32x16_bf16 {vr(S,16)}, {vr(vKb,4)}, {vr(vQ+4*s,4)}, 0")
    for s in range(2):
        S = vS + 16*s
        a(f"v_mfma_f32_32x32x8_bf16 {vr(S,16)}, {vr(vKr,2)}, {vr(vQr+2*s,2)}, {vr(S,16)}")
    a(f"""
    ds_read_b128 {vr(vKb,4)}, v{vKc}
    ds_read2st64_b64 {vr(vKr,4)}, v{vKrc} offset0:0 offset1:3
    s_nop 13
    """)
    for s in range(2):
        S = vS + 16*s
        T_ = vT + 2*s
        a(f"v_max3_f32 v{T_}, v{S}, v{S+1}, v{S+2}")
        for i in range(3, 15, 2):
            a(f"v_max3_f32 v{T_}, v{T_}, v{S+i}, v{S+i+1}")
        a(f"v_max_f32 v{T_}, v{T_}, v{S+15}")
    a(f"""
    v_mov_b32 v{vT+1}, v{vT}
    v_mov_b32 v{vT+3}, v{vT+2}
    s_nop 1
    v_permlane32_swap_b32 v{vT}, v{vT+1}
    v_permlane32_swap_b32 v{vT+2}, v{vT+3}
    s_nop 1
    v_max_f32 v{vT}, v{vT}, v{vT+1}
    v_max_f32 v{vT+2}, v{vT+2}, v{vT+3}
    v_sub_f32 v{vNC}, 0, v{vT}
    v_sub_f32 v{vNC+16}, 0, v{vT+2}
    """)
    for i in range(1, 16):
        a(f"v_mov_b32 v{vNC+i}, v{vNC}")
        a(f"v_mov_b32 v{vNC+16+i}, v{vNC+16}")
    a(f"s_branch L_{name}_haveC2")
    a.label(f"L_{name}_haveC")
    a(f"""
    ds_read_b128 {vr(vKb,4)}, v{vKc}
    ds_read2st64_b64 {vr(vKr,4)}, v{vKrc} offset0:0 offset1:3
    """)
    a.label(f"L_{name}_haveC2")
    a(f"""
    s_waitcnt lgkmcnt(0)
    v_mfma_f32_32x32x16_bf16 {vr(vS,16)}, {vr(vKb,4)}, {vr(vQ,4)}, {vr(vNC,16)}
    v_mfma_f32_32x32x8_bf16 {vr(vS,16)}, {vr(vKr,2)}, {vr(vQr,2)}, {vr(vS,16)}
    s_waitcnt vmcnt(0)
    s_barrier
    ds_read_b128 {vr(vV,4)}, v{vVc}
    ds_read_b128 {vr(vV+4,4)}, v{vVc} offset:1024
    """)
    dma_chunk()
    a(f"""
    s_mov_b32 s{sChunk}, 0
    s_waitcnt lgkmcnt(0)
    """)
    st(a, 6)
    a(f"""
    s_cmp_eq_u32 s{sKh}, 0
    s_cselect_b32 s36, 7, 0
    s_cselect_b32 s37, 0, 7
    """)
    ool = []
    def rare(mask, fn, tag):
        l, b = a.newlabel(tag), a.newlabel(tag + "b")
        a(f"s_bitcmp1_b32 {mask:#x}, s{sChunk}")
        a(f"s_cbranch_scc1 {l}")
        a.label(b)
        ool.append((l, b, fn))
    def common_(mask, fn, tag):
        l = a.newlabel(tag)
        a(f"s_bitcmp1_b32 {mask if isinstance(mask, str) else hex(mask)}, s{sChunk}")
        a(f"s_cbranch_scc0 {l}")
        fn()
        a.label(l)
    def pf_A(half, which='w1'):
        if which == 'w1':
            a(f"""
            v_lshlrev_b32 v{vT+12}, 7, v0
            s_mul_i32 s{sT0}, s{sRk}, 69120
            s_lshl_b32 s{sT1}, s{sWV}, 13
            s_add_u32 s{sT0}, s{sT0}, s{sT1}
            s_mov_b32 exec_lo, {-1 if half == 0 else 0}
            s_mov_b32 exec_hi, {0 if half == 0 else -1}
            buffer_load_dword v{vT+13}, v{vT+12}, s[{sW1s}:{sW1s+3}], s{sT0} offen sc1
            s_mov_b64 exec, -1
            """)
        else:
            a(f"""
            v_lshlrev_b32 v{vT+12}, 7, v0
            s_mul_i32 s{sT0}, s{sRk}, {SZ_W2P // 32}
            s_lshl_b32 s{sT1}, s{sWV}, 13
            s_add_u32 s{sT0}, s{sT0}, s{sT1}
            s_add_u32 s{sT0}, s{sT0}, {WS_W2P}
            s_mov_b32 exec_lo, {-1 if half == 0 else 0}
            s_mov_b32 exec_hi, {0 if half == 0 else -1}
            buffer_load_dword v{vT+13}, v{vT+12}, s[{sWS}:{sWS+3}], s{sT0} offen sc1
            s_mov_b64 exec, -1
            """)
    def pf_B():
        l5, l4, le = a.newlabel("pf5"), a.newlabel("pf4"), a.newlabel("pfe")
        a(f"""
        v_lshlrev_b32 v{vT+12}, 7, v0
        s_cmp_ge_u32 s{sWV}, 5
        s_cbranch_scc1 {l5}
        s_cmp_eq_u32 s{sWV}, 4
        s_cbranch_scc1 {l4}
        s_mul_i32 s{sT0}, s{sRk}, {SZ_WOP // 32}
        s_lshl_b32 s{sT1}, s{sWV}, 13
        s_add_u32 s{sT0}, s{sT0}, s{sT1}
        s_add_u32 s{sT0}, s{sT0}, {WS_WOP}
        buffer_load_dword v{vT+13}, v{vT+12}, s[{sWS}:{sWS+3}], s{sT0} offen sc1
        s_branch {le}
        """)
        a.label(l4)
        a(f"""
        s_mul_i32 s{sT0}, s{sRk}, 69120
        s_add_u32 s{sT0}, s{sT0}, 65536
        s_mov_b32 exec_hi, 0
        buffer_load_dword v{vT+13}, v{vT+12}, s[{sW1s}:{sW1s+3}], s{sT0} offen sc1
        s_mov_b32 exec_hi, -1
        """)
        if not E('NOTLB2'):
            a(f"v_lshlrev_b32 v{vT+12}, 21, v0")
            a("s_mov_b64 exec, 0xfff")
            a(f"buffer_load_dword v{vT+13}, v{vT+12}, s[{sWS}:{sWS+3}], 0 offen sc1")
            a("s_mov_b64 exec, 3")
            make_srd(a, 16, pOUT, pOUT+1, 0, 2048*1280)
            a(f"buffer_load_dword v{vT+13}, v{vT+12}, s[16:19], 0 offen sc1")
            a("s_mov_b64 exec, -1")
        a(f"""
        s_branch {le}
        """)
        a.label(l5)
        a(f"""
        s_sub_u32 s{sT1}, s{sWV}, 5
        s_lshl_b32 s{sT1}, s{sT1}, 5
        s_mul_i32 s{sT0}, s{sRk}, 80
        s_add_u32 s{sT0}, s{sT0}, s{sT1}
        v_and_b32 v{vT+8}, 31, v0
        v_add_u32 v{vT+8}, s{sT0}, v{vT+8}
        v_lshrrev_b32 v{vT+9}, 5, v{vT+8}
        v_lshlrev_b32 v{vT+9}, 15, v{vT+9}
        v_and_b32 v{vT+8}, 31, v{vT+8}
        v_lshlrev_b32 v{vT+8}, 7, v{vT+8}
        v_add_u32 v{vT+8}, v{vT+8}, v{vT+9}
        s_lshl_b32 s{sT0}, s{sX}, 12
        s_mov_b32 exec_hi, 0
        buffer_load_dword v{vT+13}, v{vT+8}, s[{sO}:{sO+3}], s{sT0} offen sc1
        s_mov_b32 exec_hi, -1
        """)
        a.label(le)
    def rp_issue():
        a("s_mov_b64 exec, 0xff")
        a(f"buffer_load_dword v{vT+10}, v{vT+11}, s[{sWS}:{sWS+3}], 0 offen sc1")
        a("s_mov_b64 exec, -1")
    def rp_check():
        ok = a.newlabel("rpok")
        a("s_mov_b64 exec, 0xff")
        a(f"v_cmp_gt_u32 vcc, 32, v{vT+10}")
        a("s_nop 4")
        a("s_cmp_eq_u64 vcc, 0")
        a(f"s_cbranch_scc1 {ok}")
        a(f"v_mov_b32 v{vT+9}, 32")
        poll(a, vT + 11, vT + 9, 8, vT + 10)
        a.label(ok)
        a("s_mov_b64 exec, -1")
    def rp_load():
        le = a.newlabel("rle")
        a(f"s_cmp_eq_u32 s{sPass}, 0")
        a(f"s_cbranch_scc0 {le}")
        a(f"s_cmp_ge_u32 s{sWV}, 4")
        a(f"s_cbranch_scc0 {le}")
        for r in range(3):
            la, lb = a.newlabel("rla"), a.newlabel("rlb")
            a(f"v_accvgpr_read_b32 v{vT+4}, a{43+2*r}")
            a(f"v_accvgpr_read_b32 v{vT+5}, a{44+2*r}")
            a(f"v_accvgpr_read_b32 v{vT+6}, a{49+r}")
            make_srd(a, 16, pWO, pWO+1, 0, 640*1280)
            a(f"""
            v_cmp_gt_u32 vcc, 40, v{vT+6}
            s_nop 4
            s_mov_b64 s[76:77], vcc
            s_mov_b64 exec, vcc
            s_cbranch_execz {la}
            buffer_load_dwordx4 {ar(28+4*r,4)}, v{vT+4}, s[16:19], 0 offen
            {la}:
            """)
            make_srd(a, 16, pW2, pW2+1, 0, 1728*1280)
            a(f"""
            s_not_b64 exec, s[76:77]
            s_cbranch_execz {lb}
            buffer_load_dwordx4 {ar(28+4*r,4)}, v{vT+5}, s[16:19], 0 offen
            {lb}:
            s_mov_b64 exec, -1
            """)
        a(f"""
        s_mul_i32 s76, s2, 8640
        s_sub_u32 s77, s{sWV}, 4
        s_mul_i32 s77, s77, 2176
        s_add_u32 s76, s76, s77
        v_lshlrev_b32 v{vT+4}, 7, v0
        s_mov_b64 exec, 0x1ffff
        buffer_load_dword v{vT+5}, v{vT+4}, s[{sW1s}:{sW1s+3}], s76 offen sc1
        s_mov_b64 exec, -1
        """)
        a.label(le)
    def rp_store():
        le = a.newlabel("rse")
        a(f"s_cmp_eq_u32 s{sPass}, 0")
        a(f"s_cbranch_scc0 {le}")
        a(f"s_cmp_ge_u32 s{sWV}, 4")
        a(f"s_cbranch_scc0 {le}")
        for r in range(3): a(f"v_accvgpr_read_b32 v{vT+4+r}, a{40+r}")
        a(f"s_mov_b32 s76, {WS_WOP}")
        for r in range(3):
            a(f"buffer_store_dwordx4 {ar(28+4*r,4)}, v{vT+4+r}, s[{sWS}:{sWS+3}], s76 offen {SC}")
        a.label(le)
    def rp_arr():
        le = a.newlabel("rae")
        a(f"s_cmp_eq_u32 s{sPass}, 0")
        a(f"s_cbranch_scc0 {le}")
        wave_only(a, 4, rpa)
        a.label(le)
    def rp_post():
        l2, le = a.newlabel("rp2"), a.newlabel("rpe")
        a(f"s_cmp_eq_u32 s{sChunk}, 2")
        a(f"s_cbranch_scc0 {l2}")
        a(f"s_cmp_eq_u32 s{sPass}, 0")
        a(f"s_cbranch_scc0 {le}")
        wave_only(a, 4, rpa)
        a(f"s_branch {le}")
        a.label(l2)
        rp_check()
        a.label(le)
    if E('A_PRIO'):
        l = a.newlabel("prio")
        a(f"s_cmp_ge_u32 s{sWV}, 4")
        a(f"s_cbranch_scc0 {l}")
        a(f"s_setprio {E('A_PRIO')}")
        a.label(l)
    a(".p2align 6")
    a.label(f"L_{name}_loop")
    rd = (lambda x: None) if E('A_NORD') else a
    for u in range(16):
        p = u & 1
        t = u >> 1
        D1 = int(E('A_D1', '6'))
        def common_else(mask, fn, fn_else, tag):
            l, b = a.newlabel(tag), a.newlabel(tag + "b")
            a(f"s_bitcmp1_b32 {mask:#x}, s{sChunk}")
            a(f"s_cbranch_scc0 {l}")
            fn()
            a.label(b)
            ool.append((l, b, fn_else))
        def by_pair(d):
            def f():
                le = a.newlabel("bpe")
                for k, fn in d.items():
                    ln = a.newlabel("bpn")
                    a(f"s_cmp_eq_u32 s{sChunk}, {k}")
                    a(f"s_cbranch_scc0 {ln}")
                    fn()
                    a(f"s_branch {le}")
                    a.label(ln)
                a.label(le)
            return f
        if u == 0: common_else(0b0111, dma_chunk, lambda: pf_A(0), "d0")
        if u == 6:
            rare(0b0101, by_pair({0: lambda: (a("s_waitcnt vmcnt(4)"), a("s_barrier")), 2: rp_store}), "c1")
            common_else(0b0111, dma_chunk, lambda: pf_A(1), "d1")
        if u == 10: rare(0b1000, pf_B, "pc")
        if u == 14:
            rare(0b1000, rp_issue, "rpi")
            a("s_waitcnt vmcnt(0)")
            a("s_barrier")
            rare(0b1101, by_pair({0: rp_load, 2: rp_arr, 3: rp_check}), "rpc")
        tn = t + 1
        A = vA3[tn // 4]
        if p == 0:
            rd(f"ds_read_b128 {vr(vKb + 4*(tn&1),4)}, v{A[0]} offset:{(tn%4)*KT}")
            if tn % 2 == 0:
                pb = (tn // 2) & 1
                rd(f"ds_read2st64_b64 {vr(vKr + 4*pb,4)}, v{A[1]} offset0:{(tn%4)*3} offset1:{(tn%4)*3+3}")
            rd(f"ds_read_b128 {vr(vV + 8*(tn&1),4)}, v{A[2]} offset:{(tn%4)*2048}")
        else:
            rd("s_waitcnt lgkmcnt(0)")
        un = u + 1
        tq = un >> 1
        qs = un & 1
        Sc, Sn = vS + 16*p, vS + 16*(p^1)
        kbuf = vKb + 4*(tq & 1)
        krbuf = vKr + 4*((tq // 2) & 1) + 2*(tq & 1)
        ex = lambda r: a(f"v_exp_f32 v{Sc+r}, v{Sc+r}")
        cv = lambda r: a(f"v_cvt_pk_bf16_f32 v{vP+r}, v{Sc+2*r}, v{Sc+2*r+1}")
        a(f"v_mfma_f32_32x32x16_bf16 {vr(Sn,16)}, {vr(kbuf,4)}, {vr(vQ+4*qs,4)}, {vr(vNC+16*qs,16)}")
        for r in range(4): ex(r)
        tp = (u - 1) >> 1 if u > 0 else -1
        Op = vO + 16*((u - 1) & 1)
        a(f"v_mfma_f32_32x32x16_bf16 {vr(Op,16)}, {vr(vV + 8*(tp & 1) + 4,4)}, {vr(vP+4,4)}, {vr(Op,16)}")
        if p == 0:
            rd(f"ds_read_b128 {vr(vV + 8*(tn&1) + 4,4)}, v{A[2]} offset:{(tn%4)*2048 + 1024}")
        for r in range(4, 8): ex(r)
        cv(0); cv(1)
        a(f"v_mfma_f32_32x32x8_bf16 {vr(Sn,16)}, {vr(krbuf,2)}, {vr(vQr+2*qs,2)}, {vr(Sn,16)}")
        cv(2); cv(3)
        for r in range(8, 12): ex(r)
        Oc = vO + 16*p
        a(f"v_mfma_f32_32x32x16_bf16 {vr(Oc,16)}, {vr(vV + 8*(t & 1),4)}, {vr(vP,4)}, {vr(Oc,16)}")
        for r in range(12, 16): ex(r)
        if u == 15:
            a(f"""
            s_add_u32 s{sT0}, s{sSlotN}, {SLOT}
            s_cmp_ge_u32 s{sT0}, {NSLOT*SLOT}
            s_cselect_b32 s{sT1}, {NSLOT*SLOT}, 0
            s_sub_u32 s{sT0}, s{sT0}, s{sT1}
            s_sub_u32 s{sT1}, s{sT0}, s{sSlotN}
            s_add_u32 s{sT2}, s{sT0}, {SLOT}
            s_cmp_ge_u32 s{sT2}, {NSLOT*SLOT}
            s_cselect_b32 s{sT0}, {NSLOT*SLOT}, 0
            s_sub_u32 s{sT2}, s{sT2}, s{sT0}
            s_sub_u32 s{sT0}, s{sT2}, s{sSlotN}
            s_mov_b32 s{sSlotN}, s{sT2}
            """)
            for k in range(3):
                a(f"v_mov_b32 v{vA3[0][k]}, v{vA3[2][k]}")
                a(f"v_add_u32 v{vA3[1][k]}, s{sT1}, v{vA3[2][k]}")
                a(f"v_add_u32 v{vA3[2][k]}, s{sT0}, v{vA3[2][k]}")
        for r in range(4, 8): cv(r)
    a(f"""
    s_add_u32 s{sChunk}, s{sChunk}, 1
    s_cmp_lt_u32 s{sChunk}, 4
    s_cbranch_scc1 L_{name}_loop
    s_waitcnt lgkmcnt(0)
    """)
    a(f"v_mfma_f32_32x32x16_bf16 {vr(vO+16,16)}, {vr(vV + 8 + 4,4)}, {vr(vP+4,4)}, {vr(vO+16,16)}")
    st(a, 7)
    a(f"s_branch L_{name}_post")
    for l, b, fn in ool:
        a.label(l)
        fn()
        a(f"s_branch {b}")
    a.label(f"L_{name}_post")
    a(f"""
    s_barrier
    s_lshl_b32 s{sT0}, s{sQg}, 1
    s_add_u32 s{sT1}, s{sT0}, s{sKh}
    s_lshr_b32 s{sT2}, s{sT1}, 2
    s_mul_i32 s{sT2}, s{sT2}, {SLOT}
    s_and_b32 s{sT1}, s{sT1}, 3
    s_mul_i32 s{sT1}, s{sT1}, 3072
    s_add_u32 s{sT1}, s{sT1}, s{sT2}
    v_add_u32 v{vT}, s{sT1}, v{vL16}
    s_xor_b32 s{sT1}, s{sKh}, 1
    s_add_u32 s{sT1}, s{sT1}, s{sT0}
    s_lshr_b32 s{sT2}, s{sT1}, 2
    s_mul_i32 s{sT2}, s{sT2}, {SLOT}
    s_and_b32 s{sT1}, s{sT1}, 3
    s_mul_i32 s{sT1}, s{sT1}, 3072
    s_add_u32 s{sT1}, s{sT1}, s{sT2}
    v_add_u32 v{vT+1}, s{sT1}, v{vL16}
    s_nop 7
    """)
    stx(a, 'a_bar1')
    for i in range(3):
        a(f"ds_write_b128 v{vT}, {vr(vO+16+4*i,4)} offset:{i*1024}")
    a("s_waitcnt lgkmcnt(0)")
    a("s_barrier")
    stx(a, 'a_bar2')
    for i in range(3):
        a(f"ds_read_b128 {vr(vS+4*i,4)}, v{vT+1} offset:{i*1024}")
    a("s_waitcnt lgkmcnt(0)")
    for r in range(12):
        a(f"v_add_f32 v{vO+r}, v{vO+r}, v{vS+r}")
    a(f"v_mov_b32 v{vT}, 0")
    for r in range(12):
        a(f"v_fma_f32 v{vT}, v{vO+r}, 0, v{vT}")
    a(f"""
    s_cmp_eq_u32 s{sPass}, 0
    s_cbranch_scc0 L_{name}_store2
    v_cmp_u_f32 vcc, v{vT}, v{vT}
    s_nop 4
    s_cmp_eq_u64 vcc, 0
    s_cbranch_scc1 L_{name}_store2
    v_mov_b32 v{vT+1}, {FLAG}
    v_mov_b32 v{vT+2}, 1
    ds_write_b32 v{vT+1}, v{vT+2}
    s_branch L_{name}_store2
    L_{name}_redo:
    s_mov_b32 s{sPass}, 1
    v_mov_b32 v{vT}, 0xff800000
    v_mov_b32 v{vT+1}, 0xff800000
    s_lshr_b32 s{sT0}, s{sHead}, 1
    s_mul_i32 s{sT0}, s{sT0}, 163840
    s_mov_b32 s{sT1}, 0
    v_and_b32 v{vT+2}, 31, v0
    v_lshlrev_b32 v{vT+2}, 4, v{vT+2}
    s_lshl_b32 s{sT2}, s{sE}, 3
    s_add_u32 s{sT2}, s{sT2}, 1024
    v_add_u32 v{vT+2}, s{sT2}, v{vT+2}
    s_mul_i32 s{sT2}, s{sE}, 1536
    v_add_u32 v{vT+3}, s{sT2}, v{vL16}
    L_{name}_maxloop:
    buffer_load_dwordx4 {vr(vKb,4)}, v{vT+3}, s[{sK}:{sK+3}], s{sT0} offen
    buffer_load_dwordx2 {vr(vKr,2)}, v{vT+2}, s[{sK}:{sK+3}], s{sT0} offen
    s_waitcnt vmcnt(0)
    """)
    for s in range(2):
        S = vS + 16*s
        a(f"v_mfma_f32_32x32x16_bf16 {vr(S,16)}, {vr(vKb,4)}, {vr(vQ+4*s,4)}, 0")
        a(f"v_mfma_f32_32x32x8_bf16 {vr(S,16)}, {vr(vKr,2)}, {vr(vQr+2*s,2)}, {vr(S,16)}")
    a("s_nop 15")
    for s in range(2):
        for i in range(0, 16, 2):
            a(f"v_max3_f32 v{vT+s}, v{vT+s}, v{vS+16*s+i}, v{vS+16*s+i+1}")
    a(f"""
    s_add_u32 s{sT0}, s{sT0}, 2560
    s_add_u32 s{sT1}, s{sT1}, 1
    s_cmp_lt_u32 s{sT1}, 64
    s_cbranch_scc1 L_{name}_maxloop
    """)
    for s in range(2):
        a(f"""
        v_mov_b32 v{vT+2}, v{vT+s}
        s_nop 1
        v_permlane32_swap_b32 v{vT+s}, v{vT+2}
        s_nop 1
        v_max_f32 v{vT+2}, v{vT+s}, v{vT+2}
        v_sub_f32 v{vNC+16*s}, 0, v{vT+2}
        """)
        for i in range(1, 16):
            a(f"v_mov_b32 v{vNC+16*s+i}, v{vNC+16*s}")
    a("s_barrier")
    a(f"s_branch L_{name}_restart")
    a.label(f"L_{name}_store2")
    stx(a, 'a_vote')
    a(f"""
    v_mov_b32 v{vT}, v{vO+8}
    v_mov_b32 v{vT+1}, v{vO+8}
    s_nop 1
    v_permlane32_swap_b32 v{vT}, v{vT+1}
    s_nop 1
    v_rcp_f32 v{vT+1}, v{vT+1}
    v_lshrrev_b32 v{vT+2}, 5, v0
    v_and_b32 v{vT+3}, 31, v0
    s_add_u32 s{sT0}, s{sQt}, s{sKh}
    s_lshl_b32 s{sT0}, s{sT0}, 5
    v_add_u32 v{vT+3}, s{sT0}, v{vT+3}
    v_lshlrev_b32 v{vT+3}, 4, v{vT+3}
    s_mul_i32 s{sT0}, s{sHead}, 5
    v_add_u32 v{vT+2}, s{sT0}, v{vT+2}
    """)
    for r in range(12):
        a(f"v_mul_f32 v{vO+r}, v{vO+r}, v{vT+1}")
    for q in range(3):
        a(f"""
        v_add_u32 v{vT+4}, {2*q}, v{vT+2}
        v_lshrrev_b32 v{vT+5}, 1, v{vT+4}
        v_lshlrev_b32 v{vT+5}, 15, v{vT+5}
        v_and_b32 v{vT+4}, 1, v{vT+4}
        v_lshlrev_b32 v{vT+4}, 3, v{vT+4}
        v_add3_u32 v{vT+4}, v{vT+4}, v{vT+5}, v{vT+3}
        v_cvt_pk_bf16_f32 v{vT+6}, v{vO+4*q}, v{vO+4*q+1}
        v_cvt_pk_bf16_f32 v{vT+7}, v{vO+4*q+2}, v{vO+4*q+3}
        """)
        if q == 2: a("s_mov_b32 exec_hi, 0")
        dual(a, [f"buffer_store_dwordx2 {vr(vT+6,2)}, v{vT+4}, s[{sO}:{sO+3}], 0 offen @SC"])
    a("s_mov_b64 exec, -1")
    stx(a, 'a_stores')
    a(f"""
    s_waitcnt vmcnt(0) lgkmcnt(0)
    s_barrier
    v_mov_b32 v{vT+1}, {FLAG}
    ds_read_b32 v{vT+2}, v{vT+1}
    s_waitcnt lgkmcnt(0)
    v_readfirstlane_b32 s{sT0}, v{vT+2}
    s_cmp_eq_u32 s{sPass}, 0
    s_cselect_b32 s{sT0}, s{sT0}, 0
    s_cmp_lg_u32 s{sT0}, 0
    s_cbranch_scc1 L_{name}_redo
    """)
    a(f"s_add_u32 s76, s{sQb}, {C_ATT}")

def gemm_phase_prologue_loader(a, core, q, dep_idx_sgpr, dep_target, nW, pre_issued):
    pass

LANDED = [True]
def reg_step1(a, vd):
    a("s_mov_b64 exec, 7")
    a(f"buffer_load_dword v{vd}, v{vd+1}, s[44:47], 0 offen sc1")
    a("s_mov_b64 exec, -1")
def reg_step2(a, vd):
    dbg_flag_wait(a, vd, landed=LANDED[0])
    a(f"""
    s_getreg_b32 s{sX}, hwreg(HW_REG_XCC_ID)
    s_and_b32 s{sX}, s{sX}, 7
    s_add_u32 s76, s{sX}, {C_RK}
    s_lshl_b32 s76, s76, 7
    s_add_u32 s76, s76, {WS_CNT}
    v_mov_b32 v{vd-1}, s76
    v_accvgpr_write_b32 a0, 1
    s_mov_b64 exec, 1
    s_nop 1
    buffer_atomic_add a0, v{vd-1}, s[{sWS}:{sWS+3}], 0 offen sc0
    s_mov_b64 exec, -1
    """)
def reg_step3(a, vd):
    l1, l2 = a.newlabel("r3a"), a.newlabel("r3b")
    if not LANDED[0]: a("s_waitcnt vmcnt(0)")
    a(f"""
    v_accvgpr_read_b32 v{vd-1}, a0
    s_nop 1
    v_readfirstlane_b32 s{sRk}, v{vd-1}
    s_cmp_eq_u32 s{sRk}, 31
    s_cbranch_scc0 {l1}
    v_mov_b32 v{vd-1}, 4
    v_mov_b32 v{vd-2}, 1
    s_mov_b64 exec, 1
    buffer_atomic_add v{vd-2}, v{vd-1}, s[44:47], 0 offen sc1
    s_mov_b64 exec, -1
    """)
    a.label(l1)
    a(f"""
    s_cmp_ge_u32 s{sRk}, 32
    s_cbranch_scc0 {l2}
    v_mov_b32 v{vd-1}, 8
    v_mov_b32 v{vd-2}, 1
    s_mov_b64 exec, 1
    buffer_store_dword v{vd-2}, v{vd-1}, s[44:47], 0 offen sc1
    s_mov_b64 exec, -1
    """)
    a.label(l2)
    a("s_mov_b64 exec, 7")
    a(f"buffer_load_dword v{vd}, v{vd+1}, s[44:47], 0 offen sc1")
    a("s_mov_b64 exec, -1")
def register_publish(a, vd):
    l0, l1 = a.newlabel("rp"), a.newlabel("rpok")
    a(f"s_mov_b32 s{sPoll}, 0")
    a.label(l0)
    a(f"""
    s_waitcnt vmcnt(0)
    v_readlane_b32 s39, v{vd}, 1
    v_readlane_b32 s40, v{vd}, 2
    s_cmp_eq_u32 s39, 8
    s_cselect_b32 s38, 1, 0
    s_cmp_lg_u32 s40, 0
    s_cselect_b32 s38, 0, s38
    s_cbranch_scc1 {l1}
    s_cmp_eq_u32 s38, 1
    s_cbranch_scc1 {l1}
    s_add_u32 s{sPoll}, s{sPoll}, 1
    s_cmp_gt_u32 s{sPoll}, {POLL_MAX}
    s_cbranch_scc1 {l1}
    s_sleep 1
    s_mov_b64 exec, 7
    buffer_load_dword v{vd}, v{vd+1}, s[44:47], 0 offen sc1
    s_mov_b64 exec, -1
    s_branch {l0}
    """)
    a.label(l1)
    if E('FORCE_SLOW'): a("s_mov_b32 s38, 0")
    a(f"""
    v_mov_b32 v{vd-6}, s{sX}
    v_mov_b32 v{vd-4}, s38
    v_mov_b32 v{vd-5}, s{sRk}
    v_mov_b32 v{vd-7}, {ROLE}
    ds_write_b96 v{vd-7}, v[{vd-6}:{vd-4}]
    s_waitcnt lgkmcnt(0)
    """)
def wave_only(a, w, fn):
    l = a.newlabel("wo")
    a(f"s_cmp_eq_u32 s{sWV}, {w}")
    a(f"s_cbranch_scc0 {l}")
    fn()
    a.label(l)
def code_prefetch(a):
    a(f"""
    s_getpc_b64 s[40:41]
    L_pcref:
    s_lshr_b32 s42, s2, 3
    s_lshl_b32 s42, s42, 11
    v_lshlrev_b32 v26, 7, v1
    v_add_u32 v26, s42, v26
    s_mov_b32 s43, L_exit-L_pcref
    v_cmp_gt_u32 vcc, s43, v26
    s_nop 4
    s_and_b32 vcc_lo, vcc_lo, 0xffff
    s_mov_b32 vcc_hi, 0
    s_mov_b64 exec, vcc
    s_cbranch_execz L_pcskip
    global_load_dword v31, v26, s[40:41]
    L_pcskip:
    s_mov_b64 exec, -1
    """)

def tlb_warm(a):
    G = int(E('TLBG', '21'))
    a(f"""
    s_lshr_b32 s75, s2, 3
    v_lshlrev_b32 v166, 5, v1
    v_add_u32 v166, s75, v166
    v_lshlrev_b32 v166, {G}, v166
    """)
    n_ws = -(-WS_END >> G)
    a(f"s_mov_b64 exec, {(1 << min(31, -(-n_ws // 32))) - 1:#x}")
    a(f"buffer_load_dword v167, v166, s[{sWS}:{sWS+3}], 0 offen sc1")
    a("s_mov_b64 exec, 3")
    for k, (pp, size) in enumerate(((pW1, 640*3456), (pW2, 1728*1280), (pWO, 640*1280), (pOUT, 2048*1280))):
        make_srd(a, 8, pp, pp+1, 0, size)
        a(f"buffer_load_dword v167, v166, s[8:11], 0 offen sc1")
    a("s_mov_b64 exec, -1")

CODE_KB = 64
def gen_mega():
    a = Asm()
    a(f"""
    s_cmp_ge_u32 s2, 256
    s_cbranch_scc1 L_exit
    s_load_dwordx8 s[84:91], s[0:1], 0
    s_load_dwordx8 s[92:99], s[0:1], 32
    s_load_dwordx2 s[78:79], s[0:1], 64
    """)
    st_rt(a, 0); st(a, 1)
    a(f"""
    v_lshrrev_b32 v2, 6, v0
    s_nop 0
    v_readfirstlane_b32 s{sWV}, v2
    """)
    lane_id(a, 1)
    if not E('NOPF'):
        l = a.newlabel("pf")
        a(f"s_cmp_eq_u32 s{sWV}, 1")
        a(f"s_cbranch_scc0 {l}")
        code_prefetch(a)
        a.label(l)
    a("s_waitcnt lgkmcnt(0)")
    make_srd(a, sWS, pWS, pWS+1, 0, WS_END)
    if not E('NOTLB0'):
        def t0():
            a("v_lshlrev_b32 v26, 21, v1")
            a("s_mov_b64 exec, 3")
            make_srd(a, 8, pX, pX+1, 0, 2048*1280)
            a("buffer_load_dword v31, v26, s[8:11], 0 offen sc1")
            make_srd(a, 8, pWQ, pWQ+1, 0, 640*3840)
            a("buffer_load_dword v31, v26, s[8:11], 0 offen sc1")
            a("s_mov_b64 exec, -1")
        wave_only(a, 3, t0)
    L = CoreL(a, 'qkv', 'q')
    L.map_tiles("L_repack")
    a(f"""
    s_cmp_ge_u32 s{sWV}, 4
    s_cbranch_scc0 L_q_compute
    """)
    L.loader_setup()
    st(a, 2)
    q = VmQ()
    for s_ in range(PD):
        L.issue_A(s_); q.push(f"A{s_}", 4)
        if not FS: stamp(a, 9 + 2*s_, base=SB)
        L.issue_W(s_); q.push(f"W{s_}", 4)
        if not FS: stamp(a, 10 + 2*s_, base=SB)
    st(a, 3)
    make_srd(a, 44, pDBG, pDBG+1, 0, 256)
    a("v_lshlrev_b32 v71, 2, v1")
    a("v_mov_b32 v70, 0")
    PL = P0L(a, L)
    if E('P0L'):
        PL.issue(); q.push('p0l', 5)
    L.p0l = PL
    RP = Repack(a)
    RP.issue(defer=True)
    RP.save()
    L.ldstamps = True
    L.loader_main(q)
    st(a, 8)
    a("s_waitcnt lgkmcnt(0)")
    a("s_barrier")
    attn_pad_init(a, 4, 4)
    a("s_barrier")
    wave_only(a, 7, lambda: register_publish(a, 70))
    a("s_branch L_attn")
    a.label("L_q_compute")
    L.compute_setup()
    make_srd(a, 44, pDBG, pDBG+1, 0, 256)
    a(f"v_lshlrev_b32 v{L.vSt+27}, 2, v1")
    a(f"v_mov_b32 v{L.vSt+26}, 0")
    a(f"""
    s_cmp_ge_u32 s{L.sNt}, 10
    s_cbranch_scc1 L_q_vpath
    """)
    L.addr_qk()
    L.mainloop(True, 2)
    st(a, 3)
    a("s_barrier")
    stx(a, 'q_e1')
    L.epilogue_Y('qk')
    a("s_branch L_q_done")
    a.label("L_q_vpath")
    L.addr_v()
    L.mainloop(False, 2)
    st(a, 3)
    a("s_barrier")
    stx(a, 'q_e1')
    L.epilogue_X()
    a.label("L_q_done")
    stx(a, 'q_epi')
    a(f"buffer_load_dword v{L.vSt+26}, v{L.vSt+27}, s[44:47], 0 offen sc1")
    a("s_waitcnt vmcnt(0)")
    stx(a, 'q_drain')
    a("s_barrier")
    stx(a, 'q_e2')
    a(f"s_cmp_eq_u32 s{sWV}, 0")
    a("s_cbranch_scc0 L_attn")
    dbg_flag_wait(a, L.vSt + 26, landed=True)
    a(f"s_add_u32 s40, s{L.sNt}, {C_QKV}")
    arrive(a, 40, 4)
    st(a, 4)
    a("s_branch L_attn")
    a.label("L_repack")
    l = a.newlabel("zc")
    a(f"""
    s_xor_b32 s40, s2, 225
    s_or_b32 s40, s40, s{sWV}
    s_cmp_eq_u32 s40, 0
    s_cbranch_scc0 {l}
    v_mov_b32 v4, 0
    v_mov_b32 v5, 0
    v_mov_b32 v6, 0
    v_mov_b32 v7, 0
    v_lshlrev_b32 v8, 4, v1
    s_mov_b32 s40, {WS_CNT}
    """)
    for j in range(SZ_CNT // 1024):
        a(f"buffer_store_dwordx4 v[4:7], v8, s[{sWS}:{sWS+3}], s40 offen {SC}")
        a("s_add_u32 s40, s40, 1024")
    make_srd(a, 8, pDBG, pDBG+1, 0, 256)
    a(f"""
    s_waitcnt vmcnt(0)
    v_mov_b32 v4, 1
    v_mov_b32 v5, 0
    s_mov_b64 exec, 1
    buffer_store_dword v4, v5, s[8:11], 0 offen sc1
    s_mov_b64 exec, -1
    """)
    a.label(l)
    make_srd(a, 44, pDBG, pDBG+1, 0, 256)
    a(f"v_lshlrev_b32 v71, 2, v1")
    a(f"v_mov_b32 v70, 0")
    a(f"""
    s_and_b32 s21, s2, 7
    s_lshr_b32 s21, s21, 1
    s_lshl_b32 s21, s21, 2
    s_lshr_b32 s22, s2, 3
    s_and_b32 s22, s22, 3
    s_add_u32 s21, s21, s22
    """)
    idle_rows(a, 21)
    a("s_waitcnt vmcnt(0)")
    a(f"buffer_load_dword v70, v71, s[44:47], 0 offen sc1")
    a("s_barrier")
    def st_arr():
        dbg_flag_wait(a, 70)
        a(f"s_add_u32 s76, s21, {C_ST}")
        arrive(a, 76, 64)
    wave_only(a, 0, st_arr)
    def regall():
        LANDED[0] = False
        reg_step1(a, 70); reg_step2(a, 70); reg_step3(a, 70); register_publish(a, 70)
    wave_only(a, 7, regall)
    l = a.newlabel("rpl")
    a(f"s_cmp_ge_u32 s{sWV}, 4")
    a(f"s_cbranch_scc0 {l}")
    RP2 = Repack(a)
    RP2.issue(defer=True)
    RP2.save()
    attn_pad_init(a, 4, 4)
    a.label(l)
    def fl():
        a(f"buffer_load_dword v70, v71, s[44:47], 0 offen sc1")
        dbg_flag_wait(a, 70)
    wave_only(a, 4, fl)
    a("s_barrier")
    a.label("L_attn")
    emit_attention(a, None)
    S = CoreS(a, 'oproj')
    lane_id(a, 1)
    S.map_tiles()
    a(f"""
    s_cmp_ge_u32 s{sWV}, 4
    s_cbranch_scc0 L_o_compute
    """)
    S.loader_setup()
    q = VmQ()
    for s_ in range(PD):
        S.issue_W(s_); q.push(f"W{s_}", 5)
    lw = a.newlabel("ow")
    a(f"s_cmp_eq_u32 s{sWV}, 4")
    a(f"s_cbranch_scc0 {lw}")
    a(f"s_add_u32 s40, s{sX}, {C_ATT}")
    poll_f(a, 40, 32, 8)
    a.label(lw)
    stx(a, 'o_poll')
    a("s_barrier")
    for s_ in range(PD):
        S.issue_A(s_); q.push(f"A{s_}", 4)
    S.loader_main(q)
    a("s_barrier")
    F1 = CoreL(a, 'ffn1', 'f')
    F1.map_tiles("L_o_ld_idle")
    F1.loader_setup()
    q = VmQ()
    a("s_barrier")
    for s_ in range(PD):
        F1.issue_W(s_); q.push(f"W{s_}", 4)
    a("s_branch L_f1_loader")
    a.label("L_o_ld_idle")
    a("s_barrier")
    a("s_branch L_f2_loader0")
    a.label("L_o_compute")
    lw = a.newlabel("oa")
    a(f"s_cmp_eq_u32 s{sWV}, 0")
    a(f"s_cbranch_scc0 {lw}")
    arrive_f(a, 76, sRk, 4)
    st(a, 8)
    a.label(lw)
    S.compute_setup()
    S.pretouch()
    S.residual_loads()
    a("s_barrier")
    st(a, 9)
    stx(a, 'o_X')
    S.mainloop(tag='o')
    stx(a, 'o_loop')
    S.reduce()
    stx(a, 'o_red')
    a("s_barrier")
    S.epilogue()
    stx(a, 'o_epi')
    a("s_waitcnt vmcnt(0)")
    stx(a, 'o_drain')
    a("s_barrier")
    stx(a, 'o_e2')
    lw = a.newlabel("oa2")
    a(f"s_cmp_eq_u32 s{sWV}, 0")
    a(f"s_cbranch_scc0 {lw}")
    a(f"s_lshr_b32 s40, s{S.sM0}, 7")
    a(f"s_add_u32 s40, s40, {C_OP}")
    a(f"s_lshr_b32 s41, s{S.sM0}, 6")
    a(f"s_and_b32 s41, s41, 1")
    a(f"s_lshl_b32 s41, s41, 3")
    a(f"s_add_u32 s41, s41, s{S.sNt}")
    arrive_f(a, 40, 41, 4)
    st(a, 10)
    a.label(lw)
    lane_id(a, 1)
    F1.map_tiles("L_f2_compute0")
    a("s_branch L_f1_compute")
    a.label("L_f1_loader")
    lw = a.newlabel("fw")
    a(f"s_cmp_eq_u32 s{sWV}, 4")
    a(f"s_cbranch_scc0 {lw}")
    a(f"s_lshr_b32 s40, s{F1.sM0}, 7")
    a(f"s_add_u32 s40, s40, {C_OP}")
    stx(a, 'f_p0')
    poll_f(a, 40, 16, 8)
    a.label(lw)
    stx(a, 'f_poll')
    a("s_barrier")
    for s_ in range(PD):
        F1.issue_A(s_); q.push(f"A{s_}", 4)
    F1.lstats_init()
    F1.loader_main(q)
    a("s_waitcnt lgkmcnt(0)")
    a("s_barrier")
    S2 = CoreS(a, 'ffn2')
    S2.map_tiles()
    S2.loader_setup()
    q = VmQ()
    a("s_barrier")
    if E('PFW2B'):
        for j in range(9):
            wave_only(a, 4 + (j % 4), lambda: w2p_prefetch(a, j))
    for s_ in range(PD):
        S2.issue_W(s_); q.push(f"W{s_}", 5)
    a("s_branch L_f2_loader")
    a.label("L_f2_loader0")
    if E('PFW2') or E('PFW2B'):
        for j in range(9):
            wave_only(a, 4 + (j % 4), lambda: w2p_prefetch(a, j))
    S2.map_tiles()
    S2.loader_setup()
    for s_ in range(PD):
        S2.issue_W(s_)
    a.label("L_f2_loader")
    lw = a.newlabel("gw")
    a(f"s_cmp_eq_u32 s{sWV}, 4")
    a(f"s_cbranch_scc0 {lw}")
    a(f"s_lshr_b32 s40, s{S2.sM0}, 7")
    a(f"s_add_u32 s40, s40, {C_F1}")
    poll_f(a, 40, 14, 8)
    a.label(lw)
    a("s_barrier")
    for s_ in range(PD):
        S2.issue_A(s_); q.push(f"A{s_}", 4)
    S2.loader_main(q)
    if common.STAMPS:
        stamp_flush(a, 0, sWV, base=SB, vt=90)
    a("s_endpgm")
    a.label("L_f1_compute")
    F1.compute_setup()
    F1.addr_f()
    a("s_barrier")
    st(a, 11)
    stx(a, 'f_X')
    F1.mainloop(True, tag='f')
    stx(a, 'f_loop')
    a("s_barrier")
    F1.epilogue_Y('ffn1')
    stx(a, 'f_epi')
    a("s_waitcnt vmcnt(0)")
    stx(a, 'f_drain')
    a("s_barrier")
    lw = a.newlabel("fa")
    a(f"s_cmp_eq_u32 s{sWV}, 0")
    a(f"s_cbranch_scc0 {lw}")
    a(f"s_lshr_b32 s40, s{F1.sM0}, 7")
    a(f"s_add_u32 s40, s40, {C_F1}")
    arrive_f(a, 40, F1.sNt, 4)
    st(a, 12)
    a.label(lw)
    lane_id(a, 1)
    a.label("L_f2_compute0")
    S2.map_tiles()
    S2.compute_setup()
    a("s_barrier")
    st(a, 13)
    stx(a, 'g_X')
    S2.residual_loads()
    S2.mainloop(tag='g')
    stx(a, 'g_loop')
    S2.reduce()
    stx(a, 'g_red')
    S2.epilogue()
    stx(a, 'g_epi')
    if common.STAMPS:
        a("s_waitcnt vmcnt(0)")
        st(a, 14); st_rt(a, 15)
        stamp_flush(a, 0, sWV, base=SB, vt=90)
        if E('DBGOUT'):
            l = a.newlabel("dbo")
            a(f"s_cmp_eq_u32 s2, 9")
            a(f"s_cbranch_scc0 {l}")
            a(f"s_cmp_eq_u32 s{sWV}, 0")
            a(f"s_cbranch_scc0 {l}")
            make_srd(a, 8, pDBG, pDBG+1, 0, 256)
            a("s_mov_b64 exec, 1")
            pairs = [(15, 0), (14, 1), (2, 1), (3, 1), (4, 1), (5, 1), (6, 1), (7, 1), (9, 1), (11, 1), (13, 1)]
            for k, (x, y) in enumerate(pairs):
                a(f"s_sub_u32 s40, s{SB+x}, s{SB+y}")
                a(f"v_mov_b32 v4, s40")
                a(f"v_mov_b32 v5, {16 + 4*k}")
                a(f"buffer_store_dword v4, v5, s[8:11], 0 offen")
            a("s_waitcnt vmcnt(0)")
            a.label(l)
    a.label("L_exit")
    a("s_endpgm")
    return kernel_header(NAME) + a.text() + kernel_desc(NAME, 256, 176, sgpr=102)
```

```python
from common import *
import common, os
E = os.environ.get

NAME = "sequential_preLN__softmax_full_mha__dense_activation_relu__prompt_kernel"
pX, pWQ, pWO, pW1, pW2, pOUT, pDBG, pWS = 84, 86, 88, 92, 94, 96, 98, 78
sWS = 80
sWV = 100
sPoll = 101
SB = 48
STAT = 145408
LDS_TOTAL = 149504
SC = "sc1"
sX, sRk, sLoc = 72, 73, 74
ROLE = LDS_TOTAL - 64
POLL_MAX = 1 << 22

FS = E('FS', '').split(',') if E('FS') else []
FS0 = int(E('FS0', '9'))
def st(a, i):
    if FS and (i >= FS0) and i != 15: return
    stamp(a, i, base=SB)
def st2(a, i): pass
def stx(a, tag):
    if tag in FS: stamp(a, FS0 + FS.index(tag), base=SB)
def st_rt(a, i): stamp_rt(a, i, base=SB)

def lane_id(a, v):
    a(f"v_mbcnt_lo_u32_b32 v{v}, -1, 0")
    a(f"v_mbcnt_hi_u32_b32 v{v}, -1, v{v}")

def arrive(a, sIdx, vt):
    a(f"""
    s_lshl_b32 s{sPoll}, s{sIdx}, 7
    s_add_u32 s{sPoll}, s{sPoll}, {WS_CNT}
    v_mov_b32 v{vt}, s{sPoll}
    v_mov_b32 v{vt+1}, 1
    s_mov_b64 exec, 1
    buffer_atomic_add v{vt+1}, v{vt}, s[{sWS}:{sWS+3}], 0 offen sc1
    s_mov_b64 exec, -1
    """)

def dual(a, instrs):
    l0, l1 = a.newlabel("slow"), a.newlabel("dd")
    a(f"s_cmp_eq_u32 s{sLoc}, 0")
    a(f"s_cbranch_scc1 {l0}")
    for i in instrs: a(i.replace("@SC", E('LOCFL', '') if 'store' in i else ''))
    a(f"s_branch {l1}")
    a.label(l0)
    for i in instrs: a(i.replace("@SC", "sc1"))
    a.label(l1)

def arrive_l(a, sIdx, vt):
    a(f"""
    s_lshl_b32 s{sPoll}, s{sIdx}, 7
    s_add_u32 s{sPoll}, s{sPoll}, {WS_CNT}
    v_mov_b32 v{vt}, s{sPoll}
    v_mov_b32 v{vt+1}, 1
    s_mov_b64 exec, 1
    """)
    dual(a, [f"buffer_atomic_add v{vt+1}, v{vt}, s[{sWS}:{sWS+3}], 0 offen @SC"])
    a("s_mov_b64 exec, -1")

def arrive_f(a, sIdx, sSlot, vt):
    a(f"""
    s_lshl_b32 s{sPoll}, s{sIdx}, 7
    s_add_u32 s{sPoll}, s{sPoll}, {WS_CNT}
    s_lshl_b32 s75, s{sSlot}, 2
    s_add_u32 s{sPoll}, s{sPoll}, s75
    v_mov_b32 v{vt}, s{sPoll}
    v_mov_b32 v{vt+1}, 1
    s_mov_b64 exec, 1
    """)
    dual(a, [f"buffer_store_dword v{vt+1}, v{vt}, s[{sWS}:{sWS+3}], 0 offen @SC"])
    a("s_mov_b64 exec, -1")

def poll_f(a, sIdx, n, vt):
    a(f"""
    s_lshl_b32 s{sPoll}, s{sIdx}, 7
    s_add_u32 s{sPoll}, s{sPoll}, {WS_CNT}
    v_lshlrev_b32 v{vt+1}, 2, v1
    v_add_u32 v{vt+1}, s{sPoll}, v{vt+1}
    v_mov_b32 v{vt+2}, 1
    """)
    poll(a, vt + 1, vt + 2, n, vt)

def poll(a, vOff, vTgt, nl, vt, slp=1):
    l0, l1 = a.newlabel("poll"), a.newlabel("pollok")
    a(f"s_mov_b64 exec, {(1 << nl) - 1:#x}")
    a(f"s_mov_b32 s{sPoll}, 0")
    a.label(l0)
    a(f"""
    buffer_load_dword v{vt}, v{vOff}, s[{sWS}:{sWS+3}], 0 offen sc1
    s_waitcnt vmcnt(0)
    v_cmp_gt_u32 vcc, v{vTgt}, v{vt}
    s_nop 4
    s_cmp_eq_u64 vcc, 0
    s_cbranch_scc1 {l1}
    s_add_u32 s{sPoll}, s{sPoll}, 1
    s_cmp_gt_u32 s{sPoll}, {POLL_MAX}
    s_cbranch_scc1 {l1}
    s_sleep {slp}
    s_branch {l0}
    """)
    a.label(l1)
    a("s_mov_b64 exec, -1")

def poll1(a, sIdx, target, vt):
    a(f"""
    s_lshl_b32 s{sPoll}, s{sIdx}, 7
    s_add_u32 s{sPoll}, s{sPoll}, {WS_CNT}
    v_mov_b32 v{vt+1}, s{sPoll}
    v_mov_b32 v{vt+2}, {target}
    """)
    poll(a, vt + 1, vt + 2, 1, vt)

def wave_sum(a, v):
    for sh in (1, 2, 4, 8):
        a(f"v_add_f32_dpp v{v}, v{v}, v{v} row_shr:{sh} row_mask:0xf bank_mask:0xf bound_ctrl:0")
        a("s_nop 1")
    a(f"v_add_f32_dpp v{v}, v{v}, v{v} row_bcast:15 row_mask:0xa bank_mask:0xf")
    a("s_nop 1")
    a(f"v_add_f32_dpp v{v}, v{v}, v{v} row_bcast:31 row_mask:0xc bank_mask:0xf")
    a("s_nop 1")

def p0_rows_issue(a, sXs, s0, vR, vA):
    a(f"""
    s_lshl_b32 s{s0}, s2, 3
    s_lshl_b32 s{s0+1}, s{sWV}, 1
    s_add_u32 s{s0}, s{s0}, s{s0+1}
    s_mul_i32 s{s0+2}, s{s0}, 1280
    v_lshlrev_b32 v{vA}, 4, v1
    v_lshlrev_b32 v{vA+1}, 2, v1
    s_add_u32 s{s0+3}, s{s0+2}, 1280
    buffer_load_dwordx4 {vr(vR,4)}, v{vA}, s[{sXs}:{sXs+3}], s{s0+2} offen
    buffer_load_dword v{vR+4}, v{vA+1}, s[{sXs}:{sXs+3}], s{s0+2} offen offset:1024
    buffer_load_dwordx4 {vr(vR+6,4)}, v{vA}, s[{sXs}:{sXs+3}], s{s0+3} offen
    buffer_load_dword v{vR+5}, v{vA+1}, s[{sXs}:{sXs+3}], s{s0+3} offen offset:1024
    """)
def p0_rows_finish(a, s0, vR, vA):
    for rr in range(2):
        regs = [vR + 6*rr + i for i in range(4)] + [vR + 4 + rr]
        S, Q, U = vA + 4, vA + 5, vA + 6
        for n, r in enumerate(regs):
            a(f"v_lshlrev_b32 v{U}, 16, v{r}")
            a(f"v_and_b32 v{U+1}, 0xffff0000, v{r}")
            if n == 0:
                a(f"v_add_f32 v{S}, v{U}, v{U+1}")
                a(f"v_mul_f32 v{Q}, v{U}, v{U}")
            else:
                a(f"v_add_f32 v{S}, v{S}, v{U}")
                a(f"v_add_f32 v{S}, v{S}, v{U+1}")
                a(f"v_fmac_f32 v{Q}, v{U}, v{U}")
            a(f"v_fmac_f32 v{Q}, v{U+1}, v{U+1}")
        a("s_nop 1")
        for sh in (1, 2, 4, 8):
            a(f"v_add_f32_dpp v{S}, v{S}, v{S} row_shr:{sh} row_mask:0xf bank_mask:0xf bound_ctrl:0")
            a(f"v_add_f32_dpp v{Q}, v{Q}, v{Q} row_shr:{sh} row_mask:0xf bank_mask:0xf bound_ctrl:0")
            a("s_nop 0")
        a(f"v_add_f32_dpp v{S}, v{S}, v{S} row_bcast:15 row_mask:0xa bank_mask:0xf")
        a(f"v_add_f32_dpp v{Q}, v{Q}, v{Q} row_bcast:15 row_mask:0xa bank_mask:0xf")
        a("s_nop 0")
        a(f"v_add_f32_dpp v{S}, v{S}, v{S} row_bcast:31 row_mask:0xc bank_mask:0xf")
        a(f"v_add_f32_dpp v{Q}, v{Q}, v{Q} row_bcast:31 row_mask:0xc bank_mask:0xf")
        a(f"""
        s_nop 0
        v_mul_f32 v{S}, {f32bits(1.0/640):#x}, v{S}
        v_mul_f32 v{Q}, {f32bits(1.0/640):#x}, v{Q}
        v_fma_f32 v{Q}, -v{S}, v{S}, v{Q}
        v_max_f32 v{Q}, 0, v{Q}
        v_add_f32 v{Q}, {f32bits(1e-5):#x}, v{Q}
        v_rsq_f32 v{Q}, v{Q}
        s_nop 0
        v_mov_b32 v{vA+8+2*rr}, v{S}
        v_mov_b32 v{vA+9+2*rr}, v{Q}
        """)
    a(f"""
    s_lshl_b32 s{s0+4}, s{s0}, 3
    s_add_u32 s{s0+4}, s{s0+4}, {WS_ST1}
    v_mov_b32 v{vA+4}, 0
    s_mov_b32 exec_lo, 0
    s_mov_b32 exec_hi, 0x80000000
    buffer_store_dwordx4 {vr(vA+8,4)}, v{vA+4}, s[{sWS}:{sWS+3}], s{s0+4} offen {SC}
    s_mov_b64 exec, -1
    """)
def colsum_issue(a, which, srd, sW4, s0, vC, vA):
    ld = 3840 if which == 'wq' else 3456
    a(f"""
    s_and_b32 s{s0+1}, s2, 7
    s_lshr_b32 s{s0+2}, s2, 3
    s_lshr_b32 s{s0+3}, s{s0+1}, 1
    s_lshl_b32 s{s0+3}, s{s0+3}, 5
    s_add_u32 s{s0+2}, s{s0+2}, s{s0+3}
    s_and_b32 s{s0+1}, s{s0+1}, 1
    s_and_b32 s{s0+3}, s{s0+2}, 15
    s_lshr_b32 s{s0+2}, s{s0+2}, 4
    v_lshrrev_b32 v{vA}, 3, v1
    v_and_b32 v{vA+1}, 7, v1
    v_lshlrev_b32 v{vA+1}, 2, v{vA+1}
    v_mul_u32_u24 v{vA+2}, {ld}, v{vA}
    v_add_u32 v{vA+2}, v{vA+2}, v{vA+1}
    s_lshl_b32 s{s0+4}, s{s0+3}, 6
    s_lshl_b32 s{s0+7}, s{sW4}, 4
    s_add_u32 s{s0+4}, s{s0+4}, s{s0+7}
    s_mul_i32 s{s0+5}, s{s0+1}, {1024 if which == 'wq' else 896}
    s_add_u32 s{s0+5}, s{s0+5}, s{s0+4}
    s_mul_i32 s{s0+7}, s{s0+2}, {80*ld}
    s_lshl_b32 s{s0+4}, s{s0+5}, 1
    s_add_u32 s{s0+7}, s{s0+7}, s{s0+4}
    """)
    for j in range(10):
        a(f"buffer_load_dword v{vC+j}, v{vA+2}, s[{srd}:{srd+3}], s{s0+7} offen")
        if j < 9: a(f"s_add_u32 s{s0+7}, s{s0+7}, {8*ld}")
def colsum_finish(a, which, s0, vC, vA):
    base, ncol = (WS_CS1, 1920) if which == 'wq' else (WS_CS2, 1792)
    A0, A1, U = vA + 4, vA + 5, vA + 6
    for j in range(10):
        if j == 0:
            a(f"v_lshlrev_b32 v{A0}, 16, v{vC}")
            a(f"v_and_b32 v{A1}, 0xffff0000, v{vC}")
        else:
            a(f"v_lshlrev_b32 v{U}, 16, v{vC+j}")
            a(f"v_and_b32 v{U+1}, 0xffff0000, v{vC+j}")
            a(f"v_add_f32 v{A0}, v{A0}, v{U}")
            a(f"v_add_f32 v{A1}, v{A1}, v{U+1}")
    a(f"""
    s_nop 1
    v_add_f32_dpp v{A0}, v{A0}, v{A0} row_ror:8 row_mask:0xf bank_mask:0xf
    v_add_f32_dpp v{A1}, v{A1}, v{A1} row_ror:8 row_mask:0xf bank_mask:0xf
    s_nop 1
    v_mov_b32 v{U}, v{A0}
    v_mov_b32 v{U+1}, v{A1}
    s_nop 1
    v_permlane16_swap_b32 v{A0}, v{U}
    v_permlane16_swap_b32 v{A1}, v{U+1}
    s_nop 1
    v_add_f32 v{A0}, v{A0}, v{U}
    v_add_f32 v{A1}, v{A1}, v{U+1}
    s_nop 0
    v_mov_b32 v{U}, v{A0}
    v_mov_b32 v{U+1}, v{A1}
    s_nop 1
    v_permlane32_swap_b32 v{A0}, v{U}
    v_permlane32_swap_b32 v{A1}, v{U+1}
    s_nop 1
    v_add_f32 v{vA+12}, v{A0}, v{U}
    v_add_f32 v{vA+13}, v{A1}, v{U+1}
    v_lshlrev_b32 v{U}, 3, v1
    s_mul_i32 s{s0+4}, s{s0+2}, {ncol*4}
    s_lshl_b32 s{s0+7}, s{s0+5}, 2
    s_add_u32 s{s0+4}, s{s0+4}, s{s0+7}
    s_add_u32 s{s0+4}, s{s0+4}, {base}
    """)
    lab = a.newlabel("p0skip")
    if which == 'wq':
        a(f"s_cmp_ge_u32 s{s0+5}, 1920")
    else:
        a(f"s_sub_u32 s{s0+7}, 14, s{s0+1}")
        a(f"s_cmp_ge_u32 s{s0+3}, s{s0+7}")
    a(f"s_cbranch_scc1 {lab}")
    a("s_mov_b64 exec, 0xff")
    a(f"buffer_store_dwordx2 {vr(vA+12,2)}, v{U}, s[{sWS}:{sWS+3}], s{s0+4} offen {SC}")
    a("s_mov_b64 exec, -1")
    a.label(lab)
def emit_p0(a):
    sXs, sWq, s0 = 8, 12, 40
    vR, vC, vA = 4, 14, 34
    make_srd(a, sXs, pX, pX+1, 0, 2048*1280)
    make_srd(a, sWq, pWQ, pWQ+1, 0, 640*3840)
    p0_rows_issue(a, sXs, s0, vR, vA)
    a(f"s_mov_b32 s39, s{s0}")
    colsum_issue(a, 'wq', sWq, sWV, s0, vC, vA + 12)
    a("s_waitcnt vmcnt(10)")
    a(f"s_mov_b32 s38, s{s0+4}")
    p0_rows_finish(a, 39, vR, vA) if False else None
    p0_rows_finish_b(a, 39, 38, vR, vA)
    a("s_waitcnt vmcnt(1)")
    colsum_finish(a, 'wq', s0, vC, vA + 12)
def p0_rows_finish_b(a, sRow, sTmp, vR, vA):
    import io
    class Tmp: pass
    for rr in range(2):
        regs = [vR + 6*rr + i for i in range(4)] + [vR + 4 + rr]
        S, Q, U = vA + 4, vA + 5, vA + 6
        for n, r in enumerate(regs):
            a(f"v_lshlrev_b32 v{U}, 16, v{r}")
            a(f"v_and_b32 v{U+1}, 0xffff0000, v{r}")
            if n == 0:
                a(f"v_add_f32 v{S}, v{U}, v{U+1}")
                a(f"v_mul_f32 v{Q}, v{U}, v{U}")
            else:
                a(f"v_add_f32 v{S}, v{S}, v{U}")
                a(f"v_add_f32 v{S}, v{S}, v{U+1}")
                a(f"v_fmac_f32 v{Q}, v{U}, v{U}")
            a(f"v_fmac_f32 v{Q}, v{U+1}, v{U+1}")
        a("s_nop 1")
        for sh in (1, 2, 4, 8):
            a(f"v_add_f32_dpp v{S}, v{S}, v{S} row_shr:{sh} row_mask:0xf bank_mask:0xf bound_ctrl:0")
            a(f"v_add_f32_dpp v{Q}, v{Q}, v{Q} row_shr:{sh} row_mask:0xf bank_mask:0xf bound_ctrl:0")
            a("s_nop 0")
        a(f"v_add_f32_dpp v{S}, v{S}, v{S} row_bcast:15 row_mask:0xa bank_mask:0xf")
        a(f"v_add_f32_dpp v{Q}, v{Q}, v{Q} row_bcast:15 row_mask:0xa bank_mask:0xf")
        a("s_nop 0")
        a(f"v_add_f32_dpp v{S}, v{S}, v{S} row_bcast:31 row_mask:0xc bank_mask:0xf")
        a(f"v_add_f32_dpp v{Q}, v{Q}, v{Q} row_bcast:31 row_mask:0xc bank_mask:0xf")
        a(f"""
        s_nop 0
        v_mul_f32 v{S}, {f32bits(1.0/640):#x}, v{S}
        v_mul_f32 v{Q}, {f32bits(1.0/640):#x}, v{Q}
        v_fma_f32 v{Q}, -v{S}, v{S}, v{Q}
        v_max_f32 v{Q}, 0, v{Q}
        v_add_f32 v{Q}, {f32bits(1e-5):#x}, v{Q}
        v_rsq_f32 v{Q}, v{Q}
        s_nop 0
        v_mov_b32 v{vA+8+2*rr}, v{S}
        v_mov_b32 v{vA+9+2*rr}, v{Q}
        """)
    a(f"""
    s_lshl_b32 s{sTmp}, s{sRow}, 3
    s_add_u32 s{sTmp}, s{sTmp}, {WS_ST1}
    v_mov_b32 v{vA+4}, 0
    s_mov_b32 exec_lo, 0
    s_mov_b32 exec_hi, 0x80000000
    buffer_store_dwordx4 {vr(vA+8,4)}, v{vA+4}, s[{sWS}:{sWS+3}], s{sTmp} offen {SC}
    s_mov_b64 exec, -1
    """)
def dbg_flag_issue(a, vt):
    make_srd(a, 44, pDBG, pDBG+1, 0, 256)
    a(f"v_mov_b32 v{vt+1}, 0")
    a(f"buffer_load_dword v{vt}, v{vt+1}, s[44:47], 0 offen sc1")
def dbg_flag_issue_b(a, vt):
    make_srd(a, 16, pDBG, pDBG+1, 0, 256)
    a(f"v_mov_b32 v{vt+1}, 0")
    a(f"buffer_load_dword v{vt}, v{vt+1}, s[16:19], 0 offen sc1")
def dbg_flag_wait(a, vt, srd=44, landed=False):
    l0, l1, l2 = a.newlabel("dbgp"), a.newlabel("dbgok"), a.newlabel("dbgc")
    a(f"s_mov_b32 s{sPoll}, 0")
    if landed: a(f"s_branch {l2}")
    a.label(l0)
    a("s_waitcnt vmcnt(0)")
    a.label(l2)
    a(f"""
    v_readfirstlane_b32 s75, v{vt}
    s_cmp_lg_u32 s75, 0
    s_cbranch_scc1 {l1}
    s_add_u32 s{sPoll}, s{sPoll}, 1
    s_cmp_gt_u32 s{sPoll}, {POLL_MAX}
    s_cbranch_scc1 {l1}
    s_sleep 1
    buffer_load_dword v{vt}, v{vt+1}, s[{srd}:{srd+3}], 0 offen sc1
    s_branch {l0}
    """)
    a.label(l1)
def dbg_flag_wait_arrive_b(a, cbase, vt):
    dbg_flag_wait_arrive(a, cbase, vt, 16)
def dbg_flag_wait_arrive(a, cbase, vt, srd=44):
    l0, l1 = a.newlabel("dbgp"), a.newlabel("dbgok")
    a(f"s_mov_b32 s{sPoll}, 0")
    a.label(l0)
    a(f"""
    s_waitcnt vmcnt(0)
    v_readfirstlane_b32 s75, v{vt}
    s_cmp_lg_u32 s75, 0
    s_cbranch_scc1 {l1}
    s_add_u32 s{sPoll}, s{sPoll}, 1
    s_cmp_gt_u32 s{sPoll}, {POLL_MAX}
    s_cbranch_scc1 {l1}
    s_sleep 1
    buffer_load_dword v{vt}, v{vt+1}, s[{srd}:{srd+3}], 0 offen sc1
    s_branch {l0}
    """)
    a.label(l1)
    a(f"s_and_b32 s75, s2, 7")
    a(f"s_add_u32 s75, s75, {cbase}")
    arrive(a, 75, vt)

class P0Q:
    vR, vC, vD, vA = 64, 84, 94, 104
    def __init__(self, a, L):
        self.a, self.L = a, L
    def issue(self):
        a, L = self.a, self.L
        vR, vC, vD, vA = self.vR, self.vC, self.vD, self.vA
        sXs, sWq = L.sA, L.sW
        sW1 = 16
        make_srd(a, sW1, pW1, pW1+1, 0, 640*3456)
        a(f"""
        v_lshrrev_b32 v2, 4, v1
        v_and_b32 v3, 15, v1
        s_lshl_b32 s40, s{L.sNt}, 4
        s_add_u32 s40, s40, s{L.sM0}
        s_lshl_b32 s41, s{L.sLw}, 2
        s_add_u32 s40, s40, s41
        s_cmp_lt_u32 s{L.sNt}, 8
        s_cselect_b32 s40, s40, 4096
        v_add_u32 v{vA}, s40, v2
        v_mul_u32_u24 v{vA+1}, 1280, v{vA}
        v_lshlrev_b32 v{vA+2}, 4, v3
        v_add_u32 v{vA+1}, v{vA+1}, v{vA+2}
        """)
        for j in range(5):
            a(f"buffer_load_dwordx4 {vr(vR+4*j,4)}, v{vA+1}, s[{sXs}:{sXs+3}], 0 offen offset:{256*j}")
        a(f"""
        s_lshr_b32 s41, s{L.sM0}, 7
        s_mul_i32 s42, s41, {40*3840}
        s_lshl_b32 s43, s{L.sLw}, 5
        s_add_u32 s43, s43, s{L.sN0}
        s_lshl_b32 s40, s43, 1
        s_add_u32 s42, s42, s40
        v_mul_u32_u24 v{vA+2}, 3840, v2
        v_lshlrev_b32 v{vA+3}, 2, v3
        v_add_u32 v{vA+2}, v{vA+2}, v{vA+3}
        """)
        for j in range(10):
            a(f"buffer_load_dword v{vC+j}, v{vA+2}, s[{sWq}:{sWq+3}], s42 offen")
            if j < 9: a(f"s_add_u32 s42, s42, {4*3840}")
        a(f"""
        s_mul_i32 s42, s41, {40*3456}
        s_add_u32 s42, s42, s40
        s_cmp_lt_u32 s{L.sNt}, 14
        s_cselect_b32 s42, s42, 0x7f000000
        v_mul_u32_u24 v{vA+4}, 3456, v2
        v_add_u32 v{vA+4}, v{vA+4}, v{vA+3}
        """)
        for j in range(10):
            a(f"buffer_load_dword v{vD+j}, v{vA+4}, s[{sW1}:{sW1+3}], s42 offen")
            if j < 9: a(f"s_add_u32 s42, s42, {4*3456}")
    def rows(self):
        a, L = self.a, self.L
        vR, vA = self.vR, self.vA
        S, Q, U = vA + 5, vA + 6, vA + 8
        for n in range(20):
            r = vR + n
            u = U + 2*(n & 1)
            a(f"v_lshlrev_b32 v{u}, 16, v{r}")
            a(f"v_and_b32 v{u+1}, 0xffff0000, v{r}")
            if n == 0:
                a(f"v_add_f32 v{S}, v{u}, v{u+1}")
                a(f"v_mul_f32 v{Q}, v{u}, v{u}")
            else:
                a(f"v_add_f32 v{S}, v{S}, v{u}")
                a(f"v_fmac_f32 v{Q}, v{u}, v{u}")
                a(f"v_add_f32 v{S}, v{S}, v{u+1}")
            a(f"v_fmac_f32 v{Q}, v{u+1}, v{u+1}")
        a("s_nop 1")
        for sh in (1, 2, 4, 8):
            a(f"v_add_f32_dpp v{S}, v{S}, v{S} row_shr:{sh} row_mask:0xf bank_mask:0xf bound_ctrl:0")
            a(f"v_add_f32_dpp v{Q}, v{Q}, v{Q} row_shr:{sh} row_mask:0xf bank_mask:0xf bound_ctrl:0")
            a("s_nop 0")
        a(f"""
        v_mul_f32 v{S}, {f32bits(1.0/640):#x}, v{S}
        v_mul_f32 v{Q}, {f32bits(1.0/640):#x}, v{Q}
        v_fma_f32 v{Q}, -v{S}, v{S}, v{Q}
        v_max_f32 v{Q}, 0, v{Q}
        v_add_f32 v{Q}, {f32bits(1e-5):#x}, v{Q}
        v_rsq_f32 v{Q}, v{Q}
        v_mov_b32 v{U}, v{S}
        v_lshlrev_b32 v{U+2}, 3, v{vA}
        v_mov_b32 v{U+3}, 0x7fffff00
        v_cmp_gt_u32 vcc, 2048, v{vA}
        v_mov_b32 v{U+1}, v{Q}
        v_cndmask_b32 v{U+2}, v{U+3}, v{U+2}, vcc
        s_mov_b32 s40, {WS_ST1}
        s_mov_b32 exec_lo, 0x80008000
        s_mov_b32 exec_hi, 0x80008000
        buffer_store_dwordx2 {vr(U,2)}, v{U+2}, s[{sWS}:{sWS+3}], s40 offen {SC}
        s_mov_b64 exec, -1
        """)
    def cols(self, which):
        a, L = self.a, self.L
        vA = self.vA
        regs, base, ncol, lim = (self.vC, WS_CS1, 1920, 15) if which == 0 else (self.vD, WS_CS2, 1792, 14)
        U = vA + 8
        A0, A1 = vA + 5, vA + 6
        for j in range(10):
            u = U + 2*(j & 1)
            if j == 0:
                a(f"v_lshlrev_b32 v{A0}, 16, v{regs}")
                a(f"v_and_b32 v{A1}, 0xffff0000, v{regs}")
            else:
                a(f"v_lshlrev_b32 v{u}, 16, v{regs+j}")
                a(f"v_and_b32 v{u+1}, 0xffff0000, v{regs+j}")
                a(f"v_add_f32 v{A0}, v{A0}, v{u}")
                a(f"v_add_f32 v{A1}, v{A1}, v{u+1}")
        a(f"""
        s_nop 0
        v_mov_b32 v{U}, v{A0}
        v_mov_b32 v{U+1}, v{A1}
        s_nop 1
        v_permlane16_swap_b32 v{A0}, v{U}
        v_permlane16_swap_b32 v{A1}, v{U+1}
        s_nop 1
        v_add_f32 v{A0}, v{A0}, v{U}
        v_add_f32 v{A1}, v{A1}, v{U+1}
        s_nop 0
        v_mov_b32 v{U}, v{A0}
        v_mov_b32 v{U+1}, v{A1}
        s_nop 1
        v_permlane32_swap_b32 v{A0}, v{U}
        v_permlane32_swap_b32 v{A1}, v{U+1}
        s_nop 1
        v_add_f32 v{U+4}, v{A0}, v{U}
        v_add_f32 v{U+5}, v{A1}, v{U+1}
        v_lshlrev_b32 v{U}, 3, v3
        s_mul_i32 s42, s41, {ncol*4}
        s_lshl_b32 s40, s43, 2
        s_add_u32 s42, s42, s40
        s_add_u32 s42, s42, {base}
        s_cmp_lt_u32 s{L.sNt}, {lim}
        s_cselect_b32 s42, s42, 0x7f000000
        s_mov_b64 exec, 0xffff
        buffer_store_dwordx2 {vr(U+4,2)}, v{U}, s[{sWS}:{sWS+3}], s42 offen {SC}
        s_mov_b64 exec, -1
        s_nop 1
        """)
def emit_p0r(a, L):
    sXs, vR, vA = 8, 146, 132
    make_srd(a, sXs, pX, pX+1, 0, 2048*1280)
    a(f"""
    v_lshrrev_b32 v166, 4, v1
    v_and_b32 v167, 15, v1
    s_lshl_b32 s75, s{L.sNt}, 4
    s_add_u32 s75, s75, s{L.sM0}
    s_lshl_b32 s76, s{sWV}, 2
    s_add_u32 s75, s75, s76
    s_cmp_lt_u32 s{L.sNt}, 8
    s_cselect_b32 s75, s75, 4096
    v_add_u32 v{vA}, s75, v166
    v_mul_u32_u24 v{vA+1}, 1280, v{vA}
    v_lshlrev_b32 v{vA+2}, 4, v167
    v_add_u32 v{vA+1}, v{vA+1}, v{vA+2}
    """)
    for j in range(5):
        a(f"buffer_load_dwordx4 {vr(vR+4*j,4)}, v{vA+1}, s[{sXs}:{sXs+3}], 0 offen offset:{256*j}")
def emit_p0r_finish(a, L, extra=0):
    vR, vA = 146, 132
    S, Q, S2, Q2, U = vA + 4, vA + 5, vA + 6, vA + 7, vA + 8
    for j in range(5):
        a(f"s_waitcnt vmcnt({4 - j + extra})")
        for n in range(4):
            r = vR + 4*j + n
            u = U + 2*(n & 1)
            a(f"v_lshlrev_b32 v{u}, 16, v{r}")
            a(f"v_and_b32 v{u+1}, 0xffff0000, v{r}")
            if j == 0 and n == 0:
                a(f"v_mov_b32 v{S}, v{u}")
                a(f"v_mul_f32 v{Q}, v{u}, v{u}")
                a(f"v_mov_b32 v{S2}, v{u+1}")
                a(f"v_mul_f32 v{Q2}, v{u+1}, v{u+1}")
            else:
                a(f"v_add_f32 v{S}, v{S}, v{u}")
                a(f"v_fmac_f32 v{Q}, v{u}, v{u}")
                a(f"v_add_f32 v{S2}, v{S2}, v{u+1}")
                a(f"v_fmac_f32 v{Q2}, v{u+1}, v{u+1}")
    a(f"v_add_f32 v{S}, v{S}, v{S2}")
    a(f"v_add_f32 v{Q}, v{Q}, v{Q2}")
    a("s_nop 1")
    for sh in (1, 2, 4, 8):
        a(f"v_add_f32_dpp v{S}, v{S}, v{S} row_shr:{sh} row_mask:0xf bank_mask:0xf bound_ctrl:0")
        a(f"v_add_f32_dpp v{Q}, v{Q}, v{Q} row_shr:{sh} row_mask:0xf bank_mask:0xf bound_ctrl:0")
        a("s_nop 0")
    a(f"""
    v_mul_f32 v{S}, {f32bits(1.0/640):#x}, v{S}
    v_mul_f32 v{Q}, {f32bits(1.0/640):#x}, v{Q}
    v_fma_f32 v{Q}, -v{S}, v{S}, v{Q}
    v_max_f32 v{Q}, 0, v{Q}
    v_add_f32 v{Q}, {f32bits(1e-5):#x}, v{Q}
    v_rsq_f32 v{Q}, v{Q}
    v_mov_b32 v{U}, v{S}
    v_lshlrev_b32 v{U+2}, 3, v{vA}
    v_mov_b32 v{U+3}, 0x7fffff00
    v_cmp_gt_u32 vcc, 2048, v{vA}
    v_mov_b32 v{U+1}, v{Q}
    v_cndmask_b32 v{U+2}, v{U+3}, v{U+2}, vcc
    s_mov_b32 s75, {WS_ST1}
    s_mov_b32 exec_lo, 0x80008000
    s_mov_b32 exec_hi, 0x80008000
    buffer_store_dwordx2 {vr(U,2)}, v{U+2}, s[{sWS}:{sWS+3}], s75 offen {SC}
    s_mov_b64 exec, -1
    """)
def idle_rows(a, sMt, hook=None):
    sXs, vR, vA = 8, 72, 4
    NP = 2 if E('P0L') else 4
    make_srd(a, sXs, pX, pX+1, 0, 2048*1280)
    a(f"""
    v_lshrrev_b32 v2, 4, v1
    v_and_b32 v3, 15, v1
    s_lshl_b32 s40, s{sMt}, 7
    s_lshl_b32 s41, s{sWV}, {3 if E('P0L') else 4}
    s_add_u32 s40, s40, s41
    v_add_u32 v{vA}, s40, v2
    v_mul_u32_u24 v{vA+1}, 1280, v{vA}
    v_lshlrev_b32 v{vA+2}, 4, v3
    v_add_u32 v{vA+1}, v{vA+1}, v{vA+2}
    """)
    for p in range(NP):
        a(f"s_mov_b32 s41, {p * 4 * 1280}")
        for j in range(5):
            a(f"buffer_load_dwordx4 {vr(vR + 20*p + 4*j, 4)}, v{vA+1}, s[{sXs}:{sXs+3}], s41 offen offset:{256*j}")
    S, Q, S2, Q2, U = vA + 4, vA + 5, vA + 6, vA + 7, vA + 8
    if hook: hook(-1)
    for p in range(NP):
        if hook and p > 0: hook(p - 1)
        a(f"s_waitcnt vmcnt({(NP - 1 - p) * 5 + p})")
        for n in range(20):
            r = vR + 20*p + n
            u = U + 2*(n & 1)
            a(f"v_lshlrev_b32 v{u}, 16, v{r}")
            a(f"v_and_b32 v{u+1}, 0xffff0000, v{r}")
            if n == 0:
                a(f"v_mov_b32 v{S}, v{u}")
                a(f"v_mul_f32 v{Q}, v{u}, v{u}")
                a(f"v_mov_b32 v{S2}, v{u+1}")
                a(f"v_mul_f32 v{Q2}, v{u+1}, v{u+1}")
            else:
                a(f"v_add_f32 v{S}, v{S}, v{u}")
                a(f"v_fmac_f32 v{Q}, v{u}, v{u}")
                a(f"v_add_f32 v{S2}, v{S2}, v{u+1}")
                a(f"v_fmac_f32 v{Q2}, v{u+1}, v{u+1}")
        a(f"v_add_f32 v{S}, v{S}, v{S2}")
        a(f"v_add_f32 v{Q}, v{Q}, v{Q2}")
        a("s_nop 1")
        for sh in (1, 2, 4, 8):
            a(f"v_add_f32_dpp v{S}, v{S}, v{S} row_shr:{sh} row_mask:0xf bank_mask:0xf bound_ctrl:0")
            a(f"v_add_f32_dpp v{Q}, v{Q}, v{Q} row_shr:{sh} row_mask:0xf bank_mask:0xf bound_ctrl:0")
            a("s_nop 0")
        a(f"""
        v_mul_f32 v{S}, {f32bits(1.0/640):#x}, v{S}
        v_mul_f32 v{Q}, {f32bits(1.0/640):#x}, v{Q}
        v_fma_f32 v{Q}, -v{S}, v{S}, v{Q}
        v_max_f32 v{Q}, 0, v{Q}
        v_add_f32 v{Q}, {f32bits(1e-5):#x}, v{Q}
        v_rsq_f32 v{Q}, v{Q}
        v_mov_b32 v{U+4}, v{S}
        v_add_u32 v{U+2}, {4*p}, v{vA}
        v_lshlrev_b32 v{U+2}, 3, v{U+2}
        v_mov_b32 v{U+5}, v{Q}
        s_mov_b32 s41, {WS_ST1}
        s_mov_b32 exec_lo, 0x80008000
        s_mov_b32 exec_hi, 0x80008000
        buffer_store_dwordx2 {vr(U+4,2)}, v{U+2}, s[{sWS}:{sWS+3}], s41 offen {SC}
        s_mov_b64 exec, -1
        s_nop 1
        """)

class P0L:
    vR, vA = 116, 136
    def __init__(self, a, L): self.a, self.L = a, L
    def issue(self):
        a, L = self.a, self.L
        vR, vA = self.vR, self.vA
        a(f"""
        v_lshrrev_b32 v{vA+2}, 4, v1
        v_and_b32 v{vA+3}, 15, v1
        s_lshl_b32 s75, s{L.sNt}, 4
        s_add_u32 s75, s75, s{L.sM0}
        s_add_u32 s75, s75, 64
        s_lshl_b32 s76, s{L.sLw}, 2
        s_add_u32 s75, s75, s76
        s_cmp_lt_u32 s{L.sNt}, 4
        s_cselect_b32 s75, s75, 4096
        v_add_u32 v{vA}, s75, v{vA+2}
        v_mul_u32_u24 v{vA+1}, 1280, v{vA}
        v_lshlrev_b32 v{vA+3}, 4, v{vA+3}
        v_add_u32 v{vA+1}, v{vA+1}, v{vA+3}
        """)
        for j in range(5):
            a(f"buffer_load_dwordx4 {vr(vR+4*j,4)}, v{vA+1}, s[{L.sA}:{L.sA+3}], 0 offen offset:{256*j}")
    def finish(self):
        a = self.a
        vR, vA = self.vR, self.vA
        S, Q, S2, Q2, U = vA + 4, vA + 5, vA + 6, vA + 7, vA + 8
        for n in range(20):
            r = vR + n
            u = U + 2*(n & 1)
            a(f"v_lshlrev_b32 v{u}, 16, v{r}")
            a(f"v_and_b32 v{u+1}, 0xffff0000, v{r}")
            if n == 0:
                a(f"v_mov_b32 v{S}, v{u}")
                a(f"v_mul_f32 v{Q}, v{u}, v{u}")
                a(f"v_mov_b32 v{S2}, v{u+1}")
                a(f"v_mul_f32 v{Q2}, v{u+1}, v{u+1}")
            else:
                a(f"v_add_f32 v{S}, v{S}, v{u}")
                a(f"v_fmac_f32 v{Q}, v{u}, v{u}")
                a(f"v_add_f32 v{S2}, v{S2}, v{u+1}")
                a(f"v_fmac_f32 v{Q2}, v{u+1}, v{u+1}")
        a(f"v_add_f32 v{S}, v{S}, v{S2}")
        a(f"v_add_f32 v{Q}, v{Q}, v{Q2}")
        a("s_nop 1")
        for sh in (1, 2, 4, 8):
            a(f"v_add_f32_dpp v{S}, v{S}, v{S} row_shr:{sh} row_mask:0xf bank_mask:0xf bound_ctrl:0")
            a(f"v_add_f32_dpp v{Q}, v{Q}, v{Q} row_shr:{sh} row_mask:0xf bank_mask:0xf bound_ctrl:0")
            a("s_nop 0")
        a(f"""
        v_mul_f32 v{S}, {f32bits(1.0/640):#x}, v{S}
        v_mul_f32 v{Q}, {f32bits(1.0/640):#x}, v{Q}
        v_fma_f32 v{Q}, -v{S}, v{S}, v{Q}
        v_max_f32 v{Q}, 0, v{Q}
        v_add_f32 v{Q}, {f32bits(1e-5):#x}, v{Q}
        v_rsq_f32 v{Q}, v{Q}
        v_mov_b32 v{U}, v{S}
        v_lshlrev_b32 v{U+2}, 3, v{vA}
        v_mov_b32 v{U+3}, 0x7fffff00
        v_cmp_gt_u32 vcc, 2048, v{vA}
        v_mov_b32 v{U+1}, v{Q}
        v_cndmask_b32 v{U+2}, v{U+3}, v{U+2}, vcc
        s_mov_b32 s75, {WS_ST1}
        s_mov_b32 exec_lo, 0x80008000
        s_mov_b32 exec_hi, 0x80008000
        buffer_store_dwordx2 {vr(U,2)}, v{U+2}, s[{sWS}:{sWS+3}], s75 offen {SC}
        s_mov_b64 exec, -1
        """)

def p0r_arrive(a, L, vt):
    ok, skip = a.newlabel("fok"), a.newlabel("fsk")
    dbg_flag_wait(a, vt, landed=True)
    a(f"s_cmp_lt_u32 s{L.sNt}, 4")
    a(f"s_cbranch_scc0 {skip}")
    a(f"s_lshr_b32 s76, s{L.sM0}, 7")
    a(f"s_add_u32 s76, s76, {C_ST}")
    arrive(a, 76, vt - 2)
    a.label(skip)

def qkv_prefetch(a, L):
    make_srd(a, 12, pWQ, pWQ+1, 0, 640*3840)
    make_srd(a, 8, pX, pX+1, 0, 2048*1280)
    fl = E('QPF_FL', 'sc1')
    a(f"""
    s_lshr_b32 s40, s2, 3
    s_and_b32 s41, s2, 1
    v_and_b32 v2, 15, v1
    v_lshrrev_b32 v3, 4, v1
    v_lshlrev_b32 v2, 7, v2
    v_mul_u32_u24 v3, 3840, v3
    v_add_u32 v4, v2, v3
    s_mul_i32 s42, s40, {20*3840}
    s_lshl_b32 s43, s41, 11
    s_add_u32 s42, s42, s43
    s_mul_i32 s43, s{sWV}, {4*3840}
    s_add_u32 s42, s42, s43
    buffer_load_dword v162, v4, s[12:15], s42 offen {fl}
    """)
    l = a.newlabel("qpf")
    a(f"""
    s_cmp_eq_u32 s{sWV}, 0
    s_cbranch_scc0 {l}
    s_add_u32 s42, s42, {16*3840}
    buffer_load_dword v162, v4, s[12:15], s42 offen {fl}
    """)
    a.label(l)
    l = a.newlabel("qpf")
    a(f"""
    s_cmp_eq_u32 s{sWV}, 0
    s_cbranch_scc1 {l}
    s_and_b32 s41, s2, 7
    s_lshr_b32 s41, s41, 1
    s_lshl_b32 s41, s41, 5
    s_add_u32 s41, s41, s40
    s_mul_i32 s42, s41, 20480
    s_sub_u32 s43, s{sWV}, 1
    s_lshl_b32 s43, s43, 13
    s_add_u32 s42, s42, s43
    v_lshlrev_b32 v4, 7, v1
    buffer_load_dword v162, v4, s[8:11], s42 offen {fl}
    """)
    a.label(l)

def p0q_arrive(a, L, vt):
    ok = a.newlabel("fok")
    a(f"v_readfirstlane_b32 s75, v{vt}")
    a("s_cmp_lg_u32 s75, 0")
    a(f"s_cbranch_scc1 {ok}")
    dbg_flag_wait(a, vt)
    a.label(ok)
    a(f"""
    s_lshr_b32 s75, s{L.sM0}, 7
    s_add_u32 s75, s75, {C_ST}
    s_add_u32 s76, s{L.sNt}, {C_CS1}
    s_add_u32 s77, s{L.sNt}, {C_CS2}
    v_mov_b32 v{vt-1}, s75
    v_writelane_b32 v{vt-1}, s76, 1
    v_writelane_b32 v{vt-1}, s77, 2
    s_nop 0
    v_lshlrev_b32 v{vt-1}, 7, v{vt-1}
    v_add_u32 v{vt-1}, {WS_CNT}, v{vt-1}
    v_mov_b32 v{vt-2}, 1
    s_cmp_lt_u32 s{L.sNt}, 8
    s_cselect_b32 s75, 1, 0
    s_or_b32 s75, s75, 2
    s_cmp_lt_u32 s{L.sNt}, 14
    s_cselect_b32 s76, 4, 0
    s_or_b32 s75, s75, s76
    s_mov_b32 exec_lo, s75
    s_mov_b32 exec_hi, 0
    buffer_atomic_add v{vt-2}, v{vt-1}, s[{sWS}:{sWS+3}], 0 offen sc1
    s_mov_b64 exec, -1
    """)

def w2p_prefetch(a, j):
    a(f"""
    s_mul_i32 s75, s{sRk}, {SZ_W2P // 32}
    s_add_u32 s75, s75, {WS_W2P + j * 8192}
    v_lshlrev_b32 v61, 7, v1
    buffer_load_dword v60, v61, s[{sWS}:{sWS+3}], s75 offen sc1
    """)

def w2_first_prefetch(a, c):
    NST = 14
    a(f"""
    s_and_b32 s75, s{sRk}, 3
    s_mul_i32 s75, s75, 3
    s_lshr_b32 s76, s{sRk}, 2
    s_lshl_b32 s77, s76, 1
    s_add_u32 s75, s75, s77
    s_cmp_ge_u32 s75, {NST}
    s_cselect_b32 s77, {NST}, 0
    s_sub_u32 s75, s75, s77
    s_cmp_ge_u32 s75, {NST}
    s_cselect_b32 s77, {NST}, 0
    s_sub_u32 s75, s75, s77
    s_mul_i32 s76, s76, {NST * 20480}
    s_add_u32 s76, s76, {WS_W2P}
    s_mul_i32 s77, s{c.sLw}, 5120
    s_add_u32 s76, s76, s77
    s_mul_i32 s77, s75, 20480
    s_add_u32 s77, s77, s76
    v_lshlrev_b32 v61, 7, v1
    s_mov_b32 exec_lo, -1
    s_mov_b32 exec_hi, 0xff
    buffer_load_dword v60, v61, s[{sWS}:{sWS+3}], s77 offen sc1
    s_add_u32 s75, s75, 1
    s_cmp_eq_u32 s75, {NST}
    s_cselect_b32 s75, 0, s75
    s_mul_i32 s77, s75, 20480
    s_add_u32 s77, s77, s76
    buffer_load_dword v60, v61, s[{sWS}:{sWS+3}], s77 offen sc1
    s_mov_b64 exec, -1
    """)
    if not E('NOTLB4'):
        def t4():
            a("v_lshlrev_b32 v61, 21, v1")
            a("s_mov_b64 exec, 3")
            make_srd(a, 44, pOUT, pOUT+1, 0, 2048*1280)
            a("buffer_load_dword v60, v61, s[44:47], 0 offen sc1")
            a("s_mov_b64 exec, 0xfff")
            a(f"buffer_load_dword v60, v61, s[{sWS}:{sWS+3}], 0 offen sc1")
            a("s_mov_b64 exec, -1")
        wave_only(a, 7, t4)

class Repack:
    aB, vD, vT = 28, 110, 88
    sWo, sW2, sW1 = 12, 16, 40
    def __init__(self, a): self.a = a
    def issue(self, defer=False):
        a = self.a
        aB, vD, T = self.aB, self.vD, self.vT
        a(f"""
        s_mul_i32 s75, s2, 768
        s_sub_u32 s76, s{sWV}, 4
        s_lshl_b32 s76, s76, 6
        s_add_u32 s75, s75, s76
        v_add_u32 v{T}, s75, v1
        """)
        for r in range(3):
            g, it, sg, rho, c, row, nt, st_, x = T+1, T+2, T+3, T+4, T+5, T+6, T+7, T+8, T+9
            a(f"""
            v_add_u32 v{g}, {256*r}, v{T}
            s_mov_b32 s75, {(1 << 32) // 1280 + 1:#x}
            v_mul_hi_u32 v{it}, v{g}, s75
            v_mul_u32_u24 v{sg}, 1280, v{it}
            v_sub_u32 v{sg}, v{g}, v{sg}
            v_mul_u32_u24 v{rho}, 0xcccd, v{sg}
            v_lshrrev_b32 v{rho}, 19, v{rho}
            v_mul_u32_u24 v{c}, 10, v{rho}
            v_sub_u32 v{c}, v{sg}, v{c}
            v_and_b32 v{row}, 0x73, v{rho}
            v_and_b32 v{x}, 4, v{rho}
            v_lshlrev_b32 v{x}, 1, v{x}
            v_or_b32 v{row}, v{row}, v{x}
            v_and_b32 v{x}, 8, v{rho}
            v_lshrrev_b32 v{x}, 1, v{x}
            v_or_b32 v{row}, v{row}, v{x}
            v_lshlrev_b32 v{vD+r}, 4, v{g}
            v_cmp_gt_u32 vcc, 40, v{it}
            v_subrev_u32 v{x}, 40, v{it}
            s_nop 0
            v_cndmask_b32 v{x}, v{x}, v{it}, vcc
            v_mul_u32_u24 v{nt}, 0x4925, v{x}
            v_mul_u32_u24 v{st_}, 0xcccd, v{x}
            v_cndmask_b32 v{nt}, v{nt}, v{st_}, vcc
            v_lshrrev_b32 v{nt}, 18, v{nt}
            v_mov_b32 v{st_}, 14
            v_cndmask_b32 v{st_}, v{st_}, 5, vcc
            v_mul_u32_u24 v{st_}, v{st_}, v{nt}
            v_sub_u32 v{st_}, v{x}, v{st_}
            v_lshlrev_b32 v{st_}, 7, v{st_}
            v_add_u32 v{row}, v{row}, v{st_}
            v_mul_u32_u24 v{row}, 1280, v{row}
            v_mul_u32_u24 v{nt}, 160, v{nt}
            v_lshlrev_b32 v{c}, 4, v{c}
            v_add3_u32 v{row}, v{row}, v{nt}, v{c}
            v_mov_b32 v{x}, 0x7fffff00
            v_cndmask_b32 v{nt}, v{x}, v{row}, vcc
            v_cndmask_b32 v{row}, v{row}, v{x}, vcc
            v_cmp_gt_u32 vcc, 152, v{it}
            s_nop 1
            v_cndmask_b32 v{vD+r}, v{x}, v{vD+r}, vcc
            """)
            a(f"v_mov_b32 v{100+2*r}, v{nt}")
            a(f"v_mov_b32 v{101+2*r}, v{row}")
            a(f"v_mov_b32 v{106+r}, v{it}")
        if defer: return
        self.loads()
    def loads(self, base=100, tmp=None):
        a = self.a
        aB, T = self.aB, (self.vT if tmp is None else tmp)
        if base != 100:
            for k in range(9): a(f"v_accvgpr_read_b32 v{base+k}, a{40+k}")
        self.sWo, self.sW2, self.sW1 = 8, 12, 8
        make_srd(a, self.sWo, pWO, pWO+1, 0, 640*1280)
        make_srd(a, self.sW2, pW2, pW2+1, 0, 1728*1280)
        for r in range(3):
            la, lb = a.newlabel("rpa"), a.newlabel("rpb")
            a(f"""
            v_cmp_gt_u32 vcc, 40, v{base+6+r}
            s_nop 4
            s_mov_b64 s[76:77], vcc
            s_mov_b64 exec, vcc
            s_cbranch_execz {la}
            buffer_load_dwordx4 {ar(aB+4*r,4)}, v{base+2*r}, s[{self.sWo}:{self.sWo+3}], 0 offen
            {la}:
            s_not_b64 exec, s[76:77]
            s_cbranch_execz {lb}
            buffer_load_dwordx4 {ar(aB+4*r,4)}, v{base+1+2*r}, s[{self.sW2}:{self.sW2+3}], 0 offen
            {lb}:
            s_mov_b64 exec, -1
            """)
        make_srd(a, self.sW1, pW1, pW1+1, 0, 640*3456)
        a(f"""
        s_mul_i32 s75, s2, 8640
        s_sub_u32 s76, s{sWV}, 4
        s_mul_i32 s76, s76, 2176
        s_add_u32 s75, s75, s76
        v_lshlrev_b32 v{T}, 7, v1
        s_mov_b64 exec, 0x1ffff
        buffer_load_dword v113, v{T}, s[{self.sW1}:{self.sW1+3}], s75 offen sc1
        s_mov_b64 exec, -1
        """)
    def save(self):
        a = self.a
        for r in range(3): a(f"v_accvgpr_write_b32 a{40+r}, v{self.vD+r}")
        for k in range(9): a(f"v_accvgpr_write_b32 a{43+k}, v{100+k}")
    def store(self, wait_after=True, pre="s_waitcnt vmcnt(0)"):
        a = self.a
        a(pre)
        a(f"s_mov_b32 s75, {WS_WOP}")
        for r in range(3):
            a(f"buffer_store_dwordx4 {ar(self.aB+4*r,4)}, v{self.vD+r}, s[{sWS}:{sWS+3}], s75 offen {SC}")
        if wait_after: a("s_waitcnt vmcnt(0)")
        else: a("s_nop 1")

class CoreL:
    sA, sW, sO = 8, 12, 16
    sM0, sN0, sT0, sT1, sT2, sT3 = 21, 22, 23, 24, 25, 26
    sLw, sSlot, sAoff, sWoff, sLds = 20, 28, 29, 30, 31
    sWm, sWn, sNt, sSeq, sSeqW = 32, 33, 34, 35, 36
    vAe, vAo, vWo = 4, 5, 6
    NST = 10
    def __init__(self, a, mode, tag):
        self.a, self.mode, self.tag = a, mode, tag
        self.qkv = mode == 'qkv'
        self.LDW = 3840 if self.qkv else 3456
    def map_tiles(self, idle_label):
        a, c = self.a, self
        if not c.qkv:
            a(f"""
            s_and_b32 s{c.sT3}, s{sRk}, 1
            s_lshl_b32 s{c.sM0}, s{sX}, 1
            s_add_u32 s{c.sM0}, s{c.sM0}, s{c.sT3}
            s_lshl_b32 s{c.sM0}, s{c.sM0}, 7
            s_lshr_b32 s{c.sNt}, s{sRk}, 1
            s_cmp_ge_u32 s{c.sNt}, 14
            s_cbranch_scc1 {idle_label}
            s_lshl_b32 s{c.sN0}, s{c.sNt}, 7
            s_mul_i32 s{c.sSeq}, s{c.sNt}, 3
            s_mul_i32 s{c.sT0}, s{c.sT3}, 5
            s_add_u32 s{c.sSeq}, s{c.sSeq}, s{c.sT0}
            s_mul_i32 s{c.sT0}, s{c.sSeq}, 0xcccd
            s_lshr_b32 s{c.sT0}, s{c.sT0}, 19
            s_mul_i32 s{c.sT0}, s{c.sT0}, 10
            s_sub_u32 s{c.sSeq}, s{c.sSeq}, s{c.sT0}
            """)
            if E('NOROTL'): a(f"s_mov_b32 s{c.sSeq}, 0")
            return
        NT_PER = 8 if c.qkv else 7
        NT_TOT = 15 if c.qkv else 14
        a(f"""
        s_and_b32 s{c.sT0}, s2, 7
        s_lshr_b32 s{c.sT1}, s2, 3
        s_lshr_b32 s{c.sT2}, s{c.sT0}, 1
        s_lshl_b32 s{c.sT2}, s{c.sT2}, 2
        s_and_b32 s{c.sT3}, s{c.sT1}, 3
        s_add_u32 s{c.sM0}, s{c.sT2}, s{c.sT3}
        s_lshl_b32 s{c.sM0}, s{c.sM0}, 7
        s_and_b32 s{c.sT0}, s{c.sT0}, 1
        s_mul_i32 s{c.sT0}, s{c.sT0}, {NT_PER}
        s_lshr_b32 s{c.sT1}, s{c.sT1}, 2
        s_add_u32 s{c.sNt}, s{c.sT0}, s{c.sT1}
        s_cmp_ge_u32 s{c.sT1}, {NT_PER}
        s_cbranch_scc1 {idle_label}
        s_cmp_ge_u32 s{c.sNt}, {NT_TOT}
        s_cbranch_scc1 {idle_label}
        s_lshl_b32 s{c.sN0}, s{c.sNt}, 7
        s_mul_i32 s{c.sSeq}, s{c.sT3}, 3
        s_add_u32 s{c.sSeq}, s{c.sSeq}, s{c.sT1}
        s_cmp_ge_u32 s{c.sSeq}, 10
        s_cselect_b32 s{c.sT0}, 10, 0
        s_sub_u32 s{c.sSeq}, s{c.sSeq}, s{c.sT0}
        """)
        if E('NOROTL'): a(f"s_mov_b32 s{c.sSeq}, 0")
    def loader_setup(self):
        a, c = self.a, self
        a(f"s_sub_u32 s{c.sLw}, s{sWV}, 4")
        if c.qkv:
            make_srd(a, c.sA, pX, pX+1, 0, 2048*1280)
            a(f"""
            v_lshrrev_b32 v2, 3, v1
            v_mul_u32_u24 v2, 1280, v2
            v_lshrrev_b32 v3, 4, v1
            v_and_b32 v7, 7, v1
            v_xor_b32 v3, v3, v7
            v_lshlrev_b32 v3, 4, v3
            v_add_u32 v{c.vAe}, v2, v3
            v_xor_b32 v{c.vAo}, 64, v{c.vAe}
            s_lshl_b32 s{c.sT0}, s{c.sLw}, 5
            s_add_u32 s{c.sT0}, s{c.sT0}, s{c.sM0}
            s_mul_i32 s{c.sAoff}, s{c.sT0}, 1280
            """)
            c.A_SSTEP = 128
        else:
            make_srd(a, c.sA, pWS, pWS+1, WS_H, SZ_ACT)
            a(f"""
            v_lshlrev_b32 v{c.vAe}, 4, v1
            v_add_u32 v{c.vAo}, 1024, v{c.vAe}
            s_lshl_b32 s{c.sT0}, s{c.sLw}, 16
            s_lshl_b32 s{c.sT1}, s{c.sM0}, 4
            s_add_u32 s{c.sAoff}, s{c.sT0}, s{c.sT1}
            """)
            c.A_SSTEP = 8 * 32768
        pw = pWQ if c.qkv else pW1
        make_srd(a, c.sW, pw, pw+1, 0, 640 * c.LDW)
        a(f"""
        v_lshrrev_b32 v2, 4, v1
        v_mul_u32_u24 v3, {c.LDW}, v2
        v_lshlrev_b32 v2, 2, v2
        v_and_b32 v7, 15, v1
        v_xor_b32 v2, v2, v7
        v_lshlrev_b32 v2, 4, v2
        v_add_u32 v{c.vWo}, v2, v3
        s_lshl_b32 s{c.sT0}, s{c.sLw}, 4
        s_mul_i32 s{c.sT0}, s{c.sT0}, {c.LDW}
        s_lshl_b32 s{c.sT1}, s{c.sN0}, 1
        s_add_u32 s{c.sWoff}, s{c.sT0}, s{c.sT1}
        s_lshl_b32 s{c.sLds}, s{c.sLw}, 12
        s_mul_i32 s{c.sT0}, s{c.sSeq}, {c.A_SSTEP}
        s_add_u32 s{c.sAoff}, s{c.sAoff}, s{c.sT0}
        s_mul_i32 s{c.sT0}, s{c.sSeq}, {64 * c.LDW}
        s_add_u32 s{c.sWoff}, s{c.sWoff}, s{c.sT0}
        s_mov_b32 s{c.sSeqW}, s{c.sSeq}
        """)
    def issue_A(self, seq):
        a, c = self.a, self
        slot = (seq % 4) * 32768
        for j in range(4):
            a(f"s_add_u32 m0, s{c.sLds}, {slot}" if j == 0 else "s_add_u32 m0, m0, 1024")
            if c.qkv:
                a(f"s_mov_b32 s{c.sT0}, s{c.sAoff}" if j == 0 else f"s_add_u32 s{c.sT0}, s{c.sT0}, {8*1280}")
            else:
                if j == 0: a(f"s_mov_b32 s{c.sT0}, s{c.sAoff}")
                elif j == 2: a(f"s_add_u32 s{c.sT0}, s{c.sT0}, 32768")
                else: a("s_nop 0")
            a(f"buffer_load_dwordx4 v{c.vAe if j % 2 == 0 else c.vAo}, s[{c.sA}:{c.sA+3}], s{c.sT0} offen {E('QNT_A','') if c.qkv else ''} lds")
        a(f"""
        s_add_u32 s{c.sSeq}, s{c.sSeq}, 1
        s_cmp_eq_u32 s{c.sSeq}, {c.NST}
        s_cselect_b32 s{c.sT0}, {c.NST * c.A_SSTEP}, 0
        s_cselect_b32 s{c.sSeq}, 0, s{c.sSeq}
        s_add_u32 s{c.sAoff}, s{c.sAoff}, {c.A_SSTEP}
        s_sub_u32 s{c.sAoff}, s{c.sAoff}, s{c.sT0}
        """)
    def issue_W(self, seq):
        a, c = self.a, self
        slot = (seq % 4) * 32768 + 16384
        for j in range(4):
            a(f"s_add_u32 m0, s{c.sLds}, {slot}" if j == 0 else "s_add_u32 m0, m0, 1024")
            a(f"s_mov_b32 s{c.sT0}, s{c.sWoff}" if j == 0 else f"s_add_u32 s{c.sT0}, s{c.sT0}, {4 * c.LDW}")
            a(f"buffer_load_dwordx4 v{c.vWo}, s[{c.sW}:{c.sW+3}], s{c.sT0} offen {E('QNT_W','') if c.qkv else ''} lds")
        a(f"""
        s_add_u32 s{c.sSeqW}, s{c.sSeqW}, 1
        s_cmp_eq_u32 s{c.sSeqW}, {c.NST}
        s_cselect_b32 s{c.sT0}, {c.NST * 64 * c.LDW}, 0
        s_cselect_b32 s{c.sSeqW}, 0, s{c.sSeqW}
        s_add_u32 s{c.sWoff}, s{c.sWoff}, {64 * c.LDW}
        s_sub_u32 s{c.sWoff}, s{c.sWoff}, s{c.sT0}
        """)
    vLs = 16
    vSx, vSq, vCs, vU = 48, 56, 64, 72
    vLs = 16
    def lstats_init(self): pass
    def lst_poll_issue(self):
        a, c = self.a, self
        v = c.vLs
        a(f"""
        s_add_u32 s{c.sT0}, s{c.sNt}, {C_CS1 if c.qkv else C_CS2}
        s_lshr_b32 s{c.sT1}, s{c.sM0}, 7
        s_add_u32 s{c.sT1}, s{c.sT1}, {C_ST}
        v_mov_b32 v{v}, s{c.sT0}
        v_writelane_b32 v{v}, s{c.sT1}, 1
        v_mov_b32 v{v+1}, 16
        v_writelane_b32 v{v+1}, {8 if c.qkv else 0}, 1
        v_lshlrev_b32 v{v}, 7, v{v}
        v_add_u32 v{v}, {WS_CNT}, v{v}
        s_mov_b64 exec, 3
        buffer_load_dword v{v+2}, v{v}, s[{sWS}:{sWS+3}], 0 offen sc1
        s_mov_b64 exec, -1
        """)
    def lst_check_issue(self, q):
        a, c = self.a, self
        v = c.vLs
        ok = a.newlabel("lok")
        a(f"""
        s_waitcnt vmcnt({q.need('poll')})
        s_mov_b64 exec, 3
        v_cmp_gt_u32 vcc, v{v+1}, v{v+2}
        s_nop 4
        s_cmp_eq_u64 vcc, 0
        s_cbranch_scc1 {ok}
        """)
        poll(a, v, v + 1, 2, v + 2)
        a.label(ok)
        a("s_mov_b64 exec, -1")
        ncol = 1920 if c.qkv else 1792
        d = v + 8
        a(f"""
        v_and_b32 v{v+4}, 31, v1
        v_lshlrev_b32 v{v+5}, 2, v{v+4}
        v_lshlrev_b32 v{v+4}, 3, v{v+4}
        s_lshl_b32 s{c.sT0}, s{c.sLw}, 5
        s_add_u32 s{c.sT1}, s{c.sT0}, s{c.sN0}
        s_lshl_b32 s{c.sT1}, s{c.sT1}, 2
        s_add_u32 s{c.sT1}, s{c.sT1}, {WS_CS1 if c.qkv else WS_CS2}
        s_mov_b32 exec_hi, 0
        """)
        for j in range(16):
            a(f"buffer_load_dword v{d+j}, v{v+5}, s[{sWS}:{sWS+3}], s{c.sT1} offen")
            if j < 15: a(f"s_add_u32 s{c.sT1}, s{c.sT1}, {ncol*4}")
        a(f"""
        s_mov_b32 exec_lo, 0
        s_mov_b32 exec_hi, -1
        s_add_u32 s{c.sT1}, s{c.sT0}, s{c.sM0}
        s_lshl_b32 s{c.sT1}, s{c.sT1}, 3
        s_add_u32 s{c.sT1}, s{c.sT1}, {WS_ST1 if c.qkv else WS_ST2}
        """)
        npart = 1 if c.qkv else 8
        for j in range(npart):
            a(f"buffer_load_dwordx2 {vr(d+16+2*j,2)}, v{v+4}, s[{sWS}:{sWS+3}], s{c.sT1} offen")
            if j < npart - 1: a(f"s_add_u32 s{c.sT1}, s{c.sT1}, {2048*8}")
        a("s_mov_b64 exec, -1")
        q.push("stats", 16 + npart)
    def lst_finish(self, q):
        a, c = self.a, self
        v = c.vLs
        d = v + 8
        a(f"s_waitcnt vmcnt({q.need('stats')})")
        for j in range(1, 16):
            a(f"v_add_f32 v{d}, v{d}, v{d+j}")
        S, Q = d + 16, d + 17
        if not c.qkv:
            for j in range(1, 8):
                a(f"v_add_f32 v{S}, v{S}, v{S+2*j}")
                a(f"v_add_f32 v{Q}, v{Q}, v{Q+2*j}")
            a(f"""
            v_mul_f32 v{S}, {f32bits(1.0/640):#x}, v{S}
            v_mul_f32 v{Q}, {f32bits(1.0/640):#x}, v{Q}
            v_fma_f32 v{Q}, -v{S}, v{S}, v{Q}
            v_max_f32 v{Q}, 0, v{Q}
            v_add_f32 v{Q}, {f32bits(1e-5):#x}, v{Q}
            v_rsq_f32 v{Q}, v{Q}
            """)
        a(f"""
        s_lshl_b32 s{c.sT0}, s{c.sLw}, 7
        s_add_u32 s{c.sT0}, s{c.sT0}, {STAT}
        v_add_u32 v{v+5}, s{c.sT0}, v{v+5}
        s_mov_b32 exec_hi, 0
        ds_write_b32 v{v+5}, v{d} offset:1024
        s_mov_b32 exec_lo, 0
        s_mov_b32 exec_hi, -1
        ds_write_b32 v{v+5}, v{S}
        ds_write_b32 v{v+5}, v{Q} offset:512
        s_mov_b64 exec, -1
        s_waitcnt lgkmcnt(0)
        """)
    def tq_poll_issue(self):
        a, c = self.a, self
        v = c.vLs
        a(f"""
        s_lshr_b32 s{c.sT1}, s{c.sM0}, 7
        s_add_u32 s{c.sT1}, s{c.sT1}, {C_ST}
        s_lshl_b32 s{c.sT1}, s{c.sT1}, 7
        s_add_u32 s{c.sT1}, s{c.sT1}, {WS_CNT}
        v_mov_b32 v{v}, s{c.sT1}
        v_mov_b32 v{v+1}, {5 if E('P0L') else 1}
        s_mov_b64 exec, 1
        buffer_load_dword v{v+2}, v{v}, s[{sWS}:{sWS+3}], 0 offen sc1
        s_mov_b64 exec, -1
        """)
    def tq_check_issue(self, q):
        a, c = self.a, self
        v = c.vLs
        ok = a.newlabel("lok")
        a(f"""
        s_waitcnt vmcnt({q.need('poll')})
        v_readfirstlane_b32 s{c.sT0}, v{v+2}
        s_cmp_ge_u32 s{c.sT0}, {5 if E('P0L') else 1}
        s_cbranch_scc1 {ok}
        """)
        poll(a, v, v + 1, 1, v + 2)
        a.label(ok)
        a(f"""
        v_and_b32 v{v+4}, 31, v1
        v_lshlrev_b32 v{v+5}, 2, v{v+4}
        v_lshlrev_b32 v{v+4}, 3, v{v+4}
        s_lshl_b32 s{c.sT0}, s{c.sLw}, 5
        s_add_u32 s{c.sT1}, s{c.sT0}, s{c.sM0}
        s_lshl_b32 s{c.sT1}, s{c.sT1}, 3
        s_add_u32 s{c.sT1}, s{c.sT1}, {WS_ST1}
        buffer_load_dwordx2 {vr(v+8,2)}, v{v+4}, s[{sWS}:{sWS+3}], s{c.sT1} offen
        """)
        q.push("stats", 1)
    def tq_finish(self, q):
        a, c = self.a, self
        v = c.vLs
        a(f"""
        s_waitcnt vmcnt({q.need('stats')})
        s_lshl_b32 s{c.sT0}, s{c.sLw}, 7
        s_add_u32 s{c.sT0}, s{c.sT0}, {STAT}
        v_add_u32 v{v+5}, s{c.sT0}, v{v+5}
        ds_write_b32 v{v+5}, v{v+8}
        ds_write_b32 v{v+5}, v{v+9} offset:512
        """)
    def tok_issue(self, q):
        a, c = self.a, self
        v = c.vLs
        d = v + 8
        a(f"""
        v_and_b32 v{v+4}, 31, v1
        v_lshlrev_b32 v{v+5}, 2, v{v+4}
        v_lshlrev_b32 v{v+4}, 3, v{v+4}
        s_lshl_b32 s{c.sT0}, s{c.sLw}, 5
        s_add_u32 s{c.sT1}, s{c.sT0}, s{c.sM0}
        s_lshl_b32 s{c.sT1}, s{c.sT1}, 3
        s_add_u32 s{c.sT1}, s{c.sT1}, {WS_ST2}
        s_mov_b32 exec_hi, 0
        """)
        for j in range(16):
            a(f"buffer_load_dwordx2 {vr(d+2*j,2)}, v{v+4}, s[{sWS}:{sWS+3}], s{c.sT1} offen")
            if j < 15: a(f"s_add_u32 s{c.sT1}, s{c.sT1}, {2048*8}")
        a("s_mov_b32 exec_hi, -1")
        q.push("stats", 16)
    def tok_finish(self, q):
        a, c = self.a, self
        v = c.vLs
        S, Q = v + 8, v + 9
        a(f"s_waitcnt vmcnt({q.need('stats')})")
        for j in range(1, 16):
            a(f"v_add_f32 v{S}, v{S}, v{S+2*j}")
            a(f"v_add_f32 v{Q}, v{Q}, v{Q+2*j}")
        a(f"""
        v_mul_f32 v{S}, {f32bits(1.0/640):#x}, v{S}
        v_mul_f32 v{Q}, {f32bits(1.0/640):#x}, v{Q}
        v_fma_f32 v{Q}, -v{S}, v{S}, v{Q}
        v_max_f32 v{Q}, 0, v{Q}
        v_add_f32 v{Q}, {f32bits(1e-5):#x}, v{Q}
        v_rsq_f32 v{Q}, v{Q}
        s_lshl_b32 s{c.sT0}, s{c.sLw}, 7
        s_add_u32 s{c.sT0}, s{c.sT0}, {STAT}
        v_add_u32 v{v+5}, s{c.sT0}, v{v+5}
        s_mov_b32 exec_hi, 0
        ds_write_b32 v{v+5}, v{S}
        ds_write_b32 v{v+5}, v{Q} offset:512
        s_mov_b32 exec_hi, -1
        """)
    def loader_main(self, q, p0=None):
        a, c = self.a, self
        for s_ in range(c.NST):
            tags = [f'A{s_}', f'W{s_}']
            if c.qkv and s_ == 4 and E('P0L'): tags.append('p0st')
            a(f"s_waitcnt vmcnt({q.need(*tags)}) lgkmcnt(0)")
            if getattr(c, 'ldstamps', False) and s_ in (0, 1, 2): st(a, 4 + s_)
            a("s_barrier")
            stx(a, f"{c.tag}l{s_}")
            if c.qkv:
                vd = 70
                if s_ == 0: wave_only(a, 4, lambda: a(f"buffer_load_dword v{vd}, v{vd+1}, s[44:47], 0 offen sc1"))
                if s_ == 4 and E('P0L'): wave_only(a, 4, lambda: p0r_arrive(a, c, vd))
                if s_ == 3: wave_only(a, 7, lambda: reg_step1(a, vd))
                if s_ == 5: wave_only(a, 7, lambda: reg_step2(a, vd))
                if s_ == 7: wave_only(a, 7, lambda: reg_step3(a, vd))
            if s_ + PD < c.NST and not (E('X_NODMA') and c.qkv):
                c.issue_A(s_ + PD); q.push(f"A{s_+PD}", 4)
                c.issue_W(s_ + PD); q.push(f"W{s_+PD}", 4)
            if c.qkv and s_ == 1 and E('P0L'):
                a(f"s_waitcnt vmcnt({q.need('p0l')})"); c.p0l.finish(); q.push('p0st', 1)
            if not c.qkv:
                if s_ == 7: c.tok_issue(q)
                if s_ == 8 and not E('NOPFW0'): w2_first_prefetch(a, c)
                if s_ == 9: c.tok_finish(q)
                if E('PFW2') and 0 <= s_ < 9:
                    wave_only(a, 4 + (s_ % 4), lambda: w2p_prefetch(a, s_))
            else:
                if s_ == 8 and getattr(c, 'hook7', None): c.hook7()
                if s_ == 6:
                    c.tq_poll_issue(); q.push("poll", 1)
                if s_ == 7: c.tq_check_issue(q)
                if s_ == 9: c.tq_finish(q)

    vAd, vX, vW, vAcc, vT, vSt = 24, 32, 32, 64, 128, 144
    def compute_setup(self):
        a, c = self.a, self
        NXA = 8 if c.qkv else 2
        c.NXA = NXA
        c.vXa = 4
        c.vWa = c.vXa + 2 * NXA
        vXa, vWa, vT = c.vXa, c.vWa, c.vT
        t0, t1 = vT, vT + 1
        a(f"""
        s_lshr_b32 s{c.sWm}, s{sWV}, 1
        s_and_b32 s{c.sWn}, s{sWV}, 1
        v_and_b32 v2, 31, v1
        v_lshrrev_b32 v3, 5, v1
        """)
        if c.qkv:
            a(f"""
            v_lshrrev_b32 v{t0}, 1, v1
            v_and_b32 v{t0}, 7, v{t0}
            v_xor_b32 v{t0}, v{t0}, v3
            v_lshlrev_b32 v{t0}, 4, v{t0}
            v_lshlrev_b32 v{t1}, 7, v2
            v_add_u32 v{t0}, v{t0}, v{t1}
            s_lshl_b32 s{c.sT0}, s{c.sWm}, 13
            s_lshl_b32 s{c.sT1}, s{c.sWn}, 12
            s_add_u32 s{c.sT0}, s{c.sT0}, s{c.sT1}
            v_add_u32 v{t0}, s{c.sT0}, v{t0}
            """)
            for s in range(4):
                a(f"v_xor_b32 v{vXa + s}, {32 * s}, v{t0}")
                a(f"v_xor_b32 v{vXa + 4 + s}, 4096, v{vXa + s}")
        else:
            a(f"""
            v_lshlrev_b32 v{t0}, 11, v3
            v_lshlrev_b32 v{t1}, 4, v2
            v_add_u32 v{t0}, v{t0}, v{t1}
            s_lshl_b32 s{c.sT0}, s{c.sWm}, 10
            v_add_u32 v{vXa}, s{c.sT0}, v{t0}
            v_add_u32 v{vXa + 1}, 512, v{vXa}
            """)
        for i in range(NXA):
            a(f"v_add_u32 v{vXa + NXA + i}, 65536, v{vXa + i}")
        a(f"""
        v_lshrrev_b32 v{t0}, 2, v1
        v_and_b32 v{t0}, 3, v{t0}
        v_lshlrev_b32 v{t1}, 3, v3
        v_add_u32 v{t1}, v{t1}, v{t0}
        v_lshlrev_b32 v{t1}, 8, v{t1}
        v_lshlrev_b32 v{t0}, 6, v{t0}
        v_add_u32 v{t1}, v{t1}, v{t0}
        v_lshrrev_b32 v{t0}, 4, v1
        v_and_b32 v{t0}, 1, v{t0}
        v_lshlrev_b32 v{t0}, 5, v{t0}
        v_add_u32 v{t1}, v{t1}, v{t0}
        v_lshrrev_b32 v{t0}, 1, v1
        v_and_b32 v{t0}, 1, v{t0}
        v_lshlrev_b32 v{t0}, 4, v{t0}
        v_add_u32 v{t1}, v{t1}, v{t0}
        v_and_b32 v{t0}, 1, v1
        v_lshlrev_b32 v{t0}, 3, v{t0}
        v_add_u32 v{t1}, v{t1}, v{t0}
        v_add_u32 v{t1}, 16384, v{t1}
        s_lshl_b32 s{c.sT0}, s{c.sWn}, 7
        s_lshl_b32 s{c.sT1}, s{c.sWm}, 6
        s_add_u32 s{c.sT0}, s{c.sT0}, s{c.sT1}
        v_xor_b32 v{vWa}, s{c.sT0}, v{t1}
        v_xor_b32 v{vWa + 1}, 64, v{vWa}
        v_add_u32 v{vWa + 2}, 65536, v{vWa}
        v_add_u32 v{vWa + 3}, 65536, v{vWa + 1}
        """)
    def addr_qk(self):
        a, c = self.a, self
        vT, vAd = c.vT, c.vAd
        t0, t1 = vT, vT + 1
        a(f"""
        s_cmp_lt_u32 s{c.sNt}, 5
        s_cselect_b32 s{c.sT0}, 0, 640
        s_sub_u32 s{c.sT2}, s{c.sN0}, s{c.sT0}
        s_lshl_b32 s{c.sT1}, s{c.sWn}, 6
        s_add_u32 s{c.sT2}, s{c.sT2}, s{c.sT1}
        s_lshr_b32 s{c.sT2}, s{c.sT2}, 3
        v_add_u32 v{t0}, s{c.sT2}, v3
        v_lshlrev_b32 v{vT+4}, 4, v2
        """)
        for ft in range(2):
            for j in range(2):
                d = vAd + ft*2 + j
                a(f"""
                s_xor_b32 s{c.sT3}, s{c.sWm}, {ft}
                s_lshl_b32 s{c.sT3}, s{c.sT3}, 2
                s_add_u32 s{c.sT3}, s{c.sT3}, {2*j}
                v_add_u32 v{t1}, s{c.sT3}, v{t0}
                v_mul_u32_u24 v{vT+2}, 0xcccd, v{t1}
                v_lshrrev_b32 v{vT+2}, 18, v{vT+2}
                v_mul_u32_u24 v{vT+3}, 5, v{vT+2}
                v_sub_u32 v{vT+3}, v{t1}, v{vT+3}
                v_lshlrev_b32 v{vT+3}, 9, v{vT+3}
                v_mul_u32_u24 v{vT+2}, 0x28000, v{vT+2}
                v_add3_u32 v{d}, v{vT+2}, v{vT+3}, v{vT+4}
                """)
        a(f"""
        s_lshr_b32 s{c.sT0}, s{c.sM0}, 5
        s_lshl_b32 s{c.sT1}, s{c.sWm}, 1
        s_add_u32 s{c.sT0}, s{c.sT0}, s{c.sT1}
        s_add_u32 s{c.sT1}, s{c.sT0}, s{c.sWn}
        s_mul_i32 s40, s{c.sT1}, 2560
        s_xor_b32 s{c.sT1}, s{c.sWn}, 1
        s_add_u32 s{c.sT1}, s{c.sT0}, s{c.sT1}
        s_mul_i32 s41, s{c.sT1}, 2560
        s_cmp_lt_u32 s{c.sNt}, 5
        s_cselect_b32 s{c.sT0}, {WS_Q}, {WS_K}
        s_add_u32 s{c.sO}, s{pWS}, s{c.sT0}
        s_addc_u32 s{c.sO+1}, s{pWS+1}, 0
        s_and_b32 s{c.sO+1}, s{c.sO+1}, 0xffff
        s_mov_b32 s{c.sO+2}, {SZ_QK}
        s_mov_b32 s{c.sO+3}, 0x20000
        """)
    def addr_f(self):
        a, c = self.a, self
        vT, vAd = c.vT, c.vAd
        t0, t1 = vT, vT + 1
        a(f"""
        s_lshl_b32 s{c.sT1}, s{c.sWn}, 6
        s_add_u32 s{c.sT2}, s{c.sN0}, s{c.sT1}
        s_lshr_b32 s{c.sT2}, s{c.sT2}, 3
        v_add_u32 v{t0}, s{c.sT2}, v3
        v_lshlrev_b32 v{t0}, 15, v{t0}
        v_lshlrev_b32 v{t1}, 4, v2
        v_add_u32 v{t0}, v{t0}, v{t1}
        """)
        for ft in range(2):
            for j in range(2):
                a(f"s_xor_b32 s{c.sT3}, s{c.sWm}, {ft}")
                a(f"s_lshl_b32 s{c.sT3}, s{c.sT3}, 2")
                a(f"s_add_u32 s{c.sT3}, s{c.sT3}, {2*j}")
                a(f"s_lshl_b32 s{c.sT3}, s{c.sT3}, 15")
                a(f"v_add_u32 v{vAd + ft*2 + j}, s{c.sT3}, v{t0}")
        a(f"""
        s_lshl_b32 s{c.sT1}, s{c.sWm}, 6
        s_add_u32 s{c.sT0}, s{c.sM0}, s{c.sT1}
        s_lshl_b32 s40, s{c.sT0}, 4
        s_add_u32 s41, s40, 512
        """)
        make_srd(a, c.sO, pWS, pWS+1, WS_F, SZ_F)
    def addr_v(self):
        a, c = self.a, self
        vT, vAd = c.vT, c.vAd
        t0, t1 = vT, vT + 1
        for ft in range(2):
            a(f"""
            s_lshl_b32 s{c.sT1}, s{c.sWn}, 6
            s_add_u32 s{c.sT0}, s{c.sN0}, s{c.sT1}
            s_xor_b32 s{c.sT1}, s{c.sWm}, {ft}
            s_lshl_b32 s{c.sT1}, s{c.sT1}, 5
            s_add_u32 s{c.sT0}, s{c.sT0}, s{c.sT1}
            s_sub_u32 s{c.sT0}, s{c.sT0}, 1280
            v_add_u32 v{t0}, s{c.sT0}, v2
            v_mul_u32_u24 v{t1}, 0xcccd, v{t0}
            v_lshrrev_b32 v{t1}, 20, v{t1}
            v_mul_u32_u24 v{vT+2}, 20, v{t1}
            v_sub_u32 v{t0}, v{t0}, v{vT+2}
            v_lshlrev_b32 v{t0}, 4, v{t0}
            v_mul_u32_u24 v{t1}, 0x14000, v{t1}
            v_add_u32 v{t0}, v{t0}, v{t1}
            v_mul_u32_u24 v{t1}, 320, v3
            v_add_u32 v{vAd+ft}, v{t0}, v{t1}
            """)
        a(f"""
        s_lshl_b32 s{c.sT1}, s{c.sWm}, 6
        s_add_u32 s{c.sT0}, s{c.sM0}, s{c.sT1}
        s_lshr_b32 s{c.sT0}, s{c.sT0}, 4
        s_lshl_b32 s{c.sT1}, s{c.sWn}, 1
        s_add_u32 s{c.sT1}, s{c.sT1}, s{c.sT0}
        s_mul_i32 s40, s{c.sT1}, 640
        s_add_u32 s41, s40, 640
        s_xor_b32 s{c.sT1}, s{c.sWn}, 1
        s_lshl_b32 s{c.sT1}, s{c.sT1}, 1
        s_add_u32 s{c.sT1}, s{c.sT1}, s{c.sT0}
        s_mul_i32 s42, s{c.sT1}, 640
        s_add_u32 s43, s42, 640
        """)
        make_srd(a, c.sO, pWS, pWS+1, WS_V, SZ_QKV)
    def stats_poll_issue(self):
        a, c = self.a, self
        vS = c.vSt
        a(f"""
        v_lshlrev_b32 v{vS+30}, 7, v1
        v_add_u32 v{vS+30}, {WS_CNT + (C_P0 if c.qkv else C_W1)*128}, v{vS+30}
        s_mov_b64 exec, 0xff
        buffer_load_dword v{vS+29}, v{vS+30}, s[{sWS}:{sWS+3}], 0 offen sc1
        s_mov_b64 exec, -1
        """)
    def stats_poll_check(self):
        a, c = self.a, self
        vS = c.vSt
        ok = a.newlabel("stok")
        a(f"""
        s_waitcnt vmcnt(0)
        s_mov_b64 exec, 0xff
        v_cmp_gt_u32 vcc, 128, v{vS+29}
        s_nop 4
        s_cmp_eq_u64 vcc, 0
        s_cbranch_scc1 {ok}
        v_mov_b32 v{vS+28}, 128
        """)
        poll(a, vS + 30, vS + 28, 8, vS + 29)
        a.label(ok)
        a("s_mov_b64 exec, -1")
        a("s_nop 3")
    def stats_issue(self):
        a, c = self.a, self
        vS = c.vSt
        a(f"""
        v_lshlrev_b32 v{vS+31}, 2, v2
        v_lshlrev_b32 v{vS+30}, 3, v2
        s_lshl_b32 s{c.sT0}, s{sWV}, 5
        s_add_u32 s{c.sT1}, s{c.sT0}, s{c.sM0}
        s_lshl_b32 s{c.sT1}, s{c.sT1}, 3
        s_add_u32 s{c.sT1}, s{c.sT1}, {WS_ST2}
        """)
        for j in range(8):
            a(f"buffer_load_dwordx2 {vr(vS+8+2*j,2)}, v{vS+30}, s[{sWS}:{sWS+3}], s{c.sT1} offen")
            if j < 7: a(f"s_add_u32 s{c.sT1}, s{c.sT1}, {2048*8}")
    def stats_finish(self):
        a, c = self.a, self
        vS = c.vSt
        a("s_waitcnt vmcnt(0)")
        S, Q = vS + 8, vS + 9
        for j in range(1, 8):
            a(f"v_add_f32 v{S}, v{S}, v{S+2*j}")
            a(f"v_add_f32 v{Q}, v{Q}, v{Q+2*j}")
        a(f"""
        v_mul_f32 v{S}, {f32bits(1.0/640):#x}, v{S}
        v_mul_f32 v{Q}, {f32bits(1.0/640):#x}, v{Q}
        v_fma_f32 v{Q}, -v{S}, v{S}, v{Q}
        v_max_f32 v{Q}, 0, v{Q}
        v_add_f32 v{Q}, {f32bits(1e-5):#x}, v{Q}
        v_rsq_f32 v{Q}, v{Q}
        s_lshl_b32 s{c.sT0}, s{sWV}, 7
        s_add_u32 s{c.sT0}, s{c.sT0}, {STAT}
        v_add_u32 v{vS+31}, s{c.sT0}, v{vS+31}
        ds_write_b32 v{vS+31}, v{S}
        ds_write_b32 v{vS+31}, v{Q} offset:512
        """)
    aX = 4
    def read_list(self, i):
        c = self
        st_, step, buf = i // 4, i % 4, i % 3
        slot = st_ % 4
        win, base = slot >> 1, (slot & 1) * 32768
        L = []
        for lt in range(2):
            if c.qkv:
                L.append(f"ds_read_b128 {ar(c.aX + buf*8 + lt*4, 4)}, v{c.vXa + win*8 + lt*4 + step} offset:{base}")
            else:
                L.append(f"ds_read_b128 {ar(c.aX + buf*8 + lt*4, 4)}, v{c.vXa + win*2 + lt} offset:{base + step*4096}")
        for lf in range(2):
            for h2 in range(2):
                L.append(f"ds_read_b64_tr_b16 {vr(c.vW + buf*8 + lf*4 + h2*2, 2)}, v{c.vWa + win*2 + lf} offset:{base + step*4096 + h2*1024}")
        return L
    def reads(self, i):
        for r in self.read_list(i): self.a(r)
    def mfma(self, i, k, orientY):
        a, c = self.a, self
        buf = i % 3
        lf, lt = k >> 1, k & 1
        acc = c.vAcc + (lf*2 + lt) * 16
        xa, wa = ar(c.aX + buf*8 + lt*4, 4), vr(c.vW + buf*8 + lf*4, 4)
        cc = "0" if i == 0 else vr(acc, 16)
        if orientY: a(f"v_mfma_f32_32x32x16_bf16 {vr(acc,16)}, {wa}, {xa}, {cc}")
        else: a(f"v_mfma_f32_32x32x16_bf16 {vr(acc,16)}, {xa}, {wa}, {cc}")
    def mainloop(self, orientY, stamp0=None, tag='q'):
        a, c = self.a, self
        vS = c.vSt
        CS = vS
        UU = c.vT
        a(f"v_mov_b32 v{CS}, 0")
        a(f"v_mov_b32 v{CS+1}, 0")
        if c.qkv and E('TLBE'): wave_only(a, 3, lambda: tlb_warm(a))
        a("s_barrier")
        if stamp0 is not None: st(a, stamp0)
        stx(a, tag + '_s0')
        c.reads(0)
        c.reads(1)
        for i in range(40):
            buf = i % 3
            Wl = c.vW + buf*8
            ops = []
            for r in range(4):
                u = UU + 2*(r & 1)
                ops += [f"v_lshlrev_b32 v{u}, 16, v{Wl+r}", f"v_and_b32 v{u+1}, 0xffff0000, v{Wl+r}",
                        f"v_add_f32 v{CS}, v{CS}, v{u}", f"v_add_f32 v{CS+1}, v{CS+1}, v{u+1}"]
            if E('X_NOVALU'): ops = []
            rl = c.read_list(i + 2) if i + 2 < 40 else []
            if i == 4: stx(a, tag + '_s1')
            if i == 20: stx(a, tag + '_s5')
            a(f"s_waitcnt lgkmcnt({6 if i + 1 < 40 else 0})")
            c.mfma(i, 0, orientY)
            if i + 2 < 40 and (i + 2) % 4 == 0:
                a("s_barrier")
            for o in rl[0:2] + ops[0:3]: a(o)
            c.mfma(i, 1, orientY)
            for o in rl[2:4] + ops[3:6]: a(o)
            if c.qkv and i == int(E('TLBI', '2')) and not E('NOTLB') and not E('TLBE'): wave_only(a, 3, lambda: tlb_warm(a))
            if c.qkv and i == int(E('TLB3I', '14')) and not E('NOTLB3'):
                def t3():
                    a(f"v_lshlrev_b32 v166, 21, v1")
                    a("s_mov_b64 exec, 0xfff")
                    a(f"buffer_load_dword v167, v166, s[{sWS}:{sWS+3}], 0 offen sc1")
                    a("s_mov_b64 exec, -1")
                wave_only(a, 3, t3)
            c.mfma(i, 2, orientY)
            for o in rl[4:6] + ops[6:10]: a(o)
            c.mfma(i, 3, orientY)
            for o in ops[10:16]: a(o)
        U = vS + 14
        a(f"""
        v_add_f32 v{CS}, v{CS}, v{CS+1}
        s_nop 0
        v_mov_b32 v{CS+1}, v{CS}
        s_nop 1
        v_permlane32_swap_b32 v{CS}, v{CS+1}
        s_nop 1
        v_add_f32 v{CS}, v{CS}, v{CS+1}
        """)
        a(f"""
        s_lshl_b32 s{c.sT0}, s{c.sWn}, 8
        s_lshl_b32 s{c.sT1}, s{c.sWm}, 7
        s_add_u32 s{c.sT0}, s{c.sT0}, s{c.sT1}
        s_add_u32 s{c.sT0}, s{c.sT0}, {STAT + 1024}
        v_lshlrev_b32 v{U}, 2, v2
        v_add_u32 v{U+1}, s{c.sT0}, v{U}
        ds_write_b32 v{U+1}, v{CS}
        """)
        a("s_waitcnt lgkmcnt(0)")
    def dbg_issue(self):
        a, c = self.a, self
        make_srd(a, 44, pDBG, pDBG+1, 0, 256)
        a(f"v_lshlrev_b32 v{c.vSt+27}, 2, v1")
        a("s_mov_b64 exec, 0x1ff")
        a(f"buffer_load_dword v{c.vSt+26}, v{c.vSt+27}, s[44:47], 0 offen sc1")
        a("s_mov_b64 exec, -1")
        a("s_nop 1")
    def epilogue_Y(self, kind):
        a, c = self.a, self
        vT, vAcc, vAd = c.vT, c.vAcc, c.vAd
        vM, vR, vC = vT, vT + 2, 32
        for lt in range(2):
            a(f"""
            s_lshl_b32 s{c.sT1}, s{c.sWm}, 8
            s_add_u32 s{c.sT0}, s{c.sT1}, {STAT + (0 if c.qkv else lt*128)}
            s_xor_b32 s{c.sT1}, s{c.sWn}, {lt}
            s_lshl_b32 s{c.sT1}, s{c.sT1}, {7 if c.qkv else 31}
            s_add_u32 s{c.sT0}, s{c.sT0}, {'s%d' % c.sT1 if c.qkv else 0}
            v_lshlrev_b32 v{vT+4}, 2, v2
            v_add_u32 v{vT+4}, s{c.sT0}, v{vT+4}
            ds_read_b32 v{vM + lt}, v{vT+4}
            ds_read_b32 v{vR + lt}, v{vT+4} offset:512
            """)
        for lf in range(2):
            a(f"""
            s_lshl_b32 s{c.sT1}, s{c.sWn}, 8
            s_add_u32 s{c.sT0}, s{c.sT1}, {STAT + 1024}
            s_xor_b32 s{c.sT1}, s{c.sWm}, {lf}
            s_lshl_b32 s{c.sT1}, s{c.sT1}, 7
            s_add_u32 s{c.sT0}, s{c.sT0}, s{c.sT1}
            v_lshlrev_b32 v{vT+4}, 4, v3
            v_add_u32 v{vT+4}, s{c.sT0}, v{vT+4}
            """)
            for q in range(4):
                a(f"ds_read_b128 {vr(vC + lf*16 + q*4, 4)}, v{vT+4} offset:{q*32}")
        a("s_waitcnt lgkmcnt(0)")
        if kind == 'qk':
            a(f"""
            s_cmp_lt_u32 s{c.sNt}, 5
            s_cselect_b32 s{c.sT0}, {f32bits(QSCALE):#x}, 1.0
            v_mul_f32 v{vR}, s{c.sT0}, v{vR}
            v_mul_f32 v{vR+1}, s{c.sT0}, v{vR+1}
            """)
        B = c.vSt + 2
        for lt in range(2):
            a(f"v_mov_b32 v{B + 2*lt}, v{vM + lt}")
            a(f"v_mov_b32 v{B + 2*lt + 1}, v{vM + lt}")
            a(f"v_mov_b32 v{B + 4 + 2*lt}, v{vR + lt}")
            a(f"v_mov_b32 v{B + 4 + 2*lt + 1}, v{vR + lt}")
        vP = vT + 8
        n = 0
        for lf in range(2):
            for lt in range(2):
                acc = vAcc + (lf*2 + lt) * 16
                for r in range(0, 16, 2):
                    a(f"v_pk_fma_f32 {vr(acc + r, 2)}, {vr(B + 2*lt, 2)}, {vr(vC + lf*16 + r, 2)}, {vr(acc + r, 2)} neg_lo:[1,0,0] neg_hi:[1,0,0]")
                for r in range(0, 16, 2):
                    a(f"v_pk_mul_f32 {vr(acc + r, 2)}, {vr(acc + r, 2)}, {vr(B + 4 + 2*lt, 2)}")
                for j in range(2):
                    p = vP + (n & 1) * 4
                    n += 1
                    q0 = acc + j*8
                    for k in range(4):
                        a(f"v_cvt_pk_bf16_f32 v{p+k}, v{q0+2*k}, v{q0+2*k+1}")
                    if kind == 'ffn1':
                        for k in range(4):
                            a(f"v_pk_max_i16 v{p+k}, v{p+k}, 0")
                    else:
                        a("s_nop 0")
                    a("s_nop 0")
                    if kind == 'ffn1': a("s_nop 0")
                    a(f"v_permlane32_swap_b32 v{p}, v{p+2}")
                    a(f"v_permlane32_swap_b32 v{p+1}, v{p+3}")
                    ins = f"buffer_store_dwordx4 {vr(p,4)}, v{vAd + lf*2 + j}, s[{c.sO}:{c.sO+3}], s{40 + lt} offen @SC"
                    if kind == 'ffn1': dual(a, [ins])
                    else: a(ins.replace("@SC", SC))
    def epilogue_X(self):
        a, c = self.a, self
        vT, vAcc, vAd = c.vT, c.vAcc, c.vAd
        vC, vM, vR = vT, 32, 48
        for lf in range(2):
            a(f"""
            s_lshl_b32 s{c.sT1}, s{c.sWn}, 8
            s_add_u32 s{c.sT0}, s{c.sT1}, {STAT + 1024}
            s_xor_b32 s{c.sT1}, s{c.sWm}, {lf}
            s_lshl_b32 s{c.sT1}, s{c.sT1}, 7
            s_add_u32 s{c.sT0}, s{c.sT0}, s{c.sT1}
            v_lshlrev_b32 v{vT+4}, 2, v2
            v_add_u32 v{vT+4}, s{c.sT0}, v{vT+4}
            ds_read_b32 v{vC + lf}, v{vT+4}
            """)
        vP = vT + 8
        n = 0
        for lt in range(2):
            a(f"""
            s_lshl_b32 s{c.sT1}, s{c.sWm}, 8
            s_add_u32 s{c.sT0}, s{c.sT1}, {STAT}
            s_xor_b32 s{c.sT1}, s{c.sWn}, {lt}
            s_lshl_b32 s{c.sT1}, s{c.sT1}, 7
            s_add_u32 s{c.sT0}, s{c.sT0}, s{c.sT1}
            v_lshlrev_b32 v{vT+4}, 4, v3
            v_add_u32 v{vT+4}, s{c.sT0}, v{vT+4}
            """)
            for q in range(4):
                a(f"ds_read_b128 {vr(vM + q*4, 4)}, v{vT+4} offset:{q*32}")
                a(f"ds_read_b128 {vr(vR + q*4, 4)}, v{vT+4} offset:{512 + q*32}")
            a("s_waitcnt lgkmcnt(0)")
            B = c.vSt + 2
            if lt == 0:
                for lf in range(2):
                    a(f"v_mov_b32 v{B + 2*lf}, v{vC + lf}")
                    a(f"v_mov_b32 v{B + 2*lf + 1}, v{vC + lf}")
            for lf in range(2):
                acc = vAcc + (lf*2 + lt) * 16
                for r in range(0, 16, 2):
                    a(f"v_pk_fma_f32 {vr(acc + r, 2)}, {vr(vM + r, 2)}, {vr(B + 2*lf, 2)}, {vr(acc + r, 2)} neg_lo:[1,0,0] neg_hi:[1,0,0]")
                for r in range(0, 16, 2):
                    a(f"v_pk_mul_f32 {vr(acc + r, 2)}, {vr(acc + r, 2)}, {vr(vR + r, 2)}")
                for g in range(2):
                    p = vP + (n & 1) * 4
                    n += 1
                    for r in range(4):
                        a(f"v_cvt_pk_bf16_f32 v{p + r}, v{acc + g*8 + 2*r}, v{acc + g*8 + 2*r + 1}")
                    a(f"buffer_store_dwordx4 {vr(p,4)}, v{vAd + lf}, s[{c.sO}:{c.sO+3}], s{40 + lt*2 + g} offen {SC}")

STG = 36864
class CoreS:
    sA, sO, sR = 8, 16, 40
    sM0, sN0, sT0, sT1, sT2, sNt = 21, 22, 23, 24, 25, 26
    sLw, sAoff, sWoff, sLdsA, sLdsW, sSeq, sSeqW = 20, 29, 30, 31, 32, 33, 34
    vA = 4
    vXa2, vWa2 = 116, 117
    def __init__(self, a, mode):
        self.a, self.mode = a, mode
        self.op = mode == 'oproj'
        self.NST = 5 if self.op else 14
    def map_tiles(self):
        a, c = self.a, self
        NST = c.NST
        a(f"""
        s_and_b32 s{c.sT0}, s{sRk}, 3
        s_lshl_b32 s{c.sM0}, s{sX}, 2
        s_add_u32 s{c.sM0}, s{c.sM0}, s{c.sT0}
        s_lshl_b32 s{c.sM0}, s{c.sM0}, 6
        s_lshr_b32 s{c.sNt}, s{sRk}, 2
        s_mul_i32 s{c.sN0}, s{c.sNt}, 80
        s_mul_i32 s{c.sSeq}, s{c.sT0}, {1 if c.op else 3}
        s_mul_i32 s{c.sT1}, s{c.sNt}, {1 if c.op else 2}
        s_add_u32 s{c.sSeq}, s{c.sSeq}, s{c.sT1}
        s_cmp_ge_u32 s{c.sSeq}, {NST}
        s_cselect_b32 s{c.sT1}, {NST}, 0
        s_sub_u32 s{c.sSeq}, s{c.sSeq}, s{c.sT1}
        s_cmp_ge_u32 s{c.sSeq}, {NST}
        s_cselect_b32 s{c.sT1}, {NST}, 0
        s_sub_u32 s{c.sSeq}, s{c.sSeq}, s{c.sT1}
        """)
        if E('NOROTS'): a(f"s_mov_b32 s{c.sSeq}, 0")
    def loader_setup(self):
        a, c = self.a, self
        if c.op: make_srd(a, c.sA, pWS, pWS+1, WS_O, SZ_ACT)
        else: make_srd(a, c.sA, pWS, pWS+1, WS_F, SZ_F)
        a(f"""
        s_sub_u32 s{c.sLw}, s{sWV}, 4
        v_lshlrev_b32 v{c.vA}, 4, v1
        s_lshl_b32 s{c.sT0}, s{c.sLw}, 17
        s_lshl_b32 s{c.sT1}, s{c.sM0}, 4
        s_add_u32 s{c.sAoff}, s{c.sT0}, s{c.sT1}
        s_mul_i32 s{c.sT0}, s{c.sLw}, 5120
        s_mul_i32 s{c.sT1}, s{c.sNt}, {c.NST * 20480}
        s_add_u32 s{c.sWoff}, s{c.sT0}, s{c.sT1}
        s_add_u32 s{c.sWoff}, s{c.sWoff}, {WS_WOP if c.op else WS_W2P}
        s_lshl_b32 s{c.sLdsA}, s{c.sLw}, 12
        s_add_u32 s{c.sLdsW}, s{c.sT0}, 16384
        s_mul_i32 s{c.sT0}, s{c.sSeq}, {16 * 32768}
        s_add_u32 s{c.sAoff}, s{c.sAoff}, s{c.sT0}
        s_mul_i32 s{c.sT0}, s{c.sSeq}, 20480
        s_add_u32 s{c.sWoff}, s{c.sWoff}, s{c.sT0}
        s_mov_b32 s{c.sSeqW}, s{c.sSeq}
        """)
    def issue_A(self, seq):
        a, c = self.a, self
        slot = (seq % 4) * STG
        for j in range(4):
            a(f"s_add_u32 m0, s{c.sLdsA}, {slot}" if j == 0 else "s_add_u32 m0, m0, 1024")
            a(f"s_mov_b32 s{c.sT0}, s{c.sAoff}" if j == 0 else f"s_add_u32 s{c.sT0}, s{c.sT0}, 32768")
            a(f"buffer_load_dwordx4 v{c.vA}, s[{c.sA}:{c.sA+3}], s{c.sT0} offen lds")
        a(f"""
        s_add_u32 s{c.sSeq}, s{c.sSeq}, 1
        s_cmp_eq_u32 s{c.sSeq}, {c.NST}
        s_cselect_b32 s{c.sT0}, {c.NST * 16 * 32768}, 0
        s_cselect_b32 s{c.sSeq}, 0, s{c.sSeq}
        s_add_u32 s{c.sAoff}, s{c.sAoff}, {16 * 32768}
        s_sub_u32 s{c.sAoff}, s{c.sAoff}, s{c.sT0}
        """)
    def issue_W(self, seq):
        a, c = self.a, self
        slot = (seq % 4) * STG
        a(f"s_add_u32 m0, s{c.sLdsW}, {slot}")
        a(f"s_add_u32 s{c.sT0}, s{c.sWoff}, 4096")
        for j in range(4):
            a(f"buffer_load_dwordx4 v{c.vA}, s[{sWS}:{sWS+3}], s{c.sWoff} offen offset:{j*1024} lds")
        a("s_add_u32 m0, m0, 4096")
        a(f"s_add_u32 s{c.sSeqW}, s{c.sSeqW}, 1")
        a(f"buffer_load_dwordx4 v{c.vA}, s[{sWS}:{sWS+3}], s{c.sT0} offen lds")
        a(f"""
        s_cmp_eq_u32 s{c.sSeqW}, {c.NST}
        s_cselect_b32 s{c.sT0}, {c.NST * 20480}, 0
        s_cselect_b32 s{c.sSeqW}, 0, s{c.sSeqW}
        s_add_u32 s{c.sWoff}, s{c.sWoff}, 20480
        s_sub_u32 s{c.sWoff}, s{c.sWoff}, s{c.sT0}
        """)
    def loader_main(self, q):
        a, c = self.a, self
        for s_ in range(c.NST):
            a(f"s_waitcnt vmcnt({q.need(f'A{s_}', f'W{s_}')})")
            a("s_barrier")
            stx(a, f"{'o' if c.op else 'g'}l{s_}")
            if s_ + PD < c.NST and not (E('S_NODMA') and not c.op):
                if not E('S_NOA'): c.issue_A(s_ + PD); q.push(f"A{s_+PD}", 4)
                if not E('S_NOW'): c.issue_W(s_ + PD); q.push(f"W{s_+PD}", 5)
    vXb, vWb, vXa, vWa, vX, vW, vRes, vT, vAcc = 4, 5, 6, 7, 8, 32, 70, 84, 96
    vXa2, vWa2 = 120, 121
    def compute_setup(self):
        a, c = self.a, self
        vT = c.vT
        a(f"""
        v_and_b32 v2, 15, v1
        v_lshrrev_b32 v3, 4, v1
        s_lshr_b32 s{c.sT1}, s{sWV}, 1
        s_and_b32 s{c.sT2}, s{sWV}, 1
        s_lshl_b32 s{c.sT0}, s{c.sT1}, 5
        s_add_u32 s{c.sT0}, s{c.sT0}, s{c.sM0}
        v_add_u32 v{vT}, s{c.sT0}, v2
        """)
        a(f"""
        s_mul_i32 s{c.sAoff}, s{c.sT2}, 48
        s_add_u32 s{c.sAoff}, s{c.sAoff}, s{c.sN0}
        v_mul_u32_u24 v{vT+1}, 1280, v{vT}
        v_lshlrev_b32 v{vT+3}, 3, v3
        v_add_u32 v{vT+1}, v{vT+1}, v{vT+3}
        s_lshl_b32 s{c.sT0}, s{c.sAoff}, 1
        v_add_u32 v{vT+1}, s{c.sT0}, v{vT+1}
        v_lshrrev_b32 v{vT+3}, 1, v3
        v_lshlrev_b32 v{vT+3}, 15, v{vT+3}
        v_lshlrev_b32 v{vT+2}, 4, v{vT}
        v_add_u32 v{vT+2}, v{vT+2}, v{vT+3}
        v_and_b32 v{vT+3}, 1, v3
        v_lshlrev_b32 v{vT+3}, 3, v{vT+3}
        v_add_u32 v{vT+2}, v{vT+2}, v{vT+3}
        s_lshl_b32 s{c.sT0}, s{c.sAoff}, 12
        v_add_u32 v{vT+2}, s{c.sT0}, v{vT+2}
        s_lshl_b32 s{c.sT0}, s{c.sT1}, 9
        v_lshlrev_b32 v{c.vXb}, 10, v3
        v_lshlrev_b32 v{vT+3}, 4, v2
        v_add_u32 v{c.vXb}, v{c.vXb}, v{vT+3}
        v_add_u32 v{c.vXb}, s{c.sT0}, v{c.vXb}
        v_lshrrev_b32 v{vT+3}, 1, v3
        v_lshlrev_b32 v{vT+3}, 4, v{vT+3}
        v_and_b32 v{vT+4}, 1, v3
        v_lshlrev_b32 v{vT+4}, 2, v{vT+4}
        v_add_u32 v{vT+3}, v{vT+3}, v{vT+4}
        v_lshrrev_b32 v{vT+4}, 2, v2
        v_add_u32 v{vT+3}, v{vT+3}, v{vT+4}
        v_mul_u32_u24 v{vT+3}, 160, v{vT+3}
        v_and_b32 v{vT+4}, 3, v1
        v_lshlrev_b32 v{vT+4}, 3, v{vT+4}
        v_add_u32 v{vT+3}, v{vT+3}, v{vT+4}
        s_mul_i32 s{c.sT0}, s{c.sT2}, 96
        s_add_u32 s{c.sT0}, s{c.sT0}, 16384
        v_add_u32 v{c.vWb}, s{c.sT0}, v{vT+3}
        s_mov_b32 s{c.sWoff}, s{c.sT2}
        """)
        if c.op:
            make_srd(a, c.sR, pX, pX+1, 0, 2048 * 1280)
            make_srd(a, c.sO, pWS, pWS+1, WS_H, SZ_ACT)
        else:
            make_srd(a, c.sR, pWS, pWS+1, WS_H, SZ_ACT)
            make_srd(a, c.sO, pOUT, pOUT+1, 0, 2048 * 1280)
        a(f"""
        s_cmp_eq_u32 s{c.sT2}, 1
        s_cselect_b32 s44, 0x7f000000, 0
        s_cselect_b64 s[46:47], -1, 0
        """)
    def pretouch(self): pass
    def tile_off(self, T, tt, rowmajor):
        a, c = self.a, self
        if rowmajor:
            base = T * 32 + tt * 16 * 1280
            val = base
        else:
            val = T * 65536 + tt * 256
        if T == 2:
            a(f"s_add_u32 s{c.sT0}, s44, {val}")
        else:
            a(f"s_mov_b32 s{c.sT0}, {val}")
        return (c.vT + 1 if rowmajor else c.vT + 2), c.sT0
    def residual_loads(self):
        a, c = self.a, self
        for T in range(3):
            for tt in range(2):
                va, so = c.tile_off(T, tt, c.op)
                a(f"buffer_load_dwordx2 {vr(c.vRes + 2*(T*2 + tt), 2)}, v{va}, s[{c.sR}:{c.sR+3}], s{so} offen")
    def mainloop(self, stamp0=None, tag=''):
        a, c = self.a, self
        N = c.NST * 4
        def rlist(i):
            st_, k, buf = i // 4, i % 4, i % 3
            xa, wa = (c.vXa, c.vWa) if st_ % 2 == 0 else (c.vXa2, c.vWa2)
            L = [f"ds_read_b128 {vr(c.vX + buf*8 + tt*4, 4)}, v{xa} offset:{k*4096 + tt*256}" for tt in range(2)]
            for T in range(3):
                for h2 in range(2):
                    L.append(f"ds_read_b64_tr_b16 {vr(c.vW + buf*12 + T*4 + h2*2, 2)}, v{wa} offset:{k*5120 + h2*1280 + T*32}")
            return L
        def setaddr(st_):
            slot = (st_ % 4) * STG
            xa, wa = (c.vXa, c.vWa) if st_ % 2 == 0 else (c.vXa2, c.vWa2)
            a(f"v_add_u32 v{xa}, {slot}, v{c.vXb}")
            a(f"v_add_u32 v{wa}, {slot}, v{c.vWb}")
        a("s_barrier")
        stx(a, tag + '_s0')
        setaddr(0)
        for r in rlist(0) + rlist(1): a(r)
        for i in range(N):
            buf = i % 3
            rl = rlist(i + 2) if i + 2 < N else []
            a(f"s_waitcnt lgkmcnt({8 if i + 1 < N else 0})")
            k = 0
            for T in range(3):
                for tt in range(2):
                    acc = c.vAcc + (T*2 + tt) * 4
                    cc = "0" if i == 0 else vr(acc, 4)
                    a(f"v_mfma_f32_16x16x32_bf16 {vr(acc,4)}, {vr(c.vW + buf*12 + T*4, 4)}, {vr(c.vX + buf*8 + tt*4, 4)}, {cc}")
                    if k == 0 and i + 2 < N and (i + 2) % 4 == 0:
                        a("s_barrier")
                        if (i + 2) // 4 == 1: stx(a, tag + '_s1')
                        if (i + 2) // 4 == 4: stx(a, tag + '_s4')
                        setaddr((i + 2) // 4)
                    for r in rl[[0, 2, 4, 5, 6, 7][k]:[2, 4, 5, 6, 7, 8][k]]: a(r)
                    k += 1
        a("s_nop 7")
    def reduce(self):
        pass
    def epilogue(self):
        a, c = self.a, self
        vT, vRes = c.vT, c.vRes
        a("s_waitcnt vmcnt(0)")
        P = 8
        for T in range(3):
            for tt in range(2):
                n = T*2 + tt
                acc = c.vAcc + n*4
                rr = vRes + 2*n
                a(f"""
                v_lshlrev_b32 v24, 16, v{rr}
                v_and_b32 v25, 0xffff0000, v{rr}
                v_lshlrev_b32 v26, 16, v{rr+1}
                v_and_b32 v27, 0xffff0000, v{rr+1}
                v_add_f32 v{acc}, v{acc}, v24
                v_add_f32 v{acc+1}, v{acc+1}, v25
                v_add_f32 v{acc+2}, v{acc+2}, v26
                v_add_f32 v{acc+3}, v{acc+3}, v27
                v_cvt_pk_bf16_f32 v{P+2*n}, v{acc}, v{acc+1}
                v_cvt_pk_bf16_f32 v{P+2*n+1}, v{acc+2}, v{acc+3}
                """)
                va, so = c.tile_off(T, tt, not c.op)
                ins = f"buffer_store_dwordx2 {vr(P+2*n, 2)}, v{va}, s[{c.sO}:{c.sO+3}], s{so} offen @SC"
                if c.op: dual(a, [ins])
                else: a(ins.replace("@SC", E('OUTFL', '')))
        if c.op:
            for tt in range(2):
                S, Q = 28 + 2*tt, 29 + 2*tt
                first = True
                for T in range(3):
                    n = T*2 + tt
                    for d in range(2):
                        r = P + 2*n + d
                        a(f"v_lshlrev_b32 v24, 16, v{r}")
                        a(f"v_and_b32 v25, 0xffff0000, v{r}")
                        if T == 2:
                            a(f"v_cndmask_b32 v24, v24, 0, s[46:47]")
                            a(f"v_cndmask_b32 v25, v25, 0, s[46:47]")
                        if first:
                            a(f"v_add_f32 v{S}, v24, v25")
                            a(f"v_mul_f32 v{Q}, v24, v24")
                            first = False
                        else:
                            a(f"v_add_f32 v{S}, v{S}, v24")
                            a(f"v_add_f32 v{S}, v{S}, v25")
                            a(f"v_fmac_f32 v{Q}, v24, v24")
                        a(f"v_fmac_f32 v{Q}, v25, v25")
            a(f"""
            v_mov_b32 v32, v28
            v_mov_b32 v33, v29
            v_mov_b32 v34, v30
            v_mov_b32 v35, v31
            s_nop 1
            v_permlane32_swap_b32 v28, v32
            v_permlane32_swap_b32 v29, v33
            v_permlane32_swap_b32 v30, v34
            v_permlane32_swap_b32 v31, v35
            s_nop 1
            v_add_f32 v28, v28, v32
            v_add_f32 v29, v29, v33
            v_add_f32 v30, v30, v34
            v_add_f32 v31, v31, v35
            s_nop 0
            v_mov_b32 v32, v28
            v_mov_b32 v33, v29
            v_mov_b32 v34, v30
            v_mov_b32 v35, v31
            s_nop 1
            v_permlane16_swap_b32 v28, v32
            v_permlane16_swap_b32 v29, v33
            v_permlane16_swap_b32 v30, v34
            v_permlane16_swap_b32 v31, v35
            s_nop 1
            v_add_f32 v28, v28, v32
            v_add_f32 v29, v29, v33
            v_add_f32 v30, v30, v34
            v_add_f32 v31, v31, v35
            s_lshl_b32 s{c.sT0}, s{c.sNt}, 1
            s_add_u32 s{c.sT0}, s{c.sT0}, s{c.sWoff}
            s_lshl_b32 s{c.sT0}, s{c.sT0}, 14
            s_add_u32 s{c.sT0}, s{c.sT0}, {WS_ST2}
            v_lshlrev_b32 v32, 3, v{vT}
            s_mov_b64 exec, 0xffff
            """)
            dual(a, [f"buffer_store_dwordx2 v[28:29], v32, s[{sWS}:{sWS+3}], s{c.sT0} offen @SC",
                     f"buffer_store_dwordx2 v[30:31], v32, s[{sWS}:{sWS+3}], s{c.sT0} offen offset:128 @SC"])
            a("s_mov_b64 exec, -1")

KT = 1536
SLOT = 8 * KT + 16384
VOFF = 8 * KT
NSLOT = 5
FLAG = NSLOT * SLOT

def attn_pad_init(a, nw_base, per_wave):
    a(f"""
    v_and_b32 v120, 31, v1
    v_mov_b32 v124, 0
    v_mov_b32 v123, 0x3f803f80
    v_cmp_eq_u32 vcc, 20, v120
    s_sub_u32 s75, s{sWV}, {nw_base}
    s_mul_i32 s75, s75, {per_wave * 1024}
    s_add_u32 s75, s75, {VOFF}
    v_cndmask_b32 v124, v124, v123, vcc
    v_lshlrev_b32 v123, 4, v1
    v_add_u32 v123, s75, v123
    v_mov_b32 v125, v124
    v_mov_b32 v126, v124
    v_mov_b32 v127, v124
    s_mov_b32 exec_lo, 0xfff00000
    s_mov_b32 exec_hi, 0xfff00000
    """)
    base = 0
    for sl in range(NSLOT):
        for j in range(per_wave):
            off = sl * SLOT + j * 1024
            if off - base >= 65536 - 1024:
                a(f"v_add_u32 v123, {sl*SLOT - base}, v123")
                base = sl * SLOT
            a(f"ds_write_b128 v123, v[124:127] offset:{off - base}")
    a(f"""
    s_mov_b64 exec, -1
    v_mov_b32 v123, {FLAG}
    v_mov_b32 v124, 0
    ds_write_b32 v123, v124
    s_waitcnt lgkmcnt(0)
    """)

def emit_attention(a, after_stores):
    name = "att"
    sK, sV, sQ, sO = 8, 12, 16, 20
    sHead, sQt, sT0, sT1, sT2 = 25, 26, 27, 28, 29
    sChunk, sSlotN, sPass, sKoff, sVoff, sKh = 30, 31, 32, 33, 34, 35
    sVmask = 38
    sSlotW, sE, sQg, sQb = 40, 41, 42, 43
    sW1s = 44
    vL16, vVoff = 2, 3
    vA3 = [[4, 5, 6], [7, 8, 9], [172, 173, 174]]
    vQ, vQr, vNC, vS, vP, vKb, vKr, vV, vO, vT = 10, 18, 22, 54, 86, 94, 102, 110, 126, 158
    lane_id(a, 0)
    lane_id(a, 1)
    a(f"""
    s_mov_b32 s{sVmask}, 0x000fffff
    s_mov_b32 s{sVmask+1}, 0x000fffff
    s_mov_b32 s{sPass}, 0
    s_lshr_b32 s{sKh}, s{sWV}, 2
    s_and_b32 s{sQg}, s{sWV}, 3
    v_lshlrev_b32 v{vL16}, 4, v0
    v_and_b32 v{vT}, 31, v0
    v_lshrrev_b32 v{vT+1}, 5, v0
    v_mul_u32_u24 v{vVoff}, 320, v{vT+1}
    v_lshlrev_b32 v{vT+2}, 4, v{vT}
    v_add_u32 v{vVoff}, v{vVoff}, v{vT+2}
    """)
    make_srd(a, sK, pWS, pWS+1, WS_K, SZ_QK)
    make_srd(a, sV, pWS, pWS+1, WS_V, SZ_QKV)
    make_srd(a, sQ, pWS, pWS+1, WS_Q, SZ_QK)
    make_srd(a, sO, pWS, pWS+1, WS_O, SZ_ACT)
    make_srd(a, sW1s, pW1, pW1+1, 0, 640*3456)
    def zero_regs():
        for i in range(32): a(f"v_mov_b32 v{vO+i}, 0")
        for i in range(4):
            a(f"v_mov_b32 v{vP+4+i}, 0")
            a(f"v_mov_b32 v{vV+12+i}, 0")
    zero_regs()
    a(f"v_and_b32 v{vT+11}, 7, v0")
    a(f"v_lshlrev_b32 v{vT+11}, 7, v{vT+11}")
    a(f"v_add_u32 v{vT+11}, {WS_CNT + C_RPS*128}, v{vT+11}")
    a(f"v_mov_b32 v{vT+10}, 0")
    a("s_barrier")
    a(f"""
    v_mov_b32 v4, {ROLE}
    ds_read_b96 v[6:8], v4
    s_waitcnt lgkmcnt(0)
    v_readfirstlane_b32 s{sX}, v6
    v_readfirstlane_b32 s{sRk}, v7
    v_readfirstlane_b32 s{sLoc}, v8
    s_and_b32 s{sT0}, s2, 7
    s_lshr_b32 s{sT1}, s2, 3
    s_cmp_eq_u32 s{sLoc}, 0
    s_cselect_b32 s{sX}, s{sT0}, s{sX}
    s_cselect_b32 s{sRk}, s{sT1}, s{sRk}
    s_mov_b32 s{sHead}, s{sRk}
    s_mov_b32 s{sQb}, s{sX}
    s_lshl_b32 s{sQt}, s{sQb}, 3
    s_and_b32 s{sE}, s{sHead}, 1
    """)
    def reinit():
        a(f"""
        s_lshl_b32 s{sT0}, s{sE}, 9
        s_mul_i32 s{sT1}, s{sKh}, {4*KT}
        s_add_u32 s{sT0}, s{sT0}, s{sT1}
        v_add_u32 v{vA3[0][0]}, s{sT0}, v{vL16}
        s_sub_u32 s{sT0}, 1, s{sE}
        s_lshl_b32 s{sT0}, s{sT0}, 10
        s_lshl_b32 s{sT2}, s{sE}, 3
        s_add_u32 s{sT0}, s{sT0}, s{sT2}
        s_add_u32 s{sT0}, s{sT0}, s{sT1}
        v_and_b32 v{vT}, 31, v0
        v_lshlrev_b32 v{vA3[0][1]}, 4, v{vT}
        v_add_u32 v{vA3[0][1]}, s{sT0}, v{vA3[0][1]}
        s_lshl_b32 s{sT0}, s{sKh}, 13
        s_add_u32 s{sT0}, s{sT0}, {VOFF}
        v_add_u32 v{vA3[0][2]}, s{sT0}, v{vL16}
        s_mov_b32 s{sSlotN}, {2*SLOT}
        s_lshr_b32 s{sT0}, s{sHead}, 1
        s_mul_i32 s{sT0}, s{sT0}, 163840
        s_mul_i32 s{sT1}, s{sWV}, 2560
        s_add_u32 s{sKoff}, s{sT0}, s{sT1}
        s_lshl_b32 s{sT1}, s{sE}, 10
        s_add_u32 s{sKoff}, s{sKoff}, s{sT1}
        s_mul_i32 s{sT0}, s{sHead}, 81920
        s_mul_i32 s{sT1}, s{sWV}, 1280
        s_add_u32 s{sVoff}, s{sT0}, s{sT1}
        s_mov_b32 s{sSlotW}, 0
        """)
        for k in range(3):
            a(f"v_add_u32 v{vA3[1][k]}, {SLOT}, v{vA3[0][k]}")
            a(f"v_add_u32 v{vA3[2][k]}, {2*SLOT}, v{vA3[0][k]}")
    reinit()
    a(f"""
    s_lshl_b32 s{sT0}, s{sQg}, 1
    s_add_u32 s{sQt}, s{sQt}, s{sT0}
    v_lshlrev_b32 v{vT+13}, 4, v{vT}
    s_lshl_b32 s{sT1}, s{sE}, 3
    s_add_u32 s{sT1}, s{sT1}, 1024
    v_add_u32 v{vT+13}, s{sT1}, v{vT+13}
    v_mov_b32 v{vT+9}, 0x7fffff00
    """)
    a(f"""
    v_cmp_gt_u32 vcc, 32, v0
    s_mul_i32 s{sT1}, s{sE}, 1536
    v_cndmask_b32 v{vT+13}, v{vT+9}, v{vT+13}, vcc
    v_add_u32 v{vT+12}, s{sT1}, v{vL16}
    """)
    lw = a.newlabel("attw")
    a(f"""
    s_cmp_eq_u32 s{sWV}, 0
    s_cbranch_scc0 {lw}
    s_mul_i32 s{sT0}, s{sHead}, 20
    s_lshr_b32 s{sT1}, s{sT0}, 7
    s_add_u32 s{sT0}, s{sT0}, 19
    s_lshr_b32 s{sT0}, s{sT0}, 7
    v_and_b32 v{vT+3}, 1, v0
    v_mov_b32 v{vT+4}, s{sT1}
    v_mov_b32 v{vT+5}, s{sT0}
    v_cmp_eq_u32 vcc, 1, v{vT+3}
    v_lshrrev_b32 v{vT+6}, 1, v0
    v_mul_u32_u24 v{vT+6}, 5, v{vT+6}
    v_cndmask_b32 v{vT+4}, v{vT+4}, v{vT+5}, vcc
    v_add_u32 v{vT+4}, v{vT+4}, v{vT+6}
    v_add_u32 v{vT+4}, {C_QKV}, v{vT+4}
    v_lshlrev_b32 v{vT+4}, 7, v{vT+4}
    v_add_u32 v{vT+4}, {WS_CNT}, v{vT+4}
    v_mov_b32 v{vT+5}, 16
    """)
    stx(a, 'a_p0')
    poll(a, vT + 4, vT + 5, 6, vT + 6, slp=int(E('QSLP', '1')))
    a.label(lw)
    stx(a, 'a_pre')
    a("s_waitcnt lgkmcnt(0)")
    a("s_barrier")
    st(a, 5)
    def rpa():
        a("s_and_b32 s76, s2, 7")
        a(f"s_add_u32 s76, s76, {C_RPS}")
        arrive(a, 76, vT + 4)
    KVF = E('KVF', '')
    def dma_kpart():
        a(f"""
        s_mul_i32 s{sT0}, s{sWV}, {KT}
        s_add_u32 m0, s{sSlotW}, s{sT0}
        s_nop 0
        buffer_load_dwordx4 v{vL16}, s[{sK}:{sK+3}], s{sKoff} offen {KVF} lds
        s_mov_b32 exec_hi, 0
        buffer_load_dwordx4 v{vL16}, s[{sK}:{sK+3}], s{sKoff} offen offset:1024 {KVF} lds
        s_mov_b32 exec_hi, -1
        s_add_u32 s{sKoff}, s{sKoff}, {8*2560}
        """)
    def dma_vpart():
        a(f"""
        s_lshl_b32 s{sT1}, s{sWV}, 11
        s_add_u32 s{sT1}, s{sT1}, s{sSlotW}
        s_add_u32 m0, s{sT1}, {VOFF}
        s_mov_b64 exec, s[{sVmask}:{sVmask+1}]
        buffer_load_dwordx4 v{vVoff}, s[{sV}:{sV+3}], s{sVoff} offen {KVF} lds
        s_add_u32 m0, m0, 1024
        s_add_u32 s{sT1}, s{sVoff}, 640
        buffer_load_dwordx4 v{vVoff}, s[{sV}:{sV+3}], s{sT1} offen {KVF} lds
        s_mov_b64 exec, -1
        s_add_u32 s{sVoff}, s{sVoff}, 10240
        s_add_u32 s{sSlotW}, s{sSlotW}, {SLOT}
        s_cmp_ge_u32 s{sSlotW}, {NSLOT*SLOT}
        s_cselect_b32 s{sSlotW}, 0, s{sSlotW}
        """)
    def dma_chunk():
        dma_kpart(); dma_vpart()
    dma_kpart()
    a(f"s_lshr_b32 s{sT0}, s{sHead}, 1")
    a(f"s_mul_i32 s{sT0}, s{sT0}, 163840")
    for s in range(2):
        a(f"""
        s_xor_b32 s{sT1}, s{sKh}, {s}
        s_add_u32 s{sT1}, s{sT1}, s{sQt}
        s_mul_i32 s{sT1}, s{sT1}, 2560
        s_add_u32 s{sT1}, s{sT1}, s{sT0}
        buffer_load_dwordx4 {vr(vQ+4*s,4)}, v{vT+12}, s[{sQ}:{sQ+3}], s{sT1} offen
        buffer_load_dwordx2 {vr(vQr+2*s,2)}, v{vT+13}, s[{sQ}:{sQ+3}], s{sT1} offen
        """)
    dma_vpart()
    a(f"s_branch L_{name}_start")
    a.label(f"L_{name}_restart")
    zero_regs()
    reinit()
    dma_chunk()
    a.label(f"L_{name}_start")
    vKc, vKrc, vVc = vA3[0]
    a(f"""
    s_waitcnt vmcnt(2)
    """)
    stx(a, 'a_c0')
    a("s_barrier")
    a(f"""
    s_cmp_eq_u32 s{sPass}, 0
    s_cbranch_scc0 L_{name}_haveC
    s_mul_i32 s{sT1}, s{sKh}, {4*KT}
    v_subrev_u32 v{vT+1}, s{sT1}, v{vKc}
    v_subrev_u32 v{vT+2}, s{sT1}, v{vKrc}
    ds_read_b128 {vr(vKb,4)}, v{vT+1}
    ds_read_b64 {vr(vKr,2)}, v{vT+2}
    s_waitcnt lgkmcnt(0)
    """)
    for s in range(2):
        S = vS + 16*s
        a(f"v_mfma_f32_32x32x16_bf16 {vr(S,16)}, {vr(vKb,4)}, {vr(vQ+4*s,4)}, 0")
    for s in range(2):
        S = vS + 16*s
        a(f"v_mfma_f32_32x32x8_bf16 {vr(S,16)}, {vr(vKr,2)}, {vr(vQr+2*s,2)}, {vr(S,16)}")
    a(f"""
    ds_read_b128 {vr(vKb,4)}, v{vKc}
    ds_read2st64_b64 {vr(vKr,4)}, v{vKrc} offset0:0 offset1:3
    s_nop 13
    """)
    for s in range(2):
        S = vS + 16*s
        T_ = vT + 2*s
        a(f"v_max3_f32 v{T_}, v{S}, v{S+1}, v{S+2}")
        for i in range(3, 15, 2):
            a(f"v_max3_f32 v{T_}, v{T_}, v{S+i}, v{S+i+1}")
        a(f"v_max_f32 v{T_}, v{T_}, v{S+15}")
    a(f"""
    v_mov_b32 v{vT+1}, v{vT}
    v_mov_b32 v{vT+3}, v{vT+2}
    s_nop 1
    v_permlane32_swap_b32 v{vT}, v{vT+1}
    v_permlane32_swap_b32 v{vT+2}, v{vT+3}
    s_nop 1
    v_max_f32 v{vT}, v{vT}, v{vT+1}
    v_max_f32 v{vT+2}, v{vT+2}, v{vT+3}
    v_sub_f32 v{vNC}, 0, v{vT}
    v_sub_f32 v{vNC+16}, 0, v{vT+2}
    """)
    for i in range(1, 16):
        a(f"v_mov_b32 v{vNC+i}, v{vNC}")
        a(f"v_mov_b32 v{vNC+16+i}, v{vNC+16}")
    a(f"s_branch L_{name}_haveC2")
    a.label(f"L_{name}_haveC")
    a(f"""
    ds_read_b128 {vr(vKb,4)}, v{vKc}
    ds_read2st64_b64 {vr(vKr,4)}, v{vKrc} offset0:0 offset1:3
    """)
    a.label(f"L_{name}_haveC2")
    a(f"""
    s_waitcnt lgkmcnt(0)
    v_mfma_f32_32x32x16_bf16 {vr(vS,16)}, {vr(vKb,4)}, {vr(vQ,4)}, {vr(vNC,16)}
    v_mfma_f32_32x32x8_bf16 {vr(vS,16)}, {vr(vKr,2)}, {vr(vQr,2)}, {vr(vS,16)}
    s_waitcnt vmcnt(0)
    s_barrier
    ds_read_b128 {vr(vV,4)}, v{vVc}
    ds_read_b128 {vr(vV+4,4)}, v{vVc} offset:1024
    """)
    dma_chunk()
    a(f"""
    s_mov_b32 s{sChunk}, 0
    s_waitcnt lgkmcnt(0)
    """)
    st(a, 6)
    a(f"""
    s_cmp_eq_u32 s{sKh}, 0
    s_cselect_b32 s36, 7, 0
    s_cselect_b32 s37, 0, 7
    """)
    ool = []
    def rare(mask, fn, tag):
        l, b = a.newlabel(tag), a.newlabel(tag + "b")
        a(f"s_bitcmp1_b32 {mask:#x}, s{sChunk}")
        a(f"s_cbranch_scc1 {l}")
        a.label(b)
        ool.append((l, b, fn))
    def common_(mask, fn, tag):
        l = a.newlabel(tag)
        a(f"s_bitcmp1_b32 {mask if isinstance(mask, str) else hex(mask)}, s{sChunk}")
        a(f"s_cbranch_scc0 {l}")
        fn()
        a.label(l)
    def pf_A(half, which='w1'):
        if which == 'w1':
            a(f"""
            v_lshlrev_b32 v{vT+12}, 7, v0
            s_mul_i32 s{sT0}, s{sRk}, 69120
            s_lshl_b32 s{sT1}, s{sWV}, 13
            s_add_u32 s{sT0}, s{sT0}, s{sT1}
            s_mov_b32 exec_lo, {-1 if half == 0 else 0}
            s_mov_b32 exec_hi, {0 if half == 0 else -1}
            buffer_load_dword v{vT+13}, v{vT+12}, s[{sW1s}:{sW1s+3}], s{sT0} offen sc1
            s_mov_b64 exec, -1
            """)
        else:
            a(f"""
            v_lshlrev_b32 v{vT+12}, 7, v0
            s_mul_i32 s{sT0}, s{sRk}, {SZ_W2P // 32}
            s_lshl_b32 s{sT1}, s{sWV}, 13
            s_add_u32 s{sT0}, s{sT0}, s{sT1}
            s_add_u32 s{sT0}, s{sT0}, {WS_W2P}
            s_mov_b32 exec_lo, {-1 if half == 0 else 0}
            s_mov_b32 exec_hi, {0 if half == 0 else -1}
            buffer_load_dword v{vT+13}, v{vT+12}, s[{sWS}:{sWS+3}], s{sT0} offen sc1
            s_mov_b64 exec, -1
            """)
    def pf_B():
        l5, l4, le = a.newlabel("pf5"), a.newlabel("pf4"), a.newlabel("pfe")
        a(f"""
        v_lshlrev_b32 v{vT+12}, 7, v0
        s_cmp_ge_u32 s{sWV}, 5
        s_cbranch_scc1 {l5}
        s_cmp_eq_u32 s{sWV}, 4
        s_cbranch_scc1 {l4}
        s_mul_i32 s{sT0}, s{sRk}, {SZ_WOP // 32}
        s_lshl_b32 s{sT1}, s{sWV}, 13
        s_add_u32 s{sT0}, s{sT0}, s{sT1}
        s_add_u32 s{sT0}, s{sT0}, {WS_WOP}
        buffer_load_dword v{vT+13}, v{vT+12}, s[{sWS}:{sWS+3}], s{sT0} offen sc1
        s_branch {le}
        """)
        a.label(l4)
        a(f"""
        s_mul_i32 s{sT0}, s{sRk}, 69120
        s_add_u32 s{sT0}, s{sT0}, 65536
        s_mov_b32 exec_hi, 0
        buffer_load_dword v{vT+13}, v{vT+12}, s[{sW1s}:{sW1s+3}], s{sT0} offen sc1
        s_mov_b32 exec_hi, -1
        """)
        if not E('NOTLB2'):
            a(f"v_lshlrev_b32 v{vT+12}, 21, v0")
            a("s_mov_b64 exec, 0xfff")
            a(f"buffer_load_dword v{vT+13}, v{vT+12}, s[{sWS}:{sWS+3}], 0 offen sc1")
            a("s_mov_b64 exec, 3")
            make_srd(a, 16, pOUT, pOUT+1, 0, 2048*1280)
            a(f"buffer_load_dword v{vT+13}, v{vT+12}, s[16:19], 0 offen sc1")
            if E('TLB5'):
                make_srd(a, 16, pX, pX+1, 0, 2048*1280)
                a(f"buffer_load_dword v{vT+13}, v{vT+12}, s[16:19], 0 offen sc1")
                a(f"buffer_load_dword v{vT+13}, v{vT+12}, s[{sW1s}:{sW1s+3}], 0 offen sc1")
            a("s_mov_b64 exec, -1")
        a(f"""
        s_branch {le}
        """)
        a.label(l5)
        a(f"""
        s_sub_u32 s{sT1}, s{sWV}, 5
        s_lshl_b32 s{sT1}, s{sT1}, 5
        s_mul_i32 s{sT0}, s{sRk}, 80
        s_add_u32 s{sT0}, s{sT0}, s{sT1}
        v_and_b32 v{vT+8}, 31, v0
        v_add_u32 v{vT+8}, s{sT0}, v{vT+8}
        v_lshrrev_b32 v{vT+9}, 5, v{vT+8}
        v_lshlrev_b32 v{vT+9}, 15, v{vT+9}
        v_and_b32 v{vT+8}, 31, v{vT+8}
        v_lshlrev_b32 v{vT+8}, 7, v{vT+8}
        v_add_u32 v{vT+8}, v{vT+8}, v{vT+9}
        s_lshl_b32 s{sT0}, s{sX}, 12
        s_mov_b32 exec_hi, 0
        buffer_load_dword v{vT+13}, v{vT+8}, s[{sO}:{sO+3}], s{sT0} offen sc1
        s_mov_b32 exec_hi, -1
        """)
        a.label(le)
    def rp_issue():
        a("s_mov_b64 exec, 0xff")
        a(f"buffer_load_dword v{vT+10}, v{vT+11}, s[{sWS}:{sWS+3}], 0 offen sc1")
        a("s_mov_b64 exec, -1")
    def rp_check():
        ok = a.newlabel("rpok")
        a("s_mov_b64 exec, 0xff")
        a(f"v_cmp_gt_u32 vcc, 32, v{vT+10}")
        a("s_nop 4")
        a("s_cmp_eq_u64 vcc, 0")
        a(f"s_cbranch_scc1 {ok}")
        a(f"v_mov_b32 v{vT+9}, 32")
        poll(a, vT + 11, vT + 9, 8, vT + 10)
        a.label(ok)
        a("s_mov_b64 exec, -1")
    def rp_load():
        le = a.newlabel("rle")
        a(f"s_cmp_eq_u32 s{sPass}, 0")
        a(f"s_cbranch_scc0 {le}")
        a(f"s_cmp_ge_u32 s{sWV}, 4")
        a(f"s_cbranch_scc0 {le}")
        for r in range(3):
            la, lb = a.newlabel("rla"), a.newlabel("rlb")
            a(f"v_accvgpr_read_b32 v{vT+4}, a{43+2*r}")
            a(f"v_accvgpr_read_b32 v{vT+5}, a{44+2*r}")
            a(f"v_accvgpr_read_b32 v{vT+6}, a{49+r}")
            make_srd(a, 16, pWO, pWO+1, 0, 640*1280)
            a(f"""
            v_cmp_gt_u32 vcc, 40, v{vT+6}
            s_nop 4
            s_mov_b64 s[76:77], vcc
            s_mov_b64 exec, vcc
            s_cbranch_execz {la}
            buffer_load_dwordx4 {ar(28+4*r,4)}, v{vT+4}, s[16:19], 0 offen
            {la}:
            """)
            make_srd(a, 16, pW2, pW2+1, 0, 1728*1280)
            a(f"""
            s_not_b64 exec, s[76:77]
            s_cbranch_execz {lb}
            buffer_load_dwordx4 {ar(28+4*r,4)}, v{vT+5}, s[16:19], 0 offen
            {lb}:
            s_mov_b64 exec, -1
            """)
        a(f"""
        s_mul_i32 s76, s2, 8640
        s_sub_u32 s77, s{sWV}, 4
        s_mul_i32 s77, s77, 2176
        s_add_u32 s76, s76, s77
        v_lshlrev_b32 v{vT+4}, 7, v0
        s_mov_b64 exec, 0x1ffff
        buffer_load_dword v{vT+5}, v{vT+4}, s[{sW1s}:{sW1s+3}], s76 offen sc1
        s_mov_b64 exec, -1
        """)
        a.label(le)
    def rp_store():
        le = a.newlabel("rse")
        a(f"s_cmp_eq_u32 s{sPass}, 0")
        a(f"s_cbranch_scc0 {le}")
        a(f"s_cmp_ge_u32 s{sWV}, 4")
        a(f"s_cbranch_scc0 {le}")
        for r in range(3): a(f"v_accvgpr_read_b32 v{vT+4+r}, a{40+r}")
        a(f"s_mov_b32 s76, {WS_WOP}")
        for r in range(3):
            a(f"buffer_store_dwordx4 {ar(28+4*r,4)}, v{vT+4+r}, s[{sWS}:{sWS+3}], s76 offen {SC}")
        a.label(le)
    def rp_arr():
        le = a.newlabel("rae")
        a(f"s_cmp_eq_u32 s{sPass}, 0")
        a(f"s_cbranch_scc0 {le}")
        wave_only(a, 4, rpa)
        a.label(le)
    def rp_post():
        l2, le = a.newlabel("rp2"), a.newlabel("rpe")
        a(f"s_cmp_eq_u32 s{sChunk}, 2")
        a(f"s_cbranch_scc0 {l2}")
        a(f"s_cmp_eq_u32 s{sPass}, 0")
        a(f"s_cbranch_scc0 {le}")
        wave_only(a, 4, rpa)
        a(f"s_branch {le}")
        a.label(l2)
        rp_check()
        a.label(le)
    if E('A_PRIO'):
        l = a.newlabel("prio")
        a(f"s_cmp_ge_u32 s{sWV}, 4")
        a(f"s_cbranch_scc0 {l}")
        a(f"s_setprio {E('A_PRIO')}")
        a.label(l)
    a(".p2align 6")
    a.label(f"L_{name}_loop")
    rd = (lambda x: None) if E('A_NORD') else a
    for u in range(16):
        p = u & 1
        t = u >> 1
        D1 = int(E('A_D1', '6'))
        def common_else(mask, fn, fn_else, tag):
            l, b = a.newlabel(tag), a.newlabel(tag + "b")
            a(f"s_bitcmp1_b32 {mask:#x}, s{sChunk}")
            a(f"s_cbranch_scc0 {l}")
            fn()
            a.label(b)
            ool.append((l, b, fn_else))
        def by_pair(d):
            def f():
                le = a.newlabel("bpe")
                for k, fn in d.items():
                    ln = a.newlabel("bpn")
                    a(f"s_cmp_eq_u32 s{sChunk}, {k}")
                    a(f"s_cbranch_scc0 {ln}")
                    fn()
                    a(f"s_branch {le}")
                    a.label(ln)
                a.label(le)
            return f
        if u == 0: common_else(0b0111, dma_chunk, lambda: pf_A(0), "d0")
        if u == 6:
            rare(0b0101, by_pair({0: lambda: (a("s_waitcnt vmcnt(4)"), a("s_barrier")), 2: rp_store}), "c1")
            common_else(0b0111, dma_chunk, lambda: pf_A(1), "d1")
        if u == 10: rare(0b1000, pf_B, "pc")
        if u == 14:
            rare(0b1000, rp_issue, "rpi")
            a("s_waitcnt vmcnt(0)")
            a("s_barrier")
            rare(0b1101, by_pair({0: rp_load, 2: rp_arr, 3: rp_check}), "rpc")
        tn = t + 1
        A = vA3[tn // 4]
        if p == 0:
            rd(f"ds_read_b128 {vr(vKb + 4*(tn&1),4)}, v{A[0]} offset:{(tn%4)*KT}")
            if tn % 2 == 0:
                pb = (tn // 2) & 1
                rd(f"ds_read2st64_b64 {vr(vKr + 4*pb,4)}, v{A[1]} offset0:{(tn%4)*3} offset1:{(tn%4)*3+3}")
            rd(f"ds_read_b128 {vr(vV + 8*(tn&1),4)}, v{A[2]} offset:{(tn%4)*2048}")
        else:
            rd("s_waitcnt lgkmcnt(0)")
        un = u + 1
        tq = un >> 1
        qs = un & 1
        Sc, Sn = vS + 16*p, vS + 16*(p^1)
        kbuf = vKb + 4*(tq & 1)
        krbuf = vKr + 4*((tq // 2) & 1) + 2*(tq & 1)
        ex = lambda r: a(f"v_exp_f32 v{Sc+r}, v{Sc+r}")
        cv = lambda r: a(f"v_cvt_pk_bf16_f32 v{vP+r}, v{Sc+2*r}, v{Sc+2*r+1}")
        a(f"v_mfma_f32_32x32x16_bf16 {vr(Sn,16)}, {vr(kbuf,4)}, {vr(vQ+4*qs,4)}, {vr(vNC+16*qs,16)}")
        for r in range(4): ex(r)
        tp = (u - 1) >> 1 if u > 0 else -1
        Op = vO + 16*((u - 1) & 1)
        a(f"v_mfma_f32_32x32x16_bf16 {vr(Op,16)}, {vr(vV + 8*(tp & 1) + 4,4)}, {vr(vP+4,4)}, {vr(Op,16)}")
        if p == 0:
            rd(f"ds_read_b128 {vr(vV + 8*(tn&1) + 4,4)}, v{A[2]} offset:{(tn%4)*2048 + 1024}")
        for r in range(4, 8): ex(r)
        cv(0); cv(1)
        a(f"v_mfma_f32_32x32x8_bf16 {vr(Sn,16)}, {vr(krbuf,2)}, {vr(vQr+2*qs,2)}, {vr(Sn,16)}")
        cv(2); cv(3)
        for r in range(8, 12): ex(r)
        Oc = vO + 16*p
        a(f"v_mfma_f32_32x32x16_bf16 {vr(Oc,16)}, {vr(vV + 8*(t & 1),4)}, {vr(vP,4)}, {vr(Oc,16)}")
        for r in range(12, 16): ex(r)
        if u == 15:
            a(f"""
            s_add_u32 s{sT0}, s{sSlotN}, {SLOT}
            s_cmp_ge_u32 s{sT0}, {NSLOT*SLOT}
            s_cselect_b32 s{sT1}, {NSLOT*SLOT}, 0
            s_sub_u32 s{sT0}, s{sT0}, s{sT1}
            s_sub_u32 s{sT1}, s{sT0}, s{sSlotN}
            s_add_u32 s{sT2}, s{sT0}, {SLOT}
            s_cmp_ge_u32 s{sT2}, {NSLOT*SLOT}
            s_cselect_b32 s{sT0}, {NSLOT*SLOT}, 0
            s_sub_u32 s{sT2}, s{sT2}, s{sT0}
            s_sub_u32 s{sT0}, s{sT2}, s{sSlotN}
            s_mov_b32 s{sSlotN}, s{sT2}
            """)
            for k in range(3):
                a(f"v_mov_b32 v{vA3[0][k]}, v{vA3[2][k]}")
                a(f"v_add_u32 v{vA3[1][k]}, s{sT1}, v{vA3[2][k]}")
                a(f"v_add_u32 v{vA3[2][k]}, s{sT0}, v{vA3[2][k]}")
        for r in range(4, 8): cv(r)
    a(f"""
    s_add_u32 s{sChunk}, s{sChunk}, 1
    s_cmp_lt_u32 s{sChunk}, 4
    s_cbranch_scc1 L_{name}_loop
    s_waitcnt lgkmcnt(0)
    """)
    a(f"v_mfma_f32_32x32x16_bf16 {vr(vO+16,16)}, {vr(vV + 8 + 4,4)}, {vr(vP+4,4)}, {vr(vO+16,16)}")
    st(a, 7)
    a(f"s_branch L_{name}_post")
    for l, b, fn in ool:
        a.label(l)
        fn()
        a(f"s_branch {b}")
    a.label(f"L_{name}_post")
    a(f"""
    s_barrier
    s_lshl_b32 s{sT0}, s{sQg}, 1
    s_add_u32 s{sT1}, s{sT0}, s{sKh}
    s_lshr_b32 s{sT2}, s{sT1}, 2
    s_mul_i32 s{sT2}, s{sT2}, {SLOT}
    s_and_b32 s{sT1}, s{sT1}, 3
    s_mul_i32 s{sT1}, s{sT1}, 3072
    s_add_u32 s{sT1}, s{sT1}, s{sT2}
    v_add_u32 v{vT}, s{sT1}, v{vL16}
    s_xor_b32 s{sT1}, s{sKh}, 1
    s_add_u32 s{sT1}, s{sT1}, s{sT0}
    s_lshr_b32 s{sT2}, s{sT1}, 2
    s_mul_i32 s{sT2}, s{sT2}, {SLOT}
    s_and_b32 s{sT1}, s{sT1}, 3
    s_mul_i32 s{sT1}, s{sT1}, 3072
    s_add_u32 s{sT1}, s{sT1}, s{sT2}
    v_add_u32 v{vT+1}, s{sT1}, v{vL16}
    s_nop 7
    """)
    stx(a, 'a_bar1')
    for i in range(3):
        a(f"ds_write_b128 v{vT}, {vr(vO+16+4*i,4)} offset:{i*1024}")
    a("s_waitcnt lgkmcnt(0)")
    a("s_barrier")
    stx(a, 'a_bar2')
    for i in range(3):
        a(f"ds_read_b128 {vr(vS+4*i,4)}, v{vT+1} offset:{i*1024}")
    a("s_waitcnt lgkmcnt(0)")
    for r in range(12):
        a(f"v_add_f32 v{vO+r}, v{vO+r}, v{vS+r}")
    a(f"v_mov_b32 v{vT}, 0")
    for r in range(12):
        a(f"v_fma_f32 v{vT}, v{vO+r}, 0, v{vT}")
    a(f"""
    s_cmp_eq_u32 s{sPass}, 0
    s_cbranch_scc0 L_{name}_store2
    v_cmp_u_f32 vcc, v{vT}, v{vT}
    s_nop 4
    s_cmp_eq_u64 vcc, 0
    s_cbranch_scc1 L_{name}_store2
    v_mov_b32 v{vT+1}, {FLAG}
    v_mov_b32 v{vT+2}, 1
    ds_write_b32 v{vT+1}, v{vT+2}
    s_branch L_{name}_store2
    L_{name}_redo:
    s_mov_b32 s{sPass}, 1
    v_mov_b32 v{vT}, 0xff800000
    v_mov_b32 v{vT+1}, 0xff800000
    s_lshr_b32 s{sT0}, s{sHead}, 1
    s_mul_i32 s{sT0}, s{sT0}, 163840
    s_mov_b32 s{sT1}, 0
    v_and_b32 v{vT+2}, 31, v0
    v_lshlrev_b32 v{vT+2}, 4, v{vT+2}
    s_lshl_b32 s{sT2}, s{sE}, 3
    s_add_u32 s{sT2}, s{sT2}, 1024
    v_add_u32 v{vT+2}, s{sT2}, v{vT+2}
    s_mul_i32 s{sT2}, s{sE}, 1536
    v_add_u32 v{vT+3}, s{sT2}, v{vL16}
    L_{name}_maxloop:
    buffer_load_dwordx4 {vr(vKb,4)}, v{vT+3}, s[{sK}:{sK+3}], s{sT0} offen
    buffer_load_dwordx2 {vr(vKr,2)}, v{vT+2}, s[{sK}:{sK+3}], s{sT0} offen
    s_waitcnt vmcnt(0)
    """)
    for s in range(2):
        S = vS + 16*s
        a(f"v_mfma_f32_32x32x16_bf16 {vr(S,16)}, {vr(vKb,4)}, {vr(vQ+4*s,4)}, 0")
        a(f"v_mfma_f32_32x32x8_bf16 {vr(S,16)}, {vr(vKr,2)}, {vr(vQr+2*s,2)}, {vr(S,16)}")
    a("s_nop 15")
    for s in range(2):
        for i in range(0, 16, 2):
            a(f"v_max3_f32 v{vT+s}, v{vT+s}, v{vS+16*s+i}, v{vS+16*s+i+1}")
    a(f"""
    s_add_u32 s{sT0}, s{sT0}, 2560
    s_add_u32 s{sT1}, s{sT1}, 1
    s_cmp_lt_u32 s{sT1}, 64
    s_cbranch_scc1 L_{name}_maxloop
    """)
    for s in range(2):
        a(f"""
        v_mov_b32 v{vT+2}, v{vT+s}
        s_nop 1
        v_permlane32_swap_b32 v{vT+s}, v{vT+2}
        s_nop 1
        v_max_f32 v{vT+2}, v{vT+s}, v{vT+2}
        v_sub_f32 v{vNC+16*s}, 0, v{vT+2}
        """)
        for i in range(1, 16):
            a(f"v_mov_b32 v{vNC+16*s+i}, v{vNC+16*s}")
    a("s_barrier")
    a(f"s_branch L_{name}_restart")
    a.label(f"L_{name}_store2")
    stx(a, 'a_vote')
    a(f"""
    v_mov_b32 v{vT}, v{vO+8}
    v_mov_b32 v{vT+1}, v{vO+8}
    s_nop 1
    v_permlane32_swap_b32 v{vT}, v{vT+1}
    s_nop 1
    v_rcp_f32 v{vT+1}, v{vT+1}
    v_lshrrev_b32 v{vT+2}, 5, v0
    v_and_b32 v{vT+3}, 31, v0
    s_add_u32 s{sT0}, s{sQt}, s{sKh}
    s_lshl_b32 s{sT0}, s{sT0}, 5
    v_add_u32 v{vT+3}, s{sT0}, v{vT+3}
    v_lshlrev_b32 v{vT+3}, 4, v{vT+3}
    s_mul_i32 s{sT0}, s{sHead}, 5
    v_add_u32 v{vT+2}, s{sT0}, v{vT+2}
    """)
    for r in range(12):
        a(f"v_mul_f32 v{vO+r}, v{vO+r}, v{vT+1}")
    for q in range(3):
        a(f"""
        v_add_u32 v{vT+4}, {2*q}, v{vT+2}
        v_lshrrev_b32 v{vT+5}, 1, v{vT+4}
        v_lshlrev_b32 v{vT+5}, 15, v{vT+5}
        v_and_b32 v{vT+4}, 1, v{vT+4}
        v_lshlrev_b32 v{vT+4}, 3, v{vT+4}
        v_add3_u32 v{vT+4}, v{vT+4}, v{vT+5}, v{vT+3}
        v_cvt_pk_bf16_f32 v{vT+6}, v{vO+4*q}, v{vO+4*q+1}
        v_cvt_pk_bf16_f32 v{vT+7}, v{vO+4*q+2}, v{vO+4*q+3}
        """)
        if q == 2: a("s_mov_b32 exec_hi, 0")
        dual(a, [f"buffer_store_dwordx2 {vr(vT+6,2)}, v{vT+4}, s[{sO}:{sO+3}], 0 offen @SC"])
    a("s_mov_b64 exec, -1")
    stx(a, 'a_stores')
    a(f"""
    s_waitcnt vmcnt(0) lgkmcnt(0)
    s_barrier
    v_mov_b32 v{vT+1}, {FLAG}
    ds_read_b32 v{vT+2}, v{vT+1}
    s_waitcnt lgkmcnt(0)
    v_readfirstlane_b32 s{sT0}, v{vT+2}
    s_cmp_eq_u32 s{sPass}, 0
    s_cselect_b32 s{sT0}, s{sT0}, 0
    s_cmp_lg_u32 s{sT0}, 0
    s_cbranch_scc1 L_{name}_redo
    """)
    a(f"s_add_u32 s76, s{sQb}, {C_ATT}")

def gemm_phase_prologue_loader(a, core, q, dep_idx_sgpr, dep_target, nW, pre_issued):
    pass

LANDED = [True]
def reg_step1(a, vd):
    a("s_mov_b64 exec, 7")
    a(f"buffer_load_dword v{vd}, v{vd+1}, s[44:47], 0 offen sc1")
    a("s_mov_b64 exec, -1")
def reg_step2(a, vd):
    dbg_flag_wait(a, vd, landed=LANDED[0])
    a(f"""
    s_getreg_b32 s{sX}, hwreg(HW_REG_XCC_ID)
    s_and_b32 s{sX}, s{sX}, 7
    s_add_u32 s76, s{sX}, {C_RK}
    s_lshl_b32 s76, s76, 7
    s_add_u32 s76, s76, {WS_CNT}
    v_mov_b32 v{vd-1}, s76
    v_accvgpr_write_b32 a0, 1
    s_mov_b64 exec, 1
    s_nop 1
    buffer_atomic_add a0, v{vd-1}, s[{sWS}:{sWS+3}], 0 offen sc0
    s_mov_b64 exec, -1
    """)
def reg_step3(a, vd):
    l1, l2 = a.newlabel("r3a"), a.newlabel("r3b")
    if not LANDED[0]: a("s_waitcnt vmcnt(0)")
    a(f"""
    v_accvgpr_read_b32 v{vd-1}, a0
    s_nop 1
    v_readfirstlane_b32 s{sRk}, v{vd-1}
    s_cmp_eq_u32 s{sRk}, 31
    s_cbranch_scc0 {l1}
    v_mov_b32 v{vd-1}, 4
    v_mov_b32 v{vd-2}, 1
    s_mov_b64 exec, 1
    buffer_atomic_add v{vd-2}, v{vd-1}, s[44:47], 0 offen sc1
    s_mov_b64 exec, -1
    """)
    a.label(l1)
    a(f"""
    s_cmp_ge_u32 s{sRk}, 32
    s_cbranch_scc0 {l2}
    v_mov_b32 v{vd-1}, 8
    v_mov_b32 v{vd-2}, 1
    s_mov_b64 exec, 1
    buffer_store_dword v{vd-2}, v{vd-1}, s[44:47], 0 offen sc1
    s_mov_b64 exec, -1
    """)
    a.label(l2)
    a("s_mov_b64 exec, 7")
    a(f"buffer_load_dword v{vd}, v{vd+1}, s[44:47], 0 offen sc1")
    a("s_mov_b64 exec, -1")
def register_publish(a, vd):
    l0, l1 = a.newlabel("rp"), a.newlabel("rpok")
    a(f"s_mov_b32 s{sPoll}, 0")
    a.label(l0)
    a(f"""
    s_waitcnt vmcnt(0)
    v_readlane_b32 s39, v{vd}, 1
    v_readlane_b32 s40, v{vd}, 2
    s_cmp_eq_u32 s39, 8
    s_cselect_b32 s38, 1, 0
    s_cmp_lg_u32 s40, 0
    s_cselect_b32 s38, 0, s38
    s_cbranch_scc1 {l1}
    s_cmp_eq_u32 s38, 1
    s_cbranch_scc1 {l1}
    s_add_u32 s{sPoll}, s{sPoll}, 1
    s_cmp_gt_u32 s{sPoll}, {POLL_MAX}
    s_cbranch_scc1 {l1}
    s_sleep 1
    s_mov_b64 exec, 7
    buffer_load_dword v{vd}, v{vd+1}, s[44:47], 0 offen sc1
    s_mov_b64 exec, -1
    s_branch {l0}
    """)
    a.label(l1)
    if E('FORCE_SLOW'): a("s_mov_b32 s38, 0")
    a(f"""
    v_mov_b32 v{vd-6}, s{sX}
    v_mov_b32 v{vd-4}, s38
    v_mov_b32 v{vd-5}, s{sRk}
    v_mov_b32 v{vd-7}, {ROLE}
    ds_write_b96 v{vd-7}, v[{vd-6}:{vd-4}]
    s_waitcnt lgkmcnt(0)
    """)
def wave_only(a, w, fn):
    l = a.newlabel("wo")
    a(f"s_cmp_eq_u32 s{sWV}, {w}")
    a(f"s_cbranch_scc0 {l}")
    fn()
    a.label(l)
def code_prefetch(a):
    a(f"""
    s_getpc_b64 s[40:41]
    L_pcref:
    s_lshr_b32 s42, s2, 3
    s_lshl_b32 s42, s42, 11
    v_lshlrev_b32 v26, 7, v1
    v_add_u32 v26, s42, v26
    s_mov_b32 s43, L_exit-L_pcref
    v_cmp_gt_u32 vcc, s43, v26
    s_nop 4
    s_and_b32 vcc_lo, vcc_lo, 0xffff
    s_mov_b32 vcc_hi, 0
    s_mov_b64 exec, vcc
    s_cbranch_execz L_pcskip
    global_load_dword v31, v26, s[40:41]
    L_pcskip:
    s_mov_b64 exec, -1
    """)

def tlb_warm(a):
    G = int(E('TLBG', '21'))
    a(f"""
    s_lshr_b32 s75, s2, 3
    v_lshlrev_b32 v166, 5, v1
    v_add_u32 v166, s75, v166
    v_lshlrev_b32 v166, {G}, v166
    """)
    n_ws = -(-WS_END >> G)
    a(f"s_mov_b64 exec, {(1 << min(31, -(-n_ws // 32))) - 1:#x}")
    a(f"buffer_load_dword v167, v166, s[{sWS}:{sWS+3}], 0 offen sc1")
    a("s_mov_b64 exec, 3")
    for k, (pp, size) in enumerate(((pW1, 640*3456), (pW2, 1728*1280), (pWO, 640*1280), (pOUT, 2048*1280))):
        make_srd(a, 8, pp, pp+1, 0, size)
        a(f"buffer_load_dword v167, v166, s[8:11], 0 offen sc1")
    a("s_mov_b64 exec, -1")

CODE_KB = 64
def gen_mega():
    a = Asm()
    a(f"""
    s_cmp_ge_u32 s2, 256
    s_cbranch_scc1 L_exit
    s_load_dwordx8 s[84:91], s[0:1], 0
    s_load_dwordx8 s[92:99], s[0:1], 32
    s_load_dwordx2 s[78:79], s[0:1], 64
    """)
    st_rt(a, 0); st(a, 1)
    a(f"""
    v_lshrrev_b32 v2, 6, v0
    s_nop 0
    v_readfirstlane_b32 s{sWV}, v2
    """)
    lane_id(a, 1)
    if not E('NOPF'):
        l = a.newlabel("pf")
        a(f"s_cmp_eq_u32 s{sWV}, 1")
        a(f"s_cbranch_scc0 {l}")
        code_prefetch(a)
        a.label(l)
    a("s_waitcnt lgkmcnt(0)")
    make_srd(a, sWS, pWS, pWS+1, 0, WS_END)
    if not E('NOTLB0'):
        def t0():
            a("v_lshlrev_b32 v26, 21, v1")
            a("s_mov_b64 exec, 3")
            make_srd(a, 8, pX, pX+1, 0, 2048*1280)
            a("buffer_load_dword v31, v26, s[8:11], 0 offen sc1")
            make_srd(a, 8, pWQ, pWQ+1, 0, 640*3840)
            a("buffer_load_dword v31, v26, s[8:11], 0 offen sc1")
            a("s_mov_b64 exec, -1")
        wave_only(a, 3, t0)
    L = CoreL(a, 'qkv', 'q')
    L.map_tiles("L_repack")
    a(f"""
    s_cmp_ge_u32 s{sWV}, 4
    s_cbranch_scc0 L_q_compute
    """)
    L.loader_setup()
    st(a, 2)
    q = VmQ()
    for s_ in range(PD):
        L.issue_A(s_); q.push(f"A{s_}", 4)
        if not FS: stamp(a, 9 + 2*s_, base=SB)
        L.issue_W(s_); q.push(f"W{s_}", 4)
        if not FS: stamp(a, 10 + 2*s_, base=SB)
    st(a, 3)
    make_srd(a, 44, pDBG, pDBG+1, 0, 256)
    a("v_lshlrev_b32 v71, 2, v1")
    a("v_mov_b32 v70, 0")
    PL = P0L(a, L)
    if E('P0L'):
        PL.issue(); q.push('p0l', 5)
    L.p0l = PL
    RP = Repack(a)
    RP.issue(defer=True)
    RP.save()
    L.ldstamps = True
    L.loader_main(q)
    st(a, 8)
    a("s_waitcnt lgkmcnt(0)")
    a("s_barrier")
    attn_pad_init(a, 4, 4)
    a("s_barrier")
    wave_only(a, 7, lambda: register_publish(a, 70))
    a("s_branch L_attn")
    a.label("L_q_compute")
    L.compute_setup()
    make_srd(a, 44, pDBG, pDBG+1, 0, 256)
    a(f"v_lshlrev_b32 v{L.vSt+27}, 2, v1")
    a(f"v_mov_b32 v{L.vSt+26}, 0")
    a(f"""
    s_cmp_ge_u32 s{L.sNt}, 10
    s_cbranch_scc1 L_q_vpath
    """)
    L.addr_qk()
    L.mainloop(True, 2)
    st(a, 3)
    a("s_barrier")
    stx(a, 'q_e1')
    L.epilogue_Y('qk')
    a("s_branch L_q_done")
    a.label("L_q_vpath")
    L.addr_v()
    L.mainloop(False, 2)
    st(a, 3)
    a("s_barrier")
    stx(a, 'q_e1')
    L.epilogue_X()
    a.label("L_q_done")
    stx(a, 'q_epi')
    a(f"buffer_load_dword v{L.vSt+26}, v{L.vSt+27}, s[44:47], 0 offen sc1")
    a("s_waitcnt vmcnt(0)")
    stx(a, 'q_drain')
    a("s_barrier")
    stx(a, 'q_e2')
    a(f"s_cmp_eq_u32 s{sWV}, 0")
    a("s_cbranch_scc0 L_attn")
    dbg_flag_wait(a, L.vSt + 26, landed=True)
    a(f"s_add_u32 s40, s{L.sNt}, {C_QKV}")
    arrive(a, 40, 4)
    st(a, 4)
    a("s_branch L_attn")
    a.label("L_repack")
    l = a.newlabel("zc")
    a(f"""
    s_xor_b32 s40, s2, 225
    s_or_b32 s40, s40, s{sWV}
    s_cmp_eq_u32 s40, 0
    s_cbranch_scc0 {l}
    v_mov_b32 v4, 0
    v_mov_b32 v5, 0
    v_mov_b32 v6, 0
    v_mov_b32 v7, 0
    v_lshlrev_b32 v8, 4, v1
    s_mov_b32 s40, {WS_CNT}
    """)
    for j in range(SZ_CNT // 1024):
        a(f"buffer_store_dwordx4 v[4:7], v8, s[{sWS}:{sWS+3}], s40 offen {SC}")
        a("s_add_u32 s40, s40, 1024")
    make_srd(a, 8, pDBG, pDBG+1, 0, 256)
    a(f"""
    s_waitcnt vmcnt(0)
    v_mov_b32 v4, 1
    v_mov_b32 v5, 0
    s_mov_b64 exec, 1
    buffer_store_dword v4, v5, s[8:11], 0 offen sc1
    s_mov_b64 exec, -1
    """)
    a.label(l)
    make_srd(a, 44, pDBG, pDBG+1, 0, 256)
    a(f"v_lshlrev_b32 v71, 2, v1")
    a(f"v_mov_b32 v70, 0")
    a(f"""
    s_and_b32 s21, s2, 7
    s_lshr_b32 s21, s21, 1
    s_lshl_b32 s21, s21, 2
    s_lshr_b32 s22, s2, 3
    s_and_b32 s22, s22, 3
    s_add_u32 s21, s21, s22
    """)
    idle_rows(a, 21)
    a("s_waitcnt vmcnt(0)")
    a(f"buffer_load_dword v70, v71, s[44:47], 0 offen sc1")
    a("s_barrier")
    def st_arr():
        dbg_flag_wait(a, 70)
        a(f"s_add_u32 s76, s21, {C_ST}")
        arrive(a, 76, 64)
    wave_only(a, 0, st_arr)
    def regall():
        LANDED[0] = False
        reg_step1(a, 70); reg_step2(a, 70); reg_step3(a, 70); register_publish(a, 70)
    wave_only(a, 7, regall)
    l = a.newlabel("rpl")
    a(f"s_cmp_ge_u32 s{sWV}, 4")
    a(f"s_cbranch_scc0 {l}")
    RP2 = Repack(a)
    RP2.issue(defer=True)
    RP2.save()
    attn_pad_init(a, 4, 4)
    a.label(l)
    def fl():
        a(f"buffer_load_dword v70, v71, s[44:47], 0 offen sc1")
        dbg_flag_wait(a, 70)
    wave_only(a, 4, fl)
    a("s_barrier")
    a.label("L_attn")
    emit_attention(a, None)
    S = CoreS(a, 'oproj')
    lane_id(a, 1)
    S.map_tiles()
    a(f"""
    s_cmp_ge_u32 s{sWV}, 4
    s_cbranch_scc0 L_o_compute
    """)
    S.loader_setup()
    q = VmQ()
    for s_ in range(PD):
        S.issue_W(s_); q.push(f"W{s_}", 5)
    lw = a.newlabel("ow")
    a(f"s_cmp_eq_u32 s{sWV}, 4")
    a(f"s_cbranch_scc0 {lw}")
    a(f"s_add_u32 s40, s{sX}, {C_ATT}")
    poll_f(a, 40, 32, 8)
    a.label(lw)
    stx(a, 'o_poll')
    a("s_barrier")
    for s_ in range(PD):
        S.issue_A(s_); q.push(f"A{s_}", 4)
    S.loader_main(q)
    a("s_barrier")
    F1 = CoreL(a, 'ffn1', 'f')
    F1.map_tiles("L_o_ld_idle")
    F1.loader_setup()
    q = VmQ()
    a("s_barrier")
    for s_ in range(PD):
        F1.issue_W(s_); q.push(f"W{s_}", 4)
    a("s_branch L_f1_loader")
    a.label("L_o_ld_idle")
    a("s_barrier")
    a("s_branch L_f2_loader0")
    a.label("L_o_compute")
    lw = a.newlabel("oa")
    a(f"s_cmp_eq_u32 s{sWV}, 0")
    a(f"s_cbranch_scc0 {lw}")
    arrive_f(a, 76, sRk, 4)
    st(a, 8)
    a.label(lw)
    S.compute_setup()
    S.pretouch()
    S.residual_loads()
    a("s_barrier")
    st(a, 9)
    stx(a, 'o_X')
    S.mainloop(tag='o')
    stx(a, 'o_loop')
    S.reduce()
    stx(a, 'o_red')
    a("s_barrier")
    S.epilogue()
    stx(a, 'o_epi')
    a("s_waitcnt vmcnt(0)")
    stx(a, 'o_drain')
    a("s_barrier")
    stx(a, 'o_e2')
    lw = a.newlabel("oa2")
    a(f"s_cmp_eq_u32 s{sWV}, 0")
    a(f"s_cbranch_scc0 {lw}")
    a(f"s_lshr_b32 s40, s{S.sM0}, 7")
    a(f"s_add_u32 s40, s40, {C_OP}")
    a(f"s_lshr_b32 s41, s{S.sM0}, 6")
    a(f"s_and_b32 s41, s41, 1")
    a(f"s_lshl_b32 s41, s41, 3")
    a(f"s_add_u32 s41, s41, s{S.sNt}")
    arrive_f(a, 40, 41, 4)
    st(a, 10)
    a.label(lw)
    lane_id(a, 1)
    F1.map_tiles("L_f2_compute0")
    a("s_branch L_f1_compute")
    a.label("L_f1_loader")
    lw = a.newlabel("fw")
    a(f"s_cmp_eq_u32 s{sWV}, 4")
    a(f"s_cbranch_scc0 {lw}")
    a(f"s_lshr_b32 s40, s{F1.sM0}, 7")
    a(f"s_add_u32 s40, s40, {C_OP}")
    stx(a, 'f_p0')
    poll_f(a, 40, 16, 8)
    a.label(lw)
    stx(a, 'f_poll')
    a("s_barrier")
    for s_ in range(PD):
        F1.issue_A(s_); q.push(f"A{s_}", 4)
    F1.lstats_init()
    F1.loader_main(q)
    a("s_waitcnt lgkmcnt(0)")
    a("s_barrier")
    S2 = CoreS(a, 'ffn2')
    S2.map_tiles()
    S2.loader_setup()
    q = VmQ()
    a("s_barrier")
    if E('PFW2B'):
        for j in range(9):
            wave_only(a, 4 + (j % 4), lambda: w2p_prefetch(a, j))
    for s_ in range(PD):
        S2.issue_W(s_); q.push(f"W{s_}", 5)
    a("s_branch L_f2_loader")
    a.label("L_f2_loader0")
    if E('PFW2') or E('PFW2B'):
        for j in range(9):
            wave_only(a, 4 + (j % 4), lambda: w2p_prefetch(a, j))
    S2.map_tiles()
    S2.loader_setup()
    for s_ in range(PD):
        S2.issue_W(s_)
    a.label("L_f2_loader")
    lw = a.newlabel("gw")
    a(f"s_cmp_eq_u32 s{sWV}, 4")
    a(f"s_cbranch_scc0 {lw}")
    a(f"s_lshr_b32 s40, s{S2.sM0}, 7")
    a(f"s_add_u32 s40, s40, {C_F1}")
    poll_f(a, 40, 14, 8)
    a.label(lw)
    a("s_barrier")
    for s_ in range(PD):
        S2.issue_A(s_); q.push(f"A{s_}", 4)
    S2.loader_main(q)
    if common.STAMPS:
        stamp_flush(a, 0, sWV, base=SB, vt=90)
    a("s_endpgm")
    a.label("L_f1_compute")
    F1.compute_setup()
    F1.addr_f()
    a("s_barrier")
    st(a, 11)
    stx(a, 'f_X')
    F1.mainloop(True, tag='f')
    stx(a, 'f_loop')
    a("s_barrier")
    F1.epilogue_Y('ffn1')
    stx(a, 'f_epi')
    a("s_waitcnt vmcnt(0)")
    stx(a, 'f_drain')
    a("s_barrier")
    lw = a.newlabel("fa")
    a(f"s_cmp_eq_u32 s{sWV}, 0")
    a(f"s_cbranch_scc0 {lw}")
    a(f"s_lshr_b32 s40, s{F1.sM0}, 7")
    a(f"s_add_u32 s40, s40, {C_F1}")
    arrive_f(a, 40, F1.sNt, 4)
    st(a, 12)
    a.label(lw)
    lane_id(a, 1)
    a.label("L_f2_compute0")
    S2.map_tiles()
    S2.compute_setup()
    a("s_barrier")
    st(a, 13)
    stx(a, 'g_X')
    S2.residual_loads()
    S2.mainloop(tag='g')
    stx(a, 'g_loop')
    S2.reduce()
    stx(a, 'g_red')
    S2.epilogue()
    stx(a, 'g_epi')
    if common.STAMPS:
        a("s_waitcnt vmcnt(0)")
        st(a, 14); st_rt(a, 15)
        stamp_flush(a, 0, sWV, base=SB, vt=90)
        if E('DBGOUT'):
            l = a.newlabel("dbo")
            a(f"s_cmp_eq_u32 s2, 9")
            a(f"s_cbranch_scc0 {l}")
            a(f"s_cmp_eq_u32 s{sWV}, 0")
            a(f"s_cbranch_scc0 {l}")
            make_srd(a, 8, pDBG, pDBG+1, 0, 256)
            a("s_mov_b64 exec, 1")
            pairs = [(15, 0), (14, 1), (2, 1), (3, 1), (4, 1), (5, 1), (6, 1), (7, 1), (9, 1), (11, 1), (13, 1)]
            for k, (x, y) in enumerate(pairs):
                a(f"s_sub_u32 s40, s{SB+x}, s{SB+y}")
                a(f"v_mov_b32 v4, s40")
                a(f"v_mov_b32 v5, {16 + 4*k}")
                a(f"buffer_store_dword v4, v5, s[8:11], 0 offen")
            a("s_waitcnt vmcnt(0)")
            a.label(l)
    a.label("L_exit")
    a("s_endpgm")
    return kernel_header(NAME) + a.text() + kernel_desc(NAME, 256, 176, sgpr=102)
```
